```python
import torch

def _softmax(x, axis=-1):
    return torch.softmax(x, dim=axis)

def _gelu(x):
    return torch.nn.functional.gelu(x, approximate='tanh')

def _silu(x):
    return torch.nn.functional.silu(x)

def _sigmoid(x):
    return torch.sigmoid(x)

def _layernorm(x, axis=-1, eps=1e-05):
    m = x.mean(dim=axis, keepdim=True)
    v = x.var(dim=axis, keepdim=True, unbiased=False)
    return (x - m) / torch.sqrt(v + eps)

def _scatter_add(tgt, idx, src, axis=0):
    return tgt.clone().index_add_(axis, idx, src)

def _segment_sum(src, seg, n):
    out = torch.zeros((n,) + src.shape[1:], dtype=src.dtype)
    return out.index_add_(0, seg, src)

def _pad(x, pw):
    flat = tuple((v for pair in reversed(pw) for v in pair))
    return torch.nn.functional.pad(x, flat)
kernel_name = 'sequential_preLN__memory_aug_recurrent_mem_tr__moe_arch_mod__prompt'

def setup_inputs():

    _w = lambda a: (lambda t: t.to(torch.bfloat16) if t.is_floating_point() else t)(torch.as_tensor(a))

    def _A_setup():
        B, S, Dm = (1, 2048, 512)
        H, Dh = (32, 128)
        M, seg = (8, 32)
        seg = min(seg, S)
        S = S // seg * seg
        return {'x': _w((lambda *s: torch.randn(*s, dtype=torch.bfloat16) * 0.05)(B, S, Dm)), 'mem0': _w((lambda *s: torch.randn(*s, dtype=torch.bfloat16) * 0.2)(B, M, Dm)), 'Wq': _w((lambda *s: torch.randn(*s, dtype=torch.bfloat16) * 1.6)(Dm, H, Dh) * Dm ** (-0.5)), 'Wk': _w((lambda *s: torch.randn(*s, dtype=torch.bfloat16) * 1.6)(Dm, H, Dh) * Dm ** (-0.5)), 'Wv': _w((lambda *s: torch.randn(*s, dtype=torch.bfloat16) * 0.2)(Dm, H, Dh) * Dm ** (-0.5)), 'Wo': _w((lambda *s: torch.randn(*s, dtype=torch.bfloat16) * 0.2)(H, Dh, Dm) * (H * Dh) ** (-0.5)), 'seg_len': seg}
    _A_in = _A_setup()

    def _B_setup():
        B, S, D, F, C = (1, 2048, 512, 1792, 2)
        return {'x': _w((lambda *s: torch.randn(*s, dtype=torch.bfloat16) * 0.05)(B, S, D)), 'w_r': _w((lambda *s: torch.randn(*s, dtype=torch.bfloat16) * 0.05)(D)), 'w_gate': _w((lambda *s: torch.randn(*s, dtype=torch.bfloat16) * 0.05)(D, F)), 'w_up': _w((lambda *s: torch.randn(*s, dtype=torch.bfloat16) * 0.05)(D, F)), 'w_down': _w((lambda *s: torch.randn(*s, dtype=torch.bfloat16) * 0.05)(F, D))}
    _B_in = _B_setup()
    return {'A_x': _A_in['x'], 'A_mem0': _A_in['mem0'], 'A_Wq': _A_in['Wq'], 'A_Wk': _A_in['Wk'], 'A_Wv': _A_in['Wv'], 'A_Wo': _A_in['Wo'], 'A_seg_len': _A_in['seg_len'], 'B_x': _B_in['x'], 'B_w_r': _B_in['w_r'], 'B_w_gate': _B_in['w_gate'], 'B_w_up': _B_in['w_up'], 'B_w_down': _B_in['w_down']}

def reference(A_x, A_mem0, A_Wq, A_Wk, A_Wv, A_Wo, A_seg_len, B_x, B_w_r, B_w_gate, B_w_up, B_w_down):

    def _A_ref(x, mem0, Wq, Wk, Wv, Wo, seg_len):
        B, S, Dm = x.shape
        H, Dh = (Wq.shape[1], Wq.shape[2])
        M = mem0.shape[1]
        scale = Dh ** (-0.5)
        n_seg = S // seg_len
        L = M + seg_len
        idx = torch.arange(L)
        mask = (idx[:, None] < M) | (idx[:, None] >= idx[None, :])
        mem = mem0
        outs = []
        for s in range(n_seg):
            xs = x[:, s * seg_len:(s + 1) * seg_len, :].clone()
            h = torch.concatenate([mem, xs], axis=1)
            q = torch.einsum('btd,dhe->bhte', h, Wq)
            k = torch.einsum('btd,dhe->bhte', h, Wk)
            v = torch.einsum('btd,dhe->bhte', h, Wv)
            scores = torch.einsum('bhqe,bhke->bhqk', q, k) * scale
            scores = torch.where(mask[None, None], scores, -1000000000.0)
            p = _softmax(scores, axis=-1)
            o = torch.einsum('bhqk,bhke->bhqe', p, v)
            o = torch.einsum('bhte,hed->btd', o, Wo)
            mem = o[:, :M, :].clone()
            outs.append(o[:, M:, :])
        return torch.concatenate(outs, axis=1)

    def _B_ref(x, w_r, w_gate, w_up, w_down):
        B, S, D = x.shape
        C = 2
        r = x @ w_r
        idx = torch.argsort(-r, axis=-1)[:, :C]
        idx_e = (lambda x, n, axis: torch.repeat_interleave(x, n, dim=axis))(idx.reshape(B, C, 1), D, axis=2)
        x_sel = (lambda x, i, axis: torch.take_along_dim(x, i, dim=axis))(x, idx_e, axis=1)
        g = _silu(x_sel @ w_gate)
        u = x_sel @ w_up
        y = g * u @ w_down
        r_sel = _sigmoid((lambda x, i, axis: torch.take_along_dim(x, i, dim=axis))(r, idx, axis=1))
        y = y * r_sel.reshape(B, C, 1)
        b_off = (torch.arange(B) * S).reshape(B, 1)
        flat_idx = (idx + b_off).reshape(B * C)
        zero = (x * 0.0).reshape(B * S, D)
        upd = _scatter_add(zero, flat_idx, y.reshape(B * C, D), axis=0)
        return x + upd.reshape(B, S, D)
    x = A_x
    h = x + _A_ref(_layernorm(x, axis=-1), A_mem0, A_Wq, A_Wk, A_Wv, A_Wo, A_seg_len)
    h2 = h + _B_ref(_layernorm(h, axis=-1), B_w_r, B_w_gate, B_w_up, B_w_down)
    return h2
```

```python
import re

TRANS = ("v_exp_f32", "v_log_f32", "v_rcp_f32", "v_rsq_f32", "v_sqrt_f32", "v_sin_f32", "v_cos_f32",
         "v_rcp_iflag_f32")

_reg_re = re.compile(r"^(-|\|)?(abs\()?([vas])(?:(\d+)|\[(\d+):(\d+)\])\)?\|?$")


def regs_of(op):
    op = op.strip()
    if op in ("vcc", "vcc_lo", "vcc_hi"):
        return [("vcc", 0)]
    if op in ("exec", "exec_lo", "exec_hi"):
        return [("exec", 0)]
    if op == "m0":
        return [("m0", 0)]
    m = _reg_re.match(op)
    if not m:
        return []
    k = m.group(3)
    if m.group(4) is not None:
        return [(k, int(m.group(4)))]
    return [(k, i) for i in range(int(m.group(5)), int(m.group(6)) + 1)]


def split_ops(rest):
    parts, depth, cur = [], 0, ""
    for ch in rest:
        if ch in "[(":
            depth += 1
        if ch in "])":
            depth -= 1
        if ch == "," and depth == 0:
            parts.append(cur.strip())
            cur = ""
        else:
            cur += ch
    if cur.strip():
        parts.append(cur.strip())
    mods = ""
    if parts:
        last = parts[-1].split(None, 1)
        parts[-1] = last[0]
        if len(last) > 1:
            mods = last[1]
    return parts, mods


def mfma_passes(mn):
    if "32x32" in mn:
        return 8
    return 4


class Ins:
    __slots__ = ("mn", "kind", "wr", "rd", "rdC", "rdAB", "dpp", "passes", "text", "nstates", "wide_store_data")


def classify(text):
    t = text.strip()
    sp = t.split(None, 1)
    mn = sp[0]
    ops, mods = split_ops(sp[1]) if len(sp) > 1 else ([], "")
    I = Ins()
    I.mn, I.text = mn, t
    I.wr, I.rd, I.rdC, I.rdAB = [], [], [], []
    I.dpp = False
    I.passes = 0
    I.nstates = 1
    I.wide_store_data = []
    R = [regs_of(o) for o in ops]
    flat = lambda L: [x for l in L for x in l]
    if mn.startswith("v_mfma") or mn.startswith("v_smfmac"):
        I.kind = "mfma"
        I.passes = mfma_passes(mn)
        I.wr = R[0]
        if mn.startswith("v_smfmac"):
            I.rdAB = R[1] + R[2] + R[3]
            I.rdC = R[0]
        else:
            I.rdAB = R[1] + R[2]
            I.rdC = R[3]
        I.rd = I.rdAB + I.rdC
    elif mn.startswith("v_"):
        I.kind = "trans" if any(mn.startswith(x) for x in TRANS) else "valu"
        I.dpp = ("_dpp" in mn) or ("quad_perm" in mods) or ("row_" in mods)
        if mn.startswith("v_permlane") and "swap" in mn:
            I.kind = "permlane"
            I.wr = R[0] + R[1]
            I.rd = R[0] + R[1]
        elif mn.startswith("v_swap"):
            I.wr = R[0] + R[1]
            I.rd = R[0] + R[1]
        elif mn.startswith("v_cmp"):
            I.wr = R[0]
            I.rd = flat(R[1:])
        elif mn.startswith("v_readfirstlane") or mn.startswith("v_readlane"):
            I.kind = "readlane"
            I.wr = R[0]
            I.rd = flat(R[1:])
        elif mn.startswith("v_add_co") or mn.startswith("v_sub_co") or mn.startswith("v_addc_co") or mn.startswith("v_subb_co"):
            I.wr = R[0] + R[1]
            I.rd = flat(R[2:])
        else:
            I.wr = R[0]
            I.rd = flat(R[1:])
            if mn.startswith("v_fmac") or mn.startswith("v_dot2c") or mn.startswith("v_writelane") or I.dpp:
                I.rd = I.rd + R[0]
            if mn.startswith("v_cndmask") and len(ops) == 3:
                I.rd = I.rd + [("vcc", 0)]
    elif mn.startswith("ds_"):
        I.kind = "ds"
        if mn.startswith("ds_read") or mn.startswith("ds_bpermute") or mn.startswith("ds_permute") or mn.startswith("ds_swizzle") or "_rtn" in mn:
            I.wr = R[0]
            I.rd = flat(R[1:])
        else:
            I.rd = flat(R)
    elif mn.startswith("buffer_") or mn.startswith("global_"):
        I.kind = "vmem"
        is_lds = (" lds" in (" " + mods)) or "_lds_" in mn
        if mn in ("buffer_wbl2", "buffer_inv"):
            pass
        elif "load" in mn:
            if is_lds:
                I.rd = flat(R) + [("m0", 0)]
            else:
                I.wr = R[0]
                I.rd = flat(R[1:])
        elif "atomic" in mn:
            if "sc0" in mods.split():
                if mn.startswith("buffer_"):
                    I.wr = R[0]
                    I.rd = flat(R)
                else:
                    I.wr = R[0]
                    I.rd = flat(R[1:])
            else:
                I.rd = flat(R)
        else:
            I.rd = flat(R)
            data = R[0] if mn.startswith("buffer_") else R[1]
            if len(data) >= 3:
                I.wide_store_data = data
    elif mn.startswith("s_"):
        I.kind = "salu"
        if mn == "s_nop":
            I.nstates = int(ops[0], 0) + 1
        elif mn.startswith("s_cmp") or mn.startswith("s_bitcmp") or mn.startswith("s_cbranch") or mn in (
                "s_branch", "s_barrier", "s_waitcnt", "s_endpgm", "s_sleep", "s_setprio"):
            I.rd = flat(R)
        else:
            I.wr = R[0] if R else []
            I.rd = flat(R[1:])
            if "saveexec" in mn:
                I.wr = I.wr + [("exec", 0)]
    else:
        raise ValueError("unknown instruction: " + text)
    return I


def need_states(P, C):
    n = 0
    pw = set(P.wr)
    isvalu = lambda X: X.kind in ("valu", "trans", "permlane", "readlane")
    if P.kind == "mfma":
        D = pw
        k = {4: 8, 8: 12}[P.passes]
        if C.kind == "mfma":
            if D & set(C.rdAB):
                n = max(n, k)
            if D & set(C.rdC):
                exact = list(P.wr) == list(C.rdC) and P.mn == C.mn
                if not exact:
                    n = max(n, {4: 6, 8: 10}[P.passes])
            elif D & set(C.wr):
                n = max(n, {4: 6, 8: 10}[P.passes])
        elif isvalu(C) or C.kind in ("ds", "vmem"):
            if D & (set(C.rd) | set(C.wr)):
                n = max(n, k)
        if isvalu(C) and set(P.rdC) & set(C.wr):
            n = max(n, {4: 3, 8: 7}[P.passes])
    if isvalu(P):
        vw = {r for r in pw if r[0] in "va"}
        sw = {r for r in pw if r[0] in ("s", "vcc")}
        if C.kind == "mfma" and vw & set(C.rd):
            n = max(n, 2)
        if C.dpp and vw & set(C.rd):
            n = max(n, 2)
        if C.kind == "permlane" and vw & set(C.rd):
            n = max(n, 2)
        if C.kind == "readlane" and vw & set(C.rd):
            n = max(n, 1)
        if P.kind == "trans" and isvalu(C) and C.kind != "trans" and vw & set(C.rd):
            n = max(n, 1)
        if P.kind == "trans" and C.kind == "trans" and vw & set(C.rd):
            n = max(n, 1)
        if sw:
            if isvalu(C) and sw & set(C.rd):
                n = max(n, 4 if C.kind == "readlane" or C.mn.startswith("v_writelane") else 2)
            if C.kind == "vmem" and sw & set(C.rd):
                n = max(n, 5)
            if C.kind == "salu" and sw & set(C.rd):
                n = max(n, 1)
    if P.kind == "vmem" and P.wide_store_data:
        if set(P.wide_store_data) & set(C.wr):
            n = max(n, 2 if isvalu(C) else 1)
    if P.kind == "salu" and ("m0", 0) in pw and ("m0", 0) in C.rd:
        n = max(n, 1)
    return n


class Emitter:
    def __init__(self):
        self.lines = []
        self.hist = []
        self.nops_inserted = 0

    def raw(self, text):
        self.lines.append(text)

    def comment(self, text):
        self.lines.append("    ; " + text)

    def label(self, name):
        self.lines.append(name + ":")

    def fence(self, n=12):
        while n > 0:
            k = min(n, 16)
            self("s_nop %d" % (k - 1))
            n -= k

    def __call__(self, text, cmt=None):
        for t in text.strip().split("\n"):
            t = t.strip()
            if not t:
                continue
            I = classify(t)
            dist = 0
            need = 0
            for P in reversed(self.hist):
                req = need_states(P, I)
                if req - dist > need:
                    need = req - dist
                dist += P.nstates
                if dist >= 12:
                    break
            if need > 0:
                nop = classify("s_nop %d" % (need - 1))
                self.lines.append("    s_nop %d" % (need - 1))
                self.hist.append(nop)
                self.nops_inserted += need
            self.lines.append("    " + t + (("    ; " + cmt) if cmt else ""))
            self.hist.append(I)
            if len(self.hist) > 16:
                self.hist.pop(0)

    def text(self):
        return "\n".join(self.lines) + "\n"


def v(a, n=1):
    return "v%d" % a if n == 1 else "v[%d:%d]" % (a, a + n - 1)


def a(a_, n=1):
    return "a%d" % a_ if n == 1 else "a[%d:%d]" % (a_, a_ + n - 1)


def s(a_, n=1):
    return "s%d" % a_ if n == 1 else "s[%d:%d]" % (a_, a_ + n - 1)
```

```python
from asmlib import Emitter, v, a, s
import struct

WS_BYTES = 0x10000000
PB_OFF = 0x0000000
PB_SZ = 0x40000
HIST_OFF = 0x0100000
FLAG_OFF = 0x0190000
STAMP_OFF = 0x01A0000
SLAB_OFF = 0x1000000
SLAB_ST = 0x82000
MB_IN = 0x80000
OOB = 0x40000000

L_MEMI = 0
L_PX = 8192
RS = 72
L_QX = 16384
L_KMX = L_QX + 2304
L_OX = L_KMX + 2304
L_SEL = L_OX + 2048
L_WL = 32768
LDS_BYTES = 163840

S_WS = 8
S_W = 12
S_DBG = 16
S_H = 20
S_WAVE = 21
S_STEP = 22
S_SLAB = 23
S_SLABN = 24
S_KXO = 25
S_KX = 29
S_VX = 30
S_HIST = 31
S_TMO = 32
S_SCALE = 33
S_PLO = 34
S_PHI = 35
S_T0 = 36
S_T1 = 37
S_T2 = 38
S_VXO = 39
S_BIG = 40
S_PR = 6
S_MB = 7
S_4K = 26
S_PAR = 27
S_RDY = 62
S_ONES = 4
S_PTR = 44
S_ST = 64

C_PF = 0
C_IDX, C_MW, C_L16, C_WL, C_QW, C_QR, C_KR, C_OW, C_PW, C_MP, FREE1, HPEND, HPEND1, T0, JUNK = range(1, 16)
AM = 16
ACCQ = 48
ACCK = 56
ACCV = 64
QB = 72
XA = 88
XB = 104
VX = 120
VW = 128

TMO_LIMIT = 200000
OPT = {}


def f32bits(x):
    return struct.unpack("<I", struct.pack("<f", x))[0]


def lin(e, dst, coefs, const=0, tmp=T0, src=0):
    e("v_mov_b32 %s, 0x%x" % (v(dst), const))
    for k, c in sorted(coefs.items()):
        if c == 0:
            continue
        assert c < (1 << 24)
        e("v_bfe_u32 %s, %s, %d, 1" % (v(tmp), v(src), k))
        e("s_mov_b32 %s, 0x%x" % (s(S_T2), c))
        e("v_mad_u32_u24 %s, %s, %s, %s" % (v(dst), v(tmp), s(S_T2), v(dst)))


def srd(e, d, ptr, nbytes):
    e("s_mov_b32 %s, %s" % (s(d), s(ptr)))
    e("s_and_b32 %s, %s, 0xffff" % (s(d + 1), s(ptr + 1)))
    e("s_mov_b32 %s, 0x%x" % (s(d + 2), nbytes))
    e("s_mov_b32 %s, 0x20000" % s(d + 3))


LDS_OPS = {
    ("Q", 0, 0): XB + 0, ("Q", 1, 0): XB + 8, ("Q", 0, 1): XA + 0, ("Q", 1, 1): XA + 8,
    ("K", 0, 0): QB + 0, ("K", 1, 0): QB + 8,
    ("Q", 0, 7): XA + 0, ("Q", 1, 7): XA + 8,
    ("K", 0, 2): QB + 0, ("K", 1, 2): QB + 8,
    ("K", 0, 7): XA + 0, ("K", 1, 7): XA + 8,
    ("O", 0, 0): XA + 0, ("O", 1, 0): XA + 8, ("O", 0, 1): QB + 0, ("O", 1, 1): QB + 8,
}
OLDS = [("O", 0, 0), ("O", 1, 0), ("O", 0, 1), ("O", 1, 1)]
LDS_SLOT = {k: i for i, k in enumerate(LDS_OPS)}
ALL_OPS = [(m, T, u) for m in "QKV" for u in range(8) for T in range(2)] + [("O", T, t) for t in range(2) for T in range(8)]
RES = {}
_n = 0
for op in ALL_OPS:
    if op in LDS_OPS:
        continue
    RES[op] = ("a", _n * 8) if _n < 32 else ("v", VW + (_n - 32) * 8)
    _n += 1
assert _n == 48


def opreg(op):
    if op in LDS_OPS:
        return v(LDS_OPS[op], 8)
    k, r = RES[op]
    return (a if k == "a" else v)(r, 8)


def lds_fetch_ins(op):
    r = LDS_OPS[op]
    off = LDS_SLOT[op] * 2048
    return ["ds_read_b128 %s, %s offset:%d" % (v(r, 4), v(C_WL), off),
            "ds_read_b128 %s, %s offset:%d" % (v(r + 4, 4), v(C_WL), off + 1024)]


def lds_fetch(e, op):
    for t in lds_fetch_ins(op):
        e(t)


def rowpart(rho, b, hi=32):
    return hi * (rho >> 2) + 8 * (rho & 1) + 2 * ((rho >> 1) & 1) + b


def place_operand(e, op, srcs, sel, tmp8):
    if op in LDS_OPS:
        for rho, (x0, x1) in enumerate(srcs):
            e("v_perm_b32 %s, %s, %s, %s" % (v(tmp8 + rho), v(x1), v(x0), s(sel)))
        off = LDS_SLOT[op] * 2048
        e("ds_write_b128 %s, %s offset:%d" % (v(C_WL), v(tmp8, 4), off))
        e("ds_write_b128 %s, %s offset:%d" % (v(C_WL), v(tmp8 + 4, 4), off + 1024))
        e("s_waitcnt lgkmcnt(0)")
    else:
        k, r = RES[op]
        for rho, (x0, x1) in enumerate(srcs):
            if k == "v":
                e("v_perm_b32 %s, %s, %s, %s" % (v(r + rho), v(x1), v(x0), s(sel)))
            else:
                e("v_perm_b32 %s, %s, %s, %s" % (v(tmp8 + rho), v(x1), v(x0), s(sel)))
                e("v_accvgpr_write_b32 %s, %s" % (a(r + rho), v(tmp8 + rho)))


def load_weights(e, P_WQ, P_WK, P_WV, P_WO):
    VOFF, VOFO = JUNK, FREE1
    RING = 16
    TMP8 = 120
    lin(e, VOFF, {0: 4, 1: 8, 2: 16, 3: 32, 4: 4 * 8192, 5: 16 * 8192, 6: 64, 7: 128})
    lin(e, VOFO, {0: 4, 1: 8, 2: 16, 3: 32, 4: 4 * 1024, 5: 16 * 1024, 6: 256, 7: 512})
    groups = [(m, u) for m in "QKVO" for u in range(8)]
    ptr = {"Q": P_WQ, "K": P_WK, "V": P_WV, "O": P_WO}
    SRDS = {"Q": 96, "K": 12, "V": 60, "O": 92}
    for m in "QKVO":
        srd(e, SRDS[m], ptr[m], 512 * 4096 * 2)

    def issue(gi):
        m, u = groups[gi]
        base = RING + (gi % 4) * 16
        if m != "O":
            e("s_xor_b32 %s, %s, %d" % (s(S_T0), s(S_WAVE), u >> 1))
            e("s_lshl_b32 %s, %s, 18" % (s(S_T0), s(S_T0)))
            e("s_lshl_b32 %s, %s, 8" % (s(S_T1), s(S_H)))
            e("s_add_u32 %s, %s, %s" % (s(S_T0), s(S_T0), s(S_T1)))
            off = lambda rho, b: (256 * (u & 1) + rowpart(rho, b, 128)) * 8192
        else:
            q, tt = u >> 1, u & 1
            e("s_lshl_b32 %s, %s, 17" % (s(S_T0), s(S_H)))
            off = lambda rho, b: (64 * tt + rowpart(rho, b)) * 1024 + q * 64
        for rho in range(8):
            for b in range(2):
                e("s_add_u32 %s, %s, 0x%x" % (s(S_T1), s(S_T0), off(rho, b)))
                e("buffer_load_dword %s, %s, %s, %s offen" % (v(base + rho * 2 + b), v(VOFO if m == "O" else VOFF), s(SRDS[m], 4), s(S_T1)))

    def consume(gi):
        m, u = groups[gi]
        base = RING + (gi % 4) * 16
        srcs = [(base + rho * 2, base + rho * 2 + 1) for rho in range(8)]
        for k in range(2):
            op = (m, k, u) if m != "O" else ("O", 2 * (u >> 1) + k, u & 1)
            place_operand(e, op, srcs, S_PHI if k else S_PLO, TMP8)

    n = len(groups)
    for gi in range(3):
        issue(gi)
    for gi in range(n):
        inflight_after = min(n - 1 - gi, 2)
        e("s_waitcnt vmcnt(%d)" % (inflight_after * 16))
        if gi + 3 < n:
            issue(gi + 3)
        consume(gi)


def setup_consts(e):
    T1, T2 = AM + 8, AM + 9
    lin(e, C_IDX, {1: 0xEEEE - 0x4444}, 0x4444)
    lin(e, C_L16, {k: 16 << k for k in range(6)})
    lin(e, C_MW, {**{k: 16 << k for k in range(6)}, 6: 2048, 7: 4096})
    lin(e, C_WL, {**{k: 16 << k for k in range(6)}, 6: 32768, 7: 65536}, L_WL)
    lin(e, C_QW, {0: 4, 1: 8, 2: 16, 3: 32, 4: 2 * RS * 4, 5: 4 * RS * 4, 6: 64, 7: 128}, L_QX)
    lin(e, C_QR, {1: RS * 4, 2: 2 * RS * 4, 3: 4 * RS * 4, 4: 16, 5: 32}, L_QX)
    lin(e, C_KR, {0: RS * 4, 2: 2 * RS * 4, 3: 4 * RS * 4, 4: 16, 5: 32}, L_KMX)
    lin(e, C_OW, {1: 16, 2: 64, 3: 128, 4: 32, 5: 256, 6: 512, 7: 1024}, L_OX)
    lin(e, T1, {3: 1, 4: 2, 5: 4, 6: 8, 7: 16})
    e("v_add_u32 %s, %s, %s" % (v(T1), s(S_H), v(T1)))
    e("v_and_b32 %s, 31, %s" % (v(T1), v(T1)))
    e("v_lshlrev_b32 %s, 6, %s" % (v(T1), v(T1)))
    lin(e, C_PW, {0: 8, 1: 16, 2: 32, 3: 8192, 4: 2 * 8192, 5: 4 * 8192, 6: 8 * 8192, 7: 16 * 8192}, PB_OFF)
    e("v_add_u32 %s, %s, %s" % (v(C_PW), v(C_PW), v(T1)))
    lin(e, C_MP, {0: 8, 1: 32, 4: 16, 5: 4, 6: 2048, 7: 4096}, MB_IN)
    e("v_mov_b32 %s, %s" % (v(T2), s(S_H)))
    lin(e, T1, {0: 256, 1: 64, 2: 128, 3: 512, 4: 1024}, src=T2)
    e("v_add_u32 %s, %s, %s" % (v(C_MP), v(T1), v(C_MP)))
    e("v_and_b32 %s, 12, v0" % v(T1))
    e("v_cmp_ne_u32 vcc, 0, %s" % v(T1))
    e("v_mov_b32 %s, 0x%x" % (v(T1), OOB))
    e("v_cndmask_b32 %s, %s, %s, vcc" % (v(C_MP), v(C_MP), v(T1)))
    e("s_lshl_b32 %s, %s, 13" % (s(S_PR), s(S_H)))
    e("s_add_u32 %s, %s, 0x%x" % (s(S_PR), s(S_PR), PB_OFF))
    e("s_mov_b32 %s, 4096" % s(S_4K))
    e("v_and_b32 %s, 15, v0" % v(T1))
    for q in range(4):
        e("v_mov_b32 %s, 0" % v(AM + q))
        e("v_mov_b32 %s, 0x3f80" % v(T2))
        e("v_cmp_eq_u32 vcc, %d, %s" % (4 * q, v(T1)))
        e("v_cndmask_b32 %s, %s, %s, vcc" % (v(AM + q), v(AM + q), v(T2)))
        e("v_mov_b32 %s, 0x3f800000" % v(T2))
        e("v_cmp_eq_u32 vcc, %d, %s" % (4 * q + 1, v(T1)))
        e("v_cndmask_b32 %s, %s, %s, vcc" % (v(AM + q), v(AM + q), v(T2)))
    e("ds_write_b128 %s, %s offset:%d" % (v(C_L16), v(AM, 4), L_SEL))
    e("s_mov_b32 %s, 0x05040100" % s(S_PLO))
    e("s_mov_b32 %s, 0x07060302" % s(S_PHI))
    e("s_mov_b32 %s, 0x%x" % (s(S_SCALE), f32bits(128 ** -0.5 * 1.4426950408889634)))
    e("s_mov_b32 %s, 0x%x" % (s(S_BIG), f32bits(OPT.get('big', 2.0 ** 30))))
    e("s_mov_b32 %s, 0" % s(S_TMO))
    e("s_mov_b32 %s, 0x3f803f80" % s(S_ONES))
    e("s_mov_b32 %s, 0x3f803f80" % s(S_ONES + 1))
    e("s_lshl_b32 %s, %s, 14" % (s(S_T0), s(S_H)))
    e("s_lshr_b32 %s, %s, 1" % (s(S_T1), s(S_WAVE)))
    e("s_lshl_b32 %s, %s, 12" % (s(S_T1), s(S_T1)))
    e("s_add_u32 %s, %s, %s" % (s(S_KXO), s(S_T0), s(S_T1)))
    e("s_lshl_b32 %s, %s, 11" % (s(S_T1), s(S_WAVE)))
    e("s_add_u32 %s, %s, %s" % (s(S_VXO), s(S_T0), s(S_T1)))
    e("s_add_u32 %s, %s, 8192" % (s(S_VXO), s(S_VXO)))


def setup_pf(e):
    T1, T2 = AM + 8, AM + 9
    lin(e, T1, {0: 128, 1: 256, 2: 512, 3: 1024, 4: 2048, 6: 4096, 7: 8192})
    e("s_lshl_b32 %s, %s, 14" % (s(S_T0), s(S_H)))
    e("v_add_u32 %s, %s, %s" % (v(T1), s(S_T0), v(T1)))
    e("s_lshl_b32 %s, %s, 8" % (s(S_T0), s(S_H)))
    e("s_lshr_b32 %s, %s, 1" % (s(S_T1), s(S_WAVE)))
    e("s_lshl_b32 %s, %s, 7" % (s(S_T1), s(S_T1)))
    e("s_add_u32 %s, %s, %s" % (s(S_T0), s(S_T0), s(S_T1)))
    e("s_add_u32 %s, %s, 0x%x" % (s(S_T0), s(S_T0), SLAB_ST + MB_IN))
    e("v_and_b32 %s, 63, v0" % v(T0))
    e("v_mov_b32 %s, 0x%x" % (v(T2), OOB))
    e("v_cmp_lt_u32 vcc, 32, %s" % v(T0))
    e("v_cndmask_b32 %s, %s, %s, vcc" % (v(T1), v(T1), v(T2)))
    e("v_mov_b32 %s, %s" % (v(T2), s(S_T0)))
    e("v_cmp_eq_u32 vcc, 32, %s" % v(T0))
    e("v_cndmask_b32 %s, %s, %s, vcc" % (v(C_PF), v(T1), v(T2)))


def init_buffers(e, P_MEM0):
    T1, T2 = AM + 8, AM + 9
    for q in range(4):
        e("v_mov_b32 %s, -1" % v(AM + 4 + q))
    e("buffer_store_dwordx4 %s, %s, %s, %s offen sc1" % (v(AM + 4, 4), v(C_MW), s(S_WS, 4), s(S_PR)))
    e("buffer_store_dwordx4 %s, %s, %s, %s offen offset:1024 sc1" % (v(AM + 4, 4), v(C_MW), s(S_WS, 4), s(S_PR)))
    e("s_lshl_b32 %s, %s, 14" % (s(S_T0), s(S_H)))
    e("s_add_u32 %s, %s, 0x%x" % (s(S_T0), s(S_T0), HIST_OFF))
    e("s_add_u32 %s, %s, 0x2000" % (s(S_T1), s(S_T0)))
    for so in (S_T0, S_T1):
        e("buffer_store_dwordx4 %s, %s, %s, %s offen sc1" % (v(AM + 4, 4), v(C_MW), s(S_WS, 4), s(so)))
        e("buffer_store_dwordx4 %s, %s, %s, %s offen offset:1024 sc1" % (v(AM + 4, 4), v(C_MW), s(S_WS, 4), s(so)))
    e("s_mul_i32 %s, %s, 0x%x" % (s(S_T0), s(S_H), 2 * SLAB_ST))
    e("s_add_u32 %s, %s, 0x%x" % (s(S_T0), s(S_T0), SLAB_OFF + SLAB_ST + MB_IN + (0x4000000 if OPT.get("solo") else 0)))
    e("s_add_u32 %s, %s, 0x%x" % (s(S_T1), s(S_T0), SLAB_ST))
    for so in (S_T0, S_T1):
        e("buffer_store_dwordx4 %s, %s, %s, %s offen sc1" % (v(AM + 4, 4), v(C_MW), s(S_WS, 4), s(so)))
        e("buffer_store_dwordx4 %s, %s, %s, %s offen offset:1024 sc1" % (v(AM + 4, 4), v(C_MW), s(S_WS, 4), s(so)))
    e("v_lshlrev_b32 %s, 2, v0" % v(T1))
    e("v_mov_b32 %s, 0x%x" % (v(T2), OOB))
    e("v_cmp_lt_u32 vcc, 63, v0")
    e("v_cndmask_b32 %s, %s, %s, vcc" % (v(T1), v(T1), v(T2)))
    e("v_mov_b32 %s, 0" % v(T2))
    e("s_lshl_b32 %s, %s, 8" % (s(S_T0), s(S_H)))
    e("s_add_u32 %s, %s, 0x%x" % (s(S_T0), s(S_T0), FLAG_OFF))
    e("s_add_u32 %s, %s, 0x2000" % (s(S_T1), s(S_T0)))
    if OPT.get("kvflags", 1):
        e("buffer_store_dword %s, %s, %s, %s offen sc1" % (v(T2), v(T1), s(S_WS, 4), s(S_T0)))
        e("buffer_store_dword %s, %s, %s, %s offen sc1" % (v(T2), v(T1), s(S_WS, 4), s(S_T1)))
    srd(e, S_W, P_MEM0, 8192)
    lin(e, T1, {0: 8, 1: 16, 2: 0x10000, 3: 0x10000, 4: 1024, 5: 4, 6: 64, 7: 128})
    e("v_mov_b32 %s, %s" % (v(AM), s(S_H)))
    lin(e, T2, {0: 32, 1: 2048, 2: 4096, 3: 256, 4: 512}, src=AM)
    e("v_add_u32 %s, %s, %s" % (v(T1), v(T1), v(T2)))
    e("buffer_load_dword %s, %s, %s, 0 offen" % (v(HPEND), v(T1), s(S_W, 4)))
    e("s_waitcnt vmcnt(0)")
    e("s_mov_b32 %s, 0x%x" % (s(S_T0), SLAB_OFF))
    e("buffer_store_dword %s, %s, %s, %s offen sc1" % (v(HPEND), v(C_MP), s(S_WS, 4), s(S_T0)))
    e("s_waitcnt vmcnt(0) lgkmcnt(0)")
    e("s_barrier")
    e("s_getreg_b32 %s, hwreg(HW_REG_XCC_ID)" % s(S_T0))
    e("s_and_b32 %s, %s, 15" % (s(S_T0), s(S_T0)))
    e("s_or_b32 %s, %s, 0x100" % (s(S_T0), s(S_T0)))
    e("v_mov_b32 %s, %s" % (v(T1), s(S_T0)))
    e("s_lshl_b32 %s, %s, 2" % (s(S_T1), s(S_H)))
    e("v_lshlrev_b32 %s, 20, v0" % v(T2))
    e("buffer_store_dword %s, %s, %s, %s offen sc1" % (v(T1), v(T2), s(S_DBG, 4), s(S_T1)))


def handshake_wait(e, fast_label, slow_label):
    T1, T2 = AM + 8, AM + 9
    e("v_lshrrev_b32 %s, 2, %s" % (v(T2), v(C_L16)))
    e("v_and_b32 %s, 127, %s" % (v(T2), v(T2)))
    e.label("L_HS")
    e("buffer_load_dword %s, %s, %s, 0 offen sc1" % (v(T1), v(T2), s(S_DBG, 4)))
    e("s_add_u32 %s, %s, 1" % (s(S_TMO), s(S_TMO)))
    e("s_cmp_gt_u32 %s, %d" % (s(S_TMO), TMO_LIMIT))
    e("s_cbranch_scc1 %s" % slow_label)
    e("s_waitcnt vmcnt(0)")
    e("v_cmp_eq_u32 vcc, 0, %s" % v(T1))
    e("s_cbranch_vccnz L_HS")
    e("v_readfirstlane_b32 %s, %s" % (s(S_T0), v(T1)))
    e("v_cmp_ne_u32 vcc, %s, %s" % (s(S_T0), v(T1)))
    e("s_cbranch_vccnz %s" % slow_label)
    e("s_branch %s" % fast_label)


def smf_ins(acc, aop, op):
    return "v_smfmac_f32_16x16x64_bf16 %s, %s, %s, %s" % (v(acc, 4), v(aop, 4), opreg(op), v(C_IDX))


def stamp(e, i, on):
    if on:
        e("s_memtime %s" % s(S_ST + 2 * i, 2))


am = lambda u: AM + 4 * u


def idle_prep_ins():
    out = []
    for op in (("Q", 0, 0), ("Q", 1, 0), ("Q", 0, 1), ("Q", 1, 1), ("K", 0, 0), ("K", 1, 0)):
        out += lds_fetch_ins(op)
    z = ["v_mov_b64 %s, 0" % v(r, 2) for r in range(ACCQ, ACCQ + 24, 2)]
    return out, z


def mr_addr_ins():
    return ["v_xor_b32 %s, 0x%x, %s" % (v(am(2 * k + 1)), k * 2048, v(C_MW)) for k in (1, 2, 3)]


def delay(e, cyc):
    n = cyc // 4
    while n > 0:
        k = min(n, 16)
        e("s_nop %d" % (k - 1))
        n -= k


def weave(e, main, fill):
    for i, m in enumerate(main):
        e(m)
        for t in fill.get(i, []):
            e(t)


def main_loop(e, tag, sc, nsteps, stamps=False):
    L = lambda n: "L_%s_%s" % (tag, n)
    ws = s(S_WS, 4)
    if not sc:
        sc = OPT.get("stf", "")
    acc = {"Q": ACCQ, "K": ACCK, "V": ACCV}
    S = lambda m, T, u: smf_ins(acc[m] + 4 * T, am(u), (m, T, u))
    e.label(L("start"))
    e("s_mov_b32 %s, 0" % s(S_STEP))
    e("s_mov_b32 %s, 0x%x" % (s(S_SLAB), SLAB_OFF))
    e("s_mov_b32 %s, 0" % s(S_PAR))
    e("s_mov_b32 %s, 0x%x" % (s(S_HIST), HIST_OFF - MB_IN))
    f, z = idle_prep_ins()
    for t in f + z:
        e(t)
    if OPT.get("pretouch"):
        e("s_mul_i32 %s, %s, 0x%x" % (s(S_T0), s(S_H), 2 * SLAB_ST))
        e("s_add_u32 %s, %s, 0x%x" % (s(S_T0), s(S_T0), SLAB_OFF + MB_IN))
        e("s_add_u32 %s, %s, 0x%x" % (s(S_T1), s(S_T0), SLAB_ST))
        for so in (S_T0, S_T1):
            e("buffer_load_dwordx4 %s, %s, %s, %s offen sc1" % (v(AM, 4), v(C_MW), ws, s(so)))
            e("buffer_load_dwordx4 %s, %s, %s, %s offen offset:1024 sc1" % (v(AM, 4), v(C_MW), ws, s(so)))
        e("s_waitcnt vmcnt(0)")
    e("s_waitcnt lgkmcnt(0)")
    e("s_mov_b64 %s, %s" % (s(S_RDY, 2), "0" if OPT.get("kvflags", 1) else "-1"))
    e.label(L("step"))
    e("s_bitcmp1_b64 %s, %s" % (s(S_RDY, 2), s(S_STEP)))
    e("s_cbranch_scc0 %s" % L("refresh"))
    e("s_add_u32 %s, %s, 1" % (s(S_T0), s(S_STEP)))
    e("s_bitcmp1_b64 %s, %s" % (s(S_RDY, 2), s(S_T0)))
    e("s_cbranch_scc0 %s" % L("refresh"))
    mld = ["buffer_load_dwordx4 %s, %s, %s, %s offen sc1" % (v(am(0), 4), v(C_MW), ws, s(S_MB)),
           "buffer_load_dwordx4 %s, %s, %s, %s offen offset:1024 sc1" % (v(am(1), 4), v(C_MW), ws, s(S_MB))]
    deepm = OPT.get("deepm", 0) and not OPT.get("solo")
    e("s_add_u32 %s, %s, 0x%x" % (s(S_MB), s(S_SLAB), MB_IN))
    if deepm:
        for t in mld:
            e(t)
    e("s_add_u32 %s, %s, 0x%x" % (s(S_SLABN), s(S_SLAB), SLAB_ST))
    e("s_add_u32 %s, %s, %s" % (s(S_KX), s(S_SLAB), s(S_KXO)))
    e("s_add_u32 %s, %s, %s" % (s(S_VX), s(S_SLAB), s(S_VXO)))
    for t in mr_addr_ins():
        e(t)
    if deepm and OPT.get("stag2", 1):
        e("s_sleep %d" % OPT.get("stag2", 1))
    T1 = am(2)
    e.label(L("pollm"))
    for t in mld:
        e(t)
    e("s_add_u32 %s, %s, 1" % (s(S_TMO), s(S_TMO)))
    e("s_cmp_gt_u32 %s, %d" % (s(S_TMO), TMO_LIMIT))
    e("s_waitcnt vmcnt(%d)" % (3 if deepm else 1))
    e("v_max3_u32 %s, %s, %s, %s" % (v(T0), v(AM), v(AM + 1), v(AM + 2)))
    e("s_waitcnt vmcnt(%d)" % (2 if deepm else 0))
    e("v_max3_u32 %s, %s, %s, %s" % (v(T1), v(AM + 3), v(AM + 4), v(AM + 5)))
    e("v_max3_u32 %s, %s, %s, %s" % (v(T0), v(T0), v(AM + 6), v(AM + 7)))
    e("v_max_u32 %s, %s, %s" % (v(T0), v(T0), v(T1)))
    e("s_cbranch_scc1 %s" % L("gotm"))
    e("v_cmp_eq_u32 vcc, -1, %s" % v(T0))
    if not OPT.get("solo"):
        e("s_cbranch_vccnz %s" % L("pollm"))
    e.label(L("gotm"))
    stamp(e, 0, stamps)
    if stamps:
        for d_, s_ in ((3, 1), (4, 11), (5, 2)):
            e("s_mov_b32 %s, %s" % (s(S_ST + 2 * d_), s(S_ST + 2 * s_)))
    mw = ["ds_write_b128 %s, %s offset:%d" % (v(C_MW), v(am(k), 4), L_MEMI + 1024 * k) for k in range(2)]
    pst = lambda q: "buffer_store_dwordx2 %s, %s, %s, %s offen offset:%d%s" % (v(ACCQ + 2 * q, 2), v(C_PW), ws, "0" if q < 2 else s(S_4K), (q & 1) * 2048, sc)
    tg = lambda q: "v_and_or_b32 %s, %s, -2, %s" % (v(ACCQ + 2 * q), v(ACCQ + 2 * q), s(S_PAR))
    if OPT.get("comm"):
        e(mw[0]); e(mw[1])
        e("s_waitcnt lgkmcnt(0)")
        e("s_barrier")
        if not OPT.get("nopf"):
            e("buffer_load_dword %s, %s, %s, %s offen sc1" % (v(JUNK), v(C_PF), ws, s(S_SLABN)))
        delay(e, 1024 - 192)
        e("s_barrier")
        for q in range(4):
            e(tg(q))
            e(pst(q))
            if q < 3:
                delay(e, 56)
        e("s_branch %s" % L("stored"))
    kxld = lambda ks: "buffer_load_dwordx4 %s, %s, %s, %s offen offset:%d sc1" % (v(XB + 4 * ks, 4), v(C_L16), ws, s(S_KX), ks * 1024)
    vxld = lambda T: "buffer_load_dwordx4 %s, %s, %s, %s offen offset:%d sc1" % (v(VX + 4 * T, 4), v(C_L16), ws, s(S_VX), T * 1024)
    lg = lambda n: "s_waitcnt lgkmcnt(%d)" % n
    BAR = "s_barrier"
    amrd = lambda u: "ds_read_b128 %s, %s offset:%d" % (v(am(u), 4), v(am(u | 1)), L_MEMI + (u & 1) * 1024)
    q7 = lds_fetch_ins(("Q", 0, 7)) + lds_fetch_ins(("Q", 1, 7))
    k2 = lds_fetch_ins(("K", 0, 2)) + lds_fetch_ins(("K", 1, 2))
    k7 = lds_fetch_ins(("K", 0, 7)) + lds_fetch_ins(("K", 1, 7))
    of = sum([lds_fetch_ins(op) for op in OLDS], [])
    add = lambda b, r: "v_add_f32 %s, %s, %s" % (v(b + r), v(b + r), v(b + r + 2))
    cvt = lambda d, x, y: "v_cvt_pk_bf16_f32 %s, %s, %s" % (v(d), v(x), v(y))
    qbrd = lambda ks: "ds_read_b128 %s, %s offset:%d" % (v(QB + 4 * ks, 4), v(C_QR), 64 * ks)
    KM = XA
    kmrd = lambda ks: "ds_read_b128 %s, %s offset:%d" % (v(KM + 4 * ks, 4), v(C_KR), 64 * ks)
    SX, SM = ACCQ, ACCQ + 4
    ONES, PX, PM, VM0, VM1 = XB, XB + 4, XB + 8, XB + 10, XB + 12
    TA = XB + 14
    LS = SX
    OA = ACCK
    OP = SM
    mf32 = lambda d, A, B, first: "v_mfma_f32_16x16x32_bf16 %s, %s, %s, %s" % (v(d, 4), v(A, 4), v(B, 4), "0" if first else v(d, 4))
    mf16 = lambda d, A, B: "v_mfma_f32_16x16x16_bf16 %s, %s, %s, %s" % (v(d, 4), v(A, 2), v(B, 2), v(d, 4))
    smx = lambda ks: mf32(SX, XB + 4 * ks, QB + 4 * ks, ks == 0)
    smm = lambda ks: mf32(SM, KM + 4 * ks, QB + 4 * ks, ks == 0)
    ex = lambda r: "v_exp_f32 %s, %s" % (v(r), v(r))
    pf = "buffer_load_dword %s, %s, %s, %s offen sc1" % (v(JUNK), v(C_PF), ws, s(S_SLABN))
    hist = "buffer_store_dword %s, %s, %s, %s offen sc1" % (v(HPEND), v(C_MP), ws, s(S_HIST))
    zw = ["v_mov_b64 %s, 0" % v(r, 2) for r in range(AM, AM + 32, 2)]
    V = lambda T, u: S("V", T, u)
    st = lambda i: []
    sched = [
        (S("Q", 0, 0), [mw[0]], []),
        (S("Q", 1, 0), [mw[1]], []),
        (S("Q", 0, 1), [kxld(0)], []),
        (S("Q", 1, 1), [], []),
        (S("K", 0, 0), [kxld(1)], []),
        (S("K", 1, 0), [lg(0), BAR, amrd(2)], []),
        (S("K", 0, 1), [amrd(3)], []),
        (S("K", 1, 1), [amrd(4)], []),
        (V(0, 0), [amrd(5)], []),
        (V(1, 0), [amrd(6), lg(4)], []),
        (S("Q", 0, 2), [amrd(7)], []),
        (S("Q", 1, 2), [kxld(2), lg(4)], []),
        (S("Q", 0, 3), [q7[0]], []),
        (S("Q", 1, 3), [kxld(3), lg(4)], []),
        (S("Q", 0, 4), [q7[1]], []),
        (S("Q", 1, 4), [vxld(0), lg(4)], []),
        (S("Q", 0, 5), [q7[2]], []),
        (S("Q", 1, 5), [q7[3], lg(5)], []),
        (S("Q", 0, 6), [vxld(1)], []),
        (S("Q", 1, 6), [k2[0], lg(1)], []),
        (S("Q", 0, 7), [k2[1]], []),
        (S("Q", 1, 7), [pf], []),
        (S("K", 0, 3), [k2[2]], []),
        (S("K", 1, 3), [k2[3]], []),
        (S("K", 0, 5), [k7[0]], []),
        (S("K", 0, 4), [k7[1]], [add(ACCQ, 0), add(ACCQ, 1)]),
        (S("K", 1, 4), [k7[2]], [add(ACCQ + 4, 0), add(ACCQ + 4, 1)]),
        (S("K", 1, 5), [k7[3], lg(4)], [cvt(ACCQ + 2, ACCQ, ACCQ + 4), cvt(ACCQ + 3, ACCQ + 1, ACCQ + 5)]),
        (S("K", 0, 2), ["ds_write2_b32 %s, %s, %s offset0:0 offset1:%d" % (v(C_QW), v(ACCQ + 2), v(ACCQ + 3), RS)], []),
        (S("K", 1, 2), [], ["v_add_u32 %s, %d, %s" % (v(ACCQ + 7), L_KMX - L_QX, v(C_QW))]),
        (S("K", 0, 6), [], []),
        (S("K", 1, 6), [lg(0), BAR, qbrd(0)], []),
        (S("K", 0, 7), [qbrd(1)], []),
        (S("K", 1, 7), [qbrd(2)], []),
        (V(0, 1), [qbrd(3)], []),
        (V(1, 1), ["s_waitcnt vmcnt(3) lgkmcnt(3)"], []),
        (smx(0), [lg(2)], [add(ACCK, 0), add(ACCK, 1)]),
        (smx(1), [lg(1)], [add(ACCK + 4, 0), add(ACCK + 4, 1)]),
        (smx(2), [lg(0)], [cvt(ACCK + 2, ACCK, ACCK + 4), cvt(ACCK + 3, ACCK + 1, ACCK + 5)]),
        (smx(3), ["ds_write2_b32 %s, %s, %s offset0:0 offset1:%d" % (v(ACCQ + 7), v(ACCK + 2), v(ACCK + 3), RS)], []),
        (V(0, 2), [hist], ["v_mov_b64 %s, %s" % (v(ONES, 2), s(S_ONES, 2))]),
        (V(1, 2), [], ["v_mov_b64 %s, %s" % (v(ONES + 2, 2), s(S_ONES, 2))]),
        (V(0, 3), [], [ex(SX)]),
        (V(1, 3), [lg(0), BAR, kmrd(0)], [ex(SX + 1)]),
        (V(0, 4), [kmrd(1)], [ex(SX + 2)]),
        (V(1, 4), [kmrd(2)], [ex(SX + 3)]),
        (V(0, 5), [kmrd(3)], [cvt(PX, SX, SX + 1), cvt(PX + 1, SX + 2, SX + 3)]),
        (V(1, 5), ["ds_write_b64 %s, %s offset:%d" % (v(C_MW), v(PX, 2), L_PX), lg(4)], []),
        (smm(0), [lg(3)], ["v_mov_b32 %s, 0" % v(PM + 1), "v_mov_b32 %s, 0" % v(VM0 + 1)]),
        (smm(1), [lg(2)], ["v_mov_b32 %s, 0" % v(VM1 + 1), "v_xor_b32 %s, 0x1000, %s" % (v(TA), v(C_MW))]),
        (smm(2), [lg(1)], [zw.pop(0), zw.pop(0)]),
        (smm(3), [], [zw.pop(0), zw.pop(0)]),
        (V(0, 6), [lg(0), BAR, "ds_read_b64 %s, %s offset:%d" % (v(PX + 2, 2), v(TA), L_PX)], [zw.pop(0)]),
        (V(1, 6), [of[0]], [zw.pop(0)]),
        (V(0, 7), [of[1]], ["v_mul_f32 %s, %s, %s" % (v(SM), s(S_SCALE), v(SM)), "v_mul_f32 %s, %s, %s" % (v(SM + 1), s(S_SCALE), v(SM + 1))]),
        (V(1, 7), [of[2], "s_waitcnt vmcnt(2) lgkmcnt(3)"], [ex(SM)]),
        (mf32(LS, ONES, PX, True), [of[3]], [ex(SM + 1)]),
        (mf32(OA, VX, PX, True), [of[4]], [cvt(PM, SM, SM + 1), zw.pop(0)]),
        (mf32(OA + 4, VX + 4, PX, True), [of[5]], [add(ACCV, 0), add(ACCV, 1)]),
        (mf16(LS, ONES, PM), [of[6]], [cvt(VM0, ACCV, ACCV + 1), add(ACCV + 4, 0), add(ACCV + 4, 1)]),
        (mf16(OA, VM0, PM), [of[7]], [cvt(VM1, ACCV + 4, ACCV + 5), zw.pop(0), zw.pop(0)]),
        (mf16(OA + 4, VM1, PM), [], ["v_rcp_f32 %s, %s" % (v(TA), v(LS)), zw.pop(0), zw.pop(0), zw.pop(0), zw.pop(0), zw.pop(0)]),
    ]
    for m_, nv, va in sched:
        e(m_)
        for x in nv + va:
            e(x)
    for r in (0, 4, 2, 6):
        e("v_pk_mul_f32 %s, %s, %s op_sel_hi:[1,0]" % (v(OA + r, 2), v(OA + r, 2), v(TA, 2)))
    for r in range(4):
        e(cvt(OP + r, OA + r, OA + 4 + r))
    e("ds_write_b128 %s, %s" % (v(C_OW), v(OP, 4)))
    e("v_max_f32 %s, %s, %s" % (v(TA), v(TA), v(LS)))
    e("v_cmp_nge_f32 vcc, %s, %s" % (s(S_BIG), v(TA)))
    e("s_cbranch_vccnz %s" % L("safe"))
    e.label(L("rejoin"))
    while zw:
        e(zw.pop(0))
    e("s_waitcnt lgkmcnt(0)")
    e("s_barrier")
    OOP = VX
    WACC = AM
    e("ds_read_b128 %s, %s offset:%d" % (v(OOP, 4), v(C_L16), L_OX))
    e("ds_read_b128 %s, %s offset:%d" % (v(OOP + 4, 4), v(C_L16), L_OX + 1024))
    SO = lambda T, t: smf_ins(WACC + 4 * T, OOP + 4 * t, ("O", T, t))
    SEL = AM + 8
    PD = AM + 12
    RD = AM + 20
    f, z = idle_prep_ins()
    wa = lambda T, r: add(WACC + 4 * T, r)
    wc = lambda q, r: cvt(ACCQ + 2 * q + r, WACC + 8 * q + r, WACC + 8 * q + 4 + r)
    fq = lambda q: [wa(2 * q, 0), wa(2 * q, 1), wa(2 * q + 1, 0), wa(2 * q + 1, 1), wc(q, 0), wc(q, 1), tg(q)]
    e(lg(1))
    order = [(0, 0), (1, 0), (0, 1), (1, 1)] + [(2 * q + k, tt) for q in range(1, 4) for tt in range(2) for k in range(2)]
    nvs = {1: [lg(0)]}
    vas = {}
    for q in range(3):
        x = fq(q)
        b0 = 4 * q + 5
        if q < 2:
            vas[b0] = x[0:2]; vas[b0 + 1] = x[2:4]; vas[b0 + 2] = x[4:6]; vas[b0 + 3] = x[6:7]
            nvs[b0 + 4] = [pst(q)]
        else:
            vas[b0] = x[0:2]; vas[b0 + 1] = x[2:4]; vas[b0 + 2] = x[4:7] + [pst(q)]
    for i, (T, tt) in enumerate(order):
        e(SO(T, tt))
        for x in nvs.get(i, []) + vas.get(i, []):
            e(x)
    for x in fq(3):
        e(x)
    e(pst(3))
    e.label(L("stored"))
    stamp(e, 1, stamps)
    e("ds_read_b128 %s, %s offset:%d" % (v(SEL, 4), v(C_L16), L_SEL))
    nf = OPT.get("nf", 12)
    for x in f[:nf]:
        e(x)
    if OPT.get("zfirst", 1):
        for x in z:
            e(x)
        z = []
    delay(e, OPT.get("dly1", 0))
    for q in range(1, 4):
        e("s_cmp_lt_u32 %s, %d" % (s(S_WAVE), q))
        e("s_cbranch_scc1 %s" % L("poll0"))
        delay(e, OPT.get("slp", 32))
    pld = lambda P: ["buffer_load_dwordx4 %s, %s, %s, %s offen sc1" % (v(P, 4), v(C_MW), ws, s(S_PR)),
                     "buffer_load_dwordx4 %s, %s, %s, %s offen offset:1024 sc1" % (v(P + 4, 4), v(C_MW), ws, s(S_PR))]
    PA, PB_ = VX, AM
    deepp = OPT.get("deepp", 0)
    e.label(L("poll0"))
    for x in pld(PA):
        e(x)
    for x in f[nf:] + z:
        e(x)
    e("s_waitcnt lgkmcnt(0)")
    e.label(L("pollp"))
    for (cur, nxt) in ((PA, PB_), (PB_, PA)):
        if deepp:
            for x in pld(nxt):
                e(x)
        e("s_waitcnt vmcnt(%d)" % (3 if deepp else 1))
        e(mf32(RD, SEL, cur, True))
        e("v_bitop3_b32 %s, %s, %s, %s bitop3:0x7e" % (v(T0), v(cur), v(cur + 2), s(S_PAR)))
        e("s_waitcnt vmcnt(%d)" % (2 if deepp else 0))
        e(mf32(RD, SEL, cur + 4, False))
        e("v_bitop3_b32 %s, %s, %s, %s bitop3:0x7e" % (v(FREE1), v(cur + 4), v(cur + 6), s(S_PAR)))
        e("v_bitop3_b32 %s, %s, %s, 1 bitop3:0xa8" % (v(T0), v(T0), v(FREE1)))
        e("v_cmp_ne_u32 vcc, 0, %s" % v(T0))
        e("s_add_u32 %s, %s, 1" % (s(S_TMO), s(S_TMO)))
        if OPT.get("solo"):
            e("s_branch %s" % L("gotp"))
        e("s_cbranch_vccz %s" % L("gotp"))
        if not deepp:
            for x in pld(nxt):
                e(x)
    e("s_cmp_le_u32 %s, %d" % (s(S_TMO), TMO_LIMIT))
    e("s_cbranch_scc1 %s" % L("pollp"))
    e.label(L("gotp"))
    stamp(e, 11, stamps)
    e("s_mov_b32 %s, %s" % (s(S_SLAB), s(S_SLABN)))
    e("s_add_u32 %s, %s, 0x2000" % (s(S_HIST), s(S_HIST)))
    e("s_add_u32 %s, %s, 1" % (s(S_STEP), s(S_STEP)))
    e("s_xor_b32 %s, %s, 1" % (s(S_PAR), s(S_PAR)))
    for rot in (8, 4):
        for r in (0, 1):
            e("v_add_f32_dpp %s, %s, %s row_ror:%d row_mask:0xf bank_mask:0xf" % (v(RD + r), v(RD + r), v(RD + r), rot))
    e(cvt(HPEND, RD, RD + 1))
    e("buffer_store_dword %s, %s, %s, %s offen%s" % (v(HPEND), v(C_MP), ws, s(S_HIST if OPT.get("solo") else S_SLAB), sc))
    stamp(e, 2, stamps)
    delay(e, OPT.get("dly2", 192))
    e("s_cmp_lt_u32 %s, %d" % (s(S_STEP), nsteps))
    e("s_cbranch_scc1 %s" % L("step"))
    e("buffer_store_dword %s, %s, %s, %s offen sc1" % (v(HPEND), v(C_MP), ws, s(S_HIST)))
    e("s_branch %s" % L("done"))
    e.label(L("refresh"))
    e("v_lshrrev_b32 %s, 2, %s" % (v(T0), v(C_L16)))
    e("s_lshl_b32 %s, %s, 8" % (s(S_T0), s(S_H)))
    e("s_add_u32 %s, %s, 0x%x" % (s(S_T0), s(S_T0), FLAG_OFF))
    e("buffer_load_dword %s, %s, %s, %s offen sc1" % (v(T0), v(T0), ws, s(S_T0)))
    e("s_add_u32 %s, %s, 1" % (s(S_TMO), s(S_TMO)))
    e("s_waitcnt vmcnt(0)")
    e("v_cmp_ne_u32 %s, 0, %s" % (s(S_RDY, 2), v(T0)))
    e("s_nop 3")
    e("s_bitset1_b64 %s, 63" % s(S_RDY, 2))
    e("s_cmp_le_u32 %s, %d" % (s(S_TMO), TMO_LIMIT))
    e("s_cbranch_scc1 %s" % L("step"))
    e("s_mov_b64 %s, -1" % s(S_RDY, 2))
    e("s_branch %s" % L("step"))
    e.label(L("safe"))
    e.fence(12)
    e("s_waitcnt vmcnt(0) lgkmcnt(0)")
    W = AM
    for ks in range(4):
        e("ds_read_b128 %s, %s offset:%d" % (v(QB + 4 * ks, 4), v(C_QR), 64 * ks))
        e("ds_read_b128 %s, %s offset:%d" % (v(XA + 4 * ks, 4), v(C_KR), 64 * ks))
    e("s_xor_b32 %s, %s, 0x1000" % (s(S_T0), s(S_KXO)))
    e("s_add_u32 %s, %s, %s" % (s(S_T0), s(S_T0), s(S_SLAB)))
    for ks in range(4):
        e("buffer_load_dwordx4 %s, %s, %s, %s offen offset:%d sc1" % (v(W + 4 * ks, 4), v(C_L16), ws, s(S_KX), ks * 1024))
        e("buffer_load_dwordx4 %s, %s, %s, %s offen offset:%d sc1" % (v(W + 16 + 4 * ks, 4), v(C_L16), ws, s(S_T0), ks * 1024))
    e("s_waitcnt vmcnt(0) lgkmcnt(0)")
    S0, S1, S2 = ACCQ, ACCQ + 4, ACCK
    for (d, src) in ((S0, W), (S1, W + 16), (S2, XA)):
        for ks in range(4):
            c = "0" if ks == 0 else v(d, 4)
            e("v_mfma_f32_16x16x32_bf16 %s, %s, %s, %s" % (v(d, 4), v(src + 4 * ks, 4), v(QB + 4 * ks, 4), c))
    M0_, M1_ = W, W + 1
    e("v_mul_f32 %s, %s, %s" % (v(S2), s(S_SCALE), v(S2)))
    e("v_mul_f32 %s, %s, %s" % (v(S2 + 1), s(S_SCALE), v(S2 + 1)))
    e("v_max3_f32 %s, %s, %s, %s" % (v(M0_), v(S0), v(S0 + 1), v(S0 + 2)))
    e("v_max3_f32 %s, %s, %s, %s" % (v(M0_), v(M0_), v(S0 + 3), v(S1)))
    e("v_max3_f32 %s, %s, %s, %s" % (v(M0_), v(M0_), v(S1 + 1), v(S1 + 2)))
    e("v_max3_f32 %s, %s, %s, %s" % (v(M0_), v(M0_), v(S1 + 3), v(S2)))
    e("v_max_f32 %s, %s, %s" % (v(M0_), v(M0_), v(S2 + 1)))
    for sw in ("v_permlane16_swap_b32", "v_permlane32_swap_b32"):
        e("v_mov_b32 %s, %s" % (v(M1_), v(M0_)))
        e("%s %s, %s" % (sw, v(M0_), v(M1_)))
        e("v_max_f32 %s, %s, %s" % (v(M0_), v(M0_), v(M1_)))
    for r in [S0 + i for i in range(8)] + [S2, S2 + 1]:
        e("v_sub_f32 %s, %s, %s" % (v(r), v(r), v(M0_)))
        e("v_exp_f32 %s, %s" % (v(r), v(r)))
    for q in range(4):
        e("v_cvt_pk_bf16_f32 %s, %s, %s" % (v(PX + q), v(S0 + 2 * q), v(S0 + 2 * q + 1)))
    e("v_cvt_pk_bf16_f32 %s, %s, %s" % (v(PM), v(S2), v(S2 + 1)))
    e("v_mfma_f32_16x16x32_bf16 %s, %s, %s, 0" % (v(LS, 4), v(ONES, 4), v(PX, 4)))
    e("v_mfma_f32_16x16x32_bf16 %s, %s, %s, 0" % (v(OA, 4), v(VX, 4), v(PX, 4)))
    e("v_mfma_f32_16x16x32_bf16 %s, %s, %s, 0" % (v(OA + 4, 4), v(VX + 4, 4), v(PX, 4)))
    e("v_mfma_f32_16x16x16_bf16 %s, %s, %s, %s" % (v(LS, 4), v(ONES, 2), v(PM, 2), v(LS, 4)))
    e("v_mfma_f32_16x16x16_bf16 %s, %s, %s, %s" % (v(OA, 4), v(VM0, 2), v(PM, 2), v(OA, 4)))
    e("v_mfma_f32_16x16x16_bf16 %s, %s, %s, %s" % (v(OA + 4, 4), v(VM1, 2), v(PM, 2), v(OA + 4, 4)))
    e("v_rcp_f32 %s, %s" % (v(TA), v(LS)))
    for r in range(8):
        e("v_mul_f32 %s, %s, %s" % (v(OA + r), v(OA + r), v(TA)))
    for r in range(4):
        e("v_cvt_pk_bf16_f32 %s, %s, %s" % (v(OP + r), v(OA + r), v(OA + 4 + r)))
    e("ds_write_b128 %s, %s" % (v(C_OW), v(OP, 4)))
    for op in OLDS:
        lds_fetch(e, op)
    for r in range(AM, AM + 32):
        e("v_mov_b32 %s, 0" % v(r))
    e("s_branch %s" % L("rejoin"))
    e.label(L("done"))
```

```python
from asmlib import v, a, s
import chain as C
import worker as W
from chain import srd, f32bits, OOB

SELI = W.ACT + 0x3C00
LOG2E = 1.4426950408889634


def cvt(d, x, y):
    return "v_cvt_pk_bf16_f32 %s, %s, %s" % (v(d), v(x), v(y))


def rnd(e, r, tmp):
    e(cvt(tmp, r, r))
    e("v_lshlrev_b32 %s, 16, %s" % (v(r), v(tmp)))


def sigmoid(e, d, x):
    e("v_mul_f32 %s, 0x%x, %s" % (v(d), f32bits(-LOG2E), v(x)))
    e("v_exp_f32 %s, %s" % (v(d), v(d)))
    e("v_add_f32 %s, 1.0, %s" % (v(d), v(d)))
    e("v_rcp_f32 %s, %s" % (v(d), v(d)))


def red_hi3(e, regs, tmp):
    for r in regs:
        e("v_add_f32_dpp %s, %s, %s row_ror:8 row_mask:0xf bank_mask:0xf" % (v(r), v(r), v(r)))
    for sw in ("v_permlane16_swap_b32", "v_permlane32_swap_b32"):
        for r in regs:
            e("v_mov_b32 %s, %s" % (v(tmp), v(r)))
            e("%s %s, %s" % (sw, v(r), v(tmp)))
            e("v_add_f32 %s, %s, %s" % (v(r), v(r), v(tmp)))


def k2(e):
    WS, WG_, WU = 8, 12, 16
    e("s_cmp_ge_u32 s2, 112")
    e("s_cbranch_scc1 L_k2_end")
    e("s_load_dwordx4 s[20:23], s[0:1], 72")
    e("s_load_dwordx2 s[24:25], s[0:1], 112")
    e("v_lshrrev_b32 v1, 3, v0")
    e("v_and_b32 v2, 7, v0")
    e("s_waitcnt lgkmcnt(0)")
    srd(e, WS, 24, C.WS_BYTES)
    srd(e, WG_, 20, 512 * 1792 * 2)
    srd(e, WU, 22, 512 * 1792 * 2)
    e("v_lshlrev_b32 v3, 4, v0")
    RP = 64
    for i in range(8):
        e("s_mov_b32 s26, 0x%x" % (W.RVAL + i * 4096))
        e("buffer_load_dwordx4 %s, v3, %s, s26 offen" % (v(RP + 4 * i, 4), s(WS, 4)))
    e("s_mov_b32 s26, %d" % (16 * 3584))
    e("v_mul_lo_u32 v4, v1, s26")
    e("v_lshl_add_u32 v4, v2, 2, v4")
    e("s_lshl_b32 s27, s2, 5")
    GW, UW = 16, 32
    for j in range(16):
        e("s_add_u32 s26, s27, %d" % (j * 3584))
        e("buffer_load_dword %s, v4, %s, s26 offen" % (v(GW + j), s(WG_, 4)))
        e("buffer_load_dword %s, v4, %s, s26 offen" % (v(UW + j), s(WU, 4)))
    e("s_waitcnt vmcnt(32)")
    KEY = 48
    for i in range(8):
        b = RP + 4 * i
        e("v_add_f32 %s, %s, %s" % (v(b), v(b), v(b + 1)))
        e("v_add_f32 %s, %s, %s" % (v(b + 2), v(b + 2), v(b + 3)))
        e("v_add_f32 %s, %s, %s" % (v(b), v(b), v(b + 2)))
        rnd(e, b, 5)
        e("v_ashrrev_i32 v5, 31, %s" % v(b))
        e("v_or_b32 v5, 0x80000000, v5")
        e("v_xor_b32 v5, v5, %s" % v(b))
        e("v_and_b32 v5, 0xffff0000, v5")
        e("v_sub_u32 v6, %d, v0" % (2047 - 256 * i))
        e("v_or_b32 %s, v5, v6" % v(KEY + i))
    e("v_lshrrev_b32 v7, 6, v0")
    e("v_lshlrev_b32 v7, 2, v7")
    e("v_mov_b32 v8, 0")
    for p in range(2):
        e("v_max3_u32 v5, %s, %s, %s" % (v(KEY), v(KEY + 1), v(KEY + 2)))
        e("v_max3_u32 v5, v5, %s, %s" % (v(KEY + 3), v(KEY + 4)))
        e("v_max3_u32 v5, v5, %s, %s" % (v(KEY + 5), v(KEY + 6)))
        e("v_max_u32 v5, v5, %s" % v(KEY + 7))
        for ctrl in ("quad_perm:[1,0,3,2]", "quad_perm:[2,3,0,1]", "row_half_mirror", "row_mirror"):
            e("v_max_u32_dpp v5, v5, v5 %s row_mask:0xf bank_mask:0xf" % ctrl)
        for sw in ("v_permlane16_swap_b32", "v_permlane32_swap_b32"):
            e("v_mov_b32 v6, v5")
            e("%s v5, v6" % sw)
            e("v_max_u32 v5, v5, v6")
        e("ds_write_b32 v7, v5 offset:%d" % (16 * p))
        e("s_waitcnt lgkmcnt(0)")
        e("s_barrier")
        e("ds_read_b128 v[56:59], v8 offset:%d" % (16 * p))
        e("s_waitcnt lgkmcnt(0)")
        e("v_max3_u32 v5, v56, v57, v58")
        e("v_max_u32 v5, v5, v59")
        e("v_readfirstlane_b32 %s, v5" % s(28 + p))
        if p == 0:
            for i in range(8):
                e("v_cmp_ne_u32 vcc, v5, %s" % v(KEY + i))
                e("v_cndmask_b32 %s, 0, %s, vcc" % (v(KEY + i), v(KEY + i)))
    XS = 64
    e("v_lshlrev_b32 v3, 5, v1")
    for p in range(2):
        e("s_and_b32 s30, %s, 0xffff" % s(28 + p))
        e("s_sub_u32 %s, 2047, s30" % s(32 + p))
        e("s_lshl_b32 s30, %s, 10" % s(32 + p))
        e("s_add_u32 s30, s30, 0x%x" % W.XN2)
        e("buffer_load_dwordx4 %s, v3, %s, s30 offen" % (v(XS + 8 * p, 4), s(WS, 4)))
        e("buffer_load_dwordx4 %s, v3, %s, s30 offen offset:16" % (v(XS + 8 * p + 4, 4), s(WS, 4)))
        e("s_and_b32 s30, %s, 0xffff0000" % s(28 + p))
        e("s_xor_b32 s31, s30, 0x80000000")
        e("s_xor_b32 s34, s30, 0xffff0000")
        e("s_bitcmp1_b32 s30, 31")
        e("s_cselect_b32 %s, s31, s34" % s(36 + p))
    e("v_mov_b32 v56, s32"); e("v_mov_b32 v57, s33"); e("v_mov_b32 v58, s36"); e("v_mov_b32 v59, s37")
    e("v_or_b32 v5, s2, v0")
    e("v_cmp_ne_u32 vcc, 0, v5")
    e("v_mov_b32 v6, 0x%x" % OOB)
    e("v_cndmask_b32 v5, v5, v6, vcc")
    e("s_mov_b32 s30, 0x%x" % SELI)
    e("buffer_store_dwordx4 v[56:59], v5, %s, s30 offen" % s(WS, 4))
    AC = 80
    for r in range(8):
        e("v_mov_b32 %s, 0" % v(AC + r))
    e("s_waitcnt vmcnt(1)")
    for j in range(16):
        for p in range(2):
            src = XS + 8 * p + (j >> 1)
            if j & 1:
                e("v_and_b32 %s, 0xffff0000, %s" % (v(9 + p), v(src)))
            else:
                e("v_lshlrev_b32 %s, 16, %s" % (v(9 + p), v(src)))
        for m, wb in ((0, GW), (1, UW)):
            e("v_lshlrev_b32 v11, 16, %s" % v(wb + j))
            e("v_and_b32 v12, 0xffff0000, %s" % v(wb + j))
            for p in range(2):
                e("v_fmac_f32 %s, %s, v11" % (v(AC + 4 * m + 2 * p), v(9 + p)))
                e("v_fmac_f32 %s, %s, v12" % (v(AC + 4 * m + 2 * p + 1), v(9 + p)))
    red_hi3(e, range(AC, AC + 8), 5)
    e("v_lshrrev_b32 v7, 6, v0")
    e("v_lshlrev_b32 v7, 8, v7")
    e("v_lshl_add_u32 v7, v2, 5, v7")
    e("ds_write_b128 v7, %s offset:64" % v(AC, 4))
    e("ds_write_b128 v7, %s offset:80" % v(AC + 4, 4))
    e("s_waitcnt lgkmcnt(0)")
    e("s_barrier")
    e("v_lshrrev_b32 v7, 2, v0")
    e("v_and_b32 v7, 7, v7")
    e("v_lshlrev_b32 v7, 5, v7")
    e("v_and_b32 v8, 3, v0")
    e("v_lshl_add_u32 v7, v8, 2, v7")
    for w in range(4):
        e("ds_read2_b32 %s, v7 offset0:%d offset1:%d" % (v(16 + 2 * w, 2), 16 + 64 * w, 20 + 64 * w))
    e("s_waitcnt lgkmcnt(0)")
    for k in range(2):
        e("v_add_f32 %s, %s, %s" % (v(16 + k), v(16 + k), v(18 + k)))
        e("v_add_f32 %s, %s, %s" % (v(20 + k), v(20 + k), v(22 + k)))
        e("v_add_f32 %s, %s, %s" % (v(16 + k), v(16 + k), v(20 + k)))
        rnd(e, 16 + k, 5)
    sigmoid(e, 18, 16)
    e("v_mul_f32 v16, v16, v18")
    rnd(e, 16, 5)
    e("v_mul_f32 v16, v16, v17")
    rnd(e, 16, 5)
    e("v_lshrrev_b32 v7, 2, v0")
    e("v_lshlrev_b32 v7, 3, v7")
    e("v_and_b32 v8, 1, v0")
    e("v_lshl_add_u32 v7, v8, 2, v7")
    e("v_bfe_u32 v8, v0, 1, 1")
    e("v_mul_u32_u24 v8, %d, v8" % (1792 * 4))
    e("v_add_u32 v7, v7, v8")
    e("v_cmp_lt_u32 vcc, 31, v0")
    e("v_cndmask_b32 v7, v7, v6, vcc")
    e("s_lshl_b32 s30, s2, 6")
    e("s_add_u32 s30, s30, 0x%x" % W.ACT)
    e("buffer_store_dword v16, v7, %s, s30 offen" % s(WS, 4))
    e.label("L_k2_end")
    e("s_endpgm")


def k3(e):
    WS, WD, OUT = 8, 12, 16
    e("s_cmp_ge_u32 s2, 32")
    e("s_cbranch_scc1 L_k3_end")
    e("s_load_dwordx4 s[20:23], s[0:1], 88")
    e("s_load_dwordx2 s[24:25], s[0:1], 112")
    e("v_lshrrev_b32 v1, 3, v0")
    e("v_and_b32 v2, 7, v0")
    e("s_waitcnt lgkmcnt(0)")
    srd(e, WS, 24, C.WS_BYTES)
    srd(e, WD, 20, 1792 * 512 * 2)
    srd(e, OUT, 22, 2048 * 512 * 2)
    e("v_mul_u32_u24 v4, %d, v1" % (56 * 1024))
    e("v_lshl_add_u32 v4, v2, 2, v4")
    e("s_lshl_b32 s27, s2, 5")
    DW = 16
    for j in range(56):
        e("s_add_u32 s26, s27, %d" % ((j & ~3) * 1024))
        e("buffer_load_dword %s, v4, %s, s26 offen offset:%d" % (v(DW + j), s(WD, 4), (j & 3) * 1024))
    e("v_mov_b32 v5, 0")
    e("s_mov_b32 s30, 0x%x" % SELI)
    e("buffer_load_dwordx4 v[8:11], v5, %s, s30 offen" % s(WS, 4))
    AS = 72
    e("v_mul_u32_u24 v3, %d, v1" % (56 * 4))
    e("s_waitcnt vmcnt(30)")
    for p in range(2):
        e("s_mov_b32 s30, 0x%x" % (W.ACT + p * 1792 * 4))
        for q in range(14):
            e("buffer_load_dwordx4 %s, v3, %s, s30 offen offset:%d" % (v(AS + 56 * p + 4 * q, 4), s(WS, 4), 16 * q))
    AC = 184
    for r in range(4):
        e("v_mov_b32 %s, 0" % v(AC + r))
    e("s_waitcnt vmcnt(28)")
    e("v_bfe_u32 v6, v0, 3, 1")
    e("v_cmp_ne_u32 vcc, 0, v6")
    e("v_cndmask_b32 v12, v8, v9, vcc")
    e("v_cndmask_b32 v13, v10, v11, vcc")
    e("v_lshlrev_b32 v12, 10, v12")
    e("v_lshl_add_u32 v12, v2, 2, v12")
    e("v_add_u32 v12, s27, v12")
    e("v_mov_b32 v7, 0x%x" % OOB)
    e("v_cmp_lt_u32 vcc, 15, v0")
    e("v_cndmask_b32 v12, v12, v7, vcc")
    e("s_mov_b32 s30, 0x%x" % W.HROW)
    e("s_mov_b32 s31, 0x%x" % W.XN2)
    e("buffer_load_dword v14, v12, %s, s30 offen" % s(WS, 4))
    e("buffer_load_dword v15, v12, %s, s31 offen" % s(WS, 4))
    e("s_waitcnt vmcnt(2)")
    for j in range(56):
        e("v_lshlrev_b32 v5, 16, %s" % v(DW + j))
        e("v_and_b32 v7, 0xffff0000, %s" % v(DW + j))
        for p in range(2):
            e("v_fmac_f32 %s, %s, v5" % (v(AC + 2 * p), v(AS + 56 * p + j)))
            e("v_fmac_f32 %s, %s, v7" % (v(AC + 2 * p + 1), v(AS + 56 * p + j)))
    red_hi3(e, range(AC, AC + 4), 5)
    e("v_lshrrev_b32 v7, 6, v0")
    e("v_lshlrev_b32 v7, 7, v7")
    e("v_lshl_add_u32 v7, v2, 4, v7")
    e("ds_write_b128 v7, %s" % v(AC, 4))
    e("s_waitcnt lgkmcnt(0)")
    e("s_barrier")
    e("v_lshlrev_b32 v7, 4, v2")
    e("v_lshl_add_u32 v7, v6, 3, v7")
    for w in range(4):
        e("ds_read_b64 %s, v7 offset:%d" % (v(16 + 2 * w, 2), 128 * w))
    sigmoid(e, 24, 13)
    rnd(e, 24, 5)
    e("s_waitcnt vmcnt(0) lgkmcnt(0)")
    e("v_lshlrev_b32 v26, 16, v15"); e("v_and_b32 v27, 0xffff0000, v15")
    e("v_lshlrev_b32 v28, 16, v14"); e("v_and_b32 v29, 0xffff0000, v14")
    for k in range(2):
        e("v_add_f32 %s, %s, %s" % (v(16 + k), v(16 + k), v(18 + k)))
        e("v_add_f32 %s, %s, %s" % (v(20 + k), v(20 + k), v(22 + k)))
        e("v_add_f32 %s, %s, %s" % (v(16 + k), v(16 + k), v(20 + k)))
        rnd(e, 16 + k, 5)
        e("v_mul_f32 %s, %s, v24" % (v(16 + k), v(16 + k)))
        rnd(e, 16 + k, 5)
        e("v_add_f32 %s, %s, %s" % (v(16 + k), v(16 + k), v(26 + k)))
        rnd(e, 16 + k, 5)
        e("v_add_f32 %s, %s, %s" % (v(16 + k), v(16 + k), v(28 + k)))
    e(cvt(16, 16, 17))
    e("buffer_store_dword v16, v12, %s, 0 offen" % s(OUT, 4))
    e.label("L_k3_end")
    e("s_endpgm")
```

```python
from asmlib import v, a, s
import chain as C
from chain import lin, srd, f32bits, S_WS, S_DBG, S_H, S_WAVE, S_TMO, S_SCALE, S_PLO, S_PHI, S_T0, S_T1, S_T2, TMO_LIMIT, OOB

FLAGKV = C.FLAG_OFF
FLAGTP = C.FLAG_OFF + 0x2000
RVAL = C.FLAG_OFF + 0x4000
ACT = C.FLAG_OFF + 0xC000
HROW = 0x400000
XN2 = 0x600000
TP_OFF = 0x4000000

X_T = 0
EX_Q = 0
EX_K = 8192
EX_KM = 16384
MEMI = 20480
EX_O = 0
RED = 28672
L_WO = 32768

S_X = 12
S_OUT = 60
S_WR = 92
S_R = 22
S_SEG = 23
S_A, S_B = 24, 25
S_M0 = 64
S_MM = 72
S_ONES = C.S_ONES

W_L16, W_MW, W_XG, W_XW, W_XR0, W_XR1, W_WO, W_MR, W_EX, W_TPW, W_TPR, W_ROW, W_NEG, T0, T1 = range(1, 16)
assert T0 == C.T0
R0 = 16


def wreg(m, T, ks):
    idx = ("QKV".index(m) * 32 + ks * 2 + T) * 4
    return a(idx, 4) if idx < 256 else v(128 + idx - 256, 4)


def mf32(d, A, B, first):
    return "v_mfma_f32_16x16x32_bf16 %s, %s, %s, %s" % (v(d, 4), A, B, "0" if first else v(d, 4))


def cvt(d, x, y):
    return "v_cvt_pk_bf16_f32 %s, %s, %s" % (v(d), v(x), v(y))


def setup(e, P):
    e("s_and_b32 %s, s2, 7" % s(S_T0))
    e("s_sub_u32 %s, %s, 1" % (s(S_T0), s(S_T0)))
    e("s_lshl_b32 %s, %s, 5" % (s(S_T0), s(S_T0)))
    e("s_lshr_b32 %s, s2, 3" % s(S_T1))
    e("s_add_u32 %s, %s, %s" % (s(S_T0), s(S_T0), s(S_T1)))
    e("s_mul_i32 %s, %s, 9363" % (s(S_H), s(S_T0)))
    e("s_lshr_b32 %s, %s, 16" % (s(S_H), s(S_H)))
    e("s_mul_i32 %s, %s, 7" % (s(S_T1), s(S_H)))
    e("s_sub_u32 %s, %s, %s" % (s(S_R), s(S_T0), s(S_T1)))
    lin(e, W_L16, {k: 16 << k for k in range(6)})
    lin(e, W_MW, {**{k: 16 << k for k in range(6)}, 6: 2048, 7: 4096})
    lin(e, W_EX, {**{k: 16 << k for k in range(6)}, 6: 1024, 7: 2048})
    lin(e, W_WO, {**{k: 16 << k for k in range(6)}, 6: 32768, 7: 65536}, L_WO)
    lin(e, W_XG, {0: 16, 1: 32, 2: 64, 3: 1024, 4: 2048, 5: 4096, 6: 8192, 7: 16384})
    lin(e, W_XW, {0: 256, 1: 512, 2: 1024, 6: 128, 7: 16384})
    e("v_lshrrev_b32 %s, 3, v0" % v(T1))
    e("v_xor_b32 %s, %s, v0" % (v(T1), v(T1)))
    e("v_and_b32 %s, 7, %s" % (v(T1), v(T1)))
    e("v_lshl_add_u32 %s, %s, 4, %s" % (v(W_XW), v(T1), v(W_XW)))
    e("v_bfe_u32 %s, v0, 4, 2" % v(T1))
    e("v_lshlrev_b32 %s, 4, %s" % (v(T1), v(T1)))
    e("v_xor_b32 %s, %s, %s" % (v(W_XR0), v(T1), v(W_L16)))
    e("v_xor_b32 %s, 64, %s" % (v(W_XR1), v(W_XR0)))
    lin(e, W_MR, {0: 16, 1: 64, 2: 128, 4: 32, 5: 256}, MEMI)
    lin(e, W_TPW, {0: 16, 1: 32, 2: 64, 3: 128, 4: 4 * 32768, 5: 8 * 32768, 6: 256, 7: 512})
    lin(e, W_TPR, {0: 16, 1: 32, 2: 64, 3: 128, 4: 1024, 5: 2048, 6: 256, 7: 512})
    lin(e, W_ROW, {0: 16, 1: 32, 2: 64, 3: 128, 4: 4, 5: 8, 6: 256, 7: 512})
    e("v_mov_b32 %s, 0x%x" % (v(W_NEG), f32bits(-1e30)))
    e("v_and_b32 %s, 15, v0" % v(T0))
    e("v_bfe_u32 %s, v0, 4, 2" % v(T1))
    e("v_cmp_gt_u32 %s, 2, %s" % (s(S_MM, 2), v(T1)))
    e("v_lshlrev_b32 %s, 2, %s" % (v(T1), v(T1)))
    for r in range(4):
        e("v_cmp_le_u32 %s, %s, %s" % (s(S_M0 + 2 * r, 2), v(T1), v(T0)))
        e("v_add_u32 %s, 1, %s" % (v(T1), v(T1)))
    e("s_mov_b32 %s, 0x05040100" % s(S_PLO))
    e("s_mov_b32 %s, 0x07060302" % s(S_PHI))
    e("s_mov_b32 %s, 0x%x" % (s(S_SCALE), f32bits(128 ** -0.5 * 1.4426950408889634)))
    e("s_mov_b32 %s, 0" % s(S_TMO))
    e("s_mov_b32 %s, 0x3f803f80" % s(S_ONES))
    e("s_mov_b32 %s, 0x3f803f80" % s(S_ONES + 1))


def load_w(e, P, mats):
    VOFF = T1
    RING = R0
    lin(e, VOFF, {0: 4, 1: 8, 2: 16, 3: 32, 4: 8 * 8192, 5: 16 * 8192, 6: 64, 7: 128})
    ptr = {"Q": P + 4, "K": P + 6, "V": P + 8}
    SRDS = {"Q": 96, "K": 96, "V": 76}
    for m in mats:
        srd(e, SRDS[m], ptr[m], 512 * 4096 * 2)
    groups = [(m, kp) for kp in range(8) for m in mats]
    e("s_lshl_b32 %s, %s, 8" % (s(S_T0), s(S_H)))
    TMP = 120

    def issue(gi):
        m, kp = groups[gi]
        base = RING + (gi % 4) * 16
        for kk in range(2):
            for j in range(8):
                e("s_add_u32 %s, %s, 0x%x" % (s(S_T1), s(S_T0), (32 * (2 * kp + kk) + j) * 8192))
                e("buffer_load_dword %s, %s, %s, %s offen" % (v(base + kk * 8 + j), v(VOFF), s(SRDS[m], 4), s(S_T1)))

    def consume(gi):
        m, kp = groups[gi]
        base = RING + (gi % 4) * 16
        for kk in range(2):
            ks = 2 * kp + kk
            for T in range(2):
                idx = ("QKV".index(m) * 32 + ks * 2 + T) * 4
                for jj in range(4):
                    x0, x1 = base + kk * 8 + 2 * jj, base + kk * 8 + 2 * jj + 1
                    sel = s(S_PHI if T else S_PLO)
                    if idx < 256:
                        e("v_perm_b32 %s, %s, %s, %s" % (v(TMP + jj), v(x1), v(x0), sel))
                        e("v_accvgpr_write_b32 %s, %s" % (a(idx + jj), v(TMP + jj)))
                    else:
                        e("v_perm_b32 %s, %s, %s, %s" % (v(128 + idx - 256 + jj), v(x1), v(x0), sel))
    n = len(groups)
    for gi in range(3):
        issue(gi)
    for gi in range(n):
        e("s_waitcnt vmcnt(%d)" % (min(n - 1 - gi, 2) * 16))
        if gi + 3 < n:
            issue(gi + 3)
        consume(gi)


def load_wo(e, P):
    VOFF = T1
    srd(e, 96, P + 10, 4096 * 512 * 2)
    lin(e, VOFF, {0: 16, 1: 32, 2: 64, 3: 128, 4: 8 * 1024, 5: 16 * 1024, 6: 256, 7: 512})
    e("s_lshl_b32 %s, %s, 17" % (s(S_T0), s(S_H)))
    TMP = 112

    def issue(ks):
        base = R0 + (ks % 3) * 32
        for j in range(8):
            e("s_add_u32 %s, %s, 0x%x" % (s(S_T1), s(S_T0), (32 * ks + j) * 1024))
            e("buffer_load_dwordx4 %s, %s, %s, %s offen" % (v(base + 4 * j, 4), v(VOFF), s(96, 4), s(S_T1)))

    def consume(ks):
        base = R0 + (ks % 3) * 32
        for T in range(8):
            t = TMP + (T % 4) * 4
            if T == 4:
                e("s_waitcnt lgkmcnt(0)")
            for jj in range(4):
                e("v_perm_b32 %s, %s, %s, %s" % (v(t + jj), v(base + 4 * (2 * jj + 1) + (T >> 1)), v(base + 4 * (2 * jj) + (T >> 1)), s(S_PHI if T & 1 else S_PLO)))
            e("ds_write_b128 %s, %s offset:%d" % (v(W_WO), v(t, 4), (ks * 8 + T) * 1024))
        e("s_waitcnt lgkmcnt(0)")
    for ks in range(3):
        issue(ks)
    e("s_waitcnt vmcnt(16)")
    consume(0)
    issue(3)
    e("s_waitcnt vmcnt(16)")
    consume(1)
    e("s_waitcnt vmcnt(8)")
    consume(2)
    e("s_waitcnt vmcnt(0)")
    consume(3)


def dpp_add(e, r, ctrl):
    e("v_add_f32_dpp %s, %s, %s %s row_mask:0xf bank_mask:0xf" % (v(r), v(r), v(r), ctrl))


def wave_sum(e, regs, tmp):
    for ctrl in ("quad_perm:[1,0,3,2]", "quad_perm:[2,3,0,1]", "row_half_mirror", "row_mirror"):
        for r in regs:
            dpp_add(e, r, ctrl)
    for sw in ("v_permlane16_swap_b32", "v_permlane32_swap_b32"):
        for r in regs:
            e("v_mov_b32 %s, %s" % (v(tmp), v(r)))
            e("%s %s, %s" % (sw, v(r), v(tmp)))
            e("v_add_f32 %s, %s, %s" % (v(r), v(r), v(tmp)))


def x_tile(e):
    XR = R0
    SU, SQ, RS_, NB, LO, HI = R0 + 32, R0 + 33, R0 + 34, R0 + 35, R0 + 36, R0 + 37
    e("s_lshl_b32 %s, %s, 15" % (s(S_T0), s(S_SEG)))
    for i in range(8):
        e("buffer_load_dwordx4 %s, %s, %s, %s offen offset:%d" % (v(XR + 4 * i, 4), v(W_XG), s(S_X, 4), s(S_T0), i * 128))
    e("v_mov_b32 %s, 0" % v(SU))
    e("v_mov_b32 %s, 0" % v(SQ))
    for i in range(8):
        e("s_waitcnt vmcnt(%d)" % (7 - i))
        for q in range(4):
            r = XR + 4 * i + q
            e("v_dot2_f32_bf16 %s, %s, %s, %s" % (v(SU), v(r), s(S_ONES), v(SU)))
            e("v_dot2_f32_bf16 %s, %s, %s, %s" % (v(SQ), v(r), v(r), v(SQ)))
    e("s_nop 3")
    for ctrl in ("quad_perm:[1,0,3,2]", "quad_perm:[2,3,0,1]", "row_half_mirror"):
        dpp_add(e, SU, ctrl)
        dpp_add(e, SQ, ctrl)
    e("v_mul_f32 %s, 0x%x, %s" % (v(SU), f32bits(1 / 512), v(SU)))
    e("v_mul_f32 %s, 0x%x, %s" % (v(SQ), f32bits(1 / 512), v(SQ)))
    e("v_fma_f32 %s, -%s, %s, %s" % (v(SQ), v(SU), v(SU), v(SQ)))
    e("v_max_f32 %s, 0, %s" % (v(SQ), v(SQ)))
    e("v_add_f32 %s, 0x%x, %s" % (v(SQ), f32bits(1e-5), v(SQ)))
    e("v_rsq_f32 %s, %s" % (v(RS_), v(SQ)))
    e("v_mul_f32 %s, %s, %s" % (v(NB), v(SU), v(RS_)))
    for i in range(8):
        for q in range(4):
            r = XR + 4 * i + q
            e("v_lshlrev_b32 %s, 16, %s" % (v(LO), v(r)))
            e("v_and_b32 %s, 0xffff0000, %s" % (v(HI), v(r)))
            e("v_fma_f32 %s, %s, %s, -%s" % (v(LO), v(LO), v(RS_), v(NB)))
            e("v_fma_f32 %s, %s, %s, -%s" % (v(HI), v(HI), v(RS_), v(NB)))
            e(cvt(r, LO, HI))
        e("ds_write_b128 %s, %s offset:%d" % (v(W_XW), v(XR + 4 * i, 4), X_T + i * 2048))


AQ, AK, AV = R0, R0 + 16, R0 + 32
XO = R0 + 48


def project(e, mats, r0, r1):
    def rd(ks):
        b = XO + (ks & 1) * 8
        for kap in range(2):
            e("ds_read_b128 %s, %s offset:%d" % (v(b + 4 * kap, 4), v((r1 if ks & 1 else r0)[kap]), X_T + ks * 1024))
    rd(0)
    for ks in range(16):
        if ks + 1 < 16:
            rd(ks + 1)
            e("s_waitcnt lgkmcnt(2)")
        else:
            e("s_waitcnt lgkmcnt(0)")
        b = XO + (ks & 1) * 8
        for m in mats:
            for T in range(2):
                for kap in range(2):
                    x = v(b + 4 * kap, 4)
                    if m == "V":
                        e(mf32(AV + 8 * kap + 4 * T, x, wreg(m, T, ks), ks == 0))
                    else:
                        e(mf32((AQ if m == "Q" else AK) + 8 * T + 4 * kap, wreg(m, T, ks), x, ks == 0))


def pack_qk(e, acc, dst, scale):
    if scale:
        for r in range(16):
            e("v_mul_f32 %s, %s, %s" % (v(acc + r), s(S_SCALE), v(acc + r)))
    for kap in range(2):
        for r in range(4):
            e(cvt(dst + 4 * kap + r, acc + 4 * kap + r, acc + 8 + 4 * kap + r))


def pack_v(e, dst):
    for T in range(2):
        for kap in range(2):
            for q in range(2):
                e(cvt(dst + 4 * T + 2 * kap + q, AV + 8 * kap + 4 * T + 2 * q, AV + 8 * kap + 4 * T + 2 * q + 1))


def signal(e, soff):
    e("s_waitcnt vmcnt(0)")
    e("s_barrier")
    e("v_cmp_ne_u32 vcc, 0, v0")
    e("v_mov_b32 %s, 0x%x" % (v(T1), OOB))
    e("v_mov_b32 %s, 1" % v(T0))
    e("v_cndmask_b32 %s, v0, %s, vcc" % (v(T1), v(T1)))
    e("buffer_store_dword %s, %s, %s, %s offen sc1" % (v(T0), v(T1), s(S_WS, 4), s(soff)))


def wait_handshake(e):
    e("v_lshrrev_b32 %s, 2, %s" % (v(T1), v(W_L16)))
    e("v_and_b32 %s, 127, %s" % (v(T1), v(T1)))
    e.label("L_WHS")
    e("buffer_load_dword %s, %s, %s, 0 offen sc1" % (v(T0), v(T1), s(S_DBG, 4)))
    e("s_add_u32 %s, %s, 1" % (s(S_TMO), s(S_TMO)))
    e("s_cmp_gt_u32 %s, %d" % (s(S_TMO), TMO_LIMIT))
    e("s_cbranch_scc1 L_WHS_done")
    e("s_waitcnt vmcnt(0)")
    e("v_cmp_eq_u32 vcc, 0, %s" % v(T0))
    e("s_cbranch_vccnz L_WHS")
    e.label("L_WHS_done")


def phase1(e):
    ws = s(S_WS, 4)
    A0 = R0 + 64
    e("s_lshr_b32 %s, %s, 1" % (s(S_T0), s(S_WAVE)))
    e("s_lshl_b32 %s, %s, 14" % (s(S_T0), s(S_T0)))
    e("s_xor_b32 %s, %s, 16384" % (s(S_T1), s(S_T0)))
    e("v_add_u32 %s, %s, %s" % (v(A0), s(S_T0), v(W_XR0)))
    e("v_add_u32 %s, %s, %s" % (v(A0 + 1), s(S_T1), v(W_XR0)))
    e("v_add_u32 %s, %s, %s" % (v(A0 + 2), s(S_T0), v(W_XR1)))
    e("v_add_u32 %s, %s, %s" % (v(A0 + 3), s(S_T1), v(W_XR1)))
    e("s_mov_b32 %s, %s" % (s(S_SEG), s(S_R)))
    e.label("L_P1")
    x_tile(e)
    e("s_waitcnt lgkmcnt(0)")
    e("s_barrier")
    project(e, "KV", (A0, A0 + 1), (A0 + 2, A0 + 3))
    KP, VP = R0 + 72, R0 + 80
    pack_qk(e, AK, KP, True)
    pack_v(e, VP)
    e("s_mul_i32 %s, %s, 0x%x" % (s(S_A), s(S_SEG), C.SLAB_ST))
    e("s_lshl_b32 %s, %s, 14" % (s(S_T0), s(S_H)))
    e("s_add_u32 %s, %s, %s" % (s(S_A), s(S_A), s(S_T0)))
    e("s_add_u32 %s, %s, 0x%x" % (s(S_A), s(S_A), C.SLAB_OFF))
    e("s_lshr_b32 %s, %s, 1" % (s(S_T0), s(S_WAVE)))
    e("s_lshl_b32 %s, %s, 12" % (s(S_T0), s(S_T0)))
    e("s_xor_b32 %s, %s, 4096" % (s(S_T1), s(S_T0)))
    e("s_add_u32 %s, %s, %s" % (s(S_T0), s(S_T0), s(S_A)))
    e("s_add_u32 %s, %s, %s" % (s(S_T1), s(S_T1), s(S_A)))
    e("buffer_store_dwordx4 %s, %s, %s, %s offen sc1" % (v(KP, 4), v(W_EX), ws, s(S_T0)))
    e("buffer_store_dwordx4 %s, %s, %s, %s offen sc1" % (v(KP + 4, 4), v(W_EX), ws, s(S_T1)))
    e("s_add_u32 %s, %s, 8192" % (s(S_A), s(S_A)))
    e("buffer_store_dwordx4 %s, %s, %s, %s offen sc1" % (v(VP, 4), v(W_MW), ws, s(S_A)))
    e("buffer_store_dwordx4 %s, %s, %s, %s offen offset:1024 sc1" % (v(VP + 4, 4), v(W_MW), ws, s(S_A)))
    e("s_lshl_b32 %s, %s, 8" % (s(S_A), s(S_H)))
    e("s_lshl_b32 %s, %s, 2" % (s(S_T0), s(S_SEG)))
    e("s_add_u32 %s, %s, %s" % (s(S_A), s(S_A), s(S_T0)))
    e("s_add_u32 %s, %s, 0x%x" % (s(S_A), s(S_A), FLAGKV))
    signal(e, S_A)
    e("s_add_u32 %s, %s, 7" % (s(S_SEG), s(S_SEG)))
    e("s_cmp_lt_u32 %s, 63" % s(S_SEG))
    e("s_cbranch_scc1 L_P1")


def phase2(e):
    ws = s(S_WS, 4)
    A0 = R0 + 64
    e("s_mov_b32 %s, %s" % (s(S_SEG), s(S_R)))
    e.label("L_P2")
    x_tile(e)
    e("v_add_u32 %s, 16384, %s" % (v(A0), v(W_XR0)))
    e("v_add_u32 %s, 16384, %s" % (v(A0 + 1), v(W_XR1)))
    e("s_waitcnt lgkmcnt(0)")
    e("s_barrier")
    project(e, "QKV", (W_XR0, A0), (W_XR1, A0 + 1))
    QP, KP, VP = R0 + 64, R0 + 72, R0 + 104
    pack_qk(e, AQ, QP, False)
    pack_qk(e, AK, KP, True)
    pack_v(e, VP)
    e("s_barrier")
    for kap in range(2):
        e("ds_write_b128 %s, %s offset:%d" % (v(W_EX), v(QP + 4 * kap, 4), EX_Q + kap * 4096))
        e("ds_write_b128 %s, %s offset:%d" % (v(W_EX), v(KP + 4 * kap, 4), EX_K + kap * 4096))
    e("s_waitcnt lgkmcnt(0)")
    e("s_barrier")
    QO, KO = R0, R0 + 32
    for kap in range(2):
        for ks in range(4):
            e("ds_read_b128 %s, %s offset:%d" % (v(QO + 16 * kap + 4 * ks, 4), v(W_L16), EX_Q + kap * 4096 + ks * 1024))
        e("s_waitcnt lgkmcnt(0)")
    for kap in range(2):
        for ks in range(4):
            e("ds_read_b128 %s, %s offset:%d" % (v(KO + 16 * kap + 4 * ks, 4), v(W_L16), EX_K + kap * 4096 + ks * 1024))
    e("s_waitcnt lgkmcnt(0)")
    S00, S01, S11, SM0, SM1 = R0 + 64, R0 + 68, R0 + 72, R0 + 76, R0 + 80
    for (d, kk, kq) in ((S00, 0, 0), (S01, 0, 1), (S11, 1, 1)):
        for ks in range(4):
            e(mf32(d, v(KO + 16 * kk + 4 * ks, 4), v(QO + 16 * kq + 4 * ks, 4), ks == 0))
    MB = KO
    e("s_lshl_b32 %s, %s, 13" % (s(S_A), s(S_SEG)))
    e("s_add_u32 %s, %s, 0x%x" % (s(S_A), s(S_A), C.HIST_OFF))
    e.label("L_P2_poll")
    e("buffer_load_dwordx4 %s, %s, %s, %s offen sc1" % (v(MB, 4), v(W_MW), ws, s(S_A)))
    e("buffer_load_dwordx4 %s, %s, %s, %s offen offset:1024 sc1" % (v(MB + 4, 4), v(W_MW), ws, s(S_A)))
    e("s_add_u32 %s, %s, 1" % (s(S_TMO), s(S_TMO)))
    e("s_cmp_gt_u32 %s, %d" % (s(S_TMO), TMO_LIMIT))
    e("s_waitcnt vmcnt(0)")
    e("v_max3_u32 %s, %s, %s, %s" % (v(T0), v(MB), v(MB + 1), v(MB + 2)))
    e("v_max3_u32 %s, %s, %s, %s" % (v(T1), v(MB + 3), v(MB + 4), v(MB + 5)))
    e("v_max3_u32 %s, %s, %s, %s" % (v(T0), v(T0), v(MB + 6), v(MB + 7)))
    e("v_max_u32 %s, %s, %s" % (v(T0), v(T0), v(T1)))
    e("s_cbranch_scc1 L_P2_got")
    e("v_cmp_eq_u32 vcc, -1, %s" % v(T0))
    e("s_cbranch_vccz L_P2_got")
    e("s_sleep 4")
    e("s_branch L_P2_poll")
    e.label("L_P2_got")
    e("ds_write_b128 %s, %s offset:%d" % (v(W_MW), v(MB, 4), MEMI))
    e("ds_write_b128 %s, %s offset:%d" % (v(W_MW), v(MB + 4, 4), MEMI + 1024))
    e("s_waitcnt lgkmcnt(0)")
    e("s_barrier")
    AKM, AVM = R0 + 84, R0 + 92
    MO = KO
    moff = lambda ks: ((ks & 3) * 128 + ((ks >> 2) & 1) * 32 + (ks >> 3) * 64) * 16
    rdm = lambda ks: e("ds_read_b128 %s, %s offset:%d" % (v(MO + 4 * (ks % 8), 4), v(W_MR), moff(ks)))
    for ks in range(4):
        rdm(ks)
    for ks in range(16):
        if ks + 4 < 16:
            rdm(ks + 4)
        e("s_waitcnt lgkmcnt(%d)" % min(4, 15 - ks))
        x = v(MO + 4 * (ks % 8), 4)
        for T in range(2):
            e(mf32(AKM + 4 * T, wreg("K", T, ks), x, ks == 0))
        for T in range(2):
            e(mf32(AVM + 4 * T, x, wreg("V", T, ks), ks == 0))
    KMP = KO
    for r in range(8):
        e("v_mul_f32 %s, %s, %s" % (v(AKM + r), s(S_SCALE), v(AKM + r)))
    for r in range(4):
        e(cvt(KMP + r, AKM + r, AKM + 4 + r))
    e("ds_write_b128 %s, %s offset:%d" % (v(W_EX), v(KMP, 4), EX_KM))
    VMP = R0 + 100
    for T in range(2):
        e(cvt(VMP + 2 * T, AVM + 4 * T, AVM + 4 * T + 1))
        e(cvt(VMP + 2 * T + 1, AVM + 4 * T + 2, AVM + 4 * T + 3))
    e("s_waitcnt lgkmcnt(0)")
    e("s_barrier")
    KMO = KO + 16
    for ks in range(4):
        e("ds_read_b128 %s, %s offset:%d" % (v(KMO + 4 * ks, 4), v(W_L16), EX_KM + ks * 1024))
    for S_ in (S00, S11):
        for r in range(4):
            e("v_cndmask_b32 %s, %s, %s, %s" % (v(S_ + r), v(W_NEG), v(S_ + r), s(S_M0 + 2 * r, 2)))
    e("s_waitcnt lgkmcnt(0)")
    for (d, kq) in ((SM0, 0), (SM1, 1)):
        for ks in range(4):
            e(mf32(d, v(KMO + 4 * ks, 4), v(QO + 16 * kq + 4 * ks, 4), ks == 0))
    for S_ in (SM0, SM1):
        for r in range(4):
            e("v_cndmask_b32 %s, %s, %s, %s" % (v(S_ + r), v(W_NEG), v(S_ + r), s(S_MM, 2)))
    MX0, MX1 = KO, KO + 1
    g0 = [S00 + r for r in range(4)] + [SM0 + r for r in range(4)]
    g1 = [S01 + r for r in range(4)] + [S11 + r for r in range(4)] + [SM1 + r for r in range(4)]
    for mx, g_ in ((MX0, g0), (MX1, g1)):
        e("v_max_f32 %s, %s, %s" % (v(mx), v(g_[0]), v(g_[1])))
        for i in range(2, len(g_), 2):
            e("v_max3_f32 %s, %s, %s, %s" % (v(mx), v(mx), v(g_[i]), v(g_[i + 1])))
    for sw in ("v_permlane16_swap_b32", "v_permlane32_swap_b32"):
        for mx in (MX0, MX1):
            e("v_mov_b32 %s, %s" % (v(T0), v(mx)))
            e("%s %s, %s" % (sw, v(mx), v(T0)))
            e("v_max_f32 %s, %s, %s" % (v(mx), v(mx), v(T0)))
    for mx, g_ in ((MX0, g0), (MX1, g1)):
        for r in g_:
            e("v_sub_f32 %s, %s, %s" % (v(r), v(r), v(mx)))
            e("v_exp_f32 %s, %s" % (v(r), v(r)))
    P0, P1, PM0, PM1, ONES = R0, R0 + 4, R0 + 8, R0 + 10, R0 + 12
    e(cvt(P0, S00, S00 + 1)); e(cvt(P0 + 1, S00 + 2, S00 + 3))
    e("v_mov_b64 %s, 0" % v(P0 + 2, 2))
    e(cvt(P1, S01, S01 + 1)); e(cvt(P1 + 1, S01 + 2, S01 + 3))
    e(cvt(P1 + 2, S11, S11 + 1)); e(cvt(P1 + 3, S11 + 2, S11 + 3))
    for pm, S_ in ((PM0, SM0), (PM1, SM1)):
        e(cvt(pm, S_, S_ + 1)); e(cvt(pm + 1, S_ + 2, S_ + 3))
    e("v_mov_b64 %s, %s" % (v(ONES, 2), s(S_ONES, 2)))
    e("v_mov_b64 %s, %s" % (v(ONES + 2, 2), s(S_ONES, 2)))
    LS, OA = R0 + 16, R0 + 24
    for kq, P_ in ((0, P0), (1, P1)):
        e(mf32(LS + 4 * kq, v(ONES, 4), v(P_, 4), True))
        for T in range(2):
            e(mf32(OA + 8 * kq + 4 * T, v(VP + 4 * T, 4), v(P_, 4), True))
    for kq, PM_ in ((0, PM0), (1, PM1)):
        e("v_mfma_f32_16x16x16_bf16 %s, %s, %s, %s" % (v(LS + 4 * kq, 4), v(ONES, 2), v(PM_, 2), v(LS + 4 * kq, 4)))
        for T in range(2):
            d = OA + 8 * kq + 4 * T
            e("v_mfma_f32_16x16x16_bf16 %s, %s, %s, %s" % (v(d, 4), v(VMP + 2 * T, 2), v(PM_, 2), v(d, 4)))
    OP = R0 + 40
    for kq in range(2):
        e("v_rcp_f32 %s, %s" % (v(T0), v(LS + 4 * kq)))
        for r in range(8):
            e("v_mul_f32 %s, %s, %s" % (v(OA + 8 * kq + r), v(OA + 8 * kq + r), v(T0)))
        for r in range(4):
            e(cvt(OP + 4 * kq + r, OA + 8 * kq + r, OA + 8 * kq + 4 + r))
        e("ds_write_b128 %s, %s offset:%d" % (v(W_EX), v(OP + 4 * kq, 4), EX_O + kq * 4096))
    e("s_waitcnt lgkmcnt(0)")
    e("s_barrier")
    OO = R0
    WB = R0 + 32
    WA = R0 + 48
    for kq in range(2):
        for ks in range(4):
            e("ds_read_b128 %s, %s offset:%d" % (v(OO + 16 * kq + 4 * ks, 4), v(W_L16), EX_O + kq * 4096 + ks * 1024))
    seq = [(ks, T) for ks in range(4) for T in range(8)]
    rdw = lambda i: e("ds_read_b128 %s, %s offset:%d" % (v(WB + 4 * (i % 4), 4), v(W_WO), (seq[i][0] * 8 + seq[i][1]) * 1024))
    for i in range(3):
        rdw(i)
    for i, (ks, T) in enumerate(seq):
        if i + 3 < 32:
            rdw(i + 3)
        e("s_waitcnt lgkmcnt(%d)" % min(3, 31 - i))
        for kq in range(2):
            e(mf32(WA + 32 * kq + 4 * T, v(OO + 16 * kq + 4 * ks, 4), v(WB + 4 * (i % 4), 4), ks == 0))
    e("s_lshl_b32 %s, %s, 20" % (s(S_A), s(S_SEG)))
    e("s_lshl_b32 %s, %s, 10" % (s(S_T0), s(S_H)))
    e("s_add_u32 %s, %s, %s" % (s(S_A), s(S_A), s(S_T0)))
    e("s_add_u32 %s, %s, 0x%x" % (s(S_A), s(S_A), TP_OFF))
    for kq in range(2):
        for r in range(4):
            d = OO + (4 * kq + r) * 4
            for q in range(4):
                e(cvt(d + q, WA + 32 * kq + 8 * q + r, WA + 32 * kq + 8 * q + 4 + r))
            e("s_add_u32 %s, %s, 0x%x" % (s(S_T0), s(S_A), (16 * kq + r) * 32768))
            e("buffer_store_dwordx4 %s, %s, %s, %s offen sc1" % (v(d, 4), v(W_TPW), ws, s(S_T0)))
    e("s_lshl_b32 %s, %s, 7" % (s(S_B), s(S_SEG)))
    e("s_add_u32 %s, %s, 0x%x" % (s(S_B), s(S_B), FLAGTP))
    e("s_lshl_b32 %s, %s, 2" % (s(S_T0), s(S_H)))
    e("s_add_u32 %s, %s, %s" % (s(S_A), s(S_B), s(S_T0)))
    signal(e, S_A)
    SEL, XV, WRV = R0 + 32, R0 + 36, R0 + 37
    e("v_and_b32 %s, 15, v0" % v(T1))
    for q in range(4):
        e("v_mov_b32 %s, 0" % v(SEL + q))
        e("v_mov_b32 %s, 0x3f80" % v(T0))
        e("v_cmp_eq_u32 vcc, %d, %s" % (4 * q, v(T1)))
        e("v_cndmask_b32 %s, %s, %s, vcc" % (v(SEL + q), v(SEL + q), v(T0)))
        e("v_mov_b32 %s, 0x3f800000" % v(T0))
        e("v_cmp_eq_u32 vcc, %d, %s" % (4 * q + 1, v(T1)))
        e("v_cndmask_b32 %s, %s, %s, vcc" % (v(SEL + q), v(SEL + q), v(T0)))
    e("s_lshl_b32 %s, %s, 5" % (s(S_A), s(S_SEG)))
    e("s_add_u32 %s, %s, %s" % (s(S_A), s(S_A), s(S_H)))
    e("s_lshl_b32 %s, %s, 10" % (s(S_A), s(S_A)))
    e("buffer_load_dword %s, %s, %s, %s offen" % (v(XV), v(W_ROW), s(S_X, 4), s(S_A)))
    e("buffer_load_dword %s, %s, %s, 0 offen" % (v(WRV), v(W_ROW), s(S_WR, 4)))
    e("v_lshrrev_b32 %s, 2, %s" % (v(T1), v(W_L16)))
    e("v_and_b32 %s, 127, %s" % (v(T1), v(T1)))
    e.label("L_P3_poll")
    e("buffer_load_dword %s, %s, %s, %s offen sc1" % (v(T0), v(T1), ws, s(S_B)))
    e("s_add_u32 %s, %s, 1" % (s(S_TMO), s(S_TMO)))
    e("s_cmp_gt_u32 %s, %d" % (s(S_TMO), TMO_LIMIT))
    e("s_waitcnt vmcnt(0)")
    e("s_cbranch_scc1 L_P3_got")
    e("v_cmp_eq_u32 vcc, 0, %s" % v(T0))
    e("s_cbranch_vccnz L_P3_poll")
    e.label("L_P3_got")
    e("s_lshl_b32 %s, %s, 5" % (s(S_T0), s(S_A)))
    e("s_add_u32 %s, %s, 0x%x" % (s(S_T0), s(S_T0), TP_OFF))
    PD = R0
    for u in range(8):
        e("buffer_load_dwordx4 %s, %s, %s, %s offen sc1" % (v(PD + 4 * u, 4), v(W_TPR), ws, s(S_T0)))
        if u < 7:
            e("s_add_u32 %s, %s, 4096" % (s(S_T0), s(S_T0)))
    RD = R0 + 40
    for u in range(8):
        e("s_waitcnt vmcnt(%d)" % (7 - u))
        e(mf32(RD, v(SEL, 4), v(PD + 4 * u, 4), u == 0))
    H0, H1, HP, SU, SQ, A_, B_, XP = range(R0 + 44, R0 + 52)
    lo = lambda d, x: e("v_lshlrev_b32 %s, 16, %s" % (v(d), v(x)))
    hi = lambda d, x: e("v_and_b32 %s, 0xffff0000, %s" % (v(d), v(x)))
    e(cvt(HP, RD, RD + 1))
    lo(A_, HP); hi(B_, HP)
    lo(H0, XV); hi(H1, XV)
    e("v_add_f32 %s, %s, %s" % (v(H0), v(H0), v(A_)))
    e("v_add_f32 %s, %s, %s" % (v(H1), v(H1), v(B_)))
    e(cvt(HP, H0, H1))
    lo(H0, HP); hi(H1, HP)
    e("v_add_f32 %s, %s, %s" % (v(SU), v(H0), v(H1)))
    e("v_mul_f32 %s, %s, %s" % (v(SQ), v(H0), v(H0)))
    e("v_fmac_f32 %s, %s, %s" % (v(SQ), v(H1), v(H1)))
    wave_sum(e, [SU, SQ], T0)
    e("v_mov_b32 %s, %s" % (v(T1), s(S_WAVE)))
    e("v_lshlrev_b32 %s, 3, %s" % (v(T1), v(T1)))
    e("v_add_u32 %s, %d, %s" % (v(T1), RED, v(T1)))
    e("ds_write2_b32 %s, %s, %s offset0:0 offset1:1" % (v(T1), v(SU), v(SQ)))
    e("s_add_u32 %s, %s, 0x%x" % (s(S_T0), s(S_A), HROW))
    e("buffer_store_dword %s, %s, %s, %s offen" % (v(HP), v(W_ROW), ws, s(S_T0)))
    e("s_waitcnt lgkmcnt(0)")
    e("s_barrier")
    RR = R0 + 52
    e("v_mov_b32 %s, %d" % (v(T1), RED))
    e("ds_read_b128 %s, %s" % (v(RR, 4), v(T1)))
    e("ds_read_b128 %s, %s offset:16" % (v(RR + 4, 4), v(T1)))
    e("s_waitcnt lgkmcnt(0)")
    for k, d in ((0, SU), (1, SQ)):
        e("v_add_f32 %s, %s, %s" % (v(d), v(RR + k), v(RR + 2 + k)))
        e("v_add_f32 %s, %s, %s" % (v(d), v(d), v(RR + 4 + k)))
        e("v_add_f32 %s, %s, %s" % (v(d), v(d), v(RR + 6 + k)))
        e("v_mul_f32 %s, 0x%x, %s" % (v(d), f32bits(1 / 512), v(d)))
    e("v_fma_f32 %s, -%s, %s, %s" % (v(SQ), v(SU), v(SU), v(SQ)))
    e("v_max_f32 %s, 0, %s" % (v(SQ), v(SQ)))
    e(cvt(T0, SU, SQ))
    lo(SU, T0); hi(SQ, T0)
    e("v_add_f32 %s, 0x%x, %s" % (v(SQ), f32bits(1e-5), v(SQ)))
    e(cvt(T0, SQ, SQ)); lo(SQ, T0)
    e("v_sqrt_f32 %s, %s" % (v(SQ), v(SQ)))
    e(cvt(T0, SQ, SQ)); lo(SQ, T0)
    e("v_rcp_f32 %s, %s" % (v(SQ), v(SQ)))
    e("v_sub_f32 %s, %s, %s" % (v(A_), v(H0), v(SU)))
    e("v_sub_f32 %s, %s, %s" % (v(B_), v(H1), v(SU)))
    e(cvt(T0, A_, B_)); lo(A_, T0); hi(B_, T0)
    e("v_mul_f32 %s, %s, %s" % (v(A_), v(A_), v(SQ)))
    e("v_mul_f32 %s, %s, %s" % (v(B_), v(B_), v(SQ)))
    e(cvt(XP, A_, B_))
    lo(A_, XP); hi(B_, XP)
    e("s_add_u32 %s, %s, 0x%x" % (s(S_T0), s(S_A), XN2))
    e("buffer_store_dword %s, %s, %s, %s offen" % (v(XP), v(W_ROW), ws, s(S_T0)))
    e("v_add_f32 %s, %s, %s" % (v(H0), v(H0), v(A_)))
    e("v_add_f32 %s, %s, %s" % (v(H1), v(H1), v(B_)))
    e(cvt(HP, H0, H1))
    e("buffer_store_dword %s, %s, %s, %s offen" % (v(HP), v(W_ROW), s(S_OUT, 4), s(S_A)))
    lo(H0, WRV); hi(H1, WRV)
    e("v_mul_f32 %s, %s, %s" % (v(SU), v(A_), v(H0)))
    e("v_fmac_f32 %s, %s, %s" % (v(SU), v(B_), v(H1)))
    wave_sum(e, [SU], T0)
    e("s_lshr_b32 %s, %s, 6" % (s(S_T0), s(S_A)))
    e("s_lshl_b32 %s, %s, 2" % (s(S_T1), s(S_WAVE)))
    e("s_add_u32 %s, %s, %s" % (s(S_T0), s(S_T0), s(S_T1)))
    e("s_add_u32 %s, %s, 0x%x" % (s(S_T0), s(S_T0), RVAL))
    e("v_cmp_ne_u32 vcc, 0, %s" % v(W_L16))
    e("v_mov_b32 %s, 0x%x" % (v(T1), OOB))
    e("v_cndmask_b32 %s, %s, %s, vcc" % (v(T1), v(W_L16), v(T1)))
    e("buffer_store_dword %s, %s, %s, %s offen" % (v(SU), v(T1), ws, s(S_T0)))
    e("s_barrier")
    e("s_add_u32 %s, %s, 7" % (s(S_SEG), s(S_SEG)))
    e("s_cmp_lt_u32 %s, 64" % s(S_SEG))
    e("s_cbranch_scc1 L_P2")
```

```python
import sys
from asmlib import Emitter, v, a, s
import chain as C
for a_ in sys.argv:
    if a_.startswith('opt:'):
        k_, v_ = a_[4:].split('=')
        C.OPT[k_] = int(v_, 0) if v_[:1].isdigit() else v_.replace('_', ' ')
import worker as W
import tail as T

BASE = "sequential_preLN__memory_aug_recurrent_mem_tr__moe_arch_mod__prompt"
K1 = BASE + "_kernel"
K2 = "route_up_kernel"
K3 = "down_kernel"
hdr = open("/code/%s.s.ref" % BASE).read().split("\n")
hdr = [l for l in hdr[:hdr.index(next(l for l in hdr if "@launch" in l and l.startswith("; @launch")))] if "harness parses" not in l.lower() and "Override launch" not in l]
e = Emitter()
for l in hdr:
    e.raw(l)
e.raw("; @launch kernel=%s grid=(256,1,1) block=(256,1,1) lds=%d" % (K1, C.LDS_BYTES))
e.raw("; @launch kernel=%s grid=(112,1,1) block=(256,1,1) lds=2048" % K2)
e.raw("; @launch kernel=%s grid=(32,1,1) block=(256,1,1) lds=1024" % K3)
e.raw('.amdgcn_target "amdgcn-amd-amdhsa--gfx950"')
e.raw(".text")


def start(name):
    e.raw(".globl %s\n.p2align 8\n.type %s,@function" % (name, name))
    e.label(name)
    e.hist = []


start(K2); T.k2(e)
start(K3); T.k3(e)
start(K1)
P = C.S_PTR
e("s_cmp_ge_u32 s2, 256")
e("s_cbranch_scc1 L_end")
e("s_load_dwordx8 %s, s[0:1], 0" % s(P, 8))
e("s_load_dwordx4 %s, s[0:1], 32" % s(P + 8, 4))
e("s_load_dwordx4 %s, s[0:1], 104" % s(P + 12, 4))
e("s_load_dwordx2 s[80:81], s[0:1], 64")
e("s_load_dwordx2 s[82:83], s[0:1], 96")
e("v_lshrrev_b32 v1, 6, v0")
e("v_readfirstlane_b32 %s, v1" % s(C.S_WAVE))
e("s_waitcnt lgkmcnt(0)")
C.srd(e, C.S_WS, P + 14, C.WS_BYTES)
C.srd(e, C.S_DBG, P + 12, 256)
e("s_and_b32 s3, s2, 7")
e("s_cmp_lg_u32 s3, 0")
e("s_cbranch_scc1 L_worker")
e("s_lshr_b32 %s, s2, 3" % s(C.S_H))
C.setup_consts(e)
C.init_buffers(e, P + 2)
C.load_weights(e, P + 4, P + 6, P + 8, P + 10)
C.setup_pf(e)
C.handshake_wait(e, "L_fast_start", "L_slow_start")
C.main_loop(e, "fast", "", 63)
e("s_branch L_end")
C.main_loop(e, "slow", " sc1", 63)
e("s_branch L_end")
e.label("L_worker")
C.srd(e, W.S_X, P, 2048 * 512 * 2)
C.srd(e, W.S_OUT, 82, 2048 * 512 * 2)
C.srd(e, W.S_WR, 80, 1024)
W.setup(e, P)
W.load_w(e, P, "KV")
W.wait_handshake(e)
W.phase1(e)
W.load_w(e, P, "Q")
W.load_wo(e, P)
W.phase2(e)
e.label("L_end")
e("s_endpgm")
e.raw('.section .rodata,"a"')
for name, nv, acc in ((K1, 512, 256), (K2, 96, 96), (K3, 192, 192)):
    e.raw(""".p2align 6
.amdhsa_kernel %s
  .amdhsa_next_free_vgpr %d
  .amdhsa_next_free_sgpr 102
  .amdhsa_accum_offset %d
  .amdhsa_group_segment_fixed_size 0
  .amdhsa_kernarg_size 120
  .amdhsa_user_sgpr_count 2
  .amdhsa_user_sgpr_kernarg_segment_ptr 1
  .amdhsa_system_sgpr_workgroup_id_x 1
.end_amdhsa_kernel""" % (name, nv, acc))
out = sys.argv[1] if len(sys.argv) > 1 and not sys.argv[1].startswith("opt:") else "/code/%s.s" % BASE
open(out, "w").write(e.text())
print("nops inserted:", e.nops_inserted, "lines:", len(e.lines), "->", out)
```

```python
from asmlib import Emitter, v, a, s
import struct

WS_BYTES = 0x10000000
PB_OFF = 0x0000000
PB_SZ = 0x40000
HIST_OFF = 0x0100000
FLAG_OFF = 0x0190000
STAMP_OFF = 0x01A0000
SLAB_OFF = 0x1000000
SLAB_ST = 0x82000
MB_IN = 0x80000
OOB = 0x40000000

L_MEMI = 0
L_PX = 8192
RS = 72
L_QX = 16384
L_KMX = L_QX + 2304
L_OX = L_KMX + 2304
L_SEL = L_OX + 2048
L_WL = 32768
LDS_BYTES = 163840

S_WS = 8
S_W = 12
S_DBG = 16
S_H = 20
S_WAVE = 21
S_STEP = 22
S_SLAB = 23
S_SLABN = 24
S_KXO = 25
S_KX = 29
S_VX = 30
S_HIST = 31
S_TMO = 32
S_SCALE = 33
S_PLO = 34
S_PHI = 35
S_T0 = 36
S_T1 = 37
S_T2 = 38
S_VXO = 39
S_BIG = 40
S_PR = 6
S_MB = 7
S_4K = 26
S_PAR = 27
S_RDY = 62
S_ONES = 4
S_PTR = 44
S_ST = 64

C_PF = 0
C_IDX, C_MW, C_L16, C_WL, C_QW, C_QR, C_KR, C_OW, C_PW, C_MP, FREE1, HPEND, HPEND1, T0, JUNK = range(1, 16)
AM = 16
ACCQ = 48
ACCK = 56
ACCV = 64
QB = 72
XA = 88
XB = 104
VX = 120
VW = 128

TMO_LIMIT = 200000
OPT = {}


def f32bits(x):
    return struct.unpack("<I", struct.pack("<f", x))[0]


def lin(e, dst, coefs, const=0, tmp=T0, src=0):
    e("v_mov_b32 %s, 0x%x" % (v(dst), const))
    for k, c in sorted(coefs.items()):
        if c == 0:
            continue
        assert c < (1 << 24)
        e("v_bfe_u32 %s, %s, %d, 1" % (v(tmp), v(src), k))
        e("s_mov_b32 %s, 0x%x" % (s(S_T2), c))
        e("v_mad_u32_u24 %s, %s, %s, %s" % (v(dst), v(tmp), s(S_T2), v(dst)))


def srd(e, d, ptr, nbytes):
    e("s_mov_b32 %s, %s" % (s(d), s(ptr)))
    e("s_and_b32 %s, %s, 0xffff" % (s(d + 1), s(ptr + 1)))
    e("s_mov_b32 %s, 0x%x" % (s(d + 2), nbytes))
    e("s_mov_b32 %s, 0x20000" % s(d + 3))


LDS_OPS = {
    ("Q", 0, 0): XB + 0, ("Q", 1, 0): XB + 8, ("Q", 0, 1): XA + 0, ("Q", 1, 1): XA + 8,
    ("K", 0, 0): QB + 0, ("K", 1, 0): QB + 8,
    ("Q", 0, 7): XA + 0, ("Q", 1, 7): XA + 8,
    ("K", 0, 2): QB + 0, ("K", 1, 2): QB + 8,
    ("K", 0, 7): XA + 0, ("K", 1, 7): XA + 8,
    ("O", 0, 0): XA + 0, ("O", 1, 0): XA + 8, ("O", 0, 1): QB + 0, ("O", 1, 1): QB + 8,
}
OLDS = [("O", 0, 0), ("O", 1, 0), ("O", 0, 1), ("O", 1, 1)]
LDS_SLOT = {k: i for i, k in enumerate(LDS_OPS)}
ALL_OPS = [(m, T, u) for m in "QKV" for u in range(8) for T in range(2)] + [("O", T, t) for t in range(2) for T in range(8)]
RES = {}
_n = 0
for op in ALL_OPS:
    if op in LDS_OPS:
        continue
    RES[op] = ("a", _n * 8) if _n < 32 else ("v", VW + (_n - 32) * 8)
    _n += 1
assert _n == 48


def opreg(op):
    if op in LDS_OPS:
        return v(LDS_OPS[op], 8)
    k, r = RES[op]
    return (a if k == "a" else v)(r, 8)


def lds_fetch_ins(op):
    r = LDS_OPS[op]
    off = LDS_SLOT[op] * 2048
    return ["ds_read_b128 %s, %s offset:%d" % (v(r, 4), v(C_WL), off),
            "ds_read_b128 %s, %s offset:%d" % (v(r + 4, 4), v(C_WL), off + 1024)]


def lds_fetch(e, op):
    for t in lds_fetch_ins(op):
        e(t)


def rowpart(rho, b, hi=32):
    return hi * (rho >> 2) + 8 * (rho & 1) + 2 * ((rho >> 1) & 1) + b


def place_operand(e, op, srcs, sel, tmp8):
    if op in LDS_OPS:
        for rho, (x0, x1) in enumerate(srcs):
            e("v_perm_b32 %s, %s, %s, %s" % (v(tmp8 + rho), v(x1), v(x0), s(sel)))
        off = LDS_SLOT[op] * 2048
        e("ds_write_b128 %s, %s offset:%d" % (v(C_WL), v(tmp8, 4), off))
        e("ds_write_b128 %s, %s offset:%d" % (v(C_WL), v(tmp8 + 4, 4), off + 1024))
        e("s_waitcnt lgkmcnt(0)")
    else:
        k, r = RES[op]
        for rho, (x0, x1) in enumerate(srcs):
            if k == "v":
                e("v_perm_b32 %s, %s, %s, %s" % (v(r + rho), v(x1), v(x0), s(sel)))
            else:
                e("v_perm_b32 %s, %s, %s, %s" % (v(tmp8 + rho), v(x1), v(x0), s(sel)))
                e("v_accvgpr_write_b32 %s, %s" % (a(r + rho), v(tmp8 + rho)))


def load_weights(e, P_WQ, P_WK, P_WV, P_WO):
    VOFF, VOFO = JUNK, FREE1
    RING = 16
    TMP8 = 120
    lin(e, VOFF, {0: 4, 1: 8, 2: 16, 3: 32, 4: 4 * 8192, 5: 16 * 8192, 6: 64, 7: 128})
    lin(e, VOFO, {0: 4, 1: 8, 2: 16, 3: 32, 4: 4 * 1024, 5: 16 * 1024, 6: 256, 7: 512})
    groups = [(m, u) for m in "QKVO" for u in range(8)]
    ptr = {"Q": P_WQ, "K": P_WK, "V": P_WV, "O": P_WO}
    SRDS = {"Q": 96, "K": 12, "V": 60, "O": 92}
    for m in "QKVO":
        srd(e, SRDS[m], ptr[m], 512 * 4096 * 2)

    def issue(gi):
        m, u = groups[gi]
        base = RING + (gi % 4) * 16
        if m != "O":
            e("s_xor_b32 %s, %s, %d" % (s(S_T0), s(S_WAVE), u >> 1))
            e("s_lshl_b32 %s, %s, 18" % (s(S_T0), s(S_T0)))
            e("s_lshl_b32 %s, %s, 8" % (s(S_T1), s(S_H)))
            e("s_add_u32 %s, %s, %s" % (s(S_T0), s(S_T0), s(S_T1)))
            off = lambda rho, b: (256 * (u & 1) + rowpart(rho, b, 128)) * 8192
        else:
            q, tt = u >> 1, u & 1
            e("s_lshl_b32 %s, %s, 17" % (s(S_T0), s(S_H)))
            off = lambda rho, b: (64 * tt + rowpart(rho, b)) * 1024 + q * 64
        for rho in range(8):
            for b in range(2):
                e("s_add_u32 %s, %s, 0x%x" % (s(S_T1), s(S_T0), off(rho, b)))
                e("buffer_load_dword %s, %s, %s, %s offen" % (v(base + rho * 2 + b), v(VOFO if m == "O" else VOFF), s(SRDS[m], 4), s(S_T1)))

    def consume(gi):
        m, u = groups[gi]
        base = RING + (gi % 4) * 16
        srcs = [(base + rho * 2, base + rho * 2 + 1) for rho in range(8)]
        for k in range(2):
            op = (m, k, u) if m != "O" else ("O", 2 * (u >> 1) + k, u & 1)
            place_operand(e, op, srcs, S_PHI if k else S_PLO, TMP8)

    n = len(groups)
    for gi in range(3):
        issue(gi)
    for gi in range(n):
        inflight_after = min(n - 1 - gi, 2)
        e("s_waitcnt vmcnt(%d)" % (inflight_after * 16))
        if gi + 3 < n:
            issue(gi + 3)
        consume(gi)


def setup_consts(e):
    T1, T2 = AM + 8, AM + 9
    lin(e, C_IDX, {1: 0xEEEE - 0x4444}, 0x4444)
    lin(e, C_L16, {k: 16 << k for k in range(6)})
    lin(e, C_MW, {**{k: 16 << k for k in range(6)}, 6: 2048, 7: 4096})
    lin(e, C_WL, {**{k: 16 << k for k in range(6)}, 6: 32768, 7: 65536}, L_WL)
    lin(e, C_QW, {0: 4, 1: 8, 2: 16, 3: 32, 4: 2 * RS * 4, 5: 4 * RS * 4, 6: 64, 7: 128}, L_QX)
    lin(e, C_QR, {1: RS * 4, 2: 2 * RS * 4, 3: 4 * RS * 4, 4: 16, 5: 32}, L_QX)
    lin(e, C_KR, {0: RS * 4, 2: 2 * RS * 4, 3: 4 * RS * 4, 4: 16, 5: 32}, L_KMX)
    lin(e, C_OW, {1: 16, 2: 64, 3: 128, 4: 32, 5: 256, 6: 512, 7: 1024}, L_OX)
    lin(e, T1, {3: 1, 4: 2, 5: 4, 6: 8, 7: 16})
    e("v_add_u32 %s, %s, %s" % (v(T1), s(S_H), v(T1)))
    e("v_and_b32 %s, 31, %s" % (v(T1), v(T1)))
    e("v_lshlrev_b32 %s, 6, %s" % (v(T1), v(T1)))
    lin(e, C_PW, {0: 8, 1: 16, 2: 32, 3: 8192, 4: 2 * 8192, 5: 4 * 8192, 6: 8 * 8192, 7: 16 * 8192}, PB_OFF)
    e("v_add_u32 %s, %s, %s" % (v(C_PW), v(C_PW), v(T1)))
    lin(e, C_MP, {0: 8, 1: 32, 4: 16, 5: 4, 6: 2048, 7: 4096}, MB_IN)
    e("v_mov_b32 %s, %s" % (v(T2), s(S_H)))
    lin(e, T1, {0: 256, 1: 64, 2: 128, 3: 512, 4: 1024}, src=T2)
    e("v_add_u32 %s, %s, %s" % (v(C_MP), v(T1), v(C_MP)))
    e("v_and_b32 %s, 12, v0" % v(T1))
    e("v_cmp_ne_u32 vcc, 0, %s" % v(T1))
    e("v_mov_b32 %s, 0x%x" % (v(T1), OOB))
    e("v_cndmask_b32 %s, %s, %s, vcc" % (v(C_MP), v(C_MP), v(T1)))
    e("s_lshl_b32 %s, %s, 13" % (s(S_PR), s(S_H)))
    e("s_add_u32 %s, %s, 0x%x" % (s(S_PR), s(S_PR), PB_OFF))
    e("s_mov_b32 %s, 4096" % s(S_4K))
    e("v_and_b32 %s, 15, v0" % v(T1))
    for q in range(4):
        e("v_mov_b32 %s, 0" % v(AM + q))
        e("v_mov_b32 %s, 0x3f80" % v(T2))
        e("v_cmp_eq_u32 vcc, %d, %s" % (4 * q, v(T1)))
        e("v_cndmask_b32 %s, %s, %s, vcc" % (v(AM + q), v(AM + q), v(T2)))
        e("v_mov_b32 %s, 0x3f800000" % v(T2))
        e("v_cmp_eq_u32 vcc, %d, %s" % (4 * q + 1, v(T1)))
        e("v_cndmask_b32 %s, %s, %s, vcc" % (v(AM + q), v(AM + q), v(T2)))
    e("ds_write_b128 %s, %s offset:%d" % (v(C_L16), v(AM, 4), L_SEL))
    e("s_mov_b32 %s, 0x05040100" % s(S_PLO))
    e("s_mov_b32 %s, 0x07060302" % s(S_PHI))
    e("s_mov_b32 %s, 0x%x" % (s(S_SCALE), f32bits(128 ** -0.5 * 1.4426950408889634)))
    e("s_mov_b32 %s, 0x%x" % (s(S_BIG), f32bits(OPT.get('big', 2.0 ** 30))))
    e("s_mov_b32 %s, 0" % s(S_TMO))
    e("s_mov_b32 %s, 0x3f803f80" % s(S_ONES))
    e("s_mov_b32 %s, 0x3f803f80" % s(S_ONES + 1))
    e("s_lshl_b32 %s, %s, 14" % (s(S_T0), s(S_H)))
    e("s_lshr_b32 %s, %s, 1" % (s(S_T1), s(S_WAVE)))
    e("s_lshl_b32 %s, %s, 12" % (s(S_T1), s(S_T1)))
    e("s_add_u32 %s, %s, %s" % (s(S_KXO), s(S_T0), s(S_T1)))
    e("s_lshl_b32 %s, %s, 11" % (s(S_T1), s(S_WAVE)))
    e("s_add_u32 %s, %s, %s" % (s(S_VXO), s(S_T0), s(S_T1)))
    e("s_add_u32 %s, %s, 8192" % (s(S_VXO), s(S_VXO)))


def setup_pf(e):
    T1, T2 = AM + 8, AM + 9
    lin(e, T1, {0: 128, 1: 256, 2: 512, 3: 1024, 4: 2048, 6: 4096, 7: 8192})
    e("s_lshl_b32 %s, %s, 14" % (s(S_T0), s(S_H)))
    e("v_add_u32 %s, %s, %s" % (v(T1), s(S_T0), v(T1)))
    e("s_lshl_b32 %s, %s, 8" % (s(S_T0), s(S_H)))
    e("s_lshr_b32 %s, %s, 1" % (s(S_T1), s(S_WAVE)))
    e("s_lshl_b32 %s, %s, 7" % (s(S_T1), s(S_T1)))
    e("s_add_u32 %s, %s, %s" % (s(S_T0), s(S_T0), s(S_T1)))
    e("s_add_u32 %s, %s, 0x%x" % (s(S_T0), s(S_T0), SLAB_ST + MB_IN))
    e("v_and_b32 %s, 63, v0" % v(T0))
    e("v_mov_b32 %s, 0x%x" % (v(T2), OOB))
    e("v_cmp_lt_u32 vcc, 32, %s" % v(T0))
    e("v_cndmask_b32 %s, %s, %s, vcc" % (v(T1), v(T1), v(T2)))
    e("v_mov_b32 %s, %s" % (v(T2), s(S_T0)))
    e("v_cmp_eq_u32 vcc, 32, %s" % v(T0))
    e("v_cndmask_b32 %s, %s, %s, vcc" % (v(C_PF), v(T1), v(T2)))


def init_buffers(e, P_MEM0):
    T1, T2 = AM + 8, AM + 9
    for q in range(4):
        e("v_mov_b32 %s, -1" % v(AM + 4 + q))
    e("buffer_store_dwordx4 %s, %s, %s, %s offen sc1" % (v(AM + 4, 4), v(C_MW), s(S_WS, 4), s(S_PR)))
    e("buffer_store_dwordx4 %s, %s, %s, %s offen offset:1024 sc1" % (v(AM + 4, 4), v(C_MW), s(S_WS, 4), s(S_PR)))
    e("s_lshl_b32 %s, %s, 14" % (s(S_T0), s(S_H)))
    e("s_add_u32 %s, %s, 0x%x" % (s(S_T0), s(S_T0), HIST_OFF))
    e("s_add_u32 %s, %s, 0x2000" % (s(S_T1), s(S_T0)))
    for so in (S_T0, S_T1):
        e("buffer_store_dwordx4 %s, %s, %s, %s offen sc1" % (v(AM + 4, 4), v(C_MW), s(S_WS, 4), s(so)))
        e("buffer_store_dwordx4 %s, %s, %s, %s offen offset:1024 sc1" % (v(AM + 4, 4), v(C_MW), s(S_WS, 4), s(so)))
    e("s_mul_i32 %s, %s, 0x%x" % (s(S_T0), s(S_H), 2 * SLAB_ST))
    e("s_add_u32 %s, %s, 0x%x" % (s(S_T0), s(S_T0), SLAB_OFF + SLAB_ST + MB_IN + (0x4000000 if OPT.get("solo") else 0)))
    e("s_add_u32 %s, %s, 0x%x" % (s(S_T1), s(S_T0), SLAB_ST))
    for so in (S_T0, S_T1):
        e("buffer_store_dwordx4 %s, %s, %s, %s offen sc1" % (v(AM + 4, 4), v(C_MW), s(S_WS, 4), s(so)))
        e("buffer_store_dwordx4 %s, %s, %s, %s offen offset:1024 sc1" % (v(AM + 4, 4), v(C_MW), s(S_WS, 4), s(so)))
    e("v_lshlrev_b32 %s, 2, v0" % v(T1))
    e("s_lshl_b32 %s, %s, 10" % (s(S_T0), s(S_H)))
    e("s_add_u32 %s, %s, 0x%x" % (s(S_T1), s(S_T0), FLAG_OFF + 0x4000))
    e("buffer_store_dword %s, %s, %s, %s offen sc1" % (v(AM + 4), v(T1), s(S_WS, 4), s(S_T1)))
    e("s_add_u32 %s, %s, 0x%x" % (s(S_T1), s(S_T0), 0x1B0000))
    e("buffer_store_dword %s, %s, %s, %s offen sc1" % (v(AM + 4), v(T1), s(S_WS, 4), s(S_T1)))
    e("v_lshlrev_b32 %s, 2, v0" % v(T1))
    e("v_mov_b32 %s, 0x%x" % (v(T2), OOB))
    e("v_cmp_lt_u32 vcc, 63, v0")
    e("v_cndmask_b32 %s, %s, %s, vcc" % (v(T1), v(T1), v(T2)))
    e("v_mov_b32 %s, 0" % v(T2))
    e("s_lshl_b32 %s, %s, 8" % (s(S_T0), s(S_H)))
    e("s_add_u32 %s, %s, 0x%x" % (s(S_T0), s(S_T0), FLAG_OFF))
    e("s_add_u32 %s, %s, 0x2000" % (s(S_T1), s(S_T0)))
    if OPT.get("kvflags", 1):
        e("buffer_store_dword %s, %s, %s, %s offen sc1" % (v(T2), v(T1), s(S_WS, 4), s(S_T0)))
        e("buffer_store_dword %s, %s, %s, %s offen sc1" % (v(T2), v(T1), s(S_WS, 4), s(S_T1)))
    srd(e, S_W, P_MEM0, 8192)
    lin(e, T1, {0: 8, 1: 16, 2: 0x10000, 3: 0x10000, 4: 1024, 5: 4, 6: 64, 7: 128})
    e("v_mov_b32 %s, %s" % (v(AM), s(S_H)))
    lin(e, T2, {0: 32, 1: 2048, 2: 4096, 3: 256, 4: 512}, src=AM)
    e("v_add_u32 %s, %s, %s" % (v(T1), v(T1), v(T2)))
    e("buffer_load_dword %s, %s, %s, 0 offen" % (v(HPEND), v(T1), s(S_W, 4)))
    e("s_waitcnt vmcnt(0)")
    e("s_mov_b32 %s, 0x%x" % (s(S_T0), SLAB_OFF))
    e("buffer_store_dword %s, %s, %s, %s offen sc1" % (v(HPEND), v(C_MP), s(S_WS, 4), s(S_T0)))
    e("s_waitcnt vmcnt(0) lgkmcnt(0)")
    e("s_barrier")
    e("s_getreg_b32 %s, hwreg(HW_REG_XCC_ID)" % s(S_T0))
    e("s_and_b32 %s, %s, 15" % (s(S_T0), s(S_T0)))
    e("s_or_b32 %s, %s, 0x100" % (s(S_T0), s(S_T0)))
    e("v_mov_b32 %s, %s" % (v(T1), s(S_T0)))
    e("s_lshl_b32 %s, %s, 2" % (s(S_T1), s(S_H)))
    e("v_lshlrev_b32 %s, 20, v0" % v(T2))
    e("buffer_store_dword %s, %s, %s, %s offen sc1" % (v(T1), v(T2), s(S_DBG, 4), s(S_T1)))


def handshake_wait(e, fast_label, slow_label):
    T1, T2 = AM + 8, AM + 9
    e("v_lshrrev_b32 %s, 2, %s" % (v(T2), v(C_L16)))
    e("v_and_b32 %s, 127, %s" % (v(T2), v(T2)))
    e.label("L_HS")
    e("buffer_load_dword %s, %s, %s, 0 offen sc1" % (v(T1), v(T2), s(S_DBG, 4)))
    e("s_add_u32 %s, %s, 1" % (s(S_TMO), s(S_TMO)))
    e("s_cmp_gt_u32 %s, %d" % (s(S_TMO), TMO_LIMIT))
    e("s_cbranch_scc1 %s" % slow_label)
    e("s_waitcnt vmcnt(0)")
    e("v_cmp_eq_u32 vcc, 0, %s" % v(T1))
    e("s_cbranch_vccnz L_HS")
    e("v_readfirstlane_b32 %s, %s" % (s(S_T0), v(T1)))
    e("v_cmp_ne_u32 vcc, %s, %s" % (s(S_T0), v(T1)))
    e("s_cbranch_vccnz %s" % slow_label)
    e("s_branch %s" % fast_label)


def smf_ins(acc, aop, op):
    return "v_smfmac_f32_16x16x64_bf16 %s, %s, %s, %s" % (v(acc, 4), v(aop, 4), opreg(op), v(C_IDX))


def stamp(e, i, on):
    if on:
        e("s_memtime %s" % s(S_ST + 2 * i, 2))


am = lambda u: AM + 4 * u


def idle_prep_ins():
    out = []
    for op in (("Q", 0, 0), ("Q", 1, 0), ("Q", 0, 1), ("Q", 1, 1), ("K", 0, 0), ("K", 1, 0)):
        out += lds_fetch_ins(op)
    z = ["v_mov_b64 %s, 0" % v(r, 2) for r in range(ACCQ, ACCQ + 24, 2)]
    return out, z


def mr_addr_ins():
    return ["v_xor_b32 %s, 0x%x, %s" % (v(am(2 * k + 1)), k * 2048, v(C_MW)) for k in (1, 2, 3)]


def delay(e, cyc):
    n = cyc // 4
    while n > 0:
        k = min(n, 16)
        e("s_nop %d" % (k - 1))
        n -= k


def weave(e, main, fill):
    for i, m in enumerate(main):
        e(m)
        for t in fill.get(i, []):
            e(t)


def main_loop(e, tag, sc, nsteps, stamps=False):
    L = lambda n: "L_%s_%s" % (tag, n)
    ws = s(S_WS, 4)
    if not sc:
        sc = OPT.get("stf", "")
    acc = {"Q": ACCQ, "K": ACCK, "V": ACCV}
    S = lambda m, T, u: smf_ins(acc[m] + 4 * T, am(u), (m, T, u))
    e.label(L("start"))
    e("s_mov_b32 %s, 0" % s(S_STEP))
    e("s_mov_b32 %s, 0x%x" % (s(S_SLAB), SLAB_OFF))
    e("s_mov_b32 %s, 0" % s(S_PAR))
    e("s_mov_b32 %s, 0x%x" % (s(S_HIST), HIST_OFF - MB_IN))
    f, z = idle_prep_ins()
    for t in f + z:
        e(t)
    if OPT.get("pretouch"):
        e("s_mul_i32 %s, %s, 0x%x" % (s(S_T0), s(S_H), 2 * SLAB_ST))
        e("s_add_u32 %s, %s, 0x%x" % (s(S_T0), s(S_T0), SLAB_OFF + MB_IN))
        e("s_add_u32 %s, %s, 0x%x" % (s(S_T1), s(S_T0), SLAB_ST))
        for so in (S_T0, S_T1):
            e("buffer_load_dwordx4 %s, %s, %s, %s offen sc1" % (v(AM, 4), v(C_MW), ws, s(so)))
            e("buffer_load_dwordx4 %s, %s, %s, %s offen offset:1024 sc1" % (v(AM, 4), v(C_MW), ws, s(so)))
        e("s_waitcnt vmcnt(0)")
    e("s_waitcnt lgkmcnt(0)")
    e("s_mov_b64 %s, %s" % (s(S_RDY, 2), "0" if OPT.get("kvflags", 1) else "-1"))
    e.label(L("step"))
    e("s_bitcmp1_b64 %s, %s" % (s(S_RDY, 2), s(S_STEP)))
    e("s_cbranch_scc0 %s" % L("refresh"))
    e("s_add_u32 %s, %s, 1" % (s(S_T0), s(S_STEP)))
    e("s_bitcmp1_b64 %s, %s" % (s(S_RDY, 2), s(S_T0)))
    e("s_cbranch_scc0 %s" % L("refresh"))
    mld = ["buffer_load_dwordx4 %s, %s, %s, %s offen sc1" % (v(am(0), 4), v(C_MW), ws, s(S_MB)),
           "buffer_load_dwordx4 %s, %s, %s, %s offen offset:1024 sc1" % (v(am(1), 4), v(C_MW), ws, s(S_MB))]
    deepm = OPT.get("deepm", 0) and not OPT.get("solo")
    e("s_add_u32 %s, %s, 0x%x" % (s(S_MB), s(S_SLAB), MB_IN))
    if deepm:
        for t in mld:
            e(t)
    e("s_add_u32 %s, %s, 0x%x" % (s(S_SLABN), s(S_SLAB), SLAB_ST))
    e("s_add_u32 %s, %s, %s" % (s(S_KX), s(S_SLAB), s(S_KXO)))
    e("s_add_u32 %s, %s, %s" % (s(S_VX), s(S_SLAB), s(S_VXO)))
    for t in mr_addr_ins():
        e(t)
    if deepm and OPT.get("stag2", 1):
        e("s_sleep %d" % OPT.get("stag2", 1))
    T1 = am(2)
    e.label(L("pollm"))
    for t in mld:
        e(t)
    e("s_add_u32 %s, %s, 1" % (s(S_TMO), s(S_TMO)))
    e("s_cmp_gt_u32 %s, %d" % (s(S_TMO), TMO_LIMIT))
    e("s_waitcnt vmcnt(%d)" % (3 if deepm else 1))
    e("v_max3_u32 %s, %s, %s, %s" % (v(T0), v(AM), v(AM + 1), v(AM + 2)))
    e("s_waitcnt vmcnt(%d)" % (2 if deepm else 0))
    e("v_max3_u32 %s, %s, %s, %s" % (v(T1), v(AM + 3), v(AM + 4), v(AM + 5)))
    e("v_max3_u32 %s, %s, %s, %s" % (v(T0), v(T0), v(AM + 6), v(AM + 7)))
    e("v_max_u32 %s, %s, %s" % (v(T0), v(T0), v(T1)))
    e("s_cbranch_scc1 %s" % L("gotm"))
    e("v_cmp_eq_u32 vcc, -1, %s" % v(T0))
    if not OPT.get("solo"):
        e("s_cbranch_vccnz %s" % L("pollm"))
    e.label(L("gotm"))
    stamp(e, 0, stamps)
    if stamps:
        for d_, s_ in ((3, 1), (4, 11), (5, 2)):
            e("s_mov_b32 %s, %s" % (s(S_ST + 2 * d_), s(S_ST + 2 * s_)))
    mw = ["ds_write_b128 %s, %s offset:%d" % (v(C_MW), v(am(k), 4), L_MEMI + 1024 * k) for k in range(2)]
    pst = lambda q: "buffer_store_dwordx2 %s, %s, %s, %s offen offset:%d%s" % (v(ACCQ + 2 * q, 2), v(C_PW), ws, "0" if q < 2 else s(S_4K), (q & 1) * 2048, sc)
    tg = lambda q: "v_and_or_b32 %s, %s, -2, %s" % (v(ACCQ + 2 * q), v(ACCQ + 2 * q), s(S_PAR))
    if OPT.get("comm"):
        e(mw[0]); e(mw[1])
        e("s_waitcnt lgkmcnt(0)")
        e("s_barrier")
        if not OPT.get("nopf"):
            e("buffer_load_dword %s, %s, %s, %s offen sc1" % (v(JUNK), v(C_PF), ws, s(S_SLABN)))
        delay(e, 1024 - 192)
        e("s_barrier")
        for q in range(4):
            e(tg(q))
            e(pst(q))
            if q < 3:
                delay(e, 56)
        e("s_branch %s" % L("stored"))
    kxld = lambda ks: "buffer_load_dwordx4 %s, %s, %s, %s offen offset:%d sc1" % (v(XB + 4 * ks, 4), v(C_L16), ws, s(S_KX), ks * 1024)
    vxld = lambda T: "buffer_load_dwordx4 %s, %s, %s, %s offen offset:%d sc1" % (v(VX + 4 * T, 4), v(C_L16), ws, s(S_VX), T * 1024)
    lg = lambda n: "s_waitcnt lgkmcnt(%d)" % n
    BAR = "s_barrier"
    amrd = lambda u: "ds_read_b128 %s, %s offset:%d" % (v(am(u), 4), v(am(u | 1)), L_MEMI + (u & 1) * 1024)
    q7 = lds_fetch_ins(("Q", 0, 7)) + lds_fetch_ins(("Q", 1, 7))
    k2 = lds_fetch_ins(("K", 0, 2)) + lds_fetch_ins(("K", 1, 2))
    k7 = lds_fetch_ins(("K", 0, 7)) + lds_fetch_ins(("K", 1, 7))
    of = sum([lds_fetch_ins(op) for op in OLDS], [])
    add = lambda b, r: "v_add_f32 %s, %s, %s" % (v(b + r), v(b + r), v(b + r + 2))
    cvt = lambda d, x, y: "v_cvt_pk_bf16_f32 %s, %s, %s" % (v(d), v(x), v(y))
    qbrd = lambda ks: "ds_read_b128 %s, %s offset:%d" % (v(QB + 4 * ks, 4), v(C_QR), 64 * ks)
    KM = XA
    kmrd = lambda ks: "ds_read_b128 %s, %s offset:%d" % (v(KM + 4 * ks, 4), v(C_KR), 64 * ks)
    SX, SM = ACCQ, ACCQ + 4
    ONES, PX, PM, VM0, VM1 = XB, XB + 4, XB + 8, XB + 10, XB + 12
    TA = XB + 14
    LS = SX
    OA = ACCK
    OP = SM
    mf32 = lambda d, A, B, first: "v_mfma_f32_16x16x32_bf16 %s, %s, %s, %s" % (v(d, 4), v(A, 4), v(B, 4), "0" if first else v(d, 4))
    mf16 = lambda d, A, B: "v_mfma_f32_16x16x16_bf16 %s, %s, %s, %s" % (v(d, 4), v(A, 2), v(B, 2), v(d, 4))
    smx = lambda ks: mf32(SX, XB + 4 * ks, QB + 4 * ks, ks == 0)
    smm = lambda ks: mf32(SM, KM + 4 * ks, QB + 4 * ks, ks == 0)
    ex = lambda r: "v_exp_f32 %s, %s" % (v(r), v(r))
    pf = "buffer_load_dword %s, %s, %s, %s offen sc1" % (v(JUNK), v(C_PF), ws, s(S_SLABN))
    hist = "buffer_store_dword %s, %s, %s, %s offen sc1" % (v(HPEND), v(C_MP), ws, s(S_HIST))
    zw = ["v_mov_b64 %s, 0" % v(r, 2) for r in range(AM, AM + 32, 2)]
    V = lambda T, u: S("V", T, u)
    st = lambda i: []
    sched = [
        (S("Q", 0, 0), [mw[0]], []),
        (S("Q", 1, 0), [mw[1]], []),
        (S("Q", 0, 1), [kxld(0)], []),
        (S("Q", 1, 1), [], []),
        (S("K", 0, 0), [kxld(1)], []),
        (S("K", 1, 0), [lg(0), BAR, amrd(2)], []),
        (S("K", 0, 1), [amrd(3)], []),
        (S("K", 1, 1), [amrd(4)], []),
        (V(0, 0), [amrd(5)], []),
        (V(1, 0), [amrd(6), lg(4)], []),
        (S("Q", 0, 2), [amrd(7)], []),
        (S("Q", 1, 2), [kxld(2), lg(4)], []),
        (S("Q", 0, 3), [q7[0]], []),
        (S("Q", 1, 3), [kxld(3), lg(4)], []),
        (S("Q", 0, 4), [q7[1]], []),
        (S("Q", 1, 4), [vxld(0), lg(4)], []),
        (S("Q", 0, 5), [q7[2]], []),
        (S("Q", 1, 5), [q7[3], lg(5)], []),
        (S("Q", 0, 6), [vxld(1)], []),
        (S("Q", 1, 6), [k2[0], lg(1)], []),
        (S("Q", 0, 7), [k2[1]], []),
        (S("Q", 1, 7), [pf], []),
        (S("K", 0, 3), [k2[2]], []),
        (S("K", 1, 3), [k2[3]], []),
        (S("K", 0, 5), [k7[0]], []),
        (S("K", 0, 4), [k7[1]], [add(ACCQ, 0), add(ACCQ, 1)]),
        (S("K", 1, 4), [k7[2]], [add(ACCQ + 4, 0), add(ACCQ + 4, 1)]),
        (S("K", 1, 5), [k7[3], lg(4)], [cvt(ACCQ + 2, ACCQ, ACCQ + 4), cvt(ACCQ + 3, ACCQ + 1, ACCQ + 5)]),
        (S("K", 0, 2), ["ds_write2_b32 %s, %s, %s offset0:0 offset1:%d" % (v(C_QW), v(ACCQ + 2), v(ACCQ + 3), RS)], []),
        (S("K", 1, 2), [], ["v_add_u32 %s, %d, %s" % (v(ACCQ + 7), L_KMX - L_QX, v(C_QW))]),
        (S("K", 0, 6), [], []),
        (S("K", 1, 6), [lg(0), BAR, qbrd(0)], []),
        (S("K", 0, 7), [qbrd(1)], []),
        (S("K", 1, 7), [qbrd(2)], []),
        (V(0, 1), [qbrd(3)], []),
        (V(1, 1), ["s_waitcnt vmcnt(3) lgkmcnt(3)"], []),
        (smx(0), [lg(2)], [add(ACCK, 0), add(ACCK, 1)]),
        (smx(1), [lg(1)], [add(ACCK + 4, 0), add(ACCK + 4, 1)]),
        (smx(2), [lg(0)], [cvt(ACCK + 2, ACCK, ACCK + 4), cvt(ACCK + 3, ACCK + 1, ACCK + 5)]),
        (smx(3), ["ds_write2_b32 %s, %s, %s offset0:0 offset1:%d" % (v(ACCQ + 7), v(ACCK + 2), v(ACCK + 3), RS)], []),
        (V(0, 2), [hist], ["v_mov_b64 %s, %s" % (v(ONES, 2), s(S_ONES, 2))]),
        (V(1, 2), [], ["v_mov_b64 %s, %s" % (v(ONES + 2, 2), s(S_ONES, 2))]),
        (V(0, 3), [], [ex(SX)]),
        (V(1, 3), [lg(0), BAR, kmrd(0)], [ex(SX + 1)]),
        (V(0, 4), [kmrd(1)], [ex(SX + 2)]),
        (V(1, 4), [kmrd(2)], [ex(SX + 3)]),
        (V(0, 5), [kmrd(3)], [cvt(PX, SX, SX + 1), cvt(PX + 1, SX + 2, SX + 3)]),
        (V(1, 5), ["ds_write_b64 %s, %s offset:%d" % (v(C_MW), v(PX, 2), L_PX), lg(4)], []),
        (smm(0), [lg(3)], ["v_mov_b32 %s, 0" % v(PM + 1), "v_mov_b32 %s, 0" % v(VM0 + 1)]),
        (smm(1), [lg(2)], ["v_mov_b32 %s, 0" % v(VM1 + 1), "v_xor_b32 %s, 0x1000, %s" % (v(TA), v(C_MW))]),
        (smm(2), [lg(1)], [zw.pop(0), zw.pop(0)]),
        (smm(3), [], [zw.pop(0), zw.pop(0)]),
        (V(0, 6), [lg(0), BAR, "ds_read_b64 %s, %s offset:%d" % (v(PX + 2, 2), v(TA), L_PX)], [zw.pop(0)]),
        (V(1, 6), [of[0]], [zw.pop(0)]),
        (V(0, 7), [of[1]], ["v_mul_f32 %s, %s, %s" % (v(SM), s(S_SCALE), v(SM)), "v_mul_f32 %s, %s, %s" % (v(SM + 1), s(S_SCALE), v(SM + 1))]),
        (V(1, 7), [of[2], "s_waitcnt vmcnt(2) lgkmcnt(3)"], [ex(SM)]),
        (mf32(LS, ONES, PX, True), [of[3]], [ex(SM + 1)]),
        (mf32(OA, VX, PX, True), [of[4]], [cvt(PM, SM, SM + 1), zw.pop(0)]),
        (mf32(OA + 4, VX + 4, PX, True), [of[5]], [add(ACCV, 0), add(ACCV, 1)]),
        (mf16(LS, ONES, PM), [of[6]], [cvt(VM0, ACCV, ACCV + 1), add(ACCV + 4, 0), add(ACCV + 4, 1)]),
        (mf16(OA, VM0, PM), [of[7]], [cvt(VM1, ACCV + 4, ACCV + 5), zw.pop(0), zw.pop(0)]),
        (mf16(OA + 4, VM1, PM), [], ["v_rcp_f32 %s, %s" % (v(TA), v(LS)), zw.pop(0), zw.pop(0), zw.pop(0), zw.pop(0), zw.pop(0)]),
    ]
    for m_, nv, va in sched:
        e(m_)
        for x in nv + va:
            e(x)
    for r in (0, 4, 2, 6):
        e("v_pk_mul_f32 %s, %s, %s op_sel_hi:[1,0]" % (v(OA + r, 2), v(OA + r, 2), v(TA, 2)))
    for r in range(4):
        e(cvt(OP + r, OA + r, OA + 4 + r))
    e("ds_write_b128 %s, %s" % (v(C_OW), v(OP, 4)))
    e("v_max_f32 %s, %s, %s" % (v(TA), v(TA), v(LS)))
    e("v_cmp_nge_f32 vcc, %s, %s" % (s(S_BIG), v(TA)))
    e("s_cbranch_vccnz %s" % L("safe"))
    e.label(L("rejoin"))
    while zw:
        e(zw.pop(0))
    e("s_waitcnt lgkmcnt(0)")
    e("s_barrier")
    OOP = VX
    WACC = AM
    e("ds_read_b128 %s, %s offset:%d" % (v(OOP, 4), v(C_L16), L_OX))
    e("ds_read_b128 %s, %s offset:%d" % (v(OOP + 4, 4), v(C_L16), L_OX + 1024))
    SO = lambda T, t: smf_ins(WACC + 4 * T, OOP + 4 * t, ("O", T, t))
    SEL = AM + 8
    PD = AM + 12
    RD = AM + 20
    f, z = idle_prep_ins()
    wa = lambda T, r: add(WACC + 4 * T, r)
    wc = lambda q, r: cvt(ACCQ + 2 * q + r, WACC + 8 * q + r, WACC + 8 * q + 4 + r)
    fq = lambda q: [wa(2 * q, 0), wa(2 * q, 1), wa(2 * q + 1, 0), wa(2 * q + 1, 1), wc(q, 0), wc(q, 1), tg(q)]
    e(lg(1))
    order = [(0, 0), (1, 0), (0, 1), (1, 1)] + [(2 * q + k, tt) for q in range(1, 4) for tt in range(2) for k in range(2)]
    nvs = {1: [lg(0)]}
    vas = {}
    for q in range(3):
        x = fq(q)
        b0 = 4 * q + 5
        if q < 2:
            vas[b0] = x[0:2]; vas[b0 + 1] = x[2:4]; vas[b0 + 2] = x[4:6]; vas[b0 + 3] = x[6:7]
            nvs[b0 + 4] = [pst(q)]
        else:
            vas[b0] = x[0:2]; vas[b0 + 1] = x[2:4]; vas[b0 + 2] = x[4:7] + [pst(q)]
    for i, (T, tt) in enumerate(order):
        e(SO(T, tt))
        for x in nvs.get(i, []) + vas.get(i, []):
            e(x)
    for x in fq(3):
        e(x)
    e(pst(3))
    e.label(L("stored"))
    stamp(e, 1, stamps)
    e("ds_read_b128 %s, %s offset:%d" % (v(SEL, 4), v(C_L16), L_SEL))
    nf = OPT.get("nf", 12)
    for x in f[:nf]:
        e(x)
    if OPT.get("zfirst", 1):
        for x in z:
            e(x)
        z = []
    delay(e, OPT.get("dly1", 0))
    for q in range(1, 4):
        e("s_cmp_lt_u32 %s, %d" % (s(S_WAVE), q))
        e("s_cbranch_scc1 %s" % L("poll0"))
        delay(e, OPT.get("slp", 32))
    pld = lambda P: ["buffer_load_dwordx4 %s, %s, %s, %s offen sc1" % (v(P, 4), v(C_MW), ws, s(S_PR)),
                     "buffer_load_dwordx4 %s, %s, %s, %s offen offset:1024 sc1" % (v(P + 4, 4), v(C_MW), ws, s(S_PR))]
    PA, PB_ = VX, AM
    deepp = OPT.get("deepp", 0)
    e.label(L("poll0"))
    for x in pld(PA):
        e(x)
    for x in f[nf:] + z:
        e(x)
    e("s_waitcnt lgkmcnt(0)")
    e.label(L("pollp"))
    for (cur, nxt) in ((PA, PB_), (PB_, PA)):
        if deepp:
            for x in pld(nxt):
                e(x)
        e("s_waitcnt vmcnt(%d)" % (3 if deepp else 1))
        e(mf32(RD, SEL, cur, True))
        e("v_bitop3_b32 %s, %s, %s, %s bitop3:0x7e" % (v(T0), v(cur), v(cur + 2), s(S_PAR)))
        e("s_waitcnt vmcnt(%d)" % (2 if deepp else 0))
        e(mf32(RD, SEL, cur + 4, False))
        e("v_bitop3_b32 %s, %s, %s, %s bitop3:0x7e" % (v(FREE1), v(cur + 4), v(cur + 6), s(S_PAR)))
        e("v_bitop3_b32 %s, %s, %s, 1 bitop3:0xa8" % (v(T0), v(T0), v(FREE1)))
        e("v_cmp_ne_u32 vcc, 0, %s" % v(T0))
        e("s_add_u32 %s, %s, 1" % (s(S_TMO), s(S_TMO)))
        if OPT.get("solo"):
            e("s_branch %s" % L("gotp"))
        e("s_cbranch_vccz %s" % L("gotp"))
        if not deepp:
            for x in pld(nxt):
                e(x)
    e("s_cmp_le_u32 %s, %d" % (s(S_TMO), TMO_LIMIT))
    e("s_cbranch_scc1 %s" % L("pollp"))
    e.label(L("gotp"))
    stamp(e, 11, stamps)
    e("s_mov_b32 %s, %s" % (s(S_SLAB), s(S_SLABN)))
    e("s_add_u32 %s, %s, 0x2000" % (s(S_HIST), s(S_HIST)))
    e("s_add_u32 %s, %s, 1" % (s(S_STEP), s(S_STEP)))
    e("s_xor_b32 %s, %s, 1" % (s(S_PAR), s(S_PAR)))
    for rot in (8, 4):
        for r in (0, 1):
            e("v_add_f32_dpp %s, %s, %s row_ror:%d row_mask:0xf bank_mask:0xf" % (v(RD + r), v(RD + r), v(RD + r), rot))
    e(cvt(HPEND, RD, RD + 1))
    e("buffer_store_dword %s, %s, %s, %s offen%s" % (v(HPEND), v(C_MP), ws, s(S_HIST if OPT.get("solo") else S_SLAB), sc))
    stamp(e, 2, stamps)
    delay(e, OPT.get("dly2", 192))
    e("s_cmp_lt_u32 %s, %d" % (s(S_STEP), nsteps))
    e("s_cbranch_scc1 %s" % L("step"))
    e("buffer_store_dword %s, %s, %s, %s offen sc1" % (v(HPEND), v(C_MP), ws, s(S_HIST)))
    e("s_branch %s" % L("done"))
    e.label(L("refresh"))
    e("v_lshrrev_b32 %s, 2, %s" % (v(T0), v(C_L16)))
    e("s_lshl_b32 %s, %s, 8" % (s(S_T0), s(S_H)))
    e("s_add_u32 %s, %s, 0x%x" % (s(S_T0), s(S_T0), FLAG_OFF))
    e("buffer_load_dword %s, %s, %s, %s offen sc1" % (v(T0), v(T0), ws, s(S_T0)))
    e("s_add_u32 %s, %s, 1" % (s(S_TMO), s(S_TMO)))
    e("s_waitcnt vmcnt(0)")
    e("v_cmp_ne_u32 %s, 0, %s" % (s(S_RDY, 2), v(T0)))
    e("s_nop 3")
    e("s_bitset1_b64 %s, 63" % s(S_RDY, 2))
    e("s_cmp_le_u32 %s, %d" % (s(S_TMO), TMO_LIMIT))
    e("s_cbranch_scc1 %s" % L("step"))
    e("s_mov_b64 %s, -1" % s(S_RDY, 2))
    e("s_branch %s" % L("step"))
    e.label(L("safe"))
    e.fence(12)
    e("s_waitcnt vmcnt(0) lgkmcnt(0)")
    W = AM
    for ks in range(4):
        e("ds_read_b128 %s, %s offset:%d" % (v(QB + 4 * ks, 4), v(C_QR), 64 * ks))
        e("ds_read_b128 %s, %s offset:%d" % (v(XA + 4 * ks, 4), v(C_KR), 64 * ks))
    e("s_xor_b32 %s, %s, 0x1000" % (s(S_T0), s(S_KXO)))
    e("s_add_u32 %s, %s, %s" % (s(S_T0), s(S_T0), s(S_SLAB)))
    for ks in range(4):
        e("buffer_load_dwordx4 %s, %s, %s, %s offen offset:%d sc1" % (v(W + 4 * ks, 4), v(C_L16), ws, s(S_KX), ks * 1024))
        e("buffer_load_dwordx4 %s, %s, %s, %s offen offset:%d sc1" % (v(W + 16 + 4 * ks, 4), v(C_L16), ws, s(S_T0), ks * 1024))
    e("s_waitcnt vmcnt(0) lgkmcnt(0)")
    S0, S1, S2 = ACCQ, ACCQ + 4, ACCK
    for (d, src) in ((S0, W), (S1, W + 16), (S2, XA)):
        for ks in range(4):
            c = "0" if ks == 0 else v(d, 4)
            e("v_mfma_f32_16x16x32_bf16 %s, %s, %s, %s" % (v(d, 4), v(src + 4 * ks, 4), v(QB + 4 * ks, 4), c))
    M0_, M1_ = W, W + 1
    e("v_mul_f32 %s, %s, %s" % (v(S2), s(S_SCALE), v(S2)))
    e("v_mul_f32 %s, %s, %s" % (v(S2 + 1), s(S_SCALE), v(S2 + 1)))
    e("v_max3_f32 %s, %s, %s, %s" % (v(M0_), v(S0), v(S0 + 1), v(S0 + 2)))
    e("v_max3_f32 %s, %s, %s, %s" % (v(M0_), v(M0_), v(S0 + 3), v(S1)))
    e("v_max3_f32 %s, %s, %s, %s" % (v(M0_), v(M0_), v(S1 + 1), v(S1 + 2)))
    e("v_max3_f32 %s, %s, %s, %s" % (v(M0_), v(M0_), v(S1 + 3), v(S2)))
    e("v_max_f32 %s, %s, %s" % (v(M0_), v(M0_), v(S2 + 1)))
    for sw in ("v_permlane16_swap_b32", "v_permlane32_swap_b32"):
        e("v_mov_b32 %s, %s" % (v(M1_), v(M0_)))
        e("%s %s, %s" % (sw, v(M0_), v(M1_)))
        e("v_max_f32 %s, %s, %s" % (v(M0_), v(M0_), v(M1_)))
    for r in [S0 + i for i in range(8)] + [S2, S2 + 1]:
        e("v_sub_f32 %s, %s, %s" % (v(r), v(r), v(M0_)))
        e("v_exp_f32 %s, %s" % (v(r), v(r)))
    for q in range(4):
        e("v_cvt_pk_bf16_f32 %s, %s, %s" % (v(PX + q), v(S0 + 2 * q), v(S0 + 2 * q + 1)))
    e("v_cvt_pk_bf16_f32 %s, %s, %s" % (v(PM), v(S2), v(S2 + 1)))
    e("v_mfma_f32_16x16x32_bf16 %s, %s, %s, 0" % (v(LS, 4), v(ONES, 4), v(PX, 4)))
    e("v_mfma_f32_16x16x32_bf16 %s, %s, %s, 0" % (v(OA, 4), v(VX, 4), v(PX, 4)))
    e("v_mfma_f32_16x16x32_bf16 %s, %s, %s, 0" % (v(OA + 4, 4), v(VX + 4, 4), v(PX, 4)))
    e("v_mfma_f32_16x16x16_bf16 %s, %s, %s, %s" % (v(LS, 4), v(ONES, 2), v(PM, 2), v(LS, 4)))
    e("v_mfma_f32_16x16x16_bf16 %s, %s, %s, %s" % (v(OA, 4), v(VM0, 2), v(PM, 2), v(OA, 4)))
    e("v_mfma_f32_16x16x16_bf16 %s, %s, %s, %s" % (v(OA + 4, 4), v(VM1, 2), v(PM, 2), v(OA + 4, 4)))
    e("v_rcp_f32 %s, %s" % (v(TA), v(LS)))
    for r in range(8):
        e("v_mul_f32 %s, %s, %s" % (v(OA + r), v(OA + r), v(TA)))
    for r in range(4):
        e("v_cvt_pk_bf16_f32 %s, %s, %s" % (v(OP + r), v(OA + r), v(OA + 4 + r)))
    e("ds_write_b128 %s, %s" % (v(C_OW), v(OP, 4)))
    for op in OLDS:
        lds_fetch(e, op)
    for r in range(AM, AM + 32):
        e("v_mov_b32 %s, 0" % v(r))
    e("s_branch %s" % L("rejoin"))
    e.label(L("done"))
```

```python
from asmlib import v, a, s
import chain as C
import worker as W
from chain import srd, f32bits, OOB, S_WS, S_TMO, TMO_LIMIT, S_T0, S_T1, S_H
from tail import cvt, rnd, sigmoid

ACT_ST = 0x3800
ACT2 = 0x1B0000
NT0 = 61 * 32

S_RND = 24
S_K1, S_K2 = 26, 27
S_P1, S_P2 = 28, 29
S_TK = 30
S_RV = 40
S_WA, S_WB = 64, 68
RP = 200
KEY = 232
KT = 240


def load_keys(e, tag, idxs):
    ws = s(S_WS, 4)
    e("v_lshlrev_b32 v3, 4, v0")
    L = "L_%s_rp" % tag
    e.label(L)
    for i in idxs:
        e("s_mov_b32 %s, 0x%x" % (s(S_T0), W.RVAL + i * 4096))
        e("buffer_load_dwordx4 %s, v3, %s, %s offen sc1" % (v(RP + 4 * i, 4), ws, s(S_T0)))
    e("s_add_u32 %s, %s, 1" % (s(S_TMO), s(S_TMO)))
    e("v_mov_b32 v5, 0")
    e("s_waitcnt vmcnt(0)")
    for i in idxs:
        e("v_max3_u32 v5, v5, %s, %s" % (v(RP + 4 * i), v(RP + 4 * i + 1)))
        e("v_max3_u32 v5, v5, %s, %s" % (v(RP + 4 * i + 2), v(RP + 4 * i + 3)))
    if idxs == [7]:
        e("s_mul_i32 %s, %s, %d" % (s(S_T1), s(S_RND), 2048 - NT0))
        e("s_add_u32 %s, %s, %d" % (s(S_T1), s(S_T1), NT0 - 1792))
        e("v_cmp_gt_u32 %s, %s, v0" % (s(74, 2), s(S_T1)))
        e("v_cndmask_b32 v5, 0, v5, %s" % s(74, 2))
    e("s_cmp_gt_u32 %s, %d" % (s(S_TMO), TMO_LIMIT))
    e("s_cbranch_scc1 %s_ok" % L)
    e("v_cmp_eq_u32 vcc, -1, v5")
    e("s_cbranch_vccz %s_ok" % L)
    e("s_sleep 2")
    e("s_branch %s" % L)
    e.label(L + "_ok")
    for i in idxs:
        b = RP + 4 * i
        e("v_add_f32 %s, %s, %s" % (v(b), v(b), v(b + 1)))
        e("v_add_f32 %s, %s, %s" % (v(b + 2), v(b + 2), v(b + 3)))
        e("v_add_f32 %s, %s, %s" % (v(b), v(b), v(b + 2)))
        rnd(e, b, 5)
        e("v_ashrrev_i32 v5, 31, %s" % v(b))
        e("v_or_b32 v5, 0x80000000, v5")
        e("v_xor_b32 v5, v5, %s" % v(b))
        e("v_and_b32 v5, 0xffff0000, v5")
        e("v_sub_u32 v6, %d, v0" % (2047 - 256 * i))
        e("v_or_b32 %s, v5, v6" % v(KEY + i))
    if idxs == [7]:
        e("v_cndmask_b32 %s, 0, %s, %s" % (v(KEY + 7), v(KEY + 7), s(74, 2)))


def top2(e):
    for i in range(8):
        e("v_mov_b32 %s, %s" % (v(KT + i), v(KEY + i)))
    e("v_lshrrev_b32 v7, 6, v0")
    e("v_lshlrev_b32 v7, 2, v7")
    e("v_mov_b32 v8, 0")
    e("s_barrier")
    for p in range(2):
        e("v_max3_u32 v5, %s, %s, %s" % (v(KT), v(KT + 1), v(KT + 2)))
        e("v_max3_u32 v5, v5, %s, %s" % (v(KT + 3), v(KT + 4)))
        e("v_max3_u32 v5, v5, %s, %s" % (v(KT + 5), v(KT + 6)))
        e("v_max_u32 v5, v5, %s" % v(KT + 7))
        for ctrl in ("quad_perm:[1,0,3,2]", "quad_perm:[2,3,0,1]", "row_half_mirror", "row_mirror"):
            e("v_max_u32_dpp v5, v5, v5 %s row_mask:0xf bank_mask:0xf" % ctrl)
        for sw in ("v_permlane16_swap_b32", "v_permlane32_swap_b32"):
            e("v_mov_b32 v6, v5")
            e("%s v5, v6" % sw)
            e("v_max_u32 v5, v5, v6")
        e("ds_write_b32 v7, v5 offset:%d" % (16 * p))
        e("s_waitcnt lgkmcnt(0)")
        e("s_barrier")
        e("ds_read_b128 v[248:251], v8 offset:%d" % (16 * p))
        e("s_waitcnt lgkmcnt(0)")
        e("v_max3_u32 v5, v248, v249, v250")
        e("v_max_u32 v5, v5, v251")
        e("v_readfirstlane_b32 %s, v5" % s(S_K1 + p))
        if p == 0:
            for i in range(8):
                e("v_cmp_ne_u32 vcc, v5, %s" % v(KT + i))
                e("v_cndmask_b32 %s, 0, %s, vcc" % (v(KT + i), v(KT + i)))
    e("s_nop 3")
    for p in range(2):
        e("s_and_b32 %s, %s, 0x7ff" % (s(S_T0), s(S_K1 + p)))
        e("s_sub_u32 %s, 2047, %s" % (s(S_TK + p), s(S_T0)))
        e("s_and_b32 %s, %s, 0xffff0000" % (s(S_T0), s(S_K1 + p)))
        e("s_xor_b32 %s, %s, 0x80000000" % (s(S_T1), s(S_T0)))
        e("s_xor_b32 %s, %s, 0xffff0000" % (s(S_RV + p), s(S_T0)))
        e("s_bitcmp1_b32 %s, 31" % s(S_T0))
        e("s_cselect_b32 %s, %s, %s" % (s(S_RV + p), s(S_T1), s(S_RV + p)))


def same_as_prev(e, target):
    e("s_cmp_eq_u64 %s, %s" % (s(S_K1, 2), s(S_P1, 2)))
    e("s_cbranch_scc1 %s" % target)
    e("s_mov_b64 %s, %s" % (s(S_P1, 2), s(S_K1, 2)))


def stage_a(e, PG, PU, S_ROLE):
    ws = s(S_WS, 4)
    srd(e, S_WA, PG, 512 * 1792 * 2)
    srd(e, S_WB, PU, 512 * 1792 * 2)
    e("v_lshrrev_b32 v1, 4, v0")
    e("v_and_b32 v2, 15, v0")
    e("s_mov_b32 %s, %d" % (s(S_T0), 32 * 3584))
    e("v_mul_lo_u32 v4, v1, %s" % s(S_T0))
    e("v_lshl_add_u32 v4, v2, 2, v4")
    e("s_lshl_b32 %s, %s, 6" % (s(S_T1), s(S_ROLE)))
    GW, UW = 16, 48
    for half in range(2):
        for j in range(16 * half, 16 * half + 16):
            e("s_add_u32 %s, %s, %d" % (s(S_T0), s(S_T1), j * 3584))
            e("buffer_load_dword %s, v4, %s, %s offen" % (v(GW + j), s(S_WA, 4), s(S_T0)))
            e("buffer_load_dword %s, v4, %s, %s offen" % (v(UW + j), s(S_WB, 4), s(S_T0)))
        if half == 0:
            e("s_waitcnt vmcnt(16)")
    e("s_waitcnt vmcnt(0)")
    PW = 80
    for m, wb in ((0, GW), (1, UW)):
        for c in range(2):
            for jp in range(16):
                e("v_perm_b32 %s, %s, %s, %s" % (v(PW + (m * 2 + c) * 16 + jp), v(wb + 2 * jp + 1), v(wb + 2 * jp), s(C.S_PHI if c else C.S_PLO)))
    e("s_mov_b32 %s, 0" % s(S_RND))
    e("s_mov_b64 %s, 0" % s(S_P1, 2))
    load_keys(e, "A0", list(range(7)))
    e.label("L_A_round")
    load_keys(e, "A1", [7])
    top2(e)
    same_as_prev(e, "L_end")
    XS = 16
    e("v_lshlrev_b32 v3, 6, v1")
    for p in range(2):
        e("s_lshl_b32 %s, %s, 10" % (s(S_T0), s(S_TK + p)))
        e("s_add_u32 %s, %s, 0x%x" % (s(S_T0), s(S_T0), W.XN2))
        for q in range(4):
            e("buffer_load_dwordx4 %s, v3, %s, %s offen offset:%d sc1" % (v(XS + 16 * p + 4 * q, 4), ws, s(S_T0), 16 * q))
    AC = 48
    for r in range(8):
        e("v_mov_b32 %s, 0" % v(AC + r))
    e("s_waitcnt vmcnt(0)")
    for jp in range(16):
        for m in range(2):
            for p in range(2):
                for c in range(2):
                    d = AC + 4 * m + 2 * p + c
                    e("v_dot2_f32_bf16 %s, %s, %s, %s" % (v(d), v(XS + 16 * p + jp), v(PW + (m * 2 + c) * 16 + jp), v(d)))
    e("s_nop 3")
    for sw in ("v_permlane16_swap_b32", "v_permlane32_swap_b32"):
        for r in range(AC, AC + 8):
            e("v_mov_b32 v5, %s" % v(r))
            e("%s %s, v5" % (sw, v(r)))
            e("v_add_f32 %s, %s, v5" % (v(r), v(r)))
    e("v_lshrrev_b32 v7, 6, v0")
    e("v_lshlrev_b32 v7, 9, v7")
    e("v_lshl_add_u32 v7, v2, 5, v7")
    e("ds_write_b128 v7, %s offset:64" % v(AC, 4))
    e("ds_write_b128 v7, %s offset:80" % v(AC + 4, 4))
    e("s_waitcnt lgkmcnt(0)")
    e("s_barrier")
    e("v_bfe_u32 v7, v0, 2, 4")
    e("v_lshlrev_b32 v7, 5, v7")
    e("v_and_b32 v8, 3, v0")
    e("v_lshl_add_u32 v7, v8, 2, v7")
    for w in range(4):
        e("ds_read_b32 %s, v7 offset:%d" % (v(56 + 2 * w), 64 + 512 * w))
        e("ds_read_b32 %s, v7 offset:%d" % (v(57 + 2 * w), 80 + 512 * w))
    e("s_waitcnt lgkmcnt(0)")
    for k in range(2):
        e("v_add_f32 %s, %s, %s" % (v(56 + k), v(56 + k), v(58 + k)))
        e("v_add_f32 %s, %s, %s" % (v(60 + k), v(60 + k), v(62 + k)))
        e("v_add_f32 %s, %s, %s" % (v(56 + k), v(56 + k), v(60 + k)))
        rnd(e, 56 + k, 5)
    sigmoid(e, 58, 56)
    e("v_mul_f32 v56, v56, v58")
    rnd(e, 56, 5)
    e("v_mul_f32 v56, v56, v57")
    rnd(e, 56, 5)
    e("v_lshrrev_b32 v7, 2, v0")
    e("v_lshlrev_b32 v7, 3, v7")
    e("v_and_b32 v8, 1, v0")
    e("v_lshl_add_u32 v7, v8, 2, v7")
    e("v_bfe_u32 v8, v0, 1, 1")
    e("v_mul_u32_u24 v8, %d, v8" % (1792 * 4))
    e("v_add_u32 v7, v7, v8")
    e("v_mov_b32 v6, 0x%x" % OOB)
    e("v_cmp_lt_u32 vcc, 63, v0")
    e("v_cndmask_b32 v7, v7, v6, vcc")
    e("s_mul_i32 %s, %s, %d" % (s(S_T0), s(S_RND), ACT_ST))
    e("s_lshl_b32 %s, %s, 7" % (s(S_T1), s(S_ROLE)))
    e("s_add_u32 %s, %s, %s" % (s(S_T0), s(S_T0), s(S_T1)))
    e("s_add_u32 %s, %s, 0x%x" % (s(S_T0), s(S_T0), ACT2))
    e("buffer_store_dword v56, v7, %s, %s offen sc1" % (ws, s(S_T0)))
    e("s_add_u32 %s, %s, 1" % (s(S_RND), s(S_RND)))
    e("s_cmp_lt_u32 %s, 2" % s(S_RND))
    e("s_cbranch_scc1 L_A_round")
    e("s_branch L_end")


def stage_b(e, PD, S_ROLE):
    ws = s(S_WS, 4)
    srd(e, S_WA, PD, 1792 * 512 * 2)
    e("v_lshrrev_b32 v1, 3, v0")
    e("v_and_b32 v2, 7, v0")
    e("v_mul_u32_u24 v4, %d, v1" % (56 * 1024))
    e("v_lshl_add_u32 v4, v2, 2, v4")
    e("s_lshl_b32 %s, %s, 5" % (s(S_WB), s(S_ROLE)))
    DW = 16
    for j in range(56):
        e("s_add_u32 %s, %s, %d" % (s(S_T0), s(S_WB), (j & ~3) * 1024))
        e("buffer_load_dword %s, v4, %s, %s offen offset:%d" % (v(DW + j), s(S_WA, 4), s(S_T0), (j & 3) * 1024))
    e("s_waitcnt vmcnt(0)")
    e("s_mov_b32 %s, 0" % s(S_RND))
    e("s_mov_b64 %s, 0" % s(S_P1, 2))
    e("v_mov_b32 v12, 0x%x" % OOB)
    e("v_mov_b32 v11, 0")
    load_keys(e, "B0", list(range(7)))
    e.label("L_B_round")
    load_keys(e, "B1", [7])
    top2(e)
    same_as_prev(e, "L_B_store")
    e("v_bfe_u32 v9, v0, 3, 1")
    e("v_cmp_ne_u32 vcc, 0, v9")
    e("v_mov_b32 v5, %s" % s(S_TK)); e("v_mov_b32 v6, %s" % s(S_TK + 1))
    e("v_cndmask_b32 v12, v5, v6, vcc")
    e("v_mov_b32 v5, %s" % s(S_RV)); e("v_mov_b32 v6, %s" % s(S_RV + 1))
    e("v_cndmask_b32 v13, v5, v6, vcc")
    e("v_lshlrev_b32 v12, 10, v12")
    e("v_lshl_add_u32 v12, v2, 2, v12")
    e("v_add_u32 v12, %s, v12" % s(S_WB))
    e("v_mov_b32 v7, 0x%x" % OOB)
    e("v_cmp_lt_u32 vcc, 15, v0")
    e("v_cndmask_b32 v12, v12, v7, vcc")
    e("s_mov_b32 %s, 0x%x" % (s(S_T0), W.HROW))
    e("s_mov_b32 %s, 0x%x" % (s(S_T1), W.XN2))
    e("buffer_load_dword v14, v12, %s, %s offen sc1" % (ws, s(S_T0)))
    e("buffer_load_dword v15, v12, %s, %s offen sc1" % (ws, s(S_T1)))
    AS = 72
    e("v_mul_u32_u24 v3, %d, v1" % (56 * 4))
    e("s_mul_i32 %s, %s, %d" % (s(S_T0), s(S_RND), ACT_ST))
    e("s_add_u32 %s, %s, 0x%x" % (s(S_T0), s(S_T0), ACT2))
    e("s_add_u32 %s, %s, %d" % (s(S_T1), s(S_T0), 1792 * 4))
    e.label("L_B_poll")
    for p in range(2):
        for q in range(14):
            e("buffer_load_dwordx4 %s, v3, %s, %s offen offset:%d sc1" % (v(AS + 56 * p + 4 * q, 4), ws, s((S_T0, S_T1)[p]), 16 * q))
    e("s_add_u32 %s, %s, 1" % (s(S_TMO), s(S_TMO)))
    e("s_cmp_gt_u32 %s, %d" % (s(S_TMO), TMO_LIMIT))
    e("v_mov_b32 v5, 0")
    e("s_waitcnt vmcnt(0)")
    for r in range(AS, AS + 112, 2):
        e("v_max3_u32 v5, v5, %s, %s" % (v(r), v(r + 1)))
    e("s_cbranch_scc1 L_B_got")
    e("v_cmp_eq_u32 vcc, -1, v5")
    e("s_cbranch_vccnz L_B_poll")
    e.label("L_B_got")
    AC = 184
    for r in range(4):
        e("v_mov_b32 %s, 0" % v(AC + r))
    for j in range(56):
        e("v_lshlrev_b32 v5, 16, %s" % v(DW + j))
        e("v_and_b32 v7, 0xffff0000, %s" % v(DW + j))
        for p in range(2):
            e("v_fmac_f32 %s, %s, v5" % (v(AC + 2 * p), v(AS + 56 * p + j)))
            e("v_fmac_f32 %s, %s, v7" % (v(AC + 2 * p + 1), v(AS + 56 * p + j)))
    from tail import red_hi3
    red_hi3(e, range(AC, AC + 4), 5)
    e("v_lshrrev_b32 v7, 6, v0")
    e("v_lshlrev_b32 v7, 7, v7")
    e("v_lshl_add_u32 v7, v2, 4, v7")
    e("ds_write_b128 v7, %s offset:64" % v(AC, 4))
    e("s_waitcnt lgkmcnt(0)")
    e("s_barrier")
    e("v_lshlrev_b32 v7, 4, v2")
    e("v_lshl_add_u32 v7, v9, 3, v7")
    Y = 188
    for w in range(4):
        e("ds_read_b64 %s, v7 offset:%d" % (v(Y + 2 * w, 2), 64 + 128 * w))
    sigmoid(e, 10, 13)
    rnd(e, 10, 5)
    e("s_waitcnt lgkmcnt(0)")
    e("v_lshlrev_b32 v196, 16, v15"); e("v_and_b32 v197, 0xffff0000, v15")
    e("v_lshlrev_b32 v198, 16, v14"); e("v_and_b32 v199, 0xffff0000, v14")
    for k in range(2):
        e("v_add_f32 %s, %s, %s" % (v(Y + k), v(Y + k), v(Y + 2 + k)))
        e("v_add_f32 %s, %s, %s" % (v(Y + 4 + k), v(Y + 4 + k), v(Y + 6 + k)))
        e("v_add_f32 %s, %s, %s" % (v(Y + k), v(Y + k), v(Y + 4 + k)))
        rnd(e, Y + k, 5)
        e("v_mul_f32 %s, %s, v10" % (v(Y + k), v(Y + k)))
        rnd(e, Y + k, 5)
        e("v_add_f32 %s, %s, %s" % (v(Y + k), v(Y + k), v(196 + k)))
        rnd(e, Y + k, 5)
        e("v_add_f32 %s, %s, %s" % (v(Y + k), v(Y + k), v(198 + k)))
    e(cvt(11, Y, Y + 1))
    e("s_add_u32 %s, %s, 1" % (s(S_RND), s(S_RND)))
    e("s_cmp_lt_u32 %s, 2" % s(S_RND))
    e("s_cbranch_scc1 L_B_round")
    e.label("L_B_store")
    e("buffer_store_dword v11, v12, %s, 0 offen sc1" % s(W.S_OUT, 4))
    e("s_branch L_end")
```

```python
from asmlib import v, a, s
import chain as C
from chain import lin, srd, f32bits, S_WS, S_DBG, S_H, S_WAVE, S_TMO, S_SCALE, S_PLO, S_PHI, S_T0, S_T1, S_T2, TMO_LIMIT, OOB

FLAGKV = C.FLAG_OFF
FLAGTP = C.FLAG_OFF + 0x2000
RVAL = C.FLAG_OFF + 0x4000
ACT = C.FLAG_OFF + 0xC000
HROW = 0x400000
XN2 = 0x600000
TP_OFF = 0x4000000
Q_DELTA = 0x8000000 - C.SLAB_OFF

X_T = 0
EX_Q = 0
EX_K = 8192
EX_KM = 16384
MEMI = 20480
EX_O = 0
RED = 28672
L_WO = 32768

S_X = 12
S_OUT = 60
S_WR = 92
S_R = 22
S_SEG = 23
S_A, S_B = 24, 25
S_M0 = 64
S_MM = 72
S_ONES = C.S_ONES

W_L16, W_MW, W_XG, W_XW, W_XR0, W_XR1, W_WO, W_MR, W_EX, W_TPW, W_TPR, W_ROW, W_NEG, T0, T1 = range(1, 16)
assert T0 == C.T0
R0 = 16


def wreg(m, T, ks):
    idx = ("QKV".index(m) * 32 + ks * 2 + T) * 4
    return a(idx, 4) if idx < 256 else v(128 + idx - 256, 4)


def mf32(d, A, B, first):
    return "v_mfma_f32_16x16x32_bf16 %s, %s, %s, %s" % (v(d, 4), A, B, "0" if first else v(d, 4))


def cvt(d, x, y):
    return "v_cvt_pk_bf16_f32 %s, %s, %s" % (v(d), v(x), v(y))


def setup(e, P):
    e("s_and_b32 %s, s2, 7" % s(S_T0))
    e("s_sub_u32 %s, %s, 1" % (s(S_T0), s(S_T0)))
    e("s_lshl_b32 %s, %s, 5" % (s(S_T0), s(S_T0)))
    e("s_lshr_b32 %s, s2, 3" % s(S_T1))
    e("s_add_u32 %s, %s, %s" % (s(S_T0), s(S_T0), s(S_T1)))
    e("s_mul_i32 %s, %s, 9363" % (s(S_H), s(S_T0)))
    e("s_lshr_b32 %s, %s, 16" % (s(S_H), s(S_H)))
    e("s_mul_i32 %s, %s, 7" % (s(S_T1), s(S_H)))
    e("s_sub_u32 %s, %s, %s" % (s(S_R), s(S_T0), s(S_T1)))
    lin(e, W_L16, {k: 16 << k for k in range(6)})
    lin(e, W_MW, {**{k: 16 << k for k in range(6)}, 6: 2048, 7: 4096})
    lin(e, W_EX, {**{k: 16 << k for k in range(6)}, 6: 1024, 7: 2048})
    lin(e, W_WO, {**{k: 16 << k for k in range(6)}, 6: 32768, 7: 65536}, L_WO)
    lin(e, W_XG, {0: 16, 1: 32, 2: 64, 3: 1024, 4: 2048, 5: 4096, 6: 8192, 7: 16384})
    lin(e, W_XW, {0: 256, 1: 512, 2: 1024, 6: 128, 7: 16384})
    e("v_lshrrev_b32 %s, 3, v0" % v(T1))
    e("v_xor_b32 %s, %s, v0" % (v(T1), v(T1)))
    e("v_and_b32 %s, 7, %s" % (v(T1), v(T1)))
    e("v_lshl_add_u32 %s, %s, 4, %s" % (v(W_XW), v(T1), v(W_XW)))
    e("v_bfe_u32 %s, v0, 4, 2" % v(T1))
    e("v_lshlrev_b32 %s, 4, %s" % (v(T1), v(T1)))
    e("v_xor_b32 %s, %s, %s" % (v(W_XR0), v(T1), v(W_L16)))
    e("v_xor_b32 %s, 64, %s" % (v(W_XR1), v(W_XR0)))
    lin(e, W_MR, {0: 16, 1: 64, 2: 128, 4: 32, 5: 256}, MEMI)
    lin(e, W_TPW, {0: 16, 1: 32, 2: 64, 3: 128, 4: 4 * 32768, 5: 8 * 32768, 6: 256, 7: 512})
    lin(e, W_TPR, {0: 16, 1: 32, 2: 64, 3: 128, 4: 1024, 5: 2048, 6: 256, 7: 512})
    lin(e, W_ROW, {0: 16, 1: 32, 2: 64, 3: 128, 4: 4, 5: 8, 6: 256, 7: 512})
    e("v_mov_b32 %s, 0x%x" % (v(W_NEG), f32bits(-1e30)))
    e("v_and_b32 %s, 15, v0" % v(T0))
    e("v_bfe_u32 %s, v0, 4, 2" % v(T1))
    e("v_cmp_gt_u32 %s, 2, %s" % (s(S_MM, 2), v(T1)))
    e("v_lshlrev_b32 %s, 2, %s" % (v(T1), v(T1)))
    for r in range(4):
        e("v_cmp_le_u32 %s, %s, %s" % (s(S_M0 + 2 * r, 2), v(T1), v(T0)))
        e("v_add_u32 %s, 1, %s" % (v(T1), v(T1)))
    e("s_mov_b32 %s, 0x05040100" % s(S_PLO))
    e("s_mov_b32 %s, 0x07060302" % s(S_PHI))
    e("s_mov_b32 %s, 0x%x" % (s(S_SCALE), f32bits(128 ** -0.5 * 1.4426950408889634)))
    e("s_mov_b32 %s, 0" % s(S_TMO))
    e("s_mov_b32 %s, 0x3f803f80" % s(S_ONES))
    e("s_mov_b32 %s, 0x3f803f80" % s(S_ONES + 1))


def load_w(e, P, mats):
    VOFF = T1
    RING = R0
    lin(e, VOFF, {0: 4, 1: 8, 2: 16, 3: 32, 4: 8 * 8192, 5: 16 * 8192, 6: 64, 7: 128})
    ptr = {"Q": P + 4, "K": P + 6, "V": P + 8}
    SRDS = {"Q": 96, "K": 40, "V": 76}
    for m in mats:
        srd(e, SRDS[m], ptr[m], 512 * 4096 * 2)
    groups = [(m, kp) for kp in range(8) for m in mats]
    e("s_lshl_b32 %s, %s, 8" % (s(S_T0), s(S_H)))
    TMP = R0 + 64

    def issue(gi):
        m, kp = groups[gi]
        base = RING + (gi % 4) * 16
        for kk in range(2):
            for j in range(8):
                e("s_add_u32 %s, %s, 0x%x" % (s(S_T1), s(S_T0), (32 * (2 * kp + kk) + j) * 8192))
                e("buffer_load_dword %s, %s, %s, %s offen" % (v(base + kk * 8 + j), v(VOFF), s(SRDS[m], 4), s(S_T1)))

    def consume(gi):
        m, kp = groups[gi]
        base = RING + (gi % 4) * 16
        for kk in range(2):
            ks = 2 * kp + kk
            for T in range(2):
                idx = ("QKV".index(m) * 32 + ks * 2 + T) * 4
                for jj in range(4):
                    x0, x1 = base + kk * 8 + 2 * jj, base + kk * 8 + 2 * jj + 1
                    sel = s(S_PHI if T else S_PLO)
                    if idx < 256:
                        e("v_perm_b32 %s, %s, %s, %s" % (v(TMP + jj), v(x1), v(x0), sel))
                        e("v_accvgpr_write_b32 %s, %s" % (a(idx + jj), v(TMP + jj)))
                    else:
                        e("v_perm_b32 %s, %s, %s, %s" % (v(128 + idx - 256 + jj), v(x1), v(x0), sel))
    n = len(groups)
    for gi in range(3):
        issue(gi)
    for gi in range(n):
        e("s_waitcnt vmcnt(%d)" % (min(n - 1 - gi, 2) * 16))
        if gi + 3 < n:
            issue(gi + 3)
        consume(gi)


def load_wo(e, P):
    VOFF = T1
    srd(e, 96, P + 10, 4096 * 512 * 2)
    lin(e, VOFF, {0: 16, 1: 32, 2: 64, 3: 128, 4: 8 * 1024, 5: 16 * 1024, 6: 256, 7: 512})
    e("s_lshl_b32 %s, %s, 17" % (s(S_T0), s(S_H)))
    TMP = 112

    def issue(ks):
        base = R0 + (ks % 3) * 32
        for j in range(8):
            e("s_add_u32 %s, %s, 0x%x" % (s(S_T1), s(S_T0), (32 * ks + j) * 1024))
            e("buffer_load_dwordx4 %s, %s, %s, %s offen" % (v(base + 4 * j, 4), v(VOFF), s(96, 4), s(S_T1)))

    def consume(ks):
        base = R0 + (ks % 3) * 32
        for T in range(8):
            t = TMP + (T % 4) * 4
            if T == 4:
                e("s_waitcnt lgkmcnt(0)")
            for jj in range(4):
                e("v_perm_b32 %s, %s, %s, %s" % (v(t + jj), v(base + 4 * (2 * jj + 1) + (T >> 1)), v(base + 4 * (2 * jj) + (T >> 1)), s(S_PHI if T & 1 else S_PLO)))
            e("ds_write_b128 %s, %s offset:%d" % (v(W_WO), v(t, 4), (ks * 8 + T) * 1024))
        e("s_waitcnt lgkmcnt(0)")
    for ks in range(3):
        issue(ks)
    e("s_waitcnt vmcnt(16)")
    consume(0)
    issue(3)
    e("s_waitcnt vmcnt(16)")
    consume(1)
    e("s_waitcnt vmcnt(8)")
    consume(2)
    e("s_waitcnt vmcnt(0)")
    consume(3)


def dpp_add(e, r, ctrl):
    e("v_add_f32_dpp %s, %s, %s %s row_mask:0xf bank_mask:0xf" % (v(r), v(r), v(r), ctrl))


def wave_sum(e, regs, tmp):
    for ctrl in ("quad_perm:[1,0,3,2]", "quad_perm:[2,3,0,1]", "row_half_mirror", "row_mirror"):
        for r in regs:
            dpp_add(e, r, ctrl)
    for sw in ("v_permlane16_swap_b32", "v_permlane32_swap_b32"):
        for r in regs:
            e("v_mov_b32 %s, %s" % (v(tmp), v(r)))
            e("%s %s, %s" % (sw, v(r), v(tmp)))
            e("v_add_f32 %s, %s, %s" % (v(r), v(r), v(tmp)))


XR = R0 + 80


def x_issue(e, sseg):
    e("s_lshl_b32 %s, %s, 15" % (s(S_T0), s(sseg)))
    for i in range(8):
        e("buffer_load_dwordx4 %s, %s, %s, %s offen offset:%d" % (v(XR + 4 * i, 4), v(W_XG), s(S_X, 4), s(S_T0), i * 128))


def x_norm(e):
    SU, SQ, LO, HI = R0, R0 + 1, R0 + 2, R0 + 3
    lo = lambda d, x: e("v_lshlrev_b32 %s, 16, %s" % (v(d), v(x)))
    hi = lambda d, x: e("v_and_b32 %s, 0xffff0000, %s" % (v(d), v(x)))
    e("v_mov_b32 %s, 0" % v(SU))
    e("v_mov_b32 %s, 0" % v(SQ))
    for r in range(XR, XR + 32):
        e("v_dot2_f32_bf16 %s, %s, %s, %s" % (v(SU), v(r), s(S_ONES), v(SU)))
        e("v_dot2_f32_bf16 %s, %s, %s, %s" % (v(SQ), v(r), v(r), v(SQ)))
    e("s_nop 3")
    for ctrl in ("quad_perm:[1,0,3,2]", "quad_perm:[2,3,0,1]", "row_half_mirror"):
        dpp_add(e, SU, ctrl)
        dpp_add(e, SQ, ctrl)
    e("v_mul_f32 %s, 0x%x, %s" % (v(SU), f32bits(1 / 512), v(SU)))
    e("v_mul_f32 %s, 0x%x, %s" % (v(SQ), f32bits(1 / 512), v(SQ)))
    e("v_fma_f32 %s, -%s, %s, %s" % (v(SQ), v(SU), v(SU), v(SQ)))
    e("v_max_f32 %s, 0, %s" % (v(SQ), v(SQ)))
    e(cvt(T0, SU, SQ))
    lo(SU, T0); hi(SQ, T0)
    e("v_add_f32 %s, 0x%x, %s" % (v(SQ), f32bits(1e-5), v(SQ)))
    e(cvt(T0, SQ, SQ)); lo(SQ, T0)
    e("v_sqrt_f32 %s, %s" % (v(SQ), v(SQ)))
    e(cvt(T0, SQ, SQ)); lo(SQ, T0)
    e("v_rcp_f32 %s, %s" % (v(SQ), v(SQ)))
    for i in range(8):
        for q in range(4):
            r = XR + 4 * i + q
            lo(LO, r); hi(HI, r)
            e("v_sub_f32 %s, %s, %s" % (v(LO), v(LO), v(SU)))
            e("v_sub_f32 %s, %s, %s" % (v(HI), v(HI), v(SU)))
            e(cvt(r, LO, HI))
            lo(LO, r); hi(HI, r)
            e("v_mul_f32 %s, %s, %s" % (v(LO), v(LO), v(SQ)))
            e("v_mul_f32 %s, %s, %s" % (v(HI), v(HI), v(SQ)))
            e(cvt(r, LO, HI))
        e("ds_write_b128 %s, %s offset:%d" % (v(W_XW), v(XR + 4 * i, 4), X_T + i * 2048))


AQ, AK, AV = R0, R0 + 16, R0 + 32
XO = R0 + 48


def project(e, mats, r0, r1):
    def rd(ks):
        b = XO + (ks & 1) * 8
        for kap in range(2):
            e("ds_read_b128 %s, %s offset:%d" % (v(b + 4 * kap, 4), v((r1 if ks & 1 else r0)[kap]), X_T + ks * 1024))
    rd(0)
    for ks in range(16):
        if ks + 1 < 16:
            rd(ks + 1)
            e("s_waitcnt lgkmcnt(2)")
        else:
            e("s_waitcnt lgkmcnt(0)")
        b = XO + (ks & 1) * 8
        for m in mats:
            for T in range(2):
                for kap in range(2):
                    x = v(b + 4 * kap, 4)
                    if m == "V":
                        e(mf32(AV + 8 * kap + 4 * T, x, wreg(m, T, ks), ks == 0))
                    else:
                        e(mf32((AQ if m == "Q" else AK) + 8 * T + 4 * kap, wreg(m, T, ks), x, ks == 0))


def pack_qk(e, acc, dst, scale):
    if scale:
        for r in range(16):
            e("v_mul_f32 %s, %s, %s" % (v(acc + r), s(S_SCALE), v(acc + r)))
    for kap in range(2):
        for r in range(4):
            e(cvt(dst + 4 * kap + r, acc + 4 * kap + r, acc + 8 + 4 * kap + r))


def pack_v(e, dst):
    for T in range(2):
        for kap in range(2):
            for q in range(2):
                e(cvt(dst + 4 * T + 2 * kap + q, AV + 8 * kap + 4 * T + 2 * q, AV + 8 * kap + 4 * T + 2 * q + 1))


def signal(e, soff):
    e("s_waitcnt vmcnt(0)")
    e("s_barrier")
    flag_store(e, soff)


def wait_handshake(e):
    e("v_lshrrev_b32 %s, 2, %s" % (v(T1), v(W_L16)))
    e("v_and_b32 %s, 127, %s" % (v(T1), v(T1)))
    e.label("L_WHS")
    e("buffer_load_dword %s, %s, %s, 0 offen sc1" % (v(T0), v(T1), s(S_DBG, 4)))
    e("s_add_u32 %s, %s, 1" % (s(S_TMO), s(S_TMO)))
    e("s_cmp_gt_u32 %s, %d" % (s(S_TMO), TMO_LIMIT))
    e("s_cbranch_scc1 L_WHS_done")
    e("s_waitcnt vmcnt(0)")
    e("v_cmp_eq_u32 vcc, 0, %s" % v(T0))
    e("s_cbranch_vccnz L_WHS")
    e.label("L_WHS_done")


def flag_store(e, soff):
    e("v_cmp_ne_u32 vcc, 0, v0")
    e("v_mov_b32 %s, 0x%x" % (v(T1), OOB))
    e("v_mov_b32 %s, 1" % v(T0))
    e("v_cndmask_b32 %s, v0, %s, vcc" % (v(T1), v(T1)))
    e("buffer_store_dword %s, %s, %s, %s offen sc1" % (v(T0), v(T1), s(S_WS, 4), s(soff)))


def phase1(e):
    ws = s(S_WS, 4)
    A0 = R0 + 64
    e("s_lshr_b32 %s, %s, 1" % (s(S_T0), s(S_WAVE)))
    e("s_lshl_b32 %s, %s, 14" % (s(S_T0), s(S_T0)))
    e("s_xor_b32 %s, %s, 16384" % (s(S_T1), s(S_T0)))
    e("v_add_u32 %s, %s, %s" % (v(A0), s(S_T0), v(W_XR0)))
    e("v_add_u32 %s, %s, %s" % (v(A0 + 1), s(S_T1), v(W_XR0)))
    e("v_add_u32 %s, %s, %s" % (v(A0 + 2), s(S_T0), v(W_XR1)))
    e("v_add_u32 %s, %s, %s" % (v(A0 + 3), s(S_T1), v(W_XR1)))
    e("s_mov_b32 %s, 0x%x" % (s(S_B), OOB))
    e.label("L_P1")
    e("s_waitcnt vmcnt(6)")
    x_norm(e)
    e("s_waitcnt vmcnt(0) lgkmcnt(0)")
    e("s_barrier")
    flag_store(e, S_B)
    e("s_add_u32 %s, %s, 7" % (s(S_A), s(S_SEG)))
    e("s_min_u32 %s, %s, 63" % (s(S_A), s(S_A)))
    x_issue(e, S_A)
    project(e, "KVQ", (A0, A0 + 1), (A0 + 2, A0 + 3))
    e("s_barrier")
    KP, VP, QP = XO, XO + 8, R0 + 68
    pack_qk(e, AK, KP, True)
    pack_v(e, VP)
    pack_qk(e, AQ, QP, False)
    e("s_mul_i32 %s, %s, 0x%x" % (s(S_A), s(S_SEG), C.SLAB_ST))
    e("s_lshl_b32 %s, %s, 14" % (s(S_T0), s(S_H)))
    e("s_add_u32 %s, %s, %s" % (s(S_A), s(S_A), s(S_T0)))
    e("s_add_u32 %s, %s, 0x%x" % (s(S_A), s(S_A), C.SLAB_OFF))
    e("s_lshr_b32 %s, %s, 1" % (s(S_T0), s(S_WAVE)))
    e("s_lshl_b32 %s, %s, 12" % (s(S_T0), s(S_T0)))
    e("s_xor_b32 %s, %s, 4096" % (s(S_T1), s(S_T0)))
    e("s_add_u32 %s, %s, %s" % (s(S_T0), s(S_T0), s(S_A)))
    e("s_add_u32 %s, %s, %s" % (s(S_T1), s(S_T1), s(S_A)))
    e("buffer_store_dwordx4 %s, %s, %s, %s offen sc1" % (v(KP, 4), v(W_EX), ws, s(S_T0)))
    e("buffer_store_dwordx4 %s, %s, %s, %s offen sc1" % (v(KP + 4, 4), v(W_EX), ws, s(S_T1)))
    e("s_add_u32 %s, %s, 8192" % (s(S_A), s(S_A)))
    e("buffer_store_dwordx4 %s, %s, %s, %s offen sc1" % (v(VP, 4), v(W_MW), ws, s(S_A)))
    e("buffer_store_dwordx4 %s, %s, %s, %s offen offset:1024 sc1" % (v(VP + 4, 4), v(W_MW), ws, s(S_A)))
    e("s_add_u32 %s, %s, 0x%x" % (s(S_T0), s(S_T0), Q_DELTA))
    e("s_add_u32 %s, %s, 0x%x" % (s(S_T1), s(S_T1), Q_DELTA))
    e("buffer_store_dwordx4 %s, %s, %s, %s offen sc1" % (v(QP, 4), v(W_EX), ws, s(S_T0)))
    e("buffer_store_dwordx4 %s, %s, %s, %s offen sc1" % (v(QP + 4, 4), v(W_EX), ws, s(S_T1)))
    e("s_lshl_b32 %s, %s, 8" % (s(S_B), s(S_H)))
    e("s_lshl_b32 %s, %s, 2" % (s(S_T0), s(S_SEG)))
    e("s_add_u32 %s, %s, %s" % (s(S_B), s(S_B), s(S_T0)))
    e("s_add_u32 %s, %s, 0x%x" % (s(S_B), s(S_B), FLAGKV))
    e("s_add_u32 %s, %s, 7" % (s(S_SEG), s(S_SEG)))
    e("s_cmp_lt_u32 %s, 64" % s(S_SEG))
    e("s_cbranch_scc1 L_P1")
    signal(e, S_B)


def phase2(e):
    ws = s(S_WS, 4)
    e("s_mov_b32 %s, %s" % (s(S_SEG), s(S_R)))
    e.label("L_P2")
    QO, KO, VP = R0, R0 + 32, R0 + 104
    e("s_mul_i32 %s, %s, 0x%x" % (s(S_A), s(S_SEG), C.SLAB_ST))
    e("s_lshl_b32 %s, %s, 14" % (s(S_T0), s(S_H)))
    e("s_add_u32 %s, %s, %s" % (s(S_A), s(S_A), s(S_T0)))
    e("s_add_u32 %s, %s, 0x%x" % (s(S_A), s(S_A), C.SLAB_OFF))
    for kap in range(2):
        e("s_add_u32 %s, %s, %d" % (s(S_T0), s(S_A), kap * 4096))
        e("s_add_u32 %s, %s, 0x%x" % (s(S_T1), s(S_T0), Q_DELTA))
        for ks in range(4):
            e("buffer_load_dwordx4 %s, %s, %s, %s offen offset:%d sc1" % (v(KO + 16 * kap + 4 * ks, 4), v(W_L16), ws, s(S_T0), ks * 1024))
            e("buffer_load_dwordx4 %s, %s, %s, %s offen offset:%d sc1" % (v(QO + 16 * kap + 4 * ks, 4), v(W_L16), ws, s(S_T1), ks * 1024))
    e("s_add_u32 %s, %s, 8192" % (s(S_A), s(S_A)))
    e("buffer_load_dwordx4 %s, %s, %s, %s offen sc1" % (v(VP, 4), v(W_MW), ws, s(S_A)))
    e("buffer_load_dwordx4 %s, %s, %s, %s offen offset:1024 sc1" % (v(VP + 4, 4), v(W_MW), ws, s(S_A)))
    e("s_waitcnt vmcnt(0)")
    e("s_cmp_lt_u32 %s, 2" % s(S_WAVE))
    e("s_cbranch_scc1 L_P2_noswap")
    for T in range(2):
        for q in range(2):
            e("v_swap_b32 %s, %s" % (v(VP + 4 * T + q), v(VP + 4 * T + 2 + q)))
    e.label("L_P2_noswap")
    e("s_nop 1")
    S00, S01, S11, SM0, SM1 = R0 + 64, R0 + 68, R0 + 72, R0 + 76, R0 + 80
    for (d, kk, kq) in ((S00, 0, 0), (S01, 0, 1), (S11, 1, 1)):
        for ks in range(4):
            e(mf32(d, v(KO + 16 * kk + 4 * ks, 4), v(QO + 16 * kq + 4 * ks, 4), ks == 0))
    MB = KO
    e("s_lshl_b32 %s, %s, 13" % (s(S_A), s(S_SEG)))
    e("s_add_u32 %s, %s, 0x%x" % (s(S_A), s(S_A), C.HIST_OFF))
    e.label("L_P2_poll")
    e("buffer_load_dwordx4 %s, %s, %s, %s offen sc1" % (v(MB, 4), v(W_MW), ws, s(S_A)))
    e("buffer_load_dwordx4 %s, %s, %s, %s offen offset:1024 sc1" % (v(MB + 4, 4), v(W_MW), ws, s(S_A)))
    e("s_add_u32 %s, %s, 1" % (s(S_TMO), s(S_TMO)))
    e("s_cmp_gt_u32 %s, %d" % (s(S_TMO), TMO_LIMIT))
    e("s_waitcnt vmcnt(0)")
    e("v_max3_u32 %s, %s, %s, %s" % (v(T0), v(MB), v(MB + 1), v(MB + 2)))
    e("v_max3_u32 %s, %s, %s, %s" % (v(T1), v(MB + 3), v(MB + 4), v(MB + 5)))
    e("v_max3_u32 %s, %s, %s, %s" % (v(T0), v(T0), v(MB + 6), v(MB + 7)))
    e("v_max_u32 %s, %s, %s" % (v(T0), v(T0), v(T1)))
    e("s_cbranch_scc1 L_P2_got")
    e("v_cmp_eq_u32 vcc, -1, %s" % v(T0))
    e("s_cbranch_vccz L_P2_got")
    e("s_sleep 4")
    e("s_branch L_P2_poll")
    e.label("L_P2_got")
    e("ds_write_b128 %s, %s offset:%d" % (v(W_MW), v(MB, 4), MEMI))
    e("ds_write_b128 %s, %s offset:%d" % (v(W_MW), v(MB + 4, 4), MEMI + 1024))
    e("s_waitcnt lgkmcnt(0)")
    e("s_barrier")
    AKM, AVM = R0 + 84, R0 + 92
    MO = KO
    moff = lambda ks: ((ks & 3) * 128 + ((ks >> 2) & 1) * 32 + (ks >> 3) * 64) * 16
    rdm = lambda ks: e("ds_read_b128 %s, %s offset:%d" % (v(MO + 4 * (ks % 8), 4), v(W_MR), moff(ks)))
    for ks in range(4):
        rdm(ks)
    for ks in range(16):
        if ks + 4 < 16:
            rdm(ks + 4)
        e("s_waitcnt lgkmcnt(%d)" % min(4, 15 - ks))
        x = v(MO + 4 * (ks % 8), 4)
        for T in range(2):
            e(mf32(AKM + 4 * T, wreg("K", T, ks), x, ks == 0))
        for T in range(2):
            e(mf32(AVM + 4 * T, x, wreg("V", T, ks), ks == 0))
    KMP = KO
    for r in range(8):
        e("v_mul_f32 %s, %s, %s" % (v(AKM + r), s(S_SCALE), v(AKM + r)))
    for r in range(4):
        e(cvt(KMP + r, AKM + r, AKM + 4 + r))
    e("ds_write_b128 %s, %s offset:%d" % (v(W_EX), v(KMP, 4), EX_KM))
    VMP = R0 + 100
    for T in range(2):
        e(cvt(VMP + 2 * T, AVM + 4 * T, AVM + 4 * T + 1))
        e(cvt(VMP + 2 * T + 1, AVM + 4 * T + 2, AVM + 4 * T + 3))
    e("s_waitcnt lgkmcnt(0)")
    e("s_barrier")
    KMO = KO + 16
    for ks in range(4):
        e("ds_read_b128 %s, %s offset:%d" % (v(KMO + 4 * ks, 4), v(W_L16), EX_KM + ks * 1024))
    for S_ in (S00, S11):
        for r in range(4):
            e("v_cndmask_b32 %s, %s, %s, %s" % (v(S_ + r), v(W_NEG), v(S_ + r), s(S_M0 + 2 * r, 2)))
    e("s_waitcnt lgkmcnt(0)")
    for (d, kq) in ((SM0, 0), (SM1, 1)):
        for ks in range(4):
            e(mf32(d, v(KMO + 4 * ks, 4), v(QO + 16 * kq + 4 * ks, 4), ks == 0))
    for S_ in (SM0, SM1):
        for r in range(4):
            e("v_cndmask_b32 %s, %s, %s, %s" % (v(S_ + r), v(W_NEG), v(S_ + r), s(S_MM, 2)))
    MX0, MX1 = KO, KO + 1
    g0 = [S00 + r for r in range(4)] + [SM0 + r for r in range(4)]
    g1 = [S01 + r for r in range(4)] + [S11 + r for r in range(4)] + [SM1 + r for r in range(4)]
    for mx, g_ in ((MX0, g0), (MX1, g1)):
        e("v_max_f32 %s, %s, %s" % (v(mx), v(g_[0]), v(g_[1])))
        for i in range(2, len(g_), 2):
            e("v_max3_f32 %s, %s, %s, %s" % (v(mx), v(mx), v(g_[i]), v(g_[i + 1])))
    for sw in ("v_permlane16_swap_b32", "v_permlane32_swap_b32"):
        for mx in (MX0, MX1):
            e("v_mov_b32 %s, %s" % (v(T0), v(mx)))
            e("%s %s, %s" % (sw, v(mx), v(T0)))
            e("v_max_f32 %s, %s, %s" % (v(mx), v(mx), v(T0)))
    for mx, g_ in ((MX0, g0), (MX1, g1)):
        for r in g_:
            e("v_sub_f32 %s, %s, %s" % (v(r), v(r), v(mx)))
            e("v_exp_f32 %s, %s" % (v(r), v(r)))
    P0, P1, PM0, PM1, ONES = R0, R0 + 4, R0 + 8, R0 + 10, R0 + 12
    e(cvt(P0, S00, S00 + 1)); e(cvt(P0 + 1, S00 + 2, S00 + 3))
    e("v_mov_b64 %s, 0" % v(P0 + 2, 2))
    e(cvt(P1, S01, S01 + 1)); e(cvt(P1 + 1, S01 + 2, S01 + 3))
    e(cvt(P1 + 2, S11, S11 + 1)); e(cvt(P1 + 3, S11 + 2, S11 + 3))
    for pm, S_ in ((PM0, SM0), (PM1, SM1)):
        e(cvt(pm, S_, S_ + 1)); e(cvt(pm + 1, S_ + 2, S_ + 3))
    e("v_mov_b64 %s, %s" % (v(ONES, 2), s(S_ONES, 2)))
    e("v_mov_b64 %s, %s" % (v(ONES + 2, 2), s(S_ONES, 2)))
    LS, OA = R0 + 16, R0 + 24
    for kq, P_ in ((0, P0), (1, P1)):
        e(mf32(LS + 4 * kq, v(ONES, 4), v(P_, 4), True))
        for T in range(2):
            e(mf32(OA + 8 * kq + 4 * T, v(VP + 4 * T, 4), v(P_, 4), True))
    for kq, PM_ in ((0, PM0), (1, PM1)):
        e("v_mfma_f32_16x16x16_bf16 %s, %s, %s, %s" % (v(LS + 4 * kq, 4), v(ONES, 2), v(PM_, 2), v(LS + 4 * kq, 4)))
        for T in range(2):
            d = OA + 8 * kq + 4 * T
            e("v_mfma_f32_16x16x16_bf16 %s, %s, %s, %s" % (v(d, 4), v(VMP + 2 * T, 2), v(PM_, 2), v(d, 4)))
    OP = R0 + 40
    for kq in range(2):
        e("v_rcp_f32 %s, %s" % (v(T0), v(LS + 4 * kq)))
        for r in range(8):
            e("v_mul_f32 %s, %s, %s" % (v(OA + 8 * kq + r), v(OA + 8 * kq + r), v(T0)))
        for r in range(4):
            e(cvt(OP + 4 * kq + r, OA + 8 * kq + r, OA + 8 * kq + 4 + r))
        e("ds_write_b128 %s, %s offset:%d" % (v(W_EX), v(OP + 4 * kq, 4), EX_O + kq * 4096))
    e("s_waitcnt lgkmcnt(0)")
    e("s_barrier")
    OO = R0
    WB = R0 + 32
    WA = R0 + 48
    for kq in range(2):
        for ks in range(4):
            e("ds_read_b128 %s, %s offset:%d" % (v(OO + 16 * kq + 4 * ks, 4), v(W_L16), EX_O + kq * 4096 + ks * 1024))
    seq = [(ks, T) for ks in range(4) for T in range(8)]
    rdw = lambda i: e("ds_read_b128 %s, %s offset:%d" % (v(WB + 4 * (i % 4), 4), v(W_WO), (seq[i][0] * 8 + seq[i][1]) * 1024))
    for i in range(3):
        rdw(i)
    for i, (ks, T) in enumerate(seq):
        if i + 3 < 32:
            rdw(i + 3)
        e("s_waitcnt lgkmcnt(%d)" % min(3, 31 - i))
        for kq in range(2):
            e(mf32(WA + 32 * kq + 4 * T, v(OO + 16 * kq + 4 * ks, 4), v(WB + 4 * (i % 4), 4), ks == 0))
    e("s_lshl_b32 %s, %s, 20" % (s(S_A), s(S_SEG)))
    e("s_lshl_b32 %s, %s, 10" % (s(S_T0), s(S_H)))
    e("s_add_u32 %s, %s, %s" % (s(S_A), s(S_A), s(S_T0)))
    e("s_add_u32 %s, %s, 0x%x" % (s(S_A), s(S_A), TP_OFF))
    for kq in range(2):
        for r in range(4):
            d = OO + (4 * kq + r) * 4
            for q in range(4):
                e(cvt(d + q, WA + 32 * kq + 8 * q + r, WA + 32 * kq + 8 * q + 4 + r))
            e("s_add_u32 %s, %s, 0x%x" % (s(S_T0), s(S_A), (16 * kq + r) * 32768))
            e("buffer_store_dwordx4 %s, %s, %s, %s offen sc1" % (v(d, 4), v(W_TPW), ws, s(S_T0)))
    e("s_lshl_b32 %s, %s, 7" % (s(S_B), s(S_SEG)))
    e("s_add_u32 %s, %s, 0x%x" % (s(S_B), s(S_B), FLAGTP))
    e("s_lshl_b32 %s, %s, 2" % (s(S_T0), s(S_H)))
    e("s_add_u32 %s, %s, %s" % (s(S_A), s(S_B), s(S_T0)))
    signal(e, S_A)
    SEL, XV, WRV = R0 + 32, R0 + 36, R0 + 37
    e("v_and_b32 %s, 15, v0" % v(T1))
    for q in range(4):
        e("v_mov_b32 %s, 0" % v(SEL + q))
        e("v_mov_b32 %s, 0x3f80" % v(T0))
        e("v_cmp_eq_u32 vcc, %d, %s" % (4 * q, v(T1)))
        e("v_cndmask_b32 %s, %s, %s, vcc" % (v(SEL + q), v(SEL + q), v(T0)))
        e("v_mov_b32 %s, 0x3f800000" % v(T0))
        e("v_cmp_eq_u32 vcc, %d, %s" % (4 * q + 1, v(T1)))
        e("v_cndmask_b32 %s, %s, %s, vcc" % (v(SEL + q), v(SEL + q), v(T0)))
    e("s_lshl_b32 %s, %s, 5" % (s(S_A), s(S_SEG)))
    e("s_add_u32 %s, %s, %s" % (s(S_A), s(S_A), s(S_H)))
    e("s_lshl_b32 %s, %s, 10" % (s(S_A), s(S_A)))
    e("buffer_load_dword %s, %s, %s, %s offen" % (v(XV), v(W_ROW), s(S_X, 4), s(S_A)))
    e("buffer_load_dword %s, %s, %s, 0 offen" % (v(WRV), v(W_ROW), s(S_WR, 4)))
    e("v_lshrrev_b32 %s, 2, %s" % (v(T1), v(W_L16)))
    e("v_and_b32 %s, 127, %s" % (v(T1), v(T1)))
    e.label("L_P3_poll")
    e("buffer_load_dword %s, %s, %s, %s offen sc1" % (v(T0), v(T1), ws, s(S_B)))
    e("s_add_u32 %s, %s, 1" % (s(S_TMO), s(S_TMO)))
    e("s_cmp_gt_u32 %s, %d" % (s(S_TMO), TMO_LIMIT))
    e("s_waitcnt vmcnt(0)")
    e("s_cbranch_scc1 L_P3_got")
    e("v_cmp_eq_u32 vcc, 0, %s" % v(T0))
    e("s_cbranch_vccnz L_P3_poll")
    e.label("L_P3_got")
    e("s_lshl_b32 %s, %s, 5" % (s(S_T0), s(S_A)))
    e("s_add_u32 %s, %s, 0x%x" % (s(S_T0), s(S_T0), TP_OFF))
    PD = R0
    for u in range(8):
        e("buffer_load_dwordx4 %s, %s, %s, %s offen sc1" % (v(PD + 4 * u, 4), v(W_TPR), ws, s(S_T0)))
        if u < 7:
            e("s_add_u32 %s, %s, 4096" % (s(S_T0), s(S_T0)))
    RD = R0 + 40
    for u in range(8):
        e("s_waitcnt vmcnt(%d)" % (7 - u))
        e(mf32(RD, v(SEL, 4), v(PD + 4 * u, 4), u == 0))
    H0, H1, HP, SU, SQ, A_, B_, XP = range(R0 + 44, R0 + 52)
    lo = lambda d, x: e("v_lshlrev_b32 %s, 16, %s" % (v(d), v(x)))
    hi = lambda d, x: e("v_and_b32 %s, 0xffff0000, %s" % (v(d), v(x)))
    e(cvt(HP, RD, RD + 1))
    lo(A_, HP); hi(B_, HP)
    lo(H0, XV); hi(H1, XV)
    e("v_add_f32 %s, %s, %s" % (v(H0), v(H0), v(A_)))
    e("v_add_f32 %s, %s, %s" % (v(H1), v(H1), v(B_)))
    e(cvt(HP, H0, H1))
    lo(H0, HP); hi(H1, HP)
    e("v_add_f32 %s, %s, %s" % (v(SU), v(H0), v(H1)))
    e("v_mul_f32 %s, %s, %s" % (v(SQ), v(H0), v(H0)))
    e("v_fmac_f32 %s, %s, %s" % (v(SQ), v(H1), v(H1)))
    wave_sum(e, [SU, SQ], T0)
    e("v_mov_b32 %s, %s" % (v(T1), s(S_WAVE)))
    e("v_lshlrev_b32 %s, 3, %s" % (v(T1), v(T1)))
    e("v_add_u32 %s, %d, %s" % (v(T1), RED, v(T1)))
    e("ds_write2_b32 %s, %s, %s offset0:0 offset1:1" % (v(T1), v(SU), v(SQ)))
    e("s_add_u32 %s, %s, 0x%x" % (s(S_T0), s(S_A), HROW))
    e("buffer_store_dword %s, %s, %s, %s offen sc1" % (v(HP), v(W_ROW), ws, s(S_T0)))
    e("s_waitcnt lgkmcnt(0)")
    e("s_barrier")
    RR = R0 + 52
    e("v_mov_b32 %s, %d" % (v(T1), RED))
    e("ds_read_b128 %s, %s" % (v(RR, 4), v(T1)))
    e("ds_read_b128 %s, %s offset:16" % (v(RR + 4, 4), v(T1)))
    e("s_waitcnt lgkmcnt(0)")
    for k, d in ((0, SU), (1, SQ)):
        e("v_add_f32 %s, %s, %s" % (v(d), v(RR + k), v(RR + 2 + k)))
        e("v_add_f32 %s, %s, %s" % (v(d), v(d), v(RR + 4 + k)))
        e("v_add_f32 %s, %s, %s" % (v(d), v(d), v(RR + 6 + k)))
        e("v_mul_f32 %s, 0x%x, %s" % (v(d), f32bits(1 / 512), v(d)))
    e("v_fma_f32 %s, -%s, %s, %s" % (v(SQ), v(SU), v(SU), v(SQ)))
    e("v_max_f32 %s, 0, %s" % (v(SQ), v(SQ)))
    e(cvt(T0, SU, SQ))
    lo(SU, T0); hi(SQ, T0)
    e("v_add_f32 %s, 0x%x, %s" % (v(SQ), f32bits(1e-5), v(SQ)))
    e(cvt(T0, SQ, SQ)); lo(SQ, T0)
    e("v_sqrt_f32 %s, %s" % (v(SQ), v(SQ)))
    e(cvt(T0, SQ, SQ)); lo(SQ, T0)
    e("v_rcp_f32 %s, %s" % (v(SQ), v(SQ)))
    e("v_sub_f32 %s, %s, %s" % (v(A_), v(H0), v(SU)))
    e("v_sub_f32 %s, %s, %s" % (v(B_), v(H1), v(SU)))
    e(cvt(T0, A_, B_)); lo(A_, T0); hi(B_, T0)
    e("v_mul_f32 %s, %s, %s" % (v(A_), v(A_), v(SQ)))
    e("v_mul_f32 %s, %s, %s" % (v(B_), v(B_), v(SQ)))
    e(cvt(XP, A_, B_))
    lo(A_, XP); hi(B_, XP)
    e("s_add_u32 %s, %s, 0x%x" % (s(S_T0), s(S_A), XN2))
    e("buffer_store_dword %s, %s, %s, %s offen sc1" % (v(XP), v(W_ROW), ws, s(S_T0)))
    e("v_add_f32 %s, %s, %s" % (v(H0), v(H0), v(A_)))
    e("v_add_f32 %s, %s, %s" % (v(H1), v(H1), v(B_)))
    e(cvt(HP, H0, H1))
    e("buffer_store_dword %s, %s, %s, %s offen sc1" % (v(HP), v(W_ROW), s(S_OUT, 4), s(S_A)))
    lo(H0, WRV); hi(H1, WRV)
    e("v_mul_f32 %s, %s, %s" % (v(SU), v(A_), v(H0)))
    e("v_fmac_f32 %s, %s, %s" % (v(SU), v(B_), v(H1)))
    wave_sum(e, [SU], T0)
    e("s_lshr_b32 %s, %s, 6" % (s(S_T0), s(S_A)))
    e("s_lshl_b32 %s, %s, 2" % (s(S_T1), s(S_WAVE)))
    e("s_add_u32 %s, %s, %s" % (s(S_T0), s(S_T0), s(S_T1)))
    e("s_add_u32 %s, %s, 0x%x" % (s(S_T0), s(S_T0), RVAL))
    e("v_cmp_ne_u32 vcc, 0, %s" % v(W_L16))
    e("v_mov_b32 %s, 0x%x" % (v(T1), OOB))
    e("v_cndmask_b32 %s, %s, %s, vcc" % (v(T1), v(W_L16), v(T1)))
    e("s_waitcnt vmcnt(0)")
    e("buffer_store_dword %s, %s, %s, %s offen sc1" % (v(SU), v(T1), ws, s(S_T0)))
    e("s_barrier")
    e("s_add_u32 %s, %s, 7" % (s(S_SEG), s(S_SEG)))
    e("s_cmp_lt_u32 %s, 64" % s(S_SEG))
    e("s_cbranch_scc1 L_P2")
```

```python
import sys
from asmlib import Emitter, v, a, s
import chain as C
for a_ in sys.argv:
    if a_.startswith('opt:'):
        k_, v_ = a_[4:].split('=')
        C.OPT[k_] = int(v_, 0) if v_[:1].isdigit() else v_.replace('_', ' ')
import worker as W
import tail2 as T2

BASE = "sequential_preLN__memory_aug_recurrent_mem_tr__moe_arch_mod__prompt"
K1 = BASE + "_kernel"
K2 = "route_up_kernel"
K3 = "down_kernel"
hdr = open("/code/%s.s.ref" % BASE).read().split("\n")
hdr = [l for l in hdr[:hdr.index(next(l for l in hdr if "@launch" in l and l.startswith("; @launch")))] if "harness parses" not in l.lower() and "Override launch" not in l]
e = Emitter()
for l in hdr:
    e.raw(l)
if C.OPT.get("list"):
    e.raw("; @launch kernel=%s grid=(256,1,1) block=(256,1,1) lds=%d" % (K1, C.LDS_BYTES))
else:
    e.raw("; @launch grid=(256,1,1) block=(256,1,1) lds=%d" % C.LDS_BYTES)
e.raw('.amdgcn_target "amdgcn-amd-amdhsa--gfx950"')
e.raw(".text")


def start(name):
    e.raw(".globl %s\n.p2align 8\n.type %s,@function" % (name, name))
    e.label(name)
    e.hist = []


PROF = C.OPT.get("prof", 0)


def rt(i):
    if not PROF:
        return
    e("s_memrealtime s[100:101]")
    e("s_lshl_b32 s3, s2, 6")
    e("s_add_u32 s3, s3, 0x%x" % C.STAMP_OFF)
    e("s_waitcnt lgkmcnt(0)")
    e("v_mov_b32 v14, s100")
    e("v_mov_b32 v15, 0")
    e("buffer_store_dword v14, v15, %s, s3 offen offset:%d" % (s(C.S_WS, 4), 4 * i))
    e("s_waitcnt vmcnt(0)")


start(K1)
P = C.S_PTR
e("s_cmp_ge_u32 s2, 256")
e("s_cbranch_scc1 L_end")
e("s_load_dwordx8 %s, s[0:1], 0" % s(P, 8))
e("s_load_dwordx4 %s, s[0:1], 32" % s(P + 8, 4))
e("s_load_dwordx4 %s, s[0:1], 104" % s(P + 12, 4))
e("s_load_dwordx2 s[80:81], s[0:1], 64")
e("s_load_dwordx2 s[82:83], s[0:1], 96")
e("s_load_dwordx4 s[84:87], s[0:1], 72")
e("s_load_dwordx2 s[88:89], s[0:1], 88")
e("v_lshrrev_b32 v1, 6, v0")
e("v_readfirstlane_b32 %s, v1" % s(C.S_WAVE))
e("s_waitcnt lgkmcnt(0)")
C.srd(e, C.S_WS, P + 14, C.WS_BYTES)
C.srd(e, C.S_DBG, P + 12, 256)
rt(0)
e("s_and_b32 s3, s2, 7")
e("s_cmp_lg_u32 s3, 0")
e("s_cbranch_scc1 L_worker")
e("s_lshr_b32 %s, s2, 3" % s(C.S_H))
C.setup_consts(e)
C.init_buffers(e, P + 2)
C.load_weights(e, P + 4, P + 6, P + 8, P + 10)
C.setup_pf(e)
rt(1)
C.handshake_wait(e, "L_fast_start", "L_slow_start")
C.main_loop(e, "fast", "", 63)
rt(2)
e("s_branch L_end")
C.main_loop(e, "slow", " sc1", 63)
e("s_branch L_end")
e.label("L_worker")
C.srd(e, W.S_X, P, 2048 * 512 * 2)
C.srd(e, W.S_OUT, 82, 2048 * 512 * 2)
C.srd(e, W.S_WR, 80, 1024)
W.setup(e, P)
e("s_mov_b32 %s, %s" % (s(W.S_SEG), s(W.S_R)))
W.x_issue(e, W.S_SEG)
W.load_w(e, P, "KVQ")
rt(1)
W.wait_handshake(e)
W.phase1(e)
rt(2)
W.load_wo(e, P)
rt(3)
W.phase2(e)
rt(4)
e("s_cmp_eq_u32 %s, 3" % s(W.S_R))
e("s_cbranch_scc1 L_stageB")
e("s_sub_u32 s25, %s, 1" % s(W.S_R))
e("s_cmp_ge_u32 s25, 2")
e("s_cbranch_scc1 L_end")
e("s_cmp_ge_u32 %s, 28" % s(C.S_H))
e("s_cbranch_scc1 L_end")
e("s_lshl_b32 s3, %s, 1" % s(C.S_H))
e("s_add_u32 s25, s25, s3")
T2.stage_a(e, 84, 86, 25)
e.label("L_stageB")
T2.stage_b(e, 88, C.S_H)
e.label("L_end")
if PROF:
    e("s_cmp_ge_u32 s2, 256")
    e("s_cbranch_scc1 L_end2")
    rt(5)
    e.label("L_end2")
e("s_endpgm")
e.raw('.section .rodata,"a"')
for name, nv, acc in ((K1, 512, 256),):
    e.raw(""".p2align 6
.amdhsa_kernel %s
  .amdhsa_next_free_vgpr %d
  .amdhsa_next_free_sgpr 102
  .amdhsa_accum_offset %d
  .amdhsa_group_segment_fixed_size 0
  .amdhsa_kernarg_size 120
  .amdhsa_user_sgpr_count 2
  .amdhsa_user_sgpr_kernarg_segment_ptr 1
  .amdhsa_system_sgpr_workgroup_id_x 1
.end_amdhsa_kernel""" % (name, nv, acc))
out = sys.argv[1] if len(sys.argv) > 1 and not sys.argv[1].startswith("opt:") else "/code/%s.s" % BASE
open(out, "w").write(e.text())
print("nops inserted:", e.nops_inserted, "lines:", len(e.lines), "->", out)
```

```python
from asmlib import Emitter, v, a, s
import struct

WS_BYTES = 0x10000000
PB_OFF = 0x0000000
PB_SZ = 0x40000
HIST_OFF = 0x0100000
FLAG_OFF = 0x0190000
STAMP_OFF = 0x01A0000
SLAB_OFF = 0x1000000
SLAB_ST = 0x82000
MB_IN = 0x80000
OOB = 0x40000000

L_MEMI = 0
L_PX = 8192
RS = 72
L_QX = 16384
L_KMX = L_QX + 2304
L_OX = L_KMX + 2304
L_SEL = L_OX + 2048
L_WL = 32768
LDS_BYTES = 163840

S_WS = 8
S_W = 12
S_DBG = 16
S_H = 20
S_WAVE = 21
S_STEP = 22
S_SLAB = 23
S_SLABN = 24
S_KXO = 25
S_KX = 29
S_VX = 30
S_HIST = 31
S_TMO = 32
S_SCALE = 33
S_PLO = 34
S_PHI = 35
S_T0 = 36
S_T1 = 37
S_T2 = 38
S_VXO = 39
S_BIG = 40
S_PR = 6
S_MB = 7
S_4K = 26
S_PAR = 27
S_RDY = 62
S_ONES = 4
S_PTR = 44
S_ST = 64

C_PF = 0
C_IDX, C_MW, C_L16, C_WL, C_QW, C_QR, C_KR, C_OW, C_PW, C_MP, FREE1, HPEND, HPEND1, T0, JUNK = range(1, 16)
AM = 16
ACCQ = 48
ACCK = 56
ACCV = 64
QB = 72
XA = 88
XB = 104
VX = 120
VW = 128

TMO_LIMIT = 200000
OPT = {}


def f32bits(x):
    return struct.unpack("<I", struct.pack("<f", x))[0]


def lin(e, dst, coefs, const=0, tmp=T0, src=0):
    e("v_mov_b32 %s, 0x%x" % (v(dst), const))
    for k, c in sorted(coefs.items()):
        if c == 0:
            continue
        assert c < (1 << 24)
        e("v_bfe_u32 %s, %s, %d, 1" % (v(tmp), v(src), k))
        e("s_mov_b32 %s, 0x%x" % (s(S_T2), c))
        e("v_mad_u32_u24 %s, %s, %s, %s" % (v(dst), v(tmp), s(S_T2), v(dst)))


def srd(e, d, ptr, nbytes):
    e("s_mov_b32 %s, %s" % (s(d), s(ptr)))
    e("s_and_b32 %s, %s, 0xffff" % (s(d + 1), s(ptr + 1)))
    e("s_mov_b32 %s, 0x%x" % (s(d + 2), nbytes))
    e("s_mov_b32 %s, 0x20000" % s(d + 3))


LDS_OPS = {
    ("Q", 0, 0): XB + 0, ("Q", 1, 0): XB + 8, ("Q", 0, 1): XA + 0, ("Q", 1, 1): XA + 8,
    ("K", 0, 0): QB + 0, ("K", 1, 0): QB + 8,
    ("Q", 0, 7): XA + 0, ("Q", 1, 7): XA + 8,
    ("K", 0, 2): QB + 0, ("K", 1, 2): QB + 8,
    ("K", 0, 7): XA + 0, ("K", 1, 7): XA + 8,
    ("O", 0, 0): XA + 0, ("O", 1, 0): XA + 8, ("O", 0, 1): QB + 0, ("O", 1, 1): QB + 8,
}
OLDS = [("O", 0, 0), ("O", 1, 0), ("O", 0, 1), ("O", 1, 1)]
LDS_SLOT = {k: i for i, k in enumerate(LDS_OPS)}
ALL_OPS = [(m, T, u) for m in "QKV" for u in range(8) for T in range(2)] + [("O", T, t) for t in range(2) for T in range(8)]
RES = {}
_n = 0
for op in ALL_OPS:
    if op in LDS_OPS:
        continue
    RES[op] = ("a", _n * 8) if _n < 32 else ("v", VW + (_n - 32) * 8)
    _n += 1
assert _n == 48


def opreg(op):
    if op in LDS_OPS:
        return v(LDS_OPS[op], 8)
    k, r = RES[op]
    return (a if k == "a" else v)(r, 8)


def lds_fetch_ins(op):
    r = LDS_OPS[op]
    off = LDS_SLOT[op] * 2048
    return ["ds_read_b128 %s, %s offset:%d" % (v(r, 4), v(C_WL), off),
            "ds_read_b128 %s, %s offset:%d" % (v(r + 4, 4), v(C_WL), off + 1024)]


def lds_fetch(e, op):
    for t in lds_fetch_ins(op):
        e(t)


def rowpart(rho, b, hi=32):
    return hi * (rho >> 2) + 8 * (rho & 1) + 2 * ((rho >> 1) & 1) + b


class VmQ:
    def __init__(self, e):
        self.e, self.q = e, []

    def add(self, tag):
        self.q.append(tag)
        assert len(self.q) <= 63

    def wait(self, tag):
        if tag not in self.q:
            return
        last = len(self.q) - 1 - self.q[::-1].index(tag)
        self.e("s_waitcnt vmcnt(%d)" % (len(self.q) - 1 - last))
        self.q = self.q[last + 1:]


def staged_load(e, chunks, srds, dma_xor, lane_f, row_lane, blk_xor_wave, reads, side=None, pre=None):
    AD, AR = 16, 20
    TT = 28
    lin(e, AD, {0: 16, 1: 32, 2: 64, 3: 128, 4: 8192, 5: 16384, 6: 32 * 8192, 7: 64 * 8192})
    lin(e, TT, dma_xor[0])
    e("v_xor_b32 %s, %s, %s" % (v(AD), v(AD), v(TT)))
    for k in range(1, 4):
        e("v_xor_b32 %s, %d, %s" % (v(AD + k), dma_xor[1](k), v(AD)))
    lin(e, AR, {0: 8, 1: 16, **{k: c * 256 for k, c in row_lane.items()}})
    lin(e, TT, lane_f)
    lin(e, TT + 1, {6: 64, 7: 128})
    e("v_xor_b32 %s, %s, %s" % (v(TT), v(TT), v(TT + 1)))
    e("v_add_u32 %s, %s, %s" % (v(TT), v(TT), v(AR)))
    for k in range(4):
        if blk_xor_wave:
            e("s_xor_b32 %s, %s, %d" % (s(S_T0), s(S_WAVE), k))
            e("s_add_u32 %s, %s, 1" % (s(S_T0), s(S_T0)))
            e("s_lshl_b32 %s, %s, 15" % (s(S_T0), s(S_T0)))
            e("v_add_u32 %s, %s, %s" % (v(AR + 2 * k), s(S_T0), v(TT)))
        else:
            e("v_add_u32 %s, 0x%x, %s" % (v(AR + 2 * k), (k + 1) << 15, v(TT)))
        e("v_xor_b32 %s, 32, %s" % (v(AR + 2 * k + 1), v(AR + 2 * k)))
    S_LB, S_GB = 28, 3
    e("s_add_u32 %s, %s, 1" % (s(S_LB), s(S_WAVE)))
    e("s_lshl_b32 %s, %s, 15" % (s(S_LB), s(S_LB)))
    e("s_lshl_b32 %s, %s, 8" % (s(S_GB), s(S_H)))
    q = VmQ(e)

    def dma(c):
        m, ci = chunks[c]
        for i in range(8):
            e("s_add_u32 m0, %s, %d" % (s(S_LB), (c % 3) * 8192 + i * 1024))
            e("s_add_u32 %s, %s, 0x%x" % (s(S_T1), s(S_GB), (128 * ci + 4 * i) * 8192))
            e("buffer_load_dwordx4 %s, %s, %s offen%s lds" % (v(AD + (i & 3)), s(srds[m], 4), s(S_T1), OPT.get("cnt", " nt") if blk_xor_wave else ""))
            q.add(("c", c))
    for c in range(3):
        dma(c)
        if pre and c == 0:
            pre(q)
    for c, (m, ci) in enumerate(chunks):
        if side:
            side(c, q)
        q.wait(("c", c))
        e("s_barrier")
        for n_, (dst, k, T, ro) in enumerate(reads(m, ci)):
            if n_ == 12:
                e("s_waitcnt lgkmcnt(4)")
            e("ds_read_b64_tr_b16 %s, %s offset:%d" % (dst, v(AR + 2 * k + T), (c % 3) * 8192 + ro * 256))
        e("s_waitcnt lgkmcnt(0)")
        e("s_barrier")
        if c + 3 < len(chunks):
            dma(c + 3)
    return q


HOLD = {op: 32 + 8 * i for i, op in enumerate(o for o in LDS_OPS if o[0] != "O")}


def load_weights(e, P_WQ, P_WK, P_WV, P_WO, pre=None, mid=None):
    e.comment("---- load weight operands: Wq/Wk/Wv by LDS-DMA + transposing reads, Wo by dword loads + v_perm")
    VOFO = FREE1
    RING, TMP8 = 32, 120
    lin(e, VOFO, {0: 4, 1: 8, 2: 16, 3: 32, 4: 2 * 1024, 5: 8 * 1024, 6: 256, 7: 512})
    ptr = {"Q": P_WQ, "K": P_WK, "V": P_WV, "O": P_WO}
    SRDS = {"Q": 96, "K": 88, "V": 60, "O": 92}
    for m in "QKVO":
        srd(e, SRDS[m], ptr[m], 512 * 4096 * 2)
    S_OB = 29
    e("s_lshl_b32 %s, %s, 17" % (s(S_OB), s(S_H)))

    def reads(m, ci):
        tau, hi = ci >> 1, ci & 1
        out = []
        for k in range(4):
            u = 2 * k + tau
            for T in range(2):
                op = (m, T, u)
                for pr in range(2):
                    if op in HOLD:
                        dst = v(HOLD[op] + 4 * hi + 2 * pr, 2)
                    else:
                        kind, r = RES[op]
                        dst = (a if kind == "a" else v)(r + 4 * hi + 2 * pr, 2)
                    out.append((dst, k, T, 2 * pr))
        return out

    def o_issue(g, q):
        qq, tt = g >> 1, g & 1
        base = (32, 48, 80)[g % 3]
        for rho in range(8):
            for b in range(2):
                row = 64 * tt + 32 * (rho >> 2) + 16 * b + 4 * (rho & 1) + ((rho >> 1) & 1)
                e("s_add_u32 %s, %s, 0x%x" % (s(S_T1), s(S_OB), row * 1024 + qq * 64))
                e("buffer_load_dword %s, %s, %s, %s offen" % (v(base + rho * 2 + b), v(VOFO), s(SRDS["O"], 4), s(S_T1)))
                q.add(("o", g))

    def o_consume(g, q):
        q.wait(("o", g))
        base = (32, 48, 80)[g % 3]
        for k in range(2):
            op = ("O", 2 * (g >> 1) + k, g & 1)
            sel = s(S_PHI if k else S_PLO)
            dst = TMP8 if op in LDS_OPS else RES[op][1]
            assert op in LDS_OPS or RES[op][0] == "v"
            for rho in range(8):
                e("v_perm_b32 %s, %s, %s, %s" % (v(dst + rho), v(base + 2 * rho + 1), v(base + 2 * rho), sel))
            if op in LDS_OPS:
                off = LDS_SLOT[op] * 2048
                assert off >= 24576
                e("ds_write_b128 %s, %s offset:%d" % (v(C_WL), v(TMP8, 4), off))
                e("ds_write_b128 %s, %s offset:%d" % (v(C_WL), v(TMP8 + 4, 4), off + 1024))
                e("s_waitcnt lgkmcnt(0)")

    def side(c, q):
        if c == 1:
            init_publish(e, q)
        if c == 3:
            init_publish2(e, q)
        if 2 <= c < 10:
            o_consume(c - 2, q)
        if c < 8:
            o_issue(c, q)

    chunks = [(m, ci) for m in "VKQ" for ci in range(4)]
    staged_load(e, chunks, SRDS, ({4: 32}, lambda k: k << 6), {2: 32, 4: 64, 3: 128}, {5: 16, 3: 8, 4: 4, 2: 1}, True, reads, side, pre)
    for op, r in HOLD.items():
        off = LDS_SLOT[op] * 2048
        e("ds_write_b128 %s, %s offset:%d" % (v(C_WL), v(r, 4), off))
        e("ds_write_b128 %s, %s offset:%d" % (v(C_WL), v(r + 4, 4), off + 1024))
        if LDS_SLOT[op] % 4 == 3:
            e("s_waitcnt lgkmcnt(0)")
    e("s_waitcnt lgkmcnt(0)")


def setup_consts(e):
    T1, T2 = AM + 8, AM + 9
    lin(e, C_IDX, {1: 0xEEEE - 0x4444}, 0x4444)
    lin(e, C_L16, {k: 16 << k for k in range(6)})
    lin(e, C_MW, {**{k: 16 << k for k in range(6)}, 6: 2048, 7: 4096})
    lin(e, C_WL, {**{k: 16 << k for k in range(6)}, 6: 32768, 7: 65536}, L_WL)
    lin(e, C_QW, {0: 4, 1: 8, 2: 16, 3: 32, 4: 2 * RS * 4, 5: 4 * RS * 4, 6: 64, 7: 128}, L_QX)
    lin(e, C_QR, {1: RS * 4, 2: 2 * RS * 4, 3: 4 * RS * 4, 4: 16, 5: 32}, L_QX)
    lin(e, C_KR, {0: RS * 4, 2: 2 * RS * 4, 3: 4 * RS * 4, 4: 16, 5: 32}, L_KMX)
    lin(e, C_OW, {1: 16, 2: 64, 3: 128, 4: 32, 5: 256, 6: 512, 7: 1024}, L_OX)
    lin(e, T1, {3: 1, 4: 2, 5: 4, 6: 8, 7: 16})
    e("v_add_u32 %s, %s, %s" % (v(T1), s(S_H), v(T1)))
    e("v_and_b32 %s, 31, %s" % (v(T1), v(T1)))
    e("v_lshlrev_b32 %s, 6, %s" % (v(T1), v(T1)))
    lin(e, C_PW, {0: 8, 1: 16, 2: 32, 3: 8192, 4: 2 * 8192, 5: 4 * 8192, 6: 8 * 8192, 7: 16 * 8192}, PB_OFF)
    e("v_add_u32 %s, %s, %s" % (v(C_PW), v(C_PW), v(T1)))
    lin(e, C_MP, {0: 8, 1: 32, 4: 16, 5: 4, 6: 2048, 7: 4096}, MB_IN)
    e("v_mov_b32 %s, %s" % (v(T2), s(S_H)))
    lin(e, T1, {0: 256, 1: 64, 2: 128, 3: 512, 4: 1024}, src=T2)
    e("v_add_u32 %s, %s, %s" % (v(C_MP), v(T1), v(C_MP)))
    e("v_and_b32 %s, 12, v0" % v(T1))
    e("v_cmp_ne_u32 vcc, 0, %s" % v(T1))
    e("v_mov_b32 %s, 0x%x" % (v(T1), OOB))
    e("v_cndmask_b32 %s, %s, %s, vcc" % (v(C_MP), v(C_MP), v(T1)))
    e("s_lshl_b32 %s, %s, 13" % (s(S_PR), s(S_H)))
    e("s_add_u32 %s, %s, 0x%x" % (s(S_PR), s(S_PR), PB_OFF))
    e("s_mov_b32 %s, 4096" % s(S_4K))
    e("v_and_b32 %s, 15, v0" % v(T1))
    for q in range(4):
        e("v_mov_b32 %s, 0" % v(AM + q))
        e("v_mov_b32 %s, 0x3f80" % v(T2))
        e("v_cmp_eq_u32 vcc, %d, %s" % (4 * q, v(T1)))
        e("v_cndmask_b32 %s, %s, %s, vcc" % (v(AM + q), v(AM + q), v(T2)))
        e("v_mov_b32 %s, 0x3f800000" % v(T2))
        e("v_cmp_eq_u32 vcc, %d, %s" % (4 * q + 1, v(T1)))
        e("v_cndmask_b32 %s, %s, %s, vcc" % (v(AM + q), v(AM + q), v(T2)))
    e("ds_write_b128 %s, %s offset:%d" % (v(C_L16), v(AM, 4), L_SEL))
    e("s_mov_b32 %s, 0x05040100" % s(S_PLO))
    e("s_mov_b32 %s, 0x07060302" % s(S_PHI))
    e("s_mov_b32 %s, 0x%x" % (s(S_SCALE), f32bits(128 ** -0.5 * 1.4426950408889634)))
    e("s_mov_b32 %s, 0x%x" % (s(S_BIG), f32bits(OPT.get('big', 2.0 ** 30))))
    e("s_mov_b32 %s, 0" % s(S_TMO))
    e("s_mov_b32 %s, 0x3f803f80" % s(S_ONES))
    e("s_mov_b32 %s, 0x3f803f80" % s(S_ONES + 1))
    e("s_lshl_b32 %s, %s, 14" % (s(S_T0), s(S_H)))
    e("s_lshr_b32 %s, %s, 1" % (s(S_T1), s(S_WAVE)))
    e("s_lshl_b32 %s, %s, 12" % (s(S_T1), s(S_T1)))
    e("s_add_u32 %s, %s, %s" % (s(S_KXO), s(S_T0), s(S_T1)))
    e("s_lshl_b32 %s, %s, 11" % (s(S_T1), s(S_WAVE)))
    e("s_add_u32 %s, %s, %s" % (s(S_VXO), s(S_T0), s(S_T1)))
    e("s_add_u32 %s, %s, 8192" % (s(S_VXO), s(S_VXO)))


def setup_pf(e):
    T1, T2 = AM + 8, AM + 9
    lin(e, T1, {0: 128, 1: 256, 2: 512, 3: 1024, 4: 2048, 6: 4096, 7: 8192})
    e("s_lshl_b32 %s, %s, 14" % (s(S_T0), s(S_H)))
    e("v_add_u32 %s, %s, %s" % (v(T1), s(S_T0), v(T1)))
    e("s_lshl_b32 %s, %s, 8" % (s(S_T0), s(S_H)))
    e("s_lshr_b32 %s, %s, 1" % (s(S_T1), s(S_WAVE)))
    e("s_lshl_b32 %s, %s, 7" % (s(S_T1), s(S_T1)))
    e("s_add_u32 %s, %s, %s" % (s(S_T0), s(S_T0), s(S_T1)))
    e("s_add_u32 %s, %s, 0x%x" % (s(S_T0), s(S_T0), SLAB_ST + MB_IN))
    e("v_and_b32 %s, 63, v0" % v(T0))
    e("v_mov_b32 %s, 0x%x" % (v(T2), OOB))
    e("v_cmp_lt_u32 vcc, 32, %s" % v(T0))
    e("v_cndmask_b32 %s, %s, %s, vcc" % (v(T1), v(T1), v(T2)))
    e("v_mov_b32 %s, %s" % (v(T2), s(S_T0)))
    e("v_cmp_eq_u32 vcc, 32, %s" % v(T0))
    e("v_cndmask_b32 %s, %s, %s, vcc" % (v(C_PF), v(T1), v(T2)))


def init_issue(e, P_MEM0, q):
    M1, T1, T2, TH = 100, 104, 105, 106
    ws = s(S_WS, 4)

    def st(x):
        e(x)
        q.add("init")
    srd(e, S_W, P_MEM0, 8192)
    lin(e, T1, {0: 8, 1: 16, 2: 0x10000, 3: 0x10000, 4: 1024, 5: 4, 6: 64, 7: 128})
    e("v_mov_b32 %s, %s" % (v(TH), s(S_H)))
    lin(e, T2, {0: 32, 1: 2048, 2: 4096, 3: 256, 4: 512}, src=TH)
    e("v_add_u32 %s, %s, %s" % (v(T1), v(T1), v(T2)))
    st("buffer_load_dword %s, %s, %s, 0 offen" % (v(HPEND), v(T1), s(S_W, 4)))
    for k in range(4):
        e("v_mov_b32 %s, -1" % v(M1 + k))
    st("buffer_store_dwordx4 %s, %s, %s, %s offen sc1" % (v(M1, 4), v(C_MW), ws, s(S_PR)))
    st("buffer_store_dwordx4 %s, %s, %s, %s offen offset:1024 sc1" % (v(M1, 4), v(C_MW), ws, s(S_PR)))
    e("s_lshl_b32 %s, %s, 14" % (s(S_T0), s(S_H)))
    e("s_add_u32 %s, %s, 0x%x" % (s(S_T0), s(S_T0), HIST_OFF))
    e("s_add_u32 %s, %s, 0x2000" % (s(S_T1), s(S_T0)))
    for so in (S_T0, S_T1):
        st("buffer_store_dwordx4 %s, %s, %s, %s offen sc1" % (v(M1, 4), v(C_MW), ws, s(so)))
        st("buffer_store_dwordx4 %s, %s, %s, %s offen offset:1024 sc1" % (v(M1, 4), v(C_MW), ws, s(so)))
    e("s_mul_i32 %s, %s, 0x%x" % (s(S_T0), s(S_H), 2 * SLAB_ST))
    e("s_add_u32 %s, %s, 0x%x" % (s(S_T0), s(S_T0), SLAB_OFF + SLAB_ST + MB_IN + (0x4000000 if OPT.get("solo") else 0)))
    e("s_add_u32 %s, %s, 0x%x" % (s(S_T1), s(S_T0), SLAB_ST))
    for so in (S_T0, S_T1):
        st("buffer_store_dwordx4 %s, %s, %s, %s offen sc1" % (v(M1, 4), v(C_MW), ws, s(so)))
        st("buffer_store_dwordx4 %s, %s, %s, %s offen offset:1024 sc1" % (v(M1, 4), v(C_MW), ws, s(so)))
    e("v_lshlrev_b32 %s, 2, v0" % v(T1))
    e("s_lshl_b32 %s, %s, 10" % (s(S_T0), s(S_H)))
    e("s_add_u32 %s, %s, 0x%x" % (s(S_T1), s(S_T0), FLAG_OFF + 0x4000))
    st("buffer_store_dword %s, %s, %s, %s offen sc1" % (v(M1), v(T1), ws, s(S_T1)))
    e("s_add_u32 %s, %s, 0x%x" % (s(S_T1), s(S_T0), 0x1B0000))
    st("buffer_store_dword %s, %s, %s, %s offen sc1" % (v(M1), v(T1), ws, s(S_T1)))
    e("v_mov_b32 %s, 0x%x" % (v(T2), OOB))
    e("v_cmp_lt_u32 vcc, 63, v0")
    e("v_cndmask_b32 %s, %s, %s, vcc" % (v(T1), v(T1), v(T2)))
    e("v_mov_b32 %s, 0" % v(T2))
    e("s_lshl_b32 %s, %s, 8" % (s(S_T0), s(S_H)))
    e("s_add_u32 %s, %s, 0x%x" % (s(S_T0), s(S_T0), FLAG_OFF))
    e("s_add_u32 %s, %s, 0x2000" % (s(S_T1), s(S_T0)))
    if OPT.get("kvflags", 1):
        st("buffer_store_dword %s, %s, %s, %s offen sc1" % (v(T2), v(T1), ws, s(S_T0)))
        st("buffer_store_dword %s, %s, %s, %s offen sc1" % (v(T2), v(T1), ws, s(S_T1)))


def init_publish(e, q):
    T1, T2 = 104, 105
    q.wait("init")
    e("s_mov_b32 %s, 0x%x" % (s(S_T0), SLAB_OFF))
    e("buffer_store_dword %s, %s, %s, %s offen sc1" % (v(HPEND), v(C_MP), s(S_WS, 4), s(S_T0)))
    q.add("mb0")


def init_publish2(e, q):
    T1, T2 = 30, 31
    q.wait("mb0")
    e("s_barrier")
    e("s_getreg_b32 %s, hwreg(HW_REG_XCC_ID)" % s(S_T0))
    e("s_and_b32 %s, %s, 15" % (s(S_T0), s(S_T0)))
    e("s_or_b32 %s, %s, 0x100" % (s(S_T0), s(S_T0)))
    e("v_mov_b32 %s, %s" % (v(T1), s(S_T0)))
    e("s_lshl_b32 %s, %s, 2" % (s(S_T1), s(S_H)))
    e("v_lshlrev_b32 %s, 20, v0" % v(T2))
    e("buffer_store_dword %s, %s, %s, %s offen offset:128 sc1" % (v(T1), v(T2), s(S_DBG, 4), s(S_T1)))
    q.add("hs")


def handshake_wait(e, fast_label, slow_label):
    T1, T2 = AM + 8, AM + 9
    e("v_lshrrev_b32 %s, 2, %s" % (v(T2), v(C_L16)))
    e("v_and_b32 %s, 127, %s" % (v(T2), v(T2)))
    e.label("L_HS")
    e("buffer_load_dword %s, %s, %s, 0 offen offset:128 sc1" % (v(T1), v(T2), s(S_DBG, 4)))
    e("s_add_u32 %s, %s, 1" % (s(S_TMO), s(S_TMO)))
    e("s_cmp_gt_u32 %s, %d" % (s(S_TMO), TMO_LIMIT))
    e("s_cbranch_scc1 %s" % slow_label)
    e("s_waitcnt vmcnt(0)")
    e("v_cmp_eq_u32 vcc, 0, %s" % v(T1))
    e("s_cbranch_vccnz L_HS")
    e("v_readfirstlane_b32 %s, %s" % (s(S_T0), v(T1)))
    e("v_cmp_ne_u32 vcc, %s, %s" % (s(S_T0), v(T1)))
    e("s_cbranch_vccnz %s" % slow_label)
    e("s_branch %s" % fast_label)


def smf_ins(acc, aop, op):
    return "v_smfmac_f32_16x16x64_bf16 %s, %s, %s, %s" % (v(acc, 4), v(aop, 4), opreg(op), v(C_IDX))


def stamp(e, i, on):
    if on:
        e("s_memtime %s" % s(S_ST + 2 * i, 2))


am = lambda u: AM + 4 * u


def idle_prep_ins():
    out = []
    for op in (("Q", 0, 0), ("Q", 1, 0), ("Q", 0, 1), ("Q", 1, 1), ("K", 0, 0), ("K", 1, 0)):
        out += lds_fetch_ins(op)
    z = ["v_mov_b64 %s, 0" % v(r, 2) for r in range(ACCQ, ACCQ + 24, 2)]
    return out, z


def mr_addr_ins():
    return ["v_xor_b32 %s, 0x%x, %s" % (v(am(2 * k + 1)), k * 2048, v(C_MW)) for k in (1, 2, 3)]


def delay(e, cyc):
    n = cyc // 4
    while n > 0:
        k = min(n, 16)
        e("s_nop %d" % (k - 1))
        n -= k


def weave(e, main, fill):
    for i, m in enumerate(main):
        e(m)
        for t in fill.get(i, []):
            e(t)


def main_loop(e, tag, sc, nsteps, stamps=False):
    L = lambda n: "L_%s_%s" % (tag, n)
    ws = s(S_WS, 4)
    if not sc:
        sc = OPT.get("stf", "")
    acc = {"Q": ACCQ, "K": ACCK, "V": ACCV}
    S = lambda m, T, u: smf_ins(acc[m] + 4 * T, am(u), (m, T, u))
    e.label(L("start"))
    e("s_mov_b32 %s, 0" % s(S_STEP))
    e("s_mov_b32 %s, 0x%x" % (s(S_SLAB), SLAB_OFF))
    e("s_mov_b32 %s, 0" % s(S_PAR))
    e("s_mov_b32 %s, 0x%x" % (s(S_HIST), HIST_OFF - MB_IN))
    f, z = idle_prep_ins()
    for t in f + z:
        e(t)
    if OPT.get("pretouch"):
        e("s_mul_i32 %s, %s, 0x%x" % (s(S_T0), s(S_H), 2 * SLAB_ST))
        e("s_add_u32 %s, %s, 0x%x" % (s(S_T0), s(S_T0), SLAB_OFF + MB_IN))
        e("s_add_u32 %s, %s, 0x%x" % (s(S_T1), s(S_T0), SLAB_ST))
        for so in (S_T0, S_T1):
            e("buffer_load_dwordx4 %s, %s, %s, %s offen sc1" % (v(AM, 4), v(C_MW), ws, s(so)))
            e("buffer_load_dwordx4 %s, %s, %s, %s offen offset:1024 sc1" % (v(AM, 4), v(C_MW), ws, s(so)))
        e("s_waitcnt vmcnt(0)")
    e("s_waitcnt lgkmcnt(0)")
    e("s_mov_b64 %s, %s" % (s(S_RDY, 2), "0" if OPT.get("kvflags", 1) else "-1"))
    e.label(L("step"))
    e("s_bitcmp1_b64 %s, %s" % (s(S_RDY, 2), s(S_STEP)))
    e("s_cbranch_scc0 %s" % L("refresh"))
    e("s_add_u32 %s, %s, 1" % (s(S_T0), s(S_STEP)))
    e("s_bitcmp1_b64 %s, %s" % (s(S_RDY, 2), s(S_T0)))
    e("s_cbranch_scc0 %s" % L("refresh"))
    mld = ["buffer_load_dwordx4 %s, %s, %s, %s offen sc1" % (v(am(0), 4), v(C_MW), ws, s(S_MB)),
           "buffer_load_dwordx4 %s, %s, %s, %s offen offset:1024 sc1" % (v(am(1), 4), v(C_MW), ws, s(S_MB))]
    deepm = OPT.get("deepm", 0) and not OPT.get("solo")
    e("s_add_u32 %s, %s, 0x%x" % (s(S_MB), s(S_SLAB), MB_IN))
    if deepm:
        for t in mld:
            e(t)
    e("s_add_u32 %s, %s, 0x%x" % (s(S_SLABN), s(S_SLAB), SLAB_ST))
    e("s_add_u32 %s, %s, %s" % (s(S_KX), s(S_SLAB), s(S_KXO)))
    e("s_add_u32 %s, %s, %s" % (s(S_VX), s(S_SLAB), s(S_VXO)))
    for t in mr_addr_ins():
        e(t)
    if deepm and OPT.get("stag2", 1):
        e("s_sleep %d" % OPT.get("stag2", 1))
    T1 = am(2)
    e.label(L("pollm"))
    for t in mld:
        e(t)
    e("s_add_u32 %s, %s, 1" % (s(S_TMO), s(S_TMO)))
    e("s_cmp_gt_u32 %s, %d" % (s(S_TMO), TMO_LIMIT))
    e("s_waitcnt vmcnt(%d)" % (3 if deepm else 1))
    e("v_max3_u32 %s, %s, %s, %s" % (v(T0), v(AM), v(AM + 1), v(AM + 2)))
    e("s_waitcnt vmcnt(%d)" % (2 if deepm else 0))
    e("v_max3_u32 %s, %s, %s, %s" % (v(T1), v(AM + 3), v(AM + 4), v(AM + 5)))
    e("v_max3_u32 %s, %s, %s, %s" % (v(T0), v(T0), v(AM + 6), v(AM + 7)))
    e("v_max_u32 %s, %s, %s" % (v(T0), v(T0), v(T1)))
    e("s_cbranch_scc1 %s" % L("gotm"))
    e("v_cmp_eq_u32 vcc, -1, %s" % v(T0))
    if not OPT.get("solo"):
        e("s_cbranch_vccnz %s" % L("pollm"))
    e.label(L("gotm"))
    stamp(e, 0, stamps)
    if stamps:
        for d_, s_ in ((3, 1), (4, 11), (5, 2)):
            e("s_mov_b32 %s, %s" % (s(S_ST + 2 * d_), s(S_ST + 2 * s_)))
    mw = ["ds_write_b128 %s, %s offset:%d" % (v(C_MW), v(am(k), 4), L_MEMI + 1024 * k) for k in range(2)]
    pst = lambda q: "buffer_store_dwordx2 %s, %s, %s, %s offen offset:%d%s" % (v(ACCQ + 2 * q, 2), v(C_PW), ws, "0" if q < 2 else s(S_4K), (q & 1) * 2048, sc)
    tg = lambda q: "v_and_or_b32 %s, %s, -2, %s" % (v(ACCQ + 2 * q), v(ACCQ + 2 * q), s(S_PAR))
    if OPT.get("comm"):
        e(mw[0]); e(mw[1])
        e("s_waitcnt lgkmcnt(0)")
        e("s_barrier")
        if not OPT.get("nopf"):
            e("buffer_load_dword %s, %s, %s, %s offen sc1" % (v(JUNK), v(C_PF), ws, s(S_SLABN)))
        delay(e, 1024 - 192)
        e("s_barrier")
        for q in range(4):
            e(tg(q))
            e(pst(q))
            if q < 3:
                delay(e, 56)
        e("s_branch %s" % L("stored"))
    kxld = lambda ks: "buffer_load_dwordx4 %s, %s, %s, %s offen offset:%d sc1" % (v(XB + 4 * ks, 4), v(C_L16), ws, s(S_KX), ks * 1024)
    vxld = lambda T: "buffer_load_dwordx4 %s, %s, %s, %s offen offset:%d sc1" % (v(VX + 4 * T, 4), v(C_L16), ws, s(S_VX), T * 1024)
    lg = lambda n: "s_waitcnt lgkmcnt(%d)" % n
    BAR = "s_barrier"
    amrd = lambda u: "ds_read_b128 %s, %s offset:%d" % (v(am(u), 4), v(am(u | 1)), L_MEMI + (u & 1) * 1024)
    q7 = lds_fetch_ins(("Q", 0, 7)) + lds_fetch_ins(("Q", 1, 7))
    k2 = lds_fetch_ins(("K", 0, 2)) + lds_fetch_ins(("K", 1, 2))
    k7 = lds_fetch_ins(("K", 0, 7)) + lds_fetch_ins(("K", 1, 7))
    of = sum([lds_fetch_ins(op) for op in OLDS], [])
    add = lambda b, r: "v_add_f32 %s, %s, %s" % (v(b + r), v(b + r), v(b + r + 2))
    cvt = lambda d, x, y: "v_cvt_pk_bf16_f32 %s, %s, %s" % (v(d), v(x), v(y))
    qbrd = lambda ks: "ds_read_b128 %s, %s offset:%d" % (v(QB + 4 * ks, 4), v(C_QR), 64 * ks)
    KM = XA
    kmrd = lambda ks: "ds_read_b128 %s, %s offset:%d" % (v(KM + 4 * ks, 4), v(C_KR), 64 * ks)
    SX, SM = ACCQ, ACCQ + 4
    ONES, PX, PM, VM0, VM1 = XB, XB + 4, XB + 8, XB + 10, XB + 12
    TA = XB + 14
    LS = SX
    OA = ACCK
    OP = SM
    mf32 = lambda d, A, B, first: "v_mfma_f32_16x16x32_bf16 %s, %s, %s, %s" % (v(d, 4), v(A, 4), v(B, 4), "0" if first else v(d, 4))
    mf16 = lambda d, A, B: "v_mfma_f32_16x16x16_bf16 %s, %s, %s, %s" % (v(d, 4), v(A, 2), v(B, 2), v(d, 4))
    smx = lambda ks: mf32(SX, XB + 4 * ks, QB + 4 * ks, ks == 0)
    smm = lambda ks: mf32(SM, KM + 4 * ks, QB + 4 * ks, ks == 0)
    ex = lambda r: "v_exp_f32 %s, %s" % (v(r), v(r))
    pf = "buffer_load_dword %s, %s, %s, %s offen sc1" % (v(JUNK), v(C_PF), ws, s(S_SLABN))
    hist = "buffer_store_dword %s, %s, %s, %s offen sc1" % (v(HPEND), v(C_MP), ws, s(S_HIST))
    zw = ["v_mov_b64 %s, 0" % v(r, 2) for r in range(AM, AM + 32, 2)]
    V = lambda T, u: S("V", T, u)
    st = lambda i: []
    sched = [
        (S("Q", 0, 0), [mw[0]], []),
        (S("Q", 1, 0), [mw[1]], []),
        (S("Q", 0, 1), [kxld(0)], []),
        (S("Q", 1, 1), [], []),
        (S("K", 0, 0), [kxld(1)], []),
        (S("K", 1, 0), [lg(0), BAR, amrd(2)], []),
        (S("K", 0, 1), [amrd(3)], []),
        (S("K", 1, 1), [amrd(4)], []),
        (V(0, 0), [amrd(5)], []),
        (V(1, 0), [amrd(6), lg(4)], []),
        (S("Q", 0, 2), [amrd(7)], []),
        (S("Q", 1, 2), [kxld(2), lg(4)], []),
        (S("Q", 0, 3), [q7[0]], []),
        (S("Q", 1, 3), [kxld(3), lg(4)], []),
        (S("Q", 0, 4), [q7[1]], []),
        (S("Q", 1, 4), [vxld(0), lg(4)], []),
        (S("Q", 0, 5), [q7[2]], []),
        (S("Q", 1, 5), [q7[3], lg(5)], []),
        (S("Q", 0, 6), [vxld(1)], []),
        (S("Q", 1, 6), [k2[0], lg(1)], []),
        (S("Q", 0, 7), [k2[1]], []),
        (S("Q", 1, 7), [pf], []),
        (S("K", 0, 3), [k2[2]], []),
        (S("K", 1, 3), [k2[3]], []),
        (S("K", 0, 5), [k7[0]], []),
        (S("K", 0, 4), [k7[1]], [add(ACCQ, 0), add(ACCQ, 1)]),
        (S("K", 1, 4), [k7[2]], [add(ACCQ + 4, 0), add(ACCQ + 4, 1)]),
        (S("K", 1, 5), [k7[3], lg(4)], [cvt(ACCQ + 2, ACCQ, ACCQ + 4), cvt(ACCQ + 3, ACCQ + 1, ACCQ + 5)]),
        (S("K", 0, 2), ["ds_write2_b32 %s, %s, %s offset0:0 offset1:%d" % (v(C_QW), v(ACCQ + 2), v(ACCQ + 3), RS)], []),
        (S("K", 1, 2), [], ["v_add_u32 %s, %d, %s" % (v(ACCQ + 7), L_KMX - L_QX, v(C_QW))]),
        (S("K", 0, 6), [], []),
        (S("K", 1, 6), [lg(0), BAR, qbrd(0)], []),
        (S("K", 0, 7), [qbrd(1)], []),
        (S("K", 1, 7), [qbrd(2)], []),
        (V(0, 1), [qbrd(3)], []),
        (V(1, 1), ["s_waitcnt vmcnt(3) lgkmcnt(3)"], []),
        (smx(0), [lg(2)], [add(ACCK, 0), add(ACCK, 1)]),
        (smx(1), [lg(1)], [add(ACCK + 4, 0), add(ACCK + 4, 1)]),
        (smx(2), [lg(0)], [cvt(ACCK + 2, ACCK, ACCK + 4), cvt(ACCK + 3, ACCK + 1, ACCK + 5)]),
        (smx(3), ["ds_write2_b32 %s, %s, %s offset0:0 offset1:%d" % (v(ACCQ + 7), v(ACCK + 2), v(ACCK + 3), RS)], []),
        (V(0, 2), [hist], ["v_mov_b64 %s, %s" % (v(ONES, 2), s(S_ONES, 2))]),
        (V(1, 2), [], ["v_mov_b64 %s, %s" % (v(ONES + 2, 2), s(S_ONES, 2))]),
        (V(0, 3), [], [ex(SX)]),
        (V(1, 3), [lg(0), BAR, kmrd(0)], [ex(SX + 1)]),
        (V(0, 4), [kmrd(1)], [ex(SX + 2)]),
        (V(1, 4), [kmrd(2)], [ex(SX + 3)]),
        (V(0, 5), [kmrd(3)], [cvt(PX, SX, SX + 1), cvt(PX + 1, SX + 2, SX + 3)]),
        (V(1, 5), ["ds_write_b64 %s, %s offset:%d" % (v(C_MW), v(PX, 2), L_PX), lg(4)], []),
        (smm(0), [lg(3)], ["v_mov_b32 %s, 0" % v(PM + 1), "v_mov_b32 %s, 0" % v(VM0 + 1)]),
        (smm(1), [lg(2)], ["v_mov_b32 %s, 0" % v(VM1 + 1), "v_xor_b32 %s, 0x1000, %s" % (v(TA), v(C_MW))]),
        (smm(2), [lg(1)], [zw.pop(0), zw.pop(0)]),
        (smm(3), [], [zw.pop(0), zw.pop(0)]),
        (V(0, 6), [lg(0), BAR, "ds_read_b64 %s, %s offset:%d" % (v(PX + 2, 2), v(TA), L_PX)], [zw.pop(0)]),
        (V(1, 6), [of[0]], [zw.pop(0)]),
        (V(0, 7), [of[1]], ["v_mul_f32 %s, %s, %s" % (v(SM), s(S_SCALE), v(SM)), "v_mul_f32 %s, %s, %s" % (v(SM + 1), s(S_SCALE), v(SM + 1))]),
        (V(1, 7), [of[2], "s_waitcnt vmcnt(2) lgkmcnt(3)"], [ex(SM)]),
        (mf32(LS, ONES, PX, True), [of[3]], [ex(SM + 1)]),
        (mf32(OA, VX, PX, True), [of[4]], [cvt(PM, SM, SM + 1), zw.pop(0)]),
        (mf32(OA + 4, VX + 4, PX, True), [of[5]], [add(ACCV, 0), add(ACCV, 1)]),
        (mf16(LS, ONES, PM), [of[6]], [cvt(VM0, ACCV, ACCV + 1), add(ACCV + 4, 0), add(ACCV + 4, 1)]),
        (mf16(OA, VM0, PM), [of[7]], [cvt(VM1, ACCV + 4, ACCV + 5), zw.pop(0), zw.pop(0)]),
        (mf16(OA + 4, VM1, PM), [], ["v_rcp_f32 %s, %s" % (v(TA), v(LS)), zw.pop(0), zw.pop(0), zw.pop(0), zw.pop(0), zw.pop(0)]),
    ]
    for m_, nv, va in sched:
        e(m_)
        for x in nv + va:
            e(x)
    for r in (0, 4, 2, 6):
        e("v_pk_mul_f32 %s, %s, %s op_sel_hi:[1,0]" % (v(OA + r, 2), v(OA + r, 2), v(TA, 2)))
    for r in range(4):
        e(cvt(OP + r, OA + r, OA + 4 + r))
    e("ds_write_b128 %s, %s" % (v(C_OW), v(OP, 4)))
    e("v_max_f32 %s, %s, %s" % (v(TA), v(TA), v(LS)))
    e("v_cmp_nge_f32 vcc, %s, %s" % (s(S_BIG), v(TA)))
    e("s_cbranch_vccnz %s" % L("safe"))
    e.label(L("rejoin"))
    while zw:
        e(zw.pop(0))
    e("s_waitcnt lgkmcnt(0)")
    e("s_barrier")
    OOP = VX
    WACC = AM
    e("ds_read_b128 %s, %s offset:%d" % (v(OOP, 4), v(C_L16), L_OX))
    e("ds_read_b128 %s, %s offset:%d" % (v(OOP + 4, 4), v(C_L16), L_OX + 1024))
    SO = lambda T, t: smf_ins(WACC + 4 * T, OOP + 4 * t, ("O", T, t))
    SEL = AM + 8
    PD = AM + 12
    RD = AM + 20
    f, z = idle_prep_ins()
    wa = lambda T, r: add(WACC + 4 * T, r)
    wc = lambda q, r: cvt(ACCQ + 2 * q + r, WACC + 8 * q + r, WACC + 8 * q + 4 + r)
    fq = lambda q: [wa(2 * q, 0), wa(2 * q, 1), wa(2 * q + 1, 0), wa(2 * q + 1, 1), wc(q, 0), wc(q, 1), tg(q)]
    e(lg(1))
    order = [(0, 0), (1, 0), (0, 1), (1, 1)] + [(2 * q + k, tt) for q in range(1, 4) for tt in range(2) for k in range(2)]
    nvs = {1: [lg(0)]}
    vas = {}
    for q in range(3):
        x = fq(q)
        b0 = 4 * q + 5
        if q < 2:
            vas[b0] = x[0:2]; vas[b0 + 1] = x[2:4]; vas[b0 + 2] = x[4:6]; vas[b0 + 3] = x[6:7]
            nvs[b0 + 4] = [pst(q)]
        else:
            vas[b0] = x[0:2]; vas[b0 + 1] = x[2:4]; vas[b0 + 2] = x[4:7] + [pst(q)]
    for i, (T, tt) in enumerate(order):
        e(SO(T, tt))
        for x in nvs.get(i, []) + vas.get(i, []):
            e(x)
    for x in fq(3):
        e(x)
    e(pst(3))
    e.label(L("stored"))
    stamp(e, 1, stamps)
    e("ds_read_b128 %s, %s offset:%d" % (v(SEL, 4), v(C_L16), L_SEL))
    nf = OPT.get("nf", 12)
    for x in f[:nf]:
        e(x)
    if OPT.get("zfirst", 1):
        for x in z:
            e(x)
        z = []
    delay(e, OPT.get("dly1", 0))
    for q in range(1, 4):
        e("s_cmp_lt_u32 %s, %d" % (s(S_WAVE), q))
        e("s_cbranch_scc1 %s" % L("poll0"))
        delay(e, OPT.get("slp", 32))
    pld = lambda P: ["buffer_load_dwordx4 %s, %s, %s, %s offen sc1" % (v(P, 4), v(C_MW), ws, s(S_PR)),
                     "buffer_load_dwordx4 %s, %s, %s, %s offen offset:1024 sc1" % (v(P + 4, 4), v(C_MW), ws, s(S_PR))]
    PA, PB_ = VX, AM
    deepp = OPT.get("deepp", 0)
    e.label(L("poll0"))
    for x in pld(PA):
        e(x)
    for x in f[nf:] + z:
        e(x)
    e("s_waitcnt lgkmcnt(0)")
    e.label(L("pollp"))
    for (cur, nxt) in ((PA, PB_), (PB_, PA)):
        if deepp:
            for x in pld(nxt):
                e(x)
        e("s_waitcnt vmcnt(%d)" % (3 if deepp else 1))
        e(mf32(RD, SEL, cur, True))
        e("v_bitop3_b32 %s, %s, %s, %s bitop3:0x7e" % (v(T0), v(cur), v(cur + 2), s(S_PAR)))
        e("s_waitcnt vmcnt(%d)" % (2 if deepp else 0))
        e(mf32(RD, SEL, cur + 4, False))
        e("v_bitop3_b32 %s, %s, %s, %s bitop3:0x7e" % (v(FREE1), v(cur + 4), v(cur + 6), s(S_PAR)))
        e("v_bitop3_b32 %s, %s, %s, 1 bitop3:0xa8" % (v(T0), v(T0), v(FREE1)))
        e("v_cmp_ne_u32 vcc, 0, %s" % v(T0))
        e("s_add_u32 %s, %s, 1" % (s(S_TMO), s(S_TMO)))
        if OPT.get("solo"):
            e("s_branch %s" % L("gotp"))
        e("s_cbranch_vccz %s" % L("gotp"))
        if not deepp:
            for x in pld(nxt):
                e(x)
    e("s_cmp_le_u32 %s, %d" % (s(S_TMO), TMO_LIMIT))
    e("s_cbranch_scc1 %s" % L("pollp"))
    e.label(L("gotp"))
    stamp(e, 11, stamps)
    e("s_mov_b32 %s, %s" % (s(S_SLAB), s(S_SLABN)))
    e("s_add_u32 %s, %s, 0x2000" % (s(S_HIST), s(S_HIST)))
    e("s_add_u32 %s, %s, 1" % (s(S_STEP), s(S_STEP)))
    e("s_xor_b32 %s, %s, 1" % (s(S_PAR), s(S_PAR)))
    for rot in (8, 4):
        for r in (0, 1):
            e("v_add_f32_dpp %s, %s, %s row_ror:%d row_mask:0xf bank_mask:0xf" % (v(RD + r), v(RD + r), v(RD + r), rot))
    e(cvt(HPEND, RD, RD + 1))
    e("buffer_store_dword %s, %s, %s, %s offen%s" % (v(HPEND), v(C_MP), ws, s(S_HIST if OPT.get("solo") else S_SLAB), sc))
    stamp(e, 2, stamps)
    delay(e, OPT.get("dly2", 192))
    e("s_cmp_lt_u32 %s, %d" % (s(S_STEP), nsteps))
    e("s_cbranch_scc1 %s" % L("step"))
    e("buffer_store_dword %s, %s, %s, %s offen sc1" % (v(HPEND), v(C_MP), ws, s(S_HIST)))
    e("s_branch %s" % L("done"))
    e.label(L("refresh"))
    e("v_lshrrev_b32 %s, 2, %s" % (v(T0), v(C_L16)))
    e("s_lshl_b32 %s, %s, 8" % (s(S_T0), s(S_H)))
    e("s_add_u32 %s, %s, 0x%x" % (s(S_T0), s(S_T0), FLAG_OFF))
    e("buffer_load_dword %s, %s, %s, %s offen sc1" % (v(T0), v(T0), ws, s(S_T0)))
    e("s_add_u32 %s, %s, 1" % (s(S_TMO), s(S_TMO)))
    e("s_waitcnt vmcnt(0)")
    e("v_cmp_ne_u32 %s, 0, %s" % (s(S_RDY, 2), v(T0)))
    e("s_nop 3")
    e("s_bitset1_b64 %s, 63" % s(S_RDY, 2))
    e("s_cmp_le_u32 %s, %d" % (s(S_TMO), TMO_LIMIT))
    e("s_cbranch_scc1 %s" % L("step"))
    e("s_mov_b64 %s, -1" % s(S_RDY, 2))
    e("s_branch %s" % L("step"))
    e.label(L("safe"))
    e.fence(12)
    e("s_waitcnt vmcnt(0) lgkmcnt(0)")
    W = AM
    for ks in range(4):
        e("ds_read_b128 %s, %s offset:%d" % (v(QB + 4 * ks, 4), v(C_QR), 64 * ks))
        e("ds_read_b128 %s, %s offset:%d" % (v(XA + 4 * ks, 4), v(C_KR), 64 * ks))
    e("s_xor_b32 %s, %s, 0x1000" % (s(S_T0), s(S_KXO)))
    e("s_add_u32 %s, %s, %s" % (s(S_T0), s(S_T0), s(S_SLAB)))
    for ks in range(4):
        e("buffer_load_dwordx4 %s, %s, %s, %s offen offset:%d sc1" % (v(W + 4 * ks, 4), v(C_L16), ws, s(S_KX), ks * 1024))
        e("buffer_load_dwordx4 %s, %s, %s, %s offen offset:%d sc1" % (v(W + 16 + 4 * ks, 4), v(C_L16), ws, s(S_T0), ks * 1024))
    e("s_waitcnt vmcnt(0) lgkmcnt(0)")
    S0, S1, S2 = ACCQ, ACCQ + 4, ACCK
    for (d, src) in ((S0, W), (S1, W + 16), (S2, XA)):
        for ks in range(4):
            c = "0" if ks == 0 else v(d, 4)
            e("v_mfma_f32_16x16x32_bf16 %s, %s, %s, %s" % (v(d, 4), v(src + 4 * ks, 4), v(QB + 4 * ks, 4), c))
    M0_, M1_ = W, W + 1
    e("v_mul_f32 %s, %s, %s" % (v(S2), s(S_SCALE), v(S2)))
    e("v_mul_f32 %s, %s, %s" % (v(S2 + 1), s(S_SCALE), v(S2 + 1)))
    e("v_max3_f32 %s, %s, %s, %s" % (v(M0_), v(S0), v(S0 + 1), v(S0 + 2)))
    e("v_max3_f32 %s, %s, %s, %s" % (v(M0_), v(M0_), v(S0 + 3), v(S1)))
    e("v_max3_f32 %s, %s, %s, %s" % (v(M0_), v(M0_), v(S1 + 1), v(S1 + 2)))
    e("v_max3_f32 %s, %s, %s, %s" % (v(M0_), v(M0_), v(S1 + 3), v(S2)))
    e("v_max_f32 %s, %s, %s" % (v(M0_), v(M0_), v(S2 + 1)))
    for sw in ("v_permlane16_swap_b32", "v_permlane32_swap_b32"):
        e("v_mov_b32 %s, %s" % (v(M1_), v(M0_)))
        e("%s %s, %s" % (sw, v(M0_), v(M1_)))
        e("v_max_f32 %s, %s, %s" % (v(M0_), v(M0_), v(M1_)))
    for r in [S0 + i for i in range(8)] + [S2, S2 + 1]:
        e("v_sub_f32 %s, %s, %s" % (v(r), v(r), v(M0_)))
        e("v_exp_f32 %s, %s" % (v(r), v(r)))
    for q in range(4):
        e("v_cvt_pk_bf16_f32 %s, %s, %s" % (v(PX + q), v(S0 + 2 * q), v(S0 + 2 * q + 1)))
    e("v_cvt_pk_bf16_f32 %s, %s, %s" % (v(PM), v(S2), v(S2 + 1)))
    e("v_mfma_f32_16x16x32_bf16 %s, %s, %s, 0" % (v(LS, 4), v(ONES, 4), v(PX, 4)))
    e("v_mfma_f32_16x16x32_bf16 %s, %s, %s, 0" % (v(OA, 4), v(VX, 4), v(PX, 4)))
    e("v_mfma_f32_16x16x32_bf16 %s, %s, %s, 0" % (v(OA + 4, 4), v(VX + 4, 4), v(PX, 4)))
    e("v_mfma_f32_16x16x16_bf16 %s, %s, %s, %s" % (v(LS, 4), v(ONES, 2), v(PM, 2), v(LS, 4)))
    e("v_mfma_f32_16x16x16_bf16 %s, %s, %s, %s" % (v(OA, 4), v(VM0, 2), v(PM, 2), v(OA, 4)))
    e("v_mfma_f32_16x16x16_bf16 %s, %s, %s, %s" % (v(OA + 4, 4), v(VM1, 2), v(PM, 2), v(OA + 4, 4)))
    e("v_rcp_f32 %s, %s" % (v(TA), v(LS)))
    for r in range(8):
        e("v_mul_f32 %s, %s, %s" % (v(OA + r), v(OA + r), v(TA)))
    for r in range(4):
        e("v_cvt_pk_bf16_f32 %s, %s, %s" % (v(OP + r), v(OA + r), v(OA + 4 + r)))
    e("ds_write_b128 %s, %s" % (v(C_OW), v(OP, 4)))
    for op in OLDS:
        lds_fetch(e, op)
    for r in range(AM, AM + 32):
        e("v_mov_b32 %s, 0" % v(r))
    e("s_branch %s" % L("rejoin"))
    e.label(L("done"))
```

```python
from asmlib import v, a, s
import chain as C
from chain import lin, srd, f32bits, S_WS, S_DBG, S_H, S_WAVE, S_TMO, S_SCALE, S_PLO, S_PHI, S_T0, S_T1, S_T2, TMO_LIMIT, OOB

FLAGKV = C.FLAG_OFF
FLAGTP = C.FLAG_OFF + 0x2000
RVAL = C.FLAG_OFF + 0x4000
ACT = C.FLAG_OFF + 0xC000
HROW = 0x400000
XN2 = 0x600000
TP_OFF = 0x4000000
Q_DELTA = 0x8000000 - C.SLAB_OFF

X_T = 0
EX_Q = 0
EX_K = 8192
EX_KM = 16384
MEMI = 20480
EX_O = 0
RED = 28672
L_WO = 32768

S_X = 12
S_OUT = 60
S_WR = 92
S_R = 22
S_SEG = 23
S_A, S_B = 24, 25
S_M0 = 64
S_MM = 72
S_ONES = C.S_ONES

W_L16, W_MW, W_XG, W_XW, W_XR0, W_XR1, W_WO, W_MR, W_EX, W_TPW, W_TPR, W_ROW, W_NEG, T0, T1 = range(1, 16)
assert T0 == C.T0
R0 = 16


def wreg(m, T, ks):
    idx = ("QKV".index(m) * 32 + ks * 2 + T) * 4
    return a(idx, 4) if idx < 256 else v(128 + idx - 256, 4)


def mf32(d, A, B, first):
    return "v_mfma_f32_16x16x32_bf16 %s, %s, %s, %s" % (v(d, 4), A, B, "0" if first else v(d, 4))


def cvt(d, x, y):
    return "v_cvt_pk_bf16_f32 %s, %s, %s" % (v(d), v(x), v(y))


def setup(e, P):
    e("s_and_b32 %s, s2, 7" % s(S_T0))
    e("s_sub_u32 %s, %s, 1" % (s(S_T0), s(S_T0)))
    e("s_lshl_b32 %s, %s, 5" % (s(S_T0), s(S_T0)))
    e("s_lshr_b32 %s, s2, 3" % s(S_T1))
    e("s_add_u32 %s, %s, %s" % (s(S_T0), s(S_T0), s(S_T1)))
    e("s_mul_i32 %s, %s, 9363" % (s(S_H), s(S_T0)))
    e("s_lshr_b32 %s, %s, 16" % (s(S_H), s(S_H)))
    e("s_mul_i32 %s, %s, 7" % (s(S_T1), s(S_H)))
    e("s_sub_u32 %s, %s, %s" % (s(S_R), s(S_T0), s(S_T1)))
    lin(e, W_L16, {k: 16 << k for k in range(6)})
    lin(e, W_MW, {**{k: 16 << k for k in range(6)}, 6: 2048, 7: 4096})
    lin(e, W_EX, {**{k: 16 << k for k in range(6)}, 6: 1024, 7: 2048})
    lin(e, W_WO, {**{k: 16 << k for k in range(6)}, 6: 32768, 7: 65536}, L_WO)
    lin(e, W_XG, {0: 16, 1: 32, 2: 64, 3: 1024, 4: 2048, 5: 4096, 6: 8192, 7: 16384})
    lin(e, W_XW, {0: 256, 1: 512, 2: 1024, 6: 128, 7: 16384})
    e("v_lshrrev_b32 %s, 3, v0" % v(T1))
    e("v_xor_b32 %s, %s, v0" % (v(T1), v(T1)))
    e("v_and_b32 %s, 7, %s" % (v(T1), v(T1)))
    e("v_lshl_add_u32 %s, %s, 4, %s" % (v(W_XW), v(T1), v(W_XW)))
    e("v_bfe_u32 %s, v0, 4, 2" % v(T1))
    e("v_lshlrev_b32 %s, 4, %s" % (v(T1), v(T1)))
    e("v_xor_b32 %s, %s, %s" % (v(W_XR0), v(T1), v(W_L16)))
    e("v_xor_b32 %s, 64, %s" % (v(W_XR1), v(W_XR0)))
    lin(e, W_MR, {0: 16, 1: 64, 2: 128, 4: 32, 5: 256}, MEMI)
    lin(e, W_TPW, {0: 16, 1: 32, 2: 64, 3: 128, 4: 4 * 32768, 5: 8 * 32768, 6: 256, 7: 512})
    lin(e, W_TPR, {0: 16, 1: 32, 2: 64, 3: 128, 4: 1024, 5: 2048, 6: 256, 7: 512})
    lin(e, W_ROW, {0: 16, 1: 32, 2: 64, 3: 128, 4: 4, 5: 8, 6: 256, 7: 512})
    e("v_mov_b32 %s, 0x%x" % (v(W_NEG), f32bits(-1e30)))
    e("v_and_b32 %s, 15, v0" % v(T0))
    e("v_bfe_u32 %s, v0, 4, 2" % v(T1))
    e("v_cmp_gt_u32 %s, 2, %s" % (s(S_MM, 2), v(T1)))
    e("v_lshlrev_b32 %s, 2, %s" % (v(T1), v(T1)))
    for r in range(4):
        e("v_cmp_le_u32 %s, %s, %s" % (s(S_M0 + 2 * r, 2), v(T1), v(T0)))
        e("v_add_u32 %s, 1, %s" % (v(T1), v(T1)))
    e("s_mov_b32 %s, 0x05040100" % s(S_PLO))
    e("s_mov_b32 %s, 0x07060302" % s(S_PHI))
    e("s_mov_b32 %s, 0x%x" % (s(S_SCALE), f32bits(128 ** -0.5 * 1.4426950408889634)))
    e("s_mov_b32 %s, 0" % s(S_TMO))
    e("s_mov_b32 %s, 0x3f803f80" % s(S_ONES))
    e("s_mov_b32 %s, 0x3f803f80" % s(S_ONES + 1))


def load_w(e, P, mats):
    ptr = {"Q": P + 4, "K": P + 6, "V": P + 8}
    SRDS = {"Q": 96, "K": 40, "V": 76}
    for m in mats:
        srd(e, SRDS[m], ptr[m], 512 * 4096 * 2)

    def reads(m, ci):
        out = []
        for k in range(4):
            for T in range(2):
                idx = ("QKV".index(m) * 32 + (4 * ci + k) * 2 + T) * 4
                for u in range(2):
                    dst = a(idx + 2 * u, 2) if idx < 256 else v(128 + idx - 256 + 2 * u, 2)
                    out.append((dst, k, T, 4 * u))
        return out
    chunks = [(m, ci) for m in mats for ci in range(4)]
    C.staged_load(e, chunks, SRDS, ({4: 32, 5: 64}, lambda k: (k >> 1) << 7), {2: 32, 3: 64, 4: 128}, {2: 1, 3: 2, 4: 8, 5: 16}, False, reads)


def load_wo(e, P):
    VOFF = T1
    srd(e, 96, P + 10, 4096 * 512 * 2)
    lin(e, VOFF, {0: 16, 1: 32, 2: 64, 3: 128, 4: 4 * 1024, 5: 8 * 1024, 6: 256, 7: 512})
    e("s_lshl_b32 %s, %s, 17" % (s(S_T0), s(S_H)))
    TMP = 112

    def issue(ks):
        base = R0 + (ks % 3) * 32
        for j in range(8):
            e("s_add_u32 %s, %s, 0x%x" % (s(S_T1), s(S_T0), (32 * ks + 16 * (j & 1) + (j >> 1)) * 1024))
            e("buffer_load_dwordx4 %s, %s, %s, %s offen" % (v(base + 4 * j, 4), v(VOFF), s(96, 4), s(S_T1)))

    def consume(ks):
        base = R0 + (ks % 3) * 32
        for T in range(8):
            t = TMP + (T % 4) * 4
            if T == 4:
                e("s_waitcnt lgkmcnt(0)")
            for jj in range(4):
                e("v_perm_b32 %s, %s, %s, %s" % (v(t + jj), v(base + 4 * (2 * jj + 1) + (T >> 1)), v(base + 4 * (2 * jj) + (T >> 1)), s(S_PHI if T & 1 else S_PLO)))
            e("ds_write_b128 %s, %s offset:%d" % (v(W_WO), v(t, 4), (ks * 8 + T) * 1024))
        e("s_waitcnt lgkmcnt(0)")
    for ks in range(3):
        issue(ks)
    e("s_waitcnt vmcnt(16)")
    consume(0)
    issue(3)
    e("s_waitcnt vmcnt(16)")
    consume(1)
    e("s_waitcnt vmcnt(8)")
    consume(2)
    e("s_waitcnt vmcnt(0)")
    consume(3)


def dpp_add(e, r, ctrl):
    e("v_add_f32_dpp %s, %s, %s %s row_mask:0xf bank_mask:0xf" % (v(r), v(r), v(r), ctrl))


def wave_sum(e, regs, tmp):
    for ctrl in ("quad_perm:[1,0,3,2]", "quad_perm:[2,3,0,1]", "row_half_mirror", "row_mirror"):
        for r in regs:
            dpp_add(e, r, ctrl)
    for sw in ("v_permlane16_swap_b32", "v_permlane32_swap_b32"):
        for r in regs:
            e("v_mov_b32 %s, %s" % (v(tmp), v(r)))
            e("%s %s, %s" % (sw, v(r), v(tmp)))
            e("v_add_f32 %s, %s, %s" % (v(r), v(r), v(tmp)))


XR = R0 + 80


def x_issue(e, sseg):
    e("s_lshl_b32 %s, %s, 15" % (s(S_T0), s(sseg)))
    for i in range(8):
        e("buffer_load_dwordx4 %s, %s, %s, %s offen offset:%d" % (v(XR + 4 * i, 4), v(W_XG), s(S_X, 4), s(S_T0), i * 128))


def x_norm(e):
    SU, SQ, LO, HI = R0, R0 + 1, R0 + 2, R0 + 3
    lo = lambda d, x: e("v_lshlrev_b32 %s, 16, %s" % (v(d), v(x)))
    hi = lambda d, x: e("v_and_b32 %s, 0xffff0000, %s" % (v(d), v(x)))
    e("v_mov_b32 %s, 0" % v(SU))
    e("v_mov_b32 %s, 0" % v(SQ))
    for r in range(XR, XR + 32):
        e("v_dot2_f32_bf16 %s, %s, %s, %s" % (v(SU), v(r), s(S_ONES), v(SU)))
        e("v_dot2_f32_bf16 %s, %s, %s, %s" % (v(SQ), v(r), v(r), v(SQ)))
    e("s_nop 3")
    for ctrl in ("quad_perm:[1,0,3,2]", "quad_perm:[2,3,0,1]", "row_half_mirror"):
        dpp_add(e, SU, ctrl)
        dpp_add(e, SQ, ctrl)
    e("v_mul_f32 %s, 0x%x, %s" % (v(SU), f32bits(1 / 512), v(SU)))
    e("v_mul_f32 %s, 0x%x, %s" % (v(SQ), f32bits(1 / 512), v(SQ)))
    e("v_fma_f32 %s, -%s, %s, %s" % (v(SQ), v(SU), v(SU), v(SQ)))
    e("v_max_f32 %s, 0, %s" % (v(SQ), v(SQ)))
    e(cvt(T0, SU, SQ))
    lo(SU, T0); hi(SQ, T0)
    e("v_add_f32 %s, 0x%x, %s" % (v(SQ), f32bits(1e-5), v(SQ)))
    e(cvt(T0, SQ, SQ)); lo(SQ, T0)
    e("v_sqrt_f32 %s, %s" % (v(SQ), v(SQ)))
    e(cvt(T0, SQ, SQ)); lo(SQ, T0)
    e("v_rcp_f32 %s, %s" % (v(SQ), v(SQ)))
    for i in range(8):
        for q in range(4):
            r = XR + 4 * i + q
            lo(LO, r); hi(HI, r)
            e("v_sub_f32 %s, %s, %s" % (v(LO), v(LO), v(SU)))
            e("v_sub_f32 %s, %s, %s" % (v(HI), v(HI), v(SU)))
            e(cvt(r, LO, HI))
            lo(LO, r); hi(HI, r)
            e("v_mul_f32 %s, %s, %s" % (v(LO), v(LO), v(SQ)))
            e("v_mul_f32 %s, %s, %s" % (v(HI), v(HI), v(SQ)))
            e(cvt(r, LO, HI))
        e("ds_write_b128 %s, %s offset:%d" % (v(W_XW), v(XR + 4 * i, 4), X_T + i * 2048))


AQ, AK, AV = R0, R0 + 16, R0 + 32
XO = R0 + 48


def project(e, mats, r0, r1):
    def rd(ks):
        b = XO + (ks & 1) * 8
        for kap in range(2):
            e("ds_read_b128 %s, %s offset:%d" % (v(b + 4 * kap, 4), v((r1 if ks & 1 else r0)[kap]), X_T + ks * 1024))
    rd(0)
    for ks in range(16):
        if ks + 1 < 16:
            rd(ks + 1)
            e("s_waitcnt lgkmcnt(2)")
        else:
            e("s_waitcnt lgkmcnt(0)")
        b = XO + (ks & 1) * 8
        for m in mats:
            for T in range(2):
                for kap in range(2):
                    x = v(b + 4 * kap, 4)
                    if m == "V":
                        e(mf32(AV + 8 * kap + 4 * T, x, wreg(m, T, ks), ks == 0))
                    else:
                        e(mf32((AQ if m == "Q" else AK) + 8 * T + 4 * kap, wreg(m, T, ks), x, ks == 0))


def pack_qk(e, acc, dst, scale):
    if scale:
        for r in range(16):
            e("v_mul_f32 %s, %s, %s" % (v(acc + r), s(S_SCALE), v(acc + r)))
    for kap in range(2):
        for r in range(4):
            e(cvt(dst + 4 * kap + r, acc + 4 * kap + r, acc + 8 + 4 * kap + r))


def pack_v(e, dst):
    for T in range(2):
        for kap in range(2):
            for q in range(2):
                e(cvt(dst + 4 * T + 2 * kap + q, AV + 8 * kap + 4 * T + 2 * q, AV + 8 * kap + 4 * T + 2 * q + 1))


def signal(e, soff):
    e("s_waitcnt vmcnt(0)")
    e("s_barrier")
    flag_store(e, soff)


def wait_handshake(e):
    e("v_lshrrev_b32 %s, 2, %s" % (v(T1), v(W_L16)))
    e("v_and_b32 %s, 127, %s" % (v(T1), v(T1)))
    e.label("L_WHS")
    e("buffer_load_dword %s, %s, %s, 0 offen offset:128 sc1" % (v(T0), v(T1), s(S_DBG, 4)))
    e("s_add_u32 %s, %s, 1" % (s(S_TMO), s(S_TMO)))
    e("s_cmp_gt_u32 %s, %d" % (s(S_TMO), TMO_LIMIT))
    e("s_cbranch_scc1 L_WHS_done")
    e("s_waitcnt vmcnt(0)")
    e("v_cmp_eq_u32 vcc, 0, %s" % v(T0))
    e("s_cbranch_vccnz L_WHS")
    e.label("L_WHS_done")


def flag_store(e, soff):
    e("v_cmp_ne_u32 vcc, 0, v0")
    e("v_mov_b32 %s, 0x%x" % (v(T1), OOB))
    e("v_mov_b32 %s, 1" % v(T0))
    e("v_cndmask_b32 %s, v0, %s, vcc" % (v(T1), v(T1)))
    e("buffer_store_dword %s, %s, %s, %s offen sc1" % (v(T0), v(T1), s(S_WS, 4), s(soff)))


def phase1(e):
    ws = s(S_WS, 4)
    A0 = R0 + 64
    e("s_lshr_b32 %s, %s, 1" % (s(S_T0), s(S_WAVE)))
    e("s_lshl_b32 %s, %s, 14" % (s(S_T0), s(S_T0)))
    e("s_xor_b32 %s, %s, 16384" % (s(S_T1), s(S_T0)))
    e("v_add_u32 %s, %s, %s" % (v(A0), s(S_T0), v(W_XR0)))
    e("v_add_u32 %s, %s, %s" % (v(A0 + 1), s(S_T1), v(W_XR0)))
    e("v_add_u32 %s, %s, %s" % (v(A0 + 2), s(S_T0), v(W_XR1)))
    e("v_add_u32 %s, %s, %s" % (v(A0 + 3), s(S_T1), v(W_XR1)))
    e("s_mov_b32 %s, 0x%x" % (s(S_B), OOB))
    e.label("L_P1")
    e("s_waitcnt vmcnt(6)")
    x_norm(e)
    e("s_waitcnt vmcnt(0) lgkmcnt(0)")
    e("s_barrier")
    flag_store(e, S_B)
    e("s_add_u32 %s, %s, 7" % (s(S_A), s(S_SEG)))
    e("s_min_u32 %s, %s, 63" % (s(S_A), s(S_A)))
    x_issue(e, S_A)
    project(e, "KVQ", (A0, A0 + 1), (A0 + 2, A0 + 3))
    e("s_barrier")
    KP, VP, QP = XO, XO + 8, R0 + 68
    pack_qk(e, AK, KP, True)
    pack_v(e, VP)
    pack_qk(e, AQ, QP, False)
    e("s_mul_i32 %s, %s, 0x%x" % (s(S_A), s(S_SEG), C.SLAB_ST))
    e("s_lshl_b32 %s, %s, 14" % (s(S_T0), s(S_H)))
    e("s_add_u32 %s, %s, %s" % (s(S_A), s(S_A), s(S_T0)))
    e("s_add_u32 %s, %s, 0x%x" % (s(S_A), s(S_A), C.SLAB_OFF))
    e("s_lshr_b32 %s, %s, 1" % (s(S_T0), s(S_WAVE)))
    e("s_lshl_b32 %s, %s, 12" % (s(S_T0), s(S_T0)))
    e("s_xor_b32 %s, %s, 4096" % (s(S_T1), s(S_T0)))
    e("s_add_u32 %s, %s, %s" % (s(S_T0), s(S_T0), s(S_A)))
    e("s_add_u32 %s, %s, %s" % (s(S_T1), s(S_T1), s(S_A)))
    e("buffer_store_dwordx4 %s, %s, %s, %s offen sc1" % (v(KP, 4), v(W_EX), ws, s(S_T0)))
    e("buffer_store_dwordx4 %s, %s, %s, %s offen sc1" % (v(KP + 4, 4), v(W_EX), ws, s(S_T1)))
    e("s_add_u32 %s, %s, 8192" % (s(S_A), s(S_A)))
    e("buffer_store_dwordx4 %s, %s, %s, %s offen sc1" % (v(VP, 4), v(W_MW), ws, s(S_A)))
    e("buffer_store_dwordx4 %s, %s, %s, %s offen offset:1024 sc1" % (v(VP + 4, 4), v(W_MW), ws, s(S_A)))
    e("s_add_u32 %s, %s, 0x%x" % (s(S_T0), s(S_T0), Q_DELTA))
    e("s_add_u32 %s, %s, 0x%x" % (s(S_T1), s(S_T1), Q_DELTA))
    e("buffer_store_dwordx4 %s, %s, %s, %s offen sc1" % (v(QP, 4), v(W_EX), ws, s(S_T0)))
    e("buffer_store_dwordx4 %s, %s, %s, %s offen sc1" % (v(QP + 4, 4), v(W_EX), ws, s(S_T1)))
    e("s_lshl_b32 %s, %s, 8" % (s(S_B), s(S_H)))
    e("s_lshl_b32 %s, %s, 2" % (s(S_T0), s(S_SEG)))
    e("s_add_u32 %s, %s, %s" % (s(S_B), s(S_B), s(S_T0)))
    e("s_add_u32 %s, %s, 0x%x" % (s(S_B), s(S_B), FLAGKV))
    e("s_add_u32 %s, %s, 7" % (s(S_SEG), s(S_SEG)))
    e("s_cmp_lt_u32 %s, 64" % s(S_SEG))
    e("s_cbranch_scc1 L_P1")
    signal(e, S_B)


def phase2(e):
    ws = s(S_WS, 4)
    e("s_mov_b32 %s, %s" % (s(S_SEG), s(S_R)))
    e.label("L_P2")
    QO, KO, VP = R0, R0 + 32, R0 + 104
    e("s_mul_i32 %s, %s, 0x%x" % (s(S_A), s(S_SEG), C.SLAB_ST))
    e("s_lshl_b32 %s, %s, 14" % (s(S_T0), s(S_H)))
    e("s_add_u32 %s, %s, %s" % (s(S_A), s(S_A), s(S_T0)))
    e("s_add_u32 %s, %s, 0x%x" % (s(S_A), s(S_A), C.SLAB_OFF))
    for kap in range(2):
        e("s_add_u32 %s, %s, %d" % (s(S_T0), s(S_A), kap * 4096))
        e("s_add_u32 %s, %s, 0x%x" % (s(S_T1), s(S_T0), Q_DELTA))
        for ks in range(4):
            e("buffer_load_dwordx4 %s, %s, %s, %s offen offset:%d sc1" % (v(KO + 16 * kap + 4 * ks, 4), v(W_L16), ws, s(S_T0), ks * 1024))
            e("buffer_load_dwordx4 %s, %s, %s, %s offen offset:%d sc1" % (v(QO + 16 * kap + 4 * ks, 4), v(W_L16), ws, s(S_T1), ks * 1024))
    e("s_add_u32 %s, %s, 8192" % (s(S_A), s(S_A)))
    e("buffer_load_dwordx4 %s, %s, %s, %s offen sc1" % (v(VP, 4), v(W_MW), ws, s(S_A)))
    e("buffer_load_dwordx4 %s, %s, %s, %s offen offset:1024 sc1" % (v(VP + 4, 4), v(W_MW), ws, s(S_A)))
    e("s_waitcnt vmcnt(0)")
    e("s_cmp_lt_u32 %s, 2" % s(S_WAVE))
    e("s_cbranch_scc1 L_P2_noswap")
    for T in range(2):
        for q in range(2):
            e("v_swap_b32 %s, %s" % (v(VP + 4 * T + q), v(VP + 4 * T + 2 + q)))
    e.label("L_P2_noswap")
    e("s_nop 1")
    S00, S01, S11, SM0, SM1 = R0 + 64, R0 + 68, R0 + 72, R0 + 76, R0 + 80
    for (d, kk, kq) in ((S00, 0, 0), (S01, 0, 1), (S11, 1, 1)):
        for ks in range(4):
            e(mf32(d, v(KO + 16 * kk + 4 * ks, 4), v(QO + 16 * kq + 4 * ks, 4), ks == 0))
    MB = KO
    e("s_lshl_b32 %s, %s, 13" % (s(S_A), s(S_SEG)))
    e("s_add_u32 %s, %s, 0x%x" % (s(S_A), s(S_A), C.HIST_OFF))
    e.label("L_P2_poll")
    e("buffer_load_dwordx4 %s, %s, %s, %s offen sc1" % (v(MB, 4), v(W_MW), ws, s(S_A)))
    e("buffer_load_dwordx4 %s, %s, %s, %s offen offset:1024 sc1" % (v(MB + 4, 4), v(W_MW), ws, s(S_A)))
    e("s_add_u32 %s, %s, 1" % (s(S_TMO), s(S_TMO)))
    e("s_cmp_gt_u32 %s, %d" % (s(S_TMO), TMO_LIMIT))
    e("s_waitcnt vmcnt(0)")
    e("v_max3_u32 %s, %s, %s, %s" % (v(T0), v(MB), v(MB + 1), v(MB + 2)))
    e("v_max3_u32 %s, %s, %s, %s" % (v(T1), v(MB + 3), v(MB + 4), v(MB + 5)))
    e("v_max3_u32 %s, %s, %s, %s" % (v(T0), v(T0), v(MB + 6), v(MB + 7)))
    e("v_max_u32 %s, %s, %s" % (v(T0), v(T0), v(T1)))
    e("s_cbranch_scc1 L_P2_got")
    e("v_cmp_eq_u32 vcc, -1, %s" % v(T0))
    e("s_cbranch_vccz L_P2_got")
    e("s_sleep 4")
    e("s_branch L_P2_poll")
    e.label("L_P2_got")
    e("ds_write_b128 %s, %s offset:%d" % (v(W_MW), v(MB, 4), MEMI))
    e("ds_write_b128 %s, %s offset:%d" % (v(W_MW), v(MB + 4, 4), MEMI + 1024))
    e("s_waitcnt lgkmcnt(0)")
    e("s_barrier")
    AKM, AVM = R0 + 84, R0 + 92
    MO = KO
    moff = lambda ks: ((ks & 3) * 128 + ((ks >> 2) & 1) * 32 + (ks >> 3) * 64) * 16
    rdm = lambda ks: e("ds_read_b128 %s, %s offset:%d" % (v(MO + 4 * (ks % 8), 4), v(W_MR), moff(ks)))
    for ks in range(4):
        rdm(ks)
    for ks in range(16):
        if ks + 4 < 16:
            rdm(ks + 4)
        e("s_waitcnt lgkmcnt(%d)" % min(4, 15 - ks))
        x = v(MO + 4 * (ks % 8), 4)
        for T in range(2):
            e(mf32(AKM + 4 * T, wreg("K", T, ks), x, ks == 0))
        for T in range(2):
            e(mf32(AVM + 4 * T, x, wreg("V", T, ks), ks == 0))
    KMP = KO
    for r in range(8):
        e("v_mul_f32 %s, %s, %s" % (v(AKM + r), s(S_SCALE), v(AKM + r)))
    for r in range(4):
        e(cvt(KMP + r, AKM + r, AKM + 4 + r))
    e("ds_write_b128 %s, %s offset:%d" % (v(W_EX), v(KMP, 4), EX_KM))
    VMP = R0 + 100
    for T in range(2):
        e(cvt(VMP + 2 * T, AVM + 4 * T, AVM + 4 * T + 1))
        e(cvt(VMP + 2 * T + 1, AVM + 4 * T + 2, AVM + 4 * T + 3))
    e("s_waitcnt lgkmcnt(0)")
    e("s_barrier")
    KMO = KO + 16
    for ks in range(4):
        e("ds_read_b128 %s, %s offset:%d" % (v(KMO + 4 * ks, 4), v(W_L16), EX_KM + ks * 1024))
    for S_ in (S00, S11):
        for r in range(4):
            e("v_cndmask_b32 %s, %s, %s, %s" % (v(S_ + r), v(W_NEG), v(S_ + r), s(S_M0 + 2 * r, 2)))
    e("s_waitcnt lgkmcnt(0)")
    for (d, kq) in ((SM0, 0), (SM1, 1)):
        for ks in range(4):
            e(mf32(d, v(KMO + 4 * ks, 4), v(QO + 16 * kq + 4 * ks, 4), ks == 0))
    for S_ in (SM0, SM1):
        for r in range(4):
            e("v_cndmask_b32 %s, %s, %s, %s" % (v(S_ + r), v(W_NEG), v(S_ + r), s(S_MM, 2)))
    MX0, MX1 = KO, KO + 1
    g0 = [S00 + r for r in range(4)] + [SM0 + r for r in range(4)]
    g1 = [S01 + r for r in range(4)] + [S11 + r for r in range(4)] + [SM1 + r for r in range(4)]
    for mx, g_ in ((MX0, g0), (MX1, g1)):
        e("v_max_f32 %s, %s, %s" % (v(mx), v(g_[0]), v(g_[1])))
        for i in range(2, len(g_), 2):
            e("v_max3_f32 %s, %s, %s, %s" % (v(mx), v(mx), v(g_[i]), v(g_[i + 1])))
    for sw in ("v_permlane16_swap_b32", "v_permlane32_swap_b32"):
        for mx in (MX0, MX1):
            e("v_mov_b32 %s, %s" % (v(T0), v(mx)))
            e("%s %s, %s" % (sw, v(mx), v(T0)))
            e("v_max_f32 %s, %s, %s" % (v(mx), v(mx), v(T0)))
    for mx, g_ in ((MX0, g0), (MX1, g1)):
        for r in g_:
            e("v_sub_f32 %s, %s, %s" % (v(r), v(r), v(mx)))
            e("v_exp_f32 %s, %s" % (v(r), v(r)))
    P0, P1, PM0, PM1, ONES = R0, R0 + 4, R0 + 8, R0 + 10, R0 + 12
    e(cvt(P0, S00, S00 + 1)); e(cvt(P0 + 1, S00 + 2, S00 + 3))
    e("v_mov_b64 %s, 0" % v(P0 + 2, 2))
    e(cvt(P1, S01, S01 + 1)); e(cvt(P1 + 1, S01 + 2, S01 + 3))
    e(cvt(P1 + 2, S11, S11 + 1)); e(cvt(P1 + 3, S11 + 2, S11 + 3))
    for pm, S_ in ((PM0, SM0), (PM1, SM1)):
        e(cvt(pm, S_, S_ + 1)); e(cvt(pm + 1, S_ + 2, S_ + 3))
    e("v_mov_b64 %s, %s" % (v(ONES, 2), s(S_ONES, 2)))
    e("v_mov_b64 %s, %s" % (v(ONES + 2, 2), s(S_ONES, 2)))
    LS, OA = R0 + 16, R0 + 24
    for kq, P_ in ((0, P0), (1, P1)):
        e(mf32(LS + 4 * kq, v(ONES, 4), v(P_, 4), True))
        for T in range(2):
            e(mf32(OA + 8 * kq + 4 * T, v(VP + 4 * T, 4), v(P_, 4), True))
    for kq, PM_ in ((0, PM0), (1, PM1)):
        e("v_mfma_f32_16x16x16_bf16 %s, %s, %s, %s" % (v(LS + 4 * kq, 4), v(ONES, 2), v(PM_, 2), v(LS + 4 * kq, 4)))
        for T in range(2):
            d = OA + 8 * kq + 4 * T
            e("v_mfma_f32_16x16x16_bf16 %s, %s, %s, %s" % (v(d, 4), v(VMP + 2 * T, 2), v(PM_, 2), v(d, 4)))
    OP = R0 + 40
    for kq in range(2):
        e("v_rcp_f32 %s, %s" % (v(T0), v(LS + 4 * kq)))
        for r in range(8):
            e("v_mul_f32 %s, %s, %s" % (v(OA + 8 * kq + r), v(OA + 8 * kq + r), v(T0)))
        for r in range(4):
            e(cvt(OP + 4 * kq + r, OA + 8 * kq + r, OA + 8 * kq + 4 + r))
        e("ds_write_b128 %s, %s offset:%d" % (v(W_EX), v(OP + 4 * kq, 4), EX_O + kq * 4096))
    e("s_waitcnt lgkmcnt(0)")
    e("s_barrier")
    OO = R0
    WB = R0 + 32
    WA = R0 + 48
    for kq in range(2):
        for ks in range(4):
            e("ds_read_b128 %s, %s offset:%d" % (v(OO + 16 * kq + 4 * ks, 4), v(W_L16), EX_O + kq * 4096 + ks * 1024))
    seq = [(ks, T) for ks in range(4) for T in range(8)]
    rdw = lambda i: e("ds_read_b128 %s, %s offset:%d" % (v(WB + 4 * (i % 4), 4), v(W_WO), (seq[i][0] * 8 + seq[i][1]) * 1024))
    for i in range(3):
        rdw(i)
    for i, (ks, T) in enumerate(seq):
        if i + 3 < 32:
            rdw(i + 3)
        e("s_waitcnt lgkmcnt(%d)" % min(3, 31 - i))
        for kq in range(2):
            e(mf32(WA + 32 * kq + 4 * T, v(OO + 16 * kq + 4 * ks, 4), v(WB + 4 * (i % 4), 4), ks == 0))
    e("s_lshl_b32 %s, %s, 20" % (s(S_A), s(S_SEG)))
    e("s_lshl_b32 %s, %s, 10" % (s(S_T0), s(S_H)))
    e("s_add_u32 %s, %s, %s" % (s(S_A), s(S_A), s(S_T0)))
    e("s_add_u32 %s, %s, 0x%x" % (s(S_A), s(S_A), TP_OFF))
    for kq in range(2):
        for r in range(4):
            d = OO + (4 * kq + r) * 4
            for q in range(4):
                e(cvt(d + q, WA + 32 * kq + 8 * q + r, WA + 32 * kq + 8 * q + 4 + r))
            e("s_add_u32 %s, %s, 0x%x" % (s(S_T0), s(S_A), (16 * kq + r) * 32768))
            e("buffer_store_dwordx4 %s, %s, %s, %s offen sc1" % (v(d, 4), v(W_TPW), ws, s(S_T0)))
    e("s_lshl_b32 %s, %s, 7" % (s(S_B), s(S_SEG)))
    e("s_add_u32 %s, %s, 0x%x" % (s(S_B), s(S_B), FLAGTP))
    e("s_lshl_b32 %s, %s, 2" % (s(S_T0), s(S_H)))
    e("s_add_u32 %s, %s, %s" % (s(S_A), s(S_B), s(S_T0)))
    signal(e, S_A)
    SEL, XV, WRV = R0 + 32, R0 + 36, R0 + 37
    e("v_and_b32 %s, 15, v0" % v(T1))
    for q in range(4):
        e("v_mov_b32 %s, 0" % v(SEL + q))
        e("v_mov_b32 %s, 0x3f80" % v(T0))
        e("v_cmp_eq_u32 vcc, %d, %s" % (4 * q, v(T1)))
        e("v_cndmask_b32 %s, %s, %s, vcc" % (v(SEL + q), v(SEL + q), v(T0)))
        e("v_mov_b32 %s, 0x3f800000" % v(T0))
        e("v_cmp_eq_u32 vcc, %d, %s" % (4 * q + 1, v(T1)))
        e("v_cndmask_b32 %s, %s, %s, vcc" % (v(SEL + q), v(SEL + q), v(T0)))
    e("s_lshl_b32 %s, %s, 5" % (s(S_A), s(S_SEG)))
    e("s_add_u32 %s, %s, %s" % (s(S_A), s(S_A), s(S_H)))
    e("s_lshl_b32 %s, %s, 10" % (s(S_A), s(S_A)))
    e("buffer_load_dword %s, %s, %s, %s offen" % (v(XV), v(W_ROW), s(S_X, 4), s(S_A)))
    e("buffer_load_dword %s, %s, %s, 0 offen" % (v(WRV), v(W_ROW), s(S_WR, 4)))
    e("v_lshrrev_b32 %s, 2, %s" % (v(T1), v(W_L16)))
    e("v_and_b32 %s, 127, %s" % (v(T1), v(T1)))
    e.label("L_P3_poll")
    e("buffer_load_dword %s, %s, %s, %s offen sc1" % (v(T0), v(T1), ws, s(S_B)))
    e("s_add_u32 %s, %s, 1" % (s(S_TMO), s(S_TMO)))
    e("s_cmp_gt_u32 %s, %d" % (s(S_TMO), TMO_LIMIT))
    e("s_waitcnt vmcnt(0)")
    e("s_cbranch_scc1 L_P3_got")
    e("v_cmp_eq_u32 vcc, 0, %s" % v(T0))
    e("s_cbranch_vccnz L_P3_poll")
    e.label("L_P3_got")
    e("s_lshl_b32 %s, %s, 5" % (s(S_T0), s(S_A)))
    e("s_add_u32 %s, %s, 0x%x" % (s(S_T0), s(S_T0), TP_OFF))
    PD = R0
    for u in range(8):
        e("buffer_load_dwordx4 %s, %s, %s, %s offen sc1" % (v(PD + 4 * u, 4), v(W_TPR), ws, s(S_T0)))
        if u < 7:
            e("s_add_u32 %s, %s, 4096" % (s(S_T0), s(S_T0)))
    RD = R0 + 40
    for u in range(8):
        e("s_waitcnt vmcnt(%d)" % (7 - u))
        e(mf32(RD, v(SEL, 4), v(PD + 4 * u, 4), u == 0))
    H0, H1, HP, SU, SQ, A_, B_, XP = range(R0 + 44, R0 + 52)
    lo = lambda d, x: e("v_lshlrev_b32 %s, 16, %s" % (v(d), v(x)))
    hi = lambda d, x: e("v_and_b32 %s, 0xffff0000, %s" % (v(d), v(x)))
    e(cvt(HP, RD, RD + 1))
    lo(A_, HP); hi(B_, HP)
    lo(H0, XV); hi(H1, XV)
    e("v_add_f32 %s, %s, %s" % (v(H0), v(H0), v(A_)))
    e("v_add_f32 %s, %s, %s" % (v(H1), v(H1), v(B_)))
    e(cvt(HP, H0, H1))
    lo(H0, HP); hi(H1, HP)
    e("v_add_f32 %s, %s, %s" % (v(SU), v(H0), v(H1)))
    e("v_mul_f32 %s, %s, %s" % (v(SQ), v(H0), v(H0)))
    e("v_fmac_f32 %s, %s, %s" % (v(SQ), v(H1), v(H1)))
    wave_sum(e, [SU, SQ], T0)
    e("v_mov_b32 %s, %s" % (v(T1), s(S_WAVE)))
    e("v_lshlrev_b32 %s, 3, %s" % (v(T1), v(T1)))
    e("v_add_u32 %s, %d, %s" % (v(T1), RED, v(T1)))
    e("ds_write2_b32 %s, %s, %s offset0:0 offset1:1" % (v(T1), v(SU), v(SQ)))
    e("s_add_u32 %s, %s, 0x%x" % (s(S_T0), s(S_A), HROW))
    e("buffer_store_dword %s, %s, %s, %s offen sc1" % (v(HP), v(W_ROW), ws, s(S_T0)))
    e("s_waitcnt lgkmcnt(0)")
    e("s_barrier")
    RR = R0 + 52
    e("v_mov_b32 %s, %d" % (v(T1), RED))
    e("ds_read_b128 %s, %s" % (v(RR, 4), v(T1)))
    e("ds_read_b128 %s, %s offset:16" % (v(RR + 4, 4), v(T1)))
    e("s_waitcnt lgkmcnt(0)")
    for k, d in ((0, SU), (1, SQ)):
        e("v_add_f32 %s, %s, %s" % (v(d), v(RR + k), v(RR + 2 + k)))
        e("v_add_f32 %s, %s, %s" % (v(d), v(d), v(RR + 4 + k)))
        e("v_add_f32 %s, %s, %s" % (v(d), v(d), v(RR + 6 + k)))
        e("v_mul_f32 %s, 0x%x, %s" % (v(d), f32bits(1 / 512), v(d)))
    e("v_fma_f32 %s, -%s, %s, %s" % (v(SQ), v(SU), v(SU), v(SQ)))
    e("v_max_f32 %s, 0, %s" % (v(SQ), v(SQ)))
    e(cvt(T0, SU, SQ))
    lo(SU, T0); hi(SQ, T0)
    e("v_add_f32 %s, 0x%x, %s" % (v(SQ), f32bits(1e-5), v(SQ)))
    e(cvt(T0, SQ, SQ)); lo(SQ, T0)
    e("v_sqrt_f32 %s, %s" % (v(SQ), v(SQ)))
    e(cvt(T0, SQ, SQ)); lo(SQ, T0)
    e("v_rcp_f32 %s, %s" % (v(SQ), v(SQ)))
    e("v_sub_f32 %s, %s, %s" % (v(A_), v(H0), v(SU)))
    e("v_sub_f32 %s, %s, %s" % (v(B_), v(H1), v(SU)))
    e(cvt(T0, A_, B_)); lo(A_, T0); hi(B_, T0)
    e("v_mul_f32 %s, %s, %s" % (v(A_), v(A_), v(SQ)))
    e("v_mul_f32 %s, %s, %s" % (v(B_), v(B_), v(SQ)))
    e(cvt(XP, A_, B_))
    lo(A_, XP); hi(B_, XP)
    e("s_add_u32 %s, %s, 0x%x" % (s(S_T0), s(S_A), XN2))
    e("buffer_store_dword %s, %s, %s, %s offen sc1" % (v(XP), v(W_ROW), ws, s(S_T0)))
    e("v_add_f32 %s, %s, %s" % (v(H0), v(H0), v(A_)))
    e("v_add_f32 %s, %s, %s" % (v(H1), v(H1), v(B_)))
    e(cvt(HP, H0, H1))
    e("buffer_store_dword %s, %s, %s, %s offen sc1" % (v(HP), v(W_ROW), s(S_OUT, 4), s(S_A)))
    lo(H0, WRV); hi(H1, WRV)
    e("v_mul_f32 %s, %s, %s" % (v(SU), v(A_), v(H0)))
    e("v_fmac_f32 %s, %s, %s" % (v(SU), v(B_), v(H1)))
    wave_sum(e, [SU], T0)
    e("s_lshr_b32 %s, %s, 6" % (s(S_T0), s(S_A)))
    e("s_lshl_b32 %s, %s, 2" % (s(S_T1), s(S_WAVE)))
    e("s_add_u32 %s, %s, %s" % (s(S_T0), s(S_T0), s(S_T1)))
    e("s_add_u32 %s, %s, 0x%x" % (s(S_T0), s(S_T0), RVAL))
    e("v_cmp_ne_u32 vcc, 0, %s" % v(W_L16))
    e("v_mov_b32 %s, 0x%x" % (v(T1), OOB))
    e("v_cndmask_b32 %s, %s, %s, vcc" % (v(T1), v(W_L16), v(T1)))
    e("s_waitcnt vmcnt(0)")
    e("buffer_store_dword %s, %s, %s, %s offen sc1" % (v(SU), v(T1), ws, s(S_T0)))
    e("s_barrier")
    e("s_add_u32 %s, %s, 7" % (s(S_SEG), s(S_SEG)))
    e("s_cmp_lt_u32 %s, 64" % s(S_SEG))
    e("s_cbranch_scc1 L_P2")
```

```python
import sys
from asmlib import Emitter, v, a, s
import chain as C
for a_ in sys.argv:
    if a_.startswith('opt:'):
        k_, v_ = a_[4:].split('=')
        C.OPT[k_] = int(v_, 0) if v_[:1].isdigit() else v_.replace('_', ' ')
import worker as W
import tail2 as T2

BASE = "sequential_preLN__memory_aug_recurrent_mem_tr__moe_arch_mod__prompt"
K1 = BASE + "_kernel"
K2 = "route_up_kernel"
K3 = "down_kernel"
hdr = open("/code/%s.s.ref" % BASE).read().split("\n")
hdr = [l for l in hdr[:hdr.index(next(l for l in hdr if "@launch" in l and l.startswith("; @launch")))] if "harness parses" not in l.lower() and "Override launch" not in l]
e = Emitter()
for l in hdr:
    e.raw(l)
if C.OPT.get("list"):
    e.raw("; @launch kernel=%s grid=(256,1,1) block=(256,1,1) lds=%d" % (K1, C.LDS_BYTES))
else:
    e.raw("; @launch grid=(256,1,1) block=(256,1,1) lds=%d" % C.LDS_BYTES)
e.raw('.amdgcn_target "amdgcn-amd-amdhsa--gfx950"')
e.raw(".text")


def start(name):
    e.raw(".globl %s\n.p2align 8\n.type %s,@function" % (name, name))
    e.label(name)
    e.hist = []


PROF = C.OPT.get("prof", 0)


def rt(i):
    if not PROF:
        return
    e("s_memrealtime s[100:101]")
    e("s_lshl_b32 s3, s2, 6")
    e("s_add_u32 s3, s3, 0x%x" % C.STAMP_OFF)
    e("s_waitcnt lgkmcnt(0)")
    e("v_mov_b32 v14, s100")
    e("v_mov_b32 v15, 0")
    e("buffer_store_dword v14, v15, %s, s3 offen offset:%d" % (s(C.S_WS, 4), 4 * i))
    e("s_waitcnt vmcnt(0)")


start(K1)
P = C.S_PTR
e("s_cmp_ge_u32 s2, 256")
e("s_cbranch_scc1 L_end")
e("s_load_dwordx8 %s, s[0:1], 0" % s(P, 8))
e("s_load_dwordx4 %s, s[0:1], 32" % s(P + 8, 4))
e("s_load_dwordx4 %s, s[0:1], 104" % s(P + 12, 4))
e("s_load_dwordx2 s[80:81], s[0:1], 64")
e("s_load_dwordx2 s[82:83], s[0:1], 96")
e("s_load_dwordx4 s[84:87], s[0:1], 72")
e("s_load_dwordx2 s[88:89], s[0:1], 88")
e("v_lshrrev_b32 v1, 6, v0")
e("v_readfirstlane_b32 %s, v1" % s(C.S_WAVE))
e("s_waitcnt lgkmcnt(0)")
C.srd(e, C.S_WS, P + 14, C.WS_BYTES)
C.srd(e, C.S_DBG, P + 12, 256)
rt(0)
e("s_and_b32 s3, s2, 7")
e("s_cmp_lg_u32 s3, 0")
e("s_cbranch_scc1 L_worker")
e("s_lshr_b32 %s, s2, 3" % s(C.S_H))
C.setup_consts(e)
C.load_weights(e, P + 4, P + 6, P + 8, P + 10, pre=lambda q: C.init_issue(e, P + 2, q))
C.setup_pf(e)
rt(1)
C.handshake_wait(e, "L_fast_start", "L_slow_start")
C.main_loop(e, "fast", "", 63)
rt(2)
e("s_branch L_end")
C.main_loop(e, "slow", " sc1", 63)
e("s_branch L_end")
e.label("L_worker")
C.srd(e, W.S_X, P, 2048 * 512 * 2)
C.srd(e, W.S_OUT, 82, 2048 * 512 * 2)
C.srd(e, W.S_WR, 80, 1024)
W.setup(e, P)
e("s_mov_b32 %s, %s" % (s(W.S_SEG), s(W.S_R)))
if C.OPT.get("touch", 1):
    e.comment("pull this head's Wo slice towards the last-level cache early (the chain CU streams it first)")
    C.srd(e, 96, P + 10, 4096 * 512 * 2)
    e("s_lshl_b32 s3, %s, 17" % s(C.S_H))
    e("s_and_b32 s28, %s, 3" % s(W.S_R))
    e("s_lshl_b32 s28, s28, 15")
    e("s_add_u32 s3, s3, s28")
    e("v_lshlrev_b32 v30, 7, v0")
    e("buffer_load_dword v31, v30, s[96:99], s3 offen")
W.x_issue(e, W.S_SEG)
W.load_w(e, P, C.OPT.get("word", "VKQ"))
rt(1)
W.wait_handshake(e)
W.phase1(e)
rt(2)
W.load_wo(e, P)
rt(3)
W.phase2(e)
rt(4)
e("s_cmp_eq_u32 %s, 3" % s(W.S_R))
e("s_cbranch_scc1 L_stageB")
e("s_sub_u32 s25, %s, 1" % s(W.S_R))
e("s_cmp_ge_u32 s25, 2")
e("s_cbranch_scc1 L_end")
e("s_cmp_ge_u32 %s, 28" % s(C.S_H))
e("s_cbranch_scc1 L_end")
e("s_lshl_b32 s3, %s, 1" % s(C.S_H))
e("s_add_u32 s25, s25, s3")
T2.stage_a(e, 84, 86, 25)
e.label("L_stageB")
T2.stage_b(e, 88, C.S_H)
e.label("L_end")
if PROF:
    e("s_cmp_ge_u32 s2, 256")
    e("s_cbranch_scc1 L_end2")
    rt(5)
    e.label("L_end2")
e("s_endpgm")
e.raw('.section .rodata,"a"')
for name, nv, acc in ((K1, 512, 256),):
    e.raw(""".p2align 6
.amdhsa_kernel %s
  .amdhsa_next_free_vgpr %d
  .amdhsa_next_free_sgpr 102
  .amdhsa_accum_offset %d
  .amdhsa_group_segment_fixed_size 0
  .amdhsa_kernarg_size 120
  .amdhsa_user_sgpr_count 2
  .amdhsa_user_sgpr_kernarg_segment_ptr 1
  .amdhsa_system_sgpr_workgroup_id_x 1
.end_amdhsa_kernel""" % (name, nv, acc))
out = sys.argv[1] if len(sys.argv) > 1 and not sys.argv[1].startswith("opt:") else "/code/%s.s" % BASE
open(out, "w").write(e.text())
print("nops inserted:", e.nops_inserted, "lines:", len(e.lines), "->", out)
```

```python
import sys
from asmlib import Emitter, v, a, s
import chain as C
for a_ in sys.argv:
    if a_.startswith('opt:'):
        k_, v_ = a_[4:].split('=')
        C.OPT[k_] = int(v_, 0) if v_[:1].isdigit() else v_.replace('_', ' ')
import worker as W
import tail2 as T2

BASE = "sequential_preLN__memory_aug_recurrent_mem_tr__moe_arch_mod__prompt"
K1 = BASE + "_kernel"
K2 = "route_up_kernel"
K3 = "down_kernel"
hdr = open("/code/%s.s.ref" % BASE).read().split("\n")
hdr = [l for l in hdr[:hdr.index(next(l for l in hdr if "@launch" in l and l.startswith("; @launch")))] if "harness parses" not in l.lower() and "Override launch" not in l]
e = Emitter()
for l in hdr:
    e.raw(l)
if C.OPT.get("list"):
    e.raw("; @launch kernel=%s grid=(256,1,1) block=(256,1,1) lds=%d" % (K1, C.LDS_BYTES))
else:
    e.raw("; @launch grid=(256,1,1) block=(256,1,1) lds=%d" % C.LDS_BYTES)
e.raw('.amdgcn_target "amdgcn-amd-amdhsa--gfx950"')
e.raw(".text")


def start(name):
    e.raw(".globl %s\n.p2align 8\n.type %s,@function" % (name, name))
    e.label(name)
    e.hist = []


PROF = C.OPT.get("prof", 0)


def rt(i, dbg=None):
    if not PROF:
        return
    if PROF == 2:
        if dbg is None:
            return
        e("s_memrealtime s[100:101]")
        e("s_waitcnt lgkmcnt(0)")
        e("s_and_b32 s100, s100, 0xffffff")
        if dbg == 0:
            e("s_sub_u32 s100, 0x1000000, s100")
        e("v_mov_b32 v14, s100")
        e("v_mov_b32 v15, 0")
        e("s_mov_b64 exec, 1")
        e("buffer_atomic_umax v14, v15, %s, 0 offen offset:%d" % (s(C.S_DBG, 4), 4 * dbg))
        e("s_mov_b64 exec, -1")
        return
    e("s_memrealtime s[100:101]")
    e("s_lshl_b32 s3, s2, 6")
    e("s_add_u32 s3, s3, 0x%x" % C.STAMP_OFF)
    e("s_waitcnt lgkmcnt(0)")
    e("v_mov_b32 v14, s100")
    e("v_mov_b32 v15, 0")
    e("buffer_store_dword v14, v15, %s, s3 offen offset:%d" % (s(C.S_WS, 4), 4 * i))
    e("s_waitcnt vmcnt(0)")


start(K1)
P = C.S_PTR
e("s_cmp_ge_u32 s2, 256")
e("s_cbranch_scc1 L_end")
e("s_load_dwordx8 %s, s[0:1], 0" % s(P, 8))
e("s_load_dwordx4 %s, s[0:1], 32" % s(P + 8, 4))
e("s_load_dwordx4 %s, s[0:1], 104" % s(P + 12, 4))
e("s_load_dwordx2 s[80:81], s[0:1], 64")
e("s_load_dwordx2 s[82:83], s[0:1], 96")
e("s_load_dwordx4 s[84:87], s[0:1], 72")
e("s_load_dwordx2 s[88:89], s[0:1], 88")
e("v_lshrrev_b32 v1, 6, v0")
e("v_readfirstlane_b32 %s, v1" % s(C.S_WAVE))
e("s_waitcnt lgkmcnt(0)")
C.srd(e, C.S_WS, P + 14, C.WS_BYTES)
C.srd(e, C.S_DBG, P + 12, 256)
rt(0, 0)
e("s_and_b32 s3, s2, 7")
e("s_cmp_lg_u32 s3, 0")
e("s_cbranch_scc1 L_worker")
e("s_lshr_b32 %s, s2, 3" % s(C.S_H))
C.setup_consts(e)
C.load_weights(e, P + 4, P + 6, P + 8, P + 10, pre=lambda q: C.init_issue(e, P + 2, q))
C.setup_pf(e)
rt(1, 1)
C.handshake_wait(e, "L_fast_start", "L_slow_start")
C.main_loop(e, "fast", "", 63)
rt(2, 2)
e("s_branch L_end")
C.main_loop(e, "slow", " sc1", 63)
e("s_branch L_end")
e.label("L_worker")
C.srd(e, W.S_X, P, 2048 * 512 * 2)
C.srd(e, W.S_OUT, 82, 2048 * 512 * 2)
C.srd(e, W.S_WR, 80, 1024)
W.setup(e, P)
e("s_mov_b32 %s, %s" % (s(W.S_SEG), s(W.S_R)))
if C.OPT.get("touch", 1):
    e.comment("pull this head's Wo slice towards the last-level cache early (the chain CU streams it first)")
    C.srd(e, 96, P + 10, 4096 * 512 * 2)
    e("s_lshl_b32 s3, %s, 17" % s(C.S_H))
    e("s_and_b32 s28, %s, 3" % s(W.S_R))
    e("s_lshl_b32 s28, s28, 15")
    e("s_add_u32 s3, s3, s28")
    e("v_lshlrev_b32 v30, 7, v0")
    e("buffer_load_dword v31, v30, s[96:99], s3 offen")
W.x_issue(e, W.S_SEG)
W.load_w(e, P, C.OPT.get("word", "VKQ"))
rt(1, 3)
W.wait_handshake(e)
W.phase1(e)
rt(2, 4)
W.load_wo(e, P)
rt(3)
W.phase2(e)
rt(4, 5)
e("s_cmp_eq_u32 %s, 3" % s(W.S_R))
e("s_cbranch_scc1 L_stageB")
e("s_sub_u32 s25, %s, 1" % s(W.S_R))
e("s_cmp_ge_u32 s25, 2")
e("s_cbranch_scc1 L_end")
e("s_cmp_ge_u32 %s, 28" % s(C.S_H))
e("s_cbranch_scc1 L_end")
e("s_lshl_b32 s3, %s, 1" % s(C.S_H))
e("s_add_u32 s25, s25, s3")
T2.stage_a(e, 84, 86, 25)
e.label("L_stageB")
T2.stage_b(e, 88, C.S_H)
e.label("L_end")
if PROF:
    e("s_cmp_ge_u32 s2, 256")
    e("s_cbranch_scc1 L_end2")
    rt(5, 6)
    e.label("L_end2")
e("s_endpgm")
e.raw('.section .rodata,"a"')
for name, nv, acc in ((K1, 512, 256),):
    e.raw(""".p2align 6
.amdhsa_kernel %s
  .amdhsa_next_free_vgpr %d
  .amdhsa_next_free_sgpr 102
  .amdhsa_accum_offset %d
  .amdhsa_group_segment_fixed_size 0
  .amdhsa_kernarg_size 120
  .amdhsa_user_sgpr_count 2
  .amdhsa_user_sgpr_kernarg_segment_ptr 1
  .amdhsa_system_sgpr_workgroup_id_x 1
.end_amdhsa_kernel""" % (name, nv, acc))
out = sys.argv[1] if len(sys.argv) > 1 and not sys.argv[1].startswith("opt:") else "/code/%s.s" % BASE
open(out, "w").write(e.text())
print("nops inserted:", e.nops_inserted, "lines:", len(e.lines), "->", out)
```

```python
import sys
from asmlib import Emitter, v, a, s
import chain as C
for a_ in sys.argv:
    if a_.startswith('opt:'):
        k_, v_ = a_[4:].split('=')
        C.OPT[k_] = int(v_, 0) if v_[:1].isdigit() else v_.replace('_', ' ')
import worker as W
import tail2 as T2

BASE = "sequential_preLN__memory_aug_recurrent_mem_tr__moe_arch_mod__prompt"
K1 = BASE + "_kernel"
K2 = "route_up_kernel"
K3 = "down_kernel"
hdr = open("/code/%s.s.ref" % BASE).read().split("\n")
hdr = [l for l in hdr[:hdr.index(next(l for l in hdr if "@launch" in l and l.startswith("; @launch")))] if "harness parses" not in l.lower() and "Override launch" not in l]
e = Emitter()
for l in hdr:
    e.raw(l)
if C.OPT.get("list"):
    e.raw("; @launch kernel=%s grid=(256,1,1) block=(256,1,1) lds=%d" % (K1, C.LDS_BYTES))
else:
    e.raw("; @launch grid=(256,1,1) block=(256,1,1) lds=%d" % C.LDS_BYTES)
e.raw('.amdgcn_target "amdgcn-amd-amdhsa--gfx950"')
e.raw(".text")


def start(name):
    e.raw(".globl %s\n.p2align 8\n.type %s,@function" % (name, name))
    e.label(name)
    e.hist = []


PROF = C.OPT.get("prof", 0)


def rt(i, dbg=None):
    if not PROF:
        return
    if PROF == 2:
        if dbg is None:
            return
        e("s_cmp_lg_u32 %s, 0" % s(C.S_WAVE))
        e("s_cbranch_scc1 L_rt%d" % dbg)
        if dbg in (0, 3, 4):
            e("s_cmp_ge_u32 s2, 16")
            e("s_cbranch_scc1 L_rt%d" % dbg)
        e("s_memrealtime s[100:101]")
        e("s_waitcnt lgkmcnt(0)")
        e("s_and_b32 s100, s100, 0xffffff")
        if dbg == 0:
            e("s_sub_u32 s100, 0x1000000, s100")
        e("v_mov_b32 v14, s100")
        e("v_mov_b32 v15, 0")
        e("s_mov_b64 exec, 1")
        e("buffer_atomic_umax v14, v15, %s, 0 offen offset:%d" % (s(C.S_DBG, 4), 4 * dbg))
        e("s_mov_b64 exec, -1")
        e.label("L_rt%d" % dbg)
        return
    e("s_memrealtime s[100:101]")
    e("s_lshl_b32 s3, s2, 6")
    e("s_add_u32 s3, s3, 0x%x" % C.STAMP_OFF)
    e("s_waitcnt lgkmcnt(0)")
    e("v_mov_b32 v14, s100")
    e("v_mov_b32 v15, 0")
    e("buffer_store_dword v14, v15, %s, s3 offen offset:%d" % (s(C.S_WS, 4), 4 * i))
    e("s_waitcnt vmcnt(0)")


start(K1)
P = C.S_PTR
e("s_cmp_ge_u32 s2, 256")
e("s_cbranch_scc1 L_end")
e("s_load_dwordx8 %s, s[0:1], 0" % s(P, 8))
e("s_load_dwordx4 %s, s[0:1], 32" % s(P + 8, 4))
e("s_load_dwordx4 %s, s[0:1], 104" % s(P + 12, 4))
e("s_load_dwordx2 s[80:81], s[0:1], 64")
e("s_load_dwordx2 s[82:83], s[0:1], 96")
e("s_load_dwordx4 s[84:87], s[0:1], 72")
e("s_load_dwordx2 s[88:89], s[0:1], 88")
e("v_lshrrev_b32 v1, 6, v0")
e("v_readfirstlane_b32 %s, v1" % s(C.S_WAVE))
e("s_waitcnt lgkmcnt(0)")
C.srd(e, C.S_WS, P + 14, C.WS_BYTES)
C.srd(e, C.S_DBG, P + 12, 256)
rt(0, 0)
e("s_and_b32 s3, s2, 7")
e("s_cmp_lg_u32 s3, 0")
e("s_cbranch_scc1 L_worker")
e("s_lshr_b32 %s, s2, 3" % s(C.S_H))
C.setup_consts(e)
C.load_weights(e, P + 4, P + 6, P + 8, P + 10, pre=lambda q: C.init_issue(e, P + 2, q))
C.setup_pf(e)
rt(1, 1)
C.handshake_wait(e, "L_fast_start", "L_slow_start")
C.main_loop(e, "fast", "", 63)
rt(2, 2)
e("s_branch L_end")
C.main_loop(e, "slow", " sc1", 63)
e("s_branch L_end")
e.label("L_worker")
C.srd(e, W.S_X, P, 2048 * 512 * 2)
C.srd(e, W.S_OUT, 82, 2048 * 512 * 2)
C.srd(e, W.S_WR, 80, 1024)
W.setup(e, P)
e("s_mov_b32 %s, %s" % (s(W.S_SEG), s(W.S_R)))
if C.OPT.get("touch", 1):
    e.comment("pull this head's Wo slice towards the last-level cache early (the chain CU streams it first)")
    C.srd(e, 96, P + 10, 4096 * 512 * 2)
    e("s_lshl_b32 s3, %s, 17" % s(C.S_H))
    e("s_and_b32 s28, %s, 3" % s(W.S_R))
    e("s_lshl_b32 s28, s28, 15")
    e("s_add_u32 s3, s3, s28")
    e("v_lshlrev_b32 v30, 7, v0")
    e("buffer_load_dword v31, v30, s[96:99], s3 offen")
W.x_issue(e, W.S_SEG)
W.load_w(e, P, C.OPT.get("word", "VKQ"))
rt(1, 3)
W.wait_handshake(e)
W.phase1(e)
rt(2, 4)
W.load_wo(e, P)
rt(3)
W.phase2(e)
rt(4, 5)
e("s_cmp_eq_u32 %s, 3" % s(W.S_R))
e("s_cbranch_scc1 L_stageB")
e("s_sub_u32 s25, %s, 1" % s(W.S_R))
e("s_cmp_ge_u32 s25, 2")
e("s_cbranch_scc1 L_end")
e("s_cmp_ge_u32 %s, 28" % s(C.S_H))
e("s_cbranch_scc1 L_end")
e("s_lshl_b32 s3, %s, 1" % s(C.S_H))
e("s_add_u32 s25, s25, s3")
T2.stage_a(e, 84, 86, 25)
e.label("L_stageB")
T2.stage_b(e, 88, C.S_H)
e.label("L_end")
if PROF:
    e("s_cmp_ge_u32 s2, 256")
    e("s_cbranch_scc1 L_end2")
    rt(5, 6)
    e.label("L_end2")
e("s_endpgm")
e.raw('.section .rodata,"a"')
for name, nv, acc in ((K1, 512, 256),):
    e.raw(""".p2align 6
.amdhsa_kernel %s
  .amdhsa_next_free_vgpr %d
  .amdhsa_next_free_sgpr 102
  .amdhsa_accum_offset %d
  .amdhsa_group_segment_fixed_size 0
  .amdhsa_kernarg_size 120
  .amdhsa_user_sgpr_count 2
  .amdhsa_user_sgpr_kernarg_segment_ptr 1
  .amdhsa_system_sgpr_workgroup_id_x 1
.end_amdhsa_kernel""" % (name, nv, acc))
out = sys.argv[1] if len(sys.argv) > 1 and not sys.argv[1].startswith("opt:") else "/code/%s.s" % BASE
open(out, "w").write(e.text())
print("nops inserted:", e.nops_inserted, "lines:", len(e.lines), "->", out)
```

```python
from asmlib import Emitter, v, a, s
import struct

WS_BYTES = 0x10000000
PB_OFF = 0x0000000
SYNC_OFF = 0x0080000
HIST_OFF = 0x0100000
FLAG_OFF = 0x0190000
STAMP_OFF = 0x01A0000
SLAB_OFF = 0x1000000
SLAB_ST = 0x82000
MB_IN = 0x80000
OOB = 0x40000000

L_MEMI = 0
L_PX = 8192
RS = 72
L_QX = 16384
L_KMX = L_QX + 2304
L_OX = L_KMX + 2304
L_SEL = L_OX + 2048
L_WL = 32768
LDS_BYTES = 163840

S_WS = 8
S_W = 12
S_DBG = 16
S_H = 20
S_WAVE = 21
S_STEP = 22
S_SLAB = 23
S_SLABN = 24
S_KXO = 25
S_KX = 29
S_VX = 30
S_HIST = 31
S_TMO = 32
S_SCALE = 33
S_PLO = 34
S_PHI = 35
S_T0 = 36
S_T1 = 37
S_T2 = 38
S_VXO = 39
S_BIG = 40
S_PR = 6
S_MB = 7
S_4K = 26
S_PAR = 27
S_RDY = 62
S_NPAR = 28
S_TAG = 60
S_OOB = 61
S_FW = 88
S_FR = 89
S_NEXT = 90
S_SPIN = 91
S_NEXTW = 94
S_W3 = 95
S_ONES = 4
S_PTR = 44
S_ST = 64

C_PF = 0
C_IDX, C_MW, C_L16, C_WL, C_QW, C_QR, C_KW, C_X2, C_PW, C_MP, FREE1, HPEND, C_FL, T0, JUNK = range(1, 16)
AM = 16
ACCQ = 48
ACCK = 56
ACCV = 64
QB = 72
XA = 88
XB = 104
VX = 120
VW = 128

TMO_LIMIT = 200000
OPT = {}


def f32bits(x):
    return struct.unpack("<I", struct.pack("<f", x))[0]


def lin(e, dst, coefs, const=0, tmp=T0, src=0):
    e("v_mov_b32 %s, 0x%x" % (v(dst), const))
    for k, c in sorted(coefs.items()):
        if c == 0:
            continue
        assert c < (1 << 24)
        e("v_bfe_u32 %s, %s, %d, 1" % (v(tmp), v(src), k))
        e("s_mov_b32 %s, 0x%x" % (s(S_T2), c))
        e("v_mad_u32_u24 %s, %s, %s, %s" % (v(dst), v(tmp), s(S_T2), v(dst)))


def srd(e, d, ptr, nbytes):
    e("s_mov_b32 %s, %s" % (s(d), s(ptr)))
    e("s_and_b32 %s, %s, 0xffff" % (s(d + 1), s(ptr + 1)))
    e("s_mov_b32 %s, 0x%x" % (s(d + 2), nbytes))
    e("s_mov_b32 %s, 0x20000" % s(d + 3))


LDS_OPS = {
    ("Q", 0, 0): XB + 0, ("Q", 1, 0): XB + 8, ("Q", 0, 1): XA + 0, ("Q", 1, 1): XA + 8,
    ("K", 0, 0): QB + 0, ("K", 1, 0): QB + 8,
    ("Q", 0, 7): XA + 0, ("Q", 1, 7): XA + 8,
    ("K", 0, 2): QB + 0, ("K", 1, 2): QB + 8,
    ("K", 0, 7): XA + 0, ("K", 1, 7): XA + 8,
    ("O", 0, 0): XA + 0, ("O", 1, 0): XA + 8, ("O", 2, 0): QB + 0, ("O", 3, 0): QB + 8,
}
OLDS = [("O", q, 0) for q in range(4)]
LDS_SLOT = {k: i for i, k in enumerate(LDS_OPS)}
ALL_OPS = [(m, T, u) for m in "QKV" for u in range(8) for T in range(2)] + [("O", q, u) for u in range(4) for q in range(4)]
RES = {}
_n = 0
for op in ALL_OPS:
    if op in LDS_OPS:
        continue
    RES[op] = ("a", _n * 8) if _n < 32 else ("v", VW + (_n - 32) * 8)
    _n += 1
assert _n == 48


def opreg(op):
    if op in LDS_OPS:
        return v(LDS_OPS[op], 8)
    k, r = RES[op]
    return (a if k == "a" else v)(r, 8)


def lds_fetch_ins(op):
    r = LDS_OPS[op]
    off = LDS_SLOT[op] * 2048
    return ["ds_read_b128 %s, %s offset:%d" % (v(r, 4), v(C_WL), off),
            "ds_read_b128 %s, %s offset:%d" % (v(r + 4, 4), v(C_WL), off + 1024)]


def lds_fetch(e, op):
    for t in lds_fetch_ins(op):
        e(t)


def rowpart(rho, b, hi=32):
    return hi * (rho >> 2) + 8 * (rho & 1) + 2 * ((rho >> 1) & 1) + b


class VmQ:
    def __init__(self, e):
        self.e, self.q = e, []

    def add(self, tag):
        self.q.append(tag)
        assert len(self.q) <= 63

    def wait(self, tag):
        if tag not in self.q:
            return
        last = len(self.q) - 1 - self.q[::-1].index(tag)
        self.e("s_waitcnt vmcnt(%d)" % (len(self.q) - 1 - last))
        self.q = self.q[last + 1:]


def staged_load(e, chunks, srds, dma_xor, lane_f, row_lane, blk_xor_wave, reads, side=None, pre=None):
    AD, AR = 16, 20
    TT = 28
    lin(e, AD, {0: 16, 1: 32, 2: 64, 3: 128, 4: 8192, 5: 16384, 6: 32 * 8192, 7: 64 * 8192})
    lin(e, TT, dma_xor[0])
    e("v_xor_b32 %s, %s, %s" % (v(AD), v(AD), v(TT)))
    for k in range(1, 4):
        e("v_xor_b32 %s, %d, %s" % (v(AD + k), dma_xor[1](k), v(AD)))
    lin(e, AR, {0: 8, 1: 16, **{k: c * 256 for k, c in row_lane.items()}})
    lin(e, TT, lane_f)
    lin(e, TT + 1, {6: 64, 7: 128})
    e("v_xor_b32 %s, %s, %s" % (v(TT), v(TT), v(TT + 1)))
    e("v_add_u32 %s, %s, %s" % (v(TT), v(TT), v(AR)))
    for k in range(4):
        if blk_xor_wave:
            e("s_xor_b32 %s, %s, %d" % (s(S_T0), s(S_WAVE), k))
            e("s_add_u32 %s, %s, 1" % (s(S_T0), s(S_T0)))
            e("s_lshl_b32 %s, %s, 15" % (s(S_T0), s(S_T0)))
            e("v_add_u32 %s, %s, %s" % (v(AR + 2 * k), s(S_T0), v(TT)))
        else:
            e("v_add_u32 %s, 0x%x, %s" % (v(AR + 2 * k), (k + 1) << 15, v(TT)))
        e("v_xor_b32 %s, 32, %s" % (v(AR + 2 * k + 1), v(AR + 2 * k)))
    S_LB, S_GB = 28, 3
    e("s_add_u32 %s, %s, 1" % (s(S_LB), s(S_WAVE)))
    e("s_lshl_b32 %s, %s, 15" % (s(S_LB), s(S_LB)))
    e("s_lshl_b32 %s, %s, 8" % (s(S_GB), s(S_H)))
    q = VmQ(e)

    def dma(c):
        m, ci = chunks[c]
        for i in range(8):
            e("s_add_u32 m0, %s, %d" % (s(S_LB), (c % 3) * 8192 + i * 1024))
            e("s_add_u32 %s, %s, 0x%x" % (s(S_T1), s(S_GB), (128 * ci + 4 * i) * 8192))
            e("buffer_load_dwordx4 %s, %s, %s offen%s lds" % (v(AD + (i & 3)), s(srds[m], 4), s(S_T1), OPT.get("cnt", " nt") if blk_xor_wave else ""))
            q.add(("c", c))
    for c in range(3):
        dma(c)
        if pre and c == 0:
            pre(q)
    for c, (m, ci) in enumerate(chunks):
        if side:
            side(c, q)
        q.wait(("c", c))
        e("s_barrier")
        for n_, (dst, k, T, ro) in enumerate(reads(m, ci)):
            if n_ == 12:
                e("s_waitcnt lgkmcnt(4)")
            e("ds_read_b64_tr_b16 %s, %s offset:%d" % (dst, v(AR + 2 * k + T), (c % 3) * 8192 + ro * 256))
        e("s_waitcnt lgkmcnt(0)")
        e("s_barrier")
        if c + 3 < len(chunks):
            dma(c + 3)
    return q


HOLD = {op: 32 + 8 * i for i, op in enumerate(o for o in LDS_OPS if o[0] != "O")}


def load_weights(e, P_WQ, P_WK, P_WV, P_WO, pre=None, mid=None):
    e.comment("---- load weight operands: Wq/Wk/Wv by LDS-DMA + transposing reads, Wo by dword loads + v_perm")
    VOFO = FREE1
    RING, TMP8 = 32, 120
    lin(e, VOFO, {0: 4, 1: 8, 2: 16, 3: 32, 4: 2 * 1024, 5: 4 * 1024, 6: 256, 7: 512})
    ptr = {"Q": P_WQ, "K": P_WK, "V": P_WV, "O": P_WO}
    SRDS = {"Q": 96, "K": 88, "V": 60, "O": 92}
    for m in "QKVO":
        srd(e, SRDS[m], ptr[m], 512 * 4096 * 2)
    S_OB = 29
    e("s_lshl_b32 %s, %s, 17" % (s(S_OB), s(S_H)))

    def reads(m, ci):
        tau, hi = ci >> 1, ci & 1
        out = []
        for k in range(4):
            u = 2 * k + tau
            for T in range(2):
                op = (m, T, u)
                for pr in range(2):
                    if op in HOLD:
                        dst = v(HOLD[op] + 4 * hi + 2 * pr, 2)
                    else:
                        kind, r = RES[op]
                        dst = (a if kind == "a" else v)(r + 4 * hi + 2 * pr, 2)
                    out.append((dst, k, T, 2 * pr))
        return out

    def o_issue(g, q):
        u = g >> 1
        base = (32, 48, 80)[g % 3]
        e("s_xor_b32 %s, %s, %d" % (s(S_T0), s(S_WAVE), u))
        e("s_lshl_b32 %s, %s, 15" % (s(S_T0), s(S_T0)))
        e("s_add_u32 %s, %s, %s" % (s(S_T0), s(S_T0), s(S_OB)))
        for k in range(2):
            qq = 2 * (g & 1) + k
            for pr in range(4):
                for b in range(2):
                    row = 16 * b + 8 * (pr >> 1) + (pr & 1)
                    e("s_add_u32 %s, %s, 0x%x" % (s(S_T1), s(S_T0), row * 1024 + qq * 64))
                    e("buffer_load_dword %s, %s, %s, %s offen" % (v(base + k * 8 + pr * 2 + b), v(VOFO), s(SRDS["O"], 4), s(S_T1)))
                    q.add(("o", g))

    def o_consume(g, q):
        q.wait(("o", g))
        base = (32, 48, 80)[g % 3]
        for k in range(2):
            op = ("O", 2 * (g & 1) + k, g >> 1)
            dst = TMP8 if op in LDS_OPS else RES[op][1]
            assert op in LDS_OPS or RES[op][0] == "v"
            for pr in range(4):
                for hf in range(2):
                    e("v_perm_b32 %s, %s, %s, %s" % (v(dst + 2 * pr + hf), v(base + k * 8 + 2 * pr + 1), v(base + k * 8 + 2 * pr), s(S_PHI if hf else S_PLO)))
            if op in LDS_OPS:
                off = LDS_SLOT[op] * 2048
                assert off >= 24576
                e("ds_write_b128 %s, %s offset:%d" % (v(C_WL), v(TMP8, 4), off))
                e("ds_write_b128 %s, %s offset:%d" % (v(C_WL), v(TMP8 + 4, 4), off + 1024))
                e("s_waitcnt lgkmcnt(0)")

    def side(c, q):
        if c == 1:
            init_publish(e, q)
        if c == 3:
            init_publish2(e, q)
        if 2 <= c < 10:
            o_consume(c - 2, q)
        if c < 8:
            o_issue(c, q)

    chunks = [(m, ci) for m in "VKQ" for ci in range(4)]
    staged_load(e, chunks, SRDS, ({4: 32}, lambda k: k << 6), {2: 32, 4: 64, 3: 128}, {5: 16, 3: 8, 4: 4, 2: 1}, True, reads, side, pre)
    for op, r in HOLD.items():
        off = LDS_SLOT[op] * 2048
        e("ds_write_b128 %s, %s offset:%d" % (v(C_WL), v(r, 4), off))
        e("ds_write_b128 %s, %s offset:%d" % (v(C_WL), v(r + 4, 4), off + 1024))
        if LDS_SLOT[op] % 4 == 3:
            e("s_waitcnt lgkmcnt(0)")
    e("s_waitcnt lgkmcnt(0)")


def setup_consts(e):
    T1, T2 = AM + 8, AM + 9
    lin(e, C_IDX, {1: 0xEEEE - 0x4444}, 0x4444)
    lin(e, C_L16, {k: 16 << k for k in range(6)})
    lin(e, C_MW, {**{k: 16 << k for k in range(6)}, 6: 2048, 7: 4096})
    lin(e, C_WL, {**{k: 16 << k for k in range(6)}, 6: 32768, 7: 65536}, L_WL)
    lin(e, C_QW, {0: 4, 1: 8, 2: 16, 3: 32, 4: 2 * RS * 4, 5: 4 * RS * 4, 6: 64, 7: 128}, L_QX)
    lin(e, C_QR, {0: RS * 4, 2: 2 * RS * 4, 3: 4 * RS * 4, 4: 16, 5: 32}, L_QX)
    e("v_add_u32 %s, %d, %s" % (v(C_KW), L_KMX - L_QX, v(C_QW)))
    e("v_xor_b32 %s, 0x1000, %s" % (v(C_X2), v(C_MW)))
    lin(e, C_FL, {k: 4 << k for k in range(5)})
    lin(e, T1, {3: 1, 4: 2, 5: 4, 6: 8, 7: 16})
    e("v_add_u32 %s, %s, %s" % (v(T1), s(S_H), v(T1)))
    e("v_and_b32 %s, 31, %s" % (v(T1), v(T1)))
    e("v_lshlrev_b32 %s, 6, %s" % (v(T1), v(T1)))
    lin(e, C_PW, {0: 8, 1: 16, 2: 32, 3: 8192, 4: 2 * 8192, 5: 4 * 8192, 6: 8 * 8192, 7: 16 * 8192}, PB_OFF)
    e("v_add_u32 %s, %s, %s" % (v(C_PW), v(C_PW), v(T1)))
    lin(e, C_MP, {0: 8, 1: 32, 4: 16, 5: 4, 6: 2048, 7: 4096}, MB_IN)
    e("v_mov_b32 %s, %s" % (v(T2), s(S_H)))
    lin(e, T1, {0: 256, 1: 64, 2: 128, 3: 512, 4: 1024}, src=T2)
    e("v_add_u32 %s, %s, %s" % (v(C_MP), v(T1), v(C_MP)))
    e("v_and_b32 %s, 12, v0" % v(T1))
    e("v_cmp_ne_u32 vcc, 0, %s" % v(T1))
    e("v_mov_b32 %s, 0x%x" % (v(T1), OOB))
    e("v_cndmask_b32 %s, %s, %s, vcc" % (v(C_MP), v(C_MP), v(T1)))
    e("s_lshl_b32 %s, %s, 13" % (s(S_PR), s(S_H)))
    e("s_add_u32 %s, %s, 0x%x" % (s(S_PR), s(S_PR), PB_OFF))
    e("s_mov_b32 %s, 4096" % s(S_4K))
    e("v_and_b32 %s, 15, v0" % v(T1))
    for q in range(4):
        e("v_mov_b32 %s, 0" % v(AM + q))
        e("v_mov_b32 %s, 0x3f80" % v(T2))
        e("v_cmp_eq_u32 vcc, %d, %s" % (4 * q, v(T1)))
        e("v_cndmask_b32 %s, %s, %s, vcc" % (v(AM + q), v(AM + q), v(T2)))
        e("v_mov_b32 %s, 0x3f800000" % v(T2))
        e("v_cmp_eq_u32 vcc, %d, %s" % (4 * q + 1, v(T1)))
        e("v_cndmask_b32 %s, %s, %s, vcc" % (v(AM + q), v(AM + q), v(T2)))
    e("ds_write_b128 %s, %s offset:%d" % (v(C_L16), v(AM, 4), L_SEL))
    e("s_mov_b32 %s, 0x05040100" % s(S_PLO))
    e("s_mov_b32 %s, 0x07060302" % s(S_PHI))
    e("s_mov_b32 %s, 0x%x" % (s(S_SCALE), f32bits(128 ** -0.5 * 1.4426950408889634)))
    e("s_mov_b32 %s, 0x%x" % (s(S_BIG), f32bits(OPT.get('big', 2.0 ** 30))))
    e("s_mov_b32 %s, 0" % s(S_TMO))
    e("s_mov_b32 %s, 0x3f803f80" % s(S_ONES))
    e("s_mov_b32 %s, 0x3f803f80" % s(S_ONES + 1))
    e("s_lshl_b32 %s, %s, 14" % (s(S_T0), s(S_H)))
    e("s_lshr_b32 %s, %s, 1" % (s(S_T1), s(S_WAVE)))
    e("s_lshl_b32 %s, %s, 12" % (s(S_T1), s(S_T1)))
    e("s_add_u32 %s, %s, %s" % (s(S_KXO), s(S_T0), s(S_T1)))
    e("s_lshl_b32 %s, %s, 11" % (s(S_T1), s(S_WAVE)))
    e("s_add_u32 %s, %s, %s" % (s(S_VXO), s(S_T0), s(S_T1)))
    e("s_add_u32 %s, %s, 8192" % (s(S_VXO), s(S_VXO)))


def setup_pf(e):
    T1, T2 = AM + 8, AM + 9
    lin(e, T1, {0: 128, 1: 256, 2: 512, 3: 1024, 4: 2048, 6: 4096, 7: 8192})
    e("s_lshl_b32 %s, %s, 14" % (s(S_T0), s(S_H)))
    e("v_add_u32 %s, %s, %s" % (v(T1), s(S_T0), v(T1)))
    e("s_lshl_b32 %s, %s, 8" % (s(S_T0), s(S_H)))
    e("s_lshr_b32 %s, %s, 1" % (s(S_T1), s(S_WAVE)))
    e("s_lshl_b32 %s, %s, 7" % (s(S_T1), s(S_T1)))
    e("s_add_u32 %s, %s, %s" % (s(S_T0), s(S_T0), s(S_T1)))
    e("s_add_u32 %s, %s, 0x%x" % (s(S_T0), s(S_T0), SLAB_ST + MB_IN))
    e("v_and_b32 %s, 63, v0" % v(T0))
    e("v_mov_b32 %s, 0x%x" % (v(T2), OOB))
    e("v_cmp_lt_u32 vcc, 32, %s" % v(T0))
    e("v_cndmask_b32 %s, %s, %s, vcc" % (v(T1), v(T1), v(T2)))
    e("v_mov_b32 %s, %s" % (v(T2), s(S_T0)))
    e("v_cmp_eq_u32 vcc, 32, %s" % v(T0))
    e("v_cndmask_b32 %s, %s, %s, vcc" % (v(C_PF), v(T1), v(T2)))


def init_issue(e, P_MEM0, q):
    M1, T1, T2, TH = 100, 104, 105, 106
    ws = s(S_WS, 4)

    def st(x):
        e(x)
        q.add("init")
    srd(e, S_W, P_MEM0, 8192)
    lin(e, T1, {0: 8, 1: 16, 2: 0x10000, 3: 0x10000, 4: 1024, 5: 4, 6: 64, 7: 128})
    e("v_mov_b32 %s, %s" % (v(TH), s(S_H)))
    lin(e, T2, {0: 32, 1: 2048, 2: 4096, 3: 256, 4: 512}, src=TH)
    e("v_add_u32 %s, %s, %s" % (v(T1), v(T1), v(T2)))
    st("buffer_load_dword %s, %s, %s, 0 offen" % (v(HPEND), v(T1), s(S_W, 4)))
    for k in range(4):
        e("v_mov_b32 %s, -1" % v(M1 + k))
    st("buffer_store_dwordx4 %s, %s, %s, %s offen sc1" % (v(M1, 4), v(C_MW), ws, s(S_PR)))
    st("buffer_store_dwordx4 %s, %s, %s, %s offen offset:1024 sc1" % (v(M1, 4), v(C_MW), ws, s(S_PR)))
    e("s_lshl_b32 %s, %s, 14" % (s(S_T0), s(S_H)))
    e("s_add_u32 %s, %s, 0x%x" % (s(S_T0), s(S_T0), HIST_OFF))
    e("s_add_u32 %s, %s, 0x2000" % (s(S_T1), s(S_T0)))
    for so in (S_T0, S_T1):
        st("buffer_store_dwordx4 %s, %s, %s, %s offen sc1" % (v(M1, 4), v(C_MW), ws, s(so)))
        st("buffer_store_dwordx4 %s, %s, %s, %s offen offset:1024 sc1" % (v(M1, 4), v(C_MW), ws, s(so)))
    e("s_mul_i32 %s, %s, 0x%x" % (s(S_T0), s(S_H), 2 * SLAB_ST))
    e("s_add_u32 %s, %s, 0x%x" % (s(S_T0), s(S_T0), SLAB_OFF + SLAB_ST + MB_IN + (0x4000000 if OPT.get("solo") else 0)))
    e("s_add_u32 %s, %s, 0x%x" % (s(S_T1), s(S_T0), SLAB_ST))
    for so in (S_T0, S_T1):
        st("buffer_store_dwordx4 %s, %s, %s, %s offen sc1" % (v(M1, 4), v(C_MW), ws, s(so)))
        st("buffer_store_dwordx4 %s, %s, %s, %s offen offset:1024 sc1" % (v(M1, 4), v(C_MW), ws, s(so)))
    e("v_lshlrev_b32 %s, 2, v0" % v(T1))
    e("s_lshl_b32 %s, %s, 10" % (s(S_T0), s(S_H)))
    e("s_add_u32 %s, %s, 0x%x" % (s(S_T1), s(S_T0), FLAG_OFF + 0x4000))
    st("buffer_store_dword %s, %s, %s, %s offen sc1" % (v(M1), v(T1), ws, s(S_T1)))
    e("s_add_u32 %s, %s, 0x%x" % (s(S_T1), s(S_T0), 0x1B0000))
    st("buffer_store_dword %s, %s, %s, %s offen sc1" % (v(M1), v(T1), ws, s(S_T1)))
    e("s_add_u32 %s, %s, 0x%x" % (s(S_T1), s(S_T0), 0x1B8000))
    st("buffer_store_dword %s, %s, %s, %s offen sc1" % (v(M1), v(T1), ws, s(S_T1)))
    e("v_mov_b32 %s, 0x%x" % (v(T2), OOB))
    e("v_cmp_lt_u32 vcc, 63, v0")
    e("v_cndmask_b32 %s, %s, %s, vcc" % (v(T1), v(T1), v(T2)))
    e("v_mov_b32 %s, 0" % v(T2))
    e("s_lshl_b32 %s, %s, 8" % (s(S_T0), s(S_H)))
    e("s_add_u32 %s, %s, 0x%x" % (s(S_T0), s(S_T0), FLAG_OFF))
    e("s_add_u32 %s, %s, 0x2000" % (s(S_T1), s(S_T0)))
    e("s_lshl_b32 %s, %s, 2" % (s(S_T2), s(S_H)))
    e("s_add_u32 %s, %s, 0x%x" % (s(S_T2), s(S_T2), SYNC_OFF))
    e("s_lshl_b32 %s, %s, 7" % (s(S_MB), s(S_WAVE)))
    e("s_add_u32 %s, %s, %s" % (s(S_T2), s(S_T2), s(S_MB)))
    st("buffer_store_dword %s, off, %s, %s sc1" % (v(T2), ws, s(S_T2)))
    if OPT.get("kvflags", 1):
        st("buffer_store_dword %s, %s, %s, %s offen sc1" % (v(T2), v(T1), ws, s(S_T0)))
        st("buffer_store_dword %s, %s, %s, %s offen sc1" % (v(T2), v(T1), ws, s(S_T1)))


def init_publish(e, q):
    T1, T2 = 104, 105
    q.wait("init")
    e("s_mov_b32 %s, 0x%x" % (s(S_T0), SLAB_OFF))
    e("buffer_store_dword %s, %s, %s, %s offen sc1" % (v(HPEND), v(C_MP), s(S_WS, 4), s(S_T0)))
    q.add("mb0")


def init_publish2(e, q):
    T1, T2 = 30, 31
    q.wait("mb0")
    e("s_barrier")
    e("s_getreg_b32 %s, hwreg(HW_REG_XCC_ID)" % s(S_T0))
    e("s_and_b32 %s, %s, 15" % (s(S_T0), s(S_T0)))
    e("s_or_b32 %s, %s, 0x100" % (s(S_T0), s(S_T0)))
    e("v_mov_b32 %s, %s" % (v(T1), s(S_T0)))
    e("s_lshl_b32 %s, %s, 2" % (s(S_T1), s(S_H)))
    e("v_lshlrev_b32 %s, 20, v0" % v(T2))
    e("buffer_store_dword %s, %s, %s, %s offen offset:128 sc1" % (v(T1), v(T2), s(S_DBG, 4), s(S_T1)))
    q.add("hs")


def handshake_wait(e, fast_label, slow_label):
    T1, T2 = AM + 8, AM + 9
    e("v_lshrrev_b32 %s, 2, %s" % (v(T2), v(C_L16)))
    e("v_and_b32 %s, 127, %s" % (v(T2), v(T2)))
    e.label("L_HS")
    e("buffer_load_dword %s, %s, %s, 0 offen offset:128 sc1" % (v(T1), v(T2), s(S_DBG, 4)))
    e("s_add_u32 %s, %s, 1" % (s(S_TMO), s(S_TMO)))
    e("s_cmp_gt_u32 %s, %d" % (s(S_TMO), TMO_LIMIT))
    e("s_cbranch_scc1 %s" % slow_label)
    e("s_waitcnt vmcnt(0)")
    e("v_cmp_eq_u32 vcc, 0, %s" % v(T1))
    e("s_cbranch_vccnz L_HS")
    e("v_readfirstlane_b32 %s, %s" % (s(S_T0), v(T1)))
    e("v_cmp_ne_u32 vcc, %s, %s" % (s(S_T0), v(T1)))
    e("s_cbranch_vccnz %s" % slow_label)
    e("s_branch %s" % fast_label)


def smf_ins(acc, aop, op):
    return "v_smfmac_f32_16x16x64_bf16 %s, %s, %s, %s" % (v(acc, 4), v(aop, 4), opreg(op), v(C_IDX))


def stamp(e, i, on):
    if on:
        e("s_memtime %s" % s(S_ST + 2 * i, 2))


am = lambda u: AM + 4 * u


def idle_prep_ins():
    out = []
    for op in (("Q", 0, 0), ("Q", 1, 0), ("Q", 0, 1), ("Q", 1, 1), ("K", 0, 0), ("K", 1, 0)):
        out += lds_fetch_ins(op)
    z = ["v_mov_b64 %s, 0" % v(r, 2) for r in range(ACCQ, ACCQ + 24, 2)]
    return out, z


def delay(e, cyc):
    n = cyc // 4
    while n > 0:
        k = min(n, 16)
        e("s_nop %d" % (k - 1))
        n -= k


def main_loop(e, tag, sc, nsteps, stamps=False):
    L = lambda n: "L_%s_%s" % (tag, n)
    ws = s(S_WS, 4)
    solo = OPT.get("solo")
    trace = OPT.get("trace")
    acc = {"Q": ACCQ, "K": ACCK, "V": ACCV}
    S = lambda m, T, u: smf_ins(acc[m] + 4 * T, am(u), (m, T, u))
    Q = lambda T, u: S("Q", T, u)
    K = lambda T, u: S("K", T, u)
    V = lambda T, u: S("V", T, u)
    lg = lambda n: "s_waitcnt lgkmcnt(%d)" % n
    BAR = "s_barrier"
    add = lambda b, r: "v_add_f32 %s, %s, %s" % (v(b + r), v(b + r), v(b + r + 2))
    cvt = lambda d, x, y: "v_cvt_pk_bf16_f32 %s, %s, %s" % (v(d), v(x), v(y))
    ex = lambda r: "v_exp_f32 %s, %s" % (v(r), v(r))
    mf32 = lambda d, A, B, first: "v_mfma_f32_16x16x32_bf16 %s, %s, %s, %s" % (v(d, 4), v(A, 4), v(B, 4), "0" if first else v(d, 4))
    mf16 = lambda d, A, B: "v_mfma_f32_16x16x16_bf16 %s, %s, %s, %s" % (v(d, 4), v(A, 2), v(B, 2), v(d, 4))

    def run(sched, extra=None):
        for i_, (m_, rest) in enumerate(sched):
            e(m_)
            for x in (extra or {}).get(i_, []) + rest:
                if x.endswith(":"):
                    e.label(x[:-1])
                else:
                    e(x)
    e.label(L("start"))
    e("s_mov_b32 %s, 0" % s(S_STEP))
    e("s_mov_b32 %s, 0x%x" % (s(S_SLAB), SLAB_OFF))
    e("s_mov_b32 %s, 0" % s(S_PAR))
    e("s_mov_b32 %s, 0x%x" % (s(S_HIST), HIST_OFF - MB_IN))
    e("s_mov_b32 %s, 0x%x" % (s(S_OOB), OOB))
    e("s_mov_b32 %s, 0" % s(S_SPIN))
    f, z = idle_prep_ins()
    for t in f + z:
        e(t)
    e("s_mov_b64 %s, %s" % (s(S_RDY, 2), "0" if OPT.get("kvflags", 1) else "-1"))
    mldp = lambda P: ["buffer_load_dwordx4 %s, %s, %s, %s offen sc1" % (v(P, 4), v(C_MW), ws, s(S_MB)),
                      "buffer_load_dwordx4 %s, %s, %s, %s offen offset:1024 sc1" % (v(P + 4, 4), v(C_MW), ws, s(S_MB))]
    mld = mldp(AM)
    e("s_add_u32 %s, %s, 0x%x" % (s(S_MB), s(S_SLAB), MB_IN))
    for t in mld:
        e(t)
    e.label(L("step"))
    e("s_lshr_b64 %s, %s, %s" % (s(S_T0, 2), s(S_RDY, 2), s(S_STEP)))
    e("s_andn2_b32 %s, 3, %s" % (s(S_T0), s(S_T0)))
    e("s_cbranch_scc1 %s" % L("refresh"))
    e("s_add_u32 %s, %s, 0x%x" % (s(S_SLABN), s(S_SLAB), SLAB_ST))
    e("s_add_u32 %s, %s, %s" % (s(S_KX), s(S_SLAB), s(S_KXO)))
    e("s_add_u32 %s, %s, %s" % (s(S_VX), s(S_SLAB), s(S_VXO)))
    e("s_xor_b32 %s, %s, 1" % (s(S_NPAR), s(S_PAR)))
    e("s_add_u32 %s, %s, 1" % (s(S_NEXT), s(S_STEP)))
    e("v_xor_b32 %s, 0x800, %s" % (v(am(3)), v(C_MW)))
    e("v_xor_b32 %s, 0x1800, %s" % (v(am(7)), v(C_MW)))
    tr = 2
    delay(e, OPT.get("pm", 56))
    for x in mld:
        e(x)
    e.label(L("waitm"))
    e("s_waitcnt vmcnt(%d) lgkmcnt(0)" % (1 + tr))
    e.label(L("gotm"))
    stamp(e, 0, stamps)
    T1 = am(2)
    mw = ["ds_write_b128 %s, %s offset:%d" % (v(C_MW), v(am(k), 4), L_MEMI + 1024 * k) for k in range(2)]
    PK = ACCK
    pst = lambda q: "buffer_store_dwordx2 %s, %s, %s, %s offen offset:%d%s" % (v(PK + 2 * q, 2), v(C_PW), ws, "0" if q < 2 else s(S_4K), (q & 1) * 2048, sc)
    tg = lambda q: "v_and_or_b32 %s, %s, -2, %s" % (v(PK + 2 * q), v(PK + 2 * q), s(S_TAG))
    kx = lambda ks: "buffer_load_dwordx4 %s, %s, %s, %s offen offset:%d sc1" % (v(XB + 4 * ks, 4), v(C_L16), ws, s(S_KX), ks * 1024)
    vx = lambda T: "buffer_load_dwordx4 %s, %s, %s, %s offen offset:%d sc1" % (v(VX + 4 * T, 4), v(C_L16), ws, s(S_VX), T * 1024)
    amrd = lambda u: "ds_read_b128 %s, %s offset:%d" % (v(am(u), 4), v(C_X2 if u >> 1 == 2 else am(u | 1)), L_MEMI + (u & 1) * 1024)
    q7 = lds_fetch_ins(("Q", 0, 7)) + lds_fetch_ins(("Q", 1, 7))
    k2 = lds_fetch_ins(("K", 0, 2)) + lds_fetch_ins(("K", 1, 2))
    k7 = lds_fetch_ins(("K", 0, 7)) + lds_fetch_ins(("K", 1, 7))
    of = sum([lds_fetch_ins(op) for op in OLDS], [])
    qbrd = lambda ks: "ds_read_b128 %s, %s offset:%d" % (v(QB + 4 * ks, 4), v(C_QR), 64 * ks)
    KM = XA
    kmrd = lambda ks: "ds_read_b128 %s, %s offset:%d" % (v(KM + 4 * ks, 4), v(C_QR), L_KMX - L_QX + 64 * ks)
    SX, SM = ACCQ, ACCQ + 4
    ONES, PX, PM, VM0, VM1 = XB, XB + 4, XB + 8, XB + 10, XB + 12
    TA = XB + 14
    LS, OA, OP = SX, ACCK, SM
    smx = lambda ks: mf32(SX, XB + 4 * ks, QB + 4 * ks, ks == 0)
    smm = lambda ks: mf32(SM, KM + 4 * ks, QB + 4 * ks, ks == 0)
    pf = "buffer_load_dword %s, %s, %s, %s offen sc1" % (v(JUNK), v(C_PF), ws, s(S_SLABN))
    hist = "buffer_store_dword %s, %s, %s, %s offen sc1" % (v(HPEND), v(C_MP), ws, s(S_HIST))
    zw = ["v_mov_b64 %s, 0" % v(r, 2) for r in range(AM, AM + 16, 2)]
    OOP = AM + 12
    oad = ["v_xor_b32 %s, 0x%x, %s" % (v(OOP + 4 * u), u * 2048, v(C_MW)) for u in (1, 3)]
    L_OE = L_PX + 1024
    mx3 = lambda d, x, y, z_: "v_max3_u32 %s, %s, %s, %s" % (v(d), v(x), v(y), v(z_))
    mov0 = lambda r: "v_mov_b32 %s, 0" % v(r)
    e(mx3(T0, AM, AM + 1, AM + 2))
    e("v_max_u32 %s, %s, %s" % (v(T0), v(T0), v(AM + 3)))
    run([
        (Q(0, 0), ["s_waitcnt vmcnt(%d)" % tr, mx3(T0, T0, AM + 4, AM + 5)]),
        (Q(1, 0), [mx3(T0, T0, AM + 6, AM + 7), "v_cmp_eq_u32 vcc, -1, %s" % v(T0)]),
        (Q(0, 1), [mw[0]] + ([] if solo else ["s_cbranch_vccnz %s" % L("retrym")]) + [L("okm") + ":"]),
        (Q(1, 1), [mw[1]]),
        (K(0, 0), [kx(0)]),
        (K(1, 0), [kx(1)]),
        (K(0, 1), [kx(2)]),
        (K(1, 1), [lg(0), BAR, amrd(2)]),
        (V(0, 0), [amrd(3)]),
        (V(1, 0), [kx(3)]),
        (V(0, 1), [amrd(4)]),
        (V(1, 1), [amrd(5), lg(3)]),
        (Q(0, 2), [vx(0)]),
        (Q(1, 2), [amrd(6), lg(3)]),
        (Q(0, 3), [vx(1)]),
        (Q(1, 3), [amrd(7), lg(2)]),
        (Q(0, 4), []),
        (Q(1, 4), [q7[0]]),
        (Q(0, 5), [q7[1], lg(2)]),
        (Q(1, 5), [q7[2]]),
        (Q(0, 6), [q7[3]]),
        (Q(1, 6), [pf]),
        (K(0, 3), [k2[0]]),
        (K(1, 3), [k2[1], lg(2)]),
        (Q(0, 7), [k2[2]]),
        (Q(1, 7), [k2[3]]),
        (K(0, 4), [k7[0]]),
        (K(1, 4), [k7[1]]),
        (K(0, 5), [k7[2], add(ACCQ, 0), add(ACCQ, 1)]),
        (K(1, 5), [k7[3], add(ACCQ + 4, 0), add(ACCQ + 4, 1)]),
        (K(0, 6), [lg(4), cvt(ACCQ + 2, ACCQ, ACCQ + 4), cvt(ACCQ + 3, ACCQ + 1, ACCQ + 5)]),
        (K(1, 6), ["ds_write2_b32 %s, %s, %s offset0:0 offset1:%d" % (v(C_QW), v(ACCQ + 2), v(ACCQ + 3), RS)]),
        (K(0, 2), [hist]),
        (K(1, 2), [lg(1)]),
        (K(0, 7), []),
        (K(1, 7), [lg(0), BAR]),
        (V(0, 2), [qbrd(0)]),
        (V(1, 2), [qbrd(1), add(ACCK, 0)]),
        (V(0, 3), [qbrd(2), add(ACCK, 1)]),
        (V(1, 3), [qbrd(3), add(ACCK + 4, 0), add(ACCK + 4, 1), "s_waitcnt vmcnt(2) lgkmcnt(3)"]),
        (smx(0), [lg(2), cvt(ACCK + 2, ACCK, ACCK + 4), cvt(ACCK + 3, ACCK + 1, ACCK + 5)]),
        (smx(1), ["ds_write2_b32 %s, %s, %s offset0:0 offset1:%d" % (v(C_KW), v(ACCK + 2), v(ACCK + 3), RS), lg(2)]),
        (smx(2), [lg(1), "v_mov_b64 %s, %s" % (v(ONES, 2), s(S_ONES, 2)), "v_mov_b64 %s, %s" % (v(ONES + 2, 2), s(S_ONES, 2))]),
        (smx(3), [zw.pop(0), zw.pop(0)]),
        (V(0, 4), [mov0(PM + 1)]),
        (V(1, 4), [lg(0), BAR, mov0(VM0 + 1)]),
        (V(0, 5), [kmrd(0), ex(SX)]),
        (V(1, 5), [kmrd(1), ex(SX + 1)]),
        (V(0, 6), [kmrd(2), ex(SX + 2)]),
        (V(1, 6), [kmrd(3), ex(SX + 3), lg(3)]),
        (smm(0), [lg(2), cvt(PX, SX, SX + 1), cvt(PX + 1, SX + 2, SX + 3)]),
        (smm(1), ["ds_write_b64 %s, %s offset:%d" % (v(C_MW), v(PX, 2), L_PX), lg(2)]),
        (smm(2), [lg(1), mov0(VM1 + 1), zw.pop(0)]),
        (smm(3), [zw.pop(0), zw.pop(0)]),
        (V(0, 7), [of[0]]),
        (V(1, 7), [lg(1), BAR, "ds_read_b64 %s, %s offset:%d" % (v(PX + 2, 2), v(C_X2), L_PX), of[1],
                   "v_mul_f32 %s, %s, %s" % (v(SM), s(S_SCALE), v(SM)), "v_mul_f32 %s, %s, %s" % (v(SM + 1), s(S_SCALE), v(SM + 1)),
                   ex(SM), ex(SM + 1), cvt(PM, SM, SM + 1), add(ACCV, 0), add(ACCV, 1), lg(1)]),
        (mf32(LS, ONES, PX, True), [cvt(VM0, ACCV, ACCV + 1), add(ACCV + 4, 0)]),
        (mf32(OA, VX, PX, True), [add(ACCV + 4, 1), cvt(VM1, ACCV + 4, ACCV + 5)]),
        (mf32(OA + 4, VX + 4, PX, True), [of[2], zw.pop(0)]),
        (mf16(LS, ONES, PM), [of[3], zw.pop(0)]),
        (mf16(OA, VM0, PM), [zw.pop(0)]),
        (mf16(OA + 4, VM1, PM), ["v_rcp_f32 %s, %s" % (v(TA), v(LS))]),
    ])
    assert not zw
    e("v_max_f32 %s, %s, %s" % (v(T0), v(TA), v(LS)))
    e("v_cmp_nge_f32 vcc, %s, %s" % (s(S_BIG), v(T0)))
    for r in (0, 2, 4, 6):
        e("v_pk_mul_f32 %s, %s, %s op_sel_hi:[1,0]" % (v(OA + r, 2), v(OA + r, 2), v(TA, 2)))
    for r in range(4):
        e(cvt(OP + r, OA + r, OA + 4 + r))
    e.label(L("rejoin"))
    e("ds_write_b128 %s, %s offset:%d" % (v(C_MW), v(OP, 4), L_OE))
    WACC = AM
    SO = lambda q, u: smf_ins(WACC + 4 * q, OP if u == 0 else OOP + 4 * u, ("O", q, u))
    ord_ = lambda u: "ds_read_b128 %s, %s offset:%d" % (v(OOP + 4 * u, 4), v(C_X2 if u == 2 else OOP + 4 * u), L_OE)
    SEL, RD = ACCV, ACCV + 4
    wc = lambda q, r: cvt(PK + 2 * q + r, WACC + 4 * q + r, WACC + 4 * q + 2 + r)
    e(lg(1))
    run([
        (SO(0, 0), [of[4], oad[0]]),
        (SO(1, 0), [of[5], oad[1], lg(2), BAR, ord_(1), ord_(2), ord_(3), of[6], of[7], lg(4)]),
        (SO(0, 1), [lg(3)]),
        (SO(0, 2), [lg(2)]),
        (SO(0, 3), ["s_cmp_lg_u64 vcc, 0", "s_cselect_b32 %s, %s, %s" % (s(S_TAG), s(S_NPAR), s(S_PAR))]),
        (SO(1, 1), ["ds_read_b128 %s, %s offset:%d" % (v(SEL, 4), v(C_L16), L_SEL), lg(1)]),
        (SO(1, 2), ["s_nop 1"]),
        (SO(1, 3), [wc(0, 0)]),
        (SO(2, 0), [wc(0, 1), tg(0)]),
        (SO(2, 1), [pst(0)]),
        (SO(2, 2), [wc(1, 0)]),
        (SO(2, 3), [wc(1, 1), tg(1)]),
        (SO(3, 0), [pst(1)]),
        (SO(3, 1), ["s_nop 1"]),
        (SO(3, 2), [wc(2, 0)]),
        (SO(3, 3), [wc(2, 1), tg(2), pst(2), wc(3, 0), wc(3, 1), tg(3), pst(3)]),
    ])
    e.label(L("stored"))
    stamp(e, 1, stamps)
    e("s_cmp_lg_u32 %s, %s" % (s(S_TAG), s(S_PAR)))
    e("s_cbranch_scc1 %s" % L("safe"))
    f, z = idle_prep_ins()
    n0 = OPT.get("n0", 12)
    PD = VX
    pld = lambda P: ["buffer_load_dwordx4 %s, %s, %s, %s offen sc1" % (v(P, 4), v(C_MW), ws, s(S_PR)),
                     "buffer_load_dwordx4 %s, %s, %s, %s offen offset:1024 sc1" % (v(P + 4, 4), v(C_MW), ws, s(S_PR))]
    pub = "buffer_store_dword %s, %s, %s, %s offen%s" % (v(HPEND), v(C_MP), ws, s(S_T0), sc)
    for x in f[:n0]:
        e(x)
    for q in range(1, 4):
        e("s_cmp_lt_u32 %s, %d" % (s(S_WAVE), q))
        e("s_cbranch_scc1 %s" % L("pollp"))
        delay(e, OPT.get("dp", 32))
    e.label(L("pollp"))
    stamp(e, 4, stamps)
    PB_ = AM + 16
    for x in pld(PD):
        e(x)
    for x in f[n0:] + z[:8]:
        e(x)
    delay(e, OPT.get("pp", 112))
    for x in pld(PB_):
        e(x)
    e("s_add_u32 %s, %s, 0x%x" % (s(S_MB), s(S_SLABN), MB_IN))
    chk = lambda P: ["v_bitop3_b32 %s, %s, %s, %s bitop3:0x7e" % (v(T0), v(P), v(P + 2), s(S_PAR)),
                     "v_bitop3_b32 %s, %s, %s, %s bitop3:0x7e" % (v(FREE1), v(P + 4), v(P + 6), s(S_PAR)),
                     "v_bitop3_b32 %s, %s, %s, 1 bitop3:0xa8" % (v(T0), v(T0), v(FREE1)),
                     "v_cmp_ne_u32 vcc, 0, %s" % v(T0)]

    def finish():
        for rot in (8, 4):
            for r in (0, 1):
                e("v_add_f32_dpp %s, %s, %s row_ror:%d row_mask:0xf bank_mask:0xf" % (v(RD + r), v(RD + r), v(RD + r), rot))
        e(cvt(HPEND, RD, RD + 1))
        e(pub)

    def attempt(P, base):
        e("s_waitcnt vmcnt(%d) lgkmcnt(0)" % (base + 1))
        e(mf32(RD, SEL, P, True))
        e(chk(P)[0])
        e("s_waitcnt vmcnt(%d)" % base)
        e(mf32(RD, SEL, P + 4, False))
        for x in chk(P)[1:]:
            e(x)
        e("s_nop 2")
        e("s_cmp_eq_u64 vcc, 0")
        e("s_cselect_b32 %s, %s, %s" % (s(S_T0), s(S_HIST if solo else S_SLABN), s(S_OOB)))
        finish()
    attempt(PD, 2)
    if not solo:
        e("s_cbranch_scc0 %s" % L("retryp"))
    e.label(L("gotp"))
    stamp(e, 2, stamps)
    e("s_mov_b32 %s, %s" % (s(S_SLAB), s(S_SLABN)))
    e("s_add_u32 %s, %s, 0x2000" % (s(S_HIST), s(S_HIST)))
    e("s_mov_b32 %s, %s" % (s(S_STEP), s(S_NEXT)))
    e("s_mov_b32 %s, %s" % (s(S_PAR), s(S_NPAR)))
    for x in z[8:]:
        e(x)
    if trace:
        e("s_memrealtime s[100:101]")
        e("s_memtime s[70:71]")
        e("s_lshl_b32 s3, %s, 2" % s(S_H))
        e("s_add_u32 s3, s3, %s" % s(S_WAVE))
        e("s_lshl_b32 s3, s3, 6")
        e("s_add_u32 s3, s3, %s" % s(S_STEP))
        e("s_lshl_b32 s3, s3, 5")
        e("s_add_u32 s3, s3, 0x200000")
        e("s_waitcnt lgkmcnt(0)")
        for k, r in enumerate((64, 66, 68, 100, 70, 72, 74, S_TMO)):
            e("v_mov_b32 %s, %s" % (v(AM + 8 + k), s(r)))
        e("buffer_store_dwordx4 %s, off, %s, s3" % (v(AM + 8, 4), ws))
        e("buffer_store_dwordx4 %s, off, %s, s3 offset:16" % (v(AM + 12, 4), ws))
    delay(e, OPT.get("dm", 144) - (128 if trace else 0))
    stamp(e, 5, stamps)
    for x in mld:
        e(x)
    e("s_cmp_lt_u32 %s, %d" % (s(S_STEP), nsteps))
    e("s_cbranch_scc1 %s" % L("step"))
    e(hist)
    e("s_branch %s" % L("done"))
    e.label(L("retrym"))
    e("s_add_u32 %s, %s, 1" % (s(S_TMO), s(S_TMO)))
    e("s_cmp_gt_u32 %s, %d" % (s(S_TMO), TMO_LIMIT))
    e("s_cbranch_scc1 %s" % L("okm"))
    for t in mld:
        e(t)
    e("s_nop 1")
    for x in z[:4]:
        e(x)
    e("s_branch %s" % L("waitm"))
    e.label(L("retryp"))
    e("s_add_u32 %s, %s, 1" % (s(S_TMO), s(S_TMO)))
    for x in pld(PD):
        e(x)
    attempt(PB_, 3)
    e("s_cbranch_scc1 %s" % L("gotp"))
    for x in pld(PB_):
        e(x)
    attempt(PD, 3)
    e("s_cbranch_scc1 %s" % L("gotp"))
    e("s_cmp_le_u32 %s, %d" % (s(S_TMO), TMO_LIMIT))
    e("s_cbranch_scc1 %s" % L("retryp"))
    e("s_mov_b32 %s, %s" % (s(S_T0), s(S_SLABN)))
    e(pub)
    e("s_branch %s" % L("gotp"))
    e.label(L("refresh"))
    e("v_lshrrev_b32 %s, 2, %s" % (v(T0), v(C_L16)))
    e("s_lshl_b32 %s, %s, 8" % (s(S_T0), s(S_H)))
    e("s_add_u32 %s, %s, 0x%x" % (s(S_T0), s(S_T0), FLAG_OFF))
    e("buffer_load_dword %s, %s, %s, %s offen sc1" % (v(T0), v(T0), ws, s(S_T0)))
    e("s_add_u32 %s, %s, 1" % (s(S_TMO), s(S_TMO)))
    e("s_waitcnt vmcnt(0)")
    e("v_cmp_ne_u32 %s, 0, %s" % (s(S_RDY, 2), v(T0)))
    e("s_nop 3")
    e("s_cmp_le_u32 %s, %d" % (s(S_TMO), TMO_LIMIT))
    e("s_cbranch_scc1 %s" % L("step"))
    e("s_mov_b64 %s, -1" % s(S_RDY, 2))
    e("s_branch %s" % L("step"))
    e.label(L("safe"))
    e.fence(12)
    e("s_waitcnt vmcnt(0) lgkmcnt(0)")
    e("s_barrier")
    W = AM
    for ks in range(4):
        e(qbrd(ks))
        e(kmrd(ks))
    e("s_xor_b32 %s, %s, 0x1000" % (s(S_T0), s(S_KXO)))
    e("s_add_u32 %s, %s, %s" % (s(S_T0), s(S_T0), s(S_SLAB)))
    for ks in range(4):
        e("buffer_load_dwordx4 %s, %s, %s, %s offen offset:%d sc1" % (v(W + 4 * ks, 4), v(C_L16), ws, s(S_KX), ks * 1024))
        e("buffer_load_dwordx4 %s, %s, %s, %s offen offset:%d sc1" % (v(W + 16 + 4 * ks, 4), v(C_L16), ws, s(S_T0), ks * 1024))
    e("s_waitcnt vmcnt(0) lgkmcnt(0)")
    S0, S1, S2 = ACCQ, ACCQ + 4, ACCK
    for (d, src) in ((S0, W), (S1, W + 16), (S2, XA)):
        for ks in range(4):
            e(mf32(d, src + 4 * ks, QB + 4 * ks, ks == 0))
    M0_, M1_ = W, W + 1
    e("v_mul_f32 %s, %s, %s" % (v(S2), s(S_SCALE), v(S2)))
    e("v_mul_f32 %s, %s, %s" % (v(S2 + 1), s(S_SCALE), v(S2 + 1)))
    e("v_max3_f32 %s, %s, %s, %s" % (v(M0_), v(S0), v(S0 + 1), v(S0 + 2)))
    e("v_max3_f32 %s, %s, %s, %s" % (v(M0_), v(M0_), v(S0 + 3), v(S1)))
    e("v_max3_f32 %s, %s, %s, %s" % (v(M0_), v(M0_), v(S1 + 1), v(S1 + 2)))
    e("v_max3_f32 %s, %s, %s, %s" % (v(M0_), v(M0_), v(S1 + 3), v(S2)))
    e("v_max_f32 %s, %s, %s" % (v(M0_), v(M0_), v(S2 + 1)))
    for sw in ("v_permlane16_swap_b32", "v_permlane32_swap_b32"):
        e("v_mov_b32 %s, %s" % (v(M1_), v(M0_)))
        e("%s %s, %s" % (sw, v(M0_), v(M1_)))
        e("v_max_f32 %s, %s, %s" % (v(M0_), v(M0_), v(M1_)))
    for r in [S0 + i for i in range(8)] + [S2, S2 + 1]:
        e("v_sub_f32 %s, %s, %s" % (v(r), v(r), v(M0_)))
        e(ex(r))
    for q in range(4):
        e(cvt(PX + q, S0 + 2 * q, S0 + 2 * q + 1))
    e(cvt(PM, S2, S2 + 1))
    e(mf32(LS, ONES, PX, True)); e(mf32(OA, VX, PX, True)); e(mf32(OA + 4, VX + 4, PX, True))
    e(mf16(LS, ONES, PM)); e(mf16(OA, VM0, PM)); e(mf16(OA + 4, VM1, PM))
    e("v_rcp_f32 %s, %s" % (v(TA), v(LS)))
    for r in range(8):
        e("v_mul_f32 %s, %s, %s" % (v(OA + r), v(OA + r), v(TA)))
    for r in range(4):
        e(cvt(OP + r, OA + r, OA + 4 + r))
    for x in of[:4]:
        e(x)
    for r in range(AM, AM + 16):
        e(mov0(r))
    e("s_mov_b64 vcc, 0")
    e("s_branch %s" % L("rejoin"))
    e.label(L("done"))
```

```python
from asmlib import v, a, s
import chain as C
import worker as W
from chain import srd, f32bits, OOB, S_WS, S_TMO, TMO_LIMIT, S_T0, S_T1, S_PLO, S_PHI

ROUNDS = [57, 62, 64]
ACT_ST = 0x2000
ACT2 = 0x1B0000
LOG2E = 1.4426950408889634

S_M = 20
S_RND = 24
S_LIM = 25
S_K1 = 26
S_P1 = 28
S_TK = 30
S_RV = 40
S_WA, S_WB, S_WD = 64, 68, 76
S_COL = 23
PW = 128
DP = 64
RP = 16
KEY = 120
L_RED, L_ACT = 64, 8192


def cvt(d, x, y):
    return "v_cvt_pk_bf16_f32 %s, %s, %s" % (v(d), v(x), v(y))


def rnd(e, r, tmp):
    e(cvt(tmp, r, r))
    e("v_lshlrev_b32 %s, 16, %s" % (v(r), v(tmp)))


def sigmoid(e, d, x):
    e("v_mul_f32 %s, 0x%x, %s" % (v(d), f32bits(-LOG2E), v(x)))
    e("v_exp_f32 %s, %s" % (v(d), v(d)))
    e("v_add_f32 %s, 1.0, %s" % (v(d), v(d)))
    e("v_rcp_f32 %s, %s" % (v(d), v(d)))


def load_keys(e, tag, idxs, sleep):
    ws = s(S_WS, 4)
    e("v_lshlrev_b32 v3, 4, v0")
    L = "L_%s_rp" % tag
    last = idxs == [7]
    if last:
        e("v_cmp_gt_u32 %s, %s, v0" % (s(74, 2), s(S_LIM)))
    e.label(L)
    for i in idxs:
        e("s_mov_b32 %s, 0x%x" % (s(S_T0), W.RVAL + i * 4096))
        e("buffer_load_dwordx4 %s, v3, %s, %s offen sc1" % (v(RP + 4 * i, 4), ws, s(S_T0)))
    e("s_add_u32 %s, %s, 1" % (s(S_TMO), s(S_TMO)))
    e("v_mov_b32 v5, 0")
    e("s_waitcnt vmcnt(0)")
    for i in idxs:
        e("v_max3_u32 v5, v5, %s, %s" % (v(RP + 4 * i), v(RP + 4 * i + 1)))
        e("v_max3_u32 v5, v5, %s, %s" % (v(RP + 4 * i + 2), v(RP + 4 * i + 3)))
    if last:
        e("v_cndmask_b32 v5, 0, v5, %s" % s(74, 2))
    e("s_cmp_gt_u32 %s, %d" % (s(S_TMO), TMO_LIMIT))
    e("s_cbranch_scc1 %s_ok" % L)
    e("v_cmp_eq_u32 vcc, -1, v5")
    if sleep:
        e("s_cbranch_vccz %s_ok" % L)
        e("s_sleep %d" % sleep)
        e("s_branch %s" % L)
    else:
        e("s_cbranch_vccnz %s" % L)
    e.label(L + "_ok")
    for i in idxs:
        b = RP + 4 * i
        e("v_add_f32 %s, %s, %s" % (v(b), v(b), v(b + 1)))
        e("v_add_f32 %s, %s, %s" % (v(b + 2), v(b + 2), v(b + 3)))
        e("v_add_f32 %s, %s, %s" % (v(b), v(b), v(b + 2)))
        rnd(e, b, 5)
        e("v_ashrrev_i32 v5, 31, %s" % v(b))
        e("v_or_b32 v5, 0x80000000, v5")
        e("v_xor_b32 v5, v5, %s" % v(b))
        e("v_and_b32 v5, 0xffff0000, v5")
        e("v_sub_u32 v6, %d, v0" % (2047 - 256 * i))
        e("v_or_b32 %s, v5, v6" % v(KEY + i))
    if last:
        e("v_cndmask_b32 %s, 0, %s, %s" % (v(KEY + 7), v(KEY + 7), s(74, 2)))


def merge2(e, a1, a2, b1, b2, t):
    e("v_min_u32 %s, %s, %s" % (v(t), v(a1), v(b1)))
    e("v_max_u32 %s, %s, %s" % (v(a1), v(a1), v(b1)))
    e("v_max3_u32 %s, %s, %s, %s" % (v(a2), v(a2), v(b2), v(t)))


def top2(e):
    A1, A2, B1, B2, T = 5, 6, 7, 8, 9
    e("v_max_u32 %s, %s, %s" % (v(A1), v(KEY), v(KEY + 7)))
    e("v_med3_u32 %s, %s, %s, %s" % (v(A2), v(KEY), v(KEY + 1), v(KEY + 7)))
    for ctrl in ("quad_perm:[1,0,3,2]", "quad_perm:[2,3,0,1]", "row_half_mirror", "row_mirror"):
        e("v_mov_b32_dpp %s, %s %s row_mask:0xf bank_mask:0xf" % (v(B1), v(A1), ctrl))
        e("v_mov_b32_dpp %s, %s %s row_mask:0xf bank_mask:0xf" % (v(B2), v(A2), ctrl))
        merge2(e, A1, A2, B1, B2, T)
    e("v_lshrrev_b32 %s, 4, v0" % v(T))
    e("v_lshlrev_b32 %s, 3, %s" % (v(T), v(T)))
    e("s_barrier")
    e("ds_write2_b32 %s, %s, %s offset0:0 offset1:1" % (v(T), v(A1), v(A2)))
    e("v_and_b32 %s, 15, v0" % v(T))
    e("v_lshlrev_b32 %s, 3, %s" % (v(T), v(T)))
    e("s_waitcnt lgkmcnt(0)")
    e("s_barrier")
    e("ds_read2_b32 v[10:11], %s offset0:0 offset1:1" % v(T))
    e("s_waitcnt lgkmcnt(0)")
    e("v_mov_b32 %s, v10" % v(A1))
    e("v_mov_b32 %s, v11" % v(A2))
    for ctrl in ("quad_perm:[1,0,3,2]", "quad_perm:[2,3,0,1]", "row_half_mirror", "row_mirror"):
        e("v_mov_b32_dpp %s, %s %s row_mask:0xf bank_mask:0xf" % (v(B1), v(A1), ctrl))
        e("v_mov_b32_dpp %s, %s %s row_mask:0xf bank_mask:0xf" % (v(B2), v(A2), ctrl))
        merge2(e, A1, A2, B1, B2, T)
    e("v_readfirstlane_b32 %s, %s" % (s(S_K1), v(A1)))
    e("v_readfirstlane_b32 %s, %s" % (s(S_K1 + 1), v(A2)))
    e("s_nop 3")


def body(e, PG, PU, PD):
    ws = s(S_WS, 4)
    e("s_lshr_b32 %s, s2, 3" % s(S_M))
    e("s_mov_b32 %s, 0x05040100" % s(S_PLO))
    e("s_mov_b32 %s, 0x07060302" % s(S_PHI))
    e("s_mov_b32 %s, 0" % s(S_TMO))
    srd(e, S_WA, PG, 512 * 1792 * 2)
    srd(e, S_WB, PU, 512 * 1792 * 2)
    srd(e, S_WD, PD, 1792 * 512 * 2)
    e("v_and_b32 v3, 31, v0")
    e("v_lshlrev_b32 v3, 2, v3")
    e.label("L_M_hs")
    e("buffer_load_dword v5, v3, %s, 0 offen sc1" % s(C.S_DBG, 4))
    e("s_add_u32 %s, %s, 1" % (s(S_TMO), s(S_TMO)))
    e("s_cmp_gt_u32 %s, %d" % (s(S_TMO), TMO_LIMIT))
    e("s_waitcnt vmcnt(0)")
    e("s_cbranch_scc1 L_M_hs_ok")
    e("v_cmp_eq_u32 vcc, 0, v5")
    e("s_cbranch_vccz L_M_hs_ok")
    e("s_sleep 16")
    e("s_branch L_M_hs")
    e.label("L_M_hs_ok")
    load_keys(e, "M00", [0], 64)
    e("v_lshrrev_b32 v1, 5, v0")
    e("v_and_b32 v2, 31, v0")
    e("s_mov_b32 %s, %d" % (s(S_T0), 64 * 3584))
    e("v_mul_lo_u32 v4, v1, %s" % s(S_T0))
    e("v_lshl_add_u32 v4, v2, 2, v4")
    e("v_mov_b32 v5, 0x%x" % OOB)
    e("v_cmp_lt_u32 vcc, 27, v2")
    e("v_cndmask_b32 v4, v4, v5, vcc")
    e("s_mul_i32 %s, %s, 112" % (s(S_COL), s(S_M)))
    for m, sr in ((0, S_WA), (1, S_WB)):
        for hf in range(2):
            for j in range(32):
                e("s_add_u32 %s, %s, %d" % (s(S_T0), s(S_COL), (32 * hf + j) * 3584))
                e("buffer_load_dword %s, v4, %s, %s offen" % (v(RP + j), s(sr, 4), s(S_T0)))
            e("s_waitcnt vmcnt(0)")
            for c in range(2):
                for jp in range(16):
                    e("v_perm_b32 %s, %s, %s, %s" % (v(PW + (m * 2 + c) * 32 + 16 * hf + jp), v(RP + 2 * jp + 1), v(RP + 2 * jp), s(S_PHI if c else S_PLO)))
    e("v_lshrrev_b32 v3, 3, v0")
    e("v_mul_u32_u24 v4, %d, v3" % (56 * 1024))
    e("v_and_b32 v3, 7, v0")
    e("v_lshl_add_u32 v4, v3, 2, v4")
    e("s_lshl_b32 %s, %s, 5" % (s(S_T1), s(S_M)))
    for hf in range(2):
        for j in range(28):
            e("s_add_u32 %s, %s, %d" % (s(S_T0), s(S_T1), (28 * hf + j) * 1024))
            e("buffer_load_dword %s, v4, %s, %s offen" % (v(RP + j), s(S_WD, 4), s(S_T0)))
        e("s_waitcnt vmcnt(0)")
        for c in range(2):
            for jp in range(14):
                e("v_perm_b32 %s, %s, %s, %s" % (v(DP + c * 28 + 14 * hf + jp), v(RP + 2 * jp + 1), v(RP + 2 * jp), s(S_PHI if c else S_PLO)))
    e("s_mov_b32 %s, 0" % s(S_RND))
    e("s_mov_b64 %s, 0" % s(S_P1, 2))
    e("v_mov_b32 v12, 0x%x" % OOB)
    e("v_mov_b32 v13, 0")
    load_keys(e, "M06", [6], 32)
    load_keys(e, "M01", list(range(1, 6)), 8)
    e("v_max_u32 v5, %s, %s" % (v(KEY), v(KEY + 1)))
    e("v_min_u32 v6, %s, %s" % (v(KEY), v(KEY + 1)))
    for i in range(2, 7):
        e("v_med3_u32 v6, v5, v6, %s" % v(KEY + i))
        e("v_max_u32 v5, v5, %s" % v(KEY + i))
    e("v_mov_b32 %s, v5" % v(KEY))
    e("v_mov_b32 %s, v6" % v(KEY + 1))
    e("s_mov_b32 %s, %d" % (s(S_LIM), ROUNDS[0] * 32 - 1792))
    e.label("L_M_round")
    load_keys(e, "M7", [7], 0)
    top2(e)
    e("s_cmp_eq_u64 %s, %s" % (s(S_K1, 2), s(S_P1, 2)))
    e("s_cbranch_scc1 L_M_next")
    e("s_mov_b64 %s, %s" % (s(S_P1, 2), s(S_K1, 2)))
    for p in range(2):
        e("s_and_b32 %s, %s, 0x7ff" % (s(S_T0), s(S_K1 + p)))
        e("s_sub_u32 %s, 2047, %s" % (s(S_TK + p), s(S_T0)))
        e("s_and_b32 %s, %s, 0xffff0000" % (s(S_T0), s(S_K1 + p)))
        e("s_xor_b32 %s, %s, 0x80000000" % (s(S_T1), s(S_T0)))
        e("s_xor_b32 %s, %s, 0xffff0000" % (s(S_RV + p), s(S_T0)))
        e("s_bitcmp1_b32 %s, 31" % s(S_T0))
        e("s_cselect_b32 %s, %s, %s" % (s(S_RV + p), s(S_T1), s(S_RV + p)))
    e("v_mov_b32 v8, 0")
    e.label("L_M_rows")
    for p in range(2):
        e("s_lshl_b32 %s, %s, 4" % (s(S_T0), s(S_TK + p)))
        e("s_add_u32 %s, %s, 0x%x" % (s(S_T0), s(S_T0), W.RDONE))
        e("buffer_load_dwordx4 %s, v8, %s, %s offen sc1" % (v(RP + 4 * p, 4), ws, s(S_T0)))
    e("s_add_u32 %s, %s, 1" % (s(S_TMO), s(S_TMO)))
    e("s_cmp_gt_u32 %s, %d" % (s(S_TMO), TMO_LIMIT))
    e("s_waitcnt vmcnt(0)")
    e("v_or3_b32 v5, %s, %s, %s" % (v(RP), v(RP + 1), v(RP + 2)))
    e("v_or3_b32 v5, v5, %s, %s" % (v(RP + 3), v(RP + 4)))
    e("v_or3_b32 v5, v5, %s, %s" % (v(RP + 5), v(RP + 6)))
    e("v_or_b32 v5, v5, %s" % v(RP + 7))
    e("s_cbranch_scc1 L_M_rows_ok")
    e("v_cmp_ne_u32 vcc, 0, v5")
    e("s_cbranch_vccnz L_M_rows")
    e.label("L_M_rows_ok")
    e("v_bfe_u32 v9, v0, 6, 1")
    e("v_cmp_ne_u32 vcc, 0, v9")
    e("v_mov_b32 v5, %s" % s(S_TK)); e("v_mov_b32 v6, %s" % s(S_TK + 1))
    e("v_cndmask_b32 v7, v5, v6, vcc")
    e("v_lshlrev_b32 v7, 10, v7")
    e("v_and_b32 v8, 63, v0")
    e("v_lshl_add_u32 v7, v8, 4, v7")
    e("s_mov_b32 %s, 0x%x" % (s(S_T1), W.XN2))
    e("buffer_load_dwordx4 %s, v7, %s, %s offen sc1" % (v(RP, 4), ws, s(S_T1)))
    e("v_bfe_u32 v9, v0, 3, 1")
    e("v_cmp_ne_u32 vcc, 0, v9")
    e("v_cndmask_b32 v12, v5, v6, vcc")
    e("v_mov_b32 v5, %s" % s(S_RV)); e("v_mov_b32 v6, %s" % s(S_RV + 1))
    e("v_cndmask_b32 v11, v5, v6, vcc")
    e("v_lshlrev_b32 v12, 10, v12")
    e("v_and_b32 v3, 7, v0")
    e("v_lshl_add_u32 v12, v3, 2, v12")
    e("s_lshl_b32 %s, %s, 5" % (s(S_T0), s(S_M)))
    e("v_add_u32 v12, %s, v12" % s(S_T0))
    e("v_mov_b32 v7, 0x%x" % OOB)
    e("v_cmp_lt_u32 vcc, 15, v0")
    e("v_cndmask_b32 v12, v12, v7, vcc")
    e("s_mov_b32 %s, 0x%x" % (s(S_T0), W.HROW))
    e("buffer_load_dword v14, v12, %s, %s offen sc1" % (ws, s(S_T0)))
    e("buffer_load_dword v15, v12, %s, %s offen sc1" % (ws, s(S_T1)))
    e("v_and_b32 v8, 127, v0")
    e("v_lshlrev_b32 v8, 4, v8")
    e("s_waitcnt vmcnt(2)")
    e("ds_write_b128 v8, %s offset:4096" % v(RP, 4))
    e("s_waitcnt lgkmcnt(0)")
    e("s_barrier")
    AC = 48
    for r in range(0, 8, 2):
        e("v_mov_b64 %s, 0" % v(AC + r, 2))
    e("v_lshlrev_b32 v8, 7, v1")
    for hf in range(2):
        for p in range(2):
            for q in range(4):
                e("ds_read_b128 %s, v8 offset:%d" % (v(RP + 16 * p + 4 * q, 4), 4096 + 1024 * p + 64 * hf + 16 * q))
        e("s_waitcnt lgkmcnt(0)")
        for jp in range(16):
            for m in range(2):
                for p in range(2):
                    for c in range(2):
                        d = AC + 4 * m + 2 * p + c
                        e("v_dot2_f32_bf16 %s, %s, %s, %s" % (v(d), v(RP + 16 * p + jp), v(PW + (m * 2 + c) * 32 + 16 * hf + jp), v(d)))
    e("s_nop 3")
    e("v_lshlrev_b32 v7, 5, v0")
    e("ds_write_b128 v7, %s offset:8192" % v(AC, 4))
    e("ds_write_b128 v7, %s offset:8208" % v(AC + 4, 4))
    e("s_waitcnt lgkmcnt(0)")
    e("s_barrier")
    e("v_lshlrev_b32 v7, 5, v2")
    e("v_bfe_u32 v8, v0, 5, 1")
    e("v_lshl_add_u32 v7, v8, 3, v7")
    for g in range(8):
        e("ds_read2_b64 %s, v7 offset0:%d offset1:%d" % (v(RP + 4 * g, 4), 0, 2) if False else
          "ds_read_b64 %s, v7 offset:%d" % (v(RP + 4 * g, 2), 8192 + 1024 * g))
        e("ds_read_b64 %s, v7 offset:%d" % (v(RP + 4 * g + 2, 2), 8208 + 1024 * g))
        if g == 3:
            e("s_waitcnt lgkmcnt(0)")
    e("s_waitcnt lgkmcnt(0)")
    for k in range(4):
        for g in range(1, 8):
            e("v_add_f32 %s, %s, %s" % (v(RP + k), v(RP + k), v(RP + 4 * g + k)))
        rnd(e, RP + k, 5)
    for c in range(2):
        sigmoid(e, 6, RP + c)
        e("v_mul_f32 %s, %s, v6" % (v(RP + c), v(RP + c)))
        rnd(e, RP + c, 5)
        e("v_mul_f32 %s, %s, %s" % (v(RP + c), v(RP + c), v(RP + 2 + c)))
    e(cvt(RP, RP, RP + 1))
    e("v_mul_u32_u24 v8, 3584, v8")
    e("v_lshl_add_u32 v7, v2, 2, v8")
    e("v_mov_b32 v6, 0x%x" % OOB)
    e("v_cmp_lt_u32 vcc, 27, v2")
    e("v_cndmask_b32 v7, v7, v6, vcc")
    e("v_cmp_lt_u32 vcc, 63, v0")
    e("v_cndmask_b32 v7, v7, v6, vcc")
    e("s_mul_i32 %s, %s, %d" % (s(S_T1), s(S_RND), ACT_ST))
    e("s_add_u32 %s, %s, 0x%x" % (s(S_T1), s(S_T1), ACT2))
    e("s_add_u32 %s, %s, %s" % (s(S_T0), s(S_T1), s(S_COL)))
    e("buffer_store_dword %s, v7, %s, %s offen sc1" % (v(RP), ws, s(S_T0)))
    e("v_lshlrev_b32 v7, 4, v0")
    e("v_add_u32 v8, 4096, v7")
    e("v_cmp_lt_u32 vcc, 191, v0")
    e("v_cndmask_b32 v8, v8, v6, vcc")
    e.label("L_M_act")
    e("buffer_load_dwordx4 %s, v7, %s, %s offen sc1" % (v(RP + 4, 4), ws, s(S_T1)))
    e("buffer_load_dwordx4 %s, v8, %s, %s offen sc1" % (v(RP + 8, 4), ws, s(S_T1)))
    e("s_add_u32 %s, %s, 1" % (s(S_TMO), s(S_TMO)))
    e("s_cmp_gt_u32 %s, %d" % (s(S_TMO), TMO_LIMIT))
    e("s_waitcnt vmcnt(0)")
    e("v_max3_u32 v5, %s, %s, %s" % (v(RP + 4), v(RP + 5), v(RP + 6)))
    e("v_max3_u32 v5, v5, %s, %s" % (v(RP + 7), v(RP + 8)))
    e("v_max3_u32 v5, v5, %s, %s" % (v(RP + 9), v(RP + 10)))
    e("v_max_u32 v5, v5, %s" % v(RP + 11))
    e("s_cbranch_scc1 L_M_act_ok")
    e("v_cmp_eq_u32 vcc, -1, v5")
    e("s_cbranch_vccnz L_M_act")
    e.label("L_M_act_ok")
    e("ds_write_b128 v7, %s offset:16384" % v(RP + 4, 4))
    e("ds_write_b128 v7, %s offset:20480" % v(RP + 8, 4))
    e("s_waitcnt lgkmcnt(0)")
    e("s_barrier")
    e("v_lshrrev_b32 v7, 3, v0")
    e("v_mul_u32_u24 v7, 112, v7")
    e("v_mov_b64 %s, 0" % v(AC, 2)); e("v_mov_b64 %s, 0" % v(AC + 2, 2))
    for p in range(2):
        for q in range(7):
            e("ds_read_b128 %s, v7 offset:%d" % (v(RP + 4 * q, 4), 16384 + 3584 * p + 16 * q))
        e("s_waitcnt lgkmcnt(0)")
        for jp in range(28):
            for c in range(2):
                d = AC + 2 * p + c
                e("v_dot2_f32_bf16 %s, %s, %s, %s" % (v(d), v(RP + jp), v(DP + c * 28 + jp), v(d)))
    e("s_nop 3")
    for r in range(AC, AC + 4):
        e("v_add_f32_dpp %s, %s, %s row_ror:8 row_mask:0xf bank_mask:0xf" % (v(r), v(r), v(r)))
    for sw in ("v_permlane16_swap_b32", "v_permlane32_swap_b32"):
        for r in range(AC, AC + 4):
            e("v_mov_b32 v5, %s" % v(r))
            e("%s %s, v5" % (sw, v(r)))
            e("v_add_f32 %s, %s, v5" % (v(r), v(r)))
    e("v_lshrrev_b32 v7, 6, v0")
    e("v_lshlrev_b32 v7, 7, v7")
    e("v_lshl_add_u32 v7, v3, 4, v7")
    e("ds_write_b128 v7, %s offset:1024" % v(AC, 4))
    e("s_waitcnt lgkmcnt(0)")
    e("s_barrier")
    e("v_lshlrev_b32 v7, 4, v3")
    e("v_lshl_add_u32 v7, v9, 3, v7")
    Y = RP
    for w in range(4):
        e("ds_read_b64 %s, v7 offset:%d" % (v(Y + 2 * w, 2), 1024 + 128 * w))
    sigmoid(e, 10, 11)
    rnd(e, 10, 5)
    e("s_waitcnt lgkmcnt(0)")
    e("v_lshlrev_b32 %s, 16, v15" % v(Y + 8)); e("v_and_b32 %s, 0xffff0000, v15" % v(Y + 9))
    e("v_lshlrev_b32 %s, 16, v14" % v(Y + 10)); e("v_and_b32 %s, 0xffff0000, v14" % v(Y + 11))
    for k in range(2):
        e("v_add_f32 %s, %s, %s" % (v(Y + k), v(Y + k), v(Y + 2 + k)))
        e("v_add_f32 %s, %s, %s" % (v(Y + 4 + k), v(Y + 4 + k), v(Y + 6 + k)))
        e("v_add_f32 %s, %s, %s" % (v(Y + k), v(Y + k), v(Y + 4 + k)))
        rnd(e, Y + k, 5)
        e("v_mul_f32 %s, %s, v10" % (v(Y + k), v(Y + k)))
        rnd(e, Y + k, 5)
        e("v_add_f32 %s, %s, %s" % (v(Y + k), v(Y + k), v(Y + 8 + k)))
        rnd(e, Y + k, 5)
        e("v_add_f32 %s, %s, %s" % (v(Y + k), v(Y + k), v(Y + 10 + k)))
    e(cvt(13, Y, Y + 1))
    e.label("L_M_next")
    e("s_add_u32 %s, %s, 1" % (s(S_RND), s(S_RND)))
    e("s_mov_b32 %s, %d" % (s(S_LIM), ROUNDS[1] * 32 - 1792))
    e("s_cmp_eq_u32 %s, 1" % s(S_RND))
    e("s_cbranch_scc1 L_M_round")
    e("s_mov_b32 %s, %d" % (s(S_LIM), ROUNDS[2] * 32 - 1792))
    e("s_cmp_eq_u32 %s, 2" % s(S_RND))
    e("s_cbranch_scc1 L_M_round")
    e("buffer_store_dword v13, v12, %s, 0 offen sc1" % s(W.S_OUT, 4))
```

```python
from asmlib import v, a, s
import chain as C
from chain import lin, srd, f32bits, S_WS, S_DBG, S_H, S_WAVE, S_TMO, S_SCALE, S_PLO, S_PHI, S_T0, S_T1, S_T2, TMO_LIMIT, OOB

FLAGKV = C.FLAG_OFF
FLAGTP = C.FLAG_OFF + 0x2000
RVAL = C.FLAG_OFF + 0x4000
ACT = C.FLAG_OFF + 0xC000
RDONE = 0x1B8000
NREP = 6
HROW = 0x400000
XN2 = 0x600000
TP_OFF = 0x4000000
Q_DELTA = 0x8000000 - C.SLAB_OFF

X_T = 0
EX_Q = 0
EX_K = 8192
EX_KM = 16384
MEMI = 20480
EX_O = 0
RED = 28672
L_WO = 32768

S_X = 12
S_OUT = 60
S_WR = 92
S_R = 22
S_SEG = 23
S_A, S_B = 24, 25
S_TPB = 26
S_PAR = 27
S_J = 29
S_M0 = 64
S_MM = 72
S_ONES = C.S_ONES

W_L16, W_MW, W_XG, W_XW, W_XR0, W_XR1, W_WO, W_MR, W_EX, W_TPW, W_TPR, W_ROW, W_NEG, T0, T1 = range(1, 16)
assert T0 == C.T0
R0 = 16


def wreg(m, T, ks):
    idx = ("QKV".index(m) * 32 + ks * 2 + T) * 4
    return a(idx, 4) if idx < 256 else v(128 + idx - 256, 4)


def mf32(d, A, B, first):
    return "v_mfma_f32_16x16x32_bf16 %s, %s, %s, %s" % (v(d, 4), A, B, "0" if first else v(d, 4))


def cvt(d, x, y):
    return "v_cvt_pk_bf16_f32 %s, %s, %s" % (v(d), v(x), v(y))


def setup(e, P):
    e("s_and_b32 %s, s2, 7" % s(S_T0))
    e("s_sub_u32 %s, %s, 1" % (s(S_T0), s(S_T0)))
    e("s_lshl_b32 %s, %s, 5" % (s(S_T0), s(S_T0)))
    e("s_lshr_b32 %s, s2, 3" % s(S_T1))
    e("s_add_u32 %s, %s, %s" % (s(S_T0), s(S_T0), s(S_T1)))
    e("s_mul_i32 %s, %s, 10923" % (s(S_H), s(S_T0)))
    e("s_lshr_b32 %s, %s, 16" % (s(S_H), s(S_H)))
    e("s_mul_i32 %s, %s, %d" % (s(S_T1), s(S_H), NREP))
    e("s_sub_u32 %s, %s, %s" % (s(S_R), s(S_T0), s(S_T1)))
    lin(e, W_L16, {k: 16 << k for k in range(6)})
    lin(e, W_MW, {**{k: 16 << k for k in range(6)}, 6: 2048, 7: 4096})
    lin(e, W_EX, {**{k: 16 << k for k in range(6)}, 6: 1024, 7: 2048})
    lin(e, W_WO, {**{k: 16 << k for k in range(6)}, 6: 32768, 7: 65536}, L_WO)
    lin(e, W_XG, {0: 16, 1: 32, 2: 64, 3: 1024, 4: 2048, 5: 4096, 6: 8192, 7: 16384})
    lin(e, W_XW, {0: 256, 1: 512, 2: 1024, 6: 128, 7: 16384})
    e("v_lshrrev_b32 %s, 3, v0" % v(T1))
    e("v_xor_b32 %s, %s, v0" % (v(T1), v(T1)))
    e("v_and_b32 %s, 7, %s" % (v(T1), v(T1)))
    e("v_lshl_add_u32 %s, %s, 4, %s" % (v(W_XW), v(T1), v(W_XW)))
    e("v_bfe_u32 %s, v0, 4, 2" % v(T1))
    e("v_lshlrev_b32 %s, 4, %s" % (v(T1), v(T1)))
    e("v_xor_b32 %s, %s, %s" % (v(W_XR0), v(T1), v(W_L16)))
    e("v_xor_b32 %s, 64, %s" % (v(W_XR1), v(W_XR0)))
    lin(e, W_MR, {0: 16, 1: 64, 2: 128, 4: 32, 5: 256}, MEMI)
    lin(e, W_TPW, {0: 16, 1: 32, 2: 64, 3: 128, 4: 4 * 32768, 5: 8 * 32768, 6: 256, 7: 512})
    lin(e, W_TPR, {0: 16, 1: 32, 2: 64, 3: 128, 4: 1024, 5: 2048, 6: 256, 7: 512})
    lin(e, W_ROW, {0: 16, 1: 32, 2: 64, 3: 128, 4: 4, 5: 8, 6: 256, 7: 512})
    e("v_mov_b32 %s, 0x%x" % (v(W_NEG), f32bits(-1e30)))
    e("v_and_b32 %s, 15, v0" % v(T0))
    e("v_bfe_u32 %s, v0, 4, 2" % v(T1))
    e("v_cmp_gt_u32 %s, 2, %s" % (s(S_MM, 2), v(T1)))
    e("v_lshlrev_b32 %s, 2, %s" % (v(T1), v(T1)))
    for r in range(4):
        e("v_cmp_le_u32 %s, %s, %s" % (s(S_M0 + 2 * r, 2), v(T1), v(T0)))
        e("v_add_u32 %s, 1, %s" % (v(T1), v(T1)))
    e("s_mov_b32 %s, 0x05040100" % s(S_PLO))
    e("s_mov_b32 %s, 0x07060302" % s(S_PHI))
    e("s_mov_b32 %s, 0x%x" % (s(S_SCALE), f32bits(128 ** -0.5 * 1.4426950408889634)))
    e("s_mov_b32 %s, 0" % s(S_TMO))
    e("s_mov_b32 %s, 0x3f803f80" % s(S_ONES))
    e("s_mov_b32 %s, 0x3f803f80" % s(S_ONES + 1))


def load_w(e, P, mats):
    ptr = {"Q": P + 4, "K": P + 6, "V": P + 8}
    SRDS = {"Q": 96, "K": 40, "V": 76}
    for m in mats:
        srd(e, SRDS[m], ptr[m], 512 * 4096 * 2)

    def reads(m, ci):
        out = []
        for k in range(4):
            for T in range(2):
                idx = ("QKV".index(m) * 32 + (4 * ci + k) * 2 + T) * 4
                for u in range(2):
                    dst = a(idx + 2 * u, 2) if idx < 256 else v(128 + idx - 256 + 2 * u, 2)
                    out.append((dst, k, T, 4 * u))
        return out
    chunks = [(m, ci) for m in mats for ci in range(4)]
    C.staged_load(e, chunks, SRDS, ({4: 32, 5: 64}, lambda k: (k >> 1) << 7), {2: 32, 3: 64, 4: 128}, {2: 1, 3: 2, 4: 8, 5: 16}, False, reads)


def load_wo(e, P):
    VOFF = T1
    srd(e, 96, P + 10, 4096 * 512 * 2)
    lin(e, VOFF, {0: 16, 1: 32, 2: 64, 3: 128, 4: 4 * 1024, 5: 8 * 1024, 6: 256, 7: 512})
    e("s_lshl_b32 %s, %s, 17" % (s(S_T0), s(S_H)))
    TMP = 112

    def issue(ks):
        base = R0 + (ks % 3) * 32
        for j in range(8):
            e("s_add_u32 %s, %s, 0x%x" % (s(S_T1), s(S_T0), (32 * ks + 16 * (j & 1) + (j >> 1)) * 1024))
            e("buffer_load_dwordx4 %s, %s, %s, %s offen" % (v(base + 4 * j, 4), v(VOFF), s(96, 4), s(S_T1)))

    def consume(ks):
        base = R0 + (ks % 3) * 32
        for T in range(8):
            t = TMP + (T % 4) * 4
            if T == 4:
                e("s_waitcnt lgkmcnt(0)")
            for jj in range(4):
                e("v_perm_b32 %s, %s, %s, %s" % (v(t + jj), v(base + 4 * (2 * jj + 1) + (T >> 1)), v(base + 4 * (2 * jj) + (T >> 1)), s(S_PHI if T & 1 else S_PLO)))
            e("ds_write_b128 %s, %s offset:%d" % (v(W_WO), v(t, 4), (ks * 8 + T) * 1024))
        e("s_waitcnt lgkmcnt(0)")
    for ks in range(3):
        issue(ks)
    e("s_waitcnt vmcnt(16)")
    consume(0)
    issue(3)
    e("s_waitcnt vmcnt(16)")
    consume(1)
    e("s_waitcnt vmcnt(8)")
    consume(2)
    e("s_waitcnt vmcnt(0)")
    consume(3)


def dpp_add(e, r, ctrl):
    e("v_add_f32_dpp %s, %s, %s %s row_mask:0xf bank_mask:0xf" % (v(r), v(r), v(r), ctrl))


def wave_sum(e, regs, tmp):
    for ctrl in ("quad_perm:[1,0,3,2]", "quad_perm:[2,3,0,1]", "row_half_mirror", "row_mirror"):
        for r in regs:
            dpp_add(e, r, ctrl)
    for sw in ("v_permlane16_swap_b32", "v_permlane32_swap_b32"):
        for r in regs:
            e("v_mov_b32 %s, %s" % (v(tmp), v(r)))
            e("%s %s, %s" % (sw, v(r), v(tmp)))
            e("v_add_f32 %s, %s, %s" % (v(r), v(r), v(tmp)))


XR = R0 + 80


def x_issue(e, sseg):
    e("s_lshl_b32 %s, %s, 15" % (s(S_T0), s(sseg)))
    for i in range(8):
        e("buffer_load_dwordx4 %s, %s, %s, %s offen offset:%d" % (v(XR + 4 * i, 4), v(W_XG), s(S_X, 4), s(S_T0), i * 128))


def x_norm(e):
    SU, SQ, LO, HI = R0, R0 + 1, R0 + 2, R0 + 3
    lo = lambda d, x: e("v_lshlrev_b32 %s, 16, %s" % (v(d), v(x)))
    hi = lambda d, x: e("v_and_b32 %s, 0xffff0000, %s" % (v(d), v(x)))
    e("v_mov_b32 %s, 0" % v(SU))
    e("v_mov_b32 %s, 0" % v(SQ))
    for r in range(XR, XR + 32):
        e("v_dot2_f32_bf16 %s, %s, %s, %s" % (v(SU), v(r), s(S_ONES), v(SU)))
        e("v_dot2_f32_bf16 %s, %s, %s, %s" % (v(SQ), v(r), v(r), v(SQ)))
    e("s_nop 3")
    for ctrl in ("quad_perm:[1,0,3,2]", "quad_perm:[2,3,0,1]", "row_half_mirror"):
        dpp_add(e, SU, ctrl)
        dpp_add(e, SQ, ctrl)
    e("v_mul_f32 %s, 0x%x, %s" % (v(SU), f32bits(1 / 512), v(SU)))
    e("v_mul_f32 %s, 0x%x, %s" % (v(SQ), f32bits(1 / 512), v(SQ)))
    e("v_fma_f32 %s, -%s, %s, %s" % (v(SQ), v(SU), v(SU), v(SQ)))
    e("v_max_f32 %s, 0, %s" % (v(SQ), v(SQ)))
    e(cvt(T0, SU, SQ))
    lo(SU, T0); hi(SQ, T0)
    e("v_add_f32 %s, 0x%x, %s" % (v(SQ), f32bits(1e-5), v(SQ)))
    e(cvt(T0, SQ, SQ)); lo(SQ, T0)
    e("v_sqrt_f32 %s, %s" % (v(SQ), v(SQ)))
    e(cvt(T0, SQ, SQ)); lo(SQ, T0)
    e("v_rcp_f32 %s, %s" % (v(SQ), v(SQ)))
    for i in range(8):
        for q in range(4):
            r = XR + 4 * i + q
            lo(LO, r); hi(HI, r)
            e("v_sub_f32 %s, %s, %s" % (v(LO), v(LO), v(SU)))
            e("v_sub_f32 %s, %s, %s" % (v(HI), v(HI), v(SU)))
            e(cvt(r, LO, HI))
            lo(LO, r); hi(HI, r)
            e("v_mul_f32 %s, %s, %s" % (v(LO), v(LO), v(SQ)))
            e("v_mul_f32 %s, %s, %s" % (v(HI), v(HI), v(SQ)))
            e(cvt(r, LO, HI))
        e("ds_write_b128 %s, %s offset:%d" % (v(W_XW), v(XR + 4 * i, 4), X_T + i * 2048))


AQ, AK, AV = R0, R0 + 16, R0 + 32
XO = R0 + 48


def project(e, mats, r0, r1):
    def rd(ks):
        b = XO + (ks & 1) * 8
        for kap in range(2):
            e("ds_read_b128 %s, %s offset:%d" % (v(b + 4 * kap, 4), v((r1 if ks & 1 else r0)[kap]), X_T + ks * 1024))
    rd(0)
    for ks in range(16):
        if ks + 1 < 16:
            rd(ks + 1)
            e("s_waitcnt lgkmcnt(2)")
        else:
            e("s_waitcnt lgkmcnt(0)")
        b = XO + (ks & 1) * 8
        for m in mats:
            for T in range(2):
                for kap in range(2):
                    x = v(b + 4 * kap, 4)
                    if m == "V":
                        e(mf32(AV + 8 * kap + 4 * T, x, wreg(m, T, ks), ks == 0))
                    else:
                        e(mf32((AQ if m == "Q" else AK) + 8 * T + 4 * kap, wreg(m, T, ks), x, ks == 0))


def pack_qk(e, acc, dst, scale):
    if scale:
        for r in range(16):
            e("v_mul_f32 %s, %s, %s" % (v(acc + r), s(S_SCALE), v(acc + r)))
    for kap in range(2):
        for r in range(4):
            e(cvt(dst + 4 * kap + r, acc + 4 * kap + r, acc + 8 + 4 * kap + r))


def pack_v(e, dst):
    for T in range(2):
        for kap in range(2):
            for q in range(2):
                e(cvt(dst + 4 * T + 2 * kap + q, AV + 8 * kap + 4 * T + 2 * q, AV + 8 * kap + 4 * T + 2 * q + 1))


def signal(e, soff):
    e("s_waitcnt vmcnt(0)")
    e("s_barrier")
    flag_store(e, soff)


def wait_handshake(e):
    e("v_lshrrev_b32 %s, 2, %s" % (v(T1), v(W_L16)))
    e("v_and_b32 %s, 127, %s" % (v(T1), v(T1)))
    e.label("L_WHS")
    e("buffer_load_dword %s, %s, %s, 0 offen offset:128 sc1" % (v(T0), v(T1), s(S_DBG, 4)))
    e("s_add_u32 %s, %s, 1" % (s(S_TMO), s(S_TMO)))
    e("s_cmp_gt_u32 %s, %d" % (s(S_TMO), TMO_LIMIT))
    e("s_cbranch_scc1 L_WHS_done")
    e("s_waitcnt vmcnt(0)")
    e("v_cmp_eq_u32 vcc, 0, %s" % v(T0))
    e("s_cbranch_vccnz L_WHS")
    e.label("L_WHS_done")


def flag_store(e, soff):
    e("v_cmp_ne_u32 vcc, 0, v0")
    e("v_mov_b32 %s, 0x%x" % (v(T1), OOB))
    e("v_mov_b32 %s, 1" % v(T0))
    e("v_cndmask_b32 %s, v0, %s, vcc" % (v(T1), v(T1)))
    e("buffer_store_dword %s, %s, %s, %s offen sc1" % (v(T0), v(T1), s(S_WS, 4), s(soff)))


def phase1(e):
    ws = s(S_WS, 4)
    A0 = R0 + 64
    e("s_lshr_b32 %s, %s, 1" % (s(S_T0), s(S_WAVE)))
    e("s_lshl_b32 %s, %s, 14" % (s(S_T0), s(S_T0)))
    e("s_xor_b32 %s, %s, 16384" % (s(S_T1), s(S_T0)))
    e("v_add_u32 %s, %s, %s" % (v(A0), s(S_T0), v(W_XR0)))
    e("v_add_u32 %s, %s, %s" % (v(A0 + 1), s(S_T1), v(W_XR0)))
    e("v_add_u32 %s, %s, %s" % (v(A0 + 2), s(S_T0), v(W_XR1)))
    e("v_add_u32 %s, %s, %s" % (v(A0 + 3), s(S_T1), v(W_XR1)))
    e("s_mov_b32 %s, 0x%x" % (s(S_B), OOB))
    e.label("L_P1")
    e("s_waitcnt vmcnt(6)")
    x_norm(e)
    e("s_waitcnt vmcnt(0) lgkmcnt(0)")
    e("s_barrier")
    flag_store(e, S_B)
    e("s_add_u32 %s, %s, %d" % (s(S_A), s(S_SEG), NREP))
    e("s_min_u32 %s, %s, 63" % (s(S_A), s(S_A)))
    x_issue(e, S_A)
    project(e, "KVQ", (A0, A0 + 1), (A0 + 2, A0 + 3))
    e("s_barrier")
    KP, VP, QP = XO, XO + 8, R0 + 68
    pack_qk(e, AK, KP, True)
    pack_v(e, VP)
    pack_qk(e, AQ, QP, False)
    e("s_mul_i32 %s, %s, 0x%x" % (s(S_A), s(S_SEG), C.SLAB_ST))
    e("s_lshl_b32 %s, %s, 14" % (s(S_T0), s(S_H)))
    e("s_add_u32 %s, %s, %s" % (s(S_A), s(S_A), s(S_T0)))
    e("s_add_u32 %s, %s, 0x%x" % (s(S_A), s(S_A), C.SLAB_OFF))
    e("s_lshr_b32 %s, %s, 1" % (s(S_T0), s(S_WAVE)))
    e("s_lshl_b32 %s, %s, 12" % (s(S_T0), s(S_T0)))
    e("s_xor_b32 %s, %s, 4096" % (s(S_T1), s(S_T0)))
    e("s_add_u32 %s, %s, %s" % (s(S_T0), s(S_T0), s(S_A)))
    e("s_add_u32 %s, %s, %s" % (s(S_T1), s(S_T1), s(S_A)))
    e("buffer_store_dwordx4 %s, %s, %s, %s offen sc1" % (v(KP, 4), v(W_EX), ws, s(S_T0)))
    e("buffer_store_dwordx4 %s, %s, %s, %s offen sc1" % (v(KP + 4, 4), v(W_EX), ws, s(S_T1)))
    e("s_add_u32 %s, %s, 8192" % (s(S_A), s(S_A)))
    e("buffer_store_dwordx4 %s, %s, %s, %s offen sc1" % (v(VP, 4), v(W_MW), ws, s(S_A)))
    e("buffer_store_dwordx4 %s, %s, %s, %s offen offset:1024 sc1" % (v(VP + 4, 4), v(W_MW), ws, s(S_A)))
    e("s_add_u32 %s, %s, 0x%x" % (s(S_T0), s(S_T0), Q_DELTA))
    e("s_add_u32 %s, %s, 0x%x" % (s(S_T1), s(S_T1), Q_DELTA))
    e("buffer_store_dwordx4 %s, %s, %s, %s offen sc1" % (v(QP, 4), v(W_EX), ws, s(S_T0)))
    e("buffer_store_dwordx4 %s, %s, %s, %s offen sc1" % (v(QP + 4, 4), v(W_EX), ws, s(S_T1)))
    e("s_lshl_b32 %s, %s, 8" % (s(S_B), s(S_H)))
    e("s_lshl_b32 %s, %s, 2" % (s(S_T0), s(S_SEG)))
    e("s_add_u32 %s, %s, %s" % (s(S_B), s(S_B), s(S_T0)))
    e("s_add_u32 %s, %s, 0x%x" % (s(S_B), s(S_B), FLAGKV))
    e("s_cmp_ge_u32 %s, %d" % (s(S_SEG), NREP))
    e("s_cbranch_scc1 L_P1_defer")
    signal(e, S_B)
    e.label("L_P1_defer")
    e("s_add_u32 %s, %s, %d" % (s(S_SEG), s(S_SEG), NREP))
    e("s_cmp_lt_u32 %s, 64" % s(S_SEG))
    e("s_cbranch_scc1 L_P1")
    for k in range(4):
        e("v_mov_b32 %s, -1" % v(R0 + 4 + k))
    e("s_lshl_b32 %s, %s, 21" % (s(S_A), s(S_R)))
    e("s_lshl_b32 %s, %s, 15" % (s(S_T0), s(S_H)))
    e("s_add_u32 %s, %s, %s" % (s(S_A), s(S_A), s(S_T0)))
    for b_ in range(2):
        for u in range(8):
            e("s_add_u32 %s, %s, 0x%x" % (s(S_T0), s(S_A), TP_OFF + (b_ << 20) + u * 4096))
            e("buffer_store_dwordx4 %s, %s, %s, %s offen sc1" % (v(R0 + 4, 4), v(W_TPR), ws, s(S_T0)))
    signal(e, S_B)
    e("s_lshl_b32 %s, %s, 7" % (s(S_B), s(S_R)))
    e("s_lshl_b32 %s, %s, 2" % (s(S_T0), s(S_H)))
    e("s_add_u32 %s, %s, %s" % (s(S_T0), s(S_T0), s(S_B)))
    e("s_add_u32 %s, %s, 0x%x" % (s(S_T0), s(S_T0), FLAGTP))
    flag_store(e, S_T0)


def wait_tpinit(e):
    e("s_lshl_b32 %s, %s, 7" % (s(S_B), s(S_R)))
    e("s_add_u32 %s, %s, 0x%x" % (s(S_B), s(S_B), FLAGTP))
    e("v_lshrrev_b32 %s, 2, %s" % (v(T1), v(W_L16)))
    e("v_and_b32 %s, 127, %s" % (v(T1), v(T1)))
    e.label("L_TPI")
    e("buffer_load_dword %s, %s, %s, %s offen sc1" % (v(T0), v(T1), s(S_WS, 4), s(S_B)))
    e("s_add_u32 %s, %s, 1" % (s(S_TMO), s(S_TMO)))
    e("s_cmp_gt_u32 %s, %d" % (s(S_TMO), TMO_LIMIT))
    e("s_waitcnt vmcnt(0)")
    e("s_cbranch_scc1 L_TPI_ok")
    e("v_cmp_eq_u32 vcc, 0, %s" % v(T0))
    e("s_cbranch_vccz L_TPI_ok")
    e("s_sleep 8")
    e("s_branch L_TPI")
    e.label("L_TPI_ok")


def pst(e, i):
    if C.OPT.get("prof") == 1:
        e("s_memrealtime %s" % s(44 + 2 * i, 2))
        e("s_waitcnt lgkmcnt(0)")


def phase2(e):
    ws = s(S_WS, 4)
    e("s_mov_b32 %s, %s" % (s(S_SEG), s(S_R)))
    e("s_mov_b32 %s, 0" % s(S_J))
    e.label("L_P2")
    e("s_and_b32 %s, %s, 1" % (s(S_T0), s(S_J)))
    e("s_lshl_b32 %s, %s, 20" % (s(S_T0), s(S_T0)))
    e("s_lshl_b32 %s, %s, 21" % (s(S_TPB), s(S_R)))
    e("s_add_u32 %s, %s, %s" % (s(S_TPB), s(S_TPB), s(S_T0)))
    e("s_add_u32 %s, %s, 0x%x" % (s(S_TPB), s(S_TPB), TP_OFF))
    e("s_bfe_u32 %s, %s, 0x10001" % (s(S_PAR), s(S_J)))
    QO, KO, VP = R0, R0 + 32, R0 + 104
    e("s_mul_i32 %s, %s, 0x%x" % (s(S_A), s(S_SEG), C.SLAB_ST))
    e("s_lshl_b32 %s, %s, 14" % (s(S_T0), s(S_H)))
    e("s_add_u32 %s, %s, %s" % (s(S_A), s(S_A), s(S_T0)))
    e("s_add_u32 %s, %s, 0x%x" % (s(S_A), s(S_A), C.SLAB_OFF))
    for kap in range(2):
        e("s_add_u32 %s, %s, %d" % (s(S_T0), s(S_A), kap * 4096))
        e("s_add_u32 %s, %s, 0x%x" % (s(S_T1), s(S_T0), Q_DELTA))
        for ks in range(4):
            e("buffer_load_dwordx4 %s, %s, %s, %s offen offset:%d sc1" % (v(KO + 16 * kap + 4 * ks, 4), v(W_L16), ws, s(S_T0), ks * 1024))
            e("buffer_load_dwordx4 %s, %s, %s, %s offen offset:%d sc1" % (v(QO + 16 * kap + 4 * ks, 4), v(W_L16), ws, s(S_T1), ks * 1024))
    e("s_add_u32 %s, %s, 8192" % (s(S_A), s(S_A)))
    e("buffer_load_dwordx4 %s, %s, %s, %s offen sc1" % (v(VP, 4), v(W_MW), ws, s(S_A)))
    e("buffer_load_dwordx4 %s, %s, %s, %s offen offset:1024 sc1" % (v(VP + 4, 4), v(W_MW), ws, s(S_A)))
    e("s_waitcnt vmcnt(0)")
    e("s_cmp_lt_u32 %s, 2" % s(S_WAVE))
    e("s_cbranch_scc1 L_P2_noswap")
    for T in range(2):
        for q in range(2):
            e("v_swap_b32 %s, %s" % (v(VP + 4 * T + q), v(VP + 4 * T + 2 + q)))
    e.label("L_P2_noswap")
    e("s_nop 1")
    S00, S01, S11, SM0, SM1 = R0 + 64, R0 + 68, R0 + 72, R0 + 76, R0 + 80
    for (d, kk, kq) in ((S00, 0, 0), (S01, 0, 1), (S11, 1, 1)):
        for ks in range(4):
            e(mf32(d, v(KO + 16 * kk + 4 * ks, 4), v(QO + 16 * kq + 4 * ks, 4), ks == 0))
    MB = KO
    e("s_lshl_b32 %s, %s, 13" % (s(S_A), s(S_SEG)))
    e("s_add_u32 %s, %s, 0x%x" % (s(S_A), s(S_A), C.HIST_OFF))
    e("s_max_u32 %s, %s, 1" % (s(S_B), s(S_SEG)))
    e("s_lshl_b32 %s, %s, 13" % (s(S_B), s(S_B)))
    e("s_add_u32 %s, %s, 0x%x" % (s(S_B), s(S_B), C.HIST_OFF - 0x2000))
    e.label("L_P2_far")
    e("buffer_load_dword %s, %s, %s, %s offen sc1" % (v(T0), v(W_MW), ws, s(S_B)))
    e("s_add_u32 %s, %s, 1" % (s(S_TMO), s(S_TMO)))
    e("s_cmp_gt_u32 %s, %d" % (s(S_TMO), TMO_LIMIT))
    e("s_waitcnt vmcnt(0)")
    e("s_cbranch_scc1 L_P2_poll")
    e("v_cmp_eq_u32 vcc, -1, %s" % v(T0))
    e("s_cbranch_vccz L_P2_poll")
    e("s_sleep 12")
    e("s_branch L_P2_far")
    e.label("L_P2_poll")
    e("buffer_load_dwordx4 %s, %s, %s, %s offen sc1" % (v(MB, 4), v(W_MW), ws, s(S_A)))
    e("buffer_load_dwordx4 %s, %s, %s, %s offen offset:1024 sc1" % (v(MB + 4, 4), v(W_MW), ws, s(S_A)))
    e("s_add_u32 %s, %s, 1" % (s(S_TMO), s(S_TMO)))
    e("s_cmp_gt_u32 %s, %d" % (s(S_TMO), TMO_LIMIT))
    e("s_waitcnt vmcnt(0)")
    e("v_max3_u32 %s, %s, %s, %s" % (v(T0), v(MB), v(MB + 1), v(MB + 2)))
    e("v_max3_u32 %s, %s, %s, %s" % (v(T1), v(MB + 3), v(MB + 4), v(MB + 5)))
    e("v_max3_u32 %s, %s, %s, %s" % (v(T0), v(T0), v(MB + 6), v(MB + 7)))
    e("v_max_u32 %s, %s, %s" % (v(T0), v(T0), v(T1)))
    e("s_cbranch_scc1 L_P2_got")
    e("v_cmp_eq_u32 vcc, -1, %s" % v(T0))
    e("s_cbranch_vccnz L_P2_poll")
    e.label("L_P2_got")
    pst(e, 0)
    e("ds_write_b128 %s, %s offset:%d" % (v(W_MW), v(MB, 4), MEMI))
    e("ds_write_b128 %s, %s offset:%d" % (v(W_MW), v(MB + 4, 4), MEMI + 1024))
    e("s_waitcnt lgkmcnt(0)")
    e("s_barrier")
    AKM, AVM = R0 + 84, R0 + 92
    MO = KO
    moff = lambda ks: ((ks & 3) * 128 + ((ks >> 2) & 1) * 32 + (ks >> 3) * 64) * 16
    rdm = lambda ks: e("ds_read_b128 %s, %s offset:%d" % (v(MO + 4 * (ks % 8), 4), v(W_MR), moff(ks)))
    for ks in range(4):
        rdm(ks)
    for ks in range(16):
        if ks + 4 < 16:
            rdm(ks + 4)
        e("s_waitcnt lgkmcnt(%d)" % min(4, 15 - ks))
        x = v(MO + 4 * (ks % 8), 4)
        for T in range(2):
            e(mf32(AKM + 4 * T, wreg("K", T, ks), x, ks == 0))
        for T in range(2):
            e(mf32(AVM + 4 * T, x, wreg("V", T, ks), ks == 0))
    KMP = KO
    for r in range(8):
        e("v_mul_f32 %s, %s, %s" % (v(AKM + r), s(S_SCALE), v(AKM + r)))
    for r in range(4):
        e(cvt(KMP + r, AKM + r, AKM + 4 + r))
    e("ds_write_b128 %s, %s offset:%d" % (v(W_EX), v(KMP, 4), EX_KM))
    VMP = R0 + 100
    for T in range(2):
        e(cvt(VMP + 2 * T, AVM + 4 * T, AVM + 4 * T + 1))
        e(cvt(VMP + 2 * T + 1, AVM + 4 * T + 2, AVM + 4 * T + 3))
    e("s_waitcnt lgkmcnt(0)")
    e("s_barrier")
    KMO = KO + 16
    for ks in range(4):
        e("ds_read_b128 %s, %s offset:%d" % (v(KMO + 4 * ks, 4), v(W_L16), EX_KM + ks * 1024))
    for S_ in (S00, S11):
        for r in range(4):
            e("v_cndmask_b32 %s, %s, %s, %s" % (v(S_ + r), v(W_NEG), v(S_ + r), s(S_M0 + 2 * r, 2)))
    e("s_waitcnt lgkmcnt(0)")
    for (d, kq) in ((SM0, 0), (SM1, 1)):
        for ks in range(4):
            e(mf32(d, v(KMO + 4 * ks, 4), v(QO + 16 * kq + 4 * ks, 4), ks == 0))
    for S_ in (SM0, SM1):
        for r in range(4):
            e("v_cndmask_b32 %s, %s, %s, %s" % (v(S_ + r), v(W_NEG), v(S_ + r), s(S_MM, 2)))
    MX0, MX1 = KO, KO + 1
    g0 = [S00 + r for r in range(4)] + [SM0 + r for r in range(4)]
    g1 = [S01 + r for r in range(4)] + [S11 + r for r in range(4)] + [SM1 + r for r in range(4)]
    for mx, g_ in ((MX0, g0), (MX1, g1)):
        e("v_max_f32 %s, %s, %s" % (v(mx), v(g_[0]), v(g_[1])))
        for i in range(2, len(g_), 2):
            e("v_max3_f32 %s, %s, %s, %s" % (v(mx), v(mx), v(g_[i]), v(g_[i + 1])))
    for sw in ("v_permlane16_swap_b32", "v_permlane32_swap_b32"):
        for mx in (MX0, MX1):
            e("v_mov_b32 %s, %s" % (v(T0), v(mx)))
            e("%s %s, %s" % (sw, v(mx), v(T0)))
            e("v_max_f32 %s, %s, %s" % (v(mx), v(mx), v(T0)))
    for mx, g_ in ((MX0, g0), (MX1, g1)):
        for r in g_:
            e("v_sub_f32 %s, %s, %s" % (v(r), v(r), v(mx)))
            e("v_exp_f32 %s, %s" % (v(r), v(r)))
    P0, P1, PM0, PM1, ONES = R0, R0 + 4, R0 + 8, R0 + 10, R0 + 12
    e(cvt(P0, S00, S00 + 1)); e(cvt(P0 + 1, S00 + 2, S00 + 3))
    e("v_mov_b64 %s, 0" % v(P0 + 2, 2))
    e(cvt(P1, S01, S01 + 1)); e(cvt(P1 + 1, S01 + 2, S01 + 3))
    e(cvt(P1 + 2, S11, S11 + 1)); e(cvt(P1 + 3, S11 + 2, S11 + 3))
    for pm, S_ in ((PM0, SM0), (PM1, SM1)):
        e(cvt(pm, S_, S_ + 1)); e(cvt(pm + 1, S_ + 2, S_ + 3))
    e("v_mov_b64 %s, %s" % (v(ONES, 2), s(S_ONES, 2)))
    e("v_mov_b64 %s, %s" % (v(ONES + 2, 2), s(S_ONES, 2)))
    LS, OA = R0 + 16, R0 + 24
    for kq, P_ in ((0, P0), (1, P1)):
        e(mf32(LS + 4 * kq, v(ONES, 4), v(P_, 4), True))
        for T in range(2):
            e(mf32(OA + 8 * kq + 4 * T, v(VP + 4 * T, 4), v(P_, 4), True))
    for kq, PM_ in ((0, PM0), (1, PM1)):
        e("v_mfma_f32_16x16x16_bf16 %s, %s, %s, %s" % (v(LS + 4 * kq, 4), v(ONES, 2), v(PM_, 2), v(LS + 4 * kq, 4)))
        for T in range(2):
            d = OA + 8 * kq + 4 * T
            e("v_mfma_f32_16x16x16_bf16 %s, %s, %s, %s" % (v(d, 4), v(VMP + 2 * T, 2), v(PM_, 2), v(d, 4)))
    OP = R0 + 40
    for kq in range(2):
        e("v_rcp_f32 %s, %s" % (v(T0), v(LS + 4 * kq)))
        for r in range(8):
            e("v_mul_f32 %s, %s, %s" % (v(OA + 8 * kq + r), v(OA + 8 * kq + r), v(T0)))
        for r in range(4):
            e(cvt(OP + 4 * kq + r, OA + 8 * kq + r, OA + 8 * kq + 4 + r))
        e("ds_write_b128 %s, %s offset:%d" % (v(W_EX), v(OP + 4 * kq, 4), EX_O + kq * 4096))
    e("s_waitcnt lgkmcnt(0)")
    e("s_barrier")
    pst(e, 1)
    OO = R0
    WB = R0 + 32
    WA = R0 + 48
    for kq in range(2):
        for ks in range(4):
            e("ds_read_b128 %s, %s offset:%d" % (v(OO + 16 * kq + 4 * ks, 4), v(W_L16), EX_O + kq * 4096 + ks * 1024))
    seq = [(ks, T) for ks in range(4) for T in range(8)]
    rdw = lambda i: e("ds_read_b128 %s, %s offset:%d" % (v(WB + 4 * (i % 4), 4), v(W_WO), (seq[i][0] * 8 + seq[i][1]) * 1024))
    for i in range(3):
        rdw(i)
    for i, (ks, T) in enumerate(seq):
        if i + 3 < 32:
            rdw(i + 3)
        e("s_waitcnt lgkmcnt(%d)" % min(3, 31 - i))
        for kq in range(2):
            e(mf32(WA + 32 * kq + 4 * T, v(OO + 16 * kq + 4 * ks, 4), v(WB + 4 * (i % 4), 4), ks == 0))
    pst(e, 2)
    e("s_lshl_b32 %s, %s, 10" % (s(S_T0), s(S_H)))
    e("s_add_u32 %s, %s, %s" % (s(S_A), s(S_TPB), s(S_T0)))
    for kq in range(2):
        for r in range(4):
            d = OO + (4 * kq + r) * 4
            for q in range(4):
                e(cvt(d + q, WA + 32 * kq + 8 * q + r, WA + 32 * kq + 8 * q + 4 + r))
            e("v_and_or_b32 %s, %s, -2, %s" % (v(d), v(d), s(S_PAR)))
            e("s_add_u32 %s, %s, 0x%x" % (s(S_T0), s(S_A), (16 * kq + r) * 32768))
            e("buffer_store_dwordx4 %s, %s, %s, %s offen sc1" % (v(d, 4), v(W_TPW), ws, s(S_T0)))
    SEL, XV, WRV = R0 + 32, R0 + 36, R0 + 37
    e("s_lshl_b32 %s, %s, 5" % (s(S_A), s(S_SEG)))
    e("s_add_u32 %s, %s, %s" % (s(S_A), s(S_A), s(S_H)))
    e("s_lshl_b32 %s, %s, 10" % (s(S_A), s(S_A)))
    e("buffer_load_dword %s, %s, %s, %s offen" % (v(XV), v(W_ROW), s(S_X, 4), s(S_A)))
    e("buffer_load_dword %s, %s, %s, 0 offen" % (v(WRV), v(W_ROW), s(S_WR, 4)))
    e("v_and_b32 %s, 15, v0" % v(T1))
    for q in range(4):
        e("v_mov_b32 %s, 0" % v(SEL + q))
        e("v_mov_b32 %s, 0x3f80" % v(T0))
        e("v_cmp_eq_u32 vcc, %d, %s" % (4 * q, v(T1)))
        e("v_cndmask_b32 %s, %s, %s, vcc" % (v(SEL + q), v(SEL + q), v(T0)))
        e("v_mov_b32 %s, 0x3f800000" % v(T0))
        e("v_cmp_eq_u32 vcc, %d, %s" % (4 * q + 1, v(T1)))
        e("v_cndmask_b32 %s, %s, %s, vcc" % (v(SEL + q), v(SEL + q), v(T0)))
    e("s_lshl_b32 %s, %s, 15" % (s(S_B), s(S_H)))
    e("s_add_u32 %s, %s, %s" % (s(S_B), s(S_B), s(S_TPB)))
    PD = R0 + 64
    pst(e, 3)
    e.label("L_P3_poll")
    for u in range(8):
        e("s_add_u32 %s, %s, %d" % (s(S_T0), s(S_B), u * 4096))
        e("buffer_load_dwordx4 %s, %s, %s, %s offen sc1" % (v(PD + 4 * u, 4), v(W_TPR), ws, s(S_T0)))
    e("s_mov_b64 exec, -1")
    e("s_add_u32 %s, %s, 1" % (s(S_TMO), s(S_TMO)))
    e("s_cmp_gt_u32 %s, %d" % (s(S_TMO), TMO_LIMIT))
    RD = R0 + 40
    for u in range(8):
        e("s_waitcnt vmcnt(%d)" % (7 - u))
        e(mf32(RD, v(SEL, 4), v(PD + 4 * u, 4), u == 0))
        if u & 1:
            e("v_bitop3_b32 %s, %s, %s, %s bitop3:0x7e" % (v(R0 + 44 + (u >> 1)), v(PD + 4 * u - 4), v(PD + 4 * u), s(S_PAR)))
    e("v_or3_b32 %s, %s, %s, %s" % (v(T0), v(R0 + 44), v(R0 + 45), v(R0 + 46)))
    e("v_bitop3_b32 %s, %s, %s, 1 bitop3:0xa8" % (v(T0), v(T0), v(R0 + 47)))
    e("s_cbranch_scc1 L_P3_got")
    e("v_cmp_ne_u32 vcc, 0, %s" % v(T0))
    e("s_cbranch_vccz L_P3_got")
    e("s_mov_b64 exec, vcc")
    e("s_branch L_P3_poll")
    e.label("L_P3_got")
    pst(e, 4)
    e("s_nop 4")
    H0, H1, HP, SU, SQ, A_, B_, XP = range(R0 + 44, R0 + 52)
    lo = lambda d, x: e("v_lshlrev_b32 %s, 16, %s" % (v(d), v(x)))
    hi = lambda d, x: e("v_and_b32 %s, 0xffff0000, %s" % (v(d), v(x)))
    e(cvt(HP, RD, RD + 1))
    lo(A_, HP); hi(B_, HP)
    lo(H0, XV); hi(H1, XV)
    e("v_add_f32 %s, %s, %s" % (v(H0), v(H0), v(A_)))
    e("v_add_f32 %s, %s, %s" % (v(H1), v(H1), v(B_)))
    e(cvt(HP, H0, H1))
    lo(H0, HP); hi(H1, HP)
    e("v_add_f32 %s, %s, %s" % (v(SU), v(H0), v(H1)))
    e("v_mul_f32 %s, %s, %s" % (v(SQ), v(H0), v(H0)))
    e("v_fmac_f32 %s, %s, %s" % (v(SQ), v(H1), v(H1)))
    wave_sum(e, [SU, SQ], T0)
    e("v_mov_b32 %s, %s" % (v(T1), s(S_WAVE)))
    e("v_lshlrev_b32 %s, 3, %s" % (v(T1), v(T1)))
    e("v_add_u32 %s, %d, %s" % (v(T1), RED, v(T1)))
    e("ds_write2_b32 %s, %s, %s offset0:0 offset1:1" % (v(T1), v(SU), v(SQ)))
    e("s_add_u32 %s, %s, 0x%x" % (s(S_T0), s(S_A), HROW))
    e("buffer_store_dword %s, %s, %s, %s offen sc1" % (v(HP), v(W_ROW), ws, s(S_T0)))
    e("s_waitcnt lgkmcnt(0)")
    e("s_barrier")
    RR = R0 + 52
    e("v_mov_b32 %s, %d" % (v(T1), RED))
    e("ds_read_b128 %s, %s" % (v(RR, 4), v(T1)))
    e("ds_read_b128 %s, %s offset:16" % (v(RR + 4, 4), v(T1)))
    e("s_waitcnt lgkmcnt(0)")
    for k, d in ((0, SU), (1, SQ)):
        e("v_add_f32 %s, %s, %s" % (v(d), v(RR + k), v(RR + 2 + k)))
        e("v_add_f32 %s, %s, %s" % (v(d), v(d), v(RR + 4 + k)))
        e("v_add_f32 %s, %s, %s" % (v(d), v(d), v(RR + 6 + k)))
        e("v_mul_f32 %s, 0x%x, %s" % (v(d), f32bits(1 / 512), v(d)))
    e("v_fma_f32 %s, -%s, %s, %s" % (v(SQ), v(SU), v(SU), v(SQ)))
    e("v_max_f32 %s, 0, %s" % (v(SQ), v(SQ)))
    e(cvt(T0, SU, SQ))
    lo(SU, T0); hi(SQ, T0)
    e("v_add_f32 %s, 0x%x, %s" % (v(SQ), f32bits(1e-5), v(SQ)))
    e(cvt(T0, SQ, SQ)); lo(SQ, T0)
    e("v_sqrt_f32 %s, %s" % (v(SQ), v(SQ)))
    e(cvt(T0, SQ, SQ)); lo(SQ, T0)
    e("v_rcp_f32 %s, %s" % (v(SQ), v(SQ)))
    e("v_sub_f32 %s, %s, %s" % (v(A_), v(H0), v(SU)))
    e("v_sub_f32 %s, %s, %s" % (v(B_), v(H1), v(SU)))
    e(cvt(T0, A_, B_)); lo(A_, T0); hi(B_, T0)
    e("v_mul_f32 %s, %s, %s" % (v(A_), v(A_), v(SQ)))
    e("v_mul_f32 %s, %s, %s" % (v(B_), v(B_), v(SQ)))
    e(cvt(XP, A_, B_))
    lo(A_, XP); hi(B_, XP)
    W0, W1 = RR, RR + 1
    lo(W0, WRV); hi(W1, WRV)
    e("v_mul_f32 %s, %s, %s" % (v(SU), v(A_), v(W0)))
    e("v_fmac_f32 %s, %s, %s" % (v(SU), v(B_), v(W1)))
    wave_sum(e, [SU], T0)
    e("s_lshr_b32 %s, %s, 6" % (s(S_B), s(S_A)))
    e("s_lshl_b32 %s, %s, 2" % (s(S_T1), s(S_WAVE)))
    e("s_add_u32 %s, %s, %s" % (s(S_B), s(S_B), s(S_T1)))
    e("s_add_u32 %s, %s, 0x%x" % (s(S_T0), s(S_B), RVAL))
    e("v_cmp_ne_u32 vcc, 0, %s" % v(W_L16))
    e("v_mov_b32 %s, 0x%x" % (v(T1), OOB))
    e("v_cndmask_b32 %s, %s, %s, vcc" % (v(T1), v(W_L16), v(T1)))
    e("buffer_store_dword %s, %s, %s, %s offen sc1" % (v(SU), v(T1), ws, s(S_T0)))
    e("v_add_f32 %s, %s, %s" % (v(H0), v(H0), v(A_)))
    e("v_add_f32 %s, %s, %s" % (v(H1), v(H1), v(B_)))
    e(cvt(HP, H0, H1))
    e("buffer_store_dword %s, %s, %s, %s offen sc1" % (v(HP), v(W_ROW), s(S_OUT, 4), s(S_A)))
    e("s_add_u32 %s, %s, 0x%x" % (s(S_T0), s(S_A), XN2))
    e("buffer_store_dword %s, %s, %s, %s offen sc1" % (v(XP), v(W_ROW), ws, s(S_T0)))
    pst(e, 5)
    e("v_mov_b32 %s, 0" % v(T0))
    e("s_add_u32 %s, %s, 0x%x" % (s(S_T0), s(S_B), RDONE))
    e("s_waitcnt vmcnt(0)")
    e("buffer_store_dword %s, %s, %s, %s offen sc1" % (v(T0), v(T1), ws, s(S_T0)))
    e("s_add_u32 %s, %s, 1" % (s(S_J), s(S_J)))
    e("s_barrier")
    e("s_add_u32 %s, %s, %d" % (s(S_SEG), s(S_SEG), NREP))
    e("s_cmp_lt_u32 %s, 64" % s(S_SEG))
    e("s_cbranch_scc1 L_P2")
```

```python
import sys
from asmlib import Emitter, v, a, s
import chain as C
for a_ in sys.argv:
    if a_.startswith('opt:'):
        k_, v_ = a_[4:].split('=')
        C.OPT[k_] = int(v_, 0) if v_.lstrip('-')[:1].isdigit() else v_.replace('_', ' ')
import worker as W
import mlp as M

BASE = "sequential_preLN__memory_aug_recurrent_mem_tr__moe_arch_mod__prompt"
K1 = BASE + "_kernel"
K2 = "route_up_kernel"
K3 = "down_kernel"
hdr = open("/code/%s.s.ref" % BASE).read().split("\n")
hdr = [l for l in hdr[:hdr.index(next(l for l in hdr if "@launch" in l and l.startswith("; @launch")))] if "harness parses" not in l.lower() and "Override launch" not in l]
e = Emitter()
for l in hdr:
    e.raw(l)
if C.OPT.get("list"):
    e.raw("; @launch kernel=%s grid=(256,1,1) block=(256,1,1) lds=%d" % (K1, C.LDS_BYTES))
else:
    e.raw("; @launch grid=(256,1,1) block=(256,1,1) lds=%d" % C.LDS_BYTES)
e.raw('.amdgcn_target "amdgcn-amd-amdhsa--gfx950"')
e.raw(".text")


def start(name):
    e.raw(".globl %s\n.p2align 8\n.type %s,@function" % (name, name))
    e.label(name)
    e.hist = []


PROF = C.OPT.get("prof", 0)


def rt(i, dbg=None):
    if not PROF:
        return
    if PROF == 2:
        if dbg is None:
            return
        e("s_cmp_lg_u32 %s, 0" % s(C.S_WAVE))
        e("s_cbranch_scc1 L_rt%d" % dbg)
        if dbg in (0, 3, 4):
            e("s_cmp_ge_u32 s2, 16")
            e("s_cbranch_scc1 L_rt%d" % dbg)
        e("s_memrealtime s[100:101]")
        e("s_waitcnt lgkmcnt(0)")
        e("s_and_b32 s100, s100, 0xffffff")
        if dbg == 0:
            e("s_sub_u32 s100, 0x1000000, s100")
        e("v_mov_b32 v14, s100")
        e("v_mov_b32 v15, 0")
        e("s_mov_b64 exec, 1")
        e("buffer_atomic_umax v14, v15, %s, 0 offen offset:%d" % (s(C.S_DBG, 4), 4 * dbg))
        e("s_mov_b64 exec, -1")
        e.label("L_rt%d" % dbg)
        return
    e("s_memrealtime s[100:101]")
    e("s_lshl_b32 s3, s2, 6")
    e("s_add_u32 s3, s3, 0x%x" % C.STAMP_OFF)
    e("s_waitcnt lgkmcnt(0)")
    e("v_mov_b32 v14, s100")
    e("v_mov_b32 v15, 0")
    e("buffer_store_dword v14, v15, %s, s3 offen offset:%d" % (s(C.S_WS, 4), 4 * i))
    e("s_waitcnt vmcnt(0)")


start(K1)
P = C.S_PTR
e("s_cmp_ge_u32 s2, 256")
e("s_cbranch_scc1 L_end")
e("s_load_dwordx8 %s, s[0:1], 0" % s(P, 8))
e("s_load_dwordx4 %s, s[0:1], 32" % s(P + 8, 4))
e("s_load_dwordx4 %s, s[0:1], 104" % s(P + 12, 4))
e("s_load_dwordx2 s[80:81], s[0:1], 64")
e("s_load_dwordx2 s[82:83], s[0:1], 96")
e("s_load_dwordx4 s[84:87], s[0:1], 72")
e("s_load_dwordx2 s[88:89], s[0:1], 88")
e("v_lshrrev_b32 v1, 6, v0")
e("v_readfirstlane_b32 %s, v1" % s(C.S_WAVE))
e("s_waitcnt lgkmcnt(0)")
C.srd(e, C.S_WS, P + 14, C.WS_BYTES)
C.srd(e, C.S_DBG, P + 12, 256)
rt(0, 0)
e("s_and_b32 s3, s2, 7")
e("s_cmp_lg_u32 s3, 0")
e("s_cbranch_scc1 L_worker")
e("s_lshr_b32 %s, s2, 3" % s(C.S_H))
C.setup_consts(e)
C.load_weights(e, P + 4, P + 6, P + 8, P + 10, pre=lambda q: C.init_issue(e, P + 2, q))
C.setup_pf(e)
rt(1, 1)
C.handshake_wait(e, "L_fast_start", "L_slow_start")
C.main_loop(e, "fast", "", 63)
rt(2, 2)
e("s_branch L_end")
C.main_loop(e, "slow", " sc1", 63)
e("s_branch L_end")
e.label("L_worker")
C.srd(e, W.S_X, P, 2048 * 512 * 2)
C.srd(e, W.S_OUT, 82, 2048 * 512 * 2)
e("s_cmp_eq_u32 s3, 7")
e("s_cbranch_scc1 L_mlp")
C.srd(e, W.S_WR, 80, 1024)
W.setup(e, P)
e("s_mov_b32 %s, %s" % (s(W.S_SEG), s(W.S_R)))
if C.OPT.get("touch", 1):
    e.comment("pull this head's Wo slice towards the last-level cache early (the chain CU streams it first)")
    C.srd(e, 96, P + 10, 4096 * 512 * 2)
    e("s_lshl_b32 s3, %s, 17" % s(C.S_H))
    e("s_and_b32 s28, %s, 3" % s(W.S_R))
    e("s_lshl_b32 s28, s28, 15")
    e("s_add_u32 s3, s3, s28")
    e("v_lshlrev_b32 v30, 7, v0")
    e("buffer_load_dword v31, v30, s[96:99], s3 offen")
W.x_issue(e, W.S_SEG)
W.load_w(e, P, C.OPT.get("word", "VKQ"))
rt(1, 3)
W.wait_handshake(e)
W.phase1(e)
rt(2, 4)
W.load_wo(e, P)
W.wait_tpinit(e)
rt(3)
W.phase2(e)
rt(4, 5)
if PROF == 1:
    for i in range(6):
        e("v_mov_b32 v14, %s" % s(44 + 2 * i))
        e("buffer_store_dword v14, v15, %s, s3 offen offset:%d" % (s(C.S_WS, 4), 32 + 4 * i))
    e("v_mov_b32 v14, %s" % s(C.S_TMO))
    e("buffer_store_dword v14, v15, %s, s3 offen offset:56" % s(C.S_WS, 4))
    e("v_mov_b32 v14, %s" % s(W.S_R))
    e("buffer_store_dword v14, v15, %s, s3 offen offset:60" % s(C.S_WS, 4))
e("s_branch L_end")
e.label("L_mlp")
M.body(e, 84, 86, 88)
e.label("L_end")
if PROF:
    e("s_cmp_ge_u32 s2, 256")
    e("s_cbranch_scc1 L_end2")
    rt(5, 6)
    e.label("L_end2")
e("s_endpgm")
e.raw('.section .rodata,"a"')
for name, nv, acc in ((K1, 512, 256),):
    e.raw(""".p2align 6
.amdhsa_kernel %s
  .amdhsa_next_free_vgpr %d
  .amdhsa_next_free_sgpr 102
  .amdhsa_accum_offset %d
  .amdhsa_group_segment_fixed_size 0
  .amdhsa_kernarg_size 120
  .amdhsa_user_sgpr_count 2
  .amdhsa_user_sgpr_kernarg_segment_ptr 1
  .amdhsa_system_sgpr_workgroup_id_x 1
.end_amdhsa_kernel""" % (name, nv, acc))
out = sys.argv[1] if len(sys.argv) > 1 and not sys.argv[1].startswith("opt:") else "/code/%s.s" % BASE
open(out, "w").write(e.text())
print("nops inserted:", e.nops_inserted, "lines:", len(e.lines), "->", out)
```

```python
from asmlib import v, a, s
import chain as C
from chain import lin, srd, f32bits, S_WS, S_DBG, S_H, S_WAVE, S_TMO, S_SCALE, S_PLO, S_PHI, S_T0, S_T1, S_T2, TMO_LIMIT, OOB

FLAGKV = C.FLAG_OFF
FLAGTP = C.FLAG_OFF + 0x2000
RVAL = C.FLAG_OFF + 0x4000
ACT = C.FLAG_OFF + 0xC000
FLAGXN = FLAGTP + 0x400
XNI = 0x800000
RDONE = 0x1B8000
NREP = 6
HROW = 0x400000
XN2 = 0x600000
TP_OFF = 0x4000000
Q_DELTA = 0x8000000 - C.SLAB_OFF

X_T = 0
EX_Q = 0
EX_K = 8192
EX_KM = 16384
MEMI = 20480
EX_O = 0
RED = 28672
L_WO = 32768

S_X = 12
S_OUT = 60
S_WR = 92
S_R = 22
S_SEG = 23
S_A, S_B = 24, 25
S_TPB = 26
S_PAR = 27
S_J = 29
S_M0 = 64
S_MM = 72
S_ONES = C.S_ONES

W_L16, W_MW, W_XG, W_XW, W_XR0, W_XR1, W_WO, W_MR, W_EX, W_TPW, W_TPR, W_ROW, W_NEG, T0, T1 = range(1, 16)
assert T0 == C.T0
R0 = 16


def wreg(m, T, ks):
    idx = ("QKV".index(m) * 32 + ks * 2 + T) * 4
    return a(idx, 4) if idx < 256 else v(128 + idx - 256, 4)


def mf32(d, A, B, first):
    return "v_mfma_f32_16x16x32_bf16 %s, %s, %s, %s" % (v(d, 4), A, B, "0" if first else v(d, 4))


def cvt(d, x, y):
    return "v_cvt_pk_bf16_f32 %s, %s, %s" % (v(d), v(x), v(y))


def setup(e, P):
    e("s_and_b32 %s, s2, 7" % s(S_T0))
    e("s_sub_u32 %s, %s, 1" % (s(S_T0), s(S_T0)))
    e("s_lshl_b32 %s, %s, 5" % (s(S_T0), s(S_T0)))
    e("s_lshr_b32 %s, s2, 3" % s(S_T1))
    e("s_add_u32 %s, %s, %s" % (s(S_T0), s(S_T0), s(S_T1)))
    e("s_mul_i32 %s, %s, 10923" % (s(S_H), s(S_T0)))
    e("s_lshr_b32 %s, %s, 16" % (s(S_H), s(S_H)))
    e("s_mul_i32 %s, %s, %d" % (s(S_T1), s(S_H), NREP))
    e("s_sub_u32 %s, %s, %s" % (s(S_R), s(S_T0), s(S_T1)))
    lin(e, W_L16, {k: 16 << k for k in range(6)})
    lin(e, W_MW, {**{k: 16 << k for k in range(6)}, 6: 2048, 7: 4096})
    lin(e, W_EX, {**{k: 16 << k for k in range(6)}, 6: 1024, 7: 2048})
    lin(e, W_WO, {**{k: 16 << k for k in range(6)}, 6: 32768, 7: 65536}, L_WO)
    lin(e, W_XG, {0: 16, 1: 32, 2: 64, 3: 1024, 4: 2048, 5: 4096, 6: 8192, 7: 16384})
    lin(e, W_XW, {0: 256, 1: 512, 2: 1024, 6: 128, 7: 16384})
    e("v_lshrrev_b32 %s, 3, v0" % v(T1))
    e("v_xor_b32 %s, %s, v0" % (v(T1), v(T1)))
    e("v_and_b32 %s, 7, %s" % (v(T1), v(T1)))
    e("v_lshl_add_u32 %s, %s, 4, %s" % (v(W_XW), v(T1), v(W_XW)))
    e("v_bfe_u32 %s, v0, 4, 2" % v(T1))
    e("v_lshlrev_b32 %s, 4, %s" % (v(T1), v(T1)))
    e("v_xor_b32 %s, %s, %s" % (v(W_XR0), v(T1), v(W_L16)))
    e("v_xor_b32 %s, 64, %s" % (v(W_XR1), v(W_XR0)))
    lin(e, W_MR, {0: 16, 1: 64, 2: 128, 4: 32, 5: 256}, MEMI)
    lin(e, W_TPW, {0: 16, 1: 32, 2: 64, 3: 128, 4: 4 * 32768, 5: 8 * 32768, 6: 256, 7: 512})
    lin(e, W_TPR, {0: 16, 1: 32, 2: 64, 3: 128, 4: 1024, 5: 2048, 6: 256, 7: 512})
    lin(e, W_ROW, {0: 16, 1: 32, 2: 64, 3: 128, 4: 4, 5: 8, 6: 256, 7: 512})
    e("v_mov_b32 %s, 0x%x" % (v(W_NEG), f32bits(-1e30)))
    e("v_and_b32 %s, 15, v0" % v(T0))
    e("v_bfe_u32 %s, v0, 4, 2" % v(T1))
    e("v_cmp_gt_u32 %s, 2, %s" % (s(S_MM, 2), v(T1)))
    e("v_lshlrev_b32 %s, 2, %s" % (v(T1), v(T1)))
    for r in range(4):
        e("v_cmp_le_u32 %s, %s, %s" % (s(S_M0 + 2 * r, 2), v(T1), v(T0)))
        e("v_add_u32 %s, 1, %s" % (v(T1), v(T1)))
    e("s_mov_b32 %s, 0x05040100" % s(S_PLO))
    e("s_mov_b32 %s, 0x07060302" % s(S_PHI))
    e("s_mov_b32 %s, 0x%x" % (s(S_SCALE), f32bits(128 ** -0.5 * 1.4426950408889634)))
    e("s_mov_b32 %s, 0" % s(S_TMO))
    e("s_mov_b32 %s, 0x3f803f80" % s(S_ONES))
    e("s_mov_b32 %s, 0x3f803f80" % s(S_ONES + 1))


def load_w(e, P, mats):
    ptr = {"Q": P + 4, "K": P + 6, "V": P + 8}
    SRDS = {"Q": 96, "K": 40, "V": 76}
    for m in mats:
        srd(e, SRDS[m], ptr[m], 512 * 4096 * 2)

    def reads(m, ci):
        out = []
        for k in range(4):
            for T in range(2):
                idx = ("QKV".index(m) * 32 + (4 * ci + k) * 2 + T) * 4
                for u in range(2):
                    dst = a(idx + 2 * u, 2) if idx < 256 else v(128 + idx - 256 + 2 * u, 2)
                    out.append((dst, k, T, 4 * u))
        return out
    chunks = [(m, ci) for m in mats for ci in range(4)]
    C.staged_load(e, chunks, SRDS, ({4: 32, 5: 64}, lambda k: (k >> 1) << 7), {2: 32, 3: 64, 4: 128}, {2: 1, 3: 2, 4: 8, 5: 16}, False, reads)


def load_wo(e, P):
    VOFF = T1
    srd(e, 96, P + 10, 4096 * 512 * 2)
    lin(e, VOFF, {0: 16, 1: 32, 2: 64, 3: 128, 4: 4 * 1024, 5: 8 * 1024, 6: 256, 7: 512})
    e("s_lshl_b32 %s, %s, 17" % (s(S_T0), s(S_H)))
    TMP = 112

    def issue(ks):
        base = R0 + (ks % 3) * 32
        for j in range(8):
            e("s_add_u32 %s, %s, 0x%x" % (s(S_T1), s(S_T0), (32 * ks + 16 * (j & 1) + (j >> 1)) * 1024))
            e("buffer_load_dwordx4 %s, %s, %s, %s offen" % (v(base + 4 * j, 4), v(VOFF), s(96, 4), s(S_T1)))

    def consume(ks):
        base = R0 + (ks % 3) * 32
        for T in range(8):
            t = TMP + (T % 4) * 4
            if T == 4:
                e("s_waitcnt lgkmcnt(0)")
            for jj in range(4):
                e("v_perm_b32 %s, %s, %s, %s" % (v(t + jj), v(base + 4 * (2 * jj + 1) + (T >> 1)), v(base + 4 * (2 * jj) + (T >> 1)), s(S_PHI if T & 1 else S_PLO)))
            e("ds_write_b128 %s, %s offset:%d" % (v(W_WO), v(t, 4), (ks * 8 + T) * 1024))
        e("s_waitcnt lgkmcnt(0)")
    for ks in range(3):
        issue(ks)
    e("s_waitcnt vmcnt(16)")
    consume(0)
    issue(3)
    e("s_waitcnt vmcnt(16)")
    consume(1)
    e("s_waitcnt vmcnt(8)")
    consume(2)
    e("s_waitcnt vmcnt(0)")
    consume(3)


def dpp_add(e, r, ctrl):
    e("v_add_f32_dpp %s, %s, %s %s row_mask:0xf bank_mask:0xf" % (v(r), v(r), v(r), ctrl))


def wave_sum(e, regs, tmp):
    for ctrl in ("quad_perm:[1,0,3,2]", "quad_perm:[2,3,0,1]", "row_half_mirror", "row_mirror"):
        for r in regs:
            dpp_add(e, r, ctrl)
    for sw in ("v_permlane16_swap_b32", "v_permlane32_swap_b32"):
        for r in regs:
            e("v_mov_b32 %s, %s" % (v(tmp), v(r)))
            e("%s %s, %s" % (sw, v(r), v(tmp)))
            e("v_add_f32 %s, %s, %s" % (v(r), v(r), v(tmp)))


XR = R0 + 80


def x_issue(e, sseg):
    e("s_lshl_b32 %s, %s, 15" % (s(S_T0), s(sseg)))
    for i in range(8):
        e("buffer_load_dwordx4 %s, %s, %s, %s offen offset:%d" % (v(XR + 4 * i, 4), v(W_XG), s(S_X, 4), s(S_T0), i * 128))


def x_norm(e):
    SU, SQ, LO, HI = R0, R0 + 1, R0 + 2, R0 + 3
    lo = lambda d, x: e("v_lshlrev_b32 %s, 16, %s" % (v(d), v(x)))
    hi = lambda d, x: e("v_and_b32 %s, 0xffff0000, %s" % (v(d), v(x)))
    e("v_mov_b32 %s, 0" % v(SU))
    e("v_mov_b32 %s, 0" % v(SQ))
    for r in range(XR, XR + 32):
        e("v_dot2_f32_bf16 %s, %s, %s, %s" % (v(SU), v(r), s(S_ONES), v(SU)))
        e("v_dot2_f32_bf16 %s, %s, %s, %s" % (v(SQ), v(r), v(r), v(SQ)))
    e("s_nop 3")
    for ctrl in ("quad_perm:[1,0,3,2]", "quad_perm:[2,3,0,1]", "row_half_mirror"):
        dpp_add(e, SU, ctrl)
        dpp_add(e, SQ, ctrl)
    e("v_mul_f32 %s, 0x%x, %s" % (v(SU), f32bits(1 / 512), v(SU)))
    e("v_mul_f32 %s, 0x%x, %s" % (v(SQ), f32bits(1 / 512), v(SQ)))
    e("v_fma_f32 %s, -%s, %s, %s" % (v(SQ), v(SU), v(SU), v(SQ)))
    e("v_max_f32 %s, 0, %s" % (v(SQ), v(SQ)))
    e(cvt(T0, SU, SQ))
    lo(SU, T0); hi(SQ, T0)
    e("v_add_f32 %s, 0x%x, %s" % (v(SQ), f32bits(1e-5), v(SQ)))
    e(cvt(T0, SQ, SQ)); lo(SQ, T0)
    e("v_sqrt_f32 %s, %s" % (v(SQ), v(SQ)))
    e(cvt(T0, SQ, SQ)); lo(SQ, T0)
    e("v_rcp_f32 %s, %s" % (v(SQ), v(SQ)))
    for i in range(8):
        for q in range(4):
            r = XR + 4 * i + q
            lo(LO, r); hi(HI, r)
            e("v_sub_f32 %s, %s, %s" % (v(LO), v(LO), v(SU)))
            e("v_sub_f32 %s, %s, %s" % (v(HI), v(HI), v(SU)))
            e(cvt(r, LO, HI))
            lo(LO, r); hi(HI, r)
            e("v_mul_f32 %s, %s, %s" % (v(LO), v(LO), v(SQ)))
            e("v_mul_f32 %s, %s, %s" % (v(HI), v(HI), v(SQ)))
            e(cvt(r, LO, HI))
        e("ds_write_b128 %s, %s offset:%d" % (v(W_XW), v(XR + 4 * i, 4), X_T + i * 2048))


AQ, AK, AV = R0, R0 + 16, R0 + 32
XO = R0 + 48


def project(e, mats, r0, r1, extra=None):
    def rd(ks):
        b = XO + (ks & 1) * 8
        for kap in range(2):
            e("ds_read_b128 %s, %s offset:%d" % (v(b + 4 * kap, 4), v((r1 if ks & 1 else r0)[kap]), X_T + ks * 1024))
    rd(0)
    for ks in range(16):
        if ks + 1 < 16:
            rd(ks + 1)
            e("s_waitcnt lgkmcnt(2)")
        else:
            e("s_waitcnt lgkmcnt(0)")
        b = XO + (ks & 1) * 8
        if extra and ks in extra:
            extra[ks]()
        for m in mats:
            for T in range(2):
                for kap in range(2):
                    x = v(b + 4 * kap, 4)
                    if m == "V":
                        e(mf32(AV + 8 * kap + 4 * T, x, wreg(m, T, ks), ks == 0))
                    else:
                        e(mf32((AQ if m == "Q" else AK) + 8 * T + 4 * kap, wreg(m, T, ks), x, ks == 0))


def pack_qk(e, acc, dst, scale):
    if scale:
        for r in range(16):
            e("v_mul_f32 %s, %s, %s" % (v(acc + r), s(S_SCALE), v(acc + r)))
    for kap in range(2):
        for r in range(4):
            e(cvt(dst + 4 * kap + r, acc + 4 * kap + r, acc + 8 + 4 * kap + r))


def pack_v(e, dst):
    for T in range(2):
        for kap in range(2):
            for q in range(2):
                e(cvt(dst + 4 * T + 2 * kap + q, AV + 8 * kap + 4 * T + 2 * q, AV + 8 * kap + 4 * T + 2 * q + 1))


def signal(e, soff):
    e("s_waitcnt vmcnt(0)")
    e("s_barrier")
    flag_store(e, soff)


def wait_handshake(e, L="L_WHS"):
    e("v_lshrrev_b32 %s, 2, %s" % (v(T1), v(W_L16)))
    e("v_and_b32 %s, 127, %s" % (v(T1), v(T1)))
    e.label(L)
    e("buffer_load_dword %s, %s, %s, 0 offen offset:128 sc1" % (v(T0), v(T1), s(S_DBG, 4)))
    e("s_add_u32 %s, %s, 1" % (s(S_TMO), s(S_TMO)))
    e("s_cmp_gt_u32 %s, %d" % (s(S_TMO), TMO_LIMIT))
    e("s_cbranch_scc1 %s_done" % L)
    e("s_waitcnt vmcnt(0)")
    e("v_cmp_eq_u32 vcc, 0, %s" % v(T0))
    e("s_cbranch_vccnz %s" % L)
    e.label(L + "_done")


def flag_store(e, soff):
    e("v_cmp_ne_u32 vcc, 0, v0")
    e("v_mov_b32 %s, 0x%x" % (v(T1), OOB))
    e("v_mov_b32 %s, 1" % v(T0))
    e("v_cndmask_b32 %s, v0, %s, vcc" % (v(T1), v(T1)))
    e("buffer_store_dword %s, %s, %s, %s offen sc1" % (v(T0), v(T1), s(S_WS, 4), s(soff)))


def xn_produce(e):
    ws = s(S_WS, 4)
    e("s_lshr_b32 %s, s2, 3" % s(S_SEG))
    e("s_lshl_b32 %s, %s, 1" % (s(S_SEG), s(S_SEG)))
    for k in range(2):
        x_issue(e, S_SEG)
        e("s_waitcnt vmcnt(0)")
        x_norm(e)
        e("s_waitcnt lgkmcnt(0)")
        e("s_barrier")
        e("s_lshl_b32 %s, %s, 15" % (s(S_A), s(S_SEG)))
        e("s_add_u32 %s, %s, 0x%x" % (s(S_A), s(S_A), XNI))
        for i in range(8):
            e("ds_read_b128 %s, %s offset:%d" % (v(R0 + 8 + 4 * i, 4), v(W_EX), i * 4096))
        for i in range(8):
            e("s_waitcnt lgkmcnt(%d)" % (7 - i))
            e("s_add_u32 %s, %s, %d" % (s(S_T0), s(S_A), i * 4096))
            e("buffer_store_dwordx4 %s, %s, %s, %s offen sc1" % (v(R0 + 8 + 4 * i, 4), v(W_EX), ws, s(S_T0)))
        e("s_barrier")
        e("s_add_u32 %s, %s, 1" % (s(S_SEG), s(S_SEG)))
    wait_handshake(e, "L_XHS")
    e("s_lshl_b32 %s, %s, 2" % (s(S_A), s(S_SEG)))
    e("s_add_u32 %s, %s, 0x%x" % (s(S_A), s(S_A), FLAGXN - 8))
    signal(e, S_A)
    e("s_add_u32 %s, %s, 4" % (s(S_A), s(S_A)))
    flag_store(e, S_A)


def wait_xn(e):
    e("v_lshrrev_b32 %s, 2, %s" % (v(T1), v(W_L16)))
    e("s_mov_b32 %s, 0x%x" % (s(S_A), FLAGXN))
    e.label("L_XNW")
    e("buffer_load_dword %s, %s, %s, %s offen sc1" % (v(T0), v(T1), s(S_WS, 4), s(S_A)))
    e("s_add_u32 %s, %s, 1" % (s(S_TMO), s(S_TMO)))
    e("s_cmp_gt_u32 %s, %d" % (s(S_TMO), TMO_LIMIT))
    e("s_waitcnt vmcnt(0)")
    e("s_cbranch_scc1 L_XNW_ok")
    e("v_cmp_eq_u32 vcc, 0, %s" % v(T0))
    e("s_cbranch_vccnz L_XNW")
    e.label("L_XNW_ok")


S_BUF = 28


def x_dma(e, sseg, sbuf):
    e("s_lshl_b32 %s, %s, 15" % (s(S_T0), s(sseg)))
    e("s_add_u32 %s, %s, 0x%x" % (s(S_T0), s(S_T0), XNI))
    e("s_lshl_b32 %s, %s, 10" % (s(S_T1), s(S_WAVE)))
    e("s_add_u32 %s, %s, %s" % (s(S_T1), s(S_T1), s(sbuf)))
    for i in range(8):
        e("s_add_u32 m0, %s, %d" % (s(S_T1), i * 4096))
        e("s_add_u32 %s, %s, %d" % (s(S_T2), s(S_T0), i * 4096))
        e("buffer_load_dwordx4 %s, %s, %s offen sc1 lds" % (v(W_EX), s(S_WS, 4), s(S_T2)))


def phase1(e):
    ws = s(S_WS, 4)
    A0 = R0 + 64
    e("s_lshr_b32 %s, %s, 1" % (s(S_T0), s(S_WAVE)))
    e("s_lshl_b32 %s, %s, 14" % (s(S_T0), s(S_T0)))
    e("s_xor_b32 %s, %s, 16384" % (s(S_T1), s(S_T0)))
    e("v_add_u32 %s, %s, %s" % (v(A0), s(S_T0), v(W_XR0)))
    e("v_add_u32 %s, %s, %s" % (v(A0 + 1), s(S_T1), v(W_XR0)))
    e("v_add_u32 %s, %s, %s" % (v(A0 + 2), s(S_T0), v(W_XR1)))
    e("v_add_u32 %s, %s, %s" % (v(A0 + 3), s(S_T1), v(W_XR1)))
    e("s_mov_b32 %s, 0x%x" % (s(S_B), OOB))
    e("s_mov_b32 %s, 0" % s(S_BUF))
    e("s_mov_b32 %s, %s" % (s(S_SEG), s(S_R)))
    x_dma(e, S_SEG, S_BUF)
    e("s_waitcnt vmcnt(0)")
    e.label("L_P1")
    e("s_waitcnt vmcnt(6)")
    e("s_barrier")
    e("s_xor_b32 %s, %s, 32768" % (s(S_BUF), s(S_BUF)))
    e("s_add_u32 %s, %s, %d" % (s(S_A), s(S_SEG), NREP))
    e("s_min_u32 %s, %s, 63" % (s(S_A), s(S_A)))
    x_dma(e, S_A, S_BUF)

    def mid():
        e("s_waitcnt vmcnt(8)")
        e("s_barrier")
        flag_store(e, S_B)
    project(e, "KVQ", (A0, A0 + 1), (A0 + 2, A0 + 3), {8: mid})
    for k in range(4):
        e("v_xor_b32 %s, 0x8000, %s" % (v(A0 + k), v(A0 + k)))
    KP, VP, QP = R0 + 72, R0 + 80, R0 + 88
    pack_qk(e, AK, KP, True)
    pack_v(e, VP)
    pack_qk(e, AQ, QP, False)
    e("s_mul_i32 %s, %s, 0x%x" % (s(S_A), s(S_SEG), C.SLAB_ST))
    e("s_lshl_b32 %s, %s, 14" % (s(S_T0), s(S_H)))
    e("s_add_u32 %s, %s, %s" % (s(S_A), s(S_A), s(S_T0)))
    e("s_add_u32 %s, %s, 0x%x" % (s(S_A), s(S_A), C.SLAB_OFF))
    e("s_lshr_b32 %s, %s, 1" % (s(S_T0), s(S_WAVE)))
    e("s_lshl_b32 %s, %s, 12" % (s(S_T0), s(S_T0)))
    e("s_xor_b32 %s, %s, 4096" % (s(S_T1), s(S_T0)))
    e("s_add_u32 %s, %s, %s" % (s(S_T0), s(S_T0), s(S_A)))
    e("s_add_u32 %s, %s, %s" % (s(S_T1), s(S_T1), s(S_A)))
    e("buffer_store_dwordx4 %s, %s, %s, %s offen sc1" % (v(KP, 4), v(W_EX), ws, s(S_T0)))
    e("buffer_store_dwordx4 %s, %s, %s, %s offen sc1" % (v(KP + 4, 4), v(W_EX), ws, s(S_T1)))
    e("s_add_u32 %s, %s, 8192" % (s(S_A), s(S_A)))
    e("buffer_store_dwordx4 %s, %s, %s, %s offen sc1" % (v(VP, 4), v(W_MW), ws, s(S_A)))
    e("buffer_store_dwordx4 %s, %s, %s, %s offen offset:1024 sc1" % (v(VP + 4, 4), v(W_MW), ws, s(S_A)))
    e("s_add_u32 %s, %s, 0x%x" % (s(S_T0), s(S_T0), Q_DELTA))
    e("s_add_u32 %s, %s, 0x%x" % (s(S_T1), s(S_T1), Q_DELTA))
    e("buffer_store_dwordx4 %s, %s, %s, %s offen sc1" % (v(QP, 4), v(W_EX), ws, s(S_T0)))
    e("buffer_store_dwordx4 %s, %s, %s, %s offen sc1" % (v(QP + 4, 4), v(W_EX), ws, s(S_T1)))
    e("s_lshl_b32 %s, %s, 8" % (s(S_B), s(S_H)))
    e("s_lshl_b32 %s, %s, 2" % (s(S_T0), s(S_SEG)))
    e("s_add_u32 %s, %s, %s" % (s(S_B), s(S_B), s(S_T0)))
    e("s_add_u32 %s, %s, 0x%x" % (s(S_B), s(S_B), FLAGKV))
    e("s_add_u32 %s, %s, %d" % (s(S_SEG), s(S_SEG), NREP))
    e("s_cmp_lt_u32 %s, 64" % s(S_SEG))
    e("s_cbranch_scc1 L_P1")
    for k in range(4):
        e("v_mov_b32 %s, -1" % v(R0 + 4 + k))
    e("s_lshl_b32 %s, %s, 21" % (s(S_A), s(S_R)))
    e("s_lshl_b32 %s, %s, 15" % (s(S_T0), s(S_H)))
    e("s_add_u32 %s, %s, %s" % (s(S_A), s(S_A), s(S_T0)))
    for b_ in range(2):
        for u in range(8):
            e("s_add_u32 %s, %s, 0x%x" % (s(S_T0), s(S_A), TP_OFF + (b_ << 20) + u * 4096))
            e("buffer_store_dwordx4 %s, %s, %s, %s offen sc1" % (v(R0 + 4, 4), v(W_TPR), ws, s(S_T0)))
    signal(e, S_B)
    e("s_lshl_b32 %s, %s, 7" % (s(S_B), s(S_R)))
    e("s_lshl_b32 %s, %s, 2" % (s(S_T0), s(S_H)))
    e("s_add_u32 %s, %s, %s" % (s(S_T0), s(S_T0), s(S_B)))
    e("s_add_u32 %s, %s, 0x%x" % (s(S_T0), s(S_T0), FLAGTP))
    flag_store(e, S_T0)


def wait_tpinit(e):
    e("s_lshl_b32 %s, %s, 7" % (s(S_B), s(S_R)))
    e("s_add_u32 %s, %s, 0x%x" % (s(S_B), s(S_B), FLAGTP))
    e("v_lshrrev_b32 %s, 2, %s" % (v(T1), v(W_L16)))
    e("v_and_b32 %s, 127, %s" % (v(T1), v(T1)))
    e.label("L_TPI")
    e("buffer_load_dword %s, %s, %s, %s offen sc1" % (v(T0), v(T1), s(S_WS, 4), s(S_B)))
    e("s_add_u32 %s, %s, 1" % (s(S_TMO), s(S_TMO)))
    e("s_cmp_gt_u32 %s, %d" % (s(S_TMO), TMO_LIMIT))
    e("s_waitcnt vmcnt(0)")
    e("s_cbranch_scc1 L_TPI_ok")
    e("v_cmp_eq_u32 vcc, 0, %s" % v(T0))
    e("s_cbranch_vccz L_TPI_ok")
    e("s_sleep 8")
    e("s_branch L_TPI")
    e.label("L_TPI_ok")


def pst(e, i):
    if C.OPT.get("prof") == 1:
        e("s_memrealtime %s" % s(44 + 2 * i, 2))
        e("s_waitcnt lgkmcnt(0)")


QO, KO, VPA = 0, 32, 64
S_RD = 30


def qkv_issue(e, sseg):
    ws = s(S_WS, 4)
    e("s_mul_i32 %s, %s, 0x%x" % (s(S_A), s(sseg), C.SLAB_ST))
    e("s_lshl_b32 %s, %s, 14" % (s(S_T0), s(S_H)))
    e("s_add_u32 %s, %s, %s" % (s(S_A), s(S_A), s(S_T0)))
    e("s_add_u32 %s, %s, 0x%x" % (s(S_A), s(S_A), C.SLAB_OFF))
    for kap in range(2):
        e("s_add_u32 %s, %s, %d" % (s(S_T0), s(S_A), kap * 4096))
        e("s_add_u32 %s, %s, 0x%x" % (s(S_T1), s(S_T0), Q_DELTA))
        for ks in range(4):
            e("buffer_load_dwordx4 %s, %s, %s, %s offen offset:%d sc1" % (a(KO + 16 * kap + 4 * ks, 4), v(W_L16), ws, s(S_T0), ks * 1024))
            e("buffer_load_dwordx4 %s, %s, %s, %s offen offset:%d sc1" % (a(QO + 16 * kap + 4 * ks, 4), v(W_L16), ws, s(S_T1), ks * 1024))
    e("s_lshr_b32 %s, %s, 1" % (s(S_T0), s(S_WAVE)))
    e("s_lshl_b32 %s, %s, 3" % (s(S_T0), s(S_T0)))
    e("s_xor_b32 %s, %s, 8" % (s(S_T1), s(S_T0)))
    e("s_add_u32 %s, %s, 8192" % (s(S_A), s(S_A)))
    e("s_add_u32 %s, %s, %s" % (s(S_T0), s(S_T0), s(S_A)))
    e("s_add_u32 %s, %s, %s" % (s(S_T1), s(S_T1), s(S_A)))
    for T in range(2):
        e("buffer_load_dwordx2 %s, %s, %s, %s offen offset:%d sc1" % (a(VPA + 4 * T, 2), v(W_MW), ws, s(S_T0), T * 1024))
        e("buffer_load_dwordx2 %s, %s, %s, %s offen offset:%d sc1" % (a(VPA + 4 * T + 2, 2), v(W_MW), ws, s(S_T1), T * 1024))


def rdone_store(e):
    e("v_cmp_ne_u32 vcc, 0, %s" % v(W_L16))
    e("v_mov_b32 %s, 0x%x" % (v(T1), OOB))
    e("v_mov_b32 %s, 0" % v(T0))
    e("v_cndmask_b32 %s, %s, %s, vcc" % (v(T1), v(W_L16), v(T1)))
    e("buffer_store_dword %s, %s, %s, %s offen sc1" % (v(T0), v(T1), s(S_WS, 4), s(S_RD)))


def inter(e, mains, fills, per):
    fills = list(fills)
    for m in mains:
        for x in (m if isinstance(m, list) else [m]):
            e(x)
        for _ in range(per):
            if fills:
                e(fills.pop(0))
    for x in fills:
        e(x)


def phase2(e):
    ws = s(S_WS, 4)
    mf16 = lambda d, A, B, first: "v_mfma_f32_16x16x16_bf16 %s, %s, %s, %s" % (v(d, 4), A, B, "0" if first else v(d, 4))
    e("s_mov_b32 %s, %s" % (s(S_SEG), s(S_R)))
    e("s_mov_b32 %s, 0" % s(S_J))
    e("s_mov_b32 %s, 0x%x" % (s(S_RD), OOB))
    qkv_issue(e, S_SEG)
    e.label("L_P2")
    e("s_and_b32 %s, %s, 1" % (s(S_T0), s(S_J)))
    e("s_lshl_b32 %s, %s, 20" % (s(S_T0), s(S_T0)))
    e("s_lshl_b32 %s, %s, 21" % (s(S_TPB), s(S_R)))
    e("s_add_u32 %s, %s, %s" % (s(S_TPB), s(S_TPB), s(S_T0)))
    e("s_add_u32 %s, %s, 0x%x" % (s(S_TPB), s(S_TPB), TP_OFF))
    e("s_bfe_u32 %s, %s, 0x10001" % (s(S_PAR), s(S_J)))
    MB = R0 + 32
    e("s_lshl_b32 %s, %s, 13" % (s(S_A), s(S_SEG)))
    e("s_add_u32 %s, %s, 0x%x" % (s(S_A), s(S_A), C.HIST_OFF))
    e("s_max_u32 %s, %s, 1" % (s(S_B), s(S_SEG)))
    e("s_lshl_b32 %s, %s, 13" % (s(S_B), s(S_B)))
    e("s_add_u32 %s, %s, 0x%x" % (s(S_B), s(S_B), C.HIST_OFF - 0x2000))
    hld = ["buffer_load_dwordx4 %s, %s, %s, %s offen sc1" % (v(MB, 4), v(W_MW), ws, s(S_A)),
           "buffer_load_dwordx4 %s, %s, %s, %s offen offset:1024 sc1" % (v(MB + 4, 4), v(W_MW), ws, s(S_A))]
    for x in hld:
        e(x)
    e("s_lshl_b32 %s, %s, 5" % (s(S_T0), s(S_SEG)))
    e("s_add_u32 %s, %s, %s" % (s(S_T0), s(S_T0), s(S_H)))
    e("s_lshl_b32 %s, %s, 10" % (s(S_T0), s(S_T0)))
    e("buffer_load_dword a72, %s, %s, %s offen" % (v(W_ROW), s(S_X, 4), s(S_T0)))
    e("buffer_load_dword a73, %s, %s, 0 offen" % (v(W_ROW), s(S_WR, 4)))
    e("s_waitcnt vmcnt(4)")
    rdone_store(e)
    S00, S01, S11, SM0, SM1 = R0 + 64, R0 + 68, R0 + 72, R0 + 76, R0 + 80
    for (d, kk, kq) in ((S00, 0, 0), (S11, 1, 1), (S01, 0, 1)):
        for ks in range(4):
            e(mf32(d, a(KO + 16 * kk + 4 * ks, 4), a(QO + 16 * kq + 4 * ks, 4), ks == 0))
    for S_ in (S00, S11):
        for r in range(4):
            e("v_cndmask_b32 %s, %s, %s, %s" % (v(S_ + r), v(W_NEG), v(S_ + r), s(S_M0 + 2 * r, 2)))
    MX = R0 + 100
    g0 = [S00 + r for r in range(4)]
    g1 = [S01 + r for r in range(4)] + [S11 + r for r in range(4)]
    for mx, g_ in ((MX, g0), (MX + 1, g1)):
        e("v_max_f32 %s, %s, %s" % (v(mx), v(g_[0]), v(g_[1])))
        for i in range(2, len(g_), 2):
            e("v_max3_f32 %s, %s, %s, %s" % (v(mx), v(mx), v(g_[i]), v(g_[i + 1])))
    for sw in ("v_permlane16_swap_b32", "v_permlane32_swap_b32"):
        for mx in (MX, MX + 1):
            e("v_mov_b32 %s, %s" % (v(T0), v(mx)))
            e("%s %s, %s" % (sw, v(mx), v(T0)))
            e("v_max_f32 %s, %s, %s" % (v(mx), v(mx), v(T0)))
    for mx, g_ in ((MX, g0), (MX + 1, g1)):
        for r in g_:
            e("v_sub_f32 %s, %s, %s" % (v(r), v(r), v(mx)))
            e("v_exp_f32 %s, %s" % (v(r), v(r)))
    P0, P1, ONES, ONM = R0 + 84, R0 + 88, R0 + 92, R0 + 96
    e(cvt(P0, S00, S00 + 1)); e(cvt(P0 + 1, S00 + 2, S00 + 3))
    e("v_mov_b64 %s, 0" % v(P0 + 2, 2))
    e(cvt(P1, S01, S01 + 1)); e(cvt(P1 + 1, S01 + 2, S01 + 3))
    e(cvt(P1 + 2, S11, S11 + 1)); e(cvt(P1 + 3, S11 + 2, S11 + 3))
    e("v_mov_b64 %s, %s" % (v(ONES, 2), s(S_ONES, 2)))
    e("v_mov_b64 %s, %s" % (v(ONES + 2, 2), s(S_ONES, 2)))
    for k in range(2):
        e("v_cndmask_b32 %s, 0, %s, %s" % (v(ONM + k), v(ONES), s(S_MM, 2)))
    LX, OX = R0, R0 + 8
    for kq, P_ in ((0, P0), (1, P1)):
        e(mf32(LX + 4 * kq, v(ONES, 4), v(P_, 4), True))
        for T in range(2):
            e(mf32(OX + 8 * kq + 4 * T, a(VPA + 4 * T, 4), v(P_, 4), True))
    e("s_branch L_P2_chk")
    e.label("L_P2_far")
    e("buffer_load_dword %s, %s, %s, %s offen sc1" % (v(T0), v(W_MW), ws, s(S_B)))
    e("s_add_u32 %s, %s, 1" % (s(S_TMO), s(S_TMO)))
    e("s_cmp_gt_u32 %s, %d" % (s(S_TMO), TMO_LIMIT))
    e("s_waitcnt vmcnt(0)")
    e("s_cbranch_scc1 L_P2_poll")
    e("v_cmp_eq_u32 vcc, -1, %s" % v(T0))
    e("s_cbranch_vccz L_P2_near")
    e("s_sleep 12")
    e("s_branch L_P2_far")
    e.label("L_P2_near")
    e("s_mov_b32 %s, 0x%x" % (s(S_B), OOB))
    e.label("L_P2_poll")
    for x in hld:
        e(x)
    e.label("L_P2_chk")
    e("s_add_u32 %s, %s, 1" % (s(S_TMO), s(S_TMO)))
    e("s_waitcnt vmcnt(0)")
    e("ds_write_b128 %s, %s offset:%d" % (v(W_MW), v(MB, 4), MEMI))
    e("ds_write_b128 %s, %s offset:%d" % (v(W_MW), v(MB + 4, 4), MEMI + 1024))
    e("v_max3_u32 %s, %s, %s, %s" % (v(T0), v(MB), v(MB + 1), v(MB + 2)))
    e("v_max3_u32 %s, %s, %s, %s" % (v(T1), v(MB + 3), v(MB + 4), v(MB + 5)))
    e("v_max3_u32 %s, %s, %s, %s" % (v(T0), v(T0), v(MB + 6), v(MB + 7)))
    e("v_max_u32 %s, %s, %s" % (v(T0), v(T0), v(T1)))
    e("v_cmp_eq_u32 vcc, -1, %s" % v(T0))
    e("s_cbranch_vccz L_P2_got")
    e("s_cmp_gt_u32 %s, %d" % (s(S_TMO), TMO_LIMIT))
    e("s_cbranch_scc1 L_P2_got")
    e("s_cmp_eq_u32 %s, 0x%x" % (s(S_B), OOB))
    e("s_cbranch_scc1 L_P2_poll")
    e("s_branch L_P2_far")
    e.label("L_P2_got")
    pst(e, 0)
    e("s_waitcnt lgkmcnt(0)")
    e("s_barrier")
    AKM, AVM = R0 + 64, R0 + 24
    MO = R0 + 32
    moff = lambda ks: ((ks & 3) * 128 + ((ks >> 2) & 1) * 32 + (ks >> 3) * 64) * 16
    rdm = lambda i: "ds_read_b128 %s, %s offset:%d" % (v(MO + 4 * (i % 4), 4), v(W_MR), moff(i % 16))
    for i in range(3):
        e(rdm(i))
    for ks in range(16):
        e(rdm(ks + 3))
        e("s_waitcnt lgkmcnt(3)")
        for T in range(2):
            e(mf32(AKM + 4 * T, wreg("K", T, ks), v(MO + 4 * (ks % 4), 4), ks == 0))
    KMP, KMO = R0 + 72, R0 + 48
    PM = R0 + 84
    FX = R0 + 88
    vm = lambda ks, n: ([rdm(16 + ks + 3)] if ks + 3 < 16 else []) + ["s_waitcnt lgkmcnt(%d)" % n] + \
        [mf32(AVM + 4 * T, v(MO + 4 * (ks % 4), 4), wreg("V", T, ks), ks == 0) for T in range(2)]
    for x in vm(0, 3) + vm(1, 3):
        e(x)
    kf = ["v_mul_f32 %s, %s, %s" % (v(AKM + r), s(S_SCALE), v(AKM + r)) for r in range(8)] + [cvt(KMP + r, AKM + r, AKM + 4 + r) for r in range(4)]
    inter(e, [vm(2, 3), vm(3, 3), vm(4, 3)], kf, 4)
    e("ds_write_b128 %s, %s offset:%d" % (v(W_EX), v(KMP, 4), EX_KM))
    for x in vm(5, 4) + vm(6, 4) + vm(7, 4):
        e(x)
    e("s_waitcnt lgkmcnt(3)")
    e("s_barrier")
    for ks in range(4):
        e("ds_read_b128 %s, %s offset:%d" % (v(KMO + 4 * ks, 4), v(W_L16), EX_KM + ks * 1024))
    for x in vm(8, 7) + vm(9, 7):
        e(x)
    e("s_waitcnt lgkmcnt(2)")
    for ks in range(4):
        for (d, kq) in ((SM0, 0), (SM1, 1)):
            e(mf32(d, v(KMO + 4 * ks, 4), a(QO + 16 * kq + 4 * ks, 4), ks == 0))
    for x in vm(10, 3):
        e(x)
    M2 = R0 + 102
    sf = []
    for kq, S_ in ((0, SM0), (1, SM1)):
        sf += ["v_max3_f32 %s, %s, %s, %s" % (v(M2 + kq), v(S_), v(S_ + 1), v(S_ + 2)),
               "v_max3_f32 %s, %s, %s, %s" % (v(M2 + kq), v(M2 + kq), v(S_ + 3), v(MX + kq))]
    sf += ["v_mov_b32 %s, %s" % (v(T0), v(M2)), "v_mov_b32 %s, %s" % (v(T1), v(M2 + 1)),
           "v_permlane16_swap_b32 %s, %s" % (v(M2), v(T0)), "v_permlane16_swap_b32 %s, %s" % (v(M2 + 1), v(T1)),
           "v_max_f32 %s, %s, %s" % (v(M2), v(M2), v(T0)), "v_max_f32 %s, %s, %s" % (v(M2 + 1), v(M2 + 1), v(T1))]
    for kq, S_ in ((0, SM0), (1, SM1)):
        for r in range(4):
            sf += ["v_sub_f32 %s, %s, %s" % (v(S_ + r), v(S_ + r), v(M2 + kq)), "v_exp_f32 %s, %s" % (v(S_ + r), v(S_ + r))]
        sf += ["v_sub_f32 %s, %s, %s" % (v(FX + kq), v(MX + kq), v(M2 + kq)), "v_exp_f32 %s, %s" % (v(FX + kq), v(FX + kq))]
        sf += [cvt(PM + 2 * kq, S_, S_ + 1), cvt(PM + 2 * kq + 1, S_ + 2, S_ + 3)]
    inter(e, [vm(11, 3), vm(12, 3), vm(13, 2), vm(14, 1), vm(15, 0)], sf, 6)
    LM, OM = R0 + 32, R0 + 40
    for kq in range(2):
        e(mf16(LM + 4 * kq, v(ONM, 2), v(PM + 2 * kq, 2), True))
    VMP = R0 + 64
    for T in range(2):
        for k in range(2):
            e(cvt(VMP + 2 * T + k, AVM + 4 * T + 2 * k, AVM + 4 * T + 2 * k + 1))
            e("v_cndmask_b32 %s, 0, %s, %s" % (v(VMP + 2 * T + k), v(VMP + 2 * T + k), s(S_MM, 2)))
    for kq in range(2):
        for T in range(2):
            e(mf16(OM + 8 * kq + 4 * T, v(VMP + 2 * T, 2), v(PM + 2 * kq, 2), True))
    OP = R0 + 56
    for kq in range(2):
        e("v_fma_f32 %s, %s, %s, %s" % (v(LM + 4 * kq), v(LX + 4 * kq), v(FX + kq), v(LM + 4 * kq)))
        e("v_rcp_f32 %s, %s" % (v(LM + 4 * kq), v(LM + 4 * kq)))
    for kq in range(2):
        for r in range(8):
            e("v_fma_f32 %s, %s, %s, %s" % (v(OM + 8 * kq + r), v(OX + 8 * kq + r), v(FX + kq), v(OM + 8 * kq + r)))
        for r in range(0, 8, 2):
            e("v_pk_mul_f32 %s, %s, %s op_sel_hi:[1,0]" % (v(OM + 8 * kq + r, 2), v(OM + 8 * kq + r, 2), v(LM + 4 * kq, 2)))
        for r in range(4):
            e(cvt(OP + 4 * kq + r, OM + 8 * kq + r, OM + 8 * kq + 4 + r))
        e("ds_write_b128 %s, %s offset:%d" % (v(W_EX), v(OP + 4 * kq, 4), EX_O + kq * 4096))
    OO = R0
    WB = R0 + 32
    WA = R0 + 48
    seq = [(kq, ks, T) for kq in range(2) for ks in range(4) for T in range(8)]
    rdw = lambda i: "ds_read_b128 %s, %s offset:%d" % (v(WB + 4 * (i % 4), 4), v(W_WO), (seq[i][1] * 8 + seq[i][2]) * 1024)
    e("s_waitcnt lgkmcnt(0)")
    e("s_barrier")
    pst(e, 1)
    for kq in range(2):
        for ks in range(4):
            e("ds_read_b128 %s, %s offset:%d" % (v(OO + 16 * kq + 4 * ks, 4), v(W_L16), EX_O + kq * 4096 + ks * 1024))
    for i in range(3):
        e(rdw(i))
    e("s_lshl_b32 %s, %s, 10" % (s(S_T0), s(S_H)))
    e("s_add_u32 %s, %s, %s" % (s(S_B), s(S_TPB), s(S_T0)))

    def outs(kq):
        o = []
        for r in range(4):
            d = OO + 16 * kq + 4 * r
            o += [cvt(d + q, WA + 32 * kq + 8 * q + r, WA + 32 * kq + 8 * q + 4 + r) for q in range(4)]
            o += ["v_and_or_b32 %s, %s, -2, %s" % (v(d), v(d), s(S_PAR)),
                  "s_add_u32 %s, %s, 0x%x" % (s(S_T0), s(S_B), (16 * kq + r) * 32768),
                  "buffer_store_dwordx4 %s, %s, %s, %s offen sc1" % (v(d, 4), v(W_TPW), ws, s(S_T0))]
        return o
    o0 = outs(0)
    for i, (kq, ks, T) in enumerate(seq):
        e("s_waitcnt lgkmcnt(%d)" % min(2, 63 - i))
        e(mf32(WA + 32 * kq + 4 * T, v(OO + 16 * kq + 4 * ks, 4), v(WB + 4 * (i % 4), 4), ks == 0))
        if i + 3 < 64:
            e(rdw(i + 3))
        if i >= 35 and o0:
            e(o0.pop(0))
    assert not o0
    pst(e, 2)
    for x in outs(1):
        e(x)
    e("s_add_u32 %s, %s, %d" % (s(S_T2), s(S_SEG), NREP))
    e("s_cmp_ge_u32 %s, 64" % s(S_T2))
    e("s_cbranch_scc1 L_P2_last")
    qkv_issue(e, S_T2)
    e.label("L_P2_last")
    SEL, XV, WRV = R0 + 32, R0 + 36, R0 + 37
    e("s_lshl_b32 %s, %s, 5" % (s(S_A), s(S_SEG)))
    e("s_add_u32 %s, %s, %s" % (s(S_A), s(S_A), s(S_H)))
    e("s_lshl_b32 %s, %s, 10" % (s(S_A), s(S_A)))
    e("v_accvgpr_read_b32 %s, a72" % v(XV))
    e("v_accvgpr_read_b32 %s, a73" % v(WRV))
    e("v_and_b32 %s, 15, v0" % v(T1))
    for q in range(4):
        e("v_mov_b32 %s, 0" % v(SEL + q))
        e("v_mov_b32 %s, 0x3f80" % v(T0))
        e("v_cmp_eq_u32 vcc, %d, %s" % (4 * q, v(T1)))
        e("v_cndmask_b32 %s, %s, %s, vcc" % (v(SEL + q), v(SEL + q), v(T0)))
        e("v_mov_b32 %s, 0x3f800000" % v(T0))
        e("v_cmp_eq_u32 vcc, %d, %s" % (4 * q + 1, v(T1)))
        e("v_cndmask_b32 %s, %s, %s, vcc" % (v(SEL + q), v(SEL + q), v(T0)))
    e("s_lshl_b32 %s, %s, 15" % (s(S_B), s(S_H)))
    e("s_add_u32 %s, %s, %s" % (s(S_B), s(S_B), s(S_TPB)))
    PD = R0 + 64
    pst(e, 3)
    e.label("L_P3_poll")
    for u in range(8):
        e("s_add_u32 %s, %s, %d" % (s(S_T0), s(S_B), u * 4096))
        e("buffer_load_dwordx4 %s, %s, %s, %s offen sc1" % (v(PD + 4 * u, 4), v(W_TPR), ws, s(S_T0)))
    e("s_mov_b64 exec, -1")
    e("s_add_u32 %s, %s, 1" % (s(S_TMO), s(S_TMO)))
    e("s_cmp_gt_u32 %s, %d" % (s(S_TMO), TMO_LIMIT))
    RD = R0 + 40
    for u in range(8):
        e("s_waitcnt vmcnt(%d)" % (7 - u))
        e(mf32(RD, v(SEL, 4), v(PD + 4 * u, 4), u == 0))
        if u & 1:
            e("v_bitop3_b32 %s, %s, %s, %s bitop3:0x7e" % (v(R0 + 44 + (u >> 1)), v(PD + 4 * u - 4), v(PD + 4 * u), s(S_PAR)))
    e("v_or3_b32 %s, %s, %s, %s" % (v(T0), v(R0 + 44), v(R0 + 45), v(R0 + 46)))
    e("v_bitop3_b32 %s, %s, %s, 1 bitop3:0xa8" % (v(T0), v(T0), v(R0 + 47)))
    e("s_cbranch_scc1 L_P3_got")
    e("v_cmp_ne_u32 vcc, 0, %s" % v(T0))
    e("s_cbranch_vccz L_P3_got")
    e("s_mov_b64 exec, vcc")
    e("s_branch L_P3_poll")
    e.label("L_P3_got")
    pst(e, 4)
    e("s_nop 4")
    H0, H1, HP, SU, SQ, A_, B_, XP = range(R0 + 44, R0 + 52)
    lo = lambda d, x: e("v_lshlrev_b32 %s, 16, %s" % (v(d), v(x)))
    hi = lambda d, x: e("v_and_b32 %s, 0xffff0000, %s" % (v(d), v(x)))
    e(cvt(HP, RD, RD + 1))
    lo(A_, HP); hi(B_, HP)
    lo(H0, XV); hi(H1, XV)
    e("v_add_f32 %s, %s, %s" % (v(H0), v(H0), v(A_)))
    e("v_add_f32 %s, %s, %s" % (v(H1), v(H1), v(B_)))
    e(cvt(HP, H0, H1))
    lo(H0, HP); hi(H1, HP)
    e("v_add_f32 %s, %s, %s" % (v(SU), v(H0), v(H1)))
    e("v_mul_f32 %s, %s, %s" % (v(SQ), v(H0), v(H0)))
    e("v_fmac_f32 %s, %s, %s" % (v(SQ), v(H1), v(H1)))
    wave_sum(e, [SU, SQ], T0)
    e("v_mov_b32 %s, %s" % (v(T1), s(S_WAVE)))
    e("v_lshlrev_b32 %s, 3, %s" % (v(T1), v(T1)))
    e("v_add_u32 %s, %d, %s" % (v(T1), RED, v(T1)))
    e("ds_write2_b32 %s, %s, %s offset0:0 offset1:1" % (v(T1), v(SU), v(SQ)))
    e("s_add_u32 %s, %s, 0x%x" % (s(S_T0), s(S_A), HROW))
    e("buffer_store_dword %s, %s, %s, %s offen sc1" % (v(HP), v(W_ROW), ws, s(S_T0)))
    e("s_waitcnt lgkmcnt(0)")
    e("s_barrier")
    RR = R0 + 52
    e("v_mov_b32 %s, %d" % (v(T1), RED))
    e("ds_read_b128 %s, %s" % (v(RR, 4), v(T1)))
    e("ds_read_b128 %s, %s offset:16" % (v(RR + 4, 4), v(T1)))
    e("s_waitcnt lgkmcnt(0)")
    for k, d in ((0, SU), (1, SQ)):
        e("v_add_f32 %s, %s, %s" % (v(d), v(RR + k), v(RR + 2 + k)))
        e("v_add_f32 %s, %s, %s" % (v(d), v(d), v(RR + 4 + k)))
        e("v_add_f32 %s, %s, %s" % (v(d), v(d), v(RR + 6 + k)))
        e("v_mul_f32 %s, 0x%x, %s" % (v(d), f32bits(1 / 512), v(d)))
    e("v_fma_f32 %s, -%s, %s, %s" % (v(SQ), v(SU), v(SU), v(SQ)))
    e("v_max_f32 %s, 0, %s" % (v(SQ), v(SQ)))
    e(cvt(T0, SU, SQ))
    lo(SU, T0); hi(SQ, T0)
    e("v_add_f32 %s, 0x%x, %s" % (v(SQ), f32bits(1e-5), v(SQ)))
    e(cvt(T0, SQ, SQ)); lo(SQ, T0)
    e("v_sqrt_f32 %s, %s" % (v(SQ), v(SQ)))
    e(cvt(T0, SQ, SQ)); lo(SQ, T0)
    e("v_rcp_f32 %s, %s" % (v(SQ), v(SQ)))
    e("v_sub_f32 %s, %s, %s" % (v(A_), v(H0), v(SU)))
    e("v_sub_f32 %s, %s, %s" % (v(B_), v(H1), v(SU)))
    e(cvt(T0, A_, B_)); lo(A_, T0); hi(B_, T0)
    e("v_mul_f32 %s, %s, %s" % (v(A_), v(A_), v(SQ)))
    e("v_mul_f32 %s, %s, %s" % (v(B_), v(B_), v(SQ)))
    e(cvt(XP, A_, B_))
    lo(A_, XP); hi(B_, XP)
    W0, W1 = RR, RR + 1
    lo(W0, WRV); hi(W1, WRV)
    e("v_mul_f32 %s, %s, %s" % (v(SU), v(A_), v(W0)))
    e("v_fmac_f32 %s, %s, %s" % (v(SU), v(B_), v(W1)))
    wave_sum(e, [SU], T0)
    e("s_lshr_b32 %s, %s, 6" % (s(S_B), s(S_A)))
    e("s_lshl_b32 %s, %s, 2" % (s(S_T1), s(S_WAVE)))
    e("s_add_u32 %s, %s, %s" % (s(S_B), s(S_B), s(S_T1)))
    e("s_add_u32 %s, %s, 0x%x" % (s(S_T0), s(S_B), RVAL))
    e("v_cmp_ne_u32 vcc, 0, %s" % v(W_L16))
    e("v_mov_b32 %s, 0x%x" % (v(T1), OOB))
    e("v_cndmask_b32 %s, %s, %s, vcc" % (v(T1), v(W_L16), v(T1)))
    e("buffer_store_dword %s, %s, %s, %s offen sc1" % (v(SU), v(T1), ws, s(S_T0)))
    e("v_add_f32 %s, %s, %s" % (v(H0), v(H0), v(A_)))
    e("v_add_f32 %s, %s, %s" % (v(H1), v(H1), v(B_)))
    e(cvt(HP, H0, H1))
    e("buffer_store_dword %s, %s, %s, %s offen sc1" % (v(HP), v(W_ROW), s(S_OUT, 4), s(S_A)))
    e("s_add_u32 %s, %s, 0x%x" % (s(S_T0), s(S_A), XN2))
    e("buffer_store_dword %s, %s, %s, %s offen sc1" % (v(XP), v(W_ROW), ws, s(S_T0)))
    pst(e, 5)
    e("s_add_u32 %s, %s, 0x%x" % (s(S_RD), s(S_B), RDONE))
    e("s_add_u32 %s, %s, 1" % (s(S_J), s(S_J)))
    e("s_barrier")
    e("s_add_u32 %s, %s, %d" % (s(S_SEG), s(S_SEG), NREP))
    e("s_cmp_lt_u32 %s, 64" % s(S_SEG))
    e("s_cbranch_scc1 L_P2")
    e("s_waitcnt vmcnt(0)")
    rdone_store(e)
```

```python
import sys
from asmlib import Emitter, v, a, s
import chain as C
for a_ in sys.argv:
    if a_.startswith('opt:'):
        k_, v_ = a_[4:].split('=')
        C.OPT[k_] = int(v_, 0) if v_.lstrip('-')[:1].isdigit() else v_.replace('_', ' ')
import worker as W
import mlp as M

BASE = "sequential_preLN__memory_aug_recurrent_mem_tr__moe_arch_mod__prompt"
K1 = BASE + "_kernel"
K2 = "route_up_kernel"
K3 = "down_kernel"
hdr = open("/code/%s.s.ref" % BASE).read().split("\n")
hdr = [l for l in hdr[:hdr.index(next(l for l in hdr if "@launch" in l and l.startswith("; @launch")))] if "harness parses" not in l.lower() and "Override launch" not in l]
e = Emitter()
for l in hdr:
    e.raw(l)
if C.OPT.get("list"):
    e.raw("; @launch kernel=%s grid=(256,1,1) block=(256,1,1) lds=%d" % (K1, C.LDS_BYTES))
else:
    e.raw("; @launch grid=(256,1,1) block=(256,1,1) lds=%d" % C.LDS_BYTES)
e.raw('.amdgcn_target "amdgcn-amd-amdhsa--gfx950"')
e.raw(".text")


def start(name):
    e.raw(".globl %s\n.p2align 8\n.type %s,@function" % (name, name))
    e.label(name)
    e.hist = []


PROF = C.OPT.get("prof", 0)


def rt(i, dbg=None):
    if not PROF:
        return
    if PROF == 2:
        if dbg is None:
            return
        e("s_cmp_lg_u32 %s, 0" % s(C.S_WAVE))
        e("s_cbranch_scc1 L_rt%d" % dbg)
        if dbg in (0, 3, 4):
            e("s_cmp_ge_u32 s2, 16")
            e("s_cbranch_scc1 L_rt%d" % dbg)
        e("s_memrealtime s[100:101]")
        e("s_waitcnt lgkmcnt(0)")
        e("s_and_b32 s100, s100, 0xffffff")
        if dbg == 0:
            e("s_sub_u32 s100, 0x1000000, s100")
        e("v_mov_b32 v14, s100")
        e("v_mov_b32 v15, 0")
        e("s_mov_b64 exec, 1")
        e("buffer_atomic_umax v14, v15, %s, 0 offen offset:%d" % (s(C.S_DBG, 4), 4 * dbg))
        e("s_mov_b64 exec, -1")
        e.label("L_rt%d" % dbg)
        return
    e("s_memrealtime s[100:101]")
    e("s_lshl_b32 s3, s2, 6")
    e("s_add_u32 s3, s3, 0x%x" % C.STAMP_OFF)
    e("s_waitcnt lgkmcnt(0)")
    e("v_mov_b32 v14, s100")
    e("v_mov_b32 v15, 0")
    e("buffer_store_dword v14, v15, %s, s3 offen offset:%d" % (s(C.S_WS, 4), 4 * i))
    e("s_waitcnt vmcnt(0)")


start(K1)
P = C.S_PTR
e("s_cmp_ge_u32 s2, 256")
e("s_cbranch_scc1 L_end")
e("s_load_dwordx8 %s, s[0:1], 0" % s(P, 8))
e("s_load_dwordx4 %s, s[0:1], 32" % s(P + 8, 4))
e("s_load_dwordx4 %s, s[0:1], 104" % s(P + 12, 4))
e("s_load_dwordx2 s[80:81], s[0:1], 64")
e("s_load_dwordx2 s[82:83], s[0:1], 96")
e("s_load_dwordx4 s[84:87], s[0:1], 72")
e("s_load_dwordx2 s[88:89], s[0:1], 88")
e("v_lshrrev_b32 v1, 6, v0")
e("v_readfirstlane_b32 %s, v1" % s(C.S_WAVE))
e("s_waitcnt lgkmcnt(0)")
C.srd(e, C.S_WS, P + 14, C.WS_BYTES)
C.srd(e, C.S_DBG, P + 12, 256)
rt(0, 0)
e("s_and_b32 s3, s2, 7")
e("s_cmp_lg_u32 s3, 0")
e("s_cbranch_scc1 L_worker")
e("s_lshr_b32 %s, s2, 3" % s(C.S_H))
C.setup_consts(e)
C.load_weights(e, P + 4, P + 6, P + 8, P + 10, pre=lambda q: C.init_issue(e, P + 2, q))
C.setup_pf(e)
rt(1, 1)
C.handshake_wait(e, "L_fast_start", "L_slow_start")
C.main_loop(e, "fast", "", 63)
rt(2, 2)
e("s_branch L_end")
C.main_loop(e, "slow", " sc1", 63)
e("s_branch L_end")
e.label("L_worker")
C.srd(e, W.S_X, P, 2048 * 512 * 2)
C.srd(e, W.S_OUT, 82, 2048 * 512 * 2)
C.srd(e, W.S_WR, 80, 1024)
W.setup(e, P)
e("s_and_b32 s3, s2, 7")
e("s_cmp_eq_u32 s3, 7")
e("s_cbranch_scc1 L_mlp")
if C.OPT.get("touch", 1):
    e.comment("pull this head's Wo slice towards the last-level cache early (the chain CU streams it first)")
    C.srd(e, 96, P + 10, 4096 * 512 * 2)
    e("s_lshl_b32 s3, %s, 17" % s(C.S_H))
    e("s_and_b32 s28, %s, 3" % s(W.S_R))
    e("s_lshl_b32 s28, s28, 15")
    e("s_add_u32 s3, s3, s28")
    e("v_lshlrev_b32 v30, 7, v0")
    e("buffer_load_dword v31, v30, s[96:99], s3 offen")
W.load_w(e, P, C.OPT.get("word", "VKQ"))
rt(1, 3)
W.wait_handshake(e)
W.wait_xn(e)
W.phase1(e)
rt(2, 4)
W.load_wo(e, P)
W.wait_tpinit(e)
rt(3)
W.phase2(e)
rt(4, 5)
if PROF == 1:
    for i in range(6):
        e("v_mov_b32 v14, %s" % s(44 + 2 * i))
        e("buffer_store_dword v14, v15, %s, s3 offen offset:%d" % (s(C.S_WS, 4), 32 + 4 * i))
    e("v_mov_b32 v14, %s" % s(C.S_TMO))
    e("buffer_store_dword v14, v15, %s, s3 offen offset:56" % s(C.S_WS, 4))
    e("v_mov_b32 v14, %s" % s(W.S_R))
    e("buffer_store_dword v14, v15, %s, s3 offen offset:60" % s(C.S_WS, 4))
e("s_branch L_end")
e.label("L_mlp")
W.xn_produce(e)
M.body(e, 84, 86, 88)
e.label("L_end")
if PROF:
    e("s_cmp_ge_u32 s2, 256")
    e("s_cbranch_scc1 L_end2")
    rt(5, 6)
    e.label("L_end2")
e("s_endpgm")
e.raw('.section .rodata,"a"')
for name, nv, acc in ((K1, 512, 256),):
    e.raw(""".p2align 6
.amdhsa_kernel %s
  .amdhsa_next_free_vgpr %d
  .amdhsa_next_free_sgpr 102
  .amdhsa_accum_offset %d
  .amdhsa_group_segment_fixed_size 0
  .amdhsa_kernarg_size 120
  .amdhsa_user_sgpr_count 2
  .amdhsa_user_sgpr_kernarg_segment_ptr 1
  .amdhsa_system_sgpr_workgroup_id_x 1
.end_amdhsa_kernel""" % (name, nv, acc))
out = sys.argv[1] if len(sys.argv) > 1 and not sys.argv[1].startswith("opt:") else "/code/%s.s" % BASE
open(out, "w").write(e.text())
print("nops inserted:", e.nops_inserted, "lines:", len(e.lines), "->", out)
```

```python
from asmlib import Emitter, v, a, s
import struct

WS_BYTES = 0x10000000
PB_OFF = 0x0000000
SYNC_OFF = 0x0080000
HIST_OFF = 0x0100000
FLAG_OFF = 0x0190000
STAMP_OFF = 0x01A0000
SLAB_OFF = 0x1000000
SLAB_ST = 0x82000
MB_IN = 0x80000
OOB = 0x40000000

L_MEMI = 0
L_PX = 8192
RS = 72
L_QX = 16384
L_KMX = L_QX + 2304
L_OX = L_KMX + 2304
L_SEL = L_OX + 2048
L_WL = 32768
LDS_BYTES = 163840

S_WS = 8
S_W = 12
S_DBG = 16
S_H = 20
S_WAVE = 21
S_STEP = 22
S_SLAB = 23
S_SLABN = 24
S_KXO = 25
S_KX = 29
S_VX = 30
S_HIST = 31
S_TMO = 32
S_SCALE = 33
S_PLO = 34
S_PHI = 35
S_T0 = 36
S_T1 = 37
S_T2 = 38
S_VXO = 39
S_BIG = 40
S_PR = 6
S_MB = 7
S_4K = 26
S_PAR = 27
S_RDY = 62
S_NPAR = 28
S_TAG = 60
S_OOB = 61
S_FW = 88
S_FR = 89
S_NEXT = 90
S_SPIN = 91
S_LIM = 94
S_W3 = 95
S_ONES = 4
S_PTR = 44
S_ST = 64

C_PF = 0
C_IDX, C_MW, C_L16, C_WL, C_QW, C_QR, C_KW, C_X2, C_PW, C_MP, FREE1, HPEND, C_FL, T0, JUNK = range(1, 16)
AM = 16
ACCQ = 48
ACCK = 56
ACCV = 64
QB = 72
XA = 88
XB = 104
VX = 120
VW = 128

TMO_LIMIT = 200000
OPT = {}


def f32bits(x):
    return struct.unpack("<I", struct.pack("<f", x))[0]


def lin(e, dst, coefs, const=0, tmp=T0, src=0):
    e("v_mov_b32 %s, 0x%x" % (v(dst), const))
    for k, c in sorted(coefs.items()):
        if c == 0:
            continue
        assert c < (1 << 24)
        e("v_bfe_u32 %s, %s, %d, 1" % (v(tmp), v(src), k))
        e("s_mov_b32 %s, 0x%x" % (s(S_T2), c))
        e("v_mad_u32_u24 %s, %s, %s, %s" % (v(dst), v(tmp), s(S_T2), v(dst)))


def srd(e, d, ptr, nbytes):
    e("s_mov_b32 %s, %s" % (s(d), s(ptr)))
    e("s_and_b32 %s, %s, 0xffff" % (s(d + 1), s(ptr + 1)))
    e("s_mov_b32 %s, 0x%x" % (s(d + 2), nbytes))
    e("s_mov_b32 %s, 0x20000" % s(d + 3))


LDS_OPS = {
    ("Q", 0, 0): XB + 0, ("Q", 1, 0): XB + 8, ("Q", 0, 1): XA + 0, ("Q", 1, 1): XA + 8,
    ("K", 0, 0): QB + 0, ("K", 1, 0): QB + 8,
    ("Q", 0, 7): XA + 0, ("Q", 1, 7): XA + 8,
    ("K", 0, 2): QB + 0, ("K", 1, 2): QB + 8,
    ("K", 0, 7): XA + 0, ("K", 1, 7): XA + 8,
    ("O", 2, 3): XA + 0, ("O", 3, 1): XA + 8, ("O", 3, 2): QB + 0, ("O", 3, 3): QB + 8,
}
OLDS = [("O", 2, 3), ("O", 3, 1), ("O", 3, 2), ("O", 3, 3)]
LDS_SLOT = {k: i for i, k in enumerate(LDS_OPS)}
ALL_OPS = [(m, T, u) for m in "QKV" for u in range(8) for T in range(2)] + [("O", q, u) for u in range(4) for q in range(4)]
RES = {}
_n = 0
for op in ALL_OPS:
    if op in LDS_OPS:
        continue
    RES[op] = ("a", _n * 8) if _n < 32 else ("v", VW + (_n - 32) * 8)
    _n += 1
assert _n == 48


def opreg(op):
    if op in LDS_OPS:
        return v(LDS_OPS[op], 8)
    k, r = RES[op]
    return (a if k == "a" else v)(r, 8)


def lds_fetch_ins(op):
    r = LDS_OPS[op]
    off = LDS_SLOT[op] * 2048
    return ["ds_read_b128 %s, %s offset:%d" % (v(r, 4), v(C_WL), off),
            "ds_read_b128 %s, %s offset:%d" % (v(r + 4, 4), v(C_WL), off + 1024)]


def lds_fetch(e, op):
    for t in lds_fetch_ins(op):
        e(t)


def rowpart(rho, b, hi=32):
    return hi * (rho >> 2) + 8 * (rho & 1) + 2 * ((rho >> 1) & 1) + b


class VmQ:
    def __init__(self, e):
        self.e, self.q = e, []

    def add(self, tag):
        self.q.append(tag)
        assert len(self.q) <= 63

    def wait(self, tag):
        if tag not in self.q:
            return
        last = len(self.q) - 1 - self.q[::-1].index(tag)
        self.e("s_waitcnt vmcnt(%d)" % (len(self.q) - 1 - last))
        self.q = self.q[last + 1:]


def staged_load(e, chunks, ptrs, srds, swz_bits, dma_k, lane_f, row_lane, blk_xor_wave, reads, side=None, pre=None, nslot=3):
    AD, AR = 16, 20
    TT = 28
    e("v_lshrrev_b32 %s, 6, v0" % v(TT))
    e("v_bfe_u32 %s, v0, 4, 2" % v(TT + 1))
    e("v_lshl_add_u32 %s, %s, 5, %s" % (v(TT), v(TT), v(TT + 1)))
    e("v_and_b32 %s, 15, v0" % v(AD))
    e("v_lshlrev_b32 %s, 4, %s" % (v(AD), v(AD)))
    e("v_lshl_add_u32 %s, %s, 13, %s" % (v(AD), v(TT), v(AD)))
    e("v_bfe_u32 %s, v0, 4, %d" % (v(TT + 1), swz_bits))
    e("v_lshlrev_b32 %s, 5, %s" % (v(TT + 1), v(TT + 1)))
    e("v_xor_b32 %s, %s, %s" % (v(AD), v(AD), v(TT + 1)))
    for k in range(1, 4):
        e("v_xor_b32 %s, %d, %s" % (v(AD + k), dma_k(k), v(AD)))
    S_LB, S_GB = 28, 3
    e("s_add_u32 %s, %s, 1" % (s(S_LB), s(S_WAVE)))
    e("s_lshl_b32 %s, %s, 15" % (s(S_LB), s(S_LB)))
    e("s_lshl_b32 %s, %s, 8" % (s(S_GB), s(S_H)))
    q = VmQ(e)
    built = set()

    def dma(c):
        m, ci = chunks[c]
        if m not in built:
            srd(e, srds[m], ptrs[m], 512 * 4096 * 2)
            built.add(m)
        for i in range(8):
            e("s_add_u32 m0, %s, %d" % (s(S_LB), (c % nslot) * 8192 + i * 1024))
            e("s_add_u32 %s, %s, 0x%x" % (s(S_T1), s(S_GB), (128 * ci + 4 * i) * 8192))
            e("buffer_load_dwordx4 %s, %s, %s offen%s lds" % (v(AD + (i & 3)), s(srds[m], 4), s(S_T1), OPT.get("cnt", " nt") if blk_xor_wave else OPT.get("wnt", "")))
            q.add(("c", c))
    for c in range(nslot):
        dma(c)
    lin(e, AR, {0: 8, 1: 16, **{k: c * 256 for k, c in row_lane.items()}})
    lin(e, TT, lane_f)
    lin(e, TT + 1, {6: 64, 7: 128})
    e("v_xor_b32 %s, %s, %s" % (v(TT), v(TT), v(TT + 1)))
    e("v_add_u32 %s, %s, %s" % (v(TT), v(TT), v(AR)))
    for k in range(4):
        if blk_xor_wave:
            e("s_xor_b32 %s, %s, %d" % (s(S_T0), s(S_WAVE), k))
            e("s_add_u32 %s, %s, 1" % (s(S_T0), s(S_T0)))
            e("s_lshl_b32 %s, %s, 15" % (s(S_T0), s(S_T0)))
            e("v_add_u32 %s, %s, %s" % (v(AR + 2 * k), s(S_T0), v(TT)))
        else:
            e("v_add_u32 %s, 0x%x, %s" % (v(AR + 2 * k), (k + 1) << 15, v(TT)))
        e("v_xor_b32 %s, 32, %s" % (v(AR + 2 * k + 1), v(AR + 2 * k)))
    if pre:
        pre(q)
    for c, (m, ci) in enumerate(chunks):
        if side:
            side(c, q)
        q.wait(("c", c))
        e("s_barrier")
        for n_, (dst, k, T, ro) in enumerate(reads(m, ci)):
            if n_ == 12:
                e("s_waitcnt lgkmcnt(4)")
            e("ds_read_b64_tr_b16 %s, %s offset:%d" % (dst, v(AR + 2 * k + T), (c % nslot) * 8192 + ro * 256))
        e("s_waitcnt lgkmcnt(0)")
        e("s_barrier")
        if c + nslot < len(chunks):
            dma(c + nslot)
    return q


HOLD = {op: 32 + 8 * i for i, op in enumerate(o for o in LDS_OPS if o[0] != "O")}


def load_weights(e, P_WQ, P_WK, P_WV, P_WO, pre=None, mid=None):
    e.comment("---- load weight operands: Wq/Wk/Wv by LDS-DMA + transposing reads, Wo by dword loads + v_perm")
    VOFO = FREE1
    RING, TMP8 = 32, 120
    ptr = {"Q": P_WQ, "K": P_WK, "V": P_WV, "O": P_WO}
    SRDS = {"Q": 96, "K": 88, "V": 60, "O": 92}
    S_OB = 29

    def pre2(q):
        lin(e, VOFO, {0: 4, 1: 8, 2: 16, 3: 32, 4: 2 * 1024, 5: 4 * 1024, 6: 256, 7: 512})
        srd(e, SRDS["O"], ptr["O"], 512 * 4096 * 2)
        e("s_lshl_b32 %s, %s, 17" % (s(S_OB), s(S_H)))
        o_issue(0, q)
        pre(q)

    def reads(m, ci):
        tau, hi = ci >> 1, ci & 1
        out = []
        for k in range(4):
            u = 2 * k + tau
            for T in range(2):
                op = (m, T, u)
                for pr in range(2):
                    if op in HOLD:
                        dst = v(HOLD[op] + 4 * hi + 2 * pr, 2)
                    else:
                        kind, r = RES[op]
                        dst = (a if kind == "a" else v)(r + 4 * hi + 2 * pr, 2)
                    out.append((dst, k, T, 2 * pr))
        return out

    GORD = [7, 5, 3, 6, 4, 2, 1, 0]

    def o_issue(gi, q):
        g = GORD[gi]
        u = g >> 1
        base = (32, 48, 80)[gi % 3]
        e("s_xor_b32 %s, %s, %d" % (s(S_T0), s(S_WAVE), u))
        e("s_lshl_b32 %s, %s, 15" % (s(S_T0), s(S_T0)))
        e("s_add_u32 %s, %s, %s" % (s(S_T0), s(S_T0), s(S_OB)))
        for k in range(2):
            qq = 2 * (g & 1) + k
            for pr in range(4):
                for b in range(2):
                    row = 16 * b + 8 * (pr >> 1) + (pr & 1)
                    e("s_add_u32 %s, %s, 0x%x" % (s(S_T1), s(S_T0), row * 1024 + qq * 64))
                    e("buffer_load_dword %s, %s, %s, %s offen%s" % (v(base + k * 8 + pr * 2 + b), v(VOFO), s(SRDS["O"], 4), s(S_T1), OPT.get("ont", "")))
                    q.add(("o", g))

    def o_consume(gi, q):
        g = GORD[gi]
        q.wait(("o", g))
        base = (32, 48, 80)[gi % 3]
        for k in range(2):
            op = ("O", 2 * (g & 1) + k, g >> 1)
            dst = TMP8 if op in LDS_OPS else RES[op][1]
            assert op in LDS_OPS or RES[op][0] == "v"
            for pr in range(4):
                for hf in range(2):
                    e("v_perm_b32 %s, %s, %s, %s" % (v(dst + 2 * pr + hf), v(base + k * 8 + 2 * pr + 1), v(base + k * 8 + 2 * pr), s(S_PHI if hf else S_PLO)))
            if op in LDS_OPS:
                off = LDS_SLOT[op] * 2048
                assert off >= 24576
                e("ds_write_b128 %s, %s offset:%d" % (v(C_WL), v(TMP8, 4), off))
                e("ds_write_b128 %s, %s offset:%d" % (v(C_WL), v(TMP8 + 4, 4), off + 1024))
                e("s_waitcnt lgkmcnt(0)")

    def side(c, q):
        if 2 <= c < 10:
            o_consume(c - 2, q)
        if 1 <= c < 8:
            o_issue(c, q)

    chunks = [(m, ci) for m in "VKQ" for ci in range(4)]
    staged_load(e, chunks, ptr, SRDS, 1, lambda k: k << 6, {2: 32, 4: 64, 3: 128}, {5: 16, 3: 8, 4: 4, 2: 1}, True, reads, side, pre2)
    for op, r in HOLD.items():
        off = LDS_SLOT[op] * 2048
        e("ds_write_b128 %s, %s offset:%d" % (v(C_WL), v(r, 4), off))
        e("ds_write_b128 %s, %s offset:%d" % (v(C_WL), v(r + 4, 4), off + 1024))
        if LDS_SLOT[op] % 4 == 3:
            e("s_waitcnt lgkmcnt(0)")
    e("s_waitcnt lgkmcnt(0)")


def setup_consts(e):
    T1, T2 = 104, 105
    AM = 100
    lin(e, C_IDX, {1: 0xEEEE - 0x4444}, 0x4444)
    lin(e, C_L16, {k: 16 << k for k in range(6)})
    lin(e, C_MW, {**{k: 16 << k for k in range(6)}, 6: 2048, 7: 4096})
    lin(e, C_WL, {**{k: 16 << k for k in range(6)}, 6: 32768, 7: 65536}, L_WL)
    lin(e, C_QW, {0: 4, 1: 8, 2: 16, 3: 32, 4: 2 * RS * 4, 5: 4 * RS * 4, 6: 64, 7: 128}, L_QX)
    lin(e, C_QR, {0: RS * 4, 2: 2 * RS * 4, 3: 4 * RS * 4, 4: 16, 5: 32}, L_QX)
    e("v_add_u32 %s, %d, %s" % (v(C_KW), L_KMX - L_QX, v(C_QW)))
    e("v_xor_b32 %s, 0x1000, %s" % (v(C_X2), v(C_MW)))
    lin(e, T1, {3: 1, 4: 2, 5: 4, 6: 8, 7: 16})
    e("v_add_u32 %s, %s, %s" % (v(T1), s(S_H), v(T1)))
    e("v_and_b32 %s, 31, %s" % (v(T1), v(T1)))
    e("v_lshlrev_b32 %s, 6, %s" % (v(T1), v(T1)))
    lin(e, C_PW, {0: 8, 1: 16, 2: 32, 3: 8192, 4: 2 * 8192, 5: 4 * 8192, 6: 8 * 8192, 7: 16 * 8192}, PB_OFF)
    e("v_add_u32 %s, %s, %s" % (v(C_PW), v(C_PW), v(T1)))
    mp_addr(e, C_MP, T1, T2)
    e("s_lshl_b32 %s, %s, 13" % (s(S_PR), s(S_H)))
    e("s_add_u32 %s, %s, 0x%x" % (s(S_PR), s(S_PR), PB_OFF))
    e("s_mov_b32 %s, 4096" % s(S_4K))
    e("v_and_b32 %s, 15, v0" % v(T1))
    for q in range(4):
        e("v_mov_b32 %s, 0" % v(AM + q))
        e("v_mov_b32 %s, 0x3f80" % v(T2))
        e("v_cmp_eq_u32 vcc, %d, %s" % (4 * q, v(T1)))
        e("v_cndmask_b32 %s, %s, %s, vcc" % (v(AM + q), v(AM + q), v(T2)))
        e("v_mov_b32 %s, 0x3f800000" % v(T2))
        e("v_cmp_eq_u32 vcc, %d, %s" % (4 * q + 1, v(T1)))
        e("v_cndmask_b32 %s, %s, %s, vcc" % (v(AM + q), v(AM + q), v(T2)))
    e("ds_write_b128 %s, %s offset:%d" % (v(C_L16), v(AM, 4), L_SEL))
    e("s_mov_b32 %s, 0x05040100" % s(S_PLO))
    e("s_mov_b32 %s, 0x07060302" % s(S_PHI))
    e("s_mov_b32 %s, 0x%x" % (s(S_SCALE), f32bits(128 ** -0.5 * 1.4426950408889634)))
    e("s_mov_b32 %s, 0x%x" % (s(S_BIG), f32bits(OPT.get('big', 2.0 ** 30))))
    e("s_mov_b32 %s, 0" % s(S_TMO))
    e("s_mov_b32 %s, 0x3f803f80" % s(S_ONES))
    e("s_mov_b32 %s, 0x3f803f80" % s(S_ONES + 1))
    e("s_lshl_b32 %s, %s, 14" % (s(S_T0), s(S_H)))
    e("s_lshr_b32 %s, %s, 1" % (s(S_T1), s(S_WAVE)))
    e("s_lshl_b32 %s, %s, 12" % (s(S_T1), s(S_T1)))
    e("s_add_u32 %s, %s, %s" % (s(S_KXO), s(S_T0), s(S_T1)))
    e("s_lshl_b32 %s, %s, 11" % (s(S_T1), s(S_WAVE)))
    e("s_add_u32 %s, %s, %s" % (s(S_VXO), s(S_T0), s(S_T1)))
    e("s_add_u32 %s, %s, 8192" % (s(S_VXO), s(S_VXO)))


def setup_pf(e):
    T1, T2 = AM + 8, AM + 9
    lin(e, T1, {0: 128, 1: 256, 2: 512, 3: 1024, 4: 2048, 6: 4096, 7: 8192})
    e("s_lshl_b32 %s, %s, 14" % (s(S_T0), s(S_H)))
    e("v_add_u32 %s, %s, %s" % (v(T1), s(S_T0), v(T1)))
    e("s_lshl_b32 %s, %s, 8" % (s(S_T0), s(S_H)))
    e("s_lshr_b32 %s, %s, 1" % (s(S_T1), s(S_WAVE)))
    e("s_lshl_b32 %s, %s, 7" % (s(S_T1), s(S_T1)))
    e("s_add_u32 %s, %s, %s" % (s(S_T0), s(S_T0), s(S_T1)))
    e("s_add_u32 %s, %s, 0x%x" % (s(S_T0), s(S_T0), SLAB_ST + MB_IN))
    e("v_and_b32 %s, 63, v0" % v(T0))
    e("v_mov_b32 %s, 0x%x" % (v(T2), OOB))
    e("v_cmp_lt_u32 vcc, 32, %s" % v(T0))
    e("v_cndmask_b32 %s, %s, %s, vcc" % (v(T1), v(T1), v(T2)))
    e("v_mov_b32 %s, %s" % (v(T2), s(S_T0)))
    e("v_cmp_eq_u32 vcc, 32, %s" % v(T0))
    e("v_cndmask_b32 %s, %s, %s, vcc" % (v(C_PF), v(T1), v(T2)))


def mp_addr(e, dst, T1, T2):
    lin(e, dst, {0: 8, 1: 32, 4: 16, 5: 4, 6: 2048, 7: 4096}, MB_IN)
    e("v_mov_b32 %s, %s" % (v(T2), s(S_H)))
    lin(e, T1, {0: 256, 1: 64, 2: 128, 3: 512, 4: 1024}, src=T2)
    e("v_add_u32 %s, %s, %s" % (v(dst), v(T1), v(dst)))
    e("v_and_b32 %s, 12, v0" % v(T1))
    e("v_cmp_ne_u32 vcc, 0, %s" % v(T1))
    e("v_mov_b32 %s, 0x%x" % (v(T1), OOB))
    e("v_cndmask_b32 %s, %s, %s, vcc" % (v(dst), v(dst), v(T1)))


def mem0_load(e, P_MEM0, dst, T1, T2, TH, SR):
    srd(e, SR, P_MEM0, 8192)
    lin(e, T1, {0: 8, 1: 16, 2: 0x10000, 3: 0x10000, 4: 1024, 5: 4, 6: 64, 7: 128})
    e("v_mov_b32 %s, %s" % (v(TH), s(S_H)))
    lin(e, T2, {0: 32, 1: 2048, 2: 4096, 3: 256, 4: 512}, src=TH)
    e("v_add_u32 %s, %s, %s" % (v(T1), v(T1), v(T2)))
    e("buffer_load_dword %s, %s, %s, 0 offen" % (v(dst), v(T1), s(SR, 4)))


def init_fill(e, P_MEM0, MW, B, SR):
    M1, T1, T2, TH, MP, HP = B, B + 4, B + 5, B + 6, B + 7, B + 8
    ws = s(S_WS, 4)
    mem0_load(e, P_MEM0, HP, T1, T2, TH, SR)
    for k in range(4):
        e("v_mov_b32 %s, -1" % v(M1 + k))

    def fill8k(so):
        e("buffer_store_dwordx4 %s, %s, %s, %s offen sc1" % (v(M1, 4), v(MW), ws, s(so)))
        e("buffer_store_dwordx4 %s, %s, %s, %s offen offset:1024 sc1" % (v(M1, 4), v(MW), ws, s(so)))
    e("s_lshl_b32 %s, %s, 13" % (s(S_T0), s(S_H)))
    e("s_add_u32 %s, %s, 0x%x" % (s(S_T0), s(S_T0), PB_OFF))
    fill8k(S_T0)
    e("s_lshl_b32 %s, %s, 14" % (s(S_T0), s(S_H)))
    e("s_add_u32 %s, %s, 0x%x" % (s(S_T0), s(S_T0), HIST_OFF))
    e("s_add_u32 %s, %s, 0x2000" % (s(S_T1), s(S_T0)))
    fill8k(S_T0); fill8k(S_T1)
    e("s_mul_i32 %s, %s, 0x%x" % (s(S_T0), s(S_H), 2 * SLAB_ST))
    e("s_add_u32 %s, %s, 0x%x" % (s(S_T0), s(S_T0), SLAB_OFF + SLAB_ST + MB_IN + (0x4000000 if OPT.get("solo") else 0)))
    e("s_add_u32 %s, %s, 0x%x" % (s(S_T1), s(S_T0), SLAB_ST))
    fill8k(S_T0); fill8k(S_T1)
    e("v_lshlrev_b32 %s, 2, v0" % v(T1))
    e("s_lshl_b32 %s, %s, 10" % (s(S_T0), s(S_H)))
    for base in (FLAG_OFF + 0x4000, 0x1B0000, 0x1B8000):
        e("s_add_u32 %s, %s, 0x%x" % (s(S_T1), s(S_T0), base))
        e("buffer_store_dword %s, %s, %s, %s offen sc1" % (v(M1), v(T1), ws, s(S_T1)))
    e("v_mov_b32 %s, 0x%x" % (v(T2), OOB))
    e("v_cmp_lt_u32 vcc, 63, v0")
    e("v_cndmask_b32 %s, %s, %s, vcc" % (v(T1), v(T1), v(T2)))
    e("v_mov_b32 %s, 0" % v(M1 + 9))
    e("s_lshl_b32 %s, %s, 8" % (s(S_T0), s(S_H)))
    e("s_add_u32 %s, %s, 0x%x" % (s(S_T0), s(S_T0), FLAG_OFF))
    e("s_add_u32 %s, %s, 0x2000" % (s(S_T1), s(S_T0)))
    e("buffer_store_dword %s, %s, %s, %s offen sc1" % (v(M1 + 9), v(T1), ws, s(S_T0)))
    e("buffer_store_dword %s, %s, %s, %s offen sc1" % (v(M1 + 9), v(T1), ws, s(S_T1)))
    mp_addr(e, MP, T1, T2)
    e("s_waitcnt vmcnt(15)")
    e("s_mov_b32 %s, 0x%x" % (s(S_T0), SLAB_OFF))
    e("buffer_store_dword %s, %s, %s, %s offen sc1" % (v(HP), v(MP), ws, s(S_T0)))


def ready_publish(e, T1, T2):
    e("s_waitcnt vmcnt(0)")
    e("s_barrier")
    e("v_mov_b32 %s, 1" % v(T1))
    e("s_lshl_b32 %s, %s, 2" % (s(S_T1), s(S_H)))
    e("v_lshlrev_b32 %s, 20, v0" % v(T2))
    e("buffer_store_dword %s, %s, %s, %s offen sc1" % (v(T1), v(T2), s(S_DBG, 4), s(S_T1)))


def xcc_publish(e, q):
    T1, T2 = 30, 31
    e("s_getreg_b32 %s, hwreg(HW_REG_XCC_ID)" % s(S_T0))
    e("s_and_b32 %s, %s, 15" % (s(S_T0), s(S_T0)))
    e("s_or_b32 %s, %s, 0x100" % (s(S_T0), s(S_T0)))
    e("v_mov_b32 %s, %s" % (v(T1), s(S_T0)))
    e("s_lshl_b32 %s, %s, 2" % (s(S_T1), s(S_H)))
    e("v_lshlrev_b32 %s, 20, v0" % v(T2))
    e("buffer_store_dword %s, %s, %s, %s offen offset:128 sc1" % (v(T1), v(T2), s(S_DBG, 4), s(S_T1)))
    q.add("hs")


def handshake_wait(e, fast_label, slow_label):
    T1, T2 = AM + 8, AM + 9
    e("v_lshrrev_b32 %s, 2, %s" % (v(T2), v(C_L16)))
    e.label("L_HS")
    e("buffer_load_dword %s, %s, %s, 0 offen sc1" % (v(T1), v(T2), s(S_DBG, 4)))
    e("s_add_u32 %s, %s, 1" % (s(S_TMO), s(S_TMO)))
    e("s_cmp_gt_u32 %s, %d" % (s(S_TMO), TMO_LIMIT))
    e("s_cbranch_scc1 %s" % slow_label)
    e("s_waitcnt vmcnt(0)")
    e("v_cmp_eq_u32 vcc, 0, %s" % v(T1))
    e("s_cbranch_vccnz L_HS")
    e("v_readlane_b32 %s, %s, 63" % (s(S_T0), v(T1)))
    e("v_cmp_ne_u32 vcc, %s, %s" % (s(S_T0), v(T1)))
    e("s_nop 1")
    e("s_cmp_lg_u32 vcc_hi, 0")
    e("s_cbranch_scc1 %s" % slow_label)
    e("s_branch %s" % fast_label)


def smf_ins(acc, aop, op):
    return "v_smfmac_f32_16x16x64_bf16 %s, %s, %s, %s" % (v(acc, 4), v(aop, 4), opreg(op), v(C_IDX))


def stamp(e, i, on):
    if on:
        e("s_memtime %s" % s(S_ST + 2 * i, 2))


am = lambda u: AM + 4 * u


def idle_prep_ins():
    out = []
    for op in (("Q", 0, 0), ("Q", 1, 0), ("Q", 0, 1), ("Q", 1, 1), ("K", 0, 0), ("K", 1, 0)):
        out += lds_fetch_ins(op)
    z = ["v_mov_b64 %s, 0" % v(r, 2) for r in range(ACCQ, ACCQ + 24, 2)]
    return out, z


def delay(e, cyc):
    n = cyc // 4
    while n > 0:
        k = min(n, 16)
        e("s_nop %d" % (k - 1))
        n -= k


def main_loop(e, tag, sc, nsteps, stamps=False):
    L = lambda n: "L_%s_%s" % (tag, n)
    ws = s(S_WS, 4)
    solo = OPT.get("solo")
    trace = OPT.get("trace")
    acc = {"Q": ACCQ, "K": ACCK, "V": ACCV}
    S = lambda m, T, u: smf_ins(acc[m] + 4 * T, am(u), (m, T, u))
    Q = lambda T, u: S("Q", T, u)
    K = lambda T, u: S("K", T, u)
    V = lambda T, u: S("V", T, u)
    lg = lambda n: "s_waitcnt lgkmcnt(%d)" % n
    BAR = "s_barrier"
    add = lambda b, r: "v_add_f32 %s, %s, %s" % (v(b + r), v(b + r), v(b + r + 2))
    cvt = lambda d, x, y: "v_cvt_pk_bf16_f32 %s, %s, %s" % (v(d), v(x), v(y))
    ex = lambda r: "v_exp_f32 %s, %s" % (v(r), v(r))
    mf32 = lambda d, A, B, first: "v_mfma_f32_16x16x32_bf16 %s, %s, %s, %s" % (v(d, 4), v(A, 4), v(B, 4), "0" if first else v(d, 4))
    mf16 = lambda d, A, B: "v_mfma_f32_16x16x16_bf16 %s, %s, %s, %s" % (v(d, 4), v(A, 2), v(B, 2), v(d, 4))

    def run(sched, extra=None):
        for i_, (m_, rest) in enumerate(sched):
            e(m_)
            for x in (extra or {}).get(i_, []) + rest:
                if x.endswith(":"):
                    e.label(x[:-1])
                else:
                    e(x)
    e.label(L("start"))
    e("s_mov_b32 %s, 0" % s(S_STEP))
    e("s_mov_b32 %s, 0x%x" % (s(S_SLAB), SLAB_OFF))
    e("s_mov_b32 %s, 0" % s(S_PAR))
    e("s_mov_b32 %s, 0x%x" % (s(S_HIST), HIST_OFF - MB_IN))
    e("s_mov_b32 %s, 0x%x" % (s(S_OOB), OOB))
    e("s_mov_b32 %s, 0" % s(S_SPIN))
    f, z = idle_prep_ins()
    for t in f + z:
        e(t)
    e("s_mov_b64 %s, %s" % (s(S_RDY, 2), "0" if OPT.get("kvflags", 1) else "-1"))
    mldp = lambda P: ["buffer_load_dwordx4 %s, %s, %s, %s offen sc1" % (v(P, 4), v(C_MW), ws, s(S_MB)),
                      "buffer_load_dwordx4 %s, %s, %s, %s offen offset:1024 sc1" % (v(P + 4, 4), v(C_MW), ws, s(S_MB))]
    mld = mldp(AM)
    e("s_add_u32 %s, %s, 0x%x" % (s(S_MB), s(S_SLAB), MB_IN))
    for t in mld:
        e(t)
    e.label(L("step"))
    e("s_lshr_b64 %s, %s, %s" % (s(S_T0, 2), s(S_RDY, 2), s(S_STEP)))
    e("s_andn2_b32 %s, 3, %s" % (s(S_T0), s(S_T0)))
    e("s_cbranch_scc1 %s" % L("refresh"))
    e("s_add_u32 %s, %s, 0x%x" % (s(S_SLABN), s(S_SLAB), SLAB_ST))
    e("s_add_u32 %s, %s, %s" % (s(S_KX), s(S_SLAB), s(S_KXO)))
    e("s_add_u32 %s, %s, %s" % (s(S_VX), s(S_SLAB), s(S_VXO)))
    e("s_xor_b32 %s, %s, 1" % (s(S_NPAR), s(S_PAR)))
    e("s_add_u32 %s, %s, 1" % (s(S_NEXT), s(S_STEP)))
    tr = 2
    delay(e, OPT.get("pm", 64))
    e.label(L("retrym"))
    for x in mld:
        e(x)
    e("s_add_u32 %s, %s, 1" % (s(S_TMO), s(S_TMO)))
    e("s_cmp_gt_u32 %s, %d" % (s(S_TMO), TMO_LIMIT))
    e("s_cselect_b32 %s, -1, -2" % s(S_LIM))
    e("v_xor_b32 %s, 0x800, %s" % (v(am(3)), v(C_MW)))
    e("v_xor_b32 %s, 0x1800, %s" % (v(am(7)), v(C_MW)))
    for x in z[:4]:
        e(x)
    e.label(L("waitm"))
    e("s_waitcnt vmcnt(%d) lgkmcnt(0)" % (1 + tr))
    e.label(L("gotm"))
    stamp(e, 0, stamps)
    T1 = am(2)
    mw = ["ds_write_b128 %s, %s offset:%d" % (v(C_MW), v(am(k), 4), L_MEMI + 1024 * k) for k in range(2)]
    PK = ACCK
    pst = lambda q: "buffer_store_dwordx2 %s, %s, %s, %s offen offset:%d%s" % (v(PK + 2 * q, 2), v(C_PW), ws, "0" if q < 2 else s(S_4K), (q & 1) * 2048, sc)
    tg = lambda q: "v_and_or_b32 %s, %s, -2, %s" % (v(PK + 2 * q), v(PK + 2 * q), s(S_TAG))
    kx = lambda ks: "buffer_load_dwordx4 %s, %s, %s, %s offen offset:%d sc1" % (v(XB + 4 * ks, 4), v(C_L16), ws, s(S_KX), ks * 1024)
    vx = lambda T: "buffer_load_dwordx4 %s, %s, %s, %s offen offset:%d sc1" % (v(VX + 4 * T, 4), v(C_L16), ws, s(S_VX), T * 1024)
    amrd = lambda u: "ds_read_b128 %s, %s offset:%d" % (v(am(u), 4), v(C_X2 if u >> 1 == 2 else am(u | 1)), L_MEMI + (u & 1) * 1024)
    q7 = lds_fetch_ins(("Q", 0, 7)) + lds_fetch_ins(("Q", 1, 7))
    k2 = lds_fetch_ins(("K", 0, 2)) + lds_fetch_ins(("K", 1, 2))
    k7 = lds_fetch_ins(("K", 0, 7)) + lds_fetch_ins(("K", 1, 7))
    of = sum([lds_fetch_ins(op) for op in OLDS], [])
    qbrd = lambda ks: "ds_read_b128 %s, %s offset:%d" % (v(QB + 4 * ks, 4), v(C_QR), 64 * ks)
    KM = XA
    kmrd = lambda ks: "ds_read_b128 %s, %s offset:%d" % (v(KM + 4 * ks, 4), v(C_QR), L_KMX - L_QX + 64 * ks)
    SX, SM = ACCQ, ACCQ + 4
    ONES, PX, PM, VM0, VM1 = XB, XB + 4, XB + 8, XB + 10, XB + 12
    TA = XB + 14
    LS, OA, OP = SX, ACCK, SM
    smx = lambda ks: mf32(SX, XB + 4 * ks, QB + 4 * ks, ks == 0)
    smm = lambda ks: mf32(SM, KM + 4 * ks, QB + 4 * ks, ks == 0)
    pf = "buffer_load_dword %s, %s, %s, %s offen sc1" % (v(JUNK), v(C_PF), ws, s(S_SLABN))
    hist = "buffer_store_dword %s, %s, %s, %s offen sc1" % (v(HPEND), v(C_MP), ws, s(S_HIST))
    zw = ["v_mov_b64 %s, 0" % v(r, 2) for r in range(AM, AM + 16, 2)]
    OOP = AM + 12
    oad = ["v_xor_b32 %s, 0x%x, %s" % (v(OOP + 4 * u), u * 2048, v(C_MW)) for u in (1, 3)]
    L_OE = L_PX + 1024
    mx3 = lambda d, x, y, z_: "v_max3_u32 %s, %s, %s, %s" % (v(d), v(x), v(y), v(z_))
    mov0 = lambda r: "v_mov_b32 %s, 0" % v(r)
    early = OPT.get("early", 1)
    e(mx3(T0, AM, AM + 1, AM + 2))
    e("v_max_u32 %s, %s, %s" % (v(T0), v(T0), v(AM + 3)))
    run([
        (Q(0, 0), ["s_waitcnt vmcnt(%d)" % tr, mx3(T0, T0, AM + 4, AM + 5)]),
        (Q(1, 0), [mx3(T0, T0, AM + 6, AM + 7), "v_cmp_lt_u32 vcc, %s, %s" % (s(S_LIM), v(T0))]),
        (Q(0, 1), [mw[0]] + ([] if solo else ["s_cbranch_vccnz %s" % L("retrym")])),
        (Q(1, 1), [mw[1]]),
        (K(0, 0), [kx(0), vx(0)] if early else [kx(0)]),
        (K(1, 0), [kx(1), vx(1)] if early else [kx(1)]),
        (K(0, 1), [kx(2), kx(3)] if early else [kx(2)]),
        (K(1, 1), [lg(0), BAR, amrd(2)]),
        (V(0, 0), [amrd(3)]),
        (V(1, 0), [pf] if early else [kx(3)]),
        (V(0, 1), [amrd(4)]),
        (V(1, 1), [amrd(5), lg(3)]),
        (Q(0, 2), [amrd(6)]),
        (Q(1, 2), [amrd(7), lg(4)]),
        (Q(0, 3), [q7[0]]),
        (Q(1, 3), [q7[1], lg(4)]),
        (Q(0, 4), [q7[2]]),
        (Q(1, 4), [q7[3], lg(4)]),
        (Q(0, 5), [] if early else [vx(0)]),
        (Q(1, 5), [k2[0]]),
        (Q(0, 6), [] if early else [vx(1)]),
        (Q(1, 6), [k2[1], lg(2)]),
        (Q(0, 7), [k2[2]]),
        (Q(1, 7), [k2[3]]),
        (K(0, 3), [k7[0]]),
        (K(1, 3), [k7[1]]),
        (K(0, 4), [k7[2], add(ACCQ, 0), add(ACCQ, 1)]),
        (K(1, 4), [k7[3], add(ACCQ + 4, 0), add(ACCQ + 4, 1)]),
        (K(0, 5), [lg(4), cvt(ACCQ + 2, ACCQ, ACCQ + 4), cvt(ACCQ + 3, ACCQ + 1, ACCQ + 5)]),
        (K(0, 2), ["ds_write2_b32 %s, %s, %s offset0:0 offset1:%d" % (v(C_QW), v(ACCQ + 2), v(ACCQ + 3), RS)]),
        (K(1, 2), [] if early else [pf]),
        (K(1, 5), []),
        (K(0, 6), [hist]),
        (K(1, 6), [lg(0), BAR]),
        (K(0, 7), [qbrd(0)]),
        (K(1, 7), [qbrd(1)]),
        (V(0, 2), [qbrd(2)]),
        (V(1, 2), [qbrd(3), "s_waitcnt vmcnt(2) lgkmcnt(3)"]),
        (smx(0), [lg(2), add(ACCK, 0), add(ACCK, 1)]),
        (smx(1), [lg(1), add(ACCK + 4, 0), add(ACCK + 4, 1)]),
        (smx(2), [lg(0), cvt(ACCK + 2, ACCK, ACCK + 4), cvt(ACCK + 3, ACCK + 1, ACCK + 5)]),
        (smx(3), ["ds_write2_b32 %s, %s, %s offset0:0 offset1:%d" % (v(C_KW), v(ACCK + 2), v(ACCK + 3), RS)]),
        (V(0, 3), ["v_mov_b64 %s, %s" % (v(ONES, 2), s(S_ONES, 2))]),
        (V(1, 3), ["s_nop 1", "v_mov_b64 %s, %s" % (v(ONES + 2, 2), s(S_ONES, 2))]),
        (V(0, 4), [ex(SX)]),
        (V(1, 4), [lg(0), BAR, ex(SX + 1)]),
        (V(0, 5), [kmrd(0), ex(SX + 2)]),
        (V(1, 5), [kmrd(1), ex(SX + 3)]),
        (V(0, 6), [kmrd(2), cvt(PX, SX, SX + 1), cvt(PX + 1, SX + 2, SX + 3)]),
        (V(1, 6), [kmrd(3), "ds_write_b64 %s, %s offset:%d" % (v(C_MW), v(PX, 2), L_PX), lg(4)]),
        (smm(0), [lg(3), mov0(PM + 1), mov0(VM0 + 1)]),
        (smm(1), [lg(2), mov0(VM1 + 1), zw.pop(0)]),
        (smm(2), [lg(1), zw.pop(0), zw.pop(0)]),
        (smm(3), [lg(0), BAR]),
        (V(0, 7), ["ds_read_b64 %s, %s offset:%d" % (v(PX + 2, 2), v(C_X2), L_PX), zw.pop(0)]),
        (V(1, 7), [zw.pop(0), zw.pop(0), "v_mul_f32 %s, %s, %s" % (v(SM), s(S_SCALE), v(SM)), "v_mul_f32 %s, %s, %s" % (v(SM + 1), s(S_SCALE), v(SM + 1)),
                   ex(SM), lg(0)]),
        (mf32(LS, ONES, PX, True), [ex(SM + 1), add(ACCV, 0)]),
        (mf32(OA, VX, PX, True), [cvt(PM, SM, SM + 1), add(ACCV, 1)]),
        (mf32(OA + 4, VX + 4, PX, True), [cvt(VM0, ACCV, ACCV + 1), add(ACCV + 4, 0)]),
        (mf16(LS, ONES, PM), [add(ACCV + 4, 1), cvt(VM1, ACCV + 4, ACCV + 5)]),
        (mf16(OA, VM0, PM), [zw.pop(0), zw.pop(0)]),
        (mf16(OA + 4, VM1, PM), [oad[0], oad[1], "v_rcp_f32 %s, %s" % (v(TA), v(LS))]),
    ])
    assert not zw
    e("v_max_f32 %s, %s, %s" % (v(T0), v(TA), v(LS)))
    e("v_cmp_nge_f32 vcc, %s, %s" % (s(S_BIG), v(T0)))
    for r in (0, 2, 4, 6):
        e("v_pk_mul_f32 %s, %s, %s op_sel_hi:[1,0]" % (v(OA + r, 2), v(OA + r, 2), v(TA, 2)))
    for r in range(4):
        e(cvt(OP + r, OA + r, OA + 4 + r))
    e.label(L("rejoin"))
    e("ds_write_b128 %s, %s offset:%d" % (v(C_MW), v(OP, 4), L_OE))
    WACC = AM
    SO = lambda q, u: smf_ins(WACC + 4 * q, OP if u == 0 else OOP + 4 * u, ("O", q, u))
    ord_ = lambda u: "ds_read_b128 %s, %s offset:%d" % (v(OOP + 4 * u, 4), v(C_X2 if u == 2 else OOP + 4 * u), L_OE)
    SEL, RD = ACCV, ACCV + 4
    wc = lambda q, r: cvt(PK + 2 * q + r, WACC + 4 * q + r, WACC + 4 * q + 2 + r)
    run([
        (SO(0, 0), []),
        (SO(1, 0), []),
        (SO(2, 0), [lg(0), BAR, ord_(1), ord_(2)]),
        (SO(3, 0), [ord_(3), of[0], of[1], lg(4)]),
        (SO(0, 1), [of[2], lg(4)]),
        (SO(0, 2), [of[3], lg(4)]),
        (SO(0, 3), [of[4], "s_cmp_lg_u64 vcc, 0"]),
        (SO(1, 1), [of[5], "s_cselect_b32 %s, %s, %s" % (s(S_TAG), s(S_NPAR), s(S_PAR))]),
        (SO(1, 2), [of[6], wc(0, 0)]),
        (SO(1, 3), [of[7], wc(0, 1), tg(0)]),
        (SO(2, 1), [pst(0)]),
        (SO(2, 2), [lg(4), "s_nop 0", wc(1, 0)]),
        (SO(2, 3), ["ds_read_b128 %s, %s offset:%d" % (v(SEL, 4), v(C_L16), L_SEL), wc(1, 1), tg(1)]),
        (SO(3, 1), [pst(1), lg(1)]),
        (SO(3, 2), ["s_nop 1", wc(2, 0)]),
        (SO(3, 3), [wc(2, 1), tg(2), pst(2), wc(3, 0), wc(3, 1), tg(3), pst(3)]),
    ])
    e.label(L("stored"))
    stamp(e, 1, stamps)
    e("s_cmp_lg_u32 %s, %s" % (s(S_TAG), s(S_PAR)))
    e("s_cbranch_scc1 %s" % L("safe"))
    f, z = idle_prep_ins()
    n0 = OPT.get("n0", 12)
    PD = VX
    pld = lambda P: ["buffer_load_dwordx4 %s, %s, %s, %s offen sc1" % (v(P, 4), v(C_MW), ws, s(S_PR)),
                     "buffer_load_dwordx4 %s, %s, %s, %s offen offset:1024 sc1" % (v(P + 4, 4), v(C_MW), ws, s(S_PR))]
    pub = "buffer_store_dword %s, %s, %s, %s offen%s" % (v(HPEND), v(C_MP), ws, s(S_T0), sc)
    for x in f[:n0]:
        e(x)
    delay(e, OPT.get("d1", 0))
    for q in range(1, 4):
        e("s_cmp_lt_u32 %s, %d" % (s(S_WAVE), q))
        e("s_cbranch_scc1 %s" % L("pollp"))
        delay(e, OPT.get("dp", 56))
    e.label(L("pollp"))
    stamp(e, 4, stamps)
    PB_ = AM + 16
    for x in pld(PD):
        e(x)
    for x in f[n0:] + z[4:8]:
        e(x)
    delay(e, OPT.get("pp", 128))
    for x in pld(PB_):
        e(x)
    e("s_add_u32 %s, %s, 0x%x" % (s(S_MB), s(S_SLABN), MB_IN))
    chk = lambda P: ["v_bitop3_b32 %s, %s, %s, %s bitop3:0x7e" % (v(T0), v(P), v(P + 2), s(S_PAR)),
                     "v_bitop3_b32 %s, %s, %s, %s bitop3:0x7e" % (v(FREE1), v(P + 4), v(P + 6), s(S_PAR)),
                     "v_bitop3_b32 %s, %s, %s, 1 bitop3:0xa8" % (v(T0), v(T0), v(FREE1)),
                     "v_cmp_ne_u32 vcc, 0, %s" % v(T0)]

    def finish():
        for rot in (8, 4):
            for r in (0, 1):
                e("v_add_f32_dpp %s, %s, %s row_ror:%d row_mask:0xf bank_mask:0xf" % (v(RD + r), v(RD + r), v(RD + r), rot))
        e(cvt(HPEND, RD, RD + 1))
        e(pub)

    def attempt(P, base):
        e("s_waitcnt vmcnt(%d) lgkmcnt(0)" % (base + 1))
        e(mf32(RD, SEL, P, True))
        e(chk(P)[0])
        e("s_waitcnt vmcnt(%d)" % base)
        e(mf32(RD, SEL, P + 4, False))
        for x in chk(P)[1:]:
            e(x)
        e("s_nop 2")
        e("s_cmp_eq_u64 vcc, 0")
        e("s_cselect_b32 %s, %s, %s" % (s(S_T0), s(S_HIST if solo else S_SLABN), s(S_OOB)))
        finish()
    attempt(PD, 2)
    if not solo:
        e("s_cbranch_scc1 %s" % L("gotp"))
        e.label(L("retryp"))
        for x in pld(PD):
            e(x)
        attempt(PB_, 3)
        e("s_cbranch_scc1 %s" % L("gotp"))
        for x in pld(PB_):
            e(x)
        attempt(PD, 3)
        e("s_cbranch_scc1 %s" % L("gotp"))
        e("s_add_u32 %s, %s, 1" % (s(S_TMO), s(S_TMO)))
        e("s_cmp_le_u32 %s, %d" % (s(S_TMO), TMO_LIMIT))
        e("s_cbranch_scc1 %s" % L("retryp"))
        e("s_mov_b32 %s, %s" % (s(S_T0), s(S_SLABN)))
        e(pub)
    e.label(L("gotp"))
    stamp(e, 2, stamps)
    e("s_mov_b32 %s, %s" % (s(S_SLAB), s(S_SLABN)))
    e("s_add_u32 %s, %s, 0x2000" % (s(S_HIST), s(S_HIST)))
    e("s_mov_b32 %s, %s" % (s(S_STEP), s(S_NEXT)))
    e("s_mov_b32 %s, %s" % (s(S_PAR), s(S_NPAR)))
    for x in z[8:]:
        e(x)
    if trace:
        e("s_memrealtime s[100:101]")
        e("s_memtime s[70:71]")
        e("s_lshl_b32 s3, %s, 2" % s(S_H))
        e("s_add_u32 s3, s3, %s" % s(S_WAVE))
        e("s_lshl_b32 s3, s3, 6")
        e("s_add_u32 s3, s3, %s" % s(S_STEP))
        e("s_lshl_b32 s3, s3, 5")
        e("s_add_u32 s3, s3, 0x200000")
        e("s_waitcnt lgkmcnt(0)")
        for k, r in enumerate((64, 66, 68, 100, 70, 72, 74, S_TMO)):
            e("v_mov_b32 %s, %s" % (v(AM + 8 + k), s(r)))
        e("buffer_store_dwordx4 %s, off, %s, s3" % (v(AM + 8, 4), ws))
        e("buffer_store_dwordx4 %s, off, %s, s3 offset:16" % (v(AM + 12, 4), ws))
    delay(e, OPT.get("dm", 128) - (128 if trace else 0))
    stamp(e, 5, stamps)
    for x in mld:
        e(x)
    e("s_cmp_lt_u32 %s, %d" % (s(S_STEP), nsteps))
    e("s_cbranch_scc1 %s" % L("step"))
    e(hist)
    e("s_branch %s" % L("done"))
    e.label(L("refresh"))
    e("v_lshrrev_b32 %s, 2, %s" % (v(T0), v(C_L16)))
    e("s_lshl_b32 %s, %s, 8" % (s(S_T0), s(S_H)))
    e("s_add_u32 %s, %s, 0x%x" % (s(S_T0), s(S_T0), FLAG_OFF))
    e("buffer_load_dword %s, %s, %s, %s offen sc1" % (v(T0), v(T0), ws, s(S_T0)))
    e("s_add_u32 %s, %s, 1" % (s(S_TMO), s(S_TMO)))
    e("s_waitcnt vmcnt(0)")
    e("v_cmp_ne_u32 %s, 0, %s" % (s(S_RDY, 2), v(T0)))
    e("s_nop 3")
    e("s_cmp_le_u32 %s, %d" % (s(S_TMO), TMO_LIMIT))
    e("s_cbranch_scc1 %s" % L("step"))
    e("s_mov_b64 %s, -1" % s(S_RDY, 2))
    e("s_branch %s" % L("step"))
    e.label(L("safe"))
    e.fence(12)
    e("s_waitcnt vmcnt(0) lgkmcnt(0)")
    e("s_barrier")
    W = AM
    for ks in range(4):
        e(qbrd(ks))
        e(kmrd(ks))
    e("s_xor_b32 %s, %s, 0x1000" % (s(S_T0), s(S_KXO)))
    e("s_add_u32 %s, %s, %s" % (s(S_T0), s(S_T0), s(S_SLAB)))
    for ks in range(4):
        e("buffer_load_dwordx4 %s, %s, %s, %s offen offset:%d sc1" % (v(W + 4 * ks, 4), v(C_L16), ws, s(S_KX), ks * 1024))
        e("buffer_load_dwordx4 %s, %s, %s, %s offen offset:%d sc1" % (v(W + 16 + 4 * ks, 4), v(C_L16), ws, s(S_T0), ks * 1024))
    e("s_waitcnt vmcnt(0) lgkmcnt(0)")
    S0, S1, S2 = ACCQ, ACCQ + 4, ACCK
    for (d, src) in ((S0, W), (S1, W + 16), (S2, XA)):
        for ks in range(4):
            e(mf32(d, src + 4 * ks, QB + 4 * ks, ks == 0))
    M0_, M1_ = W, W + 1
    e("v_mul_f32 %s, %s, %s" % (v(S2), s(S_SCALE), v(S2)))
    e("v_mul_f32 %s, %s, %s" % (v(S2 + 1), s(S_SCALE), v(S2 + 1)))
    e("v_max3_f32 %s, %s, %s, %s" % (v(M0_), v(S0), v(S0 + 1), v(S0 + 2)))
    e("v_max3_f32 %s, %s, %s, %s" % (v(M0_), v(M0_), v(S0 + 3), v(S1)))
    e("v_max3_f32 %s, %s, %s, %s" % (v(M0_), v(M0_), v(S1 + 1), v(S1 + 2)))
    e("v_max3_f32 %s, %s, %s, %s" % (v(M0_), v(M0_), v(S1 + 3), v(S2)))
    e("v_max_f32 %s, %s, %s" % (v(M0_), v(M0_), v(S2 + 1)))
    for sw in ("v_permlane16_swap_b32", "v_permlane32_swap_b32"):
        e("v_mov_b32 %s, %s" % (v(M1_), v(M0_)))
        e("%s %s, %s" % (sw, v(M0_), v(M1_)))
        e("v_max_f32 %s, %s, %s" % (v(M0_), v(M0_), v(M1_)))
    for r in [S0 + i for i in range(8)] + [S2, S2 + 1]:
        e("v_sub_f32 %s, %s, %s" % (v(r), v(r), v(M0_)))
        e(ex(r))
    for q in range(4):
        e(cvt(PX + q, S0 + 2 * q, S0 + 2 * q + 1))
    e(cvt(PM, S2, S2 + 1))
    e(mf32(LS, ONES, PX, True)); e(mf32(OA, VX, PX, True)); e(mf32(OA + 4, VX + 4, PX, True))
    e(mf16(LS, ONES, PM)); e(mf16(OA, VM0, PM)); e(mf16(OA + 4, VM1, PM))
    e("v_rcp_f32 %s, %s" % (v(TA), v(LS)))
    for r in range(8):
        e("v_mul_f32 %s, %s, %s" % (v(OA + r), v(OA + r), v(TA)))
    for r in range(4):
        e(cvt(OP + r, OA + r, OA + 4 + r))
    for r in range(AM, AM + 16):
        e(mov0(r))
    for x in oad:
        e(x)
    e("s_mov_b64 vcc, 0")
    e("s_branch %s" % L("rejoin"))
    e.label(L("done"))
```

```python
from asmlib import v, a, s
import chain as C
from chain import lin, srd, f32bits, S_WS, S_DBG, S_H, S_WAVE, S_TMO, S_SCALE, S_PLO, S_PHI, S_T0, S_T1, S_T2, TMO_LIMIT, OOB

FLAGKV = C.FLAG_OFF
FLAGTP = C.FLAG_OFF + 0x2000
RVAL = C.FLAG_OFF + 0x4000
ACT = C.FLAG_OFF + 0xC000
FLAGXN = FLAGTP + 0x400
XNI = 0x800000
RDONE = 0x1B8000
NREP = 6
HROW = 0x400000
XN2 = 0x600000
TP_OFF = 0x4000000
Q_DELTA = 0x8000000 - C.SLAB_OFF

X_T = 0
EX_Q = 0
EX_K = 8192
EX_KM = 16384
MEMI = 20480
EX_O = 0
RED = 28672
L_WO = 32768

S_X = 12
S_OUT = 60
S_WR = 92
S_R = 22
S_SEG = 23
S_A, S_B = 24, 25
S_TPB = 26
S_PAR = 27
S_J = 29
S_M0 = 64
S_MM = 72
S_ONES = C.S_ONES

W_L16, W_MW, W_XG, W_XW, W_XR0, W_XR1, W_WO, W_MR, W_EX, W_TPW, W_TPR, W_ROW, W_NEG, T0, T1 = range(1, 16)
assert T0 == C.T0
R0 = 16


def wreg(m, T, ks):
    idx = ("QKV".index(m) * 32 + ks * 2 + T) * 4
    return a(idx, 4) if idx < 256 else v(128 + idx - 256, 4)


def mf32(d, A, B, first):
    return "v_mfma_f32_16x16x32_bf16 %s, %s, %s, %s" % (v(d, 4), A, B, "0" if first else v(d, 4))


def cvt(d, x, y):
    return "v_cvt_pk_bf16_f32 %s, %s, %s" % (v(d), v(x), v(y))


def ids(e):
    e("s_and_b32 %s, s2, 7" % s(S_T0))
    e("s_sub_u32 %s, %s, 1" % (s(S_T0), s(S_T0)))
    e("s_lshl_b32 %s, %s, 5" % (s(S_T0), s(S_T0)))
    e("s_lshr_b32 %s, s2, 3" % s(S_T1))
    e("s_add_u32 %s, %s, %s" % (s(S_T0), s(S_T0), s(S_T1)))
    e("s_mul_i32 %s, %s, 10923" % (s(S_H), s(S_T0)))
    e("s_lshr_b32 %s, %s, 16" % (s(S_H), s(S_H)))
    e("s_mul_i32 %s, %s, %d" % (s(S_T1), s(S_H), NREP))
    e("s_sub_u32 %s, %s, %s" % (s(S_R), s(S_T0), s(S_T1)))


def setup(e):
    lin(e, W_L16, {k: 16 << k for k in range(6)})
    lin(e, W_MW, {**{k: 16 << k for k in range(6)}, 6: 2048, 7: 4096})
    lin(e, W_EX, {**{k: 16 << k for k in range(6)}, 6: 1024, 7: 2048})
    lin(e, W_WO, {**{k: 16 << k for k in range(6)}, 6: 32768, 7: 65536}, L_WO)
    lin(e, W_XG, {0: 16, 1: 32, 2: 64, 3: 1024, 4: 2048, 5: 4096, 6: 8192, 7: 16384})
    lin(e, W_XW, {0: 256, 1: 512, 2: 1024, 6: 128, 7: 16384})
    e("v_lshrrev_b32 %s, 3, v0" % v(T1))
    e("v_xor_b32 %s, %s, v0" % (v(T1), v(T1)))
    e("v_and_b32 %s, 7, %s" % (v(T1), v(T1)))
    e("v_lshl_add_u32 %s, %s, 4, %s" % (v(W_XW), v(T1), v(W_XW)))
    e("v_bfe_u32 %s, v0, 4, 2" % v(T1))
    e("v_lshlrev_b32 %s, 4, %s" % (v(T1), v(T1)))
    e("v_xor_b32 %s, %s, %s" % (v(W_XR0), v(T1), v(W_L16)))
    e("v_xor_b32 %s, 64, %s" % (v(W_XR1), v(W_XR0)))
    lin(e, W_MR, {0: 16, 1: 64, 2: 128, 4: 32, 5: 256}, MEMI)
    lin(e, W_TPW, {0: 16, 1: 32, 2: 64, 3: 128, 4: 4 * 32768, 5: 8 * 32768, 6: 256, 7: 512})
    lin(e, W_TPR, {0: 16, 1: 32, 2: 64, 3: 128, 4: 1024, 5: 2048, 6: 256, 7: 512})
    lin(e, W_ROW, {0: 16, 1: 32, 2: 64, 3: 128, 4: 4, 5: 8, 6: 256, 7: 512})
    e("v_mov_b32 %s, 0x%x" % (v(W_NEG), f32bits(-1e30)))
    e("v_and_b32 %s, 15, v0" % v(T0))
    e("v_bfe_u32 %s, v0, 4, 2" % v(T1))
    e("v_cmp_gt_u32 %s, 2, %s" % (s(S_MM, 2), v(T1)))
    e("v_lshlrev_b32 %s, 2, %s" % (v(T1), v(T1)))
    for r in range(4):
        e("v_cmp_le_u32 %s, %s, %s" % (s(S_M0 + 2 * r, 2), v(T1), v(T0)))
        e("v_add_u32 %s, 1, %s" % (v(T1), v(T1)))
    e("s_mov_b32 %s, 0x05040100" % s(S_PLO))
    e("s_mov_b32 %s, 0x07060302" % s(S_PHI))
    e("s_mov_b32 %s, 0x%x" % (s(S_SCALE), f32bits(128 ** -0.5 * 1.4426950408889634)))
    e("s_mov_b32 %s, 0" % s(S_TMO))
    e("s_mov_b32 %s, 0x3f803f80" % s(S_ONES))
    e("s_mov_b32 %s, 0x3f803f80" % s(S_ONES + 1))


def load_w(e, P, mats, pre=None):
    ptr = {"Q": P + 4, "K": P + 6, "V": P + 8}
    SRDS = {"Q": 96, "K": 40, "V": 76}

    def reads(m, ci):
        out = []
        for k in range(4):
            for T in range(2):
                idx = ("QKV".index(m) * 32 + (4 * ci + k) * 2 + T) * 4
                for u in range(2):
                    dst = a(idx + 2 * u, 2) if idx < 256 else v(128 + idx - 256 + 2 * u, 2)
                    out.append((dst, k, T, 4 * u))
        return out
    chunks = [(m, ci) for m in mats for ci in range(4)]

    def side(c, q):
        phase0(e, c, q)
    C.staged_load(e, chunks, ptr, SRDS, 2, lambda k: (k >> 1) << 7, {2: 32, 3: 64, 4: 128}, {2: 1, 3: 2, 4: 8, 5: 16}, False, reads, side, pre, 4)


def load_wo(e, P):
    VOFF = T1
    srd(e, 96, P + 10, 4096 * 512 * 2)
    lin(e, VOFF, {0: 16, 1: 32, 2: 64, 3: 128, 4: 4 * 1024, 5: 8 * 1024, 6: 256, 7: 512})
    e("s_lshl_b32 %s, %s, 17" % (s(S_T0), s(S_H)))
    TMP = 112

    def issue(ks):
        base = R0 + (ks % 3) * 32
        for j in range(8):
            e("s_add_u32 %s, %s, 0x%x" % (s(S_T1), s(S_T0), (32 * ks + 16 * (j & 1) + (j >> 1)) * 1024))
            e("buffer_load_dwordx4 %s, %s, %s, %s offen" % (v(base + 4 * j, 4), v(VOFF), s(96, 4), s(S_T1)))

    def consume(ks):
        base = R0 + (ks % 3) * 32
        for T in range(8):
            t = TMP + (T % 4) * 4
            if T == 4:
                e("s_waitcnt lgkmcnt(0)")
            for jj in range(4):
                e("v_perm_b32 %s, %s, %s, %s" % (v(t + jj), v(base + 4 * (2 * jj + 1) + (T >> 1)), v(base + 4 * (2 * jj) + (T >> 1)), s(S_PHI if T & 1 else S_PLO)))
            e("ds_write_b128 %s, %s offset:%d" % (v(W_WO), v(t, 4), (ks * 8 + T) * 1024))
        e("s_waitcnt lgkmcnt(0)")
    for ks in range(3):
        issue(ks)
    e("s_waitcnt vmcnt(16)")
    consume(0)
    issue(3)
    e("s_waitcnt vmcnt(16)")
    consume(1)
    e("s_waitcnt vmcnt(8)")
    consume(2)
    e("s_waitcnt vmcnt(0)")
    consume(3)


def dpp_add(e, r, ctrl):
    e("v_add_f32_dpp %s, %s, %s %s row_mask:0xf bank_mask:0xf" % (v(r), v(r), v(r), ctrl))


def wave_sum(e, regs, tmp):
    for ctrl in ("quad_perm:[1,0,3,2]", "quad_perm:[2,3,0,1]", "row_half_mirror", "row_mirror"):
        for r in regs:
            dpp_add(e, r, ctrl)
    for sw in ("v_permlane16_swap_b32", "v_permlane32_swap_b32"):
        for r in regs:
            e("v_mov_b32 %s, %s" % (v(tmp), v(r)))
            e("%s %s, %s" % (sw, v(r), v(tmp)))
            e("v_add_f32 %s, %s, %s" % (v(r), v(r), v(tmp)))


XR = R0 + 80


def x_issue(e, sseg):
    e("s_lshl_b32 %s, %s, 15" % (s(S_T0), s(sseg)))
    for i in range(8):
        e("buffer_load_dwordx4 %s, %s, %s, %s offen offset:%d" % (v(XR + 4 * i, 4), v(W_XG), s(S_X, 4), s(S_T0), i * 128))


def x_norm(e):
    SU, SQ, LO, HI = R0 + 72, R0 + 73, R0 + 74, R0 + 75
    lo = lambda d, x: e("v_lshlrev_b32 %s, 16, %s" % (v(d), v(x)))
    hi = lambda d, x: e("v_and_b32 %s, 0xffff0000, %s" % (v(d), v(x)))
    e("v_mov_b32 %s, 0" % v(SU))
    e("v_mov_b32 %s, 0" % v(SQ))
    for r in range(XR, XR + 32):
        e("v_dot2_f32_bf16 %s, %s, %s, %s" % (v(SU), v(r), s(S_ONES), v(SU)))
        e("v_dot2_f32_bf16 %s, %s, %s, %s" % (v(SQ), v(r), v(r), v(SQ)))
    e("s_nop 3")
    for ctrl in ("quad_perm:[1,0,3,2]", "quad_perm:[2,3,0,1]", "row_half_mirror"):
        dpp_add(e, SU, ctrl)
        dpp_add(e, SQ, ctrl)
    e("v_mul_f32 %s, 0x%x, %s" % (v(SU), f32bits(1 / 512), v(SU)))
    e("v_mul_f32 %s, 0x%x, %s" % (v(SQ), f32bits(1 / 512), v(SQ)))
    e("v_fma_f32 %s, -%s, %s, %s" % (v(SQ), v(SU), v(SU), v(SQ)))
    e("v_max_f32 %s, 0, %s" % (v(SQ), v(SQ)))
    e(cvt(T0, SU, SQ))
    lo(SU, T0); hi(SQ, T0)
    e("v_add_f32 %s, 0x%x, %s" % (v(SQ), f32bits(1e-5), v(SQ)))
    e(cvt(T0, SQ, SQ)); lo(SQ, T0)
    e("v_sqrt_f32 %s, %s" % (v(SQ), v(SQ)))
    e(cvt(T0, SQ, SQ)); lo(SQ, T0)
    e("v_rcp_f32 %s, %s" % (v(SQ), v(SQ)))
    for i in range(8):
        for q in range(4):
            r = XR + 4 * i + q
            lo(LO, r); hi(HI, r)
            e("v_sub_f32 %s, %s, %s" % (v(LO), v(LO), v(SU)))
            e("v_sub_f32 %s, %s, %s" % (v(HI), v(HI), v(SU)))
            e(cvt(r, LO, HI))
            lo(LO, r); hi(HI, r)
            e("v_mul_f32 %s, %s, %s" % (v(LO), v(LO), v(SQ)))
            e("v_mul_f32 %s, %s, %s" % (v(HI), v(HI), v(SQ)))
            e(cvt(r, LO, HI))
        e("ds_write_b128 %s, %s offset:%d" % (v(W_XW), v(XR + 4 * i, 4), X_T + i * 2048))


AQ, AK, AV = R0, R0 + 16, R0 + 32
XO = R0 + 48


def project(e, mats, r0, r1, extra=None):
    def rd(ks):
        b = XO + (ks & 1) * 8
        for kap in range(2):
            e("ds_read_b128 %s, %s offset:%d" % (v(b + 4 * kap, 4), v((r1 if ks & 1 else r0)[kap]), X_T + ks * 1024))
    rd(0)
    for ks in range(16):
        if ks + 1 < 16:
            rd(ks + 1)
            e("s_waitcnt lgkmcnt(2)")
        else:
            e("s_waitcnt lgkmcnt(0)")
        b = XO + (ks & 1) * 8
        if extra and ks in extra:
            extra[ks]()
        for m in mats:
            for T in range(2):
                for kap in range(2):
                    x = v(b + 4 * kap, 4)
                    if m == "V":
                        e(mf32(AV + 8 * kap + 4 * T, x, wreg(m, T, ks), ks == 0))
                    else:
                        e(mf32((AQ if m == "Q" else AK) + 8 * T + 4 * kap, wreg(m, T, ks), x, ks == 0))


def pack_qk(e, acc, dst, scale):
    if scale:
        for r in range(16):
            e("v_mul_f32 %s, %s, %s" % (v(acc + r), s(S_SCALE), v(acc + r)))
    for kap in range(2):
        for r in range(4):
            e(cvt(dst + 4 * kap + r, acc + 4 * kap + r, acc + 8 + 4 * kap + r))


def pack_v(e, dst):
    for T in range(2):
        for kap in range(2):
            for q in range(2):
                e(cvt(dst + 4 * T + 2 * kap + q, AV + 8 * kap + 4 * T + 2 * q, AV + 8 * kap + 4 * T + 2 * q + 1))


def signal(e, soff):
    e("s_waitcnt vmcnt(0)")
    e("s_barrier")
    flag_store(e, soff)


def wait_handshake(e, L="L_WHS"):
    e("v_lshrrev_b32 %s, 2, %s" % (v(T1), v(W_L16)))
    e("v_and_b32 %s, 127, %s" % (v(T1), v(T1)))
    e.label(L)
    e("buffer_load_dword %s, %s, %s, 0 offen sc1" % (v(T0), v(T1), s(S_DBG, 4)))
    e("s_add_u32 %s, %s, 1" % (s(S_TMO), s(S_TMO)))
    e("s_cmp_gt_u32 %s, %d" % (s(S_TMO), TMO_LIMIT))
    e("s_cbranch_scc1 %s_done" % L)
    e("s_waitcnt vmcnt(0)")
    e("v_cmp_eq_u32 vcc, 0, %s" % v(T0))
    e("s_cbranch_vccnz %s" % L)
    e.label(L + "_done")


def flag_store(e, soff):
    e("v_cmp_ne_u32 vcc, 0, v0")
    e("v_mov_b32 %s, 0x%x" % (v(T1), OOB))
    e("v_mov_b32 %s, 1" % v(T0))
    e("v_cndmask_b32 %s, v0, %s, vcc" % (v(T1), v(T1)))
    e("buffer_store_dword %s, %s, %s, %s offen sc1" % (v(T0), v(T1), s(S_WS, 4), s(soff)))


def xn_produce(e, mid):
    ws = s(S_WS, 4)
    e("s_lshr_b32 %s, s2, 3" % s(S_SEG))
    e("s_lshl_b32 %s, %s, 1" % (s(S_SEG), s(S_SEG)))
    x_issue(e, S_SEG)
    e("s_add_u32 %s, %s, 0x8000" % (s(S_T0), s(S_T0)))
    for i in range(8):
        e("buffer_load_dwordx4 %s, %s, %s, %s offen offset:%d" % (v(128 + 4 * i, 4), v(W_XG), s(S_X, 4), s(S_T0), i * 128))
    mid()
    e.label("L_XN")
    x_norm(e)
    e("s_waitcnt lgkmcnt(0)")
    e("s_barrier")
    e("s_lshl_b32 %s, %s, 15" % (s(S_A), s(S_SEG)))
    e("s_add_u32 %s, %s, 0x%x" % (s(S_A), s(S_A), XNI))
    for i in range(8):
        e("ds_read_b128 %s, %s offset:%d" % (v(R0 + 8 + 4 * i, 4), v(W_EX), i * 4096))
    for i in range(8):
        e("s_waitcnt lgkmcnt(%d)" % (7 - i))
        e("s_add_u32 %s, %s, %d" % (s(S_T0), s(S_A), i * 4096))
        e("buffer_store_dwordx4 %s, %s, %s, %s offen sc1" % (v(R0 + 8 + 4 * i, 4), v(W_EX), ws, s(S_T0)))
    e("s_barrier")
    for r in range(0, 32, 2):
        e("v_mov_b64 %s, %s" % (v(XR + r, 2), v(128 + r, 2)))
    e("s_add_u32 %s, %s, 1" % (s(S_SEG), s(S_SEG)))
    e("s_bitcmp1_b32 %s, 0" % s(S_SEG))
    e("s_cbranch_scc1 L_XN")
    C.ready_publish(e, T0, T1)


S_BUF = 31


def x_dma(e, sseg, sbuf):
    e("s_lshl_b32 %s, %s, 15" % (s(S_T0), s(sseg)))
    e("s_add_u32 %s, %s, 0x%x" % (s(S_T0), s(S_T0), XNI))
    e("s_lshl_b32 %s, %s, 10" % (s(S_T1), s(S_WAVE)))
    e("s_add_u32 %s, %s, %s" % (s(S_T1), s(S_T1), s(sbuf)))
    for i in range(8):
        e("s_add_u32 m0, %s, %d" % (s(S_T1), i * 4096))
        e("s_add_u32 %s, %s, %d" % (s(S_T2), s(S_T0), i * 4096))
        e("buffer_load_dwordx4 %s, %s, %s offen sc1 lds" % (v(W_EX), s(S_WS, 4), s(S_T2)))


A0 = R0 + 64


def p1_addr(e):
    e("s_lshr_b32 %s, %s, 1" % (s(S_T0), s(S_WAVE)))
    e("s_lshl_b32 %s, %s, 14" % (s(S_T0), s(S_T0)))
    e("s_xor_b32 %s, %s, 16384" % (s(S_T1), s(S_T0)))
    e("v_add_u32 %s, %s, %s" % (v(A0), s(S_T0), v(W_XR0)))
    e("v_add_u32 %s, %s, %s" % (v(A0 + 1), s(S_T1), v(W_XR0)))
    e("v_add_u32 %s, %s, %s" % (v(A0 + 2), s(S_T0), v(W_XR1)))
    e("v_add_u32 %s, %s, %s" % (v(A0 + 3), s(S_T1), v(W_XR1)))


def p1_store(e, with_q):
    ws = s(S_WS, 4)
    KP, VP, QP = R0 + 72, R0 + 80, R0 + 88
    pack_qk(e, AK, KP, True)
    pack_v(e, VP)
    if with_q:
        pack_qk(e, AQ, QP, False)
    e("s_mul_i32 %s, %s, 0x%x" % (s(S_A), s(S_SEG), C.SLAB_ST))
    e("s_lshl_b32 %s, %s, 14" % (s(S_T0), s(S_H)))
    e("s_add_u32 %s, %s, %s" % (s(S_A), s(S_A), s(S_T0)))
    e("s_add_u32 %s, %s, 0x%x" % (s(S_A), s(S_A), C.SLAB_OFF))
    e("s_lshr_b32 %s, %s, 1" % (s(S_T0), s(S_WAVE)))
    e("s_lshl_b32 %s, %s, 12" % (s(S_T0), s(S_T0)))
    e("s_xor_b32 %s, %s, 4096" % (s(S_T1), s(S_T0)))
    e("s_add_u32 %s, %s, %s" % (s(S_T0), s(S_T0), s(S_A)))
    e("s_add_u32 %s, %s, %s" % (s(S_T1), s(S_T1), s(S_A)))
    e("buffer_store_dwordx4 %s, %s, %s, %s offen sc1" % (v(KP, 4), v(W_EX), ws, s(S_T0)))
    e("buffer_store_dwordx4 %s, %s, %s, %s offen sc1" % (v(KP + 4, 4), v(W_EX), ws, s(S_T1)))
    e("s_add_u32 %s, %s, 8192" % (s(S_A), s(S_A)))
    e("buffer_store_dwordx4 %s, %s, %s, %s offen sc1" % (v(VP, 4), v(W_MW), ws, s(S_A)))
    e("buffer_store_dwordx4 %s, %s, %s, %s offen offset:1024 sc1" % (v(VP + 4, 4), v(W_MW), ws, s(S_A)))
    if with_q:
        e("s_add_u32 %s, %s, 0x%x" % (s(S_T0), s(S_T0), Q_DELTA))
        e("s_add_u32 %s, %s, 0x%x" % (s(S_T1), s(S_T1), Q_DELTA))
        e("buffer_store_dwordx4 %s, %s, %s, %s offen sc1" % (v(QP, 4), v(W_EX), ws, s(S_T0)))
        e("buffer_store_dwordx4 %s, %s, %s, %s offen sc1" % (v(QP + 4, 4), v(W_EX), ws, s(S_T1)))
    e("s_lshl_b32 %s, %s, 8" % (s(S_B), s(S_H)))
    e("s_lshl_b32 %s, %s, 2" % (s(S_T0), s(S_SEG)))
    e("s_add_u32 %s, %s, %s" % (s(S_B), s(S_B), s(S_T0)))
    e("s_add_u32 %s, %s, 0x%x" % (s(S_B), s(S_B), FLAGKV))


def phase0(e, c, q):
    if c == 0:
        e("s_mov_b32 %s, %s" % (s(S_SEG), s(S_R)))
        x_issue(e, S_SEG)
        for _ in range(8):
            q.add("x")
    if c == 4:
        q.wait("x")
        x_norm(e)
        p1_addr(e)
        e("s_mov_b32 %s, 0" % s(S_BUF))
    if c == 8:
        if C.OPT.get("prof") == 1:
            e("s_memrealtime s[100:101]")
            e("s_waitcnt lgkmcnt(0)")
            e("s_mov_b32 s91, s100")
        project(e, "KV", (A0, A0 + 1), (A0 + 2, A0 + 3))
        p1_store(e, False)
        wait_handshake(e)
        signal(e, S_B)
        if C.OPT.get("prof") == 1:
            e("s_memrealtime s[100:101]")
            e("s_waitcnt lgkmcnt(0)")
            e("s_mov_b32 s90, s100")
        q.q = []


def phase1(e):
    ws = s(S_WS, 4)
    e.label("L_P1")
    e("s_waitcnt vmcnt(6)")
    e("s_barrier")
    e("s_xor_b32 %s, %s, 32768" % (s(S_BUF), s(S_BUF)))
    e("s_add_u32 %s, %s, %d" % (s(S_A), s(S_SEG), NREP))
    e("s_min_u32 %s, %s, 63" % (s(S_A), s(S_A)))
    x_dma(e, S_A, S_BUF)

    def mid():
        e("s_waitcnt vmcnt(8)")
        e("s_barrier")
        flag_store(e, S_B)
    project(e, "KVQ", (A0, A0 + 1), (A0 + 2, A0 + 3), {6: mid})
    for k in range(4):
        e("v_xor_b32 %s, 0x8000, %s" % (v(A0 + k), v(A0 + k)))
    p1_store(e, True)
    e("s_add_u32 %s, %s, %d" % (s(S_SEG), s(S_SEG), NREP))
    e("s_cmp_lt_u32 %s, 64" % s(S_SEG))
    e("s_cbranch_scc1 L_P1")
    for k in range(4):
        e("v_mov_b32 %s, -1" % v(R0 + 4 + k))
    e("s_lshl_b32 %s, %s, 21" % (s(S_A), s(S_R)))
    e("s_lshl_b32 %s, %s, 15" % (s(S_T0), s(S_H)))
    e("s_add_u32 %s, %s, %s" % (s(S_A), s(S_A), s(S_T0)))
    for b_ in range(2):
        for u in range(8):
            e("s_add_u32 %s, %s, 0x%x" % (s(S_T0), s(S_A), TP_OFF + (b_ << 20) + u * 4096))
            e("buffer_store_dwordx4 %s, %s, %s, %s offen sc1" % (v(R0 + 4, 4), v(W_TPR), ws, s(S_T0)))
    signal(e, S_B)
    e("s_lshl_b32 %s, %s, 7" % (s(S_B), s(S_R)))
    e("s_lshl_b32 %s, %s, 2" % (s(S_T0), s(S_H)))
    e("s_add_u32 %s, %s, %s" % (s(S_T0), s(S_T0), s(S_B)))
    e("s_add_u32 %s, %s, 0x%x" % (s(S_T0), s(S_T0), FLAGTP))
    flag_store(e, S_T0)


def wait_tpinit(e):
    e("s_lshl_b32 %s, %s, 7" % (s(S_B), s(S_R)))
    e("s_add_u32 %s, %s, 0x%x" % (s(S_B), s(S_B), FLAGTP))
    e("v_lshrrev_b32 %s, 2, %s" % (v(T1), v(W_L16)))
    e("v_and_b32 %s, 127, %s" % (v(T1), v(T1)))
    e.label("L_TPI")
    e("buffer_load_dword %s, %s, %s, %s offen sc1" % (v(T0), v(T1), s(S_WS, 4), s(S_B)))
    e("s_add_u32 %s, %s, 1" % (s(S_TMO), s(S_TMO)))
    e("s_cmp_gt_u32 %s, %d" % (s(S_TMO), TMO_LIMIT))
    e("s_waitcnt vmcnt(0)")
    e("s_cbranch_scc1 L_TPI_ok")
    e("v_cmp_eq_u32 vcc, 0, %s" % v(T0))
    e("s_cbranch_vccz L_TPI_ok")
    e("s_sleep 8")
    e("s_branch L_TPI")
    e.label("L_TPI_ok")


def pst(e, i):
    if C.OPT.get("prof") == 1:
        e("s_memrealtime %s" % s(44 + 2 * i, 2))
        e("s_waitcnt lgkmcnt(0)")


QO, KO, VPA = 0, 32, 64
S_RD = 30


def qkv_issue(e, sseg):
    ws = s(S_WS, 4)
    e("s_mul_i32 %s, %s, 0x%x" % (s(S_A), s(sseg), C.SLAB_ST))
    e("s_lshl_b32 %s, %s, 14" % (s(S_T0), s(S_H)))
    e("s_add_u32 %s, %s, %s" % (s(S_A), s(S_A), s(S_T0)))
    e("s_add_u32 %s, %s, 0x%x" % (s(S_A), s(S_A), C.SLAB_OFF))
    for kap in range(2):
        e("s_add_u32 %s, %s, %d" % (s(S_T0), s(S_A), kap * 4096))
        e("s_add_u32 %s, %s, 0x%x" % (s(S_T1), s(S_T0), Q_DELTA))
        for ks in range(4):
            e("buffer_load_dwordx4 %s, %s, %s, %s offen offset:%d sc1" % (a(KO + 16 * kap + 4 * ks, 4), v(W_L16), ws, s(S_T0), ks * 1024))
            e("buffer_load_dwordx4 %s, %s, %s, %s offen offset:%d sc1" % (a(QO + 16 * kap + 4 * ks, 4), v(W_L16), ws, s(S_T1), ks * 1024))
    e("s_lshr_b32 %s, %s, 1" % (s(S_T0), s(S_WAVE)))
    e("s_lshl_b32 %s, %s, 3" % (s(S_T0), s(S_T0)))
    e("s_xor_b32 %s, %s, 8" % (s(S_T1), s(S_T0)))
    e("s_add_u32 %s, %s, 8192" % (s(S_A), s(S_A)))
    e("s_add_u32 %s, %s, %s" % (s(S_T0), s(S_T0), s(S_A)))
    e("s_add_u32 %s, %s, %s" % (s(S_T1), s(S_T1), s(S_A)))
    for T in range(2):
        e("buffer_load_dwordx2 %s, %s, %s, %s offen offset:%d sc1" % (a(VPA + 4 * T, 2), v(W_MW), ws, s(S_T0), T * 1024))
        e("buffer_load_dwordx2 %s, %s, %s, %s offen offset:%d sc1" % (a(VPA + 4 * T + 2, 2), v(W_MW), ws, s(S_T1), T * 1024))


def rdone_store(e):
    e("v_cmp_ne_u32 vcc, 0, %s" % v(W_L16))
    e("v_mov_b32 %s, 0x%x" % (v(T1), OOB))
    e("v_mov_b32 %s, 0" % v(T0))
    e("v_cndmask_b32 %s, %s, %s, vcc" % (v(T1), v(W_L16), v(T1)))
    e("buffer_store_dword %s, %s, %s, %s offen sc1" % (v(T0), v(T1), s(S_WS, 4), s(S_RD)))


def inter(e, mains, fills, per):
    fills = list(fills)
    for m in mains:
        for x in (m if isinstance(m, list) else [m]):
            e(x)
        for _ in range(per):
            if fills:
                e(fills.pop(0))
    for x in fills:
        e(x)


def phase2(e):
    ws = s(S_WS, 4)
    mf16 = lambda d, A, B, first: "v_mfma_f32_16x16x16_bf16 %s, %s, %s, %s" % (v(d, 4), A, B, "0" if first else v(d, 4))
    e("s_mov_b32 %s, %s" % (s(S_SEG), s(S_R)))
    e("s_mov_b32 %s, 0" % s(S_J))
    e("s_mov_b32 %s, 0x%x" % (s(S_RD), OOB))
    qkv_issue(e, S_SEG)
    e.label("L_P2")
    e("s_and_b32 %s, %s, 1" % (s(S_T0), s(S_J)))
    e("s_lshl_b32 %s, %s, 20" % (s(S_T0), s(S_T0)))
    e("s_lshl_b32 %s, %s, 21" % (s(S_TPB), s(S_R)))
    e("s_add_u32 %s, %s, %s" % (s(S_TPB), s(S_TPB), s(S_T0)))
    e("s_add_u32 %s, %s, 0x%x" % (s(S_TPB), s(S_TPB), TP_OFF))
    e("s_bfe_u32 %s, %s, 0x10001" % (s(S_PAR), s(S_J)))
    MB = R0 + 32
    e("s_lshl_b32 %s, %s, 13" % (s(S_A), s(S_SEG)))
    e("s_add_u32 %s, %s, 0x%x" % (s(S_A), s(S_A), C.HIST_OFF))
    e("s_max_u32 %s, %s, 1" % (s(S_B), s(S_SEG)))
    e("s_lshl_b32 %s, %s, 13" % (s(S_B), s(S_B)))
    e("s_add_u32 %s, %s, 0x%x" % (s(S_B), s(S_B), C.HIST_OFF - 0x2000))
    hld = ["buffer_load_dwordx4 %s, %s, %s, %s offen sc1" % (v(MB, 4), v(W_MW), ws, s(S_A)),
           "buffer_load_dwordx4 %s, %s, %s, %s offen offset:1024 sc1" % (v(MB + 4, 4), v(W_MW), ws, s(S_A))]
    for x in hld:
        e(x)
    e("s_lshl_b32 %s, %s, 5" % (s(S_T0), s(S_SEG)))
    e("s_add_u32 %s, %s, %s" % (s(S_T0), s(S_T0), s(S_H)))
    e("s_lshl_b32 %s, %s, 10" % (s(S_T0), s(S_T0)))
    e("buffer_load_dword a72, %s, %s, %s offen" % (v(W_ROW), s(S_X, 4), s(S_T0)))
    e("buffer_load_dword a73, %s, %s, 0 offen" % (v(W_ROW), s(S_WR, 4)))
    e("s_waitcnt vmcnt(4)")
    rdone_store(e)
    S00, S01, S11, SM0, SM1 = R0 + 64, R0 + 68, R0 + 72, R0 + 76, R0 + 80
    for (d, kk, kq) in ((S00, 0, 0), (S11, 1, 1), (S01, 0, 1)):
        for ks in range(4):
            e(mf32(d, a(KO + 16 * kk + 4 * ks, 4), a(QO + 16 * kq + 4 * ks, 4), ks == 0))
    for S_ in (S00, S11):
        for r in range(4):
            e("v_cndmask_b32 %s, %s, %s, %s" % (v(S_ + r), v(W_NEG), v(S_ + r), s(S_M0 + 2 * r, 2)))
    MX = R0 + 100
    g0 = [S00 + r for r in range(4)]
    g1 = [S01 + r for r in range(4)] + [S11 + r for r in range(4)]
    for mx, g_ in ((MX, g0), (MX + 1, g1)):
        e("v_max_f32 %s, %s, %s" % (v(mx), v(g_[0]), v(g_[1])))
        for i in range(2, len(g_), 2):
            e("v_max3_f32 %s, %s, %s, %s" % (v(mx), v(mx), v(g_[i]), v(g_[i + 1])))
    for sw in ("v_permlane16_swap_b32", "v_permlane32_swap_b32"):
        for mx in (MX, MX + 1):
            e("v_mov_b32 %s, %s" % (v(T0), v(mx)))
            e("%s %s, %s" % (sw, v(mx), v(T0)))
            e("v_max_f32 %s, %s, %s" % (v(mx), v(mx), v(T0)))
    for mx, g_ in ((MX, g0), (MX + 1, g1)):
        for r in g_:
            e("v_sub_f32 %s, %s, %s" % (v(r), v(r), v(mx)))
            e("v_exp_f32 %s, %s" % (v(r), v(r)))
    P0, P1, ONES, ONM = R0 + 84, R0 + 88, R0 + 92, R0 + 96
    e(cvt(P0, S00, S00 + 1)); e(cvt(P0 + 1, S00 + 2, S00 + 3))
    e("v_mov_b64 %s, 0" % v(P0 + 2, 2))
    e(cvt(P1, S01, S01 + 1)); e(cvt(P1 + 1, S01 + 2, S01 + 3))
    e(cvt(P1 + 2, S11, S11 + 1)); e(cvt(P1 + 3, S11 + 2, S11 + 3))
    e("v_mov_b64 %s, %s" % (v(ONES, 2), s(S_ONES, 2)))
    e("v_mov_b64 %s, %s" % (v(ONES + 2, 2), s(S_ONES, 2)))
    for k in range(2):
        e("v_cndmask_b32 %s, 0, %s, %s" % (v(ONM + k), v(ONES), s(S_MM, 2)))
    LX, OX = R0, R0 + 8
    for kq, P_ in ((0, P0), (1, P1)):
        e(mf32(LX + 4 * kq, v(ONES, 4), v(P_, 4), True))
        for T in range(2):
            e(mf32(OX + 8 * kq + 4 * T, a(VPA + 4 * T, 4), v(P_, 4), True))
    e("s_branch L_P2_chk")
    e.label("L_P2_far")
    e("buffer_load_dword %s, %s, %s, %s offen sc1" % (v(T0), v(W_MW), ws, s(S_B)))
    e("s_add_u32 %s, %s, 1" % (s(S_TMO), s(S_TMO)))
    e("s_cmp_gt_u32 %s, %d" % (s(S_TMO), TMO_LIMIT))
    e("s_waitcnt vmcnt(0)")
    e("s_cbranch_scc1 L_P2_poll")
    e("v_cmp_eq_u32 vcc, -1, %s" % v(T0))
    e("s_cbranch_vccz L_P2_near")
    e("s_sleep 12")
    e("s_branch L_P2_far")
    e.label("L_P2_near")
    e("s_mov_b32 %s, 0x%x" % (s(S_B), OOB))
    e.label("L_P2_poll")
    for x in hld:
        e(x)
    e.label("L_P2_chk")
    e("s_add_u32 %s, %s, 1" % (s(S_TMO), s(S_TMO)))
    e("s_waitcnt vmcnt(0)")
    e("ds_write_b128 %s, %s offset:%d" % (v(W_MW), v(MB, 4), MEMI))
    e("ds_write_b128 %s, %s offset:%d" % (v(W_MW), v(MB + 4, 4), MEMI + 1024))
    e("v_max3_u32 %s, %s, %s, %s" % (v(T0), v(MB), v(MB + 1), v(MB + 2)))
    e("v_max3_u32 %s, %s, %s, %s" % (v(T1), v(MB + 3), v(MB + 4), v(MB + 5)))
    e("v_max3_u32 %s, %s, %s, %s" % (v(T0), v(T0), v(MB + 6), v(MB + 7)))
    e("v_max_u32 %s, %s, %s" % (v(T0), v(T0), v(T1)))
    e("v_cmp_eq_u32 vcc, -1, %s" % v(T0))
    e("s_cbranch_vccz L_P2_got")
    e("s_cmp_gt_u32 %s, %d" % (s(S_TMO), TMO_LIMIT))
    e("s_cbranch_scc1 L_P2_got")
    e("s_cmp_eq_u32 %s, 0x%x" % (s(S_B), OOB))
    e("s_cbranch_scc1 L_P2_poll")
    e("s_branch L_P2_far")
    e.label("L_P2_got")
    pst(e, 0)
    e("s_waitcnt lgkmcnt(0)")
    e("s_barrier")
    AKM, AVM = R0 + 64, R0 + 24
    MO = R0 + 32
    moff = lambda ks: ((ks & 3) * 128 + ((ks >> 2) & 1) * 32 + (ks >> 3) * 64) * 16
    rdm = lambda i: "ds_read_b128 %s, %s offset:%d" % (v(MO + 4 * (i % 4), 4), v(W_MR), moff(i % 16))
    for i in range(3):
        e(rdm(i))
    for ks in range(16):
        e(rdm(ks + 3))
        e("s_waitcnt lgkmcnt(3)")
        for T in range(2):
            e(mf32(AKM + 4 * T, wreg("K", T, ks), v(MO + 4 * (ks % 4), 4), ks == 0))
    KMP, KMO = R0 + 72, R0 + 48
    PM = R0 + 84
    FX = R0 + 88
    vm = lambda ks, n: ([rdm(16 + ks + 3)] if ks + 3 < 16 else []) + ["s_waitcnt lgkmcnt(%d)" % n] + \
        [mf32(AVM + 4 * T, v(MO + 4 * (ks % 4), 4), wreg("V", T, ks), ks == 0) for T in range(2)]
    for x in vm(0, 3) + vm(1, 3):
        e(x)
    kf = ["v_mul_f32 %s, %s, %s" % (v(AKM + r), s(S_SCALE), v(AKM + r)) for r in range(8)] + [cvt(KMP + r, AKM + r, AKM + 4 + r) for r in range(4)]
    inter(e, [vm(2, 3), vm(3, 3), vm(4, 3)], kf, 4)
    e("ds_write_b128 %s, %s offset:%d" % (v(W_EX), v(KMP, 4), EX_KM))
    for x in vm(5, 4) + vm(6, 4) + vm(7, 4):
        e(x)
    e("s_waitcnt lgkmcnt(3)")
    e("s_barrier")
    for ks in range(4):
        e("ds_read_b128 %s, %s offset:%d" % (v(KMO + 4 * ks, 4), v(W_L16), EX_KM + ks * 1024))
    for x in vm(8, 7) + vm(9, 7):
        e(x)
    e("s_waitcnt lgkmcnt(2)")
    for ks in range(4):
        for (d, kq) in ((SM0, 0), (SM1, 1)):
            e(mf32(d, v(KMO + 4 * ks, 4), a(QO + 16 * kq + 4 * ks, 4), ks == 0))
    for x in vm(10, 3):
        e(x)
    M2 = R0 + 102
    sf = []
    for kq, S_ in ((0, SM0), (1, SM1)):
        sf += ["v_max3_f32 %s, %s, %s, %s" % (v(M2 + kq), v(S_), v(S_ + 1), v(S_ + 2)),
               "v_max3_f32 %s, %s, %s, %s" % (v(M2 + kq), v(M2 + kq), v(S_ + 3), v(MX + kq))]
    sf += ["v_mov_b32 %s, %s" % (v(T0), v(M2)), "v_mov_b32 %s, %s" % (v(T1), v(M2 + 1)),
           "v_permlane16_swap_b32 %s, %s" % (v(M2), v(T0)), "v_permlane16_swap_b32 %s, %s" % (v(M2 + 1), v(T1)),
           "v_max_f32 %s, %s, %s" % (v(M2), v(M2), v(T0)), "v_max_f32 %s, %s, %s" % (v(M2 + 1), v(M2 + 1), v(T1))]
    for kq, S_ in ((0, SM0), (1, SM1)):
        for r in range(4):
            sf += ["v_sub_f32 %s, %s, %s" % (v(S_ + r), v(S_ + r), v(M2 + kq)), "v_exp_f32 %s, %s" % (v(S_ + r), v(S_ + r))]
        sf += ["v_sub_f32 %s, %s, %s" % (v(FX + kq), v(MX + kq), v(M2 + kq)), "v_exp_f32 %s, %s" % (v(FX + kq), v(FX + kq))]
        sf += [cvt(PM + 2 * kq, S_, S_ + 1), cvt(PM + 2 * kq + 1, S_ + 2, S_ + 3)]
    inter(e, [vm(11, 3), vm(12, 3), vm(13, 2), vm(14, 1), vm(15, 0)], sf, 6)
    LM, OM = R0 + 32, R0 + 40
    for kq in range(2):
        e(mf16(LM + 4 * kq, v(ONM, 2), v(PM + 2 * kq, 2), True))
    VMP = R0 + 64
    for T in range(2):
        for k in range(2):
            e(cvt(VMP + 2 * T + k, AVM + 4 * T + 2 * k, AVM + 4 * T + 2 * k + 1))
            e("v_cndmask_b32 %s, 0, %s, %s" % (v(VMP + 2 * T + k), v(VMP + 2 * T + k), s(S_MM, 2)))
    for kq in range(2):
        for T in range(2):
            e(mf16(OM + 8 * kq + 4 * T, v(VMP + 2 * T, 2), v(PM + 2 * kq, 2), True))
    OP = R0 + 56
    for kq in range(2):
        e("v_fma_f32 %s, %s, %s, %s" % (v(LM + 4 * kq), v(LX + 4 * kq), v(FX + kq), v(LM + 4 * kq)))
        e("v_rcp_f32 %s, %s" % (v(LM + 4 * kq), v(LM + 4 * kq)))
    for kq in range(2):
        for r in range(8):
            e("v_fma_f32 %s, %s, %s, %s" % (v(OM + 8 * kq + r), v(OX + 8 * kq + r), v(FX + kq), v(OM + 8 * kq + r)))
        for r in range(0, 8, 2):
            e("v_pk_mul_f32 %s, %s, %s op_sel_hi:[1,0]" % (v(OM + 8 * kq + r, 2), v(OM + 8 * kq + r, 2), v(LM + 4 * kq, 2)))
        for r in range(4):
            e(cvt(OP + 4 * kq + r, OM + 8 * kq + r, OM + 8 * kq + 4 + r))
        e("ds_write_b128 %s, %s offset:%d" % (v(W_EX), v(OP + 4 * kq, 4), EX_O + kq * 4096))
    OO = R0
    WB = R0 + 32
    WA = R0 + 48
    seq = [(kq, ks, T) for kq in range(2) for ks in range(4) for T in range(8)]
    rdw = lambda i: "ds_read_b128 %s, %s offset:%d" % (v(WB + 4 * (i % 4), 4), v(W_WO), (seq[i][1] * 8 + seq[i][2]) * 1024)
    e("s_waitcnt lgkmcnt(0)")
    e("s_barrier")
    pst(e, 1)
    for kq in range(2):
        for ks in range(4):
            e("ds_read_b128 %s, %s offset:%d" % (v(OO + 16 * kq + 4 * ks, 4), v(W_L16), EX_O + kq * 4096 + ks * 1024))
    for i in range(3):
        e(rdw(i))
    e("s_lshl_b32 %s, %s, 10" % (s(S_T0), s(S_H)))
    e("s_add_u32 %s, %s, %s" % (s(S_B), s(S_TPB), s(S_T0)))

    def outs(kq):
        o = []
        for r in range(4):
            d = OO + 16 * kq + 4 * r
            o += [cvt(d + q, WA + 32 * kq + 8 * q + r, WA + 32 * kq + 8 * q + 4 + r) for q in range(4)]
            o += ["v_and_or_b32 %s, %s, -2, %s" % (v(d), v(d), s(S_PAR)),
                  "s_add_u32 %s, %s, 0x%x" % (s(S_T0), s(S_B), (16 * kq + r) * 32768),
                  "buffer_store_dwordx4 %s, %s, %s, %s offen sc1" % (v(d, 4), v(W_TPW), ws, s(S_T0))]
        return o
    o0 = outs(0)
    for i, (kq, ks, T) in enumerate(seq):
        e("s_waitcnt lgkmcnt(%d)" % min(2, 63 - i))
        e(mf32(WA + 32 * kq + 4 * T, v(OO + 16 * kq + 4 * ks, 4), v(WB + 4 * (i % 4), 4), ks == 0))
        if i + 3 < 64:
            e(rdw(i + 3))
        if i >= 35 and o0:
            e(o0.pop(0))
    assert not o0
    pst(e, 2)
    for x in outs(1):
        e(x)
    e("s_add_u32 %s, %s, %d" % (s(S_T2), s(S_SEG), NREP))
    e("s_cmp_ge_u32 %s, 64" % s(S_T2))
    e("s_cbranch_scc1 L_P2_last")
    qkv_issue(e, S_T2)
    e.label("L_P2_last")
    SEL, XV, WRV = R0 + 32, R0 + 36, R0 + 37
    e("s_lshl_b32 %s, %s, 5" % (s(S_A), s(S_SEG)))
    e("s_add_u32 %s, %s, %s" % (s(S_A), s(S_A), s(S_H)))
    e("s_lshl_b32 %s, %s, 10" % (s(S_A), s(S_A)))
    e("v_accvgpr_read_b32 %s, a72" % v(XV))
    e("v_accvgpr_read_b32 %s, a73" % v(WRV))
    e("v_and_b32 %s, 15, v0" % v(T1))
    for q in range(4):
        e("v_mov_b32 %s, 0" % v(SEL + q))
        e("v_mov_b32 %s, 0x3f80" % v(T0))
        e("v_cmp_eq_u32 vcc, %d, %s" % (4 * q, v(T1)))
        e("v_cndmask_b32 %s, %s, %s, vcc" % (v(SEL + q), v(SEL + q), v(T0)))
        e("v_mov_b32 %s, 0x3f800000" % v(T0))
        e("v_cmp_eq_u32 vcc, %d, %s" % (4 * q + 1, v(T1)))
        e("v_cndmask_b32 %s, %s, %s, vcc" % (v(SEL + q), v(SEL + q), v(T0)))
    e("s_lshl_b32 %s, %s, 15" % (s(S_B), s(S_H)))
    e("s_add_u32 %s, %s, %s" % (s(S_B), s(S_B), s(S_TPB)))
    PD = R0 + 64
    pst(e, 3)
    e.label("L_P3_poll")
    for u in range(8):
        e("s_add_u32 %s, %s, %d" % (s(S_T0), s(S_B), u * 4096))
        e("buffer_load_dwordx4 %s, %s, %s, %s offen sc1" % (v(PD + 4 * u, 4), v(W_TPR), ws, s(S_T0)))
    e("s_mov_b64 exec, -1")
    e("s_add_u32 %s, %s, 1" % (s(S_TMO), s(S_TMO)))
    e("s_cmp_gt_u32 %s, %d" % (s(S_TMO), TMO_LIMIT))
    RD = R0 + 40
    for u in range(8):
        e("s_waitcnt vmcnt(%d)" % (7 - u))
        e(mf32(RD, v(SEL, 4), v(PD + 4 * u, 4), u == 0))
        if u & 1:
            e("v_bitop3_b32 %s, %s, %s, %s bitop3:0x7e" % (v(R0 + 44 + (u >> 1)), v(PD + 4 * u - 4), v(PD + 4 * u), s(S_PAR)))
    e("v_or3_b32 %s, %s, %s, %s" % (v(T0), v(R0 + 44), v(R0 + 45), v(R0 + 46)))
    e("v_bitop3_b32 %s, %s, %s, 1 bitop3:0xa8" % (v(T0), v(T0), v(R0 + 47)))
    e("s_cbranch_scc1 L_P3_got")
    e("v_cmp_ne_u32 vcc, 0, %s" % v(T0))
    e("s_cbranch_vccz L_P3_got")
    e("s_mov_b64 exec, vcc")
    e("s_branch L_P3_poll")
    e.label("L_P3_got")
    pst(e, 4)
    e("s_nop 4")
    H0, H1, HP, SU, SQ, A_, B_, XP = range(R0 + 44, R0 + 52)
    lo = lambda d, x: e("v_lshlrev_b32 %s, 16, %s" % (v(d), v(x)))
    hi = lambda d, x: e("v_and_b32 %s, 0xffff0000, %s" % (v(d), v(x)))
    e(cvt(HP, RD, RD + 1))
    lo(A_, HP); hi(B_, HP)
    lo(H0, XV); hi(H1, XV)
    e("v_add_f32 %s, %s, %s" % (v(H0), v(H0), v(A_)))
    e("v_add_f32 %s, %s, %s" % (v(H1), v(H1), v(B_)))
    e(cvt(HP, H0, H1))
    lo(H0, HP); hi(H1, HP)
    e("v_add_f32 %s, %s, %s" % (v(SU), v(H0), v(H1)))
    e("v_mul_f32 %s, %s, %s" % (v(SQ), v(H0), v(H0)))
    e("v_fmac_f32 %s, %s, %s" % (v(SQ), v(H1), v(H1)))
    wave_sum(e, [SU, SQ], T0)
    e("v_mov_b32 %s, %s" % (v(T1), s(S_WAVE)))
    e("v_lshlrev_b32 %s, 3, %s" % (v(T1), v(T1)))
    e("v_add_u32 %s, %d, %s" % (v(T1), RED, v(T1)))
    e("ds_write2_b32 %s, %s, %s offset0:0 offset1:1" % (v(T1), v(SU), v(SQ)))
    e("s_add_u32 %s, %s, 0x%x" % (s(S_T0), s(S_A), HROW))
    e("buffer_store_dword %s, %s, %s, %s offen sc1" % (v(HP), v(W_ROW), ws, s(S_T0)))
    e("s_waitcnt lgkmcnt(0)")
    e("s_barrier")
    RR = R0 + 52
    e("v_mov_b32 %s, %d" % (v(T1), RED))
    e("ds_read_b128 %s, %s" % (v(RR, 4), v(T1)))
    e("ds_read_b128 %s, %s offset:16" % (v(RR + 4, 4), v(T1)))
    e("s_waitcnt lgkmcnt(0)")
    for k, d in ((0, SU), (1, SQ)):
        e("v_add_f32 %s, %s, %s" % (v(d), v(RR + k), v(RR + 2 + k)))
        e("v_add_f32 %s, %s, %s" % (v(d), v(d), v(RR + 4 + k)))
        e("v_add_f32 %s, %s, %s" % (v(d), v(d), v(RR + 6 + k)))
        e("v_mul_f32 %s, 0x%x, %s" % (v(d), f32bits(1 / 512), v(d)))
    e("v_fma_f32 %s, -%s, %s, %s" % (v(SQ), v(SU), v(SU), v(SQ)))
    e("v_max_f32 %s, 0, %s" % (v(SQ), v(SQ)))
    e(cvt(T0, SU, SQ))
    lo(SU, T0); hi(SQ, T0)
    e("v_add_f32 %s, 0x%x, %s" % (v(SQ), f32bits(1e-5), v(SQ)))
    e(cvt(T0, SQ, SQ)); lo(SQ, T0)
    e("v_sqrt_f32 %s, %s" % (v(SQ), v(SQ)))
    e(cvt(T0, SQ, SQ)); lo(SQ, T0)
    e("v_rcp_f32 %s, %s" % (v(SQ), v(SQ)))
    e("v_sub_f32 %s, %s, %s" % (v(A_), v(H0), v(SU)))
    e("v_sub_f32 %s, %s, %s" % (v(B_), v(H1), v(SU)))
    e(cvt(T0, A_, B_)); lo(A_, T0); hi(B_, T0)
    e("v_mul_f32 %s, %s, %s" % (v(A_), v(A_), v(SQ)))
    e("v_mul_f32 %s, %s, %s" % (v(B_), v(B_), v(SQ)))
    e(cvt(XP, A_, B_))
    lo(A_, XP); hi(B_, XP)
    W0, W1 = RR, RR + 1
    lo(W0, WRV); hi(W1, WRV)
    e("v_mul_f32 %s, %s, %s" % (v(SU), v(A_), v(W0)))
    e("v_fmac_f32 %s, %s, %s" % (v(SU), v(B_), v(W1)))
    wave_sum(e, [SU], T0)
    e("s_lshr_b32 %s, %s, 6" % (s(S_B), s(S_A)))
    e("s_lshl_b32 %s, %s, 2" % (s(S_T1), s(S_WAVE)))
    e("s_add_u32 %s, %s, %s" % (s(S_B), s(S_B), s(S_T1)))
    e("s_add_u32 %s, %s, 0x%x" % (s(S_T0), s(S_B), RVAL))
    e("v_cmp_ne_u32 vcc, 0, %s" % v(W_L16))
    e("v_mov_b32 %s, 0x%x" % (v(T1), OOB))
    e("v_cndmask_b32 %s, %s, %s, vcc" % (v(T1), v(W_L16), v(T1)))
    e("buffer_store_dword %s, %s, %s, %s offen sc1" % (v(SU), v(T1), ws, s(S_T0)))
    e("v_add_f32 %s, %s, %s" % (v(H0), v(H0), v(A_)))
    e("v_add_f32 %s, %s, %s" % (v(H1), v(H1), v(B_)))
    e(cvt(HP, H0, H1))
    e("buffer_store_dword %s, %s, %s, %s offen sc1" % (v(HP), v(W_ROW), s(S_OUT, 4), s(S_A)))
    e("s_add_u32 %s, %s, 0x%x" % (s(S_T0), s(S_A), XN2))
    e("buffer_store_dword %s, %s, %s, %s offen sc1" % (v(XP), v(W_ROW), ws, s(S_T0)))
    pst(e, 5)
    e("s_add_u32 %s, %s, 0x%x" % (s(S_RD), s(S_B), RDONE))
    e("s_add_u32 %s, %s, 1" % (s(S_J), s(S_J)))
    e("s_barrier")
    e("s_add_u32 %s, %s, %d" % (s(S_SEG), s(S_SEG), NREP))
    e("s_cmp_lt_u32 %s, 64" % s(S_SEG))
    e("s_cbranch_scc1 L_P2")
    e("s_waitcnt vmcnt(0)")
    rdone_store(e)
```

```python
import sys
from asmlib import Emitter, v, a, s
import chain as C
for a_ in sys.argv:
    if a_.startswith('opt:'):
        k_, v_ = a_[4:].split('=')
        C.OPT[k_] = int(v_, 0) if v_.lstrip('-')[:1].isdigit() else v_.replace('_', ' ')
import worker as W
import mlp as M

BASE = "sequential_preLN__memory_aug_recurrent_mem_tr__moe_arch_mod__prompt"
K1 = BASE + "_kernel"
K2 = "route_up_kernel"
K3 = "down_kernel"
hdr = open(__import__("os").path.join(__import__("os").path.dirname(__import__("os").path.abspath(__file__)), "..", "%s.s.ref" % BASE)).read().split("\n")
hdr = [l for l in hdr[:hdr.index(next(l for l in hdr if "@launch" in l and l.startswith("; @launch")))] if "harness parses" not in l.lower() and "Override launch" not in l]
e = Emitter()
for l in hdr:
    e.raw(l)
if C.OPT.get("list"):
    e.raw("; @launch kernel=%s grid=(256,1,1) block=(256,1,1) lds=%d" % (K1, C.LDS_BYTES))
else:
    e.raw("; @launch grid=(256,1,1) block=(256,1,1) lds=%d" % C.LDS_BYTES)
e.raw('.amdgcn_target "amdgcn-amd-amdhsa--gfx950"')
e.raw(".text")


def start(name):
    e.raw(".globl %s\n.p2align 8\n.type %s,@function" % (name, name))
    e.label(name)
    e.hist = []


PROF = C.OPT.get("prof", 0)


def rt(i, dbg=None):
    if not PROF:
        return
    if PROF == 2:
        if dbg is None:
            return
        e("s_cmp_lg_u32 %s, 0" % s(C.S_WAVE))
        e("s_cbranch_scc1 L_rt%d" % dbg)
        if dbg in (0, 3, 4):
            e("s_cmp_ge_u32 s2, 16")
            e("s_cbranch_scc1 L_rt%d" % dbg)
        e("s_memrealtime s[100:101]")
        e("s_waitcnt lgkmcnt(0)")
        e("s_and_b32 s100, s100, 0xffffff")
        if dbg == 0:
            e("s_sub_u32 s100, 0x1000000, s100")
        e("v_mov_b32 v14, s100")
        e("v_mov_b32 v15, 0")
        e("s_mov_b64 exec, 1")
        e("buffer_atomic_umax v14, v15, %s, 0 offen offset:%d" % (s(C.S_DBG, 4), 4 * dbg))
        e("s_mov_b64 exec, -1")
        e.label("L_rt%d" % dbg)
        return
    e("s_memrealtime s[100:101]")
    e("s_lshl_b32 s3, s2, 6")
    e("s_add_u32 s3, s3, 0x%x" % C.STAMP_OFF)
    e("s_waitcnt lgkmcnt(0)")
    e("v_mov_b32 v14, s100")
    e("v_mov_b32 v15, 0")
    e("buffer_store_dword v14, v15, %s, s3 offen offset:%d" % (s(C.S_WS, 4), 4 * i))
    e("s_waitcnt vmcnt(0)")


start(K1)
P = C.S_PTR
e("s_cmp_ge_u32 s2, 256")
e("s_cbranch_scc1 L_end")
e("s_load_dwordx8 %s, s[0:1], 0" % s(P, 8))
e("s_load_dwordx4 %s, s[0:1], 32" % s(P + 8, 4))
e("s_load_dwordx4 %s, s[0:1], 104" % s(P + 12, 4))
e("s_load_dwordx2 s[80:81], s[0:1], 64")
e("s_load_dwordx2 s[82:83], s[0:1], 96")
e("s_load_dwordx4 s[84:87], s[0:1], 72")
e("s_load_dwordx2 s[88:89], s[0:1], 88")
e("v_lshrrev_b32 v1, 6, v0")
e("v_readfirstlane_b32 %s, v1" % s(C.S_WAVE))
e("s_waitcnt lgkmcnt(0)")
C.srd(e, C.S_WS, P + 14, C.WS_BYTES)
C.srd(e, C.S_DBG, P + 12, 256)
rt(0, 0)
e("s_and_b32 s3, s2, 7")
e("s_cmp_lg_u32 s3, 0")
e("s_cbranch_scc1 L_worker")
e("s_lshr_b32 %s, s2, 3" % s(C.S_H))


def chain_pre(q):
    C.xcc_publish(e, q)
    C.mem0_load(e, P + 2, C.HPEND, 104, 105, 106, C.S_W)
    q.add("m0")
    C.setup_consts(e)


C.load_weights(e, P + 4, P + 6, P + 8, P + 10, pre=chain_pre)
C.setup_pf(e)
rt(1, 1)
C.handshake_wait(e, "L_fast_start", "L_slow_start")
C.main_loop(e, "fast", "", 63, bool(C.OPT.get("trace")))
rt(2, 2)
e("s_branch L_end")
C.main_loop(e, "slow", " sc1", 63)
e("s_branch L_end")
e.label("L_worker")


def common():
    C.srd(e, W.S_X, P, 2048 * 512 * 2)
    C.srd(e, W.S_OUT, 82, 2048 * 512 * 2)
    C.srd(e, W.S_WR, 80, 1024)
    W.setup(e)


def worker_pre(q):
    if C.OPT.get("touch", 1):
        e.comment("pull this head's Wo slice towards the last-level cache early (the chain CU streams it first)")
        C.srd(e, W.S_X, P + 10, 4096 * 512 * 2)
        e("s_lshl_b32 s24, %s, 17" % s(C.S_H))
        e("s_and_b32 s25, %s, 3" % s(W.S_R))
        e("s_lshl_b32 s25, s25, 15")
        e("s_add_u32 s24, s24, s25")
        e("v_lshlrev_b32 v30, 7, v0")
        e("buffer_load_dword v31, v30, %s, s24 offen" % s(W.S_X, 4))
        q.add("touch")
    common()


e("s_cmp_eq_u32 s3, 7")
e("s_cbranch_scc1 L_mlp")
W.ids(e)
W.load_w(e, P, C.OPT.get("word", "VKQ"), worker_pre)
rt(1, 3)
if PROF == 1:
    for i in range(2):
        e("v_mov_b32 v14, %s" % s(90 + i))
        e("buffer_store_dword v14, v15, %s, s3 offen offset:%d" % (s(C.S_WS, 4), 24 + 4 * i))
W.phase1(e)
rt(2, 4)
W.load_wo(e, P)
W.wait_tpinit(e)
rt(3)
W.phase2(e)
rt(4, 5)
if PROF == 1:
    for i in range(6):
        e("v_mov_b32 v14, %s" % s(44 + 2 * i))
        e("buffer_store_dword v14, v15, %s, s3 offen offset:%d" % (s(C.S_WS, 4), 32 + 4 * i))
    e("v_mov_b32 v14, %s" % s(C.S_TMO))
    e("buffer_store_dword v14, v15, %s, s3 offen offset:56" % s(C.S_WS, 4))
    e("v_mov_b32 v14, %s" % s(W.S_R))
    e("buffer_store_dword v14, v15, %s, s3 offen offset:60" % s(C.S_WS, 4))
e("s_branch L_end")
e.label("L_mlp")
common()
e("s_lshr_b32 %s, s2, 3" % s(C.S_H))
W.xn_produce(e, lambda: C.init_fill(e, P + 2, W.W_MW, W.R0 + 48, 96))
rt(1)
M.body(e, 84, 86, 88)
e.label("L_end")
if PROF:
    e("s_cmp_ge_u32 s2, 256")
    e("s_cbranch_scc1 L_end2")
    rt(5, 6)
    e.label("L_end2")
e("s_endpgm")
e.raw('.section .rodata,"a"')
for name, nv, acc in ((K1, 512, 256),):
    e.raw(""".p2align 6
.amdhsa_kernel %s
  .amdhsa_next_free_vgpr %d
  .amdhsa_next_free_sgpr 102
  .amdhsa_accum_offset %d
  .amdhsa_group_segment_fixed_size 0
  .amdhsa_kernarg_size 120
  .amdhsa_user_sgpr_count 2
  .amdhsa_user_sgpr_kernarg_segment_ptr 1
  .amdhsa_system_sgpr_workgroup_id_x 1
.end_amdhsa_kernel""" % (name, nv, acc))
out = sys.argv[1] if len(sys.argv) > 1 and not sys.argv[1].startswith("opt:") else "/code/%s.s" % BASE
open(out, "w").write(e.text())
print("nops inserted:", e.nops_inserted, "lines:", len(e.lines), "->", out)
```

```python
from asmlib import Emitter, v, a, s
import struct

WS_BYTES = 0x10000000
PB_OFF = 0x0000000
SYNC_OFF = 0x0080000
HIST_OFF = 0x0100000
FLAG_OFF = 0x0190000
STAMP_OFF = 0x01A0000
SLAB_OFF = 0x1000000
SLAB_ST = 0x82100
MB_IN = 0x80000
FL_IN = 0x82000
OOB = 0x40000000

L_MEMI = 0
L_PX = 8192
RS = 72
L_QX = 16384
L_KMX = L_QX + 2304
L_OX = L_KMX + 2304
L_SEL = L_OX + 2048
L_WL = 32768
LDS_BYTES = 163840

S_WS = 8
S_W = 12
S_DBG = 16
S_H = 20
S_WAVE = 21
S_STEP = 22
S_SLAB = 23
S_SLABN = 24
S_KXO = 25
S_KX = 29
S_VX = 30
S_HIST = 31
S_TMO = 32
S_SCALE = 33
S_PLO = 34
S_PHI = 35
S_T0 = 36
S_T1 = 37
S_T2 = 38
S_VXO = 39
S_BIG = 40
S_PR = 6
S_MB = 7
S_4K = 26
S_PAR = 27
S_RDY = 62
S_NPAR = 28
S_TAG = 60
S_OOB = 61
S_FW = 88
S_FR = 89
S_NEXT = 90
S_SPIN = 91
S_LIM = 94
S_W3 = 95
S_ONES = 4
S_PTR = 44
S_ST = 64

C_PF = 0
C_IDX, C_MW, C_L16, C_WL, C_QW, C_QR, C_KW, C_X2, C_PW, C_MP, FREE1, HPEND, C_FL, T0, JUNK = range(1, 16)
AM = 16
ACCQ = 48
ACCK = 56
ACCV = 64
QB = 72
XA = 88
XB = 104
VX = 120
VW = 128

TMO_LIMIT = 200000
OPT = {}


def f32bits(x):
    return struct.unpack("<I", struct.pack("<f", x))[0]


def lin(e, dst, coefs, const=0, tmp=T0, src=0):
    e("v_mov_b32 %s, 0x%x" % (v(dst), const))
    for k, c in sorted(coefs.items()):
        if c == 0:
            continue
        assert c < (1 << 24)
        e("v_bfe_u32 %s, %s, %d, 1" % (v(tmp), v(src), k))
        e("s_mov_b32 %s, 0x%x" % (s(S_T2), c))
        e("v_mad_u32_u24 %s, %s, %s, %s" % (v(dst), v(tmp), s(S_T2), v(dst)))


def srd(e, d, ptr, nbytes):
    e("s_mov_b32 %s, %s" % (s(d), s(ptr)))
    e("s_and_b32 %s, %s, 0xffff" % (s(d + 1), s(ptr + 1)))
    e("s_mov_b32 %s, 0x%x" % (s(d + 2), nbytes))
    e("s_mov_b32 %s, 0x20000" % s(d + 3))


LDS_OPS = {
    ("Q", 0, 0): XB + 0, ("Q", 1, 0): XB + 8, ("Q", 0, 1): XA + 0, ("Q", 1, 1): XA + 8,
    ("K", 0, 0): QB + 0, ("K", 1, 0): QB + 8,
    ("Q", 0, 7): XA + 0, ("Q", 1, 7): XA + 8,
    ("K", 0, 2): QB + 0, ("K", 1, 2): QB + 8,
    ("K", 0, 7): XA + 0, ("K", 1, 7): XA + 8,
    ("O", 2, 3): XA + 0, ("O", 3, 1): XA + 8, ("O", 3, 2): QB + 0, ("O", 3, 3): QB + 8,
}
OLDS = [("O", 2, 3), ("O", 3, 1), ("O", 3, 2), ("O", 3, 3)]
LDS_SLOT = {k: i for i, k in enumerate(LDS_OPS)}
ALL_OPS = [(m, T, u) for m in "QKV" for u in range(8) for T in range(2)] + [("O", q, u) for u in range(4) for q in range(4)]
RES = {}
_n = 0
for op in ALL_OPS:
    if op in LDS_OPS:
        continue
    RES[op] = ("a", _n * 8) if _n < 32 else ("v", VW + (_n - 32) * 8)
    _n += 1
assert _n == 48


def opreg(op):
    if op in LDS_OPS:
        return v(LDS_OPS[op], 8)
    k, r = RES[op]
    return (a if k == "a" else v)(r, 8)


def lds_fetch_ins(op):
    r = LDS_OPS[op]
    off = LDS_SLOT[op] * 2048
    return ["ds_read_b128 %s, %s offset:%d" % (v(r, 4), v(C_WL), off),
            "ds_read_b128 %s, %s offset:%d" % (v(r + 4, 4), v(C_WL), off + 1024)]


def lds_fetch(e, op):
    for t in lds_fetch_ins(op):
        e(t)


def rowpart(rho, b, hi=32):
    return hi * (rho >> 2) + 8 * (rho & 1) + 2 * ((rho >> 1) & 1) + b


class VmQ:
    def __init__(self, e):
        self.e, self.q = e, []

    def add(self, tag):
        self.q.append(tag)
        assert len(self.q) <= 63

    def wait(self, tag):
        if tag not in self.q:
            return
        last = len(self.q) - 1 - self.q[::-1].index(tag)
        self.e("s_waitcnt vmcnt(%d)" % (len(self.q) - 1 - last))
        self.q = self.q[last + 1:]


def staged_load(e, chunks, ptrs, srds, swz_bits, dma_k, lane_f, row_lane, blk_xor_wave, reads, side=None, pre=None, nslot=3):
    AD, AR = 16, 20
    TT = 28
    e("v_lshrrev_b32 %s, 6, v0" % v(TT))
    e("v_bfe_u32 %s, v0, 4, 2" % v(TT + 1))
    e("v_lshl_add_u32 %s, %s, 5, %s" % (v(TT), v(TT), v(TT + 1)))
    e("v_and_b32 %s, 15, v0" % v(AD))
    e("v_lshlrev_b32 %s, 4, %s" % (v(AD), v(AD)))
    e("v_lshl_add_u32 %s, %s, 13, %s" % (v(AD), v(TT), v(AD)))
    e("v_bfe_u32 %s, v0, 4, %d" % (v(TT + 1), swz_bits))
    e("v_lshlrev_b32 %s, 5, %s" % (v(TT + 1), v(TT + 1)))
    e("v_xor_b32 %s, %s, %s" % (v(AD), v(AD), v(TT + 1)))
    for k in range(1, 4):
        e("v_xor_b32 %s, %d, %s" % (v(AD + k), dma_k(k), v(AD)))
    S_LB, S_GB = 28, 3
    e("s_add_u32 %s, %s, 1" % (s(S_LB), s(S_WAVE)))
    e("s_lshl_b32 %s, %s, 15" % (s(S_LB), s(S_LB)))
    e("s_lshl_b32 %s, %s, 8" % (s(S_GB), s(S_H)))
    q = VmQ(e)
    built = set()

    def dma(c):
        m, ci = chunks[c]
        if m not in built:
            srd(e, srds[m], ptrs[m], 512 * 4096 * 2)
            built.add(m)
        for i in range(8):
            e("s_add_u32 m0, %s, %d" % (s(S_LB), (c % nslot) * 8192 + i * 1024))
            e("s_add_u32 %s, %s, 0x%x" % (s(S_T1), s(S_GB), (128 * ci + 4 * i) * 8192))
            e("buffer_load_dwordx4 %s, %s, %s offen%s lds" % (v(AD + (i & 3)), s(srds[m], 4), s(S_T1), OPT.get("cnt", "") if blk_xor_wave else OPT.get("wnt", "")))
            q.add(("c", c))
    for c in range(nslot):
        dma(c)
    lin(e, AR, {0: 8, 1: 16, **{k: c * 256 for k, c in row_lane.items()}})
    lin(e, TT, lane_f)
    lin(e, TT + 1, {6: 64, 7: 128})
    e("v_xor_b32 %s, %s, %s" % (v(TT), v(TT), v(TT + 1)))
    e("v_add_u32 %s, %s, %s" % (v(TT), v(TT), v(AR)))
    for k in range(4):
        if blk_xor_wave:
            e("s_xor_b32 %s, %s, %d" % (s(S_T0), s(S_WAVE), k))
            e("s_add_u32 %s, %s, 1" % (s(S_T0), s(S_T0)))
            e("s_lshl_b32 %s, %s, 15" % (s(S_T0), s(S_T0)))
            e("v_add_u32 %s, %s, %s" % (v(AR + 2 * k), s(S_T0), v(TT)))
        else:
            e("v_add_u32 %s, 0x%x, %s" % (v(AR + 2 * k), (k + 1) << 15, v(TT)))
        e("v_xor_b32 %s, 32, %s" % (v(AR + 2 * k + 1), v(AR + 2 * k)))
    if pre:
        pre(q)
    for c, (m, ci) in enumerate(chunks):
        if side:
            side(c, q)
        q.wait(("c", c))
        e("s_barrier")
        for n_, (dst, k, T, ro) in enumerate(reads(m, ci)):
            if n_ == 12:
                e("s_waitcnt lgkmcnt(4)")
            e("ds_read_b64_tr_b16 %s, %s offset:%d" % (dst, v(AR + 2 * k + T), (c % nslot) * 8192 + ro * 256))
        e("s_waitcnt lgkmcnt(0)")
        e("s_barrier")
        if c + nslot < len(chunks):
            dma(c + nslot)
    return q


HOLD = {op: 32 + 8 * i for i, op in enumerate(o for o in LDS_OPS if o[0] != "O")}


def load_weights(e, P_WQ, P_WK, P_WV, P_WO, pre=None, mid=None):
    e.comment("---- load weight operands: Wq/Wk/Wv by LDS-DMA + transposing reads, Wo by dword loads + v_perm")
    VOFO = FREE1
    RING, TMP8 = 32, 120
    ptr = {"Q": P_WQ, "K": P_WK, "V": P_WV, "O": P_WO}
    SRDS = {"Q": 96, "K": 88, "V": 60, "O": 92}
    S_OB = 29

    def pre2(q):
        lin(e, VOFO, {0: 4, 1: 8, 2: 16, 3: 32, 4: 2 * 1024, 5: 4 * 1024, 6: 256, 7: 512})
        srd(e, SRDS["O"], ptr["O"], 512 * 4096 * 2)
        e("s_lshl_b32 %s, %s, 17" % (s(S_OB), s(S_H)))
        o_issue(0, q)
        pre(q)

    def reads(m, ci):
        tau, hi = ci >> 1, ci & 1
        out = []
        for k in range(4):
            u = 2 * k + tau
            for T in range(2):
                op = (m, T, u)
                for pr in range(2):
                    if op in HOLD:
                        dst = v(HOLD[op] + 4 * hi + 2 * pr, 2)
                    else:
                        kind, r = RES[op]
                        dst = (a if kind == "a" else v)(r + 4 * hi + 2 * pr, 2)
                    out.append((dst, k, T, 2 * pr))
        return out

    GORD = [7, 5, 3, 6, 4, 2, 1, 0]

    def o_issue(gi, q):
        g = GORD[gi]
        u = g >> 1
        base = (32, 48, 80)[gi % 3]
        e("s_xor_b32 %s, %s, %d" % (s(S_T0), s(S_WAVE), u))
        e("s_lshl_b32 %s, %s, 15" % (s(S_T0), s(S_T0)))
        e("s_add_u32 %s, %s, %s" % (s(S_T0), s(S_T0), s(S_OB)))
        for k in range(2):
            qq = 2 * (g & 1) + k
            for pr in range(4):
                for b in range(2):
                    row = 16 * b + 8 * (pr >> 1) + (pr & 1)
                    e("s_add_u32 %s, %s, 0x%x" % (s(S_T1), s(S_T0), row * 1024 + qq * 64))
                    e("buffer_load_dword %s, %s, %s, %s offen%s" % (v(base + k * 8 + pr * 2 + b), v(VOFO), s(SRDS["O"], 4), s(S_T1), OPT.get("ont", "")))
                    q.add(("o", g))

    def o_consume(gi, q):
        g = GORD[gi]
        q.wait(("o", g))
        base = (32, 48, 80)[gi % 3]
        for k in range(2):
            op = ("O", 2 * (g & 1) + k, g >> 1)
            dst = TMP8 if op in LDS_OPS else RES[op][1]
            assert op in LDS_OPS or RES[op][0] == "v"
            for pr in range(4):
                for hf in range(2):
                    e("v_perm_b32 %s, %s, %s, %s" % (v(dst + 2 * pr + hf), v(base + k * 8 + 2 * pr + 1), v(base + k * 8 + 2 * pr), s(S_PHI if hf else S_PLO)))
            if op in LDS_OPS:
                off = LDS_SLOT[op] * 2048
                assert off >= 24576
                e("ds_write_b128 %s, %s offset:%d" % (v(C_WL), v(TMP8, 4), off))
                e("ds_write_b128 %s, %s offset:%d" % (v(C_WL), v(TMP8 + 4, 4), off + 1024))
                e("s_waitcnt lgkmcnt(0)")

    def side(c, q):
        if 2 <= c < 10 and not OPT.get("noo"):
            o_consume(c - 2, q)
        if 1 <= c < 8 and not OPT.get("noo"):
            o_issue(c, q)
        early_start(e, c, q)

    chunks = [(m, ci) for m in "VKQ" for ci in range(4)]
    staged_load(e, chunks, ptr, SRDS, 1, lambda k: k << 6, {2: 32, 4: 64, 3: 128}, {5: 16, 3: 8, 4: 4, 2: 1}, True, reads, side, pre2, OPT.get("nslot", 3))
    for op, r in HOLD.items():
        off = LDS_SLOT[op] * 2048
        e("ds_write_b128 %s, %s offset:%d" % (v(C_WL), v(r, 4), off))
        e("ds_write_b128 %s, %s offset:%d" % (v(C_WL), v(r + 4, 4), off + 1024))
        if LDS_SLOT[op] % 4 == 3:
            e("s_waitcnt lgkmcnt(0)")
    e("s_waitcnt lgkmcnt(0)")


def setup_consts(e):
    T1, T2 = 104, 105
    AM = 100
    lin(e, C_IDX, {1: 0xEEEE - 0x4444}, 0x4444)
    lin(e, C_L16, {k: 16 << k for k in range(6)})
    lin(e, C_MW, {**{k: 16 << k for k in range(6)}, 6: 2048, 7: 4096})
    lin(e, C_WL, {**{k: 16 << k for k in range(6)}, 6: 32768, 7: 65536}, L_WL)
    lin(e, C_QW, {0: 4, 1: 8, 2: 16, 3: 32, 4: 2 * RS * 4, 5: 4 * RS * 4, 6: 64, 7: 128}, L_QX)
    lin(e, C_QR, {0: RS * 4, 2: 2 * RS * 4, 3: 4 * RS * 4, 4: 16, 5: 32}, L_QX)
    e("v_add_u32 %s, %d, %s" % (v(C_KW), L_KMX - L_QX, v(C_QW)))
    e("v_xor_b32 %s, 0x1000, %s" % (v(C_X2), v(C_MW)))
    lin(e, T1, {3: 1, 4: 2, 5: 4, 6: 8, 7: 16})
    e("v_add_u32 %s, %s, %s" % (v(T1), s(S_H), v(T1)))
    e("v_and_b32 %s, 31, %s" % (v(T1), v(T1)))
    e("v_lshlrev_b32 %s, 6, %s" % (v(T1), v(T1)))
    lin(e, C_PW, {0: 8, 1: 16, 2: 32, 3: 8192, 4: 2 * 8192, 5: 4 * 8192, 6: 8 * 8192, 7: 16 * 8192}, PB_OFF)
    e("v_add_u32 %s, %s, %s" % (v(C_PW), v(C_PW), v(T1)))
    mp_addr(e, C_MP, T1, T2)
    e("s_lshl_b32 %s, %s, 13" % (s(S_PR), s(S_H)))
    e("s_add_u32 %s, %s, 0x%x" % (s(S_PR), s(S_PR), PB_OFF))
    e("s_mov_b32 %s, 4096" % s(S_4K))
    e("v_and_b32 %s, 15, v0" % v(T1))
    for q in range(4):
        e("v_mov_b32 %s, 0" % v(AM + q))
        e("v_mov_b32 %s, 0x3f80" % v(T2))
        e("v_cmp_eq_u32 vcc, %d, %s" % (4 * q, v(T1)))
        e("v_cndmask_b32 %s, %s, %s, vcc" % (v(AM + q), v(AM + q), v(T2)))
        e("v_mov_b32 %s, 0x3f800000" % v(T2))
        e("v_cmp_eq_u32 vcc, %d, %s" % (4 * q + 1, v(T1)))
        e("v_cndmask_b32 %s, %s, %s, vcc" % (v(AM + q), v(AM + q), v(T2)))
    e("ds_write_b128 %s, %s offset:%d" % (v(C_L16), v(AM, 4), L_SEL))
    e("s_mov_b32 %s, 0x05040100" % s(S_PLO))
    e("s_mov_b32 %s, 0x07060302" % s(S_PHI))
    e("s_mov_b32 %s, 0x%x" % (s(S_SCALE), f32bits(128 ** -0.5 * 1.4426950408889634)))
    e("s_mov_b32 %s, 0x%x" % (s(S_BIG), f32bits(OPT.get('big', 2.0 ** 30))))
    e("s_mov_b32 %s, 0" % s(S_TMO))
    e("s_mov_b32 %s, 0x3f803f80" % s(S_ONES))
    e("s_mov_b32 %s, 0x3f803f80" % s(S_ONES + 1))
    e("s_lshl_b32 %s, %s, 14" % (s(S_T0), s(S_H)))
    e("s_lshr_b32 %s, %s, 1" % (s(S_T1), s(S_WAVE)))
    e("s_lshl_b32 %s, %s, 12" % (s(S_T1), s(S_T1)))
    e("s_add_u32 %s, %s, %s" % (s(S_KXO), s(S_T0), s(S_T1)))
    e("s_lshl_b32 %s, %s, 11" % (s(S_T1), s(S_WAVE)))
    e("s_add_u32 %s, %s, %s" % (s(S_VXO), s(S_T0), s(S_T1)))
    e("s_add_u32 %s, %s, 8192" % (s(S_VXO), s(S_VXO)))


def setup_pf(e):
    T1, T2 = 104, 105
    lin(e, T1, {0: 128, 1: 256, 2: 512, 3: 1024, 4: 2048, 6: 4096, 7: 8192})
    e("s_lshl_b32 %s, %s, 14" % (s(S_T0), s(S_H)))
    e("v_add_u32 %s, %s, %s" % (v(T1), s(S_T0), v(T1)))
    e("s_lshl_b32 %s, %s, 8" % (s(S_T0), s(S_H)))
    e("s_lshr_b32 %s, %s, 1" % (s(S_T1), s(S_WAVE)))
    e("s_lshl_b32 %s, %s, 7" % (s(S_T1), s(S_T1)))
    e("s_add_u32 %s, %s, %s" % (s(S_T0), s(S_T0), s(S_T1)))
    e("s_add_u32 %s, %s, 0x%x" % (s(S_T0), s(S_T0), SLAB_ST + MB_IN))
    e("v_and_b32 %s, 63, v0" % v(T0))
    e("v_mov_b32 %s, 0x%x" % (v(T2), OOB))
    e("v_cmp_lt_u32 vcc, 32, %s" % v(T0))
    e("v_cndmask_b32 %s, %s, %s, vcc" % (v(T1), v(T1), v(T2)))
    e("v_mov_b32 %s, %s" % (v(T2), s(S_T0)))
    e("v_cmp_eq_u32 vcc, 32, %s" % v(T0))
    e("v_cndmask_b32 %s, %s, %s, vcc" % (v(T1), v(T1), v(T2)))
    e("s_lshl_b32 %s, %s, 2" % (s(S_T0), s(S_H)))
    e("s_add_u32 %s, %s, 0x%x" % (s(S_T0), s(S_T0), SLAB_ST + FL_IN))
    e("v_mov_b32 %s, %s" % (v(T2), s(S_T0)))
    e("v_cmp_eq_u32 vcc, 33, %s" % v(T0))
    e("v_cndmask_b32 %s, %s, %s, vcc" % (v(C_PF), v(T1), v(T2)))


def mp_addr(e, dst, T1, T2):
    lin(e, dst, {0: 8, 1: 32, 4: 16, 5: 4, 6: 2048, 7: 4096}, MB_IN)
    e("v_mov_b32 %s, %s" % (v(T2), s(S_H)))
    lin(e, T1, {0: 256, 1: 64, 2: 128, 3: 512, 4: 1024}, src=T2)
    e("v_add_u32 %s, %s, %s" % (v(dst), v(T1), v(dst)))
    e("v_and_b32 %s, 12, v0" % v(T1))
    e("v_cmp_ne_u32 vcc, 0, %s" % v(T1))
    e("v_mov_b32 %s, 0x%x" % (v(T1), OOB))
    e("v_cndmask_b32 %s, %s, %s, vcc" % (v(dst), v(dst), v(T1)))


def mem0_load(e, P_MEM0, dst, T1, T2, TH, SR):
    srd(e, SR, P_MEM0, 8192)
    lin(e, T1, {0: 8, 1: 16, 2: 0x10000, 3: 0x10000, 4: 1024, 5: 4, 6: 64, 7: 128})
    e("v_mov_b32 %s, %s" % (v(TH), s(S_H)))
    lin(e, T2, {0: 32, 1: 2048, 2: 4096, 3: 256, 4: 512}, src=TH)
    e("v_add_u32 %s, %s, %s" % (v(T1), v(T1), v(T2)))
    e("buffer_load_dword %s, %s, %s, 0 offen" % (v(dst), v(T1), s(SR, 4)))


def init_fill(e, P_MEM0, MW, B, SR):
    M1, T1, T2, TH, MP, HP = B, B + 4, B + 5, B + 6, B + 7, B + 8
    ws = s(S_WS, 4)
    mem0_load(e, P_MEM0, HP, T1, T2, TH, SR)
    for k in range(4):
        e("v_mov_b32 %s, -1" % v(M1 + k))

    def fill8k(so):
        e("buffer_store_dwordx4 %s, %s, %s, %s offen sc1" % (v(M1, 4), v(MW), ws, s(so)))
        e("buffer_store_dwordx4 %s, %s, %s, %s offen offset:1024 sc1" % (v(M1, 4), v(MW), ws, s(so)))
    e("s_lshl_b32 %s, %s, 13" % (s(S_T0), s(S_H)))
    e("s_add_u32 %s, %s, 0x%x" % (s(S_T0), s(S_T0), PB_OFF))
    fill8k(S_T0)
    e("s_lshl_b32 %s, %s, 14" % (s(S_T0), s(S_H)))
    e("s_add_u32 %s, %s, 0x%x" % (s(S_T0), s(S_T0), HIST_OFF))
    e("s_add_u32 %s, %s, 0x2000" % (s(S_T1), s(S_T0)))
    fill8k(S_T0); fill8k(S_T1)
    e("s_mul_i32 %s, %s, 0x%x" % (s(S_T0), s(S_H), 2 * SLAB_ST))
    e("s_add_u32 %s, %s, 0x%x" % (s(S_T0), s(S_T0), SLAB_OFF + SLAB_ST + MB_IN + (0x4000000 if OPT.get("solo") else 0)))
    e("s_add_u32 %s, %s, 0x%x" % (s(S_T1), s(S_T0), SLAB_ST))
    fill8k(S_T0); fill8k(S_T1)
    e("v_lshlrev_b32 %s, 2, v0" % v(T1))
    e("s_lshl_b32 %s, %s, 10" % (s(S_T0), s(S_H)))
    for base in (FLAG_OFF + 0x4000, 0x1B0000, 0x1B8000):
        e("s_add_u32 %s, %s, 0x%x" % (s(S_T1), s(S_T0), base))
        e("buffer_store_dword %s, %s, %s, %s offen sc1" % (v(M1), v(T1), ws, s(S_T1)))
    e("v_mov_b32 %s, 0x%x" % (v(T2), OOB))
    e("v_cmp_lt_u32 vcc, 63, v0")
    e("v_cndmask_b32 %s, %s, %s, vcc" % (v(T1), v(T1), v(T2)))
    e("v_mov_b32 %s, %d" % (v(M1 + 9), 0 if OPT.get("kvflags", 1) else 1))
    e("s_lshl_b32 %s, %s, 8" % (s(S_T0), s(S_H)))
    e("s_add_u32 %s, %s, 0x%x" % (s(S_T1), s(S_T0), FLAG_OFF + 0x2000))
    e("buffer_store_dword %s, %s, %s, %s offen sc1" % (v(M1 + 9), v(T1), ws, s(S_T1)))
    e("s_mul_i32 %s, %s, 0x%x" % (s(S_T0), s(S_H), 2 * SLAB_ST))
    e("s_add_u32 %s, %s, 0x%x" % (s(S_T0), s(S_T0), SLAB_OFF + FL_IN))
    e("s_add_u32 %s, %s, 0x%x" % (s(S_T1), s(S_T0), SLAB_ST))
    e("buffer_store_dword %s, %s, %s, %s offen sc1" % (v(M1 + 9), v(T1), ws, s(S_T0)))
    e("buffer_store_dword %s, %s, %s, %s offen sc1" % (v(M1 + 9), v(T1), ws, s(S_T1)))
    mp_addr(e, MP, T1, T2)
    e("s_waitcnt vmcnt(16)")
    e("s_mov_b32 %s, 0x%x" % (s(S_T0), SLAB_OFF))
    e("buffer_store_dword %s, %s, %s, %s offen sc1" % (v(HP), v(MP), ws, s(S_T0)))


def ready_publish(e, T1, T2):
    e("s_waitcnt vmcnt(0)")
    e("s_barrier")
    e("v_mov_b32 %s, 1" % v(T1))
    e("s_lshl_b32 %s, %s, 2" % (s(S_T1), s(S_H)))
    e("v_lshlrev_b32 %s, 20, v0" % v(T2))
    e("buffer_store_dword %s, %s, %s, %s offen sc1" % (v(T1), v(T2), s(S_DBG, 4), s(S_T1)))


def xcc_publish(e, q):
    T1, T2 = 30, 31
    e("s_getreg_b32 %s, hwreg(HW_REG_XCC_ID)" % s(S_T0))
    e("s_and_b32 %s, %s, 15" % (s(S_T0), s(S_T0)))
    e("s_or_b32 %s, %s, 0x100" % (s(S_T0), s(S_T0)))
    e("v_mov_b32 %s, %s" % (v(T1), s(S_T0)))
    e("s_lshl_b32 %s, %s, 2" % (s(S_T1), s(S_H)))
    e("v_lshlrev_b32 %s, 20, v0" % v(T2))
    e("buffer_store_dword %s, %s, %s, %s offen offset:128 sc1" % (v(T1), v(T2), s(S_DBG, 4), s(S_T1)))
    q.add("hs")


S_MODE = 41


def early_start(e, c, q):
    T1, T2 = 30, 31
    ws = s(S_WS, 4)
    hsl = "buffer_load_dword %s, %s, %s, 0 offen sc1" % (v(T1), v(T2), s(S_DBG, 4))
    pfi = lambda: e("buffer_load_dword %s, %s, %s, %s offen sc1" % (v(JUNK), v(C_PF), ws, s(S_MB)))
    if c == 8:
        e("v_lshrrev_b32 %s, 2, %s" % (v(T2), v(C_L16)))
        e(hsl)
        q.add("hs2")
    if c == 9:
        e.comment("---- buffers initialised (debug[0..31]) and all 32 chain workgroups reported their XCC id (debug[32..63]);")
        q.wait("hs2")
        e("s_mov_b32 %s, 1" % s(S_MODE))
        e.label("L_HS")
        e("v_cmp_eq_u32 vcc, 0, %s" % v(T1))
        e("s_cbranch_vccz L_HS_ok")
        e(hsl)
        e("s_add_u32 %s, %s, 1" % (s(S_TMO), s(S_TMO)))
        e("s_cmp_gt_u32 %s, %d" % (s(S_TMO), TMO_LIMIT))
        e("s_waitcnt vmcnt(0)")
        e("s_cbranch_scc0 L_HS")
        e("s_branch L_HS_done")
        e.label("L_HS_ok")
        e("v_readlane_b32 %s, %s, 63" % (s(S_T0), v(T1)))
        e("v_cmp_ne_u32 vcc, %s, %s" % (s(S_T0), v(T1)))
        e("s_nop 1")
        e("s_cmp_lg_u32 vcc_hi, 0")
        e("s_cselect_b32 %s, 1, %d" % (s(S_MODE), OPT.get("forceslow", 0)))
        e.label("L_HS_done")
        e("s_mov_b32 %s, 0x%x" % (s(S_MB), SLAB_OFF - SLAB_ST))
        pfi()
        q.add("pf0")
    if c == 11:
        q.wait("pf0")
        e.label("L_F0")
        e("v_readlane_b32 %s, %s, 33" % (s(S_T0), v(JUNK)))
        e("s_nop 1")
        e("s_cmp_lg_u32 %s, 0" % s(S_T0))
        e("s_cbranch_scc1 L_F0_ok")
        pfi()
        e("s_add_u32 %s, %s, 1" % (s(S_TMO), s(S_TMO)))
        e("s_cmp_gt_u32 %s, %d" % (s(S_TMO), TMO_LIMIT))
        e("s_waitcnt vmcnt(0)")
        e("s_cbranch_scc0 L_F0")
        e.label("L_F0_ok")
        e("s_mov_b32 %s, 0x%x" % (s(S_MB), SLAB_OFF))
        pfi()
        q.add("pf1")


def smf_ins(acc, aop, op):
    return "v_smfmac_f32_16x16x64_bf16 %s, %s, %s, %s" % (v(acc, 4), v(aop, 4), opreg(op), v(C_IDX))


def stamp(e, i, on):
    if on:
        e("s_memtime %s" % s(S_ST + 2 * i, 2))


am = lambda u: AM + 4 * u


def idle_prep_ins():
    out = []
    for op in (("Q", 0, 0), ("Q", 1, 0), ("Q", 0, 1), ("Q", 1, 1), ("K", 0, 0), ("K", 1, 0)):
        out += lds_fetch_ins(op)
    z = ["v_mov_b64 %s, 0" % v(r, 2) for r in range(ACCQ, ACCQ + 24, 2)]
    return out, z


def delay(e, cyc):
    n = cyc // 4
    while n > 0:
        k = min(n, 16)
        e("s_nop %d" % (k - 1))
        n -= k


def main_loop(e, tag, sc, nsteps, stamps=False):
    L = lambda n: "L_%s_%s" % (tag, n)
    ws = s(S_WS, 4)
    solo = OPT.get("solo")
    trace = OPT.get("trace")
    acc = {"Q": ACCQ, "K": ACCK, "V": ACCV}
    S = lambda m, T, u: smf_ins(acc[m] + 4 * T, am(u), (m, T, u))
    Q = lambda T, u: S("Q", T, u)
    K = lambda T, u: S("K", T, u)
    V = lambda T, u: S("V", T, u)
    lg = lambda n: "s_waitcnt lgkmcnt(%d)" % n
    BAR = "s_barrier"
    add = lambda b, r: "v_add_f32 %s, %s, %s" % (v(b + r), v(b + r), v(b + r + 2))
    cvt = lambda d, x, y: "v_cvt_pk_bf16_f32 %s, %s, %s" % (v(d), v(x), v(y))
    ex = lambda r: "v_exp_f32 %s, %s" % (v(r), v(r))
    mf32 = lambda d, A, B, first: "v_mfma_f32_16x16x32_bf16 %s, %s, %s, %s" % (v(d, 4), v(A, 4), v(B, 4), "0" if first else v(d, 4))
    mf16 = lambda d, A, B: "v_mfma_f32_16x16x16_bf16 %s, %s, %s, %s" % (v(d, 4), v(A, 2), v(B, 2), v(d, 4))

    def run(sched, extra=None):
        for i_, (m_, rest) in enumerate(sched):
            e(m_)
            for x in (extra or {}).get(i_, []) + rest:
                if x.endswith(":"):
                    e.label(x[:-1])
                else:
                    e(x)
    e.label(L("start"))
    e("s_mov_b32 %s, 0" % s(S_STEP))
    e("s_mov_b32 %s, 0x%x" % (s(S_SLAB), SLAB_OFF))
    e("s_mov_b32 %s, 0" % s(S_PAR))
    e("s_mov_b32 %s, 0x%x" % (s(S_HIST), HIST_OFF - MB_IN))
    e("s_mov_b32 %s, 0x%x" % (s(S_OOB), OOB))
    e("s_mov_b32 %s, 0" % s(S_SPIN))
    f, z = idle_prep_ins()
    for t in f + z:
        e(t)
    mldp = lambda P: ["buffer_load_dwordx4 %s, %s, %s, %s offen sc1" % (v(P, 4), v(C_MW), ws, s(S_MB)),
                      "buffer_load_dwordx4 %s, %s, %s, %s offen offset:1024 sc1" % (v(P + 4, 4), v(C_MW), ws, s(S_MB))]
    mld = mldp(AM)
    e("s_add_u32 %s, %s, 0x%x" % (s(S_MB), s(S_SLAB), MB_IN))
    for t in mld:
        e(t)
    e("s_waitcnt vmcnt(2)")
    e.label(L("step"))
    e("v_readlane_b32 %s, %s, 33" % (s(S_T0), v(JUNK)))
    e("s_add_u32 %s, %s, 0x%x" % (s(S_SLABN), s(S_SLAB), SLAB_ST))
    e("s_cmp_eq_u32 %s, 0" % s(S_T0))
    e("s_cbranch_scc1 %s" % L("refresh"))
    e.label(L("fresh"))
    e("s_add_u32 %s, %s, %s" % (s(S_KX), s(S_SLAB), s(S_KXO)))
    e("s_add_u32 %s, %s, %s" % (s(S_VX), s(S_SLAB), s(S_VXO)))
    e("s_xor_b32 %s, %s, 1" % (s(S_NPAR), s(S_PAR)))
    e("s_add_u32 %s, %s, 1" % (s(S_NEXT), s(S_STEP)))
    tr = 2
    delay(e, OPT.get("pm", 64))
    e.label(L("retrym"))
    for x in mld:
        e(x)
    e("s_add_u32 %s, %s, 1" % (s(S_TMO), s(S_TMO)))
    e("s_cmp_gt_u32 %s, %d" % (s(S_TMO), TMO_LIMIT))
    e("s_cselect_b32 %s, -1, -2" % s(S_LIM))
    e("v_xor_b32 %s, 0x800, %s" % (v(am(3)), v(C_MW)))
    e("v_xor_b32 %s, 0x1800, %s" % (v(am(7)), v(C_MW)))
    for x in z[:4]:
        e(x)
    e.label(L("waitm"))
    e("s_waitcnt vmcnt(%d) lgkmcnt(0)" % (1 + tr))
    e.label(L("gotm"))
    stamp(e, 0, stamps)
    T1 = am(2)
    mw = ["ds_write_b128 %s, %s offset:%d" % (v(C_MW), v(am(k), 4), L_MEMI + 1024 * k) for k in range(2)]
    PK = ACCK
    pst = lambda q: "buffer_store_dwordx2 %s, %s, %s, %s offen offset:%d%s" % (v(PK + 2 * q, 2), v(C_PW), ws, "0" if q < 2 else s(S_4K), (q & 1) * 2048, sc)
    tg = lambda q: "v_and_or_b32 %s, %s, -2, %s" % (v(PK + 2 * q), v(PK + 2 * q), s(S_TAG))
    kx = lambda ks: "buffer_load_dwordx4 %s, %s, %s, %s offen offset:%d sc1" % (v(XB + 4 * ks, 4), v(C_L16), ws, s(S_KX), ks * 1024)
    vx = lambda T: "buffer_load_dwordx4 %s, %s, %s, %s offen offset:%d sc1" % (v(VX + 4 * T, 4), v(C_L16), ws, s(S_VX), T * 1024)
    amrd = lambda u: "ds_read_b128 %s, %s offset:%d" % (v(am(u), 4), v(C_X2 if u >> 1 == 2 else am(u | 1)), L_MEMI + (u & 1) * 1024)
    q7 = lds_fetch_ins(("Q", 0, 7)) + lds_fetch_ins(("Q", 1, 7))
    k2 = lds_fetch_ins(("K", 0, 2)) + lds_fetch_ins(("K", 1, 2))
    k7 = lds_fetch_ins(("K", 0, 7)) + lds_fetch_ins(("K", 1, 7))
    of = sum([lds_fetch_ins(op) for op in OLDS], [])
    qbrd = lambda ks: "ds_read_b128 %s, %s offset:%d" % (v(QB + 4 * ks, 4), v(C_QR), 64 * ks)
    KM = XA
    kmrd = lambda ks: "ds_read_b128 %s, %s offset:%d" % (v(KM + 4 * ks, 4), v(C_QR), L_KMX - L_QX + 64 * ks)
    SX, SM = ACCQ, ACCQ + 4
    ONES, PX, PM, VM0, VM1 = XB, XB + 4, XB + 8, XB + 10, XB + 12
    TA = XB + 14
    LS, OA, OP = SX, ACCK, SM
    smx = lambda ks: mf32(SX, XB + 4 * ks, QB + 4 * ks, ks == 0)
    smm = lambda ks: mf32(SM, KM + 4 * ks, QB + 4 * ks, ks == 0)
    pf = "buffer_load_dword %s, %s, %s, %s offen sc1" % (v(JUNK), v(C_PF), ws, s(S_SLABN))
    hist = "buffer_store_dword %s, %s, %s, %s offen sc1" % (v(HPEND), v(C_MP), ws, s(S_HIST))
    zw = ["v_mov_b64 %s, 0" % v(r, 2) for r in range(AM, AM + 16, 2)]
    OOP = AM + 12
    oad = ["v_xor_b32 %s, 0x%x, %s" % (v(OOP + 4 * u), u * 2048, v(C_MW)) for u in (1, 3)]
    L_OE = L_PX + 1024
    mx3 = lambda d, x, y, z_: "v_max3_u32 %s, %s, %s, %s" % (v(d), v(x), v(y), v(z_))
    mov0 = lambda r: "v_mov_b32 %s, 0" % v(r)
    early = OPT.get("early", 1)
    e(mx3(T0, AM, AM + 1, AM + 2))
    e("v_max_u32 %s, %s, %s" % (v(T0), v(T0), v(AM + 3)))
    run([
        (Q(0, 0), ["s_waitcnt vmcnt(%d)" % tr, mx3(T0, T0, AM + 4, AM + 5)]),
        (Q(1, 0), [mx3(T0, T0, AM + 6, AM + 7), "v_cmp_lt_u32 vcc, %s, %s" % (s(S_LIM), v(T0))]),
        (Q(0, 1), [mw[0]] + ([] if solo else ["s_cbranch_vccnz %s" % L("retrym")])),
        (Q(1, 1), [mw[1]]),
        (K(0, 0), [kx(0), vx(0)] if early else [kx(0)]),
        (K(1, 0), [kx(1), vx(1)] if early else [kx(1)]),
        (K(0, 1), [kx(2), kx(3)] if early else [kx(2)]),
        (K(1, 1), [lg(0), BAR, amrd(2)]),
        (V(0, 0), [amrd(3)]),
        (V(1, 0), [pf] if early else [kx(3)]),
        (V(0, 1), [amrd(4)]),
        (V(1, 1), [amrd(5), lg(3)]),
        (Q(0, 2), [amrd(6)]),
        (Q(1, 2), [amrd(7), lg(4)]),
        (Q(0, 3), [q7[0]]),
        (Q(1, 3), [q7[1], lg(4)]),
        (Q(0, 4), [q7[2]]),
        (Q(1, 4), [q7[3], lg(4)]),
        (Q(0, 5), [] if early else [vx(0)]),
        (Q(1, 5), [k2[0]]),
        (Q(0, 6), [] if early else [vx(1)]),
        (Q(1, 6), [k2[1], lg(2)]),
        (Q(0, 7), [k2[2]]),
        (Q(1, 7), [k2[3]]),
        (K(0, 3), [k7[0]]),
        (K(1, 3), [k7[1]]),
        (K(0, 4), [k7[2], add(ACCQ, 0), add(ACCQ, 1)]),
        (K(1, 4), [k7[3], add(ACCQ + 4, 0), add(ACCQ + 4, 1)]),
        (K(0, 5), [lg(4), cvt(ACCQ + 2, ACCQ, ACCQ + 4), cvt(ACCQ + 3, ACCQ + 1, ACCQ + 5)]),
        (K(0, 2), ["ds_write2_b32 %s, %s, %s offset0:0 offset1:%d" % (v(C_QW), v(ACCQ + 2), v(ACCQ + 3), RS)]),
        (K(1, 2), [] if early else [pf]),
        (K(1, 5), []),
        (K(0, 6), [hist]),
        (K(1, 6), [lg(0), BAR]),
        (K(0, 7), [qbrd(0)]),
        (K(1, 7), [qbrd(1)]),
        (V(0, 2), [qbrd(2)]),
        (V(1, 2), [qbrd(3), "s_waitcnt vmcnt(2) lgkmcnt(3)"]),
        (smx(0), [lg(2), add(ACCK, 0), add(ACCK, 1)]),
        (smx(1), [lg(1), add(ACCK + 4, 0), add(ACCK + 4, 1)]),
        (smx(2), [lg(0), cvt(ACCK + 2, ACCK, ACCK + 4), cvt(ACCK + 3, ACCK + 1, ACCK + 5)]),
        (smx(3), ["ds_write2_b32 %s, %s, %s offset0:0 offset1:%d" % (v(C_KW), v(ACCK + 2), v(ACCK + 3), RS)]),
        (V(0, 3), ["v_mov_b64 %s, %s" % (v(ONES, 2), s(S_ONES, 2))]),
        (V(1, 3), ["s_nop 1", "v_mov_b64 %s, %s" % (v(ONES + 2, 2), s(S_ONES, 2))]),
        (V(0, 4), [ex(SX)]),
        (V(1, 4), [lg(0), BAR, ex(SX + 1)]),
        (V(0, 5), [kmrd(0), ex(SX + 2)]),
        (V(1, 5), [kmrd(1), ex(SX + 3)]),
        (V(0, 6), [kmrd(2), cvt(PX, SX, SX + 1), cvt(PX + 1, SX + 2, SX + 3)]),
        (V(1, 6), [kmrd(3), "ds_write_b64 %s, %s offset:%d" % (v(C_MW), v(PX, 2), L_PX), lg(4)]),
        (smm(0), [lg(3), mov0(PM + 1), mov0(VM0 + 1)]),
        (smm(1), [lg(2), mov0(VM1 + 1), zw.pop(0)]),
        (smm(2), [lg(1), zw.pop(0), zw.pop(0)]),
        (smm(3), [lg(0), BAR]),
        (V(0, 7), ["ds_read_b64 %s, %s offset:%d" % (v(PX + 2, 2), v(C_X2), L_PX), zw.pop(0)]),
        (V(1, 7), [zw.pop(0), zw.pop(0), "v_mul_f32 %s, %s, %s" % (v(SM), s(S_SCALE), v(SM)), "v_mul_f32 %s, %s, %s" % (v(SM + 1), s(S_SCALE), v(SM + 1)),
                   ex(SM), lg(0)]),
        (mf32(LS, ONES, PX, True), [ex(SM + 1), add(ACCV, 0)]),
        (mf32(OA, VX, PX, True), [cvt(PM, SM, SM + 1), add(ACCV, 1)]),
        (mf32(OA + 4, VX + 4, PX, True), [cvt(VM0, ACCV, ACCV + 1), add(ACCV + 4, 0)]),
        (mf16(LS, ONES, PM), [add(ACCV + 4, 1), cvt(VM1, ACCV + 4, ACCV + 5)]),
        (mf16(OA, VM0, PM), [zw.pop(0), zw.pop(0)]),
        (mf16(OA + 4, VM1, PM), [oad[0], oad[1], "v_rcp_f32 %s, %s" % (v(TA), v(LS))]),
    ])
    assert not zw
    e("v_max_f32 %s, %s, %s" % (v(T0), v(TA), v(LS)))
    e("v_cmp_nge_f32 vcc, %s, %s" % (s(S_BIG), v(T0)))
    for r in (0, 2, 4, 6):
        e("v_pk_mul_f32 %s, %s, %s op_sel_hi:[1,0]" % (v(OA + r, 2), v(OA + r, 2), v(TA, 2)))
    for r in range(4):
        e(cvt(OP + r, OA + r, OA + 4 + r))
    e.label(L("rejoin"))
    e("ds_write_b128 %s, %s offset:%d" % (v(C_MW), v(OP, 4), L_OE))
    WACC = AM
    SO = lambda q, u: smf_ins(WACC + 4 * q, OP if u == 0 else OOP + 4 * u, ("O", q, u))
    ord_ = lambda u: "ds_read_b128 %s, %s offset:%d" % (v(OOP + 4 * u, 4), v(C_X2 if u == 2 else OOP + 4 * u), L_OE)
    SEL, RD = ACCV, ACCV + 4
    wc = lambda q, r: cvt(PK + 2 * q + r, WACC + 4 * q + r, WACC + 4 * q + 2 + r)
    run([
        (SO(0, 0), []),
        (SO(1, 0), []),
        (SO(2, 0), [lg(0), BAR, ord_(1), ord_(2)]),
        (SO(3, 0), [ord_(3), of[0], of[1], lg(4)]),
        (SO(0, 1), [of[2], lg(4)]),
        (SO(0, 2), [of[3], lg(4)]),
        (SO(0, 3), [of[4], "s_cmp_lg_u64 vcc, 0"]),
        (SO(1, 1), [of[5], "s_cselect_b32 %s, %s, %s" % (s(S_TAG), s(S_NPAR), s(S_PAR))]),
        (SO(1, 2), [of[6], wc(0, 0)]),
        (SO(1, 3), [of[7], wc(0, 1), tg(0)]),
        (SO(2, 1), [pst(0)]),
        (SO(2, 2), [lg(4), "s_nop 0", wc(1, 0)]),
        (SO(2, 3), ["ds_read_b128 %s, %s offset:%d" % (v(SEL, 4), v(C_L16), L_SEL), wc(1, 1), tg(1)]),
        (SO(3, 1), [pst(1), lg(1)]),
        (SO(3, 2), ["s_nop 1", wc(2, 0)]),
        (SO(3, 3), [wc(2, 1), tg(2), pst(2), wc(3, 0), wc(3, 1), tg(3), pst(3)]),
    ])
    e.label(L("stored"))
    stamp(e, 1, stamps)
    e("s_cmp_lg_u32 %s, %s" % (s(S_TAG), s(S_PAR)))
    e("s_cbranch_scc1 %s" % L("safe"))
    f, z = idle_prep_ins()
    n0 = OPT.get("n0", 12)
    PD = VX
    pld = lambda P: ["buffer_load_dwordx4 %s, %s, %s, %s offen sc1" % (v(P, 4), v(C_MW), ws, s(S_PR)),
                     "buffer_load_dwordx4 %s, %s, %s, %s offen offset:1024 sc1" % (v(P + 4, 4), v(C_MW), ws, s(S_PR))]
    pub = "buffer_store_dword %s, %s, %s, %s offen%s" % (v(HPEND), v(C_MP), ws, s(S_T0), sc)
    for x in f[:n0]:
        e(x)
    delay(e, OPT.get("d1", 0))
    for q in range(1, 4):
        e("s_cmp_lt_u32 %s, %d" % (s(S_WAVE), q))
        e("s_cbranch_scc1 %s" % L("pollp"))
        delay(e, OPT.get("dp", 56))
    e.label(L("pollp"))
    stamp(e, 4, stamps)
    PB_ = AM + 16
    for x in pld(PD):
        e(x)
    for x in f[n0:] + z[4:8]:
        e(x)
    delay(e, OPT.get("pp", 128))
    for x in pld(PB_):
        e(x)
    e("s_add_u32 %s, %s, 0x%x" % (s(S_MB), s(S_SLABN), MB_IN))
    chk = lambda P: ["v_bitop3_b32 %s, %s, %s, %s bitop3:0x7e" % (v(T0), v(P), v(P + 2), s(S_PAR)),
                     "v_bitop3_b32 %s, %s, %s, %s bitop3:0x7e" % (v(FREE1), v(P + 4), v(P + 6), s(S_PAR)),
                     "v_bitop3_b32 %s, %s, %s, 1 bitop3:0xa8" % (v(T0), v(T0), v(FREE1)),
                     "v_cmp_ne_u32 vcc, 0, %s" % v(T0)]

    def finish():
        for rot in (8, 4):
            for r in (0, 1):
                e("v_add_f32_dpp %s, %s, %s row_ror:%d row_mask:0xf bank_mask:0xf" % (v(RD + r), v(RD + r), v(RD + r), rot))
        e(cvt(HPEND, RD, RD + 1))
        e(pub)

    def attempt(P, base):
        e("s_waitcnt vmcnt(%d) lgkmcnt(0)" % (base + 1))
        e(mf32(RD, SEL, P, True))
        e(chk(P)[0])
        e("s_waitcnt vmcnt(%d)" % base)
        e(mf32(RD, SEL, P + 4, False))
        for x in chk(P)[1:]:
            e(x)
        e("s_nop 2")
        e("s_cmp_eq_u64 vcc, 0")
        e("s_cselect_b32 %s, %s, %s" % (s(S_T0), s(S_HIST if solo else S_SLABN), s(S_OOB)))
        finish()
    attempt(PD, 2)
    if not solo:
        e("s_cbranch_scc1 %s" % L("gotp"))
        e.label(L("retryp"))
        for x in pld(PD):
            e(x)
        attempt(PB_, 3)
        e("s_cbranch_scc1 %s" % L("gotp"))
        for x in pld(PB_):
            e(x)
        attempt(PD, 3)
        e("s_cbranch_scc1 %s" % L("gotp"))
        e("s_add_u32 %s, %s, 1" % (s(S_TMO), s(S_TMO)))
        e("s_cmp_le_u32 %s, %d" % (s(S_TMO), TMO_LIMIT))
        e("s_cbranch_scc1 %s" % L("retryp"))
        e("s_mov_b32 %s, %s" % (s(S_T0), s(S_SLABN)))
        e(pub)
    e.label(L("gotp"))
    stamp(e, 2, stamps)
    e("s_add_u32 %s, %s, 0x2000" % (s(S_HIST), s(S_HIST)))
    e("s_cmp_ge_u32 %s, %d" % (s(S_NEXT), nsteps))
    e("s_cbranch_scc1 %s" % L("last"))
    e("s_mov_b32 %s, %s" % (s(S_SLAB), s(S_SLABN)))
    e("s_mov_b32 %s, %s" % (s(S_STEP), s(S_NEXT)))
    e("s_mov_b32 %s, %s" % (s(S_PAR), s(S_NPAR)))
    for x in z[8:]:
        e(x)
    if trace:
        e("s_memrealtime s[100:101]")
        e("s_memtime s[70:71]")
        e("s_lshl_b32 s3, %s, 2" % s(S_H))
        e("s_add_u32 s3, s3, %s" % s(S_WAVE))
        e("s_lshl_b32 s3, s3, 6")
        e("s_add_u32 s3, s3, %s" % s(S_STEP))
        e("s_lshl_b32 s3, s3, 5")
        e("s_add_u32 s3, s3, 0x200000")
        e("s_waitcnt lgkmcnt(0)")
        for k, r in enumerate((64, 66, 68, 100, 70, 72, 74, S_TMO)):
            e("v_mov_b32 %s, %s" % (v(AM + 8 + k), s(r)))
        e("buffer_store_dwordx4 %s, off, %s, s3" % (v(AM + 8, 4), ws))
        e("buffer_store_dwordx4 %s, off, %s, s3 offset:16" % (v(AM + 12, 4), ws))
    delay(e, OPT.get("dm", 112) - (128 if trace else 0))
    stamp(e, 5, stamps)
    for x in mld:
        e(x)
    e("s_branch %s" % L("step"))
    e.label(L("last"))
    e(hist)
    e("s_branch %s" % L("done"))
    e.label(L("refresh"))
    e("buffer_load_dword %s, %s, %s, %s offen sc1" % (v(JUNK), v(C_PF), ws, s(S_SLAB)))
    e("s_add_u32 %s, %s, 1" % (s(S_TMO), s(S_TMO)))
    e("s_cmp_le_u32 %s, %d" % (s(S_TMO), TMO_LIMIT))
    e("s_waitcnt vmcnt(0)")
    e("s_cbranch_scc1 %s" % L("step"))
    e("s_branch %s" % L("fresh"))
    e.label(L("safe"))
    e.fence(12)
    e("s_waitcnt vmcnt(0) lgkmcnt(0)")
    e("s_barrier")
    W = AM
    for ks in range(4):
        e(qbrd(ks))
        e(kmrd(ks))
    e("s_xor_b32 %s, %s, 0x1000" % (s(S_T0), s(S_KXO)))
    e("s_add_u32 %s, %s, %s" % (s(S_T0), s(S_T0), s(S_SLAB)))
    for ks in range(4):
        e("buffer_load_dwordx4 %s, %s, %s, %s offen offset:%d sc1" % (v(W + 4 * ks, 4), v(C_L16), ws, s(S_KX), ks * 1024))
        e("buffer_load_dwordx4 %s, %s, %s, %s offen offset:%d sc1" % (v(W + 16 + 4 * ks, 4), v(C_L16), ws, s(S_T0), ks * 1024))
    e("s_waitcnt vmcnt(0) lgkmcnt(0)")
    S0, S1, S2 = ACCQ, ACCQ + 4, ACCK
    for (d, src) in ((S0, W), (S1, W + 16), (S2, XA)):
        for ks in range(4):
            e(mf32(d, src + 4 * ks, QB + 4 * ks, ks == 0))
    M0_, M1_ = W, W + 1
    e("v_mul_f32 %s, %s, %s" % (v(S2), s(S_SCALE), v(S2)))
    e("v_mul_f32 %s, %s, %s" % (v(S2 + 1), s(S_SCALE), v(S2 + 1)))
    e("v_max3_f32 %s, %s, %s, %s" % (v(M0_), v(S0), v(S0 + 1), v(S0 + 2)))
    e("v_max3_f32 %s, %s, %s, %s" % (v(M0_), v(M0_), v(S0 + 3), v(S1)))
    e("v_max3_f32 %s, %s, %s, %s" % (v(M0_), v(M0_), v(S1 + 1), v(S1 + 2)))
    e("v_max3_f32 %s, %s, %s, %s" % (v(M0_), v(M0_), v(S1 + 3), v(S2)))
    e("v_max_f32 %s, %s, %s" % (v(M0_), v(M0_), v(S2 + 1)))
    for sw in ("v_permlane16_swap_b32", "v_permlane32_swap_b32"):
        e("v_mov_b32 %s, %s" % (v(M1_), v(M0_)))
        e("%s %s, %s" % (sw, v(M0_), v(M1_)))
        e("v_max_f32 %s, %s, %s" % (v(M0_), v(M0_), v(M1_)))
    for r in [S0 + i for i in range(8)] + [S2, S2 + 1]:
        e("v_sub_f32 %s, %s, %s" % (v(r), v(r), v(M0_)))
        e(ex(r))
    for q in range(4):
        e(cvt(PX + q, S0 + 2 * q, S0 + 2 * q + 1))
    e(cvt(PM, S2, S2 + 1))
    e(mf32(LS, ONES, PX, True)); e(mf32(OA, VX, PX, True)); e(mf32(OA + 4, VX + 4, PX, True))
    e(mf16(LS, ONES, PM)); e(mf16(OA, VM0, PM)); e(mf16(OA + 4, VM1, PM))
    e("v_rcp_f32 %s, %s" % (v(TA), v(LS)))
    for r in range(8):
        e("v_mul_f32 %s, %s, %s" % (v(OA + r), v(OA + r), v(TA)))
    for r in range(4):
        e(cvt(OP + r, OA + r, OA + 4 + r))
    for r in range(AM, AM + 16):
        e(mov0(r))
    for x in oad:
        e(x)
    e("s_mov_b64 vcc, 0")
    e("s_branch %s" % L("rejoin"))
    e.label(L("done"))
```

```python
from asmlib import v, a, s
import chain as C
import worker as W
from chain import srd, f32bits, OOB, S_WS, S_TMO, TMO_LIMIT, S_T0, S_T1, S_PLO, S_PHI

ROUNDS = [57, 62, 64]
ACT_ST = 0x2000
ACT2 = 0x1B0000
LOG2E = 1.4426950408889634

S_M = 20
S_RND = 24
S_LIM = 25
S_K1 = 26
S_P1 = 28
S_TK = 30
S_RV = 40
S_WA, S_WB, S_WD = 64, 68, 76
S_COL = 23
S_HI = 42
PW = 128
DP = 64
RP = 16
KEY = 120
L_RED, L_ACT = 64, 8192


def cvt(d, x, y):
    return "v_cvt_pk_bf16_f32 %s, %s, %s" % (v(d), v(x), v(y))


def rnd(e, r, tmp):
    e(cvt(tmp, r, r))
    e("v_lshlrev_b32 %s, 16, %s" % (v(r), v(tmp)))


def sigmoid(e, d, x):
    e("v_mul_f32 %s, 0x%x, %s" % (v(d), f32bits(-LOG2E), v(x)))
    e("v_exp_f32 %s, %s" % (v(d), v(d)))
    e("v_add_f32 %s, 1.0, %s" % (v(d), v(d)))
    e("v_rcp_f32 %s, %s" % (v(d), v(d)))


def load_keys(e, tag, idxs, sleep):
    ws = s(S_WS, 4)
    e("v_lshlrev_b32 v3, 4, v0")
    L = "L_%s_rp" % tag
    last = idxs == [7]
    if last:
        e("v_cmp_gt_u32 %s, %s, v0" % (s(74, 2), s(S_LIM)))
    e.label(L)
    for i in idxs:
        e("s_mov_b32 %s, 0x%x" % (s(S_T0), W.RVAL + i * 4096))
        e("buffer_load_dwordx4 %s, v3, %s, %s offen sc1" % (v(RP + 4 * i, 4), ws, s(S_T0)))
    e("s_add_u32 %s, %s, 1" % (s(S_TMO), s(S_TMO)))
    e("v_mov_b32 v5, 0")
    e("s_waitcnt vmcnt(0)")
    for i in idxs:
        e("v_max3_u32 v5, v5, %s, %s" % (v(RP + 4 * i), v(RP + 4 * i + 1)))
        e("v_max3_u32 v5, v5, %s, %s" % (v(RP + 4 * i + 2), v(RP + 4 * i + 3)))
    if last:
        e("v_cndmask_b32 v5, 0, v5, %s" % s(74, 2))
    e("s_cmp_gt_u32 %s, %d" % (s(S_TMO), TMO_LIMIT))
    e("s_cbranch_scc1 %s_ok" % L)
    e("v_cmp_eq_u32 vcc, -1, v5")
    if sleep:
        e("s_cbranch_vccz %s_ok" % L)
        e("s_sleep %d" % sleep)
        e("s_branch %s" % L)
    else:
        e("s_cbranch_vccnz %s" % L)
    e.label(L + "_ok")
    for i in idxs:
        b = RP + 4 * i
        e("v_add_f32 %s, %s, %s" % (v(b), v(b), v(b + 1)))
        e("v_add_f32 %s, %s, %s" % (v(b + 2), v(b + 2), v(b + 3)))
        e("v_add_f32 %s, %s, %s" % (v(b), v(b), v(b + 2)))
        rnd(e, b, 5)
        e("v_ashrrev_i32 v5, 31, %s" % v(b))
        e("v_or_b32 v5, 0x80000000, v5")
        e("v_xor_b32 v5, v5, %s" % v(b))
        e("v_and_b32 v5, 0xffff0000, v5")
        e("v_sub_u32 v6, %d, v0" % (2047 - 256 * i))
        e("v_or_b32 %s, v5, v6" % v(KEY + i))
    if last:
        e("v_cndmask_b32 %s, 0, %s, %s" % (v(KEY + 7), v(KEY + 7), s(74, 2)))


def merge2(e, a1, a2, b1, b2, t):
    e("v_min_u32 %s, %s, %s" % (v(t), v(a1), v(b1)))
    e("v_max_u32 %s, %s, %s" % (v(a1), v(a1), v(b1)))
    e("v_max3_u32 %s, %s, %s, %s" % (v(a2), v(a2), v(b2), v(t)))


def top2(e):
    A1, A2, B1, B2, T = 5, 6, 7, 8, 9
    e("v_max_u32 %s, %s, %s" % (v(A1), v(KEY), v(KEY + 7)))
    e("v_med3_u32 %s, %s, %s, %s" % (v(A2), v(KEY), v(KEY + 1), v(KEY + 7)))
    for ctrl in ("quad_perm:[1,0,3,2]", "quad_perm:[2,3,0,1]", "row_half_mirror", "row_mirror"):
        e("v_mov_b32_dpp %s, %s %s row_mask:0xf bank_mask:0xf" % (v(B1), v(A1), ctrl))
        e("v_mov_b32_dpp %s, %s %s row_mask:0xf bank_mask:0xf" % (v(B2), v(A2), ctrl))
        merge2(e, A1, A2, B1, B2, T)
    e("v_lshrrev_b32 %s, 4, v0" % v(T))
    e("v_lshlrev_b32 %s, 3, %s" % (v(T), v(T)))
    e("s_barrier")
    e("ds_write2_b32 %s, %s, %s offset0:0 offset1:1" % (v(T), v(A1), v(A2)))
    e("v_and_b32 %s, 15, v0" % v(T))
    e("v_lshlrev_b32 %s, 3, %s" % (v(T), v(T)))
    e("s_waitcnt lgkmcnt(0)")
    e("s_barrier")
    e("ds_read2_b32 v[10:11], %s offset0:0 offset1:1" % v(T))
    e("s_waitcnt lgkmcnt(0)")
    e("v_mov_b32 %s, v10" % v(A1))
    e("v_mov_b32 %s, v11" % v(A2))
    for ctrl in ("quad_perm:[1,0,3,2]", "quad_perm:[2,3,0,1]", "row_half_mirror", "row_mirror"):
        e("v_mov_b32_dpp %s, %s %s row_mask:0xf bank_mask:0xf" % (v(B1), v(A1), ctrl))
        e("v_mov_b32_dpp %s, %s %s row_mask:0xf bank_mask:0xf" % (v(B2), v(A2), ctrl))
        merge2(e, A1, A2, B1, B2, T)
    e("v_readfirstlane_b32 %s, %s" % (s(S_K1), v(A1)))
    e("v_readfirstlane_b32 %s, %s" % (s(S_K1 + 1), v(A2)))
    e("s_nop 3")


def body(e, PG, PU, PD):
    ws = s(S_WS, 4)
    e("s_lshr_b32 %s, s2, 3" % s(S_M))
    e("s_mov_b32 %s, 0x05040100" % s(S_PLO))
    e("s_mov_b32 %s, 0x07060302" % s(S_PHI))
    e("s_mov_b32 %s, 0" % s(S_TMO))
    srd(e, S_WA, PG, 512 * 1792 * 2)
    srd(e, S_WB, PU, 512 * 1792 * 2)
    srd(e, S_WD, PD, 1792 * 512 * 2)
    e("v_and_b32 v3, 31, v0")
    e("v_lshlrev_b32 v3, 2, v3")
    e.label("L_M_hs")
    e("buffer_load_dword v5, v3, %s, 0 offen sc1" % s(C.S_DBG, 4))
    e("s_add_u32 %s, %s, 1" % (s(S_TMO), s(S_TMO)))
    e("s_cmp_gt_u32 %s, %d" % (s(S_TMO), TMO_LIMIT))
    e("s_waitcnt vmcnt(0)")
    e("s_cbranch_scc1 L_M_hs_ok")
    e("v_cmp_eq_u32 vcc, 0, v5")
    e("s_cbranch_vccz L_M_hs_ok")
    e("s_sleep 16")
    e("s_branch L_M_hs")
    e.label("L_M_hs_ok")
    load_keys(e, "M00", [0], 64)
    e("v_lshrrev_b32 v1, 5, v0")
    e("v_and_b32 v2, 31, v0")
    e("s_mov_b32 %s, %d" % (s(S_T0), 64 * 3584))
    e("v_mul_lo_u32 v4, v1, %s" % s(S_T0))
    e("v_lshl_add_u32 v4, v2, 2, v4")
    e("v_mov_b32 v5, 0x%x" % OOB)
    e("v_cmp_lt_u32 vcc, 27, v2")
    e("v_cndmask_b32 v4, v4, v5, vcc")
    e("s_mul_i32 %s, %s, 112" % (s(S_COL), s(S_M)))
    for m, sr in ((0, S_WA), (1, S_WB)):
        for hf in range(2):
            for j in range(32):
                e("s_add_u32 %s, %s, %d" % (s(S_T0), s(S_COL), (32 * hf + j) * 3584))
                e("buffer_load_dword %s, v4, %s, %s offen" % (v(RP + j), s(sr, 4), s(S_T0)))
            e("s_waitcnt vmcnt(0)")
            for c in range(2):
                for jp in range(16):
                    e("v_perm_b32 %s, %s, %s, %s" % (v(PW + (m * 2 + c) * 32 + 16 * hf + jp), v(RP + 2 * jp + 1), v(RP + 2 * jp), s(S_PHI if c else S_PLO)))
    e("v_lshrrev_b32 v3, 3, v0")
    e("v_mul_u32_u24 v4, %d, v3" % (56 * 1024))
    e("v_and_b32 v3, 7, v0")
    e("v_lshl_add_u32 v4, v3, 2, v4")
    e("s_lshl_b32 %s, %s, 5" % (s(S_T1), s(S_M)))
    for hf in range(2):
        for j in range(28):
            e("s_add_u32 %s, %s, %d" % (s(S_T0), s(S_T1), (28 * hf + j) * 1024))
            e("buffer_load_dword %s, v4, %s, %s offen" % (v(RP + j), s(S_WD, 4), s(S_T0)))
        e("s_waitcnt vmcnt(0)")
        for c in range(2):
            for jp in range(14):
                e("v_perm_b32 %s, %s, %s, %s" % (v(DP + c * 28 + 14 * hf + jp), v(RP + 2 * jp + 1), v(RP + 2 * jp), s(S_PHI if c else S_PLO)))
    e("s_mov_b32 %s, 0xffff0000" % s(S_HI))
    e("s_mov_b32 %s, 0" % s(S_RND))
    e("s_mov_b64 %s, 0" % s(S_P1, 2))
    e("v_mov_b32 v12, 0x%x" % OOB)
    e("v_mov_b32 v13, 0")
    load_keys(e, "M06", [6], 32)
    load_keys(e, "M01", list(range(1, 6)), 8)
    e("v_max_u32 v5, %s, %s" % (v(KEY), v(KEY + 1)))
    e("v_min_u32 v6, %s, %s" % (v(KEY), v(KEY + 1)))
    for i in range(2, 7):
        e("v_med3_u32 v6, v5, v6, %s" % v(KEY + i))
        e("v_max_u32 v5, v5, %s" % v(KEY + i))
    e("v_mov_b32 %s, v5" % v(KEY))
    e("v_mov_b32 %s, v6" % v(KEY + 1))
    e("s_mov_b32 %s, %d" % (s(S_LIM), ROUNDS[0] * 32 - 1792))
    e.label("L_M_round")
    load_keys(e, "M7", [7], 0)
    top2(e)
    e("s_cmp_eq_u64 %s, %s" % (s(S_K1, 2), s(S_P1, 2)))
    e("s_cbranch_scc1 L_M_next")
    e("s_mov_b64 %s, %s" % (s(S_P1, 2), s(S_K1, 2)))
    e("buffer_store_dword v13, v12, %s, 0 offen sc1" % s(W.S_OUT, 4))
    for p in range(2):
        e("s_and_b32 %s, %s, 0x7ff" % (s(S_T0), s(S_K1 + p)))
        e("s_sub_u32 %s, 2047, %s" % (s(S_TK + p), s(S_T0)))
        e("s_and_b32 %s, %s, 0xffff0000" % (s(S_T0), s(S_K1 + p)))
        e("s_xor_b32 %s, %s, 0x80000000" % (s(S_T1), s(S_T0)))
        e("s_xor_b32 %s, %s, 0xffff0000" % (s(S_RV + p), s(S_T0)))
        e("s_bitcmp1_b32 %s, 31" % s(S_T0))
        e("s_cselect_b32 %s, %s, %s" % (s(S_RV + p), s(S_T1), s(S_RV + p)))
    e("v_mov_b32 v8, 0")
    e.label("L_M_rows")
    for p in range(2):
        e("s_lshl_b32 %s, %s, 4" % (s(S_T0), s(S_TK + p)))
        e("s_add_u32 %s, %s, 0x%x" % (s(S_T0), s(S_T0), W.RDONE))
        e("buffer_load_dwordx4 %s, v8, %s, %s offen sc1" % (v(RP + 4 * p, 4), ws, s(S_T0)))
    e("s_add_u32 %s, %s, 1" % (s(S_TMO), s(S_TMO)))
    e("s_cmp_gt_u32 %s, %d" % (s(S_TMO), TMO_LIMIT))
    e("s_waitcnt vmcnt(0)")
    e("v_or3_b32 v5, %s, %s, %s" % (v(RP), v(RP + 1), v(RP + 2)))
    e("v_or3_b32 v5, v5, %s, %s" % (v(RP + 3), v(RP + 4)))
    e("v_or3_b32 v5, v5, %s, %s" % (v(RP + 5), v(RP + 6)))
    e("v_or_b32 v5, v5, %s" % v(RP + 7))
    e("s_cbranch_scc1 L_M_rows_ok")
    e("v_cmp_ne_u32 vcc, 0, v5")
    e("s_cbranch_vccnz L_M_rows")
    e.label("L_M_rows_ok")
    e("v_bfe_u32 v9, v0, 6, 1")
    e("v_cmp_ne_u32 vcc, 0, v9")
    e("v_mov_b32 v5, %s" % s(S_TK)); e("v_mov_b32 v6, %s" % s(S_TK + 1))
    e("v_cndmask_b32 v7, v5, v6, vcc")
    e("v_lshlrev_b32 v7, 10, v7")
    e("v_and_b32 v8, 63, v0")
    e("v_lshl_add_u32 v7, v8, 4, v7")
    e("s_mov_b32 %s, 0x%x" % (s(S_T1), W.XN2))
    e("buffer_load_dwordx4 %s, v7, %s, %s offen sc1" % (v(RP, 4), ws, s(S_T1)))
    e("v_bfe_u32 v9, v0, 3, 1")
    e("v_cmp_ne_u32 vcc, 0, v9")
    e("v_cndmask_b32 v12, v5, v6, vcc")
    e("v_mov_b32 v5, %s" % s(S_RV)); e("v_mov_b32 v6, %s" % s(S_RV + 1))
    e("v_cndmask_b32 v11, v5, v6, vcc")
    e("v_lshlrev_b32 v12, 10, v12")
    e("v_and_b32 v3, 7, v0")
    e("v_lshl_add_u32 v12, v3, 2, v12")
    e("s_lshl_b32 %s, %s, 5" % (s(S_T0), s(S_M)))
    e("v_add_u32 v12, %s, v12" % s(S_T0))
    e("v_mov_b32 v7, 0x%x" % OOB)
    e("v_cmp_lt_u32 vcc, 15, v0")
    e("v_cndmask_b32 v12, v12, v7, vcc")
    e("s_mov_b32 %s, 0x%x" % (s(S_T0), W.HROW))
    e("buffer_load_dword v14, v12, %s, %s offen sc1" % (ws, s(S_T0)))
    e("buffer_load_dword v15, v12, %s, %s offen sc1" % (ws, s(S_T1)))
    e("v_and_b32 v8, 127, v0")
    e("v_lshlrev_b32 v8, 4, v8")
    e("s_waitcnt vmcnt(2)")
    e("ds_write_b128 v8, %s offset:4096" % v(RP, 4))
    e("s_waitcnt lgkmcnt(0)")
    e("s_barrier")
    AC = 48
    for r in range(0, 8, 2):
        e("v_mov_b64 %s, 0" % v(AC + r, 2))
    e("v_lshlrev_b32 v8, 7, v1")
    for hf in range(2):
        for p in range(2):
            for q in range(4):
                e("ds_read_b128 %s, v8 offset:%d" % (v(RP + 16 * p + 4 * q, 4), 4096 + 1024 * p + 64 * hf + 16 * q))
        e("s_waitcnt lgkmcnt(0)")
        for jp in range(16):
            for m in range(2):
                for p in range(2):
                    for c in range(2):
                        d = AC + 4 * m + 2 * p + c
                        e("v_dot2_f32_bf16 %s, %s, %s, %s" % (v(d), v(RP + 16 * p + jp), v(PW + (m * 2 + c) * 32 + 16 * hf + jp), v(d)))
    e("s_nop 3")
    e("v_lshlrev_b32 v7, 5, v0")
    e("ds_write_b128 v7, %s offset:8192" % v(AC, 4))
    e("ds_write_b128 v7, %s offset:8208" % v(AC + 4, 4))
    e("s_waitcnt lgkmcnt(0)")
    e("s_barrier")
    e("v_lshlrev_b32 v7, 5, v2")
    e("v_bfe_u32 v8, v0, 5, 1")
    e("v_lshl_add_u32 v7, v8, 3, v7")
    for g in range(8):
        e("ds_read2_b64 %s, v7 offset0:%d offset1:%d" % (v(RP + 4 * g, 4), 0, 2) if False else
          "ds_read_b64 %s, v7 offset:%d" % (v(RP + 4 * g, 2), 8192 + 1024 * g))
        e("ds_read_b64 %s, v7 offset:%d" % (v(RP + 4 * g + 2, 2), 8208 + 1024 * g))
        if g == 3:
            e("s_waitcnt lgkmcnt(0)")
    e("s_waitcnt lgkmcnt(0)")
    for k in range(4):
        for g in range(1, 8):
            e("v_add_f32 %s, %s, %s" % (v(RP + k), v(RP + k), v(RP + 4 * g + k)))
        rnd(e, RP + k, 5)
    for c in range(2):
        sigmoid(e, 6, RP + c)
        e("v_mul_f32 %s, %s, v6" % (v(RP + c), v(RP + c)))
        rnd(e, RP + c, 5)
        e("v_mul_f32 %s, %s, %s" % (v(RP + c), v(RP + c), v(RP + 2 + c)))
    e(cvt(RP, RP, RP + 1))
    e("v_mul_u32_u24 v8, 3584, v8")
    e("v_lshl_add_u32 v7, v2, 2, v8")
    e("v_mov_b32 v6, 0x%x" % OOB)
    e("v_cmp_lt_u32 vcc, 27, v2")
    e("v_cndmask_b32 v7, v7, v6, vcc")
    e("v_cmp_lt_u32 vcc, 63, v0")
    e("v_cndmask_b32 v7, v7, v6, vcc")
    e("s_mul_i32 %s, %s, %d" % (s(S_T1), s(S_RND), ACT_ST))
    e("s_add_u32 %s, %s, 0x%x" % (s(S_T1), s(S_T1), ACT2))
    e("s_add_u32 %s, %s, %s" % (s(S_T0), s(S_T1), s(S_COL)))
    e("buffer_store_dword %s, v7, %s, %s offen sc1" % (v(RP), ws, s(S_T0)))
    e("v_lshlrev_b32 v7, 4, v0")
    e("v_add_u32 v8, 4096, v7")
    e("v_cmp_lt_u32 vcc, 191, v0")
    e("v_cndmask_b32 v8, v8, v6, vcc")
    e.label("L_M_act")
    e("buffer_load_dwordx4 %s, v7, %s, %s offen sc1" % (v(RP + 4, 4), ws, s(S_T1)))
    e("buffer_load_dwordx4 %s, v8, %s, %s offen sc1" % (v(RP + 8, 4), ws, s(S_T1)))
    e("s_add_u32 %s, %s, 1" % (s(S_TMO), s(S_TMO)))
    e("s_cmp_gt_u32 %s, %d" % (s(S_TMO), TMO_LIMIT))
    e("s_waitcnt vmcnt(0)")
    e("v_max3_u32 v5, %s, %s, %s" % (v(RP + 4), v(RP + 5), v(RP + 6)))
    e("v_max3_u32 v5, v5, %s, %s" % (v(RP + 7), v(RP + 8)))
    e("v_max3_u32 v5, v5, %s, %s" % (v(RP + 9), v(RP + 10)))
    e("v_max_u32 v5, v5, %s" % v(RP + 11))
    e("s_cbranch_scc1 L_M_act_ok")
    e("v_cmp_eq_u32 vcc, -1, v5")
    e("s_cbranch_vccnz L_M_act")
    e.label("L_M_act_ok")
    e("ds_write_b128 v7, %s offset:16384" % v(RP + 4, 4))
    e("ds_write_b128 v7, %s offset:20480" % v(RP + 8, 4))
    e("s_waitcnt lgkmcnt(0)")
    e("s_barrier")
    e("v_lshrrev_b32 v7, 3, v0")
    e("v_mul_u32_u24 v7, 112, v7")
    e("v_mov_b64 %s, 0" % v(AC, 2)); e("v_mov_b64 %s, 0" % v(AC + 2, 2))
    for p in range(2):
        for q in range(7):
            e("ds_read_b128 %s, v7 offset:%d" % (v(RP + 4 * q, 4), 16384 + 3584 * p + 16 * q))
        e("s_waitcnt lgkmcnt(0)")
        for jp in range(28):
            for c in range(2):
                d = AC + 2 * p + c
                e("v_dot2_f32_bf16 %s, %s, %s, %s" % (v(d), v(RP + jp), v(DP + c * 28 + jp), v(d)))
    e("s_nop 3")
    for r in range(AC, AC + 4):
        e("v_add_f32_dpp %s, %s, %s row_ror:8 row_mask:0xf bank_mask:0xf" % (v(r), v(r), v(r)))
    for sw in ("v_permlane16_swap_b32", "v_permlane32_swap_b32"):
        for r in range(AC, AC + 4):
            e("v_mov_b32 v5, %s" % v(r))
            e("%s %s, v5" % (sw, v(r)))
            e("v_add_f32 %s, %s, v5" % (v(r), v(r)))
    e("v_lshrrev_b32 v7, 6, v0")
    e("v_lshlrev_b32 v7, 7, v7")
    e("v_lshl_add_u32 v7, v3, 4, v7")
    e("ds_write_b128 v7, %s offset:1024" % v(AC, 4))
    e("s_waitcnt lgkmcnt(0)")
    e("s_barrier")
    e("v_lshlrev_b32 v7, 4, v3")
    e("v_lshl_add_u32 v7, v9, 3, v7")
    Y = RP
    for w in range(4):
        e("ds_read_b64 %s, v7 offset:%d" % (v(Y + 2 * w, 2), 1024 + 128 * w))
    sigmoid(e, 10, 11)
    rnd(e, 10, 5)
    e("s_waitcnt lgkmcnt(0)")
    e("v_lshlrev_b32 %s, 16, v15" % v(Y + 8)); e("v_and_b32 %s, 0xffff0000, v15" % v(Y + 9))
    e("v_lshlrev_b32 %s, 16, v14" % v(Y + 10)); e("v_and_b32 %s, 0xffff0000, v14" % v(Y + 11))
    for k in range(2):
        e("v_add_f32 %s, %s, %s" % (v(Y + k), v(Y + k), v(Y + 2 + k)))
        e("v_add_f32 %s, %s, %s" % (v(Y + 4 + k), v(Y + 4 + k), v(Y + 6 + k)))
        e("v_add_f32 %s, %s, %s" % (v(Y + k), v(Y + k), v(Y + 4 + k)))
        rnd(e, Y + k, 5)
        e("v_mul_f32 %s, %s, v10" % (v(Y + k), v(Y + k)))
        rnd(e, Y + k, 5)
        e("v_add_f32 %s, %s, %s" % (v(Y + k), v(Y + k), v(Y + 8 + k)))
        rnd(e, Y + k, 5)
        e("v_add_f32 %s, %s, %s" % (v(Y + k), v(Y + k), v(Y + 10 + k)))
    e(cvt(Y, Y, Y + 1))
    e("buffer_store_dword %s, v12, %s, 0 offen sc1" % (v(Y), s(W.S_OUT, 4)))
    for k in range(2):
        e("v_add_f32 %s, %s, %s" % (v(Y + 8 + k), v(Y + 8 + k), v(Y + 10 + k)))
    e(cvt(13, Y + 8, Y + 9))
    e.label("L_M_next")
    e("s_add_u32 %s, %s, 1" % (s(S_RND), s(S_RND)))
    e("s_mov_b32 %s, %d" % (s(S_LIM), ROUNDS[1] * 32 - 1792))
    e("s_cmp_eq_u32 %s, 1" % s(S_RND))
    e("s_cbranch_scc1 L_M_round")
    e("s_cmp_eq_u32 %s, 3" % s(S_RND))
    e("s_cbranch_scc1 L_end")
    assert ROUNDS[1] == 62
    e("s_mov_b32 %s, %d" % (s(S_LIM), ROUNDS[2] * 32 - 1792))
    e("v_and_b32 v7, 63, v0")
    e("v_lshlrev_b32 v3, 4, v7")
    e("s_mov_b32 %s, 0x%x" % (s(S_T0), W.RVAL + 1984 * 16))
    e("v_sub_u32 v7, 63, v7")
    e.label("L_M_fin")
    e("buffer_load_dwordx4 %s, v3, %s, %s offen sc1" % (v(RP, 4), ws, s(S_T0)))
    e("s_add_u32 %s, %s, 1" % (s(S_TMO), s(S_TMO)))
    e("s_cmp_gt_u32 %s, %d" % (s(S_TMO), TMO_LIMIT))
    e("s_cselect_b32 %s, -1, -2" % s(S_T1))
    e("s_waitcnt vmcnt(0)")
    e("v_max3_u32 v5, %s, %s, %s" % (v(RP), v(RP + 1), v(RP + 2)))
    e("v_max_u32 v5, v5, %s" % v(RP + 3))
    e("v_cmp_lt_u32 vcc, %s, v5" % s(S_T1))
    e("s_cbranch_vccnz L_M_fin")
    e("v_add_f32 %s, %s, %s" % (v(RP), v(RP), v(RP + 1)))
    e("v_add_f32 %s, %s, %s" % (v(RP + 2), v(RP + 2), v(RP + 3)))
    e("v_add_f32 %s, %s, %s" % (v(RP), v(RP), v(RP + 2)))
    rnd(e, RP, 5)
    e("v_ashrrev_i32 v5, 31, %s" % v(RP))
    e("v_or_b32 v5, 0x80000000, v5")
    e("v_xor_b32 v5, v5, %s" % v(RP))
    e("v_and_or_b32 v5, v5, %s, v7" % s(S_HI))
    e("v_cmp_lt_u32 vcc, %s, v5" % s(S_P1 + 1))
    e("s_cbranch_vccnz L_M_round")
```

```python
from asmlib import v, a, s
import chain as C
from chain import lin, srd, f32bits, S_WS, S_DBG, S_H, S_WAVE, S_TMO, S_SCALE, S_PLO, S_PHI, S_T0, S_T1, S_T2, TMO_LIMIT, OOB

FLAGTP = C.FLAG_OFF + 0x2000
RVAL = C.FLAG_OFF + 0x4000
ACT = C.FLAG_OFF + 0xC000
FLAGXN = FLAGTP + 0x400
XNI = 0x800000
RDONE = 0x1B8000
NREP = 6
HROW = 0x400000
XN2 = 0x600000
TP_OFF = 0x4000000
Q_DELTA = 0x8000000 - C.SLAB_OFF

X_T = 0
EX_Q = 0
EX_K = 8192
EX_KM = 16384
MEMI = 20480
EX_O = 0
RED = 28672
L_WO = 32768

S_X = 12
S_OUT = 60
S_WR = 92
S_R = 22
S_SEG = 23
S_A, S_B = 24, 25
S_TPB = 26
S_PAR = 27
S_J = 29
S_M0 = 64
S_MM = 72
S_ONES = C.S_ONES

W_L16, W_MW, W_XG, W_XW, W_XR0, W_XR1, W_WO, W_MR, W_EX, W_TPW, W_TPR, W_ROW, W_NEG, T0, T1 = range(1, 16)
assert T0 == C.T0
R0 = 16


def wreg(m, T, ks):
    idx = ("QKV".index(m) * 32 + ks * 2 + T) * 4
    return a(idx, 4) if idx < 256 else v(128 + idx - 256, 4)


def mf32(d, A, B, first):
    return "v_mfma_f32_16x16x32_bf16 %s, %s, %s, %s" % (v(d, 4), A, B, "0" if first else v(d, 4))


def cvt(d, x, y):
    return "v_cvt_pk_bf16_f32 %s, %s, %s" % (v(d), v(x), v(y))


def ids(e):
    e("s_and_b32 %s, s2, 7" % s(S_T0))
    e("s_sub_u32 %s, %s, 1" % (s(S_T0), s(S_T0)))
    e("s_lshl_b32 %s, %s, 5" % (s(S_T0), s(S_T0)))
    e("s_lshr_b32 %s, s2, 3" % s(S_T1))
    e("s_add_u32 %s, %s, %s" % (s(S_T0), s(S_T0), s(S_T1)))
    e("s_mul_i32 %s, %s, 10923" % (s(S_H), s(S_T0)))
    e("s_lshr_b32 %s, %s, 16" % (s(S_H), s(S_H)))
    e("s_mul_i32 %s, %s, %d" % (s(S_T1), s(S_H), NREP))
    e("s_sub_u32 %s, %s, %s" % (s(S_R), s(S_T0), s(S_T1)))


def setup(e):
    lin(e, W_L16, {k: 16 << k for k in range(6)})
    lin(e, W_MW, {**{k: 16 << k for k in range(6)}, 6: 2048, 7: 4096})
    lin(e, W_EX, {**{k: 16 << k for k in range(6)}, 6: 1024, 7: 2048})
    lin(e, W_WO, {**{k: 16 << k for k in range(6)}, 6: 32768, 7: 65536}, L_WO)
    lin(e, W_XG, {0: 16, 1: 32, 2: 64, 3: 1024, 4: 2048, 5: 4096, 6: 8192, 7: 16384})
    lin(e, W_XW, {0: 256, 1: 512, 2: 1024, 6: 128, 7: 16384})
    e("v_lshrrev_b32 %s, 3, v0" % v(T1))
    e("v_xor_b32 %s, %s, v0" % (v(T1), v(T1)))
    e("v_and_b32 %s, 7, %s" % (v(T1), v(T1)))
    e("v_lshl_add_u32 %s, %s, 4, %s" % (v(W_XW), v(T1), v(W_XW)))
    e("v_bfe_u32 %s, v0, 4, 2" % v(T1))
    e("v_lshlrev_b32 %s, 4, %s" % (v(T1), v(T1)))
    e("v_xor_b32 %s, %s, %s" % (v(W_XR0), v(T1), v(W_L16)))
    e("v_xor_b32 %s, 64, %s" % (v(W_XR1), v(W_XR0)))
    lin(e, W_MR, {0: 16, 1: 64, 2: 128, 4: 32, 5: 256}, MEMI)
    lin(e, W_TPW, {0: 16, 1: 32, 2: 64, 3: 128, 4: 4 * 32768, 5: 8 * 32768, 6: 256, 7: 512})
    lin(e, W_TPR, {0: 16, 1: 32, 2: 64, 3: 128, 4: 1024, 5: 2048, 6: 256, 7: 512})
    lin(e, W_ROW, {0: 16, 1: 32, 2: 64, 3: 128, 4: 4, 5: 8, 6: 256, 7: 512})
    e("v_mov_b32 %s, 0x%x" % (v(W_NEG), f32bits(-1e30)))
    e("v_and_b32 %s, 15, v0" % v(T0))
    e("v_bfe_u32 %s, v0, 4, 2" % v(T1))
    e("v_cmp_gt_u32 %s, 2, %s" % (s(S_MM, 2), v(T1)))
    e("v_lshlrev_b32 %s, 2, %s" % (v(T1), v(T1)))
    for r in range(4):
        e("v_cmp_le_u32 %s, %s, %s" % (s(S_M0 + 2 * r, 2), v(T1), v(T0)))
        e("v_add_u32 %s, 1, %s" % (v(T1), v(T1)))
    e("s_mov_b32 %s, 0x05040100" % s(S_PLO))
    e("s_mov_b32 %s, 0x07060302" % s(S_PHI))
    e("s_mov_b32 %s, 0x%x" % (s(S_SCALE), f32bits(128 ** -0.5 * 1.4426950408889634)))
    e("s_mov_b32 %s, 0" % s(S_TMO))
    e("s_mov_b32 %s, 0x3f803f80" % s(S_ONES))
    e("s_mov_b32 %s, 0x3f803f80" % s(S_ONES + 1))


def load_w(e, P, mats, pre=None):
    ptr = {"Q": P + 4, "K": P + 6, "V": P + 8}
    SRDS = {"Q": 96, "K": 40, "V": 76}

    def reads(m, ci):
        out = []
        for k in range(4):
            for T in range(2):
                idx = ("QKV".index(m) * 32 + (4 * ci + k) * 2 + T) * 4
                for u in range(2):
                    dst = a(idx + 2 * u, 2) if idx < 256 else v(128 + idx - 256 + 2 * u, 2)
                    out.append((dst, k, T, 4 * u))
        return out
    chunks = [(m, ci) for m in mats for ci in range(4)]

    def side(c, q):
        phase0(e, c, q)
    C.staged_load(e, chunks, ptr, SRDS, 2, lambda k: (k >> 1) << 7, {2: 32, 3: 64, 4: 128}, {2: 1, 3: 2, 4: 8, 5: 16}, False, reads, side, pre, 4)


def load_wo(e, P):
    VOFF = T1
    srd(e, 96, P + 10, 4096 * 512 * 2)
    lin(e, VOFF, {0: 16, 1: 32, 2: 64, 3: 128, 4: 4 * 1024, 5: 8 * 1024, 6: 256, 7: 512})
    e("s_lshl_b32 %s, %s, 17" % (s(S_T0), s(S_H)))
    TMP = 112

    def issue(ks):
        base = R0 + (ks % 3) * 32
        for j in range(8):
            e("s_add_u32 %s, %s, 0x%x" % (s(S_T1), s(S_T0), (32 * ks + 16 * (j & 1) + (j >> 1)) * 1024))
            e("buffer_load_dwordx4 %s, %s, %s, %s offen" % (v(base + 4 * j, 4), v(VOFF), s(96, 4), s(S_T1)))

    def consume(ks):
        base = R0 + (ks % 3) * 32
        for T in range(8):
            t = TMP + (T % 4) * 4
            if T == 4:
                e("s_waitcnt lgkmcnt(0)")
            for jj in range(4):
                e("v_perm_b32 %s, %s, %s, %s" % (v(t + jj), v(base + 4 * (2 * jj + 1) + (T >> 1)), v(base + 4 * (2 * jj) + (T >> 1)), s(S_PHI if T & 1 else S_PLO)))
            e("ds_write_b128 %s, %s offset:%d" % (v(W_WO), v(t, 4), (ks * 8 + T) * 1024))
        e("s_waitcnt lgkmcnt(0)")
    for ks in range(3):
        issue(ks)
    e("s_waitcnt vmcnt(16)")
    consume(0)
    issue(3)
    e("s_waitcnt vmcnt(16)")
    consume(1)
    e("s_waitcnt vmcnt(8)")
    consume(2)
    e("s_waitcnt vmcnt(0)")
    consume(3)


def dpp_add(e, r, ctrl):
    e("v_add_f32_dpp %s, %s, %s %s row_mask:0xf bank_mask:0xf" % (v(r), v(r), v(r), ctrl))


def wave_sum(e, regs, tmp):
    for ctrl in ("quad_perm:[1,0,3,2]", "quad_perm:[2,3,0,1]", "row_half_mirror", "row_mirror"):
        for r in regs:
            dpp_add(e, r, ctrl)
    for sw in ("v_permlane16_swap_b32", "v_permlane32_swap_b32"):
        for r in regs:
            e("v_mov_b32 %s, %s" % (v(tmp), v(r)))
            e("%s %s, %s" % (sw, v(r), v(tmp)))
            e("v_add_f32 %s, %s, %s" % (v(r), v(r), v(tmp)))


XR = R0 + 80


def x_issue(e, sseg):
    e("s_lshl_b32 %s, %s, 15" % (s(S_T0), s(sseg)))
    for i in range(8):
        e("buffer_load_dwordx4 %s, %s, %s, %s offen offset:%d" % (v(XR + 4 * i, 4), v(W_XG), s(S_X, 4), s(S_T0), i * 128))


def x_norm(e):
    SU, SQ, LO, HI = R0 + 72, R0 + 73, R0 + 74, R0 + 75
    lo = lambda d, x: e("v_lshlrev_b32 %s, 16, %s" % (v(d), v(x)))
    hi = lambda d, x: e("v_and_b32 %s, 0xffff0000, %s" % (v(d), v(x)))
    e("v_mov_b32 %s, 0" % v(SU))
    e("v_mov_b32 %s, 0" % v(SQ))
    for r in range(XR, XR + 32):
        e("v_dot2_f32_bf16 %s, %s, %s, %s" % (v(SU), v(r), s(S_ONES), v(SU)))
        e("v_dot2_f32_bf16 %s, %s, %s, %s" % (v(SQ), v(r), v(r), v(SQ)))
    e("s_nop 3")
    for ctrl in ("quad_perm:[1,0,3,2]", "quad_perm:[2,3,0,1]", "row_half_mirror"):
        dpp_add(e, SU, ctrl)
        dpp_add(e, SQ, ctrl)
    e("v_mul_f32 %s, 0x%x, %s" % (v(SU), f32bits(1 / 512), v(SU)))
    e("v_mul_f32 %s, 0x%x, %s" % (v(SQ), f32bits(1 / 512), v(SQ)))
    e("v_fma_f32 %s, -%s, %s, %s" % (v(SQ), v(SU), v(SU), v(SQ)))
    e("v_max_f32 %s, 0, %s" % (v(SQ), v(SQ)))
    e(cvt(T0, SU, SQ))
    lo(SU, T0); hi(SQ, T0)
    e("v_add_f32 %s, 0x%x, %s" % (v(SQ), f32bits(1e-5), v(SQ)))
    e(cvt(T0, SQ, SQ)); lo(SQ, T0)
    e("v_sqrt_f32 %s, %s" % (v(SQ), v(SQ)))
    e(cvt(T0, SQ, SQ)); lo(SQ, T0)
    e("v_rcp_f32 %s, %s" % (v(SQ), v(SQ)))
    for i in range(8):
        for q in range(4):
            r = XR + 4 * i + q
            lo(LO, r); hi(HI, r)
            e("v_sub_f32 %s, %s, %s" % (v(LO), v(LO), v(SU)))
            e("v_sub_f32 %s, %s, %s" % (v(HI), v(HI), v(SU)))
            e(cvt(r, LO, HI))
            lo(LO, r); hi(HI, r)
            e("v_mul_f32 %s, %s, %s" % (v(LO), v(LO), v(SQ)))
            e("v_mul_f32 %s, %s, %s" % (v(HI), v(HI), v(SQ)))
            e(cvt(r, LO, HI))
        e("ds_write_b128 %s, %s offset:%d" % (v(W_XW), v(XR + 4 * i, 4), X_T + i * 2048))


AQ, AK, AV = R0, R0 + 16, R0 + 32
XO = R0 + 48


def project(e, mats, r0, r1, extra=None):
    def rd(ks):
        b = XO + (ks & 1) * 8
        for kap in range(2):
            e("ds_read_b128 %s, %s offset:%d" % (v(b + 4 * kap, 4), v((r1 if ks & 1 else r0)[kap]), X_T + ks * 1024))
    rd(0)
    for ks in range(16):
        if ks + 1 < 16:
            rd(ks + 1)
            e("s_waitcnt lgkmcnt(2)")
        else:
            e("s_waitcnt lgkmcnt(0)")
        b = XO + (ks & 1) * 8
        if extra and ks in extra:
            extra[ks]()
        for m in mats:
            for T in range(2):
                for kap in range(2):
                    x = v(b + 4 * kap, 4)
                    if m == "V":
                        e(mf32(AV + 8 * kap + 4 * T, x, wreg(m, T, ks), ks == 0))
                    else:
                        e(mf32((AQ if m == "Q" else AK) + 8 * T + 4 * kap, wreg(m, T, ks), x, ks == 0))


def pack_qk(e, acc, dst, scale):
    if scale:
        for r in range(16):
            e("v_mul_f32 %s, %s, %s" % (v(acc + r), s(S_SCALE), v(acc + r)))
    for kap in range(2):
        for r in range(4):
            e(cvt(dst + 4 * kap + r, acc + 4 * kap + r, acc + 8 + 4 * kap + r))


def pack_v(e, dst):
    for T in range(2):
        for kap in range(2):
            for q in range(2):
                e(cvt(dst + 4 * T + 2 * kap + q, AV + 8 * kap + 4 * T + 2 * q, AV + 8 * kap + 4 * T + 2 * q + 1))


def signal(e, soff):
    e("s_waitcnt vmcnt(0)")
    e("s_barrier")
    flag_store(e, soff)


def wait_handshake(e, L="L_WHS"):
    e("v_lshrrev_b32 %s, 2, %s" % (v(T1), v(W_L16)))
    e("v_and_b32 %s, 127, %s" % (v(T1), v(T1)))
    e.label(L)
    e("buffer_load_dword %s, %s, %s, 0 offen sc1" % (v(T0), v(T1), s(S_DBG, 4)))
    e("s_add_u32 %s, %s, 1" % (s(S_TMO), s(S_TMO)))
    e("s_cmp_gt_u32 %s, %d" % (s(S_TMO), TMO_LIMIT))
    e("s_cbranch_scc1 %s_done" % L)
    e("s_waitcnt vmcnt(0)")
    e("v_cmp_eq_u32 vcc, 0, %s" % v(T0))
    e("s_cbranch_vccnz %s" % L)
    e.label(L + "_done")


def flag_store(e, soff):
    e("v_cmp_ne_u32 vcc, 0, v0")
    e("v_mov_b32 %s, 0x%x" % (v(T1), OOB))
    e("v_mov_b32 %s, 1" % v(T0))
    e("v_cndmask_b32 %s, v0, %s, vcc" % (v(T1), v(T1)))
    e("buffer_store_dword %s, %s, %s, %s offen sc1" % (v(T0), v(T1), s(S_WS, 4), s(soff)))


def xn_produce(e, mid):
    ws = s(S_WS, 4)
    e("s_lshr_b32 %s, s2, 3" % s(S_SEG))
    e("s_lshl_b32 %s, %s, 1" % (s(S_SEG), s(S_SEG)))
    x_issue(e, S_SEG)
    e("s_add_u32 %s, %s, 0x8000" % (s(S_T0), s(S_T0)))
    for i in range(8):
        e("buffer_load_dwordx4 %s, %s, %s, %s offen offset:%d" % (v(128 + 4 * i, 4), v(W_XG), s(S_X, 4), s(S_T0), i * 128))
    mid()
    e.label("L_XN")
    x_norm(e)
    e("s_waitcnt lgkmcnt(0)")
    e("s_barrier")
    e("s_lshl_b32 %s, %s, 15" % (s(S_A), s(S_SEG)))
    e("s_add_u32 %s, %s, 0x%x" % (s(S_A), s(S_A), XNI))
    for i in range(8):
        e("ds_read_b128 %s, %s offset:%d" % (v(R0 + 8 + 4 * i, 4), v(W_EX), i * 4096))
    for i in range(8):
        e("s_waitcnt lgkmcnt(%d)" % (7 - i))
        e("s_add_u32 %s, %s, %d" % (s(S_T0), s(S_A), i * 4096))
        e("buffer_store_dwordx4 %s, %s, %s, %s offen sc1" % (v(R0 + 8 + 4 * i, 4), v(W_EX), ws, s(S_T0)))
    e("s_barrier")
    for r in range(0, 32, 2):
        e("v_mov_b64 %s, %s" % (v(XR + r, 2), v(128 + r, 2)))
    e("s_add_u32 %s, %s, 1" % (s(S_SEG), s(S_SEG)))
    e("s_bitcmp1_b32 %s, 0" % s(S_SEG))
    e("s_cbranch_scc1 L_XN")
    C.ready_publish(e, T0, T1)


S_BUF = 31


def x_dma(e, sseg, sbuf):
    e("s_lshl_b32 %s, %s, 15" % (s(S_T0), s(sseg)))
    e("s_add_u32 %s, %s, 0x%x" % (s(S_T0), s(S_T0), XNI))
    e("s_lshl_b32 %s, %s, 10" % (s(S_T1), s(S_WAVE)))
    e("s_add_u32 %s, %s, %s" % (s(S_T1), s(S_T1), s(sbuf)))
    for i in range(8):
        e("s_add_u32 m0, %s, %d" % (s(S_T1), i * 4096))
        e("s_add_u32 %s, %s, %d" % (s(S_T2), s(S_T0), i * 4096))
        e("buffer_load_dwordx4 %s, %s, %s offen sc1 lds" % (v(W_EX), s(S_WS, 4), s(S_T2)))


A0 = R0 + 64


def p1_addr(e):
    e("s_lshr_b32 %s, %s, 1" % (s(S_T0), s(S_WAVE)))
    e("s_lshl_b32 %s, %s, 14" % (s(S_T0), s(S_T0)))
    e("s_xor_b32 %s, %s, 16384" % (s(S_T1), s(S_T0)))
    e("v_add_u32 %s, %s, %s" % (v(A0), s(S_T0), v(W_XR0)))
    e("v_add_u32 %s, %s, %s" % (v(A0 + 1), s(S_T1), v(W_XR0)))
    e("v_add_u32 %s, %s, %s" % (v(A0 + 2), s(S_T0), v(W_XR1)))
    e("v_add_u32 %s, %s, %s" % (v(A0 + 3), s(S_T1), v(W_XR1)))


def p1_store(e, with_q):
    ws = s(S_WS, 4)
    KP, VP, QP = R0 + 72, R0 + 80, R0 + 88
    pack_qk(e, AK, KP, True)
    pack_v(e, VP)
    if with_q:
        pack_qk(e, AQ, QP, False)
    e("s_mul_i32 %s, %s, 0x%x" % (s(S_A), s(S_SEG), C.SLAB_ST))
    e("s_lshl_b32 %s, %s, 14" % (s(S_T0), s(S_H)))
    e("s_add_u32 %s, %s, %s" % (s(S_A), s(S_A), s(S_T0)))
    e("s_add_u32 %s, %s, 0x%x" % (s(S_A), s(S_A), C.SLAB_OFF))
    e("s_lshr_b32 %s, %s, 1" % (s(S_T0), s(S_WAVE)))
    e("s_lshl_b32 %s, %s, 12" % (s(S_T0), s(S_T0)))
    e("s_xor_b32 %s, %s, 4096" % (s(S_T1), s(S_T0)))
    e("s_add_u32 %s, %s, %s" % (s(S_T0), s(S_T0), s(S_A)))
    e("s_add_u32 %s, %s, %s" % (s(S_T1), s(S_T1), s(S_A)))
    e("buffer_store_dwordx4 %s, %s, %s, %s offen sc1" % (v(KP, 4), v(W_EX), ws, s(S_T0)))
    e("buffer_store_dwordx4 %s, %s, %s, %s offen sc1" % (v(KP + 4, 4), v(W_EX), ws, s(S_T1)))
    e("s_add_u32 %s, %s, 8192" % (s(S_A), s(S_A)))
    e("buffer_store_dwordx4 %s, %s, %s, %s offen sc1" % (v(VP, 4), v(W_MW), ws, s(S_A)))
    e("buffer_store_dwordx4 %s, %s, %s, %s offen offset:1024 sc1" % (v(VP + 4, 4), v(W_MW), ws, s(S_A)))
    if with_q:
        e("s_add_u32 %s, %s, 0x%x" % (s(S_T0), s(S_T0), Q_DELTA))
        e("s_add_u32 %s, %s, 0x%x" % (s(S_T1), s(S_T1), Q_DELTA))
        e("buffer_store_dwordx4 %s, %s, %s, %s offen sc1" % (v(QP, 4), v(W_EX), ws, s(S_T0)))
        e("buffer_store_dwordx4 %s, %s, %s, %s offen sc1" % (v(QP + 4, 4), v(W_EX), ws, s(S_T1)))
    e("s_mul_i32 %s, %s, 0x%x" % (s(S_B), s(S_SEG), C.SLAB_ST))
    e("s_lshl_b32 %s, %s, 2" % (s(S_T0), s(S_H)))
    e("s_add_u32 %s, %s, %s" % (s(S_B), s(S_B), s(S_T0)))
    e("s_add_u32 %s, %s, 0x%x" % (s(S_B), s(S_B), C.SLAB_OFF + C.FL_IN))


def phase0(e, c, q):
    if c == 0:
        e("s_mov_b32 %s, %s" % (s(S_SEG), s(S_R)))
        x_issue(e, S_SEG)
        for _ in range(8):
            q.add("x")
    if c == 4:
        q.wait("x")
        x_norm(e)
        p1_addr(e)
        e("s_mov_b32 %s, 0" % s(S_BUF))
    if c == 8:
        if C.OPT.get("prof") == 1:
            e("s_memrealtime s[100:101]")
            e("s_waitcnt lgkmcnt(0)")
            e("s_mov_b32 s91, s100")
        project(e, "KV", (A0, A0 + 1), (A0 + 2, A0 + 3))
        p1_store(e, False)
        wait_handshake(e)
        signal(e, S_B)
        if C.OPT.get("prof") == 1:
            e("s_memrealtime s[100:101]")
            e("s_waitcnt lgkmcnt(0)")
            e("s_mov_b32 s90, s100")
        q.q = []


def phase1(e):
    ws = s(S_WS, 4)
    e.label("L_P1")
    e("s_waitcnt vmcnt(6)")
    e("s_barrier")
    e("s_xor_b32 %s, %s, 32768" % (s(S_BUF), s(S_BUF)))
    e("s_add_u32 %s, %s, %d" % (s(S_A), s(S_SEG), NREP))
    e("s_min_u32 %s, %s, 63" % (s(S_A), s(S_A)))
    x_dma(e, S_A, S_BUF)

    def mid():
        e("s_waitcnt vmcnt(8)")
        e("s_barrier")
        flag_store(e, S_B)
    project(e, "KVQ", (A0, A0 + 1), (A0 + 2, A0 + 3), {6: mid})
    for k in range(4):
        e("v_xor_b32 %s, 0x8000, %s" % (v(A0 + k), v(A0 + k)))
    p1_store(e, True)
    e("s_add_u32 %s, %s, %d" % (s(S_SEG), s(S_SEG), NREP))
    e("s_cmp_lt_u32 %s, 64" % s(S_SEG))
    e("s_cbranch_scc1 L_P1")
    for k in range(4):
        e("v_mov_b32 %s, -1" % v(R0 + 4 + k))
    e("s_lshl_b32 %s, %s, 21" % (s(S_A), s(S_R)))
    e("s_lshl_b32 %s, %s, 15" % (s(S_T0), s(S_H)))
    e("s_add_u32 %s, %s, %s" % (s(S_A), s(S_A), s(S_T0)))
    for b_ in range(2):
        for u in range(8):
            e("s_add_u32 %s, %s, 0x%x" % (s(S_T0), s(S_A), TP_OFF + (b_ << 20) + u * 4096))
            e("buffer_store_dwordx4 %s, %s, %s, %s offen sc1" % (v(R0 + 4, 4), v(W_TPR), ws, s(S_T0)))
    signal(e, S_B)
    e("s_lshl_b32 %s, %s, 7" % (s(S_B), s(S_R)))
    e("s_lshl_b32 %s, %s, 2" % (s(S_T0), s(S_H)))
    e("s_add_u32 %s, %s, %s" % (s(S_T0), s(S_T0), s(S_B)))
    e("s_add_u32 %s, %s, 0x%x" % (s(S_T0), s(S_T0), FLAGTP))
    flag_store(e, S_T0)


def wait_tpinit(e):
    e("s_lshl_b32 %s, %s, 7" % (s(S_B), s(S_R)))
    e("s_add_u32 %s, %s, 0x%x" % (s(S_B), s(S_B), FLAGTP))
    e("v_lshrrev_b32 %s, 2, %s" % (v(T1), v(W_L16)))
    e("v_and_b32 %s, 127, %s" % (v(T1), v(T1)))
    e.label("L_TPI")
    e("buffer_load_dword %s, %s, %s, %s offen sc1" % (v(T0), v(T1), s(S_WS, 4), s(S_B)))
    e("s_add_u32 %s, %s, 1" % (s(S_TMO), s(S_TMO)))
    e("s_cmp_gt_u32 %s, %d" % (s(S_TMO), TMO_LIMIT))
    e("s_waitcnt vmcnt(0)")
    e("s_cbranch_scc1 L_TPI_ok")
    e("v_cmp_eq_u32 vcc, 0, %s" % v(T0))
    e("s_cbranch_vccz L_TPI_ok")
    e("s_sleep 8")
    e("s_branch L_TPI")
    e.label("L_TPI_ok")


def pst(e, i):
    if C.OPT.get("prof") == 1:
        e("s_memrealtime %s" % s(44 + 2 * i, 2))
        e("s_waitcnt lgkmcnt(0)")


QO, KO, VPA = 0, 32, 64
S_RD = 30


def qkv_issue(e, sseg):
    ws = s(S_WS, 4)
    e("s_mul_i32 %s, %s, 0x%x" % (s(S_A), s(sseg), C.SLAB_ST))
    e("s_lshl_b32 %s, %s, 14" % (s(S_T0), s(S_H)))
    e("s_add_u32 %s, %s, %s" % (s(S_A), s(S_A), s(S_T0)))
    e("s_add_u32 %s, %s, 0x%x" % (s(S_A), s(S_A), C.SLAB_OFF))
    for kap in range(2):
        e("s_add_u32 %s, %s, %d" % (s(S_T0), s(S_A), kap * 4096))
        e("s_add_u32 %s, %s, 0x%x" % (s(S_T1), s(S_T0), Q_DELTA))
        for ks in range(4):
            e("buffer_load_dwordx4 %s, %s, %s, %s offen offset:%d sc1" % (a(KO + 16 * kap + 4 * ks, 4), v(W_L16), ws, s(S_T0), ks * 1024))
            e("buffer_load_dwordx4 %s, %s, %s, %s offen offset:%d sc1" % (a(QO + 16 * kap + 4 * ks, 4), v(W_L16), ws, s(S_T1), ks * 1024))
    e("s_lshr_b32 %s, %s, 1" % (s(S_T0), s(S_WAVE)))
    e("s_lshl_b32 %s, %s, 3" % (s(S_T0), s(S_T0)))
    e("s_xor_b32 %s, %s, 8" % (s(S_T1), s(S_T0)))
    e("s_add_u32 %s, %s, 8192" % (s(S_A), s(S_A)))
    e("s_add_u32 %s, %s, %s" % (s(S_T0), s(S_T0), s(S_A)))
    e("s_add_u32 %s, %s, %s" % (s(S_T1), s(S_T1), s(S_A)))
    for T in range(2):
        e("buffer_load_dwordx2 %s, %s, %s, %s offen offset:%d sc1" % (a(VPA + 4 * T, 2), v(W_MW), ws, s(S_T0), T * 1024))
        e("buffer_load_dwordx2 %s, %s, %s, %s offen offset:%d sc1" % (a(VPA + 4 * T + 2, 2), v(W_MW), ws, s(S_T1), T * 1024))


def rdone_store(e):
    e("v_cmp_ne_u32 vcc, 0, %s" % v(W_L16))
    e("v_mov_b32 %s, 0x%x" % (v(T1), OOB))
    e("v_mov_b32 %s, 0" % v(T0))
    e("v_cndmask_b32 %s, %s, %s, vcc" % (v(T1), v(W_L16), v(T1)))
    e("buffer_store_dword %s, %s, %s, %s offen sc1" % (v(T0), v(T1), s(S_WS, 4), s(S_RD)))


def inter(e, mains, fills, per):
    fills = list(fills)
    for m in mains:
        for x in (m if isinstance(m, list) else [m]):
            e(x)
        for _ in range(per):
            if fills:
                e(fills.pop(0))
    for x in fills:
        e(x)


def phase2(e):
    ws = s(S_WS, 4)
    mf16 = lambda d, A, B, first: "v_mfma_f32_16x16x16_bf16 %s, %s, %s, %s" % (v(d, 4), A, B, "0" if first else v(d, 4))
    e("s_mov_b32 %s, %s" % (s(S_SEG), s(S_R)))
    e("s_mov_b32 %s, 0" % s(S_J))
    e("s_mov_b32 %s, 0x%x" % (s(S_RD), OOB))
    qkv_issue(e, S_SEG)
    e.label("L_P2")
    e("s_and_b32 %s, %s, 1" % (s(S_T0), s(S_J)))
    e("s_lshl_b32 %s, %s, 20" % (s(S_T0), s(S_T0)))
    e("s_lshl_b32 %s, %s, 21" % (s(S_TPB), s(S_R)))
    e("s_add_u32 %s, %s, %s" % (s(S_TPB), s(S_TPB), s(S_T0)))
    e("s_add_u32 %s, %s, 0x%x" % (s(S_TPB), s(S_TPB), TP_OFF))
    e("s_bfe_u32 %s, %s, 0x10001" % (s(S_PAR), s(S_J)))
    MB = R0 + 32
    e("s_lshl_b32 %s, %s, 13" % (s(S_A), s(S_SEG)))
    e("s_add_u32 %s, %s, 0x%x" % (s(S_A), s(S_A), C.HIST_OFF))
    e("s_max_u32 %s, %s, 1" % (s(S_B), s(S_SEG)))
    e("s_lshl_b32 %s, %s, 13" % (s(S_B), s(S_B)))
    e("s_add_u32 %s, %s, 0x%x" % (s(S_B), s(S_B), C.HIST_OFF - 0x2000))
    hld = ["buffer_load_dwordx4 %s, %s, %s, %s offen sc1" % (v(MB, 4), v(W_MW), ws, s(S_A)),
           "buffer_load_dwordx4 %s, %s, %s, %s offen offset:1024 sc1" % (v(MB + 4, 4), v(W_MW), ws, s(S_A))]
    for x in hld:
        e(x)
    e("s_lshl_b32 %s, %s, 5" % (s(S_T0), s(S_SEG)))
    e("s_add_u32 %s, %s, %s" % (s(S_T0), s(S_T0), s(S_H)))
    e("s_lshl_b32 %s, %s, 10" % (s(S_T0), s(S_T0)))
    e("buffer_load_dword a72, %s, %s, %s offen" % (v(W_ROW), s(S_X, 4), s(S_T0)))
    e("buffer_load_dword a73, %s, %s, 0 offen" % (v(W_ROW), s(S_WR, 4)))
    e("s_waitcnt vmcnt(4)")
    rdone_store(e)
    S00, S01, S11, SM0, SM1 = R0 + 64, R0 + 68, R0 + 72, R0 + 76, R0 + 80
    for (d, kk, kq) in ((S00, 0, 0), (S11, 1, 1), (S01, 0, 1)):
        for ks in range(4):
            e(mf32(d, a(KO + 16 * kk + 4 * ks, 4), a(QO + 16 * kq + 4 * ks, 4), ks == 0))
    for S_ in (S00, S11):
        for r in range(4):
            e("v_cndmask_b32 %s, %s, %s, %s" % (v(S_ + r), v(W_NEG), v(S_ + r), s(S_M0 + 2 * r, 2)))
    MX = R0 + 100
    g0 = [S00 + r for r in range(4)]
    g1 = [S01 + r for r in range(4)] + [S11 + r for r in range(4)]
    for mx, g_ in ((MX, g0), (MX + 1, g1)):
        e("v_max_f32 %s, %s, %s" % (v(mx), v(g_[0]), v(g_[1])))
        for i in range(2, len(g_), 2):
            e("v_max3_f32 %s, %s, %s, %s" % (v(mx), v(mx), v(g_[i]), v(g_[i + 1])))
    for sw in ("v_permlane16_swap_b32", "v_permlane32_swap_b32"):
        for mx in (MX, MX + 1):
            e("v_mov_b32 %s, %s" % (v(T0), v(mx)))
            e("%s %s, %s" % (sw, v(mx), v(T0)))
            e("v_max_f32 %s, %s, %s" % (v(mx), v(mx), v(T0)))
    for mx, g_ in ((MX, g0), (MX + 1, g1)):
        for r in g_:
            e("v_sub_f32 %s, %s, %s" % (v(r), v(r), v(mx)))
            e("v_exp_f32 %s, %s" % (v(r), v(r)))
    P0, P1, ONES, ONM = R0 + 84, R0 + 88, R0 + 92, R0 + 96
    e(cvt(P0, S00, S00 + 1)); e(cvt(P0 + 1, S00 + 2, S00 + 3))
    e("v_mov_b64 %s, 0" % v(P0 + 2, 2))
    e(cvt(P1, S01, S01 + 1)); e(cvt(P1 + 1, S01 + 2, S01 + 3))
    e(cvt(P1 + 2, S11, S11 + 1)); e(cvt(P1 + 3, S11 + 2, S11 + 3))
    e("v_mov_b64 %s, %s" % (v(ONES, 2), s(S_ONES, 2)))
    e("v_mov_b64 %s, %s" % (v(ONES + 2, 2), s(S_ONES, 2)))
    for k in range(2):
        e("v_cndmask_b32 %s, 0, %s, %s" % (v(ONM + k), v(ONES), s(S_MM, 2)))
    LX, OX = R0, R0 + 8
    for kq, P_ in ((0, P0), (1, P1)):
        e(mf32(LX + 4 * kq, v(ONES, 4), v(P_, 4), True))
        for T in range(2):
            e(mf32(OX + 8 * kq + 4 * T, a(VPA + 4 * T, 4), v(P_, 4), True))
    e("s_branch L_P2_chk")
    e.label("L_P2_far")
    e("buffer_load_dword %s, %s, %s, %s offen sc1" % (v(T0), v(W_MW), ws, s(S_B)))
    e("s_add_u32 %s, %s, 1" % (s(S_TMO), s(S_TMO)))
    e("s_cmp_gt_u32 %s, %d" % (s(S_TMO), TMO_LIMIT))
    e("s_waitcnt vmcnt(0)")
    e("s_cbranch_scc1 L_P2_poll")
    e("v_cmp_eq_u32 vcc, -1, %s" % v(T0))
    e("s_cbranch_vccz L_P2_near")
    e("s_sleep %d" % C.OPT.get("farsl", 12))
    e("s_branch L_P2_far")
    e.label("L_P2_near")
    e("s_mov_b32 %s, 0x%x" % (s(S_B), OOB))
    e.label("L_P2_poll")
    for x in hld:
        e(x)
    e.label("L_P2_chk")
    e("s_add_u32 %s, %s, 1" % (s(S_TMO), s(S_TMO)))
    e("s_waitcnt vmcnt(0)")
    e("ds_write_b128 %s, %s offset:%d" % (v(W_MW), v(MB, 4), MEMI))
    e("ds_write_b128 %s, %s offset:%d" % (v(W_MW), v(MB + 4, 4), MEMI + 1024))
    e("v_max3_u32 %s, %s, %s, %s" % (v(T0), v(MB), v(MB + 1), v(MB + 2)))
    e("v_max3_u32 %s, %s, %s, %s" % (v(T1), v(MB + 3), v(MB + 4), v(MB + 5)))
    e("v_max3_u32 %s, %s, %s, %s" % (v(T0), v(T0), v(MB + 6), v(MB + 7)))
    e("v_max_u32 %s, %s, %s" % (v(T0), v(T0), v(T1)))
    e("v_cmp_eq_u32 vcc, -1, %s" % v(T0))
    e("s_cbranch_vccz L_P2_got")
    e("s_cmp_gt_u32 %s, %d" % (s(S_TMO), TMO_LIMIT))
    e("s_cbranch_scc1 L_P2_got")
    if C.OPT.get("nearsl"):
        e("s_sleep %d" % C.OPT["nearsl"])
    e("s_cmp_eq_u32 %s, 0x%x" % (s(S_B), OOB))
    e("s_cbranch_scc1 L_P2_poll")
    e("s_branch L_P2_far")
    e.label("L_P2_got")
    pst(e, 0)
    e("s_waitcnt lgkmcnt(0)")
    e("s_barrier")
    AKM, AVM = R0 + 64, R0 + 24
    MO = R0 + 32
    moff = lambda ks: ((ks & 3) * 128 + ((ks >> 2) & 1) * 32 + (ks >> 3) * 64) * 16
    rdm = lambda i: "ds_read_b128 %s, %s offset:%d" % (v(MO + 4 * (i % 4), 4), v(W_MR), moff(i % 16))
    for i in range(3):
        e(rdm(i))
    for ks in range(16):
        e(rdm(ks + 3))
        e("s_waitcnt lgkmcnt(3)")
        for T in range(2):
            e(mf32(AKM + 4 * T, wreg("K", T, ks), v(MO + 4 * (ks % 4), 4), ks == 0))
    KMP, KMO = R0 + 72, R0 + 48
    PM = R0 + 84
    FX = R0 + 88
    vm = lambda ks, n: ([rdm(16 + ks + 3)] if ks + 3 < 16 else []) + ["s_waitcnt lgkmcnt(%d)" % n] + \
        [mf32(AVM + 4 * T, v(MO + 4 * (ks % 4), 4), wreg("V", T, ks), ks == 0) for T in range(2)]
    for x in vm(0, 3) + vm(1, 3):
        e(x)
    kf = ["v_mul_f32 %s, %s, %s" % (v(AKM + r), s(S_SCALE), v(AKM + r)) for r in range(8)] + [cvt(KMP + r, AKM + r, AKM + 4 + r) for r in range(4)]
    inter(e, [vm(2, 3), vm(3, 3), vm(4, 3)], kf, 4)
    e("ds_write_b128 %s, %s offset:%d" % (v(W_EX), v(KMP, 4), EX_KM))
    for x in vm(5, 4) + vm(6, 4) + vm(7, 4):
        e(x)
    e("s_waitcnt lgkmcnt(3)")
    e("s_barrier")
    for ks in range(4):
        e("ds_read_b128 %s, %s offset:%d" % (v(KMO + 4 * ks, 4), v(W_L16), EX_KM + ks * 1024))
    for x in vm(8, 7) + vm(9, 7):
        e(x)
    e("s_waitcnt lgkmcnt(2)")
    for ks in range(4):
        for (d, kq) in ((SM0, 0), (SM1, 1)):
            e(mf32(d, v(KMO + 4 * ks, 4), a(QO + 16 * kq + 4 * ks, 4), ks == 0))
    for x in vm(10, 3):
        e(x)
    M2 = R0 + 102
    sf = []
    for kq, S_ in ((0, SM0), (1, SM1)):
        sf += ["v_max3_f32 %s, %s, %s, %s" % (v(M2 + kq), v(S_), v(S_ + 1), v(S_ + 2)),
               "v_max3_f32 %s, %s, %s, %s" % (v(M2 + kq), v(M2 + kq), v(S_ + 3), v(MX + kq))]
    sf += ["v_mov_b32 %s, %s" % (v(T0), v(M2)), "v_mov_b32 %s, %s" % (v(T1), v(M2 + 1)),
           "v_permlane16_swap_b32 %s, %s" % (v(M2), v(T0)), "v_permlane16_swap_b32 %s, %s" % (v(M2 + 1), v(T1)),
           "v_max_f32 %s, %s, %s" % (v(M2), v(M2), v(T0)), "v_max_f32 %s, %s, %s" % (v(M2 + 1), v(M2 + 1), v(T1))]
    for kq, S_ in ((0, SM0), (1, SM1)):
        for r in range(4):
            sf += ["v_sub_f32 %s, %s, %s" % (v(S_ + r), v(S_ + r), v(M2 + kq)), "v_exp_f32 %s, %s" % (v(S_ + r), v(S_ + r))]
        sf += ["v_sub_f32 %s, %s, %s" % (v(FX + kq), v(MX + kq), v(M2 + kq)), "v_exp_f32 %s, %s" % (v(FX + kq), v(FX + kq))]
        sf += [cvt(PM + 2 * kq, S_, S_ + 1), cvt(PM + 2 * kq + 1, S_ + 2, S_ + 3)]
    inter(e, [vm(11, 3), vm(12, 3), vm(13, 2), vm(14, 1), vm(15, 0)], sf, 6)
    LM, OM = R0 + 32, R0 + 40
    for kq in range(2):
        e(mf16(LM + 4 * kq, v(ONM, 2), v(PM + 2 * kq, 2), True))
    VMP = R0 + 64
    for T in range(2):
        for k in range(2):
            e(cvt(VMP + 2 * T + k, AVM + 4 * T + 2 * k, AVM + 4 * T + 2 * k + 1))
            e("v_cndmask_b32 %s, 0, %s, %s" % (v(VMP + 2 * T + k), v(VMP + 2 * T + k), s(S_MM, 2)))
    for kq in range(2):
        for T in range(2):
            e(mf16(OM + 8 * kq + 4 * T, v(VMP + 2 * T, 2), v(PM + 2 * kq, 2), True))
    OP = R0 + 56
    for kq in range(2):
        e("v_fma_f32 %s, %s, %s, %s" % (v(LM + 4 * kq), v(LX + 4 * kq), v(FX + kq), v(LM + 4 * kq)))
        e("v_rcp_f32 %s, %s" % (v(LM + 4 * kq), v(LM + 4 * kq)))
    for kq in range(2):
        for r in range(8):
            e("v_fma_f32 %s, %s, %s, %s" % (v(OM + 8 * kq + r), v(OX + 8 * kq + r), v(FX + kq), v(OM + 8 * kq + r)))
        for r in range(0, 8, 2):
            e("v_pk_mul_f32 %s, %s, %s op_sel_hi:[1,0]" % (v(OM + 8 * kq + r, 2), v(OM + 8 * kq + r, 2), v(LM + 4 * kq, 2)))
        for r in range(4):
            e(cvt(OP + 4 * kq + r, OM + 8 * kq + r, OM + 8 * kq + 4 + r))
        e("ds_write_b128 %s, %s offset:%d" % (v(W_EX), v(OP + 4 * kq, 4), EX_O + kq * 4096))
    OO = R0
    WB = R0 + 32
    WA = R0 + 48
    seq = [(kq, ks, T) for kq in range(2) for ks in range(4) for T in range(8)]
    rdw = lambda i: "ds_read_b128 %s, %s offset:%d" % (v(WB + 4 * (i % 4), 4), v(W_WO), (seq[i][1] * 8 + seq[i][2]) * 1024)
    e("s_waitcnt lgkmcnt(0)")
    e("s_barrier")
    pst(e, 1)
    for kq in range(2):
        for ks in range(4):
            e("ds_read_b128 %s, %s offset:%d" % (v(OO + 16 * kq + 4 * ks, 4), v(W_L16), EX_O + kq * 4096 + ks * 1024))
    for i in range(3):
        e(rdw(i))
    e("s_lshl_b32 %s, %s, 10" % (s(S_T0), s(S_H)))
    e("s_add_u32 %s, %s, %s" % (s(S_B), s(S_TPB), s(S_T0)))

    def outs(kq):
        o = []
        for r in range(4):
            d = OO + 16 * kq + 4 * r
            o += [cvt(d + q, WA + 32 * kq + 8 * q + r, WA + 32 * kq + 8 * q + 4 + r) for q in range(4)]
            o += ["v_and_or_b32 %s, %s, -2, %s" % (v(d), v(d), s(S_PAR)),
                  "s_add_u32 %s, %s, 0x%x" % (s(S_T0), s(S_B), (16 * kq + r) * 32768),
                  "buffer_store_dwordx4 %s, %s, %s, %s offen sc1" % (v(d, 4), v(W_TPW), ws, s(S_T0))]
        return o
    o0 = outs(0)
    for i, (kq, ks, T) in enumerate(seq):
        e("s_waitcnt lgkmcnt(%d)" % min(2, 63 - i))
        e(mf32(WA + 32 * kq + 4 * T, v(OO + 16 * kq + 4 * ks, 4), v(WB + 4 * (i % 4), 4), ks == 0))
        if i + 3 < 64:
            e(rdw(i + 3))
        if i >= 35 and o0:
            e(o0.pop(0))
    assert not o0
    pst(e, 2)
    for x in outs(1):
        e(x)
    e("s_add_u32 %s, %s, %d" % (s(S_T2), s(S_SEG), NREP))
    e("s_cmp_ge_u32 %s, 64" % s(S_T2))
    e("s_cbranch_scc1 L_P2_last")
    qkv_issue(e, S_T2)
    e.label("L_P2_last")
    SEL, XV, WRV = R0 + 32, R0 + 36, R0 + 37
    e("s_lshl_b32 %s, %s, 5" % (s(S_A), s(S_SEG)))
    e("s_add_u32 %s, %s, %s" % (s(S_A), s(S_A), s(S_H)))
    e("s_lshl_b32 %s, %s, 10" % (s(S_A), s(S_A)))
    e("v_accvgpr_read_b32 %s, a72" % v(XV))
    e("v_accvgpr_read_b32 %s, a73" % v(WRV))
    e("v_and_b32 %s, 15, v0" % v(T1))
    for q in range(4):
        e("v_mov_b32 %s, 0" % v(SEL + q))
        e("v_mov_b32 %s, 0x3f80" % v(T0))
        e("v_cmp_eq_u32 vcc, %d, %s" % (4 * q, v(T1)))
        e("v_cndmask_b32 %s, %s, %s, vcc" % (v(SEL + q), v(SEL + q), v(T0)))
        e("v_mov_b32 %s, 0x3f800000" % v(T0))
        e("v_cmp_eq_u32 vcc, %d, %s" % (4 * q + 1, v(T1)))
        e("v_cndmask_b32 %s, %s, %s, vcc" % (v(SEL + q), v(SEL + q), v(T0)))
    e("s_lshl_b32 %s, %s, 15" % (s(S_B), s(S_H)))
    e("s_add_u32 %s, %s, %s" % (s(S_B), s(S_B), s(S_TPB)))
    PD = R0 + 64
    pst(e, 3)
    e.label("L_P3_poll")
    for u in range(8):
        e("s_add_u32 %s, %s, %d" % (s(S_T0), s(S_B), u * 4096))
        e("buffer_load_dwordx4 %s, %s, %s, %s offen sc1" % (v(PD + 4 * u, 4), v(W_TPR), ws, s(S_T0)))
    e("s_mov_b64 exec, -1")
    e("s_add_u32 %s, %s, 1" % (s(S_TMO), s(S_TMO)))
    e("s_cmp_gt_u32 %s, %d" % (s(S_TMO), TMO_LIMIT))
    RD = R0 + 40
    for u in range(8):
        e("s_waitcnt vmcnt(%d)" % (7 - u))
        e(mf32(RD, v(SEL, 4), v(PD + 4 * u, 4), u == 0))
        if u & 1:
            e("v_bitop3_b32 %s, %s, %s, %s bitop3:0x7e" % (v(R0 + 44 + (u >> 1)), v(PD + 4 * u - 4), v(PD + 4 * u), s(S_PAR)))
    e("v_or3_b32 %s, %s, %s, %s" % (v(T0), v(R0 + 44), v(R0 + 45), v(R0 + 46)))
    e("v_bitop3_b32 %s, %s, %s, 1 bitop3:0xa8" % (v(T0), v(T0), v(R0 + 47)))
    e("s_cbranch_scc1 L_P3_got")
    e("v_cmp_ne_u32 vcc, 0, %s" % v(T0))
    e("s_cbranch_vccz L_P3_got")
    e("s_mov_b64 exec, vcc")
    e("s_branch L_P3_poll")
    e.label("L_P3_got")
    pst(e, 4)
    e("s_nop 4")
    H0, H1, HP, SU, SQ, A_, B_, XP = range(R0 + 44, R0 + 52)
    lo = lambda d, x: e("v_lshlrev_b32 %s, 16, %s" % (v(d), v(x)))
    hi = lambda d, x: e("v_and_b32 %s, 0xffff0000, %s" % (v(d), v(x)))
    e(cvt(HP, RD, RD + 1))
    lo(A_, HP); hi(B_, HP)
    lo(H0, XV); hi(H1, XV)
    e("v_add_f32 %s, %s, %s" % (v(H0), v(H0), v(A_)))
    e("v_add_f32 %s, %s, %s" % (v(H1), v(H1), v(B_)))
    e(cvt(HP, H0, H1))
    lo(H0, HP); hi(H1, HP)
    e("v_add_f32 %s, %s, %s" % (v(SU), v(H0), v(H1)))
    e("v_mul_f32 %s, %s, %s" % (v(SQ), v(H0), v(H0)))
    e("v_fmac_f32 %s, %s, %s" % (v(SQ), v(H1), v(H1)))
    wave_sum(e, [SU, SQ], T0)
    e("v_mov_b32 %s, %s" % (v(T1), s(S_WAVE)))
    e("v_lshlrev_b32 %s, 3, %s" % (v(T1), v(T1)))
    e("v_add_u32 %s, %d, %s" % (v(T1), RED, v(T1)))
    e("ds_write2_b32 %s, %s, %s offset0:0 offset1:1" % (v(T1), v(SU), v(SQ)))
    e("s_add_u32 %s, %s, 0x%x" % (s(S_T0), s(S_A), HROW))
    e("buffer_store_dword %s, %s, %s, %s offen sc1" % (v(HP), v(W_ROW), ws, s(S_T0)))
    e("s_waitcnt lgkmcnt(0)")
    e("s_barrier")
    RR = R0 + 52
    e("v_mov_b32 %s, %d" % (v(T1), RED))
    e("ds_read_b128 %s, %s" % (v(RR, 4), v(T1)))
    e("ds_read_b128 %s, %s offset:16" % (v(RR + 4, 4), v(T1)))
    e("s_waitcnt lgkmcnt(0)")
    for k, d in ((0, SU), (1, SQ)):
        e("v_add_f32 %s, %s, %s" % (v(d), v(RR + k), v(RR + 2 + k)))
        e("v_add_f32 %s, %s, %s" % (v(d), v(d), v(RR + 4 + k)))
        e("v_add_f32 %s, %s, %s" % (v(d), v(d), v(RR + 6 + k)))
        e("v_mul_f32 %s, 0x%x, %s" % (v(d), f32bits(1 / 512), v(d)))
    e("v_fma_f32 %s, -%s, %s, %s" % (v(SQ), v(SU), v(SU), v(SQ)))
    e("v_max_f32 %s, 0, %s" % (v(SQ), v(SQ)))
    e(cvt(T0, SU, SQ))
    lo(SU, T0); hi(SQ, T0)
    e("v_add_f32 %s, 0x%x, %s" % (v(SQ), f32bits(1e-5), v(SQ)))
    e(cvt(T0, SQ, SQ)); lo(SQ, T0)
    e("v_sqrt_f32 %s, %s" % (v(SQ), v(SQ)))
    e(cvt(T0, SQ, SQ)); lo(SQ, T0)
    e("v_rcp_f32 %s, %s" % (v(SQ), v(SQ)))
    e("v_sub_f32 %s, %s, %s" % (v(A_), v(H0), v(SU)))
    e("v_sub_f32 %s, %s, %s" % (v(B_), v(H1), v(SU)))
    e(cvt(T0, A_, B_)); lo(A_, T0); hi(B_, T0)
    e("v_mul_f32 %s, %s, %s" % (v(A_), v(A_), v(SQ)))
    e("v_mul_f32 %s, %s, %s" % (v(B_), v(B_), v(SQ)))
    e(cvt(XP, A_, B_))
    lo(A_, XP); hi(B_, XP)
    W0, W1 = RR, RR + 1
    lo(W0, WRV); hi(W1, WRV)
    e("v_mul_f32 %s, %s, %s" % (v(SU), v(A_), v(W0)))
    e("v_fmac_f32 %s, %s, %s" % (v(SU), v(B_), v(W1)))
    wave_sum(e, [SU], T0)
    e("s_lshr_b32 %s, %s, 6" % (s(S_B), s(S_A)))
    e("s_lshl_b32 %s, %s, 2" % (s(S_T1), s(S_WAVE)))
    e("s_add_u32 %s, %s, %s" % (s(S_B), s(S_B), s(S_T1)))
    e("s_add_u32 %s, %s, 0x%x" % (s(S_T0), s(S_B), RVAL))
    e("v_cmp_ne_u32 vcc, 0, %s" % v(W_L16))
    e("v_mov_b32 %s, 0x%x" % (v(T1), OOB))
    e("v_cndmask_b32 %s, %s, %s, vcc" % (v(T1), v(W_L16), v(T1)))
    e("buffer_store_dword %s, %s, %s, %s offen sc1" % (v(SU), v(T1), ws, s(S_T0)))
    e("v_add_f32 %s, %s, %s" % (v(H0), v(H0), v(A_)))
    e("v_add_f32 %s, %s, %s" % (v(H1), v(H1), v(B_)))
    e(cvt(HP, H0, H1))
    e("buffer_store_dword %s, %s, %s, %s offen sc1" % (v(HP), v(W_ROW), s(S_OUT, 4), s(S_A)))
    e("s_add_u32 %s, %s, 0x%x" % (s(S_T0), s(S_A), XN2))
    e("buffer_store_dword %s, %s, %s, %s offen sc1" % (v(XP), v(W_ROW), ws, s(S_T0)))
    pst(e, 5)
    e("s_add_u32 %s, %s, 0x%x" % (s(S_RD), s(S_B), RDONE))
    e("s_add_u32 %s, %s, 1" % (s(S_J), s(S_J)))
    e("s_barrier")
    e("s_add_u32 %s, %s, %d" % (s(S_SEG), s(S_SEG), NREP))
    e("s_cmp_lt_u32 %s, 64" % s(S_SEG))
    e("s_cbranch_scc1 L_P2")
    e("s_waitcnt vmcnt(0)")
    rdone_store(e)
```

```python
import sys
from asmlib import Emitter, v, a, s
import chain as C
for a_ in sys.argv:
    if a_.startswith('opt:'):
        k_, v_ = a_[4:].split('=')
        C.OPT[k_] = int(v_, 0) if v_.lstrip('-')[:1].isdigit() else v_.replace('_', ' ')
import worker as W
import mlp as M

BASE = "sequential_preLN__memory_aug_recurrent_mem_tr__moe_arch_mod__prompt"
K1 = BASE + "_kernel"
K2 = "route_up_kernel"
K3 = "down_kernel"
hdr = open(__import__("os").path.join(__import__("os").path.dirname(__import__("os").path.abspath(__file__)), "..", "%s.s.ref" % BASE)).read().split("\n")
hdr = [l for l in hdr[:hdr.index(next(l for l in hdr if "@launch" in l and l.startswith("; @launch")))] if "harness parses" not in l.lower() and "Override launch" not in l]
e = Emitter()
for l in hdr:
    e.raw(l)
if C.OPT.get("list"):
    e.raw("; @launch kernel=%s grid=(256,1,1) block=(256,1,1) lds=%d" % (K1, C.LDS_BYTES))
else:
    e.raw("; @launch grid=(256,1,1) block=(256,1,1) lds=%d" % C.LDS_BYTES)
e.raw('.amdgcn_target "amdgcn-amd-amdhsa--gfx950"')
e.raw(".text")


def start(name):
    e.raw(".globl %s\n.p2align 8\n.type %s,@function" % (name, name))
    e.label(name)
    e.hist = []


PROF = C.OPT.get("prof", 0)


def rt(i, dbg=None):
    if not PROF:
        return
    if PROF == 2:
        if dbg is None:
            return
        e("s_cmp_lg_u32 %s, 0" % s(C.S_WAVE))
        e("s_cbranch_scc1 L_rt%d" % dbg)
        if dbg in (0, 3, 4):
            e("s_cmp_ge_u32 s2, 16")
            e("s_cbranch_scc1 L_rt%d" % dbg)
        e("s_memrealtime s[100:101]")
        e("s_waitcnt lgkmcnt(0)")
        e("s_and_b32 s100, s100, 0xffffff")
        if dbg == 0:
            e("s_sub_u32 s100, 0x1000000, s100")
        e("v_mov_b32 v14, s100")
        e("s_mov_b64 exec, 1")
        e("buffer_atomic_umax v14, off, %s, 0 offset:%d" % (s(C.S_DBG, 4), 4 * dbg))
        e("s_mov_b64 exec, -1")
        e.label("L_rt%d" % dbg)
        return
    e("s_memrealtime s[100:101]")
    e("s_lshl_b32 s3, s2, 6")
    e("s_add_u32 s3, s3, 0x%x" % C.STAMP_OFF)
    e("s_waitcnt lgkmcnt(0)")
    e("v_mov_b32 v14, s100")
    e("buffer_store_dword v14, off, %s, s3 offset:%d" % (s(C.S_WS, 4), 4 * i))
    e("s_waitcnt vmcnt(0)")


start(K1)
P = C.S_PTR
e("s_cmp_ge_u32 s2, 256")
e("s_cbranch_scc1 L_end")
e("s_load_dwordx8 %s, s[0:1], 0" % s(P, 8))
e("s_load_dwordx4 %s, s[0:1], 32" % s(P + 8, 4))
e("s_load_dwordx4 %s, s[0:1], 104" % s(P + 12, 4))
e("s_load_dwordx2 s[80:81], s[0:1], 64")
e("s_load_dwordx2 s[82:83], s[0:1], 96")
e("s_load_dwordx4 s[84:87], s[0:1], 72")
e("s_load_dwordx2 s[88:89], s[0:1], 88")
e("v_lshrrev_b32 v1, 6, v0")
e("v_readfirstlane_b32 %s, v1" % s(C.S_WAVE))
e("s_waitcnt lgkmcnt(0)")
C.srd(e, C.S_WS, P + 14, C.WS_BYTES)
C.srd(e, C.S_DBG, P + 12, 256)
rt(0, 0)
e("s_and_b32 s3, s2, 7")
e("s_cmp_lg_u32 s3, 0")
e("s_cbranch_scc1 L_worker")
e("s_lshr_b32 %s, s2, 3" % s(C.S_H))


def chain_pre(q):
    C.xcc_publish(e, q)
    C.mem0_load(e, P + 2, C.HPEND, 104, 105, 106, C.S_W)
    q.add("m0")
    C.setup_consts(e)
    C.setup_pf(e)


C.load_weights(e, P + 4, P + 6, P + 8, P + 10, pre=chain_pre)
rt(1, 1)
e("s_cmp_lg_u32 %s, 0" % s(C.S_MODE))
e("s_cbranch_scc1 L_slow_start")
C.main_loop(e, "fast", "", 63, bool(C.OPT.get("trace")))
rt(2, 2)
e("s_branch L_end")
C.main_loop(e, "slow", " sc1", 63)
e("s_branch L_end")
e.label("L_worker")


def common():
    C.srd(e, W.S_X, P, 2048 * 512 * 2)
    C.srd(e, W.S_OUT, 82, 2048 * 512 * 2)
    C.srd(e, W.S_WR, 80, 1024)
    W.setup(e)


def worker_pre(q):
    if C.OPT.get("touch", 1):
        e.comment("pull this head's Wo slice towards the last-level cache early (the chain CU streams it first)")
        C.srd(e, W.S_X, P + 10, 4096 * 512 * 2)
        e("s_lshl_b32 s24, %s, 17" % s(C.S_H))
        e("s_and_b32 s25, %s, 3" % s(W.S_R))
        e("s_lshl_b32 s25, s25, 15")
        e("s_add_u32 s24, s24, s25")
        e("v_lshlrev_b32 v30, 7, v0")
        e("buffer_load_dword v31, v30, %s, s24 offen" % s(W.S_X, 4))
        q.add("touch")
    common()


e("s_cmp_eq_u32 s3, 7")
e("s_cbranch_scc1 L_mlp")
W.ids(e)
if C.OPT.get("stag"):
    e("s_cmp_lt_u32 %s, %d" % (s(W.S_R), C.OPT.get("stagr", 1)))
    e("s_cbranch_scc1 L_go")
    for _ in range(C.OPT["stag"]):
        e("s_sleep 36")
    e.label("L_go")
W.load_w(e, P, C.OPT.get("word", "VKQ"), worker_pre)
rt(1, 3)
if PROF == 1:
    for i in range(2):
        e("v_mov_b32 v14, %s" % s(90 + i))
        e("buffer_store_dword v14, off, %s, s3 offset:%d" % (s(C.S_WS, 4), 24 + 4 * i))
W.phase1(e)
rt(2, 4)
W.load_wo(e, P)
W.wait_tpinit(e)
rt(3)
W.phase2(e)
rt(4, 5)
if PROF == 1:
    for i in range(6):
        e("v_mov_b32 v14, %s" % s(44 + 2 * i))
        e("buffer_store_dword v14, off, %s, s3 offset:%d" % (s(C.S_WS, 4), 32 + 4 * i))
    e("v_mov_b32 v14, %s" % s(C.S_TMO))
    e("buffer_store_dword v14, off, %s, s3 offset:56" % s(C.S_WS, 4))
    e("v_mov_b32 v14, %s" % s(W.S_R))
    e("buffer_store_dword v14, off, %s, s3 offset:60" % s(C.S_WS, 4))
e("s_branch L_end")
e.label("L_mlp")
common()
e("s_lshr_b32 %s, s2, 3" % s(C.S_H))
W.xn_produce(e, lambda: C.init_fill(e, P + 2, W.W_MW, W.R0 + 48, 96))
rt(1)
M.body(e, 84, 86, 88)
e.label("L_end")
if PROF:
    e("s_cmp_ge_u32 s2, 256")
    e("s_cbranch_scc1 L_end2")
    rt(5, 6)
    e.label("L_end2")
e("s_endpgm")
e.raw('.section .rodata,"a"')
for name, nv, acc in ((K1, 512, 256),):
    e.raw(""".p2align 6
.amdhsa_kernel %s
  .amdhsa_next_free_vgpr %d
  .amdhsa_next_free_sgpr 102
  .amdhsa_accum_offset %d
  .amdhsa_group_segment_fixed_size 0
  .amdhsa_kernarg_size 120
  .amdhsa_user_sgpr_count 2
  .amdhsa_user_sgpr_kernarg_segment_ptr 1
  .amdhsa_system_sgpr_workgroup_id_x 1
.end_amdhsa_kernel""" % (name, nv, acc))
out = sys.argv[1] if len(sys.argv) > 1 and not sys.argv[1].startswith("opt:") else "/code/%s.s" % BASE
open(out, "w").write(e.text())
print("nops inserted:", e.nops_inserted, "lines:", len(e.lines), "->", out)
```

```python
from asmlib import Emitter, v, a, s
import struct

WS_BYTES = 0x10000000
PB_OFF = 0x0000000
SYNC_OFF = 0x0080000
HIST_OFF = 0x0100000
FLAG_OFF = 0x0190000
STAMP_OFF = 0x01A0000
SLAB_OFF = 0x1000000
SLAB_ST = 0x82100
MB_IN = 0x80000
FL_IN = 0x82000
OOB = 0x40000000

L_MEMI = 0
L_PX = 8192
RS = 72
L_QX = 16384
L_KMX = L_QX + 2304
L_OX = L_KMX + 2304
L_SEL = L_OX + 2048
L_WL = 32768
LDS_BYTES = 163840

S_WS = 8
S_W = 12
S_DBG = 16
S_H = 20
S_WAVE = 21
S_STEP = 22
S_SLAB = 23
S_SLABN = 24
S_KXO = 25
S_KX = 29
S_VX = 30
S_HIST = 31
S_TMO = 32
S_SCALE = 33
S_PLO = 34
S_PHI = 35
S_T0 = 36
S_T1 = 37
S_T2 = 38
S_VXO = 39
S_BIG = 40
S_PR = 6
S_MB = 7
S_4K = 26
S_PAR = 27
S_RDY = 62
S_NPAR = 28
S_TAG = 60
S_OOB = 61
S_FW = 88
S_FR = 89
S_NEXT = 90
S_SPIN = 91
S_LIM = 94
S_U0 = 95
S_HM = 92
S_W3 = 95
S_ONES = 4
S_PTR = 44
S_ST = 64

C_PF = 0
C_IDX, C_MW, C_L16, C_WL, C_QW, C_QR, C_KW, C_X2, C_PW, C_MP, FREE1, HPEND, C_FL, T0, JUNK = range(1, 16)
AM = 16
ACCQ = 48
ACCK = 56
ACCV = 64
QB = 72
XA = 88
XB = 104
VX = 120
VW = 128

TMO_LIMIT = 200000
OPT = {}


def f32bits(x):
    return struct.unpack("<I", struct.pack("<f", x))[0]


def lin(e, dst, coefs, const=0, tmp=T0, src=0):
    e("v_mov_b32 %s, 0x%x" % (v(dst), const))
    for k, c in sorted(coefs.items()):
        if c == 0:
            continue
        assert c < (1 << 24)
        e("v_bfe_u32 %s, %s, %d, 1" % (v(tmp), v(src), k))
        e("s_mov_b32 %s, 0x%x" % (s(S_T2), c))
        e("v_mad_u32_u24 %s, %s, %s, %s" % (v(dst), v(tmp), s(S_T2), v(dst)))


def srd(e, d, ptr, nbytes):
    e("s_mov_b32 %s, %s" % (s(d), s(ptr)))
    e("s_and_b32 %s, %s, 0xffff" % (s(d + 1), s(ptr + 1)))
    e("s_mov_b32 %s, 0x%x" % (s(d + 2), nbytes))
    e("s_mov_b32 %s, 0x20000" % s(d + 3))


LDS_OPS = {
    ("Q", 0, 0): XB + 0, ("Q", 1, 0): XB + 8, ("Q", 0, 1): XA + 0, ("Q", 1, 1): XA + 8,
    ("K", 0, 0): QB + 0, ("K", 1, 0): QB + 8,
    ("Q", 0, 7): XA + 0, ("Q", 1, 7): XA + 8,
    ("K", 0, 2): QB + 0, ("K", 1, 2): QB + 8,
    ("K", 0, 7): XA + 0, ("K", 1, 7): XA + 8,
    ("O", 2, 3): XA + 0, ("O", 3, 1): XA + 8, ("O", 3, 2): QB + 0, ("O", 3, 3): QB + 8,
}
OLDS = [("O", 2, 3), ("O", 3, 1), ("O", 3, 2), ("O", 3, 3)]
LDS_SLOT = {k: i for i, k in enumerate(LDS_OPS)}
ALL_OPS = [(m, T, u) for m in "QKV" for u in range(8) for T in range(2)] + [("O", q, u) for u in range(4) for q in range(4)]
RES = {}
_n = 0
for op in ALL_OPS:
    if op in LDS_OPS:
        continue
    RES[op] = ("a", _n * 8) if _n < 32 else ("v", VW + (_n - 32) * 8)
    _n += 1
assert _n == 48


def opreg(op):
    if op in LDS_OPS:
        return v(LDS_OPS[op], 8)
    k, r = RES[op]
    return (a if k == "a" else v)(r, 8)


def lds_fetch_ins(op):
    r = LDS_OPS[op]
    off = LDS_SLOT[op] * 2048
    return ["ds_read_b128 %s, %s offset:%d" % (v(r, 4), v(C_WL), off),
            "ds_read_b128 %s, %s offset:%d" % (v(r + 4, 4), v(C_WL), off + 1024)]


def lds_fetch(e, op):
    for t in lds_fetch_ins(op):
        e(t)


def rowpart(rho, b, hi=32):
    return hi * (rho >> 2) + 8 * (rho & 1) + 2 * ((rho >> 1) & 1) + b


class VmQ:
    def __init__(self, e):
        self.e, self.q = e, []

    def add(self, tag):
        self.q.append(tag)
        assert len(self.q) <= 63

    def wait(self, tag):
        if tag not in self.q:
            return
        last = len(self.q) - 1 - self.q[::-1].index(tag)
        self.e("s_waitcnt vmcnt(%d)" % (len(self.q) - 1 - last))
        self.q = self.q[last + 1:]


def staged_load(e, chunks, ptrs, srds, swz_bits, dma_k, lane_f, row_lane, blk_xor_wave, reads, side=None, pre=None, nslot=3):
    AD, AR = 16, 20
    TT = 28
    e("v_lshrrev_b32 %s, 6, v0" % v(TT))
    e("v_bfe_u32 %s, v0, 4, 2" % v(TT + 1))
    e("v_lshl_add_u32 %s, %s, 5, %s" % (v(TT), v(TT), v(TT + 1)))
    e("v_and_b32 %s, 15, v0" % v(AD))
    e("v_lshlrev_b32 %s, 4, %s" % (v(AD), v(AD)))
    e("v_lshl_add_u32 %s, %s, 13, %s" % (v(AD), v(TT), v(AD)))
    e("v_bfe_u32 %s, v0, 4, %d" % (v(TT + 1), swz_bits))
    e("v_lshlrev_b32 %s, 5, %s" % (v(TT + 1), v(TT + 1)))
    e("v_xor_b32 %s, %s, %s" % (v(AD), v(AD), v(TT + 1)))
    for k in range(1, 4):
        e("v_xor_b32 %s, %d, %s" % (v(AD + k), dma_k(k), v(AD)))
    S_LB, S_GB = 28, 3
    e("s_add_u32 %s, %s, 1" % (s(S_LB), s(S_WAVE)))
    e("s_lshl_b32 %s, %s, 15" % (s(S_LB), s(S_LB)))
    e("s_lshl_b32 %s, %s, 8" % (s(S_GB), s(S_H)))
    q = VmQ(e)
    built = set()

    def dma(c):
        m, ci = chunks[c]
        if m not in built:
            srd(e, srds[m], ptrs[m], 512 * 4096 * 2)
            built.add(m)
        for i in range(8):
            e("s_add_u32 m0, %s, %d" % (s(S_LB), (c % nslot) * 8192 + i * 1024))
            e("s_add_u32 %s, %s, 0x%x" % (s(S_T1), s(S_GB), (128 * ci + 4 * i) * 8192))
            e("buffer_load_dwordx4 %s, %s, %s offen%s lds" % (v(AD + (i & 3)), s(srds[m], 4), s(S_T1), OPT.get("cnt", "") if blk_xor_wave else OPT.get("wnt", "")))
            q.add(("c", c))
    for c in range(nslot):
        dma(c)
    lin(e, AR, {0: 8, 1: 16, **{k: c * 256 for k, c in row_lane.items()}})
    lin(e, TT, lane_f)
    lin(e, TT + 1, {6: 64, 7: 128})
    e("v_xor_b32 %s, %s, %s" % (v(TT), v(TT), v(TT + 1)))
    e("v_add_u32 %s, %s, %s" % (v(TT), v(TT), v(AR)))
    for k in range(4):
        if blk_xor_wave:
            e("s_xor_b32 %s, %s, %d" % (s(S_T0), s(S_WAVE), k))
            e("s_add_u32 %s, %s, 1" % (s(S_T0), s(S_T0)))
            e("s_lshl_b32 %s, %s, 15" % (s(S_T0), s(S_T0)))
            e("v_add_u32 %s, %s, %s" % (v(AR + 2 * k), s(S_T0), v(TT)))
        else:
            e("v_add_u32 %s, 0x%x, %s" % (v(AR + 2 * k), (k + 1) << 15, v(TT)))
        e("v_xor_b32 %s, 32, %s" % (v(AR + 2 * k + 1), v(AR + 2 * k)))
    if pre:
        pre(q)
    for c, (m, ci) in enumerate(chunks):
        if side:
            side(c, q)
        q.wait(("c", c))
        e("s_barrier")
        for n_, (dst, k, T, ro) in enumerate(reads(m, ci)):
            if n_ == 12:
                e("s_waitcnt lgkmcnt(4)")
            e("ds_read_b64_tr_b16 %s, %s offset:%d" % (dst, v(AR + 2 * k + T), (c % nslot) * 8192 + ro * 256))
        e("s_waitcnt lgkmcnt(0)")
        e("s_barrier")
        if c + nslot < len(chunks):
            dma(c + nslot)
    return q


HOLD = {op: 32 + 8 * i for i, op in enumerate(o for o in LDS_OPS if o[0] != "O")}


def load_weights(e, P_WQ, P_WK, P_WV, P_WO, pre=None, mid=None):
    e.comment("---- load weight operands: Wq/Wk/Wv by LDS-DMA + transposing reads, Wo by dword loads + v_perm")
    VOFO = FREE1
    RING, TMP8 = 32, 120
    ptr = {"Q": P_WQ, "K": P_WK, "V": P_WV, "O": P_WO}
    SRDS = {"Q": 96, "K": 88, "V": 60, "O": 92}
    S_OB = 29

    def pre2(q):
        lin(e, VOFO, {0: 4, 1: 8, 2: 16, 3: 32, 4: 2 * 1024, 5: 4 * 1024, 6: 256, 7: 512})
        srd(e, SRDS["O"], ptr["O"], 512 * 4096 * 2)
        e("s_lshl_b32 %s, %s, 17" % (s(S_OB), s(S_H)))
        o_issue(0, q)
        pre(q)

    def reads(m, ci):
        tau, hi = ci >> 1, ci & 1
        out = []
        for k in range(4):
            u = 2 * k + tau
            for T in range(2):
                op = (m, T, u)
                for pr in range(2):
                    if op in HOLD:
                        dst = v(HOLD[op] + 4 * hi + 2 * pr, 2)
                    else:
                        kind, r = RES[op]
                        dst = (a if kind == "a" else v)(r + 4 * hi + 2 * pr, 2)
                    out.append((dst, k, T, 2 * pr))
        return out

    GORD = [7, 5, 3, 6, 4, 2, 1, 0]

    def o_issue(gi, q):
        g = GORD[gi]
        u = g >> 1
        base = (32, 48, 80)[gi % 3]
        e("s_xor_b32 %s, %s, %d" % (s(S_T0), s(S_WAVE), u))
        e("s_lshl_b32 %s, %s, 15" % (s(S_T0), s(S_T0)))
        e("s_add_u32 %s, %s, %s" % (s(S_T0), s(S_T0), s(S_OB)))
        for k in range(2):
            qq = 2 * (g & 1) + k
            for pr in range(4):
                for b in range(2):
                    row = 16 * b + 8 * (pr >> 1) + (pr & 1)
                    e("s_add_u32 %s, %s, 0x%x" % (s(S_T1), s(S_T0), row * 1024 + qq * 64))
                    e("buffer_load_dword %s, %s, %s, %s offen%s" % (v(base + k * 8 + pr * 2 + b), v(VOFO), s(SRDS["O"], 4), s(S_T1), OPT.get("ont", "")))
                    q.add(("o", g))

    def o_consume(gi, q):
        g = GORD[gi]
        q.wait(("o", g))
        base = (32, 48, 80)[gi % 3]
        for k in range(2):
            op = ("O", 2 * (g & 1) + k, g >> 1)
            dst = TMP8 if op in LDS_OPS else RES[op][1]
            assert op in LDS_OPS or RES[op][0] == "v"
            for pr in range(4):
                for hf in range(2):
                    e("v_perm_b32 %s, %s, %s, %s" % (v(dst + 2 * pr + hf), v(base + k * 8 + 2 * pr + 1), v(base + k * 8 + 2 * pr), s(S_PHI if hf else S_PLO)))
            if op in LDS_OPS:
                off = LDS_SLOT[op] * 2048
                assert off >= 24576
                e("ds_write_b128 %s, %s offset:%d" % (v(C_WL), v(TMP8, 4), off))
                e("ds_write_b128 %s, %s offset:%d" % (v(C_WL), v(TMP8 + 4, 4), off + 1024))
                e("s_waitcnt lgkmcnt(0)")

    def side(c, q):
        if 2 <= c < 10 and not OPT.get("noo"):
            o_consume(c - 2, q)
        if 1 <= c < 8 and not OPT.get("noo"):
            o_issue(c, q)
        early_start(e, c, q)

    chunks = [(m, ci) for m in "VKQ" for ci in range(4)]
    staged_load(e, chunks, ptr, SRDS, 1, lambda k: k << 6, {2: 32, 4: 64, 3: 128}, {5: 16, 3: 8, 4: 4, 2: 1}, True, reads, side, pre2, OPT.get("nslot", 3))
    for op, r in HOLD.items():
        off = LDS_SLOT[op] * 2048
        e("ds_write_b128 %s, %s offset:%d" % (v(C_WL), v(r, 4), off))
        e("ds_write_b128 %s, %s offset:%d" % (v(C_WL), v(r + 4, 4), off + 1024))
        if LDS_SLOT[op] % 4 == 3:
            e("s_waitcnt lgkmcnt(0)")
    e("s_waitcnt lgkmcnt(0)")


def setup_consts(e):
    T1, T2 = 104, 105
    AM = 100
    lin(e, C_IDX, {1: 0xEEEE - 0x4444}, 0x4444)
    lin(e, C_L16, {k: 16 << k for k in range(6)})
    lin(e, C_MW, {**{k: 16 << k for k in range(6)}, 6: 2048, 7: 4096})
    lin(e, C_WL, {**{k: 16 << k for k in range(6)}, 6: 32768, 7: 65536}, L_WL)
    lin(e, C_QW, {0: 4, 1: 8, 2: 16, 3: 32, 4: 2 * RS * 4, 5: 4 * RS * 4, 6: 64, 7: 128}, L_QX)
    lin(e, C_QR, {0: RS * 4, 2: 2 * RS * 4, 3: 4 * RS * 4, 4: 16, 5: 32}, L_QX)
    e("v_add_u32 %s, %d, %s" % (v(C_KW), L_KMX - L_QX, v(C_QW)))
    e("v_xor_b32 %s, 0x1000, %s" % (v(C_X2), v(C_MW)))
    lin(e, T1, {3: 1, 4: 2, 5: 4, 6: 8, 7: 16})
    e("v_add_u32 %s, %s, %s" % (v(T1), s(S_H), v(T1)))
    e("v_and_b32 %s, 31, %s" % (v(T1), v(T1)))
    e("v_lshlrev_b32 %s, 6, %s" % (v(T1), v(T1)))
    lin(e, C_PW, {0: 8, 1: 16, 2: 32, 3: 8192, 4: 2 * 8192, 5: 4 * 8192, 6: 8 * 8192, 7: 16 * 8192}, PB_OFF)
    e("v_add_u32 %s, %s, %s" % (v(C_PW), v(C_PW), v(T1)))
    mp_addr(e, C_MP, T1, T2)
    lin(e, C_FL, {0: 16, 1: 8, 2: 32, 3: 64, 4: 128, 5: 256, 6: 2048, 7: 4096})
    e("s_lshl_b32 %s, %s, 13" % (s(S_PR), s(S_H)))
    e("s_add_u32 %s, %s, 0x%x" % (s(S_PR), s(S_PR), PB_OFF))
    e("s_mov_b32 %s, 4096" % s(S_4K))
    e("v_and_b32 %s, 15, v0" % v(T1))
    for q in range(4):
        e("v_mov_b32 %s, 0" % v(AM + q))
        e("v_mov_b32 %s, 0x3f80" % v(T2))
        e("v_cmp_eq_u32 vcc, %d, %s" % (4 * q, v(T1)))
        e("v_cndmask_b32 %s, %s, %s, vcc" % (v(AM + q), v(AM + q), v(T2)))
        e("v_mov_b32 %s, 0x3f800000" % v(T2))
        e("v_cmp_eq_u32 vcc, %d, %s" % (4 * q + 1, v(T1)))
        e("v_cndmask_b32 %s, %s, %s, vcc" % (v(AM + q), v(AM + q), v(T2)))
    e("ds_write_b128 %s, %s offset:%d" % (v(C_L16), v(AM, 4), L_SEL))
    e("s_mov_b32 %s, 0x05040100" % s(S_PLO))
    e("s_mov_b32 %s, 0x07060302" % s(S_PHI))
    e("s_mov_b32 %s, 0x%x" % (s(S_SCALE), f32bits(128 ** -0.5 * 1.4426950408889634)))
    e("s_mov_b32 %s, 0x%x" % (s(S_BIG), f32bits(OPT.get('big', 2.0 ** 30))))
    e("s_mov_b32 %s, 0" % s(S_TMO))
    e("s_mov_b32 %s, 0x3f803f80" % s(S_ONES))
    e("s_mov_b32 %s, 0x3f803f80" % s(S_ONES + 1))
    e("s_lshl_b32 %s, %s, 14" % (s(S_T0), s(S_H)))
    e("s_lshr_b32 %s, %s, 1" % (s(S_T1), s(S_WAVE)))
    e("s_lshl_b32 %s, %s, 12" % (s(S_T1), s(S_T1)))
    e("s_add_u32 %s, %s, %s" % (s(S_KXO), s(S_T0), s(S_T1)))
    e("s_lshl_b32 %s, %s, 11" % (s(S_T1), s(S_WAVE)))
    e("s_add_u32 %s, %s, %s" % (s(S_VXO), s(S_T0), s(S_T1)))
    e("s_add_u32 %s, %s, 8192" % (s(S_VXO), s(S_VXO)))


def setup_pf(e):
    T1, T2 = 104, 105
    lin(e, T1, {0: 128, 1: 256, 2: 512, 3: 1024, 4: 2048, 6: 4096, 7: 8192})
    e("s_lshl_b32 %s, %s, 14" % (s(S_T0), s(S_H)))
    e("v_add_u32 %s, %s, %s" % (v(T1), s(S_T0), v(T1)))
    e("s_lshl_b32 %s, %s, 8" % (s(S_T0), s(S_H)))
    e("s_lshr_b32 %s, %s, 1" % (s(S_T1), s(S_WAVE)))
    e("s_lshl_b32 %s, %s, 7" % (s(S_T1), s(S_T1)))
    e("s_add_u32 %s, %s, %s" % (s(S_T0), s(S_T0), s(S_T1)))
    e("s_add_u32 %s, %s, 0x%x" % (s(S_T0), s(S_T0), SLAB_ST + MB_IN))
    e("v_and_b32 %s, 63, v0" % v(T0))
    e("v_mov_b32 %s, 0x%x" % (v(T2), OOB))
    e("v_cmp_lt_u32 vcc, 32, %s" % v(T0))
    e("v_cndmask_b32 %s, %s, %s, vcc" % (v(T1), v(T1), v(T2)))
    e("v_mov_b32 %s, %s" % (v(T2), s(S_T0)))
    e("v_cmp_eq_u32 vcc, 32, %s" % v(T0))
    e("v_cndmask_b32 %s, %s, %s, vcc" % (v(T1), v(T1), v(T2)))
    e("s_lshl_b32 %s, %s, 2" % (s(S_T0), s(S_H)))
    e("s_add_u32 %s, %s, 0x%x" % (s(S_T0), s(S_T0), SLAB_ST + FL_IN))
    e("v_mov_b32 %s, %s" % (v(T2), s(S_T0)))
    e("v_cmp_eq_u32 vcc, 33, %s" % v(T0))
    e("v_cndmask_b32 %s, %s, %s, vcc" % (v(C_PF), v(T1), v(T2)))


def mp_addr(e, dst, T1, T2):
    lin(e, dst, {0: 8, 1: 32, 4: 16, 5: 4, 6: 2048, 7: 4096}, MB_IN)
    e("v_mov_b32 %s, %s" % (v(T2), s(S_H)))
    lin(e, T1, {0: 256, 1: 64, 2: 128, 3: 512, 4: 1024}, src=T2)
    e("v_add_u32 %s, %s, %s" % (v(dst), v(T1), v(dst)))
    e("v_and_b32 %s, 12, v0" % v(T1))
    e("v_cmp_ne_u32 vcc, 0, %s" % v(T1))
    e("v_mov_b32 %s, 0x%x" % (v(T1), OOB))
    e("v_cndmask_b32 %s, %s, %s, vcc" % (v(dst), v(dst), v(T1)))


def mem0_load(e, P_MEM0, dst, T1, T2, TH, SR):
    srd(e, SR, P_MEM0, 8192)
    lin(e, T1, {0: 8, 1: 16, 2: 0x10000, 3: 0x10000, 4: 1024, 5: 4, 6: 64, 7: 128})
    e("v_mov_b32 %s, %s" % (v(TH), s(S_H)))
    lin(e, T2, {0: 32, 1: 2048, 2: 4096, 3: 256, 4: 512}, src=TH)
    e("v_add_u32 %s, %s, %s" % (v(T1), v(T1), v(T2)))
    e("buffer_load_dword %s, %s, %s, 0 offen" % (v(dst), v(T1), s(SR, 4)))


def init_fill(e, P_MEM0, MW, B, SR):
    M1, T1, T2, TH, MP, HP = B, B + 4, B + 5, B + 6, B + 7, B + 8
    ws = s(S_WS, 4)
    mem0_load(e, P_MEM0, HP, T1, T2, TH, SR)
    for k in range(4):
        e("v_mov_b32 %s, -1" % v(M1 + k))

    def fill8k(so):
        e("buffer_store_dwordx4 %s, %s, %s, %s offen sc1" % (v(M1, 4), v(MW), ws, s(so)))
        e("buffer_store_dwordx4 %s, %s, %s, %s offen offset:1024 sc1" % (v(M1, 4), v(MW), ws, s(so)))
    e("s_lshl_b32 %s, %s, 13" % (s(S_T0), s(S_H)))
    e("s_add_u32 %s, %s, 0x%x" % (s(S_T0), s(S_T0), PB_OFF))
    fill8k(S_T0)
    e("s_lshl_b32 %s, %s, 14" % (s(S_T0), s(S_H)))
    e("s_add_u32 %s, %s, 0x%x" % (s(S_T0), s(S_T0), HIST_OFF))
    e("s_add_u32 %s, %s, 0x2000" % (s(S_T1), s(S_T0)))
    fill8k(S_T0); fill8k(S_T1)
    e("s_mul_i32 %s, %s, 0x%x" % (s(S_T0), s(S_H), 2 * SLAB_ST))
    e("s_add_u32 %s, %s, 0x%x" % (s(S_T0), s(S_T0), SLAB_OFF + SLAB_ST + MB_IN + (0x4000000 if OPT.get("solo") else 0)))
    e("s_add_u32 %s, %s, 0x%x" % (s(S_T1), s(S_T0), SLAB_ST))
    fill8k(S_T0); fill8k(S_T1)
    e("v_lshlrev_b32 %s, 2, v0" % v(T1))
    e("s_lshl_b32 %s, %s, 10" % (s(S_T0), s(S_H)))
    for base in (FLAG_OFF + 0x4000, 0x1B0000, 0x1B8000):
        e("s_add_u32 %s, %s, 0x%x" % (s(S_T1), s(S_T0), base))
        e("buffer_store_dword %s, %s, %s, %s offen sc1" % (v(M1), v(T1), ws, s(S_T1)))
    e("v_mov_b32 %s, 0x%x" % (v(T2), OOB))
    e("v_cmp_lt_u32 vcc, 63, v0")
    e("v_cndmask_b32 %s, %s, %s, vcc" % (v(T1), v(T1), v(T2)))
    e("v_mov_b32 %s, %d" % (v(M1 + 9), 0 if OPT.get("kvflags", 1) else 1))
    e("s_lshl_b32 %s, %s, 8" % (s(S_T0), s(S_H)))
    e("s_add_u32 %s, %s, 0x%x" % (s(S_T1), s(S_T0), FLAG_OFF + 0x2000))
    e("buffer_store_dword %s, %s, %s, %s offen sc1" % (v(M1 + 9), v(T1), ws, s(S_T1)))
    e("s_mul_i32 %s, %s, 0x%x" % (s(S_T0), s(S_H), 2 * SLAB_ST))
    e("s_add_u32 %s, %s, 0x%x" % (s(S_T0), s(S_T0), SLAB_OFF + FL_IN))
    e("s_add_u32 %s, %s, 0x%x" % (s(S_T1), s(S_T0), SLAB_ST))
    e("buffer_store_dword %s, %s, %s, %s offen sc1" % (v(M1 + 9), v(T1), ws, s(S_T0)))
    e("buffer_store_dword %s, %s, %s, %s offen sc1" % (v(M1 + 9), v(T1), ws, s(S_T1)))
    mp_addr(e, MP, T1, T2)
    e("s_waitcnt vmcnt(16)")
    e("s_mov_b32 %s, 0x%x" % (s(S_T0), SLAB_OFF))
    e("buffer_store_dword %s, %s, %s, %s offen sc1" % (v(HP), v(MP), ws, s(S_T0)))


def ready_publish(e, T1, T2):
    e("s_waitcnt vmcnt(0)")
    e("s_barrier")
    e("v_mov_b32 %s, 1" % v(T1))
    e("s_lshl_b32 %s, %s, 2" % (s(S_T1), s(S_H)))
    e("v_lshlrev_b32 %s, 20, v0" % v(T2))
    e("buffer_store_dword %s, %s, %s, %s offen sc1" % (v(T1), v(T2), s(S_DBG, 4), s(S_T1)))


def xcc_publish(e, q):
    T1, T2 = 30, 31
    e("s_getreg_b32 %s, hwreg(HW_REG_XCC_ID)" % s(S_T0))
    e("s_and_b32 %s, %s, 15" % (s(S_T0), s(S_T0)))
    e("s_or_b32 %s, %s, 0x100" % (s(S_T0), s(S_T0)))
    e("v_mov_b32 %s, %s" % (v(T1), s(S_T0)))
    e("s_lshl_b32 %s, %s, 2" % (s(S_T1), s(S_H)))
    e("v_lshlrev_b32 %s, 20, v0" % v(T2))
    e("buffer_store_dword %s, %s, %s, %s offen offset:128 sc1" % (v(T1), v(T2), s(S_DBG, 4), s(S_T1)))
    q.add("hs")


S_MODE = 41


def early_start(e, c, q):
    T1, T2 = 30, 31
    ws = s(S_WS, 4)
    hsl = "buffer_load_dword %s, %s, %s, 0 offen sc1" % (v(T1), v(T2), s(S_DBG, 4))
    pfi = lambda: e("buffer_load_dword %s, %s, %s, %s offen sc1" % (v(JUNK), v(C_PF), ws, s(S_MB)))
    if c == 8:
        e("v_lshrrev_b32 %s, 2, %s" % (v(T2), v(C_L16)))
        e(hsl)
        q.add("hs2")
    if c == 9:
        e.comment("---- buffers initialised (debug[0..31]) and all 32 chain workgroups reported their XCC id (debug[32..63]);")
        q.wait("hs2")
        e("s_mov_b32 %s, 1" % s(S_MODE))
        e.label("L_HS")
        e("v_cmp_eq_u32 vcc, 0, %s" % v(T1))
        e("s_cbranch_vccz L_HS_ok")
        e(hsl)
        e("s_add_u32 %s, %s, 1" % (s(S_TMO), s(S_TMO)))
        e("s_cmp_gt_u32 %s, %d" % (s(S_TMO), TMO_LIMIT))
        e("s_waitcnt vmcnt(0)")
        e("s_cbranch_scc0 L_HS")
        e("s_branch L_HS_done")
        e.label("L_HS_ok")
        e("v_readlane_b32 %s, %s, 63" % (s(S_T0), v(T1)))
        e("v_cmp_ne_u32 vcc, %s, %s" % (s(S_T0), v(T1)))
        e("s_nop 1")
        e("s_cmp_lg_u32 vcc_hi, 0")
        e("s_cselect_b32 %s, 1, %d" % (s(S_MODE), OPT.get("forceslow", 0)))
        e.label("L_HS_done")
        e("s_mov_b32 %s, 0x%x" % (s(S_MB), SLAB_OFF - SLAB_ST))
        pfi()
        q.add("pf0")
    if c == 11:
        q.wait("pf0")
        e.label("L_F0")
        e("v_readlane_b32 %s, %s, 33" % (s(S_T0), v(JUNK)))
        e("s_nop 1")
        e("s_cmp_lg_u32 %s, 0" % s(S_T0))
        e("s_cbranch_scc1 L_F0_ok")
        pfi()
        e("s_add_u32 %s, %s, 1" % (s(S_TMO), s(S_TMO)))
        e("s_cmp_gt_u32 %s, %d" % (s(S_TMO), TMO_LIMIT))
        e("s_waitcnt vmcnt(0)")
        e("s_cbranch_scc0 L_F0")
        e.label("L_F0_ok")
        e("s_mov_b32 %s, 0x%x" % (s(S_MB), SLAB_OFF))
        pfi()
        q.add("pf1")


def smf_ins(acc, aop, op):
    return "v_smfmac_f32_16x16x64_bf16 %s, %s, %s, %s" % (v(acc, 4), v(aop, 4), opreg(op), v(C_IDX))


def stamp(e, i, on):
    if on:
        e("s_memtime %s" % s(S_ST + 2 * i, 2))


am = lambda u: AM + 4 * u


def idle_prep_ins():
    out = []
    for op in (("Q", 0, 0), ("Q", 1, 0), ("Q", 0, 1), ("Q", 1, 1), ("K", 0, 0), ("K", 1, 0)):
        out += lds_fetch_ins(op)
    z = ["v_mov_b64 %s, 0" % v(r, 2) for r in range(ACCQ, ACCQ + 24, 2)]
    return out, z


def delay(e, cyc):
    n = cyc // 4
    while n > 0:
        k = min(n, 16)
        e("s_nop %d" % (k - 1))
        n -= k


def main_loop(e, tag, sc, nsteps, stamps=False):
    L = lambda n: "L_%s_%s" % (tag, n)
    ws = s(S_WS, 4)
    solo = OPT.get("solo")
    trace = OPT.get("trace")
    acc = {"Q": ACCQ, "K": ACCK, "V": ACCV}
    S = lambda m, T, u: smf_ins(acc[m] + 4 * T, am(u), (m, T, u))
    Q = lambda T, u: S("Q", T, u)
    K = lambda T, u: S("K", T, u)
    V = lambda T, u: S("V", T, u)
    lg = lambda n: "s_waitcnt lgkmcnt(%d)" % n
    BAR = "s_barrier"
    add = lambda b, r: "v_add_f32 %s, %s, %s" % (v(b + r), v(b + r), v(b + r + 2))
    cvt = lambda d, x, y: "v_cvt_pk_bf16_f32 %s, %s, %s" % (v(d), v(x), v(y))
    ex = lambda r: "v_exp_f32 %s, %s" % (v(r), v(r))
    mf32 = lambda d, A, B, first: "v_mfma_f32_16x16x32_bf16 %s, %s, %s, %s" % (v(d, 4), v(A, 4), v(B, 4), "0" if first else v(d, 4))
    mf16 = lambda d, A, B: "v_mfma_f32_16x16x16_bf16 %s, %s, %s, %s" % (v(d, 4), v(A, 2), v(B, 2), v(d, 4))

    def run(sched, extra=None):
        for i_, (m_, rest) in enumerate(sched):
            e(m_)
            for x in (extra or {}).get(i_, []) + rest:
                if x.endswith(":"):
                    e.label(x[:-1])
                else:
                    e(x)
    e.label(L("start"))
    e("s_mov_b32 %s, 0" % s(S_STEP))
    e("s_mov_b32 %s, 0x%x" % (s(S_SLAB), SLAB_OFF))
    e("s_mov_b32 %s, 0" % s(S_PAR))
    e("s_mov_b32 %s, 0x%x" % (s(S_HIST), HIST_OFF - MB_IN))
    e("s_mov_b32 %s, 0x%x" % (s(S_OOB), OOB))
    for u in (1, 2, 3):
        e("s_mov_b32 %s, 0x%x" % (s(S_U0 + u), u * 2048))
    e("s_mov_b32 %s, 0xcccccccc" % s(S_HM))
    e("s_mov_b32 %s, 0xcccccccc" % s(S_HM + 1))
    e("s_mov_b32 %s, 0" % s(S_SPIN))
    f, z = idle_prep_ins()
    for t in f + z:
        e(t)
    mldp = lambda P: ["buffer_load_dwordx4 %s, %s, %s, %s offen sc1" % (v(P, 4), v(C_MW), ws, s(S_MB)),
                      "buffer_load_dwordx4 %s, %s, %s, %s offen offset:1024 sc1" % (v(P + 4, 4), v(C_MW), ws, s(S_MB))]
    mld = mldp(AM)
    e("s_add_u32 %s, %s, 0x%x" % (s(S_MB), s(S_SLAB), MB_IN))
    for t in mld:
        e(t)
    e("s_waitcnt vmcnt(2)")
    e.label(L("step"))
    e("v_readlane_b32 %s, %s, 33" % (s(S_T0), v(JUNK)))
    e("s_add_u32 %s, %s, 0x%x" % (s(S_SLABN), s(S_SLAB), SLAB_ST))
    e("s_cmp_eq_u32 %s, 0" % s(S_T0))
    e("s_cbranch_scc1 %s" % L("refresh"))
    e.label(L("fresh"))
    e("s_add_u32 %s, %s, %s" % (s(S_KX), s(S_SLAB), s(S_KXO)))
    e("s_add_u32 %s, %s, %s" % (s(S_VX), s(S_SLAB), s(S_VXO)))
    e("s_xor_b32 %s, %s, 1" % (s(S_NPAR), s(S_PAR)))
    e("s_add_u32 %s, %s, 1" % (s(S_NEXT), s(S_STEP)))
    tr = 2
    if OPT.get("m3"):
        tr = 4
        delay(e, OPT.get("pm0", 0))
        for x in mld:
            e(x)
    delay(e, OPT.get("pm", 64))
    e.label(L("retrym"))
    for x in mld:
        e(x)
    e("s_add_u32 %s, %s, 1" % (s(S_TMO), s(S_TMO)))
    e("s_cmp_gt_u32 %s, %d" % (s(S_TMO), TMO_LIMIT))
    e("s_cselect_b32 %s, -1, -2" % s(S_LIM))
    e("v_xor_b32 %s, 0x800, %s" % (v(am(3)), v(C_MW)))
    e("v_xor_b32 %s, 0x1800, %s" % (v(am(7)), v(C_MW)))
    for x in z[:4]:
        e(x)
    e.label(L("waitm"))
    e("s_waitcnt vmcnt(%d) lgkmcnt(0)" % (1 + tr))
    e.label(L("gotm"))
    stamp(e, 0, stamps)
    T1 = am(2)
    mw = ["ds_write_b128 %s, %s offset:%d" % (v(C_MW), v(am(k), 4), L_MEMI + 1024 * k) for k in range(2)]
    PK = ACCK
    pst = lambda q: "buffer_store_dwordx2 %s, %s, %s, %s offen offset:%d%s" % (v(PK + 2 * q, 2), v(C_PW), ws, "0" if q < 2 else s(S_4K), (q & 1) * 2048, sc)
    tg = lambda q: "v_and_or_b32 %s, %s, -2, %s" % (v(PK + 2 * q), v(PK + 2 * q), s(S_TAG))
    kx = lambda ks: "buffer_load_dwordx4 %s, %s, %s, %s offen offset:%d sc1" % (v(XB + 4 * ks, 4), v(C_L16), ws, s(S_KX), ks * 1024)
    vx = lambda T: "buffer_load_dwordx4 %s, %s, %s, %s offen offset:%d sc1" % (v(VX + 4 * T, 4), v(C_L16), ws, s(S_VX), T * 1024)
    amrd = lambda u: "ds_read_b128 %s, %s offset:%d" % (v(am(u), 4), v(C_X2 if u >> 1 == 2 else am(u | 1)), L_MEMI + (u & 1) * 1024)
    q7 = lds_fetch_ins(("Q", 0, 7)) + lds_fetch_ins(("Q", 1, 7))
    k2 = lds_fetch_ins(("K", 0, 2)) + lds_fetch_ins(("K", 1, 2))
    k7 = lds_fetch_ins(("K", 0, 7)) + lds_fetch_ins(("K", 1, 7))
    of = sum([lds_fetch_ins(op) for op in OLDS], [])
    qbrd = lambda ks: "ds_read_b128 %s, %s offset:%d" % (v(QB + 4 * ks, 4), v(C_QR), 64 * ks)
    KM = XA
    kmrd = lambda ks: "ds_read_b128 %s, %s offset:%d" % (v(KM + 4 * ks, 4), v(C_QR), L_KMX - L_QX + 64 * ks)
    SX, SM = ACCQ, ACCQ + 4
    ONES, PX, PM, VM0, VM1 = XB, XB + 4, XB + 8, XB + 10, XB + 12
    TA = XB + 14
    LS, OA, OP = SX, ACCK, SM
    smx = lambda ks: mf32(SX, XB + 4 * ks, QB + 4 * ks, ks == 0)
    smm = lambda ks: mf32(SM, KM + 4 * ks, QB + 4 * ks, ks == 0)
    pf = "buffer_load_dword %s, %s, %s, %s offen sc1" % (v(JUNK), v(C_PF), ws, s(S_SLABN))
    hist = "buffer_store_dword %s, %s, %s, %s offen sc1" % (v(HPEND), v(C_MP), ws, s(S_HIST))
    zw = ["v_mov_b64 %s, 0" % v(r, 2) for r in range(AM, AM + 16, 2)]
    OOP = AM + 12
    o64 = OPT.get("o64", 1)
    if o64:
        oad = ["v_bitop3_b32 %s, %s, %s, -9 bitop3:0x28" % (v(OOP + 4 * u), v(C_FL), s(S_U0 + u)) for u in (1, 2, 3)]
    else:
        oad = ["v_xor_b32 %s, 0x%x, %s" % (v(OOP + 4 * u), u * 2048, v(C_MW)) for u in (1, 3)]
    L_OE = L_PX + 1024
    mx3 = lambda d, x, y, z_: "v_max3_u32 %s, %s, %s, %s" % (v(d), v(x), v(y), v(z_))
    mov0 = lambda r: "v_mov_b32 %s, 0" % v(r)
    early = OPT.get("early", 1)
    e(mx3(T0, AM, AM + 1, AM + 2))
    e("v_max_u32 %s, %s, %s" % (v(T0), v(T0), v(AM + 3)))
    run([
        (Q(0, 0), ["s_waitcnt vmcnt(%d)" % tr, mx3(T0, T0, AM + 4, AM + 5)]),
        (Q(1, 0), [mx3(T0, T0, AM + 6, AM + 7), "v_cmp_lt_u32 vcc, %s, %s" % (s(S_LIM), v(T0))]),
        (Q(0, 1), [mw[0]] + ([] if solo else ["s_cbranch_vccnz %s" % L("retrym")])),
        (Q(1, 1), [mw[1]]),
        (K(0, 0), [kx(0), vx(0)] if early else [kx(0)]),
        (K(1, 0), [kx(1), vx(1)] if early else [kx(1)]),
        (K(0, 1), [kx(2), kx(3)] if early else [kx(2)]),
        (K(1, 1), [lg(0), BAR, amrd(2)]),
        (V(0, 0), [amrd(3)]),
        (V(1, 0), [pf] if early else [kx(3)]),
        (V(0, 1), [amrd(4)]),
        (V(1, 1), [amrd(5), lg(3)]),
        (Q(0, 2), [amrd(6)]),
        (Q(1, 2), [amrd(7), lg(4)]),
        (Q(0, 3), [q7[0]]),
        (Q(1, 3), [q7[1], lg(4)]),
        (Q(0, 4), [q7[2]]),
        (Q(1, 4), [q7[3], lg(4)]),
        (Q(0, 5), [] if early else [vx(0)]),
        (Q(1, 5), [k2[0]]),
        (Q(0, 6), [] if early else [vx(1)]),
        (Q(1, 6), [k2[1], lg(2)]),
        (Q(0, 7), [k2[2]]),
        (Q(1, 7), [k2[3]]),
        (K(0, 3), [k7[0]]),
        (K(1, 3), [k7[1]]),
        (K(0, 4), [k7[2], add(ACCQ, 0), add(ACCQ, 1)]),
        (K(1, 4), [k7[3], add(ACCQ + 4, 0), add(ACCQ + 4, 1)]),
        (K(0, 5), [lg(4), cvt(ACCQ + 2, ACCQ, ACCQ + 4), cvt(ACCQ + 3, ACCQ + 1, ACCQ + 5)]),
        (K(0, 2), ["ds_write2_b32 %s, %s, %s offset0:0 offset1:%d" % (v(C_QW), v(ACCQ + 2), v(ACCQ + 3), RS)]),
        (K(1, 2), [] if early else [pf]),
        (K(1, 5), []),
        (K(0, 6), [hist]),
        (K(1, 6), [lg(0), BAR]),
        (K(0, 7), [qbrd(0)]),
        (K(1, 7), [qbrd(1)]),
        (V(0, 2), [qbrd(2)]),
        (V(1, 2), [qbrd(3), "s_waitcnt vmcnt(2) lgkmcnt(3)"]),
        (smx(0), [lg(2), add(ACCK, 0), add(ACCK, 1)]),
        (smx(1), [lg(1), add(ACCK + 4, 0), add(ACCK + 4, 1)]),
        (smx(2), [lg(0), cvt(ACCK + 2, ACCK, ACCK + 4), cvt(ACCK + 3, ACCK + 1, ACCK + 5)]),
        (smx(3), ["ds_write2_b32 %s, %s, %s offset0:0 offset1:%d" % (v(C_KW), v(ACCK + 2), v(ACCK + 3), RS)]),
        (V(0, 3), ["v_mov_b64 %s, %s" % (v(ONES, 2), s(S_ONES, 2))]),
        (V(1, 3), ["s_nop 1", "v_mov_b64 %s, %s" % (v(ONES + 2, 2), s(S_ONES, 2))]),
        (V(0, 4), [ex(SX)]),
        (V(1, 4), [lg(0), BAR, ex(SX + 1)]),
        (V(0, 5), [kmrd(0), ex(SX + 2)]),
        (V(1, 5), [kmrd(1), ex(SX + 3)]),
        (V(0, 6), [kmrd(2), cvt(PX, SX, SX + 1), cvt(PX + 1, SX + 2, SX + 3)]),
        (V(1, 6), [kmrd(3), "ds_write_b64 %s, %s offset:%d" % (v(C_MW), v(PX, 2), L_PX), lg(4)]),
        (smm(0), [lg(3), mov0(PM + 1), mov0(VM0 + 1)]),
        (smm(1), [lg(2), mov0(VM1 + 1), zw.pop(0)]),
        (smm(2), [lg(1), zw.pop(0), zw.pop(0)]),
        (smm(3), [lg(0), BAR]),
        (V(0, 7), ["ds_read_b64 %s, %s offset:%d" % (v(PX + 2, 2), v(C_X2), L_PX), zw.pop(0)]),
        (V(1, 7), [zw.pop(0), zw.pop(0), "v_mul_f32 %s, %s, %s" % (v(SM), s(S_SCALE), v(SM)), "v_mul_f32 %s, %s, %s" % (v(SM + 1), s(S_SCALE), v(SM + 1)),
                   ex(SM), lg(0)]),
        (mf32(LS, ONES, PX, True), [ex(SM + 1), add(ACCV, 0)]),
        (mf32(OA, VX, PX, True), [cvt(PM, SM, SM + 1), add(ACCV, 1)]),
        (mf32(OA + 4, VX + 4, PX, True), [cvt(VM0, ACCV, ACCV + 1), add(ACCV + 4, 0)]),
        (mf16(LS, ONES, PM), [add(ACCV + 4, 1), cvt(VM1, ACCV + 4, ACCV + 5)]),
        (mf16(OA, VM0, PM), [zw.pop(0), zw.pop(0)]),
        (mf16(OA + 4, VM1, PM), [oad[0], oad[1], "v_rcp_f32 %s, %s" % (v(TA), v(LS))] + oad[2:]),
    ])
    assert not zw
    e("v_max_f32 %s, %s, %s" % (v(T0), v(TA), v(LS)))
    e("v_cmp_nge_f32 vcc, %s, %s" % (s(S_BIG), v(T0)))
    for r in (0, 2, 4, 6):
        e("v_pk_mul_f32 %s, %s, %s op_sel_hi:[1,0]" % (v(OA + r, 2), v(OA + r, 2), v(TA, 2)))
    for r in (0, 2, 1, 3):
        e(cvt(OP + r, OA + r, OA + 4 + r))
    e.label(L("rejoin"))
    if o64:
        for k in range(2):
            e("v_cndmask_b32 %s, %s, %s, %s" % (v(LS + 2 + k), v(OP + k), v(OP + 2 + k), s(S_HM, 2)))
        e("ds_write_b64 %s, %s offset:%d" % (v(C_FL), v(LS + 2, 2), L_OE))
    else:
        e("ds_write_b128 %s, %s offset:%d" % (v(C_MW), v(OP, 4), L_OE))
    WACC = AM
    SO = lambda q, u: smf_ins(WACC + 4 * q, OP if u == 0 else OOP + 4 * u, ("O", q, u))
    ord_ = lambda u: "ds_read_b128 %s, %s offset:%d" % (v(OOP + 4 * u, 4), v(C_X2 if u == 2 and not o64 else OOP + 4 * u), L_OE)
    SEL, RD = ACCV, ACCV + 4
    wc = lambda q, r: cvt(PK + 2 * q + r, WACC + 4 * q + r, WACC + 4 * q + 2 + r)
    run([
        (SO(0, 0), []),
        (SO(1, 0), [lg(0), BAR, ord_(1), ord_(2)] if OPT.get("b4", 1) else []),
        (SO(2, 0), [ord_(3)] if OPT.get("b4", 1) else [lg(0), BAR, ord_(1), ord_(2)]),
        (SO(3, 0), ([] if OPT.get("b4", 1) else [ord_(3)]) + [of[0], of[1], lg(4)]),
        (SO(0, 1), [of[2], lg(4)]),
        (SO(0, 2), [of[3], lg(4)]),
        (SO(0, 3), [of[4], "s_cmp_lg_u64 vcc, 0"]),
        (SO(1, 1), [of[5], "s_cselect_b32 %s, %s, %s" % (s(S_TAG), s(S_NPAR), s(S_PAR))]),
        (SO(1, 2), [of[6], wc(0, 0)]),
        (SO(1, 3), [of[7], wc(0, 1), tg(0)]),
        (SO(2, 1), [pst(0)]),
        (SO(2, 2), [lg(4), "s_nop 0", wc(1, 0)]),
        (SO(2, 3), ["ds_read_b128 %s, %s offset:%d" % (v(SEL, 4), v(C_L16), L_SEL), wc(1, 1), tg(1)]),
        (SO(3, 1), [pst(1), lg(1)]),
        (SO(3, 2), ["s_nop 1", wc(2, 0)]),
        (SO(3, 3), ["s_nop 2", wc(2, 1), tg(2), pst(2), wc(3, 0), wc(3, 1), tg(3), pst(3)]),
    ])
    e.label(L("stored"))
    stamp(e, 1, stamps)
    e("s_cmp_lg_u32 %s, %s" % (s(S_TAG), s(S_PAR)))
    e("s_cbranch_scc1 %s" % L("safe"))
    f, z = idle_prep_ins()
    n0 = OPT.get("n0", 12)
    PD = VX
    pld = lambda P: ["buffer_load_dwordx4 %s, %s, %s, %s offen sc1" % (v(P, 4), v(C_MW), ws, s(S_PR)),
                     "buffer_load_dwordx4 %s, %s, %s, %s offen offset:1024 sc1" % (v(P + 4, 4), v(C_MW), ws, s(S_PR))]
    pub = "buffer_store_dword %s, %s, %s, %s offen%s" % (v(HPEND), v(C_MP), ws, s(S_T0), sc)
    for x in f[:n0]:
        e(x)
    delay(e, OPT.get("d1", 0))
    for q in range(1, 4):
        e("s_cmp_lt_u32 %s, %d" % (s(S_WAVE), q))
        e("s_cbranch_scc1 %s" % L("pollp"))
        delay(e, OPT.get("dp", 56))
    e.label(L("pollp"))
    stamp(e, 4, stamps)
    PB_ = AM + 16
    for x in pld(PD):
        e(x)
    for x in f[n0:] + z[4:8]:
        e(x)
    p1 = OPT.get("p1")
    if not p1:
        delay(e, OPT.get("pp", 128))
        for x in pld(PB_):
            e(x)
    e("s_add_u32 %s, %s, 0x%x" % (s(S_MB), s(S_SLABN), MB_IN))
    chk = lambda P: ["v_bitop3_b32 %s, %s, %s, %s bitop3:0x7e" % (v(T0), v(P), v(P + 2), s(S_PAR)),
                     "v_bitop3_b32 %s, %s, %s, %s bitop3:0x7e" % (v(FREE1), v(P + 4), v(P + 6), s(S_PAR)),
                     "v_bitop3_b32 %s, %s, %s, 1 bitop3:0xa8" % (v(T0), v(T0), v(FREE1)),
                     "v_cmp_ne_u32 vcc, 0, %s" % v(T0)]

    def finish():
        for rot in (8, 4):
            for r in (0, 1):
                e("v_add_f32_dpp %s, %s, %s row_ror:%d row_mask:0xf bank_mask:0xf" % (v(RD + r), v(RD + r), v(RD + r), rot))
        e(cvt(HPEND, RD, RD + 1))
        e(pub)

    def attempt(P, base):
        e("s_waitcnt vmcnt(%d) lgkmcnt(0)" % (base + 1))
        e(mf32(RD, SEL, P, True))
        e(chk(P)[0])
        e("s_waitcnt vmcnt(%d)" % base)
        e(mf32(RD, SEL, P + 4, False))
        for x in chk(P)[1:]:
            e(x)
        e("s_nop 2")
        e("s_cmp_eq_u64 vcc, 0")
        e("s_cselect_b32 %s, %s, %s" % (s(S_T0), s(S_HIST if solo else S_SLABN), s(S_OOB)))
        finish()
    attempt(PD, 0 if p1 else 2)
    if not solo:
        e("s_cbranch_scc1 %s" % L("gotp"))
        if p1:
            for x in pld(PB_):
                e(x)
            e(pub)
            delay(e, 96)
        e.label(L("retryp"))
        for x in pld(PD):
            e(x)
        attempt(PB_, 3)
        e("s_cbranch_scc1 %s" % L("gotp"))
        for x in pld(PB_):
            e(x)
        attempt(PD, 3)
        e("s_cbranch_scc1 %s" % L("gotp"))
        e("s_add_u32 %s, %s, 1" % (s(S_TMO), s(S_TMO)))
        e("s_cmp_le_u32 %s, %d" % (s(S_TMO), TMO_LIMIT))
        e("s_cbranch_scc1 %s" % L("retryp"))
        e("s_mov_b32 %s, %s" % (s(S_T0), s(S_SLABN)))
        e(pub)
    e.label(L("gotp"))
    stamp(e, 2, stamps)
    e("s_add_u32 %s, %s, 0x2000" % (s(S_HIST), s(S_HIST)))
    e("s_cmp_ge_u32 %s, %d" % (s(S_NEXT), nsteps))
    e("s_cbranch_scc1 %s" % L("last"))
    e("s_mov_b32 %s, %s" % (s(S_SLAB), s(S_SLABN)))
    e("s_mov_b32 %s, %s" % (s(S_STEP), s(S_NEXT)))
    e("s_mov_b32 %s, %s" % (s(S_PAR), s(S_NPAR)))
    for x in z[8:]:
        e(x)
    if trace:
        e("s_memrealtime s[100:101]")
        e("s_memtime s[70:71]")
        e("s_lshl_b32 s3, %s, 2" % s(S_H))
        e("s_add_u32 s3, s3, %s" % s(S_WAVE))
        e("s_lshl_b32 s3, s3, 6")
        e("s_add_u32 s3, s3, %s" % s(S_STEP))
        e("s_lshl_b32 s3, s3, 5")
        e("s_add_u32 s3, s3, 0x200000")
        e("s_waitcnt lgkmcnt(0)")
        for k, r in enumerate((64, 66, 68, 100, 70, 72, 74, S_TMO)):
            e("v_mov_b32 %s, %s" % (v(AM + 8 + k), s(r)))
        e("buffer_store_dwordx4 %s, off, %s, s3" % (v(AM + 8, 4), ws))
        e("buffer_store_dwordx4 %s, off, %s, s3 offset:16" % (v(AM + 12, 4), ws))
    delay(e, OPT.get("dm", 112) - (128 if trace else 0))
    stamp(e, 5, stamps)
    for x in mld:
        e(x)
    e("s_branch %s" % L("step"))
    e.label(L("last"))
    e(hist)
    e("s_branch %s" % L("done"))
    e.label(L("refresh"))
    e("buffer_load_dword %s, %s, %s, %s offen sc1" % (v(JUNK), v(C_PF), ws, s(S_SLAB)))
    e("s_add_u32 %s, %s, 1" % (s(S_TMO), s(S_TMO)))
    e("s_cmp_le_u32 %s, %d" % (s(S_TMO), TMO_LIMIT))
    e("s_waitcnt vmcnt(0)")
    e("s_cbranch_scc1 %s" % L("step"))
    e("s_branch %s" % L("fresh"))
    e.label(L("safe"))
    e.fence(12)
    e("s_waitcnt vmcnt(0) lgkmcnt(0)")
    e("s_barrier")
    W = AM
    for ks in range(4):
        e(qbrd(ks))
        e(kmrd(ks))
    e("s_xor_b32 %s, %s, 0x1000" % (s(S_T0), s(S_KXO)))
    e("s_add_u32 %s, %s, %s" % (s(S_T0), s(S_T0), s(S_SLAB)))
    for ks in range(4):
        e("buffer_load_dwordx4 %s, %s, %s, %s offen offset:%d sc1" % (v(W + 4 * ks, 4), v(C_L16), ws, s(S_KX), ks * 1024))
        e("buffer_load_dwordx4 %s, %s, %s, %s offen offset:%d sc1" % (v(W + 16 + 4 * ks, 4), v(C_L16), ws, s(S_T0), ks * 1024))
    e("s_waitcnt vmcnt(0) lgkmcnt(0)")
    S0, S1, S2 = ACCQ, ACCQ + 4, ACCK
    for (d, src) in ((S0, W), (S1, W + 16), (S2, XA)):
        for ks in range(4):
            e(mf32(d, src + 4 * ks, QB + 4 * ks, ks == 0))
    M0_, M1_ = W, W + 1
    e("v_mul_f32 %s, %s, %s" % (v(S2), s(S_SCALE), v(S2)))
    e("v_mul_f32 %s, %s, %s" % (v(S2 + 1), s(S_SCALE), v(S2 + 1)))
    e("v_max3_f32 %s, %s, %s, %s" % (v(M0_), v(S0), v(S0 + 1), v(S0 + 2)))
    e("v_max3_f32 %s, %s, %s, %s" % (v(M0_), v(M0_), v(S0 + 3), v(S1)))
    e("v_max3_f32 %s, %s, %s, %s" % (v(M0_), v(M0_), v(S1 + 1), v(S1 + 2)))
    e("v_max3_f32 %s, %s, %s, %s" % (v(M0_), v(M0_), v(S1 + 3), v(S2)))
    e("v_max_f32 %s, %s, %s" % (v(M0_), v(M0_), v(S2 + 1)))
    for sw in ("v_permlane16_swap_b32", "v_permlane32_swap_b32"):
        e("v_mov_b32 %s, %s" % (v(M1_), v(M0_)))
        e("%s %s, %s" % (sw, v(M0_), v(M1_)))
        e("v_max_f32 %s, %s, %s" % (v(M0_), v(M0_), v(M1_)))
    for r in [S0 + i for i in range(8)] + [S2, S2 + 1]:
        e("v_sub_f32 %s, %s, %s" % (v(r), v(r), v(M0_)))
        e(ex(r))
    for q in range(4):
        e(cvt(PX + q, S0 + 2 * q, S0 + 2 * q + 1))
    e(cvt(PM, S2, S2 + 1))
    e(mf32(LS, ONES, PX, True)); e(mf32(OA, VX, PX, True)); e(mf32(OA + 4, VX + 4, PX, True))
    e(mf16(LS, ONES, PM)); e(mf16(OA, VM0, PM)); e(mf16(OA + 4, VM1, PM))
    e("v_rcp_f32 %s, %s" % (v(TA), v(LS)))
    for r in range(8):
        e("v_mul_f32 %s, %s, %s" % (v(OA + r), v(OA + r), v(TA)))
    for r in range(4):
        e(cvt(OP + r, OA + r, OA + 4 + r))
    for r in range(AM, AM + 16):
        e(mov0(r))
    for x in oad:
        e(x)
    e("s_mov_b64 vcc, 0")
    e("s_branch %s" % L("rejoin"))
    e.label(L("done"))
```

```python
import sys
from asmlib import Emitter, v, a, s
import chain as C
for a_ in sys.argv:
    if a_.startswith('opt:'):
        k_, v_ = a_[4:].split('=')
        C.OPT[k_] = int(v_, 0) if v_.lstrip('-')[:1].isdigit() else v_.replace('_', ' ')
import worker as W
import mlp as M

BASE = "sequential_preLN__memory_aug_recurrent_mem_tr__moe_arch_mod__prompt"
K1 = BASE + "_kernel"
K2 = "route_up_kernel"
K3 = "down_kernel"
hdr = open(__import__("os").path.join(__import__("os").path.dirname(__import__("os").path.abspath(__file__)), "..", "%s.s.ref" % BASE)).read().split("\n")
hdr = [l for l in hdr[:hdr.index(next(l for l in hdr if "@launch" in l and l.startswith("; @launch")))] if "harness parses" not in l.lower() and "Override launch" not in l]
e = Emitter()
for l in hdr:
    e.raw(l)
DOC = """
Generated by gen/gen.py (hand-written generator scripts, see gen/*.py).
One persistent launch, 256 workgroups (one per CU), role = workgroup id & 7:
  0    chain: one workgroup per head keeps its Wq/Wk/Wv/Wo slices in registers + LDS and runs the 63 dependent
       memory updates.  The 8 memory rows use the sparse MFMA (8 rows x 2 k-halves or x 2 column tiles).
       Per step: partial out-projections -> reduce-scatter over the 32 workgroups -> all-gather of the new memory.
       Every hand-off word validates itself (sentinel or parity tag), readers use L1-bypassing loads.
       The chain workgroups report their XCC id at run time: only if all sit on one die the hand-off stores are
       plain (shared L2); otherwise the second copy of the loop with device-scope stores runs.
       Softmax of the memory rows exponentiates without a shift while 2^-30 <= row sum <= 2^30; a run-time check
       redoes the step with the true row maximum otherwise.
  1-6  workers (6 per head): q/k/v of the tokens, token attention (running true max), partial out-projection,
       cross-head reduction + residual + layernorm + router score, device-scope hand-offs.
  7    setup of the hand-off buffers, layernorm of x, then top-2 routing + MLP (recomputed whenever the top-2 of a
       longer token prefix changes; the final check sees all tokens).
Short waits in front of polls are back-off: early polls only slow the stores they are waiting for.
Every wait loop is bounded.
"""
for l in DOC.strip().split("\n"):
    e.raw("; " + l)
if C.OPT.get("list"):
    e.raw("; @launch kernel=%s grid=(256,1,1) block=(256,1,1) lds=%d" % (K1, C.LDS_BYTES))
else:
    e.raw("; @launch grid=(256,1,1) block=(256,1,1) lds=%d" % C.LDS_BYTES)
e.raw('.amdgcn_target "amdgcn-amd-amdhsa--gfx950"')
e.raw(".text")


def start(name):
    e.raw(".globl %s\n.p2align 8\n.type %s,@function" % (name, name))
    e.label(name)
    e.hist = []


PROF = C.OPT.get("prof", 0)


def rt(i, dbg=None):
    if not PROF:
        return
    if PROF == 2:
        if dbg is None:
            return
        e("s_cmp_lg_u32 %s, 0" % s(C.S_WAVE))
        e("s_cbranch_scc1 L_rt%d" % dbg)
        if dbg in (0, 3, 4):
            e("s_cmp_ge_u32 s2, 16")
            e("s_cbranch_scc1 L_rt%d" % dbg)
        e("s_memrealtime s[100:101]")
        e("s_waitcnt lgkmcnt(0)")
        e("s_and_b32 s100, s100, 0xffffff")
        if dbg == 0:
            e("s_sub_u32 s100, 0x1000000, s100")
        e("v_mov_b32 v14, s100")
        e("s_mov_b64 exec, 1")
        e("buffer_atomic_umax v14, off, %s, 0 offset:%d" % (s(C.S_DBG, 4), 4 * dbg))
        e("s_mov_b64 exec, -1")
        e.label("L_rt%d" % dbg)
        return
    e("s_memrealtime s[100:101]")
    e("s_lshl_b32 s3, s2, 6")
    e("s_add_u32 s3, s3, 0x%x" % C.STAMP_OFF)
    e("s_waitcnt lgkmcnt(0)")
    e("v_mov_b32 v14, s100")
    e("buffer_store_dword v14, off, %s, s3 offset:%d" % (s(C.S_WS, 4), 4 * i))
    e("s_waitcnt vmcnt(0)")


start(K1)
P = C.S_PTR
e("s_cmp_ge_u32 s2, 256")
e("s_cbranch_scc1 L_end")
e("s_load_dwordx8 %s, s[0:1], 0" % s(P, 8))
e("s_load_dwordx4 %s, s[0:1], 32" % s(P + 8, 4))
e("s_load_dwordx4 %s, s[0:1], 104" % s(P + 12, 4))
e("s_load_dwordx2 s[80:81], s[0:1], 64")
e("s_load_dwordx2 s[82:83], s[0:1], 96")
e("s_load_dwordx4 s[84:87], s[0:1], 72")
e("s_load_dwordx2 s[88:89], s[0:1], 88")
if C.OPT.get("warm", 0):
    e.comment("pull the kernel's own code into this die's L2 (it is executed mostly once, front to back)")
    e("s_getpc_b64 s[90:91]")
    e("s_and_b32 s90, s90, 0xffffff00")
    e("v_lshlrev_b32 v2, 7, v0")
    e("v_add_u32 v3, 0x8000, v2")
    e("v_min_u32 v3, CODE_LAST, v3")
    e("global_load_dword v126, v2, s[90:91]")
    e("global_load_dword v127, v3, s[90:91]")
e("v_lshrrev_b32 v1, 6, v0")
e("v_readfirstlane_b32 %s, v1" % s(C.S_WAVE))
e("s_waitcnt lgkmcnt(0)")
C.srd(e, C.S_WS, P + 14, C.WS_BYTES)
C.srd(e, C.S_DBG, P + 12, 256)
rt(0, 0)
e("s_and_b32 s3, s2, 7")
e("s_cmp_lg_u32 s3, 0")
e("s_cbranch_scc1 L_worker")
e("s_lshr_b32 %s, s2, 3" % s(C.S_H))


def chain_pre(q):
    C.xcc_publish(e, q)
    C.mem0_load(e, P + 2, C.HPEND, 104, 105, 106, C.S_W)
    q.add("m0")
    C.setup_consts(e)
    C.setup_pf(e)


C.load_weights(e, P + 4, P + 6, P + 8, P + 10, pre=chain_pre)
rt(1, 1)
e("s_cmp_lg_u32 %s, 0" % s(C.S_MODE))
e("s_cbranch_scc1 L_slow_start")
C.main_loop(e, "fast", "", 63, bool(C.OPT.get("trace")))
rt(2, 2)
e("s_branch L_end")
C.main_loop(e, "slow", " sc1", 63)
e("s_branch L_end")
e.label("L_worker")


def common():
    C.srd(e, W.S_X, P, 2048 * 512 * 2)
    C.srd(e, W.S_OUT, 82, 2048 * 512 * 2)
    C.srd(e, W.S_WR, 80, 1024)
    W.setup(e)


def worker_pre(q):
    if C.OPT.get("touch", 1):
        e.comment("pull this head's Wo slice towards the last-level cache early (the chain CU streams it first)")
        C.srd(e, W.S_X, P + 10, 4096 * 512 * 2)
        e("s_lshl_b32 s24, %s, 17" % s(C.S_H))
        e("s_and_b32 s25, %s, 3" % s(W.S_R))
        e("s_lshl_b32 s25, s25, 15")
        e("s_add_u32 s24, s24, s25")
        e("v_lshlrev_b32 v30, 7, v0")
        e("buffer_load_dword v31, v30, %s, s24 offen" % s(W.S_X, 4))
        q.add("touch")
    common()


e("s_cmp_eq_u32 s3, 7")
e("s_cbranch_scc1 L_mlp")
W.ids(e)
if C.OPT.get("stag"):
    e("s_cmp_lt_u32 %s, %d" % (s(W.S_R), C.OPT.get("stagr", 1)))
    e("s_cbranch_scc1 L_go")
    for _ in range(C.OPT["stag"]):
        e("s_sleep 36")
    e.label("L_go")
W.load_w(e, P, C.OPT.get("word", "VKQ"), worker_pre)
rt(1, 3)
if PROF == 1:
    for i in range(2):
        e("v_mov_b32 v14, %s" % s(90 + i))
        e("buffer_store_dword v14, off, %s, s3 offset:%d" % (s(C.S_WS, 4), 24 + 4 * i))
W.phase1(e)
rt(2, 4)
if C.OPT.get("nop2"):
    e("s_branch L_end")
W.load_wo(e, P)
W.wait_tpinit(e)
rt(3)
W.phase2(e)
rt(4, 5)
if PROF == 1:
    for i in range(6):
        e("v_mov_b32 v14, %s" % s(44 + 2 * i))
        e("buffer_store_dword v14, off, %s, s3 offset:%d" % (s(C.S_WS, 4), 32 + 4 * i))
    e("v_mov_b32 v14, %s" % s(C.S_TMO))
    e("buffer_store_dword v14, off, %s, s3 offset:56" % s(C.S_WS, 4))
    e("v_mov_b32 v14, %s" % s(W.S_R))
    e("buffer_store_dword v14, off, %s, s3 offset:60" % s(C.S_WS, 4))
e("s_branch L_end")
e.label("L_mlp")
common()
e("s_lshr_b32 %s, s2, 3" % s(C.S_H))
W.xn_produce(e, lambda: C.init_fill(e, P + 2, W.W_MW, W.R0 + 48, 96))
rt(1)
if C.OPT.get("nop2") or C.OPT.get("nomlp"):
    e("s_branch L_end")
M.body(e, 84, 86, 88)
e.label("L_end")
if PROF:
    e("s_cmp_ge_u32 s2, 256")
    e("s_cbranch_scc1 L_end2")
    rt(5, 6)
    e.label("L_end2")
e("s_endpgm")
e.raw('.section .rodata,"a"')
for name, nv, acc in ((K1, 512, 256),):
    e.raw(""".p2align 6
.amdhsa_kernel %s
  .amdhsa_next_free_vgpr %d
  .amdhsa_next_free_sgpr 102
  .amdhsa_accum_offset %d
  .amdhsa_group_segment_fixed_size 0
  .amdhsa_kernarg_size 120
  .amdhsa_user_sgpr_count 2
  .amdhsa_user_sgpr_kernarg_segment_ptr 1
  .amdhsa_system_sgpr_workgroup_id_x 1
.end_amdhsa_kernel""" % (name, nv, acc))
out = sys.argv[1] if len(sys.argv) > 1 and not sys.argv[1].startswith("opt:") else "/code/%s.s" % BASE
import subprocess, tempfile, os, re
txt = e.text()
with tempfile.TemporaryDirectory() as td:
    open(td + "/a.s", "w").write(txt.replace("CODE_LAST", "0x12345"))
    subprocess.run(["clang", "-x", "assembler", "-target", "amdgcn-amd-amdhsa", "-mcpu=gfx950", "-c", td + "/a.s", "-o", td + "/a.o"], check=True)
    sec = subprocess.run(["llvm-readelf", "-S", td + "/a.o"], capture_output=True, text=True).stdout
    size = int(re.search(r"\.text\s+PROGBITS\s+\S+\s+\S+\s+(\S+)", sec).group(1), 16)
assert 0x8000 < size <= 0x10000
open(out, "w").write(txt.replace("CODE_LAST", "0x%x" % (size - 4)))
print("nops inserted:", e.nops_inserted, "lines:", len(e.lines), "->", out)
```

```python
from asmlib import v, a, s
import chain as C
from chain import lin, srd, f32bits, S_WS, S_DBG, S_H, S_WAVE, S_TMO, S_SCALE, S_PLO, S_PHI, S_T0, S_T1, S_T2, TMO_LIMIT, OOB

FLAGTP = C.FLAG_OFF + 0x2000
RVAL = C.FLAG_OFF + 0x4000
ACT = C.FLAG_OFF + 0xC000
FLAGXN = FLAGTP + 0x400
XNI = 0x800000
RDONE = 0x1B8000
NREP = 6
HROW = 0x400000
XN2 = 0x600000
TP_OFF = 0x4000000
Q_DELTA = 0x8000000 - C.SLAB_OFF

X_T = 0
EX_Q = 0
EX_K = 8192
EX_KM = 16384
MEMI = 20480
EX_O = 0
RED = 28672
L_WO = 32768

S_X = 12
S_OUT = 60
S_WR = 92
S_R = 22
S_SEG = 23
S_A, S_B = 24, 25
S_TPB = 26
S_PAR = 27
S_J = 29
S_M0 = 64
S_MM = 72
S_ONES = C.S_ONES

W_L16, W_MW, W_XG, W_XW, W_XR0, W_XR1, W_WO, W_MR, W_EX, W_TPW, W_TPR, W_ROW, W_NEG, T0, T1 = range(1, 16)
assert T0 == C.T0
R0 = 16


def wreg(m, T, ks):
    idx = ("QKV".index(m) * 32 + ks * 2 + T) * 4
    return a(idx, 4) if idx < 256 else v(128 + idx - 256, 4)


def mf32(d, A, B, first):
    return "v_mfma_f32_16x16x32_bf16 %s, %s, %s, %s" % (v(d, 4), A, B, "0" if first else v(d, 4))


def cvt(d, x, y):
    return "v_cvt_pk_bf16_f32 %s, %s, %s" % (v(d), v(x), v(y))


def ids(e):
    e("s_and_b32 %s, s2, 7" % s(S_T0))
    e("s_sub_u32 %s, %s, 1" % (s(S_T0), s(S_T0)))
    e("s_lshl_b32 %s, %s, 5" % (s(S_T0), s(S_T0)))
    e("s_lshr_b32 %s, s2, 3" % s(S_T1))
    e("s_add_u32 %s, %s, %s" % (s(S_T0), s(S_T0), s(S_T1)))
    e("s_mul_i32 %s, %s, 10923" % (s(S_H), s(S_T0)))
    e("s_lshr_b32 %s, %s, 16" % (s(S_H), s(S_H)))
    e("s_mul_i32 %s, %s, %d" % (s(S_T1), s(S_H), NREP))
    e("s_sub_u32 %s, %s, %s" % (s(S_R), s(S_T0), s(S_T1)))


def setup(e):
    lin(e, W_L16, {k: 16 << k for k in range(6)})
    lin(e, W_MW, {**{k: 16 << k for k in range(6)}, 6: 2048, 7: 4096})
    lin(e, W_EX, {**{k: 16 << k for k in range(6)}, 6: 1024, 7: 2048})
    lin(e, W_WO, {**{k: 16 << k for k in range(6)}, 6: 32768, 7: 65536}, L_WO)
    lin(e, W_XG, {0: 16, 1: 32, 2: 64, 3: 1024, 4: 2048, 5: 4096, 6: 8192, 7: 16384})
    lin(e, W_XW, {0: 256, 1: 512, 2: 1024, 6: 128, 7: 16384})
    e("v_lshrrev_b32 %s, 3, v0" % v(T1))
    e("v_xor_b32 %s, %s, v0" % (v(T1), v(T1)))
    e("v_and_b32 %s, 7, %s" % (v(T1), v(T1)))
    e("v_lshl_add_u32 %s, %s, 4, %s" % (v(W_XW), v(T1), v(W_XW)))
    e("v_bfe_u32 %s, v0, 4, 2" % v(T1))
    e("v_lshlrev_b32 %s, 4, %s" % (v(T1), v(T1)))
    e("v_xor_b32 %s, %s, %s" % (v(W_XR0), v(T1), v(W_L16)))
    e("v_xor_b32 %s, 64, %s" % (v(W_XR1), v(W_XR0)))
    lin(e, W_MR, {0: 16, 1: 64, 2: 128, 4: 32, 5: 256}, MEMI)
    lin(e, W_TPW, {0: 16, 1: 32, 2: 64, 3: 128, 4: 4 * 32768, 5: 8 * 32768, 6: 256, 7: 512})
    lin(e, W_TPR, {0: 16, 1: 32, 2: 64, 3: 128, 4: 1024, 5: 2048, 6: 256, 7: 512})
    lin(e, W_ROW, {0: 16, 1: 32, 2: 64, 3: 128, 4: 4, 5: 8, 6: 256, 7: 512})
    e("v_mov_b32 %s, 0x%x" % (v(W_NEG), f32bits(-1e30)))
    e("v_and_b32 %s, 15, v0" % v(T0))
    e("v_bfe_u32 %s, v0, 4, 2" % v(T1))
    e("v_cmp_gt_u32 %s, 2, %s" % (s(S_MM, 2), v(T1)))
    e("v_lshlrev_b32 %s, 2, %s" % (v(T1), v(T1)))
    for r in range(4):
        e("v_cmp_le_u32 %s, %s, %s" % (s(S_M0 + 2 * r, 2), v(T1), v(T0)))
        e("v_add_u32 %s, 1, %s" % (v(T1), v(T1)))
    e("s_mov_b32 %s, 0x05040100" % s(S_PLO))
    e("s_mov_b32 %s, 0x07060302" % s(S_PHI))
    e("s_mov_b32 %s, 0x%x" % (s(S_SCALE), f32bits(128 ** -0.5 * 1.4426950408889634)))
    e("s_mov_b32 %s, 0" % s(S_TMO))
    e("s_mov_b32 %s, 0x3f803f80" % s(S_ONES))
    e("s_mov_b32 %s, 0x3f803f80" % s(S_ONES + 1))


def load_w(e, P, mats, pre=None):
    ptr = {"Q": P + 4, "K": P + 6, "V": P + 8}
    SRDS = {"Q": 96, "K": 40, "V": 76}

    def reads(m, ci):
        out = []
        for k in range(4):
            for T in range(2):
                idx = ("QKV".index(m) * 32 + (4 * ci + k) * 2 + T) * 4
                for u in range(2):
                    dst = a(idx + 2 * u, 2) if idx < 256 else v(128 + idx - 256 + 2 * u, 2)
                    out.append((dst, k, T, 4 * u))
        return out
    chunks = [(m, ci) for m in mats for ci in range(4)]

    def side(c, q):
        phase0(e, c, q)
    C.staged_load(e, chunks, ptr, SRDS, 2, lambda k: (k >> 1) << 7, {2: 32, 3: 64, 4: 128}, {2: 1, 3: 2, 4: 8, 5: 16}, False, reads, side, pre, 4)


def load_wo(e, P):
    VOFF = T1
    srd(e, 96, P + 10, 4096 * 512 * 2)
    lin(e, VOFF, {0: 16, 1: 32, 2: 64, 3: 128, 4: 4 * 1024, 5: 8 * 1024, 6: 256, 7: 512})
    e("s_lshl_b32 %s, %s, 17" % (s(S_T0), s(S_H)))
    TMP = 112

    def issue(ks):
        base = R0 + (ks % 3) * 32
        for j in range(8):
            e("s_add_u32 %s, %s, 0x%x" % (s(S_T1), s(S_T0), (32 * ks + 16 * (j & 1) + (j >> 1)) * 1024))
            e("buffer_load_dwordx4 %s, %s, %s, %s offen" % (v(base + 4 * j, 4), v(VOFF), s(96, 4), s(S_T1)))

    def consume(ks):
        base = R0 + (ks % 3) * 32
        for T in range(8):
            t = TMP + (T % 4) * 4
            if T == 4:
                e("s_waitcnt lgkmcnt(0)")
            for jj in range(4):
                e("v_perm_b32 %s, %s, %s, %s" % (v(t + jj), v(base + 4 * (2 * jj + 1) + (T >> 1)), v(base + 4 * (2 * jj) + (T >> 1)), s(S_PHI if T & 1 else S_PLO)))
            e("ds_write_b128 %s, %s offset:%d" % (v(W_WO), v(t, 4), (ks * 8 + T) * 1024))
        e("s_waitcnt lgkmcnt(0)")
    for ks in range(3):
        issue(ks)
    e("s_waitcnt vmcnt(16)")
    consume(0)
    issue(3)
    e("s_waitcnt vmcnt(16)")
    consume(1)
    e("s_waitcnt vmcnt(8)")
    consume(2)
    e("s_waitcnt vmcnt(0)")
    consume(3)


def dpp_add(e, r, ctrl):
    e("v_add_f32_dpp %s, %s, %s %s row_mask:0xf bank_mask:0xf" % (v(r), v(r), v(r), ctrl))


def wave_sum(e, regs, tmp):
    for ctrl in ("quad_perm:[1,0,3,2]", "quad_perm:[2,3,0,1]", "row_half_mirror", "row_mirror"):
        for r in regs:
            dpp_add(e, r, ctrl)
    for sw in ("v_permlane16_swap_b32", "v_permlane32_swap_b32"):
        for r in regs:
            e("v_mov_b32 %s, %s" % (v(tmp), v(r)))
            e("%s %s, %s" % (sw, v(r), v(tmp)))
            e("v_add_f32 %s, %s, %s" % (v(r), v(r), v(tmp)))


XR = R0 + 80


def x_issue(e, sseg):
    e("s_lshl_b32 %s, %s, 15" % (s(S_T0), s(sseg)))
    for i in range(8):
        e("buffer_load_dwordx4 %s, %s, %s, %s offen offset:%d" % (v(XR + 4 * i, 4), v(W_XG), s(S_X, 4), s(S_T0), i * 128))


def x_norm(e):
    SU, SQ, LO, HI = R0 + 72, R0 + 73, R0 + 74, R0 + 75
    lo = lambda d, x: e("v_lshlrev_b32 %s, 16, %s" % (v(d), v(x)))
    hi = lambda d, x: e("v_and_b32 %s, 0xffff0000, %s" % (v(d), v(x)))
    e("v_mov_b32 %s, 0" % v(SU))
    e("v_mov_b32 %s, 0" % v(SQ))
    for r in range(XR, XR + 32):
        e("v_dot2_f32_bf16 %s, %s, %s, %s" % (v(SU), v(r), s(S_ONES), v(SU)))
        e("v_dot2_f32_bf16 %s, %s, %s, %s" % (v(SQ), v(r), v(r), v(SQ)))
    e("s_nop 3")
    for ctrl in ("quad_perm:[1,0,3,2]", "quad_perm:[2,3,0,1]", "row_half_mirror"):
        dpp_add(e, SU, ctrl)
        dpp_add(e, SQ, ctrl)
    e("v_mul_f32 %s, 0x%x, %s" % (v(SU), f32bits(1 / 512), v(SU)))
    e("v_mul_f32 %s, 0x%x, %s" % (v(SQ), f32bits(1 / 512), v(SQ)))
    e("v_fma_f32 %s, -%s, %s, %s" % (v(SQ), v(SU), v(SU), v(SQ)))
    e("v_max_f32 %s, 0, %s" % (v(SQ), v(SQ)))
    e(cvt(T0, SU, SQ))
    lo(SU, T0); hi(SQ, T0)
    e("v_add_f32 %s, 0x%x, %s" % (v(SQ), f32bits(1e-5), v(SQ)))
    e(cvt(T0, SQ, SQ)); lo(SQ, T0)
    e("v_sqrt_f32 %s, %s" % (v(SQ), v(SQ)))
    e(cvt(T0, SQ, SQ)); lo(SQ, T0)
    e("v_rcp_f32 %s, %s" % (v(SQ), v(SQ)))
    for i in range(8):
        for q in range(4):
            r = XR + 4 * i + q
            lo(LO, r); hi(HI, r)
            e("v_sub_f32 %s, %s, %s" % (v(LO), v(LO), v(SU)))
            e("v_sub_f32 %s, %s, %s" % (v(HI), v(HI), v(SU)))
            e(cvt(r, LO, HI))
            lo(LO, r); hi(HI, r)
            e("v_mul_f32 %s, %s, %s" % (v(LO), v(LO), v(SQ)))
            e("v_mul_f32 %s, %s, %s" % (v(HI), v(HI), v(SQ)))
            e(cvt(r, LO, HI))
        e("ds_write_b128 %s, %s offset:%d" % (v(W_XW), v(XR + 4 * i, 4), X_T + i * 2048))


AQ, AK, AV = R0, R0 + 16, R0 + 32
XO = R0 + 48


def project(e, mats, r0, r1, extra=None):
    def rd(ks):
        b = XO + (ks & 1) * 8
        for kap in range(2):
            e("ds_read_b128 %s, %s offset:%d" % (v(b + 4 * kap, 4), v((r1 if ks & 1 else r0)[kap]), X_T + ks * 1024))
    rd(0)
    for ks in range(16):
        if ks + 1 < 16:
            rd(ks + 1)
            e("s_waitcnt lgkmcnt(2)")
        else:
            e("s_waitcnt lgkmcnt(0)")
        b = XO + (ks & 1) * 8
        if extra and ks in extra:
            extra[ks]()
        for m in mats:
            for T in range(2):
                for kap in range(2):
                    x = v(b + 4 * kap, 4)
                    if m == "V":
                        e(mf32(AV + 8 * kap + 4 * T, x, wreg(m, T, ks), ks == 0))
                    else:
                        e(mf32((AQ if m == "Q" else AK) + 8 * T + 4 * kap, wreg(m, T, ks), x, ks == 0))


def pack_qk(e, acc, dst, scale):
    if scale:
        for r in range(16):
            e("v_mul_f32 %s, %s, %s" % (v(acc + r), s(S_SCALE), v(acc + r)))
    for kap in range(2):
        for r in range(4):
            e(cvt(dst + 4 * kap + r, acc + 4 * kap + r, acc + 8 + 4 * kap + r))


def pack_v(e, dst):
    for T in range(2):
        for kap in range(2):
            for q in range(2):
                e(cvt(dst + 4 * T + 2 * kap + q, AV + 8 * kap + 4 * T + 2 * q, AV + 8 * kap + 4 * T + 2 * q + 1))


def signal(e, soff):
    e("s_waitcnt vmcnt(0)")
    e("s_barrier")
    flag_store(e, soff)


def wait_handshake(e, L="L_WHS"):
    e("v_lshrrev_b32 %s, 2, %s" % (v(T1), v(W_L16)))
    e("v_and_b32 %s, 127, %s" % (v(T1), v(T1)))
    e.label(L)
    e("buffer_load_dword %s, %s, %s, 0 offen sc1" % (v(T0), v(T1), s(S_DBG, 4)))
    e("s_add_u32 %s, %s, 1" % (s(S_TMO), s(S_TMO)))
    e("s_cmp_gt_u32 %s, %d" % (s(S_TMO), TMO_LIMIT))
    e("s_cbranch_scc1 %s_done" % L)
    e("s_waitcnt vmcnt(0)")
    e("v_cmp_eq_u32 vcc, 0, %s" % v(T0))
    e("s_cbranch_vccnz %s" % L)
    e.label(L + "_done")


def flag_store(e, soff):
    e("v_cmp_ne_u32 vcc, 0, v0")
    e("v_mov_b32 %s, 0x%x" % (v(T1), OOB))
    e("v_mov_b32 %s, 1" % v(T0))
    e("v_cndmask_b32 %s, v0, %s, vcc" % (v(T1), v(T1)))
    e("buffer_store_dword %s, %s, %s, %s offen sc1" % (v(T0), v(T1), s(S_WS, 4), s(soff)))


def xn_produce(e, mid):
    ws = s(S_WS, 4)
    e("s_lshr_b32 %s, s2, 3" % s(S_SEG))
    e("s_lshl_b32 %s, %s, 1" % (s(S_SEG), s(S_SEG)))
    x_issue(e, S_SEG)
    e("s_add_u32 %s, %s, 0x8000" % (s(S_T0), s(S_T0)))
    for i in range(8):
        e("buffer_load_dwordx4 %s, %s, %s, %s offen offset:%d" % (v(128 + 4 * i, 4), v(W_XG), s(S_X, 4), s(S_T0), i * 128))
    mid()
    e.label("L_XN")
    x_norm(e)
    e("s_waitcnt lgkmcnt(0)")
    e("s_barrier")
    e("s_lshl_b32 %s, %s, 15" % (s(S_A), s(S_SEG)))
    e("s_add_u32 %s, %s, 0x%x" % (s(S_A), s(S_A), XNI))
    for i in range(8):
        e("ds_read_b128 %s, %s offset:%d" % (v(R0 + 8 + 4 * i, 4), v(W_EX), i * 4096))
    for i in range(8):
        e("s_waitcnt lgkmcnt(%d)" % (7 - i))
        e("s_add_u32 %s, %s, %d" % (s(S_T0), s(S_A), i * 4096))
        e("buffer_store_dwordx4 %s, %s, %s, %s offen sc1" % (v(R0 + 8 + 4 * i, 4), v(W_EX), ws, s(S_T0)))
    e("s_barrier")
    for r in range(0, 32, 2):
        e("v_mov_b64 %s, %s" % (v(XR + r, 2), v(128 + r, 2)))
    e("s_add_u32 %s, %s, 1" % (s(S_SEG), s(S_SEG)))
    e("s_bitcmp1_b32 %s, 0" % s(S_SEG))
    e("s_cbranch_scc1 L_XN")
    C.ready_publish(e, T0, T1)


S_KVB = 30
S_BUF = 31


def x_dma(e, sseg, sbuf):
    e("s_lshl_b32 %s, %s, 15" % (s(S_T0), s(sseg)))
    e("s_add_u32 %s, %s, 0x%x" % (s(S_T0), s(S_T0), XNI))
    e("s_lshl_b32 %s, %s, 10" % (s(S_T1), s(S_WAVE)))
    e("s_add_u32 %s, %s, %s" % (s(S_T1), s(S_T1), s(sbuf)))
    for i in range(8):
        e("s_add_u32 m0, %s, %d" % (s(S_T1), i * 4096))
        e("s_add_u32 %s, %s, %d" % (s(S_T2), s(S_T0), i * 4096))
        e("buffer_load_dwordx4 %s, %s, %s offen sc1 lds" % (v(W_EX), s(S_WS, 4), s(S_T2)))


A0 = R0 + 64


def p1_addr(e):
    e("s_lshr_b32 %s, %s, 1" % (s(S_T0), s(S_WAVE)))
    e("s_lshl_b32 %s, %s, 14" % (s(S_T0), s(S_T0)))
    e("s_xor_b32 %s, %s, 16384" % (s(S_T1), s(S_T0)))
    e("v_add_u32 %s, %s, %s" % (v(A0), s(S_T0), v(W_XR0)))
    e("v_add_u32 %s, %s, %s" % (v(A0 + 1), s(S_T1), v(W_XR0)))
    e("v_add_u32 %s, %s, %s" % (v(A0 + 2), s(S_T0), v(W_XR1)))
    e("v_add_u32 %s, %s, %s" % (v(A0 + 3), s(S_T1), v(W_XR1)))


def p1_store(e, with_q):
    ws = s(S_WS, 4)
    KP, VP, QP = R0 + 72, R0 + 80, R0 + 88
    pack_qk(e, AK, KP, True)
    pack_v(e, VP)
    if with_q:
        pack_qk(e, AQ, QP, False)
    e("s_mul_i32 %s, %s, 0x%x" % (s(S_A), s(S_SEG), C.SLAB_ST))
    e("s_lshl_b32 %s, %s, 14" % (s(S_T0), s(S_H)))
    e("s_add_u32 %s, %s, %s" % (s(S_A), s(S_A), s(S_T0)))
    e("s_add_u32 %s, %s, 0x%x" % (s(S_A), s(S_A), C.SLAB_OFF))
    e("s_mov_b32 %s, %s" % (s(S_KVB), s(S_A)))
    e("s_lshr_b32 %s, %s, 1" % (s(S_T0), s(S_WAVE)))
    e("s_lshl_b32 %s, %s, 12" % (s(S_T0), s(S_T0)))
    e("s_xor_b32 %s, %s, 4096" % (s(S_T1), s(S_T0)))
    e("s_add_u32 %s, %s, %s" % (s(S_T0), s(S_T0), s(S_A)))
    e("s_add_u32 %s, %s, %s" % (s(S_T1), s(S_T1), s(S_A)))
    e("buffer_store_dwordx4 %s, %s, %s, %s offen sc1" % (v(KP, 4), v(W_EX), ws, s(S_T0)))
    e("buffer_store_dwordx4 %s, %s, %s, %s offen sc1" % (v(KP + 4, 4), v(W_EX), ws, s(S_T1)))
    e("s_add_u32 %s, %s, 8192" % (s(S_A), s(S_A)))
    e("buffer_store_dwordx4 %s, %s, %s, %s offen sc1" % (v(VP, 4), v(W_MW), ws, s(S_A)))
    e("buffer_store_dwordx4 %s, %s, %s, %s offen offset:1024 sc1" % (v(VP + 4, 4), v(W_MW), ws, s(S_A)))
    if with_q:
        e("s_add_u32 %s, %s, 0x%x" % (s(S_T0), s(S_T0), Q_DELTA))
        e("s_add_u32 %s, %s, 0x%x" % (s(S_T1), s(S_T1), Q_DELTA))
        e("buffer_store_dwordx4 %s, %s, %s, %s offen sc1" % (v(QP, 4), v(W_EX), ws, s(S_T0)))
        e("buffer_store_dwordx4 %s, %s, %s, %s offen sc1" % (v(QP + 4, 4), v(W_EX), ws, s(S_T1)))
    e("s_mul_i32 %s, %s, 0x%x" % (s(S_B), s(S_SEG), C.SLAB_ST))
    e("s_lshl_b32 %s, %s, 2" % (s(S_T0), s(S_H)))
    e("s_add_u32 %s, %s, %s" % (s(S_B), s(S_B), s(S_T0)))
    e("s_add_u32 %s, %s, 0x%x" % (s(S_B), s(S_B), C.SLAB_OFF + C.FL_IN))


def phase0(e, c, q):
    if c == 0:
        e("s_mov_b32 %s, %s" % (s(S_SEG), s(S_R)))
        x_issue(e, S_SEG)
        for _ in range(8):
            q.add("x")
    if c == 4:
        q.wait("x")
        x_norm(e)
        p1_addr(e)
        e("s_mov_b32 %s, 0" % s(S_BUF))
    if c == 8:
        if C.OPT.get("prof") == 1:
            e("s_memrealtime s[100:101]")
            e("s_waitcnt lgkmcnt(0)")
            e("s_mov_b32 s91, s100")
        project(e, "KV", (A0, A0 + 1), (A0 + 2, A0 + 3))
        p1_store(e, False)
        wait_handshake(e)
        signal(e, S_B)
        if C.OPT.get("prof") == 1:
            e("s_memrealtime s[100:101]")
            e("s_waitcnt lgkmcnt(0)")
            e("s_mov_b32 s90, s100")
        q.q = []


def phase1(e):
    ws = s(S_WS, 4)
    e.label("L_P1")
    e("s_waitcnt vmcnt(6)")
    e("s_barrier")
    e("s_xor_b32 %s, %s, 32768" % (s(S_BUF), s(S_BUF)))
    e("s_add_u32 %s, %s, %d" % (s(S_A), s(S_SEG), NREP))
    e("s_min_u32 %s, %s, 63" % (s(S_A), s(S_A)))
    x_dma(e, S_A, S_BUF)

    def mid():
        e("s_waitcnt vmcnt(8)")
        e("s_barrier")
        flag_store(e, S_B)
        if C.OPT.get("rb"):
            e("v_lshlrev_b32 %s, 6, v0" % v(T1))
            e("buffer_load_dword %s, %s, %s, %s offen%s" % (v(R0 + 99), v(T1), ws, s(S_KVB), C.OPT.get("rbf", "")))
    project(e, "KVQ", (A0, A0 + 1), (A0 + 2, A0 + 3), {6: mid})
    for k in range(4):
        e("v_xor_b32 %s, 0x8000, %s" % (v(A0 + k), v(A0 + k)))
    p1_store(e, True)
    e("s_add_u32 %s, %s, %d" % (s(S_SEG), s(S_SEG), NREP))
    e("s_cmp_lt_u32 %s, 64" % s(S_SEG))
    e("s_cbranch_scc1 L_P1")
    for k in range(4):
        e("v_mov_b32 %s, -1" % v(R0 + 4 + k))
    e("s_lshl_b32 %s, %s, 21" % (s(S_A), s(S_R)))
    e("s_lshl_b32 %s, %s, 15" % (s(S_T0), s(S_H)))
    e("s_add_u32 %s, %s, %s" % (s(S_A), s(S_A), s(S_T0)))
    for b_ in range(2):
        for u in range(8):
            e("s_add_u32 %s, %s, 0x%x" % (s(S_T0), s(S_A), TP_OFF + (b_ << 20) + u * 4096))
            e("buffer_store_dwordx4 %s, %s, %s, %s offen sc1" % (v(R0 + 4, 4), v(W_TPR), ws, s(S_T0)))
    signal(e, S_B)
    e("s_lshl_b32 %s, %s, 7" % (s(S_B), s(S_R)))
    e("s_lshl_b32 %s, %s, 2" % (s(S_T0), s(S_H)))
    e("s_add_u32 %s, %s, %s" % (s(S_T0), s(S_T0), s(S_B)))
    e("s_add_u32 %s, %s, 0x%x" % (s(S_T0), s(S_T0), FLAGTP))
    flag_store(e, S_T0)


def wait_tpinit(e):
    e("s_lshl_b32 %s, %s, 7" % (s(S_B), s(S_R)))
    e("s_add_u32 %s, %s, 0x%x" % (s(S_B), s(S_B), FLAGTP))
    e("v_lshrrev_b32 %s, 2, %s" % (v(T1), v(W_L16)))
    e("v_and_b32 %s, 127, %s" % (v(T1), v(T1)))
    e.label("L_TPI")
    e("buffer_load_dword %s, %s, %s, %s offen sc1" % (v(T0), v(T1), s(S_WS, 4), s(S_B)))
    e("s_add_u32 %s, %s, 1" % (s(S_TMO), s(S_TMO)))
    e("s_cmp_gt_u32 %s, %d" % (s(S_TMO), TMO_LIMIT))
    e("s_waitcnt vmcnt(0)")
    e("s_cbranch_scc1 L_TPI_ok")
    e("v_cmp_eq_u32 vcc, 0, %s" % v(T0))
    e("s_cbranch_vccz L_TPI_ok")
    e("s_sleep 8")
    e("s_branch L_TPI")
    e.label("L_TPI_ok")


def pst(e, i):
    if C.OPT.get("prof") == 1:
        e("s_memrealtime %s" % s(44 + 2 * i, 2))
        e("s_waitcnt lgkmcnt(0)")


QO, KO, VPA = 0, 32, 64
S_RD = 30


def qkv_issue(e, sseg):
    ws = s(S_WS, 4)
    e("s_mul_i32 %s, %s, 0x%x" % (s(S_A), s(sseg), C.SLAB_ST))
    e("s_lshl_b32 %s, %s, 14" % (s(S_T0), s(S_H)))
    e("s_add_u32 %s, %s, %s" % (s(S_A), s(S_A), s(S_T0)))
    e("s_add_u32 %s, %s, 0x%x" % (s(S_A), s(S_A), C.SLAB_OFF))
    for kap in range(2):
        e("s_add_u32 %s, %s, %d" % (s(S_T0), s(S_A), kap * 4096))
        e("s_add_u32 %s, %s, 0x%x" % (s(S_T1), s(S_T0), Q_DELTA))
        for ks in range(4):
            e("buffer_load_dwordx4 %s, %s, %s, %s offen offset:%d sc1" % (a(KO + 16 * kap + 4 * ks, 4), v(W_L16), ws, s(S_T0), ks * 1024))
            e("buffer_load_dwordx4 %s, %s, %s, %s offen offset:%d sc1" % (a(QO + 16 * kap + 4 * ks, 4), v(W_L16), ws, s(S_T1), ks * 1024))
    e("s_lshr_b32 %s, %s, 1" % (s(S_T0), s(S_WAVE)))
    e("s_lshl_b32 %s, %s, 3" % (s(S_T0), s(S_T0)))
    e("s_xor_b32 %s, %s, 8" % (s(S_T1), s(S_T0)))
    e("s_add_u32 %s, %s, 8192" % (s(S_A), s(S_A)))
    e("s_add_u32 %s, %s, %s" % (s(S_T0), s(S_T0), s(S_A)))
    e("s_add_u32 %s, %s, %s" % (s(S_T1), s(S_T1), s(S_A)))
    for T in range(2):
        e("buffer_load_dwordx2 %s, %s, %s, %s offen offset:%d sc1" % (a(VPA + 4 * T, 2), v(W_MW), ws, s(S_T0), T * 1024))
        e("buffer_load_dwordx2 %s, %s, %s, %s offen offset:%d sc1" % (a(VPA + 4 * T + 2, 2), v(W_MW), ws, s(S_T1), T * 1024))


def rdone_store(e):
    e("v_cmp_ne_u32 vcc, 0, %s" % v(W_L16))
    e("v_mov_b32 %s, 0x%x" % (v(T1), OOB))
    e("v_mov_b32 %s, 0" % v(T0))
    e("v_cndmask_b32 %s, %s, %s, vcc" % (v(T1), v(W_L16), v(T1)))
    e("buffer_store_dword %s, %s, %s, %s offen sc1" % (v(T0), v(T1), s(S_WS, 4), s(S_RD)))


def inter(e, mains, fills, per):
    fills = list(fills)
    for m in mains:
        for x in (m if isinstance(m, list) else [m]):
            e(x)
        for _ in range(per):
            if fills:
                e(fills.pop(0))
    for x in fills:
        e(x)


def phase2(e):
    ws = s(S_WS, 4)
    mf16 = lambda d, A, B, first: "v_mfma_f32_16x16x16_bf16 %s, %s, %s, %s" % (v(d, 4), A, B, "0" if first else v(d, 4))
    e("s_mov_b32 %s, %s" % (s(S_SEG), s(S_R)))
    e("s_mov_b32 %s, 0" % s(S_J))
    e("s_mov_b32 %s, 0x%x" % (s(S_RD), OOB))
    qkv_issue(e, S_SEG)
    e.label("L_P2")
    e("s_and_b32 %s, %s, 1" % (s(S_T0), s(S_J)))
    e("s_lshl_b32 %s, %s, 20" % (s(S_T0), s(S_T0)))
    e("s_lshl_b32 %s, %s, 21" % (s(S_TPB), s(S_R)))
    e("s_add_u32 %s, %s, %s" % (s(S_TPB), s(S_TPB), s(S_T0)))
    e("s_add_u32 %s, %s, 0x%x" % (s(S_TPB), s(S_TPB), TP_OFF))
    e("s_bfe_u32 %s, %s, 0x10001" % (s(S_PAR), s(S_J)))
    MB = R0 + 32
    e("s_lshl_b32 %s, %s, 13" % (s(S_A), s(S_SEG)))
    e("s_add_u32 %s, %s, 0x%x" % (s(S_A), s(S_A), C.HIST_OFF))
    e("s_max_u32 %s, %s, 1" % (s(S_B), s(S_SEG)))
    e("s_lshl_b32 %s, %s, 13" % (s(S_B), s(S_B)))
    e("s_add_u32 %s, %s, 0x%x" % (s(S_B), s(S_B), C.HIST_OFF - 0x2000))
    hld = ["buffer_load_dwordx4 %s, %s, %s, %s offen sc1" % (v(MB, 4), v(W_MW), ws, s(S_A)),
           "buffer_load_dwordx4 %s, %s, %s, %s offen offset:1024 sc1" % (v(MB + 4, 4), v(W_MW), ws, s(S_A))]
    for x in hld:
        e(x)
    e("s_lshl_b32 %s, %s, 5" % (s(S_T0), s(S_SEG)))
    e("s_add_u32 %s, %s, %s" % (s(S_T0), s(S_T0), s(S_H)))
    e("s_lshl_b32 %s, %s, 10" % (s(S_T0), s(S_T0)))
    e("buffer_load_dword a72, %s, %s, %s offen" % (v(W_ROW), s(S_X, 4), s(S_T0)))
    e("buffer_load_dword a73, %s, %s, 0 offen" % (v(W_ROW), s(S_WR, 4)))
    e("s_waitcnt vmcnt(4)")
    rdone_store(e)
    S00, S01, S11, SM0, SM1 = R0 + 64, R0 + 68, R0 + 72, R0 + 76, R0 + 80
    for (d, kk, kq) in ((S00, 0, 0), (S11, 1, 1), (S01, 0, 1)):
        for ks in range(4):
            e(mf32(d, a(KO + 16 * kk + 4 * ks, 4), a(QO + 16 * kq + 4 * ks, 4), ks == 0))
    for S_ in (S00, S11):
        for r in range(4):
            e("v_cndmask_b32 %s, %s, %s, %s" % (v(S_ + r), v(W_NEG), v(S_ + r), s(S_M0 + 2 * r, 2)))
    MX = R0 + 100
    g0 = [S00 + r for r in range(4)]
    g1 = [S01 + r for r in range(4)] + [S11 + r for r in range(4)]
    for mx, g_ in ((MX, g0), (MX + 1, g1)):
        e("v_max_f32 %s, %s, %s" % (v(mx), v(g_[0]), v(g_[1])))
        for i in range(2, len(g_), 2):
            e("v_max3_f32 %s, %s, %s, %s" % (v(mx), v(mx), v(g_[i]), v(g_[i + 1])))
    for sw in ("v_permlane16_swap_b32", "v_permlane32_swap_b32"):
        for mx in (MX, MX + 1):
            e("v_mov_b32 %s, %s" % (v(T0), v(mx)))
            e("%s %s, %s" % (sw, v(mx), v(T0)))
            e("v_max_f32 %s, %s, %s" % (v(mx), v(mx), v(T0)))
    for mx, g_ in ((MX, g0), (MX + 1, g1)):
        for r in g_:
            e("v_sub_f32 %s, %s, %s" % (v(r), v(r), v(mx)))
            e("v_exp_f32 %s, %s" % (v(r), v(r)))
    P0, P1, ONES, ONM = R0 + 84, R0 + 88, R0 + 92, R0 + 96
    e(cvt(P0, S00, S00 + 1)); e(cvt(P0 + 1, S00 + 2, S00 + 3))
    e("v_mov_b64 %s, 0" % v(P0 + 2, 2))
    e(cvt(P1, S01, S01 + 1)); e(cvt(P1 + 1, S01 + 2, S01 + 3))
    e(cvt(P1 + 2, S11, S11 + 1)); e(cvt(P1 + 3, S11 + 2, S11 + 3))
    e("v_mov_b64 %s, %s" % (v(ONES, 2), s(S_ONES, 2)))
    e("v_mov_b64 %s, %s" % (v(ONES + 2, 2), s(S_ONES, 2)))
    for k in range(2):
        e("v_cndmask_b32 %s, 0, %s, %s" % (v(ONM + k), v(ONES), s(S_MM, 2)))
    LX, OX = R0, R0 + 8
    for kq, P_ in ((0, P0), (1, P1)):
        e(mf32(LX + 4 * kq, v(ONES, 4), v(P_, 4), True))
        for T in range(2):
            e(mf32(OX + 8 * kq + 4 * T, a(VPA + 4 * T, 4), v(P_, 4), True))
    e("s_branch L_P2_chk")
    e.label("L_P2_far")
    e("buffer_load_dword %s, %s, %s, %s offen sc1" % (v(T0), v(W_MW), ws, s(S_B)))
    e("s_add_u32 %s, %s, 1" % (s(S_TMO), s(S_TMO)))
    e("s_cmp_gt_u32 %s, %d" % (s(S_TMO), TMO_LIMIT))
    e("s_waitcnt vmcnt(0)")
    e("s_cbranch_scc1 L_P2_poll")
    e("v_cmp_eq_u32 vcc, -1, %s" % v(T0))
    e("s_cbranch_vccz L_P2_near")
    e("s_sleep %d" % C.OPT.get("farsl", 12))
    e("s_branch L_P2_far")
    e.label("L_P2_near")
    e("s_mov_b32 %s, 0x%x" % (s(S_B), OOB))
    e.label("L_P2_poll")
    for x in hld:
        e(x)
    e.label("L_P2_chk")
    e("s_add_u32 %s, %s, 1" % (s(S_TMO), s(S_TMO)))
    e("s_waitcnt vmcnt(0)")
    e("ds_write_b128 %s, %s offset:%d" % (v(W_MW), v(MB, 4), MEMI))
    e("ds_write_b128 %s, %s offset:%d" % (v(W_MW), v(MB + 4, 4), MEMI + 1024))
    e("v_max3_u32 %s, %s, %s, %s" % (v(T0), v(MB), v(MB + 1), v(MB + 2)))
    e("v_max3_u32 %s, %s, %s, %s" % (v(T1), v(MB + 3), v(MB + 4), v(MB + 5)))
    e("v_max3_u32 %s, %s, %s, %s" % (v(T0), v(T0), v(MB + 6), v(MB + 7)))
    e("v_max_u32 %s, %s, %s" % (v(T0), v(T0), v(T1)))
    e("v_cmp_eq_u32 vcc, -1, %s" % v(T0))
    e("s_cbranch_vccz L_P2_got")
    e("s_cmp_gt_u32 %s, %d" % (s(S_TMO), TMO_LIMIT))
    e("s_cbranch_scc1 L_P2_got")
    if C.OPT.get("nearsl"):
        e("s_sleep %d" % C.OPT["nearsl"])
    e("s_cmp_eq_u32 %s, 0x%x" % (s(S_B), OOB))
    e("s_cbranch_scc1 L_P2_poll")
    e("s_branch L_P2_far")
    e.label("L_P2_got")
    pst(e, 0)
    e("s_waitcnt lgkmcnt(0)")
    e("s_barrier")
    AKM, AVM = R0 + 64, R0 + 24
    MO = R0 + 32
    moff = lambda ks: ((ks & 3) * 128 + ((ks >> 2) & 1) * 32 + (ks >> 3) * 64) * 16
    rdm = lambda i: "ds_read_b128 %s, %s offset:%d" % (v(MO + 4 * (i % 4), 4), v(W_MR), moff(i % 16))
    for i in range(3):
        e(rdm(i))
    for ks in range(16):
        e(rdm(ks + 3))
        e("s_waitcnt lgkmcnt(3)")
        for T in range(2):
            e(mf32(AKM + 4 * T, wreg("K", T, ks), v(MO + 4 * (ks % 4), 4), ks == 0))
    KMP, KMO = R0 + 72, R0 + 48
    PM = R0 + 84
    FX = R0 + 88
    vm = lambda ks, n: ([rdm(16 + ks + 3)] if ks + 3 < 16 else []) + ["s_waitcnt lgkmcnt(%d)" % n] + \
        [mf32(AVM + 4 * T, v(MO + 4 * (ks % 4), 4), wreg("V", T, ks), ks == 0) for T in range(2)]
    for x in vm(0, 3) + vm(1, 3):
        e(x)
    kf = ["v_mul_f32 %s, %s, %s" % (v(AKM + r), s(S_SCALE), v(AKM + r)) for r in range(8)] + [cvt(KMP + r, AKM + r, AKM + 4 + r) for r in range(4)]
    inter(e, [vm(2, 3), vm(3, 3), vm(4, 3)], kf, 4)
    e("ds_write_b128 %s, %s offset:%d" % (v(W_EX), v(KMP, 4), EX_KM))
    for x in vm(5, 4) + vm(6, 4) + vm(7, 4):
        e(x)
    e("s_waitcnt lgkmcnt(3)")
    e("s_barrier")
    for ks in range(4):
        e("ds_read_b128 %s, %s offset:%d" % (v(KMO + 4 * ks, 4), v(W_L16), EX_KM + ks * 1024))
    for x in vm(8, 7) + vm(9, 7):
        e(x)
    e("s_waitcnt lgkmcnt(2)")
    for ks in range(4):
        for (d, kq) in ((SM0, 0), (SM1, 1)):
            e(mf32(d, v(KMO + 4 * ks, 4), a(QO + 16 * kq + 4 * ks, 4), ks == 0))
    for x in vm(10, 3):
        e(x)
    M2 = R0 + 102
    sf = []
    for kq, S_ in ((0, SM0), (1, SM1)):
        sf += ["v_max3_f32 %s, %s, %s, %s" % (v(M2 + kq), v(S_), v(S_ + 1), v(S_ + 2)),
               "v_max3_f32 %s, %s, %s, %s" % (v(M2 + kq), v(M2 + kq), v(S_ + 3), v(MX + kq))]
    sf += ["v_mov_b32 %s, %s" % (v(T0), v(M2)), "v_mov_b32 %s, %s" % (v(T1), v(M2 + 1)),
           "v_permlane16_swap_b32 %s, %s" % (v(M2), v(T0)), "v_permlane16_swap_b32 %s, %s" % (v(M2 + 1), v(T1)),
           "v_max_f32 %s, %s, %s" % (v(M2), v(M2), v(T0)), "v_max_f32 %s, %s, %s" % (v(M2 + 1), v(M2 + 1), v(T1))]
    for kq, S_ in ((0, SM0), (1, SM1)):
        for r in range(4):
            sf += ["v_sub_f32 %s, %s, %s" % (v(S_ + r), v(S_ + r), v(M2 + kq)), "v_exp_f32 %s, %s" % (v(S_ + r), v(S_ + r))]
        sf += ["v_sub_f32 %s, %s, %s" % (v(FX + kq), v(MX + kq), v(M2 + kq)), "v_exp_f32 %s, %s" % (v(FX + kq), v(FX + kq))]
        sf += [cvt(PM + 2 * kq, S_, S_ + 1), cvt(PM + 2 * kq + 1, S_ + 2, S_ + 3)]
    inter(e, [vm(11, 3), vm(12, 3), vm(13, 2), vm(14, 1), vm(15, 0)], sf, 6)
    LM, OM = R0 + 32, R0 + 40
    for kq in range(2):
        e(mf16(LM + 4 * kq, v(ONM, 2), v(PM + 2 * kq, 2), True))
    VMP = R0 + 64
    for T in range(2):
        for k in range(2):
            e(cvt(VMP + 2 * T + k, AVM + 4 * T + 2 * k, AVM + 4 * T + 2 * k + 1))
            e("v_cndmask_b32 %s, 0, %s, %s" % (v(VMP + 2 * T + k), v(VMP + 2 * T + k), s(S_MM, 2)))
    for kq in range(2):
        for T in range(2):
            e(mf16(OM + 8 * kq + 4 * T, v(VMP + 2 * T, 2), v(PM + 2 * kq, 2), True))
    OP = R0 + 56
    for kq in range(2):
        e("v_fma_f32 %s, %s, %s, %s" % (v(LM + 4 * kq), v(LX + 4 * kq), v(FX + kq), v(LM + 4 * kq)))
        e("v_rcp_f32 %s, %s" % (v(LM + 4 * kq), v(LM + 4 * kq)))
    for kq in range(2):
        for r in range(8):
            e("v_fma_f32 %s, %s, %s, %s" % (v(OM + 8 * kq + r), v(OX + 8 * kq + r), v(FX + kq), v(OM + 8 * kq + r)))
        for r in range(0, 8, 2):
            e("v_pk_mul_f32 %s, %s, %s op_sel_hi:[1,0]" % (v(OM + 8 * kq + r, 2), v(OM + 8 * kq + r, 2), v(LM + 4 * kq, 2)))
        for r in range(4):
            e(cvt(OP + 4 * kq + r, OM + 8 * kq + r, OM + 8 * kq + 4 + r))
        e("ds_write_b128 %s, %s offset:%d" % (v(W_EX), v(OP + 4 * kq, 4), EX_O + kq * 4096))
    OO = R0
    WB = R0 + 32
    WA = R0 + 48
    seq = [(kq, ks, T) for kq in range(2) for ks in range(4) for T in range(8)]
    rdw = lambda i: "ds_read_b128 %s, %s offset:%d" % (v(WB + 4 * (i % 4), 4), v(W_WO), (seq[i][1] * 8 + seq[i][2]) * 1024)
    e("s_waitcnt lgkmcnt(0)")
    e("s_barrier")
    pst(e, 1)
    for kq in range(2):
        for ks in range(4):
            e("ds_read_b128 %s, %s offset:%d" % (v(OO + 16 * kq + 4 * ks, 4), v(W_L16), EX_O + kq * 4096 + ks * 1024))
    for i in range(3):
        e(rdw(i))
    e("s_lshl_b32 %s, %s, 10" % (s(S_T0), s(S_H)))
    e("s_add_u32 %s, %s, %s" % (s(S_B), s(S_TPB), s(S_T0)))

    def outs(kq):
        o = []
        for r in range(4):
            d = OO + 16 * kq + 4 * r
            o += [cvt(d + q, WA + 32 * kq + 8 * q + r, WA + 32 * kq + 8 * q + 4 + r) for q in range(4)]
            o += ["v_and_or_b32 %s, %s, -2, %s" % (v(d), v(d), s(S_PAR)),
                  "s_add_u32 %s, %s, 0x%x" % (s(S_T0), s(S_B), (16 * kq + r) * 32768),
                  "buffer_store_dwordx4 %s, %s, %s, %s offen sc1" % (v(d, 4), v(W_TPW), ws, s(S_T0))]
        return o
    o0 = outs(0)
    for i, (kq, ks, T) in enumerate(seq):
        e("s_waitcnt lgkmcnt(%d)" % min(2, 63 - i))
        e(mf32(WA + 32 * kq + 4 * T, v(OO + 16 * kq + 4 * ks, 4), v(WB + 4 * (i % 4), 4), ks == 0))
        if i + 3 < 64:
            e(rdw(i + 3))
        if i >= 35 and o0:
            e(o0.pop(0))
    assert not o0
    pst(e, 2)
    for x in outs(1):
        e(x)
    e("s_add_u32 %s, %s, %d" % (s(S_T2), s(S_SEG), NREP))
    e("s_cmp_ge_u32 %s, 64" % s(S_T2))
    e("s_cbranch_scc1 L_P2_last")
    qkv_issue(e, S_T2)
    e.label("L_P2_last")
    SEL, XV, WRV = R0 + 32, R0 + 36, R0 + 37
    e("s_lshl_b32 %s, %s, 5" % (s(S_A), s(S_SEG)))
    e("s_add_u32 %s, %s, %s" % (s(S_A), s(S_A), s(S_H)))
    e("s_lshl_b32 %s, %s, 10" % (s(S_A), s(S_A)))
    e("v_accvgpr_read_b32 %s, a72" % v(XV))
    e("v_accvgpr_read_b32 %s, a73" % v(WRV))
    e("v_and_b32 %s, 15, v0" % v(T1))
    for q in range(4):
        e("v_mov_b32 %s, 0" % v(SEL + q))
        e("v_mov_b32 %s, 0x3f80" % v(T0))
        e("v_cmp_eq_u32 vcc, %d, %s" % (4 * q, v(T1)))
        e("v_cndmask_b32 %s, %s, %s, vcc" % (v(SEL + q), v(SEL + q), v(T0)))
        e("v_mov_b32 %s, 0x3f800000" % v(T0))
        e("v_cmp_eq_u32 vcc, %d, %s" % (4 * q + 1, v(T1)))
        e("v_cndmask_b32 %s, %s, %s, vcc" % (v(SEL + q), v(SEL + q), v(T0)))
    e("s_lshl_b32 %s, %s, 15" % (s(S_B), s(S_H)))
    e("s_add_u32 %s, %s, %s" % (s(S_B), s(S_B), s(S_TPB)))
    PD = R0 + 64
    pst(e, 3)
    e.label("L_P3_poll")
    for u in range(8):
        e("s_add_u32 %s, %s, %d" % (s(S_T0), s(S_B), u * 4096))
        e("buffer_load_dwordx4 %s, %s, %s, %s offen sc1" % (v(PD + 4 * u, 4), v(W_TPR), ws, s(S_T0)))
    e("s_mov_b64 exec, -1")
    e("s_add_u32 %s, %s, 1" % (s(S_TMO), s(S_TMO)))
    e("s_cmp_gt_u32 %s, %d" % (s(S_TMO), TMO_LIMIT))
    RD = R0 + 40
    for u in range(8):
        e("s_waitcnt vmcnt(%d)" % (7 - u))
        e(mf32(RD, v(SEL, 4), v(PD + 4 * u, 4), u == 0))
        if u & 1:
            e("v_bitop3_b32 %s, %s, %s, %s bitop3:0x7e" % (v(R0 + 44 + (u >> 1)), v(PD + 4 * u - 4), v(PD + 4 * u), s(S_PAR)))
    e("v_or3_b32 %s, %s, %s, %s" % (v(T0), v(R0 + 44), v(R0 + 45), v(R0 + 46)))
    e("v_bitop3_b32 %s, %s, %s, 1 bitop3:0xa8" % (v(T0), v(T0), v(R0 + 47)))
    e("s_cbranch_scc1 L_P3_got")
    e("v_cmp_ne_u32 vcc, 0, %s" % v(T0))
    e("s_cbranch_vccz L_P3_got")
    e("s_mov_b64 exec, vcc")
    e("s_branch L_P3_poll")
    e.label("L_P3_got")
    pst(e, 4)
    e("s_nop 4")
    H0, H1, HP, SU, SQ, A_, B_, XP = range(R0 + 44, R0 + 52)
    lo = lambda d, x: e("v_lshlrev_b32 %s, 16, %s" % (v(d), v(x)))
    hi = lambda d, x: e("v_and_b32 %s, 0xffff0000, %s" % (v(d), v(x)))
    e(cvt(HP, RD, RD + 1))
    lo(A_, HP); hi(B_, HP)
    lo(H0, XV); hi(H1, XV)
    e("v_add_f32 %s, %s, %s" % (v(H0), v(H0), v(A_)))
    e("v_add_f32 %s, %s, %s" % (v(H1), v(H1), v(B_)))
    e(cvt(HP, H0, H1))
    lo(H0, HP); hi(H1, HP)
    e("v_add_f32 %s, %s, %s" % (v(SU), v(H0), v(H1)))
    e("v_mul_f32 %s, %s, %s" % (v(SQ), v(H0), v(H0)))
    e("v_fmac_f32 %s, %s, %s" % (v(SQ), v(H1), v(H1)))
    wave_sum(e, [SU, SQ], T0)
    e("v_mov_b32 %s, %s" % (v(T1), s(S_WAVE)))
    e("v_lshlrev_b32 %s, 3, %s" % (v(T1), v(T1)))
    e("v_add_u32 %s, %d, %s" % (v(T1), RED, v(T1)))
    e("ds_write2_b32 %s, %s, %s offset0:0 offset1:1" % (v(T1), v(SU), v(SQ)))
    e("s_add_u32 %s, %s, 0x%x" % (s(S_T0), s(S_A), HROW))
    e("buffer_store_dword %s, %s, %s, %s offen sc1" % (v(HP), v(W_ROW), ws, s(S_T0)))
    e("s_waitcnt lgkmcnt(0)")
    e("s_barrier")
    RR = R0 + 52
    e("v_mov_b32 %s, %d" % (v(T1), RED))
    e("ds_read_b128 %s, %s" % (v(RR, 4), v(T1)))
    e("ds_read_b128 %s, %s offset:16" % (v(RR + 4, 4), v(T1)))
    e("s_waitcnt lgkmcnt(0)")
    for k, d in ((0, SU), (1, SQ)):
        e("v_add_f32 %s, %s, %s" % (v(d), v(RR + k), v(RR + 2 + k)))
        e("v_add_f32 %s, %s, %s" % (v(d), v(d), v(RR + 4 + k)))
        e("v_add_f32 %s, %s, %s" % (v(d), v(d), v(RR + 6 + k)))
        e("v_mul_f32 %s, 0x%x, %s" % (v(d), f32bits(1 / 512), v(d)))
    e("v_fma_f32 %s, -%s, %s, %s" % (v(SQ), v(SU), v(SU), v(SQ)))
    e("v_max_f32 %s, 0, %s" % (v(SQ), v(SQ)))
    e(cvt(T0, SU, SQ))
    lo(SU, T0); hi(SQ, T0)
    e("v_add_f32 %s, 0x%x, %s" % (v(SQ), f32bits(1e-5), v(SQ)))
    e(cvt(T0, SQ, SQ)); lo(SQ, T0)
    e("v_sqrt_f32 %s, %s" % (v(SQ), v(SQ)))
    e(cvt(T0, SQ, SQ)); lo(SQ, T0)
    e("v_rcp_f32 %s, %s" % (v(SQ), v(SQ)))
    e("v_sub_f32 %s, %s, %s" % (v(A_), v(H0), v(SU)))
    e("v_sub_f32 %s, %s, %s" % (v(B_), v(H1), v(SU)))
    e(cvt(T0, A_, B_)); lo(A_, T0); hi(B_, T0)
    e("v_mul_f32 %s, %s, %s" % (v(A_), v(A_), v(SQ)))
    e("v_mul_f32 %s, %s, %s" % (v(B_), v(B_), v(SQ)))
    e(cvt(XP, A_, B_))
    lo(A_, XP); hi(B_, XP)
    W0, W1 = RR, RR + 1
    lo(W0, WRV); hi(W1, WRV)
    e("v_mul_f32 %s, %s, %s" % (v(SU), v(A_), v(W0)))
    e("v_fmac_f32 %s, %s, %s" % (v(SU), v(B_), v(W1)))
    wave_sum(e, [SU], T0)
    e("s_lshr_b32 %s, %s, 6" % (s(S_B), s(S_A)))
    e("s_lshl_b32 %s, %s, 2" % (s(S_T1), s(S_WAVE)))
    e("s_add_u32 %s, %s, %s" % (s(S_B), s(S_B), s(S_T1)))
    e("s_add_u32 %s, %s, 0x%x" % (s(S_T0), s(S_B), RVAL))
    e("v_cmp_ne_u32 vcc, 0, %s" % v(W_L16))
    e("v_mov_b32 %s, 0x%x" % (v(T1), OOB))
    e("v_cndmask_b32 %s, %s, %s, vcc" % (v(T1), v(W_L16), v(T1)))
    e("buffer_store_dword %s, %s, %s, %s offen sc1" % (v(SU), v(T1), ws, s(S_T0)))
    e("v_add_f32 %s, %s, %s" % (v(H0), v(H0), v(A_)))
    e("v_add_f32 %s, %s, %s" % (v(H1), v(H1), v(B_)))
    e(cvt(HP, H0, H1))
    e("buffer_store_dword %s, %s, %s, %s offen sc1" % (v(HP), v(W_ROW), s(S_OUT, 4), s(S_A)))
    e("s_add_u32 %s, %s, 0x%x" % (s(S_T0), s(S_A), XN2))
    e("buffer_store_dword %s, %s, %s, %s offen sc1" % (v(XP), v(W_ROW), ws, s(S_T0)))
    pst(e, 5)
    e("s_add_u32 %s, %s, 0x%x" % (s(S_RD), s(S_B), RDONE))
    e("s_add_u32 %s, %s, 1" % (s(S_J), s(S_J)))
    e("s_barrier")
    e("s_add_u32 %s, %s, %d" % (s(S_SEG), s(S_SEG), NREP))
    e("s_cmp_lt_u32 %s, 64" % s(S_SEG))
    e("s_cbranch_scc1 L_P2")
    e("s_waitcnt vmcnt(0)")
    rdone_store(e)
```

```python
from asmlib import Emitter, v, a, s
import struct

WS_BYTES = 0x10000000
PB_OFF = 0x0000000
SYNC_OFF = 0x0080000
HIST_OFF = 0x0100000
FLAG_OFF = 0x0190000
STAMP_OFF = 0x01A0000
SLAB_OFF = 0x1000000
SLAB_ST = 0x82100
MB_IN = 0x80000
FL_IN = 0x82000
OOB = 0x40000000

L_MEMI = 0
L_PX = 8192
RS = 72
L_QX = 16384
L_KMX = L_QX + 2304
L_OX = L_KMX + 2304
L_SEL = L_OX + 2048
L_WL = 32768
LDS_BYTES = 163840

S_WS = 8
S_W = 12
S_DBG = 16
S_H = 20
S_WAVE = 21
S_STEP = 22
S_SLAB = 23
S_SLABN = 24
S_KXO = 25
S_KX = 29
S_VX = 30
S_HIST = 31
S_TMO = 32
S_SCALE = 33
S_PLO = 34
S_PHI = 35
S_T0 = 36
S_T1 = 37
S_T2 = 38
S_VXO = 39
S_BIG = 40
S_PR = 6
S_MB = 7
S_4K = 26
S_PAR = 27
S_RDY = 62
S_NPAR = 28
S_TAG = 60
S_OOB = 61
S_FW = 88
S_FR = 89
S_NEXT = 90
S_SPIN = 91
S_LIM = 94
S_U0 = 95
S_HM = 92
S_W3 = 95
S_ONES = 4
S_PTR = 44
S_ST = 64

C_PF = 0
C_IDX, C_MW, C_L16, C_WL, C_QW, C_QR, C_KW, C_X2, C_PW, C_MP, FREE1, HPEND, C_FL, T0, JUNK = range(1, 16)
AM = 16
ACCQ = 48
ACCK = 56
ACCV = 64
QB = 72
XA = 88
XB = 104
VX = 120
VW = 128

TMO_LIMIT = 200000
OPT = {}


def f32bits(x):
    return struct.unpack("<I", struct.pack("<f", x))[0]


def lin(e, dst, coefs, const=0, tmp=T0, src=0):
    e("v_mov_b32 %s, 0x%x" % (v(dst), const))
    for k, c in sorted(coefs.items()):
        if c == 0:
            continue
        assert c < (1 << 24)
        e("v_bfe_u32 %s, %s, %d, 1" % (v(tmp), v(src), k))
        e("s_mov_b32 %s, 0x%x" % (s(S_T2), c))
        e("v_mad_u32_u24 %s, %s, %s, %s" % (v(dst), v(tmp), s(S_T2), v(dst)))


def srd(e, d, ptr, nbytes):
    e("s_mov_b32 %s, %s" % (s(d), s(ptr)))
    e("s_and_b32 %s, %s, 0xffff" % (s(d + 1), s(ptr + 1)))
    e("s_mov_b32 %s, 0x%x" % (s(d + 2), nbytes))
    e("s_mov_b32 %s, 0x20000" % s(d + 3))


LDS_OPS = {
    ("Q", 0, 0): XB + 0, ("Q", 1, 0): XB + 8, ("Q", 0, 1): XA + 0, ("Q", 1, 1): XA + 8,
    ("K", 0, 0): QB + 0, ("K", 1, 0): QB + 8,
    ("Q", 0, 7): XA + 0, ("Q", 1, 7): XA + 8,
    ("K", 0, 2): QB + 0, ("K", 1, 2): QB + 8,
    ("K", 0, 7): XA + 0, ("K", 1, 7): XA + 8,
    ("O", 2, 3): XA + 0, ("O", 3, 1): XA + 8, ("O", 3, 2): QB + 0, ("O", 3, 3): QB + 8,
}
OLDS = [("O", 2, 3), ("O", 3, 1), ("O", 3, 2), ("O", 3, 3)]
LDS_SLOT = {k: i for i, k in enumerate(LDS_OPS)}
ALL_OPS = [(m, T, u) for m in "QKV" for u in range(8) for T in range(2)] + [("O", q, u) for u in range(4) for q in range(4)]
RES = {}
_n = 0
for op in ALL_OPS:
    if op in LDS_OPS:
        continue
    RES[op] = ("a", _n * 8) if _n < 32 else ("v", VW + (_n - 32) * 8)
    _n += 1
assert _n == 48


def opreg(op):
    if op in LDS_OPS:
        return v(LDS_OPS[op], 8)
    k, r = RES[op]
    return (a if k == "a" else v)(r, 8)


def lds_fetch_ins(op):
    r = LDS_OPS[op]
    off = LDS_SLOT[op] * 2048
    return ["ds_read_b128 %s, %s offset:%d" % (v(r, 4), v(C_WL), off),
            "ds_read_b128 %s, %s offset:%d" % (v(r + 4, 4), v(C_WL), off + 1024)]


def lds_fetch(e, op):
    for t in lds_fetch_ins(op):
        e(t)


def rowpart(rho, b, hi=32):
    return hi * (rho >> 2) + 8 * (rho & 1) + 2 * ((rho >> 1) & 1) + b


class VmQ:
    def __init__(self, e):
        self.e, self.q = e, []

    def add(self, tag):
        self.q.append(tag)
        assert len(self.q) <= 63

    def wait(self, tag):
        if tag not in self.q:
            return
        last = len(self.q) - 1 - self.q[::-1].index(tag)
        self.e("s_waitcnt vmcnt(%d)" % (len(self.q) - 1 - last))
        self.q = self.q[last + 1:]


def staged_load(e, chunks, ptrs, srds, swz_bits, dma_k, lane_f, row_lane, blk_xor_wave, reads, side=None, pre=None, nslot=3):
    AD, AR = 16, 20
    TT = 28
    e("v_lshrrev_b32 %s, 6, v0" % v(TT))
    e("v_bfe_u32 %s, v0, 4, 2" % v(TT + 1))
    e("v_lshl_add_u32 %s, %s, 5, %s" % (v(TT), v(TT), v(TT + 1)))
    e("v_and_b32 %s, 15, v0" % v(AD))
    e("v_lshlrev_b32 %s, 4, %s" % (v(AD), v(AD)))
    e("v_lshl_add_u32 %s, %s, 13, %s" % (v(AD), v(TT), v(AD)))
    e("v_bfe_u32 %s, v0, 4, %d" % (v(TT + 1), swz_bits))
    e("v_lshlrev_b32 %s, 5, %s" % (v(TT + 1), v(TT + 1)))
    e("v_xor_b32 %s, %s, %s" % (v(AD), v(AD), v(TT + 1)))
    for k in range(1, 4):
        e("v_xor_b32 %s, %d, %s" % (v(AD + k), dma_k(k), v(AD)))
    S_LB, S_GB = 28, 3
    e("s_add_u32 %s, %s, 1" % (s(S_LB), s(S_WAVE)))
    e("s_lshl_b32 %s, %s, 15" % (s(S_LB), s(S_LB)))
    e("s_lshl_b32 %s, %s, 8" % (s(S_GB), s(S_H)))
    q = VmQ(e)
    built = set()

    def dma(c):
        m, ci = chunks[c]
        if m not in built:
            srd(e, srds[m], ptrs[m], 512 * 4096 * 2)
            built.add(m)
        for i in range(8):
            e("s_add_u32 m0, %s, %d" % (s(S_LB), (c % nslot) * 8192 + i * 1024))
            e("s_add_u32 %s, %s, 0x%x" % (s(S_T1), s(S_GB), (128 * ci + 4 * i) * 8192))
            e("buffer_load_dwordx4 %s, %s, %s offen%s lds" % (v(AD + (i & 3)), s(srds[m], 4), s(S_T1), OPT.get("cnt", "") if blk_xor_wave else OPT.get("wnt", "")))
            q.add(("c", c))
    for c in range(nslot):
        dma(c)
    lin(e, AR, {0: 8, 1: 16, **{k: c * 256 for k, c in row_lane.items()}})
    lin(e, TT, lane_f)
    lin(e, TT + 1, {6: 64, 7: 128})
    e("v_xor_b32 %s, %s, %s" % (v(TT), v(TT), v(TT + 1)))
    e("v_add_u32 %s, %s, %s" % (v(TT), v(TT), v(AR)))
    for k in range(4):
        if blk_xor_wave:
            e("s_xor_b32 %s, %s, %d" % (s(S_T0), s(S_WAVE), k))
            e("s_add_u32 %s, %s, 1" % (s(S_T0), s(S_T0)))
            e("s_lshl_b32 %s, %s, 15" % (s(S_T0), s(S_T0)))
            e("v_add_u32 %s, %s, %s" % (v(AR + 2 * k), s(S_T0), v(TT)))
        else:
            e("v_add_u32 %s, 0x%x, %s" % (v(AR + 2 * k), (k + 1) << 15, v(TT)))
        e("v_xor_b32 %s, 32, %s" % (v(AR + 2 * k + 1), v(AR + 2 * k)))
    if pre:
        pre(q)
    for c, (m, ci) in enumerate(chunks):
        if side:
            side(c, q)
        q.wait(("c", c))
        e("s_barrier")
        for n_, (dst, k, T, ro) in enumerate(reads(m, ci)):
            if n_ == 12:
                e("s_waitcnt lgkmcnt(4)")
            e("ds_read_b64_tr_b16 %s, %s offset:%d" % (dst, v(AR + 2 * k + T), (c % nslot) * 8192 + ro * 256))
        e("s_waitcnt lgkmcnt(0)")
        e("s_barrier")
        if c + nslot < len(chunks):
            dma(c + nslot)
    return q


HOLD = {op: 32 + 8 * i for i, op in enumerate(o for o in LDS_OPS if o[0] != "O")}


def load_weights(e, P_WQ, P_WK, P_WV, P_WO, pre=None, mid=None):
    e.comment("---- load weight operands: Wq/Wk/Wv by LDS-DMA + transposing reads, Wo by dword loads + v_perm")
    VOFO = FREE1
    RING, TMP8 = 32, 120
    ptr = {"Q": P_WQ, "K": P_WK, "V": P_WV, "O": P_WO}
    SRDS = {"Q": 96, "K": 88, "V": 60, "O": 92}
    S_OB = 29

    def pre2(q):
        lin(e, VOFO, {0: 4, 1: 8, 2: 16, 3: 32, 4: 2 * 1024, 5: 4 * 1024, 6: 256, 7: 512})
        srd(e, SRDS["O"], ptr["O"], 512 * 4096 * 2)
        e("s_lshl_b32 %s, %s, 17" % (s(S_OB), s(S_H)))
        o_issue(0, q)
        pre(q)

    def reads(m, ci):
        tau, hi = ci >> 1, ci & 1
        out = []
        for k in range(4):
            u = 2 * k + tau
            for T in range(2):
                op = (m, T, u)
                for pr in range(2):
                    if op in HOLD:
                        dst = v(HOLD[op] + 4 * hi + 2 * pr, 2)
                    else:
                        kind, r = RES[op]
                        dst = (a if kind == "a" else v)(r + 4 * hi + 2 * pr, 2)
                    out.append((dst, k, T, 2 * pr))
        return out

    GORD = [7, 5, 3, 6, 4, 2, 1, 0]

    def o_issue(gi, q):
        g = GORD[gi]
        u = g >> 1
        base = (32, 48, 80)[gi % 3]
        e("s_xor_b32 %s, %s, %d" % (s(S_T0), s(S_WAVE), u))
        e("s_lshl_b32 %s, %s, 15" % (s(S_T0), s(S_T0)))
        e("s_add_u32 %s, %s, %s" % (s(S_T0), s(S_T0), s(S_OB)))
        for k in range(2):
            qq = 2 * (g & 1) + k
            for pr in range(4):
                for b in range(2):
                    row = 16 * b + 8 * (pr >> 1) + (pr & 1)
                    e("s_add_u32 %s, %s, 0x%x" % (s(S_T1), s(S_T0), row * 1024 + qq * 64))
                    e("buffer_load_dword %s, %s, %s, %s offen%s" % (v(base + k * 8 + pr * 2 + b), v(VOFO), s(SRDS["O"], 4), s(S_T1), OPT.get("ont", "")))
                    q.add(("o", g))

    def o_consume(gi, q):
        g = GORD[gi]
        q.wait(("o", g))
        base = (32, 48, 80)[gi % 3]
        for k in range(2):
            op = ("O", 2 * (g & 1) + k, g >> 1)
            dst = TMP8 if op in LDS_OPS else RES[op][1]
            assert op in LDS_OPS or RES[op][0] == "v"
            for pr in range(4):
                for hf in range(2):
                    e("v_perm_b32 %s, %s, %s, %s" % (v(dst + 2 * pr + hf), v(base + k * 8 + 2 * pr + 1), v(base + k * 8 + 2 * pr), s(S_PHI if hf else S_PLO)))
            if op in LDS_OPS:
                off = LDS_SLOT[op] * 2048
                assert off >= 24576
                e("ds_write_b128 %s, %s offset:%d" % (v(C_WL), v(TMP8, 4), off))
                e("ds_write_b128 %s, %s offset:%d" % (v(C_WL), v(TMP8 + 4, 4), off + 1024))
                e("s_waitcnt lgkmcnt(0)")

    def side(c, q):
        if 2 <= c < 10 and not OPT.get("noo"):
            o_consume(c - 2, q)
        if 1 <= c < 8 and not OPT.get("noo"):
            o_issue(c, q)
        early_start(e, c, q)

    chunks = [(m, ci) for m in "VKQ" for ci in range(4)]
    staged_load(e, chunks, ptr, SRDS, 1, lambda k: k << 6, {2: 32, 4: 64, 3: 128}, {5: 16, 3: 8, 4: 4, 2: 1}, True, reads, side, pre2, OPT.get("nslot", 3))
    for op, r in HOLD.items():
        off = LDS_SLOT[op] * 2048
        e("ds_write_b128 %s, %s offset:%d" % (v(C_WL), v(r, 4), off))
        e("ds_write_b128 %s, %s offset:%d" % (v(C_WL), v(r + 4, 4), off + 1024))
        if LDS_SLOT[op] % 4 == 3:
            e("s_waitcnt lgkmcnt(0)")
    e("s_waitcnt lgkmcnt(0)")


def setup_consts(e):
    T1, T2 = 104, 105
    AM = 100
    lin(e, C_IDX, {1: 0xEEEE - 0x4444}, 0x4444)
    lin(e, C_L16, {k: 16 << k for k in range(6)})
    lin(e, C_MW, {**{k: 16 << k for k in range(6)}, 6: 2048, 7: 4096})
    lin(e, C_WL, {**{k: 16 << k for k in range(6)}, 6: 32768, 7: 65536}, L_WL)
    lin(e, C_QW, {0: 4, 1: 8, 2: 16, 3: 32, 4: 2 * RS * 4, 5: 4 * RS * 4, 6: 64, 7: 128}, L_QX)
    lin(e, C_QR, {0: RS * 4, 2: 2 * RS * 4, 3: 4 * RS * 4, 4: 16, 5: 32}, L_QX)
    e("v_add_u32 %s, %d, %s" % (v(C_KW), L_KMX - L_QX, v(C_QW)))
    e("v_xor_b32 %s, 0x1000, %s" % (v(C_X2), v(C_MW)))
    lin(e, T1, {3: 1, 4: 2, 5: 4, 6: 8, 7: 16})
    e("v_add_u32 %s, %s, %s" % (v(T1), s(S_H), v(T1)))
    e("v_and_b32 %s, 31, %s" % (v(T1), v(T1)))
    e("v_lshlrev_b32 %s, 6, %s" % (v(T1), v(T1)))
    lin(e, C_PW, {0: 8, 1: 16, 2: 32, 3: 8192, 4: 2 * 8192, 5: 4 * 8192, 6: 8 * 8192, 7: 16 * 8192}, PB_OFF)
    e("v_add_u32 %s, %s, %s" % (v(C_PW), v(C_PW), v(T1)))
    mp_addr(e, C_MP, T1, T2)
    lin(e, C_FL, {0: 16, 1: 8, 2: 32, 3: 64, 4: 128, 5: 256, 6: 2048, 7: 4096})
    e("s_lshl_b32 %s, %s, 13" % (s(S_PR), s(S_H)))
    e("s_add_u32 %s, %s, 0x%x" % (s(S_PR), s(S_PR), PB_OFF))
    e("s_mov_b32 %s, 4096" % s(S_4K))
    e("v_and_b32 %s, 15, v0" % v(T1))
    for q in range(4):
        e("v_mov_b32 %s, 0" % v(AM + q))
        e("v_mov_b32 %s, 0x3f80" % v(T2))
        e("v_cmp_eq_u32 vcc, %d, %s" % (4 * q, v(T1)))
        e("v_cndmask_b32 %s, %s, %s, vcc" % (v(AM + q), v(AM + q), v(T2)))
        e("v_mov_b32 %s, 0x3f800000" % v(T2))
        e("v_cmp_eq_u32 vcc, %d, %s" % (4 * q + 1, v(T1)))
        e("v_cndmask_b32 %s, %s, %s, vcc" % (v(AM + q), v(AM + q), v(T2)))
    e("ds_write_b128 %s, %s offset:%d" % (v(C_L16), v(AM, 4), L_SEL))
    e("s_mov_b32 %s, 0x05040100" % s(S_PLO))
    e("s_mov_b32 %s, 0x07060302" % s(S_PHI))
    e("s_mov_b32 %s, 0x%x" % (s(S_SCALE), f32bits(128 ** -0.5 * 1.4426950408889634)))
    e("s_mov_b32 %s, 0x%x" % (s(S_BIG), f32bits(OPT.get('big', 2.0 ** 30))))
    e("s_mov_b32 %s, 0" % s(S_TMO))
    e("s_mov_b32 %s, 0x3f803f80" % s(S_ONES))
    e("s_mov_b32 %s, 0x3f803f80" % s(S_ONES + 1))
    e("s_lshl_b32 %s, %s, 14" % (s(S_T0), s(S_H)))
    e("s_lshr_b32 %s, %s, 1" % (s(S_T1), s(S_WAVE)))
    e("s_lshl_b32 %s, %s, 12" % (s(S_T1), s(S_T1)))
    e("s_add_u32 %s, %s, %s" % (s(S_KXO), s(S_T0), s(S_T1)))
    e("s_lshl_b32 %s, %s, 11" % (s(S_T1), s(S_WAVE)))
    e("s_add_u32 %s, %s, %s" % (s(S_VXO), s(S_T0), s(S_T1)))
    e("s_add_u32 %s, %s, 8192" % (s(S_VXO), s(S_VXO)))


def setup_pf(e):
    T1, T2 = 104, 105
    lin(e, T1, {0: 128, 1: 256, 2: 512, 3: 1024, 4: 2048, 6: 4096, 7: 8192})
    e("s_lshl_b32 %s, %s, 14" % (s(S_T0), s(S_H)))
    e("v_add_u32 %s, %s, %s" % (v(T1), s(S_T0), v(T1)))
    e("s_lshl_b32 %s, %s, 8" % (s(S_T0), s(S_H)))
    e("s_lshr_b32 %s, %s, 1" % (s(S_T1), s(S_WAVE)))
    e("s_lshl_b32 %s, %s, 7" % (s(S_T1), s(S_T1)))
    e("s_add_u32 %s, %s, %s" % (s(S_T0), s(S_T0), s(S_T1)))
    e("s_add_u32 %s, %s, 0x%x" % (s(S_T0), s(S_T0), SLAB_ST + MB_IN))
    e("v_and_b32 %s, 63, v0" % v(T0))
    e("v_mov_b32 %s, 0x%x" % (v(T2), OOB))
    e("v_cmp_lt_u32 vcc, 32, %s" % v(T0))
    e("v_cndmask_b32 %s, %s, %s, vcc" % (v(T1), v(T1), v(T2)))
    e("v_mov_b32 %s, %s" % (v(T2), s(S_T0)))
    e("v_cmp_eq_u32 vcc, 32, %s" % v(T0))
    e("v_cndmask_b32 %s, %s, %s, vcc" % (v(T1), v(T1), v(T2)))
    e("s_lshl_b32 %s, %s, 2" % (s(S_T0), s(S_H)))
    e("s_add_u32 %s, %s, 0x%x" % (s(S_T0), s(S_T0), SLAB_ST + FL_IN))
    e("v_mov_b32 %s, %s" % (v(T2), s(S_T0)))
    e("v_cmp_eq_u32 vcc, 33, %s" % v(T0))
    e("v_cndmask_b32 %s, %s, %s, vcc" % (v(C_PF), v(T1), v(T2)))


def mp_addr(e, dst, T1, T2):
    lin(e, dst, {0: 8, 1: 32, 4: 16, 5: 4, 6: 2048, 7: 4096}, MB_IN)
    e("v_mov_b32 %s, %s" % (v(T2), s(S_H)))
    lin(e, T1, {0: 256, 1: 64, 2: 128, 3: 512, 4: 1024}, src=T2)
    e("v_add_u32 %s, %s, %s" % (v(dst), v(T1), v(dst)))
    e("v_and_b32 %s, 12, v0" % v(T1))
    e("v_cmp_ne_u32 vcc, 0, %s" % v(T1))
    e("v_mov_b32 %s, 0x%x" % (v(T1), OOB))
    e("v_cndmask_b32 %s, %s, %s, vcc" % (v(dst), v(dst), v(T1)))


def mem0_load(e, P_MEM0, dst, T1, T2, TH, SR):
    srd(e, SR, P_MEM0, 8192)
    lin(e, T1, {0: 8, 1: 16, 2: 0x10000, 3: 0x10000, 4: 1024, 5: 4, 6: 64, 7: 128})
    e("v_mov_b32 %s, %s" % (v(TH), s(S_H)))
    lin(e, T2, {0: 32, 1: 2048, 2: 4096, 3: 256, 4: 512}, src=TH)
    e("v_add_u32 %s, %s, %s" % (v(T1), v(T1), v(T2)))
    e("buffer_load_dword %s, %s, %s, 0 offen" % (v(dst), v(T1), s(SR, 4)))


def init_fill(e, P_MEM0, MW, B, SR):
    M1, T1, T2, TH, MP, HP = B, B + 4, B + 5, B + 6, B + 7, B + 8
    ws = s(S_WS, 4)
    mem0_load(e, P_MEM0, HP, T1, T2, TH, SR)
    for k in range(4):
        e("v_mov_b32 %s, -1" % v(M1 + k))

    def fill8k(so):
        e("buffer_store_dwordx4 %s, %s, %s, %s offen sc1" % (v(M1, 4), v(MW), ws, s(so)))
        e("buffer_store_dwordx4 %s, %s, %s, %s offen offset:1024 sc1" % (v(M1, 4), v(MW), ws, s(so)))
    e("s_lshl_b32 %s, %s, 13" % (s(S_T0), s(S_H)))
    e("s_add_u32 %s, %s, 0x%x" % (s(S_T0), s(S_T0), PB_OFF))
    fill8k(S_T0)
    e("s_lshl_b32 %s, %s, 14" % (s(S_T0), s(S_H)))
    e("s_add_u32 %s, %s, 0x%x" % (s(S_T0), s(S_T0), HIST_OFF))
    e("s_add_u32 %s, %s, 0x2000" % (s(S_T1), s(S_T0)))
    fill8k(S_T0); fill8k(S_T1)
    e("s_mul_i32 %s, %s, 0x%x" % (s(S_T0), s(S_H), 2 * SLAB_ST))
    e("s_add_u32 %s, %s, 0x%x" % (s(S_T0), s(S_T0), SLAB_OFF + SLAB_ST + MB_IN + (0x4000000 if OPT.get("solo") else 0)))
    e("s_add_u32 %s, %s, 0x%x" % (s(S_T1), s(S_T0), SLAB_ST))
    fill8k(S_T0); fill8k(S_T1)
    e("v_lshlrev_b32 %s, 2, v0" % v(T1))
    e("s_lshl_b32 %s, %s, 10" % (s(S_T0), s(S_H)))
    for base in (FLAG_OFF + 0x4000, 0x1B0000, 0x1B8000):
        e("s_add_u32 %s, %s, 0x%x" % (s(S_T1), s(S_T0), base))
        e("buffer_store_dword %s, %s, %s, %s offen sc1" % (v(M1), v(T1), ws, s(S_T1)))
    e("v_mov_b32 %s, 0x%x" % (v(T2), OOB))
    e("v_cmp_lt_u32 vcc, 63, v0")
    e("v_cndmask_b32 %s, %s, %s, vcc" % (v(T1), v(T1), v(T2)))
    e("v_mov_b32 %s, %d" % (v(M1 + 9), 0 if OPT.get("kvflags", 1) else 1))
    e("s_lshl_b32 %s, %s, 8" % (s(S_T0), s(S_H)))
    e("s_add_u32 %s, %s, 0x%x" % (s(S_T1), s(S_T0), FLAG_OFF + 0x2000))
    e("buffer_store_dword %s, %s, %s, %s offen sc1" % (v(M1 + 9), v(T1), ws, s(S_T1)))
    e("s_mul_i32 %s, %s, 0x%x" % (s(S_T0), s(S_H), 2 * SLAB_ST))
    e("s_add_u32 %s, %s, 0x%x" % (s(S_T0), s(S_T0), SLAB_OFF + FL_IN))
    e("s_add_u32 %s, %s, 0x%x" % (s(S_T1), s(S_T0), SLAB_ST))
    e("buffer_store_dword %s, %s, %s, %s offen sc1" % (v(M1 + 9), v(T1), ws, s(S_T0)))
    e("buffer_store_dword %s, %s, %s, %s offen sc1" % (v(M1 + 9), v(T1), ws, s(S_T1)))
    mp_addr(e, MP, T1, T2)
    e("s_waitcnt vmcnt(16)")
    e("s_mov_b32 %s, 0x%x" % (s(S_T0), SLAB_OFF))
    e("buffer_store_dword %s, %s, %s, %s offen sc1" % (v(HP), v(MP), ws, s(S_T0)))


def ready_publish(e, T1, T2):
    e("s_waitcnt vmcnt(0)")
    e("s_barrier")
    e("v_mov_b32 %s, 1" % v(T1))
    e("s_lshl_b32 %s, %s, 2" % (s(S_T1), s(S_H)))
    e("v_lshlrev_b32 %s, 20, v0" % v(T2))
    e("buffer_store_dword %s, %s, %s, %s offen sc1" % (v(T1), v(T2), s(S_DBG, 4), s(S_T1)))


def xcc_publish(e, q):
    T1, T2 = 30, 31
    e("s_getreg_b32 %s, hwreg(HW_REG_XCC_ID)" % s(S_T0))
    e("s_and_b32 %s, %s, 15" % (s(S_T0), s(S_T0)))
    e("s_or_b32 %s, %s, 0x100" % (s(S_T0), s(S_T0)))
    e("v_mov_b32 %s, %s" % (v(T1), s(S_T0)))
    e("s_lshl_b32 %s, %s, 2" % (s(S_T1), s(S_H)))
    e("v_lshlrev_b32 %s, 20, v0" % v(T2))
    e("buffer_store_dword %s, %s, %s, %s offen offset:128 sc1" % (v(T1), v(T2), s(S_DBG, 4), s(S_T1)))
    q.add("hs")


S_MODE = 41


def early_start(e, c, q):
    T1, T2 = 30, 31
    ws = s(S_WS, 4)
    hsl = "buffer_load_dword %s, %s, %s, 0 offen sc1" % (v(T1), v(T2), s(S_DBG, 4))
    pfi = lambda: e("buffer_load_dword %s, %s, %s, %s offen sc1" % (v(JUNK), v(C_PF), ws, s(S_MB)))
    if c == 8:
        e("v_lshrrev_b32 %s, 2, %s" % (v(T2), v(C_L16)))
        e(hsl)
        q.add("hs2")
    if c == 9:
        e.comment("---- buffers initialised (debug[0..31]) and all 32 chain workgroups reported their XCC id (debug[32..63]);")
        q.wait("hs2")
        e("s_mov_b32 %s, 1" % s(S_MODE))
        e.label("L_HS")
        e("v_cmp_eq_u32 vcc, 0, %s" % v(T1))
        e("s_cbranch_vccz L_HS_ok")
        e(hsl)
        e("s_add_u32 %s, %s, 1" % (s(S_TMO), s(S_TMO)))
        e("s_cmp_gt_u32 %s, %d" % (s(S_TMO), TMO_LIMIT))
        e("s_waitcnt vmcnt(0)")
        e("s_cbranch_scc0 L_HS")
        e("s_branch L_HS_done")
        e.label("L_HS_ok")
        e("v_readlane_b32 %s, %s, 63" % (s(S_T0), v(T1)))
        e("v_cmp_ne_u32 vcc, %s, %s" % (s(S_T0), v(T1)))
        e("s_nop 1")
        e("s_cmp_lg_u32 vcc_hi, 0")
        e("s_cselect_b32 %s, 1, %d" % (s(S_MODE), OPT.get("forceslow", 0)))
        e.label("L_HS_done")
        e("s_mov_b32 %s, 0x%x" % (s(S_MB), SLAB_OFF - SLAB_ST))
        pfi()
        q.add("pf0")
    if c == 11:
        q.wait("pf0")
        e.label("L_F0")
        e("v_readlane_b32 %s, %s, 33" % (s(S_T0), v(JUNK)))
        e("s_nop 1")
        e("s_cmp_lg_u32 %s, 0" % s(S_T0))
        e("s_cbranch_scc1 L_F0_ok")
        pfi()
        e("s_add_u32 %s, %s, 1" % (s(S_TMO), s(S_TMO)))
        e("s_cmp_gt_u32 %s, %d" % (s(S_TMO), TMO_LIMIT))
        e("s_waitcnt vmcnt(0)")
        e("s_cbranch_scc0 L_F0")
        e.label("L_F0_ok")
        e("s_mov_b32 %s, 0x%x" % (s(S_MB), SLAB_OFF))
        pfi()
        q.add("pf1")


def smf_ins(acc, aop, op):
    return "v_smfmac_f32_16x16x64_bf16 %s, %s, %s, %s" % (v(acc, 4), v(aop, 4), opreg(op), v(C_IDX))


def stamp(e, i, on):
    if on:
        e("s_memtime %s" % s(S_ST + 2 * i, 2))


am = lambda u: AM + 4 * u


def idle_prep_ins():
    out = []
    for op in (("Q", 0, 0), ("Q", 1, 0), ("Q", 0, 1), ("Q", 1, 1), ("K", 0, 0), ("K", 1, 0)):
        out += lds_fetch_ins(op)
    z = ["v_mov_b64 %s, 0" % v(r, 2) for r in range(ACCQ, ACCQ + 24, 2)]
    return out, z


def delay(e, cyc):
    n = cyc // 4
    while n > 0:
        k = min(n, 16)
        e("s_nop %d" % (k - 1))
        n -= k


def main_loop(e, tag, sc, nsteps, stamps=False):
    L = lambda n: "L_%s_%s" % (tag, n)
    ws = s(S_WS, 4)
    solo = OPT.get("solo")
    trace = OPT.get("trace")
    acc = {"Q": ACCQ, "K": ACCK, "V": ACCV}
    S = lambda m, T, u: smf_ins(acc[m] + 4 * T, am(u), (m, T, u))
    Q = lambda T, u: S("Q", T, u)
    K = lambda T, u: S("K", T, u)
    V = lambda T, u: S("V", T, u)
    lg = lambda n: "s_waitcnt lgkmcnt(%d)" % n
    BAR = "s_barrier"
    add = lambda b, r: "v_add_f32 %s, %s, %s" % (v(b + r), v(b + r), v(b + r + 2))
    cvt = lambda d, x, y: "v_cvt_pk_bf16_f32 %s, %s, %s" % (v(d), v(x), v(y))
    ex = lambda r: "v_exp_f32 %s, %s" % (v(r), v(r))
    mf32 = lambda d, A, B, first: "v_mfma_f32_16x16x32_bf16 %s, %s, %s, %s" % (v(d, 4), v(A, 4), v(B, 4), "0" if first else v(d, 4))
    mf16 = lambda d, A, B: "v_mfma_f32_16x16x16_bf16 %s, %s, %s, %s" % (v(d, 4), v(A, 2), v(B, 2), v(d, 4))

    def run(sched, extra=None):
        for i_, (m_, rest) in enumerate(sched):
            e(m_)
            for x in (extra or {}).get(i_, []) + rest:
                if x.endswith(":"):
                    e.label(x[:-1])
                else:
                    e(x)
    e.label(L("start"))
    e("s_mov_b32 %s, 0" % s(S_STEP))
    e("s_mov_b32 %s, 0x%x" % (s(S_SLAB), SLAB_OFF))
    e("s_mov_b32 %s, 0" % s(S_PAR))
    e("s_mov_b32 %s, 0x%x" % (s(S_HIST), HIST_OFF - MB_IN))
    e("s_mov_b32 %s, 0x%x" % (s(S_OOB), OOB))
    for u in (1, 2, 3):
        e("s_mov_b32 %s, 0x%x" % (s(S_U0 + u), u * 2048))
    e("s_mov_b32 %s, 0xcccccccc" % s(S_HM))
    e("s_mov_b32 %s, 0xcccccccc" % s(S_HM + 1))
    e("s_mov_b32 %s, 0" % s(S_SPIN))
    f, z = idle_prep_ins()
    for t in f + z:
        e(t)
    mldp = lambda P: ["buffer_load_dwordx4 %s, %s, %s, %s offen sc1" % (v(P, 4), v(C_MW), ws, s(S_MB)),
                      "buffer_load_dwordx4 %s, %s, %s, %s offen offset:1024 sc1" % (v(P + 4, 4), v(C_MW), ws, s(S_MB))]
    mld = mldp(AM)
    e("s_add_u32 %s, %s, 0x%x" % (s(S_MB), s(S_SLAB), MB_IN))
    for t in mld:
        e(t)
    e("s_waitcnt vmcnt(2)")
    e.label(L("step"))
    e("v_readlane_b32 %s, %s, 33" % (s(S_T0), v(JUNK)))
    e("s_add_u32 %s, %s, 0x%x" % (s(S_SLABN), s(S_SLAB), SLAB_ST))
    e("s_cmp_eq_u32 %s, 0" % s(S_T0))
    e("s_cbranch_scc1 %s" % L("refresh"))
    e.label(L("fresh"))
    e("s_add_u32 %s, %s, %s" % (s(S_KX), s(S_SLAB), s(S_KXO)))
    e("s_add_u32 %s, %s, %s" % (s(S_VX), s(S_SLAB), s(S_VXO)))
    e("s_xor_b32 %s, %s, 1" % (s(S_NPAR), s(S_PAR)))
    e("s_add_u32 %s, %s, 1" % (s(S_NEXT), s(S_STEP)))
    tr = 2
    if OPT.get("m3"):
        tr = 4
        delay(e, OPT.get("pm0", 0))
        for x in mld:
            e(x)
    ns = OPT.get("ns", 0)
    if ns:
        e("s_cmp_lt_u32 %s, %d" % (s(S_WAVE), ns))
        e("s_cbranch_scc1 %s" % L("onem"))
    delay(e, OPT.get("pm", 64) - (24 if ns else 0))
    e.label(L("retrym"))
    for x in mld:
        e(x)
    e.label(L("prem"))
    e("s_add_u32 %s, %s, 1" % (s(S_TMO), s(S_TMO)))
    e("s_cmp_gt_u32 %s, %d" % (s(S_TMO), TMO_LIMIT))
    e("s_cselect_b32 %s, -1, -2" % s(S_LIM))
    e("v_xor_b32 %s, 0x800, %s" % (v(am(3)), v(C_MW)))
    e("v_xor_b32 %s, 0x1800, %s" % (v(am(7)), v(C_MW)))
    for x in z[:4]:
        e(x)
    e.label(L("waitm"))
    e("s_waitcnt vmcnt(%d) lgkmcnt(0)" % (1 + tr))
    e.label(L("gotm"))
    stamp(e, 0, stamps)
    T1 = am(2)
    mw = ["ds_write_b128 %s, %s offset:%d" % (v(C_MW), v(am(k), 4), L_MEMI + 1024 * k) for k in range(2)]
    PK = ACCK
    pst = lambda q: "buffer_store_dwordx2 %s, %s, %s, %s offen offset:%d%s" % (v(PK + 2 * q, 2), v(C_PW), ws, "0" if q < 2 else s(S_4K), (q & 1) * 2048, sc)
    tg = lambda q: "v_and_or_b32 %s, %s, -2, %s" % (v(PK + 2 * q), v(PK + 2 * q), s(S_TAG))
    kx = lambda ks: "buffer_load_dwordx4 %s, %s, %s, %s offen offset:%d sc1" % (v(XB + 4 * ks, 4), v(C_L16), ws, s(S_KX), ks * 1024)
    vx = lambda T: "buffer_load_dwordx4 %s, %s, %s, %s offen offset:%d sc1" % (v(VX + 4 * T, 4), v(C_L16), ws, s(S_VX), T * 1024)
    amrd = lambda u: "ds_read_b128 %s, %s offset:%d" % (v(am(u), 4), v(C_X2 if u >> 1 == 2 else am(u | 1)), L_MEMI + (u & 1) * 1024)
    q7 = lds_fetch_ins(("Q", 0, 7)) + lds_fetch_ins(("Q", 1, 7))
    k2 = lds_fetch_ins(("K", 0, 2)) + lds_fetch_ins(("K", 1, 2))
    k7 = lds_fetch_ins(("K", 0, 7)) + lds_fetch_ins(("K", 1, 7))
    of = sum([lds_fetch_ins(op) for op in OLDS], [])
    qbrd = lambda ks: "ds_read_b128 %s, %s offset:%d" % (v(QB + 4 * ks, 4), v(C_QR), 64 * ks)
    KM = XA
    kmrd = lambda ks: "ds_read_b128 %s, %s offset:%d" % (v(KM + 4 * ks, 4), v(C_QR), L_KMX - L_QX + 64 * ks)
    SX, SM = ACCQ, ACCQ + 4
    ONES, PX, PM, VM0, VM1 = XB, XB + 4, XB + 8, XB + 10, XB + 12
    TA = XB + 14
    LS, OA, OP = SX, ACCK, SM
    smx = lambda ks: mf32(SX, XB + 4 * ks, QB + 4 * ks, ks == 0)
    smm = lambda ks: mf32(SM, KM + 4 * ks, QB + 4 * ks, ks == 0)
    pf = "buffer_load_dword %s, %s, %s, %s offen sc1" % (v(JUNK), v(C_PF), ws, s(S_SLABN))
    hist = "buffer_store_dword %s, %s, %s, %s offen sc1" % (v(HPEND), v(C_MP), ws, s(S_HIST))
    zw = ["v_mov_b64 %s, 0" % v(r, 2) for r in range(AM, AM + 16, 2)]
    OOP = AM + 12
    o64 = OPT.get("o64", 1)
    if o64:
        oad = ["v_bitop3_b32 %s, %s, %s, -9 bitop3:0x28" % (v(OOP + 4 * u), v(C_FL), s(S_U0 + u)) for u in (1, 2, 3)]
    else:
        oad = ["v_xor_b32 %s, 0x%x, %s" % (v(OOP + 4 * u), u * 2048, v(C_MW)) for u in (1, 3)]
    L_OE = L_PX + 1024
    mx3 = lambda d, x, y, z_: "v_max3_u32 %s, %s, %s, %s" % (v(d), v(x), v(y), v(z_))
    mov0 = lambda r: "v_mov_b32 %s, 0" % v(r)
    early = OPT.get("early", 1)
    e(mx3(T0, AM, AM + 1, AM + 2))
    e("v_max_u32 %s, %s, %s" % (v(T0), v(T0), v(AM + 3)))
    run([
        (Q(0, 0), ["s_waitcnt vmcnt(%d)" % tr, mx3(T0, T0, AM + 4, AM + 5)]),
        (Q(1, 0), [mx3(T0, T0, AM + 6, AM + 7), "v_cmp_lt_u32 vcc, %s, %s" % (s(S_LIM), v(T0))]),
        (Q(0, 1), [mw[0]] + ([] if solo else ["s_cbranch_vccnz %s" % L("retrym")])),
        (Q(1, 1), [mw[1]]),
        (K(0, 0), [kx(0), vx(0)] if early else [kx(0)]),
        (K(1, 0), [kx(1), vx(1)] if early else [kx(1)]),
        (K(0, 1), [kx(2), kx(3)] if early else [kx(2)]),
        (K(1, 1), [lg(0), BAR, amrd(2)]),
        (V(0, 0), [amrd(3)]),
        (V(1, 0), [pf] if early else [kx(3)]),
        (V(0, 1), [amrd(4)]),
        (V(1, 1), [amrd(5), lg(3)]),
        (Q(0, 2), [amrd(6)]),
        (Q(1, 2), [amrd(7), lg(4)]),
        (Q(0, 3), [q7[0]]),
        (Q(1, 3), [q7[1], lg(4)]),
        (Q(0, 4), [q7[2]]),
        (Q(1, 4), [q7[3], lg(4)]),
        (Q(0, 5), [] if early else [vx(0)]),
        (Q(1, 5), [k2[0]]),
        (Q(0, 6), [] if early else [vx(1)]),
        (Q(1, 6), [k2[1], lg(2)]),
        (Q(0, 7), [k2[2]]),
        (Q(1, 7), [k2[3]]),
        (K(0, 3), [k7[0]]),
        (K(1, 3), [k7[1]]),
        (K(0, 4), [k7[2], add(ACCQ, 0), add(ACCQ, 1)]),
        (K(1, 4), [k7[3], add(ACCQ + 4, 0), add(ACCQ + 4, 1)]),
        (K(0, 5), [lg(4), cvt(ACCQ + 2, ACCQ, ACCQ + 4), cvt(ACCQ + 3, ACCQ + 1, ACCQ + 5)]),
        (K(0, 2), ["ds_write2_b32 %s, %s, %s offset0:0 offset1:%d" % (v(C_QW), v(ACCQ + 2), v(ACCQ + 3), RS)]),
        (K(1, 2), [] if early else [pf]),
        (K(1, 5), []),
        (K(0, 6), [hist]),
        (K(1, 6), [lg(0), BAR]),
        (K(0, 7), [qbrd(0)]),
        (K(1, 7), [qbrd(1)]),
        (V(0, 2), [qbrd(2)]),
        (V(1, 2), [qbrd(3), "s_waitcnt vmcnt(2) lgkmcnt(3)"]),
        (smx(0), [lg(2), add(ACCK, 0), add(ACCK, 1)]),
        (smx(1), [lg(1), add(ACCK + 4, 0), add(ACCK + 4, 1)]),
        (smx(2), [lg(0), cvt(ACCK + 2, ACCK, ACCK + 4), cvt(ACCK + 3, ACCK + 1, ACCK + 5)]),
        (smx(3), ["ds_write2_b32 %s, %s, %s offset0:0 offset1:%d" % (v(C_KW), v(ACCK + 2), v(ACCK + 3), RS)]),
        (V(0, 3), ["v_mov_b64 %s, %s" % (v(ONES, 2), s(S_ONES, 2))]),
        (V(1, 3), ["s_nop 1", "v_mov_b64 %s, %s" % (v(ONES + 2, 2), s(S_ONES, 2))]),
        (V(0, 4), [ex(SX)]),
        (V(1, 4), [lg(0), BAR, ex(SX + 1)]),
        (V(0, 5), [kmrd(0), ex(SX + 2)]),
        (V(1, 5), [kmrd(1), ex(SX + 3)]),
        (V(0, 6), [kmrd(2), cvt(PX, SX, SX + 1), cvt(PX + 1, SX + 2, SX + 3)]),
        (V(1, 6), [kmrd(3), "ds_write_b64 %s, %s offset:%d" % (v(C_MW), v(PX, 2), L_PX), lg(4)]),
        (smm(0), [lg(3), mov0(PM + 1), mov0(VM0 + 1)]),
        (smm(1), [lg(2), mov0(VM1 + 1), zw.pop(0)]),
        (smm(2), [lg(1), zw.pop(0), zw.pop(0)]),
        (smm(3), [lg(0), BAR]),
        (V(0, 7), ["ds_read_b64 %s, %s offset:%d" % (v(PX + 2, 2), v(C_X2), L_PX), zw.pop(0)]),
        (V(1, 7), [zw.pop(0), zw.pop(0), "v_mul_f32 %s, %s, %s" % (v(SM), s(S_SCALE), v(SM)), "v_mul_f32 %s, %s, %s" % (v(SM + 1), s(S_SCALE), v(SM + 1)),
                   ex(SM), lg(0)]),
        (mf32(LS, ONES, PX, True), [ex(SM + 1), add(ACCV, 0)]),
        (mf32(OA, VX, PX, True), [cvt(PM, SM, SM + 1), add(ACCV, 1)]),
        (mf32(OA + 4, VX + 4, PX, True), [cvt(VM0, ACCV, ACCV + 1), add(ACCV + 4, 0)]),
        (mf16(LS, ONES, PM), [add(ACCV + 4, 1), cvt(VM1, ACCV + 4, ACCV + 5)]),
        (mf16(OA, VM0, PM), [zw.pop(0), zw.pop(0)]),
        (mf16(OA + 4, VM1, PM), [oad[0], oad[1], "v_rcp_f32 %s, %s" % (v(TA), v(LS))] + oad[2:]),
    ])
    assert not zw
    e("v_max_f32 %s, %s, %s" % (v(T0), v(TA), v(LS)))
    e("v_cmp_nge_f32 vcc, %s, %s" % (s(S_BIG), v(T0)))
    for r in (0, 2, 4, 6):
        e("v_pk_mul_f32 %s, %s, %s op_sel_hi:[1,0]" % (v(OA + r, 2), v(OA + r, 2), v(TA, 2)))
    for r in (0, 2, 1, 3):
        e(cvt(OP + r, OA + r, OA + 4 + r))
    if OPT.get("pflat"):
        e("s_memtime s[74:75]")
        e("s_waitcnt vmcnt(1)")
        e("s_memtime s[72:73]")
        e("s_waitcnt lgkmcnt(0)")
    e.label(L("rejoin"))
    if o64:
        for k in range(2):
            e("v_cndmask_b32 %s, %s, %s, %s" % (v(LS + 2 + k), v(OP + k), v(OP + 2 + k), s(S_HM, 2)))
        e("ds_write_b64 %s, %s offset:%d" % (v(C_FL), v(LS + 2, 2), L_OE))
    else:
        e("ds_write_b128 %s, %s offset:%d" % (v(C_MW), v(OP, 4), L_OE))
    WACC = AM
    SO = lambda q, u: smf_ins(WACC + 4 * q, OP if u == 0 else OOP + 4 * u, ("O", q, u))
    ord_ = lambda u: "ds_read_b128 %s, %s offset:%d" % (v(OOP + 4 * u, 4), v(C_X2 if u == 2 and not o64 else OOP + 4 * u), L_OE)
    SEL, RD = ACCV, ACCV + 4
    wc = lambda q, r: cvt(PK + 2 * q + r, WACC + 4 * q + r, WACC + 4 * q + 2 + r)
    run([
        (SO(0, 0), []),
        (SO(1, 0), [lg(0), BAR, ord_(1), ord_(2)] if OPT.get("b4", 1) else []),
        (SO(2, 0), [ord_(3)] if OPT.get("b4", 1) else [lg(0), BAR, ord_(1), ord_(2)]),
        (SO(3, 0), ([] if OPT.get("b4", 1) else [ord_(3)]) + [of[0], of[1], lg(4)]),
        (SO(0, 1), [of[2], lg(4)]),
        (SO(0, 2), [of[3], lg(4)]),
        (SO(0, 3), [of[4], "s_cmp_lg_u64 vcc, 0"]),
        (SO(1, 1), [of[5], "s_cselect_b32 %s, %s, %s" % (s(S_TAG), s(S_NPAR), s(S_PAR))]),
        (SO(1, 2), [of[6], wc(0, 0)]),
        (SO(1, 3), [of[7], wc(0, 1), tg(0)]),
        (SO(2, 1), [pst(0)]),
        (SO(2, 2), [lg(4), "s_nop 0", wc(1, 0)]),
        (SO(2, 3), ["ds_read_b128 %s, %s offset:%d" % (v(SEL, 4), v(C_L16), L_SEL), wc(1, 1), tg(1)]),
        (SO(3, 1), [pst(1), lg(1)]),
        (SO(3, 2), ["s_nop 1", wc(2, 0)]),
        (SO(3, 3), ["s_nop 2", wc(2, 1), tg(2), pst(2), wc(3, 0), wc(3, 1), tg(3), pst(3)]),
    ])
    e.label(L("stored"))
    stamp(e, 1, stamps)
    e("s_cmp_lg_u32 %s, %s" % (s(S_TAG), s(S_PAR)))
    e("s_cbranch_scc1 %s" % L("safe"))
    f, z = idle_prep_ins()
    n0 = OPT.get("n0", 12)
    PD = VX
    pld = lambda P: ["buffer_load_dwordx4 %s, %s, %s, %s offen sc1" % (v(P, 4), v(C_MW), ws, s(S_PR)),
                     "buffer_load_dwordx4 %s, %s, %s, %s offen offset:1024 sc1" % (v(P + 4, 4), v(C_MW), ws, s(S_PR))]
    pub = "buffer_store_dword %s, %s, %s, %s offen%s" % (v(HPEND), v(C_MP), ws, s(S_T0), sc)
    for x in f[:n0]:
        e(x)
    delay(e, OPT.get("d1", 0))
    for q in range(1, 4):
        e("s_cmp_lt_u32 %s, %d" % (s(S_WAVE), q))
        e("s_cbranch_scc1 %s" % L("pollp"))
        delay(e, OPT.get("dp", 56))
    e.label(L("pollp"))
    stamp(e, 4, stamps and not OPT.get("pflat"))
    PB_ = AM + 16
    for x in pld(PD):
        e(x)
    for x in f[n0:] + z[4:8]:
        e(x)
    p1 = OPT.get("p1")
    if ns:
        e("s_cmp_lt_u32 %s, %d" % (s(S_WAVE), ns))
        e("s_cbranch_scc1 %s" % L("onep"))
    if not p1:
        delay(e, OPT.get("pp", 128) - (24 if ns else 0))
        for x in pld(PB_):
            e(x)
    e.label(L("prep"))
    e("s_add_u32 %s, %s, 0x%x" % (s(S_MB), s(S_SLABN), MB_IN))
    chk = lambda P: ["v_bitop3_b32 %s, %s, %s, %s bitop3:0x7e" % (v(T0), v(P), v(P + 2), s(S_PAR)),
                     "v_bitop3_b32 %s, %s, %s, %s bitop3:0x7e" % (v(FREE1), v(P + 4), v(P + 6), s(S_PAR)),
                     "v_bitop3_b32 %s, %s, %s, 1 bitop3:0xa8" % (v(T0), v(T0), v(FREE1)),
                     "v_cmp_ne_u32 vcc, 0, %s" % v(T0)]

    def finish():
        for rot in (8, 4):
            for r in (0, 1):
                e("v_add_f32_dpp %s, %s, %s row_ror:%d row_mask:0xf bank_mask:0xf" % (v(RD + r), v(RD + r), v(RD + r), rot))
        e(cvt(HPEND, RD, RD + 1))
        e(pub)

    def attempt(P, base):
        e("s_waitcnt vmcnt(%d) lgkmcnt(0)" % (base + 1))
        e(mf32(RD, SEL, P, True))
        e(chk(P)[0])
        e("s_waitcnt vmcnt(%d)" % base)
        e(mf32(RD, SEL, P + 4, False))
        for x in chk(P)[1:]:
            e(x)
        e("s_nop 2")
        e("s_cmp_eq_u64 vcc, 0")
        e("s_cselect_b32 %s, %s, %s" % (s(S_T0), s(S_HIST if solo else S_SLABN), s(S_OOB)))
        finish()
    attempt(PD, 0 if p1 else 2)
    if not solo:
        e("s_cbranch_scc1 %s" % L("gotp"))
        if p1:
            for x in pld(PB_):
                e(x)
            e(pub)
            delay(e, 96)
        e.label(L("retryp"))
        for x in pld(PD):
            e(x)
        attempt(PB_, 3)
        e("s_cbranch_scc1 %s" % L("gotp"))
        for x in pld(PB_):
            e(x)
        attempt(PD, 3)
        e("s_cbranch_scc1 %s" % L("gotp"))
        e("s_add_u32 %s, %s, 1" % (s(S_TMO), s(S_TMO)))
        e("s_cmp_le_u32 %s, %d" % (s(S_TMO), TMO_LIMIT))
        e("s_cbranch_scc1 %s" % L("retryp"))
        e("s_mov_b32 %s, %s" % (s(S_T0), s(S_SLABN)))
        e(pub)
    e.label(L("gotp"))
    stamp(e, 2, stamps)
    e("s_add_u32 %s, %s, 0x2000" % (s(S_HIST), s(S_HIST)))
    e("s_cmp_ge_u32 %s, %d" % (s(S_NEXT), nsteps))
    e("s_cbranch_scc1 %s" % L("last"))
    e("s_mov_b32 %s, %s" % (s(S_SLAB), s(S_SLABN)))
    e("s_mov_b32 %s, %s" % (s(S_STEP), s(S_NEXT)))
    e("s_mov_b32 %s, %s" % (s(S_PAR), s(S_NPAR)))
    for x in z[8:]:
        e(x)
    if trace:
        e("s_memrealtime s[100:101]")
        e("s_memtime s[70:71]")
        e("s_lshl_b32 s3, %s, 2" % s(S_H))
        e("s_add_u32 s3, s3, %s" % s(S_WAVE))
        e("s_lshl_b32 s3, s3, 6")
        e("s_add_u32 s3, s3, %s" % s(S_STEP))
        e("s_lshl_b32 s3, s3, 5")
        e("s_add_u32 s3, s3, 0x200000")
        e("s_waitcnt lgkmcnt(0)")
        for k, r in enumerate((64, 66, 68, 100, 70, 72, 74, S_TMO)):
            e("v_mov_b32 %s, %s" % (v(AM + 8 + k), s(r)))
        e("buffer_store_dwordx4 %s, off, %s, s3" % (v(AM + 8, 4), ws))
        e("buffer_store_dwordx4 %s, off, %s, s3 offset:16" % (v(AM + 12, 4), ws))
    delay(e, OPT.get("dm", 112) - (128 if trace else 0))
    if ns and OPT.get("dmx"):
        e("s_cmp_ge_u32 %s, %d" % (s(S_WAVE), ns))
        e("s_cbranch_scc1 %s" % L("firem"))
        delay(e, OPT.get("dmx"))
        e.label(L("firem"))
    stamp(e, 5, stamps and not OPT.get("pflat"))
    for x in mld:
        e(x)
    e("s_branch %s" % L("step"))
    e.label(L("last"))
    e(hist)
    e("s_branch %s" % L("done"))
    if ns:
        e.label(L("onem"))
        e("s_waitcnt vmcnt(0)")
        e("s_branch %s" % L("prem"))
        e.label(L("onep"))
        e("v_mov_b32 %s, %s" % (v(PB_), s(S_NPAR)))
        e("s_waitcnt vmcnt(0)")
        e("s_branch %s" % L("prep"))
    e.label(L("refresh"))
    e("buffer_load_dword %s, %s, %s, %s offen sc1" % (v(JUNK), v(C_PF), ws, s(S_SLAB)))
    e("s_add_u32 %s, %s, 1" % (s(S_TMO), s(S_TMO)))
    e("s_cmp_le_u32 %s, %d" % (s(S_TMO), TMO_LIMIT))
    e("s_waitcnt vmcnt(0)")
    e("s_cbranch_scc1 %s" % L("step"))
    e("s_branch %s" % L("fresh"))
    e.label(L("safe"))
    e.fence(12)
    e("s_waitcnt vmcnt(0) lgkmcnt(0)")
    e("s_barrier")
    W = AM
    for ks in range(4):
        e(qbrd(ks))
        e(kmrd(ks))
    e("s_xor_b32 %s, %s, 0x1000" % (s(S_T0), s(S_KXO)))
    e("s_add_u32 %s, %s, %s" % (s(S_T0), s(S_T0), s(S_SLAB)))
    for ks in range(4):
        e("buffer_load_dwordx4 %s, %s, %s, %s offen offset:%d sc1" % (v(W + 4 * ks, 4), v(C_L16), ws, s(S_KX), ks * 1024))
        e("buffer_load_dwordx4 %s, %s, %s, %s offen offset:%d sc1" % (v(W + 16 + 4 * ks, 4), v(C_L16), ws, s(S_T0), ks * 1024))
    e("s_waitcnt vmcnt(0) lgkmcnt(0)")
    S0, S1, S2 = ACCQ, ACCQ + 4, ACCK
    for (d, src) in ((S0, W), (S1, W + 16), (S2, XA)):
        for ks in range(4):
            e(mf32(d, src + 4 * ks, QB + 4 * ks, ks == 0))
    M0_, M1_ = W, W + 1
    e("v_mul_f32 %s, %s, %s" % (v(S2), s(S_SCALE), v(S2)))
    e("v_mul_f32 %s, %s, %s" % (v(S2 + 1), s(S_SCALE), v(S2 + 1)))
    e("v_max3_f32 %s, %s, %s, %s" % (v(M0_), v(S0), v(S0 + 1), v(S0 + 2)))
    e("v_max3_f32 %s, %s, %s, %s" % (v(M0_), v(M0_), v(S0 + 3), v(S1)))
    e("v_max3_f32 %s, %s, %s, %s" % (v(M0_), v(M0_), v(S1 + 1), v(S1 + 2)))
    e("v_max3_f32 %s, %s, %s, %s" % (v(M0_), v(M0_), v(S1 + 3), v(S2)))
    e("v_max_f32 %s, %s, %s" % (v(M0_), v(M0_), v(S2 + 1)))
    for sw in ("v_permlane16_swap_b32", "v_permlane32_swap_b32"):
        e("v_mov_b32 %s, %s" % (v(M1_), v(M0_)))
        e("%s %s, %s" % (sw, v(M0_), v(M1_)))
        e("v_max_f32 %s, %s, %s" % (v(M0_), v(M0_), v(M1_)))
    for r in [S0 + i for i in range(8)] + [S2, S2 + 1]:
        e("v_sub_f32 %s, %s, %s" % (v(r), v(r), v(M0_)))
        e(ex(r))
    for q in range(4):
        e(cvt(PX + q, S0 + 2 * q, S0 + 2 * q + 1))
    e(cvt(PM, S2, S2 + 1))
    e(mf32(LS, ONES, PX, True)); e(mf32(OA, VX, PX, True)); e(mf32(OA + 4, VX + 4, PX, True))
    e(mf16(LS, ONES, PM)); e(mf16(OA, VM0, PM)); e(mf16(OA + 4, VM1, PM))
    e("v_rcp_f32 %s, %s" % (v(TA), v(LS)))
    for r in range(8):
        e("v_mul_f32 %s, %s, %s" % (v(OA + r), v(OA + r), v(TA)))
    for r in range(4):
        e(cvt(OP + r, OA + r, OA + 4 + r))
    for r in range(AM, AM + 16):
        e(mov0(r))
    for x in oad:
        e(x)
    e("s_mov_b64 vcc, 0")
    e("s_branch %s" % L("rejoin"))
    e.label(L("done"))
```

```python
import sys
from asmlib import Emitter, v, a, s
import chain as C
for a_ in sys.argv:
    if a_.startswith('opt:'):
        k_, v_ = a_[4:].split('=')
        C.OPT[k_] = int(v_, 0) if v_.lstrip('-')[:1].isdigit() else v_.replace('_', ' ')
import worker as W
import mlp as M

BASE = "sequential_preLN__memory_aug_recurrent_mem_tr__moe_arch_mod__prompt"
K1 = BASE + "_kernel"
K2 = "route_up_kernel"
K3 = "down_kernel"
hdr = open(__import__("os").path.join(__import__("os").path.dirname(__import__("os").path.abspath(__file__)), "..", "%s.s.ref" % BASE)).read().split("\n")
hdr = [l for l in hdr[:hdr.index(next(l for l in hdr if "@launch" in l and l.startswith("; @launch")))] if "harness parses" not in l.lower() and "Override launch" not in l]
e = Emitter()
for l in hdr:
    e.raw(l)
DOC = """
Generated by gen/gen.py (hand-written generator scripts, see gen/*.py).
One persistent launch, 256 workgroups (one per CU), role = workgroup id & 7:
  0    chain: one workgroup per head keeps its Wq/Wk/Wv/Wo slices in registers + LDS and runs the 63 dependent
       memory updates.  The 8 memory rows use the sparse MFMA (8 rows x 2 k-halves or x 2 column tiles).
       Per step: partial out-projections -> reduce-scatter over the 32 workgroups -> all-gather of the new memory.
       Every hand-off word validates itself (sentinel or parity tag), readers use L1-bypassing loads.
       The chain workgroups report their XCC id at run time: only if all sit on one die the hand-off stores are
       plain (shared L2); otherwise the second copy of the loop with device-scope stores runs.
       Softmax of the memory rows exponentiates without a shift while 2^-30 <= row sum <= 2^30; a run-time check
       redoes the step with the true row maximum otherwise.
  1-6  workers (6 per head): q/k/v of the tokens, token attention (running true max), partial out-projection,
       cross-head reduction + residual + layernorm + router score, device-scope hand-offs.
  7    setup of the hand-off buffers, layernorm of x, then top-2 routing + MLP (recomputed whenever the top-2 of a
       longer token prefix changes; the final check sees all tokens).
Short waits in front of polls are back-off: early polls only slow the stores they are waiting for.
Every wait loop is bounded.
"""
for l in DOC.strip().split("\n"):
    e.raw("; " + l)
if C.OPT.get("list"):
    e.raw("; @launch kernel=%s grid=(256,1,1) block=(256,1,1) lds=%d" % (K1, C.LDS_BYTES))
else:
    e.raw("; @launch grid=(256,1,1) block=(256,1,1) lds=%d" % C.LDS_BYTES)
e.raw('.amdgcn_target "amdgcn-amd-amdhsa--gfx950"')
e.raw(".text")


def start(name):
    e.raw(".globl %s\n.p2align 8\n.type %s,@function" % (name, name))
    e.label(name)
    e.hist = []


PROF = C.OPT.get("prof", 0)


def rt(i, dbg=None):
    if not PROF:
        return
    if PROF == 2:
        if dbg is None:
            return
        e("s_cmp_lg_u32 %s, 0" % s(C.S_WAVE))
        e("s_cbranch_scc1 L_rt%d" % dbg)
        if dbg in (0, 3, 4):
            e("s_cmp_ge_u32 s2, 16")
            e("s_cbranch_scc1 L_rt%d" % dbg)
        e("s_memrealtime s[100:101]")
        e("s_waitcnt lgkmcnt(0)")
        e("s_and_b32 s100, s100, 0xffffff")
        if dbg == 0:
            e("s_sub_u32 s100, 0x1000000, s100")
        e("v_mov_b32 v14, s100")
        e("s_mov_b64 exec, 1")
        e("buffer_atomic_umax v14, off, %s, 0 offset:%d" % (s(C.S_DBG, 4), 4 * dbg))
        e("s_mov_b64 exec, -1")
        e.label("L_rt%d" % dbg)
        return
    e("s_memrealtime s[100:101]")
    e("s_lshl_b32 s3, s2, 6")
    e("s_add_u32 s3, s3, 0x%x" % C.STAMP_OFF)
    e("s_waitcnt lgkmcnt(0)")
    e("v_mov_b32 v14, s100")
    e("buffer_store_dword v14, off, %s, s3 offset:%d" % (s(C.S_WS, 4), 4 * i))
    e("s_waitcnt vmcnt(0)")


start(K1)
P = C.S_PTR
e("s_cmp_ge_u32 s2, 256")
e("s_cbranch_scc1 L_end")
e("s_load_dwordx8 %s, s[0:1], 0" % s(P, 8))
e("s_load_dwordx4 %s, s[0:1], 32" % s(P + 8, 4))
e("s_load_dwordx4 %s, s[0:1], 104" % s(P + 12, 4))
e("s_load_dwordx2 s[80:81], s[0:1], 64")
e("s_load_dwordx2 s[82:83], s[0:1], 96")
e("s_load_dwordx4 s[84:87], s[0:1], 72")
e("s_load_dwordx2 s[88:89], s[0:1], 88")
if C.OPT.get("warm", 0):
    e.comment("pull the kernel's own code into this die's L2 (it is executed mostly once, front to back)")
    e("s_getpc_b64 s[90:91]")
    e("s_and_b32 s90, s90, 0xffffff00")
    e("v_lshlrev_b32 v2, 7, v0")
    e("v_add_u32 v3, 0x8000, v2")
    e("v_min_u32 v3, CODE_LAST, v3")
    e("global_load_dword v126, v2, s[90:91]")
    e("global_load_dword v127, v3, s[90:91]")
e("v_lshrrev_b32 v1, 6, v0")
e("v_readfirstlane_b32 %s, v1" % s(C.S_WAVE))
e("s_waitcnt lgkmcnt(0)")
C.srd(e, C.S_WS, P + 14, C.WS_BYTES)
C.srd(e, C.S_DBG, P + 12, 256)
rt(0, 0)
e("s_and_b32 s3, s2, 7")
e("s_cmp_lg_u32 s3, 0")
e("s_cbranch_scc1 L_worker")
e("s_lshr_b32 %s, s2, 3" % s(C.S_H))


def chain_pre(q):
    C.xcc_publish(e, q)
    C.mem0_load(e, P + 2, C.HPEND, 104, 105, 106, C.S_W)
    q.add("m0")
    if C.OPT.get("tlb", 1):
        e.comment("touch an unused word of every slab: address translations are resolved before the chain needs them")
        e("v_and_b32 v104, 63, v0")
        e("s_mov_b32 s36, 0x%x" % C.SLAB_ST)
        e("v_mul_lo_u32 v104, v104, s36")
        e("s_mov_b32 s36, 0x%x" % (C.SLAB_OFF + C.FL_IN + 0x80))
        e("buffer_load_dword v126, v104, %s, s36 offen" % s(C.S_WS, 4))
        q.add("tlb")
        e("buffer_load_dword v127, off, %s, 0 offset:0" % s(C.S_WS, 4) if False else "s_mov_b32 s36, 0xf0000")
        e("buffer_load_dword v127, off, %s, s36" % s(C.S_WS, 4))
        q.add("tlb")
    C.setup_consts(e)
    C.setup_pf(e)


C.load_weights(e, P + 4, P + 6, P + 8, P + 10, pre=chain_pre)
rt(1, 1)
e("s_cmp_lg_u32 %s, 0" % s(C.S_MODE))
e("s_cbranch_scc1 L_slow_start")
C.main_loop(e, "fast", "", 63, bool(C.OPT.get("trace")))
rt(2, 2)
e("s_branch L_end")
C.main_loop(e, "slow", " sc1", 63)
e("s_branch L_end")
e.label("L_worker")


def common():
    C.srd(e, W.S_X, P, 2048 * 512 * 2)
    C.srd(e, W.S_OUT, 82, 2048 * 512 * 2)
    C.srd(e, W.S_WR, 80, 1024)
    W.setup(e)


def worker_pre(q):
    if C.OPT.get("touch", 1):
        e.comment("pull this head's Wo slice towards the last-level cache early (the chain CU streams it first)")
        C.srd(e, W.S_X, P + 10, 4096 * 512 * 2)
        e("s_lshl_b32 s24, %s, 17" % s(C.S_H))
        e("s_and_b32 s25, %s, 3" % s(W.S_R))
        e("s_lshl_b32 s25, s25, 15")
        e("s_add_u32 s24, s24, s25")
        e("v_lshlrev_b32 v30, 7, v0")
        e("buffer_load_dword v31, v30, %s, s24 offen" % s(W.S_X, 4))
        q.add("touch")
    common()


e("s_cmp_eq_u32 s3, 7")
e("s_cbranch_scc1 L_mlp")
W.ids(e)
if C.OPT.get("stag"):
    e("s_cmp_lt_u32 %s, %d" % (s(W.S_R), C.OPT.get("stagr", 1)))
    e("s_cbranch_scc1 L_go")
    for _ in range(C.OPT["stag"]):
        e("s_sleep 36")
    e.label("L_go")
W.load_w(e, P, C.OPT.get("word", "VKQ"), worker_pre)
rt(1, 3)
if PROF == 1:
    for i in range(2):
        e("v_mov_b32 v14, %s" % s(90 + i))
        e("buffer_store_dword v14, off, %s, s3 offset:%d" % (s(C.S_WS, 4), 24 + 4 * i))
W.phase1(e)
rt(2, 4)
if C.OPT.get("nop2"):
    e("s_branch L_end")
W.load_wo(e, P)
W.wait_tpinit(e)
rt(3)
W.phase2(e)
rt(4, 5)
if PROF == 1:
    for i in range(6):
        e("v_mov_b32 v14, %s" % s(44 + 2 * i))
        e("buffer_store_dword v14, off, %s, s3 offset:%d" % (s(C.S_WS, 4), 32 + 4 * i))
    e("v_mov_b32 v14, %s" % s(C.S_TMO))
    e("buffer_store_dword v14, off, %s, s3 offset:56" % s(C.S_WS, 4))
    e("v_mov_b32 v14, %s" % s(W.S_R))
    e("buffer_store_dword v14, off, %s, s3 offset:60" % s(C.S_WS, 4))
e("s_branch L_end")
e.label("L_mlp")
common()
e("s_lshr_b32 %s, s2, 3" % s(C.S_H))
W.xn_produce(e, lambda: C.init_fill(e, P + 2, W.W_MW, W.R0 + 48, 96))
rt(1)
if C.OPT.get("nop2") or C.OPT.get("nomlp"):
    e("s_branch L_end")
M.body(e, 84, 86, 88)
e.label("L_end")
if PROF:
    e("s_cmp_ge_u32 s2, 256")
    e("s_cbranch_scc1 L_end2")
    rt(5, 6)
    e.label("L_end2")
e("s_endpgm")
e.raw('.section .rodata,"a"')
for name, nv, acc in ((K1, 512, 256),):
    e.raw(""".p2align 6
.amdhsa_kernel %s
  .amdhsa_next_free_vgpr %d
  .amdhsa_next_free_sgpr 102
  .amdhsa_accum_offset %d
  .amdhsa_group_segment_fixed_size 0
  .amdhsa_kernarg_size 120
  .amdhsa_user_sgpr_count 2
  .amdhsa_user_sgpr_kernarg_segment_ptr 1
  .amdhsa_system_sgpr_workgroup_id_x 1
.end_amdhsa_kernel""" % (name, nv, acc))
out = sys.argv[1] if len(sys.argv) > 1 and not sys.argv[1].startswith("opt:") else "/code/%s.s" % BASE
import subprocess, tempfile, os, re
txt = e.text()
with tempfile.TemporaryDirectory() as td:
    open(td + "/a.s", "w").write(txt.replace("CODE_LAST", "0x12345"))
    subprocess.run(["clang", "-x", "assembler", "-target", "amdgcn-amd-amdhsa", "-mcpu=gfx950", "-c", td + "/a.s", "-o", td + "/a.o"], check=True)
    sec = subprocess.run(["llvm-readelf", "-S", td + "/a.o"], capture_output=True, text=True).stdout
    size = int(re.search(r"\.text\s+PROGBITS\s+\S+\s+\S+\s+(\S+)", sec).group(1), 16)
assert 0x8000 < size <= 0x10000
open(out, "w").write(txt.replace("CODE_LAST", "0x%x" % (size - 4)))
print("nops inserted:", e.nops_inserted, "lines:", len(e.lines), "->", out)
```

```python
import sys
from asmlib import Emitter, v, a, s
import chain as C
for a_ in sys.argv:
    if a_.startswith('opt:'):
        k_, v_ = a_[4:].split('=')
        C.OPT[k_] = int(v_, 0) if v_.lstrip('-')[:1].isdigit() else v_.replace('_', ' ')
import worker as W
import mlp as M

BASE = "sequential_preLN__memory_aug_recurrent_mem_tr__moe_arch_mod__prompt"
K1 = BASE + "_kernel"
K2 = "route_up_kernel"
K3 = "down_kernel"
hdr = open(__import__("os").path.join(__import__("os").path.dirname(__import__("os").path.abspath(__file__)), "..", "%s.s.ref" % BASE)).read().split("\n")
hdr = [l for l in hdr[:hdr.index(next(l for l in hdr if "@launch" in l and l.startswith("; @launch")))] if "harness parses" not in l.lower() and "Override launch" not in l]
e = Emitter()
for l in hdr:
    e.raw(l)
DOC = """
Generated by gen/gen.py (hand-written generator scripts, see gen/*.py).
One persistent launch, 256 workgroups (one per CU), role = workgroup id & 7:
  0    chain: one workgroup per head keeps its Wq/Wk/Wv/Wo slices in registers + LDS and runs the 63 dependent
       memory updates.  The 8 memory rows use the sparse MFMA (8 rows x 2 k-halves or x 2 column tiles).
       Per step: partial out-projections -> reduce-scatter over the 32 workgroups -> all-gather of the new memory.
       Every hand-off word validates itself (sentinel or parity tag), readers use L1-bypassing loads.
       The chain workgroups report their XCC id at run time: only if all sit on one die the hand-off stores are
       plain (shared L2); otherwise the second copy of the loop with device-scope stores runs.
       Softmax of the memory rows exponentiates without a shift while 2^-30 <= row sum <= 2^30; a run-time check
       redoes the step with the true row maximum otherwise.
  1-6  workers (6 per head): q/k/v of the tokens, token attention (running true max), partial out-projection,
       cross-head reduction + residual + layernorm + router score, device-scope hand-offs.
  7    setup of the hand-off buffers, layernorm of x, then top-2 routing + MLP (recomputed whenever the top-2 of a
       longer token prefix changes; the final check sees all tokens).
Short waits in front of polls are back-off: early polls only slow the stores they are waiting for.
Every wait loop is bounded.
"""
for l in DOC.strip().split("\n"):
    e.raw("; " + l)
if C.OPT.get("list"):
    e.raw("; @launch kernel=%s grid=(256,1,1) block=(256,1,1) lds=%d" % (K1, C.LDS_BYTES))
else:
    e.raw("; @launch grid=(256,1,1) block=(256,1,1) lds=%d" % C.LDS_BYTES)
e.raw('.amdgcn_target "amdgcn-amd-amdhsa--gfx950"')
e.raw(".text")


def start(name):
    e.raw(".globl %s\n.p2align 8\n.type %s,@function" % (name, name))
    e.label(name)
    e.hist = []


PROF = C.OPT.get("prof", 0)


def rt(i, dbg=None):
    if not PROF:
        return
    if PROF == 2:
        if dbg is None:
            return
        e("s_cmp_lg_u32 %s, 0" % s(C.S_WAVE))
        e("s_cbranch_scc1 L_rt%d" % dbg)
        if dbg in (0, 3, 4):
            e("s_cmp_ge_u32 s2, 16")
            e("s_cbranch_scc1 L_rt%d" % dbg)
        e("s_memrealtime s[100:101]")
        e("s_waitcnt lgkmcnt(0)")
        e("s_and_b32 s100, s100, 0xffffff")
        if dbg == 0:
            e("s_sub_u32 s100, 0x1000000, s100")
        e("v_mov_b32 v14, s100")
        e("s_mov_b64 exec, 1")
        e("buffer_atomic_umax v14, off, %s, 0 offset:%d" % (s(C.S_DBG, 4), 4 * dbg))
        e("s_mov_b64 exec, -1")
        e.label("L_rt%d" % dbg)
        return
    e("s_memrealtime s[100:101]")
    e("s_lshl_b32 s3, s2, 6")
    e("s_add_u32 s3, s3, 0x%x" % C.STAMP_OFF)
    e("s_waitcnt lgkmcnt(0)")
    e("v_mov_b32 v14, s100")
    e("buffer_store_dword v14, off, %s, s3 offset:%d" % (s(C.S_WS, 4), 4 * i))
    e("s_waitcnt vmcnt(0)")


start(K1)
P = C.S_PTR
e("s_cmp_ge_u32 s2, 256")
e("s_cbranch_scc1 L_end")
e("s_load_dwordx8 %s, s[0:1], 0" % s(P, 8))
e("s_load_dwordx4 %s, s[0:1], 32" % s(P + 8, 4))
e("s_load_dwordx4 %s, s[0:1], 104" % s(P + 12, 4))
e("s_load_dwordx2 s[80:81], s[0:1], 64")
e("s_load_dwordx2 s[82:83], s[0:1], 96")
e("s_load_dwordx4 s[84:87], s[0:1], 72")
e("s_load_dwordx2 s[88:89], s[0:1], 88")
if C.OPT.get("warm", 0):
    e.comment("pull the kernel's own code into this die's L2 (it is executed mostly once, front to back)")
    e("s_getpc_b64 s[90:91]")
    e("s_and_b32 s90, s90, 0xffffff00")
    e("v_lshlrev_b32 v2, 7, v0")
    e("v_add_u32 v3, 0x8000, v2")
    e("v_min_u32 v3, CODE_LAST, v3")
    e("global_load_dword v126, v2, s[90:91]")
    e("global_load_dword v127, v3, s[90:91]")
e("v_lshrrev_b32 v1, 6, v0")
e("v_readfirstlane_b32 %s, v1" % s(C.S_WAVE))
e("s_waitcnt lgkmcnt(0)")
C.srd(e, C.S_WS, P + 14, C.WS_BYTES)
C.srd(e, C.S_DBG, P + 12, 256)
rt(0, 0)
e("s_and_b32 s3, s2, 7")
e("s_cmp_lg_u32 s3, 0")
e("s_cbranch_scc1 L_worker")
e("s_lshr_b32 %s, s2, 3" % s(C.S_H))


def chain_pre(q):
    C.xcc_publish(e, q)
    C.mem0_load(e, P + 2, C.HPEND, 104, 105, 106, C.S_W)
    q.add("m0")
    if C.OPT.get("tlb", 1):
        e.comment("touch an unused word of every slab: address translations are resolved before the chain needs them")
        e("v_and_b32 v104, 63, v0")
        e("s_mov_b32 s36, 0x%x" % C.SLAB_ST)
        e("v_mul_lo_u32 v104, v104, s36")
        e("s_mov_b32 s36, 0x%x" % (C.SLAB_OFF + C.FL_IN + 0x80))
        e("buffer_load_dword v126, v104, %s, s36 offen" % s(C.S_WS, 4))
        q.add("tlb")
        if C.OPT.get("tlb", 1) == 2:
            e("s_lshl_b32 s36, %s, 14" % s(C.S_H))
            e("s_lshl_b32 s37, %s, 12" % s(C.S_WAVE))
            e("s_add_u32 s36, s36, s37")
            e("s_add_u32 s36, s36, 0x%x" % C.SLAB_OFF)
            e("buffer_load_dword v125, v104, %s, s36 offen sc1" % s(C.S_WS, 4))
            q.add("tlb")
        e("s_mov_b32 s36, 0xf0000")
        e("buffer_load_dword v127, off, %s, s36" % s(C.S_WS, 4))
        q.add("tlb")
    C.setup_consts(e)
    C.setup_pf(e)


C.load_weights(e, P + 4, P + 6, P + 8, P + 10, pre=chain_pre)
rt(1, 1)
e("s_cmp_lg_u32 %s, 0" % s(C.S_MODE))
e("s_cbranch_scc1 L_slow_start")
C.main_loop(e, "fast", "", 63, bool(C.OPT.get("trace")))
rt(2, 2)
e("s_branch L_end")
C.main_loop(e, "slow", " sc1", 63)
e("s_branch L_end")
e.label("L_worker")


def common():
    C.srd(e, W.S_X, P, 2048 * 512 * 2)
    C.srd(e, W.S_OUT, 82, 2048 * 512 * 2)
    C.srd(e, W.S_WR, 80, 1024)
    W.setup(e)


def worker_pre(q):
    if C.OPT.get("touch", 1):
        e.comment("pull this head's Wo slice towards the last-level cache early (the chain CU streams it first)")
        C.srd(e, W.S_X, P + 10, 4096 * 512 * 2)
        e("s_lshl_b32 s24, %s, 17" % s(C.S_H))
        e("s_and_b32 s25, %s, 3" % s(W.S_R))
        e("s_lshl_b32 s25, s25, 15")
        e("s_add_u32 s24, s24, s25")
        e("v_lshlrev_b32 v30, 7, v0")
        e("buffer_load_dword v31, v30, %s, s24 offen" % s(W.S_X, 4))
        q.add("touch")
    common()


e("s_cmp_eq_u32 s3, 7")
e("s_cbranch_scc1 L_mlp")
W.ids(e)
if C.OPT.get("stag"):
    e("s_cmp_lt_u32 %s, %d" % (s(W.S_R), C.OPT.get("stagr", 1)))
    e("s_cbranch_scc1 L_go")
    for _ in range(C.OPT["stag"]):
        e("s_sleep 36")
    e.label("L_go")
W.load_w(e, P, C.OPT.get("word", "VKQ"), worker_pre)
rt(1, 3)
if PROF == 1:
    for i in range(2):
        e("v_mov_b32 v14, %s" % s(90 + i))
        e("buffer_store_dword v14, off, %s, s3 offset:%d" % (s(C.S_WS, 4), 24 + 4 * i))
W.phase1(e)
rt(2, 4)
if C.OPT.get("nop2"):
    e("s_branch L_end")
W.load_wo(e, P)
W.wait_tpinit(e)
rt(3)
W.phase2(e)
rt(4, 5)
if PROF == 1:
    for i in range(6):
        e("v_mov_b32 v14, %s" % s(44 + 2 * i))
        e("buffer_store_dword v14, off, %s, s3 offset:%d" % (s(C.S_WS, 4), 32 + 4 * i))
    e("v_mov_b32 v14, %s" % s(C.S_TMO))
    e("buffer_store_dword v14, off, %s, s3 offset:56" % s(C.S_WS, 4))
    e("v_mov_b32 v14, %s" % s(W.S_R))
    e("buffer_store_dword v14, off, %s, s3 offset:60" % s(C.S_WS, 4))
e("s_branch L_end")
e.label("L_mlp")
common()
e("s_lshr_b32 %s, s2, 3" % s(C.S_H))
W.xn_produce(e, lambda: C.init_fill(e, P + 2, W.W_MW, W.R0 + 48, 96))
rt(1)
if C.OPT.get("nop2") or C.OPT.get("nomlp"):
    e("s_branch L_end")
M.body(e, 84, 86, 88)
e.label("L_end")
if PROF:
    e("s_cmp_ge_u32 s2, 256")
    e("s_cbranch_scc1 L_end2")
    rt(5, 6)
    e.label("L_end2")
e("s_endpgm")
e.raw('.section .rodata,"a"')
for name, nv, acc in ((K1, 512, 256),):
    e.raw(""".p2align 6
.amdhsa_kernel %s
  .amdhsa_next_free_vgpr %d
  .amdhsa_next_free_sgpr 102
  .amdhsa_accum_offset %d
  .amdhsa_group_segment_fixed_size 0
  .amdhsa_kernarg_size 120
  .amdhsa_user_sgpr_count 2
  .amdhsa_user_sgpr_kernarg_segment_ptr 1
  .amdhsa_system_sgpr_workgroup_id_x 1
.end_amdhsa_kernel""" % (name, nv, acc))
out = sys.argv[1] if len(sys.argv) > 1 and not sys.argv[1].startswith("opt:") else "/code/%s.s" % BASE
import subprocess, tempfile, os, re
txt = e.text()
with tempfile.TemporaryDirectory() as td:
    open(td + "/a.s", "w").write(txt.replace("CODE_LAST", "0x12345"))
    subprocess.run(["clang", "-x", "assembler", "-target", "amdgcn-amd-amdhsa", "-mcpu=gfx950", "-c", td + "/a.s", "-o", td + "/a.o"], check=True)
    sec = subprocess.run(["llvm-readelf", "-S", td + "/a.o"], capture_output=True, text=True).stdout
    size = int(re.search(r"\.text\s+PROGBITS\s+\S+\s+\S+\s+(\S+)", sec).group(1), 16)
assert 0x8000 < size <= 0x10000
open(out, "w").write(txt.replace("CODE_LAST", "0x%x" % (size - 4)))
print("nops inserted:", e.nops_inserted, "lines:", len(e.lines), "->", out)
```

```python
from asmlib import Emitter, v, a, s
import struct

WS_BYTES = 0x10000000
PB_OFF = 0x0000000
SYNC_OFF = 0x0080000
HIST_OFF = 0x0100000
FLAG_OFF = 0x0190000
STAMP_OFF = 0x01A0000
SLAB_OFF = 0x1000000
SLAB_ST = 0x82100
MB_IN = 0x80000
FL_IN = 0x82000
OOB = 0x40000000

L_MEMI = 0
L_PX = 8192
RS = 72
L_QX = 16384
L_KMX = L_QX + 2304
L_OX = L_KMX + 2304
L_SEL = L_OX + 2048
L_WL = 32768
LDS_BYTES = 163840

S_WS = 8
S_W = 12
S_DBG = 16
S_H = 20
S_WAVE = 21
S_STEP = 22
S_SLAB = 23
S_SLABN = 24
S_KXO = 25
S_KX = 29
S_VX = 30
S_HIST = 31
S_TMO = 32
S_SCALE = 33
S_PLO = 34
S_PHI = 35
S_T0 = 36
S_T1 = 37
S_T2 = 38
S_VXO = 39
S_BIG = 40
S_PR = 6
S_MB = 7
S_4K = 26
S_PAR = 27
S_RDY = 62
S_NPAR = 28
S_TAG = 60
S_OOB = 61
S_FW = 88
S_FR = 89
S_NEXT = 90
S_SPIN = 91
S_LIM = 94
S_U0 = 95
S_HM = 92
S_W3 = 95
S_ONES = 4
S_PTR = 44
S_ST = 64

C_PF = 0
C_IDX, C_MW, C_L16, C_WL, C_QW, C_QR, C_KW, C_X2, C_PW, C_MP, FREE1, HPEND, C_FL, T0, JUNK = range(1, 16)
AM = 16
ACCQ = 48
ACCK = 56
ACCV = 64
QB = 72
XA = 88
XB = 104
VX = 120
VW = 128

TMO_LIMIT = 200000
OPT = {}


def f32bits(x):
    return struct.unpack("<I", struct.pack("<f", x))[0]


def lin(e, dst, coefs, const=0, tmp=T0, src=0):
    e("v_mov_b32 %s, 0x%x" % (v(dst), const))
    for k, c in sorted(coefs.items()):
        if c == 0:
            continue
        assert c < (1 << 24)
        e("v_bfe_u32 %s, %s, %d, 1" % (v(tmp), v(src), k))
        e("s_mov_b32 %s, 0x%x" % (s(S_T2), c))
        e("v_mad_u32_u24 %s, %s, %s, %s" % (v(dst), v(tmp), s(S_T2), v(dst)))


def srd(e, d, ptr, nbytes):
    e("s_mov_b32 %s, %s" % (s(d), s(ptr)))
    e("s_and_b32 %s, %s, 0xffff" % (s(d + 1), s(ptr + 1)))
    e("s_mov_b32 %s, 0x%x" % (s(d + 2), nbytes))
    e("s_mov_b32 %s, 0x20000" % s(d + 3))


LDS_OPS = {
    ("Q", 0, 0): XB + 0, ("Q", 1, 0): XB + 8, ("Q", 0, 1): XA + 0, ("Q", 1, 1): XA + 8,
    ("K", 0, 0): QB + 0, ("K", 1, 0): QB + 8,
    ("Q", 0, 7): XA + 0, ("Q", 1, 7): XA + 8,
    ("K", 0, 2): QB + 0, ("K", 1, 2): QB + 8,
    ("K", 0, 7): XA + 0, ("K", 1, 7): XA + 8,
    ("O", 2, 3): XA + 0, ("O", 3, 1): XA + 8, ("O", 3, 2): QB + 0, ("O", 3, 3): QB + 8,
}
OLDS = [("O", 2, 3), ("O", 3, 1), ("O", 3, 2), ("O", 3, 3)]
LDS_SLOT = {k: i for i, k in enumerate(LDS_OPS)}
ALL_OPS = [(m, T, u) for m in "QKV" for u in range(8) for T in range(2)] + [("O", q, u) for u in range(4) for q in range(4)]
RES = {}
_n = 0
for op in ALL_OPS:
    if op in LDS_OPS:
        continue
    RES[op] = ("a", _n * 8) if _n < 32 else ("v", VW + (_n - 32) * 8)
    _n += 1
assert _n == 48


def opreg(op):
    if op in LDS_OPS:
        return v(LDS_OPS[op], 8)
    k, r = RES[op]
    return (a if k == "a" else v)(r, 8)


def lds_fetch_ins(op):
    r = LDS_OPS[op]
    off = LDS_SLOT[op] * 2048
    return ["ds_read_b128 %s, %s offset:%d" % (v(r, 4), v(C_WL), off),
            "ds_read_b128 %s, %s offset:%d" % (v(r + 4, 4), v(C_WL), off + 1024)]


def lds_fetch(e, op):
    for t in lds_fetch_ins(op):
        e(t)


def rowpart(rho, b, hi=32):
    return hi * (rho >> 2) + 8 * (rho & 1) + 2 * ((rho >> 1) & 1) + b


class VmQ:
    def __init__(self, e):
        self.e, self.q = e, []

    def add(self, tag):
        self.q.append(tag)
        assert len(self.q) <= 63

    def wait(self, tag):
        if tag not in self.q:
            return
        last = len(self.q) - 1 - self.q[::-1].index(tag)
        self.e("s_waitcnt vmcnt(%d)" % (len(self.q) - 1 - last))
        self.q = self.q[last + 1:]


def staged_load(e, chunks, ptrs, srds, swz_bits, dma_k, lane_f, row_lane, blk_xor_wave, reads, side=None, pre=None, nslot=3):
    AD, AR = 16, 20
    TT = 28
    e("v_lshrrev_b32 %s, 6, v0" % v(TT))
    e("v_bfe_u32 %s, v0, 4, 2" % v(TT + 1))
    e("v_lshl_add_u32 %s, %s, 5, %s" % (v(TT), v(TT), v(TT + 1)))
    e("v_and_b32 %s, 15, v0" % v(AD))
    e("v_lshlrev_b32 %s, 4, %s" % (v(AD), v(AD)))
    e("v_lshl_add_u32 %s, %s, 13, %s" % (v(AD), v(TT), v(AD)))
    e("v_bfe_u32 %s, v0, 4, %d" % (v(TT + 1), swz_bits))
    e("v_lshlrev_b32 %s, 5, %s" % (v(TT + 1), v(TT + 1)))
    e("v_xor_b32 %s, %s, %s" % (v(AD), v(AD), v(TT + 1)))
    for k in range(1, 4):
        e("v_xor_b32 %s, %d, %s" % (v(AD + k), dma_k(k), v(AD)))
    S_LB, S_GB = 28, 3
    e("s_add_u32 %s, %s, 1" % (s(S_LB), s(S_WAVE)))
    e("s_lshl_b32 %s, %s, 15" % (s(S_LB), s(S_LB)))
    e("s_lshl_b32 %s, %s, 8" % (s(S_GB), s(S_H)))
    q = VmQ(e)
    built = set()

    def dma(c):
        m, ci = chunks[c]
        if m not in built:
            srd(e, srds[m], ptrs[m], 512 * 4096 * 2)
            built.add(m)
        for i in range(8):
            e("s_add_u32 m0, %s, %d" % (s(S_LB), (c % nslot) * 8192 + i * 1024))
            e("s_add_u32 %s, %s, 0x%x" % (s(S_T1), s(S_GB), (128 * ci + 4 * i) * 8192))
            e("buffer_load_dwordx4 %s, %s, %s offen%s lds" % (v(AD + (i & 3)), s(srds[m], 4), s(S_T1), OPT.get("cnt", "") if blk_xor_wave else OPT.get("wnt", "")))
            q.add(("c", c))
    lead = OPT.get("lead", 0) if blk_xor_wave else 0
    TL = 29
    S_TR = 91

    def touch(c):
        if c >= len(chunks):
            return
        m, ci = chunks[c]
        if m not in built:
            srd(e, srds[m], ptrs[m], 512 * 4096 * 2)
            built.add(m)
        e("s_add_u32 %s, %s, 0x%x" % (s(S_T1), s(S_MB), 128 * ci * 8192))
        e("buffer_load_dword %s, %s, %s, %s offen" % (v(JUNK), v(TL), s(srds[m], 4), s(S_T1)))
        q.add(("t", c))
    if lead:
        e("v_and_b32 %s, 63, v0" % v(TL))
        e("v_lshlrev_b32 %s, 7, %s" % (v(TL), v(TL)))
        e("s_lshl_b32 %s, %s, 2" % (s(S_MB), s(S_H)))
        e("s_add_u32 %s, %s, %s" % (s(S_MB), s(S_MB), s(S_WAVE)))
        e("s_lshl_b32 %s, %s, 13" % (s(S_MB), s(S_MB)))
        for c in range(nslot + lead):
            touch(c)
    for c in range(nslot):
        dma(c)
    TT = 30
    lin(e, AR, {0: 8, 1: 16, **{k: c * 256 for k, c in row_lane.items()}})
    lin(e, TT, lane_f)
    lin(e, TT + 1, {6: 64, 7: 128})
    e("v_xor_b32 %s, %s, %s" % (v(TT), v(TT), v(TT + 1)))
    e("v_add_u32 %s, %s, %s" % (v(TT), v(TT), v(AR)))
    for k in range(4):
        if blk_xor_wave:
            e("s_xor_b32 %s, %s, %d" % (s(S_T0), s(S_WAVE), k))
            e("s_add_u32 %s, %s, 1" % (s(S_T0), s(S_T0)))
            e("s_lshl_b32 %s, %s, 15" % (s(S_T0), s(S_T0)))
            e("v_add_u32 %s, %s, %s" % (v(AR + 2 * k), s(S_T0), v(TT)))
        else:
            e("v_add_u32 %s, 0x%x, %s" % (v(AR + 2 * k), (k + 1) << 15, v(TT)))
        e("v_xor_b32 %s, 32, %s" % (v(AR + 2 * k + 1), v(AR + 2 * k)))
    if pre:
        pre(q)
    for c, (m, ci) in enumerate(chunks):
        if side:
            side(c, q)
        q.wait(("c", c))
        e("s_barrier")
        for n_, (dst, k, T, ro) in enumerate(reads(m, ci)):
            if n_ == 12:
                e("s_waitcnt lgkmcnt(4)")
            e("ds_read_b64_tr_b16 %s, %s offset:%d" % (dst, v(AR + 2 * k + T), (c % nslot) * 8192 + ro * 256))
        e("s_waitcnt lgkmcnt(0)")
        e("s_barrier")
        if lead:
            touch(c + nslot + lead)
        if c + nslot < len(chunks):
            dma(c + nslot)
    return q


HOLD = {op: 32 + 8 * i for i, op in enumerate(o for o in LDS_OPS if o[0] != "O")}


def load_weights(e, P_WQ, P_WK, P_WV, P_WO, pre=None, mid=None):
    e.comment("---- load weight operands: Wq/Wk/Wv by LDS-DMA + transposing reads, Wo by dword loads + v_perm")
    VOFO = FREE1
    RING, TMP8 = 32, 120
    ptr = {"Q": P_WQ, "K": P_WK, "V": P_WV, "O": P_WO}
    SRDS = {"Q": 96, "K": 88, "V": 60, "O": 92}
    S_OB = 29

    def pre2(q):
        lin(e, VOFO, {0: 4, 1: 8, 2: 16, 3: 32, 4: 2 * 1024, 5: 4 * 1024, 6: 256, 7: 512})
        srd(e, SRDS["O"], ptr["O"], 512 * 4096 * 2)
        e("s_lshl_b32 %s, %s, 17" % (s(S_OB), s(S_H)))
        o_issue(0, q)
        pre(q)

    def reads(m, ci):
        tau, hi = ci >> 1, ci & 1
        out = []
        for k in range(4):
            u = 2 * k + tau
            for T in range(2):
                op = (m, T, u)
                for pr in range(2):
                    if op in HOLD:
                        dst = v(HOLD[op] + 4 * hi + 2 * pr, 2)
                    else:
                        kind, r = RES[op]
                        dst = (a if kind == "a" else v)(r + 4 * hi + 2 * pr, 2)
                    out.append((dst, k, T, 2 * pr))
        return out

    GORD = [7, 5, 3, 6, 4, 2, 1, 0]

    def o_issue(gi, q):
        g = GORD[gi]
        u = g >> 1
        base = (32, 48, 80)[gi % 3]
        e("s_xor_b32 %s, %s, %d" % (s(S_T0), s(S_WAVE), u))
        e("s_lshl_b32 %s, %s, 15" % (s(S_T0), s(S_T0)))
        e("s_add_u32 %s, %s, %s" % (s(S_T0), s(S_T0), s(S_OB)))
        for k in range(2):
            qq = 2 * (g & 1) + k
            for pr in range(4):
                for b in range(2):
                    row = 16 * b + 8 * (pr >> 1) + (pr & 1)
                    e("s_add_u32 %s, %s, 0x%x" % (s(S_T1), s(S_T0), row * 1024 + qq * 64))
                    e("buffer_load_dword %s, %s, %s, %s offen%s" % (v(base + k * 8 + pr * 2 + b), v(VOFO), s(SRDS["O"], 4), s(S_T1), OPT.get("ont", "")))
                    q.add(("o", g))

    def o_consume(gi, q):
        g = GORD[gi]
        q.wait(("o", g))
        base = (32, 48, 80)[gi % 3]
        for k in range(2):
            op = ("O", 2 * (g & 1) + k, g >> 1)
            dst = TMP8 if op in LDS_OPS else RES[op][1]
            assert op in LDS_OPS or RES[op][0] == "v"
            for pr in range(4):
                for hf in range(2):
                    e("v_perm_b32 %s, %s, %s, %s" % (v(dst + 2 * pr + hf), v(base + k * 8 + 2 * pr + 1), v(base + k * 8 + 2 * pr), s(S_PHI if hf else S_PLO)))
            if op in LDS_OPS:
                off = LDS_SLOT[op] * 2048
                assert off >= 24576
                e("ds_write_b128 %s, %s offset:%d" % (v(C_WL), v(TMP8, 4), off))
                e("ds_write_b128 %s, %s offset:%d" % (v(C_WL), v(TMP8 + 4, 4), off + 1024))
                e("s_waitcnt lgkmcnt(0)")

    def side(c, q):
        if 2 <= c < 10 and not OPT.get("noo"):
            o_consume(c - 2, q)
        if 1 <= c < 8 and not OPT.get("noo"):
            o_issue(c, q)
        early_start(e, c, q)

    chunks = [(m, ci) for m in "VKQ" for ci in range(4)]
    staged_load(e, chunks, ptr, SRDS, 1, lambda k: k << 6, {2: 32, 4: 64, 3: 128}, {5: 16, 3: 8, 4: 4, 2: 1}, True, reads, side, pre2, OPT.get("nslot", 3))
    for op, r in HOLD.items():
        off = LDS_SLOT[op] * 2048
        e("ds_write_b128 %s, %s offset:%d" % (v(C_WL), v(r, 4), off))
        e("ds_write_b128 %s, %s offset:%d" % (v(C_WL), v(r + 4, 4), off + 1024))
        if LDS_SLOT[op] % 4 == 3:
            e("s_waitcnt lgkmcnt(0)")
    e("s_waitcnt lgkmcnt(0)")


def setup_consts(e):
    T1, T2 = 104, 105
    AM = 100
    lin(e, C_IDX, {1: 0xEEEE - 0x4444}, 0x4444)
    lin(e, C_L16, {k: 16 << k for k in range(6)})
    lin(e, C_MW, {**{k: 16 << k for k in range(6)}, 6: 2048, 7: 4096})
    lin(e, C_WL, {**{k: 16 << k for k in range(6)}, 6: 32768, 7: 65536}, L_WL)
    lin(e, C_QW, {0: 4, 1: 8, 2: 16, 3: 32, 4: 2 * RS * 4, 5: 4 * RS * 4, 6: 64, 7: 128}, L_QX)
    lin(e, C_QR, {0: RS * 4, 2: 2 * RS * 4, 3: 4 * RS * 4, 4: 16, 5: 32}, L_QX)
    e("v_add_u32 %s, %d, %s" % (v(C_KW), L_KMX - L_QX, v(C_QW)))
    e("v_xor_b32 %s, 0x1000, %s" % (v(C_X2), v(C_MW)))
    lin(e, T1, {3: 1, 4: 2, 5: 4, 6: 8, 7: 16})
    e("v_add_u32 %s, %s, %s" % (v(T1), s(S_H), v(T1)))
    e("v_and_b32 %s, 31, %s" % (v(T1), v(T1)))
    e("v_lshlrev_b32 %s, 6, %s" % (v(T1), v(T1)))
    lin(e, C_PW, {0: 8, 1: 16, 2: 32, 3: 8192, 4: 2 * 8192, 5: 4 * 8192, 6: 8 * 8192, 7: 16 * 8192}, PB_OFF)
    e("v_add_u32 %s, %s, %s" % (v(C_PW), v(C_PW), v(T1)))
    mp_addr(e, C_MP, T1, T2)
    lin(e, C_FL, {0: 16, 1: 8, 2: 32, 3: 64, 4: 128, 5: 256, 6: 2048, 7: 4096})
    e("s_lshl_b32 %s, %s, 13" % (s(S_PR), s(S_H)))
    e("s_add_u32 %s, %s, 0x%x" % (s(S_PR), s(S_PR), PB_OFF))
    e("s_mov_b32 %s, 4096" % s(S_4K))
    e("v_and_b32 %s, 15, v0" % v(T1))
    for q in range(4):
        e("v_mov_b32 %s, 0" % v(AM + q))
        e("v_mov_b32 %s, 0x3f80" % v(T2))
        e("v_cmp_eq_u32 vcc, %d, %s" % (4 * q, v(T1)))
        e("v_cndmask_b32 %s, %s, %s, vcc" % (v(AM + q), v(AM + q), v(T2)))
        e("v_mov_b32 %s, 0x3f800000" % v(T2))
        e("v_cmp_eq_u32 vcc, %d, %s" % (4 * q + 1, v(T1)))
        e("v_cndmask_b32 %s, %s, %s, vcc" % (v(AM + q), v(AM + q), v(T2)))
    e("ds_write_b128 %s, %s offset:%d" % (v(C_L16), v(AM, 4), L_SEL))
    e("s_mov_b32 %s, 0x05040100" % s(S_PLO))
    e("s_mov_b32 %s, 0x07060302" % s(S_PHI))
    e("s_mov_b32 %s, 0x%x" % (s(S_SCALE), f32bits(128 ** -0.5 * 1.4426950408889634)))
    e("s_mov_b32 %s, 0x%x" % (s(S_BIG), f32bits(OPT.get('big', 2.0 ** 30))))
    e("s_mov_b32 %s, 0" % s(S_TMO))
    e("s_mov_b32 %s, 0x3f803f80" % s(S_ONES))
    e("s_mov_b32 %s, 0x3f803f80" % s(S_ONES + 1))
    e("s_lshl_b32 %s, %s, 14" % (s(S_T0), s(S_H)))
    e("s_lshr_b32 %s, %s, 1" % (s(S_T1), s(S_WAVE)))
    e("s_lshl_b32 %s, %s, 12" % (s(S_T1), s(S_T1)))
    e("s_add_u32 %s, %s, %s" % (s(S_KXO), s(S_T0), s(S_T1)))
    e("s_lshl_b32 %s, %s, 11" % (s(S_T1), s(S_WAVE)))
    e("s_add_u32 %s, %s, %s" % (s(S_VXO), s(S_T0), s(S_T1)))
    e("s_add_u32 %s, %s, 8192" % (s(S_VXO), s(S_VXO)))


def setup_pf(e):
    T1, T2 = 104, 105
    lin(e, T1, {0: 128, 1: 256, 2: 512, 3: 1024, 4: 2048, 6: 4096, 7: 8192})
    e("s_lshl_b32 %s, %s, 14" % (s(S_T0), s(S_H)))
    e("v_add_u32 %s, %s, %s" % (v(T1), s(S_T0), v(T1)))
    e("s_lshl_b32 %s, %s, 8" % (s(S_T0), s(S_H)))
    e("s_lshr_b32 %s, %s, 1" % (s(S_T1), s(S_WAVE)))
    e("s_lshl_b32 %s, %s, 7" % (s(S_T1), s(S_T1)))
    e("s_add_u32 %s, %s, %s" % (s(S_T0), s(S_T0), s(S_T1)))
    e("s_add_u32 %s, %s, 0x%x" % (s(S_T0), s(S_T0), SLAB_ST + MB_IN))
    e("v_and_b32 %s, 63, v0" % v(T0))
    e("v_mov_b32 %s, 0x%x" % (v(T2), OOB))
    e("v_cmp_lt_u32 vcc, 32, %s" % v(T0))
    e("v_cndmask_b32 %s, %s, %s, vcc" % (v(T1), v(T1), v(T2)))
    e("v_mov_b32 %s, %s" % (v(T2), s(S_T0)))
    e("v_cmp_eq_u32 vcc, 32, %s" % v(T0))
    e("v_cndmask_b32 %s, %s, %s, vcc" % (v(T1), v(T1), v(T2)))
    e("s_lshl_b32 %s, %s, 2" % (s(S_T0), s(S_H)))
    e("s_add_u32 %s, %s, 0x%x" % (s(S_T0), s(S_T0), SLAB_ST + FL_IN))
    e("v_mov_b32 %s, %s" % (v(T2), s(S_T0)))
    e("v_cmp_eq_u32 vcc, 33, %s" % v(T0))
    e("v_cndmask_b32 %s, %s, %s, vcc" % (v(C_PF), v(T1), v(T2)))


def mp_addr(e, dst, T1, T2):
    lin(e, dst, {0: 8, 1: 32, 4: 16, 5: 4, 6: 2048, 7: 4096}, MB_IN)
    e("v_mov_b32 %s, %s" % (v(T2), s(S_H)))
    lin(e, T1, {0: 256, 1: 64, 2: 128, 3: 512, 4: 1024}, src=T2)
    e("v_add_u32 %s, %s, %s" % (v(dst), v(T1), v(dst)))
    e("v_and_b32 %s, 12, v0" % v(T1))
    e("v_cmp_ne_u32 vcc, 0, %s" % v(T1))
    e("v_mov_b32 %s, 0x%x" % (v(T1), OOB))
    e("v_cndmask_b32 %s, %s, %s, vcc" % (v(dst), v(dst), v(T1)))


def mem0_load(e, P_MEM0, dst, T1, T2, TH, SR):
    srd(e, SR, P_MEM0, 8192)
    lin(e, T1, {0: 8, 1: 16, 2: 0x10000, 3: 0x10000, 4: 1024, 5: 4, 6: 64, 7: 128})
    e("v_mov_b32 %s, %s" % (v(TH), s(S_H)))
    lin(e, T2, {0: 32, 1: 2048, 2: 4096, 3: 256, 4: 512}, src=TH)
    e("v_add_u32 %s, %s, %s" % (v(T1), v(T1), v(T2)))
    e("buffer_load_dword %s, %s, %s, 0 offen" % (v(dst), v(T1), s(SR, 4)))


def init_fill(e, P_MEM0, MW, B, SR):
    M1, T1, T2, TH, MP, HP = B, B + 4, B + 5, B + 6, B + 7, B + 8
    ws = s(S_WS, 4)
    mem0_load(e, P_MEM0, HP, T1, T2, TH, SR)
    for k in range(4):
        e("v_mov_b32 %s, -1" % v(M1 + k))

    def fill8k(so):
        e("buffer_store_dwordx4 %s, %s, %s, %s offen sc1" % (v(M1, 4), v(MW), ws, s(so)))
        e("buffer_store_dwordx4 %s, %s, %s, %s offen offset:1024 sc1" % (v(M1, 4), v(MW), ws, s(so)))
    e("s_lshl_b32 %s, %s, 13" % (s(S_T0), s(S_H)))
    e("s_add_u32 %s, %s, 0x%x" % (s(S_T0), s(S_T0), PB_OFF))
    fill8k(S_T0)
    e("s_lshl_b32 %s, %s, 14" % (s(S_T0), s(S_H)))
    e("s_add_u32 %s, %s, 0x%x" % (s(S_T0), s(S_T0), HIST_OFF))
    e("s_add_u32 %s, %s, 0x2000" % (s(S_T1), s(S_T0)))
    fill8k(S_T0); fill8k(S_T1)
    e("s_mul_i32 %s, %s, 0x%x" % (s(S_T0), s(S_H), 2 * SLAB_ST))
    e("s_add_u32 %s, %s, 0x%x" % (s(S_T0), s(S_T0), SLAB_OFF + SLAB_ST + MB_IN + (0x4000000 if OPT.get("solo") else 0)))
    e("s_add_u32 %s, %s, 0x%x" % (s(S_T1), s(S_T0), SLAB_ST))
    fill8k(S_T0); fill8k(S_T1)
    e("v_lshlrev_b32 %s, 2, v0" % v(T1))
    e("s_lshl_b32 %s, %s, 10" % (s(S_T0), s(S_H)))
    for base in (FLAG_OFF + 0x4000, 0x1B0000, 0x1B8000):
        e("s_add_u32 %s, %s, 0x%x" % (s(S_T1), s(S_T0), base))
        e("buffer_store_dword %s, %s, %s, %s offen sc1" % (v(M1), v(T1), ws, s(S_T1)))
    e("v_mov_b32 %s, 0x%x" % (v(T2), OOB))
    e("v_cmp_lt_u32 vcc, 63, v0")
    e("v_cndmask_b32 %s, %s, %s, vcc" % (v(T1), v(T1), v(T2)))
    e("v_mov_b32 %s, %d" % (v(M1 + 9), 0 if OPT.get("kvflags", 1) else 1))
    e("s_lshl_b32 %s, %s, 8" % (s(S_T0), s(S_H)))
    e("s_add_u32 %s, %s, 0x%x" % (s(S_T1), s(S_T0), FLAG_OFF + 0x2000))
    e("buffer_store_dword %s, %s, %s, %s offen sc1" % (v(M1 + 9), v(T1), ws, s(S_T1)))
    e("s_mul_i32 %s, %s, 0x%x" % (s(S_T0), s(S_H), 2 * SLAB_ST))
    e("s_add_u32 %s, %s, 0x%x" % (s(S_T0), s(S_T0), SLAB_OFF + FL_IN))
    e("s_add_u32 %s, %s, 0x%x" % (s(S_T1), s(S_T0), SLAB_ST))
    e("buffer_store_dword %s, %s, %s, %s offen sc1" % (v(M1 + 9), v(T1), ws, s(S_T0)))
    e("buffer_store_dword %s, %s, %s, %s offen sc1" % (v(M1 + 9), v(T1), ws, s(S_T1)))
    mp_addr(e, MP, T1, T2)
    e("s_waitcnt vmcnt(16)")
    e("s_mov_b32 %s, 0x%x" % (s(S_T0), SLAB_OFF))
    e("buffer_store_dword %s, %s, %s, %s offen sc1" % (v(HP), v(MP), ws, s(S_T0)))


def ready_publish(e, T1, T2):
    e("s_waitcnt vmcnt(0)")
    e("s_barrier")
    e("v_mov_b32 %s, 1" % v(T1))
    e("s_lshl_b32 %s, %s, 2" % (s(S_T1), s(S_H)))
    e("v_lshlrev_b32 %s, 20, v0" % v(T2))
    e("buffer_store_dword %s, %s, %s, %s offen sc1" % (v(T1), v(T2), s(S_DBG, 4), s(S_T1)))


def xcc_publish(e, q):
    T1, T2 = 30, 31
    e("s_getreg_b32 %s, hwreg(HW_REG_XCC_ID)" % s(S_T0))
    e("s_and_b32 %s, %s, 15" % (s(S_T0), s(S_T0)))
    e("s_or_b32 %s, %s, 0x100" % (s(S_T0), s(S_T0)))
    e("v_mov_b32 %s, %s" % (v(T1), s(S_T0)))
    e("s_lshl_b32 %s, %s, 2" % (s(S_T1), s(S_H)))
    e("v_lshlrev_b32 %s, 20, v0" % v(T2))
    e("buffer_store_dword %s, %s, %s, %s offen offset:128 sc1" % (v(T1), v(T2), s(S_DBG, 4), s(S_T1)))
    q.add("hs")


S_MODE = 41


def early_start(e, c, q):
    T1, T2 = 30, 31
    ws = s(S_WS, 4)
    hsl = "buffer_load_dword %s, %s, %s, 0 offen sc1" % (v(T1), v(T2), s(S_DBG, 4))
    pfi = lambda: e("buffer_load_dword %s, %s, %s, %s offen sc1" % (v(JUNK), v(C_PF), ws, s(S_MB)))
    if c == 8:
        e("v_lshrrev_b32 %s, 2, %s" % (v(T2), v(C_L16)))
        e(hsl)
        q.add("hs2")
    if c == 9:
        e.comment("---- buffers initialised (debug[0..31]) and all 32 chain workgroups reported their XCC id (debug[32..63]);")
        q.wait("hs2")
        e("s_mov_b32 %s, 1" % s(S_MODE))
        e.label("L_HS")
        e("v_cmp_eq_u32 vcc, 0, %s" % v(T1))
        e("s_cbranch_vccz L_HS_ok")
        e(hsl)
        e("s_add_u32 %s, %s, 1" % (s(S_TMO), s(S_TMO)))
        e("s_cmp_gt_u32 %s, %d" % (s(S_TMO), TMO_LIMIT))
        e("s_waitcnt vmcnt(0)")
        e("s_cbranch_scc0 L_HS")
        e("s_branch L_HS_done")
        e.label("L_HS_ok")
        e("v_readlane_b32 %s, %s, 63" % (s(S_T0), v(T1)))
        e("v_cmp_ne_u32 vcc, %s, %s" % (s(S_T0), v(T1)))
        e("s_nop 1")
        e("s_cmp_lg_u32 vcc_hi, 0")
        e("s_cselect_b32 %s, 1, %d" % (s(S_MODE), OPT.get("forceslow", 0)))
        e.label("L_HS_done")
        e("s_mov_b32 %s, 0x%x" % (s(S_MB), SLAB_OFF - SLAB_ST))
        pfi()
        q.add("pf0")
    if c == 11:
        q.wait("pf0")
        e.label("L_F0")
        e("v_readlane_b32 %s, %s, 33" % (s(S_T0), v(JUNK)))
        e("s_nop 1")
        e("s_cmp_lg_u32 %s, 0" % s(S_T0))
        e("s_cbranch_scc1 L_F0_ok")
        pfi()
        e("s_add_u32 %s, %s, 1" % (s(S_TMO), s(S_TMO)))
        e("s_cmp_gt_u32 %s, %d" % (s(S_TMO), TMO_LIMIT))
        e("s_waitcnt vmcnt(0)")
        e("s_cbranch_scc0 L_F0")
        e.label("L_F0_ok")
        e("s_mov_b32 %s, 0x%x" % (s(S_MB), SLAB_OFF))
        pfi()
        q.add("pf1")


def smf_ins(acc, aop, op):
    return "v_smfmac_f32_16x16x64_bf16 %s, %s, %s, %s" % (v(acc, 4), v(aop, 4), opreg(op), v(C_IDX))


def stamp(e, i, on):
    if on:
        e("s_memtime %s" % s(S_ST + 2 * i, 2))


am = lambda u: AM + 4 * u


def idle_prep_ins():
    out = []
    for op in (("Q", 0, 0), ("Q", 1, 0), ("Q", 0, 1), ("Q", 1, 1), ("K", 0, 0), ("K", 1, 0)):
        out += lds_fetch_ins(op)
    z = ["v_mov_b64 %s, 0" % v(r, 2) for r in range(ACCQ, ACCQ + 24, 2)]
    return out, z


def delay(e, cyc):
    n = cyc // 4
    while n > 0:
        k = min(n, 16)
        e("s_nop %d" % (k - 1))
        n -= k


def main_loop(e, tag, sc, nsteps, stamps=False):
    L = lambda n: "L_%s_%s" % (tag, n)
    ws = s(S_WS, 4)
    solo = OPT.get("solo")
    trace = OPT.get("trace")
    acc = {"Q": ACCQ, "K": ACCK, "V": ACCV}
    S = lambda m, T, u: smf_ins(acc[m] + 4 * T, am(u), (m, T, u))
    Q = lambda T, u: S("Q", T, u)
    K = lambda T, u: S("K", T, u)
    V = lambda T, u: S("V", T, u)
    lg = lambda n: "s_waitcnt lgkmcnt(%d)" % n
    BAR = "s_barrier"
    add = lambda b, r: "v_add_f32 %s, %s, %s" % (v(b + r), v(b + r), v(b + r + 2))
    cvt = lambda d, x, y: "v_cvt_pk_bf16_f32 %s, %s, %s" % (v(d), v(x), v(y))
    ex = lambda r: "v_exp_f32 %s, %s" % (v(r), v(r))
    mf32 = lambda d, A, B, first: "v_mfma_f32_16x16x32_bf16 %s, %s, %s, %s" % (v(d, 4), v(A, 4), v(B, 4), "0" if first else v(d, 4))
    mf16 = lambda d, A, B: "v_mfma_f32_16x16x16_bf16 %s, %s, %s, %s" % (v(d, 4), v(A, 2), v(B, 2), v(d, 4))

    def run(sched, extra=None):
        for i_, (m_, rest) in enumerate(sched):
            e(m_)
            for x in (extra or {}).get(i_, []) + rest:
                if x.endswith(":"):
                    e.label(x[:-1])
                else:
                    e(x)
    e.label(L("start"))
    e("s_mov_b32 %s, 0" % s(S_STEP))
    e("s_mov_b32 %s, 0x%x" % (s(S_SLAB), SLAB_OFF))
    e("s_mov_b32 %s, 0" % s(S_PAR))
    e("s_mov_b32 %s, 0x%x" % (s(S_HIST), HIST_OFF - MB_IN))
    e("s_mov_b32 %s, 0x%x" % (s(S_OOB), OOB))
    for u in (1, 2, 3):
        e("s_mov_b32 %s, 0x%x" % (s(S_U0 + u), u * 2048))
    e("s_mov_b32 %s, 0xcccccccc" % s(S_HM))
    e("s_mov_b32 %s, 0xcccccccc" % s(S_HM + 1))
    e("s_mov_b32 %s, 0" % s(S_SPIN))
    f, z = idle_prep_ins()
    for t in f + z:
        e(t)
    mldp = lambda P: ["buffer_load_dwordx4 %s, %s, %s, %s offen sc1" % (v(P, 4), v(C_MW), ws, s(S_MB)),
                      "buffer_load_dwordx4 %s, %s, %s, %s offen offset:1024 sc1" % (v(P + 4, 4), v(C_MW), ws, s(S_MB))]
    mld = mldp(AM)
    e("s_add_u32 %s, %s, 0x%x" % (s(S_MB), s(S_SLAB), MB_IN))
    for t in mld:
        e(t)
    e("s_waitcnt vmcnt(2)")
    e.label(L("step"))
    e("v_readlane_b32 %s, %s, 33" % (s(S_T0), v(JUNK)))
    e("s_add_u32 %s, %s, 0x%x" % (s(S_SLABN), s(S_SLAB), SLAB_ST))
    e("s_cmp_eq_u32 %s, 0" % s(S_T0))
    e("s_cbranch_scc1 %s" % L("refresh"))
    e.label(L("fresh"))
    e("s_add_u32 %s, %s, %s" % (s(S_KX), s(S_SLAB), s(S_KXO)))
    e("s_add_u32 %s, %s, %s" % (s(S_VX), s(S_SLAB), s(S_VXO)))
    e("s_xor_b32 %s, %s, 1" % (s(S_NPAR), s(S_PAR)))
    e("s_add_u32 %s, %s, 1" % (s(S_NEXT), s(S_STEP)))
    tr = 2
    if OPT.get("m3"):
        tr = 4
        delay(e, OPT.get("pm0", 0))
        for x in mld:
            e(x)
    ns = OPT.get("ns", 0)
    if ns:
        e("s_cmp_lt_u32 %s, %d" % (s(S_WAVE), ns))
        e("s_cbranch_scc1 %s" % L("onem"))
    delay(e, OPT.get("pm", 64) - (24 if ns else 0))
    e.label(L("retrym"))
    for x in mld:
        e(x)
    e.label(L("prem"))
    e("s_add_u32 %s, %s, 1" % (s(S_TMO), s(S_TMO)))
    e("s_cmp_gt_u32 %s, %d" % (s(S_TMO), TMO_LIMIT))
    e("s_cselect_b32 %s, -1, -2" % s(S_LIM))
    e("v_xor_b32 %s, 0x800, %s" % (v(am(3)), v(C_MW)))
    e("v_xor_b32 %s, 0x1800, %s" % (v(am(7)), v(C_MW)))
    for x in z[:4]:
        e(x)
    e.label(L("waitm"))
    e("s_waitcnt vmcnt(%d) lgkmcnt(0)" % (1 + tr))
    e.label(L("gotm"))
    stamp(e, 0, stamps)
    T1 = am(2)
    mw = ["ds_write_b128 %s, %s offset:%d" % (v(C_MW), v(am(k), 4), L_MEMI + 1024 * k) for k in range(2)]
    PK = ACCK
    pst = lambda q: "buffer_store_dwordx2 %s, %s, %s, %s offen offset:%d%s" % (v(PK + 2 * q, 2), v(C_PW), ws, "0" if q < 2 else s(S_4K), (q & 1) * 2048, sc)
    tg = lambda q: "v_and_or_b32 %s, %s, -2, %s" % (v(PK + 2 * q), v(PK + 2 * q), s(S_TAG))
    kx = lambda ks: "buffer_load_dwordx4 %s, %s, %s, %s offen offset:%d sc1" % (v(XB + 4 * ks, 4), v(C_L16), ws, s(S_KX), ks * 1024)
    vx = lambda T: "buffer_load_dwordx4 %s, %s, %s, %s offen offset:%d sc1" % (v(VX + 4 * T, 4), v(C_L16), ws, s(S_VX), T * 1024)
    amrd = lambda u: "ds_read_b128 %s, %s offset:%d" % (v(am(u), 4), v(C_X2 if u >> 1 == 2 else am(u | 1)), L_MEMI + (u & 1) * 1024)
    q7 = lds_fetch_ins(("Q", 0, 7)) + lds_fetch_ins(("Q", 1, 7))
    k2 = lds_fetch_ins(("K", 0, 2)) + lds_fetch_ins(("K", 1, 2))
    k7 = lds_fetch_ins(("K", 0, 7)) + lds_fetch_ins(("K", 1, 7))
    of = sum([lds_fetch_ins(op) for op in OLDS], [])
    qbrd = lambda ks: "ds_read_b128 %s, %s offset:%d" % (v(QB + 4 * ks, 4), v(C_QR), 64 * ks)
    KM = XA
    kmrd = lambda ks: "ds_read_b128 %s, %s offset:%d" % (v(KM + 4 * ks, 4), v(C_QR), L_KMX - L_QX + 64 * ks)
    SX, SM = ACCQ, ACCQ + 4
    ONES, PX, PM, VM0, VM1 = XB, XB + 4, XB + 8, XB + 10, XB + 12
    TA = XB + 14
    LS, OA, OP = SX, ACCK, SM
    smx = lambda ks: mf32(SX, XB + 4 * ks, QB + 4 * ks, ks == 0)
    smm = lambda ks: mf32(SM, KM + 4 * ks, QB + 4 * ks, ks == 0)
    pf = "buffer_load_dword %s, %s, %s, %s offen sc1" % (v(JUNK), v(C_PF), ws, s(S_SLABN))
    hist = "buffer_store_dword %s, %s, %s, %s offen sc1" % (v(HPEND), v(C_MP), ws, s(S_HIST))
    zw = ["v_mov_b64 %s, 0" % v(r, 2) for r in range(AM, AM + 16, 2)]
    OOP = AM + 12
    o64 = OPT.get("o64", 1)
    if o64:
        oad = ["v_bitop3_b32 %s, %s, %s, -9 bitop3:0x28" % (v(OOP + 4 * u), v(C_FL), s(S_U0 + u)) for u in (1, 2, 3)]
    else:
        oad = ["v_xor_b32 %s, 0x%x, %s" % (v(OOP + 4 * u), u * 2048, v(C_MW)) for u in (1, 3)]
    L_OE = L_PX + 1024
    mx3 = lambda d, x, y, z_: "v_max3_u32 %s, %s, %s, %s" % (v(d), v(x), v(y), v(z_))
    mov0 = lambda r: "v_mov_b32 %s, 0" % v(r)
    early = OPT.get("early", 1)
    e(mx3(T0, AM, AM + 1, AM + 2))
    e("v_max_u32 %s, %s, %s" % (v(T0), v(T0), v(AM + 3)))
    run([
        (Q(0, 0), ["s_waitcnt vmcnt(%d)" % tr, mx3(T0, T0, AM + 4, AM + 5)]),
        (Q(1, 0), [mx3(T0, T0, AM + 6, AM + 7), "v_cmp_lt_u32 vcc, %s, %s" % (s(S_LIM), v(T0))]),
        (Q(0, 1), [mw[0]] + ([] if solo else ["s_cbranch_vccnz %s" % L("retrym")])),
        (Q(1, 1), [mw[1]]),
        (K(0, 0), [kx(0), vx(0)] if early else [kx(0)]),
        (K(1, 0), [kx(1), vx(1)] if early else [kx(1)]),
        (K(0, 1), [kx(2), kx(3)] if early else [kx(2)]),
        (K(1, 1), [lg(0), BAR, amrd(2)]),
        (V(0, 0), [amrd(3)]),
        (V(1, 0), [pf] if early else [kx(3)]),
        (V(0, 1), [amrd(4)]),
        (V(1, 1), [amrd(5), lg(3)]),
        (Q(0, 2), [amrd(6)]),
        (Q(1, 2), [amrd(7), lg(4)]),
        (Q(0, 3), [q7[0]]),
        (Q(1, 3), [q7[1], lg(4)]),
        (Q(0, 4), [q7[2]]),
        (Q(1, 4), [q7[3], lg(4)]),
        (Q(0, 5), [] if early else [vx(0)]),
        (Q(1, 5), [k2[0]]),
        (Q(0, 6), [] if early else [vx(1)]),
        (Q(1, 6), [k2[1], lg(2)]),
        (Q(0, 7), [k2[2]]),
        (Q(1, 7), [k2[3]]),
        (K(0, 3), [k7[0]]),
        (K(1, 3), [k7[1]]),
        (K(0, 4), [k7[2], add(ACCQ, 0), add(ACCQ, 1)]),
        (K(1, 4), [k7[3], add(ACCQ + 4, 0), add(ACCQ + 4, 1)]),
        (K(0, 5), [lg(4), cvt(ACCQ + 2, ACCQ, ACCQ + 4), cvt(ACCQ + 3, ACCQ + 1, ACCQ + 5)]),
        (K(0, 2), ["ds_write2_b32 %s, %s, %s offset0:0 offset1:%d" % (v(C_QW), v(ACCQ + 2), v(ACCQ + 3), RS)]),
        (K(1, 2), [] if early else [pf]),
        (K(1, 5), []),
        (K(0, 6), [hist]),
        (K(1, 6), [lg(0), BAR]),
        (K(0, 7), [qbrd(0)]),
        (K(1, 7), [qbrd(1)]),
        (V(0, 2), [qbrd(2)]),
        (V(1, 2), [qbrd(3), "s_waitcnt vmcnt(2) lgkmcnt(3)"]),
        (smx(0), [lg(2), add(ACCK, 0), add(ACCK, 1)]),
        (smx(1), [lg(1), add(ACCK + 4, 0), add(ACCK + 4, 1)]),
        (smx(2), [lg(0), cvt(ACCK + 2, ACCK, ACCK + 4), cvt(ACCK + 3, ACCK + 1, ACCK + 5)]),
        (smx(3), ["ds_write2_b32 %s, %s, %s offset0:0 offset1:%d" % (v(C_KW), v(ACCK + 2), v(ACCK + 3), RS)]),
        (V(0, 3), ["v_mov_b64 %s, %s" % (v(ONES, 2), s(S_ONES, 2))]),
        (V(1, 3), ["s_nop 1", "v_mov_b64 %s, %s" % (v(ONES + 2, 2), s(S_ONES, 2))]),
        (V(0, 4), [ex(SX)]),
        (V(1, 4), [lg(0), BAR, ex(SX + 1)]),
        (V(0, 5), [kmrd(0), ex(SX + 2)]),
        (V(1, 5), [kmrd(1), ex(SX + 3)]),
        (V(0, 6), [kmrd(2), cvt(PX, SX, SX + 1), cvt(PX + 1, SX + 2, SX + 3)]),
        (V(1, 6), [kmrd(3), "ds_write_b64 %s, %s offset:%d" % (v(C_MW), v(PX, 2), L_PX), lg(4)]),
        (smm(0), [lg(3), mov0(PM + 1), mov0(VM0 + 1)]),
        (smm(1), [lg(2), mov0(VM1 + 1), zw.pop(0)]),
        (smm(2), [lg(1), zw.pop(0), zw.pop(0)]),
        (smm(3), [lg(0), BAR]),
        (V(0, 7), ["ds_read_b64 %s, %s offset:%d" % (v(PX + 2, 2), v(C_X2), L_PX), zw.pop(0)]),
        (V(1, 7), [zw.pop(0), zw.pop(0), "v_mul_f32 %s, %s, %s" % (v(SM), s(S_SCALE), v(SM)), "v_mul_f32 %s, %s, %s" % (v(SM + 1), s(S_SCALE), v(SM + 1)),
                   ex(SM), lg(0)]),
        (mf32(LS, ONES, PX, True), [ex(SM + 1), add(ACCV, 0)]),
        (mf32(OA, VX, PX, True), [cvt(PM, SM, SM + 1), add(ACCV, 1)]),
        (mf32(OA + 4, VX + 4, PX, True), [cvt(VM0, ACCV, ACCV + 1), add(ACCV + 4, 0)]),
        (mf16(LS, ONES, PM), [add(ACCV + 4, 1), cvt(VM1, ACCV + 4, ACCV + 5)]),
        (mf16(OA, VM0, PM), [zw.pop(0), zw.pop(0)]),
        (mf16(OA + 4, VM1, PM), [oad[0], oad[1], "v_rcp_f32 %s, %s" % (v(TA), v(LS))] + oad[2:]),
    ])
    assert not zw
    e("v_max_f32 %s, %s, %s" % (v(T0), v(TA), v(LS)))
    e("v_cmp_nge_f32 vcc, %s, %s" % (s(S_BIG), v(T0)))
    for r in (0, 2, 4, 6):
        e("v_pk_mul_f32 %s, %s, %s op_sel_hi:[1,0]" % (v(OA + r, 2), v(OA + r, 2), v(TA, 2)))
    for r in (0, 2, 1, 3):
        e(cvt(OP + r, OA + r, OA + 4 + r))
    if OPT.get("pflat"):
        e("s_memtime s[74:75]")
        e("s_waitcnt vmcnt(1)")
        e("s_memtime s[72:73]")
        e("s_waitcnt lgkmcnt(0)")
    e.label(L("rejoin"))
    if o64:
        for k in range(2):
            e("v_cndmask_b32 %s, %s, %s, %s" % (v(LS + 2 + k), v(OP + k), v(OP + 2 + k), s(S_HM, 2)))
        e("ds_write_b64 %s, %s offset:%d" % (v(C_FL), v(LS + 2, 2), L_OE))
    else:
        e("ds_write_b128 %s, %s offset:%d" % (v(C_MW), v(OP, 4), L_OE))
    WACC = AM
    SO = lambda q, u: smf_ins(WACC + 4 * q, OP if u == 0 else OOP + 4 * u, ("O", q, u))
    ord_ = lambda u: "ds_read_b128 %s, %s offset:%d" % (v(OOP + 4 * u, 4), v(C_X2 if u == 2 and not o64 else OOP + 4 * u), L_OE)
    SEL, RD = ACCV, ACCV + 4
    wc = lambda q, r: cvt(PK + 2 * q + r, WACC + 4 * q + r, WACC + 4 * q + 2 + r)
    run([
        (SO(0, 0), []),
        (SO(1, 0), [lg(0), BAR, ord_(1), ord_(2)] if OPT.get("b4", 1) else []),
        (SO(2, 0), [ord_(3)] if OPT.get("b4", 1) else [lg(0), BAR, ord_(1), ord_(2)]),
        (SO(3, 0), ([] if OPT.get("b4", 1) else [ord_(3)]) + [of[0], of[1], lg(4)]),
        (SO(0, 1), [of[2], lg(4)]),
        (SO(0, 2), [of[3], lg(4)]),
        (SO(0, 3), [of[4], "s_cmp_lg_u64 vcc, 0"]),
        (SO(1, 1), [of[5], "s_cselect_b32 %s, %s, %s" % (s(S_TAG), s(S_NPAR), s(S_PAR))]),
        (SO(1, 2), [of[6], wc(0, 0)]),
        (SO(1, 3), [of[7], wc(0, 1), tg(0)]),
        (SO(2, 1), [pst(0)]),
        (SO(2, 2), [lg(4), "s_nop 0", wc(1, 0)]),
        (SO(2, 3), ["ds_read_b128 %s, %s offset:%d" % (v(SEL, 4), v(C_L16), L_SEL), wc(1, 1), tg(1)]),
        (SO(3, 1), [pst(1), lg(1)]),
        (SO(3, 2), ["s_nop 1", wc(2, 0)]),
        (SO(3, 3), ["s_nop 2", wc(2, 1), tg(2), pst(2), wc(3, 0), wc(3, 1), tg(3), pst(3)]),
    ])
    e.label(L("stored"))
    stamp(e, 1, stamps)
    e("s_cmp_lg_u32 %s, %s" % (s(S_TAG), s(S_PAR)))
    e("s_cbranch_scc1 %s" % L("safe"))
    f, z = idle_prep_ins()
    n0 = OPT.get("n0", 12)
    PD = VX
    pld = lambda P: ["buffer_load_dwordx4 %s, %s, %s, %s offen sc1" % (v(P, 4), v(C_MW), ws, s(S_PR)),
                     "buffer_load_dwordx4 %s, %s, %s, %s offen offset:1024 sc1" % (v(P + 4, 4), v(C_MW), ws, s(S_PR))]
    pub = "buffer_store_dword %s, %s, %s, %s offen%s" % (v(HPEND), v(C_MP), ws, s(S_T0), sc)
    for x in f[:n0]:
        e(x)
    delay(e, OPT.get("d1", 0))
    for q in range(1, 4):
        e("s_cmp_lt_u32 %s, %d" % (s(S_WAVE), q))
        e("s_cbranch_scc1 %s" % L("pollp"))
        delay(e, OPT.get("dp", 56))
    e.label(L("pollp"))
    stamp(e, 4, stamps and not OPT.get("pflat"))
    PB_ = AM + 16
    for x in pld(PD):
        e(x)
    for x in f[n0:] + z[4:8]:
        e(x)
    p1 = OPT.get("p1")
    if ns:
        e("s_cmp_lt_u32 %s, %d" % (s(S_WAVE), ns))
        e("s_cbranch_scc1 %s" % L("onep"))
    if not p1:
        delay(e, OPT.get("pp", 128) - (24 if ns else 0))
        for x in pld(PB_):
            e(x)
    e.label(L("prep"))
    e("s_add_u32 %s, %s, 0x%x" % (s(S_MB), s(S_SLABN), MB_IN))
    chk = lambda P: ["v_bitop3_b32 %s, %s, %s, %s bitop3:0x7e" % (v(T0), v(P), v(P + 2), s(S_PAR)),
                     "v_bitop3_b32 %s, %s, %s, %s bitop3:0x7e" % (v(FREE1), v(P + 4), v(P + 6), s(S_PAR)),
                     "v_bitop3_b32 %s, %s, %s, 1 bitop3:0xa8" % (v(T0), v(T0), v(FREE1)),
                     "v_cmp_ne_u32 vcc, 0, %s" % v(T0)]

    def finish():
        for rot in (8, 4):
            for r in (0, 1):
                e("v_add_f32_dpp %s, %s, %s row_ror:%d row_mask:0xf bank_mask:0xf" % (v(RD + r), v(RD + r), v(RD + r), rot))
        e(cvt(HPEND, RD, RD + 1))
        e(pub)

    def attempt(P, base):
        e("s_waitcnt vmcnt(%d) lgkmcnt(0)" % (base + 1))
        e(mf32(RD, SEL, P, True))
        e(chk(P)[0])
        e("s_waitcnt vmcnt(%d)" % base)
        e(mf32(RD, SEL, P + 4, False))
        for x in chk(P)[1:]:
            e(x)
        e("s_nop 2")
        e("s_cmp_eq_u64 vcc, 0")
        e("s_cselect_b32 %s, %s, %s" % (s(S_T0), s(S_HIST if solo else S_SLABN), s(S_OOB)))
        finish()
    attempt(PD, 0 if p1 else 2)
    if not solo:
        e("s_cbranch_scc1 %s" % L("gotp"))
        if p1:
            for x in pld(PB_):
                e(x)
            e(pub)
            delay(e, 96)
        e.label(L("retryp"))
        for x in pld(PD):
            e(x)
        attempt(PB_, 3)
        e("s_cbranch_scc1 %s" % L("gotp"))
        for x in pld(PB_):
            e(x)
        attempt(PD, 3)
        e("s_cbranch_scc1 %s" % L("gotp"))
        e("s_add_u32 %s, %s, 1" % (s(S_TMO), s(S_TMO)))
        e("s_cmp_le_u32 %s, %d" % (s(S_TMO), TMO_LIMIT))
        e("s_cbranch_scc1 %s" % L("retryp"))
        e("s_mov_b32 %s, %s" % (s(S_T0), s(S_SLABN)))
        e(pub)
    e.label(L("gotp"))
    stamp(e, 2, stamps)
    e("s_add_u32 %s, %s, 0x2000" % (s(S_HIST), s(S_HIST)))
    e("s_cmp_ge_u32 %s, %d" % (s(S_NEXT), nsteps))
    e("s_cbranch_scc1 %s" % L("last"))
    e("s_mov_b32 %s, %s" % (s(S_SLAB), s(S_SLABN)))
    e("s_mov_b32 %s, %s" % (s(S_STEP), s(S_NEXT)))
    e("s_mov_b32 %s, %s" % (s(S_PAR), s(S_NPAR)))
    for x in z[8:]:
        e(x)
    if trace:
        e("s_memrealtime s[100:101]")
        e("s_memtime s[70:71]")
        e("s_lshl_b32 s3, %s, 2" % s(S_H))
        e("s_add_u32 s3, s3, %s" % s(S_WAVE))
        e("s_lshl_b32 s3, s3, 6")
        e("s_add_u32 s3, s3, %s" % s(S_STEP))
        e("s_lshl_b32 s3, s3, 5")
        e("s_add_u32 s3, s3, 0x200000")
        e("s_waitcnt lgkmcnt(0)")
        for k, r in enumerate((64, 66, 68, 100, 70, 72, 74, S_TMO)):
            e("v_mov_b32 %s, %s" % (v(AM + 8 + k), s(r)))
        e("buffer_store_dwordx4 %s, off, %s, s3" % (v(AM + 8, 4), ws))
        e("buffer_store_dwordx4 %s, off, %s, s3 offset:16" % (v(AM + 12, 4), ws))
    delay(e, OPT.get("dm", 112) - (128 if trace else 0))
    if ns and OPT.get("dmx"):
        e("s_cmp_ge_u32 %s, %d" % (s(S_WAVE), ns))
        e("s_cbranch_scc1 %s" % L("firem"))
        delay(e, OPT.get("dmx"))
        e.label(L("firem"))
    stamp(e, 5, stamps and not OPT.get("pflat"))
    for x in mld:
        e(x)
    e("s_branch %s" % L("step"))
    e.label(L("last"))
    e(hist)
    e("s_branch %s" % L("done"))
    if ns:
        e.label(L("onem"))
        e("s_waitcnt vmcnt(0)")
        e("s_branch %s" % L("prem"))
        e.label(L("onep"))
        e("v_mov_b32 %s, %s" % (v(PB_), s(S_NPAR)))
        e("s_waitcnt vmcnt(0)")
        e("s_branch %s" % L("prep"))
    e.label(L("refresh"))
    e("buffer_load_dword %s, %s, %s, %s offen sc1" % (v(JUNK), v(C_PF), ws, s(S_SLAB)))
    e("s_add_u32 %s, %s, 1" % (s(S_TMO), s(S_TMO)))
    e("s_cmp_le_u32 %s, %d" % (s(S_TMO), TMO_LIMIT))
    e("s_waitcnt vmcnt(0)")
    e("s_cbranch_scc1 %s" % L("step"))
    e("s_branch %s" % L("fresh"))
    e.label(L("safe"))
    e.fence(12)
    e("s_waitcnt vmcnt(0) lgkmcnt(0)")
    e("s_barrier")
    W = AM
    for ks in range(4):
        e(qbrd(ks))
        e(kmrd(ks))
    e("s_xor_b32 %s, %s, 0x1000" % (s(S_T0), s(S_KXO)))
    e("s_add_u32 %s, %s, %s" % (s(S_T0), s(S_T0), s(S_SLAB)))
    for ks in range(4):
        e("buffer_load_dwordx4 %s, %s, %s, %s offen offset:%d sc1" % (v(W + 4 * ks, 4), v(C_L16), ws, s(S_KX), ks * 1024))
        e("buffer_load_dwordx4 %s, %s, %s, %s offen offset:%d sc1" % (v(W + 16 + 4 * ks, 4), v(C_L16), ws, s(S_T0), ks * 1024))
    e("s_waitcnt vmcnt(0) lgkmcnt(0)")
    S0, S1, S2 = ACCQ, ACCQ + 4, ACCK
    for (d, src) in ((S0, W), (S1, W + 16), (S2, XA)):
        for ks in range(4):
            e(mf32(d, src + 4 * ks, QB + 4 * ks, ks == 0))
    M0_, M1_ = W, W + 1
    e("v_mul_f32 %s, %s, %s" % (v(S2), s(S_SCALE), v(S2)))
    e("v_mul_f32 %s, %s, %s" % (v(S2 + 1), s(S_SCALE), v(S2 + 1)))
    e("v_max3_f32 %s, %s, %s, %s" % (v(M0_), v(S0), v(S0 + 1), v(S0 + 2)))
    e("v_max3_f32 %s, %s, %s, %s" % (v(M0_), v(M0_), v(S0 + 3), v(S1)))
    e("v_max3_f32 %s, %s, %s, %s" % (v(M0_), v(M0_), v(S1 + 1), v(S1 + 2)))
    e("v_max3_f32 %s, %s, %s, %s" % (v(M0_), v(M0_), v(S1 + 3), v(S2)))
    e("v_max_f32 %s, %s, %s" % (v(M0_), v(M0_), v(S2 + 1)))
    for sw in ("v_permlane16_swap_b32", "v_permlane32_swap_b32"):
        e("v_mov_b32 %s, %s" % (v(M1_), v(M0_)))
        e("%s %s, %s" % (sw, v(M0_), v(M1_)))
        e("v_max_f32 %s, %s, %s" % (v(M0_), v(M0_), v(M1_)))
    for r in [S0 + i for i in range(8)] + [S2, S2 + 1]:
        e("v_sub_f32 %s, %s, %s" % (v(r), v(r), v(M0_)))
        e(ex(r))
    for q in range(4):
        e(cvt(PX + q, S0 + 2 * q, S0 + 2 * q + 1))
    e(cvt(PM, S2, S2 + 1))
    e(mf32(LS, ONES, PX, True)); e(mf32(OA, VX, PX, True)); e(mf32(OA + 4, VX + 4, PX, True))
    e(mf16(LS, ONES, PM)); e(mf16(OA, VM0, PM)); e(mf16(OA + 4, VM1, PM))
    e("v_rcp_f32 %s, %s" % (v(TA), v(LS)))
    for r in range(8):
        e("v_mul_f32 %s, %s, %s" % (v(OA + r), v(OA + r), v(TA)))
    for r in range(4):
        e(cvt(OP + r, OA + r, OA + 4 + r))
    for r in range(AM, AM + 16):
        e(mov0(r))
    for x in oad:
        e(x)
    e("s_mov_b64 vcc, 0")
    e("s_branch %s" % L("rejoin"))
    e.label(L("done"))
```

```python
import sys
from asmlib import Emitter, v, a, s
import chain as C
for a_ in sys.argv:
    if a_.startswith('opt:'):
        k_, v_ = a_[4:].split('=')
        C.OPT[k_] = int(v_, 0) if v_.lstrip('-')[:1].isdigit() else v_.replace('_', ' ')
import worker as W
import mlp as M

BASE = "sequential_preLN__memory_aug_recurrent_mem_tr__moe_arch_mod__prompt"
K1 = BASE + "_kernel"
K2 = "route_up_kernel"
K3 = "down_kernel"
hdr = open(__import__("os").path.join(__import__("os").path.dirname(__import__("os").path.abspath(__file__)), "..", "%s.s.ref" % BASE)).read().split("\n")
hdr = [l for l in hdr[:hdr.index(next(l for l in hdr if "@launch" in l and l.startswith("; @launch")))] if "harness parses" not in l.lower() and "Override launch" not in l]
e = Emitter()
for l in hdr:
    e.raw(l)
DOC = """
Generated by gen/gen.py (hand-written generator scripts, see gen/*.py).
One persistent launch, 256 workgroups (one per CU), role = workgroup id & 7:
  0    chain: one workgroup per head keeps its Wq/Wk/Wv/Wo slices in registers + LDS and runs the 63 dependent
       memory updates.  The 8 memory rows use the sparse MFMA (8 rows x 2 k-halves or x 2 column tiles).
       Per step: partial out-projections -> reduce-scatter over the 32 workgroups -> all-gather of the new memory.
       Every hand-off word validates itself (sentinel or parity tag), readers use L1-bypassing loads.
       The chain workgroups report their XCC id at run time: only if all sit on one die the hand-off stores are
       plain (shared L2); otherwise the second copy of the loop with device-scope stores runs.
       Softmax of the memory rows exponentiates without a shift while 2^-30 <= row sum <= 2^30; a run-time check
       redoes the step with the true row maximum otherwise.
  1-6  workers (6 per head): q/k/v of the tokens, token attention (running true max), partial out-projection,
       cross-head reduction + residual + layernorm + router score, device-scope hand-offs.
  7    setup of the hand-off buffers, layernorm of x, then top-2 routing + MLP (recomputed whenever the top-2 of a
       longer token prefix changes; the final check sees all tokens).
Short waits in front of polls are back-off: early polls only slow the stores they are waiting for.
Every wait loop is bounded.
"""
for l in DOC.strip().split("\n"):
    e.raw("; " + l)
if C.OPT.get("list"):
    e.raw("; @launch kernel=%s grid=(256,1,1) block=(256,1,1) lds=%d" % (K1, C.LDS_BYTES))
else:
    e.raw("; @launch grid=(256,1,1) block=(256,1,1) lds=%d" % C.LDS_BYTES)
e.raw('.amdgcn_target "amdgcn-amd-amdhsa--gfx950"')
e.raw(".text")


def start(name):
    e.raw(".globl %s\n.p2align 8\n.type %s,@function" % (name, name))
    e.label(name)
    e.hist = []


PROF = C.OPT.get("prof", 0)


def rt(i, dbg=None):
    if not PROF:
        return
    if PROF == 2:
        if dbg is None:
            return
        e("s_cmp_lg_u32 %s, 0" % s(C.S_WAVE))
        e("s_cbranch_scc1 L_rt%d" % dbg)
        if dbg in (0, 3, 4):
            e("s_cmp_ge_u32 s2, 16")
            e("s_cbranch_scc1 L_rt%d" % dbg)
        e("s_memrealtime s[100:101]")
        e("s_waitcnt lgkmcnt(0)")
        e("s_and_b32 s100, s100, 0xffffff")
        if dbg == 0:
            e("s_sub_u32 s100, 0x1000000, s100")
        e("v_mov_b32 v14, s100")
        e("s_mov_b64 exec, 1")
        e("buffer_atomic_umax v14, off, %s, 0 offset:%d" % (s(C.S_DBG, 4), 4 * dbg))
        e("s_mov_b64 exec, -1")
        e.label("L_rt%d" % dbg)
        return
    e("s_memrealtime s[100:101]")
    e("s_lshl_b32 s3, s2, 6")
    e("s_add_u32 s3, s3, 0x%x" % C.STAMP_OFF)
    e("s_waitcnt lgkmcnt(0)")
    e("v_mov_b32 v14, s100")
    e("buffer_store_dword v14, off, %s, s3 offset:%d" % (s(C.S_WS, 4), 4 * i))
    e("s_waitcnt vmcnt(0)")


start(K1)
P = C.S_PTR
e("s_cmp_ge_u32 s2, 256")
e("s_cbranch_scc1 L_end")
e("s_load_dwordx8 %s, s[0:1], 0" % s(P, 8))
e("s_load_dwordx4 %s, s[0:1], 32" % s(P + 8, 4))
e("s_load_dwordx4 %s, s[0:1], 104" % s(P + 12, 4))
e("s_load_dwordx2 s[80:81], s[0:1], 64")
e("s_load_dwordx2 s[82:83], s[0:1], 96")
e("s_load_dwordx4 s[84:87], s[0:1], 72")
e("s_load_dwordx2 s[88:89], s[0:1], 88")
if C.OPT.get("warm", 0):
    e.comment("pull the kernel's own code into this die's L2 (it is executed mostly once, front to back)")
    e("s_getpc_b64 s[90:91]")
    e("s_and_b32 s90, s90, 0xffffff00")
    e("v_lshlrev_b32 v2, 7, v0")
    e("v_add_u32 v3, 0x8000, v2")
    e("v_min_u32 v3, CODE_LAST, v3")
    e("global_load_dword v126, v2, s[90:91]")
    e("global_load_dword v127, v3, s[90:91]")
e("v_lshrrev_b32 v1, 6, v0")
e("v_readfirstlane_b32 %s, v1" % s(C.S_WAVE))
e("s_waitcnt lgkmcnt(0)")
C.srd(e, C.S_WS, P + 14, C.WS_BYTES)
C.srd(e, C.S_DBG, P + 12, 256)
rt(0, 0)
e("s_and_b32 s3, s2, 7")
e("s_cmp_lg_u32 s3, 0")
e("s_cbranch_scc1 L_worker")
e("s_lshr_b32 %s, s2, 3" % s(C.S_H))
for _ in range(C.OPT.get("cdelay", 0)):
    e("s_sleep 36")


def chain_pre(q):
    C.xcc_publish(e, q)
    C.mem0_load(e, P + 2, C.HPEND, 104, 105, 106, C.S_W)
    q.add("m0")
    if C.OPT.get("tlb", 1):
        e.comment("touch an unused word of every slab: address translations are resolved before the chain needs them")
        e("s_mov_b32 s36, 0x%x" % C.SLAB_ST)
        e("v_mul_lo_u32 v104, v0, s36")
        e("v_mov_b32 v105, 0x%x" % C.OOB)
        e("v_cmp_lt_u32 vcc, 1, v0")
        e("v_cndmask_b32 v104, v104, v105, vcc")
        e("s_mul_i32 s36, %s, 0x%x" % (s(C.S_H), 2 * C.SLAB_ST))
        e("s_add_u32 s36, s36, 0x%x" % (C.SLAB_OFF + C.FL_IN + 0x80))
        e("buffer_load_dword v126, v104, %s, s36 offen" % s(C.S_WS, 4))
        q.add("tlb")
        e("s_mov_b32 s36, 0xf0000")
        e("buffer_load_dword v127, off, %s, s36" % s(C.S_WS, 4))
        q.add("tlb")
    C.setup_consts(e)
    C.setup_pf(e)


C.load_weights(e, P + 4, P + 6, P + 8, P + 10, pre=chain_pre)
rt(1, 1)
e("s_cmp_lg_u32 %s, 0" % s(C.S_MODE))
e("s_cbranch_scc1 L_slow_start")
C.main_loop(e, "fast", "", 63, bool(C.OPT.get("trace")))
rt(2, 2)
e("s_branch L_end")
C.main_loop(e, "slow", " sc1", 63)
e("s_branch L_end")
e.label("L_worker")


def common():
    C.srd(e, W.S_X, P, 2048 * 512 * 2)
    C.srd(e, W.S_OUT, 82, 2048 * 512 * 2)
    C.srd(e, W.S_WR, 80, 1024)
    W.setup(e)


def worker_pre(q):
    if C.OPT.get("touch", 1):
        e.comment("pull this head's Wo slice towards the last-level cache early (the chain CU streams it first)")
        C.srd(e, W.S_X, P + 10, 4096 * 512 * 2)
        e("s_lshl_b32 s24, %s, 17" % s(C.S_H))
        e("s_and_b32 s25, %s, 3" % s(W.S_R))
        e("s_lshl_b32 s25, s25, 15")
        e("s_add_u32 s24, s24, s25")
        e("v_lshlrev_b32 v30, 7, v0")
        e("buffer_load_dword v31, v30, %s, s24 offen" % s(W.S_X, 4))
        q.add("touch")
    common()


e("s_cmp_eq_u32 s3, 7")
e("s_cbranch_scc1 L_mlp")
W.ids(e)
if C.OPT.get("stag"):
    e("s_cmp_lt_u32 %s, %d" % (s(W.S_R), C.OPT.get("stagr", 1)))
    e("s_cbranch_scc1 L_go")
    for _ in range(C.OPT["stag"]):
        e("s_sleep 36")
    e.label("L_go")
W.load_w(e, P, C.OPT.get("word", "VKQ"), worker_pre)
rt(1, 3)
if PROF == 1:
    for i in range(2):
        e("v_mov_b32 v14, %s" % s(90 + i))
        e("buffer_store_dword v14, off, %s, s3 offset:%d" % (s(C.S_WS, 4), 24 + 4 * i))
W.phase1(e)
rt(2, 4)
if C.OPT.get("nop2"):
    e("s_branch L_end")
W.load_wo(e, P)
W.wait_tpinit(e)
rt(3)
W.phase2(e)
rt(4, 5)
if PROF == 1:
    for i in range(6):
        e("v_mov_b32 v14, %s" % s(44 + 2 * i))
        e("buffer_store_dword v14, off, %s, s3 offset:%d" % (s(C.S_WS, 4), 32 + 4 * i))
    e("v_mov_b32 v14, %s" % s(C.S_TMO))
    e("buffer_store_dword v14, off, %s, s3 offset:56" % s(C.S_WS, 4))
    e("v_mov_b32 v14, %s" % s(W.S_R))
    e("buffer_store_dword v14, off, %s, s3 offset:60" % s(C.S_WS, 4))
e("s_branch L_end")
e.label("L_mlp")
common()
e("s_lshr_b32 %s, s2, 3" % s(C.S_H))
W.xn_produce(e, lambda: C.init_fill(e, P + 2, W.W_MW, W.R0 + 48, 96))
rt(1)
if C.OPT.get("nop2") or C.OPT.get("nomlp"):
    e("s_branch L_end")
M.body(e, 84, 86, 88)
e.label("L_end")
if PROF:
    e("s_cmp_ge_u32 s2, 256")
    e("s_cbranch_scc1 L_end2")
    rt(5, 6)
    e.label("L_end2")
e("s_endpgm")
e.raw('.section .rodata,"a"')
for name, nv, acc in ((K1, 512, 256),):
    e.raw(""".p2align 6
.amdhsa_kernel %s
  .amdhsa_next_free_vgpr %d
  .amdhsa_next_free_sgpr 102
  .amdhsa_accum_offset %d
  .amdhsa_group_segment_fixed_size 0
  .amdhsa_kernarg_size 120
  .amdhsa_user_sgpr_count 2
  .amdhsa_user_sgpr_kernarg_segment_ptr 1
  .amdhsa_system_sgpr_workgroup_id_x 1
.end_amdhsa_kernel""" % (name, nv, acc))
out = sys.argv[1] if len(sys.argv) > 1 and not sys.argv[1].startswith("opt:") else "/code/%s.s" % BASE
import subprocess, tempfile, os, re
txt = e.text()
with tempfile.TemporaryDirectory() as td:
    open(td + "/a.s", "w").write(txt.replace("CODE_LAST", "0x12345"))
    subprocess.run(["clang", "-x", "assembler", "-target", "amdgcn-amd-amdhsa", "-mcpu=gfx950", "-c", td + "/a.s", "-o", td + "/a.o"], check=True)
    sec = subprocess.run(["llvm-readelf", "-S", td + "/a.o"], capture_output=True, text=True).stdout
    size = int(re.search(r"\.text\s+PROGBITS\s+\S+\s+\S+\s+(\S+)", sec).group(1), 16)
assert 0x8000 < size <= 0x10000
open(out, "w").write(txt.replace("CODE_LAST", "0x%x" % (size - 4)))
print("nops inserted:", e.nops_inserted, "lines:", len(e.lines), "->", out)
```

```python
from asmlib import Emitter, v, a, s
import struct

WS_BYTES = 0x10000000
PB_OFF = 0x0000000
SYNC_OFF = 0x0080000
HIST_OFF = 0x0100000
FLAG_OFF = 0x0190000
STAMP_OFF = 0x01A0000
SLAB_OFF = 0x1000000
SLAB_ST = 0x82100
MB_IN = 0x80000
FL_IN = 0x82000
OOB = 0x40000000

L_MEMI = 0
L_PX = 8192
RS = 72
L_QX = 16384
L_KMX = L_QX + 2304
L_OX = L_KMX + 2304
L_SEL = L_OX + 2048
L_WL = 32768
LDS_BYTES = 163840

S_WS = 8
S_W = 12
S_DBG = 16
S_H = 20
S_WAVE = 21
S_STEP = 22
S_SLAB = 23
S_SLABN = 24
S_KXO = 25
S_KX = 29
S_VX = 30
S_HIST = 31
S_TMO = 32
S_SCALE = 33
S_PLO = 34
S_PHI = 35
S_T0 = 36
S_T1 = 37
S_T2 = 38
S_VXO = 39
S_BIG = 40
S_PR = 6
S_MB = 7
S_4K = 26
S_PAR = 27
S_RDY = 62
S_NPAR = 28
S_TAG = 60
S_OOB = 61
S_FW = 88
S_FR = 89
S_NEXT = 90
S_SPIN = 91
S_LIM = 94
S_U0 = 95
S_HM = 92
S_W3 = 95
S_ONES = 4
S_PTR = 44
S_ST = 64

C_PF = 0
C_IDX, C_MW, C_L16, C_WL, C_QW, C_QR, C_KW, C_X2, C_PW, C_MP, FREE1, HPEND, C_FL, T0, JUNK = range(1, 16)
AM = 16
ACCQ = 48
ACCK = 56
ACCV = 64
QB = 72
XA = 88
XB = 104
VX = 120
VW = 128

TMO_LIMIT = 200000
OPT = {}


def f32bits(x):
    return struct.unpack("<I", struct.pack("<f", x))[0]


def lin(e, dst, coefs, const=0, tmp=T0, src=0):
    e("v_mov_b32 %s, 0x%x" % (v(dst), const))
    for k, c in sorted(coefs.items()):
        if c == 0:
            continue
        assert c < (1 << 24)
        e("v_bfe_u32 %s, %s, %d, 1" % (v(tmp), v(src), k))
        e("s_mov_b32 %s, 0x%x" % (s(S_T2), c))
        e("v_mad_u32_u24 %s, %s, %s, %s" % (v(dst), v(tmp), s(S_T2), v(dst)))


def srd(e, d, ptr, nbytes):
    e("s_mov_b32 %s, %s" % (s(d), s(ptr)))
    e("s_and_b32 %s, %s, 0xffff" % (s(d + 1), s(ptr + 1)))
    e("s_mov_b32 %s, 0x%x" % (s(d + 2), nbytes))
    e("s_mov_b32 %s, 0x20000" % s(d + 3))


LDS_OPS = {
    ("Q", 0, 0): XB + 0, ("Q", 1, 0): XB + 8, ("Q", 0, 1): XA + 0, ("Q", 1, 1): XA + 8,
    ("K", 0, 0): QB + 0, ("K", 1, 0): QB + 8,
    ("Q", 0, 7): XA + 0, ("Q", 1, 7): XA + 8,
    ("K", 0, 2): QB + 0, ("K", 1, 2): QB + 8,
    ("K", 0, 7): XA + 0, ("K", 1, 7): XA + 8,
    ("O", 2, 3): XA + 0, ("O", 3, 1): XA + 8, ("O", 3, 2): QB + 0, ("O", 3, 3): QB + 8,
}
OLDS = [("O", 2, 3), ("O", 3, 1), ("O", 3, 2), ("O", 3, 3)]
LDS_SLOT = {k: i for i, k in enumerate(LDS_OPS)}
ALL_OPS = [(m, T, u) for m in "QKV" for u in range(8) for T in range(2)] + [("O", q, u) for u in range(4) for q in range(4)]
RES = {}
_n = 0
for op in ALL_OPS:
    if op in LDS_OPS:
        continue
    RES[op] = ("a", _n * 8) if _n < 32 else ("v", VW + (_n - 32) * 8)
    _n += 1
assert _n == 48


def opreg(op):
    if op in LDS_OPS:
        return v(LDS_OPS[op], 8)
    k, r = RES[op]
    return (a if k == "a" else v)(r, 8)


def lds_fetch_ins(op):
    r = LDS_OPS[op]
    off = LDS_SLOT[op] * 2048
    return ["ds_read_b128 %s, %s offset:%d" % (v(r, 4), v(C_WL), off),
            "ds_read_b128 %s, %s offset:%d" % (v(r + 4, 4), v(C_WL), off + 1024)]


def lds_fetch(e, op):
    for t in lds_fetch_ins(op):
        e(t)


def rowpart(rho, b, hi=32):
    return hi * (rho >> 2) + 8 * (rho & 1) + 2 * ((rho >> 1) & 1) + b


class VmQ:
    def __init__(self, e):
        self.e, self.q = e, []

    def add(self, tag):
        self.q.append(tag)
        assert len(self.q) <= 63

    def wait(self, tag):
        if tag not in self.q:
            return
        last = len(self.q) - 1 - self.q[::-1].index(tag)
        self.e("s_waitcnt vmcnt(%d)" % (len(self.q) - 1 - last))
        self.q = self.q[last + 1:]


def staged_load(e, chunks, ptrs, srds, swz_bits, dma_k, lane_f, row_lane, blk_xor_wave, reads, side=None, pre=None, nslot=3):
    AD, AR = 16, 20
    TT = 28
    seq = OPT.get("seq", 1)
    S_LB, S_GB = 28, 3
    if seq:
        e("v_lshrrev_b32 %s, 4, v0" % v(TT))
        e("v_and_b32 %s, 15, v0" % v(AD))
        e("v_lshlrev_b32 %s, 4, %s" % (v(AD), v(AD)))
        e("v_lshl_add_u32 %s, %s, 13, %s" % (v(AD), v(TT), v(AD)))
        e("v_bfe_u32 %s, v0, 4, %d" % (v(TT + 1), swz_bits))
        e("v_lshlrev_b32 %s, 5, %s" % (v(TT + 1), v(TT + 1)))
        e("v_xor_b32 %s, %s, %s" % (v(AD), v(AD), v(TT + 1)))
        e("v_and_b32 %s, %d, v0" % (v(TT + 1), dma_k(3)))
        e("v_xor_b32 %s, %s, %s" % (v(AD), v(AD), v(TT + 1)))
        e("s_lshl_b32 %s, %s, 10" % (s(S_LB), s(S_WAVE)))
    else:
        e("v_lshrrev_b32 %s, 6, v0" % v(TT))
        e("v_bfe_u32 %s, v0, 4, 2" % v(TT + 1))
        e("v_lshl_add_u32 %s, %s, 5, %s" % (v(TT), v(TT), v(TT + 1)))
        e("v_and_b32 %s, 15, v0" % v(AD))
        e("v_lshlrev_b32 %s, 4, %s" % (v(AD), v(AD)))
        e("v_lshl_add_u32 %s, %s, 13, %s" % (v(AD), v(TT), v(AD)))
        e("v_bfe_u32 %s, v0, 4, %d" % (v(TT + 1), swz_bits))
        e("v_lshlrev_b32 %s, 5, %s" % (v(TT + 1), v(TT + 1)))
        e("v_xor_b32 %s, %s, %s" % (v(AD), v(AD), v(TT + 1)))
        for k in range(1, 4):
            e("v_xor_b32 %s, %d, %s" % (v(AD + k), dma_k(k), v(AD)))
        e("s_add_u32 %s, %s, 1" % (s(S_LB), s(S_WAVE)))
        e("s_lshl_b32 %s, %s, 15" % (s(S_LB), s(S_LB)))
    e("s_lshl_b32 %s, %s, 8" % (s(S_GB), s(S_H)))
    q = VmQ(e)
    built = set()

    def dma(c):
        m, ci = chunks[c]
        if m not in built:
            srd(e, srds[m], ptrs[m], 512 * 4096 * 2)
            built.add(m)
        for i in range(8):
            if seq:
                e("s_add_u32 m0, %s, %d" % (s(S_LB), (((i >> 1) + 1) << 15) + (c % nslot) * 8192 + (i & 1) * 4096))
                e("s_add_u32 %s, %s, 0x%x" % (s(S_T1), s(S_GB), (128 * ci + 16 * i) * 8192))
            else:
                e("s_add_u32 m0, %s, %d" % (s(S_LB), (c % nslot) * 8192 + i * 1024))
                e("s_add_u32 %s, %s, 0x%x" % (s(S_T1), s(S_GB), (128 * ci + 4 * i) * 8192))
            e("buffer_load_dwordx4 %s, %s, %s offen%s lds" % (v(AD + (0 if seq else i & 3)), s(srds[m], 4), s(S_T1), OPT.get("cnt", "") if blk_xor_wave else OPT.get("wnt", "")))
            q.add(("c", c))
    lead = OPT.get("lead", 0) if blk_xor_wave else 0
    TL = 29
    S_TR = 91

    def touch(c):
        if c >= len(chunks):
            return
        m, ci = chunks[c]
        if m not in built:
            srd(e, srds[m], ptrs[m], 512 * 4096 * 2)
            built.add(m)
        e("s_add_u32 %s, %s, 0x%x" % (s(S_T1), s(S_MB), 128 * ci * 8192))
        e("buffer_load_dword %s, %s, %s, %s offen" % (v(JUNK), v(TL), s(srds[m], 4), s(S_T1)))
        q.add(("t", c))
    if lead:
        e("v_and_b32 %s, 63, v0" % v(TL))
        e("v_lshlrev_b32 %s, 7, %s" % (v(TL), v(TL)))
        e("s_lshl_b32 %s, %s, 2" % (s(S_MB), s(S_H)))
        e("s_add_u32 %s, %s, %s" % (s(S_MB), s(S_MB), s(S_WAVE)))
        e("s_lshl_b32 %s, %s, 13" % (s(S_MB), s(S_MB)))
        for c in range(nslot + lead):
            touch(c)
    for c in range(nslot):
        dma(c)
    TT = 30
    lin(e, AR, {0: 8, 1: 16, **{k: c * 256 for k, c in row_lane.items()}})
    lin(e, TT, lane_f)
    lin(e, TT + 1, {6: 64, 7: 128})
    e("v_xor_b32 %s, %s, %s" % (v(TT), v(TT), v(TT + 1)))
    e("v_add_u32 %s, %s, %s" % (v(TT), v(TT), v(AR)))
    for k in range(4):
        if blk_xor_wave:
            e("s_xor_b32 %s, %s, %d" % (s(S_T0), s(S_WAVE), k))
            e("s_add_u32 %s, %s, 1" % (s(S_T0), s(S_T0)))
            e("s_lshl_b32 %s, %s, 15" % (s(S_T0), s(S_T0)))
            e("v_add_u32 %s, %s, %s" % (v(AR + 2 * k), s(S_T0), v(TT)))
        else:
            e("v_add_u32 %s, 0x%x, %s" % (v(AR + 2 * k), (k + 1) << 15, v(TT)))
        e("v_xor_b32 %s, 32, %s" % (v(AR + 2 * k + 1), v(AR + 2 * k)))
    if pre:
        pre(q)
    for c, (m, ci) in enumerate(chunks):
        if side:
            side(c, q)
        q.wait(("c", c))
        e("s_barrier")
        for n_, (dst, k, T, ro) in enumerate(reads(m, ci)):
            if n_ == 12:
                e("s_waitcnt lgkmcnt(4)")
            e("ds_read_b64_tr_b16 %s, %s offset:%d" % (dst, v(AR + 2 * k + T), (c % nslot) * 8192 + ro * 256))
        e("s_waitcnt lgkmcnt(0)")
        e("s_barrier")
        if lead:
            touch(c + nslot + lead)
        if c + nslot < len(chunks):
            dma(c + nslot)
    return q


HOLD = {op: 32 + 8 * i for i, op in enumerate(o for o in LDS_OPS if o[0] != "O")}


def load_weights(e, P_WQ, P_WK, P_WV, P_WO, pre=None, mid=None):
    e.comment("---- load weight operands: Wq/Wk/Wv by LDS-DMA + transposing reads, Wo by dword loads + v_perm")
    VOFO = FREE1
    RING, TMP8 = 32, 120
    ptr = {"Q": P_WQ, "K": P_WK, "V": P_WV, "O": P_WO}
    SRDS = {"Q": 96, "K": 88, "V": 60, "O": 92}
    S_OB = 29

    def pre2(q):
        lin(e, VOFO, {0: 4, 1: 8, 2: 16, 3: 32, 4: 2 * 1024, 5: 4 * 1024, 6: 256, 7: 512})
        srd(e, SRDS["O"], ptr["O"], 512 * 4096 * 2)
        e("s_lshl_b32 %s, %s, 17" % (s(S_OB), s(S_H)))
        o_issue(0, q)
        pre(q)

    def reads(m, ci):
        tau, hi = ci >> 1, ci & 1
        out = []
        for k in range(4):
            u = 2 * k + tau
            for T in range(2):
                op = (m, T, u)
                for pr in range(2):
                    if op in HOLD:
                        dst = v(HOLD[op] + 4 * hi + 2 * pr, 2)
                    else:
                        kind, r = RES[op]
                        dst = (a if kind == "a" else v)(r + 4 * hi + 2 * pr, 2)
                    out.append((dst, k, T, 2 * pr))
        return out

    GORD = [7, 5, 3, 6, 4, 2, 1, 0]

    def o_issue(gi, q):
        g = GORD[gi]
        u = g >> 1
        base = (32, 48, 80)[gi % 3]
        e("s_xor_b32 %s, %s, %d" % (s(S_T0), s(S_WAVE), u))
        e("s_lshl_b32 %s, %s, 15" % (s(S_T0), s(S_T0)))
        e("s_add_u32 %s, %s, %s" % (s(S_T0), s(S_T0), s(S_OB)))
        for k in range(2):
            qq = 2 * (g & 1) + k
            for pr in range(4):
                for b in range(2):
                    row = 16 * b + 8 * (pr >> 1) + (pr & 1)
                    e("s_add_u32 %s, %s, 0x%x" % (s(S_T1), s(S_T0), row * 1024 + qq * 64))
                    e("buffer_load_dword %s, %s, %s, %s offen%s" % (v(base + k * 8 + pr * 2 + b), v(VOFO), s(SRDS["O"], 4), s(S_T1), OPT.get("ont", "")))
                    q.add(("o", g))

    def o_consume(gi, q):
        g = GORD[gi]
        q.wait(("o", g))
        base = (32, 48, 80)[gi % 3]
        for k in range(2):
            op = ("O", 2 * (g & 1) + k, g >> 1)
            dst = TMP8 if op in LDS_OPS else RES[op][1]
            assert op in LDS_OPS or RES[op][0] == "v"
            for pr in range(4):
                for hf in range(2):
                    e("v_perm_b32 %s, %s, %s, %s" % (v(dst + 2 * pr + hf), v(base + k * 8 + 2 * pr + 1), v(base + k * 8 + 2 * pr), s(S_PHI if hf else S_PLO)))
            if op in LDS_OPS:
                off = LDS_SLOT[op] * 2048
                assert off >= 24576
                e("ds_write_b128 %s, %s offset:%d" % (v(C_WL), v(TMP8, 4), off))
                e("ds_write_b128 %s, %s offset:%d" % (v(C_WL), v(TMP8 + 4, 4), off + 1024))
                e("s_waitcnt lgkmcnt(0)")

    def side(c, q):
        if 2 <= c < 10 and not OPT.get("noo"):
            o_consume(c - 2, q)
        if 1 <= c < 8 and not OPT.get("noo"):
            o_issue(c, q)
        early_start(e, c, q)

    chunks = [(m, ci) for m in "VKQ" for ci in range(4)]
    staged_load(e, chunks, ptr, SRDS, 1, lambda k: k << 6, {2: 32, 4: 64, 3: 128}, {5: 16, 3: 8, 4: 4, 2: 1}, True, reads, side, pre2, OPT.get("nslot", 3))
    for op, r in HOLD.items():
        off = LDS_SLOT[op] * 2048
        e("ds_write_b128 %s, %s offset:%d" % (v(C_WL), v(r, 4), off))
        e("ds_write_b128 %s, %s offset:%d" % (v(C_WL), v(r + 4, 4), off + 1024))
        if LDS_SLOT[op] % 4 == 3:
            e("s_waitcnt lgkmcnt(0)")
    e("s_waitcnt lgkmcnt(0)")


def setup_consts(e):
    T1, T2 = 104, 105
    AM = 100
    lin(e, C_IDX, {1: 0xEEEE - 0x4444}, 0x4444)
    lin(e, C_L16, {k: 16 << k for k in range(6)})
    lin(e, C_MW, {**{k: 16 << k for k in range(6)}, 6: 2048, 7: 4096})
    lin(e, C_WL, {**{k: 16 << k for k in range(6)}, 6: 32768, 7: 65536}, L_WL)
    lin(e, C_QW, {0: 4, 1: 8, 2: 16, 3: 32, 4: 2 * RS * 4, 5: 4 * RS * 4, 6: 64, 7: 128}, L_QX)
    lin(e, C_QR, {0: RS * 4, 2: 2 * RS * 4, 3: 4 * RS * 4, 4: 16, 5: 32}, L_QX)
    e("v_add_u32 %s, %d, %s" % (v(C_KW), L_KMX - L_QX, v(C_QW)))
    e("v_xor_b32 %s, 0x1000, %s" % (v(C_X2), v(C_MW)))
    lin(e, T1, {3: 1, 4: 2, 5: 4, 6: 8, 7: 16})
    e("v_add_u32 %s, %s, %s" % (v(T1), s(S_H), v(T1)))
    e("v_and_b32 %s, 31, %s" % (v(T1), v(T1)))
    e("v_lshlrev_b32 %s, 6, %s" % (v(T1), v(T1)))
    lin(e, C_PW, {0: 8, 1: 16, 2: 32, 3: 8192, 4: 2 * 8192, 5: 4 * 8192, 6: 8 * 8192, 7: 16 * 8192}, PB_OFF)
    e("v_add_u32 %s, %s, %s" % (v(C_PW), v(C_PW), v(T1)))
    mp_addr(e, C_MP, T1, T2)
    lin(e, C_FL, {0: 16, 1: 8, 2: 32, 3: 64, 4: 128, 5: 256, 6: 2048, 7: 4096})
    e("s_lshl_b32 %s, %s, 13" % (s(S_PR), s(S_H)))
    e("s_add_u32 %s, %s, 0x%x" % (s(S_PR), s(S_PR), PB_OFF))
    e("s_mov_b32 %s, 4096" % s(S_4K))
    e("v_and_b32 %s, 15, v0" % v(T1))
    for q in range(4):
        e("v_mov_b32 %s, 0" % v(AM + q))
        e("v_mov_b32 %s, 0x3f80" % v(T2))
        e("v_cmp_eq_u32 vcc, %d, %s" % (4 * q, v(T1)))
        e("v_cndmask_b32 %s, %s, %s, vcc" % (v(AM + q), v(AM + q), v(T2)))
        e("v_mov_b32 %s, 0x3f800000" % v(T2))
        e("v_cmp_eq_u32 vcc, %d, %s" % (4 * q + 1, v(T1)))
        e("v_cndmask_b32 %s, %s, %s, vcc" % (v(AM + q), v(AM + q), v(T2)))
    e("ds_write_b128 %s, %s offset:%d" % (v(C_L16), v(AM, 4), L_SEL))
    e("s_mov_b32 %s, 0x05040100" % s(S_PLO))
    e("s_mov_b32 %s, 0x07060302" % s(S_PHI))
    e("s_mov_b32 %s, 0x%x" % (s(S_SCALE), f32bits(128 ** -0.5 * 1.4426950408889634)))
    e("s_mov_b32 %s, 0x%x" % (s(S_BIG), f32bits(OPT.get('big', 2.0 ** 30))))
    e("s_mov_b32 %s, 0" % s(S_TMO))
    e("s_mov_b32 %s, 0x3f803f80" % s(S_ONES))
    e("s_mov_b32 %s, 0x3f803f80" % s(S_ONES + 1))
    e("s_lshl_b32 %s, %s, 14" % (s(S_T0), s(S_H)))
    e("s_lshr_b32 %s, %s, 1" % (s(S_T1), s(S_WAVE)))
    e("s_lshl_b32 %s, %s, 12" % (s(S_T1), s(S_T1)))
    e("s_add_u32 %s, %s, %s" % (s(S_KXO), s(S_T0), s(S_T1)))
    e("s_lshl_b32 %s, %s, 11" % (s(S_T1), s(S_WAVE)))
    e("s_add_u32 %s, %s, %s" % (s(S_VXO), s(S_T0), s(S_T1)))
    e("s_add_u32 %s, %s, 8192" % (s(S_VXO), s(S_VXO)))


def setup_pf(e):
    T1, T2 = 104, 105
    lin(e, T1, {0: 128, 1: 256, 2: 512, 3: 1024, 4: 2048, 6: 4096, 7: 8192})
    e("s_lshl_b32 %s, %s, 14" % (s(S_T0), s(S_H)))
    e("v_add_u32 %s, %s, %s" % (v(T1), s(S_T0), v(T1)))
    e("s_lshl_b32 %s, %s, 8" % (s(S_T0), s(S_H)))
    e("s_lshr_b32 %s, %s, 1" % (s(S_T1), s(S_WAVE)))
    e("s_lshl_b32 %s, %s, 7" % (s(S_T1), s(S_T1)))
    e("s_add_u32 %s, %s, %s" % (s(S_T0), s(S_T0), s(S_T1)))
    e("s_add_u32 %s, %s, 0x%x" % (s(S_T0), s(S_T0), SLAB_ST + MB_IN))
    e("v_and_b32 %s, 63, v0" % v(T0))
    e("v_mov_b32 %s, 0x%x" % (v(T2), OOB))
    e("v_cmp_lt_u32 vcc, 32, %s" % v(T0))
    e("v_cndmask_b32 %s, %s, %s, vcc" % (v(T1), v(T1), v(T2)))
    e("v_mov_b32 %s, %s" % (v(T2), s(S_T0)))
    e("v_cmp_eq_u32 vcc, 32, %s" % v(T0))
    e("v_cndmask_b32 %s, %s, %s, vcc" % (v(T1), v(T1), v(T2)))
    e("s_lshl_b32 %s, %s, 2" % (s(S_T0), s(S_H)))
    e("s_add_u32 %s, %s, 0x%x" % (s(S_T0), s(S_T0), SLAB_ST + FL_IN))
    e("v_mov_b32 %s, %s" % (v(T2), s(S_T0)))
    e("v_cmp_eq_u32 vcc, 33, %s" % v(T0))
    e("v_cndmask_b32 %s, %s, %s, vcc" % (v(C_PF), v(T1), v(T2)))


def mp_addr(e, dst, T1, T2):
    lin(e, dst, {0: 8, 1: 32, 4: 16, 5: 4, 6: 2048, 7: 4096}, MB_IN)
    e("v_mov_b32 %s, %s" % (v(T2), s(S_H)))
    lin(e, T1, {0: 256, 1: 64, 2: 128, 3: 512, 4: 1024}, src=T2)
    e("v_add_u32 %s, %s, %s" % (v(dst), v(T1), v(dst)))
    e("v_and_b32 %s, 12, v0" % v(T1))
    e("v_cmp_ne_u32 vcc, 0, %s" % v(T1))
    e("v_mov_b32 %s, 0x%x" % (v(T1), OOB))
    e("v_cndmask_b32 %s, %s, %s, vcc" % (v(dst), v(dst), v(T1)))


def mem0_load(e, P_MEM0, dst, T1, T2, TH, SR):
    srd(e, SR, P_MEM0, 8192)
    lin(e, T1, {0: 8, 1: 16, 2: 0x10000, 3: 0x10000, 4: 1024, 5: 4, 6: 64, 7: 128})
    e("v_mov_b32 %s, %s" % (v(TH), s(S_H)))
    lin(e, T2, {0: 32, 1: 2048, 2: 4096, 3: 256, 4: 512}, src=TH)
    e("v_add_u32 %s, %s, %s" % (v(T1), v(T1), v(T2)))
    e("buffer_load_dword %s, %s, %s, 0 offen" % (v(dst), v(T1), s(SR, 4)))


def init_fill(e, P_MEM0, MW, B, SR):
    M1, T1, T2, TH, MP, HP = B, B + 4, B + 5, B + 6, B + 7, B + 8
    ws = s(S_WS, 4)
    mem0_load(e, P_MEM0, HP, T1, T2, TH, SR)
    for k in range(4):
        e("v_mov_b32 %s, -1" % v(M1 + k))

    def fill8k(so):
        e("buffer_store_dwordx4 %s, %s, %s, %s offen sc1" % (v(M1, 4), v(MW), ws, s(so)))
        e("buffer_store_dwordx4 %s, %s, %s, %s offen offset:1024 sc1" % (v(M1, 4), v(MW), ws, s(so)))
    e("s_lshl_b32 %s, %s, 13" % (s(S_T0), s(S_H)))
    e("s_add_u32 %s, %s, 0x%x" % (s(S_T0), s(S_T0), PB_OFF))
    fill8k(S_T0)
    e("s_lshl_b32 %s, %s, 14" % (s(S_T0), s(S_H)))
    e("s_add_u32 %s, %s, 0x%x" % (s(S_T0), s(S_T0), HIST_OFF))
    e("s_add_u32 %s, %s, 0x2000" % (s(S_T1), s(S_T0)))
    fill8k(S_T0); fill8k(S_T1)
    e("s_mul_i32 %s, %s, 0x%x" % (s(S_T0), s(S_H), 2 * SLAB_ST))
    e("s_add_u32 %s, %s, 0x%x" % (s(S_T0), s(S_T0), SLAB_OFF + SLAB_ST + MB_IN + (0x4000000 if OPT.get("solo") else 0)))
    e("s_add_u32 %s, %s, 0x%x" % (s(S_T1), s(S_T0), SLAB_ST))
    fill8k(S_T0); fill8k(S_T1)
    e("v_lshlrev_b32 %s, 2, v0" % v(T1))
    e("s_lshl_b32 %s, %s, 10" % (s(S_T0), s(S_H)))
    for base in (FLAG_OFF + 0x4000, 0x1B0000, 0x1B8000):
        e("s_add_u32 %s, %s, 0x%x" % (s(S_T1), s(S_T0), base))
        e("buffer_store_dword %s, %s, %s, %s offen sc1" % (v(M1), v(T1), ws, s(S_T1)))
    e("v_mov_b32 %s, 0x%x" % (v(T2), OOB))
    e("v_cmp_lt_u32 vcc, 63, v0")
    e("v_cndmask_b32 %s, %s, %s, vcc" % (v(T1), v(T1), v(T2)))
    e("v_mov_b32 %s, %d" % (v(M1 + 9), 0 if OPT.get("kvflags", 1) else 1))
    e("s_lshl_b32 %s, %s, 8" % (s(S_T0), s(S_H)))
    e("s_add_u32 %s, %s, 0x%x" % (s(S_T1), s(S_T0), FLAG_OFF + 0x2000))
    e("buffer_store_dword %s, %s, %s, %s offen sc1" % (v(M1 + 9), v(T1), ws, s(S_T1)))
    e("s_mul_i32 %s, %s, 0x%x" % (s(S_T0), s(S_H), 2 * SLAB_ST))
    e("s_add_u32 %s, %s, 0x%x" % (s(S_T0), s(S_T0), SLAB_OFF + FL_IN))
    e("s_add_u32 %s, %s, 0x%x" % (s(S_T1), s(S_T0), SLAB_ST))
    e("buffer_store_dword %s, %s, %s, %s offen sc1" % (v(M1 + 9), v(T1), ws, s(S_T0)))
    e("buffer_store_dword %s, %s, %s, %s offen sc1" % (v(M1 + 9), v(T1), ws, s(S_T1)))
    mp_addr(e, MP, T1, T2)
    e("s_waitcnt vmcnt(16)")
    e("s_mov_b32 %s, 0x%x" % (s(S_T0), SLAB_OFF))
    e("buffer_store_dword %s, %s, %s, %s offen sc1" % (v(HP), v(MP), ws, s(S_T0)))


def ready_publish(e, T1, T2):
    e("s_waitcnt vmcnt(0)")
    e("s_barrier")
    e("v_mov_b32 %s, 1" % v(T1))
    e("s_lshl_b32 %s, %s, 2" % (s(S_T1), s(S_H)))
    e("v_lshlrev_b32 %s, 20, v0" % v(T2))
    e("buffer_store_dword %s, %s, %s, %s offen sc1" % (v(T1), v(T2), s(S_DBG, 4), s(S_T1)))


def xcc_publish(e, q):
    T1, T2 = 30, 31
    e("s_getreg_b32 %s, hwreg(HW_REG_XCC_ID)" % s(S_T0))
    e("s_and_b32 %s, %s, 15" % (s(S_T0), s(S_T0)))
    e("s_or_b32 %s, %s, 0x100" % (s(S_T0), s(S_T0)))
    e("v_mov_b32 %s, %s" % (v(T1), s(S_T0)))
    e("s_lshl_b32 %s, %s, 2" % (s(S_T1), s(S_H)))
    e("v_lshlrev_b32 %s, 20, v0" % v(T2))
    e("buffer_store_dword %s, %s, %s, %s offen offset:128 sc1" % (v(T1), v(T2), s(S_DBG, 4), s(S_T1)))
    q.add("hs")


S_MODE = 41


def early_start(e, c, q):
    T1, T2 = 30, 31
    ws = s(S_WS, 4)
    hsl = "buffer_load_dword %s, %s, %s, 0 offen sc1" % (v(T1), v(T2), s(S_DBG, 4))
    pfi = lambda: e("buffer_load_dword %s, %s, %s, %s offen sc1" % (v(JUNK), v(C_PF), ws, s(S_MB)))
    if c == 8:
        e("v_lshrrev_b32 %s, 2, %s" % (v(T2), v(C_L16)))
        e(hsl)
        q.add("hs2")
    if c == 9:
        e.comment("---- buffers initialised (debug[0..31]) and all 32 chain workgroups reported their XCC id (debug[32..63]);")
        q.wait("hs2")
        e("s_mov_b32 %s, 1" % s(S_MODE))
        e.label("L_HS")
        e("v_cmp_eq_u32 vcc, 0, %s" % v(T1))
        e("s_cbranch_vccz L_HS_ok")
        e(hsl)
        e("s_add_u32 %s, %s, 1" % (s(S_TMO), s(S_TMO)))
        e("s_cmp_gt_u32 %s, %d" % (s(S_TMO), TMO_LIMIT))
        e("s_waitcnt vmcnt(0)")
        e("s_cbranch_scc0 L_HS")
        e("s_branch L_HS_done")
        e.label("L_HS_ok")
        e("v_readlane_b32 %s, %s, 63" % (s(S_T0), v(T1)))
        e("v_cmp_ne_u32 vcc, %s, %s" % (s(S_T0), v(T1)))
        e("s_nop 1")
        e("s_cmp_lg_u32 vcc_hi, 0")
        e("s_cselect_b32 %s, 1, %d" % (s(S_MODE), OPT.get("forceslow", 0)))
        e.label("L_HS_done")
        e("s_mov_b32 %s, 0x%x" % (s(S_MB), SLAB_OFF - SLAB_ST))
        pfi()
        q.add("pf0")
    if c == 11:
        q.wait("pf0")
        e.label("L_F0")
        e("v_readlane_b32 %s, %s, 33" % (s(S_T0), v(JUNK)))
        e("s_nop 1")
        e("s_cmp_lg_u32 %s, 0" % s(S_T0))
        e("s_cbranch_scc1 L_F0_ok")
        pfi()
        e("s_add_u32 %s, %s, 1" % (s(S_TMO), s(S_TMO)))
        e("s_cmp_gt_u32 %s, %d" % (s(S_TMO), TMO_LIMIT))
        e("s_waitcnt vmcnt(0)")
        e("s_cbranch_scc0 L_F0")
        e.label("L_F0_ok")
        e("s_mov_b32 %s, 0x%x" % (s(S_MB), SLAB_OFF))
        pfi()
        q.add("pf1")


def smf_ins(acc, aop, op):
    return "v_smfmac_f32_16x16x64_bf16 %s, %s, %s, %s" % (v(acc, 4), v(aop, 4), opreg(op), v(C_IDX))


def stamp(e, i, on):
    if on:
        e("s_memtime %s" % s(S_ST + 2 * i, 2))


am = lambda u: AM + 4 * u


def idle_prep_ins():
    out = []
    for op in (("Q", 0, 0), ("Q", 1, 0), ("Q", 0, 1), ("Q", 1, 1), ("K", 0, 0), ("K", 1, 0)):
        out += lds_fetch_ins(op)
    z = ["v_mov_b64 %s, 0" % v(r, 2) for r in range(ACCQ, ACCQ + 24, 2)]
    return out, z


def delay(e, cyc):
    n = cyc // 4
    while n > 0:
        k = min(n, 16)
        e("s_nop %d" % (k - 1))
        n -= k


def main_loop(e, tag, sc, nsteps, stamps=False):
    L = lambda n: "L_%s_%s" % (tag, n)
    ws = s(S_WS, 4)
    solo = OPT.get("solo")
    trace = OPT.get("trace")
    acc = {"Q": ACCQ, "K": ACCK, "V": ACCV}
    S = lambda m, T, u: smf_ins(acc[m] + 4 * T, am(u), (m, T, u))
    Q = lambda T, u: S("Q", T, u)
    K = lambda T, u: S("K", T, u)
    V = lambda T, u: S("V", T, u)
    lg = lambda n: "s_waitcnt lgkmcnt(%d)" % n
    BAR = "s_barrier"
    add = lambda b, r: "v_add_f32 %s, %s, %s" % (v(b + r), v(b + r), v(b + r + 2))
    cvt = lambda d, x, y: "v_cvt_pk_bf16_f32 %s, %s, %s" % (v(d), v(x), v(y))
    ex = lambda r: "v_exp_f32 %s, %s" % (v(r), v(r))
    mf32 = lambda d, A, B, first: "v_mfma_f32_16x16x32_bf16 %s, %s, %s, %s" % (v(d, 4), v(A, 4), v(B, 4), "0" if first else v(d, 4))
    mf16 = lambda d, A, B: "v_mfma_f32_16x16x16_bf16 %s, %s, %s, %s" % (v(d, 4), v(A, 2), v(B, 2), v(d, 4))

    def run(sched, extra=None):
        for i_, (m_, rest) in enumerate(sched):
            e(m_)
            for x in (extra or {}).get(i_, []) + rest:
                if x.endswith(":"):
                    e.label(x[:-1])
                else:
                    e(x)
    e.label(L("start"))
    e("s_mov_b32 %s, 0" % s(S_STEP))
    e("s_mov_b32 %s, 0x%x" % (s(S_SLAB), SLAB_OFF))
    e("s_mov_b32 %s, 0" % s(S_PAR))
    e("s_mov_b32 %s, 0x%x" % (s(S_HIST), HIST_OFF - MB_IN))
    e("s_mov_b32 %s, 0x%x" % (s(S_OOB), OOB))
    for u in (1, 2, 3):
        e("s_mov_b32 %s, 0x%x" % (s(S_U0 + u), u * 2048))
    e("s_mov_b32 %s, 0xcccccccc" % s(S_HM))
    e("s_mov_b32 %s, 0xcccccccc" % s(S_HM + 1))
    e("s_mov_b32 %s, 0" % s(S_SPIN))
    f, z = idle_prep_ins()
    for t in f + z:
        e(t)
    mldp = lambda P: ["buffer_load_dwordx4 %s, %s, %s, %s offen sc1" % (v(P, 4), v(C_MW), ws, s(S_MB)),
                      "buffer_load_dwordx4 %s, %s, %s, %s offen offset:1024 sc1" % (v(P + 4, 4), v(C_MW), ws, s(S_MB))]
    mld = mldp(AM)
    e("s_add_u32 %s, %s, 0x%x" % (s(S_MB), s(S_SLAB), MB_IN))
    for t in mld:
        e(t)
    e("s_waitcnt vmcnt(2)")
    e.label(L("step"))
    e("v_readlane_b32 %s, %s, 33" % (s(S_T0), v(JUNK)))
    e("s_add_u32 %s, %s, 0x%x" % (s(S_SLABN), s(S_SLAB), SLAB_ST))
    e("s_cmp_eq_u32 %s, 0" % s(S_T0))
    e("s_cbranch_scc1 %s" % L("refresh"))
    e.label(L("fresh"))
    e("s_add_u32 %s, %s, %s" % (s(S_KX), s(S_SLAB), s(S_KXO)))
    e("s_add_u32 %s, %s, %s" % (s(S_VX), s(S_SLAB), s(S_VXO)))
    e("s_xor_b32 %s, %s, 1" % (s(S_NPAR), s(S_PAR)))
    e("s_add_u32 %s, %s, 1" % (s(S_NEXT), s(S_STEP)))
    tr = 2
    if OPT.get("m3"):
        tr = 4
        delay(e, OPT.get("pm0", 0))
        for x in mld:
            e(x)
    ns = OPT.get("ns", 0)
    if ns:
        e("s_cmp_lt_u32 %s, %d" % (s(S_WAVE), ns))
        e("s_cbranch_scc1 %s" % L("onem"))
    delay(e, OPT.get("pm", 64) - (24 if ns else 0))
    e.label(L("retrym"))
    for x in mld:
        e(x)
    e.label(L("prem"))
    e("s_add_u32 %s, %s, 1" % (s(S_TMO), s(S_TMO)))
    e("s_cmp_gt_u32 %s, %d" % (s(S_TMO), TMO_LIMIT))
    e("s_cselect_b32 %s, -1, -2" % s(S_LIM))
    e("v_xor_b32 %s, 0x800, %s" % (v(am(3)), v(C_MW)))
    e("v_xor_b32 %s, 0x1800, %s" % (v(am(7)), v(C_MW)))
    for x in z[:4]:
        e(x)
    e.label(L("waitm"))
    e("s_waitcnt vmcnt(%d) lgkmcnt(0)" % (1 + tr))
    e.label(L("gotm"))
    stamp(e, 0, stamps)
    T1 = am(2)
    mw = ["ds_write_b128 %s, %s offset:%d" % (v(C_MW), v(am(k), 4), L_MEMI + 1024 * k) for k in range(2)]
    PK = ACCK
    pst = lambda q: "buffer_store_dwordx2 %s, %s, %s, %s offen offset:%d%s" % (v(PK + 2 * q, 2), v(C_PW), ws, "0" if q < 2 else s(S_4K), (q & 1) * 2048, sc)
    tg = lambda q: "v_and_or_b32 %s, %s, -2, %s" % (v(PK + 2 * q), v(PK + 2 * q), s(S_TAG))
    kx = lambda ks: "buffer_load_dwordx4 %s, %s, %s, %s offen offset:%d sc1" % (v(XB + 4 * ks, 4), v(C_L16), ws, s(S_KX), ks * 1024)
    vx = lambda T: "buffer_load_dwordx4 %s, %s, %s, %s offen offset:%d sc1" % (v(VX + 4 * T, 4), v(C_L16), ws, s(S_VX), T * 1024)
    amrd = lambda u: "ds_read_b128 %s, %s offset:%d" % (v(am(u), 4), v(C_X2 if u >> 1 == 2 else am(u | 1)), L_MEMI + (u & 1) * 1024)
    q7 = lds_fetch_ins(("Q", 0, 7)) + lds_fetch_ins(("Q", 1, 7))
    k2 = lds_fetch_ins(("K", 0, 2)) + lds_fetch_ins(("K", 1, 2))
    k7 = lds_fetch_ins(("K", 0, 7)) + lds_fetch_ins(("K", 1, 7))
    of = sum([lds_fetch_ins(op) for op in OLDS], [])
    qbrd = lambda ks: "ds_read_b128 %s, %s offset:%d" % (v(QB + 4 * ks, 4), v(C_QR), 64 * ks)
    KM = XA
    kmrd = lambda ks: "ds_read_b128 %s, %s offset:%d" % (v(KM + 4 * ks, 4), v(C_QR), L_KMX - L_QX + 64 * ks)
    SX, SM = ACCQ, ACCQ + 4
    ONES, PX, PM, VM0, VM1 = XB, XB + 4, XB + 8, XB + 10, XB + 12
    TA = XB + 14
    LS, OA, OP = SX, ACCK, SM
    smx = lambda ks: mf32(SX, XB + 4 * ks, QB + 4 * ks, ks == 0)
    smm = lambda ks: mf32(SM, KM + 4 * ks, QB + 4 * ks, ks == 0)
    pf = "buffer_load_dword %s, %s, %s, %s offen sc1" % (v(JUNK), v(C_PF), ws, s(S_SLABN))
    hist = "buffer_store_dword %s, %s, %s, %s offen sc1" % (v(HPEND), v(C_MP), ws, s(S_HIST))
    zw = ["v_mov_b64 %s, 0" % v(r, 2) for r in range(AM, AM + 16, 2)]
    OOP = AM + 12
    o64 = OPT.get("o64", 1)
    if o64:
        oad = ["v_bitop3_b32 %s, %s, %s, -9 bitop3:0x28" % (v(OOP + 4 * u), v(C_FL), s(S_U0 + u)) for u in (1, 2, 3)]
    else:
        oad = ["v_xor_b32 %s, 0x%x, %s" % (v(OOP + 4 * u), u * 2048, v(C_MW)) for u in (1, 3)]
    L_OE = L_PX + 1024
    mx3 = lambda d, x, y, z_: "v_max3_u32 %s, %s, %s, %s" % (v(d), v(x), v(y), v(z_))
    mov0 = lambda r: "v_mov_b32 %s, 0" % v(r)
    early = OPT.get("early", 1)
    e(mx3(T0, AM, AM + 1, AM + 2))
    e("v_max_u32 %s, %s, %s" % (v(T0), v(T0), v(AM + 3)))
    run([
        (Q(0, 0), ["s_waitcnt vmcnt(%d)" % tr, mx3(T0, T0, AM + 4, AM + 5)]),
        (Q(1, 0), [mx3(T0, T0, AM + 6, AM + 7), "v_cmp_lt_u32 vcc, %s, %s" % (s(S_LIM), v(T0))]),
        (Q(0, 1), [mw[0]] + ([] if solo else ["s_cbranch_vccnz %s" % L("retrym")])),
        (Q(1, 1), [mw[1]]),
        (K(0, 0), [kx(0), vx(0)] if early else [kx(0)]),
        (K(1, 0), [kx(1), vx(1)] if early else [kx(1)]),
        (K(0, 1), [kx(2), kx(3)] if early else [kx(2)]),
        (K(1, 1), [lg(0), BAR, amrd(2)]),
        (V(0, 0), [amrd(3)]),
        (V(1, 0), [pf] if early else [kx(3)]),
        (V(0, 1), [amrd(4)]),
        (V(1, 1), [amrd(5), lg(3)]),
        (Q(0, 2), [amrd(6)]),
        (Q(1, 2), [amrd(7), lg(4)]),
        (Q(0, 3), [q7[0]]),
        (Q(1, 3), [q7[1], lg(4)]),
        (Q(0, 4), [q7[2]]),
        (Q(1, 4), [q7[3], lg(4)]),
        (Q(0, 5), [] if early else [vx(0)]),
        (Q(1, 5), [k2[0]]),
        (Q(0, 6), [] if early else [vx(1)]),
        (Q(1, 6), [k2[1], lg(2)]),
        (Q(0, 7), [k2[2]]),
        (Q(1, 7), [k2[3]]),
        (K(0, 3), [k7[0]]),
        (K(1, 3), [k7[1]]),
        (K(0, 4), [k7[2], add(ACCQ, 0), add(ACCQ, 1)]),
        (K(1, 4), [k7[3], add(ACCQ + 4, 0), add(ACCQ + 4, 1)]),
        (K(0, 5), [lg(4), cvt(ACCQ + 2, ACCQ, ACCQ + 4), cvt(ACCQ + 3, ACCQ + 1, ACCQ + 5)]),
        (K(0, 2), ["ds_write2_b32 %s, %s, %s offset0:0 offset1:%d" % (v(C_QW), v(ACCQ + 2), v(ACCQ + 3), RS)]),
        (K(1, 2), [] if early else [pf]),
        (K(1, 5), []),
        (K(0, 6), [hist]),
        (K(1, 6), [lg(0), BAR]),
        (K(0, 7), [qbrd(0)]),
        (K(1, 7), [qbrd(1)]),
        (V(0, 2), [qbrd(2)]),
        (V(1, 2), [qbrd(3), "s_waitcnt vmcnt(2) lgkmcnt(3)"]),
        (smx(0), [lg(2), add(ACCK, 0), add(ACCK, 1)]),
        (smx(1), [lg(1), add(ACCK + 4, 0), add(ACCK + 4, 1)]),
        (smx(2), [lg(0), cvt(ACCK + 2, ACCK, ACCK + 4), cvt(ACCK + 3, ACCK + 1, ACCK + 5)]),
        (smx(3), ["ds_write2_b32 %s, %s, %s offset0:0 offset1:%d" % (v(C_KW), v(ACCK + 2), v(ACCK + 3), RS)]),
        (V(0, 3), ["v_mov_b64 %s, %s" % (v(ONES, 2), s(S_ONES, 2))]),
        (V(1, 3), ["s_nop 1", "v_mov_b64 %s, %s" % (v(ONES + 2, 2), s(S_ONES, 2))]),
        (V(0, 4), [ex(SX)]),
        (V(1, 4), [lg(0), BAR, ex(SX + 1)]),
        (V(0, 5), [kmrd(0), ex(SX + 2)]),
        (V(1, 5), [kmrd(1), ex(SX + 3)]),
        (V(0, 6), [kmrd(2), cvt(PX, SX, SX + 1), cvt(PX + 1, SX + 2, SX + 3)]),
        (V(1, 6), [kmrd(3), "ds_write_b64 %s, %s offset:%d" % (v(C_MW), v(PX, 2), L_PX), lg(4)]),
        (smm(0), [lg(3), mov0(PM + 1), mov0(VM0 + 1)]),
        (smm(1), [lg(2), mov0(VM1 + 1), zw.pop(0)]),
        (smm(2), [lg(1), zw.pop(0), zw.pop(0)]),
        (smm(3), [lg(0), BAR]),
        (V(0, 7), ["ds_read_b64 %s, %s offset:%d" % (v(PX + 2, 2), v(C_X2), L_PX), zw.pop(0)]),
        (V(1, 7), [zw.pop(0), zw.pop(0), "v_mul_f32 %s, %s, %s" % (v(SM), s(S_SCALE), v(SM)), "v_mul_f32 %s, %s, %s" % (v(SM + 1), s(S_SCALE), v(SM + 1)),
                   ex(SM), lg(0)]),
        (mf32(LS, ONES, PX, True), [ex(SM + 1), add(ACCV, 0)]),
        (mf32(OA, VX, PX, True), [cvt(PM, SM, SM + 1), add(ACCV, 1)]),
        (mf32(OA + 4, VX + 4, PX, True), [cvt(VM0, ACCV, ACCV + 1), add(ACCV + 4, 0)]),
        (mf16(LS, ONES, PM), [add(ACCV + 4, 1), cvt(VM1, ACCV + 4, ACCV + 5)]),
        (mf16(OA, VM0, PM), [zw.pop(0), zw.pop(0)]),
        (mf16(OA + 4, VM1, PM), [oad[0], oad[1], "v_rcp_f32 %s, %s" % (v(TA), v(LS))] + oad[2:]),
    ])
    assert not zw
    e("v_max_f32 %s, %s, %s" % (v(T0), v(TA), v(LS)))
    e("v_cmp_nge_f32 vcc, %s, %s" % (s(S_BIG), v(T0)))
    for r in (0, 2, 4, 6):
        e("v_pk_mul_f32 %s, %s, %s op_sel_hi:[1,0]" % (v(OA + r, 2), v(OA + r, 2), v(TA, 2)))
    for r in (0, 2, 1, 3):
        e(cvt(OP + r, OA + r, OA + 4 + r))
    if OPT.get("pflat"):
        e("s_memtime s[74:75]")
        e("s_waitcnt vmcnt(1)")
        e("s_memtime s[72:73]")
        e("s_waitcnt lgkmcnt(0)")
    e.label(L("rejoin"))
    if o64:
        for k in range(2):
            e("v_cndmask_b32 %s, %s, %s, %s" % (v(LS + 2 + k), v(OP + k), v(OP + 2 + k), s(S_HM, 2)))
        e("ds_write_b64 %s, %s offset:%d" % (v(C_FL), v(LS + 2, 2), L_OE))
    else:
        e("ds_write_b128 %s, %s offset:%d" % (v(C_MW), v(OP, 4), L_OE))
    WACC = AM
    SO = lambda q, u: smf_ins(WACC + 4 * q, OP if u == 0 else OOP + 4 * u, ("O", q, u))
    ord_ = lambda u: "ds_read_b128 %s, %s offset:%d" % (v(OOP + 4 * u, 4), v(C_X2 if u == 2 and not o64 else OOP + 4 * u), L_OE)
    SEL, RD = ACCV, ACCV + 4
    wc = lambda q, r: cvt(PK + 2 * q + r, WACC + 4 * q + r, WACC + 4 * q + 2 + r)
    run([
        (SO(0, 0), []),
        (SO(1, 0), [lg(0), BAR, ord_(1), ord_(2)] if OPT.get("b4", 1) else []),
        (SO(2, 0), [ord_(3)] if OPT.get("b4", 1) else [lg(0), BAR, ord_(1), ord_(2)]),
        (SO(3, 0), ([] if OPT.get("b4", 1) else [ord_(3)]) + [of[0], of[1], lg(4)]),
        (SO(0, 1), [of[2], lg(4)]),
        (SO(0, 2), [of[3], lg(4)]),
        (SO(0, 3), [of[4], "s_cmp_lg_u64 vcc, 0"]),
        (SO(1, 1), [of[5], "s_cselect_b32 %s, %s, %s" % (s(S_TAG), s(S_NPAR), s(S_PAR))]),
        (SO(1, 2), [of[6], wc(0, 0)]),
        (SO(1, 3), [of[7], wc(0, 1), tg(0)]),
        (SO(2, 1), [pst(0)]),
        (SO(2, 2), [lg(4), "s_nop 0", wc(1, 0)]),
        (SO(2, 3), ["ds_read_b128 %s, %s offset:%d" % (v(SEL, 4), v(C_L16), L_SEL), wc(1, 1), tg(1)]),
        (SO(3, 1), [pst(1), lg(1)]),
        (SO(3, 2), ["s_nop 1", wc(2, 0)]),
        (SO(3, 3), ["s_nop 2", wc(2, 1), tg(2), pst(2), wc(3, 0), wc(3, 1), tg(3), pst(3)]),
    ])
    e.label(L("stored"))
    stamp(e, 1, stamps)
    e("s_cmp_lg_u32 %s, %s" % (s(S_TAG), s(S_PAR)))
    e("s_cbranch_scc1 %s" % L("safe"))
    f, z = idle_prep_ins()
    n0 = OPT.get("n0", 12)
    PD = VX
    pld = lambda P: ["buffer_load_dwordx4 %s, %s, %s, %s offen sc1" % (v(P, 4), v(C_MW), ws, s(S_PR)),
                     "buffer_load_dwordx4 %s, %s, %s, %s offen offset:1024 sc1" % (v(P + 4, 4), v(C_MW), ws, s(S_PR))]
    pub = "buffer_store_dword %s, %s, %s, %s offen%s" % (v(HPEND), v(C_MP), ws, s(S_T0), sc)
    for x in f[:n0]:
        e(x)
    delay(e, OPT.get("d1", 0))
    for q in range(1, 4):
        e("s_cmp_lt_u32 %s, %d" % (s(S_WAVE), q))
        e("s_cbranch_scc1 %s" % L("pollp"))
        delay(e, OPT.get("dp", 56))
    e.label(L("pollp"))
    stamp(e, 4, stamps and not OPT.get("pflat"))
    PB_ = AM + 16
    for x in pld(PD):
        e(x)
    for x in f[n0:] + z[4:8]:
        e(x)
    p1 = OPT.get("p1")
    if ns:
        e("s_cmp_lt_u32 %s, %d" % (s(S_WAVE), ns))
        e("s_cbranch_scc1 %s" % L("onep"))
    if not p1:
        delay(e, OPT.get("pp", 128) - (24 if ns else 0))
        for x in pld(PB_):
            e(x)
    e.label(L("prep"))
    e("s_add_u32 %s, %s, 0x%x" % (s(S_MB), s(S_SLABN), MB_IN))
    chk = lambda P: ["v_bitop3_b32 %s, %s, %s, %s bitop3:0x7e" % (v(T0), v(P), v(P + 2), s(S_PAR)),
                     "v_bitop3_b32 %s, %s, %s, %s bitop3:0x7e" % (v(FREE1), v(P + 4), v(P + 6), s(S_PAR)),
                     "v_bitop3_b32 %s, %s, %s, 1 bitop3:0xa8" % (v(T0), v(T0), v(FREE1)),
                     "v_cmp_ne_u32 vcc, 0, %s" % v(T0)]

    def finish():
        for rot in (8, 4):
            for r in (0, 1):
                e("v_add_f32_dpp %s, %s, %s row_ror:%d row_mask:0xf bank_mask:0xf" % (v(RD + r), v(RD + r), v(RD + r), rot))
        e(cvt(HPEND, RD, RD + 1))
        e(pub)

    def attempt(P, base):
        e("s_waitcnt vmcnt(%d) lgkmcnt(0)" % (base + 1))
        e(mf32(RD, SEL, P, True))
        e(chk(P)[0])
        e("s_waitcnt vmcnt(%d)" % base)
        e(mf32(RD, SEL, P + 4, False))
        for x in chk(P)[1:]:
            e(x)
        e("s_nop 2")
        e("s_cmp_eq_u64 vcc, 0")
        e("s_cselect_b32 %s, %s, %s" % (s(S_T0), s(S_HIST if solo else S_SLABN), s(S_OOB)))
        finish()
    attempt(PD, 0 if p1 else 2)
    if not solo:
        e("s_cbranch_scc1 %s" % L("gotp"))
        if p1:
            for x in pld(PB_):
                e(x)
            e(pub)
            delay(e, 96)
        e.label(L("retryp"))
        for x in pld(PD):
            e(x)
        attempt(PB_, 3)
        e("s_cbranch_scc1 %s" % L("gotp"))
        for x in pld(PB_):
            e(x)
        attempt(PD, 3)
        e("s_cbranch_scc1 %s" % L("gotp"))
        e("s_add_u32 %s, %s, 1" % (s(S_TMO), s(S_TMO)))
        e("s_cmp_le_u32 %s, %d" % (s(S_TMO), TMO_LIMIT))
        e("s_cbranch_scc1 %s" % L("retryp"))
        e("s_mov_b32 %s, %s" % (s(S_T0), s(S_SLABN)))
        e(pub)
    e.label(L("gotp"))
    stamp(e, 2, stamps)
    e("s_add_u32 %s, %s, 0x2000" % (s(S_HIST), s(S_HIST)))
    e("s_cmp_ge_u32 %s, %d" % (s(S_NEXT), nsteps))
    e("s_cbranch_scc1 %s" % L("last"))
    e("s_mov_b32 %s, %s" % (s(S_SLAB), s(S_SLABN)))
    e("s_mov_b32 %s, %s" % (s(S_STEP), s(S_NEXT)))
    e("s_mov_b32 %s, %s" % (s(S_PAR), s(S_NPAR)))
    for x in z[8:]:
        e(x)
    if trace:
        e("s_memrealtime s[100:101]")
        e("s_memtime s[70:71]")
        e("s_lshl_b32 s3, %s, 2" % s(S_H))
        e("s_add_u32 s3, s3, %s" % s(S_WAVE))
        e("s_lshl_b32 s3, s3, 6")
        e("s_add_u32 s3, s3, %s" % s(S_STEP))
        e("s_lshl_b32 s3, s3, 5")
        e("s_add_u32 s3, s3, 0x200000")
        e("s_waitcnt lgkmcnt(0)")
        for k, r in enumerate((64, 66, 68, 100, 70, 72, 74, S_TMO)):
            e("v_mov_b32 %s, %s" % (v(AM + 8 + k), s(r)))
        e("buffer_store_dwordx4 %s, off, %s, s3" % (v(AM + 8, 4), ws))
        e("buffer_store_dwordx4 %s, off, %s, s3 offset:16" % (v(AM + 12, 4), ws))
    delay(e, OPT.get("dm", 112) - (128 if trace else 0))
    if ns and OPT.get("dmx"):
        e("s_cmp_ge_u32 %s, %d" % (s(S_WAVE), ns))
        e("s_cbranch_scc1 %s" % L("firem"))
        delay(e, OPT.get("dmx"))
        e.label(L("firem"))
    stamp(e, 5, stamps and not OPT.get("pflat"))
    for x in mld:
        e(x)
    e("s_branch %s" % L("step"))
    e.label(L("last"))
    e(hist)
    e("s_branch %s" % L("done"))
    if ns:
        e.label(L("onem"))
        e("s_waitcnt vmcnt(0)")
        e("s_branch %s" % L("prem"))
        e.label(L("onep"))
        e("v_mov_b32 %s, %s" % (v(PB_), s(S_NPAR)))
        e("s_waitcnt vmcnt(0)")
        e("s_branch %s" % L("prep"))
    e.label(L("refresh"))
    e("buffer_load_dword %s, %s, %s, %s offen sc1" % (v(JUNK), v(C_PF), ws, s(S_SLAB)))
    e("s_add_u32 %s, %s, 1" % (s(S_TMO), s(S_TMO)))
    e("s_cmp_le_u32 %s, %d" % (s(S_TMO), TMO_LIMIT))
    e("s_waitcnt vmcnt(0)")
    e("s_cbranch_scc1 %s" % L("step"))
    e("s_branch %s" % L("fresh"))
    e.label(L("safe"))
    e.fence(12)
    e("s_waitcnt vmcnt(0) lgkmcnt(0)")
    e("s_barrier")
    W = AM
    for ks in range(4):
        e(qbrd(ks))
        e(kmrd(ks))
    e("s_xor_b32 %s, %s, 0x1000" % (s(S_T0), s(S_KXO)))
    e("s_add_u32 %s, %s, %s" % (s(S_T0), s(S_T0), s(S_SLAB)))
    for ks in range(4):
        e("buffer_load_dwordx4 %s, %s, %s, %s offen offset:%d sc1" % (v(W + 4 * ks, 4), v(C_L16), ws, s(S_KX), ks * 1024))
        e("buffer_load_dwordx4 %s, %s, %s, %s offen offset:%d sc1" % (v(W + 16 + 4 * ks, 4), v(C_L16), ws, s(S_T0), ks * 1024))
    e("s_waitcnt vmcnt(0) lgkmcnt(0)")
    S0, S1, S2 = ACCQ, ACCQ + 4, ACCK
    for (d, src) in ((S0, W), (S1, W + 16), (S2, XA)):
        for ks in range(4):
            e(mf32(d, src + 4 * ks, QB + 4 * ks, ks == 0))
    M0_, M1_ = W, W + 1
    e("v_mul_f32 %s, %s, %s" % (v(S2), s(S_SCALE), v(S2)))
    e("v_mul_f32 %s, %s, %s" % (v(S2 + 1), s(S_SCALE), v(S2 + 1)))
    e("v_max3_f32 %s, %s, %s, %s" % (v(M0_), v(S0), v(S0 + 1), v(S0 + 2)))
    e("v_max3_f32 %s, %s, %s, %s" % (v(M0_), v(M0_), v(S0 + 3), v(S1)))
    e("v_max3_f32 %s, %s, %s, %s" % (v(M0_), v(M0_), v(S1 + 1), v(S1 + 2)))
    e("v_max3_f32 %s, %s, %s, %s" % (v(M0_), v(M0_), v(S1 + 3), v(S2)))
    e("v_max_f32 %s, %s, %s" % (v(M0_), v(M0_), v(S2 + 1)))
    for sw in ("v_permlane16_swap_b32", "v_permlane32_swap_b32"):
        e("v_mov_b32 %s, %s" % (v(M1_), v(M0_)))
        e("%s %s, %s" % (sw, v(M0_), v(M1_)))
        e("v_max_f32 %s, %s, %s" % (v(M0_), v(M0_), v(M1_)))
    for r in [S0 + i for i in range(8)] + [S2, S2 + 1]:
        e("v_sub_f32 %s, %s, %s" % (v(r), v(r), v(M0_)))
        e(ex(r))
    for q in range(4):
        e(cvt(PX + q, S0 + 2 * q, S0 + 2 * q + 1))
    e(cvt(PM, S2, S2 + 1))
    e(mf32(LS, ONES, PX, True)); e(mf32(OA, VX, PX, True)); e(mf32(OA + 4, VX + 4, PX, True))
    e(mf16(LS, ONES, PM)); e(mf16(OA, VM0, PM)); e(mf16(OA + 4, VM1, PM))
    e("v_rcp_f32 %s, %s" % (v(TA), v(LS)))
    for r in range(8):
        e("v_mul_f32 %s, %s, %s" % (v(OA + r), v(OA + r), v(TA)))
    for r in range(4):
        e(cvt(OP + r, OA + r, OA + 4 + r))
    for r in range(AM, AM + 16):
        e(mov0(r))
    for x in oad:
        e(x)
    e("s_mov_b64 vcc, 0")
    e("s_branch %s" % L("rejoin"))
    e.label(L("done"))
```

```python
import sys
from asmlib import Emitter, v, a, s
import chain as C
for a_ in sys.argv:
    if a_.startswith('opt:'):
        k_, v_ = a_[4:].split('=')
        C.OPT[k_] = int(v_, 0) if v_.lstrip('-')[:1].isdigit() else v_.replace('_', ' ')
import worker as W
import mlp as M

BASE = "sequential_preLN__memory_aug_recurrent_mem_tr__moe_arch_mod__prompt"
K1 = BASE + "_kernel"
K2 = "route_up_kernel"
K3 = "down_kernel"
hdr = open(__import__("os").path.join(__import__("os").path.dirname(__import__("os").path.abspath(__file__)), "..", "%s.s.ref" % BASE)).read().split("\n")
hdr = [l for l in hdr[:hdr.index(next(l for l in hdr if "@launch" in l and l.startswith("; @launch")))] if "harness parses" not in l.lower() and "Override launch" not in l]
e = Emitter()
for l in hdr:
    e.raw(l)
DOC = """
Generated by gen/gen.py (hand-written generator scripts, see gen/*.py).
One persistent launch, 256 workgroups (one per CU), role = workgroup id & 7:
  0    chain: one workgroup per head keeps its Wq/Wk/Wv/Wo slices in registers + LDS and runs the 63 dependent
       memory updates.  The 8 memory rows use the sparse MFMA (8 rows x 2 k-halves or x 2 column tiles).
       Per step: partial out-projections -> reduce-scatter over the 32 workgroups -> all-gather of the new memory.
       Every hand-off word validates itself (sentinel or parity tag), readers use L1-bypassing loads.
       The chain workgroups report their XCC id at run time: only if all sit on one die the hand-off stores are
       plain (shared L2); otherwise the second copy of the loop with device-scope stores runs.
       Softmax of the memory rows exponentiates without a shift while 2^-30 <= row sum <= 2^30; a run-time check
       redoes the step with the true row maximum otherwise.
  1-6  workers (6 per head): q/k/v of the tokens, token attention (running true max), partial out-projection,
       cross-head reduction + residual + layernorm + router score, device-scope hand-offs.
  7    setup of the hand-off buffers, layernorm of x, then top-2 routing + MLP (recomputed whenever the top-2 of a
       longer token prefix changes; the final check sees all tokens).
Short waits in front of polls are back-off: early polls only slow the stores they are waiting for.
Every wait loop is bounded.
"""
for l in DOC.strip().split("\n"):
    e.raw("; " + l)
if C.OPT.get("list"):
    e.raw("; @launch kernel=%s grid=(256,1,1) block=(256,1,1) lds=%d" % (K1, C.LDS_BYTES))
else:
    e.raw("; @launch grid=(256,1,1) block=(256,1,1) lds=%d" % C.LDS_BYTES)
e.raw('.amdgcn_target "amdgcn-amd-amdhsa--gfx950"')
e.raw(".text")


def start(name):
    e.raw(".globl %s\n.p2align 8\n.type %s,@function" % (name, name))
    e.label(name)
    e.hist = []


PROF = C.OPT.get("prof", 0)


def rt(i, dbg=None):
    if not PROF:
        return
    if PROF == 2:
        if dbg is None:
            return
        e("s_cmp_lg_u32 %s, 0" % s(C.S_WAVE))
        e("s_cbranch_scc1 L_rt%d" % dbg)
        if dbg in (0, 3, 4):
            e("s_cmp_ge_u32 s2, 16")
            e("s_cbranch_scc1 L_rt%d" % dbg)
        e("s_memrealtime s[100:101]")
        e("s_waitcnt lgkmcnt(0)")
        e("s_and_b32 s100, s100, 0xffffff")
        if dbg == 0:
            e("s_sub_u32 s100, 0x1000000, s100")
        e("v_mov_b32 v14, s100")
        e("s_mov_b64 exec, 1")
        e("buffer_atomic_umax v14, off, %s, 0 offset:%d" % (s(C.S_DBG, 4), 4 * dbg))
        e("s_mov_b64 exec, -1")
        e.label("L_rt%d" % dbg)
        return
    e("s_memrealtime s[100:101]")
    e("s_lshl_b32 s3, s2, 6")
    e("s_add_u32 s3, s3, 0x%x" % C.STAMP_OFF)
    e("s_waitcnt lgkmcnt(0)")
    e("v_mov_b32 v14, s100")
    e("buffer_store_dword v14, off, %s, s3 offset:%d" % (s(C.S_WS, 4), 4 * i))
    e("s_waitcnt vmcnt(0)")


start(K1)
P = C.S_PTR
e("s_cmp_ge_u32 s2, 256")
e("s_cbranch_scc1 L_end")
e("s_load_dwordx8 %s, s[0:1], 0" % s(P, 8))
e("s_load_dwordx4 %s, s[0:1], 32" % s(P + 8, 4))
e("s_load_dwordx4 %s, s[0:1], 104" % s(P + 12, 4))
e("s_load_dwordx2 s[80:81], s[0:1], 64")
e("s_load_dwordx2 s[82:83], s[0:1], 96")
e("s_load_dwordx4 s[84:87], s[0:1], 72")
e("s_load_dwordx2 s[88:89], s[0:1], 88")
if C.OPT.get("warm", 0):
    e.comment("pull the kernel's own code into this die's L2 (it is executed mostly once, front to back)")
    e("s_getpc_b64 s[90:91]")
    e("s_and_b32 s90, s90, 0xffffff00")
    e("v_lshlrev_b32 v2, 7, v0")
    e("v_add_u32 v3, 0x8000, v2")
    e("v_min_u32 v3, CODE_LAST, v3")
    e("global_load_dword v126, v2, s[90:91]")
    e("global_load_dword v127, v3, s[90:91]")
e("v_lshrrev_b32 v1, 6, v0")
e("v_readfirstlane_b32 %s, v1" % s(C.S_WAVE))
e("s_waitcnt lgkmcnt(0)")
C.srd(e, C.S_WS, P + 14, C.WS_BYTES)
C.srd(e, C.S_DBG, P + 12, 256)
rt(0, 0)
if C.OPT.get("wtlb", 0):
    e.comment("first touch of every region, all at once: the address translations resolve in parallel")
    e("v_lshlrev_b32 v2, 19, v0")
    for pp in (P + 8, P + 10, P + 6, P + 4):
        C.srd(e, 12, pp, 4096 * 512 * 2)
        e("buffer_load_dword v127, v2, s[12:15], 0 offen")
    if C.OPT.get("wtlb") == 2:
        e("v_lshlrev_b32 v2, 20, v0")
        e("s_mov_b32 s12, 0xf0000")
        e("buffer_load_dword v127, v2, %s, s12 offen sc1" % s(C.S_WS, 4))
e("s_and_b32 s3, s2, 7")
e("s_cmp_lg_u32 s3, 0")
e("s_cbranch_scc1 L_worker")
e("s_lshr_b32 %s, s2, 3" % s(C.S_H))
for _ in range(C.OPT.get("cdelay", 0)):
    e("s_sleep 36")


def chain_pre(q):
    C.xcc_publish(e, q)
    C.mem0_load(e, P + 2, C.HPEND, 104, 105, 106, C.S_W)
    q.add("m0")
    if C.OPT.get("tlb", 0):
        e.comment("touch an unused word of every slab: address translations are resolved before the chain needs them")
        e("s_mov_b32 s36, 0x%x" % C.SLAB_ST)
        e("v_mul_lo_u32 v104, v0, s36")
        e("v_mov_b32 v105, 0x%x" % C.OOB)
        e("v_cmp_lt_u32 vcc, 1, v0")
        e("v_cndmask_b32 v104, v104, v105, vcc")
        e("s_mul_i32 s36, %s, 0x%x" % (s(C.S_H), 2 * C.SLAB_ST))
        e("s_add_u32 s36, s36, 0x%x" % (C.SLAB_OFF + C.FL_IN + 0x80))
        e("buffer_load_dword v126, v104, %s, s36 offen" % s(C.S_WS, 4))
        q.add("tlb")
        e("s_mov_b32 s36, 0xf0000")
        e("buffer_load_dword v127, off, %s, s36" % s(C.S_WS, 4))
        q.add("tlb")
    C.setup_consts(e)
    C.setup_pf(e)


C.load_weights(e, P + 4, P + 6, P + 8, P + 10, pre=chain_pre)
rt(1, 1)
e("s_cmp_lg_u32 %s, 0" % s(C.S_MODE))
e("s_cbranch_scc1 L_slow_start")
C.main_loop(e, "fast", "", 63, bool(C.OPT.get("trace")))
rt(2, 2)
e("s_branch L_end")
C.main_loop(e, "slow", " sc1", 63)
e("s_branch L_end")
e.label("L_worker")


def common():
    C.srd(e, W.S_X, P, 2048 * 512 * 2)
    C.srd(e, W.S_OUT, 82, 2048 * 512 * 2)
    C.srd(e, W.S_WR, 80, 1024)
    W.setup(e)


def worker_pre(q):
    if C.OPT.get("touch", 1):
        e.comment("pull this head's Wo slice towards the last-level cache early (the chain CU streams it first)")
        C.srd(e, W.S_X, P + 10, 4096 * 512 * 2)
        e("s_lshl_b32 s24, %s, 17" % s(C.S_H))
        e("s_and_b32 s25, %s, 3" % s(W.S_R))
        e("s_lshl_b32 s25, s25, 15")
        e("s_add_u32 s24, s24, s25")
        e("v_lshlrev_b32 v30, 7, v0")
        e("buffer_load_dword v31, v30, %s, s24 offen" % s(W.S_X, 4))
        q.add("touch")
    common()


e("s_cmp_eq_u32 s3, 7")
e("s_cbranch_scc1 L_mlp")
W.ids(e)
if C.OPT.get("sweep", 0):
    e.comment("replicas 2..5 first stream the weight matrices once, linearly, in the order the chain needs them:")
    e("s_cmp_lt_u32 %s, 2" % s(W.S_R))
    e("s_cbranch_scc1 L_nosweep")
    e("s_lshl_b32 s24, %s, 2" % s(C.S_H))
    e("s_add_u32 s24, s24, %s" % s(W.S_R))
    e("s_sub_u32 s24, s24, 2")
    e("s_lshl_b32 s24, s24, 12")
    e("v_lshlrev_b32 v30, 4, v0")
    for mi, pp in enumerate((P + 8, P + 10, P + 6, P + 4)):
        C.srd(e, W.S_X, pp, 4096 * 512 * 2)
        for i in range(8):
            e("s_add_u32 s25, s24, 0x%x" % (i * 0x80000))
            e("buffer_load_dwordx4 %s, v30, %s, s25 offen%s" % (v(96 + 4 * i, 4), s(W.S_X, 4), C.OPT.get("swf", "")))
    e("s_waitcnt vmcnt(%d)" % C.OPT.get("sww", 16))
    e.label("L_nosweep")
if C.OPT.get("stag"):
    e("s_cmp_lt_u32 %s, %d" % (s(W.S_R), C.OPT.get("stagr", 1)))
    e("s_cbranch_scc1 L_go")
    for _ in range(C.OPT["stag"]):
        e("s_sleep 36")
    e.label("L_go")
W.load_w(e, P, C.OPT.get("word", "VKQ"), worker_pre)
rt(1, 3)
if PROF == 1:
    for i in range(2):
        e("v_mov_b32 v14, %s" % s(90 + i))
        e("buffer_store_dword v14, off, %s, s3 offset:%d" % (s(C.S_WS, 4), 24 + 4 * i))
W.phase1(e)
rt(2, 4)
if C.OPT.get("nop2"):
    e("s_branch L_end")
W.load_wo(e, P)
W.wait_tpinit(e)
rt(3)
W.phase2(e)
rt(4, 5)
if PROF == 1:
    for i in range(6):
        e("v_mov_b32 v14, %s" % s(44 + 2 * i))
        e("buffer_store_dword v14, off, %s, s3 offset:%d" % (s(C.S_WS, 4), 32 + 4 * i))
    e("v_mov_b32 v14, %s" % s(C.S_TMO))
    e("buffer_store_dword v14, off, %s, s3 offset:56" % s(C.S_WS, 4))
    e("v_mov_b32 v14, %s" % s(W.S_R))
    e("buffer_store_dword v14, off, %s, s3 offset:60" % s(C.S_WS, 4))
e("s_branch L_end")
e.label("L_mlp")
common()
e("s_lshr_b32 %s, s2, 3" % s(C.S_H))
W.xn_produce(e, lambda: C.init_fill(e, P + 2, W.W_MW, W.R0 + 48, 96))
rt(1)
if C.OPT.get("nop2") or C.OPT.get("nomlp"):
    e("s_branch L_end")
M.body(e, 84, 86, 88)
e.label("L_end")
if PROF:
    e("s_cmp_ge_u32 s2, 256")
    e("s_cbranch_scc1 L_end2")
    rt(5, 6)
    e.label("L_end2")
e("s_endpgm")
e.raw('.section .rodata,"a"')
for name, nv, acc in ((K1, 512, 256),):
    e.raw(""".p2align 6
.amdhsa_kernel %s
  .amdhsa_next_free_vgpr %d
  .amdhsa_next_free_sgpr 102
  .amdhsa_accum_offset %d
  .amdhsa_group_segment_fixed_size 0
  .amdhsa_kernarg_size 120
  .amdhsa_user_sgpr_count 2
  .amdhsa_user_sgpr_kernarg_segment_ptr 1
  .amdhsa_system_sgpr_workgroup_id_x 1
.end_amdhsa_kernel""" % (name, nv, acc))
out = sys.argv[1] if len(sys.argv) > 1 and not sys.argv[1].startswith("opt:") else "/code/%s.s" % BASE
import subprocess, tempfile, os, re
txt = e.text()
with tempfile.TemporaryDirectory() as td:
    open(td + "/a.s", "w").write(txt.replace("CODE_LAST", "0x12345"))
    subprocess.run(["clang", "-x", "assembler", "-target", "amdgcn-amd-amdhsa", "-mcpu=gfx950", "-c", td + "/a.s", "-o", td + "/a.o"], check=True)
    sec = subprocess.run(["llvm-readelf", "-S", td + "/a.o"], capture_output=True, text=True).stdout
    size = int(re.search(r"\.text\s+PROGBITS\s+\S+\s+\S+\s+(\S+)", sec).group(1), 16)
assert 0x8000 < size <= 0x10000
open(out, "w").write(txt.replace("CODE_LAST", "0x%x" % (size - 4)))
print("nops inserted:", e.nops_inserted, "lines:", len(e.lines), "->", out)
```

```python
from asmlib import Emitter, v, a, s
import struct

WS_BYTES = 0x10000000
PB_OFF = 0x0000000
SYNC_OFF = 0x0080000
HIST_OFF = 0x0100000
FLAG_OFF = 0x0190000
STAMP_OFF = 0x01A0000
SLAB_OFF = 0x1000000
SLAB_ST = 0x82100
MB_IN = 0x80000
FL_IN = 0x82000
OOB = 0x40000000

L_MEMI = 0
L_PX = 8192
RS = 72
L_QX = 16384
L_KMX = L_QX + 2304
L_OX = L_KMX + 2304
L_SEL = L_OX + 2048
L_WL = 32768
LDS_BYTES = 163840

S_WS = 8
S_W = 12
S_DBG = 16
S_H = 20
S_WAVE = 21
S_STEP = 22
S_SLAB = 23
S_SLABN = 24
S_KXO = 25
S_KX = 29
S_VX = 30
S_HIST = 31
S_TMO = 32
S_SCALE = 33
S_PLO = 34
S_PHI = 35
S_T0 = 36
S_T1 = 37
S_T2 = 38
S_VXO = 39
S_BIG = 40
S_PR = 6
S_MB = 7
S_4K = 26
S_PAR = 27
S_RDY = 62
S_NPAR = 28
S_TAG = 60
S_OOB = 61
S_FW = 88
S_FR = 89
S_NEXT = 90
S_SPIN = 91
S_LIM = 94
S_SY = 80
S_NX2 = 84
S_U0 = 95
S_HM = 92
S_W3 = 95
S_ONES = 4
S_PTR = 44
S_ST = 64

C_PF = 0
C_IDX, C_MW, C_L16, C_WL, C_QW, C_QR, C_KW, C_X2, C_PW, C_MP, FREE1, HPEND, C_FL, T0, JUNK = range(1, 16)
AM = 16
ACCQ = 48
ACCK = 56
ACCV = 64
QB = 72
XA = 88
XB = 104
VX = 120
VW = 128

TMO_LIMIT = 200000
OPT = {}


def f32bits(x):
    return struct.unpack("<I", struct.pack("<f", x))[0]


def lin(e, dst, coefs, const=0, tmp=T0, src=0):
    e("v_mov_b32 %s, 0x%x" % (v(dst), const))
    for k, c in sorted(coefs.items()):
        if c == 0:
            continue
        assert c < (1 << 24)
        e("v_bfe_u32 %s, %s, %d, 1" % (v(tmp), v(src), k))
        e("s_mov_b32 %s, 0x%x" % (s(S_T2), c))
        e("v_mad_u32_u24 %s, %s, %s, %s" % (v(dst), v(tmp), s(S_T2), v(dst)))


def srd(e, d, ptr, nbytes):
    e("s_mov_b32 %s, %s" % (s(d), s(ptr)))
    e("s_and_b32 %s, %s, 0xffff" % (s(d + 1), s(ptr + 1)))
    e("s_mov_b32 %s, 0x%x" % (s(d + 2), nbytes))
    e("s_mov_b32 %s, 0x20000" % s(d + 3))


LDS_OPS = {
    ("Q", 0, 0): XB + 0, ("Q", 1, 0): XB + 8, ("Q", 0, 1): XA + 0, ("Q", 1, 1): XA + 8,
    ("K", 0, 0): QB + 0, ("K", 1, 0): QB + 8,
    ("Q", 0, 7): XA + 0, ("Q", 1, 7): XA + 8,
    ("K", 0, 2): QB + 0, ("K", 1, 2): QB + 8,
    ("K", 0, 7): XA + 0, ("K", 1, 7): XA + 8,
    ("O", 2, 3): XA + 0, ("O", 3, 1): XA + 8, ("O", 3, 2): QB + 0, ("O", 3, 3): QB + 8,
}
OLDS = [("O", 2, 3), ("O", 3, 1), ("O", 3, 2), ("O", 3, 3)]
LDS_SLOT = {k: i for i, k in enumerate(LDS_OPS)}
ALL_OPS = [(m, T, u) for m in "QKV" for u in range(8) for T in range(2)] + [("O", q, u) for u in range(4) for q in range(4)]
RES = {}
_n = 0
for op in ALL_OPS:
    if op in LDS_OPS:
        continue
    RES[op] = ("a", _n * 8) if _n < 32 else ("v", VW + (_n - 32) * 8)
    _n += 1
assert _n == 48


def opreg(op):
    if op in LDS_OPS:
        return v(LDS_OPS[op], 8)
    k, r = RES[op]
    return (a if k == "a" else v)(r, 8)


def lds_fetch_ins(op):
    r = LDS_OPS[op]
    off = LDS_SLOT[op] * 2048
    return ["ds_read_b128 %s, %s offset:%d" % (v(r, 4), v(C_WL), off),
            "ds_read_b128 %s, %s offset:%d" % (v(r + 4, 4), v(C_WL), off + 1024)]


def lds_fetch(e, op):
    for t in lds_fetch_ins(op):
        e(t)


def rowpart(rho, b, hi=32):
    return hi * (rho >> 2) + 8 * (rho & 1) + 2 * ((rho >> 1) & 1) + b


class VmQ:
    def __init__(self, e):
        self.e, self.q = e, []

    def add(self, tag):
        self.q.append(tag)
        assert len(self.q) <= 63

    def wait(self, tag):
        if tag not in self.q:
            return
        last = len(self.q) - 1 - self.q[::-1].index(tag)
        self.e("s_waitcnt vmcnt(%d)" % (len(self.q) - 1 - last))
        self.q = self.q[last + 1:]


def staged_load(e, chunks, ptrs, srds, swz_bits, dma_k, lane_f, row_lane, blk_xor_wave, reads, side=None, pre=None, nslot=3):
    AD, AR = 16, 20
    TT = 28
    seq = OPT.get("seq", 1)
    S_LB, S_GB = 28, 3
    if seq:
        e("v_lshrrev_b32 %s, 4, v0" % v(TT))
        e("v_and_b32 %s, 15, v0" % v(AD))
        e("v_lshlrev_b32 %s, 4, %s" % (v(AD), v(AD)))
        e("v_lshl_add_u32 %s, %s, 13, %s" % (v(AD), v(TT), v(AD)))
        e("v_bfe_u32 %s, v0, 4, %d" % (v(TT + 1), swz_bits))
        e("v_lshlrev_b32 %s, 5, %s" % (v(TT + 1), v(TT + 1)))
        e("v_xor_b32 %s, %s, %s" % (v(AD), v(AD), v(TT + 1)))
        e("v_and_b32 %s, %d, v0" % (v(TT + 1), dma_k(3)))
        e("v_xor_b32 %s, %s, %s" % (v(AD), v(AD), v(TT + 1)))
        e("s_lshl_b32 %s, %s, 10" % (s(S_LB), s(S_WAVE)))
    else:
        e("v_lshrrev_b32 %s, 6, v0" % v(TT))
        e("v_bfe_u32 %s, v0, 4, 2" % v(TT + 1))
        e("v_lshl_add_u32 %s, %s, 5, %s" % (v(TT), v(TT), v(TT + 1)))
        e("v_and_b32 %s, 15, v0" % v(AD))
        e("v_lshlrev_b32 %s, 4, %s" % (v(AD), v(AD)))
        e("v_lshl_add_u32 %s, %s, 13, %s" % (v(AD), v(TT), v(AD)))
        e("v_bfe_u32 %s, v0, 4, %d" % (v(TT + 1), swz_bits))
        e("v_lshlrev_b32 %s, 5, %s" % (v(TT + 1), v(TT + 1)))
        e("v_xor_b32 %s, %s, %s" % (v(AD), v(AD), v(TT + 1)))
        for k in range(1, 4):
            e("v_xor_b32 %s, %d, %s" % (v(AD + k), dma_k(k), v(AD)))
        e("s_add_u32 %s, %s, 1" % (s(S_LB), s(S_WAVE)))
        e("s_lshl_b32 %s, %s, 15" % (s(S_LB), s(S_LB)))
    e("s_lshl_b32 %s, %s, 8" % (s(S_GB), s(S_H)))
    q = VmQ(e)
    built = set()

    def dma(c):
        m, ci = chunks[c]
        if m not in built:
            srd(e, srds[m], ptrs[m], 512 * 4096 * 2)
            built.add(m)
        for i in range(8):
            if seq:
                e("s_add_u32 m0, %s, %d" % (s(S_LB), (((i >> 1) + 1) << 15) + (c % nslot) * 8192 + (i & 1) * 4096))
                e("s_add_u32 %s, %s, 0x%x" % (s(S_T1), s(S_GB), (128 * ci + 16 * i) * 8192))
            else:
                e("s_add_u32 m0, %s, %d" % (s(S_LB), (c % nslot) * 8192 + i * 1024))
                e("s_add_u32 %s, %s, 0x%x" % (s(S_T1), s(S_GB), (128 * ci + 4 * i) * 8192))
            e("buffer_load_dwordx4 %s, %s, %s offen%s lds" % (v(AD + (0 if seq else i & 3)), s(srds[m], 4), s(S_T1), OPT.get("cnt", "") if blk_xor_wave else OPT.get("wnt", "")))
            q.add(("c", c))
    lead = OPT.get("lead", 0) if blk_xor_wave else 0
    TL = 29
    S_TR = 91

    def touch(c):
        if c >= len(chunks):
            return
        m, ci = chunks[c]
        if m not in built:
            srd(e, srds[m], ptrs[m], 512 * 4096 * 2)
            built.add(m)
        e("s_add_u32 %s, %s, 0x%x" % (s(S_T1), s(S_MB), 128 * ci * 8192))
        e("buffer_load_dword %s, %s, %s, %s offen" % (v(JUNK), v(TL), s(srds[m], 4), s(S_T1)))
        q.add(("t", c))
    if lead:
        e("v_and_b32 %s, 63, v0" % v(TL))
        e("v_lshlrev_b32 %s, 7, %s" % (v(TL), v(TL)))
        e("s_lshl_b32 %s, %s, 2" % (s(S_MB), s(S_H)))
        e("s_add_u32 %s, %s, %s" % (s(S_MB), s(S_MB), s(S_WAVE)))
        e("s_lshl_b32 %s, %s, 13" % (s(S_MB), s(S_MB)))
        for c in range(nslot + lead):
            touch(c)
    for c in range(nslot):
        dma(c)
    TT = 30
    lin(e, AR, {0: 8, 1: 16, **{k: c * 256 for k, c in row_lane.items()}})
    lin(e, TT, lane_f)
    lin(e, TT + 1, {6: 64, 7: 128})
    e("v_xor_b32 %s, %s, %s" % (v(TT), v(TT), v(TT + 1)))
    e("v_add_u32 %s, %s, %s" % (v(TT), v(TT), v(AR)))
    for k in range(4):
        if blk_xor_wave:
            e("s_xor_b32 %s, %s, %d" % (s(S_T0), s(S_WAVE), k))
            e("s_add_u32 %s, %s, 1" % (s(S_T0), s(S_T0)))
            e("s_lshl_b32 %s, %s, 15" % (s(S_T0), s(S_T0)))
            e("v_add_u32 %s, %s, %s" % (v(AR + 2 * k), s(S_T0), v(TT)))
        else:
            e("v_add_u32 %s, 0x%x, %s" % (v(AR + 2 * k), (k + 1) << 15, v(TT)))
        e("v_xor_b32 %s, 32, %s" % (v(AR + 2 * k + 1), v(AR + 2 * k)))
    if pre:
        pre(q)
    for c, (m, ci) in enumerate(chunks):
        if side:
            side(c, q)
        q.wait(("c", c))
        e("s_barrier")
        for n_, (dst, k, T, ro) in enumerate(reads(m, ci)):
            if n_ == 12:
                e("s_waitcnt lgkmcnt(4)")
            e("ds_read_b64_tr_b16 %s, %s offset:%d" % (dst, v(AR + 2 * k + T), (c % nslot) * 8192 + ro * 256))
        e("s_waitcnt lgkmcnt(0)")
        e("s_barrier")
        if lead:
            touch(c + nslot + lead)
        if c + nslot < len(chunks):
            dma(c + nslot)
    return q


HOLD = {op: 32 + 8 * i for i, op in enumerate(o for o in LDS_OPS if o[0] != "O")}


def load_weights(e, P_WQ, P_WK, P_WV, P_WO, pre=None, mid=None):
    e.comment("---- load weight operands: Wq/Wk/Wv by LDS-DMA + transposing reads, Wo by dword loads + v_perm")
    VOFO = FREE1
    RING, TMP8 = 32, 120
    ptr = {"Q": P_WQ, "K": P_WK, "V": P_WV, "O": P_WO}
    SRDS = {"Q": 96, "K": 88, "V": 60, "O": 92}
    S_OB = 29

    def pre2(q):
        lin(e, VOFO, {0: 4, 1: 8, 2: 16, 3: 32, 4: 2 * 1024, 5: 4 * 1024, 6: 256, 7: 512})
        srd(e, SRDS["O"], ptr["O"], 512 * 4096 * 2)
        e("s_lshl_b32 %s, %s, 17" % (s(S_OB), s(S_H)))
        o_issue(0, q)
        pre(q)

    def reads(m, ci):
        tau, hi = ci >> 1, ci & 1
        out = []
        for k in range(4):
            u = 2 * k + tau
            for T in range(2):
                op = (m, T, u)
                for pr in range(2):
                    if op in HOLD:
                        dst = v(HOLD[op] + 4 * hi + 2 * pr, 2)
                    else:
                        kind, r = RES[op]
                        dst = (a if kind == "a" else v)(r + 4 * hi + 2 * pr, 2)
                    out.append((dst, k, T, 2 * pr))
        return out

    GORD = [7, 5, 3, 6, 4, 2, 1, 0]

    def o_issue(gi, q):
        g = GORD[gi]
        u = g >> 1
        base = (32, 48, 80)[gi % 3]
        e("s_xor_b32 %s, %s, %d" % (s(S_T0), s(S_WAVE), u))
        e("s_lshl_b32 %s, %s, 15" % (s(S_T0), s(S_T0)))
        e("s_add_u32 %s, %s, %s" % (s(S_T0), s(S_T0), s(S_OB)))
        for k in range(2):
            qq = 2 * (g & 1) + k
            for pr in range(4):
                for b in range(2):
                    row = 16 * b + 8 * (pr >> 1) + (pr & 1)
                    e("s_add_u32 %s, %s, 0x%x" % (s(S_T1), s(S_T0), row * 1024 + qq * 64))
                    e("buffer_load_dword %s, %s, %s, %s offen%s" % (v(base + k * 8 + pr * 2 + b), v(VOFO), s(SRDS["O"], 4), s(S_T1), OPT.get("ont", "")))
                    q.add(("o", g))

    def o_consume(gi, q):
        g = GORD[gi]
        q.wait(("o", g))
        base = (32, 48, 80)[gi % 3]
        for k in range(2):
            op = ("O", 2 * (g & 1) + k, g >> 1)
            dst = TMP8 if op in LDS_OPS else RES[op][1]
            assert op in LDS_OPS or RES[op][0] == "v"
            for pr in range(4):
                for hf in range(2):
                    e("v_perm_b32 %s, %s, %s, %s" % (v(dst + 2 * pr + hf), v(base + k * 8 + 2 * pr + 1), v(base + k * 8 + 2 * pr), s(S_PHI if hf else S_PLO)))
            if op in LDS_OPS:
                off = LDS_SLOT[op] * 2048
                assert off >= 24576
                e("ds_write_b128 %s, %s offset:%d" % (v(C_WL), v(TMP8, 4), off))
                e("ds_write_b128 %s, %s offset:%d" % (v(C_WL), v(TMP8 + 4, 4), off + 1024))
                e("s_waitcnt lgkmcnt(0)")

    def side(c, q):
        if 2 <= c < 10 and not OPT.get("noo"):
            o_consume(c - 2, q)
        if 1 <= c < 8 and not OPT.get("noo"):
            o_issue(c, q)
        early_start(e, c, q)

    chunks = [(m, ci) for m in "VKQ" for ci in range(4)]
    staged_load(e, chunks, ptr, SRDS, 1, lambda k: k << 6, {2: 32, 4: 64, 3: 128}, {5: 16, 3: 8, 4: 4, 2: 1}, True, reads, side, pre2, OPT.get("nslot", 3))
    for op, r in HOLD.items():
        off = LDS_SLOT[op] * 2048
        e("ds_write_b128 %s, %s offset:%d" % (v(C_WL), v(r, 4), off))
        e("ds_write_b128 %s, %s offset:%d" % (v(C_WL), v(r + 4, 4), off + 1024))
        if LDS_SLOT[op] % 4 == 3:
            e("s_waitcnt lgkmcnt(0)")
    e("s_waitcnt lgkmcnt(0)")


def setup_consts(e):
    T1, T2 = 104, 105
    AM = 100
    lin(e, C_IDX, {1: 0xEEEE - 0x4444}, 0x4444)
    lin(e, C_L16, {k: 16 << k for k in range(6)})
    lin(e, C_MW, {**{k: 16 << k for k in range(6)}, 6: 2048, 7: 4096})
    lin(e, C_WL, {**{k: 16 << k for k in range(6)}, 6: 32768, 7: 65536}, L_WL)
    lin(e, C_QW, {0: 4, 1: 8, 2: 16, 3: 32, 4: 2 * RS * 4, 5: 4 * RS * 4, 6: 64, 7: 128}, L_QX)
    lin(e, C_QR, {0: RS * 4, 2: 2 * RS * 4, 3: 4 * RS * 4, 4: 16, 5: 32}, L_QX)
    e("v_add_u32 %s, %d, %s" % (v(C_KW), L_KMX - L_QX, v(C_QW)))
    e("v_xor_b32 %s, 0x1000, %s" % (v(C_X2), v(C_MW)))
    lin(e, T1, {3: 1, 4: 2, 5: 4, 6: 8, 7: 16})
    e("v_add_u32 %s, %s, %s" % (v(T1), s(S_H), v(T1)))
    e("v_and_b32 %s, 31, %s" % (v(T1), v(T1)))
    e("v_lshlrev_b32 %s, 6, %s" % (v(T1), v(T1)))
    lin(e, C_PW, {0: 8, 1: 16, 2: 32, 3: 8192, 4: 2 * 8192, 5: 4 * 8192, 6: 8 * 8192, 7: 16 * 8192}, PB_OFF)
    e("v_add_u32 %s, %s, %s" % (v(C_PW), v(C_PW), v(T1)))
    mp_addr(e, C_MP, T1, T2)
    lin(e, C_FL, {0: 16, 1: 8, 2: 32, 3: 64, 4: 128, 5: 256, 6: 2048, 7: 4096})
    e("s_lshl_b32 %s, %s, 13" % (s(S_PR), s(S_H)))
    e("s_add_u32 %s, %s, 0x%x" % (s(S_PR), s(S_PR), PB_OFF))
    e("s_mov_b32 %s, 4096" % s(S_4K))
    e("v_and_b32 %s, 15, v0" % v(T1))
    for q in range(4):
        e("v_mov_b32 %s, 0" % v(AM + q))
        e("v_mov_b32 %s, 0x3f80" % v(T2))
        e("v_cmp_eq_u32 vcc, %d, %s" % (4 * q, v(T1)))
        e("v_cndmask_b32 %s, %s, %s, vcc" % (v(AM + q), v(AM + q), v(T2)))
        e("v_mov_b32 %s, 0x3f800000" % v(T2))
        e("v_cmp_eq_u32 vcc, %d, %s" % (4 * q + 1, v(T1)))
        e("v_cndmask_b32 %s, %s, %s, vcc" % (v(AM + q), v(AM + q), v(T2)))
    e("ds_write_b128 %s, %s offset:%d" % (v(C_L16), v(AM, 4), L_SEL))
    e("s_mov_b32 %s, 0x05040100" % s(S_PLO))
    e("s_mov_b32 %s, 0x07060302" % s(S_PHI))
    e("s_mov_b32 %s, 0x%x" % (s(S_SCALE), f32bits(128 ** -0.5 * 1.4426950408889634)))
    e("s_mov_b32 %s, 0x%x" % (s(S_BIG), f32bits(OPT.get('big', 2.0 ** 30))))
    e("s_mov_b32 %s, 0" % s(S_TMO))
    e("s_mov_b32 %s, 0x3f803f80" % s(S_ONES))
    e("s_mov_b32 %s, 0x3f803f80" % s(S_ONES + 1))
    e("s_lshl_b32 %s, %s, 14" % (s(S_T0), s(S_H)))
    e("s_lshr_b32 %s, %s, 1" % (s(S_T1), s(S_WAVE)))
    e("s_lshl_b32 %s, %s, 12" % (s(S_T1), s(S_T1)))
    e("s_add_u32 %s, %s, %s" % (s(S_KXO), s(S_T0), s(S_T1)))
    e("s_lshl_b32 %s, %s, 11" % (s(S_T1), s(S_WAVE)))
    e("s_add_u32 %s, %s, %s" % (s(S_VXO), s(S_T0), s(S_T1)))
    e("s_add_u32 %s, %s, 8192" % (s(S_VXO), s(S_VXO)))


def setup_pf(e):
    T1, T2 = 104, 105
    lin(e, T1, {0: 128, 1: 256, 2: 512, 3: 1024, 4: 2048, 6: 4096, 7: 8192})
    e("s_lshl_b32 %s, %s, 14" % (s(S_T0), s(S_H)))
    e("v_add_u32 %s, %s, %s" % (v(T1), s(S_T0), v(T1)))
    e("s_lshl_b32 %s, %s, 8" % (s(S_T0), s(S_H)))
    e("s_lshr_b32 %s, %s, 1" % (s(S_T1), s(S_WAVE)))
    e("s_lshl_b32 %s, %s, 7" % (s(S_T1), s(S_T1)))
    e("s_add_u32 %s, %s, %s" % (s(S_T0), s(S_T0), s(S_T1)))
    e("s_add_u32 %s, %s, 0x%x" % (s(S_T0), s(S_T0), SLAB_ST + MB_IN))
    e("v_and_b32 %s, 63, v0" % v(T0))
    e("v_mov_b32 %s, 0x%x" % (v(T2), OOB))
    e("v_cmp_lt_u32 vcc, 32, %s" % v(T0))
    e("v_cndmask_b32 %s, %s, %s, vcc" % (v(T1), v(T1), v(T2)))
    e("v_mov_b32 %s, %s" % (v(T2), s(S_T0)))
    e("v_cmp_eq_u32 vcc, 32, %s" % v(T0))
    e("v_cndmask_b32 %s, %s, %s, vcc" % (v(T1), v(T1), v(T2)))
    e("s_lshl_b32 %s, %s, 2" % (s(S_T0), s(S_H)))
    e("s_add_u32 %s, %s, 0x%x" % (s(S_T0), s(S_T0), SLAB_ST + FL_IN))
    e("v_mov_b32 %s, %s" % (v(T2), s(S_T0)))
    e("v_cmp_eq_u32 vcc, 33, %s" % v(T0))
    e("v_cndmask_b32 %s, %s, %s, vcc" % (v(C_PF), v(T1), v(T2)))


def mp_addr(e, dst, T1, T2):
    lin(e, dst, {0: 8, 1: 32, 4: 16, 5: 4, 6: 2048, 7: 4096}, MB_IN)
    e("v_mov_b32 %s, %s" % (v(T2), s(S_H)))
    lin(e, T1, {0: 256, 1: 64, 2: 128, 3: 512, 4: 1024}, src=T2)
    e("v_add_u32 %s, %s, %s" % (v(dst), v(T1), v(dst)))
    e("v_and_b32 %s, 12, v0" % v(T1))
    e("v_cmp_ne_u32 vcc, 0, %s" % v(T1))
    e("v_mov_b32 %s, 0x%x" % (v(T1), OOB))
    e("v_cndmask_b32 %s, %s, %s, vcc" % (v(dst), v(dst), v(T1)))


def mem0_load(e, P_MEM0, dst, T1, T2, TH, SR):
    srd(e, SR, P_MEM0, 8192)
    lin(e, T1, {0: 8, 1: 16, 2: 0x10000, 3: 0x10000, 4: 1024, 5: 4, 6: 64, 7: 128})
    e("v_mov_b32 %s, %s" % (v(TH), s(S_H)))
    lin(e, T2, {0: 32, 1: 2048, 2: 4096, 3: 256, 4: 512}, src=TH)
    e("v_add_u32 %s, %s, %s" % (v(T1), v(T1), v(T2)))
    e("buffer_load_dword %s, %s, %s, 0 offen" % (v(dst), v(T1), s(SR, 4)))


def init_fill(e, P_MEM0, MW, B, SR):
    M1, T1, T2, TH, MP, HP = B, B + 4, B + 5, B + 6, B + 7, B + 8
    ws = s(S_WS, 4)
    mem0_load(e, P_MEM0, HP, T1, T2, TH, SR)
    for k in range(4):
        e("v_mov_b32 %s, -1" % v(M1 + k))

    def fill8k(so):
        e("buffer_store_dwordx4 %s, %s, %s, %s offen sc1" % (v(M1, 4), v(MW), ws, s(so)))
        e("buffer_store_dwordx4 %s, %s, %s, %s offen offset:1024 sc1" % (v(M1, 4), v(MW), ws, s(so)))
    e("s_lshl_b32 %s, %s, 13" % (s(S_T0), s(S_H)))
    e("s_add_u32 %s, %s, 0x%x" % (s(S_T0), s(S_T0), PB_OFF))
    fill8k(S_T0)
    e("s_lshl_b32 %s, %s, 14" % (s(S_T0), s(S_H)))
    e("s_add_u32 %s, %s, 0x%x" % (s(S_T0), s(S_T0), HIST_OFF))
    e("s_add_u32 %s, %s, 0x2000" % (s(S_T1), s(S_T0)))
    fill8k(S_T0); fill8k(S_T1)
    e("s_mul_i32 %s, %s, 0x%x" % (s(S_T0), s(S_H), 2 * SLAB_ST))
    e("s_add_u32 %s, %s, 0x%x" % (s(S_T0), s(S_T0), SLAB_OFF + SLAB_ST + MB_IN + (0x4000000 if OPT.get("solo") else 0)))
    e("s_add_u32 %s, %s, 0x%x" % (s(S_T1), s(S_T0), SLAB_ST))
    fill8k(S_T0); fill8k(S_T1)
    e("v_lshlrev_b32 %s, 2, v0" % v(T1))
    e("s_lshl_b32 %s, %s, 10" % (s(S_T0), s(S_H)))
    for base in (FLAG_OFF + 0x4000, 0x1B0000, 0x1B8000):
        e("s_add_u32 %s, %s, 0x%x" % (s(S_T1), s(S_T0), base))
        e("buffer_store_dword %s, %s, %s, %s offen sc1" % (v(M1), v(T1), ws, s(S_T1)))
    e("v_mov_b32 %s, 0x%x" % (v(T2), OOB))
    e("v_cmp_lt_u32 vcc, 63, v0")
    e("v_cndmask_b32 %s, %s, %s, vcc" % (v(T1), v(T1), v(T2)))
    e("v_mov_b32 %s, %d" % (v(M1 + 9), 0 if OPT.get("kvflags", 1) else 1))
    e("s_lshl_b32 %s, %s, 8" % (s(S_T0), s(S_H)))
    e("s_add_u32 %s, %s, 0x%x" % (s(S_T1), s(S_T0), FLAG_OFF + 0x2000))
    e("buffer_store_dword %s, %s, %s, %s offen sc1" % (v(M1 + 9), v(T1), ws, s(S_T1)))
    e("s_mul_i32 %s, %s, 0x%x" % (s(S_T0), s(S_H), 2 * SLAB_ST))
    e("s_add_u32 %s, %s, 0x%x" % (s(S_T0), s(S_T0), SLAB_OFF + FL_IN))
    e("s_add_u32 %s, %s, 0x%x" % (s(S_T1), s(S_T0), SLAB_ST))
    e("buffer_store_dword %s, %s, %s, %s offen sc1" % (v(M1 + 9), v(T1), ws, s(S_T0)))
    e("buffer_store_dword %s, %s, %s, %s offen sc1" % (v(M1 + 9), v(T1), ws, s(S_T1)))
    if OPT.get("push"):
        e("v_mov_b32 %s, 0" % v(TH))
        e("s_lshl_b32 %s, %s, 8" % (s(S_T0), s(S_H)))
        e("s_add_u32 %s, %s, 0x%x" % (s(S_T0), s(S_T0), SYNC_OFF))
        e("buffer_store_dword %s, %s, %s, %s offen sc1" % (v(TH), v(T1), ws, s(S_T0)))
    mp_addr(e, MP, T1, T2)
    e("s_waitcnt vmcnt(16)")
    e("s_mov_b32 %s, 0x%x" % (s(S_T0), SLAB_OFF))
    e("buffer_store_dword %s, %s, %s, %s offen sc1" % (v(HP), v(MP), ws, s(S_T0)))


def ready_publish(e, T1, T2):
    e("s_waitcnt vmcnt(0)")
    e("s_barrier")
    e("v_mov_b32 %s, 1" % v(T1))
    e("s_lshl_b32 %s, %s, 2" % (s(S_T1), s(S_H)))
    e("v_lshlrev_b32 %s, 20, v0" % v(T2))
    e("buffer_store_dword %s, %s, %s, %s offen sc1" % (v(T1), v(T2), s(S_DBG, 4), s(S_T1)))


def xcc_publish(e, q):
    T1, T2 = 30, 31
    e("s_getreg_b32 %s, hwreg(HW_REG_XCC_ID)" % s(S_T0))
    e("s_and_b32 %s, %s, 15" % (s(S_T0), s(S_T0)))
    e("s_or_b32 %s, %s, 0x100" % (s(S_T0), s(S_T0)))
    e("v_mov_b32 %s, %s" % (v(T1), s(S_T0)))
    e("s_lshl_b32 %s, %s, 2" % (s(S_T1), s(S_H)))
    e("v_lshlrev_b32 %s, 20, v0" % v(T2))
    e("buffer_store_dword %s, %s, %s, %s offen offset:128 sc1" % (v(T1), v(T2), s(S_DBG, 4), s(S_T1)))
    q.add("hs")


S_MODE = 41


def early_start(e, c, q):
    T1, T2 = 30, 31
    ws = s(S_WS, 4)
    hsl = "buffer_load_dword %s, %s, %s, 0 offen sc1" % (v(T1), v(T2), s(S_DBG, 4))
    pfi = lambda: e("buffer_load_dword %s, %s, %s, %s offen sc1" % (v(JUNK), v(C_PF), ws, s(S_MB)))
    if c == 8:
        e("v_lshrrev_b32 %s, 2, %s" % (v(T2), v(C_L16)))
        e(hsl)
        q.add("hs2")
    if c == 9:
        e.comment("---- buffers initialised (debug[0..31]) and all 32 chain workgroups reported their XCC id (debug[32..63]);")
        q.wait("hs2")
        e("s_mov_b32 %s, 1" % s(S_MODE))
        e.label("L_HS")
        e("v_cmp_eq_u32 vcc, 0, %s" % v(T1))
        e("s_cbranch_vccz L_HS_ok")
        e(hsl)
        e("s_add_u32 %s, %s, 1" % (s(S_TMO), s(S_TMO)))
        e("s_cmp_gt_u32 %s, %d" % (s(S_TMO), TMO_LIMIT))
        e("s_waitcnt vmcnt(0)")
        e("s_cbranch_scc0 L_HS")
        e("s_branch L_HS_done")
        e.label("L_HS_ok")
        e("v_readlane_b32 %s, %s, 63" % (s(S_T0), v(T1)))
        e("v_cmp_ne_u32 vcc, %s, %s" % (s(S_T0), v(T1)))
        e("s_nop 1")
        e("s_cmp_lg_u32 vcc_hi, 0")
        e("s_cselect_b32 %s, 1, %d" % (s(S_MODE), OPT.get("forceslow", 0)))
        e.label("L_HS_done")
        e("s_mov_b32 %s, 0x%x" % (s(S_MB), SLAB_OFF - SLAB_ST))
        pfi()
        q.add("pf0")
    if c == 11:
        q.wait("pf0")
        e.label("L_F0")
        e("v_readlane_b32 %s, %s, 33" % (s(S_T0), v(JUNK)))
        e("s_nop 1")
        e("s_cmp_lg_u32 %s, 0" % s(S_T0))
        e("s_cbranch_scc1 L_F0_ok")
        pfi()
        e("s_add_u32 %s, %s, 1" % (s(S_TMO), s(S_TMO)))
        e("s_cmp_gt_u32 %s, %d" % (s(S_TMO), TMO_LIMIT))
        e("s_waitcnt vmcnt(0)")
        e("s_cbranch_scc0 L_F0")
        e.label("L_F0_ok")
        e("s_mov_b32 %s, 0x%x" % (s(S_MB), SLAB_OFF))
        pfi()
        q.add("pf1")


def smf_ins(acc, aop, op):
    return "v_smfmac_f32_16x16x64_bf16 %s, %s, %s, %s" % (v(acc, 4), v(aop, 4), opreg(op), v(C_IDX))


def stamp(e, i, on):
    if on:
        e("s_memtime %s" % s(S_ST + 2 * i, 2))


am = lambda u: AM + 4 * u


def idle_prep_ins():
    out = []
    for op in (("Q", 0, 0), ("Q", 1, 0), ("Q", 0, 1), ("Q", 1, 1), ("K", 0, 0), ("K", 1, 0)):
        out += lds_fetch_ins(op)
    z = ["v_mov_b64 %s, 0" % v(r, 2) for r in range(ACCQ, ACCQ + 24, 2)]
    return out, z


def delay(e, cyc):
    n = cyc // 4
    while n > 0:
        k = min(n, 16)
        e("s_nop %d" % (k - 1))
        n -= k


def main_loop(e, tag, sc, nsteps, stamps=False):
    L = lambda n: "L_%s_%s" % (tag, n)
    ws = s(S_WS, 4)
    solo = OPT.get("solo")
    trace = OPT.get("trace")
    acc = {"Q": ACCQ, "K": ACCK, "V": ACCV}
    S = lambda m, T, u: smf_ins(acc[m] + 4 * T, am(u), (m, T, u))
    Q = lambda T, u: S("Q", T, u)
    K = lambda T, u: S("K", T, u)
    V = lambda T, u: S("V", T, u)
    lg = lambda n: "s_waitcnt lgkmcnt(%d)" % n
    BAR = "s_barrier"
    add = lambda b, r: "v_add_f32 %s, %s, %s" % (v(b + r), v(b + r), v(b + r + 2))
    cvt = lambda d, x, y: "v_cvt_pk_bf16_f32 %s, %s, %s" % (v(d), v(x), v(y))
    ex = lambda r: "v_exp_f32 %s, %s" % (v(r), v(r))
    mf32 = lambda d, A, B, first: "v_mfma_f32_16x16x32_bf16 %s, %s, %s, %s" % (v(d, 4), v(A, 4), v(B, 4), "0" if first else v(d, 4))
    mf16 = lambda d, A, B: "v_mfma_f32_16x16x16_bf16 %s, %s, %s, %s" % (v(d, 4), v(A, 2), v(B, 2), v(d, 4))

    def run(sched, extra=None):
        for i_, (m_, rest) in enumerate(sched):
            e(m_)
            for x in (extra or {}).get(i_, []) + rest:
                if x.endswith(":"):
                    e.label(x[:-1])
                else:
                    e(x)
    e.label(L("start"))
    e("s_mov_b32 %s, 0" % s(S_STEP))
    e("s_mov_b32 %s, 0x%x" % (s(S_SLAB), SLAB_OFF))
    e("s_mov_b32 %s, 0" % s(S_PAR))
    e("s_mov_b32 %s, 0x%x" % (s(S_HIST), HIST_OFF - MB_IN))
    e("s_mov_b32 %s, 0x%x" % (s(S_OOB), OOB))
    if OPT.get("push"):
        e("s_add_u32 %s, %s, 0x%x" % (s(S_SY), s(S_WS), SYNC_OFF))
        e("s_addc_u32 %s, %s, 0" % (s(S_SY + 1), s(S_WS + 1)))
        e("s_mov_b32 %s, 4096" % s(S_SY + 2))
        e("s_mov_b32 %s, 0x20000" % s(S_SY + 3))
        e("s_lshl_b32 %s, %s, 7" % (s(S_FR), s(S_H)))
        e("s_lshl_b32 %s, %s, 2" % (s(S_FW), s(S_H)))
        e("s_cmp_eq_u32 %s, 3" % s(S_WAVE))
        e("s_cselect_b32 %s, %s, %s" % (s(S_FW), s(S_FW), s(S_OOB)))
    for u in (1, 2, 3):
        e("s_mov_b32 %s, 0x%x" % (s(S_U0 + u), u * 2048))
    e("s_mov_b32 %s, 0xcccccccc" % s(S_HM))
    e("s_mov_b32 %s, 0xcccccccc" % s(S_HM + 1))
    e("s_mov_b32 %s, 0" % s(S_SPIN))
    f, z = idle_prep_ins()
    for t in f + z:
        e(t)
    mldp = lambda P: ["buffer_load_dwordx4 %s, %s, %s, %s offen sc1" % (v(P, 4), v(C_MW), ws, s(S_MB)),
                      "buffer_load_dwordx4 %s, %s, %s, %s offen offset:1024 sc1" % (v(P + 4, 4), v(C_MW), ws, s(S_MB))]
    mld = mldp(AM)
    e("s_add_u32 %s, %s, 0x%x" % (s(S_MB), s(S_SLAB), MB_IN))
    for t in mld:
        e(t)
    e("s_waitcnt vmcnt(2)")
    e.label(L("step"))
    e("v_readlane_b32 %s, %s, 33" % (s(S_T0), v(JUNK)))
    e("s_add_u32 %s, %s, 0x%x" % (s(S_SLABN), s(S_SLAB), SLAB_ST))
    e("s_cmp_eq_u32 %s, 0" % s(S_T0))
    e("s_cbranch_scc1 %s" % L("refresh"))
    e.label(L("fresh"))
    e("s_add_u32 %s, %s, %s" % (s(S_KX), s(S_SLAB), s(S_KXO)))
    e("s_add_u32 %s, %s, %s" % (s(S_VX), s(S_SLAB), s(S_VXO)))
    e("s_xor_b32 %s, %s, 1" % (s(S_NPAR), s(S_PAR)))
    e("s_add_u32 %s, %s, 1" % (s(S_NEXT), s(S_STEP)))
    if OPT.get("push"):
        e("s_mov_b32 %s, %s" % (s(S_NX2), s(S_NEXT)))
        e("v_mov_b32 %s, %s" % (v(FREE1), s(S_NEXT)))
    tr = 2
    if OPT.get("m3"):
        tr = 4
        delay(e, OPT.get("pm0", 0))
        for x in mld:
            e(x)
    ns = OPT.get("ns", 0)
    if ns:
        e("s_cmp_lt_u32 %s, %d" % (s(S_WAVE), ns))
        e("s_cbranch_scc1 %s" % L("onem"))
    delay(e, OPT.get("pm", 64) - (24 if ns else 0))
    e.label(L("retrym"))
    for x in mld:
        e(x)
    e.label(L("prem"))
    e("s_add_u32 %s, %s, 1" % (s(S_TMO), s(S_TMO)))
    e("s_cmp_gt_u32 %s, %d" % (s(S_TMO), TMO_LIMIT))
    e("s_cselect_b32 %s, -1, -2" % s(S_LIM))
    e("v_xor_b32 %s, 0x800, %s" % (v(am(3)), v(C_MW)))
    e("v_xor_b32 %s, 0x1800, %s" % (v(am(7)), v(C_MW)))
    for x in z[:4]:
        e(x)
    e.label(L("waitm"))
    e("s_waitcnt vmcnt(%d) lgkmcnt(0)" % (1 + tr))
    e.label(L("gotm"))
    stamp(e, 0, stamps)
    T1 = am(2)
    mw = ["ds_write_b128 %s, %s offset:%d" % (v(C_MW), v(am(k), 4), L_MEMI + 1024 * k) for k in range(2)]
    PK = ACCK
    pst = lambda q: "buffer_store_dwordx2 %s, %s, %s, %s offen offset:%d%s" % (v(PK + 2 * q, 2), v(C_PW), ws, "0" if q < 2 else s(S_4K), (q & 1) * 2048, sc or OPT.get("pstf", ""))
    tg = lambda q: "v_and_or_b32 %s, %s, -2, %s" % (v(PK + 2 * q), v(PK + 2 * q), s(S_TAG))
    kx = lambda ks: "buffer_load_dwordx4 %s, %s, %s, %s offen offset:%d sc1" % (v(XB + 4 * ks, 4), v(C_L16), ws, s(S_KX), ks * 1024)
    vx = lambda T: "buffer_load_dwordx4 %s, %s, %s, %s offen offset:%d sc1" % (v(VX + 4 * T, 4), v(C_L16), ws, s(S_VX), T * 1024)
    amrd = lambda u: "ds_read_b128 %s, %s offset:%d" % (v(am(u), 4), v(C_X2 if u >> 1 == 2 else am(u | 1)), L_MEMI + (u & 1) * 1024)
    q7 = lds_fetch_ins(("Q", 0, 7)) + lds_fetch_ins(("Q", 1, 7))
    k2 = lds_fetch_ins(("K", 0, 2)) + lds_fetch_ins(("K", 1, 2))
    k7 = lds_fetch_ins(("K", 0, 7)) + lds_fetch_ins(("K", 1, 7))
    of = sum([lds_fetch_ins(op) for op in OLDS], [])
    qbrd = lambda ks: "ds_read_b128 %s, %s offset:%d" % (v(QB + 4 * ks, 4), v(C_QR), 64 * ks)
    KM = XA
    kmrd = lambda ks: "ds_read_b128 %s, %s offset:%d" % (v(KM + 4 * ks, 4), v(C_QR), L_KMX - L_QX + 64 * ks)
    SX, SM = ACCQ, ACCQ + 4
    ONES, PX, PM, VM0, VM1 = XB, XB + 4, XB + 8, XB + 10, XB + 12
    TA = XB + 14
    LS, OA, OP = SX, ACCK, SM
    smx = lambda ks: mf32(SX, XB + 4 * ks, QB + 4 * ks, ks == 0)
    smm = lambda ks: mf32(SM, KM + 4 * ks, QB + 4 * ks, ks == 0)
    pf = "buffer_load_dword %s, %s, %s, %s offen sc1" % (v(JUNK), v(C_PF), ws, s(S_SLABN))
    hist = "buffer_store_dword %s, %s, %s, %s offen sc1" % (v(HPEND), v(C_MP), ws, s(S_HIST))
    zw = ["v_mov_b64 %s, 0" % v(r, 2) for r in range(AM, AM + 16, 2)]
    OOP = AM + 12
    o64 = OPT.get("o64", 1)
    if o64:
        oad = ["v_bitop3_b32 %s, %s, %s, -9 bitop3:0x28" % (v(OOP + 4 * u), v(C_FL), s(S_U0 + u)) for u in (1, 2, 3)]
    else:
        oad = ["v_xor_b32 %s, 0x%x, %s" % (v(OOP + 4 * u), u * 2048, v(C_MW)) for u in (1, 3)]
    L_OE = L_PX + 1024
    mx3 = lambda d, x, y, z_: "v_max3_u32 %s, %s, %s, %s" % (v(d), v(x), v(y), v(z_))
    mov0 = lambda r: "v_mov_b32 %s, 0" % v(r)
    push = OPT.get("push", 0) and not solo
    F0, FA, FS = AM + 28, AM + 29, AM + 30
    fst = "buffer_store_dword %s, %s, %s, %s offen%s" % (v(FREE1), v(FS), s(S_SY, 4), s(S_FW), sc)
    fld = "buffer_load_dword %s, %s, %s, %s offen sc1" % (v(F0), v(FA), s(S_SY, 4), s(S_FR))
    fw = OPT.get("fw", 2)
    fsc = "v_lshlrev_b32 %s, 3, %s" % (v(FS), v(C_L16))
    ex0 = {}
    if push and fw < 0:
        ex0 = {62 + fw: [fst]}
    early = OPT.get("early", 1)
    e(mx3(T0, AM, AM + 1, AM + 2))
    e("v_max_u32 %s, %s, %s" % (v(T0), v(T0), v(AM + 3)))
    run([
        (Q(0, 0), ["s_waitcnt vmcnt(%d)" % tr, mx3(T0, T0, AM + 4, AM + 5)]),
        (Q(1, 0), [mx3(T0, T0, AM + 6, AM + 7), "v_cmp_lt_u32 vcc, %s, %s" % (s(S_LIM), v(T0))]),
        (Q(0, 1), [mw[0]] + ([] if solo else ["s_cbranch_vccnz %s" % L("retrym")])),
        (Q(1, 1), [mw[1]]),
        (K(0, 0), [kx(0), vx(0)] if early else [kx(0)]),
        (K(1, 0), [kx(1), vx(1)] if early else [kx(1)]),
        (K(0, 1), [kx(2), kx(3)] if early else [kx(2)]),
        (K(1, 1), [lg(0), BAR, amrd(2)]),
        (V(0, 0), [amrd(3)]),
        (V(1, 0), [pf] if early else [kx(3)]),
        (V(0, 1), [amrd(4)]),
        (V(1, 1), [amrd(5), lg(3)]),
        (Q(0, 2), [amrd(6)]),
        (Q(1, 2), [amrd(7), lg(4)]),
        (Q(0, 3), [q7[0]]),
        (Q(1, 3), [q7[1], lg(4)]),
        (Q(0, 4), [q7[2]]),
        (Q(1, 4), [q7[3], lg(4)]),
        (Q(0, 5), [] if early else [vx(0)]),
        (Q(1, 5), [k2[0]]),
        (Q(0, 6), [] if early else [vx(1)]),
        (Q(1, 6), [k2[1], lg(2)]),
        (Q(0, 7), [k2[2]]),
        (Q(1, 7), [k2[3]]),
        (K(0, 3), [k7[0]]),
        (K(1, 3), [k7[1]]),
        (K(0, 4), [k7[2], add(ACCQ, 0), add(ACCQ, 1)]),
        (K(1, 4), [k7[3], add(ACCQ + 4, 0), add(ACCQ + 4, 1)]),
        (K(0, 5), [lg(4), cvt(ACCQ + 2, ACCQ, ACCQ + 4), cvt(ACCQ + 3, ACCQ + 1, ACCQ + 5)]),
        (K(0, 2), ["ds_write2_b32 %s, %s, %s offset0:0 offset1:%d" % (v(C_QW), v(ACCQ + 2), v(ACCQ + 3), RS)]),
        (K(1, 2), [] if early else [pf]),
        (K(1, 5), []),
        (K(0, 6), [hist]),
        (K(1, 6), [lg(0), BAR]),
        (K(0, 7), [qbrd(0)]),
        (K(1, 7), [qbrd(1)]),
        (V(0, 2), [qbrd(2)]),
        (V(1, 2), [qbrd(3), "s_waitcnt vmcnt(2) lgkmcnt(3)"]),
        (smx(0), [lg(2), add(ACCK, 0), add(ACCK, 1)]),
        (smx(1), [lg(1), add(ACCK + 4, 0), add(ACCK + 4, 1)]),
        (smx(2), [lg(0), cvt(ACCK + 2, ACCK, ACCK + 4), cvt(ACCK + 3, ACCK + 1, ACCK + 5)]),
        (smx(3), ["ds_write2_b32 %s, %s, %s offset0:0 offset1:%d" % (v(C_KW), v(ACCK + 2), v(ACCK + 3), RS)]),
        (V(0, 3), ["v_mov_b64 %s, %s" % (v(ONES, 2), s(S_ONES, 2))]),
        (V(1, 3), ["s_nop 1", "v_mov_b64 %s, %s" % (v(ONES + 2, 2), s(S_ONES, 2))]),
        (V(0, 4), [ex(SX)]),
        (V(1, 4), [lg(0), BAR, ex(SX + 1)]),
        (V(0, 5), [kmrd(0), ex(SX + 2)]),
        (V(1, 5), [kmrd(1), ex(SX + 3)]),
        (V(0, 6), [kmrd(2), cvt(PX, SX, SX + 1), cvt(PX + 1, SX + 2, SX + 3)]),
        (V(1, 6), [kmrd(3), "ds_write_b64 %s, %s offset:%d" % (v(C_MW), v(PX, 2), L_PX), lg(4)]),
        (smm(0), [lg(3), mov0(PM + 1), mov0(VM0 + 1)]),
        (smm(1), [lg(2), mov0(VM1 + 1), zw.pop(0)]),
        (smm(2), [lg(1), zw.pop(0), zw.pop(0)]),
        (smm(3), [lg(0), BAR]),
        (V(0, 7), ["ds_read_b64 %s, %s offset:%d" % (v(PX + 2, 2), v(C_X2), L_PX), zw.pop(0)]),
        (V(1, 7), ([fsc] if push else []) + [zw.pop(0), zw.pop(0), "v_mul_f32 %s, %s, %s" % (v(SM), s(S_SCALE), v(SM)), "v_mul_f32 %s, %s, %s" % (v(SM + 1), s(S_SCALE), v(SM + 1)),
                   ex(SM), lg(0)]),
        (mf32(LS, ONES, PX, True), [ex(SM + 1), add(ACCV, 0)]),
        (mf32(OA, VX, PX, True), [cvt(PM, SM, SM + 1), add(ACCV, 1)]),
        (mf32(OA + 4, VX + 4, PX, True), [cvt(VM0, ACCV, ACCV + 1), add(ACCV + 4, 0)]),
        (mf16(LS, ONES, PM), [add(ACCV + 4, 1), cvt(VM1, ACCV + 4, ACCV + 5)]),
        (mf16(OA, VM0, PM), [zw.pop(0), zw.pop(0)]),
        (mf16(OA + 4, VM1, PM), [oad[0], oad[1], "v_rcp_f32 %s, %s" % (v(TA), v(LS))] + oad[2:]),
    ], ex0)
    assert not zw
    e("v_max_f32 %s, %s, %s" % (v(T0), v(TA), v(LS)))
    e("v_cmp_nge_f32 vcc, %s, %s" % (s(S_BIG), v(T0)))
    for r in (0, 2, 4, 6):
        e("v_pk_mul_f32 %s, %s, %s op_sel_hi:[1,0]" % (v(OA + r, 2), v(OA + r, 2), v(TA, 2)))
    for r in (0, 2, 1, 3):
        e(cvt(OP + r, OA + r, OA + 4 + r))
    if OPT.get("pflat"):
        e("s_memtime s[74:75]")
        e("s_waitcnt vmcnt(1)")
        e("s_memtime s[72:73]")
        e("s_waitcnt lgkmcnt(0)")
    e.label(L("rejoin"))
    if o64:
        for k in range(2):
            e("v_cndmask_b32 %s, %s, %s, %s" % (v(LS + 2 + k), v(OP + k), v(OP + 2 + k), s(S_HM, 2)))
        e("ds_write_b64 %s, %s offset:%d" % (v(C_FL), v(LS + 2, 2), L_OE))
    else:
        e("ds_write_b128 %s, %s offset:%d" % (v(C_MW), v(OP, 4), L_OE))
    WACC = AM
    SO = lambda q, u: smf_ins(WACC + 4 * q, OP if u == 0 else OOP + 4 * u, ("O", q, u))
    ord_ = lambda u: "ds_read_b128 %s, %s offset:%d" % (v(OOP + 4 * u, 4), v(C_X2 if u == 2 and not o64 else OOP + 4 * u), L_OE)
    SEL, RD = ACCV, ACCV + 4
    wc = lambda q, r: cvt(PK + 2 * q + r, WACC + 4 * q + r, WACC + 4 * q + 2 + r)
    extra = {}
    if push:
        extra = {fw: [fst]} if fw >= 0 else {}
        for pos in (OPT.get("fr", 7), OPT.get("fr2", 11), OPT.get("fr3", 14)):
            extra.setdefault(pos, []).append(fld)
    run([
        (SO(0, 0), ["v_bfe_u32 %s, %s, 2, 7" % (v(FA), v(C_L16)), mov0(F0)] if push else []),
        (SO(1, 0), [lg(0), BAR, ord_(1), ord_(2)] if OPT.get("b4", 1) else []),
        (SO(2, 0), [ord_(3)] if OPT.get("b4", 1) else [lg(0), BAR, ord_(1), ord_(2)]),
        (SO(3, 0), ([] if OPT.get("b4", 1) else [ord_(3)]) + [of[0], of[1], lg(4)]),
        (SO(0, 1), [of[2], lg(4)]),
        (SO(0, 2), [of[3], lg(4)]),
        (SO(0, 3), [of[4], "s_cmp_lg_u64 vcc, 0"]),
        (SO(1, 1), [of[5], "s_cselect_b32 %s, %s, %s" % (s(S_TAG), s(S_NPAR), s(S_PAR))]),
        (SO(1, 2), [of[6], wc(0, 0)] + ([wc(0, 1), tg(0)] if OPT.get("fs") else [])),
        (SO(1, 3), [pst(0)] if OPT.get("fs") else [of[7], wc(0, 1), tg(0)]),
        (SO(2, 1), [of[7]] if OPT.get("fs") else [pst(0)]),
        (SO(2, 2), [lg(4), "s_nop 0", wc(1, 0)]),
        (SO(2, 3), ["ds_read_b128 %s, %s offset:%d" % (v(SEL, 4), v(C_L16), L_SEL), wc(1, 1), tg(1)]),
        (SO(3, 1), [pst(1), lg(1)]),
        (SO(3, 2), ["s_nop 1", wc(2, 0)]),
        (SO(3, 3), ["s_nop 2", wc(2, 1), tg(2), pst(2), wc(3, 0), wc(3, 1), tg(3), pst(3)]),
    ], extra)
    e.label(L("stored"))
    stamp(e, 1, stamps)
    e("s_cmp_lg_u32 %s, %s" % (s(S_TAG), s(S_PAR)))
    e("s_cbranch_scc1 %s" % L("safe"))
    f, z = idle_prep_ins()
    n0 = OPT.get("n0", 12)
    PD = VX
    pld = lambda P: ["buffer_load_dwordx4 %s, %s, %s, %s offen sc1" % (v(P, 4), v(C_MW), ws, s(S_PR)),
                     "buffer_load_dwordx4 %s, %s, %s, %s offen offset:1024 sc1" % (v(P + 4, 4), v(C_MW), ws, s(S_PR))]
    pub = "buffer_store_dword %s, %s, %s, %s offen%s" % (v(HPEND), v(C_MP), ws, s(S_T0), sc)
    if push:
        e.label(L("sync"))
        e("v_cmp_gt_u32 vcc, %s, %s" % (s(S_NX2), v(F0)))
        e(fld)
        e("s_add_u32 %s, %s, 1" % (s(S_SPIN), s(S_SPIN)))
        e("s_cmp_le_u32 %s, %d" % (s(S_SPIN), TMO_LIMIT * 8))
        e("s_cselect_b32 %s, %s, 0" % (s(S_NX2), s(S_NX2)))
        e("s_waitcnt vmcnt(24)")
        delay(e, OPT.get("sper", 0))
        e("s_cbranch_vccnz %s" % L("sync"))
    for x in f[:n0]:
        e(x)
    delay(e, OPT.get("d1", 0))
    for q in range(1, 4):
        e("s_cmp_lt_u32 %s, %d" % (s(S_WAVE), q))
        e("s_cbranch_scc1 %s" % L("pollp"))
        delay(e, OPT.get("dp", 48))
    e.label(L("pollp"))
    stamp(e, 4, stamps and not OPT.get("pflat"))
    PB_ = AM + 16
    for x in pld(PD):
        e(x)
    for x in f[n0:] + z[4:8]:
        e(x)
    p1 = OPT.get("p1")
    if ns:
        e("s_cmp_lt_u32 %s, %d" % (s(S_WAVE), ns))
        e("s_cbranch_scc1 %s" % L("onep"))
    if not p1:
        delay(e, OPT.get("pp", 128) - (24 if ns else 0))
        for x in pld(PB_):
            e(x)
    e.label(L("prep"))
    e("s_add_u32 %s, %s, 0x%x" % (s(S_MB), s(S_SLABN), MB_IN))
    chk = lambda P: ["v_bitop3_b32 %s, %s, %s, %s bitop3:0x7e" % (v(T0), v(P), v(P + 2), s(S_PAR)),
                     "v_bitop3_b32 %s, %s, %s, %s bitop3:0x7e" % (v(FREE1), v(P + 4), v(P + 6), s(S_PAR)),
                     "v_bitop3_b32 %s, %s, %s, 1 bitop3:0xa8" % (v(T0), v(T0), v(FREE1)),
                     "v_cmp_ne_u32 vcc, 0, %s" % v(T0)]

    def finish():
        for rot in (8, 4):
            for r in (0, 1):
                e("v_add_f32_dpp %s, %s, %s row_ror:%d row_mask:0xf bank_mask:0xf" % (v(RD + r), v(RD + r), v(RD + r), rot))
        e(cvt(HPEND, RD, RD + 1))
        e(pub)

    def attempt(P, base):
        e("s_waitcnt vmcnt(%d) lgkmcnt(0)" % (base + 1))
        e(mf32(RD, SEL, P, True))
        e(chk(P)[0])
        e("s_waitcnt vmcnt(%d)" % base)
        e(mf32(RD, SEL, P + 4, False))
        for x in chk(P)[1:]:
            e(x)
        e("s_nop 2")
        e("s_cmp_eq_u64 vcc, 0")
        e("s_cselect_b32 %s, %s, %s" % (s(S_T0), s(S_HIST if solo else S_SLABN), s(S_OOB)))
        finish()
    attempt(PD, 0 if p1 else 2)
    if not solo:
        e("s_cbranch_scc1 %s" % L("gotp"))
        if p1:
            for x in pld(PB_):
                e(x)
            e(pub)
            delay(e, 96)
        e.label(L("retryp"))
        for x in pld(PD):
            e(x)
        attempt(PB_, 3)
        e("s_cbranch_scc1 %s" % L("gotp"))
        for x in pld(PB_):
            e(x)
        attempt(PD, 3)
        e("s_cbranch_scc1 %s" % L("gotp"))
        e("s_add_u32 %s, %s, 1" % (s(S_TMO), s(S_TMO)))
        e("s_cmp_le_u32 %s, %d" % (s(S_TMO), TMO_LIMIT))
        e("s_cbranch_scc1 %s" % L("retryp"))
        e("s_mov_b32 %s, %s" % (s(S_T0), s(S_SLABN)))
        e(pub)
    e.label(L("gotp"))
    stamp(e, 2, stamps)
    e("s_add_u32 %s, %s, 0x2000" % (s(S_HIST), s(S_HIST)))
    e("s_cmp_ge_u32 %s, %d" % (s(S_NEXT), nsteps))
    e("s_cbranch_scc1 %s" % L("last"))
    e("s_mov_b32 %s, %s" % (s(S_SLAB), s(S_SLABN)))
    e("s_mov_b32 %s, %s" % (s(S_STEP), s(S_NEXT)))
    e("s_mov_b32 %s, %s" % (s(S_PAR), s(S_NPAR)))
    for x in z[8:]:
        e(x)
    if trace:
        e("s_memrealtime s[100:101]")
        e("s_memtime s[70:71]")
        e("s_lshl_b32 s3, %s, 2" % s(S_H))
        e("s_add_u32 s3, s3, %s" % s(S_WAVE))
        e("s_lshl_b32 s3, s3, 6")
        e("s_add_u32 s3, s3, %s" % s(S_STEP))
        e("s_lshl_b32 s3, s3, 5")
        e("s_add_u32 s3, s3, 0x200000")
        e("s_waitcnt lgkmcnt(0)")
        for k, r in enumerate((64, 66, 68, 100, 70, 72, 74, S_TMO)):
            e("v_mov_b32 %s, %s" % (v(AM + 8 + k), s(r)))
        e("buffer_store_dwordx4 %s, off, %s, s3" % (v(AM + 8, 4), ws))
        e("buffer_store_dwordx4 %s, off, %s, s3 offset:16" % (v(AM + 12, 4), ws))
    delay(e, OPT.get("dm", 112) - (128 if trace else 0))
    if ns and OPT.get("dmx"):
        e("s_cmp_ge_u32 %s, %d" % (s(S_WAVE), ns))
        e("s_cbranch_scc1 %s" % L("firem"))
        delay(e, OPT.get("dmx"))
        e.label(L("firem"))
    stamp(e, 5, stamps and not OPT.get("pflat"))
    for x in mld:
        e(x)
    e("s_branch %s" % L("step"))
    e.label(L("last"))
    e(hist)
    e("s_branch %s" % L("done"))
    if ns:
        e.label(L("onem"))
        e("s_waitcnt vmcnt(0)")
        e("s_branch %s" % L("prem"))
        e.label(L("onep"))
        e("v_mov_b32 %s, %s" % (v(PB_), s(S_NPAR)))
        e("s_waitcnt vmcnt(0)")
        e("s_branch %s" % L("prep"))
    e.label(L("refresh"))
    e("buffer_load_dword %s, %s, %s, %s offen sc1" % (v(JUNK), v(C_PF), ws, s(S_SLAB)))
    e("s_add_u32 %s, %s, 1" % (s(S_TMO), s(S_TMO)))
    e("s_cmp_le_u32 %s, %d" % (s(S_TMO), TMO_LIMIT))
    e("s_waitcnt vmcnt(0)")
    e("s_cbranch_scc1 %s" % L("step"))
    e("s_branch %s" % L("fresh"))
    e.label(L("safe"))
    e.fence(12)
    e("s_waitcnt vmcnt(0) lgkmcnt(0)")
    e("s_barrier")
    W = AM
    for ks in range(4):
        e(qbrd(ks))
        e(kmrd(ks))
    e("s_xor_b32 %s, %s, 0x1000" % (s(S_T0), s(S_KXO)))
    e("s_add_u32 %s, %s, %s" % (s(S_T0), s(S_T0), s(S_SLAB)))
    for ks in range(4):
        e("buffer_load_dwordx4 %s, %s, %s, %s offen offset:%d sc1" % (v(W + 4 * ks, 4), v(C_L16), ws, s(S_KX), ks * 1024))
        e("buffer_load_dwordx4 %s, %s, %s, %s offen offset:%d sc1" % (v(W + 16 + 4 * ks, 4), v(C_L16), ws, s(S_T0), ks * 1024))
    e("s_waitcnt vmcnt(0) lgkmcnt(0)")
    S0, S1, S2 = ACCQ, ACCQ + 4, ACCK
    for (d, src) in ((S0, W), (S1, W + 16), (S2, XA)):
        for ks in range(4):
            e(mf32(d, src + 4 * ks, QB + 4 * ks, ks == 0))
    M0_, M1_ = W, W + 1
    e("v_mul_f32 %s, %s, %s" % (v(S2), s(S_SCALE), v(S2)))
    e("v_mul_f32 %s, %s, %s" % (v(S2 + 1), s(S_SCALE), v(S2 + 1)))
    e("v_max3_f32 %s, %s, %s, %s" % (v(M0_), v(S0), v(S0 + 1), v(S0 + 2)))
    e("v_max3_f32 %s, %s, %s, %s" % (v(M0_), v(M0_), v(S0 + 3), v(S1)))
    e("v_max3_f32 %s, %s, %s, %s" % (v(M0_), v(M0_), v(S1 + 1), v(S1 + 2)))
    e("v_max3_f32 %s, %s, %s, %s" % (v(M0_), v(M0_), v(S1 + 3), v(S2)))
    e("v_max_f32 %s, %s, %s" % (v(M0_), v(M0_), v(S2 + 1)))
    for sw in ("v_permlane16_swap_b32", "v_permlane32_swap_b32"):
        e("v_mov_b32 %s, %s" % (v(M1_), v(M0_)))
        e("%s %s, %s" % (sw, v(M0_), v(M1_)))
        e("v_max_f32 %s, %s, %s" % (v(M0_), v(M0_), v(M1_)))
    for r in [S0 + i for i in range(8)] + [S2, S2 + 1]:
        e("v_sub_f32 %s, %s, %s" % (v(r), v(r), v(M0_)))
        e(ex(r))
    for q in range(4):
        e(cvt(PX + q, S0 + 2 * q, S0 + 2 * q + 1))
    e(cvt(PM, S2, S2 + 1))
    e(mf32(LS, ONES, PX, True)); e(mf32(OA, VX, PX, True)); e(mf32(OA + 4, VX + 4, PX, True))
    e(mf16(LS, ONES, PM)); e(mf16(OA, VM0, PM)); e(mf16(OA + 4, VM1, PM))
    e("v_rcp_f32 %s, %s" % (v(TA), v(LS)))
    for r in range(8):
        e("v_mul_f32 %s, %s, %s" % (v(OA + r), v(OA + r), v(TA)))
    for r in range(4):
        e(cvt(OP + r, OA + r, OA + 4 + r))
    for r in range(AM, AM + 16):
        e(mov0(r))
    for x in oad:
        e(x)
    if push:
        e(fsc)
    e("s_mov_b64 vcc, 0")
    e("s_branch %s" % L("rejoin"))
    e.label(L("done"))
```

```python
from asmlib import v, a, s
import chain as C
from chain import lin, srd, f32bits, S_WS, S_DBG, S_H, S_WAVE, S_TMO, S_SCALE, S_PLO, S_PHI, S_T0, S_T1, S_T2, TMO_LIMIT, OOB

FLAGTP = C.FLAG_OFF + 0x2000
RVAL = C.FLAG_OFF + 0x4000
ACT = C.FLAG_OFF + 0xC000
FLAGXN = FLAGTP + 0x400
XNI = 0x800000
RDONE = 0x1B8000
NREP = 6
HROW = 0x400000
XN2 = 0x600000
TP_OFF = 0x4000000
Q_DELTA = 0x8000000 - C.SLAB_OFF

X_T = 0
EX_Q = 0
EX_K = 8192
EX_KM = 16384
MEMI = 20480
EX_O = 0
RED = 28672
L_WO = 32768

S_X = 12
S_OUT = 60
S_WR = 92
S_R = 22
S_SEG = 23
S_A, S_B = 24, 25
S_TPB = 26
S_PAR = 27
S_J = 29
S_M0 = 64
S_MM = 72
S_ONES = C.S_ONES

W_L16, W_MW, W_XG, W_XW, W_XR0, W_XR1, W_WO, W_MR, W_EX, W_TPW, W_TPR, W_ROW, W_NEG, T0, T1 = range(1, 16)
assert T0 == C.T0
R0 = 16


def wreg(m, T, ks):
    idx = ("QKV".index(m) * 32 + ks * 2 + T) * 4
    return a(idx, 4) if idx < 256 else v(128 + idx - 256, 4)


def mf32(d, A, B, first):
    return "v_mfma_f32_16x16x32_bf16 %s, %s, %s, %s" % (v(d, 4), A, B, "0" if first else v(d, 4))


def cvt(d, x, y):
    return "v_cvt_pk_bf16_f32 %s, %s, %s" % (v(d), v(x), v(y))


def ids(e):
    e("s_and_b32 %s, s2, 7" % s(S_T0))
    e("s_sub_u32 %s, %s, 1" % (s(S_T0), s(S_T0)))
    e("s_lshl_b32 %s, %s, 5" % (s(S_T0), s(S_T0)))
    e("s_lshr_b32 %s, s2, 3" % s(S_T1))
    e("s_add_u32 %s, %s, %s" % (s(S_T0), s(S_T0), s(S_T1)))
    e("s_mul_i32 %s, %s, 10923" % (s(S_H), s(S_T0)))
    e("s_lshr_b32 %s, %s, 16" % (s(S_H), s(S_H)))
    e("s_mul_i32 %s, %s, %d" % (s(S_T1), s(S_H), NREP))
    e("s_sub_u32 %s, %s, %s" % (s(S_R), s(S_T0), s(S_T1)))


def setup(e):
    lin(e, W_L16, {k: 16 << k for k in range(6)})
    lin(e, W_MW, {**{k: 16 << k for k in range(6)}, 6: 2048, 7: 4096})
    lin(e, W_EX, {**{k: 16 << k for k in range(6)}, 6: 1024, 7: 2048})
    lin(e, W_WO, {**{k: 16 << k for k in range(6)}, 6: 32768, 7: 65536}, L_WO)
    lin(e, W_XG, {0: 16, 1: 32, 2: 64, 3: 1024, 4: 2048, 5: 4096, 6: 8192, 7: 16384})
    lin(e, W_XW, {0: 256, 1: 512, 2: 1024, 6: 128, 7: 16384})
    e("v_lshrrev_b32 %s, 3, v0" % v(T1))
    e("v_xor_b32 %s, %s, v0" % (v(T1), v(T1)))
    e("v_and_b32 %s, 7, %s" % (v(T1), v(T1)))
    e("v_lshl_add_u32 %s, %s, 4, %s" % (v(W_XW), v(T1), v(W_XW)))
    e("v_bfe_u32 %s, v0, 4, 2" % v(T1))
    e("v_lshlrev_b32 %s, 4, %s" % (v(T1), v(T1)))
    e("v_xor_b32 %s, %s, %s" % (v(W_XR0), v(T1), v(W_L16)))
    e("v_xor_b32 %s, 64, %s" % (v(W_XR1), v(W_XR0)))
    lin(e, W_MR, {0: 16, 1: 64, 2: 128, 4: 32, 5: 256}, MEMI)
    lin(e, W_TPW, {0: 16, 1: 32, 2: 64, 3: 128, 4: 4 * 32768, 5: 8 * 32768, 6: 256, 7: 512})
    lin(e, W_TPR, {0: 16, 1: 32, 2: 64, 3: 128, 4: 1024, 5: 2048, 6: 256, 7: 512})
    lin(e, W_ROW, {0: 16, 1: 32, 2: 64, 3: 128, 4: 4, 5: 8, 6: 256, 7: 512})
    e("v_mov_b32 %s, 0x%x" % (v(W_NEG), f32bits(-1e30)))
    e("v_and_b32 %s, 15, v0" % v(T0))
    e("v_bfe_u32 %s, v0, 4, 2" % v(T1))
    e("v_cmp_gt_u32 %s, 2, %s" % (s(S_MM, 2), v(T1)))
    e("v_lshlrev_b32 %s, 2, %s" % (v(T1), v(T1)))
    for r in range(4):
        e("v_cmp_le_u32 %s, %s, %s" % (s(S_M0 + 2 * r, 2), v(T1), v(T0)))
        e("v_add_u32 %s, 1, %s" % (v(T1), v(T1)))
    e("s_mov_b32 %s, 0x05040100" % s(S_PLO))
    e("s_mov_b32 %s, 0x07060302" % s(S_PHI))
    e("s_mov_b32 %s, 0x%x" % (s(S_SCALE), f32bits(128 ** -0.5 * 1.4426950408889634)))
    e("s_mov_b32 %s, 0" % s(S_TMO))
    e("s_mov_b32 %s, 0x3f803f80" % s(S_ONES))
    e("s_mov_b32 %s, 0x3f803f80" % s(S_ONES + 1))


def load_w(e, P, mats, pre=None):
    ptr = {"Q": P + 4, "K": P + 6, "V": P + 8}
    SRDS = {"Q": 96, "K": 40, "V": 76}

    def reads(m, ci):
        out = []
        for k in range(4):
            for T in range(2):
                idx = ("QKV".index(m) * 32 + (4 * ci + k) * 2 + T) * 4
                for u in range(2):
                    dst = a(idx + 2 * u, 2) if idx < 256 else v(128 + idx - 256 + 2 * u, 2)
                    out.append((dst, k, T, 4 * u))
        return out
    chunks = [(m, ci) for m in mats for ci in range(4)]

    def side(c, q):
        phase0(e, c, q)
    C.staged_load(e, chunks, ptr, SRDS, 2, lambda k: (k >> 1) << 7, {2: 32, 3: 64, 4: 128}, {2: 1, 3: 2, 4: 8, 5: 16}, False, reads, side, pre, 4)


def load_wo(e, P):
    VOFF = T1
    srd(e, 96, P + 10, 4096 * 512 * 2)
    lin(e, VOFF, {0: 16, 1: 32, 2: 64, 3: 128, 4: 4 * 1024, 5: 8 * 1024, 6: 256, 7: 512})
    e("s_lshl_b32 %s, %s, 17" % (s(S_T0), s(S_H)))
    TMP = 112

    def issue(ks):
        base = R0 + (ks % 3) * 32
        for j in range(8):
            e("s_add_u32 %s, %s, 0x%x" % (s(S_T1), s(S_T0), (32 * ks + 16 * (j & 1) + (j >> 1)) * 1024))
            e("buffer_load_dwordx4 %s, %s, %s, %s offen" % (v(base + 4 * j, 4), v(VOFF), s(96, 4), s(S_T1)))

    def consume(ks):
        base = R0 + (ks % 3) * 32
        for T in range(8):
            t = TMP + (T % 4) * 4
            if T == 4:
                e("s_waitcnt lgkmcnt(0)")
            for jj in range(4):
                e("v_perm_b32 %s, %s, %s, %s" % (v(t + jj), v(base + 4 * (2 * jj + 1) + (T >> 1)), v(base + 4 * (2 * jj) + (T >> 1)), s(S_PHI if T & 1 else S_PLO)))
            e("ds_write_b128 %s, %s offset:%d" % (v(W_WO), v(t, 4), (ks * 8 + T) * 1024))
        e("s_waitcnt lgkmcnt(0)")
    for ks in range(3):
        issue(ks)
    e("s_waitcnt vmcnt(16)")
    consume(0)
    issue(3)
    e("s_waitcnt vmcnt(16)")
    consume(1)
    e("s_waitcnt vmcnt(8)")
    consume(2)
    e("s_waitcnt vmcnt(0)")
    consume(3)


def dpp_add(e, r, ctrl):
    e("v_add_f32_dpp %s, %s, %s %s row_mask:0xf bank_mask:0xf" % (v(r), v(r), v(r), ctrl))


def wave_sum(e, regs, tmp):
    for ctrl in ("quad_perm:[1,0,3,2]", "quad_perm:[2,3,0,1]", "row_half_mirror", "row_mirror"):
        for r in regs:
            dpp_add(e, r, ctrl)
    for sw in ("v_permlane16_swap_b32", "v_permlane32_swap_b32"):
        for r in regs:
            e("v_mov_b32 %s, %s" % (v(tmp), v(r)))
            e("%s %s, %s" % (sw, v(r), v(tmp)))
            e("v_add_f32 %s, %s, %s" % (v(r), v(r), v(tmp)))


XR = R0 + 80


def x_issue(e, sseg):
    e("s_lshl_b32 %s, %s, 15" % (s(S_T0), s(sseg)))
    for i in range(8):
        e("buffer_load_dwordx4 %s, %s, %s, %s offen offset:%d" % (v(XR + 4 * i, 4), v(W_XG), s(S_X, 4), s(S_T0), i * 128))


def x_norm(e):
    SU, SQ, LO, HI = R0 + 72, R0 + 73, R0 + 74, R0 + 75
    lo = lambda d, x: e("v_lshlrev_b32 %s, 16, %s" % (v(d), v(x)))
    hi = lambda d, x: e("v_and_b32 %s, 0xffff0000, %s" % (v(d), v(x)))
    e("v_mov_b32 %s, 0" % v(SU))
    e("v_mov_b32 %s, 0" % v(SQ))
    for r in range(XR, XR + 32):
        e("v_dot2_f32_bf16 %s, %s, %s, %s" % (v(SU), v(r), s(S_ONES), v(SU)))
        e("v_dot2_f32_bf16 %s, %s, %s, %s" % (v(SQ), v(r), v(r), v(SQ)))
    e("s_nop 3")
    for ctrl in ("quad_perm:[1,0,3,2]", "quad_perm:[2,3,0,1]", "row_half_mirror"):
        dpp_add(e, SU, ctrl)
        dpp_add(e, SQ, ctrl)
    e("v_mul_f32 %s, 0x%x, %s" % (v(SU), f32bits(1 / 512), v(SU)))
    e("v_mul_f32 %s, 0x%x, %s" % (v(SQ), f32bits(1 / 512), v(SQ)))
    e("v_fma_f32 %s, -%s, %s, %s" % (v(SQ), v(SU), v(SU), v(SQ)))
    e("v_max_f32 %s, 0, %s" % (v(SQ), v(SQ)))
    e(cvt(T0, SU, SQ))
    lo(SU, T0); hi(SQ, T0)
    e("v_add_f32 %s, 0x%x, %s" % (v(SQ), f32bits(1e-5), v(SQ)))
    e(cvt(T0, SQ, SQ)); lo(SQ, T0)
    e("v_sqrt_f32 %s, %s" % (v(SQ), v(SQ)))
    e(cvt(T0, SQ, SQ)); lo(SQ, T0)
    e("v_rcp_f32 %s, %s" % (v(SQ), v(SQ)))
    for i in range(8):
        for q in range(4):
            r = XR + 4 * i + q
            lo(LO, r); hi(HI, r)
            e("v_sub_f32 %s, %s, %s" % (v(LO), v(LO), v(SU)))
            e("v_sub_f32 %s, %s, %s" % (v(HI), v(HI), v(SU)))
            e(cvt(r, LO, HI))
            lo(LO, r); hi(HI, r)
            e("v_mul_f32 %s, %s, %s" % (v(LO), v(LO), v(SQ)))
            e("v_mul_f32 %s, %s, %s" % (v(HI), v(HI), v(SQ)))
            e(cvt(r, LO, HI))
        e("ds_write_b128 %s, %s offset:%d" % (v(W_XW), v(XR + 4 * i, 4), X_T + i * 2048))


AQ, AK, AV = R0, R0 + 16, R0 + 32
XO = R0 + 48


def project(e, mats, r0, r1, extra=None):
    def rd(ks):
        b = XO + (ks & 1) * 8
        for kap in range(2):
            e("ds_read_b128 %s, %s offset:%d" % (v(b + 4 * kap, 4), v((r1 if ks & 1 else r0)[kap]), X_T + ks * 1024))
    rd(0)
    for ks in range(16):
        if ks + 1 < 16:
            rd(ks + 1)
            e("s_waitcnt lgkmcnt(2)")
        else:
            e("s_waitcnt lgkmcnt(0)")
        b = XO + (ks & 1) * 8
        if extra and ks in extra:
            extra[ks]()
        for m in mats:
            for T in range(2):
                for kap in range(2):
                    x = v(b + 4 * kap, 4)
                    if m == "V":
                        e(mf32(AV + 8 * kap + 4 * T, x, wreg(m, T, ks), ks == 0))
                    else:
                        e(mf32((AQ if m == "Q" else AK) + 8 * T + 4 * kap, wreg(m, T, ks), x, ks == 0))


def pack_qk(e, acc, dst, scale):
    if scale:
        for r in range(16):
            e("v_mul_f32 %s, %s, %s" % (v(acc + r), s(S_SCALE), v(acc + r)))
    for kap in range(2):
        for r in range(4):
            e(cvt(dst + 4 * kap + r, acc + 4 * kap + r, acc + 8 + 4 * kap + r))


def pack_v(e, dst):
    for T in range(2):
        for kap in range(2):
            for q in range(2):
                e(cvt(dst + 4 * T + 2 * kap + q, AV + 8 * kap + 4 * T + 2 * q, AV + 8 * kap + 4 * T + 2 * q + 1))


def signal(e, soff):
    e("s_waitcnt vmcnt(0)")
    e("s_barrier")
    flag_store(e, soff)


def wait_handshake(e, L="L_WHS"):
    e("v_lshrrev_b32 %s, 2, %s" % (v(T1), v(W_L16)))
    e("v_and_b32 %s, 127, %s" % (v(T1), v(T1)))
    e.label(L)
    e("buffer_load_dword %s, %s, %s, 0 offen sc1" % (v(T0), v(T1), s(S_DBG, 4)))
    e("s_add_u32 %s, %s, 1" % (s(S_TMO), s(S_TMO)))
    e("s_cmp_gt_u32 %s, %d" % (s(S_TMO), TMO_LIMIT))
    e("s_cbranch_scc1 %s_done" % L)
    e("s_waitcnt vmcnt(0)")
    e("v_cmp_eq_u32 vcc, 0, %s" % v(T0))
    e("s_cbranch_vccnz %s" % L)
    e.label(L + "_done")


def flag_store(e, soff):
    e("v_cmp_ne_u32 vcc, 0, v0")
    e("v_mov_b32 %s, 0x%x" % (v(T1), OOB))
    e("v_mov_b32 %s, 1" % v(T0))
    e("v_cndmask_b32 %s, v0, %s, vcc" % (v(T1), v(T1)))
    e("buffer_store_dword %s, %s, %s, %s offen sc1" % (v(T0), v(T1), s(S_WS, 4), s(soff)))


def xn_produce(e, mid):
    ws = s(S_WS, 4)
    e("s_lshr_b32 %s, s2, 3" % s(S_SEG))
    e("s_lshl_b32 %s, %s, 1" % (s(S_SEG), s(S_SEG)))
    x_issue(e, S_SEG)
    e("s_add_u32 %s, %s, 0x8000" % (s(S_T0), s(S_T0)))
    for i in range(8):
        e("buffer_load_dwordx4 %s, %s, %s, %s offen offset:%d" % (v(128 + 4 * i, 4), v(W_XG), s(S_X, 4), s(S_T0), i * 128))
    mid()
    e.label("L_XN")
    x_norm(e)
    e("s_waitcnt lgkmcnt(0)")
    e("s_barrier")
    e("s_lshl_b32 %s, %s, 15" % (s(S_A), s(S_SEG)))
    e("s_add_u32 %s, %s, 0x%x" % (s(S_A), s(S_A), XNI))
    for i in range(8):
        e("ds_read_b128 %s, %s offset:%d" % (v(R0 + 8 + 4 * i, 4), v(W_EX), i * 4096))
    for i in range(8):
        e("s_waitcnt lgkmcnt(%d)" % (7 - i))
        e("s_add_u32 %s, %s, %d" % (s(S_T0), s(S_A), i * 4096))
        e("buffer_store_dwordx4 %s, %s, %s, %s offen sc1" % (v(R0 + 8 + 4 * i, 4), v(W_EX), ws, s(S_T0)))
    e("s_barrier")
    for r in range(0, 32, 2):
        e("v_mov_b64 %s, %s" % (v(XR + r, 2), v(128 + r, 2)))
    e("s_add_u32 %s, %s, 1" % (s(S_SEG), s(S_SEG)))
    e("s_bitcmp1_b32 %s, 0" % s(S_SEG))
    e("s_cbranch_scc1 L_XN")
    C.ready_publish(e, T0, T1)


S_KVB = 30
S_BUF = 31


def x_dma(e, sseg, sbuf):
    e("s_lshl_b32 %s, %s, 15" % (s(S_T0), s(sseg)))
    e("s_add_u32 %s, %s, 0x%x" % (s(S_T0), s(S_T0), XNI))
    e("s_lshl_b32 %s, %s, 10" % (s(S_T1), s(S_WAVE)))
    e("s_add_u32 %s, %s, %s" % (s(S_T1), s(S_T1), s(sbuf)))
    for i in range(8):
        e("s_add_u32 m0, %s, %d" % (s(S_T1), i * 4096))
        e("s_add_u32 %s, %s, %d" % (s(S_T2), s(S_T0), i * 4096))
        e("buffer_load_dwordx4 %s, %s, %s offen sc1 lds" % (v(W_EX), s(S_WS, 4), s(S_T2)))


A0 = R0 + 64


def p1_addr(e):
    e("s_lshr_b32 %s, %s, 1" % (s(S_T0), s(S_WAVE)))
    e("s_lshl_b32 %s, %s, 14" % (s(S_T0), s(S_T0)))
    e("s_xor_b32 %s, %s, 16384" % (s(S_T1), s(S_T0)))
    e("v_add_u32 %s, %s, %s" % (v(A0), s(S_T0), v(W_XR0)))
    e("v_add_u32 %s, %s, %s" % (v(A0 + 1), s(S_T1), v(W_XR0)))
    e("v_add_u32 %s, %s, %s" % (v(A0 + 2), s(S_T0), v(W_XR1)))
    e("v_add_u32 %s, %s, %s" % (v(A0 + 3), s(S_T1), v(W_XR1)))


def p1_store(e, with_q):
    ws = s(S_WS, 4)
    KP, VP, QP, KU = R0 + 72, R0 + 80, R0 + 88, R0 + 96
    if with_q:
        pack_qk(e, AK, KU, False)
    pack_qk(e, AK, KP, True)
    pack_v(e, VP)
    if with_q:
        pack_qk(e, AQ, QP, False)
    e("s_mul_i32 %s, %s, 0x%x" % (s(S_A), s(S_SEG), C.SLAB_ST))
    e("s_lshl_b32 %s, %s, 14" % (s(S_T0), s(S_H)))
    e("s_add_u32 %s, %s, %s" % (s(S_A), s(S_A), s(S_T0)))
    e("s_add_u32 %s, %s, 0x%x" % (s(S_A), s(S_A), C.SLAB_OFF))
    e("s_mov_b32 %s, %s" % (s(S_KVB), s(S_A)))
    e("s_lshr_b32 %s, %s, 1" % (s(S_T0), s(S_WAVE)))
    e("s_lshl_b32 %s, %s, 12" % (s(S_T0), s(S_T0)))
    e("s_xor_b32 %s, %s, 4096" % (s(S_T1), s(S_T0)))
    e("s_add_u32 %s, %s, %s" % (s(S_T0), s(S_T0), s(S_A)))
    e("s_add_u32 %s, %s, %s" % (s(S_T1), s(S_T1), s(S_A)))
    e("buffer_store_dwordx4 %s, %s, %s, %s offen sc1" % (v(KP, 4), v(W_EX), ws, s(S_T0)))
    e("buffer_store_dwordx4 %s, %s, %s, %s offen sc1" % (v(KP + 4, 4), v(W_EX), ws, s(S_T1)))
    e("s_add_u32 %s, %s, 8192" % (s(S_A), s(S_A)))
    e("buffer_store_dwordx4 %s, %s, %s, %s offen sc1" % (v(VP, 4), v(W_MW), ws, s(S_A)))
    e("buffer_store_dwordx4 %s, %s, %s, %s offen offset:1024 sc1" % (v(VP + 4, 4), v(W_MW), ws, s(S_A)))
    if with_q:
        e("s_add_u32 %s, %s, 0x%x" % (s(S_T0), s(S_T0), Q_DELTA))
        e("s_add_u32 %s, %s, 0x%x" % (s(S_T1), s(S_T1), Q_DELTA))
        e("buffer_store_dwordx4 %s, %s, %s, %s offen sc1" % (v(QP, 4), v(W_EX), ws, s(S_T0)))
        e("buffer_store_dwordx4 %s, %s, %s, %s offen sc1" % (v(QP + 4, 4), v(W_EX), ws, s(S_T1)))
        e("s_add_u32 %s, %s, 8192" % (s(S_T0), s(S_T0)))
        e("s_add_u32 %s, %s, 8192" % (s(S_T1), s(S_T1)))
        e("buffer_store_dwordx4 %s, %s, %s, %s offen sc1" % (v(KU, 4), v(W_EX), ws, s(S_T0)))
        e("buffer_store_dwordx4 %s, %s, %s, %s offen sc1" % (v(KU + 4, 4), v(W_EX), ws, s(S_T1)))
    e("s_mul_i32 %s, %s, 0x%x" % (s(S_B), s(S_SEG), C.SLAB_ST))
    e("s_lshl_b32 %s, %s, 2" % (s(S_T0), s(S_H)))
    e("s_add_u32 %s, %s, %s" % (s(S_B), s(S_B), s(S_T0)))
    e("s_add_u32 %s, %s, 0x%x" % (s(S_B), s(S_B), C.SLAB_OFF + C.FL_IN))


def phase0(e, c, q):
    if c == 0:
        e("s_mov_b32 %s, %s" % (s(S_SEG), s(S_R)))
        x_issue(e, S_SEG)
        for _ in range(8):
            q.add("x")
    if c == 4:
        q.wait("x")
        x_norm(e)
        p1_addr(e)
        e("s_mov_b32 %s, 0" % s(S_BUF))
    if c == 8:
        if C.OPT.get("prof") == 1:
            e("s_memrealtime s[100:101]")
            e("s_waitcnt lgkmcnt(0)")
            e("s_mov_b32 s91, s100")
        project(e, "KV", (A0, A0 + 1), (A0 + 2, A0 + 3))
        p1_store(e, False)
        wait_handshake(e)
        signal(e, S_B)
        if C.OPT.get("prof") == 1:
            e("s_memrealtime s[100:101]")
            e("s_waitcnt lgkmcnt(0)")
            e("s_mov_b32 s90, s100")
        q.q = []


def phase1(e):
    ws = s(S_WS, 4)
    e.label("L_P1")
    e("s_waitcnt vmcnt(8)")
    e("s_barrier")
    e("s_xor_b32 %s, %s, 32768" % (s(S_BUF), s(S_BUF)))
    e("s_add_u32 %s, %s, %d" % (s(S_A), s(S_SEG), NREP))
    e("s_min_u32 %s, %s, 63" % (s(S_A), s(S_A)))
    x_dma(e, S_A, S_BUF)

    def mid():
        e("s_waitcnt vmcnt(8)")
        e("s_barrier")
        flag_store(e, S_B)
        if C.OPT.get("rb"):
            e("v_lshlrev_b32 %s, 6, v0" % v(T1))
            e("buffer_load_dword %s, %s, %s, %s offen%s" % (v(R0 + 111), v(T1), ws, s(S_KVB), C.OPT.get("rbf", "")))
    project(e, "KVQ", (A0, A0 + 1), (A0 + 2, A0 + 3), {6: mid})
    for k in range(4):
        e("v_xor_b32 %s, 0x8000, %s" % (v(A0 + k), v(A0 + k)))
    p1_store(e, True)
    e("s_add_u32 %s, %s, %d" % (s(S_SEG), s(S_SEG), NREP))
    e("s_cmp_lt_u32 %s, 64" % s(S_SEG))
    e("s_cbranch_scc1 L_P1")
    for k in range(4):
        e("v_mov_b32 %s, -1" % v(R0 + 4 + k))
    e("s_lshl_b32 %s, %s, 21" % (s(S_A), s(S_R)))
    e("s_lshl_b32 %s, %s, 15" % (s(S_T0), s(S_H)))
    e("s_add_u32 %s, %s, %s" % (s(S_A), s(S_A), s(S_T0)))
    for b_ in range(2):
        for u in range(8):
            e("s_add_u32 %s, %s, 0x%x" % (s(S_T0), s(S_A), TP_OFF + (b_ << 20) + u * 4096))
            e("buffer_store_dwordx4 %s, %s, %s, %s offen sc1" % (v(R0 + 4, 4), v(W_TPR), ws, s(S_T0)))
    signal(e, S_B)
    e("s_lshl_b32 %s, %s, 7" % (s(S_B), s(S_R)))
    e("s_lshl_b32 %s, %s, 2" % (s(S_T0), s(S_H)))
    e("s_add_u32 %s, %s, %s" % (s(S_T0), s(S_T0), s(S_B)))
    e("s_add_u32 %s, %s, 0x%x" % (s(S_T0), s(S_T0), FLAGTP))
    flag_store(e, S_T0)


def wait_tpinit(e):
    e("s_lshl_b32 %s, %s, 7" % (s(S_B), s(S_R)))
    e("s_add_u32 %s, %s, 0x%x" % (s(S_B), s(S_B), FLAGTP))
    e("v_lshrrev_b32 %s, 2, %s" % (v(T1), v(W_L16)))
    e("v_and_b32 %s, 127, %s" % (v(T1), v(T1)))
    e.label("L_TPI")
    e("buffer_load_dword %s, %s, %s, %s offen sc1" % (v(T0), v(T1), s(S_WS, 4), s(S_B)))
    e("s_add_u32 %s, %s, 1" % (s(S_TMO), s(S_TMO)))
    e("s_cmp_gt_u32 %s, %d" % (s(S_TMO), TMO_LIMIT))
    e("s_waitcnt vmcnt(0)")
    e("s_cbranch_scc1 L_TPI_ok")
    e("v_cmp_eq_u32 vcc, 0, %s" % v(T0))
    e("s_cbranch_vccz L_TPI_ok")
    e("s_sleep 8")
    e("s_branch L_TPI")
    e.label("L_TPI_ok")


def pst(e, i):
    if C.OPT.get("prof") == 1:
        e("s_memrealtime %s" % s(44 + 2 * i, 2))
        e("s_waitcnt lgkmcnt(0)")


QO, KO, VPA = 0, 32, 64
S_RD = 30


def qkv_issue(e, sseg):
    ws = s(S_WS, 4)
    e("s_mul_i32 %s, %s, 0x%x" % (s(S_A), s(sseg), C.SLAB_ST))
    e("s_lshl_b32 %s, %s, 14" % (s(S_T0), s(S_H)))
    e("s_add_u32 %s, %s, %s" % (s(S_A), s(S_A), s(S_T0)))
    e("s_add_u32 %s, %s, 0x%x" % (s(S_A), s(S_A), C.SLAB_OFF))
    for kap in range(2):
        e("s_add_u32 %s, %s, 0x%x" % (s(S_T1), s(S_A), Q_DELTA + kap * 4096))
        e("s_add_u32 %s, %s, 8192" % (s(S_T0), s(S_T1)))
        for ks in range(4):
            e("buffer_load_dwordx4 %s, %s, %s, %s offen offset:%d sc1" % (a(KO + 16 * kap + 4 * ks, 4), v(W_L16), ws, s(S_T0), ks * 1024))
            e("buffer_load_dwordx4 %s, %s, %s, %s offen offset:%d sc1" % (a(QO + 16 * kap + 4 * ks, 4), v(W_L16), ws, s(S_T1), ks * 1024))
    e("s_lshr_b32 %s, %s, 1" % (s(S_T0), s(S_WAVE)))
    e("s_lshl_b32 %s, %s, 3" % (s(S_T0), s(S_T0)))
    e("s_xor_b32 %s, %s, 8" % (s(S_T1), s(S_T0)))
    e("s_add_u32 %s, %s, 8192" % (s(S_A), s(S_A)))
    e("s_add_u32 %s, %s, %s" % (s(S_T0), s(S_T0), s(S_A)))
    e("s_add_u32 %s, %s, %s" % (s(S_T1), s(S_T1), s(S_A)))
    for T in range(2):
        e("buffer_load_dwordx2 %s, %s, %s, %s offen offset:%d sc1" % (a(VPA + 4 * T, 2), v(W_MW), ws, s(S_T0), T * 1024))
        e("buffer_load_dwordx2 %s, %s, %s, %s offen offset:%d sc1" % (a(VPA + 4 * T + 2, 2), v(W_MW), ws, s(S_T1), T * 1024))


def rdone_store(e):
    e("v_cmp_ne_u32 vcc, 0, %s" % v(W_L16))
    e("v_mov_b32 %s, 0x%x" % (v(T1), OOB))
    e("v_mov_b32 %s, 0" % v(T0))
    e("v_cndmask_b32 %s, %s, %s, vcc" % (v(T1), v(W_L16), v(T1)))
    e("buffer_store_dword %s, %s, %s, %s offen sc1" % (v(T0), v(T1), s(S_WS, 4), s(S_RD)))


S_SC, S_L2E = 42, 43


def ref_round(S_):
    o = []
    for k in (0, 2):
        x, y = S_ + k, S_ + k + 1
        o += [cvt(y, x, y), "v_lshlrev_b32 %s, 16, %s" % (v(x), v(y)), "v_and_b32 %s, 0xffff0000, %s" % (v(y), v(y)),
              "v_mul_f32 %s, %s, %s" % (v(x), s(S_SC), v(x)), "v_mul_f32 %s, %s, %s" % (v(y), s(S_SC), v(y)),
              cvt(y, x, y), "v_lshlrev_b32 %s, 16, %s" % (v(x), v(y)), "v_and_b32 %s, 0xffff0000, %s" % (v(y), v(y))]
    return o


def inter(e, mains, fills, per):
    fills = list(fills)
    for m in mains:
        for x in (m if isinstance(m, list) else [m]):
            e(x)
        for _ in range(per):
            if fills:
                e(fills.pop(0))
    for x in fills:
        e(x)


def phase2(e):
    ws = s(S_WS, 4)
    mf16 = lambda d, A, B, first: "v_mfma_f32_16x16x16_bf16 %s, %s, %s, %s" % (v(d, 4), A, B, "0" if first else v(d, 4))
    e("s_mov_b32 %s, %s" % (s(S_SEG), s(S_R)))
    e("s_mov_b32 %s, 0" % s(S_J))
    e("s_mov_b32 %s, 0x%x" % (s(S_RD), OOB))
    e("s_mov_b32 %s, 0x%x" % (s(S_SC), f32bits(128 ** -0.5)))
    e("s_mov_b32 %s, 0x%x" % (s(S_L2E), f32bits(1.4426950408889634)))
    qkv_issue(e, S_SEG)
    e.label("L_P2")
    e("s_and_b32 %s, %s, 1" % (s(S_T0), s(S_J)))
    e("s_lshl_b32 %s, %s, 20" % (s(S_T0), s(S_T0)))
    e("s_lshl_b32 %s, %s, 21" % (s(S_TPB), s(S_R)))
    e("s_add_u32 %s, %s, %s" % (s(S_TPB), s(S_TPB), s(S_T0)))
    e("s_add_u32 %s, %s, 0x%x" % (s(S_TPB), s(S_TPB), TP_OFF))
    e("s_bfe_u32 %s, %s, 0x10001" % (s(S_PAR), s(S_J)))
    MB = R0 + 32
    e("s_lshl_b32 %s, %s, 13" % (s(S_A), s(S_SEG)))
    e("s_add_u32 %s, %s, 0x%x" % (s(S_A), s(S_A), C.HIST_OFF))
    e("s_max_u32 %s, %s, 1" % (s(S_B), s(S_SEG)))
    e("s_lshl_b32 %s, %s, 13" % (s(S_B), s(S_B)))
    e("s_add_u32 %s, %s, 0x%x" % (s(S_B), s(S_B), C.HIST_OFF - 0x2000))
    hld = ["buffer_load_dwordx4 %s, %s, %s, %s offen sc1" % (v(MB, 4), v(W_MW), ws, s(S_A)),
           "buffer_load_dwordx4 %s, %s, %s, %s offen offset:1024 sc1" % (v(MB + 4, 4), v(W_MW), ws, s(S_A))]
    for x in hld:
        e(x)
    e("s_lshl_b32 %s, %s, 5" % (s(S_T0), s(S_SEG)))
    e("s_add_u32 %s, %s, %s" % (s(S_T0), s(S_T0), s(S_H)))
    e("s_lshl_b32 %s, %s, 10" % (s(S_T0), s(S_T0)))
    e("buffer_load_dword a72, %s, %s, %s offen" % (v(W_ROW), s(S_X, 4), s(S_T0)))
    e("buffer_load_dword a73, %s, %s, 0 offen" % (v(W_ROW), s(S_WR, 4)))
    e("s_waitcnt vmcnt(4)")
    rdone_store(e)
    S00, S01, S11, SM0, SM1 = R0 + 64, R0 + 68, R0 + 72, R0 + 76, R0 + 80
    for (d, kk, kq) in ((S00, 0, 0), (S11, 1, 1), (S01, 0, 1)):
        for ks in range(4):
            e(mf32(d, a(KO + 16 * kk + 4 * ks, 4), a(QO + 16 * kq + 4 * ks, 4), ks == 0))
    for S_ in (S00, S11, S01):
        for x in ref_round(S_):
            e(x)
    for S_ in (S00, S11):
        for r in range(4):
            e("v_cndmask_b32 %s, %s, %s, %s" % (v(S_ + r), v(W_NEG), v(S_ + r), s(S_M0 + 2 * r, 2)))
    MX = R0 + 100
    g0 = [S00 + r for r in range(4)]
    g1 = [S01 + r for r in range(4)] + [S11 + r for r in range(4)]
    for mx, g_ in ((MX, g0), (MX + 1, g1)):
        e("v_max_f32 %s, %s, %s" % (v(mx), v(g_[0]), v(g_[1])))
        for i in range(2, len(g_), 2):
            e("v_max3_f32 %s, %s, %s, %s" % (v(mx), v(mx), v(g_[i]), v(g_[i + 1])))
    for sw in ("v_permlane16_swap_b32", "v_permlane32_swap_b32"):
        for mx in (MX, MX + 1):
            e("v_mov_b32 %s, %s" % (v(T0), v(mx)))
            e("%s %s, %s" % (sw, v(mx), v(T0)))
            e("v_max_f32 %s, %s, %s" % (v(mx), v(mx), v(T0)))
    for mx, g_ in ((MX, g0), (MX + 1, g1)):
        e("v_mul_f32 %s, %s, %s" % (v(T0), s(S_L2E), v(mx)))
        for r in g_:
            e("v_fma_f32 %s, %s, %s, -%s" % (v(r), v(r), s(S_L2E), v(T0)))
            e("v_exp_f32 %s, %s" % (v(r), v(r)))
    P0, P1, ONES, ONM = R0 + 84, R0 + 88, R0 + 92, R0 + 96
    e(cvt(P0, S00, S00 + 1)); e(cvt(P0 + 1, S00 + 2, S00 + 3))
    e("v_mov_b64 %s, 0" % v(P0 + 2, 2))
    e(cvt(P1, S01, S01 + 1)); e(cvt(P1 + 1, S01 + 2, S01 + 3))
    e(cvt(P1 + 2, S11, S11 + 1)); e(cvt(P1 + 3, S11 + 2, S11 + 3))
    e("v_mov_b64 %s, %s" % (v(ONES, 2), s(S_ONES, 2)))
    e("v_mov_b64 %s, %s" % (v(ONES + 2, 2), s(S_ONES, 2)))
    for k in range(2):
        e("v_cndmask_b32 %s, 0, %s, %s" % (v(ONM + k), v(ONES), s(S_MM, 2)))
    LX, OX = R0, R0 + 8
    for kq, P_ in ((0, P0), (1, P1)):
        e(mf32(LX + 4 * kq, v(ONES, 4), v(P_, 4), True))
        for T in range(2):
            e(mf32(OX + 8 * kq + 4 * T, a(VPA + 4 * T, 4), v(P_, 4), True))
    e("s_branch L_P2_chk")
    e.label("L_P2_far")
    e("buffer_load_dword %s, %s, %s, %s offen sc1" % (v(T0), v(W_MW), ws, s(S_B)))
    e("s_add_u32 %s, %s, 1" % (s(S_TMO), s(S_TMO)))
    e("s_cmp_gt_u32 %s, %d" % (s(S_TMO), TMO_LIMIT))
    e("s_waitcnt vmcnt(0)")
    e("s_cbranch_scc1 L_P2_poll")
    e("v_cmp_eq_u32 vcc, -1, %s" % v(T0))
    e("s_cbranch_vccz L_P2_near")
    e("s_sleep %d" % C.OPT.get("farsl", 12))
    e("s_branch L_P2_far")
    e.label("L_P2_near")
    e("s_mov_b32 %s, 0x%x" % (s(S_B), OOB))
    e.label("L_P2_poll")
    for x in hld:
        e(x)
    e.label("L_P2_chk")
    e("s_add_u32 %s, %s, 1" % (s(S_TMO), s(S_TMO)))
    e("s_waitcnt vmcnt(0)")
    e("ds_write_b128 %s, %s offset:%d" % (v(W_MW), v(MB, 4), MEMI))
    e("ds_write_b128 %s, %s offset:%d" % (v(W_MW), v(MB + 4, 4), MEMI + 1024))
    e("v_max3_u32 %s, %s, %s, %s" % (v(T0), v(MB), v(MB + 1), v(MB + 2)))
    e("v_max3_u32 %s, %s, %s, %s" % (v(T1), v(MB + 3), v(MB + 4), v(MB + 5)))
    e("v_max3_u32 %s, %s, %s, %s" % (v(T0), v(T0), v(MB + 6), v(MB + 7)))
    e("v_max_u32 %s, %s, %s" % (v(T0), v(T0), v(T1)))
    e("v_cmp_eq_u32 vcc, -1, %s" % v(T0))
    e("s_cbranch_vccz L_P2_got")
    e("s_cmp_gt_u32 %s, %d" % (s(S_TMO), TMO_LIMIT))
    e("s_cbranch_scc1 L_P2_got")
    if C.OPT.get("nearsl"):
        e("s_sleep %d" % C.OPT["nearsl"])
    e("s_cmp_eq_u32 %s, 0x%x" % (s(S_B), OOB))
    e("s_cbranch_scc1 L_P2_poll")
    e("s_branch L_P2_far")
    e.label("L_P2_got")
    pst(e, 0)
    e("s_waitcnt lgkmcnt(0)")
    e("s_barrier")
    AKM, AVM = R0 + 64, R0 + 24
    MO = R0 + 32
    moff = lambda ks: ((ks & 3) * 128 + ((ks >> 2) & 1) * 32 + (ks >> 3) * 64) * 16
    rdm = lambda i: "ds_read_b128 %s, %s offset:%d" % (v(MO + 4 * (i % 4), 4), v(W_MR), moff(i % 16))
    for i in range(3):
        e(rdm(i))
    for ks in range(16):
        e(rdm(ks + 3))
        e("s_waitcnt lgkmcnt(3)")
        for T in range(2):
            e(mf32(AKM + 4 * T, wreg("K", T, ks), v(MO + 4 * (ks % 4), 4), ks == 0))
    KMP, KMO = R0 + 72, R0 + 48
    PM = R0 + 84
    FX = R0 + 88
    vm = lambda ks, n: ([rdm(16 + ks + 3)] if ks + 3 < 16 else []) + ["s_waitcnt lgkmcnt(%d)" % n] + \
        [mf32(AVM + 4 * T, v(MO + 4 * (ks % 4), 4), wreg("V", T, ks), ks == 0) for T in range(2)]
    for x in vm(0, 3) + vm(1, 3):
        e(x)
    for r in range(4):
        e(cvt(KMP + r, AKM + r, AKM + 4 + r))
    e("ds_write_b128 %s, %s offset:%d" % (v(W_EX), v(KMP, 4), EX_KM))
    for x in vm(2, 4) + vm(3, 4) + vm(4, 4):
        e(x)
    e("s_waitcnt lgkmcnt(3)")
    e("s_barrier")
    for ks in range(4):
        e("ds_read_b128 %s, %s offset:%d" % (v(KMO + 4 * ks, 4), v(W_L16), EX_KM + ks * 1024))
    for x in vm(5, 7) + vm(6, 7):
        e(x)
    e("s_waitcnt lgkmcnt(2)")
    for ks in range(4):
        for (d, kq) in ((SM0, 0), (SM1, 1)):
            e(mf32(d, v(KMO + 4 * ks, 4), a(QO + 16 * kq + 4 * ks, 4), ks == 0))
    for x in vm(7, 3):
        e(x)
    M2 = R0 + 102
    sf = ref_round(SM0) + ref_round(SM1)
    for kq, S_ in ((0, SM0), (1, SM1)):
        sf += ["v_max3_f32 %s, %s, %s, %s" % (v(M2 + kq), v(S_), v(S_ + 1), v(S_ + 2)),
               "v_max3_f32 %s, %s, %s, %s" % (v(M2 + kq), v(M2 + kq), v(S_ + 3), v(MX + kq))]
    sf += ["v_mov_b32 %s, %s" % (v(T0), v(M2)), "v_mov_b32 %s, %s" % (v(T1), v(M2 + 1)),
           "v_permlane16_swap_b32 %s, %s" % (v(M2), v(T0)), "v_permlane16_swap_b32 %s, %s" % (v(M2 + 1), v(T1)),
           "v_max_f32 %s, %s, %s" % (v(M2), v(M2), v(T0)), "v_max_f32 %s, %s, %s" % (v(M2 + 1), v(M2 + 1), v(T1))]
    for kq, S_ in ((0, SM0), (1, SM1)):
        sf += ["v_sub_f32 %s, %s, %s" % (v(FX + kq), v(MX + kq), v(M2 + kq)), "v_mul_f32 %s, %s, %s" % (v(M2 + kq), s(S_L2E), v(M2 + kq)),
               "v_mul_f32 %s, %s, %s" % (v(FX + kq), s(S_L2E), v(FX + kq)), "v_exp_f32 %s, %s" % (v(FX + kq), v(FX + kq))]
        for r in range(4):
            sf += ["v_fma_f32 %s, %s, %s, -%s" % (v(S_ + r), v(S_ + r), s(S_L2E), v(M2 + kq)), "v_exp_f32 %s, %s" % (v(S_ + r), v(S_ + r))]
        sf += [cvt(PM + 2 * kq, S_, S_ + 1), cvt(PM + 2 * kq + 1, S_ + 2, S_ + 3)]
    inter(e, [vm(k, 3) for k in range(8, 13)] + [vm(13, 2), vm(14, 1), vm(15, 0)], sf, 7)
    LM, OM = R0 + 32, R0 + 40
    for kq in range(2):
        e(mf16(LM + 4 * kq, v(ONM, 2), v(PM + 2 * kq, 2), True))
    VMP = R0 + 64
    for T in range(2):
        for k in range(2):
            e(cvt(VMP + 2 * T + k, AVM + 4 * T + 2 * k, AVM + 4 * T + 2 * k + 1))
            e("v_cndmask_b32 %s, 0, %s, %s" % (v(VMP + 2 * T + k), v(VMP + 2 * T + k), s(S_MM, 2)))
    for kq in range(2):
        for T in range(2):
            e(mf16(OM + 8 * kq + 4 * T, v(VMP + 2 * T, 2), v(PM + 2 * kq, 2), True))
    OP = R0 + 56
    for kq in range(2):
        e("v_fma_f32 %s, %s, %s, %s" % (v(LM + 4 * kq), v(LX + 4 * kq), v(FX + kq), v(LM + 4 * kq)))
        e("v_rcp_f32 %s, %s" % (v(LM + 4 * kq), v(LM + 4 * kq)))
    for kq in range(2):
        for r in range(8):
            e("v_fma_f32 %s, %s, %s, %s" % (v(OM + 8 * kq + r), v(OX + 8 * kq + r), v(FX + kq), v(OM + 8 * kq + r)))
        for r in range(0, 8, 2):
            e("v_pk_mul_f32 %s, %s, %s op_sel_hi:[1,0]" % (v(OM + 8 * kq + r, 2), v(OM + 8 * kq + r, 2), v(LM + 4 * kq, 2)))
        for r in range(4):
            e(cvt(OP + 4 * kq + r, OM + 8 * kq + r, OM + 8 * kq + 4 + r))
        e("ds_write_b128 %s, %s offset:%d" % (v(W_EX), v(OP + 4 * kq, 4), EX_O + kq * 4096))
    OO = R0
    WB = R0 + 32
    WA = R0 + 48
    seq = [(kq, ks, T) for kq in range(2) for ks in range(4) for T in range(8)]
    rdw = lambda i: "ds_read_b128 %s, %s offset:%d" % (v(WB + 4 * (i % 4), 4), v(W_WO), (seq[i][1] * 8 + seq[i][2]) * 1024)
    e("s_waitcnt lgkmcnt(0)")
    e("s_barrier")
    pst(e, 1)
    for kq in range(2):
        for ks in range(4):
            e("ds_read_b128 %s, %s offset:%d" % (v(OO + 16 * kq + 4 * ks, 4), v(W_L16), EX_O + kq * 4096 + ks * 1024))
    for i in range(3):
        e(rdw(i))
    e("s_lshl_b32 %s, %s, 10" % (s(S_T0), s(S_H)))
    e("s_add_u32 %s, %s, %s" % (s(S_B), s(S_TPB), s(S_T0)))

    def outs(kq):
        o = []
        for r in range(4):
            d = OO + 16 * kq + 4 * r
            o += [cvt(d + q, WA + 32 * kq + 8 * q + r, WA + 32 * kq + 8 * q + 4 + r) for q in range(4)]
            o += ["v_and_or_b32 %s, %s, -2, %s" % (v(d), v(d), s(S_PAR)),
                  "s_add_u32 %s, %s, 0x%x" % (s(S_T0), s(S_B), (16 * kq + r) * 32768),
                  "buffer_store_dwordx4 %s, %s, %s, %s offen sc1" % (v(d, 4), v(W_TPW), ws, s(S_T0))]
        return o
    o0 = outs(0)
    for i, (kq, ks, T) in enumerate(seq):
        e("s_waitcnt lgkmcnt(%d)" % min(2, 63 - i))
        e(mf32(WA + 32 * kq + 4 * T, v(OO + 16 * kq + 4 * ks, 4), v(WB + 4 * (i % 4), 4), ks == 0))
        if i + 3 < 64:
            e(rdw(i + 3))
        if i >= 35 and o0:
            e(o0.pop(0))
    assert not o0
    pst(e, 2)
    for x in outs(1):
        e(x)
    e("s_add_u32 %s, %s, %d" % (s(S_T2), s(S_SEG), NREP))
    e("s_cmp_ge_u32 %s, 64" % s(S_T2))
    e("s_cbranch_scc1 L_P2_last")
    qkv_issue(e, S_T2)
    e.label("L_P2_last")
    SEL, XV, WRV = R0 + 32, R0 + 36, R0 + 37
    e("s_lshl_b32 %s, %s, 5" % (s(S_A), s(S_SEG)))
    e("s_add_u32 %s, %s, %s" % (s(S_A), s(S_A), s(S_H)))
    e("s_lshl_b32 %s, %s, 10" % (s(S_A), s(S_A)))
    e("v_accvgpr_read_b32 %s, a72" % v(XV))
    e("v_accvgpr_read_b32 %s, a73" % v(WRV))
    e("v_and_b32 %s, 15, v0" % v(T1))
    for q in range(4):
        e("v_mov_b32 %s, 0" % v(SEL + q))
        e("v_mov_b32 %s, 0x3f80" % v(T0))
        e("v_cmp_eq_u32 vcc, %d, %s" % (4 * q, v(T1)))
        e("v_cndmask_b32 %s, %s, %s, vcc" % (v(SEL + q), v(SEL + q), v(T0)))
        e("v_mov_b32 %s, 0x3f800000" % v(T0))
        e("v_cmp_eq_u32 vcc, %d, %s" % (4 * q + 1, v(T1)))
        e("v_cndmask_b32 %s, %s, %s, vcc" % (v(SEL + q), v(SEL + q), v(T0)))
    e("s_lshl_b32 %s, %s, 15" % (s(S_B), s(S_H)))
    e("s_add_u32 %s, %s, %s" % (s(S_B), s(S_B), s(S_TPB)))
    PD = R0 + 64
    pst(e, 3)
    e.label("L_P3_poll")
    for u in range(8):
        e("s_add_u32 %s, %s, %d" % (s(S_T0), s(S_B), u * 4096))
        e("buffer_load_dwordx4 %s, %s, %s, %s offen sc1" % (v(PD + 4 * u, 4), v(W_TPR), ws, s(S_T0)))
    e("s_mov_b64 exec, -1")
    e("s_add_u32 %s, %s, 1" % (s(S_TMO), s(S_TMO)))
    e("s_cmp_gt_u32 %s, %d" % (s(S_TMO), TMO_LIMIT))
    RD = R0 + 40
    for u in range(8):
        e("s_waitcnt vmcnt(%d)" % (7 - u))
        e(mf32(RD, v(SEL, 4), v(PD + 4 * u, 4), u == 0))
        if u & 1:
            e("v_bitop3_b32 %s, %s, %s, %s bitop3:0x7e" % (v(R0 + 44 + (u >> 1)), v(PD + 4 * u - 4), v(PD + 4 * u), s(S_PAR)))
    e("v_or3_b32 %s, %s, %s, %s" % (v(T0), v(R0 + 44), v(R0 + 45), v(R0 + 46)))
    e("v_bitop3_b32 %s, %s, %s, 1 bitop3:0xa8" % (v(T0), v(T0), v(R0 + 47)))
    e("s_cbranch_scc1 L_P3_got")
    e("v_cmp_ne_u32 vcc, 0, %s" % v(T0))
    e("s_cbranch_vccz L_P3_got")
    e("s_mov_b64 exec, vcc")
    e("s_branch L_P3_poll")
    e.label("L_P3_got")
    pst(e, 4)
    e("s_nop 4")
    H0, H1, HP, SU, SQ, A_, B_, XP = range(R0 + 44, R0 + 52)
    lo = lambda d, x: e("v_lshlrev_b32 %s, 16, %s" % (v(d), v(x)))
    hi = lambda d, x: e("v_and_b32 %s, 0xffff0000, %s" % (v(d), v(x)))
    e(cvt(HP, RD, RD + 1))
    lo(A_, HP); hi(B_, HP)
    lo(H0, XV); hi(H1, XV)
    e("v_add_f32 %s, %s, %s" % (v(H0), v(H0), v(A_)))
    e("v_add_f32 %s, %s, %s" % (v(H1), v(H1), v(B_)))
    e(cvt(HP, H0, H1))
    lo(H0, HP); hi(H1, HP)
    e("v_add_f32 %s, %s, %s" % (v(SU), v(H0), v(H1)))
    e("v_mul_f32 %s, %s, %s" % (v(SQ), v(H0), v(H0)))
    e("v_fmac_f32 %s, %s, %s" % (v(SQ), v(H1), v(H1)))
    wave_sum(e, [SU, SQ], T0)
    e("v_mov_b32 %s, %s" % (v(T1), s(S_WAVE)))
    e("v_lshlrev_b32 %s, 3, %s" % (v(T1), v(T1)))
    e("v_add_u32 %s, %d, %s" % (v(T1), RED, v(T1)))
    e("ds_write2_b32 %s, %s, %s offset0:0 offset1:1" % (v(T1), v(SU), v(SQ)))
    e("s_add_u32 %s, %s, 0x%x" % (s(S_T0), s(S_A), HROW))
    e("buffer_store_dword %s, %s, %s, %s offen sc1" % (v(HP), v(W_ROW), ws, s(S_T0)))
    e("s_waitcnt lgkmcnt(0)")
    e("s_barrier")
    RR = R0 + 52
    e("v_mov_b32 %s, %d" % (v(T1), RED))
    e("ds_read_b128 %s, %s" % (v(RR, 4), v(T1)))
    e("ds_read_b128 %s, %s offset:16" % (v(RR + 4, 4), v(T1)))
    e("s_waitcnt lgkmcnt(0)")
    for k, d in ((0, SU), (1, SQ)):
        e("v_add_f32 %s, %s, %s" % (v(d), v(RR + k), v(RR + 2 + k)))
        e("v_add_f32 %s, %s, %s" % (v(d), v(d), v(RR + 4 + k)))
        e("v_add_f32 %s, %s, %s" % (v(d), v(d), v(RR + 6 + k)))
        e("v_mul_f32 %s, 0x%x, %s" % (v(d), f32bits(1 / 512), v(d)))
    e("v_fma_f32 %s, -%s, %s, %s" % (v(SQ), v(SU), v(SU), v(SQ)))
    e("v_max_f32 %s, 0, %s" % (v(SQ), v(SQ)))
    e(cvt(T0, SU, SQ))
    lo(SU, T0); hi(SQ, T0)
    e("v_add_f32 %s, 0x%x, %s" % (v(SQ), f32bits(1e-5), v(SQ)))
    e(cvt(T0, SQ, SQ)); lo(SQ, T0)
    e("v_sqrt_f32 %s, %s" % (v(SQ), v(SQ)))
    e(cvt(T0, SQ, SQ)); lo(SQ, T0)
    e("v_rcp_f32 %s, %s" % (v(SQ), v(SQ)))
    e("v_sub_f32 %s, %s, %s" % (v(A_), v(H0), v(SU)))
    e("v_sub_f32 %s, %s, %s" % (v(B_), v(H1), v(SU)))
    e(cvt(T0, A_, B_)); lo(A_, T0); hi(B_, T0)
    e("v_mul_f32 %s, %s, %s" % (v(A_), v(A_), v(SQ)))
    e("v_mul_f32 %s, %s, %s" % (v(B_), v(B_), v(SQ)))
    e(cvt(XP, A_, B_))
    lo(A_, XP); hi(B_, XP)
    W0, W1 = RR, RR + 1
    lo(W0, WRV); hi(W1, WRV)
    e("v_mul_f32 %s, %s, %s" % (v(SU), v(A_), v(W0)))
    e("v_fmac_f32 %s, %s, %s" % (v(SU), v(B_), v(W1)))
    wave_sum(e, [SU], T0)
    e("s_lshr_b32 %s, %s, 6" % (s(S_B), s(S_A)))
    e("s_lshl_b32 %s, %s, 2" % (s(S_T1), s(S_WAVE)))
    e("s_add_u32 %s, %s, %s" % (s(S_B), s(S_B), s(S_T1)))
    e("s_add_u32 %s, %s, 0x%x" % (s(S_T0), s(S_B), RVAL))
    e("v_cmp_ne_u32 vcc, 0, %s" % v(W_L16))
    e("v_mov_b32 %s, 0x%x" % (v(T1), OOB))
    e("v_cndmask_b32 %s, %s, %s, vcc" % (v(T1), v(W_L16), v(T1)))
    e("buffer_store_dword %s, %s, %s, %s offen sc1" % (v(SU), v(T1), ws, s(S_T0)))
    e("v_add_f32 %s, %s, %s" % (v(H0), v(H0), v(A_)))
    e("v_add_f32 %s, %s, %s" % (v(H1), v(H1), v(B_)))
    e(cvt(HP, H0, H1))
    e("buffer_store_dword %s, %s, %s, %s offen sc1" % (v(HP), v(W_ROW), s(S_OUT, 4), s(S_A)))
    e("s_add_u32 %s, %s, 0x%x" % (s(S_T0), s(S_A), XN2))
    e("buffer_store_dword %s, %s, %s, %s offen sc1" % (v(XP), v(W_ROW), ws, s(S_T0)))
    pst(e, 5)
    e("s_add_u32 %s, %s, 0x%x" % (s(S_RD), s(S_B), RDONE))
    e("s_add_u32 %s, %s, 1" % (s(S_J), s(S_J)))
    e("s_barrier")
    e("s_add_u32 %s, %s, %d" % (s(S_SEG), s(S_SEG), NREP))
    e("s_cmp_lt_u32 %s, 64" % s(S_SEG))
    e("s_cbranch_scc1 L_P2")
    e("s_waitcnt vmcnt(0)")
    rdone_store(e)
```

```python
from asmlib import Emitter, v, a, s
import struct

WS_BYTES = 0x10000000
PB_OFF = 0x0000000
SYNC_OFF = 0x0080000
HIST_OFF = 0x0100000
FLAG_OFF = 0x0190000
STAMP_OFF = 0x01A0000
SLAB_OFF = 0x1000000
SLAB_ST = 0x82100
MB_IN = 0x80000
FL_IN = 0x82000
OOB = 0x40000000

L_MEMI = 0
L_PX = 8192
RS = 72
L_QX = 16384
L_KMX = L_QX + 2304
L_OX = L_KMX + 2304
L_SEL = L_OX + 2048
L_WL = 32768
LDS_BYTES = 163840

S_WS = 8
S_W = 12
S_DBG = 16
S_H = 20
S_WAVE = 21
S_STEP = 22
S_SLAB = 23
S_SLABN = 24
S_KXO = 25
S_KX = 29
S_VX = 30
S_HIST = 31
S_TMO = 32
S_SCALE = 33
S_PLO = 34
S_PHI = 35
S_T0 = 36
S_T1 = 37
S_T2 = 38
S_VXO = 39
S_BIG = 40
S_PR = 6
S_MB = 7
S_4K = 26
S_PAR = 27
S_RDY = 62
S_NPAR = 28
S_TAG = 60
S_OOB = 61
S_FW = 88
S_FR = 89
S_NEXT = 90
S_SPIN = 91
S_LIM = 94
S_SY = 80
S_NX2 = 84
S_U0 = 95
S_HM = 92
S_W3 = 95
S_ONES = 4
S_PTR = 44
S_ST = 64

C_PF = 0
C_IDX, C_MW, C_L16, C_WL, C_QW, C_QR, C_KW, C_X2, C_PW, C_MP, FREE1, HPEND, C_FL, T0, JUNK = range(1, 16)
AM = 16
ACCQ = 48
ACCK = 56
ACCV = 64
QB = 72
XA = 88
XB = 104
VX = 120
VW = 128

TMO_LIMIT = 200000
OPT = {}


def f32bits(x):
    return struct.unpack("<I", struct.pack("<f", x))[0]


def lin(e, dst, coefs, const=0, tmp=T0, src=0):
    e("v_mov_b32 %s, 0x%x" % (v(dst), const))
    for k, c in sorted(coefs.items()):
        if c == 0:
            continue
        assert c < (1 << 24)
        e("v_bfe_u32 %s, %s, %d, 1" % (v(tmp), v(src), k))
        e("s_mov_b32 %s, 0x%x" % (s(S_T2), c))
        e("v_mad_u32_u24 %s, %s, %s, %s" % (v(dst), v(tmp), s(S_T2), v(dst)))


def srd(e, d, ptr, nbytes):
    e("s_mov_b32 %s, %s" % (s(d), s(ptr)))
    e("s_and_b32 %s, %s, 0xffff" % (s(d + 1), s(ptr + 1)))
    e("s_mov_b32 %s, 0x%x" % (s(d + 2), nbytes))
    e("s_mov_b32 %s, 0x20000" % s(d + 3))


LDS_OPS = {
    ("Q", 0, 0): XB + 0, ("Q", 1, 0): XB + 8, ("Q", 0, 1): XA + 0, ("Q", 1, 1): XA + 8,
    ("K", 0, 0): QB + 0, ("K", 1, 0): QB + 8,
    ("Q", 0, 7): XA + 0, ("Q", 1, 7): XA + 8,
    ("K", 0, 2): QB + 0, ("K", 1, 2): QB + 8,
    ("K", 0, 7): XA + 0, ("K", 1, 7): XA + 8,
    ("O", 2, 3): XA + 0, ("O", 3, 1): XA + 8, ("O", 3, 2): QB + 0, ("O", 3, 3): QB + 8,
}
OLDS = [("O", 2, 3), ("O", 3, 1), ("O", 3, 2), ("O", 3, 3)]
LDS_SLOT = {k: i for i, k in enumerate(LDS_OPS)}
ALL_OPS = [(m, T, u) for m in "QKV" for u in range(8) for T in range(2)] + [("O", q, u) for u in range(4) for q in range(4)]
RES = {}
_n = 0
for op in ALL_OPS:
    if op in LDS_OPS:
        continue
    RES[op] = ("a", _n * 8) if _n < 32 else ("v", VW + (_n - 32) * 8)
    _n += 1
assert _n == 48


def opreg(op):
    if op in LDS_OPS:
        return v(LDS_OPS[op], 8)
    k, r = RES[op]
    return (a if k == "a" else v)(r, 8)


def lds_fetch_ins(op):
    r = LDS_OPS[op]
    off = LDS_SLOT[op] * 2048
    return ["ds_read_b128 %s, %s offset:%d" % (v(r, 4), v(C_WL), off),
            "ds_read_b128 %s, %s offset:%d" % (v(r + 4, 4), v(C_WL), off + 1024)]


def lds_fetch(e, op):
    for t in lds_fetch_ins(op):
        e(t)


def rowpart(rho, b, hi=32):
    return hi * (rho >> 2) + 8 * (rho & 1) + 2 * ((rho >> 1) & 1) + b


class VmQ:
    def __init__(self, e):
        self.e, self.q = e, []

    def add(self, tag):
        self.q.append(tag)
        assert len(self.q) <= 63

    def wait(self, tag):
        if tag not in self.q:
            return
        last = len(self.q) - 1 - self.q[::-1].index(tag)
        self.e("s_waitcnt vmcnt(%d)" % (len(self.q) - 1 - last))
        self.q = self.q[last + 1:]


def staged_load(e, chunks, ptrs, srds, swz_bits, dma_k, lane_f, row_lane, blk_xor_wave, reads, side=None, pre=None, nslot=3):
    AD, AR = 16, 20
    TT = 28
    seq = OPT.get("seq", 1)
    S_LB, S_GB = 28, 3
    if seq:
        e("v_lshrrev_b32 %s, 4, v0" % v(TT))
        e("v_and_b32 %s, 15, v0" % v(AD))
        e("v_lshlrev_b32 %s, 4, %s" % (v(AD), v(AD)))
        e("v_lshl_add_u32 %s, %s, 13, %s" % (v(AD), v(TT), v(AD)))
        e("v_bfe_u32 %s, v0, 4, %d" % (v(TT + 1), swz_bits))
        e("v_lshlrev_b32 %s, 5, %s" % (v(TT + 1), v(TT + 1)))
        e("v_xor_b32 %s, %s, %s" % (v(AD), v(AD), v(TT + 1)))
        e("v_and_b32 %s, %d, v0" % (v(TT + 1), dma_k(3)))
        e("v_xor_b32 %s, %s, %s" % (v(AD), v(AD), v(TT + 1)))
        e("s_lshl_b32 %s, %s, 10" % (s(S_LB), s(S_WAVE)))
    else:
        e("v_lshrrev_b32 %s, 6, v0" % v(TT))
        e("v_bfe_u32 %s, v0, 4, 2" % v(TT + 1))
        e("v_lshl_add_u32 %s, %s, 5, %s" % (v(TT), v(TT), v(TT + 1)))
        e("v_and_b32 %s, 15, v0" % v(AD))
        e("v_lshlrev_b32 %s, 4, %s" % (v(AD), v(AD)))
        e("v_lshl_add_u32 %s, %s, 13, %s" % (v(AD), v(TT), v(AD)))
        e("v_bfe_u32 %s, v0, 4, %d" % (v(TT + 1), swz_bits))
        e("v_lshlrev_b32 %s, 5, %s" % (v(TT + 1), v(TT + 1)))
        e("v_xor_b32 %s, %s, %s" % (v(AD), v(AD), v(TT + 1)))
        for k in range(1, 4):
            e("v_xor_b32 %s, %d, %s" % (v(AD + k), dma_k(k), v(AD)))
        e("s_add_u32 %s, %s, 1" % (s(S_LB), s(S_WAVE)))
        e("s_lshl_b32 %s, %s, 15" % (s(S_LB), s(S_LB)))
    e("s_lshl_b32 %s, %s, 8" % (s(S_GB), s(S_H)))
    q = VmQ(e)
    built = set()

    def dma(c):
        m, ci = chunks[c]
        if m not in built:
            srd(e, srds[m], ptrs[m], 512 * 4096 * 2)
            built.add(m)
        for i in range(8):
            if seq:
                e("s_add_u32 m0, %s, %d" % (s(S_LB), (((i >> 1) + 1) << 15) + (c % nslot) * 8192 + (i & 1) * 4096))
                e("s_add_u32 %s, %s, 0x%x" % (s(S_T1), s(S_GB), (128 * ci + 16 * i) * 8192))
            else:
                e("s_add_u32 m0, %s, %d" % (s(S_LB), (c % nslot) * 8192 + i * 1024))
                e("s_add_u32 %s, %s, 0x%x" % (s(S_T1), s(S_GB), (128 * ci + 4 * i) * 8192))
            e("buffer_load_dwordx4 %s, %s, %s offen%s lds" % (v(AD + (0 if seq else i & 3)), s(srds[m], 4), s(S_T1), OPT.get("cnt", "") if blk_xor_wave else OPT.get("wnt", "")))
            q.add(("c", c))
    lead = OPT.get("lead", 0) if blk_xor_wave else 0
    TL = 29
    S_TR = 91

    def touch(c):
        if c >= len(chunks):
            return
        m, ci = chunks[c]
        if m not in built:
            srd(e, srds[m], ptrs[m], 512 * 4096 * 2)
            built.add(m)
        e("s_add_u32 %s, %s, 0x%x" % (s(S_T1), s(S_MB), 128 * ci * 8192))
        e("buffer_load_dword %s, %s, %s, %s offen" % (v(JUNK), v(TL), s(srds[m], 4), s(S_T1)))
        q.add(("t", c))
    if lead:
        e("v_and_b32 %s, 63, v0" % v(TL))
        e("v_lshlrev_b32 %s, 7, %s" % (v(TL), v(TL)))
        e("s_lshl_b32 %s, %s, 2" % (s(S_MB), s(S_H)))
        e("s_add_u32 %s, %s, %s" % (s(S_MB), s(S_MB), s(S_WAVE)))
        e("s_lshl_b32 %s, %s, 13" % (s(S_MB), s(S_MB)))
        for c in range(nslot + lead):
            touch(c)
    for c in range(nslot):
        dma(c)
    TT = 30
    lin(e, AR, {0: 8, 1: 16, **{k: c * 256 for k, c in row_lane.items()}})
    lin(e, TT, lane_f)
    lin(e, TT + 1, {6: 64, 7: 128})
    e("v_xor_b32 %s, %s, %s" % (v(TT), v(TT), v(TT + 1)))
    e("v_add_u32 %s, %s, %s" % (v(TT), v(TT), v(AR)))
    for k in range(4):
        if blk_xor_wave:
            e("s_xor_b32 %s, %s, %d" % (s(S_T0), s(S_WAVE), k))
            e("s_add_u32 %s, %s, 1" % (s(S_T0), s(S_T0)))
            e("s_lshl_b32 %s, %s, 15" % (s(S_T0), s(S_T0)))
            e("v_add_u32 %s, %s, %s" % (v(AR + 2 * k), s(S_T0), v(TT)))
        else:
            e("v_add_u32 %s, 0x%x, %s" % (v(AR + 2 * k), (k + 1) << 15, v(TT)))
        e("v_xor_b32 %s, 32, %s" % (v(AR + 2 * k + 1), v(AR + 2 * k)))
    if pre:
        pre(q)
    for c, (m, ci) in enumerate(chunks):
        if side:
            side(c, q)
        q.wait(("c", c))
        e("s_barrier")
        for n_, (dst, k, T, ro) in enumerate(reads(m, ci)):
            if n_ == 12:
                e("s_waitcnt lgkmcnt(4)")
            e("ds_read_b64_tr_b16 %s, %s offset:%d" % (dst, v(AR + 2 * k + T), (c % nslot) * 8192 + ro * 256))
        e("s_waitcnt lgkmcnt(0)")
        e("s_barrier")
        if lead:
            touch(c + nslot + lead)
        if c + nslot < len(chunks):
            dma(c + nslot)
    return q


HOLD = {op: 32 + 8 * i for i, op in enumerate(o for o in LDS_OPS if o[0] != "O")}


def load_weights(e, P_WQ, P_WK, P_WV, P_WO, pre=None, mid=None):
    e.comment("---- load weight operands: Wq/Wk/Wv by LDS-DMA + transposing reads, Wo by dword loads + v_perm")
    VOFO = FREE1
    RING, TMP8 = 32, 120
    ptr = {"Q": P_WQ, "K": P_WK, "V": P_WV, "O": P_WO}
    SRDS = {"Q": 96, "K": 88, "V": 60, "O": 92}
    S_OB = 29

    def pre2(q):
        lin(e, VOFO, {0: 4, 1: 8, 2: 16, 3: 32, 4: 2 * 1024, 5: 4 * 1024, 6: 256, 7: 512})
        srd(e, SRDS["O"], ptr["O"], 512 * 4096 * 2)
        e("s_lshl_b32 %s, %s, 17" % (s(S_OB), s(S_H)))
        o_issue(0, q)
        pre(q)

    def reads(m, ci):
        tau, hi = ci >> 1, ci & 1
        out = []
        for k in range(4):
            u = 2 * k + tau
            for T in range(2):
                op = (m, T, u)
                for pr in range(2):
                    if op in HOLD:
                        dst = v(HOLD[op] + 4 * hi + 2 * pr, 2)
                    else:
                        kind, r = RES[op]
                        dst = (a if kind == "a" else v)(r + 4 * hi + 2 * pr, 2)
                    out.append((dst, k, T, 2 * pr))
        return out

    GORD = [7, 5, 3, 6, 4, 2, 1, 0]

    def o_issue(gi, q):
        g = GORD[gi]
        u = g >> 1
        base = (32, 48, 80)[gi % 3]
        e("s_xor_b32 %s, %s, %d" % (s(S_T0), s(S_WAVE), u))
        e("s_lshl_b32 %s, %s, 15" % (s(S_T0), s(S_T0)))
        e("s_add_u32 %s, %s, %s" % (s(S_T0), s(S_T0), s(S_OB)))
        for k in range(2):
            qq = 2 * (g & 1) + k
            for pr in range(4):
                for b in range(2):
                    row = 16 * b + 8 * (pr >> 1) + (pr & 1)
                    e("s_add_u32 %s, %s, 0x%x" % (s(S_T1), s(S_T0), row * 1024 + qq * 64))
                    e("buffer_load_dword %s, %s, %s, %s offen%s" % (v(base + k * 8 + pr * 2 + b), v(VOFO), s(SRDS["O"], 4), s(S_T1), OPT.get("ont", "")))
                    q.add(("o", g))

    def o_consume(gi, q):
        g = GORD[gi]
        q.wait(("o", g))
        base = (32, 48, 80)[gi % 3]
        for k in range(2):
            op = ("O", 2 * (g & 1) + k, g >> 1)
            dst = TMP8 if op in LDS_OPS else RES[op][1]
            assert op in LDS_OPS or RES[op][0] == "v"
            for pr in range(4):
                for hf in range(2):
                    e("v_perm_b32 %s, %s, %s, %s" % (v(dst + 2 * pr + hf), v(base + k * 8 + 2 * pr + 1), v(base + k * 8 + 2 * pr), s(S_PHI if hf else S_PLO)))
            if op in LDS_OPS:
                off = LDS_SLOT[op] * 2048
                assert off >= 24576
                e("ds_write_b128 %s, %s offset:%d" % (v(C_WL), v(TMP8, 4), off))
                e("ds_write_b128 %s, %s offset:%d" % (v(C_WL), v(TMP8 + 4, 4), off + 1024))
                e("s_waitcnt lgkmcnt(0)")

    def side(c, q):
        if 2 <= c < 10 and not OPT.get("noo"):
            o_consume(c - 2, q)
        if 1 <= c < 8 and not OPT.get("noo"):
            o_issue(c, q)
        early_start(e, c, q)

    chunks = [(m, ci) for m in "VKQ" for ci in range(4)]
    staged_load(e, chunks, ptr, SRDS, 1, lambda k: k << 6, {2: 32, 4: 64, 3: 128}, {5: 16, 3: 8, 4: 4, 2: 1}, True, reads, side, pre2, OPT.get("nslot", 3))
    for op, r in HOLD.items():
        off = LDS_SLOT[op] * 2048
        e("ds_write_b128 %s, %s offset:%d" % (v(C_WL), v(r, 4), off))
        e("ds_write_b128 %s, %s offset:%d" % (v(C_WL), v(r + 4, 4), off + 1024))
        if LDS_SLOT[op] % 4 == 3:
            e("s_waitcnt lgkmcnt(0)")
    e("s_waitcnt lgkmcnt(0)")


def setup_consts(e):
    T1, T2 = 104, 105
    AM = 100
    lin(e, C_IDX, {1: 0xEEEE - 0x4444}, 0x4444)
    lin(e, C_L16, {k: 16 << k for k in range(6)})
    lin(e, C_MW, {**{k: 16 << k for k in range(6)}, 6: 2048, 7: 4096})
    lin(e, C_WL, {**{k: 16 << k for k in range(6)}, 6: 32768, 7: 65536}, L_WL)
    lin(e, C_QW, {0: 4, 1: 8, 2: 16, 3: 32, 4: 2 * RS * 4, 5: 4 * RS * 4, 6: 64, 7: 128}, L_QX)
    lin(e, C_QR, {0: RS * 4, 2: 2 * RS * 4, 3: 4 * RS * 4, 4: 16, 5: 32}, L_QX)
    e("v_add_u32 %s, %d, %s" % (v(C_KW), L_KMX - L_QX, v(C_QW)))
    e("v_xor_b32 %s, 0x1000, %s" % (v(C_X2), v(C_MW)))
    lin(e, T1, {3: 1, 4: 2, 5: 4, 6: 8, 7: 16})
    e("v_add_u32 %s, %s, %s" % (v(T1), s(S_H), v(T1)))
    e("v_and_b32 %s, 31, %s" % (v(T1), v(T1)))
    e("v_lshlrev_b32 %s, 6, %s" % (v(T1), v(T1)))
    lin(e, C_PW, {0: 8, 1: 16, 2: 32, 3: 8192, 4: 2 * 8192, 5: 4 * 8192, 6: 8 * 8192, 7: 16 * 8192}, PB_OFF)
    e("v_add_u32 %s, %s, %s" % (v(C_PW), v(C_PW), v(T1)))
    mp_addr(e, C_MP, T1, T2)
    lin(e, C_FL, {0: 16, 1: 8, 2: 32, 3: 64, 4: 128, 5: 256, 6: 2048, 7: 4096})
    e("s_lshl_b32 %s, %s, 13" % (s(S_PR), s(S_H)))
    e("s_add_u32 %s, %s, 0x%x" % (s(S_PR), s(S_PR), PB_OFF))
    e("s_mov_b32 %s, 4096" % s(S_4K))
    e("v_and_b32 %s, 15, v0" % v(T1))
    for q in range(4):
        e("v_mov_b32 %s, 0" % v(AM + q))
        e("v_mov_b32 %s, 0x3f80" % v(T2))
        e("v_cmp_eq_u32 vcc, %d, %s" % (4 * q, v(T1)))
        e("v_cndmask_b32 %s, %s, %s, vcc" % (v(AM + q), v(AM + q), v(T2)))
        e("v_mov_b32 %s, 0x3f800000" % v(T2))
        e("v_cmp_eq_u32 vcc, %d, %s" % (4 * q + 1, v(T1)))
        e("v_cndmask_b32 %s, %s, %s, vcc" % (v(AM + q), v(AM + q), v(T2)))
    e("ds_write_b128 %s, %s offset:%d" % (v(C_L16), v(AM, 4), L_SEL))
    e("s_mov_b32 %s, 0x05040100" % s(S_PLO))
    e("s_mov_b32 %s, 0x07060302" % s(S_PHI))
    e("s_mov_b32 %s, 0x%x" % (s(S_SCALE), f32bits(128 ** -0.5 * 1.4426950408889634)))
    e("s_mov_b32 %s, 0x%x" % (s(S_BIG), f32bits(OPT.get('big', 2.0 ** 30))))
    e("s_mov_b32 %s, 0" % s(S_TMO))
    e("s_mov_b32 %s, 0x3f803f80" % s(S_ONES))
    e("s_mov_b32 %s, 0x3f803f80" % s(S_ONES + 1))
    e("s_lshl_b32 %s, %s, 14" % (s(S_T0), s(S_H)))
    e("s_lshr_b32 %s, %s, 1" % (s(S_T1), s(S_WAVE)))
    e("s_lshl_b32 %s, %s, 12" % (s(S_T1), s(S_T1)))
    e("s_add_u32 %s, %s, %s" % (s(S_KXO), s(S_T0), s(S_T1)))
    e("s_lshl_b32 %s, %s, 11" % (s(S_T1), s(S_WAVE)))
    e("s_add_u32 %s, %s, %s" % (s(S_VXO), s(S_T0), s(S_T1)))
    e("s_add_u32 %s, %s, 8192" % (s(S_VXO), s(S_VXO)))


def setup_pf(e):
    T1, T2 = 104, 105
    lin(e, T1, {0: 128, 1: 256, 2: 512, 3: 1024, 4: 2048, 6: 4096, 7: 8192})
    e("s_lshl_b32 %s, %s, 14" % (s(S_T0), s(S_H)))
    e("v_add_u32 %s, %s, %s" % (v(T1), s(S_T0), v(T1)))
    e("s_lshl_b32 %s, %s, 8" % (s(S_T0), s(S_H)))
    e("s_lshr_b32 %s, %s, 1" % (s(S_T1), s(S_WAVE)))
    e("s_lshl_b32 %s, %s, 7" % (s(S_T1), s(S_T1)))
    e("s_add_u32 %s, %s, %s" % (s(S_T0), s(S_T0), s(S_T1)))
    e("s_add_u32 %s, %s, 0x%x" % (s(S_T0), s(S_T0), SLAB_ST + MB_IN))
    e("v_and_b32 %s, 63, v0" % v(T0))
    e("v_mov_b32 %s, 0x%x" % (v(T2), OOB))
    e("v_cmp_lt_u32 vcc, 32, %s" % v(T0))
    e("v_cndmask_b32 %s, %s, %s, vcc" % (v(T1), v(T1), v(T2)))
    e("v_mov_b32 %s, %s" % (v(T2), s(S_T0)))
    e("v_cmp_eq_u32 vcc, 32, %s" % v(T0))
    e("v_cndmask_b32 %s, %s, %s, vcc" % (v(T1), v(T1), v(T2)))
    e("s_lshl_b32 %s, %s, 2" % (s(S_T0), s(S_H)))
    e("s_add_u32 %s, %s, 0x%x" % (s(S_T0), s(S_T0), SLAB_ST + FL_IN))
    e("v_mov_b32 %s, %s" % (v(T2), s(S_T0)))
    e("v_cmp_eq_u32 vcc, 33, %s" % v(T0))
    e("v_cndmask_b32 %s, %s, %s, vcc" % (v(C_PF), v(T1), v(T2)))


def mp_addr(e, dst, T1, T2):
    lin(e, dst, {0: 8, 1: 32, 4: 16, 5: 4, 6: 2048, 7: 4096}, MB_IN)
    e("v_mov_b32 %s, %s" % (v(T2), s(S_H)))
    lin(e, T1, {0: 256, 1: 64, 2: 128, 3: 512, 4: 1024}, src=T2)
    e("v_add_u32 %s, %s, %s" % (v(dst), v(T1), v(dst)))
    e("v_and_b32 %s, 12, v0" % v(T1))
    e("v_cmp_ne_u32 vcc, 0, %s" % v(T1))
    e("v_mov_b32 %s, 0x%x" % (v(T1), OOB))
    e("v_cndmask_b32 %s, %s, %s, vcc" % (v(dst), v(dst), v(T1)))


def mem0_load(e, P_MEM0, dst, T1, T2, TH, SR):
    srd(e, SR, P_MEM0, 8192)
    lin(e, T1, {0: 8, 1: 16, 2: 0x10000, 3: 0x10000, 4: 1024, 5: 4, 6: 64, 7: 128})
    e("v_mov_b32 %s, %s" % (v(TH), s(S_H)))
    lin(e, T2, {0: 32, 1: 2048, 2: 4096, 3: 256, 4: 512}, src=TH)
    e("v_add_u32 %s, %s, %s" % (v(T1), v(T1), v(T2)))
    e("buffer_load_dword %s, %s, %s, 0 offen" % (v(dst), v(T1), s(SR, 4)))


def init_fill(e, P_MEM0, MW, B, SR):
    M1, T1, T2, TH, MP, HP = B, B + 4, B + 5, B + 6, B + 7, B + 8
    ws = s(S_WS, 4)
    mem0_load(e, P_MEM0, HP, T1, T2, TH, SR)
    for k in range(4):
        e("v_mov_b32 %s, -1" % v(M1 + k))

    def fill8k(so):
        e("buffer_store_dwordx4 %s, %s, %s, %s offen sc1" % (v(M1, 4), v(MW), ws, s(so)))
        e("buffer_store_dwordx4 %s, %s, %s, %s offen offset:1024 sc1" % (v(M1, 4), v(MW), ws, s(so)))
    e("s_lshl_b32 %s, %s, 13" % (s(S_T0), s(S_H)))
    e("s_add_u32 %s, %s, 0x%x" % (s(S_T0), s(S_T0), PB_OFF))
    fill8k(S_T0)
    e("s_lshl_b32 %s, %s, 14" % (s(S_T0), s(S_H)))
    e("s_add_u32 %s, %s, 0x%x" % (s(S_T0), s(S_T0), HIST_OFF))
    e("s_add_u32 %s, %s, 0x2000" % (s(S_T1), s(S_T0)))
    fill8k(S_T0); fill8k(S_T1)
    e("s_mul_i32 %s, %s, 0x%x" % (s(S_T0), s(S_H), 2 * SLAB_ST))
    e("s_add_u32 %s, %s, 0x%x" % (s(S_T0), s(S_T0), SLAB_OFF + SLAB_ST + MB_IN + (0x4000000 if OPT.get("solo") else 0)))
    e("s_add_u32 %s, %s, 0x%x" % (s(S_T1), s(S_T0), SLAB_ST))
    fill8k(S_T0); fill8k(S_T1)
    e("v_lshlrev_b32 %s, 2, v0" % v(T1))
    e("s_lshl_b32 %s, %s, 10" % (s(S_T0), s(S_H)))
    for base in (FLAG_OFF + 0x4000, 0x1B0000, 0x1B8000):
        e("s_add_u32 %s, %s, 0x%x" % (s(S_T1), s(S_T0), base))
        e("buffer_store_dword %s, %s, %s, %s offen sc1" % (v(M1), v(T1), ws, s(S_T1)))
    e("v_mov_b32 %s, 0x%x" % (v(T2), OOB))
    e("v_cmp_lt_u32 vcc, 63, v0")
    e("v_cndmask_b32 %s, %s, %s, vcc" % (v(T1), v(T1), v(T2)))
    e("v_mov_b32 %s, %d" % (v(M1 + 9), 0 if OPT.get("kvflags", 1) else 1))
    e("s_lshl_b32 %s, %s, 8" % (s(S_T0), s(S_H)))
    e("s_add_u32 %s, %s, 0x%x" % (s(S_T1), s(S_T0), FLAG_OFF + 0x2000))
    e("buffer_store_dword %s, %s, %s, %s offen sc1" % (v(M1 + 9), v(T1), ws, s(S_T1)))
    e("s_mul_i32 %s, %s, 0x%x" % (s(S_T0), s(S_H), 2 * SLAB_ST))
    e("s_add_u32 %s, %s, 0x%x" % (s(S_T0), s(S_T0), SLAB_OFF + FL_IN))
    e("s_add_u32 %s, %s, 0x%x" % (s(S_T1), s(S_T0), SLAB_ST))
    e("buffer_store_dword %s, %s, %s, %s offen sc1" % (v(M1 + 9), v(T1), ws, s(S_T0)))
    e("buffer_store_dword %s, %s, %s, %s offen sc1" % (v(M1 + 9), v(T1), ws, s(S_T1)))
    if OPT.get("push"):
        e("v_mov_b32 %s, 0" % v(TH))
        e("s_lshl_b32 %s, %s, 8" % (s(S_T0), s(S_H)))
        e("s_add_u32 %s, %s, 0x%x" % (s(S_T0), s(S_T0), SYNC_OFF))
        e("buffer_store_dword %s, %s, %s, %s offen sc1" % (v(TH), v(T1), ws, s(S_T0)))
    mp_addr(e, MP, T1, T2)
    e("s_waitcnt vmcnt(16)")
    e("s_mov_b32 %s, 0x%x" % (s(S_T0), SLAB_OFF))
    e("buffer_store_dword %s, %s, %s, %s offen sc1" % (v(HP), v(MP), ws, s(S_T0)))


def ready_publish(e, T1, T2):
    e("s_waitcnt vmcnt(0)")
    e("s_barrier")
    e("v_mov_b32 %s, 1" % v(T1))
    e("s_lshl_b32 %s, %s, 2" % (s(S_T1), s(S_H)))
    e("v_lshlrev_b32 %s, 20, v0" % v(T2))
    e("buffer_store_dword %s, %s, %s, %s offen sc1" % (v(T1), v(T2), s(S_DBG, 4), s(S_T1)))


def xcc_publish(e, q):
    T1, T2 = 30, 31
    e("s_getreg_b32 %s, hwreg(HW_REG_XCC_ID)" % s(S_T0))
    e("s_and_b32 %s, %s, 15" % (s(S_T0), s(S_T0)))
    e("s_or_b32 %s, %s, 0x100" % (s(S_T0), s(S_T0)))
    e("v_mov_b32 %s, %s" % (v(T1), s(S_T0)))
    e("s_lshl_b32 %s, %s, 2" % (s(S_T1), s(S_H)))
    e("v_lshlrev_b32 %s, 20, v0" % v(T2))
    e("buffer_store_dword %s, %s, %s, %s offen offset:128 sc1" % (v(T1), v(T2), s(S_DBG, 4), s(S_T1)))
    q.add("hs")


S_MODE = 41


def early_start(e, c, q):
    T1, T2 = 30, 31
    ws = s(S_WS, 4)
    hsl = "buffer_load_dword %s, %s, %s, 0 offen sc1" % (v(T1), v(T2), s(S_DBG, 4))
    pfi = lambda: e("buffer_load_dword %s, %s, %s, %s offen sc1" % (v(JUNK), v(C_PF), ws, s(S_MB)))
    if c == 8:
        e("v_lshrrev_b32 %s, 2, %s" % (v(T2), v(C_L16)))
        e(hsl)
        q.add("hs2")
    if c == 9:
        e.comment("---- buffers initialised (debug[0..31]) and all 32 chain workgroups reported their XCC id (debug[32..63]);")
        q.wait("hs2")
        e("s_mov_b32 %s, 1" % s(S_MODE))
        e.label("L_HS")
        e("v_cmp_eq_u32 vcc, 0, %s" % v(T1))
        e("s_cbranch_vccz L_HS_ok")
        e(hsl)
        e("s_add_u32 %s, %s, 1" % (s(S_TMO), s(S_TMO)))
        e("s_cmp_gt_u32 %s, %d" % (s(S_TMO), TMO_LIMIT))
        e("s_waitcnt vmcnt(0)")
        e("s_cbranch_scc0 L_HS")
        e("s_branch L_HS_done")
        e.label("L_HS_ok")
        e("v_readlane_b32 %s, %s, 63" % (s(S_T0), v(T1)))
        e("v_cmp_ne_u32 vcc, %s, %s" % (s(S_T0), v(T1)))
        e("s_nop 1")
        e("s_cmp_lg_u32 vcc_hi, 0")
        e("s_cselect_b32 %s, 1, %d" % (s(S_MODE), OPT.get("forceslow", 0)))
        e.label("L_HS_done")
        e("s_mov_b32 %s, 0x%x" % (s(S_MB), SLAB_OFF - SLAB_ST))
        pfi()
        q.add("pf0")
    if c == 11:
        q.wait("pf0")
        e.label("L_F0")
        e("v_readlane_b32 %s, %s, 33" % (s(S_T0), v(JUNK)))
        e("s_nop 1")
        e("s_cmp_lg_u32 %s, 0" % s(S_T0))
        e("s_cbranch_scc1 L_F0_ok")
        pfi()
        e("s_add_u32 %s, %s, 1" % (s(S_TMO), s(S_TMO)))
        e("s_cmp_gt_u32 %s, %d" % (s(S_TMO), TMO_LIMIT))
        e("s_waitcnt vmcnt(0)")
        e("s_cbranch_scc0 L_F0")
        e.label("L_F0_ok")
        e("s_mov_b32 %s, 0x%x" % (s(S_MB), SLAB_OFF))
        pfi()
        q.add("pf1")


def smf_ins(acc, aop, op):
    return "v_smfmac_f32_16x16x64_bf16 %s, %s, %s, %s" % (v(acc, 4), v(aop, 4), opreg(op), v(C_IDX))


def stamp(e, i, on):
    if on:
        e("s_memtime %s" % s(S_ST + 2 * i, 2))


am = lambda u: AM + 4 * u


def idle_prep_ins():
    out = []
    for op in (("Q", 0, 0), ("Q", 1, 0), ("Q", 0, 1), ("Q", 1, 1), ("K", 0, 0), ("K", 1, 0)):
        out += lds_fetch_ins(op)
    z = ["v_mov_b64 %s, 0" % v(r, 2) for r in range(ACCQ, ACCQ + 24, 2)]
    return out, z


def delay(e, cyc):
    n = cyc // 4
    while n > 0:
        k = min(n, 16)
        e("s_nop %d" % (k - 1))
        n -= k


def main_loop(e, tag, sc, nsteps, stamps=False):
    L = lambda n: "L_%s_%s" % (tag, n)
    ws = s(S_WS, 4)
    solo = OPT.get("solo")
    trace = OPT.get("trace")
    acc = {"Q": ACCQ, "K": ACCK, "V": ACCV}
    S = lambda m, T, u: smf_ins(acc[m] + 4 * T, am(u), (m, T, u))
    Q = lambda T, u: S("Q", T, u)
    K = lambda T, u: S("K", T, u)
    V = lambda T, u: S("V", T, u)
    lg = lambda n: "s_waitcnt lgkmcnt(%d)" % n
    BAR = "s_barrier"
    add = lambda b, r: "v_add_f32 %s, %s, %s" % (v(b + r), v(b + r), v(b + r + 2))
    cvt = lambda d, x, y: "v_cvt_pk_bf16_f32 %s, %s, %s" % (v(d), v(x), v(y))
    ex = lambda r: "v_exp_f32 %s, %s" % (v(r), v(r))
    mf32 = lambda d, A, B, first: "v_mfma_f32_16x16x32_bf16 %s, %s, %s, %s" % (v(d, 4), v(A, 4), v(B, 4), "0" if first else v(d, 4))
    mf16 = lambda d, A, B: "v_mfma_f32_16x16x16_bf16 %s, %s, %s, %s" % (v(d, 4), v(A, 2), v(B, 2), v(d, 4))

    def run(sched, extra=None):
        for i_, (m_, rest) in enumerate(sched):
            e(m_)
            for x in (extra or {}).get(i_, []) + rest:
                if x.endswith(":"):
                    e.label(x[:-1])
                else:
                    e(x)
    e.label(L("start"))
    e("s_mov_b32 %s, 0" % s(S_STEP))
    e("s_mov_b32 %s, 0x%x" % (s(S_SLAB), SLAB_OFF))
    e("s_mov_b32 %s, 0" % s(S_PAR))
    e("s_mov_b32 %s, 0x%x" % (s(S_HIST), HIST_OFF - MB_IN))
    e("s_mov_b32 %s, 0x%x" % (s(S_OOB), OOB))
    if OPT.get("push"):
        e("s_add_u32 %s, %s, 0x%x" % (s(S_SY), s(S_WS), SYNC_OFF))
        e("s_addc_u32 %s, %s, 0" % (s(S_SY + 1), s(S_WS + 1)))
        e("s_mov_b32 %s, 4096" % s(S_SY + 2))
        e("s_mov_b32 %s, 0x20000" % s(S_SY + 3))
        e("s_lshl_b32 %s, %s, 7" % (s(S_FR), s(S_H)))
        e("s_lshl_b32 %s, %s, 2" % (s(S_FW), s(S_H)))
        e("s_cmp_eq_u32 %s, 3" % s(S_WAVE))
        e("s_cselect_b32 %s, %s, %s" % (s(S_FW), s(S_FW), s(S_OOB)))
    for u in (1, 2, 3):
        e("s_mov_b32 %s, 0x%x" % (s(S_U0 + u), u * 2048))
    e("s_mov_b32 %s, 0xcccccccc" % s(S_HM))
    e("s_mov_b32 %s, 0xcccccccc" % s(S_HM + 1))
    e("s_mov_b32 %s, 0" % s(S_SPIN))
    f, z = idle_prep_ins()
    for t in f + z:
        e(t)
    mldp = lambda P: ["buffer_load_dwordx4 %s, %s, %s, %s offen sc1" % (v(P, 4), v(C_MW), ws, s(S_MB)),
                      "buffer_load_dwordx4 %s, %s, %s, %s offen offset:1024 sc1" % (v(P + 4, 4), v(C_MW), ws, s(S_MB))]
    mld = mldp(AM)
    e("s_add_u32 %s, %s, 0x%x" % (s(S_MB), s(S_SLAB), MB_IN))
    for t in mld:
        e(t)
    e("s_waitcnt vmcnt(2)")
    e.label(L("step"))
    e("v_readlane_b32 %s, %s, 33" % (s(S_T0), v(JUNK)))
    e("s_add_u32 %s, %s, 0x%x" % (s(S_SLABN), s(S_SLAB), SLAB_ST))
    e("s_cmp_eq_u32 %s, 0" % s(S_T0))
    e("s_cbranch_scc1 %s" % L("refresh"))
    e.label(L("fresh"))
    e("s_add_u32 %s, %s, %s" % (s(S_KX), s(S_SLAB), s(S_KXO)))
    e("s_add_u32 %s, %s, %s" % (s(S_VX), s(S_SLAB), s(S_VXO)))
    e("s_xor_b32 %s, %s, 1" % (s(S_NPAR), s(S_PAR)))
    e("s_add_u32 %s, %s, 1" % (s(S_NEXT), s(S_STEP)))
    if OPT.get("push"):
        e("s_mov_b32 %s, %s" % (s(S_NX2), s(S_NEXT)))
        e("v_mov_b32 %s, %s" % (v(FREE1), s(S_NEXT)))
    tr = 2
    if OPT.get("m3"):
        tr = 4
        delay(e, OPT.get("pm0", 0))
        for x in mld:
            e(x)
    ns = OPT.get("ns", 0)
    if ns:
        e("s_cmp_lt_u32 %s, %d" % (s(S_WAVE), ns))
        e("s_cbranch_scc1 %s" % L("onem"))
    delay(e, OPT.get("pm", 64) - (24 if ns else 0))
    e.label(L("retrym"))
    for x in mld:
        e(x)
    e.label(L("prem"))
    e("s_add_u32 %s, %s, 1" % (s(S_TMO), s(S_TMO)))
    e("s_cmp_gt_u32 %s, %d" % (s(S_TMO), TMO_LIMIT))
    e("s_cselect_b32 %s, -1, -2" % s(S_LIM))
    e("v_xor_b32 %s, 0x800, %s" % (v(am(3)), v(C_MW)))
    e("v_xor_b32 %s, 0x1800, %s" % (v(am(7)), v(C_MW)))
    for x in z[:4]:
        e(x)
    e.label(L("waitm"))
    e("s_waitcnt vmcnt(%d) lgkmcnt(0)" % (1 + tr))
    e.label(L("gotm"))
    stamp(e, 0, stamps)
    T1 = am(2)
    mw = ["ds_write_b128 %s, %s offset:%d" % (v(C_MW), v(am(k), 4), L_MEMI + 1024 * k) for k in range(2)]
    PK = ACCK
    pst = lambda q: "buffer_store_dwordx2 %s, %s, %s, %s offen offset:%d%s" % (v(PK + 2 * q, 2), v(C_PW), ws, "0" if q < 2 else s(S_4K), (q & 1) * 2048, sc or OPT.get("pstf", ""))
    tg = lambda q: "v_and_or_b32 %s, %s, -2, %s" % (v(PK + 2 * q), v(PK + 2 * q), s(S_TAG))
    kx = lambda ks: "buffer_load_dwordx4 %s, %s, %s, %s offen offset:%d sc1" % (v(XB + 4 * ks, 4), v(C_L16), ws, s(S_KX), ks * 1024)
    vx = lambda T: "buffer_load_dwordx4 %s, %s, %s, %s offen offset:%d sc1" % (v(VX + 4 * T, 4), v(C_L16), ws, s(S_VX), T * 1024)
    amrd = lambda u: "ds_read_b128 %s, %s offset:%d" % (v(am(u), 4), v(C_X2 if u >> 1 == 2 else am(u | 1)), L_MEMI + (u & 1) * 1024)
    q7 = lds_fetch_ins(("Q", 0, 7)) + lds_fetch_ins(("Q", 1, 7))
    k2 = lds_fetch_ins(("K", 0, 2)) + lds_fetch_ins(("K", 1, 2))
    k7 = lds_fetch_ins(("K", 0, 7)) + lds_fetch_ins(("K", 1, 7))
    of = sum([lds_fetch_ins(op) for op in OLDS], [])
    qbrd = lambda ks: "ds_read_b128 %s, %s offset:%d" % (v(QB + 4 * ks, 4), v(C_QR), 64 * ks)
    KM = XA
    kmrd = lambda ks: "ds_read_b128 %s, %s offset:%d" % (v(KM + 4 * ks, 4), v(C_QR), L_KMX - L_QX + 64 * ks)
    SX, SM = ACCQ, ACCQ + 4
    ONES, PX, PM, VM0, VM1 = XB, XB + 4, XB + 8, XB + 10, XB + 12
    TA = XB + 14
    LS, OA, OP = SX, ACCK, SM
    smx = lambda ks: mf32(SX, XB + 4 * ks, QB + 4 * ks, ks == 0)
    smm = lambda ks: mf32(SM, KM + 4 * ks, QB + 4 * ks, ks == 0)
    pf = "buffer_load_dword %s, %s, %s, %s offen sc1" % (v(JUNK), v(C_PF), ws, s(S_SLABN))
    hist = "buffer_store_dword %s, %s, %s, %s offen sc1" % (v(HPEND), v(C_MP), ws, s(S_HIST))
    zw = ["v_mov_b64 %s, 0" % v(r, 2) for r in range(AM, AM + 16, 2)]
    OOP = AM + 12
    o64 = OPT.get("o64", 1)
    if o64:
        oad = ["v_bitop3_b32 %s, %s, %s, -9 bitop3:0x28" % (v(OOP + 4 * u), v(C_FL), s(S_U0 + u)) for u in (1, 2, 3)]
    else:
        oad = ["v_xor_b32 %s, 0x%x, %s" % (v(OOP + 4 * u), u * 2048, v(C_MW)) for u in (1, 3)]
    L_OE = L_PX + 1024
    mx3 = lambda d, x, y, z_: "v_max3_u32 %s, %s, %s, %s" % (v(d), v(x), v(y), v(z_))
    mov0 = lambda r: "v_mov_b32 %s, 0" % v(r)
    qs = lambda r: "v_mul_f32 %s, %s, %s" % (v(ACCQ + r), s(S_SCALE), v(ACCQ + r))
    push = OPT.get("push", 0) and not solo
    F0, FA, FS = AM + 28, AM + 29, AM + 30
    fst = "buffer_store_dword %s, %s, %s, %s offen%s" % (v(FREE1), v(FS), s(S_SY, 4), s(S_FW), sc)
    fld = "buffer_load_dword %s, %s, %s, %s offen sc1" % (v(F0), v(FA), s(S_SY, 4), s(S_FR))
    fw = OPT.get("fw", 2)
    fsc = "v_lshlrev_b32 %s, 3, %s" % (v(FS), v(C_L16))
    ex0 = {}
    if push and fw < 0:
        ex0 = {62 + fw: [fst]}
    early = OPT.get("early", 1)
    e(mx3(T0, AM, AM + 1, AM + 2))
    e("v_max_u32 %s, %s, %s" % (v(T0), v(T0), v(AM + 3)))
    run([
        (Q(0, 0), ["s_waitcnt vmcnt(%d)" % tr, mx3(T0, T0, AM + 4, AM + 5)]),
        (Q(1, 0), [mx3(T0, T0, AM + 6, AM + 7), "v_cmp_lt_u32 vcc, %s, %s" % (s(S_LIM), v(T0))]),
        (Q(0, 1), [mw[0]] + ([] if solo else ["s_cbranch_vccnz %s" % L("retrym")])),
        (Q(1, 1), [mw[1]]),
        (K(0, 0), [kx(0), vx(0)] if early else [kx(0)]),
        (K(1, 0), [kx(1), vx(1)] if early else [kx(1)]),
        (K(0, 1), [kx(2), kx(3)] if early else [kx(2)]),
        (K(1, 1), [lg(0), BAR, amrd(2)]),
        (V(0, 0), [amrd(3)]),
        (V(1, 0), [pf] if early else [kx(3)]),
        (V(0, 1), [amrd(4)]),
        (V(1, 1), [amrd(5), lg(3)]),
        (Q(0, 2), [amrd(6)]),
        (Q(1, 2), [amrd(7), lg(4)]),
        (Q(0, 3), [q7[0]]),
        (Q(1, 3), [q7[1], lg(4)]),
        (Q(0, 4), [q7[2]]),
        (Q(1, 4), [q7[3], lg(4)]),
        (Q(0, 5), [] if early else [vx(0)]),
        (Q(1, 5), [k2[0]]),
        (Q(0, 6), [] if early else [vx(1)]),
        (Q(1, 6), [k2[1], lg(2)]),
        (Q(0, 7), [k2[2]]),
        (Q(1, 7), [k2[3]]),
        (K(0, 3), [k7[0]]),
        (K(1, 3), [k7[1]]),
        (K(0, 4), [k7[2], add(ACCQ, 0), add(ACCQ, 1)]),
        (K(1, 4), [k7[3], add(ACCQ + 4, 0), add(ACCQ + 4, 1)]),
        (K(0, 5), [lg(4), qs(0), qs(4)]),
        (K(0, 2), [qs(1), qs(5)]),
        (K(1, 2), [cvt(ACCQ + 2, ACCQ, ACCQ + 4), cvt(ACCQ + 3, ACCQ + 1, ACCQ + 5)]),
        (K(1, 5), ["ds_write2_b32 %s, %s, %s offset0:0 offset1:%d" % (v(C_QW), v(ACCQ + 2), v(ACCQ + 3), RS)]),
        (K(0, 6), [hist]),
        (K(1, 6), [lg(1)] + ([] if early else [pf])),
        (K(0, 7), []),
        (K(1, 7), [lg(0), BAR]),
        (V(0, 2), [qbrd(0)]),
        (V(1, 2), [qbrd(1), add(ACCK, 0)]),
        (V(0, 3), [qbrd(2), add(ACCK, 1)]),
        (V(1, 3), [qbrd(3), "s_waitcnt vmcnt(2) lgkmcnt(3)"]),
        (smx(0), [lg(2), add(ACCK + 4, 0), add(ACCK + 4, 1)]),
        (smx(1), [lg(1), cvt(ACCK + 2, ACCK, ACCK + 4), cvt(ACCK + 3, ACCK + 1, ACCK + 5)]),
        (smx(2), ["ds_write2_b32 %s, %s, %s offset0:0 offset1:%d" % (v(C_KW), v(ACCK + 2), v(ACCK + 3), RS), lg(1)]),
        (smx(3), ["v_mov_b64 %s, %s" % (v(ONES, 2), s(S_ONES, 2)), "v_mov_b64 %s, %s" % (v(ONES + 2, 2), s(S_ONES, 2))]),
        (V(0, 4), [mov0(PM + 1)]),
        (V(1, 4), ["s_nop 1", mov0(VM0 + 1)]),
        (V(0, 5), [lg(0), BAR, ex(SX)]),
        (V(1, 5), [kmrd(0), ex(SX + 1)]),
        (V(0, 6), [kmrd(1), ex(SX + 2)]),
        (V(1, 6), [kmrd(2), ex(SX + 3)]),
        (V(0, 7), [kmrd(3), cvt(PX, SX, SX + 1), cvt(PX + 1, SX + 2, SX + 3)]),
        (V(1, 7), ["ds_write_b64 %s, %s offset:%d" % (v(C_MW), v(PX, 2), L_PX), lg(4)]),
        (smm(0), [lg(3), mov0(VM1 + 1), zw.pop(0)]),
        (smm(1), [lg(2), zw.pop(0), zw.pop(0)]),
        (smm(2), [lg(1), add(ACCV, 0), add(ACCV, 1)]),
        (smm(3), [lg(0), BAR, "ds_read_b64 %s, %s offset:%d" % (v(PX + 2, 2), v(C_X2), L_PX)] + ([fsc] if push else []) +
                 [add(ACCV + 4, 0), add(ACCV + 4, 1), cvt(VM0, ACCV, ACCV + 1), cvt(VM1, ACCV + 4, ACCV + 5), zw.pop(0), ex(SM), ex(SM + 1), lg(0)]),
        (mf32(LS, ONES, PX, True), [cvt(PM, SM, SM + 1), zw.pop(0)]),
        (mf32(OA, VX, PX, True), [zw.pop(0), zw.pop(0)]),
        (mf32(OA + 4, VX + 4, PX, True), [zw.pop(0), oad[0]]),
        (mf16(LS, ONES, PM), [oad[1]] + oad[2:]),
        (mf16(OA, VM0, PM), ["s_nop 1"]),
        (mf16(OA + 4, VM1, PM), ["v_rcp_f32 %s, %s" % (v(TA), v(LS))]),
    ], ex0)
    assert not zw
    e("v_max_f32 %s, %s, %s" % (v(T0), v(TA), v(LS)))
    e("v_cmp_nge_f32 vcc, %s, %s" % (s(S_BIG), v(T0)))
    for r in (0, 2, 4, 6):
        e("v_pk_mul_f32 %s, %s, %s op_sel_hi:[1,0]" % (v(OA + r, 2), v(OA + r, 2), v(TA, 2)))
    for r in (0, 2, 1, 3):
        e(cvt(OP + r, OA + r, OA + 4 + r))
    if OPT.get("pflat"):
        e("s_memtime s[74:75]")
        e("s_waitcnt vmcnt(1)")
        e("s_memtime s[72:73]")
        e("s_waitcnt lgkmcnt(0)")
    e.label(L("rejoin"))
    if o64:
        for k in range(2):
            e("v_cndmask_b32 %s, %s, %s, %s" % (v(LS + 2 + k), v(OP + k), v(OP + 2 + k), s(S_HM, 2)))
        e("ds_write_b64 %s, %s offset:%d" % (v(C_FL), v(LS + 2, 2), L_OE))
    else:
        e("ds_write_b128 %s, %s offset:%d" % (v(C_MW), v(OP, 4), L_OE))
    WACC = AM
    SO = lambda q, u: smf_ins(WACC + 4 * q, OP if u == 0 else OOP + 4 * u, ("O", q, u))
    ord_ = lambda u: "ds_read_b128 %s, %s offset:%d" % (v(OOP + 4 * u, 4), v(C_X2 if u == 2 and not o64 else OOP + 4 * u), L_OE)
    SEL, RD = ACCV, ACCV + 4
    wc = lambda q, r: cvt(PK + 2 * q + r, WACC + 4 * q + r, WACC + 4 * q + 2 + r)
    extra = {}
    if push:
        extra = {fw: [fst]} if fw >= 0 else {}
        for pos in (OPT.get("fr", 7), OPT.get("fr2", 11), OPT.get("fr3", 14)):
            extra.setdefault(pos, []).append(fld)
    run([
        (SO(0, 0), ["v_bfe_u32 %s, %s, 2, 7" % (v(FA), v(C_L16)), mov0(F0)] if push else []),
        (SO(1, 0), [lg(0), BAR, ord_(1), ord_(2)] if OPT.get("b4", 1) else []),
        (SO(2, 0), [ord_(3)] if OPT.get("b4", 1) else [lg(0), BAR, ord_(1), ord_(2)]),
        (SO(3, 0), ([] if OPT.get("b4", 1) else [ord_(3)]) + [of[0], of[1], lg(4)]),
        (SO(0, 1), [of[2], lg(4)]),
        (SO(0, 2), [of[3], lg(4)]),
        (SO(0, 3), [of[4], "s_cmp_lg_u64 vcc, 0"]),
        (SO(1, 1), [of[5], "s_cselect_b32 %s, %s, %s" % (s(S_TAG), s(S_NPAR), s(S_PAR))]),
        (SO(1, 2), [of[6], wc(0, 0)] + ([wc(0, 1), tg(0)] if OPT.get("fs") else [])),
        (SO(1, 3), [pst(0)] if OPT.get("fs") else [of[7], wc(0, 1), tg(0)]),
        (SO(2, 1), [of[7]] if OPT.get("fs") else [pst(0)]),
        (SO(2, 2), [lg(4), "s_nop 0", wc(1, 0)]),
        (SO(2, 3), ["ds_read_b128 %s, %s offset:%d" % (v(SEL, 4), v(C_L16), L_SEL), wc(1, 1), tg(1)]),
        (SO(3, 1), [pst(1), lg(1)]),
        (SO(3, 2), ["s_nop 1", wc(2, 0)]),
        (SO(3, 3), ["s_nop 2", wc(2, 1), tg(2), pst(2), wc(3, 0), wc(3, 1), tg(3), pst(3)]),
    ], extra)
    e.label(L("stored"))
    stamp(e, 1, stamps)
    e("s_cmp_lg_u32 %s, %s" % (s(S_TAG), s(S_PAR)))
    e("s_cbranch_scc1 %s" % L("safe"))
    f, z = idle_prep_ins()
    n0 = OPT.get("n0", 12)
    PD = VX
    pld = lambda P: ["buffer_load_dwordx4 %s, %s, %s, %s offen sc1" % (v(P, 4), v(C_MW), ws, s(S_PR)),
                     "buffer_load_dwordx4 %s, %s, %s, %s offen offset:1024 sc1" % (v(P + 4, 4), v(C_MW), ws, s(S_PR))]
    pub = "buffer_store_dword %s, %s, %s, %s offen%s" % (v(HPEND), v(C_MP), ws, s(S_T0), sc)
    if push:
        e.label(L("sync"))
        e("v_cmp_gt_u32 vcc, %s, %s" % (s(S_NX2), v(F0)))
        e(fld)
        e("s_add_u32 %s, %s, 1" % (s(S_SPIN), s(S_SPIN)))
        e("s_cmp_le_u32 %s, %d" % (s(S_SPIN), TMO_LIMIT * 8))
        e("s_cselect_b32 %s, %s, 0" % (s(S_NX2), s(S_NX2)))
        e("s_waitcnt vmcnt(24)")
        delay(e, OPT.get("sper", 0))
        e("s_cbranch_vccnz %s" % L("sync"))
    for x in f[:n0]:
        e(x)
    delay(e, OPT.get("d1", 0))
    for q in range(1, 4):
        e("s_cmp_lt_u32 %s, %d" % (s(S_WAVE), q))
        e("s_cbranch_scc1 %s" % L("pollp"))
        delay(e, OPT.get("dp", 40))
    e.label(L("pollp"))
    stamp(e, 4, stamps and not OPT.get("pflat"))
    PB_ = AM + 16
    for x in pld(PD):
        e(x)
    for x in f[n0:] + z[4:8]:
        e(x)
    p1 = OPT.get("p1")
    if ns:
        e("s_cmp_lt_u32 %s, %d" % (s(S_WAVE), ns))
        e("s_cbranch_scc1 %s" % L("onep"))
    if not p1:
        delay(e, OPT.get("pp", 128) - (24 if ns else 0))
        for x in pld(PB_):
            e(x)
    e.label(L("prep"))
    e("s_add_u32 %s, %s, 0x%x" % (s(S_MB), s(S_SLABN), MB_IN))
    chk = lambda P: ["v_bitop3_b32 %s, %s, %s, %s bitop3:0x7e" % (v(T0), v(P), v(P + 2), s(S_PAR)),
                     "v_bitop3_b32 %s, %s, %s, %s bitop3:0x7e" % (v(FREE1), v(P + 4), v(P + 6), s(S_PAR)),
                     "v_bitop3_b32 %s, %s, %s, 1 bitop3:0xa8" % (v(T0), v(T0), v(FREE1)),
                     "v_cmp_ne_u32 vcc, 0, %s" % v(T0)]

    def finish():
        for rot in (8, 4):
            for r in (0, 1):
                e("v_add_f32_dpp %s, %s, %s row_ror:%d row_mask:0xf bank_mask:0xf" % (v(RD + r), v(RD + r), v(RD + r), rot))
        e(cvt(HPEND, RD, RD + 1))
        e(pub)

    def attempt(P, base):
        e("s_waitcnt vmcnt(%d) lgkmcnt(0)" % (base + 1))
        e(mf32(RD, SEL, P, True))
        e(chk(P)[0])
        e("s_waitcnt vmcnt(%d)" % base)
        e(mf32(RD, SEL, P + 4, False))
        for x in chk(P)[1:]:
            e(x)
        e("s_nop 2")
        e("s_cmp_eq_u64 vcc, 0")
        e("s_cselect_b32 %s, %s, %s" % (s(S_T0), s(S_HIST if solo else S_SLABN), s(S_OOB)))
        finish()
    attempt(PD, 0 if p1 else 2)
    if not solo:
        e("s_cbranch_scc1 %s" % L("gotp"))
        if p1:
            for x in pld(PB_):
                e(x)
            e(pub)
            delay(e, 96)
        e.label(L("retryp"))
        for x in pld(PD):
            e(x)
        attempt(PB_, 3)
        e("s_cbranch_scc1 %s" % L("gotp"))
        for x in pld(PB_):
            e(x)
        attempt(PD, 3)
        e("s_cbranch_scc1 %s" % L("gotp"))
        e("s_add_u32 %s, %s, 1" % (s(S_TMO), s(S_TMO)))
        e("s_cmp_le_u32 %s, %d" % (s(S_TMO), TMO_LIMIT))
        e("s_cbranch_scc1 %s" % L("retryp"))
        e("s_mov_b32 %s, %s" % (s(S_T0), s(S_SLABN)))
        e(pub)
    e.label(L("gotp"))
    stamp(e, 2, stamps)
    e("s_add_u32 %s, %s, 0x2000" % (s(S_HIST), s(S_HIST)))
    e("s_cmp_ge_u32 %s, %d" % (s(S_NEXT), nsteps))
    e("s_cbranch_scc1 %s" % L("last"))
    e("s_mov_b32 %s, %s" % (s(S_SLAB), s(S_SLABN)))
    e("s_mov_b32 %s, %s" % (s(S_STEP), s(S_NEXT)))
    e("s_mov_b32 %s, %s" % (s(S_PAR), s(S_NPAR)))
    for x in z[8:]:
        e(x)
    if trace:
        e("s_memrealtime s[100:101]")
        e("s_memtime s[70:71]")
        e("s_lshl_b32 s3, %s, 2" % s(S_H))
        e("s_add_u32 s3, s3, %s" % s(S_WAVE))
        e("s_lshl_b32 s3, s3, 6")
        e("s_add_u32 s3, s3, %s" % s(S_STEP))
        e("s_lshl_b32 s3, s3, 5")
        e("s_add_u32 s3, s3, 0x200000")
        e("s_waitcnt lgkmcnt(0)")
        for k, r in enumerate((64, 66, 68, 100, 70, 72, 74, S_TMO)):
            e("v_mov_b32 %s, %s" % (v(AM + 8 + k), s(r)))
        e("buffer_store_dwordx4 %s, off, %s, s3" % (v(AM + 8, 4), ws))
        e("buffer_store_dwordx4 %s, off, %s, s3 offset:16" % (v(AM + 12, 4), ws))
    delay(e, OPT.get("dm", 112) - (128 if trace else 0))
    if ns and OPT.get("dmx"):
        e("s_cmp_ge_u32 %s, %d" % (s(S_WAVE), ns))
        e("s_cbranch_scc1 %s" % L("firem"))
        delay(e, OPT.get("dmx"))
        e.label(L("firem"))
    stamp(e, 5, stamps and not OPT.get("pflat"))
    for x in mld:
        e(x)
    e("s_branch %s" % L("step"))
    e.label(L("last"))
    e(hist)
    e("s_branch %s" % L("done"))
    if ns:
        e.label(L("onem"))
        e("s_waitcnt vmcnt(0)")
        e("s_branch %s" % L("prem"))
        e.label(L("onep"))
        e("v_mov_b32 %s, %s" % (v(PB_), s(S_NPAR)))
        e("s_waitcnt vmcnt(0)")
        e("s_branch %s" % L("prep"))
    e.label(L("refresh"))
    e("buffer_load_dword %s, %s, %s, %s offen sc1" % (v(JUNK), v(C_PF), ws, s(S_SLAB)))
    e("s_add_u32 %s, %s, 1" % (s(S_TMO), s(S_TMO)))
    e("s_cmp_le_u32 %s, %d" % (s(S_TMO), TMO_LIMIT))
    e("s_waitcnt vmcnt(0)")
    e("s_cbranch_scc1 %s" % L("step"))
    e("s_branch %s" % L("fresh"))
    e.label(L("safe"))
    e.fence(12)
    e("s_waitcnt vmcnt(0) lgkmcnt(0)")
    e("s_barrier")
    W = AM
    for ks in range(4):
        e(qbrd(ks))
        e(kmrd(ks))
    e("s_xor_b32 %s, %s, 0x1000" % (s(S_T0), s(S_KXO)))
    e("s_add_u32 %s, %s, %s" % (s(S_T0), s(S_T0), s(S_SLAB)))
    for ks in range(4):
        e("buffer_load_dwordx4 %s, %s, %s, %s offen offset:%d sc1" % (v(W + 4 * ks, 4), v(C_L16), ws, s(S_KX), ks * 1024))
        e("buffer_load_dwordx4 %s, %s, %s, %s offen offset:%d sc1" % (v(W + 16 + 4 * ks, 4), v(C_L16), ws, s(S_T0), ks * 1024))
    e("s_waitcnt vmcnt(0) lgkmcnt(0)")
    S0, S1, S2 = ACCQ, ACCQ + 4, ACCK
    for (d, src) in ((S0, W), (S1, W + 16), (S2, XA)):
        for ks in range(4):
            e(mf32(d, src + 4 * ks, QB + 4 * ks, ks == 0))
    M0_, M1_ = W, W + 1
    e("v_max3_f32 %s, %s, %s, %s" % (v(M0_), v(S0), v(S0 + 1), v(S0 + 2)))
    e("v_max3_f32 %s, %s, %s, %s" % (v(M0_), v(M0_), v(S0 + 3), v(S1)))
    e("v_max3_f32 %s, %s, %s, %s" % (v(M0_), v(M0_), v(S1 + 1), v(S1 + 2)))
    e("v_max3_f32 %s, %s, %s, %s" % (v(M0_), v(M0_), v(S1 + 3), v(S2)))
    e("v_max_f32 %s, %s, %s" % (v(M0_), v(M0_), v(S2 + 1)))
    for sw in ("v_permlane16_swap_b32", "v_permlane32_swap_b32"):
        e("v_mov_b32 %s, %s" % (v(M1_), v(M0_)))
        e("%s %s, %s" % (sw, v(M0_), v(M1_)))
        e("v_max_f32 %s, %s, %s" % (v(M0_), v(M0_), v(M1_)))
    for r in [S0 + i for i in range(8)] + [S2, S2 + 1]:
        e("v_sub_f32 %s, %s, %s" % (v(r), v(r), v(M0_)))
        e(ex(r))
    for q in range(4):
        e(cvt(PX + q, S0 + 2 * q, S0 + 2 * q + 1))
    e(cvt(PM, S2, S2 + 1))
    e(mf32(LS, ONES, PX, True)); e(mf32(OA, VX, PX, True)); e(mf32(OA + 4, VX + 4, PX, True))
    e(mf16(LS, ONES, PM)); e(mf16(OA, VM0, PM)); e(mf16(OA + 4, VM1, PM))
    e("v_rcp_f32 %s, %s" % (v(TA), v(LS)))
    for r in range(8):
        e("v_mul_f32 %s, %s, %s" % (v(OA + r), v(OA + r), v(TA)))
    for r in range(4):
        e(cvt(OP + r, OA + r, OA + 4 + r))
    for r in range(AM, AM + 16):
        e(mov0(r))
    for x in oad:
        e(x)
    if push:
        e(fsc)
    e("s_mov_b64 vcc, 0")
    e("s_branch %s" % L("rejoin"))
    e.label(L("done"))
```

```python
from asmlib import v, a, s
import chain as C
from chain import lin, srd, f32bits, S_WS, S_DBG, S_H, S_WAVE, S_TMO, S_SCALE, S_PLO, S_PHI, S_T0, S_T1, S_T2, TMO_LIMIT, OOB

FLAGTP = C.FLAG_OFF + 0x2000
RVAL = C.FLAG_OFF + 0x4000
ACT = C.FLAG_OFF + 0xC000
FLAGXN = FLAGTP + 0x400
XNI = 0x800000
RDONE = 0x1B8000
NREP = 6
HROW = 0x400000
XN2 = 0x600000
TP_OFF = 0x4000000
Q_DELTA = 0x8000000 - C.SLAB_OFF

X_T = 0
EX_Q = 0
EX_K = 8192
EX_KM = 16384
MEMI = 20480
EX_O = 0
RED = 28672
L_WO = 32768

S_X = 12
S_OUT = 60
S_WR = 92
S_R = 22
S_SEG = 23
S_A, S_B = 24, 25
S_TPB = 26
S_PAR = 27
S_J = 29
S_M0 = 64
S_MM = 72
S_ONES = C.S_ONES

W_L16, W_MW, W_XG, W_XW, W_XR0, W_XR1, W_WO, W_MR, W_EX, W_TPW, W_TPR, W_ROW, W_NEG, T0, T1 = range(1, 16)
assert T0 == C.T0
R0 = 16


def wreg(m, T, ks):
    idx = ("QKV".index(m) * 32 + ks * 2 + T) * 4
    return a(idx, 4) if idx < 256 else v(128 + idx - 256, 4)


def mf32(d, A, B, first):
    return "v_mfma_f32_16x16x32_bf16 %s, %s, %s, %s" % (v(d, 4), A, B, "0" if first else v(d, 4))


def cvt(d, x, y):
    return "v_cvt_pk_bf16_f32 %s, %s, %s" % (v(d), v(x), v(y))


def ids(e):
    e("s_and_b32 %s, s2, 7" % s(S_T0))
    e("s_sub_u32 %s, %s, 1" % (s(S_T0), s(S_T0)))
    e("s_lshl_b32 %s, %s, 5" % (s(S_T0), s(S_T0)))
    e("s_lshr_b32 %s, s2, 3" % s(S_T1))
    e("s_add_u32 %s, %s, %s" % (s(S_T0), s(S_T0), s(S_T1)))
    e("s_mul_i32 %s, %s, 10923" % (s(S_H), s(S_T0)))
    e("s_lshr_b32 %s, %s, 16" % (s(S_H), s(S_H)))
    e("s_mul_i32 %s, %s, %d" % (s(S_T1), s(S_H), NREP))
    e("s_sub_u32 %s, %s, %s" % (s(S_R), s(S_T0), s(S_T1)))


def setup(e):
    lin(e, W_L16, {k: 16 << k for k in range(6)})
    lin(e, W_MW, {**{k: 16 << k for k in range(6)}, 6: 2048, 7: 4096})
    lin(e, W_EX, {**{k: 16 << k for k in range(6)}, 6: 1024, 7: 2048})
    lin(e, W_WO, {**{k: 16 << k for k in range(6)}, 6: 32768, 7: 65536}, L_WO)
    lin(e, W_XG, {0: 16, 1: 32, 2: 64, 3: 1024, 4: 2048, 5: 4096, 6: 8192, 7: 16384})
    lin(e, W_XW, {0: 256, 1: 512, 2: 1024, 6: 128, 7: 16384})
    e("v_lshrrev_b32 %s, 3, v0" % v(T1))
    e("v_xor_b32 %s, %s, v0" % (v(T1), v(T1)))
    e("v_and_b32 %s, 7, %s" % (v(T1), v(T1)))
    e("v_lshl_add_u32 %s, %s, 4, %s" % (v(W_XW), v(T1), v(W_XW)))
    e("v_bfe_u32 %s, v0, 4, 2" % v(T1))
    e("v_lshlrev_b32 %s, 4, %s" % (v(T1), v(T1)))
    e("v_xor_b32 %s, %s, %s" % (v(W_XR0), v(T1), v(W_L16)))
    e("v_xor_b32 %s, 64, %s" % (v(W_XR1), v(W_XR0)))
    lin(e, W_MR, {0: 16, 1: 64, 2: 128, 4: 32, 5: 256}, MEMI)
    lin(e, W_TPW, {0: 16, 1: 32, 2: 64, 3: 128, 4: 4 * 32768, 5: 8 * 32768, 6: 256, 7: 512})
    lin(e, W_TPR, {0: 16, 1: 32, 2: 64, 3: 128, 4: 1024, 5: 2048, 6: 256, 7: 512})
    lin(e, W_ROW, {0: 16, 1: 32, 2: 64, 3: 128, 4: 4, 5: 8, 6: 256, 7: 512})
    e("v_mov_b32 %s, 0x%x" % (v(W_NEG), f32bits(-1e30)))
    e("v_and_b32 %s, 15, v0" % v(T0))
    e("v_bfe_u32 %s, v0, 4, 2" % v(T1))
    e("v_cmp_gt_u32 %s, 2, %s" % (s(S_MM, 2), v(T1)))
    e("v_lshlrev_b32 %s, 2, %s" % (v(T1), v(T1)))
    for r in range(4):
        e("v_cmp_le_u32 %s, %s, %s" % (s(S_M0 + 2 * r, 2), v(T1), v(T0)))
        e("v_add_u32 %s, 1, %s" % (v(T1), v(T1)))
    e("s_mov_b32 %s, 0x05040100" % s(S_PLO))
    e("s_mov_b32 %s, 0x07060302" % s(S_PHI))
    e("s_mov_b32 %s, 0x%x" % (s(S_SCALE), f32bits(128 ** -0.5 * 1.4426950408889634)))
    e("s_mov_b32 %s, 0" % s(S_TMO))
    e("s_mov_b32 %s, 0x3f803f80" % s(S_ONES))
    e("s_mov_b32 %s, 0x3f803f80" % s(S_ONES + 1))


def load_w(e, P, mats, pre=None):
    ptr = {"Q": P + 4, "K": P + 6, "V": P + 8}
    SRDS = {"Q": 96, "K": 40, "V": 76}

    def reads(m, ci):
        out = []
        for k in range(4):
            for T in range(2):
                idx = ("QKV".index(m) * 32 + (4 * ci + k) * 2 + T) * 4
                for u in range(2):
                    dst = a(idx + 2 * u, 2) if idx < 256 else v(128 + idx - 256 + 2 * u, 2)
                    out.append((dst, k, T, 4 * u))
        return out
    chunks = [(m, ci) for m in mats for ci in range(4)]

    def side(c, q):
        phase0(e, c, q)
    C.staged_load(e, chunks, ptr, SRDS, 2, lambda k: (k >> 1) << 7, {2: 32, 3: 64, 4: 128}, {2: 1, 3: 2, 4: 8, 5: 16}, False, reads, side, pre, 4)


def load_wo(e, P):
    VOFF = T1
    srd(e, 96, P + 10, 4096 * 512 * 2)
    lin(e, VOFF, {0: 16, 1: 32, 2: 64, 3: 128, 4: 4 * 1024, 5: 8 * 1024, 6: 256, 7: 512})
    e("s_lshl_b32 %s, %s, 17" % (s(S_T0), s(S_H)))
    TMP = 112

    def issue(ks):
        base = R0 + (ks % 3) * 32
        for j in range(8):
            e("s_add_u32 %s, %s, 0x%x" % (s(S_T1), s(S_T0), (32 * ks + 16 * (j & 1) + (j >> 1)) * 1024))
            e("buffer_load_dwordx4 %s, %s, %s, %s offen" % (v(base + 4 * j, 4), v(VOFF), s(96, 4), s(S_T1)))

    def consume(ks):
        base = R0 + (ks % 3) * 32
        for T in range(8):
            t = TMP + (T % 4) * 4
            if T == 4:
                e("s_waitcnt lgkmcnt(0)")
            for jj in range(4):
                e("v_perm_b32 %s, %s, %s, %s" % (v(t + jj), v(base + 4 * (2 * jj + 1) + (T >> 1)), v(base + 4 * (2 * jj) + (T >> 1)), s(S_PHI if T & 1 else S_PLO)))
            e("ds_write_b128 %s, %s offset:%d" % (v(W_WO), v(t, 4), (ks * 8 + T) * 1024))
        e("s_waitcnt lgkmcnt(0)")
    for ks in range(3):
        issue(ks)
    e("s_waitcnt vmcnt(16)")
    consume(0)
    issue(3)
    e("s_waitcnt vmcnt(16)")
    consume(1)
    e("s_waitcnt vmcnt(8)")
    consume(2)
    e("s_waitcnt vmcnt(0)")
    consume(3)


def dpp_add(e, r, ctrl):
    e("v_add_f32_dpp %s, %s, %s %s row_mask:0xf bank_mask:0xf" % (v(r), v(r), v(r), ctrl))


def wave_sum(e, regs, tmp):
    for ctrl in ("quad_perm:[1,0,3,2]", "quad_perm:[2,3,0,1]", "row_half_mirror", "row_mirror"):
        for r in regs:
            dpp_add(e, r, ctrl)
    for sw in ("v_permlane16_swap_b32", "v_permlane32_swap_b32"):
        for r in regs:
            e("v_mov_b32 %s, %s" % (v(tmp), v(r)))
            e("%s %s, %s" % (sw, v(r), v(tmp)))
            e("v_add_f32 %s, %s, %s" % (v(r), v(r), v(tmp)))


XR = R0 + 80


def x_issue(e, sseg):
    e("s_lshl_b32 %s, %s, 15" % (s(S_T0), s(sseg)))
    for i in range(8):
        e("buffer_load_dwordx4 %s, %s, %s, %s offen offset:%d" % (v(XR + 4 * i, 4), v(W_XG), s(S_X, 4), s(S_T0), i * 128))


def x_norm(e):
    SU, SQ, LO, HI = R0 + 72, R0 + 73, R0 + 74, R0 + 75
    lo = lambda d, x: e("v_lshlrev_b32 %s, 16, %s" % (v(d), v(x)))
    hi = lambda d, x: e("v_and_b32 %s, 0xffff0000, %s" % (v(d), v(x)))
    e("v_mov_b32 %s, 0" % v(SU))
    e("v_mov_b32 %s, 0" % v(SQ))
    for r in range(XR, XR + 32):
        e("v_dot2_f32_bf16 %s, %s, %s, %s" % (v(SU), v(r), s(S_ONES), v(SU)))
        e("v_dot2_f32_bf16 %s, %s, %s, %s" % (v(SQ), v(r), v(r), v(SQ)))
    e("s_nop 3")
    for ctrl in ("quad_perm:[1,0,3,2]", "quad_perm:[2,3,0,1]", "row_half_mirror"):
        dpp_add(e, SU, ctrl)
        dpp_add(e, SQ, ctrl)
    e("v_mul_f32 %s, 0x%x, %s" % (v(SU), f32bits(1 / 512), v(SU)))
    e("v_mul_f32 %s, 0x%x, %s" % (v(SQ), f32bits(1 / 512), v(SQ)))
    e("v_fma_f32 %s, -%s, %s, %s" % (v(SQ), v(SU), v(SU), v(SQ)))
    e("v_max_f32 %s, 0, %s" % (v(SQ), v(SQ)))
    e(cvt(T0, SU, SQ))
    lo(SU, T0); hi(SQ, T0)
    e("v_add_f32 %s, 0x%x, %s" % (v(SQ), f32bits(1e-5), v(SQ)))
    e(cvt(T0, SQ, SQ)); lo(SQ, T0)
    e("v_sqrt_f32 %s, %s" % (v(SQ), v(SQ)))
    e(cvt(T0, SQ, SQ)); lo(SQ, T0)
    e("v_rcp_f32 %s, %s" % (v(SQ), v(SQ)))
    for i in range(8):
        for q in range(4):
            r = XR + 4 * i + q
            lo(LO, r); hi(HI, r)
            e("v_sub_f32 %s, %s, %s" % (v(LO), v(LO), v(SU)))
            e("v_sub_f32 %s, %s, %s" % (v(HI), v(HI), v(SU)))
            e(cvt(r, LO, HI))
            lo(LO, r); hi(HI, r)
            e("v_mul_f32 %s, %s, %s" % (v(LO), v(LO), v(SQ)))
            e("v_mul_f32 %s, %s, %s" % (v(HI), v(HI), v(SQ)))
            e(cvt(r, LO, HI))
        e("ds_write_b128 %s, %s offset:%d" % (v(W_XW), v(XR + 4 * i, 4), X_T + i * 2048))


AQ, AK, AV = R0, R0 + 16, R0 + 32
XO = R0 + 48


def project(e, mats, r0, r1, extra=None):
    def rd(ks):
        b = XO + (ks & 1) * 8
        for kap in range(2):
            e("ds_read_b128 %s, %s offset:%d" % (v(b + 4 * kap, 4), v((r1 if ks & 1 else r0)[kap]), X_T + ks * 1024))
    rd(0)
    for ks in range(16):
        if ks + 1 < 16:
            rd(ks + 1)
            e("s_waitcnt lgkmcnt(2)")
        else:
            e("s_waitcnt lgkmcnt(0)")
        b = XO + (ks & 1) * 8
        if extra and ks in extra:
            extra[ks]()
        for m in mats:
            for T in range(2):
                for kap in range(2):
                    x = v(b + 4 * kap, 4)
                    if m == "V":
                        e(mf32(AV + 8 * kap + 4 * T, x, wreg(m, T, ks), ks == 0))
                    else:
                        e(mf32((AQ if m == "Q" else AK) + 8 * T + 4 * kap, wreg(m, T, ks), x, ks == 0))


def pack_qk(e, acc, dst, scale):
    if scale:
        for r in range(16):
            e("v_mul_f32 %s, %s, %s" % (v(acc + r), s(S_SCALE), v(acc + r)))
    for kap in range(2):
        for r in range(4):
            e(cvt(dst + 4 * kap + r, acc + 4 * kap + r, acc + 8 + 4 * kap + r))


def pack_v(e, dst):
    for T in range(2):
        for kap in range(2):
            for q in range(2):
                e(cvt(dst + 4 * T + 2 * kap + q, AV + 8 * kap + 4 * T + 2 * q, AV + 8 * kap + 4 * T + 2 * q + 1))


def signal(e, soff):
    e("s_waitcnt vmcnt(0)")
    e("s_barrier")
    flag_store(e, soff)


def wait_handshake(e, L="L_WHS"):
    e("v_lshrrev_b32 %s, 2, %s" % (v(T1), v(W_L16)))
    e("v_and_b32 %s, 127, %s" % (v(T1), v(T1)))
    e.label(L)
    e("buffer_load_dword %s, %s, %s, 0 offen sc1" % (v(T0), v(T1), s(S_DBG, 4)))
    e("s_add_u32 %s, %s, 1" % (s(S_TMO), s(S_TMO)))
    e("s_cmp_gt_u32 %s, %d" % (s(S_TMO), TMO_LIMIT))
    e("s_cbranch_scc1 %s_done" % L)
    e("s_waitcnt vmcnt(0)")
    e("v_cmp_eq_u32 vcc, 0, %s" % v(T0))
    e("s_cbranch_vccnz %s" % L)
    e.label(L + "_done")


def flag_store(e, soff):
    e("v_cmp_ne_u32 vcc, 0, v0")
    e("v_mov_b32 %s, 0x%x" % (v(T1), OOB))
    e("v_mov_b32 %s, 1" % v(T0))
    e("v_cndmask_b32 %s, v0, %s, vcc" % (v(T1), v(T1)))
    e("buffer_store_dword %s, %s, %s, %s offen sc1" % (v(T0), v(T1), s(S_WS, 4), s(soff)))


def xn_produce(e, mid):
    ws = s(S_WS, 4)
    e("s_lshr_b32 %s, s2, 3" % s(S_SEG))
    e("s_lshl_b32 %s, %s, 1" % (s(S_SEG), s(S_SEG)))
    x_issue(e, S_SEG)
    e("s_add_u32 %s, %s, 0x8000" % (s(S_T0), s(S_T0)))
    for i in range(8):
        e("buffer_load_dwordx4 %s, %s, %s, %s offen offset:%d" % (v(128 + 4 * i, 4), v(W_XG), s(S_X, 4), s(S_T0), i * 128))
    mid()
    e.label("L_XN")
    x_norm(e)
    e("s_waitcnt lgkmcnt(0)")
    e("s_barrier")
    e("s_lshl_b32 %s, %s, 15" % (s(S_A), s(S_SEG)))
    e("s_add_u32 %s, %s, 0x%x" % (s(S_A), s(S_A), XNI))
    for i in range(8):
        e("ds_read_b128 %s, %s offset:%d" % (v(R0 + 8 + 4 * i, 4), v(W_EX), i * 4096))
    for i in range(8):
        e("s_waitcnt lgkmcnt(%d)" % (7 - i))
        e("s_add_u32 %s, %s, %d" % (s(S_T0), s(S_A), i * 4096))
        e("buffer_store_dwordx4 %s, %s, %s, %s offen sc1" % (v(R0 + 8 + 4 * i, 4), v(W_EX), ws, s(S_T0)))
    e("s_barrier")
    for r in range(0, 32, 2):
        e("v_mov_b64 %s, %s" % (v(XR + r, 2), v(128 + r, 2)))
    e("s_add_u32 %s, %s, 1" % (s(S_SEG), s(S_SEG)))
    e("s_bitcmp1_b32 %s, 0" % s(S_SEG))
    e("s_cbranch_scc1 L_XN")
    C.ready_publish(e, T0, T1)


S_KVB = 30
S_BUF = 31


def x_dma(e, sseg, sbuf):
    e("s_lshl_b32 %s, %s, 15" % (s(S_T0), s(sseg)))
    e("s_add_u32 %s, %s, 0x%x" % (s(S_T0), s(S_T0), XNI))
    e("s_lshl_b32 %s, %s, 10" % (s(S_T1), s(S_WAVE)))
    e("s_add_u32 %s, %s, %s" % (s(S_T1), s(S_T1), s(sbuf)))
    for i in range(8):
        e("s_add_u32 m0, %s, %d" % (s(S_T1), i * 4096))
        e("s_add_u32 %s, %s, %d" % (s(S_T2), s(S_T0), i * 4096))
        e("buffer_load_dwordx4 %s, %s, %s offen sc1 lds" % (v(W_EX), s(S_WS, 4), s(S_T2)))


A0 = R0 + 64


def p1_addr(e):
    e("s_lshr_b32 %s, %s, 1" % (s(S_T0), s(S_WAVE)))
    e("s_lshl_b32 %s, %s, 14" % (s(S_T0), s(S_T0)))
    e("s_xor_b32 %s, %s, 16384" % (s(S_T1), s(S_T0)))
    e("v_add_u32 %s, %s, %s" % (v(A0), s(S_T0), v(W_XR0)))
    e("v_add_u32 %s, %s, %s" % (v(A0 + 1), s(S_T1), v(W_XR0)))
    e("v_add_u32 %s, %s, %s" % (v(A0 + 2), s(S_T0), v(W_XR1)))
    e("v_add_u32 %s, %s, %s" % (v(A0 + 3), s(S_T1), v(W_XR1)))


def p1_store(e, with_q):
    ws = s(S_WS, 4)
    KP, VP, QP = R0 + 72, R0 + 80, R0 + 88
    pack_qk(e, AK, KP, False)
    pack_v(e, VP)
    if with_q:
        pack_qk(e, AQ, QP, False)
    e("s_mul_i32 %s, %s, 0x%x" % (s(S_A), s(S_SEG), C.SLAB_ST))
    e("s_lshl_b32 %s, %s, 14" % (s(S_T0), s(S_H)))
    e("s_add_u32 %s, %s, %s" % (s(S_A), s(S_A), s(S_T0)))
    e("s_add_u32 %s, %s, 0x%x" % (s(S_A), s(S_A), C.SLAB_OFF))
    e("s_mov_b32 %s, %s" % (s(S_KVB), s(S_A)))
    e("s_lshr_b32 %s, %s, 1" % (s(S_T0), s(S_WAVE)))
    e("s_lshl_b32 %s, %s, 12" % (s(S_T0), s(S_T0)))
    e("s_xor_b32 %s, %s, 4096" % (s(S_T1), s(S_T0)))
    e("s_add_u32 %s, %s, %s" % (s(S_T0), s(S_T0), s(S_A)))
    e("s_add_u32 %s, %s, %s" % (s(S_T1), s(S_T1), s(S_A)))
    e("buffer_store_dwordx4 %s, %s, %s, %s offen sc1" % (v(KP, 4), v(W_EX), ws, s(S_T0)))
    e("buffer_store_dwordx4 %s, %s, %s, %s offen sc1" % (v(KP + 4, 4), v(W_EX), ws, s(S_T1)))
    e("s_add_u32 %s, %s, 8192" % (s(S_A), s(S_A)))
    e("buffer_store_dwordx4 %s, %s, %s, %s offen sc1" % (v(VP, 4), v(W_MW), ws, s(S_A)))
    e("buffer_store_dwordx4 %s, %s, %s, %s offen offset:1024 sc1" % (v(VP + 4, 4), v(W_MW), ws, s(S_A)))
    if with_q:
        e("s_add_u32 %s, %s, 0x%x" % (s(S_T0), s(S_T0), Q_DELTA))
        e("s_add_u32 %s, %s, 0x%x" % (s(S_T1), s(S_T1), Q_DELTA))
        e("buffer_store_dwordx4 %s, %s, %s, %s offen sc1" % (v(QP, 4), v(W_EX), ws, s(S_T0)))
        e("buffer_store_dwordx4 %s, %s, %s, %s offen sc1" % (v(QP + 4, 4), v(W_EX), ws, s(S_T1)))
    e("s_mul_i32 %s, %s, 0x%x" % (s(S_B), s(S_SEG), C.SLAB_ST))
    e("s_lshl_b32 %s, %s, 2" % (s(S_T0), s(S_H)))
    e("s_add_u32 %s, %s, %s" % (s(S_B), s(S_B), s(S_T0)))
    e("s_add_u32 %s, %s, 0x%x" % (s(S_B), s(S_B), C.SLAB_OFF + C.FL_IN))


def phase0(e, c, q):
    if c == 0:
        e("s_mov_b32 %s, %s" % (s(S_SEG), s(S_R)))
        x_issue(e, S_SEG)
        for _ in range(8):
            q.add("x")
    if c == 4:
        q.wait("x")
        x_norm(e)
        p1_addr(e)
        e("s_mov_b32 %s, 0" % s(S_BUF))
    if c == 8:
        if C.OPT.get("prof") == 1:
            e("s_memrealtime s[100:101]")
            e("s_waitcnt lgkmcnt(0)")
            e("s_mov_b32 s91, s100")
        project(e, "KV", (A0, A0 + 1), (A0 + 2, A0 + 3))
        p1_store(e, False)
        wait_handshake(e)
        signal(e, S_B)
        if C.OPT.get("prof") == 1:
            e("s_memrealtime s[100:101]")
            e("s_waitcnt lgkmcnt(0)")
            e("s_mov_b32 s90, s100")
        q.q = []


def phase1(e):
    ws = s(S_WS, 4)
    e.label("L_P1")
    e("s_waitcnt vmcnt(6)")
    e("s_barrier")
    e("s_xor_b32 %s, %s, 32768" % (s(S_BUF), s(S_BUF)))
    e("s_add_u32 %s, %s, %d" % (s(S_A), s(S_SEG), NREP))
    e("s_min_u32 %s, %s, 63" % (s(S_A), s(S_A)))
    x_dma(e, S_A, S_BUF)

    def mid():
        e("s_waitcnt vmcnt(8)")
        e("s_barrier")
        flag_store(e, S_B)
        if C.OPT.get("rb"):
            e("v_lshlrev_b32 %s, 6, v0" % v(T1))
            e("buffer_load_dword %s, %s, %s, %s offen%s" % (v(R0 + 111), v(T1), ws, s(S_KVB), C.OPT.get("rbf", "")))
    project(e, "KVQ", (A0, A0 + 1), (A0 + 2, A0 + 3), {6: mid})
    for k in range(4):
        e("v_xor_b32 %s, 0x8000, %s" % (v(A0 + k), v(A0 + k)))
    p1_store(e, True)
    e("s_add_u32 %s, %s, %d" % (s(S_SEG), s(S_SEG), NREP))
    e("s_cmp_lt_u32 %s, 64" % s(S_SEG))
    e("s_cbranch_scc1 L_P1")
    for k in range(4):
        e("v_mov_b32 %s, -1" % v(R0 + 4 + k))
    e("s_lshl_b32 %s, %s, 21" % (s(S_A), s(S_R)))
    e("s_lshl_b32 %s, %s, 15" % (s(S_T0), s(S_H)))
    e("s_add_u32 %s, %s, %s" % (s(S_A), s(S_A), s(S_T0)))
    for b_ in range(2):
        for u in range(8):
            e("s_add_u32 %s, %s, 0x%x" % (s(S_T0), s(S_A), TP_OFF + (b_ << 20) + u * 4096))
            e("buffer_store_dwordx4 %s, %s, %s, %s offen sc1" % (v(R0 + 4, 4), v(W_TPR), ws, s(S_T0)))
    signal(e, S_B)
    e("s_lshl_b32 %s, %s, 7" % (s(S_B), s(S_R)))
    e("s_lshl_b32 %s, %s, 2" % (s(S_T0), s(S_H)))
    e("s_add_u32 %s, %s, %s" % (s(S_T0), s(S_T0), s(S_B)))
    e("s_add_u32 %s, %s, 0x%x" % (s(S_T0), s(S_T0), FLAGTP))
    flag_store(e, S_T0)


def wait_tpinit(e):
    e("s_lshl_b32 %s, %s, 7" % (s(S_B), s(S_R)))
    e("s_add_u32 %s, %s, 0x%x" % (s(S_B), s(S_B), FLAGTP))
    e("v_lshrrev_b32 %s, 2, %s" % (v(T1), v(W_L16)))
    e("v_and_b32 %s, 127, %s" % (v(T1), v(T1)))
    e.label("L_TPI")
    e("buffer_load_dword %s, %s, %s, %s offen sc1" % (v(T0), v(T1), s(S_WS, 4), s(S_B)))
    e("s_add_u32 %s, %s, 1" % (s(S_TMO), s(S_TMO)))
    e("s_cmp_gt_u32 %s, %d" % (s(S_TMO), TMO_LIMIT))
    e("s_waitcnt vmcnt(0)")
    e("s_cbranch_scc1 L_TPI_ok")
    e("v_cmp_eq_u32 vcc, 0, %s" % v(T0))
    e("s_cbranch_vccz L_TPI_ok")
    e("s_sleep 8")
    e("s_branch L_TPI")
    e.label("L_TPI_ok")


def pst(e, i):
    if C.OPT.get("prof") == 1:
        e("s_memrealtime %s" % s(44 + 2 * i, 2))
        e("s_waitcnt lgkmcnt(0)")


QO, KO, VPA = 0, 32, 64
S_RD = 30


def qkv_issue(e, sseg):
    ws = s(S_WS, 4)
    e("s_mul_i32 %s, %s, 0x%x" % (s(S_A), s(sseg), C.SLAB_ST))
    e("s_lshl_b32 %s, %s, 14" % (s(S_T0), s(S_H)))
    e("s_add_u32 %s, %s, %s" % (s(S_A), s(S_A), s(S_T0)))
    e("s_add_u32 %s, %s, 0x%x" % (s(S_A), s(S_A), C.SLAB_OFF))
    for kap in range(2):
        e("s_add_u32 %s, %s, %d" % (s(S_T0), s(S_A), kap * 4096))
        e("s_add_u32 %s, %s, 0x%x" % (s(S_T1), s(S_T0), Q_DELTA))
        for ks in range(4):
            e("buffer_load_dwordx4 %s, %s, %s, %s offen offset:%d sc1" % (a(KO + 16 * kap + 4 * ks, 4), v(W_L16), ws, s(S_T0), ks * 1024))
            e("buffer_load_dwordx4 %s, %s, %s, %s offen offset:%d sc1" % (a(QO + 16 * kap + 4 * ks, 4), v(W_L16), ws, s(S_T1), ks * 1024))
    e("s_lshr_b32 %s, %s, 1" % (s(S_T0), s(S_WAVE)))
    e("s_lshl_b32 %s, %s, 3" % (s(S_T0), s(S_T0)))
    e("s_xor_b32 %s, %s, 8" % (s(S_T1), s(S_T0)))
    e("s_add_u32 %s, %s, 8192" % (s(S_A), s(S_A)))
    e("s_add_u32 %s, %s, %s" % (s(S_T0), s(S_T0), s(S_A)))
    e("s_add_u32 %s, %s, %s" % (s(S_T1), s(S_T1), s(S_A)))
    for T in range(2):
        e("buffer_load_dwordx2 %s, %s, %s, %s offen offset:%d sc1" % (a(VPA + 4 * T, 2), v(W_MW), ws, s(S_T0), T * 1024))
        e("buffer_load_dwordx2 %s, %s, %s, %s offen offset:%d sc1" % (a(VPA + 4 * T + 2, 2), v(W_MW), ws, s(S_T1), T * 1024))


def rdone_store(e):
    e("v_cmp_ne_u32 vcc, 0, %s" % v(W_L16))
    e("v_mov_b32 %s, 0x%x" % (v(T1), OOB))
    e("v_mov_b32 %s, 0" % v(T0))
    e("v_cndmask_b32 %s, %s, %s, vcc" % (v(T1), v(W_L16), v(T1)))
    e("buffer_store_dword %s, %s, %s, %s offen sc1" % (v(T0), v(T1), s(S_WS, 4), s(S_RD)))


S_SC, S_L2E = 42, 43


def ref_round(S_):
    o = []
    for k in (0, 2):
        x, y = S_ + k, S_ + k + 1
        o += [cvt(y, x, y), "v_lshlrev_b32 %s, 16, %s" % (v(x), v(y)), "v_and_b32 %s, 0xffff0000, %s" % (v(y), v(y)),
              "v_mul_f32 %s, %s, %s" % (v(x), s(S_SC), v(x)), "v_mul_f32 %s, %s, %s" % (v(y), s(S_SC), v(y)),
              cvt(y, x, y), "v_lshlrev_b32 %s, 16, %s" % (v(x), v(y)), "v_and_b32 %s, 0xffff0000, %s" % (v(y), v(y))]
    return o


def inter(e, mains, fills, per):
    fills = list(fills)
    for m in mains:
        for x in (m if isinstance(m, list) else [m]):
            e(x)
        for _ in range(per):
            if fills:
                e(fills.pop(0))
    for x in fills:
        e(x)


def phase2(e):
    ws = s(S_WS, 4)
    mf16 = lambda d, A, B, first: "v_mfma_f32_16x16x16_bf16 %s, %s, %s, %s" % (v(d, 4), A, B, "0" if first else v(d, 4))
    e("s_mov_b32 %s, %s" % (s(S_SEG), s(S_R)))
    e("s_mov_b32 %s, 0" % s(S_J))
    e("s_mov_b32 %s, 0x%x" % (s(S_RD), OOB))
    e("s_mov_b32 %s, 0x%x" % (s(S_SC), f32bits(128 ** -0.5)))
    e("s_mov_b32 %s, 0x%x" % (s(S_L2E), f32bits(1.4426950408889634)))
    qkv_issue(e, S_SEG)
    e.label("L_P2")
    e("s_and_b32 %s, %s, 1" % (s(S_T0), s(S_J)))
    e("s_lshl_b32 %s, %s, 20" % (s(S_T0), s(S_T0)))
    e("s_lshl_b32 %s, %s, 21" % (s(S_TPB), s(S_R)))
    e("s_add_u32 %s, %s, %s" % (s(S_TPB), s(S_TPB), s(S_T0)))
    e("s_add_u32 %s, %s, 0x%x" % (s(S_TPB), s(S_TPB), TP_OFF))
    e("s_bfe_u32 %s, %s, 0x10001" % (s(S_PAR), s(S_J)))
    MB = R0 + 32
    e("s_lshl_b32 %s, %s, 13" % (s(S_A), s(S_SEG)))
    e("s_add_u32 %s, %s, 0x%x" % (s(S_A), s(S_A), C.HIST_OFF))
    e("s_max_u32 %s, %s, 1" % (s(S_B), s(S_SEG)))
    e("s_lshl_b32 %s, %s, 13" % (s(S_B), s(S_B)))
    e("s_add_u32 %s, %s, 0x%x" % (s(S_B), s(S_B), C.HIST_OFF - 0x2000))
    hld = ["buffer_load_dwordx4 %s, %s, %s, %s offen sc1" % (v(MB, 4), v(W_MW), ws, s(S_A)),
           "buffer_load_dwordx4 %s, %s, %s, %s offen offset:1024 sc1" % (v(MB + 4, 4), v(W_MW), ws, s(S_A))]
    for x in hld:
        e(x)
    e("s_lshl_b32 %s, %s, 5" % (s(S_T0), s(S_SEG)))
    e("s_add_u32 %s, %s, %s" % (s(S_T0), s(S_T0), s(S_H)))
    e("s_lshl_b32 %s, %s, 10" % (s(S_T0), s(S_T0)))
    e("buffer_load_dword a72, %s, %s, %s offen" % (v(W_ROW), s(S_X, 4), s(S_T0)))
    e("buffer_load_dword a73, %s, %s, 0 offen" % (v(W_ROW), s(S_WR, 4)))
    e("s_waitcnt vmcnt(4)")
    rdone_store(e)
    S00, S01, S11, SM0, SM1 = R0 + 64, R0 + 68, R0 + 72, R0 + 76, R0 + 80
    for (d, kk, kq) in ((S00, 0, 0), (S11, 1, 1), (S01, 0, 1)):
        for ks in range(4):
            e(mf32(d, a(KO + 16 * kk + 4 * ks, 4), a(QO + 16 * kq + 4 * ks, 4), ks == 0))
    for S_ in (S00, S11, S01):
        for x in ref_round(S_):
            e(x)
    for S_ in (S00, S11):
        for r in range(4):
            e("v_cndmask_b32 %s, %s, %s, %s" % (v(S_ + r), v(W_NEG), v(S_ + r), s(S_M0 + 2 * r, 2)))
    MX = R0 + 100
    g0 = [S00 + r for r in range(4)]
    g1 = [S01 + r for r in range(4)] + [S11 + r for r in range(4)]
    for mx, g_ in ((MX, g0), (MX + 1, g1)):
        e("v_max_f32 %s, %s, %s" % (v(mx), v(g_[0]), v(g_[1])))
        for i in range(2, len(g_), 2):
            e("v_max3_f32 %s, %s, %s, %s" % (v(mx), v(mx), v(g_[i]), v(g_[i + 1])))
    for sw in ("v_permlane16_swap_b32", "v_permlane32_swap_b32"):
        for mx in (MX, MX + 1):
            e("v_mov_b32 %s, %s" % (v(T0), v(mx)))
            e("%s %s, %s" % (sw, v(mx), v(T0)))
            e("v_max_f32 %s, %s, %s" % (v(mx), v(mx), v(T0)))
    for mx, g_ in ((MX, g0), (MX + 1, g1)):
        e("v_mul_f32 %s, %s, %s" % (v(T0), s(S_L2E), v(mx)))
        for r in g_:
            e("v_fma_f32 %s, %s, %s, -%s" % (v(r), v(r), s(S_L2E), v(T0)))
            e("v_exp_f32 %s, %s" % (v(r), v(r)))
    P0, P1, ONES, ONM = R0 + 84, R0 + 88, R0 + 92, R0 + 96
    e(cvt(P0, S00, S00 + 1)); e(cvt(P0 + 1, S00 + 2, S00 + 3))
    e("v_mov_b64 %s, 0" % v(P0 + 2, 2))
    e(cvt(P1, S01, S01 + 1)); e(cvt(P1 + 1, S01 + 2, S01 + 3))
    e(cvt(P1 + 2, S11, S11 + 1)); e(cvt(P1 + 3, S11 + 2, S11 + 3))
    e("v_mov_b64 %s, %s" % (v(ONES, 2), s(S_ONES, 2)))
    e("v_mov_b64 %s, %s" % (v(ONES + 2, 2), s(S_ONES, 2)))
    for k in range(2):
        e("v_cndmask_b32 %s, 0, %s, %s" % (v(ONM + k), v(ONES), s(S_MM, 2)))
    LX, OX = R0, R0 + 8
    for kq, P_ in ((0, P0), (1, P1)):
        e(mf32(LX + 4 * kq, v(ONES, 4), v(P_, 4), True))
        for T in range(2):
            e(mf32(OX + 8 * kq + 4 * T, a(VPA + 4 * T, 4), v(P_, 4), True))
    for _ in range(C.OPT.get("wslow", 0)):
        e("s_sleep 16")
    e("s_branch L_P2_chk")
    e.label("L_P2_far")
    e("buffer_load_dword %s, %s, %s, %s offen sc1" % (v(T0), v(W_MW), ws, s(S_B)))
    e("s_add_u32 %s, %s, 1" % (s(S_TMO), s(S_TMO)))
    e("s_cmp_gt_u32 %s, %d" % (s(S_TMO), TMO_LIMIT))
    e("s_waitcnt vmcnt(0)")
    e("s_cbranch_scc1 L_P2_poll")
    e("v_cmp_eq_u32 vcc, -1, %s" % v(T0))
    e("s_cbranch_vccz L_P2_near")
    e("s_sleep %d" % C.OPT.get("farsl", 12))
    e("s_branch L_P2_far")
    e.label("L_P2_near")
    e("s_mov_b32 %s, 0x%x" % (s(S_B), OOB))
    e.label("L_P2_poll")
    for x in hld:
        e(x)
    e.label("L_P2_chk")
    e("s_add_u32 %s, %s, 1" % (s(S_TMO), s(S_TMO)))
    e("s_waitcnt vmcnt(0)")
    e("ds_write_b128 %s, %s offset:%d" % (v(W_MW), v(MB, 4), MEMI))
    e("ds_write_b128 %s, %s offset:%d" % (v(W_MW), v(MB + 4, 4), MEMI + 1024))
    e("v_max3_u32 %s, %s, %s, %s" % (v(T0), v(MB), v(MB + 1), v(MB + 2)))
    e("v_max3_u32 %s, %s, %s, %s" % (v(T1), v(MB + 3), v(MB + 4), v(MB + 5)))
    e("v_max3_u32 %s, %s, %s, %s" % (v(T0), v(T0), v(MB + 6), v(MB + 7)))
    e("v_max_u32 %s, %s, %s" % (v(T0), v(T0), v(T1)))
    e("v_cmp_eq_u32 vcc, -1, %s" % v(T0))
    e("s_cbranch_vccz L_P2_got")
    e("s_cmp_gt_u32 %s, %d" % (s(S_TMO), TMO_LIMIT))
    e("s_cbranch_scc1 L_P2_got")
    if C.OPT.get("nearsl"):
        e("s_sleep %d" % C.OPT["nearsl"])
    e("s_cmp_eq_u32 %s, 0x%x" % (s(S_B), OOB))
    e("s_cbranch_scc1 L_P2_poll")
    e("s_branch L_P2_far")
    e.label("L_P2_got")
    pst(e, 0)
    e("s_waitcnt lgkmcnt(0)")
    e("s_barrier")
    AKM, AVM = R0 + 64, R0 + 24
    MO = R0 + 32
    moff = lambda ks: ((ks & 3) * 128 + ((ks >> 2) & 1) * 32 + (ks >> 3) * 64) * 16
    rdm = lambda i: "ds_read_b128 %s, %s offset:%d" % (v(MO + 4 * (i % 4), 4), v(W_MR), moff(i % 16))
    for i in range(3):
        e(rdm(i))
    for ks in range(16):
        e(rdm(ks + 3))
        e("s_waitcnt lgkmcnt(3)")
        for T in range(2):
            e(mf32(AKM + 4 * T, wreg("K", T, ks), v(MO + 4 * (ks % 4), 4), ks == 0))
    KMP, KMO = R0 + 72, R0 + 48
    PM = R0 + 84
    FX = R0 + 88
    vm = lambda ks, n: ([rdm(16 + ks + 3)] if ks + 3 < 16 else []) + ["s_waitcnt lgkmcnt(%d)" % n] + \
        [mf32(AVM + 4 * T, v(MO + 4 * (ks % 4), 4), wreg("V", T, ks), ks == 0) for T in range(2)]
    for x in vm(0, 3) + vm(1, 3):
        e(x)
    for r in range(4):
        e(cvt(KMP + r, AKM + r, AKM + 4 + r))
    e("ds_write_b128 %s, %s offset:%d" % (v(W_EX), v(KMP, 4), EX_KM))
    for x in vm(2, 4) + vm(3, 4) + vm(4, 4):
        e(x)
    e("s_waitcnt lgkmcnt(3)")
    e("s_barrier")
    for ks in range(4):
        e("ds_read_b128 %s, %s offset:%d" % (v(KMO + 4 * ks, 4), v(W_L16), EX_KM + ks * 1024))
    for x in vm(5, 7) + vm(6, 7):
        e(x)
    e("s_waitcnt lgkmcnt(2)")
    for ks in range(4):
        for (d, kq) in ((SM0, 0), (SM1, 1)):
            e(mf32(d, v(KMO + 4 * ks, 4), a(QO + 16 * kq + 4 * ks, 4), ks == 0))
    for x in vm(7, 3):
        e(x)
    M2 = R0 + 102
    sf = ref_round(SM0) + ref_round(SM1)
    for kq, S_ in ((0, SM0), (1, SM1)):
        sf += ["v_max3_f32 %s, %s, %s, %s" % (v(M2 + kq), v(S_), v(S_ + 1), v(S_ + 2)),
               "v_max3_f32 %s, %s, %s, %s" % (v(M2 + kq), v(M2 + kq), v(S_ + 3), v(MX + kq))]
    sf += ["v_mov_b32 %s, %s" % (v(T0), v(M2)), "v_mov_b32 %s, %s" % (v(T1), v(M2 + 1)),
           "v_permlane16_swap_b32 %s, %s" % (v(M2), v(T0)), "v_permlane16_swap_b32 %s, %s" % (v(M2 + 1), v(T1)),
           "v_max_f32 %s, %s, %s" % (v(M2), v(M2), v(T0)), "v_max_f32 %s, %s, %s" % (v(M2 + 1), v(M2 + 1), v(T1))]
    for kq, S_ in ((0, SM0), (1, SM1)):
        sf += ["v_sub_f32 %s, %s, %s" % (v(FX + kq), v(MX + kq), v(M2 + kq)), "v_mul_f32 %s, %s, %s" % (v(M2 + kq), s(S_L2E), v(M2 + kq)),
               "v_mul_f32 %s, %s, %s" % (v(FX + kq), s(S_L2E), v(FX + kq)), "v_exp_f32 %s, %s" % (v(FX + kq), v(FX + kq))]
        for r in range(4):
            sf += ["v_fma_f32 %s, %s, %s, -%s" % (v(S_ + r), v(S_ + r), s(S_L2E), v(M2 + kq)), "v_exp_f32 %s, %s" % (v(S_ + r), v(S_ + r))]
        sf += [cvt(PM + 2 * kq, S_, S_ + 1), cvt(PM + 2 * kq + 1, S_ + 2, S_ + 3)]
    inter(e, [vm(k, 3) for k in range(8, 13)] + [vm(13, 2), vm(14, 1), vm(15, 0)], sf, 7)
    LM, OM = R0 + 32, R0 + 40
    for kq in range(2):
        e(mf16(LM + 4 * kq, v(ONM, 2), v(PM + 2 * kq, 2), True))
    VMP = R0 + 64
    for T in range(2):
        for k in range(2):
            e(cvt(VMP + 2 * T + k, AVM + 4 * T + 2 * k, AVM + 4 * T + 2 * k + 1))
            e("v_cndmask_b32 %s, 0, %s, %s" % (v(VMP + 2 * T + k), v(VMP + 2 * T + k), s(S_MM, 2)))
    for kq in range(2):
        for T in range(2):
            e(mf16(OM + 8 * kq + 4 * T, v(VMP + 2 * T, 2), v(PM + 2 * kq, 2), True))
    OP = R0 + 56
    for kq in range(2):
        e("v_fma_f32 %s, %s, %s, %s" % (v(LM + 4 * kq), v(LX + 4 * kq), v(FX + kq), v(LM + 4 * kq)))
        e("v_rcp_f32 %s, %s" % (v(LM + 4 * kq), v(LM + 4 * kq)))
    for kq in range(2):
        for r in range(8):
            e("v_fma_f32 %s, %s, %s, %s" % (v(OM + 8 * kq + r), v(OX + 8 * kq + r), v(FX + kq), v(OM + 8 * kq + r)))
        for r in range(0, 8, 2):
            e("v_pk_mul_f32 %s, %s, %s op_sel_hi:[1,0]" % (v(OM + 8 * kq + r, 2), v(OM + 8 * kq + r, 2), v(LM + 4 * kq, 2)))
        for r in range(4):
            e(cvt(OP + 4 * kq + r, OM + 8 * kq + r, OM + 8 * kq + 4 + r))
        e("ds_write_b128 %s, %s offset:%d" % (v(W_EX), v(OP + 4 * kq, 4), EX_O + kq * 4096))
    OO = R0
    WB = R0 + 32
    WA = R0 + 48
    seq = [(kq, ks, T) for kq in range(2) for ks in range(4) for T in range(8)]
    rdw = lambda i: "ds_read_b128 %s, %s offset:%d" % (v(WB + 4 * (i % 4), 4), v(W_WO), (seq[i][1] * 8 + seq[i][2]) * 1024)
    e("s_waitcnt lgkmcnt(0)")
    e("s_barrier")
    pst(e, 1)
    for kq in range(2):
        for ks in range(4):
            e("ds_read_b128 %s, %s offset:%d" % (v(OO + 16 * kq + 4 * ks, 4), v(W_L16), EX_O + kq * 4096 + ks * 1024))
    for i in range(3):
        e(rdw(i))
    e("s_lshl_b32 %s, %s, 10" % (s(S_T0), s(S_H)))
    e("s_add_u32 %s, %s, %s" % (s(S_B), s(S_TPB), s(S_T0)))

    def outs(kq):
        o = []
        for r in range(4):
            d = OO + 16 * kq + 4 * r
            o += [cvt(d + q, WA + 32 * kq + 8 * q + r, WA + 32 * kq + 8 * q + 4 + r) for q in range(4)]
            o += ["v_and_or_b32 %s, %s, -2, %s" % (v(d), v(d), s(S_PAR)),
                  "s_add_u32 %s, %s, 0x%x" % (s(S_T0), s(S_B), (16 * kq + r) * 32768),
                  "buffer_store_dwordx4 %s, %s, %s, %s offen sc1" % (v(d, 4), v(W_TPW), ws, s(S_T0))]
        return o
    o0 = outs(0)
    for i, (kq, ks, T) in enumerate(seq):
        e("s_waitcnt lgkmcnt(%d)" % min(2, 63 - i))
        e(mf32(WA + 32 * kq + 4 * T, v(OO + 16 * kq + 4 * ks, 4), v(WB + 4 * (i % 4), 4), ks == 0))
        if i + 3 < 64:
            e(rdw(i + 3))
        if i >= 35 and o0:
            e(o0.pop(0))
    assert not o0
    pst(e, 2)
    for x in outs(1):
        e(x)
    e("s_add_u32 %s, %s, %d" % (s(S_T2), s(S_SEG), NREP))
    e("s_cmp_ge_u32 %s, 64" % s(S_T2))
    e("s_cbranch_scc1 L_P2_last")
    qkv_issue(e, S_T2)
    e.label("L_P2_last")
    SEL, XV, WRV = R0 + 32, R0 + 36, R0 + 37
    e("s_lshl_b32 %s, %s, 5" % (s(S_A), s(S_SEG)))
    e("s_add_u32 %s, %s, %s" % (s(S_A), s(S_A), s(S_H)))
    e("s_lshl_b32 %s, %s, 10" % (s(S_A), s(S_A)))
    e("v_accvgpr_read_b32 %s, a72" % v(XV))
    e("v_accvgpr_read_b32 %s, a73" % v(WRV))
    e("v_and_b32 %s, 15, v0" % v(T1))
    for q in range(4):
        e("v_mov_b32 %s, 0" % v(SEL + q))
        e("v_mov_b32 %s, 0x3f80" % v(T0))
        e("v_cmp_eq_u32 vcc, %d, %s" % (4 * q, v(T1)))
        e("v_cndmask_b32 %s, %s, %s, vcc" % (v(SEL + q), v(SEL + q), v(T0)))
        e("v_mov_b32 %s, 0x3f800000" % v(T0))
        e("v_cmp_eq_u32 vcc, %d, %s" % (4 * q + 1, v(T1)))
        e("v_cndmask_b32 %s, %s, %s, vcc" % (v(SEL + q), v(SEL + q), v(T0)))
    e("s_lshl_b32 %s, %s, 15" % (s(S_B), s(S_H)))
    e("s_add_u32 %s, %s, %s" % (s(S_B), s(S_B), s(S_TPB)))
    PD = R0 + 64
    pst(e, 3)
    e.label("L_P3_poll")
    for u in range(8):
        e("s_add_u32 %s, %s, %d" % (s(S_T0), s(S_B), u * 4096))
        e("buffer_load_dwordx4 %s, %s, %s, %s offen sc1" % (v(PD + 4 * u, 4), v(W_TPR), ws, s(S_T0)))
    e("s_mov_b64 exec, -1")
    e("s_add_u32 %s, %s, 1" % (s(S_TMO), s(S_TMO)))
    e("s_cmp_gt_u32 %s, %d" % (s(S_TMO), TMO_LIMIT))
    RD = R0 + 40
    for u in range(8):
        e("s_waitcnt vmcnt(%d)" % (7 - u))
        e(mf32(RD, v(SEL, 4), v(PD + 4 * u, 4), u == 0))
        if u & 1:
            e("v_bitop3_b32 %s, %s, %s, %s bitop3:0x7e" % (v(R0 + 44 + (u >> 1)), v(PD + 4 * u - 4), v(PD + 4 * u), s(S_PAR)))
    e("v_or3_b32 %s, %s, %s, %s" % (v(T0), v(R0 + 44), v(R0 + 45), v(R0 + 46)))
    e("v_bitop3_b32 %s, %s, %s, 1 bitop3:0xa8" % (v(T0), v(T0), v(R0 + 47)))
    e("s_cbranch_scc1 L_P3_got")
    e("v_cmp_ne_u32 vcc, 0, %s" % v(T0))
    e("s_cbranch_vccz L_P3_got")
    e("s_mov_b64 exec, vcc")
    e("s_branch L_P3_poll")
    e.label("L_P3_got")
    pst(e, 4)
    e("s_nop 4")
    H0, H1, HP, SU, SQ, A_, B_, XP = range(R0 + 44, R0 + 52)
    lo = lambda d, x: e("v_lshlrev_b32 %s, 16, %s" % (v(d), v(x)))
    hi = lambda d, x: e("v_and_b32 %s, 0xffff0000, %s" % (v(d), v(x)))
    e(cvt(HP, RD, RD + 1))
    lo(A_, HP); hi(B_, HP)
    lo(H0, XV); hi(H1, XV)
    e("v_add_f32 %s, %s, %s" % (v(H0), v(H0), v(A_)))
    e("v_add_f32 %s, %s, %s" % (v(H1), v(H1), v(B_)))
    e(cvt(HP, H0, H1))
    lo(H0, HP); hi(H1, HP)
    e("v_add_f32 %s, %s, %s" % (v(SU), v(H0), v(H1)))
    e("v_mul_f32 %s, %s, %s" % (v(SQ), v(H0), v(H0)))
    e("v_fmac_f32 %s, %s, %s" % (v(SQ), v(H1), v(H1)))
    wave_sum(e, [SU, SQ], T0)
    e("v_mov_b32 %s, %s" % (v(T1), s(S_WAVE)))
    e("v_lshlrev_b32 %s, 3, %s" % (v(T1), v(T1)))
    e("v_add_u32 %s, %d, %s" % (v(T1), RED, v(T1)))
    e("ds_write2_b32 %s, %s, %s offset0:0 offset1:1" % (v(T1), v(SU), v(SQ)))
    e("s_add_u32 %s, %s, 0x%x" % (s(S_T0), s(S_A), HROW))
    e("buffer_store_dword %s, %s, %s, %s offen sc1" % (v(HP), v(W_ROW), ws, s(S_T0)))
    e("s_waitcnt lgkmcnt(0)")
    e("s_barrier")
    RR = R0 + 52
    e("v_mov_b32 %s, %d" % (v(T1), RED))
    e("ds_read_b128 %s, %s" % (v(RR, 4), v(T1)))
    e("ds_read_b128 %s, %s offset:16" % (v(RR + 4, 4), v(T1)))
    e("s_waitcnt lgkmcnt(0)")
    for k, d in ((0, SU), (1, SQ)):
        e("v_add_f32 %s, %s, %s" % (v(d), v(RR + k), v(RR + 2 + k)))
        e("v_add_f32 %s, %s, %s" % (v(d), v(d), v(RR + 4 + k)))
        e("v_add_f32 %s, %s, %s" % (v(d), v(d), v(RR + 6 + k)))
        e("v_mul_f32 %s, 0x%x, %s" % (v(d), f32bits(1 / 512), v(d)))
    e("v_fma_f32 %s, -%s, %s, %s" % (v(SQ), v(SU), v(SU), v(SQ)))
    e("v_max_f32 %s, 0, %s" % (v(SQ), v(SQ)))
    e(cvt(T0, SU, SQ))
    lo(SU, T0); hi(SQ, T0)
    e("v_add_f32 %s, 0x%x, %s" % (v(SQ), f32bits(1e-5), v(SQ)))
    e(cvt(T0, SQ, SQ)); lo(SQ, T0)
    e("v_sqrt_f32 %s, %s" % (v(SQ), v(SQ)))
    e(cvt(T0, SQ, SQ)); lo(SQ, T0)
    e("v_rcp_f32 %s, %s" % (v(SQ), v(SQ)))
    e("v_sub_f32 %s, %s, %s" % (v(A_), v(H0), v(SU)))
    e("v_sub_f32 %s, %s, %s" % (v(B_), v(H1), v(SU)))
    e(cvt(T0, A_, B_)); lo(A_, T0); hi(B_, T0)
    e("v_mul_f32 %s, %s, %s" % (v(A_), v(A_), v(SQ)))
    e("v_mul_f32 %s, %s, %s" % (v(B_), v(B_), v(SQ)))
    e(cvt(XP, A_, B_))
    lo(A_, XP); hi(B_, XP)
    W0, W1 = RR, RR + 1
    lo(W0, WRV); hi(W1, WRV)
    e("v_mul_f32 %s, %s, %s" % (v(SU), v(A_), v(W0)))
    e("v_fmac_f32 %s, %s, %s" % (v(SU), v(B_), v(W1)))
    wave_sum(e, [SU], T0)
    e("s_lshr_b32 %s, %s, 6" % (s(S_B), s(S_A)))
    e("s_lshl_b32 %s, %s, 2" % (s(S_T1), s(S_WAVE)))
    e("s_add_u32 %s, %s, %s" % (s(S_B), s(S_B), s(S_T1)))
    e("s_add_u32 %s, %s, 0x%x" % (s(S_T0), s(S_B), RVAL))
    e("v_cmp_ne_u32 vcc, 0, %s" % v(W_L16))
    e("v_mov_b32 %s, 0x%x" % (v(T1), OOB))
    e("v_cndmask_b32 %s, %s, %s, vcc" % (v(T1), v(W_L16), v(T1)))
    e("buffer_store_dword %s, %s, %s, %s offen sc1" % (v(SU), v(T1), ws, s(S_T0)))
    e("v_add_f32 %s, %s, %s" % (v(H0), v(H0), v(A_)))
    e("v_add_f32 %s, %s, %s" % (v(H1), v(H1), v(B_)))
    e(cvt(HP, H0, H1))
    e("buffer_store_dword %s, %s, %s, %s offen sc1" % (v(HP), v(W_ROW), s(S_OUT, 4), s(S_A)))
    e("s_add_u32 %s, %s, 0x%x" % (s(S_T0), s(S_A), XN2))
    e("buffer_store_dword %s, %s, %s, %s offen sc1" % (v(XP), v(W_ROW), ws, s(S_T0)))
    pst(e, 5)
    e("s_add_u32 %s, %s, 0x%x" % (s(S_RD), s(S_B), RDONE))
    e("s_add_u32 %s, %s, 1" % (s(S_J), s(S_J)))
    e("s_barrier")
    e("s_add_u32 %s, %s, %d" % (s(S_SEG), s(S_SEG), NREP))
    e("s_cmp_lt_u32 %s, 64" % s(S_SEG))
    e("s_cbranch_scc1 L_P2")
    e("s_waitcnt vmcnt(0)")
    rdone_store(e)
```

```python
from asmlib import Emitter, v, a, s
import struct

WS_BYTES = 0x10000000
PB_OFF = 0x0000000
SYNC_OFF = 0x0080000
HIST_OFF = 0x0100000
FLAG_OFF = 0x0190000
STAMP_OFF = 0x01A0000
SLAB_OFF = 0x1000000
SLAB_ST = 0x82100
MB_IN = 0x80000
FL_IN = 0x82000
OOB = 0x40000000

L_MEMI = 0
L_PX = 8192
RS = 72
L_QX = 16384
L_KMX = L_QX + 2304
L_OX = L_KMX + 2304
L_SEL = L_OX + 2048
L_WL = 32768
LDS_BYTES = 163840

S_WS = 8
S_W = 12
S_DBG = 16
S_H = 20
S_WAVE = 21
S_STEP = 22
S_SLAB = 23
S_SLABN = 24
S_KXO = 25
S_KX = 29
S_VX = 30
S_HIST = 31
S_TMO = 32
S_SCALE = 33
S_PLO = 34
S_PHI = 35
S_T0 = 36
S_T1 = 37
S_T2 = 38
S_VXO = 39
S_BIG = 40
S_PR = 6
S_MB = 7
S_4K = 26
S_PAR = 27
S_RDY = 62
S_NPAR = 28
S_TAG = 60
S_OOB = 61
S_FW = 88
S_FR = 89
S_NEXT = 90
S_SPIN = 91
S_LIM = 94
S_SY = 80
S_NX2 = 84
S_U0 = 95
S_HM = 92
S_W3 = 95
S_ONES = 4
S_PTR = 44
S_ST = 64

C_PF = 0
C_IDX, C_MW, C_L16, C_WL, C_QW, C_QR, C_KW, C_X2, C_PW, C_MP, FREE1, HPEND, C_FL, T0, JUNK = range(1, 16)
AM = 16
ACCQ = 48
ACCK = 56
ACCV = 64
QB = 72
XA = 88
XB = 104
VX = 120
VW = 128

TMO_LIMIT = 200000
OPT = {}


def f32bits(x):
    return struct.unpack("<I", struct.pack("<f", x))[0]


def lin(e, dst, coefs, const=0, tmp=T0, src=0):
    e("v_mov_b32 %s, 0x%x" % (v(dst), const))
    for k, c in sorted(coefs.items()):
        if c == 0:
            continue
        assert c < (1 << 24)
        e("v_bfe_u32 %s, %s, %d, 1" % (v(tmp), v(src), k))
        e("s_mov_b32 %s, 0x%x" % (s(S_T2), c))
        e("v_mad_u32_u24 %s, %s, %s, %s" % (v(dst), v(tmp), s(S_T2), v(dst)))


def srd(e, d, ptr, nbytes):
    e("s_mov_b32 %s, %s" % (s(d), s(ptr)))
    e("s_and_b32 %s, %s, 0xffff" % (s(d + 1), s(ptr + 1)))
    e("s_mov_b32 %s, 0x%x" % (s(d + 2), nbytes))
    e("s_mov_b32 %s, 0x20000" % s(d + 3))


LDS_OPS = {
    ("Q", 0, 0): XB + 0, ("Q", 1, 0): XB + 8, ("Q", 0, 1): XA + 0, ("Q", 1, 1): XA + 8,
    ("K", 0, 0): QB + 0, ("K", 1, 0): QB + 8,
    ("Q", 0, 7): XA + 0, ("Q", 1, 7): XA + 8,
    ("K", 0, 2): QB + 0, ("K", 1, 2): QB + 8,
    ("K", 0, 7): XA + 0, ("K", 1, 7): XA + 8,
    ("O", 2, 3): XA + 0, ("O", 3, 1): XA + 8, ("O", 3, 2): QB + 0, ("O", 3, 3): QB + 8,
}
OLDS = [("O", 2, 3), ("O", 3, 1), ("O", 3, 2), ("O", 3, 3)]
LDS_SLOT = {k: i for i, k in enumerate(LDS_OPS)}
ALL_OPS = [(m, T, u) for m in "QKV" for u in range(8) for T in range(2)] + [("O", q, u) for u in range(4) for q in range(4)]
RES = {}
_n = 0
for op in ALL_OPS:
    if op in LDS_OPS:
        continue
    RES[op] = ("a", _n * 8) if _n < 32 else ("v", VW + (_n - 32) * 8)
    _n += 1
assert _n == 48


def opreg(op):
    if op in LDS_OPS:
        return v(LDS_OPS[op], 8)
    k, r = RES[op]
    return (a if k == "a" else v)(r, 8)


def lds_fetch_ins(op):
    r = LDS_OPS[op]
    off = LDS_SLOT[op] * 2048
    return ["ds_read_b128 %s, %s offset:%d" % (v(r, 4), v(C_WL), off),
            "ds_read_b128 %s, %s offset:%d" % (v(r + 4, 4), v(C_WL), off + 1024)]


def lds_fetch(e, op):
    for t in lds_fetch_ins(op):
        e(t)


def rowpart(rho, b, hi=32):
    return hi * (rho >> 2) + 8 * (rho & 1) + 2 * ((rho >> 1) & 1) + b


class VmQ:
    def __init__(self, e):
        self.e, self.q = e, []

    def add(self, tag):
        self.q.append(tag)
        assert len(self.q) <= 63

    def wait(self, tag):
        if tag not in self.q:
            return
        last = len(self.q) - 1 - self.q[::-1].index(tag)
        self.e("s_waitcnt vmcnt(%d)" % (len(self.q) - 1 - last))
        self.q = self.q[last + 1:]


def staged_load(e, chunks, ptrs, srds, swz_bits, dma_k, lane_f, row_lane, blk_xor_wave, reads, side=None, pre=None, nslot=3):
    AD, AR = 16, 20
    TT = 28
    seq = OPT.get("seq", 1)
    S_LB, S_GB = 28, 3
    if seq:
        e("v_lshrrev_b32 %s, 4, v0" % v(TT))
        e("v_and_b32 %s, 15, v0" % v(AD))
        e("v_lshlrev_b32 %s, 4, %s" % (v(AD), v(AD)))
        e("v_lshl_add_u32 %s, %s, 13, %s" % (v(AD), v(TT), v(AD)))
        e("v_bfe_u32 %s, v0, 4, %d" % (v(TT + 1), swz_bits))
        e("v_lshlrev_b32 %s, 5, %s" % (v(TT + 1), v(TT + 1)))
        e("v_xor_b32 %s, %s, %s" % (v(AD), v(AD), v(TT + 1)))
        e("v_and_b32 %s, %d, v0" % (v(TT + 1), dma_k(3)))
        e("v_xor_b32 %s, %s, %s" % (v(AD), v(AD), v(TT + 1)))
        e("s_lshl_b32 %s, %s, 10" % (s(S_LB), s(S_WAVE)))
    else:
        e("v_lshrrev_b32 %s, 6, v0" % v(TT))
        e("v_bfe_u32 %s, v0, 4, 2" % v(TT + 1))
        e("v_lshl_add_u32 %s, %s, 5, %s" % (v(TT), v(TT), v(TT + 1)))
        e("v_and_b32 %s, 15, v0" % v(AD))
        e("v_lshlrev_b32 %s, 4, %s" % (v(AD), v(AD)))
        e("v_lshl_add_u32 %s, %s, 13, %s" % (v(AD), v(TT), v(AD)))
        e("v_bfe_u32 %s, v0, 4, %d" % (v(TT + 1), swz_bits))
        e("v_lshlrev_b32 %s, 5, %s" % (v(TT + 1), v(TT + 1)))
        e("v_xor_b32 %s, %s, %s" % (v(AD), v(AD), v(TT + 1)))
        for k in range(1, 4):
            e("v_xor_b32 %s, %d, %s" % (v(AD + k), dma_k(k), v(AD)))
        e("s_add_u32 %s, %s, 1" % (s(S_LB), s(S_WAVE)))
        e("s_lshl_b32 %s, %s, 15" % (s(S_LB), s(S_LB)))
    e("s_lshl_b32 %s, %s, 8" % (s(S_GB), s(S_H)))
    q = VmQ(e)
    built = set()

    def dma(c):
        m, ci = chunks[c]
        if m not in built:
            srd(e, srds[m], ptrs[m], 512 * 4096 * 2)
            built.add(m)
        for i in range(8):
            if seq:
                e("s_add_u32 m0, %s, %d" % (s(S_LB), (((i >> 1) + 1) << 15) + (c % nslot) * 8192 + (i & 1) * 4096))
                e("s_add_u32 %s, %s, 0x%x" % (s(S_T1), s(S_GB), (128 * ci + 16 * i) * 8192))
            else:
                e("s_add_u32 m0, %s, %d" % (s(S_LB), (c % nslot) * 8192 + i * 1024))
                e("s_add_u32 %s, %s, 0x%x" % (s(S_T1), s(S_GB), (128 * ci + 4 * i) * 8192))
            e("buffer_load_dwordx4 %s, %s, %s offen%s lds" % (v(AD + (0 if seq else i & 3)), s(srds[m], 4), s(S_T1), OPT.get("cnt", "") if blk_xor_wave else OPT.get("wnt", "")))
            q.add(("c", c))
    lead = OPT.get("lead", 0) if blk_xor_wave else 0
    TL = 29
    S_TR = 91

    def touch(c):
        if c >= len(chunks):
            return
        m, ci = chunks[c]
        if m not in built:
            srd(e, srds[m], ptrs[m], 512 * 4096 * 2)
            built.add(m)
        e("s_add_u32 %s, %s, 0x%x" % (s(S_T1), s(S_MB), 128 * ci * 8192))
        e("buffer_load_dword %s, %s, %s, %s offen" % (v(JUNK), v(TL), s(srds[m], 4), s(S_T1)))
        q.add(("t", c))
    if lead:
        e("v_and_b32 %s, 63, v0" % v(TL))
        e("v_lshlrev_b32 %s, 7, %s" % (v(TL), v(TL)))
        e("s_lshl_b32 %s, %s, 2" % (s(S_MB), s(S_H)))
        e("s_add_u32 %s, %s, %s" % (s(S_MB), s(S_MB), s(S_WAVE)))
        e("s_lshl_b32 %s, %s, 13" % (s(S_MB), s(S_MB)))
        for c in range(nslot + lead):
            touch(c)
    for c in range(nslot):
        dma(c)
    TT = 30
    lin(e, AR, {0: 8, 1: 16, **{k: c * 256 for k, c in row_lane.items()}})
    lin(e, TT, lane_f)
    lin(e, TT + 1, {6: 64, 7: 128})
    e("v_xor_b32 %s, %s, %s" % (v(TT), v(TT), v(TT + 1)))
    e("v_add_u32 %s, %s, %s" % (v(TT), v(TT), v(AR)))
    for k in range(4):
        if blk_xor_wave:
            e("s_xor_b32 %s, %s, %d" % (s(S_T0), s(S_WAVE), k))
            e("s_add_u32 %s, %s, 1" % (s(S_T0), s(S_T0)))
            e("s_lshl_b32 %s, %s, 15" % (s(S_T0), s(S_T0)))
            e("v_add_u32 %s, %s, %s" % (v(AR + 2 * k), s(S_T0), v(TT)))
        else:
            e("v_add_u32 %s, 0x%x, %s" % (v(AR + 2 * k), (k + 1) << 15, v(TT)))
        e("v_xor_b32 %s, 32, %s" % (v(AR + 2 * k + 1), v(AR + 2 * k)))
    if pre:
        pre(q)
    for c, (m, ci) in enumerate(chunks):
        if side:
            side(c, q)
        q.wait(("c", c))
        e("s_barrier")
        for n_, (dst, k, T, ro) in enumerate(reads(m, ci)):
            if n_ == 12:
                e("s_waitcnt lgkmcnt(4)")
            e("ds_read_b64_tr_b16 %s, %s offset:%d" % (dst, v(AR + 2 * k + T), (c % nslot) * 8192 + ro * 256))
        e("s_waitcnt lgkmcnt(0)")
        e("s_barrier")
        if lead:
            touch(c + nslot + lead)
        if c + nslot < len(chunks):
            dma(c + nslot)
    return q


HOLD = {op: 32 + 8 * i for i, op in enumerate(o for o in LDS_OPS if o[0] != "O")}


def load_weights(e, P_WQ, P_WK, P_WV, P_WO, pre=None, mid=None):
    e.comment("---- load weight operands: Wq/Wk/Wv by LDS-DMA + transposing reads, Wo by dword loads + v_perm")
    VOFO = FREE1
    RING, TMP8 = 32, 120
    ptr = {"Q": P_WQ, "K": P_WK, "V": P_WV, "O": P_WO}
    SRDS = {"Q": 96, "K": 88, "V": 60, "O": 92}
    S_OB = 29

    def pre2(q):
        lin(e, VOFO, {0: 4, 1: 8, 2: 16, 3: 32, 4: 2 * 1024, 5: 4 * 1024, 6: 256, 7: 512})
        srd(e, SRDS["O"], ptr["O"], 512 * 4096 * 2)
        e("s_lshl_b32 %s, %s, 17" % (s(S_OB), s(S_H)))
        o_issue(0, q)
        pre(q)

    def reads(m, ci):
        tau, hi = ci >> 1, ci & 1
        out = []
        for k in range(4):
            u = 2 * k + tau
            for T in range(2):
                op = (m, T, u)
                for pr in range(2):
                    if op in HOLD:
                        dst = v(HOLD[op] + 4 * hi + 2 * pr, 2)
                    else:
                        kind, r = RES[op]
                        dst = (a if kind == "a" else v)(r + 4 * hi + 2 * pr, 2)
                    out.append((dst, k, T, 2 * pr))
        return out

    GORD = [7, 5, 3, 6, 4, 2, 1, 0]

    def o_issue(gi, q):
        g = GORD[gi]
        u = g >> 1
        base = (32, 48, 80)[gi % 3]
        e("s_xor_b32 %s, %s, %d" % (s(S_T0), s(S_WAVE), u))
        e("s_lshl_b32 %s, %s, 15" % (s(S_T0), s(S_T0)))
        e("s_add_u32 %s, %s, %s" % (s(S_T0), s(S_T0), s(S_OB)))
        for k in range(2):
            qq = 2 * (g & 1) + k
            for pr in range(4):
                for b in range(2):
                    row = 16 * b + 8 * (pr >> 1) + (pr & 1)
                    e("s_add_u32 %s, %s, 0x%x" % (s(S_T1), s(S_T0), row * 1024 + qq * 64))
                    e("buffer_load_dword %s, %s, %s, %s offen%s" % (v(base + k * 8 + pr * 2 + b), v(VOFO), s(SRDS["O"], 4), s(S_T1), OPT.get("ont", "")))
                    q.add(("o", g))

    def o_consume(gi, q):
        g = GORD[gi]
        q.wait(("o", g))
        base = (32, 48, 80)[gi % 3]
        for k in range(2):
            op = ("O", 2 * (g & 1) + k, g >> 1)
            dst = TMP8 if op in LDS_OPS else RES[op][1]
            assert op in LDS_OPS or RES[op][0] == "v"
            for pr in range(4):
                for hf in range(2):
                    e("v_perm_b32 %s, %s, %s, %s" % (v(dst + 2 * pr + hf), v(base + k * 8 + 2 * pr + 1), v(base + k * 8 + 2 * pr), s(S_PHI if hf else S_PLO)))
            if op in LDS_OPS:
                off = LDS_SLOT[op] * 2048
                assert off >= 24576
                e("ds_write_b128 %s, %s offset:%d" % (v(C_WL), v(TMP8, 4), off))
                e("ds_write_b128 %s, %s offset:%d" % (v(C_WL), v(TMP8 + 4, 4), off + 1024))
                e("s_waitcnt lgkmcnt(0)")

    def side(c, q):
        if 2 <= c < 10 and not OPT.get("noo"):
            o_consume(c - 2, q)
        if 1 <= c < 8 and not OPT.get("noo"):
            o_issue(c, q)
        early_start(e, c, q)

    chunks = [(m, ci) for m in "VKQ" for ci in range(4)]
    staged_load(e, chunks, ptr, SRDS, 1, lambda k: k << 6, {2: 32, 4: 64, 3: 128}, {5: 16, 3: 8, 4: 4, 2: 1}, True, reads, side, pre2, OPT.get("nslot", 3))
    for op, r in HOLD.items():
        off = LDS_SLOT[op] * 2048
        e("ds_write_b128 %s, %s offset:%d" % (v(C_WL), v(r, 4), off))
        e("ds_write_b128 %s, %s offset:%d" % (v(C_WL), v(r + 4, 4), off + 1024))
        if LDS_SLOT[op] % 4 == 3:
            e("s_waitcnt lgkmcnt(0)")
    e("s_waitcnt lgkmcnt(0)")


def setup_consts(e):
    T1, T2 = 104, 105
    AM = 100
    lin(e, C_IDX, {1: 0xEEEE - 0x4444}, 0x4444)
    lin(e, C_L16, {k: 16 << k for k in range(6)})
    lin(e, C_MW, {**{k: 16 << k for k in range(6)}, 6: 2048, 7: 4096})
    lin(e, C_WL, {**{k: 16 << k for k in range(6)}, 6: 32768, 7: 65536}, L_WL)
    lin(e, C_QW, {0: 4, 1: 8, 2: 16, 3: 32, 4: 2 * RS * 4, 5: 4 * RS * 4, 6: 64, 7: 128}, L_QX)
    lin(e, C_QR, {0: RS * 4, 2: 2 * RS * 4, 3: 4 * RS * 4, 4: 16, 5: 32}, L_QX)
    e("v_add_u32 %s, %d, %s" % (v(C_KW), L_KMX - L_QX, v(C_QW)))
    e("v_xor_b32 %s, 0x1000, %s" % (v(C_X2), v(C_MW)))
    lin(e, T1, {3: 1, 4: 2, 5: 4, 6: 8, 7: 16})
    e("v_add_u32 %s, %s, %s" % (v(T1), s(S_H), v(T1)))
    e("v_and_b32 %s, 31, %s" % (v(T1), v(T1)))
    e("v_lshlrev_b32 %s, 6, %s" % (v(T1), v(T1)))
    lin(e, C_PW, {0: 8, 1: 16, 2: 32, 3: 8192, 4: 2 * 8192, 5: 4 * 8192, 6: 8 * 8192, 7: 16 * 8192}, PB_OFF)
    e("v_add_u32 %s, %s, %s" % (v(C_PW), v(C_PW), v(T1)))
    mp_addr(e, C_MP, T1, T2)
    lin(e, C_FL, {0: 16, 1: 8, 2: 32, 3: 64, 4: 128, 5: 256, 6: 2048, 7: 4096})
    e("s_lshl_b32 %s, %s, 13" % (s(S_PR), s(S_H)))
    e("s_add_u32 %s, %s, 0x%x" % (s(S_PR), s(S_PR), PB_OFF))
    e("s_mov_b32 %s, 4096" % s(S_4K))
    e("v_and_b32 %s, 15, v0" % v(T1))
    for q in range(4):
        e("v_mov_b32 %s, 0" % v(AM + q))
        e("v_mov_b32 %s, 0x3f80" % v(T2))
        e("v_cmp_eq_u32 vcc, %d, %s" % (4 * q, v(T1)))
        e("v_cndmask_b32 %s, %s, %s, vcc" % (v(AM + q), v(AM + q), v(T2)))
        e("v_mov_b32 %s, 0x3f800000" % v(T2))
        e("v_cmp_eq_u32 vcc, %d, %s" % (4 * q + 1, v(T1)))
        e("v_cndmask_b32 %s, %s, %s, vcc" % (v(AM + q), v(AM + q), v(T2)))
    e("ds_write_b128 %s, %s offset:%d" % (v(C_L16), v(AM, 4), L_SEL))
    e("s_mov_b32 %s, 0x05040100" % s(S_PLO))
    e("s_mov_b32 %s, 0x07060302" % s(S_PHI))
    e("s_mov_b32 %s, 0x%x" % (s(S_SCALE), f32bits(128 ** -0.5 * 1.4426950408889634)))
    e("s_mov_b32 %s, 0x%x" % (s(S_BIG), f32bits(OPT.get('big', 2.0 ** 30))))
    e("s_mov_b32 %s, 0" % s(S_TMO))
    e("s_mov_b32 %s, 0x3f803f80" % s(S_ONES))
    e("s_mov_b32 %s, 0x3f803f80" % s(S_ONES + 1))
    e("s_lshl_b32 %s, %s, 14" % (s(S_T0), s(S_H)))
    e("s_lshr_b32 %s, %s, 1" % (s(S_T1), s(S_WAVE)))
    e("s_lshl_b32 %s, %s, 12" % (s(S_T1), s(S_T1)))
    e("s_add_u32 %s, %s, %s" % (s(S_KXO), s(S_T0), s(S_T1)))
    e("s_lshl_b32 %s, %s, 11" % (s(S_T1), s(S_WAVE)))
    e("s_add_u32 %s, %s, %s" % (s(S_VXO), s(S_T0), s(S_T1)))
    e("s_add_u32 %s, %s, 8192" % (s(S_VXO), s(S_VXO)))


def setup_pf(e):
    T1, T2 = 104, 105
    lin(e, T1, {0: 128, 1: 256, 2: 512, 3: 1024, 4: 2048, 6: 4096, 7: 8192})
    e("s_lshl_b32 %s, %s, 14" % (s(S_T0), s(S_H)))
    e("v_add_u32 %s, %s, %s" % (v(T1), s(S_T0), v(T1)))
    e("s_lshl_b32 %s, %s, 8" % (s(S_T0), s(S_H)))
    e("s_lshr_b32 %s, %s, 1" % (s(S_T1), s(S_WAVE)))
    e("s_lshl_b32 %s, %s, 7" % (s(S_T1), s(S_T1)))
    e("s_add_u32 %s, %s, %s" % (s(S_T0), s(S_T0), s(S_T1)))
    e("s_add_u32 %s, %s, 0x%x" % (s(S_T0), s(S_T0), SLAB_ST + MB_IN))
    e("v_and_b32 %s, 63, v0" % v(T0))
    e("v_mov_b32 %s, 0x%x" % (v(T2), OOB))
    e("v_cmp_lt_u32 vcc, 32, %s" % v(T0))
    e("v_cndmask_b32 %s, %s, %s, vcc" % (v(T1), v(T1), v(T2)))
    e("v_mov_b32 %s, %s" % (v(T2), s(S_T0)))
    e("v_cmp_eq_u32 vcc, 32, %s" % v(T0))
    e("v_cndmask_b32 %s, %s, %s, vcc" % (v(T1), v(T1), v(T2)))
    e("s_lshl_b32 %s, %s, 2" % (s(S_T0), s(S_H)))
    e("s_add_u32 %s, %s, 0x%x" % (s(S_T0), s(S_T0), SLAB_ST + FL_IN))
    e("v_mov_b32 %s, %s" % (v(T2), s(S_T0)))
    e("v_cmp_eq_u32 vcc, 33, %s" % v(T0))
    e("v_cndmask_b32 %s, %s, %s, vcc" % (v(C_PF), v(T1), v(T2)))


def mp_addr(e, dst, T1, T2):
    lin(e, dst, {0: 8, 1: 32, 4: 16, 5: 4, 6: 2048, 7: 4096}, MB_IN)
    e("v_mov_b32 %s, %s" % (v(T2), s(S_H)))
    lin(e, T1, {0: 256, 1: 64, 2: 128, 3: 512, 4: 1024}, src=T2)
    e("v_add_u32 %s, %s, %s" % (v(dst), v(T1), v(dst)))
    e("v_and_b32 %s, 12, v0" % v(T1))
    e("v_cmp_ne_u32 vcc, 0, %s" % v(T1))
    e("v_mov_b32 %s, 0x%x" % (v(T1), OOB))
    e("v_cndmask_b32 %s, %s, %s, vcc" % (v(dst), v(dst), v(T1)))


def mem0_load(e, P_MEM0, dst, T1, T2, TH, SR):
    srd(e, SR, P_MEM0, 8192)
    lin(e, T1, {0: 8, 1: 16, 2: 0x10000, 3: 0x10000, 4: 1024, 5: 4, 6: 64, 7: 128})
    e("v_mov_b32 %s, %s" % (v(TH), s(S_H)))
    lin(e, T2, {0: 32, 1: 2048, 2: 4096, 3: 256, 4: 512}, src=TH)
    e("v_add_u32 %s, %s, %s" % (v(T1), v(T1), v(T2)))
    e("buffer_load_dword %s, %s, %s, 0 offen" % (v(dst), v(T1), s(SR, 4)))


def init_fill(e, P_MEM0, MW, B, SR):
    M1, T1, T2, TH, MP, HP = B, B + 4, B + 5, B + 6, B + 7, B + 8
    ws = s(S_WS, 4)
    mem0_load(e, P_MEM0, HP, T1, T2, TH, SR)
    for k in range(4):
        e("v_mov_b32 %s, -1" % v(M1 + k))

    def fill8k(so):
        e("buffer_store_dwordx4 %s, %s, %s, %s offen sc1" % (v(M1, 4), v(MW), ws, s(so)))
        e("buffer_store_dwordx4 %s, %s, %s, %s offen offset:1024 sc1" % (v(M1, 4), v(MW), ws, s(so)))
    e("s_lshl_b32 %s, %s, 13" % (s(S_T0), s(S_H)))
    e("s_add_u32 %s, %s, 0x%x" % (s(S_T0), s(S_T0), PB_OFF))
    fill8k(S_T0)
    e("s_lshl_b32 %s, %s, 14" % (s(S_T0), s(S_H)))
    e("s_add_u32 %s, %s, 0x%x" % (s(S_T0), s(S_T0), HIST_OFF))
    e("s_add_u32 %s, %s, 0x2000" % (s(S_T1), s(S_T0)))
    fill8k(S_T0); fill8k(S_T1)
    e("s_mul_i32 %s, %s, 0x%x" % (s(S_T0), s(S_H), 2 * SLAB_ST))
    e("s_add_u32 %s, %s, 0x%x" % (s(S_T0), s(S_T0), SLAB_OFF + SLAB_ST + MB_IN + (0x4000000 if OPT.get("solo") else 0)))
    e("s_add_u32 %s, %s, 0x%x" % (s(S_T1), s(S_T0), SLAB_ST))
    fill8k(S_T0); fill8k(S_T1)
    e("v_lshlrev_b32 %s, 2, v0" % v(T1))
    e("s_lshl_b32 %s, %s, 10" % (s(S_T0), s(S_H)))
    for base in (FLAG_OFF + 0x4000, 0x1B0000, 0x1B8000):
        e("s_add_u32 %s, %s, 0x%x" % (s(S_T1), s(S_T0), base))
        e("buffer_store_dword %s, %s, %s, %s offen sc1" % (v(M1), v(T1), ws, s(S_T1)))
    e("v_mov_b32 %s, 0x%x" % (v(T2), OOB))
    e("v_cmp_lt_u32 vcc, 63, v0")
    e("v_cndmask_b32 %s, %s, %s, vcc" % (v(T1), v(T1), v(T2)))
    e("v_mov_b32 %s, %d" % (v(M1 + 9), 0 if OPT.get("kvflags", 1) else 1))
    e("s_lshl_b32 %s, %s, 8" % (s(S_T0), s(S_H)))
    e("s_add_u32 %s, %s, 0x%x" % (s(S_T1), s(S_T0), FLAG_OFF + 0x2000))
    e("buffer_store_dword %s, %s, %s, %s offen sc1" % (v(M1 + 9), v(T1), ws, s(S_T1)))
    e("s_mul_i32 %s, %s, 0x%x" % (s(S_T0), s(S_H), 2 * SLAB_ST))
    e("s_add_u32 %s, %s, 0x%x" % (s(S_T0), s(S_T0), SLAB_OFF + FL_IN))
    e("s_add_u32 %s, %s, 0x%x" % (s(S_T1), s(S_T0), SLAB_ST))
    e("buffer_store_dword %s, %s, %s, %s offen sc1" % (v(M1 + 9), v(T1), ws, s(S_T0)))
    e("buffer_store_dword %s, %s, %s, %s offen sc1" % (v(M1 + 9), v(T1), ws, s(S_T1)))
    if OPT.get("push"):
        e("v_mov_b32 %s, 0" % v(TH))
        e("s_lshl_b32 %s, %s, 8" % (s(S_T0), s(S_H)))
        e("s_add_u32 %s, %s, 0x%x" % (s(S_T0), s(S_T0), SYNC_OFF))
        e("buffer_store_dword %s, %s, %s, %s offen sc1" % (v(TH), v(T1), ws, s(S_T0)))
    mp_addr(e, MP, T1, T2)
    e("s_waitcnt vmcnt(16)")
    e("s_mov_b32 %s, 0x%x" % (s(S_T0), SLAB_OFF))
    e("buffer_store_dword %s, %s, %s, %s offen sc1" % (v(HP), v(MP), ws, s(S_T0)))


def ready_publish(e, T1, T2):
    e("s_waitcnt vmcnt(0)")
    e("s_barrier")
    e("v_mov_b32 %s, 1" % v(T1))
    e("s_lshl_b32 %s, %s, 2" % (s(S_T1), s(S_H)))
    e("v_lshlrev_b32 %s, 20, v0" % v(T2))
    e("buffer_store_dword %s, %s, %s, %s offen sc1" % (v(T1), v(T2), s(S_DBG, 4), s(S_T1)))


def xcc_publish(e, q):
    T1, T2 = 30, 31
    e("s_getreg_b32 %s, hwreg(HW_REG_XCC_ID)" % s(S_T0))
    e("s_and_b32 %s, %s, 15" % (s(S_T0), s(S_T0)))
    e("s_or_b32 %s, %s, 0x100" % (s(S_T0), s(S_T0)))
    e("v_mov_b32 %s, %s" % (v(T1), s(S_T0)))
    e("s_lshl_b32 %s, %s, 2" % (s(S_T1), s(S_H)))
    e("v_lshlrev_b32 %s, 20, v0" % v(T2))
    e("buffer_store_dword %s, %s, %s, %s offen offset:128 sc1" % (v(T1), v(T2), s(S_DBG, 4), s(S_T1)))
    q.add("hs")


S_MODE = 41


def early_start(e, c, q):
    T1, T2 = 30, 31
    ws = s(S_WS, 4)
    hsl = "buffer_load_dword %s, %s, %s, 0 offen sc1" % (v(T1), v(T2), s(S_DBG, 4))
    pfi = lambda: e("buffer_load_dword %s, %s, %s, %s offen sc1" % (v(JUNK), v(C_PF), ws, s(S_MB)))
    if c == 8:
        e("v_lshrrev_b32 %s, 2, %s" % (v(T2), v(C_L16)))
        e(hsl)
        q.add("hs2")
    if c == 9:
        e.comment("---- buffers initialised (debug[0..31]) and all 32 chain workgroups reported their XCC id (debug[32..63]);")
        q.wait("hs2")
        e("s_mov_b32 %s, 1" % s(S_MODE))
        e.label("L_HS")
        e("v_cmp_eq_u32 vcc, 0, %s" % v(T1))
        e("s_cbranch_vccz L_HS_ok")
        e(hsl)
        e("s_add_u32 %s, %s, 1" % (s(S_TMO), s(S_TMO)))
        e("s_cmp_gt_u32 %s, %d" % (s(S_TMO), TMO_LIMIT))
        e("s_waitcnt vmcnt(0)")
        e("s_cbranch_scc0 L_HS")
        e("s_branch L_HS_done")
        e.label("L_HS_ok")
        e("v_readlane_b32 %s, %s, 63" % (s(S_T0), v(T1)))
        e("v_cmp_ne_u32 vcc, %s, %s" % (s(S_T0), v(T1)))
        e("s_nop 1")
        e("s_cmp_lg_u32 vcc_hi, 0")
        e("s_cselect_b32 %s, 1, %d" % (s(S_MODE), OPT.get("forceslow", 0)))
        e.label("L_HS_done")
        e("s_mov_b32 %s, 0x%x" % (s(S_MB), SLAB_OFF - SLAB_ST))
        pfi()
        q.add("pf0")
    if c == 11:
        q.wait("pf0")
        e.label("L_F0")
        e("v_readlane_b32 %s, %s, 33" % (s(S_T0), v(JUNK)))
        e("s_nop 1")
        e("s_cmp_lg_u32 %s, 0" % s(S_T0))
        e("s_cbranch_scc1 L_F0_ok")
        pfi()
        e("s_add_u32 %s, %s, 1" % (s(S_TMO), s(S_TMO)))
        e("s_cmp_gt_u32 %s, %d" % (s(S_TMO), TMO_LIMIT))
        e("s_waitcnt vmcnt(0)")
        e("s_cbranch_scc0 L_F0")
        e.label("L_F0_ok")
        e("s_mov_b32 %s, 0x%x" % (s(S_MB), SLAB_OFF))
        pfi()
        q.add("pf1")


def smf_ins(acc, aop, op):
    return "v_smfmac_f32_16x16x64_bf16 %s, %s, %s, %s" % (v(acc, 4), v(aop, 4), opreg(op), v(C_IDX))


def stamp(e, i, on):
    if on:
        e("s_memtime %s" % s(S_ST + 2 * i, 2))


am = lambda u: AM + 4 * u


def idle_prep_ins():
    out = []
    for op in (("Q", 0, 0), ("Q", 1, 0), ("Q", 0, 1), ("Q", 1, 1), ("K", 0, 0), ("K", 1, 0)):
        out += lds_fetch_ins(op)
    z = ["v_mov_b64 %s, 0" % v(r, 2) for r in range(ACCQ, ACCQ + 24, 2)]
    return out, z


def delay(e, cyc):
    n = cyc // 4
    while n > 0:
        k = min(n, 16)
        e("s_nop %d" % (k - 1))
        n -= k


def main_loop(e, tag, sc, nsteps, stamps=False):
    L = lambda n: "L_%s_%s" % (tag, n)
    ws = s(S_WS, 4)
    solo = OPT.get("solo")
    trace = OPT.get("trace")
    acc = {"Q": ACCQ, "K": ACCK, "V": ACCV}
    S = lambda m, T, u: smf_ins(acc[m] + 4 * T, am(u), (m, T, u))
    Q = lambda T, u: S("Q", T, u)
    K = lambda T, u: S("K", T, u)
    V = lambda T, u: S("V", T, u)
    lg = lambda n: "s_waitcnt lgkmcnt(%d)" % n
    BAR = "s_barrier"
    add = lambda b, r: "v_add_f32 %s, %s, %s" % (v(b + r), v(b + r), v(b + r + 2))
    cvt = lambda d, x, y: "v_cvt_pk_bf16_f32 %s, %s, %s" % (v(d), v(x), v(y))
    ex = lambda r: "v_exp_f32 %s, %s" % (v(r), v(r))
    mf32 = lambda d, A, B, first: "v_mfma_f32_16x16x32_bf16 %s, %s, %s, %s" % (v(d, 4), v(A, 4), v(B, 4), "0" if first else v(d, 4))
    mf16 = lambda d, A, B: "v_mfma_f32_16x16x16_bf16 %s, %s, %s, %s" % (v(d, 4), v(A, 2), v(B, 2), v(d, 4))

    def run(sched, extra=None):
        for i_, (m_, rest) in enumerate(sched):
            e(m_)
            for x in (extra or {}).get(i_, []) + rest:
                if x.endswith(":"):
                    e.label(x[:-1])
                else:
                    e(x)
    e.label(L("start"))
    e("s_mov_b32 %s, 0" % s(S_STEP))
    e("s_mov_b32 %s, 0x%x" % (s(S_SLAB), SLAB_OFF))
    e("s_mov_b32 %s, 0" % s(S_PAR))
    e("s_mov_b32 %s, 0x%x" % (s(S_HIST), HIST_OFF - MB_IN))
    e("s_mov_b32 %s, 0x%x" % (s(S_OOB), OOB))
    if OPT.get("push"):
        e("s_add_u32 %s, %s, 0x%x" % (s(S_SY), s(S_WS), SYNC_OFF))
        e("s_addc_u32 %s, %s, 0" % (s(S_SY + 1), s(S_WS + 1)))
        e("s_mov_b32 %s, 4096" % s(S_SY + 2))
        e("s_mov_b32 %s, 0x20000" % s(S_SY + 3))
        e("s_lshl_b32 %s, %s, 7" % (s(S_FR), s(S_H)))
        e("s_lshl_b32 %s, %s, 2" % (s(S_FW), s(S_H)))
        e("s_cmp_eq_u32 %s, 3" % s(S_WAVE))
        e("s_cselect_b32 %s, %s, %s" % (s(S_FW), s(S_FW), s(S_OOB)))
    for u in (1, 2, 3):
        e("s_mov_b32 %s, 0x%x" % (s(S_U0 + u), u * 2048))
    e("s_mov_b32 %s, 0xcccccccc" % s(S_HM))
    e("s_mov_b32 %s, 0xcccccccc" % s(S_HM + 1))
    e("s_mov_b32 %s, 0" % s(S_SPIN))
    f, z = idle_prep_ins()
    for t in f + z:
        e(t)
    mldp = lambda P: ["buffer_load_dwordx4 %s, %s, %s, %s offen sc1" % (v(P, 4), v(C_MW), ws, s(S_MB)),
                      "buffer_load_dwordx4 %s, %s, %s, %s offen offset:1024 sc1" % (v(P + 4, 4), v(C_MW), ws, s(S_MB))]
    mld = mldp(AM)
    e("s_add_u32 %s, %s, 0x%x" % (s(S_MB), s(S_SLAB), MB_IN))
    for t in mld:
        e(t)
    e("s_waitcnt vmcnt(2)")
    if OPT.get("al"):
        e.raw(".p2align %d" % OPT["al"])
    for _ in range(OPT.get("pad", 0)):
        e("s_nop 0")
    e.label(L("step"))
    e("v_readlane_b32 %s, %s, 33" % (s(S_T0), v(JUNK)))
    e("s_add_u32 %s, %s, 0x%x" % (s(S_SLABN), s(S_SLAB), SLAB_ST))
    e("s_cmp_eq_u32 %s, 0" % s(S_T0))
    e("s_cbranch_scc1 %s" % L("refresh"))
    e.label(L("fresh"))
    e("s_add_u32 %s, %s, %s" % (s(S_KX), s(S_SLAB), s(S_KXO)))
    e("s_add_u32 %s, %s, %s" % (s(S_VX), s(S_SLAB), s(S_VXO)))
    e("s_xor_b32 %s, %s, 1" % (s(S_NPAR), s(S_PAR)))
    e("s_add_u32 %s, %s, 1" % (s(S_NEXT), s(S_STEP)))
    if OPT.get("push"):
        e("s_mov_b32 %s, %s" % (s(S_NX2), s(S_NEXT)))
        e("v_mov_b32 %s, %s" % (v(FREE1), s(S_NEXT)))
    tr = 2
    if OPT.get("m3"):
        tr = 4
        delay(e, OPT.get("pm0", 0))
        for x in mld:
            e(x)
    ns = OPT.get("ns", 0)
    if ns:
        e("s_cmp_lt_u32 %s, %d" % (s(S_WAVE), ns))
        e("s_cbranch_scc1 %s" % L("onem"))
    delay(e, OPT.get("pm", 64) - (24 if ns else 0))
    e.label(L("retrym"))
    for x in mld:
        e(x)
    e.label(L("prem"))
    e("s_add_u32 %s, %s, 1" % (s(S_TMO), s(S_TMO)))
    e("s_cmp_gt_u32 %s, %d" % (s(S_TMO), TMO_LIMIT))
    e("s_cselect_b32 %s, -1, -2" % s(S_LIM))
    e("v_xor_b32 %s, 0x800, %s" % (v(am(3)), v(C_MW)))
    e("v_xor_b32 %s, 0x1800, %s" % (v(am(7)), v(C_MW)))
    for x in z[:4]:
        e(x)
    e.label(L("waitm"))
    e("s_waitcnt vmcnt(%d) lgkmcnt(0)" % (1 + tr))
    e.label(L("gotm"))
    stamp(e, 0, stamps)
    T1 = am(2)
    mw = ["ds_write_b128 %s, %s offset:%d" % (v(C_MW), v(am(k), 4), L_MEMI + 1024 * k) for k in range(2)]
    PK = ACCK
    pst = lambda q: "buffer_store_dwordx2 %s, %s, %s, %s offen offset:%d%s" % (v(PK + 2 * q, 2), v(C_PW), ws, "0" if q < 2 else s(S_4K), (q & 1) * 2048, sc or OPT.get("pstf", ""))
    tg = lambda q: "v_and_or_b32 %s, %s, -2, %s" % (v(PK + 2 * q), v(PK + 2 * q), s(S_TAG))
    kx = lambda ks: "buffer_load_dwordx4 %s, %s, %s, %s offen offset:%d sc1" % (v(XB + 4 * ks, 4), v(C_L16), ws, s(S_KX), ks * 1024)
    vx = lambda T: "buffer_load_dwordx4 %s, %s, %s, %s offen offset:%d sc1" % (v(VX + 4 * T, 4), v(C_L16), ws, s(S_VX), T * 1024)
    amrd = lambda u: "ds_read_b128 %s, %s offset:%d" % (v(am(u), 4), v(C_X2 if u >> 1 == 2 else am(u | 1)), L_MEMI + (u & 1) * 1024)
    q7 = lds_fetch_ins(("Q", 0, 7)) + lds_fetch_ins(("Q", 1, 7))
    k2 = lds_fetch_ins(("K", 0, 2)) + lds_fetch_ins(("K", 1, 2))
    k7 = lds_fetch_ins(("K", 0, 7)) + lds_fetch_ins(("K", 1, 7))
    of = sum([lds_fetch_ins(op) for op in OLDS], [])
    qbrd = lambda ks: "ds_read_b128 %s, %s offset:%d" % (v(QB + 4 * ks, 4), v(C_QR), 64 * ks)
    KM = XA
    kmrd = lambda ks: "ds_read_b128 %s, %s offset:%d" % (v(KM + 4 * ks, 4), v(C_QR), L_KMX - L_QX + 64 * ks)
    SX, SM = ACCQ, ACCQ + 4
    ONES, PX, PM, VM0, VM1 = XB, XB + 4, XB + 8, XB + 10, XB + 12
    TA = XB + 14
    LS, OA, OP = SX, ACCK, SM
    smx = lambda ks: mf32(SX, XB + 4 * ks, QB + 4 * ks, ks == 0)
    smm = lambda ks: mf32(SM, KM + 4 * ks, QB + 4 * ks, ks == 0)
    pf = "buffer_load_dword %s, %s, %s, %s offen sc1" % (v(JUNK), v(C_PF), ws, s(S_SLABN))
    hist = "buffer_store_dword %s, %s, %s, %s offen sc1" % (v(HPEND), v(C_MP), ws, s(S_HIST))
    zw = ["v_mov_b64 %s, 0" % v(r, 2) for r in range(AM, AM + 16, 2)]
    OOP = AM + 12
    o64 = OPT.get("o64", 1)
    if o64:
        oad = ["v_bitop3_b32 %s, %s, %s, -9 bitop3:0x28" % (v(OOP + 4 * u), v(C_FL), s(S_U0 + u)) for u in (1, 2, 3)]
    else:
        oad = ["v_xor_b32 %s, 0x%x, %s" % (v(OOP + 4 * u), u * 2048, v(C_MW)) for u in (1, 3)]
    L_OE = L_PX + 1024
    mx3 = lambda d, x, y, z_: "v_max3_u32 %s, %s, %s, %s" % (v(d), v(x), v(y), v(z_))
    mov0 = lambda r: "v_mov_b32 %s, 0" % v(r)
    qs = lambda r: "v_mul_f32 %s, %s, %s" % (v(ACCQ + r), s(S_SCALE), v(ACCQ + r))
    push = OPT.get("push", 0) and not solo
    F0, FA, FS = AM + 28, AM + 29, AM + 30
    fst = "buffer_store_dword %s, %s, %s, %s offen%s" % (v(FREE1), v(FS), s(S_SY, 4), s(S_FW), sc)
    fld = "buffer_load_dword %s, %s, %s, %s offen sc1" % (v(F0), v(FA), s(S_SY, 4), s(S_FR))
    fw = OPT.get("fw", 2)
    fsc = "v_lshlrev_b32 %s, 3, %s" % (v(FS), v(C_L16))
    ex0 = {}
    if push and fw < 0:
        ex0 = {62 + fw: [fst]}
    early = OPT.get("early", 1)
    e(mx3(T0, AM, AM + 1, AM + 2))
    e("v_max_u32 %s, %s, %s" % (v(T0), v(T0), v(AM + 3)))
    run([
        (Q(0, 0), ["s_waitcnt vmcnt(%d)" % tr, mx3(T0, T0, AM + 4, AM + 5)]),
        (Q(1, 0), [mx3(T0, T0, AM + 6, AM + 7), "v_cmp_lt_u32 vcc, %s, %s" % (s(S_LIM), v(T0))]),
        (Q(0, 1), [mw[0]] + ([] if solo else ["s_cbranch_vccnz %s" % L("retrym")])),
        (Q(1, 1), [mw[1]]),
        (K(0, 0), [kx(0), vx(0)] if early else [kx(0)]),
        (K(1, 0), [kx(1), vx(1)] if early else [kx(1)]),
        (K(0, 1), [kx(2), kx(3)] if early else [kx(2)]),
        (K(1, 1), [lg(0), BAR, amrd(2)]),
        (V(0, 0), [amrd(3)]),
        (V(1, 0), [pf] if early else [kx(3)]),
        (V(0, 1), [amrd(4)]),
        (V(1, 1), [amrd(5), lg(3)]),
        (Q(0, 2), [amrd(6)]),
        (Q(1, 2), [amrd(7), lg(4)]),
        (Q(0, 3), [q7[0]]),
        (Q(1, 3), [q7[1], lg(4)]),
        (Q(0, 4), [q7[2]]),
        (Q(1, 4), [q7[3], lg(4)]),
        (Q(0, 5), [] if early else [vx(0)]),
        (Q(1, 5), [k2[0]]),
        (Q(0, 6), [] if early else [vx(1)]),
        (Q(1, 6), [k2[1], lg(2)]),
        (Q(0, 7), [k2[2]]),
        (Q(1, 7), [k2[3]]),
        (K(0, 3), [k7[0]]),
        (K(1, 3), [k7[1]]),
        (K(0, 4), [k7[2], add(ACCQ, 0), add(ACCQ, 1)]),
        (K(1, 4), [k7[3], add(ACCQ + 4, 0), add(ACCQ + 4, 1)]),
        (K(0, 5), [lg(4), qs(0), qs(4)]),
        (K(0, 2), [qs(1), qs(5)]),
        (K(1, 2), [cvt(ACCQ + 2, ACCQ, ACCQ + 4), cvt(ACCQ + 3, ACCQ + 1, ACCQ + 5)]),
        (K(1, 5), ["ds_write2_b32 %s, %s, %s offset0:0 offset1:%d" % (v(C_QW), v(ACCQ + 2), v(ACCQ + 3), RS)]),
        (K(0, 6), [hist]),
        (K(1, 6), [lg(1)] + ([] if early else [pf])),
        (K(0, 7), []),
        (K(1, 7), [lg(0), BAR]),
        (V(0, 2), [qbrd(0)]),
        (V(1, 2), [qbrd(1), add(ACCK, 0)]),
        (V(0, 3), [qbrd(2), add(ACCK, 1)]),
        (V(1, 3), [qbrd(3), "s_waitcnt vmcnt(2) lgkmcnt(3)"]),
        (smx(0), [lg(2), add(ACCK + 4, 0), add(ACCK + 4, 1)]),
        (smx(1), [lg(1), cvt(ACCK + 2, ACCK, ACCK + 4), cvt(ACCK + 3, ACCK + 1, ACCK + 5)]),
        (smx(2), ["ds_write2_b32 %s, %s, %s offset0:0 offset1:%d" % (v(C_KW), v(ACCK + 2), v(ACCK + 3), RS), lg(1)]),
        (smx(3), ["v_mov_b64 %s, %s" % (v(ONES, 2), s(S_ONES, 2)), "v_mov_b64 %s, %s" % (v(ONES + 2, 2), s(S_ONES, 2))]),
        (V(0, 4), [mov0(PM + 1)]),
        (V(1, 4), ["s_nop 1", mov0(VM0 + 1)]),
    ] + ([
        (V(0, 5), [lg(0), BAR, ex(SX), ex(SX + 1)]),
        (V(1, 5), [kmrd(0), ex(SX + 2), ex(SX + 3)]),
        (V(0, 6), [kmrd(1), cvt(PX, SX, SX + 1), cvt(PX + 1, SX + 2, SX + 3)]),
        (V(1, 6), ["ds_write_b64 %s, %s offset:%d" % (v(C_MW), v(PX, 2), L_PX)]),
        (V(0, 7), [kmrd(2), mov0(VM1 + 1)]),
        (V(1, 7), [kmrd(3), lg(3)]),
        (smm(0), [zw.pop(0), zw.pop(0)]),
        (smm(1), [lg(1), BAR]),
        (smm(2), ["ds_read_b64 %s, %s offset:%d" % (v(PX + 2, 2), v(C_X2), L_PX), lg(1)]),
        (smm(3), [add(ACCV, 0), add(ACCV, 1), add(ACCV + 4, 0), add(ACCV + 4, 1), cvt(VM0, ACCV, ACCV + 1), lg(0)]),
        (mf32(LS, ONES, PX, True), [cvt(VM1, ACCV + 4, ACCV + 5), ex(SM)]),
        (mf32(OA, VX, PX, True), [ex(SM + 1), zw.pop(0)]),
        (mf32(OA + 4, VX + 4, PX, True), [cvt(PM, SM, SM + 1), zw.pop(0), zw.pop(0)]),
        (mf16(LS, ONES, PM), [zw.pop(0), zw.pop(0)]),
        (mf16(OA, VM0, PM), [zw.pop(0), oad[0]]),
        (mf16(OA + 4, VM1, PM), oad[1:] + ["v_rcp_f32 %s, %s" % (v(TA), v(LS))]),
    ] if OPT.get("bx") else [
        (V(0, 5), [lg(0), BAR, ex(SX)]),
        (V(1, 5), [kmrd(0), ex(SX + 1)]),
        (V(0, 6), [kmrd(1), ex(SX + 2)]),
        (V(1, 6), [kmrd(2), ex(SX + 3)]),
        (V(0, 7), [kmrd(3), cvt(PX, SX, SX + 1), cvt(PX + 1, SX + 2, SX + 3)]),
        (V(1, 7), ["ds_write_b64 %s, %s offset:%d" % (v(C_MW), v(PX, 2), L_PX), lg(4)]),
        (smm(0), [lg(3), mov0(VM1 + 1), zw.pop(0)]),
        (smm(1), [lg(2), zw.pop(0), zw.pop(0)]),
        (smm(2), [lg(1), add(ACCV, 0), add(ACCV, 1)]),
        (smm(3), [lg(0), BAR, "ds_read_b64 %s, %s offset:%d" % (v(PX + 2, 2), v(C_X2), L_PX)] + ([fsc] if push else []) +
                 [add(ACCV + 4, 0), add(ACCV + 4, 1), cvt(VM0, ACCV, ACCV + 1), cvt(VM1, ACCV + 4, ACCV + 5), zw.pop(0), ex(SM), ex(SM + 1), lg(0)]),
        (mf32(LS, ONES, PX, True), [cvt(PM, SM, SM + 1), zw.pop(0)]),
        (mf32(OA, VX, PX, True), [zw.pop(0), zw.pop(0)]),
        (mf32(OA + 4, VX + 4, PX, True), [zw.pop(0), oad[0]]),
        (mf16(LS, ONES, PM), [oad[1]] + oad[2:]),
        (mf16(OA, VM0, PM), ["s_nop 1"]),
        (mf16(OA + 4, VM1, PM), ["v_rcp_f32 %s, %s" % (v(TA), v(LS))]),
    ]), ex0)
    assert not zw
    e("v_max_f32 %s, %s, %s" % (v(T0), v(TA), v(LS)))
    e("v_cmp_nge_f32 vcc, %s, %s" % (s(S_BIG), v(T0)))
    for r in (0, 2, 4, 6):
        e("v_pk_mul_f32 %s, %s, %s op_sel_hi:[1,0]" % (v(OA + r, 2), v(OA + r, 2), v(TA, 2)))
    for r in (0, 2, 1, 3):
        e(cvt(OP + r, OA + r, OA + 4 + r))
    if OPT.get("pflat"):
        e("s_memtime s[74:75]")
        e("s_waitcnt vmcnt(1)")
        e("s_memtime s[72:73]")
        e("s_waitcnt lgkmcnt(0)")
    e.label(L("rejoin"))
    if o64:
        for k in range(2):
            e("v_cndmask_b32 %s, %s, %s, %s" % (v(LS + 2 + k), v(OP + k), v(OP + 2 + k), s(S_HM, 2)))
        e("ds_write_b64 %s, %s offset:%d" % (v(C_FL), v(LS + 2, 2), L_OE))
    else:
        e("ds_write_b128 %s, %s offset:%d" % (v(C_MW), v(OP, 4), L_OE))
    WACC = AM
    SO = lambda q, u: smf_ins(WACC + 4 * q, OP if u == 0 else OOP + 4 * u, ("O", q, u))
    ord_ = lambda u: "ds_read_b128 %s, %s offset:%d" % (v(OOP + 4 * u, 4), v(C_X2 if u == 2 and not o64 else OOP + 4 * u), L_OE)
    SEL, RD = ACCV, ACCV + 4
    wc = lambda q, r: cvt(PK + 2 * q + r, WACC + 4 * q + r, WACC + 4 * q + 2 + r)
    extra = {}
    if push:
        extra = {fw: [fst]} if fw >= 0 else {}
        for pos in (OPT.get("fr", 7), OPT.get("fr2", 11), OPT.get("fr3", 14)):
            extra.setdefault(pos, []).append(fld)
    run([
        (SO(0, 0), ["v_bfe_u32 %s, %s, 2, 7" % (v(FA), v(C_L16)), mov0(F0)] if push else []),
        (SO(1, 0), [lg(0), BAR, ord_(1), ord_(2)] if OPT.get("b4", 1) else []),
        (SO(2, 0), [ord_(3)] if OPT.get("b4", 1) else [lg(0), BAR, ord_(1), ord_(2)]),
        (SO(3, 0), ([] if OPT.get("b4", 1) else [ord_(3)]) + [of[0], of[1], lg(4)]),
        (SO(0, 1), [of[2], lg(4)]),
        (SO(0, 2), [of[3], lg(4)]),
        (SO(0, 3), [of[4], "s_cmp_lg_u64 vcc, 0"]),
        (SO(1, 1), [of[5], "s_cselect_b32 %s, %s, %s" % (s(S_TAG), s(S_NPAR), s(S_PAR))]),
        (SO(1, 2), [of[6], wc(0, 0)] + ([wc(0, 1), tg(0)] if OPT.get("fs") else [])),
        (SO(1, 3), [pst(0)] if OPT.get("fs") else [of[7], wc(0, 1), tg(0)]),
        (SO(2, 1), [of[7]] if OPT.get("fs") else [pst(0)]),
        (SO(2, 2), [lg(4), "s_nop 0", wc(1, 0)]),
        (SO(2, 3), ["ds_read_b128 %s, %s offset:%d" % (v(SEL, 4), v(C_L16), L_SEL), wc(1, 1), tg(1)]),
        (SO(3, 1), [pst(1), lg(1)]),
        (SO(3, 2), ["s_nop 1", wc(2, 0)]),
        (SO(3, 3), ["s_nop 2", wc(2, 1), tg(2), pst(2), wc(3, 0), wc(3, 1), tg(3), pst(3)]),
    ], extra)
    e.label(L("stored"))
    stamp(e, 1, stamps)
    e("s_cmp_lg_u32 %s, %s" % (s(S_TAG), s(S_PAR)))
    e("s_cbranch_scc1 %s" % L("safe"))
    f, z = idle_prep_ins()
    n0 = OPT.get("n0", 12)
    PD = VX
    pld = lambda P: ["buffer_load_dwordx4 %s, %s, %s, %s offen sc1" % (v(P, 4), v(C_MW), ws, s(S_PR)),
                     "buffer_load_dwordx4 %s, %s, %s, %s offen offset:1024 sc1" % (v(P + 4, 4), v(C_MW), ws, s(S_PR))]
    pub = "buffer_store_dword %s, %s, %s, %s offen%s" % (v(HPEND), v(C_MP), ws, s(S_T0), sc)
    if push:
        e.label(L("sync"))
        e("v_cmp_gt_u32 vcc, %s, %s" % (s(S_NX2), v(F0)))
        e(fld)
        e("s_add_u32 %s, %s, 1" % (s(S_SPIN), s(S_SPIN)))
        e("s_cmp_le_u32 %s, %d" % (s(S_SPIN), TMO_LIMIT * 8))
        e("s_cselect_b32 %s, %s, 0" % (s(S_NX2), s(S_NX2)))
        e("s_waitcnt vmcnt(24)")
        delay(e, OPT.get("sper", 0))
        e("s_cbranch_vccnz %s" % L("sync"))
    for x in f[:n0]:
        e(x)
    delay(e, OPT.get("d1", 0))
    for q in range(1, 4):
        e("s_cmp_lt_u32 %s, %d" % (s(S_WAVE), q))
        e("s_cbranch_scc1 %s" % L("pollp"))
        delay(e, OPT.get("dp", 40))
    e.label(L("pollp"))
    stamp(e, 4, stamps and not OPT.get("pflat"))
    PB_ = AM + 16
    for x in pld(PD):
        e(x)
    for x in f[n0:] + z[4:8]:
        e(x)
    p1 = OPT.get("p1")
    if ns:
        e("s_cmp_lt_u32 %s, %d" % (s(S_WAVE), ns))
        e("s_cbranch_scc1 %s" % L("onep"))
    if not p1:
        delay(e, OPT.get("pp", 128) - (24 if ns else 0))
        for x in pld(PB_):
            e(x)
    e.label(L("prep"))
    e("s_add_u32 %s, %s, 0x%x" % (s(S_MB), s(S_SLABN), MB_IN))
    chk = lambda P: ["v_bitop3_b32 %s, %s, %s, %s bitop3:0x7e" % (v(T0), v(P), v(P + 2), s(S_PAR)),
                     "v_bitop3_b32 %s, %s, %s, %s bitop3:0x7e" % (v(FREE1), v(P + 4), v(P + 6), s(S_PAR)),
                     "v_bitop3_b32 %s, %s, %s, 1 bitop3:0xa8" % (v(T0), v(T0), v(FREE1)),
                     "v_cmp_ne_u32 vcc, 0, %s" % v(T0)]

    def finish():
        for rot in (8, 4):
            for r in (0, 1):
                e("v_add_f32_dpp %s, %s, %s row_ror:%d row_mask:0xf bank_mask:0xf" % (v(RD + r), v(RD + r), v(RD + r), rot))
        e(cvt(HPEND, RD, RD + 1))
        e(pub)

    def attempt(P, base):
        e("s_waitcnt vmcnt(%d) lgkmcnt(0)" % (base + 1))
        e(mf32(RD, SEL, P, True))
        e(chk(P)[0])
        e("s_waitcnt vmcnt(%d)" % base)
        e(mf32(RD, SEL, P + 4, False))
        for x in chk(P)[1:]:
            e(x)
        e("s_nop 2")
        e("s_cmp_eq_u64 vcc, 0")
        e("s_cselect_b32 %s, %s, %s" % (s(S_T0), s(S_HIST if solo else S_SLABN), s(S_OOB)))
        finish()
    attempt(PD, 0 if p1 else 2)
    if not solo:
        e("s_cbranch_scc1 %s" % L("gotp"))
        if p1:
            for x in pld(PB_):
                e(x)
            e(pub)
            delay(e, 96)
        e.label(L("retryp"))
        for x in pld(PD):
            e(x)
        attempt(PB_, 3)
        e("s_cbranch_scc1 %s" % L("gotp"))
        for x in pld(PB_):
            e(x)
        attempt(PD, 3)
        e("s_cbranch_scc1 %s" % L("gotp"))
        e("s_add_u32 %s, %s, 1" % (s(S_TMO), s(S_TMO)))
        e("s_cmp_le_u32 %s, %d" % (s(S_TMO), TMO_LIMIT))
        e("s_cbranch_scc1 %s" % L("retryp"))
        e("s_mov_b32 %s, %s" % (s(S_T0), s(S_SLABN)))
        e(pub)
    e.label(L("gotp"))
    stamp(e, 2, stamps)
    e("s_add_u32 %s, %s, 0x2000" % (s(S_HIST), s(S_HIST)))
    e("s_cmp_ge_u32 %s, %d" % (s(S_NEXT), nsteps))
    e("s_cbranch_scc1 %s" % L("last"))
    e("s_mov_b32 %s, %s" % (s(S_SLAB), s(S_SLABN)))
    e("s_mov_b32 %s, %s" % (s(S_STEP), s(S_NEXT)))
    e("s_mov_b32 %s, %s" % (s(S_PAR), s(S_NPAR)))
    for x in z[8:]:
        e(x)
    if trace:
        e("s_memrealtime s[100:101]")
        e("s_memtime s[70:71]")
        e("s_lshl_b32 s3, %s, 2" % s(S_H))
        e("s_add_u32 s3, s3, %s" % s(S_WAVE))
        e("s_lshl_b32 s3, s3, 6")
        e("s_add_u32 s3, s3, %s" % s(S_STEP))
        e("s_lshl_b32 s3, s3, 5")
        e("s_add_u32 s3, s3, 0x200000")
        e("s_waitcnt lgkmcnt(0)")
        for k, r in enumerate((64, 66, 68, 100, 70, 72, 74, S_TMO)):
            e("v_mov_b32 %s, %s" % (v(AM + 8 + k), s(r)))
        e("buffer_store_dwordx4 %s, off, %s, s3" % (v(AM + 8, 4), ws))
        e("buffer_store_dwordx4 %s, off, %s, s3 offset:16" % (v(AM + 12, 4), ws))
    delay(e, OPT.get("dm", 112) - (128 if trace else 0))
    if ns and OPT.get("dmx"):
        e("s_cmp_ge_u32 %s, %d" % (s(S_WAVE), ns))
        e("s_cbranch_scc1 %s" % L("firem"))
        delay(e, OPT.get("dmx"))
        e.label(L("firem"))
    stamp(e, 5, stamps and not OPT.get("pflat"))
    for x in mld:
        e(x)
    e("s_branch %s" % L("step"))
    e.label(L("last"))
    e(hist)
    e("s_branch %s" % L("done"))
    if ns:
        e.label(L("onem"))
        e("s_waitcnt vmcnt(0)")
        e("s_branch %s" % L("prem"))
        e.label(L("onep"))
        e("v_mov_b32 %s, %s" % (v(PB_), s(S_NPAR)))
        e("s_waitcnt vmcnt(0)")
        e("s_branch %s" % L("prep"))
    e.label(L("refresh"))
    e("buffer_load_dword %s, %s, %s, %s offen sc1" % (v(JUNK), v(C_PF), ws, s(S_SLAB)))
    e("s_add_u32 %s, %s, 1" % (s(S_TMO), s(S_TMO)))
    e("s_cmp_le_u32 %s, %d" % (s(S_TMO), TMO_LIMIT))
    e("s_waitcnt vmcnt(0)")
    e("s_cbranch_scc1 %s" % L("step"))
    e("s_branch %s" % L("fresh"))
    e.label(L("safe"))
    e.fence(12)
    e("s_waitcnt vmcnt(0) lgkmcnt(0)")
    e("s_barrier")
    W = AM
    for ks in range(4):
        e(qbrd(ks))
        e(kmrd(ks))
    e("s_xor_b32 %s, %s, 0x1000" % (s(S_T0), s(S_KXO)))
    e("s_add_u32 %s, %s, %s" % (s(S_T0), s(S_T0), s(S_SLAB)))
    for ks in range(4):
        e("buffer_load_dwordx4 %s, %s, %s, %s offen offset:%d sc1" % (v(W + 4 * ks, 4), v(C_L16), ws, s(S_KX), ks * 1024))
        e("buffer_load_dwordx4 %s, %s, %s, %s offen offset:%d sc1" % (v(W + 16 + 4 * ks, 4), v(C_L16), ws, s(S_T0), ks * 1024))
    e("s_waitcnt vmcnt(0) lgkmcnt(0)")
    S0, S1, S2 = ACCQ, ACCQ + 4, ACCK
    for (d, src) in ((S0, W), (S1, W + 16), (S2, XA)):
        for ks in range(4):
            e(mf32(d, src + 4 * ks, QB + 4 * ks, ks == 0))
    M0_, M1_ = W, W + 1
    e("v_max3_f32 %s, %s, %s, %s" % (v(M0_), v(S0), v(S0 + 1), v(S0 + 2)))
    e("v_max3_f32 %s, %s, %s, %s" % (v(M0_), v(M0_), v(S0 + 3), v(S1)))
    e("v_max3_f32 %s, %s, %s, %s" % (v(M0_), v(M0_), v(S1 + 1), v(S1 + 2)))
    e("v_max3_f32 %s, %s, %s, %s" % (v(M0_), v(M0_), v(S1 + 3), v(S2)))
    e("v_max_f32 %s, %s, %s" % (v(M0_), v(M0_), v(S2 + 1)))
    for sw in ("v_permlane16_swap_b32", "v_permlane32_swap_b32"):
        e("v_mov_b32 %s, %s" % (v(M1_), v(M0_)))
        e("%s %s, %s" % (sw, v(M0_), v(M1_)))
        e("v_max_f32 %s, %s, %s" % (v(M0_), v(M0_), v(M1_)))
    for r in [S0 + i for i in range(8)] + [S2, S2 + 1]:
        e("v_sub_f32 %s, %s, %s" % (v(r), v(r), v(M0_)))
        e(ex(r))
    for q in range(4):
        e(cvt(PX + q, S0 + 2 * q, S0 + 2 * q + 1))
    e(cvt(PM, S2, S2 + 1))
    e(mf32(LS, ONES, PX, True)); e(mf32(OA, VX, PX, True)); e(mf32(OA + 4, VX + 4, PX, True))
    e(mf16(LS, ONES, PM)); e(mf16(OA, VM0, PM)); e(mf16(OA + 4, VM1, PM))
    e("v_rcp_f32 %s, %s" % (v(TA), v(LS)))
    for r in range(8):
        e("v_mul_f32 %s, %s, %s" % (v(OA + r), v(OA + r), v(TA)))
    for r in range(4):
        e(cvt(OP + r, OA + r, OA + 4 + r))
    for r in range(AM, AM + 16):
        e(mov0(r))
    for x in oad:
        e(x)
    if push:
        e(fsc)
    e("s_mov_b64 vcc, 0")
    e("s_branch %s" % L("rejoin"))
    e.label(L("done"))
```

```python
import sys
from asmlib import Emitter, v, a, s
import chain as C
for a_ in sys.argv:
    if a_.startswith('opt:'):
        k_, v_ = a_[4:].split('=')
        C.OPT[k_] = int(v_, 0) if v_.lstrip('-')[:1].isdigit() else v_.replace('_', ' ')
import worker as W
import mlp as M

BASE = "sequential_preLN__memory_aug_recurrent_mem_tr__moe_arch_mod__prompt"
K1 = BASE + "_kernel"
K2 = "route_up_kernel"
K3 = "down_kernel"
hdr = open(__import__("os").path.join(__import__("os").path.dirname(__import__("os").path.abspath(__file__)), "..", "%s.s.ref" % BASE)).read().split("\n")
hdr = [l for l in hdr[:hdr.index(next(l for l in hdr if "@launch" in l and l.startswith("; @launch")))] if "harness parses" not in l.lower() and "Override launch" not in l]
e = Emitter()
for l in hdr:
    e.raw(l)
DOC = """
Generated by gen/gen.py (hand-written generator scripts, see gen/*.py).
One persistent launch, 256 workgroups (one per CU), role = workgroup id & 7:
  0    chain: one workgroup per head keeps its Wq/Wk/Wv/Wo slices in registers + LDS and runs the 63 dependent
       memory updates.  The 8 memory rows use the sparse MFMA (8 rows x 2 k-halves or x 2 column tiles).
       Per step: partial out-projections -> reduce-scatter over the 32 workgroups -> all-gather of the new memory.
       Every hand-off word validates itself (sentinel or parity tag), readers use L1-bypassing loads.
       The chain workgroups report their XCC id at run time: only if all sit on one die the hand-off stores are
       plain (shared L2); otherwise the second copy of the loop with device-scope stores runs.
       Softmax of the memory rows exponentiates without a shift while 2^-30 <= row sum <= 2^30; a run-time check
       redoes the step with the true row maximum otherwise.
  1-6  workers (6 per head): q/k/v of the tokens, token attention (running true max), partial out-projection,
       cross-head reduction + residual + layernorm + router score, device-scope hand-offs.
  7    setup of the hand-off buffers, layernorm of x, then top-2 routing + MLP (recomputed whenever the top-2 of a
       longer token prefix changes; the final check sees all tokens).
Short waits in front of polls are back-off: early polls only slow the stores they are waiting for.
Every wait loop is bounded.
"""
for l in DOC.strip().split("\n"):
    e.raw("; " + l)
if C.OPT.get("list"):
    e.raw("; @launch kernel=%s grid=(256,1,1) block=(256,1,1) lds=%d" % (K1, C.LDS_BYTES))
else:
    e.raw("; @launch grid=(256,1,1) block=(256,1,1) lds=%d" % C.LDS_BYTES)
e.raw('.amdgcn_target "amdgcn-amd-amdhsa--gfx950"')
e.raw(".text")


def start(name):
    e.raw(".globl %s\n.p2align 8\n.type %s,@function" % (name, name))
    e.label(name)
    e.hist = []


PROF = C.OPT.get("prof", 0)


def rt(i, dbg=None):
    if not PROF:
        return
    if PROF == 2:
        if dbg is None:
            return
        e("s_cmp_lg_u32 %s, 0" % s(C.S_WAVE))
        e("s_cbranch_scc1 L_rt%d" % dbg)
        if dbg in (0, 3, 4):
            e("s_cmp_ge_u32 s2, 16")
            e("s_cbranch_scc1 L_rt%d" % dbg)
        e("s_memrealtime s[100:101]")
        e("s_waitcnt lgkmcnt(0)")
        e("s_and_b32 s100, s100, 0xffffff")
        if dbg == 0:
            e("s_sub_u32 s100, 0x1000000, s100")
        e("v_mov_b32 v14, s100")
        e("s_mov_b64 exec, 1")
        e("buffer_atomic_umax v14, off, %s, 0 offset:%d" % (s(C.S_DBG, 4), 4 * dbg))
        e("s_mov_b64 exec, -1")
        e.label("L_rt%d" % dbg)
        return
    e("s_memrealtime s[100:101]")
    e("s_lshl_b32 s3, s2, 6")
    e("s_add_u32 s3, s3, 0x%x" % C.STAMP_OFF)
    e("s_waitcnt lgkmcnt(0)")
    e("v_mov_b32 v14, s100")
    e("buffer_store_dword v14, off, %s, s3 offset:%d" % (s(C.S_WS, 4), 4 * i))
    e("s_waitcnt vmcnt(0)")


start(K1)
P = C.S_PTR
e("s_cmp_ge_u32 s2, 256")
e("s_cbranch_scc1 L_end")
e("s_load_dwordx8 %s, s[0:1], 0" % s(P, 8))
e("s_load_dwordx4 %s, s[0:1], 32" % s(P + 8, 4))
e("s_load_dwordx4 %s, s[0:1], 104" % s(P + 12, 4))
e("s_load_dwordx2 s[80:81], s[0:1], 64")
e("s_load_dwordx2 s[82:83], s[0:1], 96")
e("s_load_dwordx4 s[84:87], s[0:1], 72")
e("s_load_dwordx2 s[88:89], s[0:1], 88")
if C.OPT.get("warm", 0):
    e.comment("pull the kernel's own code into this die's L2 (it is executed mostly once, front to back)")
    e("s_getpc_b64 s[90:91]")
    e("s_and_b32 s90, s90, 0xffffff00")
    e("v_lshlrev_b32 v2, 7, v0")
    e("v_add_u32 v3, 0x8000, v2")
    e("v_min_u32 v3, CODE_LAST, v3")
    e("global_load_dword v126, v2, s[90:91]")
    e("global_load_dword v127, v3, s[90:91]")
e("v_lshrrev_b32 v1, 6, v0")
e("v_readfirstlane_b32 %s, v1" % s(C.S_WAVE))
e("s_waitcnt lgkmcnt(0)")
C.srd(e, C.S_WS, P + 14, C.WS_BYTES)
C.srd(e, C.S_DBG, P + 12, 256)
rt(0, 0)
if C.OPT.get("wtlb", 0):
    e.comment("first touch of every region, all at once: the address translations resolve in parallel")
    e("v_lshlrev_b32 v2, 19, v0")
    for pp in (P + 8, P + 10, P + 6, P + 4):
        C.srd(e, 12, pp, 4096 * 512 * 2)
        e("buffer_load_dword v127, v2, s[12:15], 0 offen")
    if C.OPT.get("wtlb") == 2:
        e("v_lshlrev_b32 v2, 20, v0")
        e("s_mov_b32 s12, 0xf0000")
        e("buffer_load_dword v127, v2, %s, s12 offen sc1" % s(C.S_WS, 4))
e("s_and_b32 s3, s2, 7")
e("s_cmp_lg_u32 s3, 0")
e("s_cbranch_scc1 L_worker")
e("s_lshr_b32 %s, s2, 3" % s(C.S_H))
for _ in range(C.OPT.get("cdelay", 0)):
    e("s_sleep 36")


def chain_pre(q):
    C.xcc_publish(e, q)
    C.mem0_load(e, P + 2, C.HPEND, 104, 105, 106, C.S_W)
    q.add("m0")
    if C.OPT.get("tlb", 0):
        e.comment("touch an unused word of every slab: address translations are resolved before the chain needs them")
        e("s_mov_b32 s36, 0x%x" % C.SLAB_ST)
        e("v_mul_lo_u32 v104, v0, s36")
        e("v_mov_b32 v105, 0x%x" % C.OOB)
        e("v_cmp_lt_u32 vcc, 1, v0")
        e("v_cndmask_b32 v104, v104, v105, vcc")
        e("s_mul_i32 s36, %s, 0x%x" % (s(C.S_H), 2 * C.SLAB_ST))
        e("s_add_u32 s36, s36, 0x%x" % (C.SLAB_OFF + C.FL_IN + 0x80))
        e("buffer_load_dword v126, v104, %s, s36 offen" % s(C.S_WS, 4))
        q.add("tlb")
        e("s_mov_b32 s36, 0xf0000")
        e("buffer_load_dword v127, off, %s, s36" % s(C.S_WS, 4))
        q.add("tlb")
    C.setup_consts(e)
    C.setup_pf(e)


C.load_weights(e, P + 4, P + 6, P + 8, P + 10, pre=chain_pre)
rt(1, 1)
e("s_cmp_lg_u32 %s, 0" % s(C.S_MODE))
e("s_cbranch_scc1 L_slow_start")
C.main_loop(e, "fast", "", 63, bool(C.OPT.get("trace")))
rt(2, 2)
e("s_branch L_end")
C.main_loop(e, "slow", " sc1", 63)
e("s_branch L_end")
e.label("L_worker")


def common():
    C.srd(e, W.S_X, P, 2048 * 512 * 2)
    C.srd(e, W.S_OUT, 82, 2048 * 512 * 2)
    C.srd(e, W.S_WR, 80, 1024)
    W.setup(e)


def worker_pre(q):
    if C.OPT.get("touch", 1):
        e.comment("pull this head's Wo slice towards the last-level cache early (the chain CU streams it first)")
        C.srd(e, W.S_X, P + 10, 4096 * 512 * 2)
        e("s_lshl_b32 s24, %s, 17" % s(C.S_H))
        e("s_and_b32 s25, %s, 3" % s(W.S_R))
        e("s_lshl_b32 s25, s25, 15")
        e("s_add_u32 s24, s24, s25")
        e("v_lshlrev_b32 v30, 7, v0")
        e("buffer_load_dword v31, v30, %s, s24 offen" % s(W.S_X, 4))
        q.add("touch")
    common()


e("s_cmp_eq_u32 s3, 7")
e("s_cbranch_scc1 L_mlp")
W.ids(e)
if C.OPT.get("sweep", 0):
    e.comment("replicas 2..5 first stream the weight matrices once, linearly, in the order the chain needs them:")
    e("s_cmp_lt_u32 %s, 2" % s(W.S_R))
    e("s_cbranch_scc1 L_nosweep")
    e("s_lshl_b32 s24, %s, 2" % s(C.S_H))
    e("s_add_u32 s24, s24, %s" % s(W.S_R))
    e("s_sub_u32 s24, s24, 2")
    e("s_lshl_b32 s24, s24, 12")
    e("v_lshlrev_b32 v30, 4, v0")
    for mi, pp in enumerate((P + 8, P + 10, P + 6, P + 4)):
        C.srd(e, W.S_X, pp, 4096 * 512 * 2)
        for i in range(8):
            e("s_add_u32 s25, s24, 0x%x" % (i * 0x80000))
            e("buffer_load_dwordx4 %s, v30, %s, s25 offen%s" % (v(96 + 4 * i, 4), s(W.S_X, 4), C.OPT.get("swf", "")))
    e("s_waitcnt vmcnt(%d)" % C.OPT.get("sww", 16))
    e.label("L_nosweep")
if C.OPT.get("stag"):
    e("s_cmp_lt_u32 %s, %d" % (s(W.S_R), C.OPT.get("stagr", 1)))
    e("s_cbranch_scc1 L_go")
    for _ in range(C.OPT["stag"]):
        e("s_sleep 36")
    e.label("L_go")
W.load_w(e, P, C.OPT.get("word", "VKQ"), worker_pre)
rt(1, 3)
if PROF == 1:
    for i in range(2):
        e("v_mov_b32 v14, %s" % s(90 + i))
        e("buffer_store_dword v14, off, %s, s3 offset:%d" % (s(C.S_WS, 4), 24 + 4 * i))
W.phase1(e)
rt(2, 4)
if C.OPT.get("nop2"):
    e("s_branch L_end")
W.load_wo(e, P)
W.wait_tpinit(e)
rt(3)
W.phase2(e)
rt(4, 5)
if PROF == 1:
    for i in range(6):
        e("v_mov_b32 v14, %s" % s(44 + 2 * i))
        e("buffer_store_dword v14, off, %s, s3 offset:%d" % (s(C.S_WS, 4), 32 + 4 * i))
    e("v_mov_b32 v14, %s" % s(C.S_TMO))
    e("buffer_store_dword v14, off, %s, s3 offset:56" % s(C.S_WS, 4))
    e("v_mov_b32 v14, %s" % s(W.S_R))
    e("buffer_store_dword v14, off, %s, s3 offset:60" % s(C.S_WS, 4))
e("s_branch L_end")
e.label("L_mlp")
common()
e("s_lshr_b32 %s, s2, 3" % s(C.S_H))
W.xn_produce(e, lambda: C.init_fill(e, P + 2, W.W_MW, W.R0 + 48, 96))
rt(1)
if C.OPT.get("nop2") or C.OPT.get("nomlp"):
    e("s_branch L_end")
M.body(e, 84, 86, 88)
e.label("L_end")
if PROF:
    e("s_cmp_ge_u32 s2, 256")
    e("s_cbranch_scc1 L_end2")
    rt(5, 6)
    e.label("L_end2")
e("s_endpgm")
e.raw('.section .rodata,"a"')
for name, nv, acc in ((K1, 512, 256),):
    e.raw(""".p2align 6
.amdhsa_kernel %s
  .amdhsa_next_free_vgpr %d
  .amdhsa_next_free_sgpr 102
  .amdhsa_accum_offset %d
  .amdhsa_group_segment_fixed_size 0
  .amdhsa_kernarg_size 120
  .amdhsa_user_sgpr_count 2
  .amdhsa_user_sgpr_kernarg_segment_ptr 1
  .amdhsa_system_sgpr_workgroup_id_x 1
.end_amdhsa_kernel""" % (name, nv, acc))
out = sys.argv[1] if len(sys.argv) > 1 and not sys.argv[1].startswith("opt:") else "/code/%s.s" % BASE
import subprocess, tempfile, os, re
if C.OPT.get("x8", 3):
    import align
    e.lines = "\n".join(e.lines).split("\n")
    e.lines, st_ = align.process(e.lines, "L_fast_step", "L_fast_last", C.OPT.get("x8", 3))
    print("align (widened, nops, misaligned):", st_)
txt = e.text()
with tempfile.TemporaryDirectory() as td:
    open(td + "/a.s", "w").write(txt.replace("CODE_LAST", "0x12345"))
    subprocess.run(["clang", "-x", "assembler", "-target", "amdgcn-amd-amdhsa", "-mcpu=gfx950", "-c", td + "/a.s", "-o", td + "/a.o"], check=True)
    sec = subprocess.run(["llvm-readelf", "-S", td + "/a.o"], capture_output=True, text=True).stdout
    size = int(re.search(r"\.text\s+PROGBITS\s+\S+\s+\S+\s+(\S+)", sec).group(1), 16)
assert 0x8000 < size <= 0x10000
open(out, "w").write(txt.replace("CODE_LAST", "0x%x" % (size - 4)))
print("nops inserted:", e.nops_inserted, "lines:", len(e.lines), "->", out)
```

```python
from asmlib import Emitter, v, a, s
import struct

WS_BYTES = 0x10000000
PB_OFF = 0x0000000
SYNC_OFF = 0x0080000
HIST_OFF = 0x0100000
FLAG_OFF = 0x0190000
STAMP_OFF = 0x01A0000
SLAB_OFF = 0x1000000
SLAB_ST = 0x82100
MB_IN = 0x80000
FL_IN = 0x82000
OOB = 0x40000000

L_MEMI = 0
L_PX = 8192
RS = 72
L_QX = 16384
L_KMX = L_QX + 2304
L_OX = L_KMX + 2304
L_SEL = L_OX + 2048
L_WL = 32768
LDS_BYTES = 163840

S_WS = 8
S_W = 12
S_DBG = 16
S_H = 20
S_WAVE = 21
S_STEP = 22
S_SLAB = 23
S_SLABN = 24
S_KXO = 25
S_KX = 29
S_VX = 30
S_HIST = 31
S_TMO = 32
S_SCALE = 33
S_PLO = 34
S_PHI = 35
S_T0 = 36
S_T1 = 37
S_T2 = 38
S_VXO = 39
S_BIG = 40
S_PR = 6
S_MB = 7
S_4K = 26
S_PAR = 27
S_RDY = 62
S_NPAR = 28
S_TAG = 60
S_OOB = 61
S_FW = 88
S_FR = 89
S_NEXT = 90
S_SPIN = 91
S_LIM = 94
S_SY = 80
S_NX2 = 84
S_U0 = 95
S_HM = 92
S_W3 = 95
S_ONES = 4
S_PTR = 44
S_ST = 64

C_PF = 0
C_IDX, C_MW, C_L16, C_WL, C_QW, C_QR, C_KW, C_X2, C_PW, C_MP, FREE1, HPEND, C_FL, T0, JUNK = range(1, 16)
AM = 16
ACCQ = 48
ACCK = 56
ACCV = 64
QB = 72
XA = 88
XB = 104
VX = 120
VW = 128

TMO_LIMIT = 200000
OPT = {}


def f32bits(x):
    return struct.unpack("<I", struct.pack("<f", x))[0]


def lin(e, dst, coefs, const=0, tmp=T0, src=0):
    e("v_mov_b32 %s, 0x%x" % (v(dst), const))
    for k, c in sorted(coefs.items()):
        if c == 0:
            continue
        assert c < (1 << 24)
        e("v_bfe_u32 %s, %s, %d, 1" % (v(tmp), v(src), k))
        e("s_mov_b32 %s, 0x%x" % (s(S_T2), c))
        e("v_mad_u32_u24 %s, %s, %s, %s" % (v(dst), v(tmp), s(S_T2), v(dst)))


def srd(e, d, ptr, nbytes):
    e("s_mov_b32 %s, %s" % (s(d), s(ptr)))
    e("s_and_b32 %s, %s, 0xffff" % (s(d + 1), s(ptr + 1)))
    e("s_mov_b32 %s, 0x%x" % (s(d + 2), nbytes))
    e("s_mov_b32 %s, 0x20000" % s(d + 3))


LDS_OPS = {
    ("Q", 0, 0): XB + 0, ("Q", 1, 0): XB + 8, ("Q", 0, 1): XA + 0, ("Q", 1, 1): XA + 8,
    ("K", 0, 0): QB + 0, ("K", 1, 0): QB + 8,
    ("Q", 0, 7): XA + 0, ("Q", 1, 7): XA + 8,
    ("K", 0, 2): QB + 0, ("K", 1, 2): QB + 8,
    ("K", 0, 7): XA + 0, ("K", 1, 7): XA + 8,
    ("O", 2, 3): XA + 0, ("O", 3, 1): XA + 8, ("O", 3, 2): QB + 0, ("O", 3, 3): QB + 8,
}
OLDS = [("O", 2, 3), ("O", 3, 1), ("O", 3, 2), ("O", 3, 3)]
LDS_SLOT = {k: i for i, k in enumerate(LDS_OPS)}
ALL_OPS = [(m, T, u) for m in "QKV" for u in range(8) for T in range(2)] + [("O", q, u) for u in range(4) for q in range(4)]
RES = {}
_n = 0
for op in ALL_OPS:
    if op in LDS_OPS:
        continue
    RES[op] = ("a", _n * 8) if _n < 32 else ("v", VW + (_n - 32) * 8)
    _n += 1
assert _n == 48


def opreg(op):
    if op in LDS_OPS:
        return v(LDS_OPS[op], 8)
    k, r = RES[op]
    return (a if k == "a" else v)(r, 8)


def lds_fetch_ins(op):
    r = LDS_OPS[op]
    off = LDS_SLOT[op] * 2048
    return ["ds_read_b128 %s, %s offset:%d" % (v(r, 4), v(C_WL), off),
            "ds_read_b128 %s, %s offset:%d" % (v(r + 4, 4), v(C_WL), off + 1024)]


def lds_fetch(e, op):
    for t in lds_fetch_ins(op):
        e(t)


def rowpart(rho, b, hi=32):
    return hi * (rho >> 2) + 8 * (rho & 1) + 2 * ((rho >> 1) & 1) + b


class VmQ:
    def __init__(self, e):
        self.e, self.q = e, []

    def add(self, tag):
        self.q.append(tag)
        assert len(self.q) <= 63

    def wait(self, tag):
        if tag not in self.q:
            return
        last = len(self.q) - 1 - self.q[::-1].index(tag)
        self.e("s_waitcnt vmcnt(%d)" % (len(self.q) - 1 - last))
        self.q = self.q[last + 1:]


def staged_load(e, chunks, ptrs, srds, swz_bits, dma_k, lane_f, row_lane, blk_xor_wave, reads, side=None, pre=None, nslot=3):
    AD, AR = 16, 20
    TT = 28
    seq = OPT.get("seq", 1)
    S_LB, S_GB = 28, 3
    if seq:
        e("v_lshrrev_b32 %s, 4, v0" % v(TT))
        e("v_and_b32 %s, 15, v0" % v(AD))
        e("v_lshlrev_b32 %s, 4, %s" % (v(AD), v(AD)))
        e("v_lshl_add_u32 %s, %s, 13, %s" % (v(AD), v(TT), v(AD)))
        e("v_bfe_u32 %s, v0, 4, %d" % (v(TT + 1), swz_bits))
        e("v_lshlrev_b32 %s, 5, %s" % (v(TT + 1), v(TT + 1)))
        e("v_xor_b32 %s, %s, %s" % (v(AD), v(AD), v(TT + 1)))
        e("v_and_b32 %s, %d, v0" % (v(TT + 1), dma_k(3)))
        e("v_xor_b32 %s, %s, %s" % (v(AD), v(AD), v(TT + 1)))
        e("s_lshl_b32 %s, %s, 10" % (s(S_LB), s(S_WAVE)))
    else:
        e("v_lshrrev_b32 %s, 6, v0" % v(TT))
        e("v_bfe_u32 %s, v0, 4, 2" % v(TT + 1))
        e("v_lshl_add_u32 %s, %s, 5, %s" % (v(TT), v(TT), v(TT + 1)))
        e("v_and_b32 %s, 15, v0" % v(AD))
        e("v_lshlrev_b32 %s, 4, %s" % (v(AD), v(AD)))
        e("v_lshl_add_u32 %s, %s, 13, %s" % (v(AD), v(TT), v(AD)))
        e("v_bfe_u32 %s, v0, 4, %d" % (v(TT + 1), swz_bits))
        e("v_lshlrev_b32 %s, 5, %s" % (v(TT + 1), v(TT + 1)))
        e("v_xor_b32 %s, %s, %s" % (v(AD), v(AD), v(TT + 1)))
        for k in range(1, 4):
            e("v_xor_b32 %s, %d, %s" % (v(AD + k), dma_k(k), v(AD)))
        e("s_add_u32 %s, %s, 1" % (s(S_LB), s(S_WAVE)))
        e("s_lshl_b32 %s, %s, 15" % (s(S_LB), s(S_LB)))
    e("s_lshl_b32 %s, %s, 8" % (s(S_GB), s(S_H)))
    q = VmQ(e)
    built = set()

    def dma(c):
        m, ci = chunks[c]
        if m not in built:
            srd(e, srds[m], ptrs[m], 512 * 4096 * 2)
            built.add(m)
        for i in range(8):
            if seq:
                e("s_add_u32 m0, %s, %d" % (s(S_LB), (((i >> 1) + 1) << 15) + (c % nslot) * 8192 + (i & 1) * 4096))
                e("s_add_u32 %s, %s, 0x%x" % (s(S_T1), s(S_GB), (128 * ci + 16 * i) * 8192))
            else:
                e("s_add_u32 m0, %s, %d" % (s(S_LB), (c % nslot) * 8192 + i * 1024))
                e("s_add_u32 %s, %s, 0x%x" % (s(S_T1), s(S_GB), (128 * ci + 4 * i) * 8192))
            e("buffer_load_dwordx4 %s, %s, %s offen%s lds" % (v(AD + (0 if seq else i & 3)), s(srds[m], 4), s(S_T1), OPT.get("cnt", "") if blk_xor_wave else OPT.get("wnt", "")))
            q.add(("c", c))
    lead = OPT.get("lead", 0) if blk_xor_wave else 0
    TL = 29
    S_TR = 91

    def touch(c):
        if c >= len(chunks):
            return
        m, ci = chunks[c]
        if m not in built:
            srd(e, srds[m], ptrs[m], 512 * 4096 * 2)
            built.add(m)
        e("s_add_u32 %s, %s, 0x%x" % (s(S_T1), s(S_MB), 128 * ci * 8192))
        e("buffer_load_dword %s, %s, %s, %s offen" % (v(JUNK), v(TL), s(srds[m], 4), s(S_T1)))
        q.add(("t", c))
    if lead:
        e("v_and_b32 %s, 63, v0" % v(TL))
        e("v_lshlrev_b32 %s, 7, %s" % (v(TL), v(TL)))
        e("s_lshl_b32 %s, %s, 2" % (s(S_MB), s(S_H)))
        e("s_add_u32 %s, %s, %s" % (s(S_MB), s(S_MB), s(S_WAVE)))
        e("s_lshl_b32 %s, %s, 13" % (s(S_MB), s(S_MB)))
        for c in range(nslot + lead):
            touch(c)
    for c in range(nslot):
        dma(c)
    TT = 30
    lin(e, AR, {0: 8, 1: 16, **{k: c * 256 for k, c in row_lane.items()}})
    lin(e, TT, lane_f)
    lin(e, TT + 1, {6: 64, 7: 128})
    e("v_xor_b32 %s, %s, %s" % (v(TT), v(TT), v(TT + 1)))
    e("v_add_u32 %s, %s, %s" % (v(TT), v(TT), v(AR)))
    for k in range(4):
        if blk_xor_wave:
            e("s_xor_b32 %s, %s, %d" % (s(S_T0), s(S_WAVE), k))
            e("s_add_u32 %s, %s, 1" % (s(S_T0), s(S_T0)))
            e("s_lshl_b32 %s, %s, 15" % (s(S_T0), s(S_T0)))
            e("v_add_u32 %s, %s, %s" % (v(AR + 2 * k), s(S_T0), v(TT)))
        else:
            e("v_add_u32 %s, 0x%x, %s" % (v(AR + 2 * k), (k + 1) << 15, v(TT)))
        e("v_xor_b32 %s, 32, %s" % (v(AR + 2 * k + 1), v(AR + 2 * k)))
    if pre:
        pre(q)
    for c, (m, ci) in enumerate(chunks):
        if side:
            side(c, q)
        q.wait(("c", c))
        e("s_barrier")
        for n_, (dst, k, T, ro) in enumerate(reads(m, ci)):
            if n_ == 12:
                e("s_waitcnt lgkmcnt(4)")
            e("ds_read_b64_tr_b16 %s, %s offset:%d" % (dst, v(AR + 2 * k + T), (c % nslot) * 8192 + ro * 256))
        e("s_waitcnt lgkmcnt(0)")
        e("s_barrier")
        if lead:
            touch(c + nslot + lead)
        if c + nslot < len(chunks):
            dma(c + nslot)
    return q


HOLD = {op: 32 + 8 * i for i, op in enumerate(o for o in LDS_OPS if o[0] != "O")}


def load_weights(e, P_WQ, P_WK, P_WV, P_WO, pre=None, mid=None):
    e.comment("---- load weight operands: Wq/Wk/Wv by LDS-DMA + transposing reads, Wo by dword loads + v_perm")
    VOFO = FREE1
    RING, TMP8 = 32, 120
    ptr = {"Q": P_WQ, "K": P_WK, "V": P_WV, "O": P_WO}
    SRDS = {"Q": 96, "K": 88, "V": 60, "O": 92}
    S_OB = 29

    def pre2(q):
        lin(e, VOFO, {0: 4, 1: 8, 2: 16, 3: 32, 4: 2 * 1024, 5: 4 * 1024, 6: 256, 7: 512})
        srd(e, SRDS["O"], ptr["O"], 512 * 4096 * 2)
        e("s_lshl_b32 %s, %s, 17" % (s(S_OB), s(S_H)))
        o_issue(0, q)
        pre(q)

    def reads(m, ci):
        tau, hi = ci >> 1, ci & 1
        out = []
        for k in range(4):
            u = 2 * k + tau
            for T in range(2):
                op = (m, T, u)
                for pr in range(2):
                    if op in HOLD:
                        dst = v(HOLD[op] + 4 * hi + 2 * pr, 2)
                    else:
                        kind, r = RES[op]
                        dst = (a if kind == "a" else v)(r + 4 * hi + 2 * pr, 2)
                    out.append((dst, k, T, 2 * pr))
        return out

    GORD = [7, 5, 3, 6, 4, 2, 1, 0]

    def o_issue(gi, q):
        g = GORD[gi]
        u = g >> 1
        base = (32, 48, 80)[gi % 3]
        e("s_xor_b32 %s, %s, %d" % (s(S_T0), s(S_WAVE), u))
        e("s_lshl_b32 %s, %s, 15" % (s(S_T0), s(S_T0)))
        e("s_add_u32 %s, %s, %s" % (s(S_T0), s(S_T0), s(S_OB)))
        for k in range(2):
            qq = 2 * (g & 1) + k
            for pr in range(4):
                for b in range(2):
                    row = 16 * b + 8 * (pr >> 1) + (pr & 1)
                    e("s_add_u32 %s, %s, 0x%x" % (s(S_T1), s(S_T0), row * 1024 + qq * 64))
                    e("buffer_load_dword %s, %s, %s, %s offen%s" % (v(base + k * 8 + pr * 2 + b), v(VOFO), s(SRDS["O"], 4), s(S_T1), OPT.get("ont", "")))
                    q.add(("o", g))

    def o_consume(gi, q):
        g = GORD[gi]
        q.wait(("o", g))
        base = (32, 48, 80)[gi % 3]
        for k in range(2):
            op = ("O", 2 * (g & 1) + k, g >> 1)
            dst = TMP8 if op in LDS_OPS else RES[op][1]
            assert op in LDS_OPS or RES[op][0] == "v"
            for pr in range(4):
                for hf in range(2):
                    e("v_perm_b32 %s, %s, %s, %s" % (v(dst + 2 * pr + hf), v(base + k * 8 + 2 * pr + 1), v(base + k * 8 + 2 * pr), s(S_PHI if hf else S_PLO)))
            if op in LDS_OPS:
                off = LDS_SLOT[op] * 2048
                assert off >= 24576
                e("ds_write_b128 %s, %s offset:%d" % (v(C_WL), v(TMP8, 4), off))
                e("ds_write_b128 %s, %s offset:%d" % (v(C_WL), v(TMP8 + 4, 4), off + 1024))
                e("s_waitcnt lgkmcnt(0)")

    def side(c, q):
        if 2 <= c < 10 and not OPT.get("noo"):
            o_consume(c - 2, q)
        if 1 <= c < 8 and not OPT.get("noo"):
            o_issue(c, q)
        early_start(e, c, q)

    chunks = [(m, ci) for m in "VKQ" for ci in range(4)]
    staged_load(e, chunks, ptr, SRDS, 1, lambda k: k << 6, {2: 32, 4: 64, 3: 128}, {5: 16, 3: 8, 4: 4, 2: 1}, True, reads, side, pre2, OPT.get("nslot", 3))
    for op, r in HOLD.items():
        off = LDS_SLOT[op] * 2048
        e("ds_write_b128 %s, %s offset:%d" % (v(C_WL), v(r, 4), off))
        e("ds_write_b128 %s, %s offset:%d" % (v(C_WL), v(r + 4, 4), off + 1024))
        if LDS_SLOT[op] % 4 == 3:
            e("s_waitcnt lgkmcnt(0)")
    e("s_waitcnt lgkmcnt(0)")


def setup_consts(e):
    T1, T2 = 104, 105
    AM = 100
    lin(e, C_IDX, {1: 0xEEEE - 0x4444}, 0x4444)
    lin(e, C_L16, {k: 16 << k for k in range(6)})
    lin(e, C_MW, {**{k: 16 << k for k in range(6)}, 6: 2048, 7: 4096})
    lin(e, C_WL, {**{k: 16 << k for k in range(6)}, 6: 32768, 7: 65536}, L_WL)
    lin(e, C_QW, {0: 4, 1: 8, 2: 16, 3: 32, 4: 2 * RS * 4, 5: 4 * RS * 4, 6: 64, 7: 128}, L_QX)
    lin(e, C_QR, {0: RS * 4, 2: 2 * RS * 4, 3: 4 * RS * 4, 4: 16, 5: 32}, L_QX)
    e("v_add_u32 %s, %d, %s" % (v(C_KW), L_KMX - L_QX, v(C_QW)))
    e("v_xor_b32 %s, 0x1000, %s" % (v(C_X2), v(C_MW)))
    lin(e, T1, {3: 1, 4: 2, 5: 4, 6: 8, 7: 16})
    e("v_add_u32 %s, %s, %s" % (v(T1), s(S_H), v(T1)))
    e("v_and_b32 %s, 31, %s" % (v(T1), v(T1)))
    e("v_lshlrev_b32 %s, 6, %s" % (v(T1), v(T1)))
    lin(e, C_PW, {0: 8, 1: 16, 2: 32, 3: 8192, 4: 2 * 8192, 5: 4 * 8192, 6: 8 * 8192, 7: 16 * 8192}, PB_OFF)
    e("v_add_u32 %s, %s, %s" % (v(C_PW), v(C_PW), v(T1)))
    mp_addr(e, C_MP, T1, T2)
    lin(e, C_FL, {0: 16, 1: 8, 2: 32, 3: 64, 4: 128, 5: 256, 6: 2048, 7: 4096})
    e("s_lshl_b32 %s, %s, 13" % (s(S_PR), s(S_H)))
    e("s_add_u32 %s, %s, 0x%x" % (s(S_PR), s(S_PR), PB_OFF))
    e("s_mov_b32 %s, 4096" % s(S_4K))
    e("v_and_b32 %s, 15, v0" % v(T1))
    for q in range(4):
        e("v_mov_b32 %s, 0" % v(AM + q))
        e("v_mov_b32 %s, 0x3f80" % v(T2))
        e("v_cmp_eq_u32 vcc, %d, %s" % (4 * q, v(T1)))
        e("v_cndmask_b32 %s, %s, %s, vcc" % (v(AM + q), v(AM + q), v(T2)))
        e("v_mov_b32 %s, 0x3f800000" % v(T2))
        e("v_cmp_eq_u32 vcc, %d, %s" % (4 * q + 1, v(T1)))
        e("v_cndmask_b32 %s, %s, %s, vcc" % (v(AM + q), v(AM + q), v(T2)))
    e("ds_write_b128 %s, %s offset:%d" % (v(C_L16), v(AM, 4), L_SEL))
    e("s_mov_b32 %s, 0x05040100" % s(S_PLO))
    e("s_mov_b32 %s, 0x07060302" % s(S_PHI))
    e("s_mov_b32 %s, 0x%x" % (s(S_SCALE), f32bits(128 ** -0.5 * 1.4426950408889634)))
    e("s_mov_b32 %s, 0x%x" % (s(S_BIG), f32bits(OPT.get('big', 2.0 ** 30))))
    e("s_mov_b32 %s, 0" % s(S_TMO))
    e("s_mov_b32 %s, 0x3f803f80" % s(S_ONES))
    e("s_mov_b32 %s, 0x3f803f80" % s(S_ONES + 1))
    e("s_lshl_b32 %s, %s, 14" % (s(S_T0), s(S_H)))
    e("s_lshr_b32 %s, %s, 1" % (s(S_T1), s(S_WAVE)))
    e("s_lshl_b32 %s, %s, 12" % (s(S_T1), s(S_T1)))
    e("s_add_u32 %s, %s, %s" % (s(S_KXO), s(S_T0), s(S_T1)))
    e("s_lshl_b32 %s, %s, 11" % (s(S_T1), s(S_WAVE)))
    e("s_add_u32 %s, %s, %s" % (s(S_VXO), s(S_T0), s(S_T1)))
    e("s_add_u32 %s, %s, 8192" % (s(S_VXO), s(S_VXO)))


def setup_pf(e):
    T1, T2 = 104, 105
    lin(e, T1, {0: 128, 1: 256, 2: 512, 3: 1024, 4: 2048, 6: 4096, 7: 8192})
    e("s_lshl_b32 %s, %s, 14" % (s(S_T0), s(S_H)))
    e("v_add_u32 %s, %s, %s" % (v(T1), s(S_T0), v(T1)))
    e("s_lshl_b32 %s, %s, 8" % (s(S_T0), s(S_H)))
    e("s_lshr_b32 %s, %s, 1" % (s(S_T1), s(S_WAVE)))
    e("s_lshl_b32 %s, %s, 7" % (s(S_T1), s(S_T1)))
    e("s_add_u32 %s, %s, %s" % (s(S_T0), s(S_T0), s(S_T1)))
    e("s_add_u32 %s, %s, 0x%x" % (s(S_T0), s(S_T0), SLAB_ST + MB_IN))
    e("v_and_b32 %s, 63, v0" % v(T0))
    e("v_mov_b32 %s, 0x%x" % (v(T2), OOB))
    e("v_cmp_lt_u32 vcc, 32, %s" % v(T0))
    e("v_cndmask_b32 %s, %s, %s, vcc" % (v(T1), v(T1), v(T2)))
    e("v_mov_b32 %s, %s" % (v(T2), s(S_T0)))
    e("v_cmp_eq_u32 vcc, 32, %s" % v(T0))
    e("v_cndmask_b32 %s, %s, %s, vcc" % (v(T1), v(T1), v(T2)))
    e("s_lshl_b32 %s, %s, 2" % (s(S_T0), s(S_H)))
    e("s_add_u32 %s, %s, 0x%x" % (s(S_T0), s(S_T0), SLAB_ST + FL_IN))
    e("v_mov_b32 %s, %s" % (v(T2), s(S_T0)))
    e("v_cmp_eq_u32 vcc, 33, %s" % v(T0))
    e("v_cndmask_b32 %s, %s, %s, vcc" % (v(C_PF), v(T1), v(T2)))


def mp_addr(e, dst, T1, T2):
    lin(e, dst, {0: 8, 1: 32, 4: 16, 5: 4, 6: 2048, 7: 4096}, MB_IN)
    e("v_mov_b32 %s, %s" % (v(T2), s(S_H)))
    lin(e, T1, {0: 256, 1: 64, 2: 128, 3: 512, 4: 1024}, src=T2)
    e("v_add_u32 %s, %s, %s" % (v(dst), v(T1), v(dst)))
    e("v_and_b32 %s, 12, v0" % v(T1))
    e("v_cmp_ne_u32 vcc, 0, %s" % v(T1))
    e("v_mov_b32 %s, 0x%x" % (v(T1), OOB))
    e("v_cndmask_b32 %s, %s, %s, vcc" % (v(dst), v(dst), v(T1)))


def mem0_load(e, P_MEM0, dst, T1, T2, TH, SR):
    srd(e, SR, P_MEM0, 8192)
    lin(e, T1, {0: 8, 1: 16, 2: 0x10000, 3: 0x10000, 4: 1024, 5: 4, 6: 64, 7: 128})
    e("v_mov_b32 %s, %s" % (v(TH), s(S_H)))
    lin(e, T2, {0: 32, 1: 2048, 2: 4096, 3: 256, 4: 512}, src=TH)
    e("v_add_u32 %s, %s, %s" % (v(T1), v(T1), v(T2)))
    e("buffer_load_dword %s, %s, %s, 0 offen" % (v(dst), v(T1), s(SR, 4)))


def init_fill(e, P_MEM0, MW, B, SR):
    M1, T1, T2, TH, MP, HP = B, B + 4, B + 5, B + 6, B + 7, B + 8
    ws = s(S_WS, 4)
    mem0_load(e, P_MEM0, HP, T1, T2, TH, SR)
    for k in range(4):
        e("v_mov_b32 %s, -1" % v(M1 + k))

    def fill8k(so):
        e("buffer_store_dwordx4 %s, %s, %s, %s offen sc1" % (v(M1, 4), v(MW), ws, s(so)))
        e("buffer_store_dwordx4 %s, %s, %s, %s offen offset:1024 sc1" % (v(M1, 4), v(MW), ws, s(so)))
    e("s_lshl_b32 %s, %s, 13" % (s(S_T0), s(S_H)))
    e("s_add_u32 %s, %s, 0x%x" % (s(S_T0), s(S_T0), PB_OFF))
    fill8k(S_T0)
    e("s_lshl_b32 %s, %s, 14" % (s(S_T0), s(S_H)))
    e("s_add_u32 %s, %s, 0x%x" % (s(S_T0), s(S_T0), HIST_OFF))
    e("s_add_u32 %s, %s, 0x2000" % (s(S_T1), s(S_T0)))
    fill8k(S_T0); fill8k(S_T1)
    e("s_mul_i32 %s, %s, 0x%x" % (s(S_T0), s(S_H), 2 * SLAB_ST))
    e("s_add_u32 %s, %s, 0x%x" % (s(S_T0), s(S_T0), SLAB_OFF + SLAB_ST + MB_IN + (0x4000000 if OPT.get("solo") else 0)))
    e("s_add_u32 %s, %s, 0x%x" % (s(S_T1), s(S_T0), SLAB_ST))
    fill8k(S_T0); fill8k(S_T1)
    e("v_lshlrev_b32 %s, 2, v0" % v(T1))
    e("s_lshl_b32 %s, %s, 10" % (s(S_T0), s(S_H)))
    for base in (FLAG_OFF + 0x4000, 0x1B0000, 0x1B8000):
        e("s_add_u32 %s, %s, 0x%x" % (s(S_T1), s(S_T0), base))
        e("buffer_store_dword %s, %s, %s, %s offen sc1" % (v(M1), v(T1), ws, s(S_T1)))
    e("v_mov_b32 %s, 0x%x" % (v(T2), OOB))
    e("v_cmp_lt_u32 vcc, 63, v0")
    e("v_cndmask_b32 %s, %s, %s, vcc" % (v(T1), v(T1), v(T2)))
    e("v_mov_b32 %s, %d" % (v(M1 + 9), 0 if OPT.get("kvflags", 1) else 1))
    e("s_lshl_b32 %s, %s, 8" % (s(S_T0), s(S_H)))
    e("s_add_u32 %s, %s, 0x%x" % (s(S_T1), s(S_T0), FLAG_OFF + 0x2000))
    e("buffer_store_dword %s, %s, %s, %s offen sc1" % (v(M1 + 9), v(T1), ws, s(S_T1)))
    e("s_mul_i32 %s, %s, 0x%x" % (s(S_T0), s(S_H), 2 * SLAB_ST))
    e("s_add_u32 %s, %s, 0x%x" % (s(S_T0), s(S_T0), SLAB_OFF + FL_IN))
    e("s_add_u32 %s, %s, 0x%x" % (s(S_T1), s(S_T0), SLAB_ST))
    e("buffer_store_dword %s, %s, %s, %s offen sc1" % (v(M1 + 9), v(T1), ws, s(S_T0)))
    e("buffer_store_dword %s, %s, %s, %s offen sc1" % (v(M1 + 9), v(T1), ws, s(S_T1)))
    if OPT.get("push"):
        e("v_mov_b32 %s, 0" % v(TH))
        e("s_lshl_b32 %s, %s, 8" % (s(S_T0), s(S_H)))
        e("s_add_u32 %s, %s, 0x%x" % (s(S_T0), s(S_T0), SYNC_OFF))
        e("buffer_store_dword %s, %s, %s, %s offen sc1" % (v(TH), v(T1), ws, s(S_T0)))
    mp_addr(e, MP, T1, T2)
    e("s_waitcnt vmcnt(16)")
    e("s_mov_b32 %s, 0x%x" % (s(S_T0), SLAB_OFF))
    e("buffer_store_dword %s, %s, %s, %s offen sc1" % (v(HP), v(MP), ws, s(S_T0)))


def ready_publish(e, T1, T2):
    e("s_waitcnt vmcnt(0)")
    e("s_barrier")
    e("v_mov_b32 %s, 1" % v(T1))
    e("s_lshl_b32 %s, %s, 2" % (s(S_T1), s(S_H)))
    e("v_lshlrev_b32 %s, 20, v0" % v(T2))
    e("buffer_store_dword %s, %s, %s, %s offen sc1" % (v(T1), v(T2), s(S_DBG, 4), s(S_T1)))


def xcc_publish(e, q):
    T1, T2 = 30, 31
    e("s_getreg_b32 %s, hwreg(HW_REG_XCC_ID)" % s(S_T0))
    e("s_and_b32 %s, %s, 15" % (s(S_T0), s(S_T0)))
    e("s_or_b32 %s, %s, 0x100" % (s(S_T0), s(S_T0)))
    e("v_mov_b32 %s, %s" % (v(T1), s(S_T0)))
    e("s_lshl_b32 %s, %s, 2" % (s(S_T1), s(S_H)))
    e("v_lshlrev_b32 %s, 20, v0" % v(T2))
    e("buffer_store_dword %s, %s, %s, %s offen offset:128 sc1" % (v(T1), v(T2), s(S_DBG, 4), s(S_T1)))
    q.add("hs")


S_MODE = 41


def early_start(e, c, q):
    T1, T2 = 30, 31
    ws = s(S_WS, 4)
    hsl = "buffer_load_dword %s, %s, %s, 0 offen sc1" % (v(T1), v(T2), s(S_DBG, 4))
    pfi = lambda: e("buffer_load_dword %s, %s, %s, %s offen sc1" % (v(JUNK), v(C_PF), ws, s(S_MB)))
    if c == 8:
        e("v_lshrrev_b32 %s, 2, %s" % (v(T2), v(C_L16)))
        e(hsl)
        q.add("hs2")
    if c == 9:
        e.comment("---- buffers initialised (debug[0..31]) and all 32 chain workgroups reported their XCC id (debug[32..63]);")
        q.wait("hs2")
        e("s_mov_b32 %s, 1" % s(S_MODE))
        e.label("L_HS")
        e("v_cmp_eq_u32 vcc, 0, %s" % v(T1))
        e("s_cbranch_vccz L_HS_ok")
        e(hsl)
        e("s_add_u32 %s, %s, 1" % (s(S_TMO), s(S_TMO)))
        e("s_cmp_gt_u32 %s, %d" % (s(S_TMO), TMO_LIMIT))
        e("s_waitcnt vmcnt(0)")
        e("s_cbranch_scc0 L_HS")
        e("s_branch L_HS_done")
        e.label("L_HS_ok")
        e("v_readlane_b32 %s, %s, 63" % (s(S_T0), v(T1)))
        e("v_cmp_ne_u32 vcc, %s, %s" % (s(S_T0), v(T1)))
        e("s_nop 1")
        e("s_cmp_lg_u32 vcc_hi, 0")
        e("s_cselect_b32 %s, 1, %d" % (s(S_MODE), OPT.get("forceslow", 0)))
        e.label("L_HS_done")
        e("s_mov_b32 %s, 0x%x" % (s(S_MB), SLAB_OFF - SLAB_ST))
        pfi()
        q.add("pf0")
    if c == 11:
        q.wait("pf0")
        e.label("L_F0")
        e("v_readlane_b32 %s, %s, 33" % (s(S_T0), v(JUNK)))
        e("s_nop 1")
        e("s_cmp_lg_u32 %s, 0" % s(S_T0))
        e("s_cbranch_scc1 L_F0_ok")
        pfi()
        e("s_add_u32 %s, %s, 1" % (s(S_TMO), s(S_TMO)))
        e("s_cmp_gt_u32 %s, %d" % (s(S_TMO), TMO_LIMIT))
        e("s_waitcnt vmcnt(0)")
        e("s_cbranch_scc0 L_F0")
        e.label("L_F0_ok")
        e("s_mov_b32 %s, 0x%x" % (s(S_MB), SLAB_OFF))
        pfi()
        q.add("pf1")


def smf_ins(acc, aop, op):
    return "v_smfmac_f32_16x16x64_bf16 %s, %s, %s, %s" % (v(acc, 4), v(aop, 4), opreg(op), v(C_IDX))


def stamp(e, i, on):
    if on:
        e("s_memtime %s" % s(S_ST + 2 * i, 2))


am = lambda u: AM + 4 * u


def idle_prep_ins():
    out = []
    for op in (("Q", 0, 0), ("Q", 1, 0), ("Q", 0, 1), ("Q", 1, 1), ("K", 0, 0), ("K", 1, 0)):
        out += lds_fetch_ins(op)
    z = ["v_mov_b64 %s, 0" % v(r, 2) for r in range(ACCQ, ACCQ + 24, 2)]
    return out, z


def delay(e, cyc):
    n = cyc // 4
    while n > 0:
        k = min(n, 16)
        e("s_nop %d" % (k - 1))
        n -= k


def main_loop(e, tag, sc, nsteps, stamps=False):
    L = lambda n: "L_%s_%s" % (tag, n)
    ws = s(S_WS, 4)
    solo = OPT.get("solo")
    trace = OPT.get("trace")
    acc = {"Q": ACCQ, "K": ACCK, "V": ACCV}
    S = lambda m, T, u: smf_ins(acc[m] + 4 * T, am(u), (m, T, u))
    Q = lambda T, u: S("Q", T, u)
    K = lambda T, u: S("K", T, u)
    V = lambda T, u: S("V", T, u)
    lg = lambda n: "s_waitcnt lgkmcnt(%d)" % n
    BAR = "s_barrier"
    add = lambda b, r: "v_add_f32 %s, %s, %s" % (v(b + r), v(b + r), v(b + r + 2))
    cvt = lambda d, x, y: "v_cvt_pk_bf16_f32 %s, %s, %s" % (v(d), v(x), v(y))
    ex = lambda r: "v_exp_f32 %s, %s" % (v(r), v(r))
    mf32 = lambda d, A, B, first: "v_mfma_f32_16x16x32_bf16 %s, %s, %s, %s" % (v(d, 4), v(A, 4), v(B, 4), "0" if first else v(d, 4))
    mf16 = lambda d, A, B: "v_mfma_f32_16x16x16_bf16 %s, %s, %s, %s" % (v(d, 4), v(A, 2), v(B, 2), v(d, 4))

    def run(sched, extra=None):
        for i_, (m_, rest) in enumerate(sched):
            e(m_)
            for x in (extra or {}).get(i_, []) + rest:
                if x.endswith(":"):
                    e.label(x[:-1])
                else:
                    e(x)
    e.label(L("start"))
    e("s_mov_b32 %s, 0" % s(S_STEP))
    e("s_mov_b32 %s, 0x%x" % (s(S_SLAB), SLAB_OFF))
    e("s_mov_b32 %s, 0" % s(S_PAR))
    e("s_mov_b32 %s, 0x%x" % (s(S_HIST), HIST_OFF - MB_IN))
    e("s_mov_b32 %s, 0x%x" % (s(S_OOB), OOB))
    if OPT.get("push"):
        e("s_add_u32 %s, %s, 0x%x" % (s(S_SY), s(S_WS), SYNC_OFF))
        e("s_addc_u32 %s, %s, 0" % (s(S_SY + 1), s(S_WS + 1)))
        e("s_mov_b32 %s, 4096" % s(S_SY + 2))
        e("s_mov_b32 %s, 0x20000" % s(S_SY + 3))
        e("s_lshl_b32 %s, %s, 7" % (s(S_FR), s(S_H)))
        e("s_lshl_b32 %s, %s, 2" % (s(S_FW), s(S_H)))
        e("s_cmp_eq_u32 %s, 3" % s(S_WAVE))
        e("s_cselect_b32 %s, %s, %s" % (s(S_FW), s(S_FW), s(S_OOB)))
    for u in (1, 2, 3):
        e("s_mov_b32 %s, 0x%x" % (s(S_U0 + u), u * 2048))
    e("s_mov_b32 %s, 0xcccccccc" % s(S_HM))
    e("s_mov_b32 %s, 0xcccccccc" % s(S_HM + 1))
    e("s_mov_b32 %s, 0" % s(S_SPIN))
    f, z = idle_prep_ins()
    for t in f + z:
        e(t)
    mldp = lambda P: ["buffer_load_dwordx4 %s, %s, %s, %s offen sc1" % (v(P, 4), v(C_MW), ws, s(S_MB)),
                      "buffer_load_dwordx4 %s, %s, %s, %s offen offset:1024 sc1" % (v(P + 4, 4), v(C_MW), ws, s(S_MB))]
    mld = mldp(AM)
    e("s_add_u32 %s, %s, 0x%x" % (s(S_MB), s(S_SLAB), MB_IN))
    for t in mld:
        e(t)
    e("s_waitcnt vmcnt(2)")
    if OPT.get("al"):
        e.raw(".p2align %d" % OPT["al"])
    for _ in range(OPT.get("pad", 0)):
        e("s_nop 0")
    e.label(L("step"))
    e("v_readlane_b32 %s, %s, 33" % (s(S_T0), v(JUNK)))
    e("s_add_u32 %s, %s, 0x%x" % (s(S_SLABN), s(S_SLAB), SLAB_ST))
    e("s_cmp_eq_u32 %s, 0" % s(S_T0))
    e("s_cbranch_scc1 %s" % L("refresh"))
    e.label(L("fresh"))
    e("s_add_u32 %s, %s, %s" % (s(S_KX), s(S_SLAB), s(S_KXO)))
    e("s_add_u32 %s, %s, %s" % (s(S_VX), s(S_SLAB), s(S_VXO)))
    e("s_xor_b32 %s, %s, 1" % (s(S_NPAR), s(S_PAR)))
    e("s_add_u32 %s, %s, 1" % (s(S_NEXT), s(S_STEP)))
    if OPT.get("push"):
        e("s_mov_b32 %s, %s" % (s(S_NX2), s(S_NEXT)))
        e("v_mov_b32 %s, %s" % (v(FREE1), s(S_NEXT)))
    tr = 2
    if OPT.get("m3"):
        tr = 4
        delay(e, OPT.get("pm0", 0))
        for x in mld:
            e(x)
    ns = OPT.get("ns", 0)
    if ns:
        e("s_cmp_lt_u32 %s, %d" % (s(S_WAVE), ns))
        e("s_cbranch_scc1 %s" % L("onem"))
    delay(e, OPT.get("pm", 64) - (24 if ns else 0))
    e.label(L("retrym"))
    for x in mld:
        e(x)
    e.label(L("prem"))
    e("s_add_u32 %s, %s, 1" % (s(S_TMO), s(S_TMO)))
    e("s_cmp_gt_u32 %s, %d" % (s(S_TMO), TMO_LIMIT))
    e("s_cselect_b32 %s, -1, -2" % s(S_LIM))
    e("v_xor_b32 %s, 0x800, %s" % (v(am(3)), v(C_MW)))
    e("v_xor_b32 %s, 0x1800, %s" % (v(am(7)), v(C_MW)))
    for x in z[:4]:
        e(x)
    e.label(L("waitm"))
    e("s_waitcnt vmcnt(%d) lgkmcnt(0)" % (1 + tr))
    e.label(L("gotm"))
    stamp(e, 0, stamps)
    T1 = am(2)
    mw = ["ds_write_b128 %s, %s offset:%d" % (v(C_MW), v(am(k), 4), L_MEMI + 1024 * k) for k in range(2)]
    PK = ACCK
    pst = lambda q: "buffer_store_dwordx2 %s, %s, %s, %s offen offset:%d%s" % (v(PK + 2 * q, 2), v(C_PW), ws, "0" if q < 2 else s(S_4K), (q & 1) * 2048, sc or OPT.get("pstf", ""))
    tg = lambda q: "v_and_or_b32 %s, %s, -2, %s" % (v(PK + 2 * q), v(PK + 2 * q), s(S_TAG))
    kx = lambda ks: "buffer_load_dwordx4 %s, %s, %s, %s offen offset:%d sc1" % (v(XB + 4 * ks, 4), v(C_L16), ws, s(S_KX), ks * 1024)
    vx = lambda T: "buffer_load_dwordx4 %s, %s, %s, %s offen offset:%d sc1" % (v(VX + 4 * T, 4), v(C_L16), ws, s(S_VX), T * 1024)
    amrd = lambda u: "ds_read_b128 %s, %s offset:%d" % (v(am(u), 4), v(C_X2 if u >> 1 == 2 else am(u | 1)), L_MEMI + (u & 1) * 1024)
    q7 = lds_fetch_ins(("Q", 0, 7)) + lds_fetch_ins(("Q", 1, 7))
    k2 = lds_fetch_ins(("K", 0, 2)) + lds_fetch_ins(("K", 1, 2))
    k7 = lds_fetch_ins(("K", 0, 7)) + lds_fetch_ins(("K", 1, 7))
    of = sum([lds_fetch_ins(op) for op in OLDS], [])
    qbrd = lambda ks: "ds_read_b128 %s, %s offset:%d" % (v(QB + 4 * ks, 4), v(C_QR), 64 * ks)
    KM = XA
    kmrd = lambda ks: "ds_read_b128 %s, %s offset:%d" % (v(KM + 4 * ks, 4), v(C_QR), L_KMX - L_QX + 64 * ks)
    SX, SM = ACCQ, ACCQ + 4
    ONES, PX, PM, VM0, VM1 = XB, XB + 4, XB + 8, XB + 10, XB + 12
    TA = XB + 14
    LS, OA, OP = SX, ACCK, SM
    smx = lambda ks: mf32(SX, XB + 4 * ks, QB + 4 * ks, ks == 0)
    smm = lambda ks: mf32(SM, KM + 4 * ks, QB + 4 * ks, ks == 0)
    pf = "buffer_load_dword %s, %s, %s, %s offen sc1" % (v(JUNK), v(C_PF), ws, s(S_SLABN))
    hist = "buffer_store_dword %s, %s, %s, %s offen sc1" % (v(HPEND), v(C_MP), ws, s(S_HIST))
    zw = ["v_mov_b64 %s, 0" % v(r, 2) for r in range(AM, AM + 16, 2)]
    OOP = AM + 12
    o64 = OPT.get("o64", 1)
    if o64:
        oad = ["v_bitop3_b32 %s, %s, %s, -9 bitop3:0x28" % (v(OOP + 4 * u), v(C_FL), s(S_U0 + u)) for u in (1, 2, 3)]
    else:
        oad = ["v_xor_b32 %s, 0x%x, %s" % (v(OOP + 4 * u), u * 2048, v(C_MW)) for u in (1, 3)]
    L_OE = L_PX + 1024
    mx3 = lambda d, x, y, z_: "v_max3_u32 %s, %s, %s, %s" % (v(d), v(x), v(y), v(z_))
    mov0 = lambda r: "v_mov_b32 %s, 0" % v(r)
    qs = lambda r: "v_mul_f32 %s, %s, %s" % (v(ACCQ + r), s(S_SCALE), v(ACCQ + r))
    push = OPT.get("push", 0) and not solo
    F0, FA, FS = AM + 28, AM + 29, AM + 30
    fst = "buffer_store_dword %s, %s, %s, %s offen%s" % (v(FREE1), v(FS), s(S_SY, 4), s(S_FW), sc)
    fld = "buffer_load_dword %s, %s, %s, %s offen sc1" % (v(F0), v(FA), s(S_SY, 4), s(S_FR))
    fw = OPT.get("fw", 2)
    fsc = "v_lshlrev_b32 %s, 3, %s" % (v(FS), v(C_L16))
    ex0 = {}
    if push and fw < 0:
        ex0 = {62 + fw: [fst]}
    early = OPT.get("early", 1)
    e(mx3(T0, AM, AM + 1, AM + 2))
    e("v_max_u32 %s, %s, %s" % (v(T0), v(T0), v(AM + 3)))
    run([
        (Q(0, 0), ["s_waitcnt vmcnt(%d)" % tr, mx3(T0, T0, AM + 4, AM + 5)]),
        (Q(1, 0), [mx3(T0, T0, AM + 6, AM + 7), "v_cmp_lt_u32 vcc, %s, %s" % (s(S_LIM), v(T0))]),
        (Q(0, 1), [mw[0]] + ([] if solo else ["s_cbranch_vccnz %s" % L("retrym")])),
        (Q(1, 1), [mw[1]]),
        (K(0, 0), [kx(0), vx(0)] if early else [kx(0)]),
        (K(1, 0), [kx(1), vx(1)] if early else [kx(1)]),
        (K(0, 1), [kx(2), kx(3)] if early else [kx(2)]),
        (K(1, 1), [lg(0), BAR, amrd(2)]),
        (V(0, 0), [amrd(3)]),
        (V(1, 0), [pf] if early else [kx(3)]),
        (V(0, 1), [amrd(4)]),
        (V(1, 1), [amrd(5), lg(3)]),
        (Q(0, 2), [amrd(6)]),
        (Q(1, 2), [amrd(7), lg(4)]),
        (Q(0, 3), [q7[0]]),
        (Q(1, 3), [q7[1], lg(4)]),
        (Q(0, 4), [q7[2]]),
        (Q(1, 4), [q7[3], lg(4)]),
        (Q(0, 5), [] if early else [vx(0)]),
        (Q(1, 5), [k2[0]]),
        (Q(0, 6), [] if early else [vx(1)]),
        (Q(1, 6), [k2[1], lg(2)]),
        (Q(0, 7), [k2[2]]),
        (Q(1, 7), [k2[3]]),
        (K(0, 3), [k7[0], "s_nop 0"]),
        (K(1, 3), [k7[1], add(ACCQ, 0), add(ACCQ, 1)]),
        (K(0, 4), [k7[2], add(ACCQ + 4, 0), add(ACCQ + 4, 1), qs(0)]),
        (K(1, 4), [k7[3], qs(4), qs(1), qs(5)]),
        (K(0, 5), [lg(4), cvt(ACCQ + 2, ACCQ, ACCQ + 4), cvt(ACCQ + 3, ACCQ + 1, ACCQ + 5)]),
        (K(0, 2), ["ds_write2_b32 %s, %s, %s offset0:0 offset1:%d" % (v(C_QW), v(ACCQ + 2), v(ACCQ + 3), RS)]),
        (K(1, 2), [] if early else [pf]),
        (K(1, 5), []),
        (K(0, 6), [hist]),
        (K(1, 6), [lg(0), BAR]),
        (K(0, 7), [qbrd(0)]),
        (K(1, 7), [qbrd(1)]),
        (V(0, 2), [qbrd(2)]),
        (V(1, 2), [qbrd(3), "s_waitcnt vmcnt(2) lgkmcnt(3)"]),
        (smx(0), [lg(2), add(ACCK, 0), add(ACCK, 1)]),
        (smx(1), [lg(1), add(ACCK + 4, 0), add(ACCK + 4, 1)]),
        (smx(2), [lg(0), cvt(ACCK + 2, ACCK, ACCK + 4), cvt(ACCK + 3, ACCK + 1, ACCK + 5)]),
        (smx(3), ["ds_write2_b32 %s, %s, %s offset0:0 offset1:%d" % (v(C_KW), v(ACCK + 2), v(ACCK + 3), RS)]),
        (V(0, 3), ["v_mov_b64 %s, %s" % (v(ONES, 2), s(S_ONES, 2))]),
        (V(1, 3), ["s_nop 1", "v_mov_b64 %s, %s" % (v(ONES + 2, 2), s(S_ONES, 2))]),
        (V(0, 4), [ex(SX)]),
        (V(1, 4), [lg(0), BAR, ex(SX + 1)]),
        (V(0, 5), [kmrd(0), ex(SX + 2)]),
        (V(1, 5), [kmrd(1), ex(SX + 3)]),
        (V(0, 6), [kmrd(2), cvt(PX, SX, SX + 1), cvt(PX + 1, SX + 2, SX + 3)]),
        (V(1, 6), [kmrd(3), "ds_write_b64 %s, %s offset:%d" % (v(C_MW), v(PX, 2), L_PX), lg(4)]),
        (smm(0), [lg(3), mov0(PM + 1), mov0(VM0 + 1)]),
        (smm(1), [lg(2), mov0(VM1 + 1), zw.pop(0)]),
        (smm(2), [lg(1), zw.pop(0), zw.pop(0)]),
        (smm(3), [lg(0), BAR]),
        (V(0, 7), ["ds_read_b64 %s, %s offset:%d" % (v(PX + 2, 2), v(C_X2), L_PX), zw.pop(0)]),
        (V(1, 7), ([fsc] if push else []) + [zw.pop(0), zw.pop(0), ex(SM), ex(SM + 1), lg(0)]),
        (mf32(LS, ONES, PX, True), [cvt(PM, SM, SM + 1), add(ACCV, 0)]),
        (mf32(OA, VX, PX, True), [add(ACCV, 1), add(ACCV + 4, 0)]),
        (mf32(OA + 4, VX + 4, PX, True), [cvt(VM0, ACCV, ACCV + 1), add(ACCV + 4, 1)]),
        (mf16(LS, ONES, PM), [cvt(VM1, ACCV + 4, ACCV + 5), zw.pop(0)]),
        (mf16(OA, VM0, PM), [zw.pop(0), oad[0]]),
        (mf16(OA + 4, VM1, PM), oad[1:] + ["v_rcp_f32 %s, %s" % (v(TA), v(LS))]),
    ], ex0)
    assert not zw
    e("v_max_f32 %s, %s, %s" % (v(T0), v(TA), v(LS)))
    e("v_cmp_nge_f32 vcc, %s, %s" % (s(S_BIG), v(T0)))
    for r in (0, 2, 4, 6):
        e("v_pk_mul_f32 %s, %s, %s op_sel_hi:[1,0]" % (v(OA + r, 2), v(OA + r, 2), v(TA, 2)))
    for r in (0, 2, 1, 3):
        e(cvt(OP + r, OA + r, OA + 4 + r))
    if OPT.get("pflat"):
        e("s_memtime s[74:75]")
        e("s_waitcnt vmcnt(1)")
        e("s_memtime s[72:73]")
        e("s_waitcnt lgkmcnt(0)")
    e.label(L("rejoin"))
    if o64:
        for k in range(2):
            e("v_cndmask_b32 %s, %s, %s, %s" % (v(LS + 2 + k), v(OP + k), v(OP + 2 + k), s(S_HM, 2)))
        e("ds_write_b64 %s, %s offset:%d" % (v(C_FL), v(LS + 2, 2), L_OE))
    else:
        e("ds_write_b128 %s, %s offset:%d" % (v(C_MW), v(OP, 4), L_OE))
    WACC = AM
    SO = lambda q, u: smf_ins(WACC + 4 * q, OP if u == 0 else OOP + 4 * u, ("O", q, u))
    ord_ = lambda u: "ds_read_b128 %s, %s offset:%d" % (v(OOP + 4 * u, 4), v(C_X2 if u == 2 and not o64 else OOP + 4 * u), L_OE)
    SEL, RD = ACCV, ACCV + 4
    wc = lambda q, r: cvt(PK + 2 * q + r, WACC + 4 * q + r, WACC + 4 * q + 2 + r)
    extra = {}
    if push:
        extra = {fw: [fst]} if fw >= 0 else {}
        for pos in (OPT.get("fr", 7), OPT.get("fr2", 11), OPT.get("fr3", 14)):
            extra.setdefault(pos, []).append(fld)
    run([
        (SO(0, 0), ["v_bfe_u32 %s, %s, 2, 7" % (v(FA), v(C_L16)), mov0(F0)] if push else []),
        (SO(1, 0), [lg(0), BAR, ord_(1), ord_(2)] if OPT.get("b4", 1) else []),
        (SO(2, 0), [ord_(3)] if OPT.get("b4", 1) else [lg(0), BAR, ord_(1), ord_(2)]),
        (SO(3, 0), ([] if OPT.get("b4", 1) else [ord_(3)]) + [of[0], of[1], lg(4)]),
        (SO(0, 1), [of[2], lg(4)]),
        (SO(0, 2), [of[3], lg(4)]),
        (SO(0, 3), [of[4], "s_cmp_lg_u64 vcc, 0"]),
        (SO(1, 1), [of[5], "s_cselect_b32 %s, %s, %s" % (s(S_TAG), s(S_NPAR), s(S_PAR))]),
        (SO(1, 2), [of[6], wc(0, 0)] + ([wc(0, 1), tg(0)] if OPT.get("fs") else [])),
        (SO(1, 3), [pst(0)] if OPT.get("fs") else [of[7], wc(0, 1), tg(0)]),
        (SO(2, 1), [of[7]] if OPT.get("fs") else [pst(0)]),
        (SO(2, 2), [lg(4), "s_nop 0", wc(1, 0)]),
        (SO(2, 3), ["ds_read_b128 %s, %s offset:%d" % (v(SEL, 4), v(C_L16), L_SEL), wc(1, 1), tg(1)]),
        (SO(3, 1), [pst(1), lg(1)]),
        (SO(3, 2), ["s_nop 1", wc(2, 0)]),
        (SO(3, 3), ["s_nop 2", wc(2, 1), tg(2), pst(2), wc(3, 0), wc(3, 1), tg(3), pst(3)]),
    ], extra)
    e.label(L("stored"))
    stamp(e, 1, stamps)
    e("s_cmp_lg_u32 %s, %s" % (s(S_TAG), s(S_PAR)))
    e("s_cbranch_scc1 %s" % L("safe"))
    f, z = idle_prep_ins()
    n0 = OPT.get("n0", 12)
    PD = VX
    pld = lambda P: ["buffer_load_dwordx4 %s, %s, %s, %s offen sc1" % (v(P, 4), v(C_MW), ws, s(S_PR)),
                     "buffer_load_dwordx4 %s, %s, %s, %s offen offset:1024 sc1" % (v(P + 4, 4), v(C_MW), ws, s(S_PR))]
    pub = "buffer_store_dword %s, %s, %s, %s offen%s" % (v(HPEND), v(C_MP), ws, s(S_T0), sc)
    if push:
        e.label(L("sync"))
        e("v_cmp_gt_u32 vcc, %s, %s" % (s(S_NX2), v(F0)))
        e(fld)
        e("s_add_u32 %s, %s, 1" % (s(S_SPIN), s(S_SPIN)))
        e("s_cmp_le_u32 %s, %d" % (s(S_SPIN), TMO_LIMIT * 8))
        e("s_cselect_b32 %s, %s, 0" % (s(S_NX2), s(S_NX2)))
        e("s_waitcnt vmcnt(24)")
        delay(e, OPT.get("sper", 0))
        e("s_cbranch_vccnz %s" % L("sync"))
    for x in f[:n0]:
        e(x)
    delay(e, OPT.get("d1", 0))
    for q in range(1, 4):
        e("s_cmp_lt_u32 %s, %d" % (s(S_WAVE), q))
        e("s_cbranch_scc1 %s" % L("pollp"))
        delay(e, OPT.get("dp", 40))
    e.label(L("pollp"))
    stamp(e, 4, stamps and not OPT.get("pflat"))
    PB_ = AM + 16
    for x in pld(PD):
        e(x)
    for x in f[n0:] + z[4:8]:
        e(x)
    p1 = OPT.get("p1")
    if ns:
        e("s_cmp_lt_u32 %s, %d" % (s(S_WAVE), ns))
        e("s_cbranch_scc1 %s" % L("onep"))
    if not p1:
        delay(e, OPT.get("pp", 128) - (24 if ns else 0))
        for x in pld(PB_):
            e(x)
    e.label(L("prep"))
    e("s_add_u32 %s, %s, 0x%x" % (s(S_MB), s(S_SLABN), MB_IN))
    chk = lambda P: ["v_bitop3_b32 %s, %s, %s, %s bitop3:0x7e" % (v(T0), v(P), v(P + 2), s(S_PAR)),
                     "v_bitop3_b32 %s, %s, %s, %s bitop3:0x7e" % (v(FREE1), v(P + 4), v(P + 6), s(S_PAR)),
                     "v_bitop3_b32 %s, %s, %s, 1 bitop3:0xa8" % (v(T0), v(T0), v(FREE1)),
                     "v_cmp_ne_u32 vcc, 0, %s" % v(T0)]

    def finish():
        for rot in (8, 4):
            for r in (0, 1):
                e("v_add_f32_dpp %s, %s, %s row_ror:%d row_mask:0xf bank_mask:0xf" % (v(RD + r), v(RD + r), v(RD + r), rot))
        e(cvt(HPEND, RD, RD + 1))
        e(pub)

    def attempt(P, base):
        e("s_waitcnt vmcnt(%d) lgkmcnt(0)" % (base + 1))
        e(mf32(RD, SEL, P, True))
        e(chk(P)[0])
        e("s_waitcnt vmcnt(%d)" % base)
        e(mf32(RD, SEL, P + 4, False))
        for x in chk(P)[1:]:
            e(x)
        e("s_nop 2")
        e("s_cmp_eq_u64 vcc, 0")
        e("s_cselect_b32 %s, %s, %s" % (s(S_T0), s(S_HIST if solo else S_SLABN), s(S_OOB)))
        finish()
    attempt(PD, 0 if p1 else 2)
    if not solo:
        e("s_cbranch_scc1 %s" % L("gotp"))
        if p1:
            for x in pld(PB_):
                e(x)
            e(pub)
            delay(e, 96)
        e.label(L("retryp"))
        for x in pld(PD):
            e(x)
        attempt(PB_, 3)
        e("s_cbranch_scc1 %s" % L("gotp"))
        for x in pld(PB_):
            e(x)
        attempt(PD, 3)
        e("s_cbranch_scc1 %s" % L("gotp"))
        e("s_add_u32 %s, %s, 1" % (s(S_TMO), s(S_TMO)))
        e("s_cmp_le_u32 %s, %d" % (s(S_TMO), TMO_LIMIT))
        e("s_cbranch_scc1 %s" % L("retryp"))
        e("s_mov_b32 %s, %s" % (s(S_T0), s(S_SLABN)))
        e(pub)
    e.label(L("gotp"))
    stamp(e, 2, stamps)
    e("s_add_u32 %s, %s, 0x2000" % (s(S_HIST), s(S_HIST)))
    e("s_cmp_ge_u32 %s, %d" % (s(S_NEXT), nsteps))
    e("s_cbranch_scc1 %s" % L("last"))
    e("s_mov_b32 %s, %s" % (s(S_SLAB), s(S_SLABN)))
    e("s_mov_b32 %s, %s" % (s(S_STEP), s(S_NEXT)))
    e("s_mov_b32 %s, %s" % (s(S_PAR), s(S_NPAR)))
    for x in z[8:]:
        e(x)
    if trace:
        e("s_memrealtime s[100:101]")
        e("s_memtime s[70:71]")
        e("s_lshl_b32 s3, %s, 2" % s(S_H))
        e("s_add_u32 s3, s3, %s" % s(S_WAVE))
        e("s_lshl_b32 s3, s3, 6")
        e("s_add_u32 s3, s3, %s" % s(S_STEP))
        e("s_lshl_b32 s3, s3, 5")
        e("s_add_u32 s3, s3, 0x200000")
        e("s_waitcnt lgkmcnt(0)")
        for k, r in enumerate((64, 66, 68, 100, 70, 72, 74, S_TMO)):
            e("v_mov_b32 %s, %s" % (v(AM + 8 + k), s(r)))
        e("buffer_store_dwordx4 %s, off, %s, s3" % (v(AM + 8, 4), ws))
        e("buffer_store_dwordx4 %s, off, %s, s3 offset:16" % (v(AM + 12, 4), ws))
    delay(e, OPT.get("dm", 112) - (128 if trace else 0))
    if ns and OPT.get("dmx"):
        e("s_cmp_ge_u32 %s, %d" % (s(S_WAVE), ns))
        e("s_cbranch_scc1 %s" % L("firem"))
        delay(e, OPT.get("dmx"))
        e.label(L("firem"))
    stamp(e, 5, stamps and not OPT.get("pflat"))
    for x in mld:
        e(x)
    e("s_branch %s" % L("step"))
    e.label(L("last"))
    e(hist)
    e("s_branch %s" % L("done"))
    if ns:
        e.label(L("onem"))
        e("s_waitcnt vmcnt(0)")
        e("s_branch %s" % L("prem"))
        e.label(L("onep"))
        e("v_mov_b32 %s, %s" % (v(PB_), s(S_NPAR)))
        e("s_waitcnt vmcnt(0)")
        e("s_branch %s" % L("prep"))
    e.label(L("refresh"))
    e("buffer_load_dword %s, %s, %s, %s offen sc1" % (v(JUNK), v(C_PF), ws, s(S_SLAB)))
    e("s_add_u32 %s, %s, 1" % (s(S_TMO), s(S_TMO)))
    e("s_cmp_le_u32 %s, %d" % (s(S_TMO), TMO_LIMIT))
    e("s_waitcnt vmcnt(0)")
    e("s_cbranch_scc1 %s" % L("step"))
    e("s_branch %s" % L("fresh"))
    e.label(L("safe"))
    e.fence(12)
    e("s_waitcnt vmcnt(0) lgkmcnt(0)")
    e("s_barrier")
    W = AM
    for ks in range(4):
        e(qbrd(ks))
        e(kmrd(ks))
    e("s_xor_b32 %s, %s, 0x1000" % (s(S_T0), s(S_KXO)))
    e("s_add_u32 %s, %s, %s" % (s(S_T0), s(S_T0), s(S_SLAB)))
    for ks in range(4):
        e("buffer_load_dwordx4 %s, %s, %s, %s offen offset:%d sc1" % (v(W + 4 * ks, 4), v(C_L16), ws, s(S_KX), ks * 1024))
        e("buffer_load_dwordx4 %s, %s, %s, %s offen offset:%d sc1" % (v(W + 16 + 4 * ks, 4), v(C_L16), ws, s(S_T0), ks * 1024))
    e("s_waitcnt vmcnt(0) lgkmcnt(0)")
    S0, S1, S2 = ACCQ, ACCQ + 4, ACCK
    for (d, src) in ((S0, W), (S1, W + 16), (S2, XA)):
        for ks in range(4):
            e(mf32(d, src + 4 * ks, QB + 4 * ks, ks == 0))
    M0_, M1_ = W, W + 1
    e("v_max3_f32 %s, %s, %s, %s" % (v(M0_), v(S0), v(S0 + 1), v(S0 + 2)))
    e("v_max3_f32 %s, %s, %s, %s" % (v(M0_), v(M0_), v(S0 + 3), v(S1)))
    e("v_max3_f32 %s, %s, %s, %s" % (v(M0_), v(M0_), v(S1 + 1), v(S1 + 2)))
    e("v_max3_f32 %s, %s, %s, %s" % (v(M0_), v(M0_), v(S1 + 3), v(S2)))
    e("v_max_f32 %s, %s, %s" % (v(M0_), v(M0_), v(S2 + 1)))
    for sw in ("v_permlane16_swap_b32", "v_permlane32_swap_b32"):
        e("v_mov_b32 %s, %s" % (v(M1_), v(M0_)))
        e("%s %s, %s" % (sw, v(M0_), v(M1_)))
        e("v_max_f32 %s, %s, %s" % (v(M0_), v(M0_), v(M1_)))
    for r in [S0 + i for i in range(8)] + [S2, S2 + 1]:
        e("v_sub_f32 %s, %s, %s" % (v(r), v(r), v(M0_)))
        e(ex(r))
    for q in range(4):
        e(cvt(PX + q, S0 + 2 * q, S0 + 2 * q + 1))
    e(cvt(PM, S2, S2 + 1))
    e(mf32(LS, ONES, PX, True)); e(mf32(OA, VX, PX, True)); e(mf32(OA + 4, VX + 4, PX, True))
    e(mf16(LS, ONES, PM)); e(mf16(OA, VM0, PM)); e(mf16(OA + 4, VM1, PM))
    e("v_rcp_f32 %s, %s" % (v(TA), v(LS)))
    for r in range(8):
        e("v_mul_f32 %s, %s, %s" % (v(OA + r), v(OA + r), v(TA)))
    for r in range(4):
        e(cvt(OP + r, OA + r, OA + 4 + r))
    for r in range(AM, AM + 16):
        e(mov0(r))
    for x in oad:
        e(x)
    if push:
        e(fsc)
    e("s_mov_b64 vcc, 0")
    e("s_branch %s" % L("rejoin"))
    e.label(L("done"))
```

```python
from asmlib import Emitter, v, a, s
import struct

WS_BYTES = 0x10000000
PB_OFF = 0x0000000
SYNC_OFF = 0x0080000
HIST_OFF = 0x0100000
FLAG_OFF = 0x0190000
STAMP_OFF = 0x01A0000
SLAB_OFF = 0x1000000
SLAB_ST = 0x82100
MB_IN = 0x80000
FL_IN = 0x82000
OOB = 0x40000000

L_MEMI = 0
L_PX = 8192
RS = 72
L_QX = 16384
L_KMX = L_QX + 2304
L_OX = L_KMX + 2304
L_SEL = L_OX + 2048
L_WL = 32768
LDS_BYTES = 163840

S_WS = 8
S_W = 12
S_DBG = 16
S_H = 20
S_WAVE = 21
S_STEP = 22
S_SLAB = 23
S_SLABN = 24
S_KXO = 25
S_KX = 29
S_VX = 30
S_HIST = 31
S_TMO = 32
S_SCALE = 33
S_PLO = 34
S_PHI = 35
S_T0 = 36
S_T1 = 37
S_T2 = 38
S_VXO = 39
S_BIG = 40
S_PR = 6
S_MB = 7
S_4K = 26
S_PAR = 27
S_RDY = 62
S_NPAR = 28
S_TAG = 60
S_OOB = 61
S_FW = 88
S_FR = 89
S_NEXT = 90
S_SPIN = 91
S_LIM = 94
S_SY = 80
S_NX2 = 84
S_U0 = 95
S_HM = 92
S_W3 = 95
S_ONES = 4
S_PTR = 44
S_ST = 64

C_PF = 0
C_IDX, C_MW, C_L16, C_WL, C_QW, C_QR, C_KW, C_X2, C_PW, C_MP, FREE1, HPEND, C_FL, T0, JUNK = range(1, 16)
AM = 16
ACCQ = 48
ACCK = 56
ACCV = 64
QB = 72
XA = 88
XB = 104
VX = 120
VW = 128

TMO_LIMIT = 200000
OPT = {}


def f32bits(x):
    return struct.unpack("<I", struct.pack("<f", x))[0]


def lin(e, dst, coefs, const=0, tmp=T0, src=0):
    e("v_mov_b32 %s, 0x%x" % (v(dst), const))
    for k, c in sorted(coefs.items()):
        if c == 0:
            continue
        assert c < (1 << 24)
        e("v_bfe_u32 %s, %s, %d, 1" % (v(tmp), v(src), k))
        e("s_mov_b32 %s, 0x%x" % (s(S_T2), c))
        e("v_mad_u32_u24 %s, %s, %s, %s" % (v(dst), v(tmp), s(S_T2), v(dst)))


def srd(e, d, ptr, nbytes):
    e("s_mov_b32 %s, %s" % (s(d), s(ptr)))
    e("s_and_b32 %s, %s, 0xffff" % (s(d + 1), s(ptr + 1)))
    e("s_mov_b32 %s, 0x%x" % (s(d + 2), nbytes))
    e("s_mov_b32 %s, 0x20000" % s(d + 3))


LDS_OPS = {
    ("Q", 0, 0): XB + 0, ("Q", 1, 0): XB + 8, ("Q", 0, 1): XA + 0, ("Q", 1, 1): XA + 8,
    ("K", 0, 0): QB + 0, ("K", 1, 0): QB + 8,
    ("Q", 0, 7): XA + 0, ("Q", 1, 7): XA + 8,
    ("K", 0, 2): QB + 0, ("K", 1, 2): QB + 8,
    ("K", 0, 7): XA + 0, ("K", 1, 7): XA + 8,
    ("O", 2, 3): XA + 0, ("O", 3, 1): XA + 8, ("O", 3, 2): QB + 0, ("O", 3, 3): QB + 8,
}
OLDS = [("O", 2, 3), ("O", 3, 1), ("O", 3, 2), ("O", 3, 3)]
LDS_SLOT = {k: i for i, k in enumerate(LDS_OPS)}
ALL_OPS = [(m, T, u) for m in "QKV" for u in range(8) for T in range(2)] + [("O", q, u) for u in range(4) for q in range(4)]
RES = {}
_n = 0
for op in ALL_OPS:
    if op in LDS_OPS:
        continue
    RES[op] = ("a", _n * 8) if _n < 32 else ("v", VW + (_n - 32) * 8)
    _n += 1
assert _n == 48


def opreg(op):
    if op in LDS_OPS:
        return v(LDS_OPS[op], 8)
    k, r = RES[op]
    return (a if k == "a" else v)(r, 8)


def lds_fetch_ins(op):
    r = LDS_OPS[op]
    off = LDS_SLOT[op] * 2048
    return ["ds_read_b128 %s, %s offset:%d" % (v(r, 4), v(C_WL), off),
            "ds_read_b128 %s, %s offset:%d" % (v(r + 4, 4), v(C_WL), off + 1024)]


def lds_fetch(e, op):
    for t in lds_fetch_ins(op):
        e(t)


def rowpart(rho, b, hi=32):
    return hi * (rho >> 2) + 8 * (rho & 1) + 2 * ((rho >> 1) & 1) + b


class VmQ:
    def __init__(self, e):
        self.e, self.q = e, []

    def add(self, tag):
        self.q.append(tag)
        assert len(self.q) <= 63

    def wait(self, tag):
        if tag not in self.q:
            return
        last = len(self.q) - 1 - self.q[::-1].index(tag)
        self.e("s_waitcnt vmcnt(%d)" % (len(self.q) - 1 - last))
        self.q = self.q[last + 1:]


def staged_load(e, chunks, ptrs, srds, swz_bits, dma_k, lane_f, row_lane, blk_xor_wave, reads, side=None, pre=None, nslot=3):
    AD, AR = 16, 20
    TT = 28
    seq = OPT.get("seq", 1)
    S_LB, S_GB = 28, 3
    if seq:
        e("v_lshrrev_b32 %s, 4, v0" % v(TT))
        e("v_and_b32 %s, 15, v0" % v(AD))
        e("v_lshlrev_b32 %s, 4, %s" % (v(AD), v(AD)))
        e("v_lshl_add_u32 %s, %s, 13, %s" % (v(AD), v(TT), v(AD)))
        e("v_bfe_u32 %s, v0, 4, %d" % (v(TT + 1), swz_bits))
        e("v_lshlrev_b32 %s, 5, %s" % (v(TT + 1), v(TT + 1)))
        e("v_xor_b32 %s, %s, %s" % (v(AD), v(AD), v(TT + 1)))
        e("v_and_b32 %s, %d, v0" % (v(TT + 1), dma_k(3)))
        e("v_xor_b32 %s, %s, %s" % (v(AD), v(AD), v(TT + 1)))
        e("s_lshl_b32 %s, %s, 10" % (s(S_LB), s(S_WAVE)))
    else:
        e("v_lshrrev_b32 %s, 6, v0" % v(TT))
        e("v_bfe_u32 %s, v0, 4, 2" % v(TT + 1))
        e("v_lshl_add_u32 %s, %s, 5, %s" % (v(TT), v(TT), v(TT + 1)))
        e("v_and_b32 %s, 15, v0" % v(AD))
        e("v_lshlrev_b32 %s, 4, %s" % (v(AD), v(AD)))
        e("v_lshl_add_u32 %s, %s, 13, %s" % (v(AD), v(TT), v(AD)))
        e("v_bfe_u32 %s, v0, 4, %d" % (v(TT + 1), swz_bits))
        e("v_lshlrev_b32 %s, 5, %s" % (v(TT + 1), v(TT + 1)))
        e("v_xor_b32 %s, %s, %s" % (v(AD), v(AD), v(TT + 1)))
        for k in range(1, 4):
            e("v_xor_b32 %s, %d, %s" % (v(AD + k), dma_k(k), v(AD)))
        e("s_add_u32 %s, %s, 1" % (s(S_LB), s(S_WAVE)))
        e("s_lshl_b32 %s, %s, 15" % (s(S_LB), s(S_LB)))
    e("s_lshl_b32 %s, %s, 8" % (s(S_GB), s(S_H)))
    q = VmQ(e)
    built = set()

    def dma(c):
        m, ci = chunks[c]
        if m not in built:
            srd(e, srds[m], ptrs[m], 512 * 4096 * 2)
            built.add(m)
        for i in range(8):
            if seq:
                e("s_add_u32 m0, %s, %d" % (s(S_LB), (((i >> 1) + 1) << 15) + (c % nslot) * 8192 + (i & 1) * 4096))
                e("s_add_u32 %s, %s, 0x%x" % (s(S_T1), s(S_GB), (128 * ci + 16 * i) * 8192))
            else:
                e("s_add_u32 m0, %s, %d" % (s(S_LB), (c % nslot) * 8192 + i * 1024))
                e("s_add_u32 %s, %s, 0x%x" % (s(S_T1), s(S_GB), (128 * ci + 4 * i) * 8192))
            e("buffer_load_dwordx4 %s, %s, %s offen%s lds" % (v(AD + (0 if seq else i & 3)), s(srds[m], 4), s(S_T1), OPT.get("cnt", "") if blk_xor_wave else OPT.get("wnt", "")))
            q.add(("c", c))
    lead = OPT.get("lead", 0) if blk_xor_wave else 0
    TL = 29
    S_TR = 91

    def touch(c):
        if c >= len(chunks):
            return
        m, ci = chunks[c]
        if m not in built:
            srd(e, srds[m], ptrs[m], 512 * 4096 * 2)
            built.add(m)
        e("s_add_u32 %s, %s, 0x%x" % (s(S_T1), s(S_MB), 128 * ci * 8192))
        e("buffer_load_dword %s, %s, %s, %s offen" % (v(JUNK), v(TL), s(srds[m], 4), s(S_T1)))
        q.add(("t", c))
    if lead:
        e("v_and_b32 %s, 63, v0" % v(TL))
        e("v_lshlrev_b32 %s, 7, %s" % (v(TL), v(TL)))
        e("s_lshl_b32 %s, %s, 2" % (s(S_MB), s(S_H)))
        e("s_add_u32 %s, %s, %s" % (s(S_MB), s(S_MB), s(S_WAVE)))
        e("s_lshl_b32 %s, %s, 13" % (s(S_MB), s(S_MB)))
        for c in range(nslot + lead):
            touch(c)
    for c in range(nslot):
        dma(c)
    TT = 30
    lin(e, AR, {0: 8, 1: 16, **{k: c * 256 for k, c in row_lane.items()}})
    lin(e, TT, lane_f)
    lin(e, TT + 1, {6: 64, 7: 128})
    e("v_xor_b32 %s, %s, %s" % (v(TT), v(TT), v(TT + 1)))
    e("v_add_u32 %s, %s, %s" % (v(TT), v(TT), v(AR)))
    for k in range(4):
        if blk_xor_wave:
            e("s_xor_b32 %s, %s, %d" % (s(S_T0), s(S_WAVE), k))
            e("s_add_u32 %s, %s, 1" % (s(S_T0), s(S_T0)))
            e("s_lshl_b32 %s, %s, 15" % (s(S_T0), s(S_T0)))
            e("v_add_u32 %s, %s, %s" % (v(AR + 2 * k), s(S_T0), v(TT)))
        else:
            e("v_add_u32 %s, 0x%x, %s" % (v(AR + 2 * k), (k + 1) << 15, v(TT)))
        e("v_xor_b32 %s, 32, %s" % (v(AR + 2 * k + 1), v(AR + 2 * k)))
    if pre:
        pre(q)
    for c, (m, ci) in enumerate(chunks):
        if side:
            side(c, q)
        q.wait(("c", c))
        e("s_barrier")
        for n_, (dst, k, T, ro) in enumerate(reads(m, ci)):
            if n_ == 12:
                e("s_waitcnt lgkmcnt(4)")
            e("ds_read_b64_tr_b16 %s, %s offset:%d" % (dst, v(AR + 2 * k + T), (c % nslot) * 8192 + ro * 256))
        e("s_waitcnt lgkmcnt(0)")
        e("s_barrier")
        if lead:
            touch(c + nslot + lead)
        if c + nslot < len(chunks):
            dma(c + nslot)
    return q


HOLD = {op: 32 + 8 * i for i, op in enumerate(o for o in LDS_OPS if o[0] != "O")}


def load_weights(e, P_WQ, P_WK, P_WV, P_WO, pre=None, mid=None):
    e.comment("---- load weight operands: Wq/Wk/Wv by LDS-DMA + transposing reads, Wo by dword loads + v_perm")
    VOFO = FREE1
    RING, TMP8 = 32, 120
    ptr = {"Q": P_WQ, "K": P_WK, "V": P_WV, "O": P_WO}
    SRDS = {"Q": 96, "K": 88, "V": 60, "O": 92}
    S_OB = 29

    def pre2(q):
        lin(e, VOFO, {0: 4, 1: 8, 2: 16, 3: 32, 4: 2 * 1024, 5: 4 * 1024, 6: 256, 7: 512})
        srd(e, SRDS["O"], ptr["O"], 512 * 4096 * 2)
        e("s_lshl_b32 %s, %s, 17" % (s(S_OB), s(S_H)))
        o_issue(0, q)
        pre(q)

    def reads(m, ci):
        tau, hi = ci >> 1, ci & 1
        out = []
        for k in range(4):
            u = 2 * k + tau
            for T in range(2):
                op = (m, T, u)
                for pr in range(2):
                    if op in HOLD:
                        dst = v(HOLD[op] + 4 * hi + 2 * pr, 2)
                    else:
                        kind, r = RES[op]
                        dst = (a if kind == "a" else v)(r + 4 * hi + 2 * pr, 2)
                    out.append((dst, k, T, 2 * pr))
        return out

    GORD = [7, 5, 3, 6, 4, 2, 1, 0]

    def o_issue(gi, q):
        g = GORD[gi]
        u = g >> 1
        base = (32, 48, 80)[gi % 3]
        e("s_xor_b32 %s, %s, %d" % (s(S_T0), s(S_WAVE), u))
        e("s_lshl_b32 %s, %s, 15" % (s(S_T0), s(S_T0)))
        e("s_add_u32 %s, %s, %s" % (s(S_T0), s(S_T0), s(S_OB)))
        for k in range(2):
            qq = 2 * (g & 1) + k
            for pr in range(4):
                for b in range(2):
                    row = 16 * b + 8 * (pr >> 1) + (pr & 1)
                    e("s_add_u32 %s, %s, 0x%x" % (s(S_T1), s(S_T0), row * 1024 + qq * 64))
                    e("buffer_load_dword %s, %s, %s, %s offen%s" % (v(base + k * 8 + pr * 2 + b), v(VOFO), s(SRDS["O"], 4), s(S_T1), OPT.get("ont", "")))
                    q.add(("o", g))

    def o_consume(gi, q):
        g = GORD[gi]
        q.wait(("o", g))
        base = (32, 48, 80)[gi % 3]
        for k in range(2):
            op = ("O", 2 * (g & 1) + k, g >> 1)
            dst = TMP8 if op in LDS_OPS else RES[op][1]
            assert op in LDS_OPS or RES[op][0] == "v"
            for pr in range(4):
                for hf in range(2):
                    e("v_perm_b32 %s, %s, %s, %s" % (v(dst + 2 * pr + hf), v(base + k * 8 + 2 * pr + 1), v(base + k * 8 + 2 * pr), s(S_PHI if hf else S_PLO)))
            if op in LDS_OPS:
                off = LDS_SLOT[op] * 2048
                assert off >= 24576
                e("ds_write_b128 %s, %s offset:%d" % (v(C_WL), v(TMP8, 4), off))
                e("ds_write_b128 %s, %s offset:%d" % (v(C_WL), v(TMP8 + 4, 4), off + 1024))
                e("s_waitcnt lgkmcnt(0)")

    def side(c, q):
        if 2 <= c < 10 and not OPT.get("noo"):
            o_consume(c - 2, q)
        if 1 <= c < 8 and not OPT.get("noo"):
            o_issue(c, q)
        early_start(e, c, q)

    chunks = [(m, ci) for m in "VKQ" for ci in range(4)]
    staged_load(e, chunks, ptr, SRDS, 1, lambda k: k << 6, {2: 32, 4: 64, 3: 128}, {5: 16, 3: 8, 4: 4, 2: 1}, True, reads, side, pre2, OPT.get("nslot", 3))
    for op, r in HOLD.items():
        off = LDS_SLOT[op] * 2048
        e("ds_write_b128 %s, %s offset:%d" % (v(C_WL), v(r, 4), off))
        e("ds_write_b128 %s, %s offset:%d" % (v(C_WL), v(r + 4, 4), off + 1024))
        if LDS_SLOT[op] % 4 == 3:
            e("s_waitcnt lgkmcnt(0)")
    e("s_waitcnt lgkmcnt(0)")


def setup_consts(e):
    T1, T2 = 104, 105
    AM = 100
    lin(e, C_IDX, {1: 0xEEEE - 0x4444}, 0x4444)
    lin(e, C_L16, {k: 16 << k for k in range(6)})
    lin(e, C_MW, {**{k: 16 << k for k in range(6)}, 6: 2048, 7: 4096})
    lin(e, C_WL, {**{k: 16 << k for k in range(6)}, 6: 32768, 7: 65536}, L_WL)
    lin(e, C_QW, {0: 4, 1: 8, 2: 16, 3: 32, 4: 2 * RS * 4, 5: 4 * RS * 4, 6: 64, 7: 128}, L_QX)
    lin(e, C_QR, {0: RS * 4, 2: 2 * RS * 4, 3: 4 * RS * 4, 4: 16, 5: 32}, L_QX)
    e("v_add_u32 %s, %d, %s" % (v(C_KW), L_KMX - L_QX, v(C_QW)))
    e("v_xor_b32 %s, 0x1000, %s" % (v(C_X2), v(C_MW)))
    lin(e, T1, {3: 1, 4: 2, 5: 4, 6: 8, 7: 16})
    e("v_add_u32 %s, %s, %s" % (v(T1), s(S_H), v(T1)))
    e("v_and_b32 %s, 31, %s" % (v(T1), v(T1)))
    e("v_lshlrev_b32 %s, 6, %s" % (v(T1), v(T1)))
    lin(e, C_PW, {0: 8, 1: 16, 2: 32, 3: 8192, 4: 2 * 8192, 5: 4 * 8192, 6: 8 * 8192, 7: 16 * 8192}, PB_OFF)
    e("v_add_u32 %s, %s, %s" % (v(C_PW), v(C_PW), v(T1)))
    mp_addr(e, C_MP, T1, T2)
    lin(e, C_FL, {0: 16, 1: 8, 2: 32, 3: 64, 4: 128, 5: 256, 6: 2048, 7: 4096})
    e("s_lshl_b32 %s, %s, 13" % (s(S_PR), s(S_H)))
    e("s_add_u32 %s, %s, 0x%x" % (s(S_PR), s(S_PR), PB_OFF))
    e("s_mov_b32 %s, 4096" % s(S_4K))
    e("v_and_b32 %s, 15, v0" % v(T1))
    for q in range(4):
        e("v_mov_b32 %s, 0" % v(AM + q))
        e("v_mov_b32 %s, 0x3f80" % v(T2))
        e("v_cmp_eq_u32 vcc, %d, %s" % (4 * q, v(T1)))
        e("v_cndmask_b32 %s, %s, %s, vcc" % (v(AM + q), v(AM + q), v(T2)))
        e("v_mov_b32 %s, 0x3f800000" % v(T2))
        e("v_cmp_eq_u32 vcc, %d, %s" % (4 * q + 1, v(T1)))
        e("v_cndmask_b32 %s, %s, %s, vcc" % (v(AM + q), v(AM + q), v(T2)))
    e("ds_write_b128 %s, %s offset:%d" % (v(C_L16), v(AM, 4), L_SEL))
    e("s_mov_b32 %s, 0x05040100" % s(S_PLO))
    e("s_mov_b32 %s, 0x07060302" % s(S_PHI))
    e("s_mov_b32 %s, 0x%x" % (s(S_SCALE), f32bits(128 ** -0.5 * 1.4426950408889634)))
    e("s_mov_b32 %s, 0x%x" % (s(S_BIG), f32bits(OPT.get('big', 2.0 ** 30))))
    e("s_mov_b32 %s, 0" % s(S_TMO))
    e("s_mov_b32 %s, 0x3f803f80" % s(S_ONES))
    e("s_mov_b32 %s, 0x3f803f80" % s(S_ONES + 1))
    e("s_lshl_b32 %s, %s, 14" % (s(S_T0), s(S_H)))
    e("s_lshr_b32 %s, %s, 1" % (s(S_T1), s(S_WAVE)))
    e("s_lshl_b32 %s, %s, 12" % (s(S_T1), s(S_T1)))
    e("s_add_u32 %s, %s, %s" % (s(S_KXO), s(S_T0), s(S_T1)))
    e("s_lshl_b32 %s, %s, 11" % (s(S_T1), s(S_WAVE)))
    e("s_add_u32 %s, %s, %s" % (s(S_VXO), s(S_T0), s(S_T1)))
    e("s_add_u32 %s, %s, 8192" % (s(S_VXO), s(S_VXO)))


def setup_pf(e):
    T1, T2 = 104, 105
    lin(e, T1, {0: 128, 1: 256, 2: 512, 3: 1024, 4: 2048, 6: 4096, 7: 8192})
    e("s_lshl_b32 %s, %s, 14" % (s(S_T0), s(S_H)))
    e("v_add_u32 %s, %s, %s" % (v(T1), s(S_T0), v(T1)))
    e("s_lshl_b32 %s, %s, 8" % (s(S_T0), s(S_H)))
    e("s_lshr_b32 %s, %s, 1" % (s(S_T1), s(S_WAVE)))
    e("s_lshl_b32 %s, %s, 7" % (s(S_T1), s(S_T1)))
    e("s_add_u32 %s, %s, %s" % (s(S_T0), s(S_T0), s(S_T1)))
    e("s_add_u32 %s, %s, 0x%x" % (s(S_T0), s(S_T0), SLAB_ST + MB_IN))
    e("v_and_b32 %s, 63, v0" % v(T0))
    e("v_mov_b32 %s, 0x%x" % (v(T2), OOB))
    e("v_cmp_lt_u32 vcc, 32, %s" % v(T0))
    e("v_cndmask_b32 %s, %s, %s, vcc" % (v(T1), v(T1), v(T2)))
    e("v_mov_b32 %s, %s" % (v(T2), s(S_T0)))
    e("v_cmp_eq_u32 vcc, 32, %s" % v(T0))
    e("v_cndmask_b32 %s, %s, %s, vcc" % (v(T1), v(T1), v(T2)))
    e("s_lshl_b32 %s, %s, 2" % (s(S_T0), s(S_H)))
    e("s_add_u32 %s, %s, 0x%x" % (s(S_T0), s(S_T0), SLAB_ST + FL_IN))
    e("v_mov_b32 %s, %s" % (v(T2), s(S_T0)))
    e("v_cmp_eq_u32 vcc, 33, %s" % v(T0))
    e("v_cndmask_b32 %s, %s, %s, vcc" % (v(C_PF), v(T1), v(T2)))


def mp_addr(e, dst, T1, T2):
    lin(e, dst, {0: 8, 1: 32, 4: 16, 5: 4, 6: 2048, 7: 4096}, MB_IN)
    e("v_mov_b32 %s, %s" % (v(T2), s(S_H)))
    lin(e, T1, {0: 256, 1: 64, 2: 128, 3: 512, 4: 1024}, src=T2)
    e("v_add_u32 %s, %s, %s" % (v(dst), v(T1), v(dst)))
    e("v_and_b32 %s, 12, v0" % v(T1))
    e("v_cmp_ne_u32 vcc, 0, %s" % v(T1))
    e("v_mov_b32 %s, 0x%x" % (v(T1), OOB))
    e("v_cndmask_b32 %s, %s, %s, vcc" % (v(dst), v(dst), v(T1)))


def mem0_load(e, P_MEM0, dst, T1, T2, TH, SR):
    srd(e, SR, P_MEM0, 8192)
    lin(e, T1, {0: 8, 1: 16, 2: 0x10000, 3: 0x10000, 4: 1024, 5: 4, 6: 64, 7: 128})
    e("v_mov_b32 %s, %s" % (v(TH), s(S_H)))
    lin(e, T2, {0: 32, 1: 2048, 2: 4096, 3: 256, 4: 512}, src=TH)
    e("v_add_u32 %s, %s, %s" % (v(T1), v(T1), v(T2)))
    e("buffer_load_dword %s, %s, %s, 0 offen" % (v(dst), v(T1), s(SR, 4)))


def init_fill(e, P_MEM0, MW, B, SR):
    M1, T1, T2, TH, MP, HP = B, B + 4, B + 5, B + 6, B + 7, B + 8
    ws = s(S_WS, 4)
    mem0_load(e, P_MEM0, HP, T1, T2, TH, SR)
    for k in range(4):
        e("v_mov_b32 %s, -1" % v(M1 + k))

    def fill8k(so):
        e("buffer_store_dwordx4 %s, %s, %s, %s offen sc1" % (v(M1, 4), v(MW), ws, s(so)))
        e("buffer_store_dwordx4 %s, %s, %s, %s offen offset:1024 sc1" % (v(M1, 4), v(MW), ws, s(so)))
    e("s_lshl_b32 %s, %s, 13" % (s(S_T0), s(S_H)))
    e("s_add_u32 %s, %s, 0x%x" % (s(S_T0), s(S_T0), PB_OFF))
    fill8k(S_T0)
    e("s_lshl_b32 %s, %s, 14" % (s(S_T0), s(S_H)))
    e("s_add_u32 %s, %s, 0x%x" % (s(S_T0), s(S_T0), HIST_OFF))
    e("s_add_u32 %s, %s, 0x2000" % (s(S_T1), s(S_T0)))
    fill8k(S_T0); fill8k(S_T1)
    e("s_mul_i32 %s, %s, 0x%x" % (s(S_T0), s(S_H), 2 * SLAB_ST))
    e("s_add_u32 %s, %s, 0x%x" % (s(S_T0), s(S_T0), SLAB_OFF + SLAB_ST + MB_IN + (0x4000000 if OPT.get("solo") else 0)))
    e("s_add_u32 %s, %s, 0x%x" % (s(S_T1), s(S_T0), SLAB_ST))
    fill8k(S_T0); fill8k(S_T1)
    e("v_lshlrev_b32 %s, 2, v0" % v(T1))
    e("s_lshl_b32 %s, %s, 10" % (s(S_T0), s(S_H)))
    for base in (FLAG_OFF + 0x4000, 0x1B0000, 0x1B8000):
        e("s_add_u32 %s, %s, 0x%x" % (s(S_T1), s(S_T0), base))
        e("buffer_store_dword %s, %s, %s, %s offen sc1" % (v(M1), v(T1), ws, s(S_T1)))
    e("v_mov_b32 %s, 0x%x" % (v(T2), OOB))
    e("v_cmp_lt_u32 vcc, 63, v0")
    e("v_cndmask_b32 %s, %s, %s, vcc" % (v(T1), v(T1), v(T2)))
    e("v_mov_b32 %s, %d" % (v(M1 + 9), 0 if OPT.get("kvflags", 1) else 1))
    e("s_lshl_b32 %s, %s, 8" % (s(S_T0), s(S_H)))
    e("s_add_u32 %s, %s, 0x%x" % (s(S_T1), s(S_T0), FLAG_OFF + 0x2000))
    e("buffer_store_dword %s, %s, %s, %s offen sc1" % (v(M1 + 9), v(T1), ws, s(S_T1)))
    e("s_mul_i32 %s, %s, 0x%x" % (s(S_T0), s(S_H), 2 * SLAB_ST))
    e("s_add_u32 %s, %s, 0x%x" % (s(S_T0), s(S_T0), SLAB_OFF + FL_IN))
    e("s_add_u32 %s, %s, 0x%x" % (s(S_T1), s(S_T0), SLAB_ST))
    e("buffer_store_dword %s, %s, %s, %s offen sc1" % (v(M1 + 9), v(T1), ws, s(S_T0)))
    e("buffer_store_dword %s, %s, %s, %s offen sc1" % (v(M1 + 9), v(T1), ws, s(S_T1)))
    if OPT.get("push"):
        e("v_mov_b32 %s, 0" % v(TH))
        e("s_lshl_b32 %s, %s, 8" % (s(S_T0), s(S_H)))
        e("s_add_u32 %s, %s, 0x%x" % (s(S_T0), s(S_T0), SYNC_OFF))
        e("buffer_store_dword %s, %s, %s, %s offen sc1" % (v(TH), v(T1), ws, s(S_T0)))
    mp_addr(e, MP, T1, T2)
    e("s_waitcnt vmcnt(16)")
    e("s_mov_b32 %s, 0x%x" % (s(S_T0), SLAB_OFF))
    e("buffer_store_dword %s, %s, %s, %s offen sc1" % (v(HP), v(MP), ws, s(S_T0)))


def ready_publish(e, T1, T2):
    e("s_waitcnt vmcnt(0)")
    e("s_barrier")
    e("v_mov_b32 %s, 1" % v(T1))
    e("s_lshl_b32 %s, %s, 2" % (s(S_T1), s(S_H)))
    e("v_lshlrev_b32 %s, 20, v0" % v(T2))
    e("buffer_store_dword %s, %s, %s, %s offen sc1" % (v(T1), v(T2), s(S_DBG, 4), s(S_T1)))


def xcc_publish(e, q):
    T1, T2 = 30, 31
    e("s_getreg_b32 %s, hwreg(HW_REG_XCC_ID)" % s(S_T0))
    e("s_and_b32 %s, %s, 15" % (s(S_T0), s(S_T0)))
    e("s_or_b32 %s, %s, 0x100" % (s(S_T0), s(S_T0)))
    e("v_mov_b32 %s, %s" % (v(T1), s(S_T0)))
    e("s_lshl_b32 %s, %s, 2" % (s(S_T1), s(S_H)))
    e("v_lshlrev_b32 %s, 20, v0" % v(T2))
    e("buffer_store_dword %s, %s, %s, %s offen offset:128 sc1" % (v(T1), v(T2), s(S_DBG, 4), s(S_T1)))
    q.add("hs")


S_MODE = 41


def early_start(e, c, q):
    T1, T2 = 30, 31
    ws = s(S_WS, 4)
    hsl = "buffer_load_dword %s, %s, %s, 0 offen sc1" % (v(T1), v(T2), s(S_DBG, 4))
    pfi = lambda: e("buffer_load_dword %s, %s, %s, %s offen sc1" % (v(JUNK), v(C_PF), ws, s(S_MB)))
    if c == 8:
        e("v_lshrrev_b32 %s, 2, %s" % (v(T2), v(C_L16)))
        e(hsl)
        q.add("hs2")
    if c == 9:
        e.comment("---- buffers initialised (debug[0..31]) and all 32 chain workgroups reported their XCC id (debug[32..63]);")
        q.wait("hs2")
        e("s_mov_b32 %s, 1" % s(S_MODE))
        e.label("L_HS")
        e("v_cmp_eq_u32 vcc, 0, %s" % v(T1))
        e("s_cbranch_vccz L_HS_ok")
        e(hsl)
        e("s_add_u32 %s, %s, 1" % (s(S_TMO), s(S_TMO)))
        e("s_cmp_gt_u32 %s, %d" % (s(S_TMO), TMO_LIMIT))
        e("s_waitcnt vmcnt(0)")
        e("s_cbranch_scc0 L_HS")
        e("s_branch L_HS_done")
        e.label("L_HS_ok")
        e("v_readlane_b32 %s, %s, 63" % (s(S_T0), v(T1)))
        e("v_cmp_ne_u32 vcc, %s, %s" % (s(S_T0), v(T1)))
        e("s_nop 1")
        e("s_cmp_lg_u32 vcc_hi, 0")
        e("s_cselect_b32 %s, 1, %d" % (s(S_MODE), OPT.get("forceslow", 0)))
        e.label("L_HS_done")
        e("s_mov_b32 %s, 0x%x" % (s(S_MB), SLAB_OFF - SLAB_ST))
        pfi()
        q.add("pf0")
    if c == 11:
        q.wait("pf0")
        e.label("L_F0")
        e("v_readlane_b32 %s, %s, 33" % (s(S_T0), v(JUNK)))
        e("s_nop 1")
        e("s_cmp_lg_u32 %s, 0" % s(S_T0))
        e("s_cbranch_scc1 L_F0_ok")
        pfi()
        e("s_add_u32 %s, %s, 1" % (s(S_TMO), s(S_TMO)))
        e("s_cmp_gt_u32 %s, %d" % (s(S_TMO), TMO_LIMIT))
        e("s_waitcnt vmcnt(0)")
        e("s_cbranch_scc0 L_F0")
        e.label("L_F0_ok")
        e("s_mov_b32 %s, 0x%x" % (s(S_MB), SLAB_OFF))
        pfi()
        q.add("pf1")


def smf_ins(acc, aop, op):
    return "v_smfmac_f32_16x16x64_bf16 %s, %s, %s, %s" % (v(acc, 4), v(aop, 4), opreg(op), v(C_IDX))


def stamp(e, i, on):
    if on:
        e("s_memtime %s" % s(S_ST + 2 * i, 2))


am = lambda u: AM + 4 * u


def idle_prep_ins():
    out = []
    for op in (("Q", 0, 0), ("Q", 1, 0), ("Q", 0, 1), ("Q", 1, 1), ("K", 0, 0), ("K", 1, 0)):
        out += lds_fetch_ins(op)
    z = ["v_mov_b64 %s, 0" % v(r, 2) for r in range(ACCQ, ACCQ + 24, 2)]
    return out, z


def delay(e, cyc):
    n = cyc // 4
    while n > 0:
        k = min(n, 16)
        e("s_nop %d" % (k - 1))
        n -= k


def main_loop(e, tag, sc, nsteps, stamps=False):
    L = lambda n: "L_%s_%s" % (tag, n)
    ws = s(S_WS, 4)
    solo = OPT.get("solo")
    trace = OPT.get("trace")
    acc = {"Q": ACCQ, "K": ACCK, "V": ACCV}
    S = lambda m, T, u: smf_ins(acc[m] + 4 * T, am(u), (m, T, u))
    Q = lambda T, u: S("Q", T, u)
    K = lambda T, u: S("K", T, u)
    V = lambda T, u: S("V", T, u)
    lg = lambda n: "s_waitcnt lgkmcnt(%d)" % n
    BAR = "s_barrier"
    add = lambda b, r: "v_add_f32 %s, %s, %s" % (v(b + r), v(b + r), v(b + r + 2))
    cvt = lambda d, x, y: "v_cvt_pk_bf16_f32 %s, %s, %s" % (v(d), v(x), v(y))
    ex = lambda r: "v_exp_f32 %s, %s" % (v(r), v(r))
    mf32 = lambda d, A, B, first: "v_mfma_f32_16x16x32_bf16 %s, %s, %s, %s" % (v(d, 4), v(A, 4), v(B, 4), "0" if first else v(d, 4))
    mf16 = lambda d, A, B: "v_mfma_f32_16x16x16_bf16 %s, %s, %s, %s" % (v(d, 4), v(A, 2), v(B, 2), v(d, 4))

    def run(sched, extra=None):
        for i_, (m_, rest) in enumerate(sched):
            e(m_)
            for x in (extra or {}).get(i_, []) + rest:
                if x.endswith(":"):
                    e.label(x[:-1])
                else:
                    e(x)
    e.label(L("start"))
    e("s_mov_b32 %s, 0" % s(S_STEP))
    e("s_mov_b32 %s, 0x%x" % (s(S_SLAB), SLAB_OFF))
    e("s_mov_b32 %s, 0" % s(S_PAR))
    e("s_mov_b32 %s, 0x%x" % (s(S_HIST), HIST_OFF - MB_IN))
    e("s_mov_b32 %s, 0x%x" % (s(S_OOB), OOB))
    if OPT.get("push"):
        e("s_add_u32 %s, %s, 0x%x" % (s(S_SY), s(S_WS), SYNC_OFF))
        e("s_addc_u32 %s, %s, 0" % (s(S_SY + 1), s(S_WS + 1)))
        e("s_mov_b32 %s, 4096" % s(S_SY + 2))
        e("s_mov_b32 %s, 0x20000" % s(S_SY + 3))
        e("s_lshl_b32 %s, %s, 7" % (s(S_FR), s(S_H)))
        e("s_lshl_b32 %s, %s, 2" % (s(S_FW), s(S_H)))
        e("s_cmp_eq_u32 %s, 3" % s(S_WAVE))
        e("s_cselect_b32 %s, %s, %s" % (s(S_FW), s(S_FW), s(S_OOB)))
    for u in (1, 2, 3):
        e("s_mov_b32 %s, 0x%x" % (s(S_U0 + u), u * 2048))
    e("s_mov_b32 %s, 0xcccccccc" % s(S_HM))
    e("s_mov_b32 %s, 0xcccccccc" % s(S_HM + 1))
    e("s_mov_b32 %s, 0" % s(S_SPIN))
    f, z = idle_prep_ins()
    for t in f + z:
        e(t)
    mldp = lambda P: ["buffer_load_dwordx4 %s, %s, %s, %s offen sc1" % (v(P, 4), v(C_MW), ws, s(S_MB)),
                      "buffer_load_dwordx4 %s, %s, %s, %s offen offset:1024 sc1" % (v(P + 4, 4), v(C_MW), ws, s(S_MB))]
    mld = mldp(AM)
    e("s_add_u32 %s, %s, 0x%x" % (s(S_MB), s(S_SLAB), MB_IN))
    for t in mld:
        e(t)
    e("s_waitcnt vmcnt(2)")
    if OPT.get("al"):
        e.raw(".p2align %d" % OPT["al"])
    for _ in range(OPT.get("pad", 0)):
        e("s_nop 0")
    e.label(L("step"))
    e("v_readlane_b32 %s, %s, 33" % (s(S_T0), v(JUNK)))
    e("s_add_u32 %s, %s, 0x%x" % (s(S_SLABN), s(S_SLAB), SLAB_ST))
    e("s_cmp_eq_u32 %s, 0" % s(S_T0))
    e("s_cbranch_scc1 %s" % L("refresh"))
    e.label(L("fresh"))
    e("s_add_u32 %s, %s, %s" % (s(S_KX), s(S_SLAB), s(S_KXO)))
    e("s_add_u32 %s, %s, %s" % (s(S_VX), s(S_SLAB), s(S_VXO)))
    e("s_xor_b32 %s, %s, 1" % (s(S_NPAR), s(S_PAR)))
    e("s_add_u32 %s, %s, 1" % (s(S_NEXT), s(S_STEP)))
    if OPT.get("push"):
        e("s_mov_b32 %s, %s" % (s(S_NX2), s(S_NEXT)))
        e("v_mov_b32 %s, %s" % (v(FREE1), s(S_NEXT)))
    tr = 2
    if OPT.get("m3"):
        tr = 4
        delay(e, OPT.get("pm0", 0))
        for x in mld:
            e(x)
    ns = OPT.get("ns", 0)
    if ns:
        e("s_cmp_lt_u32 %s, %d" % (s(S_WAVE), ns))
        e("s_cbranch_scc1 %s" % L("onem"))
    delay(e, OPT.get("pm", 64) - (24 if ns else 0))
    e.label(L("retrym"))
    for x in mld:
        e(x)
    e.label(L("prem"))
    e("s_add_u32 %s, %s, 1" % (s(S_TMO), s(S_TMO)))
    e("s_cmp_gt_u32 %s, %d" % (s(S_TMO), TMO_LIMIT))
    e("s_cselect_b32 %s, -1, -2" % s(S_LIM))
    e("v_xor_b32 %s, 0x800, %s" % (v(am(3)), v(C_MW)))
    e("v_xor_b32 %s, 0x1800, %s" % (v(am(7)), v(C_MW)))
    for x in z[:4]:
        e(x)
    e.label(L("waitm"))
    e("s_waitcnt vmcnt(%d) lgkmcnt(0)" % (1 + tr))
    e.label(L("gotm"))
    stamp(e, 0, stamps)
    T1 = am(2)
    mw = ["ds_write_b128 %s, %s offset:%d" % (v(C_MW), v(am(k), 4), L_MEMI + 1024 * k) for k in range(2)]
    PK = ACCK
    pst = lambda q: "buffer_store_dwordx2 %s, %s, %s, %s offen offset:%d%s" % (v(PK + 2 * q, 2), v(C_PW), ws, "0" if q < 2 else s(S_4K), (q & 1) * 2048, sc or OPT.get("pstf", ""))
    tg = lambda q: "v_and_or_b32 %s, %s, -2, %s" % (v(PK + 2 * q), v(PK + 2 * q), s(S_TAG))
    kx = lambda ks: "buffer_load_dwordx4 %s, %s, %s, %s offen offset:%d sc1" % (v(XB + 4 * ks, 4), v(C_L16), ws, s(S_KX), ks * 1024)
    vx = lambda T: "buffer_load_dwordx4 %s, %s, %s, %s offen offset:%d sc1" % (v(VX + 4 * T, 4), v(C_L16), ws, s(S_VX), T * 1024)
    amrd = lambda u: "ds_read_b128 %s, %s offset:%d" % (v(am(u), 4), v(C_X2 if u >> 1 == 2 else am(u | 1)), L_MEMI + (u & 1) * 1024)
    q7 = lds_fetch_ins(("Q", 0, 7)) + lds_fetch_ins(("Q", 1, 7))
    k2 = lds_fetch_ins(("K", 0, 2)) + lds_fetch_ins(("K", 1, 2))
    k7 = lds_fetch_ins(("K", 0, 7)) + lds_fetch_ins(("K", 1, 7))
    of = sum([lds_fetch_ins(op) for op in OLDS], [])
    qbrd = lambda ks: "ds_read_b128 %s, %s offset:%d" % (v(QB + 4 * ks, 4), v(C_QR), 64 * ks)
    KM = XA
    kmrd = lambda ks: "ds_read_b128 %s, %s offset:%d" % (v(KM + 4 * ks, 4), v(C_QR), L_KMX - L_QX + 64 * ks)
    SX, SM = ACCQ, ACCQ + 4
    ONES, PX, PM, VM0, VM1 = XB, XB + 4, XB + 8, XB + 10, XB + 12
    TA = XB + 14
    LS, OA, OP = SX, ACCK, SM
    smx = lambda ks: mf32(SX, XB + 4 * ks, QB + 4 * ks, ks == 0)
    smm = lambda ks: mf32(SM, KM + 4 * ks, QB + 4 * ks, ks == 0)
    pf = "buffer_load_dword %s, %s, %s, %s offen sc1" % (v(JUNK), v(C_PF), ws, s(S_SLABN))
    hist = "buffer_store_dword %s, %s, %s, %s offen sc1" % (v(HPEND), v(C_MP), ws, s(S_HIST))
    zw = ["v_mov_b64 %s, 0" % v(r, 2) for r in range(AM, AM + 16, 2)]
    OOP = AM + 12
    o64 = OPT.get("o64", 1)
    if o64:
        oad = ["v_bitop3_b32 %s, %s, %s, -9 bitop3:0x28" % (v(OOP + 4 * u), v(C_FL), s(S_U0 + u)) for u in (1, 2, 3)]
    else:
        oad = ["v_xor_b32 %s, 0x%x, %s" % (v(OOP + 4 * u), u * 2048, v(C_MW)) for u in (1, 3)]
    L_OE = L_PX + 1024
    mx3 = lambda d, x, y, z_: "v_max3_u32 %s, %s, %s, %s" % (v(d), v(x), v(y), v(z_))
    mov0 = lambda r: "v_mov_b32 %s, 0" % v(r)
    qs = lambda r: "v_mul_f32 %s, %s, %s" % (v(ACCQ + r), s(S_SCALE), v(ACCQ + r))
    push = OPT.get("push", 0) and not solo
    F0, FA, FS = AM + 28, AM + 29, AM + 30
    fst = "buffer_store_dword %s, %s, %s, %s offen%s" % (v(FREE1), v(FS), s(S_SY, 4), s(S_FW), sc)
    fld = "buffer_load_dword %s, %s, %s, %s offen sc1" % (v(F0), v(FA), s(S_SY, 4), s(S_FR))
    fw = OPT.get("fw", 2)
    fsc = "v_lshlrev_b32 %s, 3, %s" % (v(FS), v(C_L16))
    ex0 = {}
    if push and fw < 0:
        ex0 = {62 + fw: [fst]}
    early = OPT.get("early", 1)
    e(mx3(T0, AM, AM + 1, AM + 2))
    e("v_max_u32 %s, %s, %s" % (v(T0), v(T0), v(AM + 3)))
    run([
        (Q(0, 0), ["s_waitcnt vmcnt(%d)" % tr, mx3(T0, T0, AM + 4, AM + 5)]),
        (Q(1, 0), [mx3(T0, T0, AM + 6, AM + 7), "v_cmp_lt_u32 vcc, %s, %s" % (s(S_LIM), v(T0))]),
        (Q(0, 1), [mw[0]] + ([] if solo else ["s_cbranch_vccnz %s" % L("retrym")])),
        (Q(1, 1), [mw[1]]),
    ] + ([
        (K(0, 0), [kx(0)]),
        (K(1, 0), [kx(1)]),
        (K(0, 1), [kx(2)]),
        (K(1, 1), [lg(0), BAR, amrd(2)]),
        (V(0, 0), [amrd(3)]),
        (V(1, 0), [kx(3)]),
        (V(0, 1), [vx(0)]),
        (V(1, 1), [amrd(4), lg(2)]),
        (Q(0, 2), [vx(1)]),
        (Q(1, 2), [amrd(5), lg(2)]),
        (Q(0, 3), [amrd(6)]),
        (Q(1, 3), [amrd(7), lg(3)]),
        (Q(0, 4), [q7[0]]),
        (Q(1, 4), [q7[1], lg(4)]),
        (Q(0, 5), [q7[2]]),
        (Q(1, 5), [q7[3], lg(4)]),
        (Q(0, 6), [pf]),
        (Q(1, 6), [k2[0], k2[1], lg(2)]),
    ] if early == 2 else [
        (K(0, 0), [kx(0), vx(0)] if early else [kx(0)]),
        (K(1, 0), [kx(1), vx(1)] if early else [kx(1)]),
        (K(0, 1), [kx(2), kx(3)] if early else [kx(2)]),
        (K(1, 1), [lg(0), BAR, amrd(2)]),
        (V(0, 0), [amrd(3)]),
        (V(1, 0), [pf] if early else [kx(3)]),
        (V(0, 1), [amrd(4)]),
        (V(1, 1), [amrd(5), lg(3)]),
        (Q(0, 2), [amrd(6)]),
        (Q(1, 2), [amrd(7), lg(4)]),
        (Q(0, 3), [q7[0]]),
        (Q(1, 3), [q7[1], lg(4)]),
        (Q(0, 4), [q7[2]]),
        (Q(1, 4), [q7[3], lg(4)]),
        (Q(0, 5), [] if early else [vx(0)]),
        (Q(1, 5), [k2[0]]),
        (Q(0, 6), [] if early else [vx(1)]),
        (Q(1, 6), [k2[1], lg(2)]),
    ]) + [
        (Q(0, 7), [k2[2]]),
        (Q(1, 7), [k2[3]]),
        (K(0, 3), [k7[0], "s_nop 0"]),
        (K(1, 3), [k7[1], add(ACCQ, 0), add(ACCQ, 1)]),
        (K(0, 4), [k7[2], add(ACCQ + 4, 0), add(ACCQ + 4, 1), qs(0)]),
        (K(1, 4), [k7[3], qs(4), qs(1), qs(5)]),
        (K(0, 5), [lg(4), cvt(ACCQ + 2, ACCQ, ACCQ + 4), cvt(ACCQ + 3, ACCQ + 1, ACCQ + 5)]),
        (K(0, 2), ["ds_write2_b32 %s, %s, %s offset0:0 offset1:%d" % (v(C_QW), v(ACCQ + 2), v(ACCQ + 3), RS)]),
        (K(1, 2), [] if early else [pf]),
        (K(1, 5), []),
        (K(0, 6), [hist]),
        (K(1, 6), [lg(0), BAR]),
        (K(0, 7), [qbrd(0)]),
        (K(1, 7), [qbrd(1)]),
        (V(0, 2), [qbrd(2)]),
        (V(1, 2), [qbrd(3), "s_waitcnt vmcnt(2) lgkmcnt(3)"]),
        (smx(0), [lg(2), add(ACCK, 0), add(ACCK, 1)]),
        (smx(1), [lg(1), add(ACCK + 4, 0), add(ACCK + 4, 1)]),
        (smx(2), [lg(0), cvt(ACCK + 2, ACCK, ACCK + 4), cvt(ACCK + 3, ACCK + 1, ACCK + 5)]),
        (smx(3), ["ds_write2_b32 %s, %s, %s offset0:0 offset1:%d" % (v(C_KW), v(ACCK + 2), v(ACCK + 3), RS)]),
        (V(0, 3), ["v_mov_b64 %s, %s" % (v(ONES, 2), s(S_ONES, 2))]),
        (V(1, 3), ["s_nop 1", "v_mov_b64 %s, %s" % (v(ONES + 2, 2), s(S_ONES, 2))]),
        (V(0, 4), [ex(SX)]),
        (V(1, 4), [lg(0), BAR, ex(SX + 1)]),
        (V(0, 5), [kmrd(0), ex(SX + 2)]),
        (V(1, 5), [kmrd(1), ex(SX + 3)]),
        (V(0, 6), [kmrd(2), cvt(PX, SX, SX + 1), cvt(PX + 1, SX + 2, SX + 3)]),
        (V(1, 6), [kmrd(3), "ds_write_b64 %s, %s offset:%d" % (v(C_MW), v(PX, 2), L_PX), lg(4)]),
        (smm(0), [lg(3), mov0(PM + 1), mov0(VM0 + 1)]),
        (smm(1), [lg(2), mov0(VM1 + 1), zw.pop(0)]),
        (smm(2), [lg(1), zw.pop(0), zw.pop(0)]),
        (smm(3), [lg(0), BAR]),
        (V(0, 7), ["ds_read_b64 %s, %s offset:%d" % (v(PX + 2, 2), v(C_X2), L_PX), zw.pop(0)]),
        (V(1, 7), ([fsc] if push else []) + [zw.pop(0), zw.pop(0), ex(SM), ex(SM + 1), lg(0)]),
        (mf32(LS, ONES, PX, True), [cvt(PM, SM, SM + 1), add(ACCV, 0)]),
        (mf32(OA, VX, PX, True), [add(ACCV, 1), add(ACCV + 4, 0)]),
        (mf32(OA + 4, VX + 4, PX, True), [cvt(VM0, ACCV, ACCV + 1), add(ACCV + 4, 1)]),
        (mf16(LS, ONES, PM), [cvt(VM1, ACCV + 4, ACCV + 5), zw.pop(0)]),
        (mf16(OA, VM0, PM), [zw.pop(0), oad[0]]),
        (mf16(OA + 4, VM1, PM), oad[1:] + ["v_rcp_f32 %s, %s" % (v(TA), v(LS))]),
    ], ex0)
    assert not zw
    e("v_max_f32 %s, %s, %s" % (v(T0), v(TA), v(LS)))
    e("v_cmp_nge_f32 vcc, %s, %s" % (s(S_BIG), v(T0)))
    for r in (0, 2, 4, 6):
        e("v_pk_mul_f32 %s, %s, %s op_sel_hi:[1,0]" % (v(OA + r, 2), v(OA + r, 2), v(TA, 2)))
    for r in (0, 2, 1, 3):
        e(cvt(OP + r, OA + r, OA + 4 + r))
    if OPT.get("pflat"):
        e("s_memtime s[74:75]")
        e("s_waitcnt vmcnt(1)")
        e("s_memtime s[72:73]")
        e("s_waitcnt lgkmcnt(0)")
    e.label(L("rejoin"))
    if o64:
        for k in range(2):
            e("v_cndmask_b32 %s, %s, %s, %s" % (v(LS + 2 + k), v(OP + k), v(OP + 2 + k), s(S_HM, 2)))
        e("ds_write_b64 %s, %s offset:%d" % (v(C_FL), v(LS + 2, 2), L_OE))
    else:
        e("ds_write_b128 %s, %s offset:%d" % (v(C_MW), v(OP, 4), L_OE))
    WACC = AM
    SO = lambda q, u: smf_ins(WACC + 4 * q, OP if u == 0 else OOP + 4 * u, ("O", q, u))
    ord_ = lambda u: "ds_read_b128 %s, %s offset:%d" % (v(OOP + 4 * u, 4), v(C_X2 if u == 2 and not o64 else OOP + 4 * u), L_OE)
    SEL, RD = ACCV, ACCV + 4
    wc = lambda q, r: cvt(PK + 2 * q + r, WACC + 4 * q + r, WACC + 4 * q + 2 + r)
    extra = {}
    if push:
        extra = {fw: [fst]} if fw >= 0 else {}
        for pos in (OPT.get("fr", 7), OPT.get("fr2", 11), OPT.get("fr3", 14)):
            extra.setdefault(pos, []).append(fld)
    run([
        (SO(0, 0), ["v_bfe_u32 %s, %s, 2, 7" % (v(FA), v(C_L16)), mov0(F0)] if push else []),
        (SO(1, 0), [lg(0), BAR, ord_(1), ord_(2)] if OPT.get("b4", 1) else []),
        (SO(2, 0), [ord_(3)] if OPT.get("b4", 1) else [lg(0), BAR, ord_(1), ord_(2)]),
        (SO(3, 0), ([] if OPT.get("b4", 1) else [ord_(3)]) + [of[0], of[1], lg(4)]),
        (SO(0, 1), [of[2], lg(4)]),
        (SO(0, 2), [of[3], lg(4)]),
        (SO(0, 3), [of[4], "s_cmp_lg_u64 vcc, 0"]),
        (SO(1, 1), [of[5], "s_cselect_b32 %s, %s, %s" % (s(S_TAG), s(S_NPAR), s(S_PAR))]),
        (SO(1, 2), [of[6], wc(0, 0)] + ([wc(0, 1), tg(0)] if OPT.get("fs") else [])),
        (SO(1, 3), [pst(0)] if OPT.get("fs") else [of[7], wc(0, 1), tg(0)]),
        (SO(2, 1), [of[7]] if OPT.get("fs") else [pst(0)]),
        (SO(2, 2), [lg(4), "s_nop 0", wc(1, 0)]),
        (SO(2, 3), ["ds_read_b128 %s, %s offset:%d" % (v(SEL, 4), v(C_L16), L_SEL), wc(1, 1), tg(1)]),
        (SO(3, 1), [pst(1), lg(1)]),
        (SO(3, 2), ["s_nop 1", wc(2, 0)]),
        (SO(3, 3), ["s_nop 2", wc(2, 1), tg(2), pst(2), wc(3, 0), wc(3, 1), tg(3), pst(3)]),
    ], extra)
    e.label(L("stored"))
    stamp(e, 1, stamps)
    e("s_cmp_lg_u32 %s, %s" % (s(S_TAG), s(S_PAR)))
    e("s_cbranch_scc1 %s" % L("safe"))
    f, z = idle_prep_ins()
    n0 = OPT.get("n0", 12)
    PD = VX
    pld = lambda P: ["buffer_load_dwordx4 %s, %s, %s, %s offen sc1" % (v(P, 4), v(C_MW), ws, s(S_PR)),
                     "buffer_load_dwordx4 %s, %s, %s, %s offen offset:1024 sc1" % (v(P + 4, 4), v(C_MW), ws, s(S_PR))]
    pub = "buffer_store_dword %s, %s, %s, %s offen%s" % (v(HPEND), v(C_MP), ws, s(S_T0), sc)
    if push:
        e.label(L("sync"))
        e("v_cmp_gt_u32 vcc, %s, %s" % (s(S_NX2), v(F0)))
        e(fld)
        e("s_add_u32 %s, %s, 1" % (s(S_SPIN), s(S_SPIN)))
        e("s_cmp_le_u32 %s, %d" % (s(S_SPIN), TMO_LIMIT * 8))
        e("s_cselect_b32 %s, %s, 0" % (s(S_NX2), s(S_NX2)))
        e("s_waitcnt vmcnt(24)")
        delay(e, OPT.get("sper", 0))
        e("s_cbranch_vccnz %s" % L("sync"))
    for x in f[:n0]:
        e(x)
    delay(e, OPT.get("d1", 0))
    for q in range(1, 4):
        e("s_cmp_lt_u32 %s, %d" % (s(S_WAVE), q))
        e("s_cbranch_scc1 %s" % L("pollp"))
        delay(e, OPT.get("dp", 40))
    e.label(L("pollp"))
    stamp(e, 4, stamps and not OPT.get("pflat"))
    PB_ = AM + 16
    for x in pld(PD):
        e(x)
    for x in f[n0:] + z[4:8]:
        e(x)
    p1 = OPT.get("p1")
    if ns:
        e("s_cmp_lt_u32 %s, %d" % (s(S_WAVE), ns))
        e("s_cbranch_scc1 %s" % L("onep"))
    if not p1:
        delay(e, OPT.get("pp", 128) - (24 if ns else 0))
        for x in pld(PB_):
            e(x)
    e.label(L("prep"))
    e("s_add_u32 %s, %s, 0x%x" % (s(S_MB), s(S_SLABN), MB_IN))
    chk = lambda P: ["v_bitop3_b32 %s, %s, %s, %s bitop3:0x7e" % (v(T0), v(P), v(P + 2), s(S_PAR)),
                     "v_bitop3_b32 %s, %s, %s, %s bitop3:0x7e" % (v(FREE1), v(P + 4), v(P + 6), s(S_PAR)),
                     "v_bitop3_b32 %s, %s, %s, 1 bitop3:0xa8" % (v(T0), v(T0), v(FREE1)),
                     "v_cmp_ne_u32 vcc, 0, %s" % v(T0)]

    def finish():
        for rot in (8, 4):
            for r in (0, 1):
                e("v_add_f32_dpp %s, %s, %s row_ror:%d row_mask:0xf bank_mask:0xf" % (v(RD + r), v(RD + r), v(RD + r), rot))
        e(cvt(HPEND, RD, RD + 1))
        e(pub)

    def attempt(P, base):
        e("s_waitcnt vmcnt(%d) lgkmcnt(0)" % (base + 1))
        e(mf32(RD, SEL, P, True))
        e(chk(P)[0])
        e("s_waitcnt vmcnt(%d)" % base)
        e(mf32(RD, SEL, P + 4, False))
        for x in chk(P)[1:]:
            e(x)
        e("s_nop 2")
        e("s_cmp_eq_u64 vcc, 0")
        e("s_cselect_b32 %s, %s, %s" % (s(S_T0), s(S_HIST if solo else S_SLABN), s(S_OOB)))
        finish()
    attempt(PD, 0 if p1 else 2)
    if not solo:
        e("s_cbranch_scc1 %s" % L("gotp"))
        if p1:
            for x in pld(PB_):
                e(x)
            e(pub)
            delay(e, 96)
        e.label(L("retryp"))
        for x in pld(PD):
            e(x)
        attempt(PB_, 3)
        e("s_cbranch_scc1 %s" % L("gotp"))
        for x in pld(PB_):
            e(x)
        attempt(PD, 3)
        e("s_cbranch_scc1 %s" % L("gotp"))
        e("s_add_u32 %s, %s, 1" % (s(S_TMO), s(S_TMO)))
        e("s_cmp_le_u32 %s, %d" % (s(S_TMO), TMO_LIMIT))
        e("s_cbranch_scc1 %s" % L("retryp"))
        e("s_mov_b32 %s, %s" % (s(S_T0), s(S_SLABN)))
        e(pub)
    e.label(L("gotp"))
    stamp(e, 2, stamps)
    e("s_add_u32 %s, %s, 0x2000" % (s(S_HIST), s(S_HIST)))
    e("s_cmp_ge_u32 %s, %d" % (s(S_NEXT), nsteps))
    e("s_cbranch_scc1 %s" % L("last"))
    e("s_mov_b32 %s, %s" % (s(S_SLAB), s(S_SLABN)))
    e("s_mov_b32 %s, %s" % (s(S_STEP), s(S_NEXT)))
    e("s_mov_b32 %s, %s" % (s(S_PAR), s(S_NPAR)))
    for x in z[8:]:
        e(x)
    if trace:
        e("s_memrealtime s[100:101]")
        e("s_memtime s[70:71]")
        e("s_lshl_b32 s3, %s, 2" % s(S_H))
        e("s_add_u32 s3, s3, %s" % s(S_WAVE))
        e("s_lshl_b32 s3, s3, 6")
        e("s_add_u32 s3, s3, %s" % s(S_STEP))
        e("s_lshl_b32 s3, s3, 5")
        e("s_add_u32 s3, s3, 0x200000")
        e("s_waitcnt lgkmcnt(0)")
        for k, r in enumerate((64, 66, 68, 100, 70, 72, 74, S_TMO)):
            e("v_mov_b32 %s, %s" % (v(AM + 8 + k), s(r)))
        e("buffer_store_dwordx4 %s, off, %s, s3" % (v(AM + 8, 4), ws))
        e("buffer_store_dwordx4 %s, off, %s, s3 offset:16" % (v(AM + 12, 4), ws))
    delay(e, OPT.get("dm", 112) - (128 if trace else 0))
    if ns and OPT.get("dmx"):
        e("s_cmp_ge_u32 %s, %d" % (s(S_WAVE), ns))
        e("s_cbranch_scc1 %s" % L("firem"))
        delay(e, OPT.get("dmx"))
        e.label(L("firem"))
    stamp(e, 5, stamps and not OPT.get("pflat"))
    for x in mld:
        e(x)
    e("s_branch %s" % L("step"))
    e.label(L("last"))
    e(hist)
    e("s_branch %s" % L("done"))
    if ns:
        e.label(L("onem"))
        e("s_waitcnt vmcnt(0)")
        e("s_branch %s" % L("prem"))
        e.label(L("onep"))
        e("v_mov_b32 %s, %s" % (v(PB_), s(S_NPAR)))
        e("s_waitcnt vmcnt(0)")
        e("s_branch %s" % L("prep"))
    e.label(L("refresh"))
    e("buffer_load_dword %s, %s, %s, %s offen sc1" % (v(JUNK), v(C_PF), ws, s(S_SLAB)))
    e("s_add_u32 %s, %s, 1" % (s(S_TMO), s(S_TMO)))
    e("s_cmp_le_u32 %s, %d" % (s(S_TMO), TMO_LIMIT))
    e("s_waitcnt vmcnt(0)")
    e("s_cbranch_scc1 %s" % L("step"))
    e("s_branch %s" % L("fresh"))
    e.label(L("safe"))
    e.fence(12)
    e("s_waitcnt vmcnt(0) lgkmcnt(0)")
    e("s_barrier")
    W = AM
    for ks in range(4):
        e(qbrd(ks))
        e(kmrd(ks))
    e("s_xor_b32 %s, %s, 0x1000" % (s(S_T0), s(S_KXO)))
    e("s_add_u32 %s, %s, %s" % (s(S_T0), s(S_T0), s(S_SLAB)))
    for ks in range(4):
        e("buffer_load_dwordx4 %s, %s, %s, %s offen offset:%d sc1" % (v(W + 4 * ks, 4), v(C_L16), ws, s(S_KX), ks * 1024))
        e("buffer_load_dwordx4 %s, %s, %s, %s offen offset:%d sc1" % (v(W + 16 + 4 * ks, 4), v(C_L16), ws, s(S_T0), ks * 1024))
    e("s_waitcnt vmcnt(0) lgkmcnt(0)")
    S0, S1, S2 = ACCQ, ACCQ + 4, ACCK
    for (d, src) in ((S0, W), (S1, W + 16), (S2, XA)):
        for ks in range(4):
            e(mf32(d, src + 4 * ks, QB + 4 * ks, ks == 0))
    M0_, M1_ = W, W + 1
    e("v_max3_f32 %s, %s, %s, %s" % (v(M0_), v(S0), v(S0 + 1), v(S0 + 2)))
    e("v_max3_f32 %s, %s, %s, %s" % (v(M0_), v(M0_), v(S0 + 3), v(S1)))
    e("v_max3_f32 %s, %s, %s, %s" % (v(M0_), v(M0_), v(S1 + 1), v(S1 + 2)))
    e("v_max3_f32 %s, %s, %s, %s" % (v(M0_), v(M0_), v(S1 + 3), v(S2)))
    e("v_max_f32 %s, %s, %s" % (v(M0_), v(M0_), v(S2 + 1)))
    for sw in ("v_permlane16_swap_b32", "v_permlane32_swap_b32"):
        e("v_mov_b32 %s, %s" % (v(M1_), v(M0_)))
        e("%s %s, %s" % (sw, v(M0_), v(M1_)))
        e("v_max_f32 %s, %s, %s" % (v(M0_), v(M0_), v(M1_)))
    for r in [S0 + i for i in range(8)] + [S2, S2 + 1]:
        e("v_sub_f32 %s, %s, %s" % (v(r), v(r), v(M0_)))
        e(ex(r))
    for q in range(4):
        e(cvt(PX + q, S0 + 2 * q, S0 + 2 * q + 1))
    e(cvt(PM, S2, S2 + 1))
    e(mf32(LS, ONES, PX, True)); e(mf32(OA, VX, PX, True)); e(mf32(OA + 4, VX + 4, PX, True))
    e(mf16(LS, ONES, PM)); e(mf16(OA, VM0, PM)); e(mf16(OA + 4, VM1, PM))
    e("v_rcp_f32 %s, %s" % (v(TA), v(LS)))
    for r in range(8):
        e("v_mul_f32 %s, %s, %s" % (v(OA + r), v(OA + r), v(TA)))
    for r in range(4):
        e(cvt(OP + r, OA + r, OA + 4 + r))
    for r in range(AM, AM + 16):
        e(mov0(r))
    for x in oad:
        e(x)
    if push:
        e(fsc)
    e("s_mov_b64 vcc, 0")
    e("s_branch %s" % L("rejoin"))
    e.label(L("done"))
```

```python
from asmlib import Emitter, v, a, s
import struct

WS_BYTES = 0x10000000
PB_OFF = 0x0000000
SYNC_OFF = 0x0080000
HIST_OFF = 0x0100000
FLAG_OFF = 0x0190000
STAMP_OFF = 0x01A0000
SLAB_OFF = 0x1000000
SLAB_ST = 0x82100
MB_IN = 0x80000
FL_IN = 0x82000
OOB = 0x40000000

L_MEMI = 0
L_PX = 8192
RS = 72
L_QX = 16384
L_KMX = L_QX + 2304
L_OX = L_KMX + 2304
L_SEL = L_OX + 2048
L_WL = 32768
LDS_BYTES = 163840

S_WS = 8
S_W = 12
S_DBG = 16
S_H = 20
S_WAVE = 21
S_STEP = 22
S_SLAB = 23
S_SLABN = 24
S_KXO = 25
S_KX = 29
S_VX = 30
S_HIST = 31
S_TMO = 32
S_SCALE = 33
S_PLO = 34
S_PHI = 35
S_T0 = 36
S_T1 = 37
S_T2 = 38
S_VXO = 39
S_BIG = 40
S_PR = 6
S_MB = 7
S_4K = 26
S_PAR = 27
S_RDY = 62
S_NPAR = 28
S_TAG = 60
S_OOB = 61
S_FW = 88
S_FR = 89
S_NEXT = 90
S_SPIN = 91
S_LIM = 94
S_SY = 80
S_NX2 = 84
S_U0 = 95
S_HM = 92
S_W3 = 95
S_ONES = 4
S_PTR = 44
S_ST = 64

C_PF = 0
C_IDX, C_MW, C_L16, C_WL, C_QW, C_QR, C_KW, C_X2, C_PW, C_MP, FREE1, HPEND, C_FL, T0, JUNK = range(1, 16)
AM = 16
ACCQ = 48
ACCK = 56
ACCV = 64
QB = 72
XA = 88
XB = 104
VX = 120
VW = 128

TMO_LIMIT = 200000
OPT = {}


def f32bits(x):
    return struct.unpack("<I", struct.pack("<f", x))[0]


def lin(e, dst, coefs, const=0, tmp=T0, src=0):
    e("v_mov_b32 %s, 0x%x" % (v(dst), const))
    for k, c in sorted(coefs.items()):
        if c == 0:
            continue
        assert c < (1 << 24)
        e("v_bfe_u32 %s, %s, %d, 1" % (v(tmp), v(src), k))
        e("s_mov_b32 %s, 0x%x" % (s(S_T2), c))
        e("v_mad_u32_u24 %s, %s, %s, %s" % (v(dst), v(tmp), s(S_T2), v(dst)))


def srd(e, d, ptr, nbytes):
    e("s_mov_b32 %s, %s" % (s(d), s(ptr)))
    e("s_and_b32 %s, %s, 0xffff" % (s(d + 1), s(ptr + 1)))
    e("s_mov_b32 %s, 0x%x" % (s(d + 2), nbytes))
    e("s_mov_b32 %s, 0x20000" % s(d + 3))


LDS_OPS = {
    ("Q", 0, 0): XB + 0, ("Q", 1, 0): XB + 8, ("Q", 0, 1): XA + 0, ("Q", 1, 1): XA + 8,
    ("K", 0, 0): QB + 0, ("K", 1, 0): QB + 8,
    ("Q", 0, 7): XA + 0, ("Q", 1, 7): XA + 8,
    ("K", 0, 2): QB + 0, ("K", 1, 2): QB + 8,
    ("K", 0, 7): XA + 0, ("K", 1, 7): XA + 8,
    ("O", 2, 3): XA + 0, ("O", 3, 1): XA + 8, ("O", 3, 2): QB + 0, ("O", 3, 3): QB + 8,
}
OLDS = [("O", 2, 3), ("O", 3, 1), ("O", 3, 2), ("O", 3, 3)]
LDS_SLOT = {k: i for i, k in enumerate(LDS_OPS)}
ALL_OPS = [(m, T, u) for m in "QKV" for u in range(8) for T in range(2)] + [("O", q, u) for u in range(4) for q in range(4)]
RES = {}
_n = 0
for op in ALL_OPS:
    if op in LDS_OPS:
        continue
    RES[op] = ("a", _n * 8) if _n < 32 else ("v", VW + (_n - 32) * 8)
    _n += 1
assert _n == 48


def opreg(op):
    if op in LDS_OPS:
        return v(LDS_OPS[op], 8)
    k, r = RES[op]
    return (a if k == "a" else v)(r, 8)


def lds_fetch_ins(op):
    r = LDS_OPS[op]
    off = LDS_SLOT[op] * 2048
    return ["ds_read_b128 %s, %s offset:%d" % (v(r, 4), v(C_WL), off),
            "ds_read_b128 %s, %s offset:%d" % (v(r + 4, 4), v(C_WL), off + 1024)]


def lds_fetch(e, op):
    for t in lds_fetch_ins(op):
        e(t)


def rowpart(rho, b, hi=32):
    return hi * (rho >> 2) + 8 * (rho & 1) + 2 * ((rho >> 1) & 1) + b


class VmQ:
    def __init__(self, e):
        self.e, self.q = e, []

    def add(self, tag):
        self.q.append(tag)
        assert len(self.q) <= 63

    def wait(self, tag):
        if tag not in self.q:
            return
        last = len(self.q) - 1 - self.q[::-1].index(tag)
        self.e("s_waitcnt vmcnt(%d)" % (len(self.q) - 1 - last))
        self.q = self.q[last + 1:]


def staged_load(e, chunks, ptrs, srds, swz_bits, dma_k, lane_f, row_lane, blk_xor_wave, reads, side=None, pre=None, nslot=3):
    AD, AR = 16, 20
    TT = 28
    seq = OPT.get("seq", 1)
    S_LB, S_GB = 28, 3
    if seq:
        e("v_lshrrev_b32 %s, 4, v0" % v(TT))
        e("v_and_b32 %s, 15, v0" % v(AD))
        e("v_lshlrev_b32 %s, 4, %s" % (v(AD), v(AD)))
        e("v_lshl_add_u32 %s, %s, 13, %s" % (v(AD), v(TT), v(AD)))
        e("v_bfe_u32 %s, v0, 4, %d" % (v(TT + 1), swz_bits))
        e("v_lshlrev_b32 %s, 5, %s" % (v(TT + 1), v(TT + 1)))
        e("v_xor_b32 %s, %s, %s" % (v(AD), v(AD), v(TT + 1)))
        e("v_and_b32 %s, %d, v0" % (v(TT + 1), dma_k(3)))
        e("v_xor_b32 %s, %s, %s" % (v(AD), v(AD), v(TT + 1)))
        e("s_lshl_b32 %s, %s, 10" % (s(S_LB), s(S_WAVE)))
    else:
        e("v_lshrrev_b32 %s, 6, v0" % v(TT))
        e("v_bfe_u32 %s, v0, 4, 2" % v(TT + 1))
        e("v_lshl_add_u32 %s, %s, 5, %s" % (v(TT), v(TT), v(TT + 1)))
        e("v_and_b32 %s, 15, v0" % v(AD))
        e("v_lshlrev_b32 %s, 4, %s" % (v(AD), v(AD)))
        e("v_lshl_add_u32 %s, %s, 13, %s" % (v(AD), v(TT), v(AD)))
        e("v_bfe_u32 %s, v0, 4, %d" % (v(TT + 1), swz_bits))
        e("v_lshlrev_b32 %s, 5, %s" % (v(TT + 1), v(TT + 1)))
        e("v_xor_b32 %s, %s, %s" % (v(AD), v(AD), v(TT + 1)))
        for k in range(1, 4):
            e("v_xor_b32 %s, %d, %s" % (v(AD + k), dma_k(k), v(AD)))
        e("s_add_u32 %s, %s, 1" % (s(S_LB), s(S_WAVE)))
        e("s_lshl_b32 %s, %s, 15" % (s(S_LB), s(S_LB)))
    e("s_lshl_b32 %s, %s, 8" % (s(S_GB), s(S_H)))
    q = VmQ(e)
    built = set()

    def dma(c):
        m, ci = chunks[c]
        if m not in built:
            srd(e, srds[m], ptrs[m], 512 * 4096 * 2)
            built.add(m)
        for i in range(8):
            if seq:
                e("s_add_u32 m0, %s, %d" % (s(S_LB), (((i >> 1) + 1) << 15) + (c % nslot) * 8192 + (i & 1) * 4096))
                e("s_add_u32 %s, %s, 0x%x" % (s(S_T1), s(S_GB), (128 * ci + 16 * i) * 8192))
            else:
                e("s_add_u32 m0, %s, %d" % (s(S_LB), (c % nslot) * 8192 + i * 1024))
                e("s_add_u32 %s, %s, 0x%x" % (s(S_T1), s(S_GB), (128 * ci + 4 * i) * 8192))
            e("buffer_load_dwordx4 %s, %s, %s offen%s lds" % (v(AD + (0 if seq else i & 3)), s(srds[m], 4), s(S_T1), OPT.get("cnt", "") if blk_xor_wave else OPT.get("wnt", "")))
            q.add(("c", c))
    lead = OPT.get("lead", 0) if blk_xor_wave else 0
    TL = 29
    S_TR = 91

    def touch(c):
        if c >= len(chunks):
            return
        m, ci = chunks[c]
        if m not in built:
            srd(e, srds[m], ptrs[m], 512 * 4096 * 2)
            built.add(m)
        e("s_add_u32 %s, %s, 0x%x" % (s(S_T1), s(S_MB), 128 * ci * 8192))
        e("buffer_load_dword %s, %s, %s, %s offen" % (v(JUNK), v(TL), s(srds[m], 4), s(S_T1)))
        q.add(("t", c))
    if lead:
        e("v_and_b32 %s, 63, v0" % v(TL))
        e("v_lshlrev_b32 %s, 7, %s" % (v(TL), v(TL)))
        e("s_lshl_b32 %s, %s, 2" % (s(S_MB), s(S_H)))
        e("s_add_u32 %s, %s, %s" % (s(S_MB), s(S_MB), s(S_WAVE)))
        e("s_lshl_b32 %s, %s, 13" % (s(S_MB), s(S_MB)))
        for c in range(nslot + lead):
            touch(c)
    for c in range(nslot):
        dma(c)
    TT = 30
    lin(e, AR, {0: 8, 1: 16, **{k: c * 256 for k, c in row_lane.items()}})
    lin(e, TT, lane_f)
    lin(e, TT + 1, {6: 64, 7: 128})
    e("v_xor_b32 %s, %s, %s" % (v(TT), v(TT), v(TT + 1)))
    e("v_add_u32 %s, %s, %s" % (v(TT), v(TT), v(AR)))
    for k in range(4):
        if blk_xor_wave:
            e("s_xor_b32 %s, %s, %d" % (s(S_T0), s(S_WAVE), k))
            e("s_add_u32 %s, %s, 1" % (s(S_T0), s(S_T0)))
            e("s_lshl_b32 %s, %s, 15" % (s(S_T0), s(S_T0)))
            e("v_add_u32 %s, %s, %s" % (v(AR + 2 * k), s(S_T0), v(TT)))
        else:
            e("v_add_u32 %s, 0x%x, %s" % (v(AR + 2 * k), (k + 1) << 15, v(TT)))
        e("v_xor_b32 %s, 32, %s" % (v(AR + 2 * k + 1), v(AR + 2 * k)))
    if pre:
        pre(q)
    for c, (m, ci) in enumerate(chunks):
        if side:
            side(c, q)
        q.wait(("c", c))
        e("s_barrier")
        for n_, (dst, k, T, ro) in enumerate(reads(m, ci)):
            if n_ == 12:
                e("s_waitcnt lgkmcnt(4)")
            e("ds_read_b64_tr_b16 %s, %s offset:%d" % (dst, v(AR + 2 * k + T), (c % nslot) * 8192 + ro * 256))
        e("s_waitcnt lgkmcnt(0)")
        e("s_barrier")
        if lead:
            touch(c + nslot + lead)
        if c + nslot < len(chunks):
            dma(c + nslot)
    return q


HOLD = {op: 32 + 8 * i for i, op in enumerate(o for o in LDS_OPS if o[0] != "O")}


def load_weights(e, P_WQ, P_WK, P_WV, P_WO, pre=None, mid=None):
    e.comment("---- load weight operands: Wq/Wk/Wv by LDS-DMA + transposing reads, Wo by dword loads + v_perm")
    VOFO = FREE1
    RING, TMP8 = 32, 120
    ptr = {"Q": P_WQ, "K": P_WK, "V": P_WV, "O": P_WO}
    SRDS = {"Q": 96, "K": 88, "V": 60, "O": 92}
    S_OB = 29

    def pre2(q):
        lin(e, VOFO, {0: 4, 1: 8, 2: 16, 3: 32, 4: 2 * 1024, 5: 4 * 1024, 6: 256, 7: 512})
        srd(e, SRDS["O"], ptr["O"], 512 * 4096 * 2)
        e("s_lshl_b32 %s, %s, 17" % (s(S_OB), s(S_H)))
        o_issue(0, q)
        pre(q)

    def reads(m, ci):
        tau, hi = ci >> 1, ci & 1
        out = []
        for k in range(4):
            u = 2 * k + tau
            for T in range(2):
                op = (m, T, u)
                for pr in range(2):
                    if op in HOLD:
                        dst = v(HOLD[op] + 4 * hi + 2 * pr, 2)
                    else:
                        kind, r = RES[op]
                        dst = (a if kind == "a" else v)(r + 4 * hi + 2 * pr, 2)
                    out.append((dst, k, T, 2 * pr))
        return out

    GORD = [7, 5, 3, 6, 4, 2, 1, 0]

    def o_issue(gi, q):
        g = GORD[gi]
        u = g >> 1
        base = (32, 48, 80)[gi % 3]
        e("s_xor_b32 %s, %s, %d" % (s(S_T0), s(S_WAVE), u))
        e("s_lshl_b32 %s, %s, 15" % (s(S_T0), s(S_T0)))
        e("s_add_u32 %s, %s, %s" % (s(S_T0), s(S_T0), s(S_OB)))
        for k in range(2):
            qq = 2 * (g & 1) + k
            for pr in range(4):
                for b in range(2):
                    row = 16 * b + 8 * (pr >> 1) + (pr & 1)
                    e("s_add_u32 %s, %s, 0x%x" % (s(S_T1), s(S_T0), row * 1024 + qq * 64))
                    e("buffer_load_dword %s, %s, %s, %s offen%s" % (v(base + k * 8 + pr * 2 + b), v(VOFO), s(SRDS["O"], 4), s(S_T1), OPT.get("ont", "")))
                    q.add(("o", g))

    def o_consume(gi, q):
        g = GORD[gi]
        q.wait(("o", g))
        base = (32, 48, 80)[gi % 3]
        for k in range(2):
            op = ("O", 2 * (g & 1) + k, g >> 1)
            dst = TMP8 if op in LDS_OPS else RES[op][1]
            assert op in LDS_OPS or RES[op][0] == "v"
            for pr in range(4):
                for hf in range(2):
                    e("v_perm_b32 %s, %s, %s, %s" % (v(dst + 2 * pr + hf), v(base + k * 8 + 2 * pr + 1), v(base + k * 8 + 2 * pr), s(S_PHI if hf else S_PLO)))
            if op in LDS_OPS:
                off = LDS_SLOT[op] * 2048
                assert off >= 24576
                e("ds_write_b128 %s, %s offset:%d" % (v(C_WL), v(TMP8, 4), off))
                e("ds_write_b128 %s, %s offset:%d" % (v(C_WL), v(TMP8 + 4, 4), off + 1024))
                e("s_waitcnt lgkmcnt(0)")

    def side(c, q):
        if 2 <= c < 10 and not OPT.get("noo"):
            o_consume(c - 2, q)
        if 1 <= c < 8 and not OPT.get("noo"):
            o_issue(c, q)
        early_start(e, c, q)

    chunks = [(m, ci) for m in "VKQ" for ci in range(4)]
    staged_load(e, chunks, ptr, SRDS, 1, lambda k: k << 6, {2: 32, 4: 64, 3: 128}, {5: 16, 3: 8, 4: 4, 2: 1}, True, reads, side, pre2, OPT.get("nslot", 3))
    for op, r in HOLD.items():
        off = LDS_SLOT[op] * 2048
        e("ds_write_b128 %s, %s offset:%d" % (v(C_WL), v(r, 4), off))
        e("ds_write_b128 %s, %s offset:%d" % (v(C_WL), v(r + 4, 4), off + 1024))
        if LDS_SLOT[op] % 4 == 3:
            e("s_waitcnt lgkmcnt(0)")
    e("s_waitcnt lgkmcnt(0)")


def setup_consts(e):
    T1, T2 = 104, 105
    AM = 100
    lin(e, C_IDX, {1: 0xEEEE - 0x4444}, 0x4444)
    lin(e, C_L16, {k: 16 << k for k in range(6)})
    lin(e, C_MW, {**{k: 16 << k for k in range(6)}, 6: 2048, 7: 4096})
    lin(e, C_WL, {**{k: 16 << k for k in range(6)}, 6: 32768, 7: 65536}, L_WL)
    lin(e, C_QW, {0: 4, 1: 8, 2: 16, 3: 32, 4: 2 * RS * 4, 5: 4 * RS * 4, 6: 64, 7: 128}, L_QX)
    lin(e, C_QR, {0: RS * 4, 2: 2 * RS * 4, 3: 4 * RS * 4, 4: 16, 5: 32}, L_QX)
    e("v_add_u32 %s, %d, %s" % (v(C_KW), L_KMX - L_QX, v(C_QW)))
    e("v_xor_b32 %s, 0x1000, %s" % (v(C_X2), v(C_MW)))
    lin(e, T1, {3: 1, 4: 2, 5: 4, 6: 8, 7: 16})
    e("v_add_u32 %s, %s, %s" % (v(T1), s(S_H), v(T1)))
    e("v_and_b32 %s, 31, %s" % (v(T1), v(T1)))
    e("v_lshlrev_b32 %s, 6, %s" % (v(T1), v(T1)))
    lin(e, C_PW, {0: 8, 1: 16, 2: 32, 3: 8192, 4: 2 * 8192, 5: 4 * 8192, 6: 8 * 8192, 7: 16 * 8192}, PB_OFF)
    e("v_add_u32 %s, %s, %s" % (v(C_PW), v(C_PW), v(T1)))
    mp_addr(e, C_MP, T1, T2)
    lin(e, C_FL, {0: 16, 1: 8, 2: 32, 3: 64, 4: 128, 5: 256, 6: 2048, 7: 4096})
    e("s_lshl_b32 %s, %s, 13" % (s(S_PR), s(S_H)))
    e("s_add_u32 %s, %s, 0x%x" % (s(S_PR), s(S_PR), PB_OFF))
    e("s_mov_b32 %s, 4096" % s(S_4K))
    e("v_and_b32 %s, 15, v0" % v(T1))
    for q in range(4):
        e("v_mov_b32 %s, 0" % v(AM + q))
        e("v_mov_b32 %s, 0x3f80" % v(T2))
        e("v_cmp_eq_u32 vcc, %d, %s" % (4 * q, v(T1)))
        e("v_cndmask_b32 %s, %s, %s, vcc" % (v(AM + q), v(AM + q), v(T2)))
        e("v_mov_b32 %s, 0x3f800000" % v(T2))
        e("v_cmp_eq_u32 vcc, %d, %s" % (4 * q + 1, v(T1)))
        e("v_cndmask_b32 %s, %s, %s, vcc" % (v(AM + q), v(AM + q), v(T2)))
    e("ds_write_b128 %s, %s offset:%d" % (v(C_L16), v(AM, 4), L_SEL))
    e("s_mov_b32 %s, 0x05040100" % s(S_PLO))
    e("s_mov_b32 %s, 0x07060302" % s(S_PHI))
    e("s_mov_b32 %s, 0x%x" % (s(S_SCALE), f32bits(128 ** -0.5 * 1.4426950408889634)))
    e("s_mov_b32 %s, 0x%x" % (s(S_BIG), f32bits(OPT.get('big', 2.0 ** 30))))
    e("s_mov_b32 %s, 0" % s(S_TMO))
    e("s_mov_b32 %s, 0x3f803f80" % s(S_ONES))
    e("s_mov_b32 %s, 0x3f803f80" % s(S_ONES + 1))
    e("s_lshl_b32 %s, %s, 14" % (s(S_T0), s(S_H)))
    e("s_lshr_b32 %s, %s, 1" % (s(S_T1), s(S_WAVE)))
    e("s_lshl_b32 %s, %s, 12" % (s(S_T1), s(S_T1)))
    e("s_add_u32 %s, %s, %s" % (s(S_KXO), s(S_T0), s(S_T1)))
    e("s_lshl_b32 %s, %s, 11" % (s(S_T1), s(S_WAVE)))
    e("s_add_u32 %s, %s, %s" % (s(S_VXO), s(S_T0), s(S_T1)))
    e("s_add_u32 %s, %s, 8192" % (s(S_VXO), s(S_VXO)))


def setup_pf(e):
    T1, T2 = 104, 105
    lin(e, T1, {0: 128, 1: 256, 2: 512, 3: 1024, 4: 2048, 6: 4096, 7: 8192})
    e("s_lshl_b32 %s, %s, 14" % (s(S_T0), s(S_H)))
    e("v_add_u32 %s, %s, %s" % (v(T1), s(S_T0), v(T1)))
    e("s_lshl_b32 %s, %s, 8" % (s(S_T0), s(S_H)))
    e("s_lshr_b32 %s, %s, 1" % (s(S_T1), s(S_WAVE)))
    e("s_lshl_b32 %s, %s, 7" % (s(S_T1), s(S_T1)))
    e("s_add_u32 %s, %s, %s" % (s(S_T0), s(S_T0), s(S_T1)))
    e("s_add_u32 %s, %s, 0x%x" % (s(S_T0), s(S_T0), SLAB_ST + MB_IN))
    e("v_and_b32 %s, 63, v0" % v(T0))
    e("v_mov_b32 %s, 0x%x" % (v(T2), OOB))
    e("v_cmp_lt_u32 vcc, 32, %s" % v(T0))
    e("v_cndmask_b32 %s, %s, %s, vcc" % (v(T1), v(T1), v(T2)))
    e("v_mov_b32 %s, %s" % (v(T2), s(S_T0)))
    e("v_cmp_eq_u32 vcc, 32, %s" % v(T0))
    e("v_cndmask_b32 %s, %s, %s, vcc" % (v(T1), v(T1), v(T2)))
    e("s_lshl_b32 %s, %s, 2" % (s(S_T0), s(S_H)))
    e("s_add_u32 %s, %s, 0x%x" % (s(S_T0), s(S_T0), SLAB_ST + FL_IN))
    e("v_mov_b32 %s, %s" % (v(T2), s(S_T0)))
    e("v_cmp_eq_u32 vcc, 33, %s" % v(T0))
    e("v_cndmask_b32 %s, %s, %s, vcc" % (v(C_PF), v(T1), v(T2)))


def mp_addr(e, dst, T1, T2):
    lin(e, dst, {0: 8, 1: 32, 4: 16, 5: 4, 6: 2048, 7: 4096}, MB_IN)
    e("v_mov_b32 %s, %s" % (v(T2), s(S_H)))
    lin(e, T1, {0: 256, 1: 64, 2: 128, 3: 512, 4: 1024}, src=T2)
    e("v_add_u32 %s, %s, %s" % (v(dst), v(T1), v(dst)))
    e("v_and_b32 %s, 12, v0" % v(T1))
    e("v_cmp_ne_u32 vcc, 0, %s" % v(T1))
    e("v_mov_b32 %s, 0x%x" % (v(T1), OOB))
    e("v_cndmask_b32 %s, %s, %s, vcc" % (v(dst), v(dst), v(T1)))


def mem0_load(e, P_MEM0, dst, T1, T2, TH, SR):
    srd(e, SR, P_MEM0, 8192)
    lin(e, T1, {0: 8, 1: 16, 2: 0x10000, 3: 0x10000, 4: 1024, 5: 4, 6: 64, 7: 128})
    e("v_mov_b32 %s, %s" % (v(TH), s(S_H)))
    lin(e, T2, {0: 32, 1: 2048, 2: 4096, 3: 256, 4: 512}, src=TH)
    e("v_add_u32 %s, %s, %s" % (v(T1), v(T1), v(T2)))
    e("buffer_load_dword %s, %s, %s, 0 offen" % (v(dst), v(T1), s(SR, 4)))


def init_fill(e, P_MEM0, MW, B, SR):
    M1, T1, T2, TH, MP, HP = B, B + 4, B + 5, B + 6, B + 7, B + 8
    ws = s(S_WS, 4)
    mem0_load(e, P_MEM0, HP, T1, T2, TH, SR)
    for k in range(4):
        e("v_mov_b32 %s, -1" % v(M1 + k))

    def fill8k(so):
        e("buffer_store_dwordx4 %s, %s, %s, %s offen sc1" % (v(M1, 4), v(MW), ws, s(so)))
        e("buffer_store_dwordx4 %s, %s, %s, %s offen offset:1024 sc1" % (v(M1, 4), v(MW), ws, s(so)))
    e("s_lshl_b32 %s, %s, 13" % (s(S_T0), s(S_H)))
    e("s_add_u32 %s, %s, 0x%x" % (s(S_T0), s(S_T0), PB_OFF))
    fill8k(S_T0)
    e("s_lshl_b32 %s, %s, 14" % (s(S_T0), s(S_H)))
    e("s_add_u32 %s, %s, 0x%x" % (s(S_T0), s(S_T0), HIST_OFF))
    e("s_add_u32 %s, %s, 0x2000" % (s(S_T1), s(S_T0)))
    fill8k(S_T0); fill8k(S_T1)
    e("s_mul_i32 %s, %s, 0x%x" % (s(S_T0), s(S_H), 2 * SLAB_ST))
    e("s_add_u32 %s, %s, 0x%x" % (s(S_T0), s(S_T0), SLAB_OFF + SLAB_ST + MB_IN + (0x4000000 if OPT.get("solo") else 0)))
    e("s_add_u32 %s, %s, 0x%x" % (s(S_T1), s(S_T0), SLAB_ST))
    fill8k(S_T0); fill8k(S_T1)
    e("v_lshlrev_b32 %s, 2, v0" % v(T1))
    e("s_lshl_b32 %s, %s, 10" % (s(S_T0), s(S_H)))
    for base in (FLAG_OFF + 0x4000, 0x1B0000, 0x1B8000):
        e("s_add_u32 %s, %s, 0x%x" % (s(S_T1), s(S_T0), base))
        e("buffer_store_dword %s, %s, %s, %s offen sc1" % (v(M1), v(T1), ws, s(S_T1)))
    e("v_mov_b32 %s, 0x%x" % (v(T2), OOB))
    e("v_cmp_lt_u32 vcc, 63, v0")
    e("v_cndmask_b32 %s, %s, %s, vcc" % (v(T1), v(T1), v(T2)))
    e("v_mov_b32 %s, %d" % (v(M1 + 9), 0 if OPT.get("kvflags", 1) else 1))
    e("s_lshl_b32 %s, %s, 8" % (s(S_T0), s(S_H)))
    e("s_add_u32 %s, %s, 0x%x" % (s(S_T1), s(S_T0), FLAG_OFF + 0x2000))
    e("buffer_store_dword %s, %s, %s, %s offen sc1" % (v(M1 + 9), v(T1), ws, s(S_T1)))
    e("s_mul_i32 %s, %s, 0x%x" % (s(S_T0), s(S_H), 2 * SLAB_ST))
    e("s_add_u32 %s, %s, 0x%x" % (s(S_T0), s(S_T0), SLAB_OFF + FL_IN))
    e("s_add_u32 %s, %s, 0x%x" % (s(S_T1), s(S_T0), SLAB_ST))
    e("buffer_store_dword %s, %s, %s, %s offen sc1" % (v(M1 + 9), v(T1), ws, s(S_T0)))
    e("buffer_store_dword %s, %s, %s, %s offen sc1" % (v(M1 + 9), v(T1), ws, s(S_T1)))
    if OPT.get("push"):
        e("v_mov_b32 %s, 0" % v(TH))
        e("s_lshl_b32 %s, %s, 8" % (s(S_T0), s(S_H)))
        e("s_add_u32 %s, %s, 0x%x" % (s(S_T0), s(S_T0), SYNC_OFF))
        e("buffer_store_dword %s, %s, %s, %s offen sc1" % (v(TH), v(T1), ws, s(S_T0)))
    mp_addr(e, MP, T1, T2)
    e("s_waitcnt vmcnt(16)")
    e("s_mov_b32 %s, 0x%x" % (s(S_T0), SLAB_OFF))
    e("buffer_store_dword %s, %s, %s, %s offen sc1" % (v(HP), v(MP), ws, s(S_T0)))


def ready_publish(e, T1, T2):
    e("s_waitcnt vmcnt(0)")
    e("s_barrier")
    e("v_mov_b32 %s, 1" % v(T1))
    e("s_lshl_b32 %s, %s, 2" % (s(S_T1), s(S_H)))
    e("v_lshlrev_b32 %s, 20, v0" % v(T2))
    e("buffer_store_dword %s, %s, %s, %s offen sc1" % (v(T1), v(T2), s(S_DBG, 4), s(S_T1)))


def xcc_publish(e, q):
    T1, T2 = 30, 31
    e("s_getreg_b32 %s, hwreg(HW_REG_XCC_ID)" % s(S_T0))
    e("s_and_b32 %s, %s, 15" % (s(S_T0), s(S_T0)))
    e("s_or_b32 %s, %s, 0x100" % (s(S_T0), s(S_T0)))
    e("v_mov_b32 %s, %s" % (v(T1), s(S_T0)))
    e("s_lshl_b32 %s, %s, 2" % (s(S_T1), s(S_H)))
    e("v_lshlrev_b32 %s, 20, v0" % v(T2))
    e("buffer_store_dword %s, %s, %s, %s offen offset:128 sc1" % (v(T1), v(T2), s(S_DBG, 4), s(S_T1)))
    q.add("hs")


S_MODE = 41


def early_start(e, c, q):
    T1, T2 = 30, 31
    ws = s(S_WS, 4)
    hsl = "buffer_load_dword %s, %s, %s, 0 offen sc1" % (v(T1), v(T2), s(S_DBG, 4))
    pfi = lambda: e("buffer_load_dword %s, %s, %s, %s offen sc1" % (v(JUNK), v(C_PF), ws, s(S_MB)))
    if c == 8:
        e("v_lshrrev_b32 %s, 2, %s" % (v(T2), v(C_L16)))
        e(hsl)
        q.add("hs2")
    if c == 9:
        e.comment("---- buffers initialised (debug[0..31]) and all 32 chain workgroups reported their XCC id (debug[32..63]);")
        q.wait("hs2")
        e("s_mov_b32 %s, 1" % s(S_MODE))
        e.label("L_HS")
        e("v_cmp_eq_u32 vcc, 0, %s" % v(T1))
        e("s_cbranch_vccz L_HS_ok")
        e(hsl)
        e("s_add_u32 %s, %s, 1" % (s(S_TMO), s(S_TMO)))
        e("s_cmp_gt_u32 %s, %d" % (s(S_TMO), TMO_LIMIT))
        e("s_waitcnt vmcnt(0)")
        e("s_cbranch_scc0 L_HS")
        e("s_branch L_HS_done")
        e.label("L_HS_ok")
        e("v_readlane_b32 %s, %s, 63" % (s(S_T0), v(T1)))
        e("v_cmp_ne_u32 vcc, %s, %s" % (s(S_T0), v(T1)))
        e("s_nop 1")
        e("s_cmp_lg_u32 vcc_hi, 0")
        e("s_cselect_b32 %s, 1, %d" % (s(S_MODE), OPT.get("forceslow", 0)))
        e.label("L_HS_done")
        e("s_mov_b32 %s, 0x%x" % (s(S_MB), SLAB_OFF - SLAB_ST))
        pfi()
        q.add("pf0")
    if c == 11:
        q.wait("pf0")
        if OPT.get("prof") == 1:
            e("s_memrealtime s[100:101]")
            e("s_waitcnt lgkmcnt(0)")
            e("s_mov_b32 s42, s100")
        e.label("L_F0")
        e("v_readlane_b32 %s, %s, 33" % (s(S_T0), v(JUNK)))
        e("s_nop 1")
        e("s_cmp_lg_u32 %s, 0" % s(S_T0))
        e("s_cbranch_scc1 L_F0_ok")
        pfi()
        e("s_add_u32 %s, %s, 1" % (s(S_TMO), s(S_TMO)))
        e("s_cmp_gt_u32 %s, %d" % (s(S_TMO), TMO_LIMIT))
        e("s_waitcnt vmcnt(0)")
        e("s_cbranch_scc0 L_F0")
        e.label("L_F0_ok")
        if OPT.get("prof") == 1:
            e("s_memrealtime s[100:101]")
            e("s_waitcnt lgkmcnt(0)")
            e("s_mov_b32 s43, s100")
        e("s_mov_b32 %s, 0x%x" % (s(S_MB), SLAB_OFF))
        pfi()
        q.add("pf1")


def smf_ins(acc, aop, op):
    return "v_smfmac_f32_16x16x64_bf16 %s, %s, %s, %s" % (v(acc, 4), v(aop, 4), opreg(op), v(C_IDX))


def stamp(e, i, on):
    if on:
        e("s_memtime %s" % s(S_ST + 2 * i, 2))


am = lambda u: AM + 4 * u


def idle_prep_ins():
    out = []
    for op in (("Q", 0, 0), ("Q", 1, 0), ("Q", 0, 1), ("Q", 1, 1), ("K", 0, 0), ("K", 1, 0)):
        out += lds_fetch_ins(op)
    z = ["v_mov_b64 %s, 0" % v(r, 2) for r in range(ACCQ, ACCQ + 24, 2)]
    return out, z


def delay(e, cyc):
    n = cyc // 4
    while n > 0:
        k = min(n, 16)
        e("s_nop %d" % (k - 1))
        n -= k


def main_loop(e, tag, sc, nsteps, stamps=False):
    L = lambda n: "L_%s_%s" % (tag, n)
    ws = s(S_WS, 4)
    solo = OPT.get("solo")
    trace = OPT.get("trace")
    acc = {"Q": ACCQ, "K": ACCK, "V": ACCV}
    S = lambda m, T, u: smf_ins(acc[m] + 4 * T, am(u), (m, T, u))
    Q = lambda T, u: S("Q", T, u)
    K = lambda T, u: S("K", T, u)
    V = lambda T, u: S("V", T, u)
    lg = lambda n: "s_waitcnt lgkmcnt(%d)" % n
    BAR = "s_barrier"
    add = lambda b, r: "v_add_f32 %s, %s, %s" % (v(b + r), v(b + r), v(b + r + 2))
    cvt = lambda d, x, y: "v_cvt_pk_bf16_f32 %s, %s, %s" % (v(d), v(x), v(y))
    ex = lambda r: "v_exp_f32 %s, %s" % (v(r), v(r))
    mf32 = lambda d, A, B, first: "v_mfma_f32_16x16x32_bf16 %s, %s, %s, %s" % (v(d, 4), v(A, 4), v(B, 4), "0" if first else v(d, 4))
    mf16 = lambda d, A, B: "v_mfma_f32_16x16x16_bf16 %s, %s, %s, %s" % (v(d, 4), v(A, 2), v(B, 2), v(d, 4))

    def run(sched, extra=None):
        for i_, (m_, rest) in enumerate(sched):
            e(m_)
            for x in (extra or {}).get(i_, []) + rest:
                if x.endswith(":"):
                    e.label(x[:-1])
                else:
                    e(x)
    e.label(L("start"))
    e("s_mov_b32 %s, 0" % s(S_STEP))
    e("s_mov_b32 %s, 0x%x" % (s(S_SLAB), SLAB_OFF))
    e("s_mov_b32 %s, 0" % s(S_PAR))
    e("s_mov_b32 %s, 0x%x" % (s(S_HIST), HIST_OFF - MB_IN))
    e("s_mov_b32 %s, 0x%x" % (s(S_OOB), OOB))
    if OPT.get("push"):
        e("s_add_u32 %s, %s, 0x%x" % (s(S_SY), s(S_WS), SYNC_OFF))
        e("s_addc_u32 %s, %s, 0" % (s(S_SY + 1), s(S_WS + 1)))
        e("s_mov_b32 %s, 4096" % s(S_SY + 2))
        e("s_mov_b32 %s, 0x20000" % s(S_SY + 3))
        e("s_lshl_b32 %s, %s, 7" % (s(S_FR), s(S_H)))
        e("s_lshl_b32 %s, %s, 2" % (s(S_FW), s(S_H)))
        e("s_cmp_eq_u32 %s, 3" % s(S_WAVE))
        e("s_cselect_b32 %s, %s, %s" % (s(S_FW), s(S_FW), s(S_OOB)))
    for u in (1, 2, 3):
        e("s_mov_b32 %s, 0x%x" % (s(S_U0 + u), u * 2048))
    e("s_mov_b32 %s, 0xcccccccc" % s(S_HM))
    e("s_mov_b32 %s, 0xcccccccc" % s(S_HM + 1))
    e("s_mov_b32 %s, 0" % s(S_SPIN))
    f, z = idle_prep_ins()
    for t in f + z:
        e(t)
    mldp = lambda P: ["buffer_load_dwordx4 %s, %s, %s, %s offen sc1" % (v(P, 4), v(C_MW), ws, s(S_MB)),
                      "buffer_load_dwordx4 %s, %s, %s, %s offen offset:1024 sc1" % (v(P + 4, 4), v(C_MW), ws, s(S_MB))]
    mld = mldp(AM)
    e("s_add_u32 %s, %s, 0x%x" % (s(S_MB), s(S_SLAB), MB_IN))
    for t in mld:
        e(t)
    e("s_waitcnt vmcnt(2)")
    if OPT.get("al"):
        e.raw(".p2align %d" % OPT["al"])
    for _ in range(OPT.get("pad", 0)):
        e("s_nop 0")
    e.label(L("step"))
    e("v_readlane_b32 %s, %s, 33" % (s(S_T0), v(JUNK)))
    e("s_add_u32 %s, %s, 0x%x" % (s(S_SLABN), s(S_SLAB), SLAB_ST))
    e("s_cmp_eq_u32 %s, 0" % s(S_T0))
    e("s_cbranch_scc1 %s" % L("refresh"))
    e.label(L("fresh"))
    e("s_add_u32 %s, %s, %s" % (s(S_KX), s(S_SLAB), s(S_KXO)))
    e("s_add_u32 %s, %s, %s" % (s(S_VX), s(S_SLAB), s(S_VXO)))
    e("s_xor_b32 %s, %s, 1" % (s(S_NPAR), s(S_PAR)))
    e("s_add_u32 %s, %s, 1" % (s(S_NEXT), s(S_STEP)))
    if OPT.get("push"):
        e("s_mov_b32 %s, %s" % (s(S_NX2), s(S_NEXT)))
        e("v_mov_b32 %s, %s" % (v(FREE1), s(S_NEXT)))
    tr = 2
    if OPT.get("m3"):
        tr = 4
        delay(e, OPT.get("pm0", 0))
        for x in mld:
            e(x)
    ns = OPT.get("ns", 0)
    if ns:
        e("s_cmp_lt_u32 %s, %d" % (s(S_WAVE), ns))
        e("s_cbranch_scc1 %s" % L("onem"))
    delay(e, OPT.get("pm", 64) - (24 if ns else 0))
    e.label(L("retrym"))
    for x in mld:
        e(x)
    e.label(L("prem"))
    e("s_add_u32 %s, %s, 1" % (s(S_TMO), s(S_TMO)))
    e("s_cmp_gt_u32 %s, %d" % (s(S_TMO), TMO_LIMIT))
    e("s_cselect_b32 %s, -1, -2" % s(S_LIM))
    e("v_xor_b32 %s, 0x800, %s" % (v(am(3)), v(C_MW)))
    e("v_xor_b32 %s, 0x1800, %s" % (v(am(7)), v(C_MW)))
    for x in z[:4]:
        e(x)
    e.label(L("waitm"))
    e("s_waitcnt vmcnt(%d) lgkmcnt(0)" % (1 + tr))
    e.label(L("gotm"))
    stamp(e, 0, stamps)
    T1 = am(2)
    mw = ["ds_write_b128 %s, %s offset:%d" % (v(C_MW), v(am(k), 4), L_MEMI + 1024 * k) for k in range(2)]
    PK = ACCK
    pst = lambda q: "buffer_store_dwordx2 %s, %s, %s, %s offen offset:%d%s" % (v(PK + 2 * q, 2), v(C_PW), ws, "0" if q < 2 else s(S_4K), (q & 1) * 2048, sc or OPT.get("pstf", ""))
    tg = lambda q: "v_and_or_b32 %s, %s, -2, %s" % (v(PK + 2 * q), v(PK + 2 * q), s(S_TAG))
    kx = lambda ks: "buffer_load_dwordx4 %s, %s, %s, %s offen offset:%d sc1" % (v(XB + 4 * ks, 4), v(C_L16), ws, s(S_KX), ks * 1024)
    vx = lambda T: "buffer_load_dwordx4 %s, %s, %s, %s offen offset:%d sc1" % (v(VX + 4 * T, 4), v(C_L16), ws, s(S_VX), T * 1024)
    amrd = lambda u: "ds_read_b128 %s, %s offset:%d" % (v(am(u), 4), v(C_X2 if u >> 1 == 2 else am(u | 1)), L_MEMI + (u & 1) * 1024)
    q7 = lds_fetch_ins(("Q", 0, 7)) + lds_fetch_ins(("Q", 1, 7))
    k2 = lds_fetch_ins(("K", 0, 2)) + lds_fetch_ins(("K", 1, 2))
    k7 = lds_fetch_ins(("K", 0, 7)) + lds_fetch_ins(("K", 1, 7))
    of = sum([lds_fetch_ins(op) for op in OLDS], [])
    qbrd = lambda ks: "ds_read_b128 %s, %s offset:%d" % (v(QB + 4 * ks, 4), v(C_QR), 64 * ks)
    KM = XA
    kmrd = lambda ks: "ds_read_b128 %s, %s offset:%d" % (v(KM + 4 * ks, 4), v(C_QR), L_KMX - L_QX + 64 * ks)
    SX, SM = ACCQ, ACCQ + 4
    ONES, PX, PM, VM0, VM1 = XB, XB + 4, XB + 8, XB + 10, XB + 12
    TA = XB + 14
    LS, OA, OP = SX, ACCK, SM
    smx = lambda ks: mf32(SX, XB + 4 * ks, QB + 4 * ks, ks == 0)
    smm = lambda ks: mf32(SM, KM + 4 * ks, QB + 4 * ks, ks == 0)
    pf = "buffer_load_dword %s, %s, %s, %s offen sc1" % (v(JUNK), v(C_PF), ws, s(S_SLABN))
    hist = "buffer_store_dword %s, %s, %s, %s offen sc1" % (v(HPEND), v(C_MP), ws, s(S_HIST))
    zw = ["v_mov_b64 %s, 0" % v(r, 2) for r in range(AM, AM + 16, 2)]
    OOP = AM + 12
    o64 = OPT.get("o64", 1)
    if o64:
        oad = ["v_bitop3_b32 %s, %s, %s, -9 bitop3:0x28" % (v(OOP + 4 * u), v(C_FL), s(S_U0 + u)) for u in (1, 2, 3)]
    else:
        oad = ["v_xor_b32 %s, 0x%x, %s" % (v(OOP + 4 * u), u * 2048, v(C_MW)) for u in (1, 3)]
    L_OE = L_PX + 1024
    mx3 = lambda d, x, y, z_: "v_max3_u32 %s, %s, %s, %s" % (v(d), v(x), v(y), v(z_))
    mov0 = lambda r: "v_mov_b32 %s, 0" % v(r)
    qs = lambda r: "v_mul_f32 %s, %s, %s" % (v(ACCQ + r), s(S_SCALE), v(ACCQ + r))
    push = OPT.get("push", 0) and not solo
    F0, FA, FS = AM + 28, AM + 29, AM + 30
    fst = "buffer_store_dword %s, %s, %s, %s offen%s" % (v(FREE1), v(FS), s(S_SY, 4), s(S_FW), sc)
    fld = "buffer_load_dword %s, %s, %s, %s offen sc1" % (v(F0), v(FA), s(S_SY, 4), s(S_FR))
    fw = OPT.get("fw", 2)
    fsc = "v_lshlrev_b32 %s, 3, %s" % (v(FS), v(C_L16))
    ex0 = {}
    if push and fw < 0:
        ex0 = {62 + fw: [fst]}
    early = OPT.get("early", 1)
    e(mx3(T0, AM, AM + 1, AM + 2))
    e("v_max_u32 %s, %s, %s" % (v(T0), v(T0), v(AM + 3)))
    run([
        (Q(0, 0), ["s_waitcnt vmcnt(%d)" % tr, mx3(T0, T0, AM + 4, AM + 5)]),
        (Q(1, 0), [mx3(T0, T0, AM + 6, AM + 7), "v_cmp_lt_u32 vcc, %s, %s" % (s(S_LIM), v(T0))]),
        (Q(0, 1), [mw[0]] + ([] if solo else ["s_cbranch_vccnz %s" % L("retrym")])),
        (Q(1, 1), [mw[1]]),
    ] + ([
        (K(0, 0), [kx(0)]),
        (K(1, 0), [kx(1)]),
        (K(0, 1), [kx(2)]),
        (K(1, 1), [lg(0), BAR, amrd(2)]),
        (V(0, 0), [amrd(3)]),
        (V(1, 0), [kx(3)]),
        (V(0, 1), [vx(0)]),
        (V(1, 1), [amrd(4), lg(2)]),
        (Q(0, 2), [vx(1)]),
        (Q(1, 2), [amrd(5), lg(2)]),
        (Q(0, 3), [amrd(6)]),
        (Q(1, 3), [amrd(7), lg(3)]),
        (Q(0, 4), [q7[0]]),
        (Q(1, 4), [q7[1], lg(4)]),
        (Q(0, 5), [q7[2]]),
        (Q(1, 5), [q7[3], lg(4)]),
        (Q(0, 6), [pf]),
        (Q(1, 6), [k2[0], k2[1], lg(2)]),
    ] if early == 2 else [
        (K(0, 0), [kx(0), vx(0)] if early else [kx(0)]),
        (K(1, 0), [kx(1), vx(1)] if early else [kx(1)]),
        (K(0, 1), [kx(2), kx(3)] if early else [kx(2)]),
        (K(1, 1), [lg(0), BAR, amrd(2)]),
        (V(0, 0), [amrd(3)]),
        (V(1, 0), [pf] if early else [kx(3)]),
        (V(0, 1), [amrd(4)]),
        (V(1, 1), [amrd(5), lg(3)]),
        (Q(0, 2), [amrd(6)]),
        (Q(1, 2), [amrd(7), lg(4)]),
        (Q(0, 3), [q7[0]]),
        (Q(1, 3), [q7[1], lg(4)]),
        (Q(0, 4), [q7[2]]),
        (Q(1, 4), [q7[3], lg(4)]),
        (Q(0, 5), [] if early else [vx(0)]),
        (Q(1, 5), [k2[0]]),
        (Q(0, 6), [] if early else [vx(1)]),
        (Q(1, 6), [k2[1], lg(2)]),
    ]) + [
        (Q(0, 7), [k2[2]]),
        (Q(1, 7), [k2[3]]),
        (K(0, 3), [k7[0], "s_nop 0"]),
        (K(1, 3), [k7[1], add(ACCQ, 0), add(ACCQ, 1)]),
        (K(0, 4), [k7[2], add(ACCQ + 4, 0), add(ACCQ + 4, 1), qs(0)]),
        (K(1, 4), [k7[3], qs(4), qs(1), qs(5)]),
        (K(0, 5), [lg(4), cvt(ACCQ + 2, ACCQ, ACCQ + 4), cvt(ACCQ + 3, ACCQ + 1, ACCQ + 5)]),
        (K(0, 2), ["ds_write2_b32 %s, %s, %s offset0:0 offset1:%d" % (v(C_QW), v(ACCQ + 2), v(ACCQ + 3), RS)]),
        (K(1, 2), [] if early else [pf]),
        (K(1, 5), []),
        (K(0, 6), [hist]),
        (K(1, 6), [lg(0), BAR]),
        (K(0, 7), [qbrd(0)]),
        (K(1, 7), [qbrd(1)]),
        (V(0, 2), [qbrd(2)]),
        (V(1, 2), [qbrd(3), "s_waitcnt vmcnt(2) lgkmcnt(3)"]),
        (smx(0), [lg(2), add(ACCK, 0), add(ACCK, 1)]),
        (smx(1), [lg(1), add(ACCK + 4, 0), add(ACCK + 4, 1)]),
        (smx(2), [lg(0), cvt(ACCK + 2, ACCK, ACCK + 4), cvt(ACCK + 3, ACCK + 1, ACCK + 5)]),
        (smx(3), ["ds_write2_b32 %s, %s, %s offset0:0 offset1:%d" % (v(C_KW), v(ACCK + 2), v(ACCK + 3), RS)]),
        (V(0, 3), ["v_mov_b64 %s, %s" % (v(ONES, 2), s(S_ONES, 2))]),
        (V(1, 3), ["s_nop 1", "v_mov_b64 %s, %s" % (v(ONES + 2, 2), s(S_ONES, 2))]),
        (V(0, 4), [ex(SX)]),
        (V(1, 4), [lg(0), BAR, ex(SX + 1)]),
        (V(0, 5), [kmrd(0), ex(SX + 2)]),
        (V(1, 5), [kmrd(1), ex(SX + 3)]),
        (V(0, 6), [kmrd(2), cvt(PX, SX, SX + 1), cvt(PX + 1, SX + 2, SX + 3)]),
        (V(1, 6), [kmrd(3), "ds_write_b64 %s, %s offset:%d" % (v(C_MW), v(PX, 2), L_PX), lg(4)]),
        (smm(0), [lg(3), mov0(PM + 1), mov0(VM0 + 1)]),
        (smm(1), [lg(2), mov0(VM1 + 1), zw.pop(0)]),
        (smm(2), [lg(1), zw.pop(0), zw.pop(0)]),
        (smm(3), [lg(0), BAR]),
        (V(0, 7), ["ds_read_b64 %s, %s offset:%d" % (v(PX + 2, 2), v(C_X2), L_PX), zw.pop(0)]),
        (V(1, 7), ([fsc] if push else []) + [zw.pop(0), zw.pop(0), ex(SM), ex(SM + 1), lg(0)]),
        (mf32(LS, ONES, PX, True), [cvt(PM, SM, SM + 1), add(ACCV, 0)]),
        (mf32(OA, VX, PX, True), [add(ACCV, 1), add(ACCV + 4, 0)]),
        (mf32(OA + 4, VX + 4, PX, True), [cvt(VM0, ACCV, ACCV + 1), add(ACCV + 4, 1)]),
        (mf16(LS, ONES, PM), [cvt(VM1, ACCV + 4, ACCV + 5), zw.pop(0)]),
        (mf16(OA, VM0, PM), [zw.pop(0), oad[0]]),
        (mf16(OA + 4, VM1, PM), oad[1:] + ["v_rcp_f32 %s, %s" % (v(TA), v(LS))]),
    ], ex0)
    assert not zw
    e("v_max_f32 %s, %s, %s" % (v(T0), v(TA), v(LS)))
    e("v_cmp_nge_f32 vcc, %s, %s" % (s(S_BIG), v(T0)))
    for r in (0, 2, 4, 6):
        e("v_pk_mul_f32 %s, %s, %s op_sel_hi:[1,0]" % (v(OA + r, 2), v(OA + r, 2), v(TA, 2)))
    for r in (0, 2, 1, 3):
        e(cvt(OP + r, OA + r, OA + 4 + r))
    if OPT.get("pflat"):
        e("s_memtime s[74:75]")
        e("s_waitcnt vmcnt(1)")
        e("s_memtime s[72:73]")
        e("s_waitcnt lgkmcnt(0)")
    e.label(L("rejoin"))
    if o64:
        for k in range(2):
            e("v_cndmask_b32 %s, %s, %s, %s" % (v(LS + 2 + k), v(OP + k), v(OP + 2 + k), s(S_HM, 2)))
        e("ds_write_b64 %s, %s offset:%d" % (v(C_FL), v(LS + 2, 2), L_OE))
    else:
        e("ds_write_b128 %s, %s offset:%d" % (v(C_MW), v(OP, 4), L_OE))
    WACC = AM
    SO = lambda q, u: smf_ins(WACC + 4 * q, OP if u == 0 else OOP + 4 * u, ("O", q, u))
    ord_ = lambda u: "ds_read_b128 %s, %s offset:%d" % (v(OOP + 4 * u, 4), v(C_X2 if u == 2 and not o64 else OOP + 4 * u), L_OE)
    SEL, RD = ACCV, ACCV + 4
    wc = lambda q, r: cvt(PK + 2 * q + r, WACC + 4 * q + r, WACC + 4 * q + 2 + r)
    extra = {}
    if push:
        extra = {fw: [fst]} if fw >= 0 else {}
        for pos in (OPT.get("fr", 7), OPT.get("fr2", 11), OPT.get("fr3", 14)):
            extra.setdefault(pos, []).append(fld)
    run([
        (SO(0, 0), ["v_bfe_u32 %s, %s, 2, 7" % (v(FA), v(C_L16)), mov0(F0)] if push else []),
        (SO(1, 0), [lg(0), BAR, ord_(1), ord_(2)] if OPT.get("b4", 1) else []),
        (SO(2, 0), [ord_(3)] if OPT.get("b4", 1) else [lg(0), BAR, ord_(1), ord_(2)]),
        (SO(3, 0), ([] if OPT.get("b4", 1) else [ord_(3)]) + [of[0], of[1], lg(4)]),
        (SO(0, 1), [of[2], lg(4)]),
        (SO(0, 2), [of[3], lg(4)]),
        (SO(0, 3), [of[4], "s_cmp_lg_u64 vcc, 0"]),
        (SO(1, 1), [of[5], "s_cselect_b32 %s, %s, %s" % (s(S_TAG), s(S_NPAR), s(S_PAR))]),
        (SO(1, 2), [of[6], wc(0, 0)] + ([wc(0, 1), tg(0)] if OPT.get("fs") else [])),
        (SO(1, 3), [pst(0)] if OPT.get("fs") else [of[7], wc(0, 1), tg(0)]),
        (SO(2, 1), [of[7]] if OPT.get("fs") else [pst(0)]),
        (SO(2, 2), [lg(4), "s_nop 0", wc(1, 0)]),
        (SO(2, 3), ["ds_read_b128 %s, %s offset:%d" % (v(SEL, 4), v(C_L16), L_SEL), wc(1, 1), tg(1)]),
        (SO(3, 1), [pst(1), lg(1)]),
        (SO(3, 2), ["s_nop 1", wc(2, 0)]),
        (SO(3, 3), ["s_nop 2", wc(2, 1), tg(2), pst(2), wc(3, 0), wc(3, 1), tg(3), pst(3)]),
    ], extra)
    e.label(L("stored"))
    stamp(e, 1, stamps)
    e("s_cmp_lg_u32 %s, %s" % (s(S_TAG), s(S_PAR)))
    e("s_cbranch_scc1 %s" % L("safe"))
    f, z = idle_prep_ins()
    n0 = OPT.get("n0", 12)
    PD = VX
    pld = lambda P: ["buffer_load_dwordx4 %s, %s, %s, %s offen sc1" % (v(P, 4), v(C_MW), ws, s(S_PR)),
                     "buffer_load_dwordx4 %s, %s, %s, %s offen offset:1024 sc1" % (v(P + 4, 4), v(C_MW), ws, s(S_PR))]
    pub = "buffer_store_dword %s, %s, %s, %s offen%s" % (v(HPEND), v(C_MP), ws, s(S_T0), sc)
    if push:
        e.label(L("sync"))
        e("v_cmp_gt_u32 vcc, %s, %s" % (s(S_NX2), v(F0)))
        e(fld)
        e("s_add_u32 %s, %s, 1" % (s(S_SPIN), s(S_SPIN)))
        e("s_cmp_le_u32 %s, %d" % (s(S_SPIN), TMO_LIMIT * 8))
        e("s_cselect_b32 %s, %s, 0" % (s(S_NX2), s(S_NX2)))
        e("s_waitcnt vmcnt(24)")
        delay(e, OPT.get("sper", 0))
        e("s_cbranch_vccnz %s" % L("sync"))
    for x in f[:n0]:
        e(x)
    delay(e, OPT.get("d1", 0))
    for q in range(1, 4):
        e("s_cmp_lt_u32 %s, %d" % (s(S_WAVE), q))
        e("s_cbranch_scc1 %s" % L("pollp"))
        delay(e, OPT.get("dp", 40))
    e.label(L("pollp"))
    stamp(e, 4, stamps and not OPT.get("pflat"))
    PB_ = AM + 16
    for x in pld(PD):
        e(x)
    for x in f[n0:] + z[4:8]:
        e(x)
    p1 = OPT.get("p1")
    if ns:
        e("s_cmp_lt_u32 %s, %d" % (s(S_WAVE), ns))
        e("s_cbranch_scc1 %s" % L("onep"))
    if not p1:
        delay(e, OPT.get("pp", 128) - (24 if ns else 0))
        for x in pld(PB_):
            e(x)
    e.label(L("prep"))
    e("s_add_u32 %s, %s, 0x%x" % (s(S_MB), s(S_SLABN), MB_IN))
    chk = lambda P: ["v_bitop3_b32 %s, %s, %s, %s bitop3:0x7e" % (v(T0), v(P), v(P + 2), s(S_PAR)),
                     "v_bitop3_b32 %s, %s, %s, %s bitop3:0x7e" % (v(FREE1), v(P + 4), v(P + 6), s(S_PAR)),
                     "v_bitop3_b32 %s, %s, %s, 1 bitop3:0xa8" % (v(T0), v(T0), v(FREE1)),
                     "v_cmp_ne_u32 vcc, 0, %s" % v(T0)]

    def finish():
        for rot in (8, 4):
            for r in (0, 1):
                e("v_add_f32_dpp %s, %s, %s row_ror:%d row_mask:0xf bank_mask:0xf" % (v(RD + r), v(RD + r), v(RD + r), rot))
        e(cvt(HPEND, RD, RD + 1))
        e(pub)

    def attempt(P, base):
        e("s_waitcnt vmcnt(%d) lgkmcnt(0)" % (base + 1))
        e(mf32(RD, SEL, P, True))
        e(chk(P)[0])
        e("s_waitcnt vmcnt(%d)" % base)
        e(mf32(RD, SEL, P + 4, False))
        for x in chk(P)[1:]:
            e(x)
        e("s_nop 2")
        e("s_cmp_eq_u64 vcc, 0")
        e("s_cselect_b32 %s, %s, %s" % (s(S_T0), s(S_HIST if solo else S_SLABN), s(S_OOB)))
        finish()
    attempt(PD, 0 if p1 else 2)
    if not solo:
        e("s_cbranch_scc1 %s" % L("gotp"))
        if p1:
            for x in pld(PB_):
                e(x)
            e(pub)
            delay(e, 96)
        e.label(L("retryp"))
        for x in pld(PD):
            e(x)
        attempt(PB_, 3)
        e("s_cbranch_scc1 %s" % L("gotp"))
        for x in pld(PB_):
            e(x)
        attempt(PD, 3)
        e("s_cbranch_scc1 %s" % L("gotp"))
        e("s_add_u32 %s, %s, 1" % (s(S_TMO), s(S_TMO)))
        e("s_cmp_le_u32 %s, %d" % (s(S_TMO), TMO_LIMIT))
        e("s_cbranch_scc1 %s" % L("retryp"))
        e("s_mov_b32 %s, %s" % (s(S_T0), s(S_SLABN)))
        e(pub)
    e.label(L("gotp"))
    stamp(e, 2, stamps)
    e("s_add_u32 %s, %s, 0x2000" % (s(S_HIST), s(S_HIST)))
    e("s_cmp_ge_u32 %s, %d" % (s(S_NEXT), nsteps))
    e("s_cbranch_scc1 %s" % L("last"))
    e("s_mov_b32 %s, %s" % (s(S_SLAB), s(S_SLABN)))
    e("s_mov_b32 %s, %s" % (s(S_STEP), s(S_NEXT)))
    e("s_mov_b32 %s, %s" % (s(S_PAR), s(S_NPAR)))
    for x in z[8:]:
        e(x)
    if trace:
        e("s_memrealtime s[100:101]")
        e("s_memtime s[70:71]")
        e("s_lshl_b32 s3, %s, 2" % s(S_H))
        e("s_add_u32 s3, s3, %s" % s(S_WAVE))
        e("s_lshl_b32 s3, s3, 6")
        e("s_add_u32 s3, s3, %s" % s(S_STEP))
        e("s_lshl_b32 s3, s3, 5")
        e("s_add_u32 s3, s3, 0x200000")
        e("s_waitcnt lgkmcnt(0)")
        for k, r in enumerate((64, 66, 68, 100, 70, 72, 74, S_TMO)):
            e("v_mov_b32 %s, %s" % (v(AM + 8 + k), s(r)))
        e("buffer_store_dwordx4 %s, off, %s, s3" % (v(AM + 8, 4), ws))
        e("buffer_store_dwordx4 %s, off, %s, s3 offset:16" % (v(AM + 12, 4), ws))
    delay(e, OPT.get("dm", 112) - (128 if trace else 0))
    if ns and OPT.get("dmx"):
        e("s_cmp_ge_u32 %s, %d" % (s(S_WAVE), ns))
        e("s_cbranch_scc1 %s" % L("firem"))
        delay(e, OPT.get("dmx"))
        e.label(L("firem"))
    stamp(e, 5, stamps and not OPT.get("pflat"))
    for x in mld:
        e(x)
    e("s_branch %s" % L("step"))
    e.label(L("last"))
    e(hist)
    e("s_branch %s" % L("done"))
    if ns:
        e.label(L("onem"))
        e("s_waitcnt vmcnt(0)")
        e("s_branch %s" % L("prem"))
        e.label(L("onep"))
        e("v_mov_b32 %s, %s" % (v(PB_), s(S_NPAR)))
        e("s_waitcnt vmcnt(0)")
        e("s_branch %s" % L("prep"))
    e.label(L("refresh"))
    e("buffer_load_dword %s, %s, %s, %s offen sc1" % (v(JUNK), v(C_PF), ws, s(S_SLAB)))
    e("s_add_u32 %s, %s, 1" % (s(S_TMO), s(S_TMO)))
    e("s_cmp_le_u32 %s, %d" % (s(S_TMO), TMO_LIMIT))
    e("s_waitcnt vmcnt(0)")
    e("s_cbranch_scc1 %s" % L("step"))
    e("s_branch %s" % L("fresh"))
    e.label(L("safe"))
    e.fence(12)
    e("s_waitcnt vmcnt(0) lgkmcnt(0)")
    e("s_barrier")
    W = AM
    for ks in range(4):
        e(qbrd(ks))
        e(kmrd(ks))
    e("s_xor_b32 %s, %s, 0x1000" % (s(S_T0), s(S_KXO)))
    e("s_add_u32 %s, %s, %s" % (s(S_T0), s(S_T0), s(S_SLAB)))
    for ks in range(4):
        e("buffer_load_dwordx4 %s, %s, %s, %s offen offset:%d sc1" % (v(W + 4 * ks, 4), v(C_L16), ws, s(S_KX), ks * 1024))
        e("buffer_load_dwordx4 %s, %s, %s, %s offen offset:%d sc1" % (v(W + 16 + 4 * ks, 4), v(C_L16), ws, s(S_T0), ks * 1024))
    e("s_waitcnt vmcnt(0) lgkmcnt(0)")
    S0, S1, S2 = ACCQ, ACCQ + 4, ACCK
    for (d, src) in ((S0, W), (S1, W + 16), (S2, XA)):
        for ks in range(4):
            e(mf32(d, src + 4 * ks, QB + 4 * ks, ks == 0))
    M0_, M1_ = W, W + 1
    e("v_max3_f32 %s, %s, %s, %s" % (v(M0_), v(S0), v(S0 + 1), v(S0 + 2)))
    e("v_max3_f32 %s, %s, %s, %s" % (v(M0_), v(M0_), v(S0 + 3), v(S1)))
    e("v_max3_f32 %s, %s, %s, %s" % (v(M0_), v(M0_), v(S1 + 1), v(S1 + 2)))
    e("v_max3_f32 %s, %s, %s, %s" % (v(M0_), v(M0_), v(S1 + 3), v(S2)))
    e("v_max_f32 %s, %s, %s" % (v(M0_), v(M0_), v(S2 + 1)))
    for sw in ("v_permlane16_swap_b32", "v_permlane32_swap_b32"):
        e("v_mov_b32 %s, %s" % (v(M1_), v(M0_)))
        e("%s %s, %s" % (sw, v(M0_), v(M1_)))
        e("v_max_f32 %s, %s, %s" % (v(M0_), v(M0_), v(M1_)))
    for r in [S0 + i for i in range(8)] + [S2, S2 + 1]:
        e("v_sub_f32 %s, %s, %s" % (v(r), v(r), v(M0_)))
        e(ex(r))
    for q in range(4):
        e(cvt(PX + q, S0 + 2 * q, S0 + 2 * q + 1))
    e(cvt(PM, S2, S2 + 1))
    e(mf32(LS, ONES, PX, True)); e(mf32(OA, VX, PX, True)); e(mf32(OA + 4, VX + 4, PX, True))
    e(mf16(LS, ONES, PM)); e(mf16(OA, VM0, PM)); e(mf16(OA + 4, VM1, PM))
    e("v_rcp_f32 %s, %s" % (v(TA), v(LS)))
    for r in range(8):
        e("v_mul_f32 %s, %s, %s" % (v(OA + r), v(OA + r), v(TA)))
    for r in range(4):
        e(cvt(OP + r, OA + r, OA + 4 + r))
    for r in range(AM, AM + 16):
        e(mov0(r))
    for x in oad:
        e(x)
    if push:
        e(fsc)
    e("s_mov_b64 vcc, 0")
    e("s_branch %s" % L("rejoin"))
    e.label(L("done"))
```

```python
import sys
from asmlib import Emitter, v, a, s
import chain as C
for a_ in sys.argv:
    if a_.startswith('opt:'):
        k_, v_ = a_[4:].split('=')
        C.OPT[k_] = int(v_, 0) if v_.lstrip('-')[:1].isdigit() else v_.replace('_', ' ')
import worker as W
import mlp as M

BASE = "sequential_preLN__memory_aug_recurrent_mem_tr__moe_arch_mod__prompt"
K1 = BASE + "_kernel"
K2 = "route_up_kernel"
K3 = "down_kernel"
hdr = open(__import__("os").path.join(__import__("os").path.dirname(__import__("os").path.abspath(__file__)), "..", "%s.s.ref" % BASE)).read().split("\n")
hdr = [l for l in hdr[:hdr.index(next(l for l in hdr if "@launch" in l and l.startswith("; @launch")))] if "harness parses" not in l.lower() and "Override launch" not in l]
e = Emitter()
for l in hdr:
    e.raw(l)
DOC = """
Generated by gen/gen.py (hand-written generator scripts, see gen/*.py).
One persistent launch, 256 workgroups (one per CU), role = workgroup id & 7:
  0    chain: one workgroup per head keeps its Wq/Wk/Wv/Wo slices in registers + LDS and runs the 63 dependent
       memory updates.  The 8 memory rows use the sparse MFMA (8 rows x 2 k-halves or x 2 column tiles).
       Per step: partial out-projections -> reduce-scatter over the 32 workgroups -> all-gather of the new memory.
       Every hand-off word validates itself (sentinel or parity tag), readers use L1-bypassing loads.
       The chain workgroups report their XCC id at run time: only if all sit on one die the hand-off stores are
       plain (shared L2); otherwise the second copy of the loop with device-scope stores runs.
       Softmax of the memory rows exponentiates without a shift while 2^-30 <= row sum <= 2^30; a run-time check
       redoes the step with the true row maximum otherwise.
  1-6  workers (6 per head): q/k/v of the tokens, token attention (running true max), partial out-projection,
       cross-head reduction + residual + layernorm + router score, device-scope hand-offs.
  7    setup of the hand-off buffers, layernorm of x, then top-2 routing + MLP (recomputed whenever the top-2 of a
       longer token prefix changes; the final check sees all tokens).
Short waits in front of polls are back-off: early polls only slow the stores they are waiting for.
Every wait loop is bounded.
"""
for l in DOC.strip().split("\n"):
    e.raw("; " + l)
if C.OPT.get("list"):
    e.raw("; @launch kernel=%s grid=(256,1,1) block=(256,1,1) lds=%d" % (K1, C.LDS_BYTES))
else:
    e.raw("; @launch grid=(256,1,1) block=(256,1,1) lds=%d" % C.LDS_BYTES)
e.raw('.amdgcn_target "amdgcn-amd-amdhsa--gfx950"')
e.raw(".text")


def start(name):
    e.raw(".globl %s\n.p2align 8\n.type %s,@function" % (name, name))
    e.label(name)
    e.hist = []


PROF = C.OPT.get("prof", 0)


def rt(i, dbg=None):
    if not PROF:
        return
    if PROF == 2:
        if dbg is None:
            return
        e("s_cmp_lg_u32 %s, 0" % s(C.S_WAVE))
        e("s_cbranch_scc1 L_rt%d" % dbg)
        if dbg in (0, 3, 4):
            e("s_cmp_ge_u32 s2, 16")
            e("s_cbranch_scc1 L_rt%d" % dbg)
        e("s_memrealtime s[100:101]")
        e("s_waitcnt lgkmcnt(0)")
        e("s_and_b32 s100, s100, 0xffffff")
        if dbg == 0:
            e("s_sub_u32 s100, 0x1000000, s100")
        e("v_mov_b32 v14, s100")
        e("s_mov_b64 exec, 1")
        e("buffer_atomic_umax v14, off, %s, 0 offset:%d" % (s(C.S_DBG, 4), 4 * dbg))
        e("s_mov_b64 exec, -1")
        e.label("L_rt%d" % dbg)
        return
    e("s_memrealtime s[100:101]")
    e("s_lshl_b32 s3, s2, 6")
    e("s_add_u32 s3, s3, 0x%x" % C.STAMP_OFF)
    e("s_waitcnt lgkmcnt(0)")
    e("v_mov_b32 v14, s100")
    e("buffer_store_dword v14, off, %s, s3 offset:%d" % (s(C.S_WS, 4), 4 * i))
    e("s_waitcnt vmcnt(0)")


start(K1)
P = C.S_PTR
e("s_cmp_ge_u32 s2, 256")
e("s_cbranch_scc1 L_end")
e("s_load_dwordx8 %s, s[0:1], 0" % s(P, 8))
e("s_load_dwordx4 %s, s[0:1], 32" % s(P + 8, 4))
e("s_load_dwordx4 %s, s[0:1], 104" % s(P + 12, 4))
e("s_load_dwordx2 s[80:81], s[0:1], 64")
e("s_load_dwordx2 s[82:83], s[0:1], 96")
e("s_load_dwordx4 s[84:87], s[0:1], 72")
e("s_load_dwordx2 s[88:89], s[0:1], 88")
if C.OPT.get("warm", 0):
    e.comment("pull the kernel's own code into this die's L2 (it is executed mostly once, front to back)")
    e("s_getpc_b64 s[90:91]")
    e("s_and_b32 s90, s90, 0xffffff00")
    e("v_lshlrev_b32 v2, 7, v0")
    e("v_add_u32 v3, 0x8000, v2")
    e("v_min_u32 v3, CODE_LAST, v3")
    e("global_load_dword v126, v2, s[90:91]")
    e("global_load_dword v127, v3, s[90:91]")
e("v_lshrrev_b32 v1, 6, v0")
e("v_readfirstlane_b32 %s, v1" % s(C.S_WAVE))
e("s_waitcnt lgkmcnt(0)")
C.srd(e, C.S_WS, P + 14, C.WS_BYTES)
C.srd(e, C.S_DBG, P + 12, 256)
rt(0, 0)
if C.OPT.get("wtlb", 0):
    e.comment("first touch of every region, all at once: the address translations resolve in parallel")
    e("v_lshlrev_b32 v2, 19, v0")
    for pp in (P + 8, P + 10, P + 6, P + 4):
        C.srd(e, 12, pp, 4096 * 512 * 2)
        e("buffer_load_dword v127, v2, s[12:15], 0 offen")
    if C.OPT.get("wtlb") == 2:
        e("v_lshlrev_b32 v2, 20, v0")
        e("s_mov_b32 s12, 0xf0000")
        e("buffer_load_dword v127, v2, %s, s12 offen sc1" % s(C.S_WS, 4))
e("s_and_b32 s3, s2, 7")
e("s_cmp_lg_u32 s3, 0")
e("s_cbranch_scc1 L_worker")
e("s_lshr_b32 %s, s2, 3" % s(C.S_H))
for _ in range(C.OPT.get("cdelay", 0)):
    e("s_sleep 36")


def chain_pre(q):
    C.xcc_publish(e, q)
    C.mem0_load(e, P + 2, C.HPEND, 104, 105, 106, C.S_W)
    q.add("m0")
    if C.OPT.get("tlb", 0):
        e.comment("touch an unused word of every slab: address translations are resolved before the chain needs them")
        e("s_mov_b32 s36, 0x%x" % C.SLAB_ST)
        e("v_mul_lo_u32 v104, v0, s36")
        e("v_mov_b32 v105, 0x%x" % C.OOB)
        e("v_cmp_lt_u32 vcc, 1, v0")
        e("v_cndmask_b32 v104, v104, v105, vcc")
        e("s_mul_i32 s36, %s, 0x%x" % (s(C.S_H), 2 * C.SLAB_ST))
        e("s_add_u32 s36, s36, 0x%x" % (C.SLAB_OFF + C.FL_IN + 0x80))
        e("buffer_load_dword v126, v104, %s, s36 offen" % s(C.S_WS, 4))
        q.add("tlb")
        e("s_mov_b32 s36, 0xf0000")
        e("buffer_load_dword v127, off, %s, s36" % s(C.S_WS, 4))
        q.add("tlb")
    C.setup_consts(e)
    C.setup_pf(e)


C.load_weights(e, P + 4, P + 6, P + 8, P + 10, pre=chain_pre)
rt(1, 1)
e("s_cmp_lg_u32 %s, 0" % s(C.S_MODE))
e("s_cbranch_scc1 L_slow_start")
C.main_loop(e, "fast", "", 63, bool(C.OPT.get("trace")))
rt(2, 2)
if PROF == 1:
    for i in range(2):
        e("v_mov_b32 v14, %s" % s(42 + i))
        e("buffer_store_dword v14, off, %s, s3 offset:%d" % (s(C.S_WS, 4), 24 + 4 * i))
e("s_branch L_end")
C.main_loop(e, "slow", " sc1", 63)
e("s_branch L_end")
e.label("L_worker")


def common():
    C.srd(e, W.S_X, P, 2048 * 512 * 2)
    C.srd(e, W.S_OUT, 82, 2048 * 512 * 2)
    C.srd(e, W.S_WR, 80, 1024)
    W.setup(e)


def worker_pre(q):
    if C.OPT.get("touch", 1):
        e.comment("pull this head's Wo slice towards the last-level cache early (the chain CU streams it first)")
        C.srd(e, W.S_X, P + 10, 4096 * 512 * 2)
        e("s_lshl_b32 s24, %s, 17" % s(C.S_H))
        e("s_and_b32 s25, %s, 3" % s(W.S_R))
        e("s_lshl_b32 s25, s25, 15")
        e("s_add_u32 s24, s24, s25")
        e("v_lshlrev_b32 v30, 7, v0")
        e("buffer_load_dword v31, v30, %s, s24 offen" % s(W.S_X, 4))
        q.add("touch")
    common()


e("s_cmp_eq_u32 s3, 7")
e("s_cbranch_scc1 L_mlp")
W.ids(e)
if C.OPT.get("sweep", 0):
    e.comment("replicas 2..5 first stream the weight matrices once, linearly, in the order the chain needs them:")
    e("s_cmp_lt_u32 %s, 2" % s(W.S_R))
    e("s_cbranch_scc1 L_nosweep")
    e("s_lshl_b32 s24, %s, 2" % s(C.S_H))
    e("s_add_u32 s24, s24, %s" % s(W.S_R))
    e("s_sub_u32 s24, s24, 2")
    e("s_lshl_b32 s24, s24, 12")
    e("v_lshlrev_b32 v30, 4, v0")
    e("s_lshl_b32 s26, s24, 3")
    SR = {"V": 76, "O": 12, "K": 40, "Q": 96}
    for m_, pp in (("V", P + 8), ("O", P + 10), ("K", P + 6), ("Q", P + 4)):
        C.srd(e, SR[m_], pp, 4096 * 512 * 2)
    order = {0: "VVVVVVVVOOOOOOOOKKKKKKKKQQQQQQQQ", 1: "VVOVVOVVOVVOKKOKKOKKOKKOQQQQQQQQ", 2: "VOVOVOVOVOVOVOVOKKKKKKKKQQQQQQQQ"}[C.OPT.get("swo", 1)]
    cnt = {}
    for n_, m_ in enumerate(order):
        i = cnt.get(m_, 0)
        cnt[m_] = i + 1
        if m_ == "O":
            e("s_add_u32 s25, s26, 0x%x" % (i * 0x1000))
        else:
            e("s_add_u32 s25, s24, 0x%x" % (i * 0x80000))
        e("buffer_load_dwordx4 %s, v30, %s, s25 offen" % (v(96 + 4 * (n_ % 8), 4), s(SR[m_], 4)))
        e("s_waitcnt vmcnt(%d)" % C.OPT.get("swd", 3))
    e("s_waitcnt vmcnt(%d)" % C.OPT.get("sww", 16))
    e.label("L_nosweep")
if C.OPT.get("stag"):
    e("s_cmp_lt_u32 %s, %d" % (s(W.S_R), C.OPT.get("stagr", 1)))
    e("s_cbranch_scc1 L_go")
    for _ in range(C.OPT["stag"]):
        e("s_sleep 36")
    e.label("L_go")
W.load_w(e, P, C.OPT.get("word", "VKQ"), worker_pre)
rt(1, 3)
if PROF == 1:
    for i in range(2):
        e("v_mov_b32 v14, %s" % s(90 + i))
        e("buffer_store_dword v14, off, %s, s3 offset:%d" % (s(C.S_WS, 4), 24 + 4 * i))
W.phase1(e)
rt(2, 4)
if C.OPT.get("nop2"):
    e("s_branch L_end")
W.load_wo(e, P)
W.wait_tpinit(e)
rt(3)
W.phase2(e)
rt(4, 5)
if PROF == 1:
    for i in range(6):
        e("v_mov_b32 v14, %s" % s(44 + 2 * i))
        e("buffer_store_dword v14, off, %s, s3 offset:%d" % (s(C.S_WS, 4), 32 + 4 * i))
    e("v_mov_b32 v14, %s" % s(C.S_TMO))
    e("buffer_store_dword v14, off, %s, s3 offset:56" % s(C.S_WS, 4))
    e("v_mov_b32 v14, %s" % s(W.S_R))
    e("buffer_store_dword v14, off, %s, s3 offset:60" % s(C.S_WS, 4))
e("s_branch L_end")
e.label("L_mlp")
common()
e("s_lshr_b32 %s, s2, 3" % s(C.S_H))
W.xn_produce(e, lambda: C.init_fill(e, P + 2, W.W_MW, W.R0 + 48, 96))
rt(1)
if C.OPT.get("nop2") or C.OPT.get("nomlp"):
    e("s_branch L_end")
M.body(e, 84, 86, 88)
e.label("L_end")
if PROF:
    e("s_cmp_ge_u32 s2, 256")
    e("s_cbranch_scc1 L_end2")
    rt(5, 6)
    e.label("L_end2")
e("s_endpgm")
e.raw('.section .rodata,"a"')
for name, nv, acc in ((K1, 512, 256),):
    e.raw(""".p2align 6
.amdhsa_kernel %s
  .amdhsa_next_free_vgpr %d
  .amdhsa_next_free_sgpr 102
  .amdhsa_accum_offset %d
  .amdhsa_group_segment_fixed_size 0
  .amdhsa_kernarg_size 120
  .amdhsa_user_sgpr_count 2
  .amdhsa_user_sgpr_kernarg_segment_ptr 1
  .amdhsa_system_sgpr_workgroup_id_x 1
.end_amdhsa_kernel""" % (name, nv, acc))
out = sys.argv[1] if len(sys.argv) > 1 and not sys.argv[1].startswith("opt:") else "/code/%s.s" % BASE
import subprocess, tempfile, os, re
if C.OPT.get("x8", 3):
    import align
    e.lines = "\n".join(e.lines).split("\n")
    e.lines, st_ = align.process(e.lines, "L_fast_step", "L_fast_last", C.OPT.get("x8", 3))
    print("align (widened, nops, misaligned):", st_)
txt = e.text()
with tempfile.TemporaryDirectory() as td:
    open(td + "/a.s", "w").write(txt.replace("CODE_LAST", "0x12345"))
    subprocess.run(["clang", "-x", "assembler", "-target", "amdgcn-amd-amdhsa", "-mcpu=gfx950", "-c", td + "/a.s", "-o", td + "/a.o"], check=True)
    sec = subprocess.run(["llvm-readelf", "-S", td + "/a.o"], capture_output=True, text=True).stdout
    size = int(re.search(r"\.text\s+PROGBITS\s+\S+\s+\S+\s+(\S+)", sec).group(1), 16)
assert 0x8000 < size <= 0x10000
open(out, "w").write(txt.replace("CODE_LAST", "0x%x" % (size - 4)))
print("nops inserted:", e.nops_inserted, "lines:", len(e.lines), "->", out)
```

```python
from asmlib import Emitter, v, a, s
import struct

WS_BYTES = 0x10000000
PB_OFF = 0x0000000
SYNC_OFF = 0x0080000
HIST_OFF = 0x0100000
FLAG_OFF = 0x0190000
STAMP_OFF = 0x01A0000
SLAB_OFF = 0x1000000
SLAB_ST = 0x82100
MB_IN = 0x80000
FL_IN = 0x82000
OOB = 0x40000000

L_MEMI = 0
L_PX = 8192
RS = 72
L_QX = 16384
L_KMX = L_QX + 2304
L_OX = L_KMX + 2304
L_SEL = L_OX + 2048
L_WL = 32768
LDS_BYTES = 163840

S_WS = 8
S_W = 12
S_DBG = 16
S_H = 20
S_WAVE = 21
S_STEP = 22
S_SLAB = 23
S_SLABN = 24
S_KXO = 25
S_KX = 29
S_VX = 30
S_HIST = 31
S_TMO = 32
S_SCALE = 33
S_PLO = 34
S_PHI = 35
S_T0 = 36
S_T1 = 37
S_T2 = 38
S_VXO = 39
S_BIG = 40
S_PR = 6
S_MB = 7
S_4K = 26
S_PAR = 27
S_RDY = 62
S_NPAR = 28
S_TAG = 60
S_OOB = 61
S_FW = 88
S_FR = 89
S_NEXT = 90
S_SPIN = 91
S_LIM = 94
S_SY = 80
S_NX2 = 84
S_U0 = 95
S_HM = 92
S_W3 = 95
S_ONES = 4
S_PTR = 44
S_ST = 64

C_PF = 0
C_IDX, C_MW, C_L16, C_WL, C_QW, C_QR, C_KW, C_X2, C_PW, C_MP, FREE1, HPEND, C_FL, T0, JUNK = range(1, 16)
AM = 16
ACCQ = 48
ACCK = 56
ACCV = 64
QB = 72
XA = 88
XB = 104
VX = 120
VW = 128

TMO_LIMIT = 200000
OPT = {}


def f32bits(x):
    return struct.unpack("<I", struct.pack("<f", x))[0]


def lin(e, dst, coefs, const=0, tmp=T0, src=0):
    e("v_mov_b32 %s, 0x%x" % (v(dst), const))
    for k, c in sorted(coefs.items()):
        if c == 0:
            continue
        assert c < (1 << 24)
        e("v_bfe_u32 %s, %s, %d, 1" % (v(tmp), v(src), k))
        e("s_mov_b32 %s, 0x%x" % (s(S_T2), c))
        e("v_mad_u32_u24 %s, %s, %s, %s" % (v(dst), v(tmp), s(S_T2), v(dst)))


def srd(e, d, ptr, nbytes):
    e("s_mov_b32 %s, %s" % (s(d), s(ptr)))
    e("s_and_b32 %s, %s, 0xffff" % (s(d + 1), s(ptr + 1)))
    e("s_mov_b32 %s, 0x%x" % (s(d + 2), nbytes))
    e("s_mov_b32 %s, 0x20000" % s(d + 3))


LDS_OPS = {
    ("Q", 0, 0): XB + 0, ("Q", 1, 0): XB + 8, ("Q", 0, 1): XA + 0, ("Q", 1, 1): XA + 8,
    ("K", 0, 0): QB + 0, ("K", 1, 0): QB + 8,
    ("Q", 0, 7): XA + 0, ("Q", 1, 7): XA + 8,
    ("K", 0, 2): QB + 0, ("K", 1, 2): QB + 8,
    ("K", 0, 7): XA + 0, ("K", 1, 7): XA + 8,
    ("O", 2, 3): XA + 0, ("O", 3, 1): XA + 8, ("O", 3, 2): QB + 0, ("O", 3, 3): QB + 8,
}
OLDS = [("O", 2, 3), ("O", 3, 1), ("O", 3, 2), ("O", 3, 3)]
LDS_SLOT = {k: i for i, k in enumerate(LDS_OPS)}
ALL_OPS = [(m, T, u) for m in "QKV" for u in range(8) for T in range(2)] + [("O", q, u) for u in range(4) for q in range(4)]
RES = {}
_n = 0
for op in ALL_OPS:
    if op in LDS_OPS:
        continue
    RES[op] = ("a", _n * 8) if _n < 32 else ("v", VW + (_n - 32) * 8)
    _n += 1
assert _n == 48


def opreg(op):
    if op in LDS_OPS:
        return v(LDS_OPS[op], 8)
    k, r = RES[op]
    return (a if k == "a" else v)(r, 8)


def lds_fetch_ins(op):
    r = LDS_OPS[op]
    off = LDS_SLOT[op] * 2048
    return ["ds_read_b128 %s, %s offset:%d" % (v(r, 4), v(C_WL), off),
            "ds_read_b128 %s, %s offset:%d" % (v(r + 4, 4), v(C_WL), off + 1024)]


def lds_fetch(e, op):
    for t in lds_fetch_ins(op):
        e(t)


def rowpart(rho, b, hi=32):
    return hi * (rho >> 2) + 8 * (rho & 1) + 2 * ((rho >> 1) & 1) + b


class VmQ:
    def __init__(self, e):
        self.e, self.q = e, []

    def add(self, tag):
        self.q.append(tag)
        assert len(self.q) <= 63

    def wait(self, tag):
        if tag not in self.q:
            return
        last = len(self.q) - 1 - self.q[::-1].index(tag)
        self.e("s_waitcnt vmcnt(%d)" % (len(self.q) - 1 - last))
        self.q = self.q[last + 1:]


def staged_load(e, chunks, ptrs, srds, swz_bits, dma_k, lane_f, row_lane, blk_xor_wave, reads, side=None, pre=None, nslot=3):
    AD, AR = 16, 20
    TT = 28
    seq = OPT.get("seq", 1)
    S_LB, S_GB = 28, 3
    if seq:
        e("v_lshrrev_b32 %s, 4, v0" % v(TT))
        e("v_and_b32 %s, 15, v0" % v(AD))
        e("v_lshlrev_b32 %s, 4, %s" % (v(AD), v(AD)))
        e("v_lshl_add_u32 %s, %s, 13, %s" % (v(AD), v(TT), v(AD)))
        e("v_bfe_u32 %s, v0, 4, %d" % (v(TT + 1), swz_bits))
        e("v_lshlrev_b32 %s, 5, %s" % (v(TT + 1), v(TT + 1)))
        e("v_xor_b32 %s, %s, %s" % (v(AD), v(AD), v(TT + 1)))
        e("v_and_b32 %s, %d, v0" % (v(TT + 1), dma_k(3)))
        e("v_xor_b32 %s, %s, %s" % (v(AD), v(AD), v(TT + 1)))
        e("s_lshl_b32 %s, %s, 10" % (s(S_LB), s(S_WAVE)))
    else:
        e("v_lshrrev_b32 %s, 6, v0" % v(TT))
        e("v_bfe_u32 %s, v0, 4, 2" % v(TT + 1))
        e("v_lshl_add_u32 %s, %s, 5, %s" % (v(TT), v(TT), v(TT + 1)))
        e("v_and_b32 %s, 15, v0" % v(AD))
        e("v_lshlrev_b32 %s, 4, %s" % (v(AD), v(AD)))
        e("v_lshl_add_u32 %s, %s, 13, %s" % (v(AD), v(TT), v(AD)))
        e("v_bfe_u32 %s, v0, 4, %d" % (v(TT + 1), swz_bits))
        e("v_lshlrev_b32 %s, 5, %s" % (v(TT + 1), v(TT + 1)))
        e("v_xor_b32 %s, %s, %s" % (v(AD), v(AD), v(TT + 1)))
        for k in range(1, 4):
            e("v_xor_b32 %s, %d, %s" % (v(AD + k), dma_k(k), v(AD)))
        e("s_add_u32 %s, %s, 1" % (s(S_LB), s(S_WAVE)))
        e("s_lshl_b32 %s, %s, 15" % (s(S_LB), s(S_LB)))
    e("s_lshl_b32 %s, %s, 8" % (s(S_GB), s(S_H)))
    q = VmQ(e)
    built = set()

    def dma(c):
        m, ci = chunks[c]
        if m not in built:
            srd(e, srds[m], ptrs[m], 512 * 4096 * 2)
            built.add(m)
        for i in range(8):
            if seq:
                e("s_add_u32 m0, %s, %d" % (s(S_LB), (((i >> 1) + 1) << 15) + (c % nslot) * 8192 + (i & 1) * 4096))
                e("s_add_u32 %s, %s, 0x%x" % (s(S_T1), s(S_GB), (128 * ci + 16 * i) * 8192))
            else:
                e("s_add_u32 m0, %s, %d" % (s(S_LB), (c % nslot) * 8192 + i * 1024))
                e("s_add_u32 %s, %s, 0x%x" % (s(S_T1), s(S_GB), (128 * ci + 4 * i) * 8192))
            e("buffer_load_dwordx4 %s, %s, %s offen%s lds" % (v(AD + (0 if seq else i & 3)), s(srds[m], 4), s(S_T1), OPT.get("cnt", "") if blk_xor_wave else OPT.get("wnt", "")))
            q.add(("c", c))
    lead = OPT.get("lead", 0) if blk_xor_wave else 0
    TL = 29
    S_TR = 91

    def touch(c):
        if c >= len(chunks):
            return
        m, ci = chunks[c]
        if m not in built:
            srd(e, srds[m], ptrs[m], 512 * 4096 * 2)
            built.add(m)
        e("s_add_u32 %s, %s, 0x%x" % (s(S_T1), s(S_MB), 128 * ci * 8192))
        e("buffer_load_dword %s, %s, %s, %s offen" % (v(JUNK), v(TL), s(srds[m], 4), s(S_T1)))
        q.add(("t", c))
    if lead:
        e("v_and_b32 %s, 63, v0" % v(TL))
        e("v_lshlrev_b32 %s, 7, %s" % (v(TL), v(TL)))
        e("s_lshl_b32 %s, %s, 2" % (s(S_MB), s(S_H)))
        e("s_add_u32 %s, %s, %s" % (s(S_MB), s(S_MB), s(S_WAVE)))
        e("s_lshl_b32 %s, %s, 13" % (s(S_MB), s(S_MB)))
        for c in range(nslot + lead):
            touch(c)
    for c in range(nslot):
        dma(c)
    TT = 30
    lin(e, AR, {0: 8, 1: 16, **{k: c * 256 for k, c in row_lane.items()}})
    lin(e, TT, lane_f)
    lin(e, TT + 1, {6: 64, 7: 128})
    e("v_xor_b32 %s, %s, %s" % (v(TT), v(TT), v(TT + 1)))
    e("v_add_u32 %s, %s, %s" % (v(TT), v(TT), v(AR)))
    for k in range(4):
        if blk_xor_wave:
            e("s_xor_b32 %s, %s, %d" % (s(S_T0), s(S_WAVE), k))
            e("s_add_u32 %s, %s, 1" % (s(S_T0), s(S_T0)))
            e("s_lshl_b32 %s, %s, 15" % (s(S_T0), s(S_T0)))
            e("v_add_u32 %s, %s, %s" % (v(AR + 2 * k), s(S_T0), v(TT)))
        else:
            e("v_add_u32 %s, 0x%x, %s" % (v(AR + 2 * k), (k + 1) << 15, v(TT)))
        e("v_xor_b32 %s, 32, %s" % (v(AR + 2 * k + 1), v(AR + 2 * k)))
    if pre:
        pre(q)
    for c, (m, ci) in enumerate(chunks):
        if side:
            side(c, q)
        q.wait(("c", c))
        e("s_barrier")
        for n_, (dst, k, T, ro) in enumerate(reads(m, ci)):
            if n_ == 12:
                e("s_waitcnt lgkmcnt(4)")
            e("ds_read_b64_tr_b16 %s, %s offset:%d" % (dst, v(AR + 2 * k + T), (c % nslot) * 8192 + ro * 256))
        e("s_waitcnt lgkmcnt(0)")
        e("s_barrier")
        if lead:
            touch(c + nslot + lead)
        if c + nslot < len(chunks):
            dma(c + nslot)
    return q


HOLD = {op: 32 + 8 * i for i, op in enumerate(o for o in LDS_OPS if o[0] != "O")}


def load_weights(e, P_WQ, P_WK, P_WV, P_WO, pre=None, mid=None):
    e.comment("---- load weight operands: Wq/Wk/Wv by LDS-DMA + transposing reads, Wo by dword loads + v_perm")
    VOFO = FREE1
    RING, TMP8 = 32, 120
    ptr = {"Q": P_WQ, "K": P_WK, "V": P_WV, "O": P_WO}
    SRDS = {"Q": 96, "K": 88, "V": 60, "O": 92}
    S_OB = 29

    def pre2(q):
        lin(e, VOFO, {0: 4, 1: 8, 2: 16, 3: 32, 4: 2 * 1024, 5: 4 * 1024, 6: 256, 7: 512})
        srd(e, SRDS["O"], ptr["O"], 512 * 4096 * 2)
        e("s_lshl_b32 %s, %s, 17" % (s(S_OB), s(S_H)))
        o_issue(0, q)
        pre(q)

    def reads(m, ci):
        tau, hi = ci >> 1, ci & 1
        out = []
        for k in range(4):
            u = 2 * k + tau
            for T in range(2):
                op = (m, T, u)
                for pr in range(2):
                    if op in HOLD:
                        dst = v(HOLD[op] + 4 * hi + 2 * pr, 2)
                    else:
                        kind, r = RES[op]
                        dst = (a if kind == "a" else v)(r + 4 * hi + 2 * pr, 2)
                    out.append((dst, k, T, 2 * pr))
        return out

    GORD = [7, 5, 3, 6, 4, 2, 1, 0]

    def o_issue(gi, q):
        g = GORD[gi]
        u = g >> 1
        base = (32, 48, 80)[gi % 3]
        e("s_xor_b32 %s, %s, %d" % (s(S_T0), s(S_WAVE), u))
        e("s_lshl_b32 %s, %s, 15" % (s(S_T0), s(S_T0)))
        e("s_add_u32 %s, %s, %s" % (s(S_T0), s(S_T0), s(S_OB)))
        for k in range(2):
            qq = 2 * (g & 1) + k
            for pr in range(4):
                for b in range(2):
                    row = 16 * b + 8 * (pr >> 1) + (pr & 1)
                    e("s_add_u32 %s, %s, 0x%x" % (s(S_T1), s(S_T0), row * 1024 + qq * 64))
                    e("buffer_load_dword %s, %s, %s, %s offen%s" % (v(base + k * 8 + pr * 2 + b), v(VOFO), s(SRDS["O"], 4), s(S_T1), OPT.get("ont", "")))
                    q.add(("o", g))

    def o_consume(gi, q):
        g = GORD[gi]
        q.wait(("o", g))
        base = (32, 48, 80)[gi % 3]
        for k in range(2):
            op = ("O", 2 * (g & 1) + k, g >> 1)
            dst = TMP8 if op in LDS_OPS else RES[op][1]
            assert op in LDS_OPS or RES[op][0] == "v"
            for pr in range(4):
                for hf in range(2):
                    e("v_perm_b32 %s, %s, %s, %s" % (v(dst + 2 * pr + hf), v(base + k * 8 + 2 * pr + 1), v(base + k * 8 + 2 * pr), s(S_PHI if hf else S_PLO)))
            if op in LDS_OPS:
                off = LDS_SLOT[op] * 2048
                assert off >= 24576
                e("ds_write_b128 %s, %s offset:%d" % (v(C_WL), v(TMP8, 4), off))
                e("ds_write_b128 %s, %s offset:%d" % (v(C_WL), v(TMP8 + 4, 4), off + 1024))
                e("s_waitcnt lgkmcnt(0)")

    def side(c, q):
        if 2 <= c < 10 and not OPT.get("noo"):
            o_consume(c - 2, q)
        if 1 <= c < 8 and not OPT.get("noo"):
            o_issue(c, q)
        early_start(e, c, q)

    chunks = [(m, ci) for m in "VKQ" for ci in range(4)]
    staged_load(e, chunks, ptr, SRDS, 1, lambda k: k << 6, {2: 32, 4: 64, 3: 128}, {5: 16, 3: 8, 4: 4, 2: 1}, True, reads, side, pre2, OPT.get("nslot", 3))
    for op, r in HOLD.items():
        off = LDS_SLOT[op] * 2048
        e("ds_write_b128 %s, %s offset:%d" % (v(C_WL), v(r, 4), off))
        e("ds_write_b128 %s, %s offset:%d" % (v(C_WL), v(r + 4, 4), off + 1024))
        if LDS_SLOT[op] % 4 == 3:
            e("s_waitcnt lgkmcnt(0)")
    e("s_waitcnt lgkmcnt(0)")


def setup_consts(e):
    T1, T2 = 104, 105
    AM = 100
    lin(e, C_IDX, {1: 0xEEEE - 0x4444}, 0x4444)
    lin(e, C_L16, {k: 16 << k for k in range(6)})
    lin(e, C_MW, {**{k: 16 << k for k in range(6)}, 6: 2048, 7: 4096})
    lin(e, C_WL, {**{k: 16 << k for k in range(6)}, 6: 32768, 7: 65536}, L_WL)
    lin(e, C_QW, {0: 4, 1: 8, 2: 16, 3: 32, 4: 2 * RS * 4, 5: 4 * RS * 4, 6: 64, 7: 128}, L_QX)
    lin(e, C_QR, {0: RS * 4, 2: 2 * RS * 4, 3: 4 * RS * 4, 4: 16, 5: 32}, L_QX)
    e("v_add_u32 %s, %d, %s" % (v(C_KW), L_KMX - L_QX, v(C_QW)))
    e("v_xor_b32 %s, 0x1000, %s" % (v(C_X2), v(C_MW)))
    lin(e, T1, {3: 1, 4: 2, 5: 4, 6: 8, 7: 16})
    e("v_add_u32 %s, %s, %s" % (v(T1), s(S_H), v(T1)))
    e("v_and_b32 %s, 31, %s" % (v(T1), v(T1)))
    e("v_lshlrev_b32 %s, 6, %s" % (v(T1), v(T1)))
    lin(e, C_PW, {0: 8, 1: 16, 2: 32, 3: 8192, 4: 2 * 8192, 5: 4 * 8192, 6: 8 * 8192, 7: 16 * 8192}, PB_OFF)
    e("v_add_u32 %s, %s, %s" % (v(C_PW), v(C_PW), v(T1)))
    mp_addr(e, C_MP, T1, T2)
    lin(e, C_FL, {0: 16, 1: 8, 2: 32, 3: 64, 4: 128, 5: 256, 6: 2048, 7: 4096})
    e("s_lshl_b32 %s, %s, 13" % (s(S_PR), s(S_H)))
    e("s_add_u32 %s, %s, 0x%x" % (s(S_PR), s(S_PR), PB_OFF))
    e("s_mov_b32 %s, 4096" % s(S_4K))
    e("v_and_b32 %s, 15, v0" % v(T1))
    for q in range(4):
        e("v_mov_b32 %s, 0" % v(AM + q))
        e("v_mov_b32 %s, 0x3f80" % v(T2))
        e("v_cmp_eq_u32 vcc, %d, %s" % (4 * q, v(T1)))
        e("v_cndmask_b32 %s, %s, %s, vcc" % (v(AM + q), v(AM + q), v(T2)))
        e("v_mov_b32 %s, 0x3f800000" % v(T2))
        e("v_cmp_eq_u32 vcc, %d, %s" % (4 * q + 1, v(T1)))
        e("v_cndmask_b32 %s, %s, %s, vcc" % (v(AM + q), v(AM + q), v(T2)))
    e("ds_write_b128 %s, %s offset:%d" % (v(C_L16), v(AM, 4), L_SEL))
    e("s_mov_b32 %s, 0x05040100" % s(S_PLO))
    e("s_mov_b32 %s, 0x07060302" % s(S_PHI))
    e("s_mov_b32 %s, 0x%x" % (s(S_SCALE), f32bits(128 ** -0.5 * 1.4426950408889634)))
    e("s_mov_b32 %s, 0x%x" % (s(S_BIG), f32bits(OPT.get('big', 2.0 ** 30))))
    e("s_mov_b32 %s, 0" % s(S_TMO))
    e("s_mov_b32 %s, 0x3f803f80" % s(S_ONES))
    e("s_mov_b32 %s, 0x3f803f80" % s(S_ONES + 1))
    e("s_lshl_b32 %s, %s, 14" % (s(S_T0), s(S_H)))
    e("s_lshr_b32 %s, %s, 1" % (s(S_T1), s(S_WAVE)))
    e("s_lshl_b32 %s, %s, 12" % (s(S_T1), s(S_T1)))
    e("s_add_u32 %s, %s, %s" % (s(S_KXO), s(S_T0), s(S_T1)))
    e("s_lshl_b32 %s, %s, 11" % (s(S_T1), s(S_WAVE)))
    e("s_add_u32 %s, %s, %s" % (s(S_VXO), s(S_T0), s(S_T1)))
    e("s_add_u32 %s, %s, 8192" % (s(S_VXO), s(S_VXO)))


def setup_pf(e):
    T1, T2 = 104, 105
    lin(e, T1, {0: 128, 1: 256, 2: 512, 3: 1024, 4: 2048, 6: 4096, 7: 8192})
    e("s_lshl_b32 %s, %s, 14" % (s(S_T0), s(S_H)))
    e("v_add_u32 %s, %s, %s" % (v(T1), s(S_T0), v(T1)))
    e("s_lshl_b32 %s, %s, 8" % (s(S_T0), s(S_H)))
    e("s_lshr_b32 %s, %s, 1" % (s(S_T1), s(S_WAVE)))
    e("s_lshl_b32 %s, %s, 7" % (s(S_T1), s(S_T1)))
    e("s_add_u32 %s, %s, %s" % (s(S_T0), s(S_T0), s(S_T1)))
    e("s_add_u32 %s, %s, 0x%x" % (s(S_T0), s(S_T0), SLAB_ST + MB_IN))
    e("v_and_b32 %s, 63, v0" % v(T0))
    e("v_mov_b32 %s, 0x%x" % (v(T2), OOB))
    e("v_cmp_lt_u32 vcc, 32, %s" % v(T0))
    e("v_cndmask_b32 %s, %s, %s, vcc" % (v(T1), v(T1), v(T2)))
    e("v_mov_b32 %s, %s" % (v(T2), s(S_T0)))
    e("v_cmp_eq_u32 vcc, 32, %s" % v(T0))
    e("v_cndmask_b32 %s, %s, %s, vcc" % (v(T1), v(T1), v(T2)))
    e("s_lshl_b32 %s, %s, 2" % (s(S_T0), s(S_H)))
    e("s_add_u32 %s, %s, 0x%x" % (s(S_T0), s(S_T0), SLAB_ST + FL_IN))
    e("v_mov_b32 %s, %s" % (v(T2), s(S_T0)))
    e("v_cmp_eq_u32 vcc, 33, %s" % v(T0))
    e("v_cndmask_b32 %s, %s, %s, vcc" % (v(C_PF), v(T1), v(T2)))


def mp_addr(e, dst, T1, T2):
    lin(e, dst, {0: 8, 1: 32, 4: 16, 5: 4, 6: 2048, 7: 4096}, MB_IN)
    e("v_mov_b32 %s, %s" % (v(T2), s(S_H)))
    lin(e, T1, {0: 256, 1: 64, 2: 128, 3: 512, 4: 1024}, src=T2)
    e("v_add_u32 %s, %s, %s" % (v(dst), v(T1), v(dst)))
    e("v_and_b32 %s, 12, v0" % v(T1))
    e("v_cmp_ne_u32 vcc, 0, %s" % v(T1))
    e("v_mov_b32 %s, 0x%x" % (v(T1), OOB))
    e("v_cndmask_b32 %s, %s, %s, vcc" % (v(dst), v(dst), v(T1)))


def mem0_load(e, P_MEM0, dst, T1, T2, TH, SR):
    srd(e, SR, P_MEM0, 8192)
    lin(e, T1, {0: 8, 1: 16, 2: 0x10000, 3: 0x10000, 4: 1024, 5: 4, 6: 64, 7: 128})
    e("v_mov_b32 %s, %s" % (v(TH), s(S_H)))
    lin(e, T2, {0: 32, 1: 2048, 2: 4096, 3: 256, 4: 512}, src=TH)
    e("v_add_u32 %s, %s, %s" % (v(T1), v(T1), v(T2)))
    e("buffer_load_dword %s, %s, %s, 0 offen" % (v(dst), v(T1), s(SR, 4)))


def init_fill(e, P_MEM0, MW, B, SR):
    M1, T1, T2, TH, MP, HP = B, B + 4, B + 5, B + 6, B + 7, B + 8
    ws = s(S_WS, 4)
    mem0_load(e, P_MEM0, HP, T1, T2, TH, SR)
    for k in range(4):
        e("v_mov_b32 %s, -1" % v(M1 + k))

    def fill8k(so):
        e("buffer_store_dwordx4 %s, %s, %s, %s offen sc1" % (v(M1, 4), v(MW), ws, s(so)))
        e("buffer_store_dwordx4 %s, %s, %s, %s offen offset:1024 sc1" % (v(M1, 4), v(MW), ws, s(so)))
    e("s_lshl_b32 %s, %s, 13" % (s(S_T0), s(S_H)))
    e("s_add_u32 %s, %s, 0x%x" % (s(S_T0), s(S_T0), PB_OFF))
    fill8k(S_T0)
    e("s_lshl_b32 %s, %s, 14" % (s(S_T0), s(S_H)))
    e("s_add_u32 %s, %s, 0x%x" % (s(S_T0), s(S_T0), HIST_OFF))
    e("s_add_u32 %s, %s, 0x2000" % (s(S_T1), s(S_T0)))
    fill8k(S_T0); fill8k(S_T1)
    e("s_mul_i32 %s, %s, 0x%x" % (s(S_T0), s(S_H), 2 * SLAB_ST))
    e("s_add_u32 %s, %s, 0x%x" % (s(S_T0), s(S_T0), SLAB_OFF + SLAB_ST + MB_IN + (0x4000000 if OPT.get("solo") else 0)))
    e("s_add_u32 %s, %s, 0x%x" % (s(S_T1), s(S_T0), SLAB_ST))
    fill8k(S_T0); fill8k(S_T1)
    e("v_lshlrev_b32 %s, 2, v0" % v(T1))
    e("s_lshl_b32 %s, %s, 10" % (s(S_T0), s(S_H)))
    for base in (FLAG_OFF + 0x4000, 0x1B0000, 0x1B8000):
        e("s_add_u32 %s, %s, 0x%x" % (s(S_T1), s(S_T0), base))
        e("buffer_store_dword %s, %s, %s, %s offen sc1" % (v(M1), v(T1), ws, s(S_T1)))
    e("v_mov_b32 %s, 0x%x" % (v(T2), OOB))
    e("v_cmp_lt_u32 vcc, 63, v0")
    e("v_cndmask_b32 %s, %s, %s, vcc" % (v(T1), v(T1), v(T2)))
    e("v_mov_b32 %s, %d" % (v(M1 + 9), 0 if OPT.get("kvflags", 1) else 1))
    e("s_lshl_b32 %s, %s, 8" % (s(S_T0), s(S_H)))
    e("s_add_u32 %s, %s, 0x%x" % (s(S_T1), s(S_T0), FLAG_OFF + 0x2000))
    e("buffer_store_dword %s, %s, %s, %s offen sc1" % (v(M1 + 9), v(T1), ws, s(S_T1)))
    e("s_mul_i32 %s, %s, 0x%x" % (s(S_T0), s(S_H), 2 * SLAB_ST))
    e("s_add_u32 %s, %s, 0x%x" % (s(S_T0), s(S_T0), SLAB_OFF + FL_IN))
    e("s_add_u32 %s, %s, 0x%x" % (s(S_T1), s(S_T0), SLAB_ST))
    e("buffer_store_dword %s, %s, %s, %s offen sc1" % (v(M1 + 9), v(T1), ws, s(S_T0)))
    e("buffer_store_dword %s, %s, %s, %s offen sc1" % (v(M1 + 9), v(T1), ws, s(S_T1)))
    if OPT.get("push"):
        e("v_mov_b32 %s, 0" % v(TH))
        e("s_lshl_b32 %s, %s, 8" % (s(S_T0), s(S_H)))
        e("s_add_u32 %s, %s, 0x%x" % (s(S_T0), s(S_T0), SYNC_OFF))
        e("buffer_store_dword %s, %s, %s, %s offen sc1" % (v(TH), v(T1), ws, s(S_T0)))
    mp_addr(e, MP, T1, T2)
    e("s_waitcnt vmcnt(16)")
    e("s_mov_b32 %s, 0x%x" % (s(S_T0), SLAB_OFF))
    e("buffer_store_dword %s, %s, %s, %s offen sc1" % (v(HP), v(MP), ws, s(S_T0)))


def ready_publish(e, T1, T2):
    e("s_waitcnt vmcnt(0)")
    e("s_barrier")
    e("v_mov_b32 %s, 1" % v(T1))
    e("s_lshl_b32 %s, %s, 2" % (s(S_T1), s(S_H)))
    e("v_lshlrev_b32 %s, 20, v0" % v(T2))
    e("buffer_store_dword %s, %s, %s, %s offen sc1" % (v(T1), v(T2), s(S_DBG, 4), s(S_T1)))


def xcc_publish(e, q):
    T1, T2 = 30, 31
    e("s_getreg_b32 %s, hwreg(HW_REG_XCC_ID)" % s(S_T0))
    e("s_and_b32 %s, %s, 15" % (s(S_T0), s(S_T0)))
    e("s_or_b32 %s, %s, 0x100" % (s(S_T0), s(S_T0)))
    e("v_mov_b32 %s, %s" % (v(T1), s(S_T0)))
    e("s_lshl_b32 %s, %s, 2" % (s(S_T1), s(S_H)))
    e("v_lshlrev_b32 %s, 20, v0" % v(T2))
    e("buffer_store_dword %s, %s, %s, %s offen offset:128 sc1" % (v(T1), v(T2), s(S_DBG, 4), s(S_T1)))
    q.add("hs")


S_MODE = 41


def early_start(e, c, q):
    T1, T2 = 30, 31
    ws = s(S_WS, 4)
    hsl = "buffer_load_dword %s, %s, %s, 0 offen sc1" % (v(T1), v(T2), s(S_DBG, 4))
    pfi = lambda: e("buffer_load_dword %s, %s, %s, %s offen sc1" % (v(JUNK), v(C_PF), ws, s(S_MB)))
    if c == 8:
        e("v_lshrrev_b32 %s, 2, %s" % (v(T2), v(C_L16)))
        e(hsl)
        q.add("hs2")
    if c == 9:
        e.comment("---- buffers initialised (debug[0..31]) and all 32 chain workgroups reported their XCC id (debug[32..63]);")
        q.wait("hs2")
        e("s_mov_b32 %s, 1" % s(S_MODE))
        e.label("L_HS")
        e("v_cmp_eq_u32 vcc, 0, %s" % v(T1))
        e("s_cbranch_vccz L_HS_ok")
        e(hsl)
        e("s_add_u32 %s, %s, 1" % (s(S_TMO), s(S_TMO)))
        e("s_cmp_gt_u32 %s, %d" % (s(S_TMO), TMO_LIMIT))
        e("s_waitcnt vmcnt(0)")
        e("s_cbranch_scc0 L_HS")
        e("s_branch L_HS_done")
        e.label("L_HS_ok")
        e("v_readlane_b32 %s, %s, 63" % (s(S_T0), v(T1)))
        e("v_cmp_ne_u32 vcc, %s, %s" % (s(S_T0), v(T1)))
        e("s_nop 1")
        e("s_cmp_lg_u32 vcc_hi, 0")
        e("s_cselect_b32 %s, 1, %d" % (s(S_MODE), OPT.get("forceslow", 0)))
        e.label("L_HS_done")
        e("s_mov_b32 %s, 0x%x" % (s(S_MB), SLAB_OFF - SLAB_ST))
        pfi()
        q.add("pf0")
    if c == 11:
        q.wait("pf0")
        if OPT.get("prof") == 1:
            e("s_memrealtime s[100:101]")
            e("s_waitcnt lgkmcnt(0)")
            e("s_mov_b32 s42, s100")
        e.label("L_F0")
        e("v_readlane_b32 %s, %s, 33" % (s(S_T0), v(JUNK)))
        e("s_nop 1")
        e("s_cmp_lg_u32 %s, 0" % s(S_T0))
        e("s_cbranch_scc1 L_F0_ok")
        pfi()
        e("s_add_u32 %s, %s, 1" % (s(S_TMO), s(S_TMO)))
        e("s_cmp_gt_u32 %s, %d" % (s(S_TMO), TMO_LIMIT))
        e("s_waitcnt vmcnt(0)")
        e("s_cbranch_scc0 L_F0")
        e.label("L_F0_ok")
        if OPT.get("prof") == 1:
            e("s_memrealtime s[100:101]")
            e("s_waitcnt lgkmcnt(0)")
            e("s_mov_b32 s43, s100")
        e("s_mov_b32 %s, 0x%x" % (s(S_MB), SLAB_OFF))
        pfi()
        q.add("pf1")


def smf_ins(acc, aop, op):
    return "v_smfmac_f32_16x16x64_bf16 %s, %s, %s, %s" % (v(acc, 4), v(aop, 4), opreg(op), v(C_IDX))


def stamp(e, i, on):
    if on:
        e("s_memtime %s" % s(S_ST + 2 * i, 2))


am = lambda u: AM + 4 * u


def idle_prep_ins():
    out = []
    for op in (("Q", 0, 0), ("Q", 1, 0), ("Q", 0, 1), ("Q", 1, 1), ("K", 0, 0), ("K", 1, 0)):
        out += lds_fetch_ins(op)
    z = ["v_mov_b64 %s, 0" % v(r, 2) for r in range(ACCQ, ACCQ + 24, 2)]
    return out, z


def delay(e, cyc):
    n = cyc // 4
    while n > 0:
        k = min(n, 16)
        e("s_nop %d" % (k - 1))
        n -= k


def main_loop(e, tag, sc, nsteps, stamps=False):
    L = lambda n: "L_%s_%s" % (tag, n)
    ws = s(S_WS, 4)
    solo = OPT.get("solo")
    trace = OPT.get("trace")
    acc = {"Q": ACCQ, "K": ACCK, "V": ACCV}
    S = lambda m, T, u: smf_ins(acc[m] + 4 * T, am(u), (m, T, u))
    Q = lambda T, u: S("Q", T, u)
    K = lambda T, u: S("K", T, u)
    V = lambda T, u: S("V", T, u)
    lg = lambda n: "s_waitcnt lgkmcnt(%d)" % n
    BAR = "s_barrier"
    add = lambda b, r: "v_add_f32 %s, %s, %s" % (v(b + r), v(b + r), v(b + r + 2))
    cvt = lambda d, x, y: "v_cvt_pk_bf16_f32 %s, %s, %s" % (v(d), v(x), v(y))
    ex = lambda r: "v_exp_f32 %s, %s" % (v(r), v(r))
    mf32 = lambda d, A, B, first: "v_mfma_f32_16x16x32_bf16 %s, %s, %s, %s" % (v(d, 4), v(A, 4), v(B, 4), "0" if first else v(d, 4))
    mf16 = lambda d, A, B: "v_mfma_f32_16x16x16_bf16 %s, %s, %s, %s" % (v(d, 4), v(A, 2), v(B, 2), v(d, 4))

    def run(sched, extra=None):
        for i_, (m_, rest) in enumerate(sched):
            e(m_)
            for x in (extra or {}).get(i_, []) + rest:
                if x.endswith(":"):
                    e.label(x[:-1])
                else:
                    e(x)
    e.label(L("start"))
    e("s_mov_b32 %s, 0" % s(S_STEP))
    e("s_mov_b32 %s, 0x%x" % (s(S_SLAB), SLAB_OFF))
    e("s_mov_b32 %s, 0" % s(S_PAR))
    e("s_mov_b32 %s, 0x%x" % (s(S_HIST), HIST_OFF - MB_IN))
    e("s_mov_b32 %s, 0x%x" % (s(S_OOB), OOB))
    if OPT.get("push"):
        e("s_add_u32 %s, %s, 0x%x" % (s(S_SY), s(S_WS), SYNC_OFF))
        e("s_addc_u32 %s, %s, 0" % (s(S_SY + 1), s(S_WS + 1)))
        e("s_mov_b32 %s, 4096" % s(S_SY + 2))
        e("s_mov_b32 %s, 0x20000" % s(S_SY + 3))
        e("s_lshl_b32 %s, %s, 7" % (s(S_FR), s(S_H)))
        e("s_lshl_b32 %s, %s, 2" % (s(S_FW), s(S_H)))
        e("s_cmp_eq_u32 %s, 3" % s(S_WAVE))
        e("s_cselect_b32 %s, %s, %s" % (s(S_FW), s(S_FW), s(S_OOB)))
    for u in (1, 2, 3):
        e("s_mov_b32 %s, 0x%x" % (s(S_U0 + u), u * 2048))
    e("s_mov_b32 %s, 0xcccccccc" % s(S_HM))
    e("s_mov_b32 %s, 0xcccccccc" % s(S_HM + 1))
    e("s_mov_b32 %s, 0" % s(S_SPIN))
    f, z = idle_prep_ins()
    for t in f + z:
        e(t)
    mldp = lambda P: ["buffer_load_dwordx4 %s, %s, %s, %s offen sc1" % (v(P, 4), v(C_MW), ws, s(S_MB)),
                      "buffer_load_dwordx4 %s, %s, %s, %s offen offset:1024 sc1" % (v(P + 4, 4), v(C_MW), ws, s(S_MB))]
    mld = mldp(AM)
    e("s_add_u32 %s, %s, 0x%x" % (s(S_MB), s(S_SLAB), MB_IN))
    for t in mld:
        e(t)
    e("s_waitcnt vmcnt(2)")
    if OPT.get("al"):
        e.raw(".p2align %d" % OPT["al"])
    for _ in range(OPT.get("pad", 0)):
        e("s_nop 0")
    e.label(L("step"))
    e("v_readlane_b32 %s, %s, 33" % (s(S_T0), v(JUNK)))
    e("s_add_u32 %s, %s, 0x%x" % (s(S_SLABN), s(S_SLAB), SLAB_ST))
    e("s_cmp_eq_u32 %s, 0" % s(S_T0))
    e("s_cbranch_scc1 %s" % L("refresh"))
    e.label(L("fresh"))
    e("s_add_u32 %s, %s, %s" % (s(S_KX), s(S_SLAB), s(S_KXO)))
    e("s_add_u32 %s, %s, %s" % (s(S_VX), s(S_SLAB), s(S_VXO)))
    e("s_xor_b32 %s, %s, 1" % (s(S_NPAR), s(S_PAR)))
    e("s_add_u32 %s, %s, 1" % (s(S_NEXT), s(S_STEP)))
    if OPT.get("push"):
        e("s_mov_b32 %s, %s" % (s(S_NX2), s(S_NEXT)))
        e("v_mov_b32 %s, %s" % (v(FREE1), s(S_NEXT)))
    tr = 2
    if OPT.get("m3"):
        tr = 4
        delay(e, OPT.get("pm0", 0))
        for x in mld:
            e(x)
    ns = OPT.get("ns", 0)
    if ns:
        e("s_cmp_lt_u32 %s, %d" % (s(S_WAVE), ns))
        e("s_cbranch_scc1 %s" % L("onem"))
    delay(e, OPT.get("pm", 64) - (24 if ns else 0))
    e.label(L("retrym"))
    for x in mld:
        e(x)
    e.label(L("prem"))
    e("s_add_u32 %s, %s, 1" % (s(S_TMO), s(S_TMO)))
    e("s_cmp_gt_u32 %s, %d" % (s(S_TMO), TMO_LIMIT))
    e("s_cselect_b32 %s, -1, -2" % s(S_LIM))
    e("v_xor_b32 %s, 0x800, %s" % (v(am(3)), v(C_MW)))
    e("v_xor_b32 %s, 0x1800, %s" % (v(am(7)), v(C_MW)))
    for x in z[:4]:
        e(x)
    e.label(L("waitm"))
    e("s_waitcnt vmcnt(%d) lgkmcnt(0)" % (1 + tr))
    e.label(L("gotm"))
    stamp(e, 0, stamps)
    T1 = am(2)
    mw = ["ds_write_b128 %s, %s offset:%d" % (v(C_MW), v(am(k), 4), L_MEMI + 1024 * k) for k in range(2)]
    PK = ACCK
    pst = lambda q: "buffer_store_dwordx2 %s, %s, %s, %s offen offset:%d%s" % (v(PK + 2 * q, 2), v(C_PW), ws, "0" if q < 2 else s(S_4K), (q & 1) * 2048, sc or OPT.get("pstf", ""))
    tg = lambda q: "v_and_or_b32 %s, %s, -2, %s" % (v(PK + 2 * q), v(PK + 2 * q), s(S_TAG))
    kx = lambda ks: "buffer_load_dwordx4 %s, %s, %s, %s offen offset:%d sc1" % (v(XB + 4 * ks, 4), v(C_L16), ws, s(S_KX), ks * 1024)
    vx = lambda T: "buffer_load_dwordx4 %s, %s, %s, %s offen offset:%d sc1" % (v(VX + 4 * T, 4), v(C_L16), ws, s(S_VX), T * 1024)
    amrd = lambda u: "ds_read_b128 %s, %s offset:%d" % (v(am(u), 4), v(C_X2 if u >> 1 == 2 else am(u | 1)), L_MEMI + (u & 1) * 1024)
    q7 = lds_fetch_ins(("Q", 0, 7)) + lds_fetch_ins(("Q", 1, 7))
    k2 = lds_fetch_ins(("K", 0, 2)) + lds_fetch_ins(("K", 1, 2))
    k7 = lds_fetch_ins(("K", 0, 7)) + lds_fetch_ins(("K", 1, 7))
    of = sum([lds_fetch_ins(op) for op in OLDS], [])
    qbrd = lambda ks: "ds_read_b128 %s, %s offset:%d" % (v(QB + 4 * ks, 4), v(C_QR), 64 * ks)
    KM = XA
    kmrd = lambda ks: "ds_read_b128 %s, %s offset:%d" % (v(KM + 4 * ks, 4), v(C_QR), L_KMX - L_QX + 64 * ks)
    SX, SM = ACCQ, ACCQ + 4
    ONES, PX, PM, VM0, VM1 = XB, XB + 4, XB + 8, XB + 10, XB + 12
    TA = XB + 14
    LS, OA, OP = SX, ACCK, SM
    smx = lambda ks: mf32(SX, XB + 4 * ks, QB + 4 * ks, ks == 0)
    smm = lambda ks: mf32(SM, KM + 4 * ks, QB + 4 * ks, ks == 0)
    pf = "buffer_load_dword %s, %s, %s, %s offen sc1" % (v(JUNK), v(C_PF), ws, s(S_SLABN))
    hist = "buffer_store_dword %s, %s, %s, %s offen sc1" % (v(HPEND), v(C_MP), ws, s(S_HIST))
    zw = ["v_mov_b64 %s, 0" % v(r, 2) for r in range(AM, AM + 16, 2)]
    OOP = AM + 12
    o64 = OPT.get("o64", 1)
    if o64:
        oad = ["v_bitop3_b32 %s, %s, %s, -9 bitop3:0x28" % (v(OOP + 4 * u), v(C_FL), s(S_U0 + u)) for u in (1, 2, 3)]
    else:
        oad = ["v_xor_b32 %s, 0x%x, %s" % (v(OOP + 4 * u), u * 2048, v(C_MW)) for u in (1, 3)]
    L_OE = L_PX + 1024
    mx3 = lambda d, x, y, z_: "v_max3_u32 %s, %s, %s, %s" % (v(d), v(x), v(y), v(z_))
    mov0 = lambda r: "v_mov_b32 %s, 0" % v(r)
    qs = lambda r: "v_mul_f32 %s, %s, %s" % (v(ACCQ + r), s(S_SCALE), v(ACCQ + r))
    push = OPT.get("push", 0) and not solo
    F0, FA, FS = AM + 28, AM + 29, AM + 30
    fst = "buffer_store_dword %s, %s, %s, %s offen%s" % (v(FREE1), v(FS), s(S_SY, 4), s(S_FW), sc)
    fld = "buffer_load_dword %s, %s, %s, %s offen sc1" % (v(F0), v(FA), s(S_SY, 4), s(S_FR))
    fw = OPT.get("fw", 2)
    fsc = "v_lshlrev_b32 %s, 3, %s" % (v(FS), v(C_L16))
    ex0 = {}
    if push and fw < 0:
        ex0 = {62 + fw: [fst]}
    early = OPT.get("early", 1)
    fastb1 = OPT.get("fastb1", 0)
    e(mx3(T0, AM, AM + 1, AM + 2))
    e("v_max_u32 %s, %s, %s" % (v(T0), v(T0), v(AM + 3)))
    run([
    ] + ([
        (Q(0, 0), [mw[0], "s_waitcnt vmcnt(%d)" % tr, mx3(T0, T0, AM + 4, AM + 5), mx3(T0, T0, AM + 6, AM + 7),
                   "v_cmp_lt_u32 vcc, %s, %s" % (s(S_LIM), v(T0))]),
        (Q(1, 0), [mw[1]] + ([] if solo else ["s_cbranch_vccnz %s" % L("retrym")])),
        (Q(0, 1), [kx(0), vx(0)]),
        (Q(1, 1), [kx(1), vx(1)]),
        (K(0, 0), [kx(2), kx(3)]),
        (K(1, 0), [lg(0), BAR, amrd(2)]),
        (K(0, 1), [amrd(3)]),
        (K(1, 1), [pf]),
        (V(0, 0), [amrd(4)]),
        (V(1, 0), [amrd(5), lg(3)]),
        (Q(0, 2), [amrd(6)]),
        (Q(1, 2), [amrd(7), lg(4)]),
        (Q(0, 3), [q7[0]]),
        (Q(1, 3), [q7[1], lg(4)]),
        (Q(0, 4), [q7[2]]),
        (Q(1, 4), [q7[3], lg(4)]),
        (Q(0, 5), []),
        (Q(1, 5), [k2[0]]),
        (Q(0, 6), []),
        (Q(1, 6), [k2[1], lg(2)]),
    ] if fastb1 else [
        (Q(0, 0), ["s_waitcnt vmcnt(%d)" % tr, mx3(T0, T0, AM + 4, AM + 5)]),
        (Q(1, 0), [mx3(T0, T0, AM + 6, AM + 7), "v_cmp_lt_u32 vcc, %s, %s" % (s(S_LIM), v(T0))]),
        (Q(0, 1), [mw[0]] + ([] if solo else ["s_cbranch_vccnz %s" % L("retrym")])),
        (Q(1, 1), [mw[1]]),
    ] + ([
        (K(0, 0), [kx(0)]),
        (K(1, 0), [kx(1)]),
        (K(0, 1), [kx(2)]),
        (K(1, 1), [lg(0), BAR, amrd(2)]),
        (V(0, 0), [amrd(3)]),
        (V(1, 0), [kx(3)]),
        (V(0, 1), [vx(0)]),
        (V(1, 1), [amrd(4), lg(2)]),
        (Q(0, 2), [vx(1)]),
        (Q(1, 2), [amrd(5), lg(2)]),
        (Q(0, 3), [amrd(6)]),
        (Q(1, 3), [amrd(7), lg(3)]),
        (Q(0, 4), [q7[0]]),
        (Q(1, 4), [q7[1], lg(4)]),
        (Q(0, 5), [q7[2]]),
        (Q(1, 5), [q7[3], lg(4)]),
        (Q(0, 6), [pf]),
        (Q(1, 6), [k2[0], k2[1], lg(2)]),
    ] if early == 2 else [
        (K(0, 0), [kx(0), vx(0)] if early else [kx(0)]),
        (K(1, 0), [kx(1), vx(1)] if early else [kx(1)]),
        (K(0, 1), [kx(2), kx(3)] if early else [kx(2)]),
        (K(1, 1), [lg(0), BAR, amrd(2)]),
        (V(0, 0), [amrd(3)]),
        (V(1, 0), [pf] if early else [kx(3)]),
        (V(0, 1), [amrd(4)]),
        (V(1, 1), [amrd(5), lg(3)]),
        (Q(0, 2), [amrd(6)]),
        (Q(1, 2), [amrd(7), lg(4)]),
        (Q(0, 3), [q7[0]]),
        (Q(1, 3), [q7[1], lg(4)]),
        (Q(0, 4), [q7[2]]),
        (Q(1, 4), [q7[3], lg(4)]),
        (Q(0, 5), [] if early else [vx(0)]),
        (Q(1, 5), [k2[0]]),
        (Q(0, 6), [] if early else [vx(1)]),
        (Q(1, 6), [k2[1], lg(2)]),
    ])) + [
        (Q(0, 7), [k2[2]]),
        (Q(1, 7), [k2[3]]),
        (K(0, 3), [k7[0], "s_nop 0"]),
        (K(1, 3), [k7[1], add(ACCQ, 0), add(ACCQ, 1)]),
        (K(0, 4), [k7[2], add(ACCQ + 4, 0), add(ACCQ + 4, 1), qs(0)]),
        (K(1, 4), [k7[3], qs(4), qs(1), qs(5)]),
        (K(0, 5), [lg(4), cvt(ACCQ + 2, ACCQ, ACCQ + 4), cvt(ACCQ + 3, ACCQ + 1, ACCQ + 5)]),
        (K(0, 2), ["ds_write2_b32 %s, %s, %s offset0:0 offset1:%d" % (v(C_QW), v(ACCQ + 2), v(ACCQ + 3), RS)]),
        (K(1, 2), [] if early else [pf]),
        (K(1, 5), []),
        (K(0, 6), [hist]),
        (K(1, 6), [lg(0), BAR]),
        (K(0, 7), [qbrd(0)]),
        (K(1, 7), [qbrd(1)]),
    ] + ([
        (V(0, 1), [qbrd(2)]),
        (V(1, 1), [qbrd(3), "s_waitcnt vmcnt(2) lgkmcnt(3)"]),
        (smx(0), [lg(2), add(ACCK, 0), add(ACCK, 1)]),
        (smx(1), [lg(1), add(ACCK + 4, 0), add(ACCK + 4, 1)]),
        (smx(2), [lg(0), cvt(ACCK + 2, ACCK, ACCK + 4), cvt(ACCK + 3, ACCK + 1, ACCK + 5)]),
        (smx(3), ["ds_write2_b32 %s, %s, %s offset0:0 offset1:%d" % (v(C_KW), v(ACCK + 2), v(ACCK + 3), RS)]),
        (V(0, 2), ["v_mov_b64 %s, %s" % (v(ONES, 2), s(S_ONES, 2))]),
        (V(1, 2), ["s_nop 1", "v_mov_b64 %s, %s" % (v(ONES + 2, 2), s(S_ONES, 2))]),
        (V(0, 3), [ex(SX)]),
        (V(1, 3), [lg(0), BAR, ex(SX + 1)]),
        (V(0, 4), [kmrd(0), ex(SX + 2)]),
        (V(1, 4), [kmrd(1), ex(SX + 3)]),
        (V(0, 5), [kmrd(2), cvt(PX, SX, SX + 1), cvt(PX + 1, SX + 2, SX + 3)]),
        (V(1, 5), [kmrd(3), "ds_write_b64 %s, %s offset:%d" % (v(C_MW), v(PX, 2), L_PX), lg(4)]),
        (smm(0), [lg(3), mov0(PM + 1), mov0(VM0 + 1)]),
        (smm(1), [lg(2), mov0(VM1 + 1), zw.pop(0)]),
        (smm(2), [lg(1), zw.pop(0), zw.pop(0)]),
        (smm(3), [lg(0), BAR]),
        (V(0, 6), ["ds_read_b64 %s, %s offset:%d" % (v(PX + 2, 2), v(C_X2), L_PX), zw.pop(0)]),
        (V(1, 6), [zw.pop(0)]),
        (V(0, 7), [ex(SM)]),
        (V(1, 7), [lg(0), ex(SM + 1)]),
        (mf32(LS, ONES, PX, True), [cvt(PM, SM, SM + 1), zw.pop(0)]),
        (mf32(OA, VX, PX, True), [zw.pop(0), add(ACCV, 0)]),
        (mf32(OA + 4, VX + 4, PX, True), [add(ACCV, 1), add(ACCV + 4, 0)]),
        (mf16(LS, ONES, PM), [cvt(VM0, ACCV, ACCV + 1), add(ACCV + 4, 1), cvt(VM1, ACCV + 4, ACCV + 5)]),
        (mf16(OA, VM0, PM), [zw.pop(0), oad[0]]),
        (mf16(OA + 4, VM1, PM), oad[1:] + ["v_rcp_f32 %s, %s" % (v(TA), v(LS))]),
    ] if fastb1 else [
        (V(0, 2), [qbrd(2)]),
        (V(1, 2), [qbrd(3), "s_waitcnt vmcnt(2) lgkmcnt(3)"]),
        (smx(0), [lg(2), add(ACCK, 0), add(ACCK, 1)]),
        (smx(1), [lg(1), add(ACCK + 4, 0), add(ACCK + 4, 1)]),
        (smx(2), [lg(0), cvt(ACCK + 2, ACCK, ACCK + 4), cvt(ACCK + 3, ACCK + 1, ACCK + 5)]),
        (smx(3), ["ds_write2_b32 %s, %s, %s offset0:0 offset1:%d" % (v(C_KW), v(ACCK + 2), v(ACCK + 3), RS)]),
        (V(0, 3), ["v_mov_b64 %s, %s" % (v(ONES, 2), s(S_ONES, 2))]),
        (V(1, 3), ["s_nop 1", "v_mov_b64 %s, %s" % (v(ONES + 2, 2), s(S_ONES, 2))]),
        (V(0, 4), [ex(SX)]),
        (V(1, 4), [lg(0), BAR, ex(SX + 1)]),
        (V(0, 5), [kmrd(0), ex(SX + 2)]),
        (V(1, 5), [kmrd(1), ex(SX + 3)]),
        (V(0, 6), [kmrd(2), cvt(PX, SX, SX + 1), cvt(PX + 1, SX + 2, SX + 3)]),
        (V(1, 6), [kmrd(3), "ds_write_b64 %s, %s offset:%d" % (v(C_MW), v(PX, 2), L_PX), lg(4)]),
        (smm(0), [lg(3), mov0(PM + 1), mov0(VM0 + 1)]),
        (smm(1), [lg(2), mov0(VM1 + 1), zw.pop(0)]),
        (smm(2), [lg(1), zw.pop(0), zw.pop(0)]),
        (smm(3), [lg(0), BAR]),
        (V(0, 7), ["ds_read_b64 %s, %s offset:%d" % (v(PX + 2, 2), v(C_X2), L_PX), zw.pop(0)]),
        (V(1, 7), ([fsc] if push else []) + [zw.pop(0), zw.pop(0), ex(SM), ex(SM + 1), lg(0)]),
        (mf32(LS, ONES, PX, True), [cvt(PM, SM, SM + 1), add(ACCV, 0)]),
        (mf32(OA, VX, PX, True), [add(ACCV, 1), add(ACCV + 4, 0)]),
        (mf32(OA + 4, VX + 4, PX, True), [cvt(VM0, ACCV, ACCV + 1), add(ACCV + 4, 1)]),
        (mf16(LS, ONES, PM), [cvt(VM1, ACCV + 4, ACCV + 5), zw.pop(0)]),
        (mf16(OA, VM0, PM), [zw.pop(0), oad[0]]),
        (mf16(OA + 4, VM1, PM), oad[1:] + ["v_rcp_f32 %s, %s" % (v(TA), v(LS))]),
    ]), ex0)
    assert not zw
    e("v_max_f32 %s, %s, %s" % (v(T0), v(TA), v(LS)))
    e("v_cmp_nge_f32 vcc, %s, %s" % (s(S_BIG), v(T0)))
    for r in (0, 2, 4, 6):
        e("v_pk_mul_f32 %s, %s, %s op_sel_hi:[1,0]" % (v(OA + r, 2), v(OA + r, 2), v(TA, 2)))
    for r in (0, 2, 1, 3):
        e(cvt(OP + r, OA + r, OA + 4 + r))
    if OPT.get("pflat"):
        e("s_memtime s[74:75]")
        e("s_waitcnt vmcnt(1)")
        e("s_memtime s[72:73]")
        e("s_waitcnt lgkmcnt(0)")
    e.label(L("rejoin"))
    if o64:
        for k in range(2):
            e("v_cndmask_b32 %s, %s, %s, %s" % (v(LS + 2 + k), v(OP + k), v(OP + 2 + k), s(S_HM, 2)))
        e("ds_write_b64 %s, %s offset:%d" % (v(C_FL), v(LS + 2, 2), L_OE))
    else:
        e("ds_write_b128 %s, %s offset:%d" % (v(C_MW), v(OP, 4), L_OE))
    WACC = AM
    SO = lambda q, u: smf_ins(WACC + 4 * q, OP if u == 0 else OOP + 4 * u, ("O", q, u))
    ord_ = lambda u: "ds_read_b128 %s, %s offset:%d" % (v(OOP + 4 * u, 4), v(C_X2 if u == 2 and not o64 else OOP + 4 * u), L_OE)
    SEL, RD = ACCV, ACCV + 4
    wc = lambda q, r: cvt(PK + 2 * q + r, WACC + 4 * q + r, WACC + 4 * q + 2 + r)
    extra = {}
    if push:
        extra = {fw: [fst]} if fw >= 0 else {}
        for pos in (OPT.get("fr", 7), OPT.get("fr2", 11), OPT.get("fr3", 14)):
            extra.setdefault(pos, []).append(fld)
    run([
        (SO(0, 0), ["v_bfe_u32 %s, %s, 2, 7" % (v(FA), v(C_L16)), mov0(F0)] if push else []),
        (SO(1, 0), [lg(0), BAR, ord_(1), ord_(2)] if OPT.get("b4", 1) else []),
        (SO(2, 0), [ord_(3)] if OPT.get("b4", 1) else [lg(0), BAR, ord_(1), ord_(2)]),
        (SO(3, 0), ([] if OPT.get("b4", 1) else [ord_(3)]) + [of[0], of[1], lg(4)]),
        (SO(0, 1), [of[2], lg(4)]),
        (SO(0, 2), [of[3], lg(4)]),
        (SO(0, 3), [of[4], "s_cmp_lg_u64 vcc, 0"]),
        (SO(1, 1), [of[5], "s_cselect_b32 %s, %s, %s" % (s(S_TAG), s(S_NPAR), s(S_PAR))]),
        (SO(1, 2), [of[6], wc(0, 0)] + ([wc(0, 1), tg(0)] if OPT.get("fs") else [])),
        (SO(1, 3), [pst(0)] if OPT.get("fs") else [of[7], wc(0, 1), tg(0)]),
        (SO(2, 1), [of[7]] if OPT.get("fs") else [pst(0)]),
        (SO(2, 2), [lg(4), "s_nop 0", wc(1, 0)]),
        (SO(2, 3), ["ds_read_b128 %s, %s offset:%d" % (v(SEL, 4), v(C_L16), L_SEL), wc(1, 1), tg(1)]),
        (SO(3, 1), [pst(1), lg(1)]),
        (SO(3, 2), ["s_nop 1", wc(2, 0)]),
        (SO(3, 3), ["s_nop 2", wc(2, 1), tg(2), pst(2), wc(3, 0), wc(3, 1), tg(3), pst(3)]),
    ], extra)
    e.label(L("stored"))
    stamp(e, 1, stamps)
    e("s_cmp_lg_u32 %s, %s" % (s(S_TAG), s(S_PAR)))
    e("s_cbranch_scc1 %s" % L("safe"))
    f, z = idle_prep_ins()
    n0 = OPT.get("n0", 12)
    PD = VX
    pld = lambda P: ["buffer_load_dwordx4 %s, %s, %s, %s offen sc1" % (v(P, 4), v(C_MW), ws, s(S_PR)),
                     "buffer_load_dwordx4 %s, %s, %s, %s offen offset:1024 sc1" % (v(P + 4, 4), v(C_MW), ws, s(S_PR))]
    pub = "buffer_store_dword %s, %s, %s, %s offen%s" % (v(HPEND), v(C_MP), ws, s(S_T0), sc)
    if push:
        e.label(L("sync"))
        e("v_cmp_gt_u32 vcc, %s, %s" % (s(S_NX2), v(F0)))
        e(fld)
        e("s_add_u32 %s, %s, 1" % (s(S_SPIN), s(S_SPIN)))
        e("s_cmp_le_u32 %s, %d" % (s(S_SPIN), TMO_LIMIT * 8))
        e("s_cselect_b32 %s, %s, 0" % (s(S_NX2), s(S_NX2)))
        e("s_waitcnt vmcnt(24)")
        delay(e, OPT.get("sper", 0))
        e("s_cbranch_vccnz %s" % L("sync"))
    for x in f[:n0]:
        e(x)
    delay(e, OPT.get("d1", 0))
    for q in range(1, 4):
        e("s_cmp_lt_u32 %s, %d" % (s(S_WAVE), q))
        e("s_cbranch_scc1 %s" % L("pollp"))
        delay(e, OPT.get("dp", 40))
    e.label(L("pollp"))
    stamp(e, 4, stamps and not OPT.get("pflat"))
    PB_ = AM + 16
    for x in pld(PD):
        e(x)
    for x in f[n0:] + z[4:8]:
        e(x)
    p1 = OPT.get("p1")
    if ns:
        e("s_cmp_lt_u32 %s, %d" % (s(S_WAVE), ns))
        e("s_cbranch_scc1 %s" % L("onep"))
    if not p1:
        delay(e, OPT.get("pp", 128) - (24 if ns else 0))
        for x in pld(PB_):
            e(x)
    e.label(L("prep"))
    e("s_add_u32 %s, %s, 0x%x" % (s(S_MB), s(S_SLABN), MB_IN))
    chk = lambda P: ["v_bitop3_b32 %s, %s, %s, %s bitop3:0x7e" % (v(T0), v(P), v(P + 2), s(S_PAR)),
                     "v_bitop3_b32 %s, %s, %s, %s bitop3:0x7e" % (v(FREE1), v(P + 4), v(P + 6), s(S_PAR)),
                     "v_bitop3_b32 %s, %s, %s, 1 bitop3:0xa8" % (v(T0), v(T0), v(FREE1)),
                     "v_cmp_ne_u32 vcc, 0, %s" % v(T0)]

    def finish():
        for rot in (8, 4):
            for r in (0, 1):
                e("v_add_f32_dpp %s, %s, %s row_ror:%d row_mask:0xf bank_mask:0xf" % (v(RD + r), v(RD + r), v(RD + r), rot))
        e(cvt(HPEND, RD, RD + 1))
        e(pub)

    def attempt(P, base):
        e("s_waitcnt vmcnt(%d) lgkmcnt(0)" % (base + 1))
        e(mf32(RD, SEL, P, True))
        e(chk(P)[0])
        e("s_waitcnt vmcnt(%d)" % base)
        e(mf32(RD, SEL, P + 4, False))
        for x in chk(P)[1:]:
            e(x)
        e("s_nop 2")
        e("s_cmp_eq_u64 vcc, 0")
        e("s_cselect_b32 %s, %s, %s" % (s(S_T0), s(S_HIST if solo else S_SLABN), s(S_OOB)))
        finish()
    attempt(PD, 0 if p1 else 2)
    if not solo:
        e("s_cbranch_scc1 %s" % L("gotp"))
        if p1:
            for x in pld(PB_):
                e(x)
            e(pub)
            delay(e, 96)
        e.label(L("retryp"))
        for x in pld(PD):
            e(x)
        attempt(PB_, 3)
        e("s_cbranch_scc1 %s" % L("gotp"))
        for x in pld(PB_):
            e(x)
        attempt(PD, 3)
        e("s_cbranch_scc1 %s" % L("gotp"))
        e("s_add_u32 %s, %s, 1" % (s(S_TMO), s(S_TMO)))
        e("s_cmp_le_u32 %s, %d" % (s(S_TMO), TMO_LIMIT))
        e("s_cbranch_scc1 %s" % L("retryp"))
        e("s_mov_b32 %s, %s" % (s(S_T0), s(S_SLABN)))
        e(pub)
    e.label(L("gotp"))
    stamp(e, 2, stamps)
    e("s_add_u32 %s, %s, 0x2000" % (s(S_HIST), s(S_HIST)))
    e("s_cmp_ge_u32 %s, %d" % (s(S_NEXT), nsteps))
    e("s_cbranch_scc1 %s" % L("last"))
    e("s_mov_b32 %s, %s" % (s(S_SLAB), s(S_SLABN)))
    e("s_mov_b32 %s, %s" % (s(S_STEP), s(S_NEXT)))
    e("s_mov_b32 %s, %s" % (s(S_PAR), s(S_NPAR)))
    for x in z[8:]:
        e(x)
    if trace:
        e("s_memrealtime s[100:101]")
        e("s_memtime s[70:71]")
        e("s_lshl_b32 s3, %s, 2" % s(S_H))
        e("s_add_u32 s3, s3, %s" % s(S_WAVE))
        e("s_lshl_b32 s3, s3, 6")
        e("s_add_u32 s3, s3, %s" % s(S_STEP))
        e("s_lshl_b32 s3, s3, 5")
        e("s_add_u32 s3, s3, 0x200000")
        e("s_waitcnt lgkmcnt(0)")
        for k, r in enumerate((64, 66, 68, 100, 70, 72, 74, S_TMO)):
            e("v_mov_b32 %s, %s" % (v(AM + 8 + k), s(r)))
        e("buffer_store_dwordx4 %s, off, %s, s3" % (v(AM + 8, 4), ws))
        e("buffer_store_dwordx4 %s, off, %s, s3 offset:16" % (v(AM + 12, 4), ws))
    delay(e, OPT.get("dm", 112) - (128 if trace else 0))
    if ns and OPT.get("dmx"):
        e("s_cmp_ge_u32 %s, %d" % (s(S_WAVE), ns))
        e("s_cbranch_scc1 %s" % L("firem"))
        delay(e, OPT.get("dmx"))
        e.label(L("firem"))
    stamp(e, 5, stamps and not OPT.get("pflat"))
    for x in mld:
        e(x)
    e("s_branch %s" % L("step"))
    e.label(L("last"))
    e(hist)
    e("s_branch %s" % L("done"))
    if ns:
        e.label(L("onem"))
        e("s_waitcnt vmcnt(0)")
        e("s_branch %s" % L("prem"))
        e.label(L("onep"))
        e("v_mov_b32 %s, %s" % (v(PB_), s(S_NPAR)))
        e("s_waitcnt vmcnt(0)")
        e("s_branch %s" % L("prep"))
    e.label(L("refresh"))
    e("buffer_load_dword %s, %s, %s, %s offen sc1" % (v(JUNK), v(C_PF), ws, s(S_SLAB)))
    e("s_add_u32 %s, %s, 1" % (s(S_TMO), s(S_TMO)))
    e("s_cmp_le_u32 %s, %d" % (s(S_TMO), TMO_LIMIT))
    e("s_waitcnt vmcnt(0)")
    e("s_cbranch_scc1 %s" % L("step"))
    e("s_branch %s" % L("fresh"))
    e.label(L("safe"))
    e.fence(12)
    e("s_waitcnt vmcnt(0) lgkmcnt(0)")
    e("s_barrier")
    W = AM
    for ks in range(4):
        e(qbrd(ks))
        e(kmrd(ks))
    e("s_xor_b32 %s, %s, 0x1000" % (s(S_T0), s(S_KXO)))
    e("s_add_u32 %s, %s, %s" % (s(S_T0), s(S_T0), s(S_SLAB)))
    for ks in range(4):
        e("buffer_load_dwordx4 %s, %s, %s, %s offen offset:%d sc1" % (v(W + 4 * ks, 4), v(C_L16), ws, s(S_KX), ks * 1024))
        e("buffer_load_dwordx4 %s, %s, %s, %s offen offset:%d sc1" % (v(W + 16 + 4 * ks, 4), v(C_L16), ws, s(S_T0), ks * 1024))
    e("s_waitcnt vmcnt(0) lgkmcnt(0)")
    S0, S1, S2 = ACCQ, ACCQ + 4, ACCK
    for (d, src) in ((S0, W), (S1, W + 16), (S2, XA)):
        for ks in range(4):
            e(mf32(d, src + 4 * ks, QB + 4 * ks, ks == 0))
    M0_, M1_ = W, W + 1
    e("v_max3_f32 %s, %s, %s, %s" % (v(M0_), v(S0), v(S0 + 1), v(S0 + 2)))
    e("v_max3_f32 %s, %s, %s, %s" % (v(M0_), v(M0_), v(S0 + 3), v(S1)))
    e("v_max3_f32 %s, %s, %s, %s" % (v(M0_), v(M0_), v(S1 + 1), v(S1 + 2)))
    e("v_max3_f32 %s, %s, %s, %s" % (v(M0_), v(M0_), v(S1 + 3), v(S2)))
    e("v_max_f32 %s, %s, %s" % (v(M0_), v(M0_), v(S2 + 1)))
    for sw in ("v_permlane16_swap_b32", "v_permlane32_swap_b32"):
        e("v_mov_b32 %s, %s" % (v(M1_), v(M0_)))
        e("%s %s, %s" % (sw, v(M0_), v(M1_)))
        e("v_max_f32 %s, %s, %s" % (v(M0_), v(M0_), v(M1_)))
    for r in [S0 + i for i in range(8)] + [S2, S2 + 1]:
        e("v_sub_f32 %s, %s, %s" % (v(r), v(r), v(M0_)))
        e(ex(r))
    for q in range(4):
        e(cvt(PX + q, S0 + 2 * q, S0 + 2 * q + 1))
    e(cvt(PM, S2, S2 + 1))
    e(mf32(LS, ONES, PX, True)); e(mf32(OA, VX, PX, True)); e(mf32(OA + 4, VX + 4, PX, True))
    e(mf16(LS, ONES, PM)); e(mf16(OA, VM0, PM)); e(mf16(OA + 4, VM1, PM))
    e("v_rcp_f32 %s, %s" % (v(TA), v(LS)))
    for r in range(8):
        e("v_mul_f32 %s, %s, %s" % (v(OA + r), v(OA + r), v(TA)))
    for r in range(4):
        e(cvt(OP + r, OA + r, OA + 4 + r))
    for r in range(AM, AM + 16):
        e(mov0(r))
    for x in oad:
        e(x)
    if push:
        e(fsc)
    e("s_mov_b64 vcc, 0")
    e("s_branch %s" % L("rejoin"))
    e.label(L("done"))
```
